```python
import torch

def _softmax(x, axis=-1):
    return torch.softmax(x, dim=axis)
def _gelu(x):
    return torch.nn.functional.gelu(x, approximate="tanh")
def _silu(x):
    return torch.nn.functional.silu(x)
def _sigmoid(x):
    return torch.sigmoid(x)
def _layernorm(x, axis=-1, eps=1e-5):
    m = x.mean(dim=axis, keepdim=True)
    v = x.var(dim=axis, keepdim=True, unbiased=False)
    return (x - m) / torch.sqrt(v + eps)
def _scatter_add(tgt, idx, src, axis=0):
    return tgt.clone().index_add_(axis, idx, src)
def _segment_sum(src, seg, n):
    out = torch.zeros((n,) + src.shape[1:], dtype=src.dtype)
    return out.index_add_(0, seg, src)
def _pad(x, pw):
    flat = tuple(v for pair in reversed(pw) for v in pair)
    return torch.nn.functional.pad(x, flat)

kernel_name = 'gated_mix__spectral_fnet__softmax_full_mha__prompt'

def setup_inputs():

    _w = (lambda a: (lambda t: t.to(torch.bfloat16) if t.is_floating_point() else t)(torch.as_tensor(a)))
    def _A_setup():
        B, S, D = 1, 2048, 640
        ns = torch.arange(S)[:, None] * torch.arange(S)[None, :]
        nd = torch.arange(D)[:, None] * torch.arange(D)[None, :]
        Ws_re = torch.cos(-2.0 * torch.pi * ns / S).to(float)
        Ws_im = torch.sin(-2.0 * torch.pi * ns / S).to(float)
        Wd_re = torch.cos(-2.0 * torch.pi * nd / D).to(float)
        Wd_im = torch.sin(-2.0 * torch.pi * nd / D).to(float)
        return {
            "x": _w((lambda *s: torch.randn(*s, dtype=torch.bfloat16) * 0.05)(B, S, D)),
            "dft_seq_re": _w(Ws_re),
            "dft_seq_im": _w(Ws_im),
            "dft_hid_re": _w(Wd_re),
            "dft_hid_im": _w(Wd_im),
        }
    _A_in = _A_setup()

    def _B_setup():
        B, S, D = 1, 2048, 640
        return {
            "x": _w((lambda *s: torch.randn(*s, dtype=torch.bfloat16) * 0.05)(B, S, D)),
            "wqkv": _w((lambda *s: torch.randn(*s, dtype=torch.bfloat16) * 1.6)(D, 3 * D)),
            "wo": _w((lambda *s: torch.randn(*s, dtype=torch.bfloat16) * 1.6)(D, D)),
        }
    _B_in = _B_setup()

    return {
        "A_x": _A_in["x"],
        "A_dft_seq_re": _A_in["dft_seq_re"],
        "A_dft_seq_im": _A_in["dft_seq_im"],
        "A_dft_hid_re": _A_in["dft_hid_re"],
        "A_dft_hid_im": _A_in["dft_hid_im"],
        "B_x": _B_in["x"],
        "B_wqkv": _B_in["wqkv"],
        "B_wo": _B_in["wo"],
        "gate_w": _w((lambda *s: torch.randn(*s, dtype=torch.bfloat16) * 0.05)(640) * 16.0),
    }

def reference(A_x, A_dft_seq_re, A_dft_seq_im, A_dft_hid_re, A_dft_hid_im, B_x, B_wqkv, B_wo, gate_w):
    def _A_ref(x, dft_seq_re, dft_seq_im, dft_hid_re, dft_hid_im):
        a = torch.einsum("bsd,ed->bse", x, dft_hid_re)
        b = torch.einsum("bsd,ed->bse", x, dft_hid_im)
        y = torch.einsum("ts,bse->bte", dft_seq_re, a) - torch.einsum("ts,bse->bte", dft_seq_im, b)
        return y

    def _B_ref(x, wqkv, wo):
        B, S, D = x.shape
        H = 32; Dh = D // H
        qkv = (lambda x, *d: x.permute(*d))((x @ wqkv).reshape(B, S, 3, H, Dh), 2, 0, 3, 1, 4)
        q, k, v = qkv[0], qkv[1], qkv[2]
        scale = Dh ** -0.5
        scores = torch.einsum("bhqd,bhkd->bhqk", q, k) * scale
        p = _softmax(scores, axis=-1)
        o = torch.einsum("bhqk,bhkd->bhqd", p, v)
        return (lambda x, *d: x.permute(*d))(o, 0, 2, 1, 3).reshape(B, S, D) @ wo

    x = A_x
    g = _sigmoid((x * gate_w).sum(-1, keepdims=True))
    a = _A_ref(x, A_dft_seq_re, A_dft_seq_im, A_dft_hid_re, A_dft_hid_im)
    b = _B_ref(x, B_wqkv, B_wo)
    return g * a + (1 - g) * b
```

```python
class Asm:
    def __init__(self):
        self.lines = []
    def __call__(self, s, *a):
        for l in s.split("\n"):
            l = l.strip()
            if l:
                self.lines.append("    " + l)
    def label(self, n):
        self.lines.append(n + ":")
    def raw(self, s):
        self.lines.append(s)
    def c(self, s):
        self.lines.append("    ; " + s)
    def text(self):
        return "\n".join(self.lines) + "\n"

class Alloc:
    def __init__(self, start, limit):
        self.p = start; self.limit = limit; self.hi = start
    def get(self, n=1, align=1):
        if n >= 2 and align < 2: align = 2
        self.p = (self.p + align - 1) // align * align
        r = self.p; self.p += n
        assert self.p <= self.limit, "out of regs"
        self.hi = max(self.hi, self.p)
        return r

def vr(b, n=1):
    return f"v{b}" if n == 1 else f"v[{b}:{b+n-1}]"
def sr(b, n=1):
    return f"s{b}" if n == 1 else f"s[{b}:{b+n-1}]"

def kernel_begin(a, name):
    a.raw(".text")
    a.raw(f".globl {name}")
    a.raw(".p2align 8")
    a.raw(f".type {name},@function")
    a.label(name)

def kernel_desc(name, vgpr, sgpr=96):
    vg = (vgpr + 7) // 8 * 8
    return f""".section .rodata,"a"
.p2align 6
.amdhsa_kernel {name}
  .amdhsa_next_free_vgpr {vg}
  .amdhsa_next_free_sgpr {sgpr}
  .amdhsa_accum_offset {min(256, vg)}
  .amdhsa_group_segment_fixed_size 0
  .amdhsa_kernarg_size 96
  .amdhsa_user_sgpr_count 2
  .amdhsa_user_sgpr_kernarg_segment_ptr 1
  .amdhsa_system_sgpr_workgroup_id_x 1
.end_amdhsa_kernel
"""

def srd(a, d, base, off, nbytes):
    if off == 0:
        a(f"s_mov_b32 s{d}, s{base}")
        a(f"s_and_b32 s{d+1}, s{base+1}, 0xffff")
    else:
        a(f"s_add_u32 s{d}, s{base}, {off if isinstance(off,str) else hex(off)}")
        a(f"s_addc_u32 s{d+1}, s{base+1}, 0")
        a(f"s_and_b32 s{d+1}, s{d+1}, 0xffff")
    a(f"s_mov_b32 s{d+2}, {nbytes if isinstance(nbytes,str) else hex(nbytes)}")
    a(f"s_mov_b32 s{d+3}, 0x20000")

QF_OFF = 0
QF_HS = 64 * 1280
QF_SIZE = 32 * QF_HS
KV_OFF = QF_OFF + QF_SIZE
KV_HS = 64 * 2560
KV_SIZE = 32 * KV_HS
G_OFF = KV_OFF + KV_SIZE
G_SIZE = 32 * 2 * 64 * 1280
OF_OFF = G_OFF + G_SIZE
OF_SIZE = 80 * 2048 * 16
GATE_OFF = OF_OFF + OF_SIZE
GATE_SIZE = 2048 * 8
KA_X, KA_WSRE, KA_WSIM, KA_WDRE, KA_WDIM, KA_BX, KA_WQKV, KA_WO, KA_GW, KA_OUT, KA_DBG, KA_WS = [8*i for i in range(12)]
```

```python
from asm import *

QSCALE = 0x3ea52b5c

def gen_k1(name="gemm1_kernel"):
    a = Asm()
    kernel_begin(a, name)
    L = lambda s: f"L_{name}_{s}"
    V = Alloc(1, 256)
    vL = V.get(); vT = [V.get() for _ in range(6)]
    vDX = [V.get() for _ in range(4)]; vDW = [V.get() for _ in range(4)]
    vRX = [V.get() for _ in range(4)]; vRW = [V.get() for _ in range(4)]
    vE = [V.get() for _ in range(8)]
    XF = [[V.get(4, 4) for _ in range(2)] for _ in range(2)]
    WF = [[V.get(4, 4) for _ in range(2)] for _ in range(2)]
    ACC = [[V.get(16, 4) for _ in range(2)] for _ in range(2)]
    FR = V.get(8, 4); FRn = V.get(8, 4); FIn = V.get(8, 4)
    G2 = [V.get(16, 4) for _ in range(2)]
    sGW = 20; sWS = 26
    sX = 28; sWt = 32; sOut = 36; sF = 40
    sW = 44; sWm = 45; sWn = 46; sRb = 47; sCb = 48; sOX = 49; sOW = 50; sStepW = 51; sM0 = 52; sMask = 53; sCnt = 54
    sT = 55; sT2 = 56; sScale = 57; sHS = 58; sTS = 59; sMaskD = 60

    a("s_cmp_ge_u32 s2, 416")
    a(f"s_cbranch_scc1 {L('end')}")
    a("s_load_dwordx16 s[4:19], s[0:1], 0")
    a("s_load_dwordx8 s[20:27], s[0:1], 64")
    a(f"v_lshrrev_b32 v{vT[0]}, 6, v0")
    a(f"v_and_b32 v{vL}, 63, v0")
    a(f"v_readfirstlane_b32 s{sW}, v{vT[0]}")
    a(f"s_and_b32 s{sRb}, s2, 7")
    a(f"s_lshl_b32 s{sRb}, s{sRb}, 1")
    a(f"s_bfe_u32 s{sT}, s2, 0x10003")
    a(f"s_add_u32 s{sRb}, s{sRb}, s{sT}")
    a(f"s_lshr_b32 s{sCb}, s2, 4")
    a(f"s_and_b32 s{sWm}, s{sW}, 1")
    a(f"s_lshr_b32 s{sWn}, s{sW}, 1")
    a("s_waitcnt lgkmcnt(0)")
    srd(a, sX, 4, 0, 2048 * 1280)
    a(f"s_cmp_eq_u32 s{sCb}, 15")
    a(f"s_cbranch_scc1 {L('gate')}")

    def nat_read_addrs(dst, swave, base):
        a(f"v_and_b32 v{vT[0]}, 31, v{vL}")
        a(f"v_lshrrev_b32 v{vT[1]}, 5, v{vL}")
        a(f"v_bfe_u32 v{vT[2]}, v{vL}, 1, 3")
        a(f"v_xor_b32 v{vT[1]}, v{vT[1]}, v{vT[2]}")
        a(f"v_lshlrev_b32 v{vT[1]}, 4, v{vT[1]}")
        a(f"v_lshl_add_u32 v{vT[0]}, v{vT[0]}, 7, v{vT[1]}")
        a(f"s_lshl_b32 s{sT}, s{swave}, 13")
        if base: a(f"s_add_u32 s{sT}, s{sT}, {base}")
        a(f"v_add_u32 v{dst[0]}, s{sT}, v{vT[0]}")
        for ks in range(1, 4):
            a(f"v_xor_b32 v{dst[ks]}, {32*ks}, v{dst[0]}")
    def nat_dma_piece():
        a(f"v_and_b32 v{vT[3]}, 7, v{vL}")
        a(f"v_lshrrev_b32 v{vT[4]}, 4, v{vL}")
        a(f"v_xor_b32 v{vT[3]}, v{vT[3]}, v{vT[4]}")
        a(f"v_lshlrev_b32 v{vT[3]}, 4, v{vT[3]}")

    a(f"s_cmp_ge_u32 s{sCb}, 16")
    a(f"s_cbranch_scc1 {L('fsetup')}")
    srd(a, sWt, 16, 0, 640 * 3840)
    nat_dma_piece()
    a(f"v_lshrrev_b32 v{vT[0]}, 3, v{vL}")
    a(f"s_lshl_b32 s{sT}, s{sWm}, 5")
    a(f"v_add_u32 v{vT[0]}, s{sT}, v{vT[0]}")
    a(f"s_lshl_b32 s{sT}, s{sRb}, 1")
    a(f"s_add_u32 s{sT}, s{sT}, s{sWn}")
    a(f"v_lshl_add_u32 v{vT[0]}, v{vT[0]}, 5, s{sT}")
    a(f"v_mul_u32_u24 v{vT[0]}, 1280, v{vT[0]}")
    a(f"v_add_u32 v{vDX[0]}, v{vT[0]}, v{vT[3]}")
    a(f"v_xor_b32 v{vT[3]}, 64, v{vT[3]}")
    a(f"v_add_u32 v{vDX[1]}, v{vT[0]}, v{vT[3]}")
    a(f"v_add_u32 v{vDX[1]}, {256*1280-1024}, v{vDX[1]}")
    a(f"v_add_u32 v{vDX[2]}, {2*256*1280-2048}, v{vDX[0]}")
    a(f"v_add_u32 v{vDX[3]}, {2*256*1280-2048}, v{vDX[1]}")
    a(f"v_lshrrev_b32 v{vT[0]}, 4, v{vL}")
    a(f"v_bfe_u32 v{vT[1]}, v{vL}, 2, 2")
    a(f"v_xor_b32 v{vT[1]}, v{vT[1]}, v{vT[0]}")
    a(f"v_and_b32 v{vT[2]}, 3, v{vL}")
    a(f"v_lshl_add_u32 v{vT[1]}, v{vT[1]}, 2, v{vT[2]}")
    a(f"v_lshlrev_b32 v{vT[1]}, 4, v{vT[1]}")
    a(f"s_lshl_b32 s{sT}, s{sW}, 4")
    a(f"v_add_u32 v{vT[0]}, s{sT}, v{vT[0]}")
    a(f"v_mul_u32_u24 v{vT[0]}, 3840, v{vT[0]}")
    a(f"s_lshl_b32 s{sT}, s{sCb}, 8")
    a(f"v_add3_u32 v{vDW[0]}, v{vT[0]}, v{vT[1]}, s{sT}")
    for j in range(1, 4):
        a(f"v_add_u32 v{vDW[j]}, {j*(4*3840-1024)}, v{vDW[0]}")
    a(f"s_mov_b32 s{sStepW}, {64*3840}")
    a(f"s_branch {L('issue')}")
    a.label(L("fsetup"))
    a(f"s_sub_u32 s{sCb}, s{sCb}, 16")
    a(f"s_cmp_eq_u32 s{sWm}, 0")
    a(f"s_cselect_b32 s{sWt}, s10, s12")
    a(f"s_cselect_b32 s{sWt+1}, s11, s13")
    a(f"s_and_b32 s{sWt+1}, s{sWt+1}, 0xffff")
    a(f"s_mov_b32 s{sWt+2}, {640*1280}")
    a(f"s_mov_b32 s{sWt+3}, 0x20000")
    nat_dma_piece()
    a(f"v_bfe_u32 v{vT[0]}, v{vL}, 3, 2")
    a(f"v_lshrrev_b32 v{vT[1]}, 5, v{vL}")
    a(f"v_lshl_add_u32 v{vT[0]}, v{vT[1]}, 3, v{vT[0]}")
    a(f"s_lshl_b32 s{sT}, s{sRb}, 2")
    a(f"s_add_u32 s{sT}, s{sT}, s{sW}")
    a(f"v_lshl_add_u32 v{vT[1]}, v{vT[0]}, 6, s{sT}")
    a(f"v_mul_u32_u24 v{vT[1]}, 1280, v{vT[1]}")
    a(f"v_xor_b32 v{vT[4]}, 64, v{vT[3]}")
    a(f"v_add_u32 v{vDX[0]}, v{vT[1]}, v{vT[3]}")
    a(f"v_add_u32 v{vDX[1]}, v{vT[1]}, v{vT[4]}")
    a(f"v_add_u32 v{vDX[1]}, {4*64*1280-1024}, v{vDX[1]}")
    a(f"v_add_u32 v{vDX[2]}, {16*64*1280-2048}, v{vDX[0]}")
    a(f"v_add_u32 v{vDX[3]}, {16*64*1280-2048}, v{vDX[1]}")
    a(f"s_lshl_b32 s{sT}, s{sCb}, 6")
    a(f"s_lshl_b32 s{sT2}, s{sWn}, 5")
    a(f"s_add_u32 s{sT}, s{sT}, s{sT2}")
    a(f"v_add_u32 v{vT[1]}, s{sT}, v{vT[0]}")
    a(f"v_mul_u32_u24 v{vT[1]}, 1280, v{vT[1]}")
    a(f"v_add_u32 v{vDW[0]}, v{vT[1]}, v{vT[3]}")
    a(f"v_add_u32 v{vDW[1]}, v{vT[1]}, v{vT[4]}")
    a(f"v_add_u32 v{vDW[1]}, {4*1280-1024}, v{vDW[1]}")
    a(f"v_add_u32 v{vDW[2]}, {16*1280-2048}, v{vDW[0]}")
    a(f"v_add_u32 v{vDW[3]}, {16*1280-2048}, v{vDW[1]}")
    a(f"s_mov_b32 s{sStepW}, 128")
    a(f"s_add_u32 s{sCb}, s{sCb}, 16")
    a.label(L("issue"))
    def dmaX(j): a(f"buffer_load_dwordx4 v{vDX[j]}, s[{sX}:{sX+3}], s{sOX} offen offset:{1024*j} lds")
    def dmaW(j): a(f"buffer_load_dwordx4 v{vDW[j]}, s[{sWt}:{sWt+3}], s{sOW} offen offset:{1024*j} lds")
    a(f"s_lshl_b32 s{sM0}, s{sW}, 12")
    a(f"s_mov_b32 s{sOX}, 0")
    a(f"s_mov_b32 s{sOW}, 0")
    a(f"s_mov_b32 s{sMaskD}, 0x8000")
    a(f"s_mov_b32 s{sCnt}, 4")
    a.label(L("pro"))
    a(f"s_mov_b32 m0, s{sM0}")
    a("s_nop 0")
    for j in range(4): dmaX(j)
    a(f"s_add_u32 m0, s{sM0}, 0x4000")
    a(f"s_add_u32 s{sOX}, s{sOX}, 128")
    for j in range(4): dmaW(j)
    a(f"s_add_u32 s{sOW}, s{sOW}, s{sStepW}")
    a(f"s_xor_b32 s{sM0}, s{sM0}, s{sMaskD}")
    a(f"s_xor_b32 s{sMaskD}, s{sMaskD}, 0x18000")
    a(f"s_sub_u32 s{sCnt}, s{sCnt}, 1")
    a(f"s_cmp_lg_u32 s{sCnt}, 0")
    a(f"s_cbranch_scc1 {L('pro')}")
    nat_read_addrs(vRX, sWm, 0)
    for x in range(2):
        for w in range(2):
            for i in range(16):
                a(f"v_mov_b32 v{ACC[x][w]+i}, 0")
    a(f"s_mov_b32 s{sMask}, 0x8000")
    a(f"s_mov_b32 s{sCnt}, 0")
    a("s_mov_b64 vcc, 0")
    a(f"s_cmp_ge_u32 s{sCb}, 16")
    a(f"s_cbranch_scc1 {L('f')}")
    a(f"v_bfe_u32 v{vT[0]}, v{vL}, 2, 2")
    a(f"v_lshrrev_b32 v{vT[1]}, 5, v{vL}")
    a(f"v_lshl_add_u32 v{vT[1]}, v{vT[1]}, 3, v{vT[0]}")
    a(f"v_lshlrev_b32 v{vT[1]}, 8, v{vT[1]}")
    a(f"s_lshl_b32 s{sT}, s{sWn}, 1")
    a(f"v_xor_b32 v{vT[0]}, s{sT}, v{vT[0]}")
    a(f"v_lshl_add_u32 v{vT[1]}, v{vT[0]}, 6, v{vT[1]}")
    a(f"v_bfe_u32 v{vT[0]}, v{vL}, 4, 1")
    a(f"v_lshl_add_u32 v{vT[1]}, v{vT[0]}, 5, v{vT[1]}")
    a(f"v_and_b32 v{vT[0]}, 3, v{vL}")
    a(f"v_lshl_add_u32 v{vT[1]}, v{vT[0]}, 3, v{vT[1]}")
    a(f"v_add_u32 v{vRW[0]}, 0x4000, v{vT[1]}")
    a(f"v_xor_b32 v{vRW[1]}, 64, v{vRW[0]}")
    a(f"s_cmp_ge_u32 s{sCb}, 10")
    a(f"s_cbranch_scc1 {L('v')}")

    def mainloop(mode):
        tr = mode != 'f'
        nw = 2 if tr else 1
        def rdX(s, ks, x): a(f"ds_read_b128 {vr(XF[s][x],4)}, v{vRX[ks]} offset:{4096*x}")
        def rdW(s, ks, w):
            if tr:
                a(f"ds_read_b64_tr_b16 {vr(WF[s][w],2)}, v{vRW[w]} offset:{4096*ks}")
                a(f"ds_read_b64_tr_b16 {vr(WF[s][w]+2,2)}, v{vRW[w]} offset:{4096*ks+1024}")
            else:
                a(f"ds_read_b128 {vr(WF[s][w],4)}, v{vRW[ks]} offset:{4096*w}")
        def mf(s, x, w):
            A, B = (WF[s][w], XF[s][x]) if mode == 'qk' else (XF[s][x], WF[s][w])
            a(f"v_mfma_f32_32x32x16_bf16 {vr(ACC[x][w],16)}, {vr(A,4)}, {vr(B,4)}, {vr(ACC[x][w],16)}")
        a("s_waitcnt vmcnt(24)")
        a("s_barrier")
        rdX(0, 0, 0); rdW(0, 0, 0); rdX(0, 0, 1); rdW(0, 0, 1)
        a.raw(".p2align 6")
        a.label(L(mode + "loop"))
        sites = [[], [], []]
        for ks in range(4):
            s = ks % 2; n = 1 - s; nk = (ks + 1) % 4
            if ks < 3:
                a(f"s_waitcnt lgkmcnt({1+nw})")
                mf(s, 0, 0)
            else:
                a("s_waitcnt lgkmcnt(0)")
                mf(s, 0, 0)
                a("s_waitcnt vmcnt(16)")
                a("s_barrier")
                for r in vRX + (vRW[:2] if tr else vRW):
                    a(f"v_xor_b32 v{r}, s{sMask}, v{r}")
                a(f"s_xor_b32 s{sMask}, s{sMask}, 0x18000")
            rdX(n, nk, 0); rdW(n, nk, 0)
            if ks < 3: a(f"s_waitcnt lgkmcnt({2*nw+1})")
            mf(s, 1, 0)
            rdX(n, nk, 1)
            if ks < 3:
                lab = L(f"{mode}sk{ks}")
                a(f"s_cbranch_vccz {lab}")
                if ks == 0:
                    a(f"s_mov_b32 m0, s{sM0}")
                    a("s_nop 0")
                    dmaX(0); dmaX(1); dmaX(2)
                elif ks == 1:
                    dmaX(3)
                    a(f"s_add_u32 m0, s{sM0}, 0x4000")
                    a(f"s_add_u32 s{sOX}, s{sOX}, 128")
                    dmaW(0); dmaW(1)
                else:
                    dmaW(2); dmaW(3)
                    a(f"s_add_u32 s{sOW}, s{sOW}, s{sStepW}")
                    a(f"s_xor_b32 s{sM0}, s{sM0}, s{sMaskD}")
                    a(f"s_xor_b32 s{sMaskD}, s{sMaskD}, 0x18000")
                a.label(lab)
                a(f"s_waitcnt lgkmcnt({nw+2})")
            mf(s, 0, 1)
            rdW(n, nk, 1)
            if ks == 3:
                a(f"s_add_u32 s{sCnt}, s{sCnt}, 1")
                a("s_mov_b64 vcc, -1")
                a(f"s_cmp_ge_u32 s{sCnt}, 7")
                a(f"s_cselect_b32 s{sX+2}, 0, s{sX+2}")
                a(f"s_cselect_b32 s{sWt+2}, 0, s{sWt+2}")
                a(f"s_cmp_lg_u32 s{sCnt}, 10")
            mf(s, 1, 1)
        a(f"s_cbranch_scc1 {L(mode+'loop')}")
        a("s_nop 12")

    a(f"s_cmp_ge_u32 s{sCb}, 5")
    a(f"s_cselect_b32 s{sScale}, 1.0, {hex(QSCALE)}")
    a(f"s_cselect_b32 s{sTS}, 1, 0")
    a(f"s_cselect_b32 s{sT}, {KV_OFF}, {QF_OFF}")
    a(f"s_cselect_b32 s{sT2}, 5, 0")
    srd(a, sOut, sWS, f"s{sT}", KV_SIZE)
    a(f"s_lshl_b32 s{sHS}, {QF_HS}, s{sTS}")
    a(f"s_lshl_b32 s{sTS}, 1280, s{sTS}")
    a(f"s_sub_u32 s{sT2}, s{sCb}, s{sT2}")
    a(f"s_lshl_b32 s{sT2}, s{sT2}, 5")
    a(f"s_lshl_b32 s{sT}, s{sWn}, 4")
    a(f"s_add_u32 s{sT2}, s{sT2}, s{sT}")
    a(f"v_lshrrev_b32 v{vT[0]}, 5, v{vL}")
    a(f"v_add_u32 v{vT[0]}, s{sT2}, v{vT[0]}")
    a(f"v_and_b32 v{vT[5]}, 31, v{vL}")
    a(f"v_lshlrev_b32 v{vT[5]}, 3, v{vT[5]}")
    a(f"s_lshl_b32 s{sT}, s{sRb}, 2")
    a(f"s_lshl_b32 s{sT2}, s{sWm}, 1")
    a(f"s_add_u32 s{sT}, s{sT}, s{sT2}")
    a(f"s_mul_i32 s{sT}, s{sT}, s{sTS}")
    for e in range(8):
        a(f"v_add_u32 v{vT[1]}, {2*e}, v{vT[0]}")
        a(f"v_mul_u32_u24 v{vT[2]}, 205, v{vT[1]}")
        a(f"v_lshrrev_b32 v{vT[2]}, 10, v{vT[2]}")
        a(f"v_mul_u32_u24 v{vT[3]}, 5, v{vT[2]}")
        a(f"v_sub_u32 v{vT[1]}, v{vT[1]}, v{vT[3]}")
        a(f"v_mul_lo_u32 v{vE[e]}, v{vT[2]}, s{sHS}")
        a(f"v_lshrrev_b32 v{vT[3]}, 1, v{vT[1]}")
        a(f"v_lshl_add_u32 v{vE[e]}, v{vT[3]}, 9, v{vE[e]}")
        a(f"v_and_b32 v{vT[4]}, 1, v{vT[1]}")
        a(f"v_lshl_add_u32 v{vE[e]}, v{vT[4]}, 3, v{vE[e]}")
        a(f"v_lshrrev_b32 v{vT[3]}, 1, v{vT[3]}")
        a(f"v_sub_u32 v{vT[3]}, 1, v{vT[3]}")
        a(f"v_lshlrev_b32 v{vT[3]}, v{vT[3]}, v{vT[5]}")
        a(f"v_add3_u32 v{vE[e]}, v{vE[e]}, v{vT[3]}, s{sT}")
    mainloop('qk')
    for x in range(2):
        for w in range(2):
            acc = ACC[x][w]
            for i in range(16):
                a(f"v_mul_f32 v{acc+i}, s{sScale}, v{acc+i}")
            for i in range(8):
                a(f"v_cvt_pk_bf16_f32 v{acc+i}, v{acc+2*i}, v{acc+2*i+1}")
            for g in range(4):
                so = "0" if x == 0 else f"s{sTS}"
                a(f"buffer_store_dwordx2 {vr(acc+2*g,2)}, v{vE[4*w+g]}, s[{sOut}:{sOut+3}], {so} offen")
    a("s_endpgm")
    a.label(L("v"))
    srd(a, sOut, sWS, KV_OFF, KV_SIZE)
    a(f"s_sub_u32 s{sT2}, s{sCb}, 10")
    a(f"s_lshl_b32 s{sT2}, s{sT2}, 7")
    a(f"s_lshl_b32 s{sT}, s{sWn}, 6")
    a(f"s_add_u32 s{sT2}, s{sT2}, s{sT}")
    a(f"v_and_b32 v{vT[0]}, 31, v{vL}")
    a(f"v_add_u32 v{vT[0]}, s{sT2}, v{vT[0]}")
    a(f"v_lshrrev_b32 v{vT[5]}, 5, v{vL}")
    a(f"v_mul_u32_u24 v{vT[5]}, 320, v{vT[5]}")
    a(f"s_lshl_b32 s{sT}, s{sRb}, 2")
    a(f"s_lshl_b32 s{sT2}, s{sWm}, 1")
    a(f"s_add_u32 s{sT}, s{sT}, s{sT2}")
    a(f"s_mul_i32 s{sT}, s{sT}, 2560")
    a(f"s_add_u32 s{sT}, s{sT}, 1280")
    a(f"s_mov_b32 s{sHS}, {KV_HS}")
    for e in range(2):
        a(f"v_add_u32 v{vT[1]}, {32*e}, v{vT[0]}")
        a(f"v_mul_u32_u24 v{vT[2]}, 1639, v{vT[1]}")
        a(f"v_lshrrev_b32 v{vT[2]}, 15, v{vT[2]}")
        a(f"v_mul_u32_u24 v{vT[3]}, 20, v{vT[2]}")
        a(f"v_sub_u32 v{vT[1]}, v{vT[1]}, v{vT[3]}")
        a(f"v_and_b32 v{vT[3]}, 1, v{vT[2]}")
        a(f"v_lshl_add_u32 v{vT[1]}, v{vT[3]}, 4, v{vT[1]}")
        a(f"v_subrev_u32 v{vT[3]}, 20, v{vT[1]}")
        a(f"v_min_u32 v{vT[1]}, v{vT[1]}, v{vT[3]}")
        a(f"v_and_b32 v{vT[3]}, 0x13, v{vT[1]}")
        a(f"v_bfe_u32 v{vT[4]}, v{vT[1]}, 2, 1")
        a(f"v_lshl_add_u32 v{vT[3]}, v{vT[4]}, 3, v{vT[3]}")
        a(f"v_bfe_u32 v{vT[4]}, v{vT[1]}, 3, 1")
        a(f"v_lshl_add_u32 v{vT[3]}, v{vT[4]}, 2, v{vT[3]}")
        a(f"v_mul_lo_u32 v{vE[e]}, v{vT[2]}, s{sHS}")
        a(f"v_lshl_add_u32 v{vE[e]}, v{vT[3]}, 4, v{vE[e]}")
        a(f"v_add3_u32 v{vE[e]}, v{vE[e]}, v{vT[5]}, s{sT}")
    mainloop('v')
    for x in range(2):
        for w in range(2):
            acc = ACC[x][w]
            for i in range(8):
                a(f"v_cvt_pk_bf16_f32 v{acc+i}, v{acc+2*i}, v{acc+2*i+1}")
            for j in range(2):
                a(f"buffer_store_dwordx4 {vr(acc+4*j,4)}, v{vE[w]}, s[{sOut}:{sOut+3}], 0 offen offset:{2560*x+640*j}")
    a("s_endpgm")
    a.label(L("f"))
    nat_read_addrs(vRW, sWn, 0x4000)
    srd(a, sOut, sWS, G_OFF, G_SIZE)
    a(f"v_and_b32 v{vT[0]}, 31, v{vL}")
    a(f"v_lshrrev_b32 v{vT[1]}, 5, v{vL}")
    a(f"s_mov_b32 s{sT}, 163840")
    a(f"v_mul_lo_u32 v{vE[0]}, v{vT[0]}, s{sT}")
    a(f"v_lshl_add_u32 v{vE[0]}, v{vT[1]}, 4, v{vE[0]}")
    a(f"s_lshl_b32 s{sT}, s{sRb}, 2")
    a(f"s_lshl_b32 s{sT2}, s{sWm}, 1")
    a(f"s_add_u32 s{sT}, s{sT}, s{sT2}")
    a(f"s_mul_i32 s{sT}, s{sT}, 1280")
    a(f"s_sub_u32 s{sT2}, s{sCb}, 16")
    a(f"s_lshl_b32 s{sT2}, s{sT2}, 7")
    a(f"s_add_u32 s{sT}, s{sT}, s{sT2}")
    a(f"s_lshl_b32 s{sT2}, s{sWn}, 6")
    a(f"s_add_u32 s{sT}, s{sT}, s{sT2}")
    a(f"v_add_u32 v{vE[0]}, s{sT}, v{vE[0]}")
    a(f"s_mov_b32 s{sTS}, 81920")
    a(f"v_lshlrev_b32 v{vE[1]}, 18, v{vT[0]}")
    a(f"v_lshl_add_u32 v{vE[1]}, v{vT[1]}, 4, v{vE[1]}")
    mainloop('f')
    srd(a, sF, 6, 0, 2048 * 4096)
    a(f"buffer_load_dwordx4 {vr(FR,4)}, v{vE[1]}, s[{sF}:{sF+3}], 0 offen")
    a(f"buffer_load_dwordx4 {vr(FR+4,4)}, v{vE[1]}, s[{sF}:{sF+3}], 0 offen offset:32")
    srd(a, sX, 8, 0, 2048 * 4096)
    a(f"buffer_load_dwordx4 {vr(FIn,4)}, v{vE[1]}, s[{sX}:{sX+3}], 0 offen")
    a(f"buffer_load_dwordx4 {vr(FIn+4,4)}, v{vE[1]}, s[{sX}:{sX+3}], 0 offen offset:32")
    for x in range(2):
        for w in range(2):
            acc = ACC[x][w]
            for i in range(8):
                a(f"v_cvt_pk_bf16_f32 v{acc+i}, v{acc+2*i}, v{acc+2*i+1}")
    a("s_waitcnt vmcnt(0)")
    for i in range(8):
        a(f"v_xor_b32 v{FRn+i}, 0x80008000, v{FR+i}")
        a(f"v_xor_b32 v{FIn+i}, 0x80008000, v{FIn+i}")
    a("s_nop 1")
    for x in range(2):
        za, zb = ACC[x][0], ACC[x][1]
        m = lambda d, A, B, c: a(f"v_mfma_f32_32x32x16_bf16 {vr(d,16)}, {vr(A,4)}, {vr(B,4)}, {c}")
        g0, g1 = G2
        m(g0, za, FR, "0"); m(g0, za+4, FR+4, vr(g0,16)); m(g0, zb, FIn, vr(g0,16)); m(g0, zb+4, FIn+4, vr(g0,16))
        m(g1, zb, FRn, "0"); m(g1, zb+4, FRn+4, vr(g1,16)); m(g1, za, FIn, vr(g1,16)); m(g1, za+4, FIn+4, vr(g1,16))
        a("s_nop 12")
        for p in range(2):
            g = G2[p]
            dst = ACC[x][p] + 8
            for i in range(8):
                a(f"v_cvt_pk_bf16_f32 v{dst+i}, v{g+2*i}, v{g+2*i+1}")
            for j in range(2):
                so = "0" if p == 0 else f"s{sTS}"
                a(f"buffer_store_dwordx4 {vr(dst+4*j,4)}, v{vE[0]}, s[{sOut}:{sOut+3}], {so} offen offset:{1280*x+32*j}")
    a("s_endpgm")
    a.label(L("gate"))
    GW = 40; GX = 64
    srd(a, sWt, sGW, 0, 1280)
    srd(a, sOut, sWS, GATE_OFF, GATE_SIZE)
    a(f"v_and_b32 v{vT[0]}, 15, v{vL}")
    a(f"v_lshlrev_b32 v{vT[0]}, 4, v{vT[0]}")
    for p in range(5):
        a(f"buffer_load_dwordx4 {vr(GW+4*p,4)}, v{vT[0]}, s[{sWt}:{sWt+3}], 0 offen offset:{256*p}")
    a(f"v_lshrrev_b32 v{vT[1]}, 4, v{vL}")
    a(f"s_lshl_b32 s{sT}, s{sRb}, 7")
    a(f"s_lshl_b32 s{sT2}, s{sW}, 5")
    a(f"s_add_u32 s{sT}, s{sT}, s{sT2}")
    a(f"v_add_u32 v{vT[1]}, s{sT}, v{vT[1]}")
    a(f"v_mul_u32_u24 v{vT[2]}, 1280, v{vT[1]}")
    a(f"v_add_u32 v{vT[2]}, v{vT[2]}, v{vT[0]}")
    a(f"v_lshlrev_b32 v{vT[1]}, 3, v{vT[1]}")
    a(f"s_mov_b32 s{sOX}, 0")
    a(f"v_cmp_eq_u32 s[62:63], 0, v{vT[0]}")
    for r in range(8):
        for p in range(5):
            a(f"buffer_load_dwordx4 {vr(GX+20*r+4*p,4)}, v{vT[2]}, s[{sX}:{sX+3}], s{sOX} offen offset:{256*p}")
        a(f"s_add_u32 s{sOX}, s{sOX}, {4*1280}")
        a(f"v_mov_b32 v{vE[r]}, 0")
    for r in range(8):
        a(f"s_waitcnt vmcnt({35-5*r})")
        for i in range(20):
            a(f"v_dot2c_f32_bf16 v{vE[r]}, v{GX+20*r+i}, v{GW+i}")
    a("s_nop 3")
    for sh in (8, 4, 2, 1):
        for r in range(8):
            a(f"v_add_f32_dpp v{vE[r]}, v{vE[r]}, v{vE[r]} row_ror:{sh} row_mask:0xf bank_mask:0xf")
    for r in range(8): a(f"v_cvt_pk_bf16_f32 v{vE[r]}, 0, v{vE[r]}")
    for r in range(8): a(f"v_mul_f32 v{vE[r]}, 0xbfb8aa3b, v{vE[r]}")
    for r in range(8): a(f"v_exp_f32 v{vE[r]}, v{vE[r]}")
    for r in range(8): a(f"v_add_f32 v{vE[r]}, 1.0, v{vE[r]}")
    for r in range(8): a(f"v_rcp_f32 v{vE[r]}, v{vE[r]}")
    for r in range(8): a(f"v_cvt_pk_bf16_f32 v{GX+2*r}, 0, v{vE[r]}")
    for r in range(8): a(f"v_sub_f32 v{GX+2*r+1}, 1.0, v{GX+2*r}")
    for r in range(8): a(f"v_cvt_pk_bf16_f32 v{GX+2*r+1}, 0, v{GX+2*r+1}")
    a("s_mov_b64 exec, s[62:63]")
    for r in range(8):
        a(f"buffer_store_dwordx2 {vr(GX+2*r,2)}, v{vT[1]}, s[{sOut}:{sOut+3}], 0 offen offset:{32*r}")
    assert vE[7] < GW
    V.hi = max(V.hi, GX + 160)
    a.label(L("end"))
    a("s_endpgm")
    return a.text(), kernel_desc(name, V.hi), f"; @launch kernel={name} grid=(416,1,1) block=(256,1,1) lds=131072"
```

```python
from asm import *

def gen_k2(name="attn_kernel", prio_tail=1):
    a = Asm()
    kernel_begin(a, name)
    V = Alloc(1, 256)
    vKm = V.get(); vKr = V.get(); vV = V.get(); vT = V.get(); vT2 = V.get(); vL = V.get(); vM = V.get()
    Qm = [V.get(4, 4) for _ in range(2)]
    Qr = [V.get(2) for _ in range(2)]
    Km = [V.get(4, 4) for _ in range(4)]
    Kr = [V.get(2) for _ in range(4)]
    Vb = [[V.get(4, 4) for _ in range(2)] for _ in range(4)]
    P = V.get(8, 4)
    S = [V.get(16, 4) for _ in range(2)]
    O = [V.get(16, 4) for _ in range(2)]
    K0m = V.get(4, 4); K0r = V.get(2)
    sWS = 4
    sKV = 8; sQ = 12; sO = 16; sKVall = 20
    sLo = 24; sVm = 26; sHi = 28
    sHead = 30; sQb = 31; sW = 32; sQg = 33; sKh = 34; sOff = 35; sCnt = 36; sT = 37; sT2 = 38
    L = lambda s: f"L_{name}_{s}"

    a("s_cmp_ge_u32 s2, 256")
    a(f"s_cbranch_scc1 {L('end')}")
    a(f"s_load_dwordx2 s[{sWS}:{sWS+1}], s[0:1], {KA_WS}")
    a(f"v_lshrrev_b32 v{vT}, 6, v0")
    a(f"v_and_b32 v{vL}, 63, v0")
    a(f"v_readfirstlane_b32 s{sW}, v{vT}")
    a(f"s_and_b32 s{sHead}, s2, 7")
    a(f"s_lshl_b32 s{sHead}, s{sHead}, 2")
    a(f"s_bfe_u32 s{sT}, s2, 0x20003")
    a(f"s_add_u32 s{sHead}, s{sHead}, s{sT}")
    a(f"s_lshr_b32 s{sQb}, s2, 5")
    a(f"s_and_b32 s{sQg}, s{sW}, 3")
    a(f"s_lshr_b32 s{sKh}, s{sW}, 2")
    a(f"s_mov_b32 s{sLo}, -1")
    a(f"s_mov_b32 s{sLo+1}, 0")
    a(f"s_mov_b32 s{sHi}, 0")
    a(f"s_mov_b32 s{sHi+1}, -1")
    a(f"s_mov_b32 s{sVm}, 0xfffff")
    a(f"s_mov_b32 s{sVm+1}, 0xfffff")
    a(f"v_lshlrev_b32 v{vKm}, 4, v{vL}")
    a(f"v_and_b32 v{vT}, 31, v{vL}")
    a(f"v_lshlrev_b32 v{vKr}, 3, v{vT}")
    a(f"v_add_u32 v{vKr}, 1024, v{vKr}")
    a(f"v_lshrrev_b32 v{vT2}, 5, v{vL}")
    a(f"v_mul_u32_u24 v{vV}, 320, v{vT2}")
    a(f"v_lshl_add_u32 v{vV}, v{vT}, 4, v{vV}")
    a(f"v_add_u32 v{vV}, 1280, v{vV}")
    a("s_waitcnt lgkmcnt(0)")
    a(f"s_mul_i32 s{sT}, s{sHead}, {KV_HS}")
    a(f"s_add_u32 s{sT}, s{sT}, {KV_OFF}")
    srd(a, sKVall, sWS, f"s{sT}", KV_HS)
    a(f"s_mul_i32 s{sT2}, s{sKh}, {KV_HS//2}")
    a(f"s_add_u32 s{sT}, s{sT}, s{sT2}")
    srd(a, sKV, sWS, f"s{sT}", KV_HS // 2)
    a(f"s_mul_i32 s{sT}, s{sHead}, {QF_HS}")
    a(f"s_lshl_b32 s{sT2}, s{sQb}, 2")
    a(f"s_add_u32 s{sT2}, s{sT2}, s{sQg}")
    a(f"s_mul_i32 s{sT2}, s{sT2}, 2560")
    a(f"s_add_u32 s{sT}, s{sT}, s{sT2}")
    if QF_OFF: a(f"s_add_u32 s{sT}, s{sT}, {QF_OFF}")
    srd(a, sQ, sWS, f"s{sT}", 2560)
    srd(a, sO, sWS, OF_OFF, OF_SIZE)
    a(f"buffer_load_dwordx4 {vr(K0m,4)}, v{vKm}, s[{sKVall}:{sKVall+3}], 0 offen")
    a(f"buffer_load_dwordx4 {vr(Qm[0],4)}, v{vKm}, s[{sQ}:{sQ+3}], 0 offen")
    a(f"buffer_load_dwordx4 {vr(Qm[1],4)}, v{vKm}, s[{sQ}:{sQ+3}], 0 offen offset:1280")
    for r in [K0r] + Kr:
        a(f"v_mov_b32 v{r}, 0x3f803f80")
        a(f"v_mov_b32 v{r+1}, 0x3f80")
    for q in range(2):
        a(f"v_mov_b32 v{Qr[q]}, 0")
        a(f"v_mov_b32 v{Qr[q]+1}, 0")
    a(f"s_mov_b64 exec, s[{sLo}:{sLo+1}]")
    a(f"buffer_load_dwordx2 {vr(K0r,2)}, v{vKr}, s[{sKVall}:{sKVall+3}], 0 offen")
    a(f"buffer_load_dwordx2 {vr(Qr[0],2)}, v{vKr}, s[{sQ}:{sQ+3}], 0 offen")
    a(f"buffer_load_dwordx2 {vr(Qr[1],2)}, v{vKr}, s[{sQ}:{sQ+3}], 0 offen offset:1280")
    a(f"buffer_load_dwordx2 {vr(Kr[0],2)}, v{vKr}, s[{sKV}:{sKV+3}], 0 offen")
    a("s_mov_b64 exec, -1")
    a(f"buffer_load_dwordx4 {vr(Km[0],4)}, v{vKm}, s[{sKV}:{sKV+3}], 0 offen")
    for b in range(4):
        for j in range(2):
            for i in range(4):
                a(f"v_mov_b32 v{Vb[b][j]+i}, 0x3f803f80")
    def group(kb, vb):
        a(f"s_mov_b64 exec, s[{sLo}:{sLo+1}]")
        a(f"buffer_load_dwordx2 {vr(Kr[kb],2)}, v{vKr}, s[{sKV}:{sKV+3}], s{sOff} offen offset:2560")
        a(f"s_mov_b64 exec, s[{sVm}:{sVm+1}]")
        a(f"buffer_load_dwordx4 {vr(Vb[vb][0],4)}, v{vV}, s[{sKV}:{sKV+3}], s{sOff} offen")
        a(f"buffer_load_dwordx4 {vr(Vb[vb][1],4)}, v{vV}, s[{sKV}:{sKV+3}], s{sOff} offen offset:640")
        a("s_mov_b64 exec, -1")
        a(f"buffer_load_dwordx4 {vr(Km[kb],4)}, v{vKm}, s[{sKV}:{sKV+3}], s{sOff} offen offset:2560")
        a(f"s_add_u32 s{sOff}, s{sOff}, 2560")
    a(f"s_mov_b32 s{sOff}, 0")
    for g in range(3):
        group(g + 1, g)
    for q in range(2):
        for i in range(16):
            a(f"v_mov_b32 v{O[q]+i}, 0")
    for i in range(8):
        a(f"v_mov_b32 v{P+i}, 0")
    a("s_waitcnt vmcnt(14)")
    for q in range(2):
        a(f"v_mfma_f32_32x32x16_bf16 {vr(S[q],16)}, {vr(K0m,4)}, {vr(Qm[q],4)}, 0")
    a("s_nop 9")
    for q in range(2):
        a(f"v_mfma_f32_32x32x8_bf16 {vr(S[q],16)}, {vr(K0r,2)}, {vr(Qr[q],2)}, {vr(S[q],16)}")
    a("s_nop 11")
    for q in range(2):
        a(f"v_max3_f32 v{S[q]}, v{S[q]}, v{S[q]+1}, v{S[q]+2}")
        for i in range(3, 15, 2):
            a(f"v_max3_f32 v{S[q]}, v{S[q]}, v{S[q]+i}, v{S[q]+i+1}")
        a(f"v_max_f32 v{S[q]}, v{S[q]}, v{S[q]+15}")
    a(f"s_mov_b64 exec, s[{sHi}:{sHi+1}]")
    for q in range(2):
        a(f"v_cvt_pk_bf16_f32 v{Qr[q]}, -v{S[q]}, 0")
    a("s_mov_b64 exec, -1")
    a("s_waitcnt vmcnt(12)")
    a("s_nop 1")
    a(f"v_mfma_f32_32x32x16_bf16 {vr(S[0],16)}, {vr(Km[0],4)}, {vr(Qm[0],4)}, 0")
    a("s_nop 9")
    a(f"v_mfma_f32_32x32x8_bf16 {vr(S[0],16)}, {vr(Kr[0],2)}, {vr(Qr[0],2)}, {vr(S[0],16)}")
    a(f"s_mov_b32 s{sCnt}, 8")
    a("s_setprio 1")
    a("s_nop 9")

    def exp(q, i): a(f"v_exp_f32 v{S[q]+i}, v{S[q]+i}")
    def cvt(q, i): a(f"v_cvt_pk_bf16_f32 v{P+i}, v{S[q]+2*i}, v{S[q]+2*i+1}")
    def slot(kt, q):
        nq = 1 - q
        nk = (kt + q) % 4
        pk = (kt + q - 1) % 4
        a(f"v_mfma_f32_32x32x16_bf16 {vr(S[nq],16)}, {vr(Km[nk],4)}, {vr(Qm[nq],4)}, 0")
        for i in range(0, 4): exp(q, i)
        a(f"v_mfma_f32_32x32x16_bf16 {vr(O[nq],16)}, {vr(Vb[pk][1],4)}, {vr(P+4,4)}, {vr(O[nq],16)}")
        for i in range(4, 8): exp(q, i)
        cvt(q, 0)
        a(f"v_mfma_f32_32x32x8_bf16 {vr(S[nq],16)}, {vr(Kr[nk],2)}, {vr(Qr[nq],2)}, {vr(S[nq],16)}")
        if q == 0:
            group(kt, (kt - 1) % 4)
        for i in range(1, 4): cvt(q, i)
        for i in range(8, 12): exp(q, i)
        if q == 0:
            a("s_waitcnt vmcnt(12)")
        a(f"v_mfma_f32_32x32x16_bf16 {vr(O[q],16)}, {vr(Vb[kt][0],4)}, {vr(P,4)}, {vr(O[q],16)}")
        for i in range(12, 16): exp(q, i)
        for i in range(4, 8): cvt(q, i)
    a.raw(".p2align 6")
    a.label(L("loop"))
    for kt in range(4):
        for q in range(2):
            slot(kt, q)
            if kt == 0 and q == 0:
                a(f"s_sub_u32 s{sCnt}, s{sCnt}, 1")
                if prio_tail:
                    a(f"s_cmp_lt_u32 s{sCnt}, {prio_tail}")
                    a(f"s_cbranch_scc0 {L('np')}")
                    a("s_setprio 0")
                    a.label(L("np"))
    a(f"s_cmp_lg_u32 s{sCnt}, 0")
    a(f"s_cbranch_scc1 {L('loop')}")
    a("s_nop 0")
    a(f"v_mfma_f32_32x32x16_bf16 {vr(O[1],16)}, {vr(Vb[3][1],4)}, {vr(P+4,4)}, {vr(O[1],16)}")
    a(f"s_lshl_b32 s{sT}, s{sW}, 12")
    a(f"v_add_u32 v{vT}, s{sT}, v{vKm}")
    a(f"v_xor_b32 v{vT2}, 0x4000, v{vT}")
    a("s_nop 9")
    a(f"s_cmp_eq_u32 s{sKh}, 0")
    a(f"s_cbranch_scc1 {L('x0')}")
    for r in range(3):
        a(f"ds_write_b128 v{vT}, {vr(O[0]+4*r,4)} offset:{1024*r}")
    a(f"ds_write_b32 v{vT}, v{O[0]+12} offset:3072")
    a("s_waitcnt lgkmcnt(0)")
    for i in range(13):
        a(f"v_mov_b32 v{O[0]+i}, v{O[1]+i}")
    for i in range(4):
        a(f"v_mov_b32 v{Qm[0]+i}, v{Qm[1]+i}")
    for i in range(2):
        a(f"v_mov_b32 v{Qr[0]+i}, v{Qr[1]+i}")
    a(f"s_branch {L('x1')}")
    a.label(L("x0"))
    for r in range(3):
        a(f"ds_write_b128 v{vT}, {vr(O[1]+4*r,4)} offset:{1024*r}")
    a(f"ds_write_b32 v{vT}, v{O[1]+12} offset:3072")
    a.label(L("x1"))
    a("s_waitcnt lgkmcnt(0)")
    a("s_barrier")
    for r in range(3):
        a(f"ds_read_b128 {vr(S[0]+4*r,4)}, v{vT2} offset:{1024*r}")
    a(f"ds_read_b32 v{S[0]+12}, v{vT2} offset:3072")
    a(f"s_lshl_b32 s{sT}, s{sQb}, 3")
    a(f"s_lshl_b32 s{sT2}, s{sQg}, 1")
    a(f"s_add_u32 s{sT}, s{sT}, s{sT2}")
    a(f"s_add_u32 s{sT}, s{sT}, s{sKh}")
    a(f"s_lshl_b32 s{sT}, s{sT}, 9")
    a(f"s_lshr_b32 s{sT2}, s{sHead}, 1")
    a(f"s_mul_i32 s{sT2}, s{sT2}, {5*32768}")
    a(f"s_add_u32 s{sT}, s{sT}, s{sT2}")
    a(f"s_and_b32 s{sT2}, s{sHead}, 1")
    a(f"s_mul_i32 s{sOff}, s{sT2}, {3*32768}")
    a(f"s_add_u32 s{sOff}, s{sOff}, s{sT}")
    a(f"s_lshl_b32 s{sT2}, s{sT2}, 3")
    a(f"s_add_u32 s{sT}, s{sT}, s{sT2}")
    a(f"s_add_u32 s{sT}, s{sT}, {2*32768}")
    a("s_waitcnt lgkmcnt(0)")
    for i in range(13):
        a(f"v_add_f32 v{O[0]+i}, v{O[0]+i}, v{S[0]+i}")
    a(f"v_mul_f32 v{vM}, 0, v{O[0]}")
    for i in range(1, 12):
        a(f"v_fmac_f32 v{vM}, 0, v{O[0]+i}")
    a(f"v_add_f32 v{vM}, v{vM}, v{O[0]+12}")
    a(f"v_cmp_nge_f32 vcc, 0x71800000, v{vM}")
    a(f"s_mov_b32 s{sCnt}, 0x21800000")
    a(f"v_cmp_gt_f32 s[40:41], s{sCnt}, v{vM}")
    a("s_nop 1")
    a("s_or_b64 vcc, vcc, s[40:41]")
    a(f"s_cbranch_scc1 {L('slow')}")
    a.label(L("fin"))
    a(f"v_rcp_f32 v{vM}, v{O[0]+12}")
    a(f"v_and_b32 v{vT}, 31, v{vL}")
    a(f"v_lshlrev_b32 v{vT}, 4, v{vT}")
    a(f"v_lshrrev_b32 v{vT2}, 5, v{vL}")
    a(f"v_lshl_add_u32 v{vT2}, v{vT2}, 15, v{vT}")
    for i in range(12):
        a(f"v_mul_f32 v{O[0]+i}, v{O[0]+i}, v{vM}")
    for i in range(6):
        a(f"v_cvt_pk_bf16_f32 v{P+i}, v{O[0]+2*i}, v{O[0]+2*i+1}")
    a(f"buffer_store_dwordx4 {vr(P,4)}, v{vT2}, s[{sO}:{sO+3}], s{sOff} offen")
    a(f"s_mov_b64 exec, s[{sLo}:{sLo+1}]")
    a(f"buffer_store_dwordx2 {vr(P+4,2)}, v{vT}, s[{sO}:{sO+3}], s{sT} offen")
    a.label(L("end"))
    a("s_endpgm")

    a.label(L("slow"))
    a("s_waitcnt vmcnt(0)")
    a(f"s_mov_b64 exec, s[{sHi}:{sHi+1}]")
    a(f"v_mov_b32 v{Qr[0]}, 0")
    a(f"v_mov_b32 v{Qr[0]+1}, 0")
    a("s_mov_b64 exec, -1")
    a(f"v_mov_b32 v{vM}, 0xff800000")
    a(f"s_mov_b32 s{sCnt}, 0")
    def qk_slow():
        a(f"s_mov_b64 exec, s[{sLo}:{sLo+1}]")
        a(f"buffer_load_dwordx2 {vr(Kr[0],2)}, v{vKr}, s[{sKVall}:{sKVall+3}], s{sCnt} offen")
        a("s_mov_b64 exec, -1")
        a(f"buffer_load_dwordx4 {vr(Km[0],4)}, v{vKm}, s[{sKVall}:{sKVall+3}], s{sCnt} offen")
        a("s_waitcnt vmcnt(0)")
        a(f"v_mfma_f32_32x32x16_bf16 {vr(S[0],16)}, {vr(Km[0],4)}, {vr(Qm[0],4)}, 0")
        a("s_nop 11")
        a(f"v_mfma_f32_32x32x8_bf16 {vr(S[0],16)}, {vr(Kr[0],2)}, {vr(Qr[0],2)}, {vr(S[0],16)}")
        a("s_nop 12")
    a.label(L("s1"))
    qk_slow()
    for i in range(0, 16, 2):
        a(f"v_max3_f32 v{vM}, v{vM}, v{S[0]+i}, v{S[0]+i+1}")
    a(f"s_add_u32 s{sCnt}, s{sCnt}, 2560")
    a(f"s_cmp_lt_u32 s{sCnt}, {KV_HS}")
    a(f"s_cbranch_scc1 {L('s1')}")
    a(f"v_mov_b32 v{vT}, v{vM}")
    a("s_nop 1")
    a(f"v_permlane32_swap_b32 v{vT}, v{vM}")
    a("s_nop 1")
    a(f"v_max_f32 v{vM}, v{vM}, v{vT}")
    a(f"v_cvt_pk_bf16_f32 v{S[0]}, 0, -v{vM}")
    a(f"v_sub_f32 v{vT}, 0, v{vM}")
    a(f"v_sub_f32 v{vT}, v{vT}, v{S[0]}")
    a(f"v_cvt_pk_bf16_f32 v{S[0]+1}, 0, v{vT}")
    a(f"v_sub_f32 v{vT2}, v{vT}, v{S[0]+1}")
    a(f"s_mov_b64 exec, s[{sHi}:{sHi+1}]")
    a(f"v_cvt_pk_bf16_f32 v{Qr[0]}, v{S[0]}, v{S[0]+1}")
    a(f"v_cvt_pk_bf16_f32 v{Qr[0]+1}, v{vT2}, 0")
    a("s_mov_b64 exec, -1")
    for i in range(16):
        a(f"v_mov_b32 v{O[0]+i}, 0")
    a(f"s_mov_b32 s{sCnt}, 0")
    a.label(L("s2"))
    a(f"s_mov_b64 exec, s[{sVm}:{sVm+1}]")
    a(f"buffer_load_dwordx4 {vr(Vb[0][0],4)}, v{vV}, s[{sKVall}:{sKVall+3}], s{sCnt} offen")
    a(f"buffer_load_dwordx4 {vr(Vb[0][1],4)}, v{vV}, s[{sKVall}:{sKVall+3}], s{sCnt} offen offset:640")
    qk_slow()
    for i in range(16): exp(0, i)
    a("s_nop 0")
    for i in range(8): cvt(0, i)
    a("s_nop 1")
    a(f"v_mfma_f32_32x32x16_bf16 {vr(O[0],16)}, {vr(Vb[0][0],4)}, {vr(P,4)}, {vr(O[0],16)}")
    a(f"v_mfma_f32_32x32x16_bf16 {vr(O[0],16)}, {vr(Vb[0][1],4)}, {vr(P+4,4)}, {vr(O[0],16)}")
    a(f"s_add_u32 s{sCnt}, s{sCnt}, 2560")
    a(f"s_cmp_lt_u32 s{sCnt}, {KV_HS}")
    a(f"s_cbranch_scc1 {L('s2')}")
    a("s_nop 12")
    a(f"s_branch {L('fin')}")
    return a.text(), kernel_desc(name, V.hi), f"; @launch kernel={name} grid=(256,1,1) block=(512,1,1) lds=32768"
```

```python
from asm import *

def gen_k3(name="out_kernel"):
    a = Asm()
    kernel_begin(a, name)
    L = lambda s: f"L_{name}_{s}"
    V = Alloc(1, 256)
    vL = V.get(); vT = [V.get() for _ in range(6)]
    vD = [V.get() for _ in range(5)]
    vO = V.get(); vWs = V.get(); vR = V.get(); vR2 = V.get(); vSt = V.get()
    vG = V.get(2)
    BF = [V.get(4, 4) for _ in range(24)]
    AF = [[V.get(4, 4) for _ in range(5)] for _ in range(2)]
    AB = [V.get(4, 4) for _ in range(5)]
    AY = [V.get(4, 4) for _ in range(5)]
    sWS = 26
    sWo = 28; sG = 32; sOf = 36; sRe = 40; sIm = 44; sGt = 48; sOut = 52
    sW = 56; sC = 57; sEb = 58; sT = 59; sT2 = 60; sOff = 61; sOff2 = 62
    a("s_cmp_ge_u32 s2, 256")
    a(f"s_cbranch_scc1 {L('end')}")
    a("s_load_dwordx16 s[4:19], s[0:1], 0")
    a("s_load_dwordx8 s[20:27], s[0:1], 64")
    a(f"v_lshrrev_b32 v{vT[0]}, 6, v0")
    a(f"v_and_b32 v{vL}, 63, v0")
    a(f"v_readfirstlane_b32 s{sW}, v{vT[0]}")
    a(f"s_and_b32 s{sC}, s2, 7")
    a(f"s_lshl_b32 s{sC}, s{sC}, 2")
    a(f"s_bfe_u32 s{sT}, s2, 0x20003")
    a(f"s_add_u32 s{sC}, s{sC}, s{sT}")
    a(f"s_lshr_b32 s{sEb}, s2, 5")
    a(f"s_mul_i32 s{sT}, s{sEb}, 160")
    for j in range(5):
        a(f"v_add_u32 v{vT[0]}, {64*j}, v{vL}")
        a(f"v_mul_u32_u24 v{vT[1]}, 205, v{vT[0]}")
        a(f"v_lshrrev_b32 v{vT[1]}, 11, v{vT[1]}")
        a(f"v_mul_u32_u24 v{vT[2]}, 10, v{vT[1]}")
        a(f"v_sub_u32 v{vT[0]}, v{vT[0]}, v{vT[2]}")
        a(f"v_and_b32 v{vT[2]}, 3, v{vT[1]}")
        a(f"v_bfe_u32 v{vT[3]}, v{vT[1]}, 2, 2")
        a(f"v_lshl_add_u32 v{vT[2]}, v{vT[3]}, 3, v{vT[2]}")
        a(f"v_lshrrev_b32 v{vT[3]}, 4, v{vT[1]}")
        a(f"v_lshl_add_u32 v{vT[2]}, v{vT[3]}, 2, v{vT[2]}")
        a(f"v_mul_u32_u24 v{vT[2]}, 1280, v{vT[2]}")
        a(f"v_lshl_add_u32 v{vT[2]}, v{vT[0]}, 4, v{vT[2]}")
        a(f"v_add_u32 v{vD[j]}, s{sT}, v{vT[2]}")
    a(f"v_and_b32 v{vT[0]}, 15, v{vL}")
    a(f"v_lshrrev_b32 v{vT[1]}, 4, v{vL}")
    a(f"s_lshl_b32 s{sT}, s{sW}, 4")
    a(f"v_add_u32 v{vT[0]}, s{sT}, v{vT[0]}")
    a(f"s_lshl_b32 s{sT}, s{sC}, 6")
    a(f"v_add_u32 v{vT[2]}, s{sT}, v{vT[0]}")
    a(f"v_lshlrev_b32 v{vT[2]}, 4, v{vT[2]}")
    a(f"v_lshl_add_u32 v{vO}, v{vT[1]}, 15, v{vT[2]}")
    a(f"v_lshl_add_u32 v{vT[0]}, v{vT[0]}, 5, s{sC}")
    a(f"v_lshlrev_b32 v{vT[2]}, 12, v{vT[0]}")
    a(f"v_lshl_add_u32 v{vWs}, v{vT[1]}, 4, v{vT[2]}")
    a(f"v_lshlrev_b32 v{vT[3]}, 3, v{vT[0]}")
    a(f"v_mul_u32_u24 v{vSt}, 1280, v{vT[0]}")
    a(f"v_lshl_add_u32 v{vSt}, v{vT[1]}, 3, v{vSt}")
    a(f"s_mul_i32 s{sT}, s{sEb}, 160")
    a(f"v_add_u32 v{vSt}, s{sT}, v{vSt}")
    a("s_waitcnt lgkmcnt(0)")
    srd(a, sWo, 18, 0, 640 * 1280)
    a(f"s_mul_i32 s{sT}, s{sC}, 163840")
    a(f"s_add_u32 s{sT}, s{sT}, {G_OFF}")
    srd(a, sG, sWS, f"s{sT}", 163840)
    srd(a, sOf, sWS, OF_OFF, OF_SIZE)
    srd(a, sRe, 6, 0, 2048 * 4096)
    srd(a, sIm, 8, 0, 2048 * 4096)
    srd(a, sGt, sWS, GATE_OFF, GATE_SIZE)
    srd(a, sOut, 22, 0, 2048 * 1280)
    a(f"s_mul_i32 s{sOff}, s{sW}, {32*1280}")
    a(f"s_mul_i32 s{sT2}, s{sW}, 5120")
    a(f"s_mov_b32 s{sOff2}, 0")
    a(f"buffer_load_dwordx2 {vr(vG,2)}, v{vT[3]}, s[{sGt}:{sGt+3}], 0 offen")
    for r in range(6):
        src = sG if r == 0 else sWo
        for j in range(5):
            a(f"s_add_u32 m0, s{sT2}, {r*4*5120 + 1024*j}")
            a("s_nop 0")
            a(f"buffer_load_dwordx4 v{vD[j]}, s[{src}:{src+3}], s{sOff} offen lds")
        if r >= 1: a(f"s_add_u32 s{sOff}, s{sOff}, {4*32*1280}")
        for s in range(4):
            if r == 0:
                src2 = sRe if s < 2 else sIm
                a(f"buffer_load_dwordx4 {vr(BF[s],4)}, v{vWs}, s[{src2}:{src2+3}], 0 offen offset:{64*(s%2)}")
            else:
                a(f"buffer_load_dwordx4 {vr(BF[4*r+s],4)}, v{vO}, s[{sOf}:{sOf+3}], s{sOff2} offen")
                a(f"s_add_u32 s{sOff2}, s{sOff2}, {4*32768}")
    a(f"v_lshrrev_b32 v{vT[0]}, 2, v{vL}")
    a(f"v_mul_u32_u24 v{vT[0]}, 160, v{vT[0]}")
    a(f"v_and_b32 v{vT[1]}, 3, v{vL}")
    a(f"v_lshl_add_u32 v{vR}, v{vT[1]}, 3, v{vT[0]}")
    a(f"v_add_u32 v{vR2}, {12*5120}, v{vR}")
    def rd(st):
        s = st % 2
        base, off = (vR, st * 5120) if st < 12 else (vR2, (st - 12) * 5120)
        for t in range(5):
            a(f"ds_read_b64_tr_b16 {vr(AF[s][t],2)}, v{base} offset:{off + 32*t}")
            a(f"ds_read_b64_tr_b16 {vr(AF[s][t]+2,2)}, v{base} offset:{off + 32*t + 2560}")
    for st in range(24):
        if st % 4 == 0:
            a(f"s_waitcnt vmcnt({9*(5 - st//4)})")
            a("s_barrier")
            rd(st)
        if st % 4 != 3:
            rd(st + 1)
            a("s_waitcnt lgkmcnt(10)")
        else:
            a("s_waitcnt lgkmcnt(0)")
        acc = AY if st < 4 else AB
        for t in range(5):
            c = "0" if st in (0, 4) else vr(acc[t], 4)
            a(f"v_mfma_f32_16x16x32_bf16 {vr(acc[t],4)}, {vr(AF[st%2][t],4)}, {vr(BF[st],4)}, {c}")
    a("s_nop 7")
    for t in range(5):
        for i in range(4):
            a(f"v_mul_f32 v{AY[t]+i}, v{AY[t]+i}, v{vG}")
            a(f"v_fmac_f32 v{AY[t]+i}, v{AB[t]+i}, v{vG+1}")
        a(f"v_cvt_pk_bf16_f32 v{AY[t]}, v{AY[t]}, v{AY[t]+1}")
        a(f"v_cvt_pk_bf16_f32 v{AY[t]+1}, v{AY[t]+2}, v{AY[t]+3}")
        a(f"buffer_store_dwordx2 {vr(AY[t],2)}, v{vSt}, s[{sOut}:{sOut+3}], 0 offen offset:{32*t}")
    a.label(L("end"))
    a("s_endpgm")
    return a.text(), kernel_desc(name, V.hi), f"; @launch kernel={name} grid=(256,1,1) block=(256,1,1) lds={24*5120}"
```

```python
import sys
sys.path.insert(0, 'gen')
from k1 import gen_k1
from k2 import gen_k2
from k3 import gen_k3
NAME = "gated_mix__spectral_fnet__softmax_full_mha__prompt"
def build(path, ks):
    hdr = open(f"cdna_kernels/{NAME}.s.ref").read().split("\n")
    hdr = [l for l in hdr if l.startswith(";") and "@launch" not in l and "Override launch" not in l and "grid=ceil" not in l]
    out = "\n".join(hdr) + "\n" + "\n".join(k[2] for k in ks) + "\n"
    out += '.amdgcn_target "amdgcn-amd-amdhsa--gfx950"\n'
    for k in ks: out += k[0]
    for k in ks: out += k[1]
    open(path, "w").write(out)
if __name__ == "__main__":
    path = sys.argv[1] if len(sys.argv) > 1 else f"cdna_kernels/{NAME}.s"
    S = 'stamps' in sys.argv
    build(path, [gen_k1(stamps=S), gen_k2(stamps=S), gen_k3(stamps=S)])
```

```python
class Asm:
    def __init__(self):
        self.lines = []
    def __call__(self, s, *a):
        for l in s.split("\n"):
            l = l.strip()
            if l:
                self.lines.append("    " + l)
    def label(self, n):
        self.lines.append(n + ":")
    def raw(self, s):
        self.lines.append(s)
    def c(self, s):
        self.lines.append("    ; " + s)
    def text(self):
        return "\n".join(self.lines) + "\n"

class Alloc:
    def __init__(self, start, limit):
        self.p = start; self.limit = limit; self.hi = start
    def get(self, n=1, align=1):
        if n >= 2 and align < 2: align = 2
        self.p = (self.p + align - 1) // align * align
        r = self.p; self.p += n
        assert self.p <= self.limit, "out of regs"
        self.hi = max(self.hi, self.p)
        return r

def vr(b, n=1):
    return f"v{b}" if n == 1 else f"v[{b}:{b+n-1}]"
def sr(b, n=1):
    return f"s{b}" if n == 1 else f"s[{b}:{b+n-1}]"

def kernel_begin(a, name):
    a.raw(".text")
    a.raw(f".globl {name}")
    a.raw(".p2align 8")
    a.raw(f".type {name},@function")
    a.label(name)

def kernel_desc(name, vgpr, sgpr=96):
    vg = (vgpr + 7) // 8 * 8
    return f""".section .rodata,"a"
.p2align 6
.amdhsa_kernel {name}
  .amdhsa_next_free_vgpr {vg}
  .amdhsa_next_free_sgpr {sgpr}
  .amdhsa_accum_offset {min(256, vg)}
  .amdhsa_group_segment_fixed_size 0
  .amdhsa_kernarg_size 96
  .amdhsa_user_sgpr_count 2
  .amdhsa_user_sgpr_kernarg_segment_ptr 1
  .amdhsa_system_sgpr_workgroup_id_x 1
.end_amdhsa_kernel
"""

def srd(a, d, base, off, nbytes):
    if off == 0:
        a(f"s_mov_b32 s{d}, s{base}")
        a(f"s_and_b32 s{d+1}, s{base+1}, 0xffff")
    else:
        a(f"s_add_u32 s{d}, s{base}, {off if isinstance(off,str) else hex(off)}")
        a(f"s_addc_u32 s{d+1}, s{base+1}, 0")
        a(f"s_and_b32 s{d+1}, s{d+1}, 0xffff")
    a(f"s_mov_b32 s{d+2}, {nbytes if isinstance(nbytes,str) else hex(nbytes)}")
    a(f"s_mov_b32 s{d+3}, 0x20000")

QF_OFF = 0
QF_HS = 64 * 1280
QF_SIZE = 32 * QF_HS
KV_OFF = QF_OFF + QF_SIZE
KV_HS = 64 * 2560
KV_SIZE = 32 * KV_HS
G_OFF = KV_OFF + KV_SIZE
G_SIZE = 32 * 2 * 64 * 1280
OF_OFF = G_OFF + G_SIZE
OF_SIZE = 80 * 2048 * 16
GATE_OFF = OF_OFF + OF_SIZE
GATE_SIZE = 2048 * 8
KA_X, KA_WSRE, KA_WSIM, KA_WDRE, KA_WDIM, KA_BX, KA_WQKV, KA_WO, KA_GW, KA_OUT, KA_DBG, KA_WS = [8*i for i in range(12)]

STAMP_OFF = 1 << 27
class Stamps:
    def __init__(self, a, on, kidx):
        self.a = a; self.on = on; self.kidx = kidx
    def start(self):
        if not self.on: return
        a = self.a
        for i in range(70, 94): a(f"s_mov_b32 s{i}, 0")
        a("s_memrealtime s[70:71]")
        a("s_memtime s[74:75]")
        a("s_load_dwordx2 s[68:69], s[0:1], 88")
        a("v_mov_b32 v255, v0")
        a("s_mov_b32 s67, s2")
    def stamp(self, i):
        if not self.on: return
        self.a(f"s_memtime s[{74+2*i}:{75+2*i}]")
    def finish(self, i):
        if not self.on: return
        a = self.a
        a("s_mov_b64 exec, -1")
        a("s_waitcnt vmcnt(0)")
        a(f"s_memtime s[{74+2*i}:{75+2*i}]")
        a("s_memrealtime s[72:73]")
        a("s_waitcnt lgkmcnt(0)")
        a(f"s_add_u32 s64, s68, {hex(STAMP_OFF + self.kidx * (1 << 20))}")
        a("s_addc_u32 s65, s69, 0")
        a("s_and_b32 s65, s65, 0xffff")
        a("s_lshl_b32 s68, s67, 10")
        a("s_mov_b32 s66, 0x100000")
        a("s_mov_b32 s67, 0x20000")
        a("v_lshrrev_b32 v254, 6, v255")
        a("v_lshlrev_b32 v254, 6, v254")
        a("v_add_u32 v254, s68, v254")
        a("s_getreg_b32 s69, hwreg(HW_REG_HW_ID)")
        a("s_getreg_b32 s68, hwreg(HW_REG_XCC_ID)")
        a("s_mov_b64 exec, 1")
        for k in range(12):
            a(f"v_mov_b32 v253, s{70+2*k}")
            a(f"buffer_store_dword v253, v254, s[64:67], 0 offen offset:{4*k}")
        a("v_mov_b32 v253, s69")
        a("buffer_store_dword v253, v254, s[64:67], 0 offen offset:48")
        a("v_mov_b32 v253, s68")
        a("buffer_store_dword v253, v254, s[64:67], 0 offen offset:52")
```

```python
from asm import *

QSCALE = 0x3ea52b5c

def gen_k1(name="gemm1_kernel", stamps=False):
    a = Asm()
    kernel_begin(a, name)
    L = lambda s: f"L_{name}_{s}"
    V = Alloc(1, 256)
    vL = V.get(); vT = [V.get() for _ in range(6)]
    vDX = [V.get() for _ in range(4)]; vDW = [V.get() for _ in range(4)]
    vRX = [V.get() for _ in range(4)]; vRW = [V.get() for _ in range(4)]
    vE = [V.get() for _ in range(8)]
    XF = [[V.get(4, 4) for _ in range(2)] for _ in range(2)]
    WF = [[V.get(4, 4) for _ in range(2)] for _ in range(2)]
    ACC = [[V.get(16, 4) for _ in range(2)] for _ in range(2)]
    FR = V.get(8, 4); FRn = V.get(8, 4); FIn = V.get(8, 4)
    G2 = [V.get(16, 4) for _ in range(2)]
    sGW = 20; sWS = 26
    sX = 28; sWt = 32; sOut = 36; sF = 40
    sW = 44; sWm = 45; sWn = 46; sRb = 47; sCb = 48; sOX = 49; sOW = 50; sStepW = 51; sM0 = 52; sMask = 53; sCnt = 54
    sT = 55; sT2 = 56; sScale = 57; sHS = 58; sTS = 59; sMaskD = 60

    a("s_cmp_ge_u32 s2, 416")
    a(f"s_cbranch_scc1 {L('end')}")
    st = Stamps(a, stamps, 0); st.start()
    a("s_load_dwordx16 s[4:19], s[0:1], 0")
    a("s_load_dwordx8 s[20:27], s[0:1], 64")
    a(f"v_lshrrev_b32 v{vT[0]}, 6, v0")
    a(f"v_and_b32 v{vL}, 63, v0")
    a(f"v_readfirstlane_b32 s{sW}, v{vT[0]}")
    a(f"s_and_b32 s{sRb}, s2, 7")
    a(f"s_lshl_b32 s{sRb}, s{sRb}, 1")
    a(f"s_bfe_u32 s{sT}, s2, 0x10003")
    a(f"s_add_u32 s{sRb}, s{sRb}, s{sT}")
    a(f"s_lshr_b32 s{sCb}, s2, 4")
    a(f"s_and_b32 s{sWm}, s{sW}, 1")
    a(f"s_lshr_b32 s{sWn}, s{sW}, 1")
    a("s_waitcnt lgkmcnt(0)")
    srd(a, sX, 4, 0, 2048 * 1280)
    a(f"s_cmp_eq_u32 s{sCb}, 15")
    a(f"s_cbranch_scc1 {L('gate')}")

    def nat_read_addrs(dst, swave, base):
        a(f"v_and_b32 v{vT[0]}, 31, v{vL}")
        a(f"v_lshrrev_b32 v{vT[1]}, 5, v{vL}")
        a(f"v_bfe_u32 v{vT[2]}, v{vL}, 1, 3")
        a(f"v_xor_b32 v{vT[1]}, v{vT[1]}, v{vT[2]}")
        a(f"v_lshlrev_b32 v{vT[1]}, 4, v{vT[1]}")
        a(f"v_lshl_add_u32 v{vT[0]}, v{vT[0]}, 7, v{vT[1]}")
        a(f"s_lshl_b32 s{sT}, s{swave}, 13")
        if base: a(f"s_add_u32 s{sT}, s{sT}, {base}")
        a(f"v_add_u32 v{dst[0]}, s{sT}, v{vT[0]}")
        for ks in range(1, 4):
            a(f"v_xor_b32 v{dst[ks]}, {32*ks}, v{dst[0]}")
    def nat_dma_piece():
        a(f"v_and_b32 v{vT[3]}, 7, v{vL}")
        a(f"v_lshrrev_b32 v{vT[4]}, 4, v{vL}")
        a(f"v_xor_b32 v{vT[3]}, v{vT[3]}, v{vT[4]}")
        a(f"v_lshlrev_b32 v{vT[3]}, 4, v{vT[3]}")

    a(f"s_cmp_ge_u32 s{sCb}, 16")
    a(f"s_cbranch_scc1 {L('fsetup')}")
    srd(a, sWt, 16, 0, 640 * 3840)
    nat_dma_piece()
    a(f"v_lshrrev_b32 v{vT[0]}, 3, v{vL}")
    a(f"s_lshl_b32 s{sT}, s{sWm}, 5")
    a(f"v_add_u32 v{vT[0]}, s{sT}, v{vT[0]}")
    a(f"s_lshl_b32 s{sT}, s{sRb}, 1")
    a(f"s_add_u32 s{sT}, s{sT}, s{sWn}")
    a(f"v_lshl_add_u32 v{vT[0]}, v{vT[0]}, 5, s{sT}")
    a(f"v_mul_u32_u24 v{vT[0]}, 1280, v{vT[0]}")
    a(f"v_add_u32 v{vDX[0]}, v{vT[0]}, v{vT[3]}")
    a(f"v_xor_b32 v{vT[3]}, 64, v{vT[3]}")
    a(f"v_add_u32 v{vDX[1]}, v{vT[0]}, v{vT[3]}")
    a(f"v_add_u32 v{vDX[1]}, {256*1280-1024}, v{vDX[1]}")
    a(f"v_add_u32 v{vDX[2]}, {2*256*1280-2048}, v{vDX[0]}")
    a(f"v_add_u32 v{vDX[3]}, {2*256*1280-2048}, v{vDX[1]}")
    a(f"v_lshrrev_b32 v{vT[0]}, 4, v{vL}")
    a(f"v_bfe_u32 v{vT[1]}, v{vL}, 2, 2")
    a(f"v_xor_b32 v{vT[1]}, v{vT[1]}, v{vT[0]}")
    a(f"v_and_b32 v{vT[2]}, 3, v{vL}")
    a(f"v_lshl_add_u32 v{vT[1]}, v{vT[1]}, 2, v{vT[2]}")
    a(f"v_lshlrev_b32 v{vT[1]}, 4, v{vT[1]}")
    a(f"s_lshl_b32 s{sT}, s{sW}, 4")
    a(f"v_add_u32 v{vT[0]}, s{sT}, v{vT[0]}")
    a(f"v_mul_u32_u24 v{vT[0]}, 3840, v{vT[0]}")
    a(f"s_lshl_b32 s{sT}, s{sCb}, 8")
    a(f"v_add3_u32 v{vDW[0]}, v{vT[0]}, v{vT[1]}, s{sT}")
    for j in range(1, 4):
        a(f"v_add_u32 v{vDW[j]}, {j*(4*3840-1024)}, v{vDW[0]}")
    a(f"s_mov_b32 s{sStepW}, {64*3840}")
    a(f"s_branch {L('issue')}")
    a.label(L("fsetup"))
    a(f"s_sub_u32 s{sCb}, s{sCb}, 16")
    a(f"s_cmp_eq_u32 s{sWm}, 0")
    a(f"s_cselect_b32 s{sWt}, s10, s12")
    a(f"s_cselect_b32 s{sWt+1}, s11, s13")
    a(f"s_and_b32 s{sWt+1}, s{sWt+1}, 0xffff")
    a(f"s_mov_b32 s{sWt+2}, {640*1280}")
    a(f"s_mov_b32 s{sWt+3}, 0x20000")
    nat_dma_piece()
    a(f"v_bfe_u32 v{vT[0]}, v{vL}, 3, 2")
    a(f"v_lshrrev_b32 v{vT[1]}, 5, v{vL}")
    a(f"v_lshl_add_u32 v{vT[0]}, v{vT[1]}, 3, v{vT[0]}")
    a(f"s_lshl_b32 s{sT}, s{sRb}, 2")
    a(f"s_add_u32 s{sT}, s{sT}, s{sW}")
    a(f"v_lshl_add_u32 v{vT[1]}, v{vT[0]}, 6, s{sT}")
    a(f"v_mul_u32_u24 v{vT[1]}, 1280, v{vT[1]}")
    a(f"v_xor_b32 v{vT[4]}, 64, v{vT[3]}")
    a(f"v_add_u32 v{vDX[0]}, v{vT[1]}, v{vT[3]}")
    a(f"v_add_u32 v{vDX[1]}, v{vT[1]}, v{vT[4]}")
    a(f"v_add_u32 v{vDX[1]}, {4*64*1280-1024}, v{vDX[1]}")
    a(f"v_add_u32 v{vDX[2]}, {16*64*1280-2048}, v{vDX[0]}")
    a(f"v_add_u32 v{vDX[3]}, {16*64*1280-2048}, v{vDX[1]}")
    a(f"s_lshl_b32 s{sT}, s{sCb}, 6")
    a(f"s_lshl_b32 s{sT2}, s{sWn}, 5")
    a(f"s_add_u32 s{sT}, s{sT}, s{sT2}")
    a(f"v_add_u32 v{vT[1]}, s{sT}, v{vT[0]}")
    a(f"v_mul_u32_u24 v{vT[1]}, 1280, v{vT[1]}")
    a(f"v_add_u32 v{vDW[0]}, v{vT[1]}, v{vT[3]}")
    a(f"v_add_u32 v{vDW[1]}, v{vT[1]}, v{vT[4]}")
    a(f"v_add_u32 v{vDW[1]}, {4*1280-1024}, v{vDW[1]}")
    a(f"v_add_u32 v{vDW[2]}, {16*1280-2048}, v{vDW[0]}")
    a(f"v_add_u32 v{vDW[3]}, {16*1280-2048}, v{vDW[1]}")
    a(f"s_mov_b32 s{sStepW}, 128")
    a(f"s_add_u32 s{sCb}, s{sCb}, 16")
    a.label(L("issue"))
    def dmaX(j): a(f"buffer_load_dwordx4 v{vDX[j]}, s[{sX}:{sX+3}], s{sOX} offen offset:{1024*j} lds")
    def dmaW(j): a(f"buffer_load_dwordx4 v{vDW[j]}, s[{sWt}:{sWt+3}], s{sOW} offen offset:{1024*j} lds")
    a(f"s_lshl_b32 s{sM0}, s{sW}, 12")
    a(f"s_mov_b32 s{sOX}, 0")
    a(f"s_mov_b32 s{sOW}, 0")
    a(f"s_mov_b32 s{sMaskD}, 0x8000")
    a(f"s_mov_b32 s{sCnt}, 4")
    a.label(L("pro"))
    a(f"s_mov_b32 m0, s{sM0}")
    a("s_nop 0")
    for j in range(4): dmaX(j)
    a(f"s_add_u32 m0, s{sM0}, 0x4000")
    a(f"s_add_u32 s{sOX}, s{sOX}, 128")
    for j in range(4): dmaW(j)
    a(f"s_add_u32 s{sOW}, s{sOW}, s{sStepW}")
    a(f"s_xor_b32 s{sM0}, s{sM0}, s{sMaskD}")
    a(f"s_xor_b32 s{sMaskD}, s{sMaskD}, 0x18000")
    a(f"s_sub_u32 s{sCnt}, s{sCnt}, 1")
    a(f"s_cmp_lg_u32 s{sCnt}, 0")
    a(f"s_cbranch_scc1 {L('pro')}")
    nat_read_addrs(vRX, sWm, 0)
    for x in range(2):
        for w in range(2):
            for i in range(16):
                a(f"v_mov_b32 v{ACC[x][w]+i}, 0")
    a(f"s_mov_b32 s{sMask}, 0x8000")
    a(f"s_mov_b32 s{sCnt}, 0")
    a("s_mov_b64 vcc, 0")
    a(f"s_cmp_ge_u32 s{sCb}, 16")
    a(f"s_cbranch_scc1 {L('f')}")
    a(f"v_bfe_u32 v{vT[0]}, v{vL}, 2, 2")
    a(f"v_lshrrev_b32 v{vT[1]}, 5, v{vL}")
    a(f"v_lshl_add_u32 v{vT[1]}, v{vT[1]}, 3, v{vT[0]}")
    a(f"v_lshlrev_b32 v{vT[1]}, 8, v{vT[1]}")
    a(f"s_lshl_b32 s{sT}, s{sWn}, 1")
    a(f"v_xor_b32 v{vT[0]}, s{sT}, v{vT[0]}")
    a(f"v_lshl_add_u32 v{vT[1]}, v{vT[0]}, 6, v{vT[1]}")
    a(f"v_bfe_u32 v{vT[0]}, v{vL}, 4, 1")
    a(f"v_lshl_add_u32 v{vT[1]}, v{vT[0]}, 5, v{vT[1]}")
    a(f"v_and_b32 v{vT[0]}, 3, v{vL}")
    a(f"v_lshl_add_u32 v{vT[1]}, v{vT[0]}, 3, v{vT[1]}")
    a(f"v_add_u32 v{vRW[0]}, 0x4000, v{vT[1]}")
    a(f"v_xor_b32 v{vRW[1]}, 64, v{vRW[0]}")
    a(f"s_cmp_ge_u32 s{sCb}, 10")
    a(f"s_cbranch_scc1 {L('v')}")

    def mainloop(mode):
        tr = mode != 'f'
        nw = 2 if tr else 1
        def rdX(s, ks, x): a(f"ds_read_b128 {vr(XF[s][x],4)}, v{vRX[ks]} offset:{4096*x}")
        def rdW(s, ks, w):
            if tr:
                a(f"ds_read_b64_tr_b16 {vr(WF[s][w],2)}, v{vRW[w]} offset:{4096*ks}")
                a(f"ds_read_b64_tr_b16 {vr(WF[s][w]+2,2)}, v{vRW[w]} offset:{4096*ks+1024}")
            else:
                a(f"ds_read_b128 {vr(WF[s][w],4)}, v{vRW[ks]} offset:{4096*w}")
        def mf(s, x, w):
            A, B = (WF[s][w], XF[s][x]) if mode == 'qk' else (XF[s][x], WF[s][w])
            a(f"v_mfma_f32_32x32x16_bf16 {vr(ACC[x][w],16)}, {vr(A,4)}, {vr(B,4)}, {vr(ACC[x][w],16)}")
        st.stamp(1)
        a("s_waitcnt vmcnt(24)")
        a("s_barrier")
        st.stamp(2)
        if stamps: a("s_waitcnt lgkmcnt(0)")
        rdX(0, 0, 0); rdW(0, 0, 0); rdX(0, 0, 1); rdW(0, 0, 1)
        a.raw(".p2align 6")
        a.label(L(mode + "loop"))
        sites = [[], [], []]
        for ks in range(4):
            s = ks % 2; n = 1 - s; nk = (ks + 1) % 4
            if ks < 3:
                a(f"s_waitcnt lgkmcnt({1+nw})")
                mf(s, 0, 0)
            else:
                a("s_waitcnt lgkmcnt(0)")
                mf(s, 0, 0)
                a("s_waitcnt vmcnt(16)")
                a("s_barrier")
                for r in vRX + (vRW[:2] if tr else vRW):
                    a(f"v_xor_b32 v{r}, s{sMask}, v{r}")
                a(f"s_xor_b32 s{sMask}, s{sMask}, 0x18000")
            rdX(n, nk, 0); rdW(n, nk, 0)
            if ks < 3: a(f"s_waitcnt lgkmcnt({2*nw+1})")
            mf(s, 1, 0)
            rdX(n, nk, 1)
            if ks < 3:
                lab = L(f"{mode}sk{ks}")
                a(f"s_cbranch_vccz {lab}")
                if ks == 0:
                    a(f"s_mov_b32 m0, s{sM0}")
                    a("s_nop 0")
                    dmaX(0); dmaX(1); dmaX(2)
                elif ks == 1:
                    dmaX(3)
                    a(f"s_add_u32 m0, s{sM0}, 0x4000")
                    a(f"s_add_u32 s{sOX}, s{sOX}, 128")
                    dmaW(0); dmaW(1)
                else:
                    dmaW(2); dmaW(3)
                    a(f"s_add_u32 s{sOW}, s{sOW}, s{sStepW}")
                    a(f"s_xor_b32 s{sM0}, s{sM0}, s{sMaskD}")
                    a(f"s_xor_b32 s{sMaskD}, s{sMaskD}, 0x18000")
                a.label(lab)
                a(f"s_waitcnt lgkmcnt({nw+2})")
            mf(s, 0, 1)
            rdW(n, nk, 1)
            if ks == 3:
                a(f"s_add_u32 s{sCnt}, s{sCnt}, 1")
                a("s_mov_b64 vcc, -1")
                a(f"s_cmp_ge_u32 s{sCnt}, 7")
                a(f"s_cselect_b32 s{sX+2}, 0, s{sX+2}")
                a(f"s_cselect_b32 s{sWt+2}, 0, s{sWt+2}")
                a(f"s_cmp_lg_u32 s{sCnt}, 10")
            mf(s, 1, 1)
        a(f"s_cbranch_scc1 {L(mode+'loop')}")
        a("s_nop 12")
        st.stamp(3)

    a(f"s_cmp_ge_u32 s{sCb}, 5")
    a(f"s_cselect_b32 s{sScale}, 1.0, {hex(QSCALE)}")
    a(f"s_cselect_b32 s{sTS}, 1, 0")
    a(f"s_cselect_b32 s{sT}, {KV_OFF}, {QF_OFF}")
    a(f"s_cselect_b32 s{sT2}, 5, 0")
    srd(a, sOut, sWS, f"s{sT}", KV_SIZE)
    a(f"s_lshl_b32 s{sHS}, {QF_HS}, s{sTS}")
    a(f"s_lshl_b32 s{sTS}, 1280, s{sTS}")
    a(f"s_sub_u32 s{sT2}, s{sCb}, s{sT2}")
    a(f"s_lshl_b32 s{sT2}, s{sT2}, 5")
    a(f"s_lshl_b32 s{sT}, s{sWn}, 4")
    a(f"s_add_u32 s{sT2}, s{sT2}, s{sT}")
    a(f"v_lshrrev_b32 v{vT[0]}, 5, v{vL}")
    a(f"v_add_u32 v{vT[0]}, s{sT2}, v{vT[0]}")
    a(f"v_and_b32 v{vT[5]}, 31, v{vL}")
    a(f"v_lshlrev_b32 v{vT[5]}, 3, v{vT[5]}")
    a(f"s_lshl_b32 s{sT}, s{sRb}, 2")
    a(f"s_lshl_b32 s{sT2}, s{sWm}, 1")
    a(f"s_add_u32 s{sT}, s{sT}, s{sT2}")
    a(f"s_mul_i32 s{sT}, s{sT}, s{sTS}")
    for e in range(8):
        a(f"v_add_u32 v{vT[1]}, {2*e}, v{vT[0]}")
        a(f"v_mul_u32_u24 v{vT[2]}, 205, v{vT[1]}")
        a(f"v_lshrrev_b32 v{vT[2]}, 10, v{vT[2]}")
        a(f"v_mul_u32_u24 v{vT[3]}, 5, v{vT[2]}")
        a(f"v_sub_u32 v{vT[1]}, v{vT[1]}, v{vT[3]}")
        a(f"v_mul_lo_u32 v{vE[e]}, v{vT[2]}, s{sHS}")
        a(f"v_lshrrev_b32 v{vT[3]}, 1, v{vT[1]}")
        a(f"v_lshl_add_u32 v{vE[e]}, v{vT[3]}, 9, v{vE[e]}")
        a(f"v_and_b32 v{vT[4]}, 1, v{vT[1]}")
        a(f"v_lshl_add_u32 v{vE[e]}, v{vT[4]}, 3, v{vE[e]}")
        a(f"v_lshrrev_b32 v{vT[3]}, 1, v{vT[3]}")
        a(f"v_sub_u32 v{vT[3]}, 1, v{vT[3]}")
        a(f"v_lshlrev_b32 v{vT[3]}, v{vT[3]}, v{vT[5]}")
        a(f"v_add3_u32 v{vE[e]}, v{vE[e]}, v{vT[3]}, s{sT}")
    mainloop('qk')
    for x in range(2):
        for w in range(2):
            acc = ACC[x][w]
            for i in range(16):
                a(f"v_mul_f32 v{acc+i}, s{sScale}, v{acc+i}")
            for i in range(8):
                a(f"v_cvt_pk_bf16_f32 v{acc+i}, v{acc+2*i}, v{acc+2*i+1}")
            for g in range(4):
                so = "0" if x == 0 else f"s{sTS}"
                a(f"buffer_store_dwordx2 {vr(acc+2*g,2)}, v{vE[4*w+g]}, s[{sOut}:{sOut+3}], {so} offen")
    st.finish(4)
    a("s_endpgm")
    a.label(L("v"))
    srd(a, sOut, sWS, KV_OFF, KV_SIZE)
    a(f"s_sub_u32 s{sT2}, s{sCb}, 10")
    a(f"s_lshl_b32 s{sT2}, s{sT2}, 7")
    a(f"s_lshl_b32 s{sT}, s{sWn}, 6")
    a(f"s_add_u32 s{sT2}, s{sT2}, s{sT}")
    a(f"v_and_b32 v{vT[0]}, 31, v{vL}")
    a(f"v_add_u32 v{vT[0]}, s{sT2}, v{vT[0]}")
    a(f"v_lshrrev_b32 v{vT[5]}, 5, v{vL}")
    a(f"v_mul_u32_u24 v{vT[5]}, 320, v{vT[5]}")
    a(f"s_lshl_b32 s{sT}, s{sRb}, 2")
    a(f"s_lshl_b32 s{sT2}, s{sWm}, 1")
    a(f"s_add_u32 s{sT}, s{sT}, s{sT2}")
    a(f"s_mul_i32 s{sT}, s{sT}, 2560")
    a(f"s_add_u32 s{sT}, s{sT}, 1280")
    a(f"s_mov_b32 s{sHS}, {KV_HS}")
    for e in range(2):
        a(f"v_add_u32 v{vT[1]}, {32*e}, v{vT[0]}")
        a(f"v_mul_u32_u24 v{vT[2]}, 1639, v{vT[1]}")
        a(f"v_lshrrev_b32 v{vT[2]}, 15, v{vT[2]}")
        a(f"v_mul_u32_u24 v{vT[3]}, 20, v{vT[2]}")
        a(f"v_sub_u32 v{vT[1]}, v{vT[1]}, v{vT[3]}")
        a(f"v_and_b32 v{vT[3]}, 1, v{vT[2]}")
        a(f"v_lshl_add_u32 v{vT[1]}, v{vT[3]}, 4, v{vT[1]}")
        a(f"v_subrev_u32 v{vT[3]}, 20, v{vT[1]}")
        a(f"v_min_u32 v{vT[1]}, v{vT[1]}, v{vT[3]}")
        a(f"v_and_b32 v{vT[3]}, 0x13, v{vT[1]}")
        a(f"v_bfe_u32 v{vT[4]}, v{vT[1]}, 2, 1")
        a(f"v_lshl_add_u32 v{vT[3]}, v{vT[4]}, 3, v{vT[3]}")
        a(f"v_bfe_u32 v{vT[4]}, v{vT[1]}, 3, 1")
        a(f"v_lshl_add_u32 v{vT[3]}, v{vT[4]}, 2, v{vT[3]}")
        a(f"v_mul_lo_u32 v{vE[e]}, v{vT[2]}, s{sHS}")
        a(f"v_lshl_add_u32 v{vE[e]}, v{vT[3]}, 4, v{vE[e]}")
        a(f"v_add3_u32 v{vE[e]}, v{vE[e]}, v{vT[5]}, s{sT}")
    mainloop('v')
    for x in range(2):
        for w in range(2):
            acc = ACC[x][w]
            for i in range(8):
                a(f"v_cvt_pk_bf16_f32 v{acc+i}, v{acc+2*i}, v{acc+2*i+1}")
            for j in range(2):
                a(f"buffer_store_dwordx4 {vr(acc+4*j,4)}, v{vE[w]}, s[{sOut}:{sOut+3}], 0 offen offset:{2560*x+640*j}")
    st.finish(4)
    a("s_endpgm")
    a.label(L("f"))
    nat_read_addrs(vRW, sWn, 0x4000)
    srd(a, sOut, sWS, G_OFF, G_SIZE)
    a(f"v_and_b32 v{vT[0]}, 31, v{vL}")
    a(f"v_lshrrev_b32 v{vT[1]}, 5, v{vL}")
    a(f"s_mov_b32 s{sT}, 163840")
    a(f"v_mul_lo_u32 v{vE[0]}, v{vT[0]}, s{sT}")
    a(f"v_lshl_add_u32 v{vE[0]}, v{vT[1]}, 4, v{vE[0]}")
    a(f"s_lshl_b32 s{sT}, s{sRb}, 2")
    a(f"s_lshl_b32 s{sT2}, s{sWm}, 1")
    a(f"s_add_u32 s{sT}, s{sT}, s{sT2}")
    a(f"s_mul_i32 s{sT}, s{sT}, 1280")
    a(f"s_sub_u32 s{sT2}, s{sCb}, 16")
    a(f"s_lshl_b32 s{sT2}, s{sT2}, 7")
    a(f"s_add_u32 s{sT}, s{sT}, s{sT2}")
    a(f"s_lshl_b32 s{sT2}, s{sWn}, 6")
    a(f"s_add_u32 s{sT}, s{sT}, s{sT2}")
    a(f"v_add_u32 v{vE[0]}, s{sT}, v{vE[0]}")
    a(f"s_mov_b32 s{sTS}, 81920")
    a(f"v_lshlrev_b32 v{vE[1]}, 18, v{vT[0]}")
    a(f"v_lshl_add_u32 v{vE[1]}, v{vT[1]}, 4, v{vE[1]}")
    mainloop('f')
    srd(a, sF, 6, 0, 2048 * 4096)
    a(f"buffer_load_dwordx4 {vr(FR,4)}, v{vE[1]}, s[{sF}:{sF+3}], 0 offen")
    a(f"buffer_load_dwordx4 {vr(FR+4,4)}, v{vE[1]}, s[{sF}:{sF+3}], 0 offen offset:32")
    srd(a, sX, 8, 0, 2048 * 4096)
    a(f"buffer_load_dwordx4 {vr(FIn,4)}, v{vE[1]}, s[{sX}:{sX+3}], 0 offen")
    a(f"buffer_load_dwordx4 {vr(FIn+4,4)}, v{vE[1]}, s[{sX}:{sX+3}], 0 offen offset:32")
    for x in range(2):
        for w in range(2):
            acc = ACC[x][w]
            for i in range(8):
                a(f"v_cvt_pk_bf16_f32 v{acc+i}, v{acc+2*i}, v{acc+2*i+1}")
    a("s_waitcnt vmcnt(0)")
    for i in range(8):
        a(f"v_xor_b32 v{FRn+i}, 0x80008000, v{FR+i}")
        a(f"v_xor_b32 v{FIn+i}, 0x80008000, v{FIn+i}")
    a("s_nop 1")
    for x in range(2):
        za, zb = ACC[x][0], ACC[x][1]
        m = lambda d, A, B, c: a(f"v_mfma_f32_32x32x16_bf16 {vr(d,16)}, {vr(A,4)}, {vr(B,4)}, {c}")
        g0, g1 = G2
        m(g0, za, FR, "0"); m(g0, za+4, FR+4, vr(g0,16)); m(g0, zb, FIn, vr(g0,16)); m(g0, zb+4, FIn+4, vr(g0,16))
        m(g1, zb, FRn, "0"); m(g1, zb+4, FRn+4, vr(g1,16)); m(g1, za, FIn, vr(g1,16)); m(g1, za+4, FIn+4, vr(g1,16))
        a("s_nop 12")
        for p in range(2):
            g = G2[p]
            dst = ACC[x][p] + 8
            for i in range(8):
                a(f"v_cvt_pk_bf16_f32 v{dst+i}, v{g+2*i}, v{g+2*i+1}")
            for j in range(2):
                so = "0" if p == 0 else f"s{sTS}"
                a(f"buffer_store_dwordx4 {vr(dst+4*j,4)}, v{vE[0]}, s[{sOut}:{sOut+3}], {so} offen offset:{1280*x+32*j}")
    st.finish(4)
    a("s_endpgm")
    a.label(L("gate"))
    GW = 40; GX = 64
    srd(a, sWt, sGW, 0, 1280)
    srd(a, sOut, sWS, GATE_OFF, GATE_SIZE)
    a(f"v_and_b32 v{vT[0]}, 15, v{vL}")
    a(f"v_lshlrev_b32 v{vT[0]}, 4, v{vT[0]}")
    for p in range(5):
        a(f"buffer_load_dwordx4 {vr(GW+4*p,4)}, v{vT[0]}, s[{sWt}:{sWt+3}], 0 offen offset:{256*p}")
    a(f"v_lshrrev_b32 v{vT[1]}, 4, v{vL}")
    a(f"s_lshl_b32 s{sT}, s{sRb}, 7")
    a(f"s_lshl_b32 s{sT2}, s{sW}, 5")
    a(f"s_add_u32 s{sT}, s{sT}, s{sT2}")
    a(f"v_add_u32 v{vT[1]}, s{sT}, v{vT[1]}")
    a(f"v_mul_u32_u24 v{vT[2]}, 1280, v{vT[1]}")
    a(f"v_add_u32 v{vT[2]}, v{vT[2]}, v{vT[0]}")
    a(f"v_lshlrev_b32 v{vT[1]}, 3, v{vT[1]}")
    a(f"s_mov_b32 s{sOX}, 0")
    a(f"v_cmp_eq_u32 s[62:63], 0, v{vT[0]}")
    for r in range(8):
        for p in range(5):
            a(f"buffer_load_dwordx4 {vr(GX+20*r+4*p,4)}, v{vT[2]}, s[{sX}:{sX+3}], s{sOX} offen offset:{256*p}")
        a(f"s_add_u32 s{sOX}, s{sOX}, {4*1280}")
        a(f"v_mov_b32 v{vE[r]}, 0")
    for r in range(8):
        a(f"s_waitcnt vmcnt({35-5*r})")
        for i in range(20):
            a(f"v_dot2c_f32_bf16 v{vE[r]}, v{GX+20*r+i}, v{GW+i}")
    a("s_nop 3")
    for sh in (8, 4, 2, 1):
        for r in range(8):
            a(f"v_add_f32_dpp v{vE[r]}, v{vE[r]}, v{vE[r]} row_ror:{sh} row_mask:0xf bank_mask:0xf")
    for r in range(8): a(f"v_cvt_pk_bf16_f32 v{vE[r]}, 0, v{vE[r]}")
    for r in range(8): a(f"v_mul_f32 v{vE[r]}, 0xbfb8aa3b, v{vE[r]}")
    for r in range(8): a(f"v_exp_f32 v{vE[r]}, v{vE[r]}")
    for r in range(8): a(f"v_add_f32 v{vE[r]}, 1.0, v{vE[r]}")
    for r in range(8): a(f"v_rcp_f32 v{vE[r]}, v{vE[r]}")
    for r in range(8): a(f"v_cvt_pk_bf16_f32 v{GX+2*r}, 0, v{vE[r]}")
    for r in range(8): a(f"v_sub_f32 v{GX+2*r+1}, 1.0, v{GX+2*r}")
    for r in range(8): a(f"v_cvt_pk_bf16_f32 v{GX+2*r+1}, 0, v{GX+2*r+1}")
    a("s_mov_b64 exec, s[62:63]")
    for r in range(8):
        a(f"buffer_store_dwordx2 {vr(GX+2*r,2)}, v{vT[1]}, s[{sOut}:{sOut+3}], 0 offen offset:{32*r}")
    st.finish(4)
    assert vE[7] < GW
    V.hi = max(V.hi, GX + 160)
    a.label(L("end"))
    a("s_endpgm")
    return a.text(), kernel_desc(name, 256 if stamps else V.hi), f"; @launch kernel={name} grid=(416,1,1) block=(256,1,1) lds=131072"
```

```python
from asm import *

def gen_k2(name="attn_kernel", prio_tail=1, stamps=False):
    a = Asm()
    kernel_begin(a, name)
    V = Alloc(1, 256)
    vKm = V.get(); vKr = V.get(); vV = V.get(); vT = V.get(); vT2 = V.get(); vL = V.get(); vM = V.get()
    Qm = [V.get(4, 4) for _ in range(2)]
    Qr = [V.get(2) for _ in range(2)]
    Km = [V.get(4, 4) for _ in range(4)]
    Kr = [V.get(2) for _ in range(4)]
    Vb = [[V.get(4, 4) for _ in range(2)] for _ in range(4)]
    P = V.get(8, 4)
    S = [V.get(16, 4) for _ in range(2)]
    O = [V.get(16, 4) for _ in range(2)]
    K0m = V.get(4, 4); K0r = V.get(2)
    sWS = 4
    sKV = 8; sQ = 12; sO = 16; sKVall = 20
    sLo = 24; sVm = 26; sHi = 28
    sHead = 30; sQb = 31; sW = 32; sQg = 33; sKh = 34; sOff = 35; sCnt = 36; sT = 37; sT2 = 38
    L = lambda s: f"L_{name}_{s}"

    a("s_cmp_ge_u32 s2, 256")
    a(f"s_cbranch_scc1 {L('end')}")
    st = Stamps(a, stamps, 1); st.start()
    a(f"s_load_dwordx2 s[{sWS}:{sWS+1}], s[0:1], {KA_WS}")
    a(f"v_lshrrev_b32 v{vT}, 6, v0")
    a(f"v_and_b32 v{vL}, 63, v0")
    a(f"v_readfirstlane_b32 s{sW}, v{vT}")
    a(f"s_and_b32 s{sHead}, s2, 7")
    a(f"s_lshl_b32 s{sHead}, s{sHead}, 2")
    a(f"s_bfe_u32 s{sT}, s2, 0x20003")
    a(f"s_add_u32 s{sHead}, s{sHead}, s{sT}")
    a(f"s_lshr_b32 s{sQb}, s2, 5")
    a(f"s_and_b32 s{sQg}, s{sW}, 3")
    a(f"s_lshr_b32 s{sKh}, s{sW}, 2")
    a(f"s_mov_b32 s{sLo}, -1")
    a(f"s_mov_b32 s{sLo+1}, 0")
    a(f"s_mov_b32 s{sHi}, 0")
    a(f"s_mov_b32 s{sHi+1}, -1")
    a(f"s_mov_b32 s{sVm}, 0xfffff")
    a(f"s_mov_b32 s{sVm+1}, 0xfffff")
    a(f"v_lshlrev_b32 v{vKm}, 4, v{vL}")
    a(f"v_and_b32 v{vT}, 31, v{vL}")
    a(f"v_lshlrev_b32 v{vKr}, 3, v{vT}")
    a(f"v_add_u32 v{vKr}, 1024, v{vKr}")
    a(f"v_lshrrev_b32 v{vT2}, 5, v{vL}")
    a(f"v_mul_u32_u24 v{vV}, 320, v{vT2}")
    a(f"v_lshl_add_u32 v{vV}, v{vT}, 4, v{vV}")
    a(f"v_add_u32 v{vV}, 1280, v{vV}")
    a("s_waitcnt lgkmcnt(0)")
    a(f"s_mul_i32 s{sT}, s{sHead}, {KV_HS}")
    a(f"s_add_u32 s{sT}, s{sT}, {KV_OFF}")
    srd(a, sKVall, sWS, f"s{sT}", KV_HS)
    a(f"s_mul_i32 s{sT2}, s{sKh}, {KV_HS//2}")
    a(f"s_add_u32 s{sT}, s{sT}, s{sT2}")
    srd(a, sKV, sWS, f"s{sT}", KV_HS // 2)
    a(f"s_mul_i32 s{sT}, s{sHead}, {QF_HS}")
    a(f"s_lshl_b32 s{sT2}, s{sQb}, 2")
    a(f"s_add_u32 s{sT2}, s{sT2}, s{sQg}")
    a(f"s_mul_i32 s{sT2}, s{sT2}, 2560")
    a(f"s_add_u32 s{sT}, s{sT}, s{sT2}")
    if QF_OFF: a(f"s_add_u32 s{sT}, s{sT}, {QF_OFF}")
    srd(a, sQ, sWS, f"s{sT}", 2560)
    srd(a, sO, sWS, OF_OFF, OF_SIZE)
    a(f"buffer_load_dwordx4 {vr(K0m,4)}, v{vKm}, s[{sKVall}:{sKVall+3}], 0 offen")
    a(f"buffer_load_dwordx4 {vr(Qm[0],4)}, v{vKm}, s[{sQ}:{sQ+3}], 0 offen")
    a(f"buffer_load_dwordx4 {vr(Qm[1],4)}, v{vKm}, s[{sQ}:{sQ+3}], 0 offen offset:1280")
    for r in [K0r] + Kr:
        a(f"v_mov_b32 v{r}, 0x3f803f80")
        a(f"v_mov_b32 v{r+1}, 0x3f80")
    for q in range(2):
        a(f"v_mov_b32 v{Qr[q]}, 0")
        a(f"v_mov_b32 v{Qr[q]+1}, 0")
    a(f"s_mov_b64 exec, s[{sLo}:{sLo+1}]")
    a(f"buffer_load_dwordx2 {vr(K0r,2)}, v{vKr}, s[{sKVall}:{sKVall+3}], 0 offen")
    a(f"buffer_load_dwordx2 {vr(Qr[0],2)}, v{vKr}, s[{sQ}:{sQ+3}], 0 offen")
    a(f"buffer_load_dwordx2 {vr(Qr[1],2)}, v{vKr}, s[{sQ}:{sQ+3}], 0 offen offset:1280")
    a(f"buffer_load_dwordx2 {vr(Kr[0],2)}, v{vKr}, s[{sKV}:{sKV+3}], 0 offen")
    a("s_mov_b64 exec, -1")
    a(f"buffer_load_dwordx4 {vr(Km[0],4)}, v{vKm}, s[{sKV}:{sKV+3}], 0 offen")
    for b in range(4):
        for j in range(2):
            for i in range(4):
                a(f"v_mov_b32 v{Vb[b][j]+i}, 0x3f803f80")
    def group(kb, vb):
        a(f"s_mov_b64 exec, s[{sLo}:{sLo+1}]")
        a(f"buffer_load_dwordx2 {vr(Kr[kb],2)}, v{vKr}, s[{sKV}:{sKV+3}], s{sOff} offen offset:2560")
        a(f"s_mov_b64 exec, s[{sVm}:{sVm+1}]")
        a(f"buffer_load_dwordx4 {vr(Vb[vb][0],4)}, v{vV}, s[{sKV}:{sKV+3}], s{sOff} offen")
        a(f"buffer_load_dwordx4 {vr(Vb[vb][1],4)}, v{vV}, s[{sKV}:{sKV+3}], s{sOff} offen offset:640")
        a("s_mov_b64 exec, -1")
        a(f"buffer_load_dwordx4 {vr(Km[kb],4)}, v{vKm}, s[{sKV}:{sKV+3}], s{sOff} offen offset:2560")
        a(f"s_add_u32 s{sOff}, s{sOff}, 2560")
    a(f"s_mov_b32 s{sOff}, 0")
    for g in range(3):
        group(g + 1, g)
    for q in range(2):
        for i in range(16):
            a(f"v_mov_b32 v{O[q]+i}, 0")
    for i in range(8):
        a(f"v_mov_b32 v{P+i}, 0")
    st.stamp(1)
    a("s_waitcnt vmcnt(14)")
    st.stamp(2)
    for q in range(2):
        a(f"v_mfma_f32_32x32x16_bf16 {vr(S[q],16)}, {vr(K0m,4)}, {vr(Qm[q],4)}, 0")
    a("s_nop 9")
    for q in range(2):
        a(f"v_mfma_f32_32x32x8_bf16 {vr(S[q],16)}, {vr(K0r,2)}, {vr(Qr[q],2)}, {vr(S[q],16)}")
    a("s_nop 11")
    for q in range(2):
        a(f"v_max3_f32 v{S[q]}, v{S[q]}, v{S[q]+1}, v{S[q]+2}")
        for i in range(3, 15, 2):
            a(f"v_max3_f32 v{S[q]}, v{S[q]}, v{S[q]+i}, v{S[q]+i+1}")
        a(f"v_max_f32 v{S[q]}, v{S[q]}, v{S[q]+15}")
    a(f"s_mov_b64 exec, s[{sHi}:{sHi+1}]")
    for q in range(2):
        a(f"v_cvt_pk_bf16_f32 v{Qr[q]}, -v{S[q]}, 0")
    a("s_mov_b64 exec, -1")
    a("s_waitcnt vmcnt(12)")
    a("s_nop 1")
    a(f"v_mfma_f32_32x32x16_bf16 {vr(S[0],16)}, {vr(Km[0],4)}, {vr(Qm[0],4)}, 0")
    a("s_nop 9")
    a(f"v_mfma_f32_32x32x8_bf16 {vr(S[0],16)}, {vr(Kr[0],2)}, {vr(Qr[0],2)}, {vr(S[0],16)}")
    a(f"s_mov_b32 s{sCnt}, 8")
    a("s_setprio 1")
    st.stamp(3)
    a("s_nop 9")

    def exp(q, i): a(f"v_exp_f32 v{S[q]+i}, v{S[q]+i}")
    def cvt(q, i): a(f"v_cvt_pk_bf16_f32 v{P+i}, v{S[q]+2*i}, v{S[q]+2*i+1}")
    def slot(kt, q):
        nq = 1 - q
        nk = (kt + q) % 4
        pk = (kt + q - 1) % 4
        a(f"v_mfma_f32_32x32x16_bf16 {vr(S[nq],16)}, {vr(Km[nk],4)}, {vr(Qm[nq],4)}, 0")
        for i in range(0, 4): exp(q, i)
        a(f"v_mfma_f32_32x32x16_bf16 {vr(O[nq],16)}, {vr(Vb[pk][1],4)}, {vr(P+4,4)}, {vr(O[nq],16)}")
        for i in range(4, 8): exp(q, i)
        cvt(q, 0)
        a(f"v_mfma_f32_32x32x8_bf16 {vr(S[nq],16)}, {vr(Kr[nk],2)}, {vr(Qr[nq],2)}, {vr(S[nq],16)}")
        if q == 0:
            group(kt, (kt - 1) % 4)
        for i in range(1, 4): cvt(q, i)
        for i in range(8, 12): exp(q, i)
        if q == 0:
            a("s_waitcnt vmcnt(12)")
        a(f"v_mfma_f32_32x32x16_bf16 {vr(O[q],16)}, {vr(Vb[kt][0],4)}, {vr(P,4)}, {vr(O[q],16)}")
        for i in range(12, 16): exp(q, i)
        for i in range(4, 8): cvt(q, i)
    a.raw(".p2align 6")
    a.label(L("loop"))
    for kt in range(4):
        for q in range(2):
            slot(kt, q)
            if kt == 0 and q == 0:
                a(f"s_sub_u32 s{sCnt}, s{sCnt}, 1")
                if prio_tail:
                    a(f"s_cmp_lt_u32 s{sCnt}, {prio_tail}")
                    a(f"s_cbranch_scc0 {L('np')}")
                    a("s_setprio 0")
                    a.label(L("np"))
    a(f"s_cmp_lg_u32 s{sCnt}, 0")
    a(f"s_cbranch_scc1 {L('loop')}")
    a("s_nop 0")
    a(f"v_mfma_f32_32x32x16_bf16 {vr(O[1],16)}, {vr(Vb[3][1],4)}, {vr(P+4,4)}, {vr(O[1],16)}")
    st.stamp(4)
    a(f"s_lshl_b32 s{sT}, s{sW}, 12")
    a(f"v_add_u32 v{vT}, s{sT}, v{vKm}")
    a(f"v_xor_b32 v{vT2}, 0x4000, v{vT}")
    a("s_nop 9")
    a(f"s_cmp_eq_u32 s{sKh}, 0")
    a(f"s_cbranch_scc1 {L('x0')}")
    for r in range(3):
        a(f"ds_write_b128 v{vT}, {vr(O[0]+4*r,4)} offset:{1024*r}")
    a(f"ds_write_b32 v{vT}, v{O[0]+12} offset:3072")
    a("s_waitcnt lgkmcnt(0)")
    for i in range(13):
        a(f"v_mov_b32 v{O[0]+i}, v{O[1]+i}")
    for i in range(4):
        a(f"v_mov_b32 v{Qm[0]+i}, v{Qm[1]+i}")
    for i in range(2):
        a(f"v_mov_b32 v{Qr[0]+i}, v{Qr[1]+i}")
    a(f"s_branch {L('x1')}")
    a.label(L("x0"))
    for r in range(3):
        a(f"ds_write_b128 v{vT}, {vr(O[1]+4*r,4)} offset:{1024*r}")
    a(f"ds_write_b32 v{vT}, v{O[1]+12} offset:3072")
    a.label(L("x1"))
    a("s_waitcnt lgkmcnt(0)")
    a("s_barrier")
    st.stamp(5)
    for r in range(3):
        a(f"ds_read_b128 {vr(S[0]+4*r,4)}, v{vT2} offset:{1024*r}")
    a(f"ds_read_b32 v{S[0]+12}, v{vT2} offset:3072")
    a(f"s_lshl_b32 s{sT}, s{sQb}, 3")
    a(f"s_lshl_b32 s{sT2}, s{sQg}, 1")
    a(f"s_add_u32 s{sT}, s{sT}, s{sT2}")
    a(f"s_add_u32 s{sT}, s{sT}, s{sKh}")
    a(f"s_lshl_b32 s{sT}, s{sT}, 9")
    a(f"s_lshr_b32 s{sT2}, s{sHead}, 1")
    a(f"s_mul_i32 s{sT2}, s{sT2}, {5*32768}")
    a(f"s_add_u32 s{sT}, s{sT}, s{sT2}")
    a(f"s_and_b32 s{sT2}, s{sHead}, 1")
    a(f"s_mul_i32 s{sOff}, s{sT2}, {3*32768}")
    a(f"s_add_u32 s{sOff}, s{sOff}, s{sT}")
    a(f"s_lshl_b32 s{sT2}, s{sT2}, 3")
    a(f"s_add_u32 s{sT}, s{sT}, s{sT2}")
    a(f"s_add_u32 s{sT}, s{sT}, {2*32768}")
    a("s_waitcnt lgkmcnt(0)")
    for i in range(13):
        a(f"v_add_f32 v{O[0]+i}, v{O[0]+i}, v{S[0]+i}")
    a(f"v_mul_f32 v{vM}, 0, v{O[0]}")
    for i in range(1, 12):
        a(f"v_fmac_f32 v{vM}, 0, v{O[0]+i}")
    a(f"v_add_f32 v{vM}, v{vM}, v{O[0]+12}")
    a(f"v_cmp_nge_f32 vcc, 0x71800000, v{vM}")
    a(f"s_mov_b32 s{sCnt}, 0x21800000")
    a(f"v_cmp_gt_f32 s[40:41], s{sCnt}, v{vM}")
    a("s_nop 1")
    a("s_or_b64 vcc, vcc, s[40:41]")
    a(f"s_cbranch_scc1 {L('slow')}")
    a.label(L("fin"))
    a(f"v_rcp_f32 v{vM}, v{O[0]+12}")
    a(f"v_and_b32 v{vT}, 31, v{vL}")
    a(f"v_lshlrev_b32 v{vT}, 4, v{vT}")
    a(f"v_lshrrev_b32 v{vT2}, 5, v{vL}")
    a(f"v_lshl_add_u32 v{vT2}, v{vT2}, 15, v{vT}")
    for i in range(12):
        a(f"v_mul_f32 v{O[0]+i}, v{O[0]+i}, v{vM}")
    for i in range(6):
        a(f"v_cvt_pk_bf16_f32 v{P+i}, v{O[0]+2*i}, v{O[0]+2*i+1}")
    a(f"buffer_store_dwordx4 {vr(P,4)}, v{vT2}, s[{sO}:{sO+3}], s{sOff} offen")
    a(f"s_mov_b64 exec, s[{sLo}:{sLo+1}]")
    a(f"buffer_store_dwordx2 {vr(P+4,2)}, v{vT}, s[{sO}:{sO+3}], s{sT} offen")
    st.finish(6)
    a.label(L("end"))
    a("s_endpgm")

    a.label(L("slow"))
    a("s_waitcnt vmcnt(0)")
    a(f"s_mov_b64 exec, s[{sHi}:{sHi+1}]")
    a(f"v_mov_b32 v{Qr[0]}, 0")
    a(f"v_mov_b32 v{Qr[0]+1}, 0")
    a("s_mov_b64 exec, -1")
    a(f"v_mov_b32 v{vM}, 0xff800000")
    a(f"s_mov_b32 s{sCnt}, 0")
    def qk_slow():
        a(f"s_mov_b64 exec, s[{sLo}:{sLo+1}]")
        a(f"buffer_load_dwordx2 {vr(Kr[0],2)}, v{vKr}, s[{sKVall}:{sKVall+3}], s{sCnt} offen")
        a("s_mov_b64 exec, -1")
        a(f"buffer_load_dwordx4 {vr(Km[0],4)}, v{vKm}, s[{sKVall}:{sKVall+3}], s{sCnt} offen")
        a("s_waitcnt vmcnt(0)")
        a(f"v_mfma_f32_32x32x16_bf16 {vr(S[0],16)}, {vr(Km[0],4)}, {vr(Qm[0],4)}, 0")
        a("s_nop 11")
        a(f"v_mfma_f32_32x32x8_bf16 {vr(S[0],16)}, {vr(Kr[0],2)}, {vr(Qr[0],2)}, {vr(S[0],16)}")
        a("s_nop 12")
    a.label(L("s1"))
    qk_slow()
    for i in range(0, 16, 2):
        a(f"v_max3_f32 v{vM}, v{vM}, v{S[0]+i}, v{S[0]+i+1}")
    a(f"s_add_u32 s{sCnt}, s{sCnt}, 2560")
    a(f"s_cmp_lt_u32 s{sCnt}, {KV_HS}")
    a(f"s_cbranch_scc1 {L('s1')}")
    a(f"v_mov_b32 v{vT}, v{vM}")
    a("s_nop 1")
    a(f"v_permlane32_swap_b32 v{vT}, v{vM}")
    a("s_nop 1")
    a(f"v_max_f32 v{vM}, v{vM}, v{vT}")
    a(f"v_cvt_pk_bf16_f32 v{S[0]}, 0, -v{vM}")
    a(f"v_sub_f32 v{vT}, 0, v{vM}")
    a(f"v_sub_f32 v{vT}, v{vT}, v{S[0]}")
    a(f"v_cvt_pk_bf16_f32 v{S[0]+1}, 0, v{vT}")
    a(f"v_sub_f32 v{vT2}, v{vT}, v{S[0]+1}")
    a(f"s_mov_b64 exec, s[{sHi}:{sHi+1}]")
    a(f"v_cvt_pk_bf16_f32 v{Qr[0]}, v{S[0]}, v{S[0]+1}")
    a(f"v_cvt_pk_bf16_f32 v{Qr[0]+1}, v{vT2}, 0")
    a("s_mov_b64 exec, -1")
    for i in range(16):
        a(f"v_mov_b32 v{O[0]+i}, 0")
    a(f"s_mov_b32 s{sCnt}, 0")
    a.label(L("s2"))
    a(f"s_mov_b64 exec, s[{sVm}:{sVm+1}]")
    a(f"buffer_load_dwordx4 {vr(Vb[0][0],4)}, v{vV}, s[{sKVall}:{sKVall+3}], s{sCnt} offen")
    a(f"buffer_load_dwordx4 {vr(Vb[0][1],4)}, v{vV}, s[{sKVall}:{sKVall+3}], s{sCnt} offen offset:640")
    qk_slow()
    for i in range(16): exp(0, i)
    a("s_nop 0")
    for i in range(8): cvt(0, i)
    a("s_nop 1")
    a(f"v_mfma_f32_32x32x16_bf16 {vr(O[0],16)}, {vr(Vb[0][0],4)}, {vr(P,4)}, {vr(O[0],16)}")
    a(f"v_mfma_f32_32x32x16_bf16 {vr(O[0],16)}, {vr(Vb[0][1],4)}, {vr(P+4,4)}, {vr(O[0],16)}")
    a(f"s_add_u32 s{sCnt}, s{sCnt}, 2560")
    a(f"s_cmp_lt_u32 s{sCnt}, {KV_HS}")
    a(f"s_cbranch_scc1 {L('s2')}")
    a("s_nop 12")
    a(f"s_branch {L('fin')}")
    return a.text(), kernel_desc(name, 256 if stamps else V.hi), f"; @launch kernel={name} grid=(256,1,1) block=(512,1,1) lds=32768"
```

```python
from asm import *

def gen_k3(name="out_kernel", stamps=False):
    a = Asm()
    kernel_begin(a, name)
    L = lambda s: f"L_{name}_{s}"
    V = Alloc(1, 256)
    vL = V.get(); vT = [V.get() for _ in range(6)]
    vD = [V.get() for _ in range(5)]
    vO = V.get(); vWs = V.get(); vR = V.get(); vR2 = V.get(); vSt = V.get()
    vG = V.get(2)
    BF = [V.get(4, 4) for _ in range(24)]
    AF = [[V.get(4, 4) for _ in range(5)] for _ in range(2)]
    AB = [V.get(4, 4) for _ in range(5)]
    AY = [V.get(4, 4) for _ in range(5)]
    sWS = 26
    sWo = 28; sG = 32; sOf = 36; sRe = 40; sIm = 44; sGt = 48; sOut = 52
    sW = 56; sC = 57; sEb = 58; sT = 59; sT2 = 60; sOff = 61; sOff2 = 62
    a("s_cmp_ge_u32 s2, 256")
    a(f"s_cbranch_scc1 {L('end')}")
    stp = Stamps(a, stamps, 2); stp.start()
    a("s_load_dwordx16 s[4:19], s[0:1], 0")
    a("s_load_dwordx8 s[20:27], s[0:1], 64")
    a(f"v_lshrrev_b32 v{vT[0]}, 6, v0")
    a(f"v_and_b32 v{vL}, 63, v0")
    a(f"v_readfirstlane_b32 s{sW}, v{vT[0]}")
    a(f"s_and_b32 s{sC}, s2, 7")
    a(f"s_lshl_b32 s{sC}, s{sC}, 2")
    a(f"s_bfe_u32 s{sT}, s2, 0x20003")
    a(f"s_add_u32 s{sC}, s{sC}, s{sT}")
    a(f"s_lshr_b32 s{sEb}, s2, 5")
    a(f"s_mul_i32 s{sT}, s{sEb}, 160")
    for j in range(5):
        a(f"v_add_u32 v{vT[0]}, {64*j}, v{vL}")
        a(f"v_mul_u32_u24 v{vT[1]}, 205, v{vT[0]}")
        a(f"v_lshrrev_b32 v{vT[1]}, 11, v{vT[1]}")
        a(f"v_mul_u32_u24 v{vT[2]}, 10, v{vT[1]}")
        a(f"v_sub_u32 v{vT[0]}, v{vT[0]}, v{vT[2]}")
        a(f"v_and_b32 v{vT[2]}, 3, v{vT[1]}")
        a(f"v_bfe_u32 v{vT[3]}, v{vT[1]}, 2, 2")
        a(f"v_lshl_add_u32 v{vT[2]}, v{vT[3]}, 3, v{vT[2]}")
        a(f"v_lshrrev_b32 v{vT[3]}, 4, v{vT[1]}")
        a(f"v_lshl_add_u32 v{vT[2]}, v{vT[3]}, 2, v{vT[2]}")
        a(f"v_mul_u32_u24 v{vT[2]}, 1280, v{vT[2]}")
        a(f"v_lshl_add_u32 v{vT[2]}, v{vT[0]}, 4, v{vT[2]}")
        a(f"v_add_u32 v{vD[j]}, s{sT}, v{vT[2]}")
    a(f"v_and_b32 v{vT[0]}, 15, v{vL}")
    a(f"v_lshrrev_b32 v{vT[1]}, 4, v{vL}")
    a(f"s_lshl_b32 s{sT}, s{sW}, 4")
    a(f"v_add_u32 v{vT[0]}, s{sT}, v{vT[0]}")
    a(f"s_lshl_b32 s{sT}, s{sC}, 6")
    a(f"v_add_u32 v{vT[2]}, s{sT}, v{vT[0]}")
    a(f"v_lshlrev_b32 v{vT[2]}, 4, v{vT[2]}")
    a(f"v_lshl_add_u32 v{vO}, v{vT[1]}, 15, v{vT[2]}")
    a(f"v_lshl_add_u32 v{vT[0]}, v{vT[0]}, 5, s{sC}")
    a(f"v_lshlrev_b32 v{vT[2]}, 12, v{vT[0]}")
    a(f"v_lshl_add_u32 v{vWs}, v{vT[1]}, 4, v{vT[2]}")
    a(f"v_lshlrev_b32 v{vT[3]}, 3, v{vT[0]}")
    a(f"v_mul_u32_u24 v{vSt}, 1280, v{vT[0]}")
    a(f"v_lshl_add_u32 v{vSt}, v{vT[1]}, 3, v{vSt}")
    a(f"s_mul_i32 s{sT}, s{sEb}, 160")
    a(f"v_add_u32 v{vSt}, s{sT}, v{vSt}")
    a("s_waitcnt lgkmcnt(0)")
    srd(a, sWo, 18, 0, 640 * 1280)
    a(f"s_mul_i32 s{sT}, s{sC}, 163840")
    a(f"s_add_u32 s{sT}, s{sT}, {G_OFF}")
    srd(a, sG, sWS, f"s{sT}", 163840)
    srd(a, sOf, sWS, OF_OFF, OF_SIZE)
    srd(a, sRe, 6, 0, 2048 * 4096)
    srd(a, sIm, 8, 0, 2048 * 4096)
    srd(a, sGt, sWS, GATE_OFF, GATE_SIZE)
    srd(a, sOut, 22, 0, 2048 * 1280)
    a(f"s_mul_i32 s{sOff}, s{sW}, {32*1280}")
    a(f"s_mul_i32 s{sT2}, s{sW}, 5120")
    a(f"s_mov_b32 s{sOff2}, 0")
    a(f"buffer_load_dwordx2 {vr(vG,2)}, v{vT[3]}, s[{sGt}:{sGt+3}], 0 offen")
    for r in range(6):
        src = sG if r == 0 else sWo
        for j in range(5):
            a(f"s_add_u32 m0, s{sT2}, {r*4*5120 + 1024*j}")
            a("s_nop 0")
            a(f"buffer_load_dwordx4 v{vD[j]}, s[{src}:{src+3}], s{sOff} offen lds")
        if r >= 1: a(f"s_add_u32 s{sOff}, s{sOff}, {4*32*1280}")
        for s in range(4):
            if r == 0:
                src2 = sRe if s < 2 else sIm
                a(f"buffer_load_dwordx4 {vr(BF[s],4)}, v{vWs}, s[{src2}:{src2+3}], 0 offen offset:{64*(s%2)}")
            else:
                a(f"buffer_load_dwordx4 {vr(BF[4*r+s],4)}, v{vO}, s[{sOf}:{sOf+3}], s{sOff2} offen")
                a(f"s_add_u32 s{sOff2}, s{sOff2}, {4*32768}")
    stp.stamp(1)
    a(f"v_lshrrev_b32 v{vT[0]}, 2, v{vL}")
    a(f"v_mul_u32_u24 v{vT[0]}, 160, v{vT[0]}")
    a(f"v_and_b32 v{vT[1]}, 3, v{vL}")
    a(f"v_lshl_add_u32 v{vR}, v{vT[1]}, 3, v{vT[0]}")
    a(f"v_add_u32 v{vR2}, {12*5120}, v{vR}")
    def rd(st):
        s = st % 2
        base, off = (vR, st * 5120) if st < 12 else (vR2, (st - 12) * 5120)
        for t in range(5):
            a(f"ds_read_b64_tr_b16 {vr(AF[s][t],2)}, v{base} offset:{off + 32*t}")
            a(f"ds_read_b64_tr_b16 {vr(AF[s][t]+2,2)}, v{base} offset:{off + 32*t + 2560}")
    for st in range(24):
        if st % 4 == 0:
            a(f"s_waitcnt vmcnt({9*(5 - st//4)})")
            a("s_barrier")
            stp.stamp(2 + st // 4)
            if stamps: a("s_waitcnt lgkmcnt(0)")
            rd(st)
        if st % 4 != 3:
            rd(st + 1)
            a("s_waitcnt lgkmcnt(10)")
        else:
            a("s_waitcnt lgkmcnt(0)")
        acc = AY if st < 4 else AB
        for t in range(5):
            c = "0" if st in (0, 4) else vr(acc[t], 4)
            a(f"v_mfma_f32_16x16x32_bf16 {vr(acc[t],4)}, {vr(AF[st%2][t],4)}, {vr(BF[st],4)}, {c}")
    a("s_nop 7")
    stp.stamp(8)
    for t in range(5):
        for i in range(4):
            a(f"v_mul_f32 v{AY[t]+i}, v{AY[t]+i}, v{vG}")
            a(f"v_fmac_f32 v{AY[t]+i}, v{AB[t]+i}, v{vG+1}")
        a(f"v_cvt_pk_bf16_f32 v{AY[t]}, v{AY[t]}, v{AY[t]+1}")
        a(f"v_cvt_pk_bf16_f32 v{AY[t]+1}, v{AY[t]+2}, v{AY[t]+3}")
        a(f"buffer_store_dwordx2 {vr(AY[t],2)}, v{vSt}, s[{sOut}:{sOut+3}], 0 offen offset:{32*t}")
    stp.finish(9)
    a.label(L("end"))
    a("s_endpgm")
    return a.text(), kernel_desc(name, 256 if stamps else V.hi), f"; @launch kernel={name} grid=(256,1,1) block=(256,1,1) lds={24*5120}"
```

```python
import sys
sys.path.insert(0, 'gen')
from gen import *
from asm import *
def empty(name, grid=256):
    a = Asm(); kernel_begin(a, name); a("s_endpgm")
    return a.text(), kernel_desc(name, 8), f"; @launch kernel={name} grid=({grid},1,1) block=(256,1,1) lds=0"
build("va.s", [gen_k1(), gen_k2(), gen_k3()])
e = empty("e1_kernel")
e2 = ("", "", e[2])
build("vb.s", [gen_k1(), gen_k2(), gen_k3(), e, e2, e2, e2])
build("vc.s", [e, e2, e2, e2, gen_k1(), gen_k2(), gen_k3()])
k1 = gen_k1(); k2 = gen_k2(); k3 = gen_k3()
build("vd.s", [k1, ("", "", k1[2]), k2, k3])
build("ve.s", [k1, k2, ("", "", k2[2]), k3])
build("vf.s", [k1, k2, k3, ("", "", k3[2])])
```

```python
class Asm:
    def __init__(self):
        self.lines = []
    def __call__(self, s, *a):
        for l in s.split("\n"):
            l = l.strip()
            if l:
                self.lines.append("    " + l)
    def label(self, n):
        self.lines.append(n + ":")
    def raw(self, s):
        self.lines.append(s)
    def c(self, s):
        self.lines.append("    ; " + s)
    def text(self):
        return "\n".join(self.lines) + "\n"

class Alloc:
    def __init__(self, start, limit):
        self.p = start; self.limit = limit; self.hi = start
    def get(self, n=1, align=1):
        if n >= 2 and align < 2: align = 2
        self.p = (self.p + align - 1) // align * align
        r = self.p; self.p += n
        assert self.p <= self.limit, "out of regs"
        self.hi = max(self.hi, self.p)
        return r

def vr(b, n=1):
    return f"v{b}" if n == 1 else f"v[{b}:{b+n-1}]"
def sr(b, n=1):
    return f"s{b}" if n == 1 else f"s[{b}:{b+n-1}]"

def kernel_begin(a, name):
    a.raw(".text")
    a.raw(f".globl {name}")
    a.raw(".p2align 8")
    a.raw(f".type {name},@function")
    a.label(name)

def kernel_desc(name, vgpr, sgpr=96):
    vg = (vgpr + 7) // 8 * 8
    return f""".section .rodata,"a"
.p2align 6
.amdhsa_kernel {name}
  .amdhsa_next_free_vgpr {vg}
  .amdhsa_next_free_sgpr {sgpr}
  .amdhsa_accum_offset {min(256, vg)}
  .amdhsa_group_segment_fixed_size 0
  .amdhsa_kernarg_size 96
  .amdhsa_user_sgpr_count 2
  .amdhsa_user_sgpr_kernarg_segment_ptr 1
  .amdhsa_system_sgpr_workgroup_id_x 1
.end_amdhsa_kernel
"""

def srd(a, d, base, off, nbytes):
    if off == 0:
        a(f"s_mov_b32 s{d}, s{base}")
        a(f"s_and_b32 s{d+1}, s{base+1}, 0xffff")
    else:
        a(f"s_add_u32 s{d}, s{base}, {off if isinstance(off,str) else hex(off)}")
        a(f"s_addc_u32 s{d+1}, s{base+1}, 0")
        a(f"s_and_b32 s{d+1}, s{d+1}, 0xffff")
    a(f"s_mov_b32 s{d+2}, {nbytes if isinstance(nbytes,str) else hex(nbytes)}")
    a(f"s_mov_b32 s{d+3}, 0x20000")

QF_OFF = 0
QF_HS = 64 * 1280
QF_SIZE = 32 * QF_HS
KV_OFF = QF_OFF + QF_SIZE
KV_HS = 64 * 2560
KV_SIZE = 32 * KV_HS
G_OFF = KV_OFF + KV_SIZE
G_SIZE = 32 * 2 * 64 * 1280
OF_OFF = G_OFF + G_SIZE
OF_SIZE = 80 * 2048 * 16
GATE_OFF = OF_OFF + OF_SIZE
GATE_SIZE = 2048 * 8
KA_X, KA_WSRE, KA_WSIM, KA_WDRE, KA_WDIM, KA_BX, KA_WQKV, KA_WO, KA_GW, KA_OUT, KA_DBG, KA_WS = [8*i for i in range(12)]

STAMP_OFF = 1 << 27
class Stamps:
    def __init__(self, a, on, kidx):
        self.a = a; self.on = on; self.kidx = kidx
    def start(self):
        if not self.on: return
        a = self.a
        for i in range(70, 94): a(f"s_mov_b32 s{i}, 0")
        a("s_memrealtime s[70:71]")
        a("s_memtime s[74:75]")
        a("s_load_dwordx2 s[68:69], s[0:1], 88")
        a("v_mov_b32 v255, v0")
        a("s_mov_b32 s67, s2")
    def stamp(self, i):
        if not self.on: return
        self.a(f"s_memtime s[{74+2*i}:{75+2*i}]")
    def finish(self, i):
        if not self.on: return
        a = self.a
        a("s_mov_b64 exec, -1")
        a("s_waitcnt vmcnt(0)")
        a(f"s_memtime s[{74+2*i}:{75+2*i}]")
        a("s_memrealtime s[72:73]")
        a("s_waitcnt lgkmcnt(0)")
        a(f"s_add_u32 s64, s68, {hex(STAMP_OFF + self.kidx * (1 << 20))}")
        a("s_addc_u32 s65, s69, 0")
        a("s_and_b32 s65, s65, 0xffff")
        a("s_lshl_b32 s68, s67, 10")
        a("s_mov_b32 s66, 0x100000")
        a("s_mov_b32 s67, 0x20000")
        a("v_lshrrev_b32 v254, 6, v255")
        a("v_lshlrev_b32 v254, 6, v254")
        a("v_add_u32 v254, s68, v254")
        a("s_getreg_b32 s69, hwreg(HW_REG_HW_ID)")
        a("s_getreg_b32 s68, hwreg(HW_REG_XCC_ID)")
        a("s_mov_b64 exec, 1")
        for k in range(12):
            a(f"v_mov_b32 v253, s{70+2*k}")
            a(f"buffer_store_dword v253, v254, s[64:67], 0 offen offset:{4*k}")
        a("v_mov_b32 v253, s69")
        a("buffer_store_dword v253, v254, s[64:67], 0 offen offset:48")
        a("v_mov_b32 v253, s68")
        a("buffer_store_dword v253, v254, s[64:67], 0 offen offset:52")

class WL:
    PL = 32768
    QF = 0
    KF = QF + 80 * PL
    VF = KF + 80 * PL
    VT = 40960
    G = VF + 64 * VT
    G_SIZE = 64 * 40 * 2048
    OF = G + G_SIZE
    GATE = OF + 80 * PL
    FLAG = GATE + 2048 * 8
    FA = 0
    FG = 1024
    FO = 4096
    EPOCH = FO + 8192
    FLAG_SIZE = EPOCH + 128
    END = FLAG + FLAG_SIZE
```

```python
from asm import *

QSCALE = 0x3ea52b5c

def gen_k1(name="gemm1_kernel", stamps=False, mapping=0, rot=None, grid=416):
    a = Asm()
    kernel_begin(a, name)
    L = lambda s: f"L_{name}_{s}"
    V = Alloc(1, 256)
    vL = V.get(); vT = [V.get() for _ in range(6)]
    vDX = [V.get() for _ in range(4)]; vDW = [V.get() for _ in range(4)]
    vRX = [V.get() for _ in range(4)]; vRW = [V.get() for _ in range(4)]
    vE = [V.get() for _ in range(8)]
    XF = [[V.get(4, 4) for _ in range(2)] for _ in range(2)]
    WF = [[V.get(4, 4) for _ in range(2)] for _ in range(2)]
    ACC = [[V.get(16, 4) for _ in range(2)] for _ in range(2)]
    FR = V.get(8, 4); FRn = V.get(8, 4); FIn = V.get(8, 4)
    G2 = [V.get(16, 4) for _ in range(2)]
    sGW = 20; sWS = 26
    sX = 28; sWt = 32; sOut = 36; sF = 40
    sW = 44; sWm = 45; sWn = 46; sRb = 47; sCb = 48; sOX = 49; sOW = 50; sStepW = 51; sM0 = 52; sMask = 53; sCnt = 54
    sT = 55; sT2 = 56; sScale = 57; sHS = 58; sTS = 59; sMaskD = 60

    a("s_cmp_ge_u32 s2, 416")
    a(f"s_cbranch_scc1 {L('end')}")
    st = Stamps(a, stamps, 0); st.start()
    a("s_load_dwordx16 s[4:19], s[0:1], 0")
    a("s_load_dwordx8 s[20:27], s[0:1], 64")
    a(f"v_lshrrev_b32 v{vT[0]}, 6, v0")
    a(f"v_and_b32 v{vL}, 63, v0")
    a(f"v_readfirstlane_b32 s{sW}, v{vT[0]}")
    a(f"s_and_b32 s{sRb}, s2, 7")
    a(f"s_lshl_b32 s{sRb}, s{sRb}, 1")
    a(f"s_bfe_u32 s{sT}, s2, 0x10003")
    a(f"s_add_u32 s{sRb}, s{sRb}, s{sT}")
    a(f"s_lshr_b32 s{sCb}, s2, 4")
    if mapping == 1:
        a(f"s_cmp_ge_u32 s2, 240")
        a(f"s_cbranch_scc1 {L('mapped')}")
        a(f"s_and_b32 s{sRb}, s2, 3")
        a(f"s_lshl_b32 s{sRb}, s{sRb}, 2")
        a(f"s_bfe_u32 s{sT}, s2, 0x20003")
        a(f"s_add_u32 s{sRb}, s{sRb}, s{sT}")
        a(f"s_bfe_u32 s{sT}, s2, 0x10002")
        a(f"s_lshr_b32 s{sCb}, s2, 5")
        a(f"s_cmp_eq_u32 s{sCb}, 7")
        a(f"s_cselect_b32 s{sT2}, 1, 3")
        a(f"s_lshl_b32 s{sT}, s{sT}, s{sT2}")
        a(f"s_cmp_eq_u32 s{sCb}, 7")
        a(f"s_cselect_b32 s{sT2}, s{sT}, 0")
        a(f"s_cselect_b32 s{sT}, 0, s{sT}")
        a(f"s_add_u32 s{sRb}, s{sRb}, s{sT2}")
        a(f"s_add_u32 s{sCb}, s{sCb}, s{sT}")
        a.label(L('mapped'))
    a(f"s_and_b32 s{sWm}, s{sW}, 1")
    a(f"s_lshr_b32 s{sWn}, s{sW}, 1")
    a("s_waitcnt lgkmcnt(0)")
    srd(a, sX, 4, 0, 2048 * 1280)
    a(f"s_cmp_eq_u32 s{sCb}, 15")
    a(f"s_cbranch_scc1 {L('gate')}")

    def nat_read_addrs(dst, swave, base):
        a(f"v_and_b32 v{vT[0]}, 31, v{vL}")
        a(f"v_lshrrev_b32 v{vT[1]}, 5, v{vL}")
        a(f"v_bfe_u32 v{vT[2]}, v{vL}, 1, 3")
        a(f"v_xor_b32 v{vT[1]}, v{vT[1]}, v{vT[2]}")
        a(f"v_lshlrev_b32 v{vT[1]}, 4, v{vT[1]}")
        a(f"v_lshl_add_u32 v{vT[0]}, v{vT[0]}, 7, v{vT[1]}")
        a(f"s_lshl_b32 s{sT}, s{swave}, 13")
        if base: a(f"s_add_u32 s{sT}, s{sT}, {base}")
        a(f"v_add_u32 v{dst[0]}, s{sT}, v{vT[0]}")
        for ks in range(1, 4):
            a(f"v_xor_b32 v{dst[ks]}, {32*ks}, v{dst[0]}")
    def nat_dma_piece():
        a(f"v_and_b32 v{vT[3]}, 7, v{vL}")
        a(f"v_lshrrev_b32 v{vT[4]}, 4, v{vL}")
        a(f"v_xor_b32 v{vT[3]}, v{vT[3]}, v{vT[4]}")
        a(f"v_lshlrev_b32 v{vT[3]}, 4, v{vT[3]}")

    a(f"s_cmp_ge_u32 s{sCb}, 16")
    a(f"s_cbranch_scc1 {L('fsetup')}")
    srd(a, sWt, 16, 0, 640 * 3840)
    nat_dma_piece()
    a(f"v_lshrrev_b32 v{vT[0]}, 3, v{vL}")
    a(f"s_lshl_b32 s{sT}, s{sWm}, 5")
    a(f"v_add_u32 v{vT[0]}, s{sT}, v{vT[0]}")
    a(f"s_lshl_b32 s{sT}, s{sRb}, 1")
    a(f"s_add_u32 s{sT}, s{sT}, s{sWn}")
    a(f"v_lshl_add_u32 v{vT[0]}, v{vT[0]}, 5, s{sT}")
    a(f"v_mul_u32_u24 v{vT[0]}, 1280, v{vT[0]}")
    a(f"v_add_u32 v{vDX[0]}, v{vT[0]}, v{vT[3]}")
    a(f"v_xor_b32 v{vT[3]}, 64, v{vT[3]}")
    a(f"v_add_u32 v{vDX[1]}, v{vT[0]}, v{vT[3]}")
    a(f"v_add_u32 v{vDX[1]}, {256*1280-1024}, v{vDX[1]}")
    a(f"v_add_u32 v{vDX[2]}, {2*256*1280-2048}, v{vDX[0]}")
    a(f"v_add_u32 v{vDX[3]}, {2*256*1280-2048}, v{vDX[1]}")
    a(f"v_lshrrev_b32 v{vT[0]}, 4, v{vL}")
    a(f"v_bfe_u32 v{vT[1]}, v{vL}, 2, 2")
    a(f"v_xor_b32 v{vT[1]}, v{vT[1]}, v{vT[0]}")
    a(f"v_and_b32 v{vT[2]}, 3, v{vL}")
    a(f"v_lshl_add_u32 v{vT[1]}, v{vT[1]}, 2, v{vT[2]}")
    a(f"v_lshlrev_b32 v{vT[1]}, 4, v{vT[1]}")
    a(f"s_lshl_b32 s{sT}, s{sW}, 4")
    a(f"v_add_u32 v{vT[0]}, s{sT}, v{vT[0]}")
    a(f"v_mul_u32_u24 v{vT[0]}, 3840, v{vT[0]}")
    a(f"s_lshl_b32 s{sT}, s{sCb}, 8")
    a(f"v_add3_u32 v{vDW[0]}, v{vT[0]}, v{vT[1]}, s{sT}")
    for j in range(1, 4):
        a(f"v_add_u32 v{vDW[j]}, {j*(4*3840-1024)}, v{vDW[0]}")
    a(f"s_mov_b32 s{sStepW}, {64*3840}")
    a(f"s_branch {L('issue')}")
    a.label(L("fsetup"))
    a(f"s_sub_u32 s{sCb}, s{sCb}, 16")
    a(f"s_cmp_eq_u32 s{sWm}, 0")
    a(f"s_cselect_b32 s{sWt}, s10, s12")
    a(f"s_cselect_b32 s{sWt+1}, s11, s13")
    a(f"s_and_b32 s{sWt+1}, s{sWt+1}, 0xffff")
    a(f"s_mov_b32 s{sWt+2}, {640*1280}")
    a(f"s_mov_b32 s{sWt+3}, 0x20000")
    nat_dma_piece()
    a(f"v_bfe_u32 v{vT[0]}, v{vL}, 3, 2")
    a(f"v_lshrrev_b32 v{vT[1]}, 5, v{vL}")
    a(f"v_lshl_add_u32 v{vT[0]}, v{vT[1]}, 3, v{vT[0]}")
    a(f"s_lshl_b32 s{sT}, s{sRb}, 2")
    a(f"s_add_u32 s{sT}, s{sT}, s{sW}")
    a(f"v_lshl_add_u32 v{vT[1]}, v{vT[0]}, 6, s{sT}")
    a(f"v_mul_u32_u24 v{vT[1]}, 1280, v{vT[1]}")
    a(f"v_xor_b32 v{vT[4]}, 64, v{vT[3]}")
    a(f"v_add_u32 v{vDX[0]}, v{vT[1]}, v{vT[3]}")
    a(f"v_add_u32 v{vDX[1]}, v{vT[1]}, v{vT[4]}")
    a(f"v_add_u32 v{vDX[1]}, {4*64*1280-1024}, v{vDX[1]}")
    a(f"v_add_u32 v{vDX[2]}, {16*64*1280-2048}, v{vDX[0]}")
    a(f"v_add_u32 v{vDX[3]}, {16*64*1280-2048}, v{vDX[1]}")
    a(f"s_lshl_b32 s{sT}, s{sCb}, 6")
    a(f"s_lshl_b32 s{sT2}, s{sWn}, 5")
    a(f"s_add_u32 s{sT}, s{sT}, s{sT2}")
    a(f"v_add_u32 v{vT[1]}, s{sT}, v{vT[0]}")
    a(f"v_mul_u32_u24 v{vT[1]}, 1280, v{vT[1]}")
    a(f"v_add_u32 v{vDW[0]}, v{vT[1]}, v{vT[3]}")
    a(f"v_add_u32 v{vDW[1]}, v{vT[1]}, v{vT[4]}")
    a(f"v_add_u32 v{vDW[1]}, {4*1280-1024}, v{vDW[1]}")
    a(f"v_add_u32 v{vDW[2]}, {16*1280-2048}, v{vDW[0]}")
    a(f"v_add_u32 v{vDW[3]}, {16*1280-2048}, v{vDW[1]}")
    a(f"s_mov_b32 s{sStepW}, 128")
    a(f"s_add_u32 s{sCb}, s{sCb}, 16")
    a.label(L("issue"))
    def dmaX(j): a(f"buffer_load_dwordx4 v{vDX[j]}, s[{sX}:{sX+3}], s{sOX} offen offset:{1024*j} lds")
    def dmaW(j): a(f"buffer_load_dwordx4 v{vDW[j]}, s[{sWt}:{sWt+3}], s{sOW} offen offset:{1024*j} lds")
    a(f"s_lshl_b32 s{sM0}, s{sW}, 12")
    if rot is None:
        a(f"s_mov_b32 s{sOX}, 0")
        a(f"s_mov_b32 s{sOW}, 0")
    else:
        a(f"s_mul_i32 s{sT}, s{sRb}, {rot[0]}")
        a(f"s_mul_i32 s{sT2}, s{sCb}, {rot[1]}")
        a(f"s_add_u32 s{sT}, s{sT}, s{sT2}")
        a(f"s_mul_i32 s{sT2}, s{sT}, 205")
        a(f"s_lshr_b32 s{sT2}, s{sT2}, 11")
        a(f"s_mul_i32 s{sT2}, s{sT2}, 10")
        a(f"s_sub_u32 s{sT}, s{sT}, s{sT2}")
        a(f"s_lshl_b32 s{sOX}, s{sT}, 7")
        a(f"s_mul_i32 s{sOW}, s{sT}, s{sStepW}")
    def wrap():
        if rot is not None:
            a(f"s_cmp_eq_u32 s{sOX}, 1280")
            a(f"s_cselect_b32 s{sOX}, 0, s{sOX}")
            a(f"s_cselect_b32 s{sOW}, 0, s{sOW}")
    a(f"s_mov_b32 s{sMaskD}, 0x8000")
    a(f"s_mov_b32 s{sCnt}, 4")
    a.label(L("pro"))
    a(f"s_mov_b32 m0, s{sM0}")
    a("s_nop 0")
    for j in range(4): dmaX(j)
    a(f"s_add_u32 m0, s{sM0}, 0x4000")
    a(f"s_add_u32 s{sOX}, s{sOX}, 128")
    for j in range(4): dmaW(j)
    a(f"s_add_u32 s{sOW}, s{sOW}, s{sStepW}")
    wrap()
    a(f"s_xor_b32 s{sM0}, s{sM0}, s{sMaskD}")
    a(f"s_xor_b32 s{sMaskD}, s{sMaskD}, 0x18000")
    a(f"s_sub_u32 s{sCnt}, s{sCnt}, 1")
    a(f"s_cmp_lg_u32 s{sCnt}, 0")
    a(f"s_cbranch_scc1 {L('pro')}")
    nat_read_addrs(vRX, sWm, 0)
    for x in range(2):
        for w in range(2):
            for i in range(16):
                a(f"v_mov_b32 v{ACC[x][w]+i}, 0")
    a(f"s_mov_b32 s{sMask}, 0x8000")
    a(f"s_mov_b32 s{sCnt}, 0")
    a("s_mov_b64 vcc, 0")
    a(f"s_cmp_ge_u32 s{sCb}, 16")
    a(f"s_cbranch_scc1 {L('f')}")
    a(f"v_bfe_u32 v{vT[0]}, v{vL}, 2, 2")
    a(f"v_lshrrev_b32 v{vT[1]}, 5, v{vL}")
    a(f"v_lshl_add_u32 v{vT[1]}, v{vT[1]}, 3, v{vT[0]}")
    a(f"v_lshlrev_b32 v{vT[1]}, 8, v{vT[1]}")
    a(f"s_lshl_b32 s{sT}, s{sWn}, 1")
    a(f"v_xor_b32 v{vT[0]}, s{sT}, v{vT[0]}")
    a(f"v_lshl_add_u32 v{vT[1]}, v{vT[0]}, 6, v{vT[1]}")
    a(f"v_bfe_u32 v{vT[0]}, v{vL}, 4, 1")
    a(f"v_lshl_add_u32 v{vT[1]}, v{vT[0]}, 5, v{vT[1]}")
    a(f"v_and_b32 v{vT[0]}, 3, v{vL}")
    a(f"v_lshl_add_u32 v{vT[1]}, v{vT[0]}, 3, v{vT[1]}")
    a(f"v_add_u32 v{vRW[0]}, 0x4000, v{vT[1]}")
    a(f"v_xor_b32 v{vRW[1]}, 64, v{vRW[0]}")
    a(f"s_cmp_ge_u32 s{sCb}, 10")
    a(f"s_cbranch_scc1 {L('v')}")

    def mainloop(mode):
        tr = mode != 'f'
        nw = 2 if tr else 1
        def rdX(s, ks, x): a(f"ds_read_b128 {vr(XF[s][x],4)}, v{vRX[ks]} offset:{4096*x}")
        def rdW(s, ks, w):
            if tr:
                a(f"ds_read_b64_tr_b16 {vr(WF[s][w],2)}, v{vRW[w]} offset:{4096*ks}")
                a(f"ds_read_b64_tr_b16 {vr(WF[s][w]+2,2)}, v{vRW[w]} offset:{4096*ks+1024}")
            else:
                a(f"ds_read_b128 {vr(WF[s][w],4)}, v{vRW[ks]} offset:{4096*w}")
        def mf(s, x, w):
            A, B = (WF[s][w], XF[s][x]) if mode == 'qk' else (XF[s][x], WF[s][w])
            a(f"v_mfma_f32_32x32x16_bf16 {vr(ACC[x][w],16)}, {vr(A,4)}, {vr(B,4)}, {vr(ACC[x][w],16)}")
        st.stamp(1)
        a("s_waitcnt vmcnt(24)")
        a("s_barrier")
        st.stamp(2)
        if stamps: a("s_waitcnt lgkmcnt(0)")
        rdX(0, 0, 0); rdW(0, 0, 0); rdX(0, 0, 1); rdW(0, 0, 1)
        a.raw(".p2align 6")
        a.label(L(mode + "loop"))
        sites = [[], [], []]
        for ks in range(4):
            s = ks % 2; n = 1 - s; nk = (ks + 1) % 4
            if ks < 3:
                a(f"s_waitcnt lgkmcnt({1+nw})")
                mf(s, 0, 0)
            else:
                a("s_waitcnt lgkmcnt(0)")
                mf(s, 0, 0)
                a("s_waitcnt vmcnt(16)")
                a("s_barrier")
                for r in vRX + (vRW[:2] if tr else vRW):
                    a(f"v_xor_b32 v{r}, s{sMask}, v{r}")
                a(f"s_xor_b32 s{sMask}, s{sMask}, 0x18000")
            rdX(n, nk, 0); rdW(n, nk, 0)
            if ks < 3: a(f"s_waitcnt lgkmcnt({2*nw+1})")
            mf(s, 1, 0)
            rdX(n, nk, 1)
            if ks < 3:
                lab = L(f"{mode}sk{ks}")
                a(f"s_cbranch_vccz {lab}")
                if ks == 0:
                    a(f"s_mov_b32 m0, s{sM0}")
                    a("s_nop 0")
                    dmaX(0); dmaX(1); dmaX(2)
                elif ks == 1:
                    dmaX(3)
                    a(f"s_add_u32 m0, s{sM0}, 0x4000")
                    a(f"s_add_u32 s{sOX}, s{sOX}, 128")
                    dmaW(0); dmaW(1)
                else:
                    dmaW(2); dmaW(3)
                    a(f"s_add_u32 s{sOW}, s{sOW}, s{sStepW}")
                    wrap()
                    a(f"s_xor_b32 s{sM0}, s{sM0}, s{sMaskD}")
                    a(f"s_xor_b32 s{sMaskD}, s{sMaskD}, 0x18000")
                a.label(lab)
                a(f"s_waitcnt lgkmcnt({nw+2})")
            mf(s, 0, 1)
            rdW(n, nk, 1)
            if ks == 3:
                a(f"s_add_u32 s{sCnt}, s{sCnt}, 1")
                a("s_mov_b64 vcc, -1")
                a(f"s_cmp_ge_u32 s{sCnt}, 7")
                a(f"s_cselect_b32 s{sX+2}, 0, s{sX+2}")
                a(f"s_cselect_b32 s{sWt+2}, 0, s{sWt+2}")
                a(f"s_cmp_lg_u32 s{sCnt}, 10")
            mf(s, 1, 1)
        a(f"s_cbranch_scc1 {L(mode+'loop')}")
        a("s_nop 12")
        st.stamp(3)

    a(f"s_cmp_ge_u32 s{sCb}, 5")
    a(f"s_cselect_b32 s{sScale}, 1.0, {hex(QSCALE)}")
    a(f"s_cselect_b32 s{sTS}, 1, 0")
    a(f"s_cselect_b32 s{sT}, {KV_OFF}, {QF_OFF}")
    a(f"s_cselect_b32 s{sT2}, 5, 0")
    srd(a, sOut, sWS, f"s{sT}", KV_SIZE)
    a(f"s_lshl_b32 s{sHS}, {QF_HS}, s{sTS}")
    a(f"s_lshl_b32 s{sTS}, 1280, s{sTS}")
    a(f"s_sub_u32 s{sT2}, s{sCb}, s{sT2}")
    a(f"s_lshl_b32 s{sT2}, s{sT2}, 5")
    a(f"s_lshl_b32 s{sT}, s{sWn}, 4")
    a(f"s_add_u32 s{sT2}, s{sT2}, s{sT}")
    a(f"v_lshrrev_b32 v{vT[0]}, 5, v{vL}")
    a(f"v_add_u32 v{vT[0]}, s{sT2}, v{vT[0]}")
    a(f"v_and_b32 v{vT[5]}, 31, v{vL}")
    a(f"v_lshlrev_b32 v{vT[5]}, 3, v{vT[5]}")
    a(f"s_lshl_b32 s{sT}, s{sRb}, 2")
    a(f"s_lshl_b32 s{sT2}, s{sWm}, 1")
    a(f"s_add_u32 s{sT}, s{sT}, s{sT2}")
    a(f"s_mul_i32 s{sT}, s{sT}, s{sTS}")
    for e in range(8):
        a(f"v_add_u32 v{vT[1]}, {2*e}, v{vT[0]}")
        a(f"v_mul_u32_u24 v{vT[2]}, 205, v{vT[1]}")
        a(f"v_lshrrev_b32 v{vT[2]}, 10, v{vT[2]}")
        a(f"v_mul_u32_u24 v{vT[3]}, 5, v{vT[2]}")
        a(f"v_sub_u32 v{vT[1]}, v{vT[1]}, v{vT[3]}")
        a(f"v_mul_lo_u32 v{vE[e]}, v{vT[2]}, s{sHS}")
        a(f"v_lshrrev_b32 v{vT[3]}, 1, v{vT[1]}")
        a(f"v_lshl_add_u32 v{vE[e]}, v{vT[3]}, 9, v{vE[e]}")
        a(f"v_and_b32 v{vT[4]}, 1, v{vT[1]}")
        a(f"v_lshl_add_u32 v{vE[e]}, v{vT[4]}, 3, v{vE[e]}")
        a(f"v_lshrrev_b32 v{vT[3]}, 1, v{vT[3]}")
        a(f"v_sub_u32 v{vT[3]}, 1, v{vT[3]}")
        a(f"v_lshlrev_b32 v{vT[3]}, v{vT[3]}, v{vT[5]}")
        a(f"v_add3_u32 v{vE[e]}, v{vE[e]}, v{vT[3]}, s{sT}")
    mainloop('qk')
    for x in range(2):
        for w in range(2):
            acc = ACC[x][w]
            for i in range(16):
                a(f"v_mul_f32 v{acc+i}, s{sScale}, v{acc+i}")
            for i in range(8):
                a(f"v_cvt_pk_bf16_f32 v{acc+i}, v{acc+2*i}, v{acc+2*i+1}")
            for g in range(4):
                so = "0" if x == 0 else f"s{sTS}"
                a(f"buffer_store_dwordx2 {vr(acc+2*g,2)}, v{vE[4*w+g]}, s[{sOut}:{sOut+3}], {so} offen")
    st.finish(4)
    a("s_endpgm")
    a.label(L("v"))
    srd(a, sOut, sWS, KV_OFF, KV_SIZE)
    a(f"s_sub_u32 s{sT2}, s{sCb}, 10")
    a(f"s_lshl_b32 s{sT2}, s{sT2}, 7")
    a(f"s_lshl_b32 s{sT}, s{sWn}, 6")
    a(f"s_add_u32 s{sT2}, s{sT2}, s{sT}")
    a(f"v_and_b32 v{vT[0]}, 31, v{vL}")
    a(f"v_add_u32 v{vT[0]}, s{sT2}, v{vT[0]}")
    a(f"v_lshrrev_b32 v{vT[5]}, 5, v{vL}")
    a(f"v_mul_u32_u24 v{vT[5]}, 320, v{vT[5]}")
    a(f"s_lshl_b32 s{sT}, s{sRb}, 2")
    a(f"s_lshl_b32 s{sT2}, s{sWm}, 1")
    a(f"s_add_u32 s{sT}, s{sT}, s{sT2}")
    a(f"s_mul_i32 s{sT}, s{sT}, 2560")
    a(f"s_add_u32 s{sT}, s{sT}, 1280")
    a(f"s_mov_b32 s{sHS}, {KV_HS}")
    for e in range(2):
        a(f"v_add_u32 v{vT[1]}, {32*e}, v{vT[0]}")
        a(f"v_mul_u32_u24 v{vT[2]}, 1639, v{vT[1]}")
        a(f"v_lshrrev_b32 v{vT[2]}, 15, v{vT[2]}")
        a(f"v_mul_u32_u24 v{vT[3]}, 20, v{vT[2]}")
        a(f"v_sub_u32 v{vT[1]}, v{vT[1]}, v{vT[3]}")
        a(f"v_and_b32 v{vT[3]}, 1, v{vT[2]}")
        a(f"v_lshl_add_u32 v{vT[1]}, v{vT[3]}, 4, v{vT[1]}")
        a(f"v_subrev_u32 v{vT[3]}, 20, v{vT[1]}")
        a(f"v_min_u32 v{vT[1]}, v{vT[1]}, v{vT[3]}")
        a(f"v_and_b32 v{vT[3]}, 0x13, v{vT[1]}")
        a(f"v_bfe_u32 v{vT[4]}, v{vT[1]}, 2, 1")
        a(f"v_lshl_add_u32 v{vT[3]}, v{vT[4]}, 3, v{vT[3]}")
        a(f"v_bfe_u32 v{vT[4]}, v{vT[1]}, 3, 1")
        a(f"v_lshl_add_u32 v{vT[3]}, v{vT[4]}, 2, v{vT[3]}")
        a(f"v_mul_lo_u32 v{vE[e]}, v{vT[2]}, s{sHS}")
        a(f"v_lshl_add_u32 v{vE[e]}, v{vT[3]}, 4, v{vE[e]}")
        a(f"v_add3_u32 v{vE[e]}, v{vE[e]}, v{vT[5]}, s{sT}")
    mainloop('v')
    for x in range(2):
        for w in range(2):
            acc = ACC[x][w]
            for i in range(8):
                a(f"v_cvt_pk_bf16_f32 v{acc+i}, v{acc+2*i}, v{acc+2*i+1}")
            for j in range(2):
                a(f"buffer_store_dwordx4 {vr(acc+4*j,4)}, v{vE[w]}, s[{sOut}:{sOut+3}], 0 offen offset:{2560*x+640*j}")
    st.finish(4)
    a("s_endpgm")
    a.label(L("f"))
    nat_read_addrs(vRW, sWn, 0x4000)
    srd(a, sOut, sWS, G_OFF, G_SIZE)
    a(f"v_and_b32 v{vT[0]}, 31, v{vL}")
    a(f"v_lshrrev_b32 v{vT[1]}, 5, v{vL}")
    a(f"s_mov_b32 s{sT}, 163840")
    a(f"v_mul_lo_u32 v{vE[0]}, v{vT[0]}, s{sT}")
    a(f"v_lshl_add_u32 v{vE[0]}, v{vT[1]}, 4, v{vE[0]}")
    a(f"s_lshl_b32 s{sT}, s{sRb}, 2")
    a(f"s_lshl_b32 s{sT2}, s{sWm}, 1")
    a(f"s_add_u32 s{sT}, s{sT}, s{sT2}")
    a(f"s_mul_i32 s{sT}, s{sT}, 1280")
    a(f"s_sub_u32 s{sT2}, s{sCb}, 16")
    a(f"s_lshl_b32 s{sT2}, s{sT2}, 7")
    a(f"s_add_u32 s{sT}, s{sT}, s{sT2}")
    a(f"s_lshl_b32 s{sT2}, s{sWn}, 6")
    a(f"s_add_u32 s{sT}, s{sT}, s{sT2}")
    a(f"v_add_u32 v{vE[0]}, s{sT}, v{vE[0]}")
    a(f"s_mov_b32 s{sTS}, 81920")
    a(f"v_lshlrev_b32 v{vE[1]}, 18, v{vT[0]}")
    a(f"v_lshl_add_u32 v{vE[1]}, v{vT[1]}, 4, v{vE[1]}")
    mainloop('f')
    srd(a, sF, 6, 0, 2048 * 4096)
    a(f"buffer_load_dwordx4 {vr(FR,4)}, v{vE[1]}, s[{sF}:{sF+3}], 0 offen")
    a(f"buffer_load_dwordx4 {vr(FR+4,4)}, v{vE[1]}, s[{sF}:{sF+3}], 0 offen offset:32")
    srd(a, sX, 8, 0, 2048 * 4096)
    a(f"buffer_load_dwordx4 {vr(FIn,4)}, v{vE[1]}, s[{sX}:{sX+3}], 0 offen")
    a(f"buffer_load_dwordx4 {vr(FIn+4,4)}, v{vE[1]}, s[{sX}:{sX+3}], 0 offen offset:32")
    for x in range(2):
        for w in range(2):
            acc = ACC[x][w]
            for i in range(8):
                a(f"v_cvt_pk_bf16_f32 v{acc+i}, v{acc+2*i}, v{acc+2*i+1}")
    a("s_waitcnt vmcnt(0)")
    for i in range(8):
        a(f"v_xor_b32 v{FRn+i}, 0x80008000, v{FR+i}")
        a(f"v_xor_b32 v{FIn+i}, 0x80008000, v{FIn+i}")
    a("s_nop 1")
    for x in range(2):
        za, zb = ACC[x][0], ACC[x][1]
        m = lambda d, A, B, c: a(f"v_mfma_f32_32x32x16_bf16 {vr(d,16)}, {vr(A,4)}, {vr(B,4)}, {c}")
        g0, g1 = G2
        m(g0, za, FR, "0"); m(g0, za+4, FR+4, vr(g0,16)); m(g0, zb, FIn, vr(g0,16)); m(g0, zb+4, FIn+4, vr(g0,16))
        m(g1, zb, FRn, "0"); m(g1, zb+4, FRn+4, vr(g1,16)); m(g1, za, FIn, vr(g1,16)); m(g1, za+4, FIn+4, vr(g1,16))
        a("s_nop 12")
        for p in range(2):
            g = G2[p]
            dst = ACC[x][p] + 8
            for i in range(8):
                a(f"v_cvt_pk_bf16_f32 v{dst+i}, v{g+2*i}, v{g+2*i+1}")
            for j in range(2):
                so = "0" if p == 0 else f"s{sTS}"
                a(f"buffer_store_dwordx4 {vr(dst+4*j,4)}, v{vE[0]}, s[{sOut}:{sOut+3}], {so} offen offset:{1280*x+32*j}")
    st.finish(4)
    a("s_endpgm")
    a.label(L("gate"))
    GW = 40; GX = 64
    srd(a, sWt, sGW, 0, 1280)
    srd(a, sOut, sWS, GATE_OFF, GATE_SIZE)
    a(f"v_and_b32 v{vT[0]}, 15, v{vL}")
    a(f"v_lshlrev_b32 v{vT[0]}, 4, v{vT[0]}")
    for p in range(5):
        a(f"buffer_load_dwordx4 {vr(GW+4*p,4)}, v{vT[0]}, s[{sWt}:{sWt+3}], 0 offen offset:{256*p}")
    a(f"v_lshrrev_b32 v{vT[1]}, 4, v{vL}")
    a(f"s_lshl_b32 s{sT}, s{sRb}, 7")
    a(f"s_lshl_b32 s{sT2}, s{sW}, 5")
    a(f"s_add_u32 s{sT}, s{sT}, s{sT2}")
    a(f"v_add_u32 v{vT[1]}, s{sT}, v{vT[1]}")
    a(f"v_mul_u32_u24 v{vT[2]}, 1280, v{vT[1]}")
    a(f"v_add_u32 v{vT[2]}, v{vT[2]}, v{vT[0]}")
    a(f"v_lshlrev_b32 v{vT[1]}, 3, v{vT[1]}")
    a(f"s_mov_b32 s{sOX}, 0")
    a(f"v_cmp_eq_u32 s[62:63], 0, v{vT[0]}")
    for r in range(8):
        for p in range(5):
            a(f"buffer_load_dwordx4 {vr(GX+20*r+4*p,4)}, v{vT[2]}, s[{sX}:{sX+3}], s{sOX} offen offset:{256*p}")
        a(f"s_add_u32 s{sOX}, s{sOX}, {4*1280}")
        a(f"v_mov_b32 v{vE[r]}, 0")
    for r in range(8):
        a(f"s_waitcnt vmcnt({35-5*r})")
        for i in range(20):
            a(f"v_dot2c_f32_bf16 v{vE[r]}, v{GX+20*r+i}, v{GW+i}")
    a("s_nop 3")
    for sh in (8, 4, 2, 1):
        for r in range(8):
            a(f"v_add_f32_dpp v{vE[r]}, v{vE[r]}, v{vE[r]} row_ror:{sh} row_mask:0xf bank_mask:0xf")
    for r in range(8): a(f"v_cvt_pk_bf16_f32 v{vE[r]}, 0, v{vE[r]}")
    for r in range(8): a(f"v_mul_f32 v{vE[r]}, 0xbfb8aa3b, v{vE[r]}")
    for r in range(8): a(f"v_exp_f32 v{vE[r]}, v{vE[r]}")
    for r in range(8): a(f"v_add_f32 v{vE[r]}, 1.0, v{vE[r]}")
    for r in range(8): a(f"v_rcp_f32 v{vE[r]}, v{vE[r]}")
    for r in range(8): a(f"v_cvt_pk_bf16_f32 v{GX+2*r}, 0, v{vE[r]}")
    for r in range(8): a(f"v_sub_f32 v{GX+2*r+1}, 1.0, v{GX+2*r}")
    for r in range(8): a(f"v_cvt_pk_bf16_f32 v{GX+2*r+1}, 0, v{GX+2*r+1}")
    a("s_mov_b64 exec, s[62:63]")
    for r in range(8):
        a(f"buffer_store_dwordx2 {vr(GX+2*r,2)}, v{vT[1]}, s[{sOut}:{sOut+3}], 0 offen offset:{32*r}")
    st.finish(4)
    assert vE[7] < GW
    V.hi = max(V.hi, GX + 160)
    a.label(L("end"))
    a("s_endpgm")
    return a.text(), kernel_desc(name, 256 if stamps else V.hi), f"; @launch kernel={name} grid=({grid},1,1) block=(256,1,1) lds=131072"
```

```python
from asm import *

QSCALE = 0x3ea52b5c
NAME = "gated_mix__spectral_fnet__softmax_full_mha__prompt_kernel"
LDS_X = 131072
LDS_CTL = LDS_X + 24576
LDS_SIZE = LDS_CTL + 64
SPIN = 200000

def gen(name=NAME, stamps=False, rotx=(0, 2, 5, 7, 5, 7, 0, 2), tailC=2, tailL=0):
    a = Asm()
    kernel_begin(a, name)
    L = lambda s: f"L_{s}"
    st = Stamps(a, stamps, 0)
    sWS = 26
    sA = 28; sB = 32; sC = 36; sD = 40; sFl = 44; sE = 48
    sW = 52; sXc = 53; sJ = 54; sNonce = 55; sT = 56; sT2 = 57; sCnt = 58
    sLo = 60; sVm = 62; sHi = 94; sM40 = 96
    vL = 1; vT = [2, 3, 4, 5, 6, 7]; vCtl = 8
    VB = 10

    def spin_begin(lab):
        a(f"s_mov_b32 s59, {SPIN}")
        a.label(L(lab))
    def spin_end(lab, sleep=2):
        a(f"s_sleep {sleep}")
        a("s_sub_u32 s59, s59, 1")
        a("s_cmp_lg_u32 s59, 0")
        a(f"s_cbranch_scc1 {L(lab)}")
    def get_nonce(lab):
        srd(a, sE, 24, 0, 256)
        a(f"v_mov_b32 v{vT[0]}, 0")
        spin_begin(lab)
        a(f"buffer_load_dwordx2 {vr(vT[2],2)}, v{vT[0]}, s[{sE}:{sE+3}], 0 offen sc1")
        a("s_waitcnt vmcnt(0)")
        a(f"v_readfirstlane_b32 s{sNonce}, v{vT[2]}")
        a(f"v_readfirstlane_b32 s{sT}, v{vT[3]}")
        a("s_nop 1")
        a(f"s_cmp_lg_u32 s{sT}, 0")
        a(f"s_cbranch_scc1 {L(lab+'d')}")
        spin_end(lab)
        a.label(L(lab + "d"))
    def put_flag(soff):
        a(f"v_mov_b32 v{vT[0]}, 0")
        a(f"v_mov_b32 v{vT[1]}, s{sNonce}")
        a("s_mov_b64 exec, 1")
        a(f"buffer_store_dword v{vT[1]}, v{vT[0]}, s[{sFl}:{sFl+3}], {soff} offen sc1")
        a("s_mov_b64 exec, -1")

    a("s_cmp_ge_u32 s2, 256")
    a(f"s_cbranch_scc1 {L('end')}")
    st.start()
    a("s_load_dwordx16 s[4:19], s[0:1], 0")
    a("s_load_dwordx8 s[20:27], s[0:1], 64")
    a(f"v_lshrrev_b32 v{vT[0]}, 6, v0")
    a(f"v_and_b32 v{vL}, 63, v0")
    a(f"v_readfirstlane_b32 s{sW}, v{vT[0]}")
    a(f"s_and_b32 s{sXc}, s2, 7")
    a(f"s_lshr_b32 s{sJ}, s2, 3")
    a(f"v_mov_b32 v{vCtl}, {LDS_CTL}")
    a(f"s_mov_b32 s{sLo}, -1"); a(f"s_mov_b32 s{sLo+1}, 0")
    a(f"s_mov_b32 s{sHi}, 0"); a(f"s_mov_b32 s{sHi+1}, -1")
    a(f"s_mov_b32 s{sVm}, 0xfffff"); a(f"s_mov_b32 s{sVm+1}, 0xfffff")
    a(f"s_mov_b32 s{sM40}, -1"); a(f"s_mov_b32 s{sM40+1}, 0xff")
    sRb = 98; sCb = 99; sAb = 100; sEb = 101; sWm = 14; sWn = 15; sWl = 3
    a(f"s_and_b32 s{sRb}, s2, 3")
    a(f"s_lshl_b32 s{sAb}, s{sRb}, 1")
    a(f"s_lshl_b32 s{sRb}, s{sRb}, 2")
    a(f"s_and_b32 s{sT}, s{sJ}, 3")
    a(f"s_add_u32 s{sRb}, s{sRb}, s{sT}")
    a(f"s_and_b32 s{sT}, s{sJ}, 1")
    a(f"s_add_u32 s{sAb}, s{sAb}, s{sT}")
    a(f"s_and_b32 s{sT}, s{sJ}, 2")
    a(f"s_lshl_b32 s{sT}, s{sT}, 2")
    a(f"s_add_u32 s{sAb}, s{sAb}, s{sT}")
    a(f"s_lshr_b32 s{sT}, s{sXc}, 2")
    a(f"s_lshr_b32 s{sCb}, s{sJ}, 2")
    a(f"s_mul_i32 s{sEb}, s{sT}, 5")
    a(f"s_add_u32 s{sEb}, s{sEb}, s{sCb}")
    a(f"s_sub_u32 s{sEb}, s{sEb}, 3")
    a(f"s_cmp_eq_u32 s{sCb}, 7")
    a(f"s_cselect_b32 s{sT2}, 1, 3")
    a(f"s_lshl_b32 s{sT}, s{sT}, s{sT2}")
    a(f"s_cmp_eq_u32 s{sCb}, 7")
    a(f"s_cselect_b32 s{sT2}, s{sT}, 0")
    a(f"s_cselect_b32 s{sT}, 0, s{sT}")
    a(f"s_add_u32 s{sRb}, s{sRb}, s{sT2}")
    a(f"s_add_u32 s{sCb}, s{sCb}, s{sT}")
    a("s_waitcnt lgkmcnt(0)")
    a(f"s_and_b32 s{sWl}, s{sW}, 3")
    a(f"s_and_b32 s{sWm}, s{sW}, 1")
    a(f"s_lshr_b32 s{sWn}, s{sWl}, 1")
    srd(a, sFl, sWS, WL.FLAG, WL.FLAG_SIZE)
    srd(a, sA, 4, 0, 2048 * 1280)
    a(f"s_cmp_lt_u32 s{sW}, 4")
    a(f"s_cbranch_scc1 {L('comp')}")

    V = Alloc(VB, 256)
    vDX = [V.get() for _ in range(4)]; vDW = [V.get() for _ in range(4)]
    vFX = [V.get() for _ in range(4)]; vFW = [V.get() for _ in range(4)]
    sOX = sD; sOW = sD + 1; sStepW = sD + 2; sM0 = sD + 3; sMaskD = sE; sN = sE + 1; sRot = sE + 2; sLeft = sE + 3
    a(f"v_and_b32 v{vT[3]}, 7, v{vL}")
    a(f"v_lshrrev_b32 v{vT[4]}, 4, v{vL}")
    a(f"v_xor_b32 v{vT[3]}, v{vT[3]}, v{vT[4]}")
    a(f"v_lshlrev_b32 v{vT[3]}, 4, v{vT[3]}")
    a(f"v_xor_b32 v{vT[4]}, 64, v{vT[3]}")
    rw = 0
    for i, r in enumerate(rotx): rw |= r << (4 * i)
    a(f"s_lshl_b32 s{sT}, s{sXc}, 2")
    a(f"s_lshr_b32 s{sRot}, {hex(rw)}, s{sT}")
    a(f"s_and_b32 s{sRot}, s{sRot}, 15")
    a(f"s_lshl_b32 s{sM0}, s{sWl}, 12")
    a(f"s_mov_b32 s{sMaskD}, 0x8000")
    def f_params(dx, dw):
        a(f"v_bfe_u32 v{vT[0]}, v{vL}, 3, 2")
        a(f"v_lshrrev_b32 v{vT[1]}, 5, v{vL}")
        a(f"v_lshl_add_u32 v{vT[0]}, v{vT[1]}, 3, v{vT[0]}")
        a(f"s_lshl_b32 s{sT}, s{sAb}, 2")
        a(f"s_add_u32 s{sT}, s{sT}, s{sWl}")
        a(f"v_lshl_add_u32 v{vT[1]}, v{vT[0]}, 6, s{sT}")
        a(f"v_mul_u32_u24 v{vT[1]}, 1280, v{vT[1]}")
        a(f"v_add_u32 v{dx[0]}, v{vT[1]}, v{vT[3]}")
        a(f"v_add_u32 v{dx[1]}, v{vT[1]}, v{vT[4]}")
        a(f"v_add_u32 v{dx[1]}, {4*64*1280-1024}, v{dx[1]}")
        a(f"v_add_u32 v{dx[2]}, {16*64*1280-2048}, v{dx[0]}")
        a(f"v_add_u32 v{dx[3]}, {16*64*1280-2048}, v{dx[1]}")
        a(f"s_lshl_b32 s{sT}, s{sEb}, 6")
        a(f"s_lshl_b32 s{sT2}, s{sWn}, 5")
        a(f"s_add_u32 s{sT}, s{sT}, s{sT2}")
        a(f"v_add_u32 v{vT[1]}, s{sT}, v{vT[0]}")
        a(f"v_mul_u32_u24 v{vT[1]}, 1280, v{vT[1]}")
        a(f"v_add_u32 v{dw[0]}, v{vT[1]}, v{vT[3]}")
        a(f"v_add_u32 v{dw[1]}, v{vT[1]}, v{vT[4]}")
        a(f"v_add_u32 v{dw[1]}, {4*1280-1024}, v{dw[1]}")
        a(f"v_add_u32 v{dw[2]}, {16*1280-2048}, v{dw[0]}")
        a(f"v_add_u32 v{dw[3]}, {16*1280-2048}, v{dw[1]}")
    def f_srd():
        a(f"s_cmp_eq_u32 s{sWm}, 0")
        a(f"s_cselect_b32 s{sB}, s10, s12")
        a(f"s_cselect_b32 s{sB+1}, s11, s13")
        a(f"s_and_b32 s{sB+1}, s{sB+1}, 0xffff")
        a(f"s_mov_b32 s{sB+2}, {640*1280}")
        a(f"s_mov_b32 s{sB+3}, 0x20000")
        a(f"s_mov_b32 s{sStepW}, 128")
        a(f"s_lshl_b32 s{sOX}, s{sRot}, 7")
        a(f"s_mov_b32 s{sOW}, s{sOX}")
    a(f"s_mov_b32 s{sLeft}, 10")
    a(f"s_mov_b32 s{sN}, 10")
    a(f"s_cmp_ge_u32 s{sJ}, 30")
    a(f"s_cbranch_scc1 {L('ld_fonly')}")
    srd(a, sB, 16, 0, 640 * 3840)
    a(f"v_lshrrev_b32 v{vT[0]}, 3, v{vL}")
    a(f"s_lshl_b32 s{sT}, s{sWm}, 5")
    a(f"v_add_u32 v{vT[0]}, s{sT}, v{vT[0]}")
    a(f"s_lshl_b32 s{sT}, s{sRb}, 1")
    a(f"s_add_u32 s{sT}, s{sT}, s{sWn}")
    a(f"v_lshl_add_u32 v{vT[0]}, v{vT[0]}, 5, s{sT}")
    a(f"v_mul_u32_u24 v{vT[0]}, 1280, v{vT[0]}")
    a(f"v_add_u32 v{vDX[0]}, v{vT[0]}, v{vT[3]}")
    a(f"v_add_u32 v{vDX[1]}, v{vT[0]}, v{vT[4]}")
    a(f"v_add_u32 v{vDX[1]}, {256*1280-1024}, v{vDX[1]}")
    a(f"v_add_u32 v{vDX[2]}, {2*256*1280-2048}, v{vDX[0]}")
    a(f"v_add_u32 v{vDX[3]}, {2*256*1280-2048}, v{vDX[1]}")
    a(f"v_lshrrev_b32 v{vT[0]}, 4, v{vL}")
    a(f"v_bfe_u32 v{vT[1]}, v{vL}, 2, 2")
    a(f"v_xor_b32 v{vT[1]}, v{vT[1]}, v{vT[0]}")
    a(f"v_and_b32 v{vT[2]}, 3, v{vL}")
    a(f"v_lshl_add_u32 v{vT[1]}, v{vT[1]}, 2, v{vT[2]}")
    a(f"v_lshlrev_b32 v{vT[1]}, 4, v{vT[1]}")
    a(f"s_lshl_b32 s{sT}, s{sWl}, 4")
    a(f"v_add_u32 v{vT[0]}, s{sT}, v{vT[0]}")
    a(f"v_mul_u32_u24 v{vT[0]}, 3840, v{vT[0]}")
    a(f"s_lshl_b32 s{sT}, s{sCb}, 8")
    a(f"v_add3_u32 v{vDW[0]}, v{vT[0]}, v{vT[1]}, s{sT}")
    for j in range(1, 4):
        a(f"v_add_u32 v{vDW[j]}, {j*(4*3840-1024)}, v{vDW[0]}")
    a(f"s_mov_b32 s{sStepW}, {64*3840}")
    a(f"s_lshl_b32 s{sOX}, s{sRot}, 7")
    a(f"s_mul_i32 s{sOW}, s{sRot}, s{sStepW}")
    a(f"s_cmp_ge_u32 s{sJ}, 12")
    a(f"s_cselect_b32 s{sN}, 20, 10")
    a(f"s_branch {L('ld_go')}")
    a.label(L("ld_fonly"))
    f_params(vDX, vDW)
    f_srd()
    a.label(L("ld_go"))
    a(f"s_mov_b32 s{sCnt}, 0")
    a.label(L("ld_loop"))
    a(f"s_cmp_lt_u32 s{sCnt}, 2")
    a(f"s_cbranch_scc1 {L('ld_issue')}")
    a(f"s_cmp_eq_u32 s{sCnt}, 3")
    a(f"s_cbranch_scc1 {L('ld_issue')}")
    a(f"s_cmp_lg_u32 s{sCnt}, 2")
    a(f"s_cbranch_scc1 {L('ld_w16')}")
    a("s_waitcnt vmcnt(8)")
    a.label(L("ld_w16"))
    a("s_waitcnt vmcnt(16)")
    a("s_barrier")
    a.label(L("ld_issue"))
    a(f"s_mov_b32 m0, s{sM0}")
    a(f"s_add_u32 s{sCnt}, s{sCnt}, 1")
    for j in range(4): a(f"buffer_load_dwordx4 v{vDX[j]}, s[{sA}:{sA+3}], s{sOX} offen offset:{1024*j} lds")
    a(f"s_add_u32 m0, s{sM0}, 0x4000")
    a(f"s_add_u32 s{sOX}, s{sOX}, 128")
    for j in range(4): a(f"buffer_load_dwordx4 v{vDW[j]}, s[{sB}:{sB+3}], s{sOW} offen offset:{1024*j} lds")
    a(f"s_add_u32 s{sOW}, s{sOW}, s{sStepW}")
    a(f"s_cmp_eq_u32 s{sOX}, 1280")
    a(f"s_cselect_b32 s{sOX}, 0, s{sOX}")
    a(f"s_cselect_b32 s{sOW}, 0, s{sOW}")
    a(f"s_xor_b32 s{sM0}, s{sM0}, s{sMaskD}")
    a(f"s_xor_b32 s{sMaskD}, s{sMaskD}, 0x18000")
    a(f"s_cmp_eq_u32 s{sCnt}, s{sN}")
    a(f"s_cbranch_scc1 {L('ld_tail')}")
    a(f"s_cmp_lg_u32 s{sCnt}, 10")
    a(f"s_cbranch_scc1 {L('ld_loop')}")
    f_params(vDX, vDW)
    f_srd()
    a(f"s_branch {L('ld_loop')}")
    a.label(L("ld_tail"))
    for n in (16, 8, 0):
        a(f"s_waitcnt vmcnt({n})")
        a("s_barrier")
    st.stamp(1)
    get_nonce("ln")
    a(f"s_cmp_lg_u32 s{sW}, 4")
    a(f"s_cbranch_scc1 {L('att')}")
    a(f"v_lshlrev_b32 v{vT[0]}, 4, v{vL}")
    spin_begin("pa")
    a(f"buffer_load_dwordx4 {vr(vT[2],4)}, v{vT[0]}, s[{sFl}:{sFl+3}], 0 offen sc1")
    a("s_waitcnt vmcnt(0)")
    for i in range(4): a(f"v_xor_b32 v{vT[2]+i}, s{sNonce}, v{vT[2]+i}")
    a(f"v_or3_b32 v{vT[2]}, v{vT[2]}, v{vT[3]}, v{vT[4]}")
    a(f"v_or_b32 v{vT[2]}, v{vT[2]}, v{vT[5]}")
    a(f"v_cmp_ne_u32 vcc, 0, v{vT[2]}")
    a("s_nop 1")
    a("s_cmp_eq_u64 vcc, 0")
    a(f"s_cbranch_scc1 {L('pad')}")
    spin_end("pa")
    a.label(L("pad"))
    a(f"v_mov_b32 v{vT[0]}, 1")
    a(f"ds_write_b32 v{vCtl}, v{vT[0]}")
    a(f"s_branch {L('att')}")

    a.label(L("comp"))
    V = Alloc(VB, 256)
    vRX = [V.get() for _ in range(4)]; vRW = [V.get() for _ in range(4)]
    vE = [V.get() for _ in range(8)]
    XF = [[V.get(4, 4) for _ in range(2)] for _ in range(2)]
    WF = [[V.get(4, 4) for _ in range(2)] for _ in range(2)]
    ACC = [[V.get(16, 4) for _ in range(2)] for _ in range(2)]
    FR = V.get(8, 4); FRn = V.get(8, 4); FIn = V.get(8, 4)
    G2 = [V.get(16, 4) for _ in range(2)]
    sMask = sD; sStage = sD + 1; sScale = sD + 2; sLast = sD + 3
    a("s_setprio 1")
    a(f"s_cmp_lg_u32 s{sW}, 0")
    a(f"s_cbranch_scc1 {L('c1')}")
    for i in range(4): a(f"v_mov_b32 v{vT[2]+i}, 0")
    a(f"ds_write_b128 v{vCtl}, {vr(vT[2],4)}")
    a("s_cmp_lg_u32 s2, 0")
    a(f"s_cbranch_scc1 {L('c1')}")
    srd(a, sE, 24, 0, 256)
    a(f"s_mov_b32 s{sT}, {WL.EPOCH}")
    a("s_mov_b64 exec, 1")
    a(f"buffer_load_dword v{vT[0]}, v{vT[2]}, s[{sFl}:{sFl+3}], s{sT} offen sc1")
    a(f"v_mov_b32 v{vT[1]}, 1")
    a("s_waitcnt vmcnt(0)")
    a(f"v_add_u32 v{vT[0]}, 1, v{vT[0]}")
    a(f"buffer_store_dwordx2 {vr(vT[0],2)}, v{vT[2]}, s[{sE}:{sE+3}], 0 offen sc1")
    a(f"buffer_store_dword v{vT[0]}, v{vT[2]}, s[{sFl}:{sFl+3}], s{sT} offen sc1")
    a("s_mov_b64 exec, -1")
    a.label(L("c1"))
    def nat_read_addrs(dst, swave, base):
        a(f"v_and_b32 v{vT[0]}, 31, v{vL}")
        a(f"v_lshrrev_b32 v{vT[1]}, 5, v{vL}")
        a(f"v_bfe_u32 v{vT[2]}, v{vL}, 1, 3")
        a(f"v_xor_b32 v{vT[1]}, v{vT[1]}, v{vT[2]}")
        a(f"v_lshlrev_b32 v{vT[1]}, 4, v{vT[1]}")
        a(f"v_lshl_add_u32 v{vT[0]}, v{vT[0]}, 7, v{vT[1]}")
        a(f"s_lshl_b32 s{sT}, s{swave}, 13")
        if base: a(f"s_add_u32 s{sT}, s{sT}, {base}")
        a(f"s_add_u32 s{sT}, s{sT}, s{sStage}")
        a(f"v_add_u32 v{dst[0]}, s{sT}, v{vT[0]}")
        for ks in range(1, 4):
            a(f"v_xor_b32 v{dst[ks]}, {32*ks}, v{dst[0]}")
    def zero_acc():
        for x in range(2):
            for w in range(2):
                for i in range(16): a(f"v_mov_b32 v{ACC[x][w]+i}, 0")
    def mainloop(mode):
        tr = mode != 'f'
        nw = 2 if tr else 1
        def rdX(s, ks, x): a(f"ds_read_b128 {vr(XF[s][x],4)}, v{vRX[ks]} offset:{4096*x}")
        def rdW(s, ks, w):
            if tr:
                a(f"ds_read_b64_tr_b16 {vr(WF[s][w],2)}, v{vRW[w]} offset:{4096*ks}")
                a(f"ds_read_b64_tr_b16 {vr(WF[s][w]+2,2)}, v{vRW[w]} offset:{4096*ks+1024}")
            else:
                a(f"ds_read_b128 {vr(WF[s][w],4)}, v{vRW[ks]} offset:{4096*w}")
        def mf(s, x, w):
            A, B = (WF[s][w], XF[s][x]) if mode == 'qk' else (XF[s][x], WF[s][w])
            a(f"v_mfma_f32_32x32x16_bf16 {vr(ACC[x][w],16)}, {vr(A,4)}, {vr(B,4)}, {vr(ACC[x][w],16)}")
        rdX(0, 0, 0); rdW(0, 0, 0); rdX(0, 0, 1); rdW(0, 0, 1)
        a(f"s_mov_b32 s{sCnt}, 0")
        a.raw(".p2align 5")
        a.label(L(mode + "loop"))
        for ks in range(4):
            s = ks % 2; n = 1 - s; nk = (ks + 1) % 4
            if ks < 3:
                a(f"s_waitcnt lgkmcnt({1+nw})")
                mf(s, 0, 0)
                if ks == 2:
                    a(f"s_add_u32 s{sCnt}, s{sCnt}, 1")
                    a(f"s_cmp_eq_u32 s{sCnt}, s{sLast}")
            else:
                a("s_waitcnt lgkmcnt(0)")
                mf(s, 0, 0)
                a(f"s_cbranch_scc1 {L(mode+'nb')}")
                a("s_barrier")
                a.label(L(mode + "nb"))
                for r in vRX + (vRW[:2] if tr else vRW):
                    a(f"v_xor_b32 v{r}, s{sMask}, v{r}")
            rdX(n, nk, 0); rdW(n, nk, 0)
            if ks < 3: a(f"s_waitcnt lgkmcnt({2*nw+1})")
            mf(s, 1, 0)
            rdX(n, nk, 1)
            if ks < 3: a(f"s_waitcnt lgkmcnt({nw+2})")
            mf(s, 0, 1)
            rdW(n, nk, 1)
            if ks == 3:
                a(f"s_xor_b32 s{sStage}, s{sStage}, s{sMask}")
                a(f"s_xor_b32 s{sMask}, s{sMask}, 0x18000")
                a(f"s_cmp_lg_u32 s{sCnt}, 10")
            mf(s, 1, 1)
        a(f"s_cbranch_scc1 {L(mode+'loop')}")
        a("s_waitcnt lgkmcnt(0)")
        a("s_nop 11")
    a(f"s_mov_b32 s{sMask}, 0x8000")
    a(f"s_mov_b32 s{sStage}, 0")
    a(f"s_cmp_ge_u32 s{sJ}, 30")
    a(f"s_cbranch_scc1 {L('gate')}")
    a(f"s_cmp_ge_u32 s{sJ}, 12")
    a(f"s_cselect_b32 s{sLast}, 99, 10")
    nat_read_addrs(vRX, sWm, 0)
    zero_acc()
    a(f"v_bfe_u32 v{vT[0]}, v{vL}, 2, 2")
    a(f"v_lshrrev_b32 v{vT[1]}, 5, v{vL}")
    a(f"v_lshl_add_u32 v{vT[1]}, v{vT[1]}, 3, v{vT[0]}")
    a(f"v_lshlrev_b32 v{vT[1]}, 8, v{vT[1]}")
    a(f"s_lshl_b32 s{sT}, s{sWn}, 1")
    a(f"v_xor_b32 v{vT[0]}, s{sT}, v{vT[0]}")
    a(f"v_lshl_add_u32 v{vT[1]}, v{vT[0]}, 6, v{vT[1]}")
    a(f"v_bfe_u32 v{vT[0]}, v{vL}, 4, 1")
    a(f"v_lshl_add_u32 v{vT[1]}, v{vT[0]}, 5, v{vT[1]}")
    a(f"v_add_u32 v{vT[1]}, 0x4000, v{vT[1]}")
    a(f"v_and_b32 v{vT[4]}, 31, v{vL}")
    a(f"v_lshrrev_b32 v{vT[5]}, 5, v{vL}")
    a(f"s_cmp_ge_u32 s{sCb}, 10")
    a(f"s_cbranch_scc1 {L('v')}")
    a(f"v_and_b32 v{vT[0]}, 1, v{vL}")
    a(f"v_lshl_add_u32 v{vT[1]}, v{vT[0]}, 4, v{vT[1]}")
    a(f"v_bfe_u32 v{vT[0]}, v{vL}, 1, 1")
    a(f"v_lshl_add_u32 v{vRW[0]}, v{vT[0]}, 3, v{vT[1]}")
    a(f"v_xor_b32 v{vRW[1]}, 64, v{vRW[0]}")
    a(f"s_cmp_ge_u32 s{sCb}, 5")
    a(f"s_cselect_b32 s{sScale}, 1.0, {hex(QSCALE)}")
    srd(a, sC, sWS, WL.QF, 160 * WL.PL)
    a(f"s_lshl_b32 s{sT}, s{sCb}, 1")
    a(f"s_add_u32 s{sT}, s{sT}, s{sWn}")
    a(f"s_lshl_b32 s{sT}, s{sT}, 18")
    a(f"s_lshl_b32 s{sT2}, s{sRb}, 1")
    a(f"s_add_u32 s{sT2}, s{sT2}, s{sWm}")
    a(f"s_lshl_b32 s{sT2}, s{sT2}, 10")
    a(f"s_add_u32 s{sT}, s{sT}, s{sT2}")
    a(f"v_lshlrev_b32 v{vE[0]}, 15, v{vT[5]}")
    a(f"v_lshl_add_u32 v{vE[0]}, v{vT[4]}, 4, v{vE[0]}")
    a(f"v_add_u32 v{vE[0]}, s{sT}, v{vE[0]}")
    for e in range(1, 4): a(f"v_add_u32 v{vE[e]}, {e*2*WL.PL}, v{vE[0]}")
    a("s_waitcnt lgkmcnt(0)")
    a("s_barrier")
    st.stamp(1)
    mainloop('qk')
    st.stamp(2)
    for x in range(2):
        for w in range(2):
            acc = ACC[x][w]
            for i in range(16): a(f"v_mul_f32 v{acc+i}, s{sScale}, v{acc+i}")
            for i in range(8): a(f"v_cvt_pk_bf16_f32 v{acc+i}, v{acc+2*i}, v{acc+2*i+1}")
            for j in range(2):
                a(f"buffer_store_dwordx4 {vr(acc+4*j,4)}, v{vE[2*w+j]}, s[{sC}:{sC+3}], 0 offen offset:{512*x} sc1")
    a(f"s_branch {L('adone')}")
    a.label(L("v"))
    a(f"v_and_b32 v{vT[0]}, 3, v{vL}")
    a(f"v_lshl_add_u32 v{vRW[0]}, v{vT[0]}, 3, v{vT[1]}")
    a(f"v_xor_b32 v{vRW[1]}, 64, v{vRW[0]}")
    srd(a, sC, sWS, WL.VF, 64 * WL.VT)
    a(f"s_lshl_b32 s{sT}, s{sRb}, 1")
    a(f"s_add_u32 s{sT}, s{sT}, s{sWm}")
    a(f"s_mul_i32 s{sT}, s{sT}, {2*WL.VT}")
    a(f"s_sub_u32 s{sT2}, s{sCb}, 10")
    a(f"s_lshl_b32 s{sT2}, s{sT2}, 1")
    a(f"s_add_u32 s{sT2}, s{sT2}, s{sWn}")
    a(f"s_lshl_b32 s{sT2}, s{sT2}, 10")
    a(f"s_add_u32 s{sT}, s{sT}, s{sT2}")
    a(f"v_mul_u32_u24 v{vE[0]}, 10240, v{vT[5]}")
    a(f"v_lshl_add_u32 v{vE[0]}, v{vT[4]}, 4, v{vE[0]}")
    a(f"v_add_u32 v{vE[0]}, s{sT}, v{vE[0]}")
    for e in range(1, 4): a(f"v_add_u32 v{vE[e]}, {e*20480}, v{vE[0]}")
    a("s_waitcnt lgkmcnt(0)")
    a("s_barrier")
    st.stamp(1)
    mainloop('v')
    st.stamp(2)
    for x in range(2):
        for w in range(2):
            acc = ACC[x][w]
            for i in range(8): a(f"v_cvt_pk_bf16_f32 v{acc+i}, v{acc+2*i}, v{acc+2*i+1}")
            for j in range(2):
                a(f"buffer_store_dwordx4 {vr(acc+4*j,4)}, v{vE[2*x+j]}, s[{sC}:{sC+3}], 0 offen offset:{512*w} sc1")
    a(f"s_branch {L('adone')}")
    a.label(L("gate"))
    GW = 40; GX = 64
    assert vE[7] < GW
    srd(a, sB, 20, 0, 1280)
    srd(a, sC, sWS, WL.GATE, 2048 * 8)
    a(f"v_and_b32 v{vT[0]}, 15, v{vL}")
    a(f"v_lshlrev_b32 v{vT[0]}, 4, v{vT[0]}")
    for p in range(5):
        a(f"buffer_load_dwordx4 {vr(GW+4*p,4)}, v{vT[0]}, s[{sB}:{sB+3}], 0 offen offset:{256*p}")
    a(f"v_lshrrev_b32 v{vT[1]}, 4, v{vL}")
    a(f"s_lshl_b32 s{sT}, s{sWm}, 5")
    a(f"v_add_u32 v{vT[1]}, s{sT}, v{vT[1]}")
    a(f"s_sub_u32 s{sT}, s2, 240")
    a(f"s_lshl_b32 s{sT}, s{sT}, 1")
    a(f"s_add_u32 s{sT}, s{sT}, s{sWn}")
    a(f"v_lshl_add_u32 v{vT[2]}, v{vT[1]}, 5, s{sT}")
    a(f"v_mul_u32_u24 v{vT[2]}, 1280, v{vT[2]}")
    a(f"v_add_u32 v{vT[2]}, v{vT[2]}, v{vT[0]}")
    a(f"s_lshl_b32 s{sT}, s{sT}, 6")
    a(f"v_add_u32 v{vT[1]}, s{sT}, v{vT[1]}")
    a(f"v_lshlrev_b32 v{vT[1]}, 3, v{vT[1]}")
    a(f"s_mov_b32 s{sT}, 0")
    a(f"v_cmp_eq_u32 vcc, 0, v{vT[0]}")
    for r in range(8):
        for p in range(5):
            a(f"buffer_load_dwordx4 {vr(GX+20*r+4*p,4)}, v{vT[2]}, s[{sA}:{sA+3}], s{sT} offen offset:{256*p}")
        a(f"s_add_u32 s{sT}, s{sT}, {4*32*1280}")
        a(f"v_mov_b32 v{vE[r]}, 0")
    a("s_waitcnt lgkmcnt(0)")
    a("s_barrier")
    for r in range(8):
        a(f"s_waitcnt vmcnt({35-5*r})")
        for i in range(20):
            a(f"v_dot2c_f32_bf16 v{vE[r]}, v{GX+20*r+i}, v{GW+i}")
    a("s_nop 3")
    for sh in (8, 4, 2, 1):
        for r in range(8):
            a(f"v_add_f32_dpp v{vE[r]}, v{vE[r]}, v{vE[r]} row_ror:{sh} row_mask:0xf bank_mask:0xf")
    for r in range(8): a(f"v_cvt_pk_bf16_f32 v{vE[r]}, 0, v{vE[r]}")
    for r in range(8): a(f"v_mul_f32 v{vE[r]}, 0xbfb8aa3b, v{vE[r]}")
    for r in range(8): a(f"v_exp_f32 v{vE[r]}, v{vE[r]}")
    for r in range(8): a(f"v_add_f32 v{vE[r]}, 1.0, v{vE[r]}")
    for r in range(8): a(f"v_rcp_f32 v{vE[r]}, v{vE[r]}")
    for r in range(8): a(f"v_cvt_pk_bf16_f32 v{GX+2*r}, 0, v{vE[r]}")
    for r in range(8): a(f"v_sub_f32 v{GX+2*r+1}, 1.0, v{GX+2*r}")
    for r in range(8): a(f"v_cvt_pk_bf16_f32 v{GX+2*r+1}, 0, v{GX+2*r+1}")
    a("s_mov_b64 exec, vcc")
    for r in range(8):
        a(f"buffer_store_dwordx2 {vr(GX+2*r,2)}, v{vT[1]}, s[{sC}:{sC+3}], 0 offen offset:{32*r} sc1")
    a("s_mov_b64 exec, -1")
    a.label(L("adone"))
    get_nonce("cn")
    a(f"v_mov_b32 v{vT[0]}, 1")
    a("s_mov_b64 exec, 1")
    a(f"ds_add_rtn_u32 v{vT[1]}, v{vCtl}, v{vT[0]} offset:4")
    a("s_mov_b64 exec, -1")
    a("s_waitcnt lgkmcnt(0)")
    a(f"v_readfirstlane_b32 s{sT}, v{vT[1]}")
    a("s_nop 1")
    a(f"s_cmp_lg_u32 s{sT}, 3")
    a(f"s_cbranch_scc1 {L('nflag')}")
    a(f"s_lshl_b32 s{sT}, s2, 2")
    put_flag(f"s{sT}")
    a.label(L("nflag"))
    st.stamp(3)
    a(f"s_cmp_lt_u32 s{sJ}, 12")
    a(f"s_cbranch_scc1 {L('fdone')}")
    a(f"s_mov_b32 s{sLast}, 10")
    nat_read_addrs(vRX, sWm, 0)
    nat_read_addrs(vRW, sWn, 0x4000)
    a(f"v_and_b32 v{vT[0]}, 31, v{vL}")
    a(f"v_lshrrev_b32 v{vT[1]}, 5, v{vL}")
    a(f"v_lshlrev_b32 v{vE[1]}, 18, v{vT[0]}")
    a(f"v_lshl_add_u32 v{vE[1]}, v{vT[1]}, 4, v{vE[1]}")
    srd(a, sB, 6, 0, 2048 * 4096)
    srd(a, sC, 8, 0, 2048 * 4096)
    a(f"buffer_load_dwordx4 {vr(FR,4)}, v{vE[1]}, s[{sB}:{sB+3}], 0 offen")
    a(f"buffer_load_dwordx4 {vr(FR+4,4)}, v{vE[1]}, s[{sB}:{sB+3}], 0 offen offset:32")
    a(f"buffer_load_dwordx4 {vr(FIn,4)}, v{vE[1]}, s[{sC}:{sC+3}], 0 offen")
    a(f"buffer_load_dwordx4 {vr(FIn+4,4)}, v{vE[1]}, s[{sC}:{sC+3}], 0 offen offset:32")
    a(f"v_lshlrev_b32 v{vE[0]}, 5, v{vT[0]}")
    a(f"v_lshl_add_u32 v{vE[0]}, v{vT[1]}, 4, v{vE[0]}")
    a(f"s_lshl_b32 s{sT}, s{sAb}, 1")
    a(f"s_add_u32 s{sT}, s{sT}, s{sWm}")
    a(f"s_mul_i32 s{sT}, s{sT}, 40")
    a(f"s_lshl_b32 s{sT2}, s{sEb}, 1")
    a(f"s_add_u32 s{sT2}, s{sT2}, s{sWn}")
    a(f"s_add_u32 s{sT}, s{sT}, s{sT2}")
    a(f"s_lshl_b32 s{sT}, s{sT}, 12")
    a(f"v_add_u32 v{vE[0]}, s{sT}, v{vE[0]}")
    a(f"v_add_u32 v{vE[2]}, {40*2048}, v{vE[0]}")
    zero_acc()
    mainloop('f')
    st.stamp(4)
    srd(a, sC, sWS, WL.G, WL.G_SIZE)
    for x in range(2):
        for w in range(2):
            acc = ACC[x][w]
            for i in range(8): a(f"v_cvt_pk_bf16_f32 v{acc+i}, v{acc+2*i}, v{acc+2*i+1}")
    a("s_waitcnt vmcnt(0)")
    for i in range(8):
        a(f"v_xor_b32 v{FRn+i}, 0x80008000, v{FR+i}")
        a(f"v_xor_b32 v{FIn+i}, 0x80008000, v{FIn+i}")
    a("s_nop 1")
    for x in range(2):
        za, zb = ACC[x][0], ACC[x][1]
        m = lambda d, A, B, c: a(f"v_mfma_f32_32x32x16_bf16 {vr(d,16)}, {vr(A,4)}, {vr(B,4)}, {c}")
        g0, g1 = G2
        m(g0, za, FR, "0"); m(g0, za+4, FR+4, vr(g0,16)); m(g0, zb, FIn, vr(g0,16)); m(g0, zb+4, FIn+4, vr(g0,16))
        m(g1, zb, FRn, "0"); m(g1, zb+4, FRn+4, vr(g1,16)); m(g1, za, FIn, vr(g1,16)); m(g1, za+4, FIn+4, vr(g1,16))
        a("s_nop 12")
        for p in range(2):
            g = G2[p]
            dst = ACC[x][p] + 8
            for i in range(8): a(f"v_cvt_pk_bf16_f32 v{dst+i}, v{g+2*i}, v{g+2*i+1}")
            for j in range(2):
                a(f"buffer_store_dwordx4 {vr(dst+4*j,4)}, v{vE[2*x]}, s[{sC}:{sC+3}], 0 offen offset:{2048*j+1024*p} sc1")
    a(f"s_lshl_b32 s{sT}, s{sEb}, 1")
    a(f"s_add_u32 s{sT}, s{sT}, s{sWn}")
    a(f"s_lshl_b32 s{sT}, s{sT}, 5")
    a(f"s_lshl_b32 s{sT2}, s{sAb}, 1")
    a(f"s_add_u32 s{sT}, s{sT}, s{sT2}")
    a(f"s_add_u32 s{sT}, s{sT}, s{sWm}")
    a(f"s_lshl_b32 s{sT}, s{sT}, 2")
    a(f"s_add_u32 s{sT}, s{sT}, {WL.FG}")
    a("s_waitcnt vmcnt(0)")
    put_flag(f"s{sT}")
    a.label(L("fdone"))
    a(f"v_mov_b32 v{vT[0]}, 1")
    a("s_mov_b64 exec, 1")
    a(f"ds_add_u32 v{vCtl}, v{vT[0]} offset:8")
    a("s_mov_b64 exec, -1")

    a.label(L("att"))
    V = Alloc(VB, 256)
    vKm = V.get(); vKr = V.get(); vV0 = V.get(); vV1 = V.get(); vM = V.get(); vWo = V.get()
    Qm = [V.get(4, 4) for _ in range(2)]
    Qr = [V.get(2) for _ in range(2)]
    Km = [V.get(4, 4) for _ in range(4)]
    Kr = [V.get(2) for _ in range(4)]
    Vb = [[V.get(4, 4) for _ in range(2)] for _ in range(4)]
    P = V.get(8, 4)
    S = [V.get(16, 4) for _ in range(2)]
    O = [V.get(16, 4) for _ in range(2)]
    K0m = V.get(4, 4); K0r = V.get(2)
    GFl = V.get(2)
    vG = V.get(2); vO = V.get(); vSt = V.get(); vGd = V.get()
    WsF = [V.get(4, 4) for _ in range(2)]
    att_hi = V.p
    sK = sA; sV = sB; sQ = sC; sWo = sD
    sHead = 98; sQb = 99; sKh = 100; sOK = 101; sOV = 14; sOWo = 15; sM0 = 3; sPar = sE; sHp = sE + 1; sTail = sE + 2; sU0 = sE + 3
    a(f"s_and_b32 s{sT}, s{sJ}, 3")
    a(f"s_lshl_b32 s{sHead}, s{sXc}, 2")
    a(f"s_add_u32 s{sHead}, s{sHead}, s{sT}")
    a(f"s_lshr_b32 s{sQb}, s{sJ}, 2")
    a(f"s_lshr_b32 s{sKh}, s{sW}, 2")
    a(f"s_and_b32 s{sPar}, s{sHead}, 1")
    a(f"s_lshr_b32 s{sHp}, s{sHead}, 1")
    a(f"s_mul_i32 s{sHp}, s{sHp}, {5*WL.PL}")
    a(f"v_and_b32 v{vT[0]}, 31, v{vL}")
    a(f"v_lshrrev_b32 v{vT[1]}, 5, v{vL}")
    a(f"s_mul_i32 s{sT}, s{sPar}, {3*WL.PL}")
    a(f"v_lshlrev_b32 v{vKm}, 15, v{vT[1]}")
    a(f"v_lshl_add_u32 v{vKm}, v{vT[0]}, 4, v{vKm}")
    a(f"v_add_u32 v{vKm}, s{sT}, v{vKm}")
    a(f"s_lshl_b32 s{sT}, s{sPar}, 3")
    a(f"s_add_u32 s{sT}, s{sT}, {2*WL.PL}")
    a(f"v_lshl_add_u32 v{vKr}, v{vT[0]}, 4, s{sT}")
    a(f"v_and_b32 v{vT[2]}, 0x13, v{vT[0]}")
    a(f"v_bfe_u32 v{vT[3]}, v{vT[0]}, 2, 1")
    a(f"v_lshl_add_u32 v{vT[2]}, v{vT[3]}, 3, v{vT[2]}")
    a(f"v_bfe_u32 v{vT[3]}, v{vT[0]}, 3, 1")
    a(f"v_lshl_add_u32 v{vT[2]}, v{vT[3]}, 2, v{vT[2]}")
    a(f"s_lshl_b32 s{sT}, s{sPar}, 2")
    a(f"v_add_u32 v{vT[2]}, s{sT}, v{vT[2]}")
    a(f"v_subrev_u32 v{vT[3]}, 20, v{vT[2]}")
    a(f"v_min_u32 v{vT[2]}, v{vT[2]}, v{vT[3]}")
    a(f"s_mul_i32 s{sT}, s{sHead}, 320")
    a(f"v_mul_u32_u24 v{vV0}, 10240, v{vT[1]}")
    a(f"v_lshl_add_u32 v{vV0}, v{vT[2]}, 4, v{vV0}")
    a(f"v_add_u32 v{vV0}, s{sT}, v{vV0}")
    a(f"v_add_u32 v{vV1}, 20480, v{vV0}")
    a(f"v_mul_u32_u24 v{vT[2]}, 205, v{vL}")
    a(f"v_lshrrev_b32 v{vT[2]}, 11, v{vT[2]}")
    a(f"v_mul_u32_u24 v{vWo}, {1280-160}, v{vT[2]}")
    a(f"v_lshl_add_u32 v{vWo}, v{vL}, 4, v{vWo}")
    a(f"s_mul_i32 s{sT}, s{sQb}, 160")
    a(f"v_add_u32 v{vWo}, s{sT}, v{vWo}")
    srd(a, sWo, 18, 0, 640 * 1280)
    a(f"s_mul_i32 s{sOWo}, s{sW}, {4*1280}")
    a(f"s_and_b32 s{sT}, s{sW}, 1")
    a(f"s_lshl_b32 s{sT}, s{sT}, 4")
    a(f"s_lshr_b32 s{sT2}, s{sW}, 1")
    a(f"s_lshl_b32 s{sT2}, s{sT2}, 2")
    a(f"s_add_u32 s{sT}, s{sT}, s{sT2}")
    a(f"s_mul_i32 s{sM0}, s{sT}, 160")
    a(f"s_add_u32 s{sM0}, s{sM0}, {4*5120}")
    a(f"s_add_u32 s{sT}, s{sHp}, {WL.KF}")
    srd(a, sK, sWS, f"s{sT}", 5 * WL.PL)
    srd(a, sV, sWS, WL.VF, 64 * WL.VT)
    srd(a, sQ, sWS, f"s{sHp}", 5 * WL.PL)
    a(f"s_lshl_b32 s{sOK}, s{sKh}, 14")
    a(f"s_mul_i32 s{sOV}, s{sKh}, {32*WL.VT}")
    a(f"s_lshl_b32 s{sU0}, s{sQb}, 2")
    a(f"s_and_b32 s{sT}, s{sW}, 3")
    a(f"s_add_u32 s{sU0}, s{sU0}, s{sT}")
    a(f"s_lshl_b32 s{sU0}, s{sU0}, 10")
    a(f"s_cmp_eq_u32 s{sKh}, 0")
    a(f"s_cselect_b32 s{sTail}, {tailC}, {tailL}")
    for r in [K0r] + Kr:
        a(f"v_mov_b32 v{r}, 0x3f803f80")
        a(f"v_mov_b32 v{r+1}, 0x3f80")
    for q in range(2):
        a(f"v_mov_b32 v{Qr[q]}, 0"); a(f"v_mov_b32 v{Qr[q]+1}, 0")
    a(f"v_cmp_eq_u32 vcc, 20, v{vT[0]}")
    a(f"v_mov_b32 v{vT[2]}, 0x3f803f80")
    a(f"v_mov_b32 v{vT[3]}, 0")
    a(f"v_cndmask_b32 v{vT[2]}, v{vT[3]}, v{vT[2]}, vcc")
    for b in range(4):
        for j in range(2):
            for i in range(4): a(f"v_mov_b32 v{Vb[b][j]+i}, v{vT[2]}")
    for q in range(2):
        for i in range(16): a(f"v_mov_b32 v{O[q]+i}, 0")
    for i in range(8): a(f"v_mov_b32 v{P+i}, 0")
    spin_begin("wa")
    a(f"ds_read_b32 v{vT[0]}, v{vCtl}")
    a("s_waitcnt lgkmcnt(0)")
    a(f"v_readfirstlane_b32 s{sT}, v{vT[0]}")
    a("s_nop 1")
    a(f"s_cmp_lg_u32 s{sT}, 0")
    a(f"s_cbranch_scc1 {L('wad')}")
    spin_end("wa", 1)
    a.label(L("wad"))
    st.stamp(5)
    a(f"buffer_load_dwordx4 {vr(K0m,4)}, v{vKm}, s[{sK}:{sK+3}], 0 offen sc1")
    a(f"buffer_load_dwordx4 {vr(Qm[0],4)}, v{vKm}, s[{sQ}:{sQ+3}], s{sU0} offen sc1")
    a(f"buffer_load_dwordx4 {vr(Qm[1],4)}, v{vKm}, s[{sQ}:{sQ+3}], s{sU0} offen offset:512 sc1")
    a(f"s_mov_b64 exec, s[{sLo}:{sLo+1}]")
    a(f"buffer_load_dwordx2 {vr(K0r,2)}, v{vKr}, s[{sK}:{sK+3}], 0 offen sc1")
    a(f"buffer_load_dwordx2 {vr(Qr[0],2)}, v{vKr}, s[{sQ}:{sQ+3}], s{sU0} offen sc1")
    a(f"buffer_load_dwordx2 {vr(Qr[1],2)}, v{vKr}, s[{sQ}:{sQ+3}], s{sU0} offen offset:512 sc1")
    a(f"buffer_load_dwordx2 {vr(Kr[0],2)}, v{vKr}, s[{sK}:{sK+3}], s{sOK} offen sc1")
    a("s_mov_b64 exec, -1")
    a(f"buffer_load_dwordx4 {vr(Km[0],4)}, v{vKm}, s[{sK}:{sK+3}], s{sOK} offen sc1")
    def group(kb, vb, koff, dma=None):
        a(f"s_mov_b64 exec, s[{sLo}:{sLo+1}]")
        a(f"buffer_load_dwordx2 {vr(Kr[kb],2)}, v{vKr}, s[{sK}:{sK+3}], s{sOK} offen offset:{koff} sc1")
        a(f"s_mov_b64 exec, s[{sVm}:{sVm+1}]")
        a(f"buffer_load_dwordx4 {vr(Vb[vb][0],4)}, v{vV0}, s[{sV}:{sV+3}], s{sOV} offen sc1")
        a(f"buffer_load_dwordx4 {vr(Vb[vb][1],4)}, v{vV1}, s[{sV}:{sV+3}], s{sOV} offen sc1")
        a("s_mov_b64 exec, -1")
        a(f"buffer_load_dwordx4 {vr(Km[kb],4)}, v{vKm}, s[{sK}:{sK+3}], s{sOK} offen offset:{koff} sc1")
        a(f"s_add_u32 s{sOV}, s{sOV}, {WL.VT}")
    for g in range(3): group(g + 1, g, 512 * (g + 1))
    a("s_waitcnt vmcnt(14)")
    for q in range(2):
        a(f"v_mfma_f32_32x32x16_bf16 {vr(S[q],16)}, {vr(K0m,4)}, {vr(Qm[q],4)}, 0")
    a("s_nop 9")
    for q in range(2):
        a(f"v_mfma_f32_32x32x8_bf16 {vr(S[q],16)}, {vr(K0r,2)}, {vr(Qr[q],2)}, {vr(S[q],16)}")
    a("s_nop 11")
    for q in range(2):
        a(f"v_max3_f32 v{S[q]}, v{S[q]}, v{S[q]+1}, v{S[q]+2}")
        for i in range(3, 15, 2):
            a(f"v_max3_f32 v{S[q]}, v{S[q]}, v{S[q]+i}, v{S[q]+i+1}")
        a(f"v_max_f32 v{S[q]}, v{S[q]}, v{S[q]+15}")
    a(f"s_mov_b64 exec, s[{sHi}:{sHi+1}]")
    for q in range(2):
        a(f"v_cvt_pk_bf16_f32 v{Qr[q]}, -v{S[q]}, 0")
    a("s_mov_b64 exec, -1")
    a("s_waitcnt vmcnt(12)")
    a("s_nop 1")
    a(f"v_mfma_f32_32x32x16_bf16 {vr(S[0],16)}, {vr(Km[0],4)}, {vr(Qm[0],4)}, 0")
    a("s_nop 9")
    a(f"v_mfma_f32_32x32x8_bf16 {vr(S[0],16)}, {vr(Kr[0],2)}, {vr(Qr[0],2)}, {vr(S[0],16)}")
    a(f"s_mov_b32 s{sCnt}, 8")
    a("s_mov_b64 vcc, 0")
    a("s_setprio 1")
    st.stamp(6)
    a("s_nop 9")
    def exp(q, i): a(f"v_exp_f32 v{S[q]+i}, v{S[q]+i}")
    def cvt(q, i): a(f"v_cvt_pk_bf16_f32 v{P+i}, v{S[q]+2*i}, v{S[q]+2*i+1}")
    def slot(kt, q):
        nq = 1 - q
        nk = (kt + q) % 4
        pk = (kt + q - 1) % 4
        a(f"v_mfma_f32_32x32x16_bf16 {vr(S[nq],16)}, {vr(Km[nk],4)}, {vr(Qm[nq],4)}, 0")
        for i in range(0, 4): exp(q, i)
        a(f"v_mfma_f32_32x32x16_bf16 {vr(O[nq],16)}, {vr(Vb[pk][1],4)}, {vr(P+4,4)}, {vr(O[nq],16)}")
        for i in range(4, 8): exp(q, i)
        cvt(q, 0)
        a(f"v_mfma_f32_32x32x8_bf16 {vr(S[nq],16)}, {vr(Kr[nk],2)}, {vr(Qr[nq],2)}, {vr(S[nq],16)}")
        if q == 0:
            group(kt, (kt - 1) % 4, 512 * (kt + 4))
            if kt == 0:
                a(f"s_cmp_eq_u32 s{sCnt}, 0")
                a(f"s_cselect_b32 s{sV+2}, 0, s{sV+2}")
        else:
            a(f"s_cbranch_vccz {L('nd%d' % kt)}")
            a(f"s_mov_b32 m0, s{sM0}")
            a(f"s_mov_b64 exec, s[{sM40}:{sM40+1}]")
            a(f"buffer_load_dwordx4 v{vWo}, s[{sWo}:{sWo+3}], s{sOWo} offen lds")
            a("s_mov_b64 exec, -1")
            a(f"s_add_u32 s{sM0}, s{sM0}, 5120")
            a(f"s_add_u32 s{sOWo}, s{sOWo}, {32*1280}")
            a.label(L("nd%d" % kt))
        for i in range(1, 4): cvt(q, i)
        for i in range(8, 12): exp(q, i)
        if q == 0: a("s_waitcnt vmcnt(12)")
        a(f"v_mfma_f32_32x32x16_bf16 {vr(O[q],16)}, {vr(Vb[kt][0],4)}, {vr(P,4)}, {vr(O[q],16)}")
        for i in range(12, 16): exp(q, i)
        for i in range(4, 8): cvt(q, i)
    a.raw(".p2align 6")
    a.label(L("loop"))
    a(f"s_sub_u32 s{sCnt}, s{sCnt}, 1")
    a(f"s_cmp_eq_u32 s{sCnt}, 0")
    a(f"s_cselect_b32 s{sK+2}, 0, s{sK+2}")
    a(f"s_cmp_lt_u32 s{sCnt}, s{sTail}")
    a(f"s_cbranch_scc0 {L('np')}")
    a("s_setprio 0")
    a.label(L("np"))
    a(f"s_cmp_lg_u32 s{sCnt}, 4")
    a(f"s_cbranch_scc1 {L('nr')}")
    spin_begin("wr")
    a(f"ds_read_b32 v{vT[0]}, v{vCtl} offset:8")
    a("s_waitcnt lgkmcnt(0)")
    a(f"v_readfirstlane_b32 s{sT}, v{vT[0]}")
    a("s_nop 1")
    a(f"s_cmp_eq_u32 s{sT}, 4")
    a(f"s_cbranch_scc1 {L('wrd')}")
    spin_end("wr", 1)
    a.label(L("wrd"))
    a("s_mov_b64 vcc, -1")
    a.label(L("nr"))
    for kt in range(4):
        for q in range(2): slot(kt, q)
    a(f"s_add_u32 s{sOK}, s{sOK}, 2048")
    a(f"s_cmp_lg_u32 s{sCnt}, 0")
    a(f"s_cbranch_scc1 {L('loop')}")
    a(f"v_mfma_f32_32x32x16_bf16 {vr(O[1],16)}, {vr(Vb[3][1],4)}, {vr(P+4,4)}, {vr(O[1],16)}")
    st.stamp(7)
    a(f"s_mul_i32 s{sT}, s{sQb}, 5")
    a(f"s_lshr_b32 s{sT}, s{sT}, 1")
    a(f"s_lshl_b32 s{sOV}, s{sT}, 7")
    a(f"s_add_u32 s{sOV}, s{sOV}, {WL.FG}")
    a(f"v_min_u32 v{vT[4]}, 47, v{vL}")
    a(f"v_lshlrev_b32 v{vT[4]}, 3, v{vT[4]}")
    a(f"buffer_load_dwordx2 {vr(GFl,2)}, v{vT[4]}, s[{sFl}:{sFl+3}], s{sOV} offen sc1")
    a(f"s_mul_i32 s{sT}, s{sW}, 3072")
    a(f"s_add_u32 s{sT}, s{sT}, {LDS_X}")
    a(f"v_lshl_add_u32 v{vT[0]}, v{vL}, 4, s{sT}")
    a(f"s_xor_b32 s{sT}, s{sW}, 4")
    a(f"s_mul_i32 s{sT}, s{sT}, 3072")
    a(f"s_add_u32 s{sT}, s{sT}, {LDS_X}")
    a(f"v_lshl_add_u32 v{vT[1]}, v{vL}, 4, s{sT}")
    a(f"s_cmp_eq_u32 s{sKh}, 0")
    a(f"s_cbranch_scc1 {L('x0')}")
    for r in range(3): a(f"ds_write_b128 v{vT[0]}, {vr(O[0]+4*r,4)} offset:{1024*r}")
    a("s_waitcnt lgkmcnt(0)")
    for i in range(12): a(f"v_mov_b32 v{O[0]+i}, v{O[1]+i}")
    for i in range(4): a(f"v_mov_b32 v{Qm[0]+i}, v{Qm[1]+i}")
    for i in range(2): a(f"v_mov_b32 v{Qr[0]+i}, v{Qr[1]+i}")
    a(f"s_branch {L('x1')}")
    a.label(L("x0"))
    for r in range(3): a(f"ds_write_b128 v{vT[0]}, {vr(O[1]+4*r,4)} offset:{1024*r}")
    a.label(L("x1"))
    a("s_waitcnt lgkmcnt(0)")
    a("s_barrier")
    for r in range(3): a(f"ds_read_b128 {vr(S[0]+4*r,4)}, v{vT[1]} offset:{1024*r}")
    sCc = sHead; sEb8 = sQb; sTg = sPar
    a("s_waitcnt vmcnt(0)")
    spin_begin("pg")
    a(f"v_xor_b32 v{vT[2]}, s{sNonce}, v{GFl}")
    a(f"v_xor_b32 v{vT[3]}, s{sNonce}, v{GFl+1}")
    a(f"v_or_b32 v{vT[2]}, v{vT[2]}, v{vT[3]}")
    a(f"v_cmp_ne_u32 vcc, 0, v{vT[2]}")
    a("s_nop 1")
    a("s_cmp_eq_u64 vcc, 0")
    a(f"s_cbranch_scc1 {L('pgd')}")
    a(f"buffer_load_dwordx2 {vr(GFl,2)}, v{vT[4]}, s[{sFl}:{sFl+3}], s{sOV} offen sc1")
    a("s_waitcnt vmcnt(0)")
    spin_end("pg")
    a.label(L("pgd"))
    a(f"s_lshr_b32 s{sOWo}, s{sU0}, 9")
    a(f"s_add_u32 s{sOWo}, s{sOWo}, s{sKh}")
    a(f"s_lshl_b32 s{sOWo}, s{sOWo}, 5")
    a(f"s_add_u32 s{sOWo}, s{sOWo}, s{sHead}")
    a(f"s_lshl_b32 s{sOWo}, s{sOWo}, 2")
    a(f"s_add_u32 s{sOWo}, s{sOWo}, {WL.FO}")
    a(f"v_mul_u32_u24 v{vT[2]}, 205, v{vL}")
    a(f"v_lshrrev_b32 v{vT[2]}, 11, v{vT[2]}")
    a(f"v_mul_u32_u24 v{vT[3]}, 10, v{vT[2]}")
    a(f"v_sub_u32 v{vT[3]}, v{vL}, v{vT[3]}")
    a(f"v_mul_u32_u24 v{vGd}, 81920, v{vT[2]}")
    a(f"v_lshrrev_b32 v{vT[2]}, 1, v{vT[3]}")
    a(f"v_lshl_add_u32 v{vGd}, v{vT[2]}, 11, v{vGd}")
    a(f"v_and_b32 v{vT[3]}, 1, v{vT[3]}")
    a(f"v_lshl_add_u32 v{vGd}, v{vT[3]}, 4, v{vGd}")
    srd(a, sD, sWS, WL.G, WL.G_SIZE)
    a(f"s_mul_i32 s{sT}, s{sW}, {4*81920}")
    a(f"s_mul_i32 s{sT2}, s{sEb8}, {5*2048}")
    a(f"s_add_u32 s{sT}, s{sT}, s{sT2}")
    a(f"s_lshl_b32 s{sT2}, s{sCc}, 5")
    a(f"s_add_u32 s{sT}, s{sT}, s{sT2}")
    a(f"s_sub_u32 s{sM0}, s{sM0}, {24*5120}")
    a(f"s_mov_b64 exec, s[{sM40}:{sM40+1}]")
    for s in range(4):
        a(f"s_add_u32 m0, s{sM0}, {5120*s}")
        a(f"s_add_u32 s{sT2}, s{sT}, {(s%2)*32*81920 + (s//2)*1024}")
        a(f"buffer_load_dwordx4 v{vGd}, s[{sD}:{sD+3}], s{sT2} offen sc1 lds")
    a("s_mov_b64 exec, -1")
    a(f"s_and_b32 s{sTg}, s{sW}, 3")
    a(f"v_and_b32 v{vT[0]}, 15, v{vL}")
    a(f"v_lshrrev_b32 v{vT[1]}, 4, v{vL}")
    a(f"s_lshl_b32 s{sT}, s{sTg}, 4")
    a(f"v_add_u32 v{vT[0]}, s{sT}, v{vT[0]}")
    a(f"s_lshl_b32 s{sT}, s{sCc}, 6")
    a(f"v_add_u32 v{vT[2]}, s{sT}, v{vT[0]}")
    a(f"v_lshl_add_u32 v{vT[0]}, v{vT[0]}, 5, s{sCc}")
    a(f"v_lshlrev_b32 v{vT[3]}, 12, v{vT[0]}")
    a(f"v_lshl_add_u32 v{vT[3]}, v{vT[1]}, 4, v{vT[3]}")
    a(f"s_cmp_eq_u32 s{sKh}, 0")
    a(f"s_cselect_b32 s{sD}, s6, s8")
    a(f"s_cselect_b32 s{sD+1}, s7, s9")
    a(f"s_and_b32 s{sD+1}, s{sD+1}, 0xffff")
    a(f"s_mov_b32 s{sD+2}, {2048*4096}")
    a(f"s_mov_b32 s{sD+3}, 0x20000")
    a(f"buffer_load_dwordx4 {vr(WsF[0],4)}, v{vT[3]}, s[{sD}:{sD+3}], 0 offen")
    a(f"buffer_load_dwordx4 {vr(WsF[1],4)}, v{vT[3]}, s[{sD}:{sD+3}], 0 offen offset:64")
    srd(a, sD, sWS, WL.GATE, 2048 * 8)
    a(f"v_lshlrev_b32 v{vT[3]}, 3, v{vT[2]}")
    a(f"buffer_load_dwordx2 {vr(vG,2)}, v{vT[3]}, s[{sD}:{sD+3}], 0 offen sc1")
    a(f"v_lshlrev_b32 v{vO}, 4, v{vT[2]}")
    a(f"v_lshl_add_u32 v{vO}, v{vT[1]}, 15, v{vO}")
    a(f"v_mul_u32_u24 v{vSt}, 1280, v{vT[0]}")
    a(f"v_lshl_add_u32 v{vSt}, v{vT[1]}, 3, v{vSt}")
    a(f"s_mul_i32 s{sT}, s{sEb8}, 160")
    a(f"v_add_u32 v{vSt}, s{sT}, v{vSt}")
    a(f"s_add_u32 s{sT}, s{sHp}, {WL.OF}")
    srd(a, sQ, sWS, f"s{sT}", 5 * WL.PL)
    a(f"s_lshl_b32 s{sT}, s{sKh}, 9")
    a(f"s_add_u32 s{sOK}, s{sU0}, s{sT}")
    a("s_waitcnt lgkmcnt(0)")
    for i in range(12): a(f"v_add_f32 v{O[0]+i}, v{O[0]+i}, v{S[0]+i}")
    def bcast_l():
        a(f"v_mov_b32 v{O[0]+12}, v{O[0]+8}")
        a(f"v_mov_b32 v{O[0]+13}, v{O[0]+8}")
        a("s_nop 1")
        a(f"v_permlane32_swap_b32 v{O[0]+13}, v{O[0]+12}")
        a("s_nop 1")
    bcast_l()
    a(f"v_mul_f32 v{vM}, 0, v{O[0]}")
    for i in range(1, 12): a(f"v_fmac_f32 v{vM}, 0, v{O[0]+i}")
    a(f"v_add_f32 v{vM}, v{vM}, v{O[0]+12}")
    a(f"v_cmp_nge_f32 vcc, 0x71800000, v{vM}")
    a(f"s_mov_b32 s{sT}, 0x21800000")
    a(f"v_cmp_gt_f32 s[{sT2+1}:{sT2+2}], s{sT}, v{vM}")
    a("s_nop 1")
    a(f"s_or_b64 vcc, vcc, s[{sT2+1}:{sT2+2}]")
    a(f"s_cbranch_scc1 {L('slow')}")
    a.label(L("fin"))
    a(f"v_rcp_f32 v{vM}, v{O[0]+12}")
    a("s_nop 0")
    for i in range(12): a(f"v_mul_f32 v{O[0]+i}, v{O[0]+i}, v{vM}")
    for i in range(6): a(f"v_cvt_pk_bf16_f32 v{P+i}, v{O[0]+2*i}, v{O[0]+2*i+1}")
    a(f"buffer_store_dwordx4 {vr(P,4)}, v{vKm}, s[{sQ}:{sQ+3}], s{sOK} offen sc1")
    a(f"s_mov_b64 exec, s[{sLo}:{sLo+1}]")
    a(f"buffer_store_dwordx2 {vr(P+4,2)}, v{vKr}, s[{sQ}:{sQ+3}], s{sOK} offen sc1")
    a("s_mov_b64 exec, -1")

    V = Alloc(VB, 256)
    vR = V.get()
    NPRE = 7
    AF = [[V.get(4, 4) for _ in range(5)] for _ in range(NPRE)]
    AY4 = V.get(4, 4); AB4 = V.get(4, 4)
    assert V.p <= vG, (V.p, vG)
    V.p = att_hi
    AY = [V.get(4, 4) for _ in range(4)] + [AY4]
    AB = [V.get(4, 4) for _ in range(4)] + [AB4]
    OFr = [V.get(4, 4) for _ in range(10)]
    vmax = V.hi
    a("s_waitcnt vmcnt(0)")
    put_flag(f"s{sOWo}")
    st.stamp(8)
    a(f"v_lshrrev_b32 v{vT[0]}, 2, v{vL}")
    a(f"v_mul_u32_u24 v{vT[0]}, 160, v{vT[0]}")
    a(f"v_and_b32 v{vT[1]}, 3, v{vL}")
    a(f"v_lshl_add_u32 v{vR}, v{vT[1]}, 3, v{vT[0]}")
    a(f"s_mul_i32 s{sT}, s{sKh}, {2*5120}")
    a(f"v_add_u32 v{vT[0]}, s{sT}, v{vR}")
    a(f"s_mul_i32 s{sT}, s{sKh}, {10*5120}")
    a(f"s_add_u32 s{sT}, s{sT}, {4*5120}")
    a(f"v_add_u32 v{vR}, s{sT}, v{vR}")
    srd(a, sA, sWS, WL.OF, 80 * WL.PL)
    srd(a, sC, 22, 0, 2048 * 1280)
    a("s_barrier")
    def rd(dst, base, off):
        for t in range(5):
            a(f"ds_read_b64_tr_b16 {vr(dst[t],2)}, v{base} offset:{off + 32*t}")
            a(f"ds_read_b64_tr_b16 {vr(dst[t]+2,2)}, v{base} offset:{off + 32*t + 2560}")
    rd(AF[NPRE-2], vT[0], 0); rd(AF[NPRE-1], vT[0], 5120)
    for s in range(NPRE - 2): rd(AF[s], vR, 5120 * s)
    a("s_waitcnt lgkmcnt(15)")
    for s in range(2):
        for t in range(5):
            c = "0" if s == 0 else vr(AY[t], 4)
            a(f"v_mfma_f32_16x16x32_bf16 {vr(AY[t],4)}, {vr(AF[NPRE-2+s][t],4)}, {vr(WsF[s],4)}, {c}")
    for s in range(NPRE - 2, NPRE): rd(AF[s], vR, 5120 * s)
    a(f"s_lshl_b32 s{sT}, s{sCc}, 1")
    a(f"s_lshr_b32 s{sT2}, s{sTg}, 1")
    a(f"s_add_u32 s{sT}, s{sT}, s{sT2}")
    a(f"s_lshl_b32 s{sT}, s{sT}, 1")
    a(f"s_add_u32 s{sT}, s{sT}, s{sKh}")
    a(f"s_lshl_b32 s{sT2}, s{sT}, 6")
    a(f"s_add_u32 s{sT2}, s{sT2}, {WL.FO}")
    a(f"v_and_b32 v{vT[0]}, 15, v{vL}")
    a(f"v_lshlrev_b32 v{vT[0]}, 2, v{vT[0]}")
    spin_begin("po")
    a(f"buffer_load_dword v{vT[2]}, v{vT[0]}, s[{sFl}:{sFl+3}], s{sT2} offen sc1")
    a("s_waitcnt vmcnt(0)")
    a(f"v_cmp_ne_u32 vcc, s{sNonce}, v{vT[2]}")
    a("s_nop 1")
    a("s_cmp_eq_u64 vcc, 0")
    a(f"s_cbranch_scc1 {L('pod')}")
    spin_end("po", 1)
    a.label(L("pod"))
    a(f"s_mul_i32 s{sT}, s{sKh}, {40*WL.PL}")
    for s in range(10):
        a(f"buffer_load_dwordx4 {vr(OFr[s],4)}, v{vO}, s[{sA}:{sA+3}], s{sT} offen sc1")
        if s < 9: a(f"s_add_u32 s{sT}, s{sT}, {4*WL.PL}")
    for t in range(5):
        for i in range(4): a(f"v_mul_f32 v{AY[t]+i}, v{AY[t]+i}, v{vG}")
    a("s_waitcnt lgkmcnt(0)")
    for s in range(10):
        a(f"s_waitcnt vmcnt({9-s})" + (f" lgkmcnt({min(15, 10*(9-s))})" if s >= NPRE else ""))
        for t in range(5):
            c = "0" if s == 0 else vr(AB[t], 4)
            a(f"v_mfma_f32_16x16x32_bf16 {vr(AB[t],4)}, {vr(AF[s % NPRE][t],4)}, {vr(OFr[s],4)}, {c}")
        if s + NPRE < 10: rd(AF[s], vR, 5120 * (s + NPRE))
    a(f"s_mul_i32 s{sT}, s{sW}, 3072")
    a(f"s_add_u32 s{sT}, s{sT}, {LDS_X}")
    a(f"v_lshl_add_u32 v{vT[0]}, v{vL}, 4, s{sT}")
    a(f"s_xor_b32 s{sT}, s{sW}, 4")
    a(f"s_mul_i32 s{sT}, s{sT}, 3072")
    a(f"s_add_u32 s{sT}, s{sT}, {LDS_X}")
    a(f"v_lshl_add_u32 v{vT[1]}, v{vL}, 4, s{sT}")
    a("s_nop 1")
    for t in range(5):
        for i in range(4): a(f"v_fmac_f32 v{AY[t]+i}, v{AB[t]+i}, v{vG+1}")
    def dfin(keep, send):
        for r, t in enumerate(send): a(f"ds_write_b128 v{vT[0]}, {vr(AY[t],4)} offset:{1024*r}")
        a("s_waitcnt lgkmcnt(0)")
        a("s_barrier")
        for r, t in enumerate(keep): a(f"ds_read_b128 {vr(AB[t],4)}, v{vT[1]} offset:{1024*r}")
        for r, t in enumerate(keep):
            a(f"s_waitcnt lgkmcnt({len(keep)-1-r})")
            for i in range(4): a(f"v_add_f32 v{AY[t]+i}, v{AY[t]+i}, v{AB[t]+i}")
            a(f"v_cvt_pk_bf16_f32 v{AY[t]}, v{AY[t]}, v{AY[t]+1}")
            a(f"v_cvt_pk_bf16_f32 v{AY[t]+1}, v{AY[t]+2}, v{AY[t]+3}")
            a(f"buffer_store_dwordx2 {vr(AY[t],2)}, v{vSt}, s[{sC}:{sC+3}], 0 offen offset:{32*t}")
    a(f"s_cmp_eq_u32 s{sKh}, 0")
    a(f"s_cbranch_scc1 {L('d0')}")
    dfin([3, 4], [0, 1, 2])
    a(f"s_branch {L('dend')}")
    a.label(L("d0"))
    dfin([0, 1, 2], [3, 4])
    a.label(L("dend"))
    st.finish(9)
    a.label(L("end"))
    a("s_endpgm")

    a.label(L("slow"))
    sSK = sT2 + 1; sSV = sT2 + 2
    a("s_waitcnt vmcnt(0)")
    a(f"s_mov_b32 s{sK+2}, {5*WL.PL}")
    a(f"s_mov_b32 s{sV+2}, {64*WL.VT}")
    a(f"s_mov_b64 exec, s[{sHi}:{sHi+1}]")
    a(f"v_mov_b32 v{Qr[0]}, 0")
    a(f"v_mov_b32 v{Qr[0]+1}, 0")
    a("s_mov_b64 exec, -1")
    a(f"v_mov_b32 v{vM}, 0xff800000")
    a(f"s_mov_b32 s{sSK}, 0")
    def qk_slow():
        a(f"s_mov_b64 exec, s[{sLo}:{sLo+1}]")
        a(f"buffer_load_dwordx2 {vr(Kr[0],2)}, v{vKr}, s[{sK}:{sK+3}], s{sSK} offen sc1")
        a("s_mov_b64 exec, -1")
        a(f"buffer_load_dwordx4 {vr(Km[0],4)}, v{vKm}, s[{sK}:{sK+3}], s{sSK} offen sc1")
        a("s_waitcnt vmcnt(0)")
        a(f"v_mfma_f32_32x32x16_bf16 {vr(S[0],16)}, {vr(Km[0],4)}, {vr(Qm[0],4)}, 0")
        a("s_nop 11")
        a(f"v_mfma_f32_32x32x8_bf16 {vr(S[0],16)}, {vr(Kr[0],2)}, {vr(Qr[0],2)}, {vr(S[0],16)}")
        a("s_nop 12")
    a.label(L("s1"))
    qk_slow()
    for i in range(0, 16, 2):
        a(f"v_max3_f32 v{vM}, v{vM}, v{S[0]+i}, v{S[0]+i+1}")
    a(f"s_add_u32 s{sSK}, s{sSK}, 512")
    a(f"s_cmp_lt_u32 s{sSK}, {WL.PL}")
    a(f"s_cbranch_scc1 {L('s1')}")
    a(f"v_mov_b32 v{vT[0]}, v{vM}")
    a("s_nop 1")
    a(f"v_permlane32_swap_b32 v{vT[0]}, v{vM}")
    a("s_nop 1")
    a(f"v_max_f32 v{vM}, v{vM}, v{vT[0]}")
    a(f"v_cvt_pk_bf16_f32 v{S[0]}, 0, -v{vM}")
    a(f"v_sub_f32 v{vT[0]}, 0, v{vM}")
    a(f"v_sub_f32 v{vT[0]}, v{vT[0]}, v{S[0]}")
    a(f"v_cvt_pk_bf16_f32 v{S[0]+1}, 0, v{vT[0]}")
    a(f"v_sub_f32 v{vT[1]}, v{vT[0]}, v{S[0]+1}")
    a(f"s_mov_b64 exec, s[{sHi}:{sHi+1}]")
    a(f"v_cvt_pk_bf16_f32 v{Qr[0]}, v{S[0]}, v{S[0]+1}")
    a(f"v_cvt_pk_bf16_f32 v{Qr[0]+1}, v{vT[1]}, 0")
    a("s_mov_b64 exec, -1")
    for i in range(16): a(f"v_mov_b32 v{O[0]+i}, 0")
    a(f"s_mov_b32 s{sSK}, 0")
    a(f"s_mov_b32 s{sSV}, 0")
    a.label(L("s2"))
    a(f"s_mov_b64 exec, s[{sVm}:{sVm+1}]")
    a(f"buffer_load_dwordx4 {vr(Vb[0][0],4)}, v{vV0}, s[{sV}:{sV+3}], s{sSV} offen sc1")
    a(f"buffer_load_dwordx4 {vr(Vb[0][1],4)}, v{vV1}, s[{sV}:{sV+3}], s{sSV} offen sc1")
    qk_slow()
    for i in range(16): exp(0, i)
    a("s_nop 0")
    for i in range(8): cvt(0, i)
    a("s_nop 1")
    a(f"v_mfma_f32_32x32x16_bf16 {vr(O[0],16)}, {vr(Vb[0][0],4)}, {vr(P,4)}, {vr(O[0],16)}")
    a(f"v_mfma_f32_32x32x16_bf16 {vr(O[0],16)}, {vr(Vb[0][1],4)}, {vr(P+4,4)}, {vr(O[0],16)}")
    a(f"s_add_u32 s{sSK}, s{sSK}, 512")
    a(f"s_add_u32 s{sSV}, s{sSV}, {WL.VT}")
    a(f"s_cmp_lt_u32 s{sSK}, {WL.PL}")
    a(f"s_cbranch_scc1 {L('s2')}")
    a("s_nop 12")
    bcast_l()
    a(f"s_branch {L('fin')}")
    assert vmax <= (252 if stamps else 256), vmax
    return a.text(), kernel_desc(name, 256, 102), f"; @launch grid=(256,1,1) block=(512,1,1) lds={LDS_SIZE}"

if __name__ == "__main__":
    import sys
    from gen import build
    path = sys.argv[1]
    build(path, [gen(stamps=2 if 'stamps2' in sys.argv else 'stamps' in sys.argv)])
```

```python
class Asm:
    def __init__(self):
        self.lines = []
    def __call__(self, s, *a):
        for l in s.split("\n"):
            l = l.strip()
            if l:
                self.lines.append("    " + l)
    def label(self, n):
        self.lines.append(n + ":")
    def raw(self, s):
        self.lines.append(s)
    def c(self, s):
        self.lines.append("    ; " + s)
    def text(self):
        return "\n".join(self.lines) + "\n"

class Alloc:
    def __init__(self, start, limit):
        self.p = start; self.limit = limit; self.hi = start
    def get(self, n=1, align=1):
        if n >= 2 and align < 2: align = 2
        self.p = (self.p + align - 1) // align * align
        r = self.p; self.p += n
        assert self.p <= self.limit, "out of regs"
        self.hi = max(self.hi, self.p)
        return r

def vr(b, n=1):
    return f"v{b}" if n == 1 else f"v[{b}:{b+n-1}]"
def sr(b, n=1):
    return f"s{b}" if n == 1 else f"s[{b}:{b+n-1}]"

def kernel_begin(a, name):
    a.raw(".text")
    a.raw(f".globl {name}")
    a.raw(".p2align 8")
    a.raw(f".type {name},@function")
    a.label(name)

def kernel_desc(name, vgpr, sgpr=96):
    vg = (vgpr + 7) // 8 * 8
    return f""".section .rodata,"a"
.p2align 6
.amdhsa_kernel {name}
  .amdhsa_next_free_vgpr {vg}
  .amdhsa_next_free_sgpr {sgpr}
  .amdhsa_accum_offset {min(256, vg)}
  .amdhsa_group_segment_fixed_size 0
  .amdhsa_kernarg_size 96
  .amdhsa_user_sgpr_count 2
  .amdhsa_user_sgpr_kernarg_segment_ptr 1
  .amdhsa_system_sgpr_workgroup_id_x 1
.end_amdhsa_kernel
"""

def srd(a, d, base, off, nbytes):
    if off == 0:
        a(f"s_mov_b32 s{d}, s{base}")
        a(f"s_and_b32 s{d+1}, s{base+1}, 0xffff")
    else:
        a(f"s_add_u32 s{d}, s{base}, {off if isinstance(off,str) else hex(off)}")
        a(f"s_addc_u32 s{d+1}, s{base+1}, 0")
        a(f"s_and_b32 s{d+1}, s{d+1}, 0xffff")
    a(f"s_mov_b32 s{d+2}, {nbytes if isinstance(nbytes,str) else hex(nbytes)}")
    a(f"s_mov_b32 s{d+3}, 0x20000")

QF_OFF = 0
QF_HS = 64 * 1280
QF_SIZE = 32 * QF_HS
KV_OFF = QF_OFF + QF_SIZE
KV_HS = 64 * 2560
KV_SIZE = 32 * KV_HS
G_OFF = KV_OFF + KV_SIZE
G_SIZE = 32 * 2 * 64 * 1280
OF_OFF = G_OFF + G_SIZE
OF_SIZE = 80 * 2048 * 16
GATE_OFF = OF_OFF + OF_SIZE
GATE_SIZE = 2048 * 8
KA_X, KA_WSRE, KA_WSIM, KA_WDRE, KA_WDIM, KA_BX, KA_WQKV, KA_WO, KA_GW, KA_OUT, KA_DBG, KA_WS = [8*i for i in range(12)]

STAMP_OFF = 1 << 27
class Stamps:
    def __init__(self, a, on, kidx):
        self.a = a; self.on = on; self.kidx = kidx
    def start(self):
        if not self.on: return
        a = self.a
        for i in range(70, 94): a(f"s_mov_b32 s{i}, 0")
        a("s_memrealtime s[70:71]")
        a("s_memtime s[74:75]")
        a("s_load_dwordx2 s[68:69], s[0:1], 88")
        a("v_mov_b32 v255, v0")
        a("s_mov_b32 s67, s2")
    def stamp(self, i):
        if not self.on: return
        self.a(f"s_memtime s[{74+2*i}:{75+2*i}]")
    def finish(self, i):
        if not self.on: return
        a = self.a
        a("s_mov_b64 exec, -1")
        a("s_waitcnt vmcnt(0)")
        a(f"s_memtime s[{74+2*i}:{75+2*i}]")
        a("s_memrealtime s[72:73]")
        a("s_waitcnt lgkmcnt(0)")
        a(f"s_add_u32 s64, s68, {hex(STAMP_OFF + self.kidx * (1 << 20))}")
        a("s_addc_u32 s65, s69, 0")
        a("s_and_b32 s65, s65, 0xffff")
        a("s_lshl_b32 s68, s67, 10")
        a("s_mov_b32 s66, 0x100000")
        a("s_mov_b32 s67, 0x20000")
        a("v_lshrrev_b32 v254, 6, v255")
        a("v_lshlrev_b32 v254, 6, v254")
        a("v_add_u32 v254, s68, v254")
        a("s_getreg_b32 s69, hwreg(HW_REG_HW_ID)")
        a("s_getreg_b32 s68, hwreg(HW_REG_XCC_ID)")
        a("s_mov_b64 exec, 1")
        for k in range(12):
            a(f"v_mov_b32 v253, s{70+2*k}")
            a(f"buffer_store_dword v253, v254, s[64:67], 0 offen offset:{4*k}")
        a("v_mov_b32 v253, s69")
        a("buffer_store_dword v253, v254, s[64:67], 0 offen offset:48")
        a("v_mov_b32 v253, s68")
        a("buffer_store_dword v253, v254, s[64:67], 0 offen offset:52")
        if self.on == 2:
            a("s_load_dwordx2 s[64:65], s[0:1], 80")
            a("s_waitcnt lgkmcnt(0)")
            a("s_and_b32 s65, s65, 0xffff")
            a("s_mov_b32 s66, 256")
            a("v_mov_b32 v254, 0")
            a("s_not_b32 s68, s70")
            a("v_mov_b32 v253, s68")
            a("buffer_atomic_umax v253, v254, s[64:67], 0 offen offset:8")
            a("v_mov_b32 v253, s72")
            a("buffer_atomic_umax v253, v254, s[64:67], 0 offen offset:12")
            a("v_mov_b32 v253, s70")
            a("buffer_atomic_umax v253, v254, s[64:67], 0 offen offset:16")
            for k in range(1, 10):
                a(f"s_sub_u32 s68, s{74+2*k}, s74")
                a(f"s_cmp_eq_u32 s{74+2*k}, 0")
                a("s_cselect_b32 s68, 0, s68")
                a("v_mov_b32 v253, s68")
                a(f"buffer_atomic_umax v253, v254, s[64:67], 0 offen offset:{24+4*k}")

class WL:
    PL = 32768
    QF = 0
    KF = QF + 80 * PL
    VF = KF + 80 * PL
    VT = 40960
    G = VF + 64 * VT
    G_SIZE = 64 * 40 * 2048
    OF = G + G_SIZE
    GATE = OF + 80 * PL
    FLAG = GATE + 2048 * 8
    FA = 0
    FG = 1024
    FO = 4096
    EPOCH = FO + 8192
    FLAG_SIZE = EPOCH + 128
    END = FLAG + FLAG_SIZE
```

```python
class Asm:
    def __init__(self):
        self.lines = []
    def __call__(self, s, *a):
        for l in s.split("\n"):
            l = l.strip()
            if l:
                self.lines.append("    " + l)
    def label(self, n):
        self.lines.append(n + ":")
    def raw(self, s):
        self.lines.append(s)
    def c(self, s):
        self.lines.append("    ; " + s)
    def text(self):
        return "\n".join(self.lines) + "\n"

class Alloc:
    def __init__(self, start, limit):
        self.p = start; self.limit = limit; self.hi = start
    def get(self, n=1, align=1):
        if n >= 2 and align < 2: align = 2
        self.p = (self.p + align - 1) // align * align
        r = self.p; self.p += n
        assert self.p <= self.limit, "out of regs"
        self.hi = max(self.hi, self.p)
        return r

def vr(b, n=1):
    return f"v{b}" if n == 1 else f"v[{b}:{b+n-1}]"
def sr(b, n=1):
    return f"s{b}" if n == 1 else f"s[{b}:{b+n-1}]"

def kernel_begin(a, name):
    a.raw(".text")
    a.raw(f".globl {name}")
    a.raw(".p2align 8")
    a.raw(f".type {name},@function")
    a.label(name)

def kernel_desc(name, vgpr, sgpr=96):
    vg = (vgpr + 7) // 8 * 8
    return f""".section .rodata,"a"
.p2align 6
.amdhsa_kernel {name}
  .amdhsa_next_free_vgpr {vg}
  .amdhsa_next_free_sgpr {sgpr}
  .amdhsa_accum_offset {min(256, vg)}
  .amdhsa_group_segment_fixed_size 0
  .amdhsa_kernarg_size 96
  .amdhsa_user_sgpr_count 2
  .amdhsa_user_sgpr_kernarg_segment_ptr 1
  .amdhsa_system_sgpr_workgroup_id_x 1
.end_amdhsa_kernel
"""

def srd(a, d, base, off, nbytes):
    if off == 0:
        a(f"s_mov_b32 s{d}, s{base}")
        a(f"s_and_b32 s{d+1}, s{base+1}, 0xffff")
    else:
        a(f"s_add_u32 s{d}, s{base}, {off if isinstance(off,str) else hex(off)}")
        a(f"s_addc_u32 s{d+1}, s{base+1}, 0")
        a(f"s_and_b32 s{d+1}, s{d+1}, 0xffff")
    a(f"s_mov_b32 s{d+2}, {nbytes if isinstance(nbytes,str) else hex(nbytes)}")
    a(f"s_mov_b32 s{d+3}, 0x20000")

QF_OFF = 0
QF_HS = 64 * 1280
QF_SIZE = 32 * QF_HS
KV_OFF = QF_OFF + QF_SIZE
KV_HS = 64 * 2560
KV_SIZE = 32 * KV_HS
G_OFF = KV_OFF + KV_SIZE
G_SIZE = 32 * 2 * 64 * 1280
OF_OFF = G_OFF + G_SIZE
OF_SIZE = 80 * 2048 * 16
GATE_OFF = OF_OFF + OF_SIZE
GATE_SIZE = 2048 * 8
KA_X, KA_WSRE, KA_WSIM, KA_WDRE, KA_WDIM, KA_BX, KA_WQKV, KA_WO, KA_GW, KA_OUT, KA_DBG, KA_WS = [8*i for i in range(12)]

STAMP_OFF = 1 << 27
class Stamps:
    def __init__(self, a, on, kidx):
        self.a = a; self.on = on; self.kidx = kidx; self.names = []
    def start(self):
        if not self.on: return
        a = self.a
        for i in range(70, 94): a(f"s_mov_b32 s{i}, 0")
        a("s_memrealtime s[70:71]")
        a("s_memtime s[74:75]")
        a("s_load_dwordx2 s[68:69], s[0:1], 88")
        a("v_mov_b32 v255, v0")
        a("s_mov_b32 s67, s2")
    def stamp(self, i):
        if not self.on: return
        if isinstance(i, str):
            if i not in self.names: return
            i = self.names.index(i) + 1
        self.a(f"s_memtime s[{74+2*i}:{75+2*i}]")
    def finish(self, i):
        if not self.on: return
        a = self.a
        a("s_mov_b64 exec, -1")
        a("s_waitcnt vmcnt(0)")
        a(f"s_memtime s[{74+2*i}:{75+2*i}]")
        a("s_memrealtime s[72:73]")
        a("s_waitcnt lgkmcnt(0)")
        a(f"s_add_u32 s64, s68, {hex(STAMP_OFF + self.kidx * (1 << 20))}")
        a("s_addc_u32 s65, s69, 0")
        a("s_and_b32 s65, s65, 0xffff")
        a("s_lshl_b32 s68, s67, 10")
        a("s_mov_b32 s66, 0x100000")
        a("s_mov_b32 s67, 0x20000")
        a("v_lshrrev_b32 v254, 6, v255")
        a("v_lshlrev_b32 v254, 6, v254")
        a("v_add_u32 v254, s68, v254")
        a("s_getreg_b32 s69, hwreg(HW_REG_HW_ID)")
        a("s_getreg_b32 s68, hwreg(HW_REG_XCC_ID)")
        a("s_mov_b64 exec, 1")
        for k in range(12):
            a(f"v_mov_b32 v253, s{70+2*k}")
            a(f"buffer_store_dword v253, v254, s[64:67], 0 offen offset:{4*k}")
        a("v_mov_b32 v253, s69")
        a("buffer_store_dword v253, v254, s[64:67], 0 offen offset:48")
        a("v_mov_b32 v253, s68")
        a("buffer_store_dword v253, v254, s[64:67], 0 offen offset:52")
        if self.on == 2:
            a("s_load_dwordx2 s[64:65], s[0:1], 80")
            a("s_waitcnt lgkmcnt(0)")
            a("s_and_b32 s65, s65, 0xffff")
            a("s_mov_b32 s66, 256")
            a("v_mov_b32 v254, 0")
            a("s_not_b32 s68, s70")
            a("v_mov_b32 v253, s68")
            a("buffer_atomic_umax v253, v254, s[64:67], 0 offen offset:8")
            a("v_mov_b32 v253, s72")
            a("buffer_atomic_umax v253, v254, s[64:67], 0 offen offset:12")
            a("v_mov_b32 v253, s70")
            a("buffer_atomic_umax v253, v254, s[64:67], 0 offen offset:16")
            for k in range(1, 10):
                a(f"s_sub_u32 s68, s{74+2*k}, s74")
                a(f"s_cmp_eq_u32 s{74+2*k}, 0")
                a("s_cselect_b32 s68, 0, s68")
                a("v_mov_b32 v253, s68")
                a(f"buffer_atomic_umax v253, v254, s[64:67], 0 offen offset:{24+4*k}")

class WL:
    PL = 32768
    FLAG = 0
    EPOCH = 0
    FG = 1024
    FA = 4096
    FO = FA + 256 * 128
    FLAG_SIZE = FO + 2048 * 128
    GATE = FLAG_SIZE
    QF = 327680
    KF = QF + 80 * PL
    VF = KF + 80 * PL
    VT = 40960
    G = VF + 64 * VT
    G_SIZE = 64 * 40 * 2048
    OF = G + G_SIZE
    END = OF + 80 * PL
assert WL.GATE + 16384 <= WL.QF
```

```python
from asm import *

QSCALE = 0x3ea52b5c
NAME = "gated_mix__spectral_fnet__softmax_full_mha__prompt_kernel"
LDS_X = 131072
LDS_CTL = LDS_X + 24576
LDS_SIZE = LDS_CTL + 64
SPIN = 200000

def gen(name=NAME, stamps=False, rotx=(0, 2, 5, 7, 5, 7, 0, 2), snames=(), touch=True, prio=(4, 2, 1), psleep=2, ldiag=False, look=2, coop=False, tpos=5, rin=(0, 0), swap=True, probe=None):
    a = Asm()
    kernel_begin(a, name)
    L = lambda s: f"L_{s}"
    st = Stamps(a, stamps, 0); st.names = list(snames)
    sWS = 26
    sA = 28; sB = 32; sC = 36; sD = 40; sFl = 44; sE = 48
    sW = 52; sXc = 53; sJ = 54; sNonce = 55; sT = 56; sT2 = 57; sCnt = 58
    sLo = 60; sVm = 62; sHi = 94; sM40 = 96
    sGF = 25
    vL = 1; vT = [2, 3, 4, 5, 6, 7]; vCtl = 8
    VB = 10

    def spin_begin(lab):
        a(f"s_mov_b32 s59, {SPIN}")
        a.label(L(lab))
    def spin_end(lab, sleep=2):
        a(f"s_sleep {sleep}")
        a("s_sub_u32 s59, s59, 1")
        a("s_cmp_lg_u32 s59, 0")
        a(f"s_cbranch_scc1 {L(lab)}")
    def put_flag(soff):
        a(f"v_mov_b32 v{vT[0]}, 0")
        a(f"v_mov_b32 v{vT[1]}, s{sNonce}")
        a("s_mov_b64 exec, 1")
        a(f"buffer_store_dword v{vT[1]}, v{vT[0]}, s[{sFl}:{sFl+3}], {soff} offen sc1")
        a("s_mov_b64 exec, -1")

    a("s_cmp_ge_u32 s2, 256")
    a(f"s_cbranch_scc1 {L('end')}")
    st.start()
    if probe: a("s_memrealtime s[70:71]")
    a("s_load_dwordx16 s[4:19], s[0:1], 0")
    a("s_load_dwordx8 s[20:27], s[0:1], 64")
    a(f"v_lshrrev_b32 v{vT[0]}, 6, v0")
    a(f"v_and_b32 v{vL}, 63, v0")
    a(f"v_readfirstlane_b32 s{sW}, v{vT[0]}")
    a(f"s_and_b32 s{sXc}, s2, 7")
    if swap: a(f"s_xor_b32 s{sW}, s{sW}, 4")
    a(f"s_lshr_b32 s{sJ}, s2, 3")
    a(f"v_mov_b32 v{vCtl}, {LDS_CTL}")
    a(f"s_mov_b32 s{sLo}, -1"); a(f"s_mov_b32 s{sLo+1}, 0")
    a(f"s_mov_b32 s{sHi}, 0"); a(f"s_mov_b32 s{sHi+1}, -1")
    a(f"s_mov_b32 s{sVm}, 0xfffff"); a(f"s_mov_b32 s{sVm+1}, 0xfffff")
    a(f"s_mov_b32 s{sM40}, -1"); a(f"s_mov_b32 s{sM40+1}, 0xff")
    sRb = 98; sCb = 99; sAb = 100; sEb = 101; sWm = 14; sWn = 15; sWl = 3
    a(f"s_and_b32 s{sRb}, s2, 3")
    a(f"s_lshl_b32 s{sAb}, s{sRb}, 1")
    a(f"s_lshl_b32 s{sRb}, s{sRb}, 2")
    a(f"s_and_b32 s{sT}, s{sJ}, 3")
    a(f"s_add_u32 s{sRb}, s{sRb}, s{sT}")
    a(f"s_and_b32 s{sT}, s{sJ}, 1")
    a(f"s_add_u32 s{sAb}, s{sAb}, s{sT}")
    a(f"s_and_b32 s{sT}, s{sJ}, 2")
    a(f"s_lshl_b32 s{sT}, s{sT}, 2")
    a(f"s_add_u32 s{sAb}, s{sAb}, s{sT}")
    a(f"s_lshr_b32 s{sT}, s{sXc}, 2")
    a(f"s_lshr_b32 s{sCb}, s{sJ}, 2")
    a(f"s_mul_i32 s{sEb}, s{sT}, 5")
    a(f"s_add_u32 s{sEb}, s{sEb}, s{sCb}")
    a(f"s_sub_u32 s{sEb}, s{sEb}, 3")
    a(f"s_cmp_eq_u32 s{sCb}, 7")
    a(f"s_cselect_b32 s{sT2}, 1, 3")
    a(f"s_lshl_b32 s{sT}, s{sT}, s{sT2}")
    a(f"s_cmp_eq_u32 s{sCb}, 7")
    a(f"s_cselect_b32 s{sT2}, s{sT}, 0")
    a(f"s_cselect_b32 s{sT}, 0, s{sT}")
    a(f"s_add_u32 s{sRb}, s{sRb}, s{sT2}")
    a(f"s_add_u32 s{sCb}, s{sCb}, s{sT}")
    a("s_waitcnt lgkmcnt(0)")
    st.stamp("karg")
    a(f"s_load_dword s{sNonce}, s[{sWS}:{sWS+1}], {WL.EPOCH}")
    a(f"s_mov_b32 s{sGF}, 0")
    a(f"s_and_b32 s{sWl}, s{sW}, 3")
    a(f"s_and_b32 s{sWm}, s{sW}, 1")
    a(f"s_lshr_b32 s{sWn}, s{sWl}, 1")
    srd(a, sFl, sWS, WL.FLAG, WL.FLAG_SIZE)
    srd(a, sA, 4, 0, 2048 * 1280)
    a(f"s_cmp_lt_u32 s{sW}, 4")
    a(f"s_cbranch_scc1 {L('comp')}")

    V = Alloc(VB, 256)
    vDX = [V.get() for _ in range(4)]; vDW = [V.get() for _ in range(4)]
    vFX = [V.get() for _ in range(4)]; vFW = [V.get() for _ in range(4)]
    sOX = sD; sOW = sD + 1; sStepW = sD + 2; sM0 = sD + 3; sMaskD = sE; sN = sE + 1; sRot = sE + 2; sLeft = sE + 3
    a(f"v_and_b32 v{vT[3]}, 7, v{vL}")
    a(f"v_lshrrev_b32 v{vT[4]}, 4, v{vL}")
    a(f"v_xor_b32 v{vT[3]}, v{vT[3]}, v{vT[4]}")
    a(f"v_lshlrev_b32 v{vT[3]}, 4, v{vT[3]}")
    a(f"v_xor_b32 v{vT[4]}, 64, v{vT[3]}")
    rw = 0
    for i, r in enumerate(rotx): rw |= r << (4 * i)
    a(f"s_lshl_b32 s{sT}, s{sXc}, 2")
    a(f"s_lshr_b32 s{sRot}, {hex(rw)}, s{sT}")
    a(f"s_and_b32 s{sRot}, s{sRot}, 15")
    if rin != (0, 0):
        a(f"s_and_b32 s{sT}, s{sJ}, 3")
        a(f"s_mul_i32 s{sT}, s{sT}, {rin[0]}")
        a(f"s_add_u32 s{sRot}, s{sRot}, s{sT}")
        a(f"s_lshr_b32 s{sT}, s{sJ}, 2")
        a(f"s_mul_i32 s{sT}, s{sT}, {rin[1]}")
        a(f"s_add_u32 s{sRot}, s{sRot}, s{sT}")
        a(f"s_mul_i32 s{sT}, s{sRot}, 205")
        a(f"s_lshr_b32 s{sT}, s{sT}, 11")
        a(f"s_mul_i32 s{sT}, s{sT}, 10")
        a(f"s_sub_u32 s{sRot}, s{sRot}, s{sT}")
    a(f"s_lshl_b32 s{sM0}, s{sWl}, 12")
    a(f"s_mov_b32 s{sMaskD}, 0x8000")
    def f_params(dx, dw):
        a(f"v_bfe_u32 v{vT[0]}, v{vL}, 3, 2")
        a(f"v_lshrrev_b32 v{vT[1]}, 5, v{vL}")
        a(f"v_lshl_add_u32 v{vT[0]}, v{vT[1]}, 3, v{vT[0]}")
        a(f"s_lshl_b32 s{sT}, s{sAb}, 2")
        a(f"s_add_u32 s{sT}, s{sT}, s{sWl}")
        a(f"v_lshl_add_u32 v{vT[1]}, v{vT[0]}, 6, s{sT}")
        a(f"v_mul_u32_u24 v{vT[1]}, 1280, v{vT[1]}")
        a(f"v_add_u32 v{dx[0]}, v{vT[1]}, v{vT[3]}")
        a(f"v_add_u32 v{dx[1]}, v{vT[1]}, v{vT[4]}")
        a(f"v_add_u32 v{dx[1]}, {4*64*1280-1024}, v{dx[1]}")
        a(f"v_add_u32 v{dx[2]}, {16*64*1280-2048}, v{dx[0]}")
        a(f"v_add_u32 v{dx[3]}, {16*64*1280-2048}, v{dx[1]}")
        a(f"s_lshl_b32 s{sT}, s{sEb}, 6")
        a(f"s_lshl_b32 s{sT2}, s{sWn}, 5")
        a(f"s_add_u32 s{sT}, s{sT}, s{sT2}")
        a(f"v_add_u32 v{vT[1]}, s{sT}, v{vT[0]}")
        a(f"v_mul_u32_u24 v{vT[1]}, 1280, v{vT[1]}")
        a(f"v_add_u32 v{dw[0]}, v{vT[1]}, v{vT[3]}")
        a(f"v_add_u32 v{dw[1]}, v{vT[1]}, v{vT[4]}")
        a(f"v_add_u32 v{dw[1]}, {4*1280-1024}, v{dw[1]}")
        a(f"v_add_u32 v{dw[2]}, {16*1280-2048}, v{dw[0]}")
        a(f"v_add_u32 v{dw[3]}, {16*1280-2048}, v{dw[1]}")
    def f_srd():
        a(f"s_cmp_eq_u32 s{sWm}, 0")
        a(f"s_cselect_b32 s{sB}, s10, s12")
        a(f"s_cselect_b32 s{sB+1}, s11, s13")
        a(f"s_and_b32 s{sB+1}, s{sB+1}, 0xffff")
        a(f"s_mov_b32 s{sB+2}, {640*1280}")
        a(f"s_mov_b32 s{sB+3}, 0x20000")
        a(f"s_mov_b32 s{sStepW}, 128")
        a(f"s_lshl_b32 s{sOX}, s{sRot}, 7")
        a(f"s_mov_b32 s{sOW}, s{sOX}")
    a(f"s_cmp_ge_u32 s{sJ}, 30")
    a(f"s_cbranch_scc1 {L('ld_fonly')}")
    srd(a, sB, 16, 0, 640 * 3840)
    a(f"v_lshrrev_b32 v{vT[0]}, 3, v{vL}")
    a(f"s_lshl_b32 s{sT}, s{sWm}, 5")
    a(f"v_add_u32 v{vT[0]}, s{sT}, v{vT[0]}")
    a(f"s_lshl_b32 s{sT}, s{sRb}, 1")
    a(f"s_add_u32 s{sT}, s{sT}, s{sWn}")
    a(f"v_lshl_add_u32 v{vT[0]}, v{vT[0]}, 5, s{sT}")
    a(f"v_mul_u32_u24 v{vT[0]}, 1280, v{vT[0]}")
    a(f"v_add_u32 v{vDX[0]}, v{vT[0]}, v{vT[3]}")
    a(f"v_add_u32 v{vDX[1]}, v{vT[0]}, v{vT[4]}")
    a(f"v_add_u32 v{vDX[1]}, {256*1280-1024}, v{vDX[1]}")
    a(f"v_add_u32 v{vDX[2]}, {2*256*1280-2048}, v{vDX[0]}")
    a(f"v_add_u32 v{vDX[3]}, {2*256*1280-2048}, v{vDX[1]}")
    a(f"v_lshrrev_b32 v{vT[0]}, 4, v{vL}")
    a(f"v_bfe_u32 v{vT[1]}, v{vL}, 2, 2")
    a(f"v_xor_b32 v{vT[1]}, v{vT[1]}, v{vT[0]}")
    a(f"v_and_b32 v{vT[2]}, 3, v{vL}")
    a(f"v_lshl_add_u32 v{vT[1]}, v{vT[1]}, 2, v{vT[2]}")
    a(f"v_lshlrev_b32 v{vT[1]}, 4, v{vT[1]}")
    a(f"s_lshl_b32 s{sT}, s{sWl}, 4")
    a(f"v_add_u32 v{vT[0]}, s{sT}, v{vT[0]}")
    a(f"v_mul_u32_u24 v{vT[0]}, 3840, v{vT[0]}")
    a(f"s_lshl_b32 s{sT}, s{sCb}, 8")
    a(f"v_add3_u32 v{vDW[0]}, v{vT[0]}, v{vT[1]}, s{sT}")
    for j in range(1, 4):
        a(f"v_add_u32 v{vDW[j]}, {j*(4*3840-1024)}, v{vDW[0]}")
    a(f"s_mov_b32 s{sStepW}, {64*3840}")
    a(f"s_lshl_b32 s{sOX}, s{sRot}, 7")
    a(f"s_mul_i32 s{sOW}, s{sRot}, s{sStepW}")
    a(f"s_cmp_ge_u32 s{sJ}, 12")
    a(f"s_cselect_b32 s{sN}, 1, 0")
    a(f"s_branch {L('ld_go')}")
    a.label(L("ld_fonly"))
    f_params(vDX, vDW)
    f_srd()
    a(f"s_mov_b32 s{sN}, 0")
    a.label(L("ld_go"))
    a(f"s_mov_b32 s{sCnt}, 0")
    a.label(L("ld_loop"))
    a(f"s_cmp_lt_u32 s{sCnt}, 2")
    a(f"s_cbranch_scc1 {L('ld_issue')}")
    if look == 3:
        a(f"s_cmp_eq_u32 s{sCnt}, 3")
        a(f"s_cbranch_scc1 {L('ld_issue')}")
        a(f"s_cmp_lg_u32 s{sCnt}, 2")
        a(f"s_cbranch_scc1 {L('ld_w16')}")
        a("s_waitcnt vmcnt(8) lgkmcnt(0)")
        a.label(L("ld_w16"))
    if ldiag:
        a("s_memtime s[64:65]"); a("s_waitcnt lgkmcnt(0)")
        a("s_sub_u32 s86, s86, s64")
    a("s_waitcnt vmcnt(16)" if look == 3 else "s_waitcnt vmcnt(8) lgkmcnt(0)")
    if ldiag:
        a("s_memtime s[64:65]"); a("s_waitcnt lgkmcnt(0)")
        a("s_add_u32 s86, s86, s64"); a("s_sub_u32 s88, s88, s64")
    a("s_barrier")
    if ldiag:
        a("s_memtime s[64:65]"); a("s_waitcnt lgkmcnt(0)")
        a("s_add_u32 s88, s88, s64")
    a.label(L("ld_issue"))
    a(f"s_mov_b32 m0, s{sM0}")
    a(f"s_add_u32 s{sCnt}, s{sCnt}, 1")
    for j in range(4): a(f"buffer_load_dwordx4 v{vDX[j]}, s[{sA}:{sA+3}], s{sOX} offen offset:{1024*j} lds")
    a(f"s_add_u32 m0, s{sM0}, 0x4000")
    a(f"s_add_u32 s{sOX}, s{sOX}, 128")
    for j in range(4): a(f"buffer_load_dwordx4 v{vDW[j]}, s[{sB}:{sB+3}], s{sOW} offen offset:{1024*j} lds")
    a(f"s_add_u32 s{sOW}, s{sOW}, s{sStepW}")
    a(f"s_cmp_eq_u32 s{sOX}, 1280")
    a(f"s_cselect_b32 s{sOX}, 0, s{sOX}")
    a(f"s_cselect_b32 s{sOW}, 0, s{sOW}")
    a(f"s_xor_b32 s{sM0}, s{sM0}, s{sMaskD}")
    a(f"s_xor_b32 s{sMaskD}, s{sMaskD}, 0x18000")
    a(f"s_cmp_lg_u32 s{sCnt}, 10")
    a(f"s_cbranch_scc1 {L('ld_loop')}")
    for n in ((16, 8, 0) if look == 3 else (8, 0)):
        a(f"s_waitcnt vmcnt({n})")
        a("s_barrier")
    if ldiag:
        a(f"s_cmp_lg_u32 s{sN}, 0")
        a(f"s_cbranch_scc0 {L('ldg')}")
        a("s_add_u32 s82, s86, s74"); a("s_add_u32 s84, s88, s74"); a("s_mov_b32 s86, 0"); a("s_mov_b32 s88, 0")
        a.label(L("ldg"))
    a(f"s_cmp_lg_u32 s{sN}, 0")
    a(f"s_cbranch_scc1 {L('ld_fonly')}")
    if ldiag:
        a("s_add_u32 s86, s86, s74"); a("s_add_u32 s88, s88, s74")
    st.stamp("ldone")
    a(f"s_add_u32 s{sNonce}, s{sNonce}, 1")
    a(f"s_cmp_lg_u32 s{sW}, 4")
    a(f"s_cbranch_scc1 {L('att')}")
    a(f"s_and_b32 s{sT}, s{sJ}, 3")
    a(f"s_lshl_b32 s{sT2}, s{sXc}, 2")
    a(f"s_add_u32 s{sT}, s{sT}, s{sT2}")
    a(f"s_lshr_b32 s{sN}, s{sT}, 1")
    a(f"s_add_u32 s{sN}, s{sN}, 240")
    a(f"s_mul_i32 s{sT}, s{sT}, 20")
    a(f"v_bfe_u32 v{vT[0]}, v{vL}, 4, 1")
    a(f"v_mul_u32_u24 v{vT[0]}, 19, v{vT[0]}")
    a(f"v_add_u32 v{vT[0]}, s{sT}, v{vT[0]}")
    a(f"v_lshrrev_b32 v{vT[0]}, 7, v{vT[0]}")
    a(f"v_lshrrev_b32 v{vT[1]}, 5, v{vL}")
    a(f"v_mul_u32_u24 v{vT[1]}, 5, v{vT[1]}")
    a(f"v_add3_u32 v{vT[1]}, v{vT[1]}, v{vT[0]}, 5")
    a(f"v_and_b32 v{vT[2]}, 15, v{vL}")
    a(f"v_lshl_add_u32 v{vT[1]}, v{vT[1]}, 4, v{vT[2]}")
    a(f"v_lshlrev_b32 v{vT[1]}, 7, v{vT[1]}")
    a(f"s_lshr_b32 s{sT}, s{sJ}, 2")
    a(f"s_lshl_b32 s{sT}, s{sT}, 1")
    a(f"v_and_b32 v{vT[2]}, 1, v{vL}")
    a(f"v_lshl_add_u32 v{vT[0]}, v{vT[0]}, 4, v{vT[2]}")
    a(f"v_add_u32 v{vT[0]}, s{sT}, v{vT[0]}")
    a(f"s_mov_b64 exec, s[{sHi}:{sHi+1}]")
    a(f"v_mov_b32 v{vT[0]}, s{sN}")
    a("s_mov_b64 exec, -1")
    a(f"v_lshlrev_b32 v{vT[0]}, 7, v{vT[0]}")
    a(f"s_mov_b32 s{sT2}, {WL.FA}")
    spin_begin("pa")
    a(f"buffer_load_dword v{vT[2]}, v{vT[1]}, s[{sFl}:{sFl+3}], s{sT2} offen sc1")
    a(f"buffer_load_dword v{vT[3]}, v{vT[0]}, s[{sFl}:{sFl+3}], s{sT2} offen sc1")
    a("s_waitcnt vmcnt(0)")
    for i in range(2): a(f"v_xor_b32 v{vT[2]+i}, s{sNonce}, v{vT[2]+i}")
    a(f"v_or_b32 v{vT[2]}, v{vT[2]}, v{vT[3]}")
    a(f"v_cmp_ne_u32 vcc, 0, v{vT[2]}")
    a("s_nop 1")
    a("s_cmp_eq_u64 vcc, 0")
    a(f"s_cbranch_scc1 {L('pad')}")
    spin_end("pa", psleep)
    a.label(L("pad"))
    a(f"v_mov_b32 v{vT[0]}, 1")
    a(f"ds_write_b32 v{vCtl}, v{vT[0]}")
    a(f"s_branch {L('att')}")

    a.label(L("comp"))
    V = Alloc(VB, 256)
    vRX = [V.get() for _ in range(4)]; vRW = [V.get() for _ in range(4)]
    vE = [V.get() for _ in range(8)]
    vTch = V.get(2)
    V.p = 28
    FR = V.get(8, 4); FIn = V.get(8, 4)
    XF = [[V.get(4, 4) for _ in range(2)] for _ in range(2)]
    WF = [[V.get(4, 4) for _ in range(2)] for _ in range(2)]
    ACC = [[V.get(16, 4) for _ in range(2)] for _ in range(2)]
    FRn = V.get(8, 4)
    G2 = [V.get(16, 4) for _ in range(2)]
    sMask = sD; sStage = sD + 1; sScale = sD + 2; sSig = sD + 3
    a("s_setprio 3")
    a(f"s_cmp_lg_u32 s{sW}, 0")
    a(f"s_cbranch_scc1 {L('c1')}")
    for i in range(4): a(f"v_mov_b32 v{vT[2]+i}, 0")
    a(f"ds_write_b128 v{vCtl}, {vr(vT[2],4)}")
    a.label(L("c1"))
    def nat_read_addrs(dst, swave, base):
        a(f"v_and_b32 v{vT[0]}, 31, v{vL}")
        a(f"v_lshrrev_b32 v{vT[1]}, 5, v{vL}")
        a(f"v_bfe_u32 v{vT[2]}, v{vL}, 1, 3")
        a(f"v_xor_b32 v{vT[1]}, v{vT[1]}, v{vT[2]}")
        a(f"v_lshlrev_b32 v{vT[1]}, 4, v{vT[1]}")
        a(f"v_lshl_add_u32 v{vT[0]}, v{vT[0]}, 7, v{vT[1]}")
        a(f"s_lshl_b32 s{sT}, s{swave}, 13")
        if base: a(f"s_add_u32 s{sT}, s{sT}, {base}")
        a(f"s_add_u32 s{sT}, s{sT}, s{sStage}")
        a(f"v_add_u32 v{dst[0]}, s{sT}, v{vT[0]}")
        for ks in range(1, 4):
            a(f"v_xor_b32 v{dst[ks]}, {32*ks}, v{dst[0]}")
    def zero_acc():
        for x in range(2):
            for w in range(2):
                for i in range(16): a(f"v_mov_b32 v{ACC[x][w]+i}, 0")
    def signal(lab, fr=True):
        a("s_waitcnt vmcnt(0)")
        a(f"v_mov_b32 v{vT[0]}, 1")
        a("s_mov_b64 exec, 1")
        a(f"ds_add_rtn_u32 v{vT[1]}, v{vCtl}, v{vT[0]} offset:4")
        a("s_mov_b64 exec, -1")
        a(f"s_mov_b32 s{sSig}, 1")
        a("s_waitcnt lgkmcnt(0)")
        a(f"v_readfirstlane_b32 s{sT}, v{vT[1]}")
        a("s_nop 1")
        a(f"s_cmp_lg_u32 s{sT}, 3")
        a(f"s_cbranch_scc1 {L(lab+'x')}")
        a(f"s_lshl_b32 s{sT}, s{sCb}, 4")
        a(f"s_add_u32 s{sT}, s{sT}, s{sRb}")
        a(f"s_cmp_ge_u32 s{sJ}, 30")
        a(f"s_cselect_b32 s{sT}, s2, s{sT}")
        a(f"s_lshl_b32 s{sT}, s{sT}, 7")
        a(f"s_add_u32 s{sT}, s{sT}, {WL.FA}")
        put_flag(f"s{sT}")
        st.stamp("aflag")
        if stamps: a("s_waitcnt lgkmcnt(0)")
        a.label(L(lab + "x"))
        if fr: fr_loads()
    def fr_loads():
        a(f"v_and_b32 v{vT[0]}, 31, v{vL}")
        a(f"v_lshrrev_b32 v{vT[1]}, 5, v{vL}")
        a(f"v_lshlrev_b32 v{vT[0]}, 18, v{vT[0]}")
        a(f"v_lshl_add_u32 v{vT[0]}, v{vT[1]}, 4, v{vT[0]}")
        srd(a, sE, 6, 0, 2048 * 4096)
        a(f"buffer_load_dwordx4 {vr(FR,4)}, v{vT[0]}, s[{sE}:{sE+3}], 0 offen")
        a(f"buffer_load_dwordx4 {vr(FR+4,4)}, v{vT[0]}, s[{sE}:{sE+3}], 0 offen offset:32")
        srd(a, sE, 8, 0, 2048 * 4096)
        a(f"buffer_load_dwordx4 {vr(FIn,4)}, v{vT[0]}, s[{sE}:{sE+3}], 0 offen")
        a(f"buffer_load_dwordx4 {vr(FIn+4,4)}, v{vT[0]}, s[{sE}:{sE+3}], 0 offen offset:32")
    def coop_touch():
        if not coop: return
        rw = 0
        for i, r in enumerate(rotx): rw |= r << (4 * i)
        a(f"s_lshl_b32 s{sT}, s{sXc}, 2")
        a(f"s_lshr_b32 s{sScale}, {hex(rw)}, s{sT}")
        a(f"s_and_b32 s{sScale}, s{sScale}, 15")
        a(f"s_lshl_b32 s{sT}, s{sJ}, 2")
        a(f"s_add_u32 s{sT}, s{sT}, s{sW}")
        a(f"s_mul_i32 s{sT2}, s{sT}, 171")
        a(f"s_lshr_b32 s{sT2}, s{sT2}, 12")
        a(f"s_cmp_ge_u32 s{sT2}, 4")
        a(f"s_cbranch_scc1 {L('ct3')}")
        a(f"s_add_u32 s{sScale}, s{sScale}, s{sT2}")
        a(f"s_mul_i32 s{sT2}, s{sT2}, 24")
        a(f"s_sub_u32 s{sT}, s{sT}, s{sT2}")
        a(f"s_add_u32 s{sScale}, s{sScale}, 2")
        a(f"s_add_u32 s{sCnt}, s{sScale}, 4")
        for r in (sScale, sCnt):
            a(f"s_cmp_ge_u32 s{r}, 10")
            a(f"s_cselect_b32 s{sT2}, 10, 0")
            a(f"s_sub_u32 s{r}, s{r}, s{sT2}")
        a(f"s_cmp_ge_u32 s{sT}, 8")
        a(f"s_cbranch_scc1 {L('ct1')}")
        a(f"s_and_b32 s{sT2}, s{sXc}, 3")
        a(f"s_lshl_b32 s{sT2}, s{sT2}, 3")
        a(f"s_add_u32 s{sT}, s{sT}, s{sT2}")
        a(f"v_lshl_add_u32 v{vT[0]}, v{vL}, 5, s{sT}")
        a(f"v_mul_u32_u24 v{vT[0]}, 1280, v{vT[0]}")
        a(f"s_lshl_b32 s{sScale}, s{sScale}, 7")
        a(f"s_lshl_b32 s{sCnt}, s{sCnt}, 7")
        a(f"buffer_load_dword v{vTch}, v{vT[0]}, s[{sA}:{sA+3}], s{sScale} offen")
        a(f"buffer_load_dword v{vTch}, v{vT[0]}, s[{sA}:{sA+3}], s{sCnt} offen")
        a(f"s_branch {L('ct3')}")
        a.label(L("ct1"))
        srd(a, sE, 16, 0, 640 * 3840)
        a(f"s_sub_u32 s{sT}, s{sT}, 8")
        a(f"s_lshl_b32 s{sT}, s{sT}, 2")
        a(f"v_lshrrev_b32 v{vT[0]}, 4, v{vL}")
        a(f"v_add_u32 v{vT[0]}, s{sT}, v{vT[0]}")
        a(f"v_mul_u32_u24 v{vT[0]}, 3840, v{vT[0]}")
        a(f"v_and_b32 v{vT[1]}, 15, v{vL}")
        a(f"v_lshl_add_u32 v{vT[0]}, v{vT[1]}, 7, v{vT[0]}")
        a(f"s_lshr_b32 s{sT}, s{sXc}, 2")
        a(f"s_mul_i32 s{sT}, s{sT}, {7*256}")
        a(f"v_add_u32 v{vT[0]}, s{sT}, v{vT[0]}")
        a(f"s_mul_i32 s{sScale}, s{sScale}, {64*3840}")
        a(f"s_mul_i32 s{sCnt}, s{sCnt}, {64*3840}")
        a(f"buffer_load_dword v{vTch}, v{vT[0]}, s[{sE}:{sE+3}], s{sScale} offen")
        a(f"buffer_load_dword v{vTch}, v{vT[0]}, s[{sE}:{sE+3}], s{sCnt} offen")
        a.label(L("ct3"))
    def wd_touch_setup():
        if not touch: return
        a(f"s_mov_b32 s{sE+3}, 0x20000")
        a(f"s_cmp_eq_u32 s{sWm}, 0")
        a(f"s_cselect_b32 s{sE}, s10, s12")
        a(f"s_cselect_b32 s{sE+1}, s11, s13")
        a(f"s_and_b32 s{sE+1}, s{sE+1}, 0xffff")
        a(f"s_mov_b32 s{sE+2}, {640*1280}")
        a(f"s_lshl_b32 s{sT}, s{sJ}, 1")
        a(f"s_add_u32 s{sT}, s{sT}, s{sWn}")
        a(f"s_mul_i32 s{sT}, s{sT}, {54*128}")
        a(f"s_lshr_b32 s{sT2}, s{sXc}, 2")
        a(f"s_mul_i32 s{sT2}, s{sT2}, {320*1280}")
        a(f"s_add_u32 s{sT}, s{sT}, s{sT2}")
        a(f"v_min_u32 v{vTch+1}, 53, v{vL}")
        a(f"v_lshl_add_u32 v{vTch+1}, v{vTch+1}, 7, s{sT}")
    def mainloop(mode):
        tr = mode != 'f'
        nw = 2 if tr else 1
        def rdX(s, ks, x): a(f"ds_read_b128 {vr(XF[s][x],4)}, v{vRX[ks]} offset:{4096*x}")
        def rdW(s, ks, w):
            if tr:
                a(f"ds_read_b64_tr_b16 {vr(WF[s][w],2)}, v{vRW[w]} offset:{4096*ks}")
                a(f"ds_read_b64_tr_b16 {vr(WF[s][w]+2,2)}, v{vRW[w]} offset:{4096*ks+1024}")
            else:
                a(f"ds_read_b128 {vr(WF[s][w],4)}, v{vRW[ks]} offset:{4096*w}")
        def mf(s, x, w):
            A, B = (WF[s][w], XF[s][x]) if mode == 'qk' else (XF[s][x], WF[s][w])
            a(f"v_mfma_f32_32x32x16_bf16 {vr(ACC[x][w],16)}, {vr(A,4)}, {vr(B,4)}, {vr(ACC[x][w],16)}")
        a("s_waitcnt lgkmcnt(0)")
        a("s_barrier")
        st.stamp("b0" if tr else "fb0")
        if stamps: a("s_waitcnt lgkmcnt(0)")
        rdX(0, 0, 0); rdW(0, 0, 0); rdX(0, 0, 1); rdW(0, 0, 1)
        a(f"s_mov_b32 s{sCnt}, 0")
        a.raw(".p2align 5")
        a.label(L(mode + "loop"))
        for ks in range(4):
            s = ks % 2; n = 1 - s; nk = (ks + 1) % 4
            if ks < 3:
                a(f"s_waitcnt lgkmcnt({1+nw})")
                mf(s, 0, 0)
                if ks == 0 and tr and touch:
                    a(f"s_cmp_lg_u32 s{sCnt}, {tpos}")
                    a(f"s_cbranch_scc1 {L(mode+'nt')}")
                    a(f"buffer_load_dword v{vTch}, v{vTch+1}, s[{sE}:{sE+3}], 0 offen")
                    a.label(L(mode + "nt"))
            else:
                a("s_waitcnt lgkmcnt(0)")
                mf(s, 0, 0)
                if not tr:
                    a(f"s_getreg_b32 s{sT}, hwreg(HW_REG_IB_STS, 0, 4)")
                    a(f"s_or_b32 s{sT}, s{sT}, s{sSig}")
                    a(f"s_cbranch_scc1 {L('fns')}")
                    signal("fns")
                    a.label(L("fns"))
                a(f"s_add_u32 s{sCnt}, s{sCnt}, 1")
                a(f"s_cmp_eq_u32 s{sCnt}, 10")
                a(f"s_cbranch_scc1 {L(mode+'nb')}")
                a("s_barrier")
                a.label(L(mode + "nb"))
                for r in vRX + (vRW[:2] if tr else vRW):
                    a(f"v_xor_b32 v{r}, s{sMask}, v{r}")
            rdX(n, nk, 0); rdW(n, nk, 0)
            if ks < 3: a(f"s_waitcnt lgkmcnt({2*nw+1})")
            mf(s, 1, 0)
            rdX(n, nk, 1)
            if ks < 3: a(f"s_waitcnt lgkmcnt({nw+2})")
            mf(s, 0, 1)
            rdW(n, nk, 1)
            if ks == 3:
                a(f"s_xor_b32 s{sStage}, s{sStage}, s{sMask}")
                a(f"s_xor_b32 s{sMask}, s{sMask}, 0x18000")
                a(f"s_cmp_lg_u32 s{sCnt}, 10")
            mf(s, 1, 1)
        a(f"s_cbranch_scc1 {L(mode+'loop')}")
        a("s_waitcnt lgkmcnt(0)")
        a("s_nop 11")
        st.stamp("aend" if tr else "fend")
    a(f"s_mov_b32 s{sMask}, 0x8000")
    a(f"s_mov_b32 s{sStage}, 0")
    a(f"s_mov_b32 s{sSig}, 0")
    a(f"s_cmp_ge_u32 s{sJ}, 30")
    a(f"s_cbranch_scc1 {L('gate')}")
    coop_touch()
    wd_touch_setup()
    nat_read_addrs(vRX, sWm, 0)
    zero_acc()
    a(f"v_bfe_u32 v{vT[0]}, v{vL}, 2, 2")
    a(f"v_lshrrev_b32 v{vT[1]}, 5, v{vL}")
    a(f"v_lshl_add_u32 v{vT[1]}, v{vT[1]}, 3, v{vT[0]}")
    a(f"v_lshlrev_b32 v{vT[1]}, 8, v{vT[1]}")
    a(f"s_lshl_b32 s{sT}, s{sWn}, 1")
    a(f"v_xor_b32 v{vT[0]}, s{sT}, v{vT[0]}")
    a(f"v_lshl_add_u32 v{vT[1]}, v{vT[0]}, 6, v{vT[1]}")
    a(f"v_bfe_u32 v{vT[0]}, v{vL}, 4, 1")
    a(f"v_lshl_add_u32 v{vT[1]}, v{vT[0]}, 5, v{vT[1]}")
    a(f"v_add_u32 v{vT[1]}, 0x4000, v{vT[1]}")
    a(f"v_and_b32 v{vT[4]}, 31, v{vL}")
    a(f"v_lshrrev_b32 v{vT[5]}, 5, v{vL}")
    a(f"s_cmp_ge_u32 s{sCb}, 10")
    a(f"s_cbranch_scc1 {L('v')}")
    a(f"v_and_b32 v{vT[0]}, 1, v{vL}")
    a(f"v_lshl_add_u32 v{vT[1]}, v{vT[0]}, 4, v{vT[1]}")
    a(f"v_bfe_u32 v{vT[0]}, v{vL}, 1, 1")
    a(f"v_lshl_add_u32 v{vRW[0]}, v{vT[0]}, 3, v{vT[1]}")
    a(f"v_xor_b32 v{vRW[1]}, 64, v{vRW[0]}")
    a(f"s_cmp_ge_u32 s{sCb}, 5")
    a(f"s_cselect_b32 s{sScale}, 1.0, {hex(QSCALE)}")
    srd(a, sC, sWS, WL.QF, 160 * WL.PL)
    a(f"s_lshl_b32 s{sT}, s{sCb}, 1")
    a(f"s_add_u32 s{sT}, s{sT}, s{sWn}")
    a(f"s_lshl_b32 s{sT}, s{sT}, 18")
    a(f"s_lshl_b32 s{sT2}, s{sRb}, 1")
    a(f"s_add_u32 s{sT2}, s{sT2}, s{sWm}")
    a(f"s_lshl_b32 s{sT2}, s{sT2}, 10")
    a(f"s_add_u32 s{sT}, s{sT}, s{sT2}")
    a(f"v_lshlrev_b32 v{vE[0]}, 15, v{vT[5]}")
    a(f"v_lshl_add_u32 v{vE[0]}, v{vT[4]}, 4, v{vE[0]}")
    a(f"v_add_u32 v{vE[0]}, s{sT}, v{vE[0]}")
    for e in range(1, 4): a(f"v_add_u32 v{vE[e]}, {e*2*WL.PL}, v{vE[0]}")
    mainloop('qk')
    PK = FRn + 8
    for x in range(2):
        for w in range(2):
            acc = ACC[x][w]; pk = PK + 8 * (2 * x + w)
            for i in range(16): a(f"v_mul_f32 v{acc+i}, s{sScale}, v{acc+i}")
            for i in range(8): a(f"v_cvt_pk_bf16_f32 v{pk+i}, v{acc+2*i}, v{acc+2*i+1}")
            for j in range(2):
                a(f"buffer_store_dwordx4 {vr(pk+4*j,4)}, v{vE[2*w+j]}, s[{sC}:{sC+3}], 0 offen offset:{512*x} sc1")
    a(f"s_branch {L('adone')}")
    a.label(L("v"))
    a(f"v_and_b32 v{vT[0]}, 3, v{vL}")
    a(f"v_lshl_add_u32 v{vRW[0]}, v{vT[0]}, 3, v{vT[1]}")
    a(f"v_xor_b32 v{vRW[1]}, 64, v{vRW[0]}")
    srd(a, sC, sWS, WL.VF, 64 * WL.VT)
    a(f"s_lshl_b32 s{sT}, s{sRb}, 1")
    a(f"s_add_u32 s{sT}, s{sT}, s{sWm}")
    a(f"s_mul_i32 s{sT}, s{sT}, {2*WL.VT}")
    a(f"s_sub_u32 s{sT2}, s{sCb}, 10")
    a(f"s_lshl_b32 s{sT2}, s{sT2}, 1")
    a(f"s_add_u32 s{sT2}, s{sT2}, s{sWn}")
    a(f"s_lshl_b32 s{sT2}, s{sT2}, 10")
    a(f"s_add_u32 s{sT}, s{sT}, s{sT2}")
    a(f"v_mul_u32_u24 v{vE[0]}, 10240, v{vT[5]}")
    a(f"v_lshl_add_u32 v{vE[0]}, v{vT[4]}, 4, v{vE[0]}")
    a(f"v_add_u32 v{vE[0]}, s{sT}, v{vE[0]}")
    for e in range(1, 4): a(f"v_add_u32 v{vE[e]}, {e*20480}, v{vE[0]}")
    mainloop('v')
    for x in range(2):
        for w in range(2):
            acc = ACC[x][w]; pk = PK + 8 * (2 * x + w)
            for i in range(8): a(f"v_cvt_pk_bf16_f32 v{pk+i}, v{acc+2*i}, v{acc+2*i+1}")
            for j in range(2):
                a(f"buffer_store_dwordx4 {vr(pk+4*j,4)}, v{vE[2*x+j]}, s[{sC}:{sC+3}], 0 offen offset:{512*w} sc1")
    a(f"s_branch {L('adone')}")
    a.label(L("gate"))
    GW = 44; GX = 64
    assert FIn + 8 <= GW
    srd(a, sB, 20, 0, 1280)
    srd(a, sC, sWS, WL.GATE, 2048 * 8)
    a(f"v_and_b32 v{vT[0]}, 15, v{vL}")
    a(f"v_lshlrev_b32 v{vT[0]}, 4, v{vT[0]}")
    for p in range(5):
        a(f"buffer_load_dwordx4 {vr(GW+4*p,4)}, v{vT[0]}, s[{sB}:{sB+3}], 0 offen offset:{256*p}")
    a(f"v_lshrrev_b32 v{vT[5]}, 4, v{vL}")
    a(f"s_lshl_b32 s{sT}, s{sWm}, 5")
    a(f"v_add_u32 v{vT[5]}, s{sT}, v{vT[5]}")
    a(f"s_sub_u32 s{sT}, s2, 240")
    a(f"s_lshl_b32 s{sT}, s{sT}, 1")
    a(f"s_add_u32 s{sT}, s{sT}, s{sWn}")
    a(f"v_lshl_add_u32 v{vT[2]}, v{vT[5]}, 5, s{sT}")
    a(f"v_mul_u32_u24 v{vT[2]}, 1280, v{vT[2]}")
    a(f"v_add_u32 v{vT[2]}, v{vT[2]}, v{vT[0]}")
    a(f"s_lshl_b32 s{sT}, s{sT}, 6")
    a(f"v_add_u32 v{vT[5]}, s{sT}, v{vT[5]}")
    a(f"v_lshlrev_b32 v{vT[5]}, 3, v{vT[5]}")
    a(f"s_mov_b32 s{sT}, 0")
    a(f"v_cmp_eq_u32 vcc, 0, v{vT[0]}")
    for r in range(8):
        for p in range(5):
            a(f"buffer_load_dwordx4 {vr(GX+20*r+4*p,4)}, v{vT[2]}, s[{sA}:{sA+3}], s{sT} offen offset:{256*p}")
        a(f"s_add_u32 s{sT}, s{sT}, {4*32*1280}")
        a(f"v_mov_b32 v{vE[r]}, 0")
    for r in range(8):
        a(f"s_waitcnt vmcnt({35-5*r})")
        for i in range(20):
            a(f"v_dot2c_f32_bf16 v{vE[r]}, v{GX+20*r+i}, v{GW+i}")
    a("s_nop 3")
    for sh in (8, 4, 2, 1):
        for r in range(8):
            a(f"v_add_f32_dpp v{vE[r]}, v{vE[r]}, v{vE[r]} row_ror:{sh} row_mask:0xf bank_mask:0xf")
    GO = 224
    for r in range(8): a(f"v_cvt_pk_bf16_f32 v{vE[r]}, 0, v{vE[r]}")
    for r in range(8): a(f"v_mul_f32 v{vE[r]}, 0xbfb8aa3b, v{vE[r]}")
    for r in range(8): a(f"v_exp_f32 v{vE[r]}, v{vE[r]}")
    for r in range(8): a(f"v_add_f32 v{vE[r]}, 1.0, v{vE[r]}")
    for r in range(8): a(f"v_rcp_f32 v{vE[r]}, v{vE[r]}")
    for r in range(8): a(f"v_cvt_pk_bf16_f32 v{GO+2*r}, 0, v{vE[r]}")
    for r in range(8): a(f"v_sub_f32 v{GO+2*r+1}, 1.0, v{GO+2*r}")
    for r in range(8): a(f"v_cvt_pk_bf16_f32 v{GO+2*r+1}, 0, v{GO+2*r+1}")
    a("s_mov_b64 exec, vcc")
    for r in range(8):
        a(f"buffer_store_dwordx2 {vr(GO+2*r,2)}, v{vT[5]}, s[{sC}:{sC+3}], 0 offen offset:{32*r} sc1")
    a("s_mov_b64 exec, -1")
    a("s_waitcnt lgkmcnt(0)")
    a.label(L("adone"))
    st.stamp("ast")
    a(f"s_add_u32 s{sNonce}, s{sNonce}, 1")
    a(f"s_cmp_lt_u32 s{sJ}, 12")
    a(f"s_cbranch_scc1 {L('fskip')}")
    nat_read_addrs(vRX, sWm, 0)
    nat_read_addrs(vRW, sWn, 0x4000)
    a(f"v_and_b32 v{vT[0]}, 31, v{vL}")
    a(f"v_lshrrev_b32 v{vT[1]}, 5, v{vL}")
    a(f"v_lshlrev_b32 v{vE[4]}, 5, v{vT[0]}")
    a(f"v_lshl_add_u32 v{vE[4]}, v{vT[1]}, 4, v{vE[4]}")
    a(f"s_lshl_b32 s{sT}, s{sAb}, 1")
    a(f"s_add_u32 s{sT}, s{sT}, s{sWm}")
    a(f"s_mul_i32 s{sT}, s{sT}, 40")
    a(f"s_lshl_b32 s{sT2}, s{sEb}, 1")
    a(f"s_add_u32 s{sT2}, s{sT2}, s{sWn}")
    a(f"s_add_u32 s{sT}, s{sT}, s{sT2}")
    a(f"s_lshl_b32 s{sT}, s{sT}, 11")
    a(f"v_add_u32 v{vE[4]}, s{sT}, v{vE[4]}")
    a(f"v_add_u32 v{vE[5]}, 40960, v{vE[4]}")
    zero_acc()
    mainloop('f')
    a(f"s_cmp_lg_u32 s{sSig}, 0")
    a(f"s_cbranch_scc1 {L('fsg')}")
    signal("fsg")
    a.label(L("fsg"))
    a(f"v_mov_b32 v{vT[0]}, 1")
    a("s_mov_b64 exec, 1")
    a(f"ds_add_u32 v{vCtl}, v{vT[0]} offset:8")
    a("s_mov_b64 exec, -1")
    srd(a, sC, sWS, WL.G, WL.G_SIZE)
    a(f"s_mov_b32 s{sT2}, {64*40960}")
    for x in range(2):
        for w in range(2):
            acc = ACC[x][w]
            for i in range(8): a(f"v_cvt_pk_bf16_f32 v{acc+i}, v{acc+2*i}, v{acc+2*i+1}")
    a("s_waitcnt vmcnt(0)")
    for i in range(8):
        a(f"v_xor_b32 v{FRn+i}, 0x80008000, v{FR+i}")
        a(f"v_xor_b32 v{FIn+i}, 0x80008000, v{FIn+i}")
    a("s_nop 1")
    GP = 224
    m = lambda d, A, B, c: a(f"v_mfma_f32_32x32x16_bf16 {vr(d,16)}, {vr(A,4)}, {vr(B,4)}, {c}")
    G3 = [XF[0][0], WF[0][0]]
    for x in range(2):
        za, zb = ACC[x][0], ACC[x][1]
        g0, g1 = G2 if x == 0 else G3
        m(g0, za, FR, "0"); m(g0, za+4, FR+4, vr(g0,16)); m(g0, zb, FIn, vr(g0,16)); m(g0, zb+4, FIn+4, vr(g0,16))
        m(g1, zb, FRn, "0"); m(g1, zb+4, FRn+4, vr(g1,16)); m(g1, za, FIn, vr(g1,16)); m(g1, za+4, FIn+4, vr(g1,16))
    for x in range(2):
        for p in range(2):
            g = (G2 if x == 0 else G3)[p]
            dst = (GP if not stamps else 220) + 8 * (2 * x + p)
            if x == 1 and p == 1: a("s_nop 2")
            for i in range(8): a(f"v_cvt_pk_bf16_f32 v{dst+i}, v{g+2*i}, v{g+2*i+1}")
            for j in range(2):
                so = "0" if p == 0 else f"s{sT2}"
                a(f"buffer_store_dwordx4 {vr(dst+4*j,4)}, v{vE[4+x]}, s[{sC}:{sC+3}], {so} offen offset:{1024*j} sc1")
    a(f"s_lshl_b32 s{sT}, s{sEb}, 1")
    a(f"s_add_u32 s{sT}, s{sT}, s{sWn}")
    a(f"s_lshl_b32 s{sT}, s{sT}, 5")
    a(f"s_lshl_b32 s{sT2}, s{sAb}, 1")
    a(f"s_add_u32 s{sT}, s{sT}, s{sT2}")
    a(f"s_add_u32 s{sT}, s{sT}, s{sWm}")
    a(f"s_lshl_b32 s{sT}, s{sT}, 2")
    a(f"s_add_u32 s{sGF}, s{sT}, {WL.FG}")
    st.stamp("gst")
    a(f"s_branch {L('att')}")
    a.label(L("fskip"))
    signal("fsk2", fr=False)
    a.label(L("fsk2"))
    a(f"v_mov_b32 v{vT[0]}, 1")
    a("s_mov_b64 exec, 1")
    a(f"ds_add_u32 v{vCtl}, v{vT[0]} offset:8")
    a("s_mov_b64 exec, -1")

    a.label(L("att"))
    V = Alloc(VB, 256)
    vKm = V.get(); vKr = V.get(); vV0 = V.get(); vV1 = V.get(); vM = V.get(); vWo = V.get()
    Qm = [V.get(4, 4) for _ in range(2)]
    Qr = [V.get(2) for _ in range(2)]
    Km = [V.get(4, 4) for _ in range(4)]
    Kr = [V.get(2) for _ in range(4)]
    Vb = [[V.get(4, 4) for _ in range(2)] for _ in range(4)]
    P = V.get(8, 4)
    S = [V.get(16, 4) for _ in range(2)]
    O = [V.get(16, 4) for _ in range(2)]
    K0m = V.get(4, 4); K0r = V.get(2)
    GFl = V.get(2)
    vG = V.get(2); vO = V.get(); vSt = V.get(); vGd = V.get(); vGf = V.get(); vX0 = V.get(); vX1 = V.get()
    WsF = [V.get(4, 4) for _ in range(2)]
    att_hi = V.p
    assert att_hi <= 220
    sK = sA; sV = sB; sQ = sC; sWo = sD
    sHead = 98; sQb = 99; sKh = 100; sOK = 101; sOV = 14; sOWo = 15; sM0 = 3; sPar = sE; sHp = sE + 1; sStep = sE + 2; sU0 = sE + 3
    sCc = sHead; sEb8 = sQb
    a(f"s_and_b32 s{sT}, s{sJ}, 3")
    a(f"s_lshl_b32 s{sHead}, s{sXc}, 2")
    a(f"s_add_u32 s{sHead}, s{sHead}, s{sT}")
    a(f"s_lshr_b32 s{sQb}, s{sJ}, 2")
    a(f"s_lshr_b32 s{sKh}, s{sW}, 2")
    a(f"s_and_b32 s{sPar}, s{sHead}, 1")
    a(f"s_lshr_b32 s{sHp}, s{sHead}, 1")
    a(f"s_mul_i32 s{sHp}, s{sHp}, {5*WL.PL}")
    a(f"v_and_b32 v{vT[0]}, 31, v{vL}")
    a(f"v_lshrrev_b32 v{vT[1]}, 5, v{vL}")
    a(f"s_mul_i32 s{sT}, s{sPar}, {3*WL.PL}")
    a(f"v_lshlrev_b32 v{vKm}, 15, v{vT[1]}")
    a(f"v_lshl_add_u32 v{vKm}, v{vT[0]}, 4, v{vKm}")
    a(f"v_add_u32 v{vKm}, s{sT}, v{vKm}")
    a(f"s_lshl_b32 s{sT}, s{sPar}, 3")
    a(f"s_add_u32 s{sT}, s{sT}, {2*WL.PL}")
    a(f"v_lshl_add_u32 v{vKr}, v{vT[0]}, 4, s{sT}")
    a(f"v_and_b32 v{vT[2]}, 0x13, v{vT[0]}")
    a(f"v_bfe_u32 v{vT[3]}, v{vT[0]}, 2, 1")
    a(f"v_lshl_add_u32 v{vT[2]}, v{vT[3]}, 3, v{vT[2]}")
    a(f"v_bfe_u32 v{vT[3]}, v{vT[0]}, 3, 1")
    a(f"v_lshl_add_u32 v{vT[2]}, v{vT[3]}, 2, v{vT[2]}")
    a(f"s_lshl_b32 s{sT}, s{sPar}, 2")
    a(f"v_add_u32 v{vT[2]}, s{sT}, v{vT[2]}")
    a(f"v_subrev_u32 v{vT[3]}, 20, v{vT[2]}")
    a(f"v_min_u32 v{vT[2]}, v{vT[2]}, v{vT[3]}")
    a(f"s_mul_i32 s{sT}, s{sHead}, 320")
    a(f"v_mul_u32_u24 v{vV0}, 10240, v{vT[1]}")
    a(f"v_lshl_add_u32 v{vV0}, v{vT[2]}, 4, v{vV0}")
    a(f"v_add_u32 v{vV0}, s{sT}, v{vV0}")
    a(f"v_add_u32 v{vV1}, 20480, v{vV0}")
    a(f"s_add_u32 s{sT}, s{sHp}, {WL.KF}")
    srd(a, sK, sWS, f"s{sT}", 5 * WL.PL)
    srd(a, sV, sWS, WL.VF, 64 * WL.VT)
    a(f"s_add_u32 s{sT}, s{sHp}, {WL.QF}")
    srd(a, sQ, sWS, f"s{sT}", 5 * WL.PL)
    a(f"s_lshl_b32 s{sOK}, s{sKh}, 14")
    a(f"s_mul_i32 s{sOV}, s{sKh}, {32*WL.VT}")
    a(f"s_lshl_b32 s{sU0}, s{sQb}, 2")
    a(f"s_and_b32 s{sT}, s{sW}, 3")
    a(f"s_add_u32 s{sU0}, s{sU0}, s{sT}")
    a(f"s_lshl_b32 s{sU0}, s{sU0}, 10")
    for r in [K0r] + Kr:
        a(f"v_mov_b32 v{r}, 0x3f803f80")
        a(f"v_mov_b32 v{r+1}, 0x3f80")
    for q in range(2):
        a(f"v_mov_b32 v{Qr[q]}, 0"); a(f"v_mov_b32 v{Qr[q]+1}, 0")
    a(f"v_cmp_eq_u32 vcc, 20, v{vT[0]}")
    a(f"v_mov_b32 v{vT[2]}, 0x3f803f80")
    a(f"v_mov_b32 v{vT[3]}, 0")
    a(f"v_cndmask_b32 v{vT[2]}, v{vT[3]}, v{vT[2]}, vcc")
    for b in range(4):
        for j in range(2):
            for i in range(4): a(f"v_mov_b32 v{Vb[b][j]+i}, v{vT[2]}")
    spin_begin("wa")
    a(f"ds_read_b32 v{vT[0]}, v{vCtl}")
    a("s_waitcnt lgkmcnt(0)")
    a(f"v_readfirstlane_b32 s{sT}, v{vT[0]}")
    a("s_nop 1")
    a(f"s_cmp_lg_u32 s{sT}, 0")
    a(f"s_cbranch_scc1 {L('wad')}")
    spin_end("wa", 1)
    a.label(L("wad"))
    st.stamp("ardy")
    a(f"buffer_load_dwordx4 {vr(K0m,4)}, v{vKm}, s[{sK}:{sK+3}], 0 offen sc1")
    a(f"buffer_load_dwordx4 {vr(Qm[0],4)}, v{vKm}, s[{sQ}:{sQ+3}], s{sU0} offen sc1")
    a(f"buffer_load_dwordx4 {vr(Qm[1],4)}, v{vKm}, s[{sQ}:{sQ+3}], s{sU0} offen offset:512 sc1")
    a(f"s_mov_b64 exec, s[{sLo}:{sLo+1}]")
    a(f"buffer_load_dwordx2 {vr(K0r,2)}, v{vKr}, s[{sK}:{sK+3}], 0 offen sc1")
    a(f"buffer_load_dwordx2 {vr(Qr[0],2)}, v{vKr}, s[{sQ}:{sQ+3}], s{sU0} offen sc1")
    a(f"buffer_load_dwordx2 {vr(Qr[1],2)}, v{vKr}, s[{sQ}:{sQ+3}], s{sU0} offen offset:512 sc1")
    a(f"buffer_load_dwordx2 {vr(Kr[0],2)}, v{vKr}, s[{sK}:{sK+3}], s{sOK} offen sc1")
    a("s_mov_b64 exec, -1")
    a(f"buffer_load_dwordx4 {vr(Km[0],4)}, v{vKm}, s[{sK}:{sK+3}], s{sOK} offen sc1")
    def group(kb, vb, koff):
        a(f"s_mov_b64 exec, s[{sLo}:{sLo+1}]")
        a(f"buffer_load_dwordx2 {vr(Kr[kb],2)}, v{vKr}, s[{sK}:{sK+3}], s{sOK} offen offset:{koff} sc1")
        a(f"s_mov_b64 exec, s[{sVm}:{sVm+1}]")
        a(f"buffer_load_dwordx4 {vr(Vb[vb][0],4)}, v{vV0}, s[{sV}:{sV+3}], s{sOV} offen sc1")
        a(f"buffer_load_dwordx4 {vr(Vb[vb][1],4)}, v{vV1}, s[{sV}:{sV+3}], s{sOV} offen sc1")
        a("s_mov_b64 exec, -1")
        a(f"buffer_load_dwordx4 {vr(Km[kb],4)}, v{vKm}, s[{sK}:{sK+3}], s{sOK} offen offset:{koff} sc1")
        a(f"s_add_u32 s{sOV}, s{sOV}, {WL.VT}")
    for g in range(3): group(g + 1, g, 512 * (g + 1))
    for q in range(2):
        for i in range(16): a(f"v_mov_b32 v{O[q]+i}, 0")
    for i in range(8): a(f"v_mov_b32 v{P+i}, 0")
    a(f"v_mul_u32_u24 v{vT[2]}, 205, v{vL}")
    a(f"v_lshrrev_b32 v{vT[2]}, 11, v{vT[2]}")
    a(f"v_mul_u32_u24 v{vWo}, {1280-160}, v{vT[2]}")
    a(f"v_lshl_add_u32 v{vWo}, v{vL}, 4, v{vWo}")
    a(f"s_mul_i32 s{sT}, s{sEb8}, 160")
    a(f"v_add_u32 v{vWo}, s{sT}, v{vWo}")
    a(f"v_mul_u32_u24 v{vT[3]}, 10, v{vT[2]}")
    a(f"v_sub_u32 v{vT[3]}, v{vL}, v{vT[3]}")
    a(f"v_mul_u32_u24 v{vGd}, 40960, v{vT[2]}")
    a(f"v_lshrrev_b32 v{vT[2]}, 1, v{vT[3]}")
    a(f"v_lshl_add_u32 v{vGd}, v{vT[2]}, 10, v{vGd}")
    a(f"v_and_b32 v{vT[3]}, 1, v{vT[3]}")
    a(f"v_lshl_add_u32 v{vGd}, v{vT[3]}, 4, v{vGd}")
    a(f"s_mul_i32 s{sT}, s{sEb8}, 5120")
    a(f"s_lshl_b32 s{sT2}, s{sCc}, 5")
    a(f"s_add_u32 s{sT}, s{sT}, s{sT2}")
    a(f"v_add_u32 v{vGd}, s{sT}, v{vGd}")
    a(f"s_mul_i32 s{sOWo}, s{sW}, {4*1280}")
    a(f"s_mov_b32 s{sStep}, {32*1280}")
    a(f"s_and_b32 s{sT}, s{sW}, 1")
    a(f"s_lshl_b32 s{sT}, s{sT}, 4")
    a(f"s_lshr_b32 s{sT2}, s{sW}, 1")
    a(f"s_lshl_b32 s{sT2}, s{sT2}, 2")
    a(f"s_add_u32 s{sT}, s{sT}, s{sT2}")
    a(f"s_mul_i32 s{sM0}, s{sT}, 160")
    a(f"s_mul_i32 s{sT}, s{sEb8}, 5")
    a(f"s_lshr_b32 s{sT}, s{sT}, 1")
    a(f"s_lshl_b32 s{sT}, s{sT}, 7")
    a(f"s_add_u32 s{sT}, s{sT}, {WL.FG}")
    a(f"v_min_u32 v{vGf}, 47, v{vL}")
    a(f"v_lshl_add_u32 v{vGf}, v{vGf}, 3, s{sT}")
    a(f"s_mul_i32 s{sT}, s{sW}, 3072")
    a(f"s_add_u32 s{sT}, s{sT}, {LDS_X}")
    a(f"v_lshl_add_u32 v{vX0}, v{vL}, 4, s{sT}")
    a(f"s_xor_b32 s{sT}, s{sW}, 4")
    a(f"s_mul_i32 s{sT}, s{sT}, 3072")
    a(f"s_add_u32 s{sT}, s{sT}, {LDS_X}")
    a(f"v_lshl_add_u32 v{vX1}, v{vL}, 4, s{sT}")
    a(f"v_and_b32 v{vT[0]}, 15, v{vL}")
    a(f"v_lshrrev_b32 v{vT[1]}, 4, v{vL}")
    a(f"s_and_b32 s{sT}, s{sW}, 3")
    a(f"s_lshl_b32 s{sT}, s{sT}, 4")
    a(f"v_add_u32 v{vT[0]}, s{sT}, v{vT[0]}")
    a(f"s_lshl_b32 s{sT}, s{sCc}, 6")
    a(f"v_add_u32 v{vT[2]}, s{sT}, v{vT[0]}")
    a(f"v_lshl_add_u32 v{vT[0]}, v{vT[0]}, 5, s{sCc}")
    a(f"v_lshlrev_b32 v{vT[3]}, 12, v{vT[0]}")
    a(f"v_lshl_add_u32 v{vT[3]}, v{vT[1]}, 4, v{vT[3]}")
    a(f"s_cmp_eq_u32 s{sKh}, 0")
    a(f"s_cselect_b32 s{sD}, s6, s8")
    a(f"s_cselect_b32 s{sD+1}, s7, s9")
    a(f"s_and_b32 s{sD+1}, s{sD+1}, 0xffff")
    a(f"s_mov_b32 s{sD+2}, {2048*4096}")
    a(f"s_mov_b32 s{sD+3}, 0x20000")
    a(f"buffer_load_dwordx4 {vr(WsF[0],4)}, v{vT[3]}, s[{sD}:{sD+3}], 0 offen")
    a(f"buffer_load_dwordx4 {vr(WsF[1],4)}, v{vT[3]}, s[{sD}:{sD+3}], 0 offen offset:64")
    srd(a, sD, sWS, WL.GATE, 2048 * 8)
    a(f"v_lshlrev_b32 v{vT[3]}, 3, v{vT[2]}")
    a(f"buffer_load_dwordx2 {vr(vG,2)}, v{vT[3]}, s[{sD}:{sD+3}], 0 offen sc1")
    a(f"v_lshlrev_b32 v{vO}, 4, v{vT[2]}")
    a(f"v_lshl_add_u32 v{vO}, v{vT[1]}, 15, v{vO}")
    a(f"v_mul_u32_u24 v{vSt}, 1280, v{vT[0]}")
    a(f"v_lshl_add_u32 v{vSt}, v{vT[1]}, 3, v{vSt}")
    a(f"s_mul_i32 s{sT}, s{sEb8}, 160")
    a(f"v_add_u32 v{vSt}, s{sT}, v{vSt}")
    srd(a, sWo, 18, 0, 640 * 1280)
    a("s_waitcnt vmcnt(17)")
    st.stamp("qld")
    for q in range(2):
        a(f"v_mfma_f32_32x32x16_bf16 {vr(S[q],16)}, {vr(K0m,4)}, {vr(Qm[q],4)}, 0")
    a(f"s_add_u32 s{sT}, s{sHp}, {WL.OF}")
    srd(a, sQ, sWS, f"s{sT}", 5 * WL.PL)
    a("s_nop 3")
    for q in range(2):
        a(f"v_mfma_f32_32x32x8_bf16 {vr(S[q],16)}, {vr(K0r,2)}, {vr(Qr[q],2)}, {vr(S[q],16)}")
    a("s_nop 11")
    for q in range(2):
        a(f"v_max3_f32 v{S[q]}, v{S[q]}, v{S[q]+1}, v{S[q]+2}")
        for i in range(3, 15, 2):
            a(f"v_max3_f32 v{S[q]}, v{S[q]}, v{S[q]+i}, v{S[q]+i+1}")
        a(f"v_max_f32 v{S[q]}, v{S[q]}, v{S[q]+15}")
    a(f"s_mov_b64 exec, s[{sHi}:{sHi+1}]")
    for q in range(2):
        a(f"v_cvt_pk_bf16_f32 v{Qr[q]}, -v{S[q]}, 0")
    a("s_mov_b64 exec, -1")
    a("s_waitcnt vmcnt(15)")
    a("s_nop 1")
    a(f"v_mfma_f32_32x32x16_bf16 {vr(S[0],16)}, {vr(Km[0],4)}, {vr(Qm[0],4)}, 0")
    a("s_nop 9")
    a(f"v_mfma_f32_32x32x8_bf16 {vr(S[0],16)}, {vr(Kr[0],2)}, {vr(Qr[0],2)}, {vr(S[0],16)}")
    a(f"s_mov_b32 s{sCnt}, 8")
    a("s_mov_b64 vcc, 0")
    a("s_setprio 3")
    st.stamp("lbeg")
    a("s_nop 1")
    def exp(q, i): a(f"v_exp_f32 v{S[q]+i}, v{S[q]+i}")
    def cvt(q, i): a(f"v_cvt_pk_bf16_f32 v{P+i}, v{S[q]+2*i}, v{S[q]+2*i+1}")
    def slot(kt, q):
        nq = 1 - q
        nk = (kt + q) % 4
        pk = (kt + q - 1) % 4
        a(f"v_mfma_f32_32x32x16_bf16 {vr(S[nq],16)}, {vr(Km[nk],4)}, {vr(Qm[nq],4)}, 0")
        for i in range(0, 4): exp(q, i)
        a(f"v_mfma_f32_32x32x16_bf16 {vr(O[nq],16)}, {vr(Vb[pk][1],4)}, {vr(P+4,4)}, {vr(O[nq],16)}")
        for i in range(4, 8): exp(q, i)
        cvt(q, 0)
        a(f"v_mfma_f32_32x32x8_bf16 {vr(S[nq],16)}, {vr(Kr[nk],2)}, {vr(Qr[nq],2)}, {vr(S[nq],16)}")
        if q == 0:
            group(kt, (kt - 1) % 4, 512 * (kt + 4))
            if kt == 0:
                a(f"s_cmp_eq_u32 s{sCnt}, 0")
                a(f"s_cselect_b32 s{sV+2}, 0, s{sV+2}")
        else:
            a(f"s_cbranch_vccz {L('nd%d' % kt)}")
            a(f"s_mov_b32 m0, s{sM0}")
            a(f"s_mov_b64 exec, s[{sM40}:{sM40+1}]")
            a(f"buffer_load_dwordx4 v{vWo}, s[{sWo}:{sWo+3}], s{sOWo} offen sc1 lds")
            a("s_mov_b64 exec, -1")
            a(f"s_add_u32 s{sM0}, s{sM0}, 5120")
            a(f"s_add_u32 s{sOWo}, s{sOWo}, s{sStep}")
            a.label(L("nd%d" % kt))
        for i in range(1, 4): cvt(q, i)
        for i in range(8, 12): exp(q, i)
        if q == 0: a("s_waitcnt vmcnt(12)")
        a(f"v_mfma_f32_32x32x16_bf16 {vr(O[q],16)}, {vr(Vb[kt][0],4)}, {vr(P,4)}, {vr(O[q],16)}")
        for i in range(12, 16): exp(q, i)
        for i in range(4, 8): cvt(q, i)
    a.label(L("head"))
    a(f"s_sub_u32 s{sCnt}, s{sCnt}, 1")
    a(f"s_cmp_eq_u32 s{sCnt}, 5")
    a(f"s_cbranch_scc1 {L('h5')}")
    for lvl, c in zip((2, 1, 0), prio):
        a(f"s_cmp_lg_u32 s{sCnt}, {c-1}")
        a(f"s_cbranch_scc1 {L('hp%d' % lvl)}")
        a(f"s_setprio {lvl}")
        a.label(L("hp%d" % lvl))
    a(f"s_cmp_gt_u32 s{sCnt}, 1")
    a(f"s_cbranch_scc1 {L('loop')}")
    a(f"s_cmp_eq_u32 s{sCnt}, 0")
    a(f"s_cbranch_scc1 {L('h0')}")
    a(f"buffer_load_dwordx2 {vr(GFl,2)}, v{vGf}, s[{sFl}:{sFl+3}], 0 offen sc1")
    a(f"s_branch {L('loop')}")
    a.label(L("h5"))
    a(f"s_cmp_eq_u32 s{sGF}, 0")
    a(f"s_cbranch_scc1 {L('h5b')}")
    put_flag(f"s{sGF}")
    a.label(L("h5b"))
    spin_begin("wr")
    a(f"ds_read_b32 v{vT[0]}, v{vCtl} offset:8")
    a("s_waitcnt lgkmcnt(0)")
    a(f"v_readfirstlane_b32 s{sT}, v{vT[0]}")
    a("s_nop 1")
    a(f"s_cmp_eq_u32 s{sT}, 4")
    a(f"s_cbranch_scc1 {L('wrd')}")
    spin_end("wr", 1)
    a.label(L("wrd"))
    a("s_mov_b64 vcc, -1")
    a(f"s_branch {L('loop')}")
    a.label(L("h0"))
    a(f"s_mov_b32 s{sK+2}, 0")
    spin_begin("pg")
    a(f"v_xor_b32 v{vT[2]}, s{sNonce}, v{GFl}")
    a(f"v_xor_b32 v{vT[3]}, s{sNonce}, v{GFl+1}")
    a(f"v_or_b32 v{vT[2]}, v{vT[2]}, v{vT[3]}")
    a(f"v_cmp_ne_u32 vcc, 0, v{vT[2]}")
    a("s_nop 1")
    a("s_cmp_eq_u64 vcc, 0")
    a(f"s_cbranch_scc1 {L('pgd')}")
    a(f"buffer_load_dwordx2 {vr(GFl,2)}, v{vGf}, s[{sFl}:{sFl+3}], 0 offen sc1")
    a("s_waitcnt vmcnt(0)")
    spin_end("pg")
    a.label(L("pgd"))
    a("s_mov_b64 vcc, -1")
    srd(a, sWo, sWS, WL.G, WL.G_SIZE)
    a(f"v_mov_b32 v{vWo}, v{vGd}")
    a(f"s_mul_i32 s{sOWo}, s{sW}, {4*40960}")
    a(f"s_mov_b32 s{sStep}, {32*40960}")
    a.raw(".p2align 6")
    a.label(L("loop"))
    for kt in range(4):
        for q in range(2): slot(kt, q)
    a(f"s_add_u32 s{sOK}, s{sOK}, 2048")
    a(f"s_cmp_lg_u32 s{sCnt}, 0")
    a(f"s_cbranch_scc1 {L('head')}")
    a(f"v_mfma_f32_32x32x16_bf16 {vr(O[1],16)}, {vr(Vb[3][1],4)}, {vr(P+4,4)}, {vr(O[1],16)}")
    a("s_setprio 3")
    st.stamp("lend")
    a(f"s_lshr_b32 s{sOWo}, s{sU0}, 9")
    a(f"s_add_u32 s{sOWo}, s{sOWo}, s{sKh}")
    a(f"s_lshl_b32 s{sOWo}, s{sOWo}, 5")
    a(f"s_add_u32 s{sOWo}, s{sOWo}, s{sHead}")
    a(f"s_lshl_b32 s{sOWo}, s{sOWo}, 7")
    a(f"s_add_u32 s{sOWo}, s{sOWo}, {WL.FO}")
    a(f"s_lshl_b32 s{sT}, s{sKh}, 9")
    a(f"s_add_u32 s{sOK}, s{sU0}, s{sT}")
    a("s_nop 1")
    a(f"s_cmp_eq_u32 s{sKh}, 0")
    a(f"s_cbranch_scc1 {L('x0')}")
    for r in range(3): a(f"ds_write_b128 v{vX0}, {vr(O[0]+4*r,4)} offset:{1024*r}")
    a("s_waitcnt lgkmcnt(0)")
    for i in range(12): a(f"v_mov_b32 v{O[0]+i}, v{O[1]+i}")
    for i in range(4): a(f"v_mov_b32 v{Qm[0]+i}, v{Qm[1]+i}")
    for i in range(2): a(f"v_mov_b32 v{Qr[0]+i}, v{Qr[1]+i}")
    a(f"s_branch {L('x1')}")
    a.label(L("x0"))
    for r in range(3): a(f"ds_write_b128 v{vX0}, {vr(O[1]+4*r,4)} offset:{1024*r}")
    a.label(L("x1"))
    a("s_waitcnt vmcnt(0) lgkmcnt(0)")
    a("s_barrier")
    st.stamp("x1")
    for r in range(3): a(f"ds_read_b128 {vr(S[0]+4*r,4)}, v{vX1} offset:{1024*r}")
    a("s_waitcnt lgkmcnt(0)")
    for i in range(12): a(f"v_add_f32 v{O[0]+i}, v{O[0]+i}, v{S[0]+i}")
    def bcast_l():
        a(f"v_mov_b32 v{O[0]+12}, v{O[0]+8}")
        a(f"v_mov_b32 v{O[0]+13}, v{O[0]+8}")
        a("s_nop 1")
        a(f"v_permlane32_swap_b32 v{O[0]+13}, v{O[0]+12}")
        a("s_nop 1")
    bcast_l()
    a(f"v_mul_f32 v{vM}, 0, v{O[0]}")
    for i in range(1, 12): a(f"v_fmac_f32 v{vM}, 0, v{O[0]+i}")
    a(f"v_add_f32 v{vM}, v{vM}, v{O[0]+12}")
    a(f"v_cmp_nge_f32 vcc, 0x71800000, v{vM}")
    a(f"s_mov_b32 s{sT}, 0x21800000")
    a(f"v_cmp_gt_f32 s[{sT2+1}:{sT2+2}], s{sT}, v{vM}")
    a("s_nop 1")
    a(f"s_or_b64 vcc, vcc, s[{sT2+1}:{sT2+2}]")
    a(f"s_cbranch_scc1 {L('slow')}")
    a.label(L("fin"))
    a(f"v_rcp_f32 v{vM}, v{O[0]+12}")
    a("s_nop 0")
    for i in range(12): a(f"v_mul_f32 v{O[0]+i}, v{O[0]+i}, v{vM}")
    PO = K0m
    assert K0r == K0m + 4 and GFl == K0m + 6
    for i in range(6): a(f"v_cvt_pk_bf16_f32 v{PO+i}, v{O[0]+2*i}, v{O[0]+2*i+1}")
    a(f"buffer_store_dwordx4 {vr(PO,4)}, v{vKm}, s[{sQ}:{sQ+3}], s{sOK} offen sc1")
    a(f"s_mov_b64 exec, s[{sLo}:{sLo+1}]")
    a(f"buffer_store_dwordx2 {vr(PO+4,2)}, v{vKr}, s[{sQ}:{sQ+3}], s{sOK} offen sc1")
    a("s_mov_b64 exec, -1")
    st.stamp("ost")

    V = Alloc(VB, 256)
    vR = V.get(); vR2 = V.get()
    NPRE = 7
    AF = [[V.get(4, 4) for _ in range(5)] for _ in range(NPRE)]
    AY4 = V.get(4, 4)
    assert V.p <= PO, (V.p, PO)
    V.p = att_hi
    AY = [V.get(4, 4) for _ in range(4)] + [AY4]
    AB = [V.get(4, 4) for _ in range(4)] + [PO]
    OFr = [V.get(4, 4) for _ in range(10)]
    vmax = V.hi
    a(f"v_lshrrev_b32 v{vT[0]}, 2, v{vL}")
    a(f"v_mul_u32_u24 v{vT[0]}, 160, v{vT[0]}")
    a(f"v_and_b32 v{vT[1]}, 3, v{vL}")
    a(f"v_lshl_add_u32 v{vR}, v{vT[1]}, 3, v{vT[0]}")
    a(f"s_mul_i32 s{sT}, s{sKh}, {2*5120}")
    a(f"s_add_u32 s{sT}, s{sT}, {20*5120}")
    a(f"v_add_u32 v{vR2}, s{sT}, v{vR}")
    a(f"s_mul_i32 s{sT}, s{sKh}, {10*5120}")
    a(f"v_add_u32 v{vR}, s{sT}, v{vR}")
    def rd(dst, base, off):
        for t in range(5):
            a(f"ds_read_b64_tr_b16 {vr(dst[t],2)}, v{base} offset:{off + 32*t}")
            a(f"ds_read_b64_tr_b16 {vr(dst[t]+2,2)}, v{base} offset:{off + 32*t + 2560}")
    rd(AF[NPRE-2], vR2, 0); rd(AF[NPRE-1], vR2, 5120)
    for s in range(2): rd(AF[s], vR, 5120 * s)
    a("s_waitcnt vmcnt(0)")
    put_flag(f"s{sOWo}")
    st.stamp("oflag")
    for s in range(2, NPRE - 2): rd(AF[s], vR, 5120 * s)
    a("s_waitcnt lgkmcnt(%d)" % (0 if stamps else 15))
    for s in range(2):
        for t in range(5):
            c = "0" if s == 0 else vr(AY[t], 4)
            a(f"v_mfma_f32_16x16x32_bf16 {vr(AY[t],4)}, {vr(AF[NPRE-2+s][t],4)}, {vr(WsF[s],4)}, {c}")
    for s in range(NPRE - 2, NPRE): rd(AF[s], vR, 5120 * s)
    srd(a, sA, sWS, WL.OF, 80 * WL.PL)
    srd(a, sC, 22, 0, 2048 * 1280)
    a(f"s_lshl_b32 s{sT}, s{sCc}, 1")
    a(f"s_bfe_u32 s{sT2}, s{sW}, 0x10001")
    a(f"s_add_u32 s{sT}, s{sT}, s{sT2}")
    a(f"s_lshl_b32 s{sT}, s{sT}, 1")
    a(f"s_add_u32 s{sT}, s{sT}, s{sKh}")
    a(f"s_lshl_b32 s{sT2}, s{sT}, 11")
    a(f"s_add_u32 s{sT2}, s{sT2}, {WL.FO}")
    a(f"v_and_b32 v{vT[0]}, 15, v{vL}")
    a(f"v_lshlrev_b32 v{vT[0]}, 7, v{vT[0]}")
    st.stamp("pbeg")
    spin_begin("po")
    a(f"buffer_load_dword v{vT[2]}, v{vT[0]}, s[{sFl}:{sFl+3}], s{sT2} offen sc1")
    a("s_waitcnt vmcnt(0)")
    a(f"v_cmp_ne_u32 vcc, s{sNonce}, v{vT[2]}")
    a("s_nop 1")
    a("s_cmp_eq_u64 vcc, 0")
    a(f"s_cbranch_scc1 {L('pod')}")
    spin_end("po", 1)
    a.label(L("pod"))
    st.stamp("pend")
    a(f"s_mul_i32 s{sT}, s{sKh}, {40*WL.PL}")
    for s in range(10):
        a(f"buffer_load_dwordx4 {vr(OFr[s],4)}, v{vO}, s[{sA}:{sA+3}], s{sT} offen sc1")
        if s < 9: a(f"s_add_u32 s{sT}, s{sT}, {4*WL.PL}")
    for t in range(5):
        for i in range(4): a(f"v_mul_f32 v{AY[t]+i}, v{AY[t]+i}, v{vG}")
    a("s_waitcnt lgkmcnt(0)")
    for s in range(10):
        a(f"s_waitcnt vmcnt({9-s})" + (f" lgkmcnt({min(15, 10*(9-s))})" if s >= NPRE else ""))
        for t in range(5):
            c = "0" if s == 0 else vr(AB[t], 4)
            a(f"v_mfma_f32_16x16x32_bf16 {vr(AB[t],4)}, {vr(AF[s % NPRE][t],4)}, {vr(OFr[s],4)}, {c}")
        if s + NPRE < 10: rd(AF[s], vR, 5120 * (s + NPRE))
    st.stamp("dmf")
    a("s_nop 7")
    for t in range(5):
        for i in range(4): a(f"v_fmac_f32 v{AY[t]+i}, v{AB[t]+i}, v{vG+1}")
    if probe:
        a("s_memrealtime s[72:73]")
        a("s_waitcnt lgkmcnt(0)")
        a("s_sub_u32 s72, s72, s70")
        a(f"s_cmp_lt_u32 s72, {probe}")
        a(f"s_cbranch_scc1 {L('prb')}")
        for t in range(5): a(f"v_mov_b32 v{AY[t]}, 0x7fc00000")
        a.label(L("prb"))
    def dfin(keep, send):
        for r, t in enumerate(send): a(f"ds_write_b128 v{vX1}, {vr(AY[t],4)} offset:{1024*r}")
        a("s_waitcnt lgkmcnt(0)")
        a("s_barrier")
        for r, t in enumerate(keep): a(f"ds_read_b128 {vr(AB[t],4)}, v{vX0} offset:{1024*r}")
        for r, t in enumerate(keep):
            a(f"s_waitcnt lgkmcnt({len(keep)-1-r})")
            for i in range(4): a(f"v_add_f32 v{AY[t]+i}, v{AY[t]+i}, v{AB[t]+i}")
            a(f"v_cvt_pk_bf16_f32 v{AY[t]}, v{AY[t]}, v{AY[t]+1}")
            a(f"v_cvt_pk_bf16_f32 v{AY[t]+1}, v{AY[t]+2}, v{AY[t]+3}")
            a(f"buffer_store_dwordx2 {vr(AY[t],2)}, v{vSt}, s[{sC}:{sC+3}], 0 offen offset:{32*t}")
    a(f"s_cmp_eq_u32 s{sKh}, 0")
    a(f"s_cbranch_scc1 {L('d0')}")
    dfin([3, 4], [0, 1, 2])
    a(f"s_branch {L('dend')}")
    a.label(L("d0"))
    dfin([0, 1, 2], [3, 4])
    a.label(L("dend"))
    a(f"s_lshl_b32 s{sT}, s2, 3")
    a(f"s_add_u32 s{sT}, s{sT}, s{sW}")
    a(f"s_cmp_lg_u32 s{sT}, 4")
    a(f"s_cbranch_scc1 {L('ed')}")
    a(f"v_lshlrev_b32 v{vT[0]}, 9, v{vL}")
    a(f"s_mov_b32 s{sT2}, {WL.FA}")
    spin_begin("pe")
    for i in range(4): a(f"buffer_load_dword v{vT[2]+i}, v{vT[0]}, s[{sFl}:{sFl+3}], s{sT2} offen offset:{128*i} sc1")
    a("s_waitcnt vmcnt(0)")
    for i in range(4): a(f"v_xor_b32 v{vT[2]+i}, s{sNonce}, v{vT[2]+i}")
    a(f"v_or3_b32 v{vT[2]}, v{vT[2]}, v{vT[3]}, v{vT[4]}")
    a(f"v_or_b32 v{vT[2]}, v{vT[2]}, v{vT[5]}")
    a(f"v_cmp_ne_u32 vcc, 0, v{vT[2]}")
    a("s_nop 1")
    a("s_cmp_eq_u64 vcc, 0")
    a(f"s_cbranch_scc1 {L('ped')}")
    spin_end("pe")
    a.label(L("ped"))
    put_flag("0")
    a.label(L("ed"))
    st.finish(9)
    a.label(L("end"))
    a("s_endpgm")

    a.label(L("slow"))
    sSK = sT2 + 1; sSV = sT2 + 2
    a("s_waitcnt vmcnt(0)")
    a(f"s_mov_b32 s{sK+2}, {5*WL.PL}")
    a(f"s_mov_b32 s{sV+2}, {64*WL.VT}")
    a(f"s_mov_b64 exec, s[{sHi}:{sHi+1}]")
    a(f"v_mov_b32 v{Qr[0]}, 0")
    a(f"v_mov_b32 v{Qr[0]+1}, 0")
    a("s_mov_b64 exec, -1")
    a(f"v_mov_b32 v{vM}, 0xff800000")
    a(f"s_mov_b32 s{sSK}, 0")
    def qk_slow():
        a(f"s_mov_b64 exec, s[{sLo}:{sLo+1}]")
        a(f"buffer_load_dwordx2 {vr(Kr[0],2)}, v{vKr}, s[{sK}:{sK+3}], s{sSK} offen sc1")
        a("s_mov_b64 exec, -1")
        a(f"buffer_load_dwordx4 {vr(Km[0],4)}, v{vKm}, s[{sK}:{sK+3}], s{sSK} offen sc1")
        a("s_waitcnt vmcnt(0)")
        a(f"v_mfma_f32_32x32x16_bf16 {vr(S[0],16)}, {vr(Km[0],4)}, {vr(Qm[0],4)}, 0")
        a("s_nop 11")
        a(f"v_mfma_f32_32x32x8_bf16 {vr(S[0],16)}, {vr(Kr[0],2)}, {vr(Qr[0],2)}, {vr(S[0],16)}")
        a("s_nop 12")
    a.label(L("s1"))
    qk_slow()
    for i in range(0, 16, 2):
        a(f"v_max3_f32 v{vM}, v{vM}, v{S[0]+i}, v{S[0]+i+1}")
    a(f"s_add_u32 s{sSK}, s{sSK}, 512")
    a(f"s_cmp_lt_u32 s{sSK}, {WL.PL}")
    a(f"s_cbranch_scc1 {L('s1')}")
    a(f"v_mov_b32 v{vT[0]}, v{vM}")
    a("s_nop 1")
    a(f"v_permlane32_swap_b32 v{vT[0]}, v{vM}")
    a("s_nop 1")
    a(f"v_max_f32 v{vM}, v{vM}, v{vT[0]}")
    a(f"v_cvt_pk_bf16_f32 v{S[0]}, 0, -v{vM}")
    a(f"v_sub_f32 v{vT[0]}, 0, v{vM}")
    a(f"v_sub_f32 v{vT[0]}, v{vT[0]}, v{S[0]}")
    a(f"v_cvt_pk_bf16_f32 v{S[0]+1}, 0, v{vT[0]}")
    a(f"v_sub_f32 v{vT[1]}, v{vT[0]}, v{S[0]+1}")
    a(f"s_mov_b64 exec, s[{sHi}:{sHi+1}]")
    a(f"v_cvt_pk_bf16_f32 v{Qr[0]}, v{S[0]}, v{S[0]+1}")
    a(f"v_cvt_pk_bf16_f32 v{Qr[0]+1}, v{vT[1]}, 0")
    a("s_mov_b64 exec, -1")
    for i in range(16): a(f"v_mov_b32 v{O[0]+i}, 0")
    a(f"s_mov_b32 s{sSK}, 0")
    a(f"s_mov_b32 s{sSV}, 0")
    a.label(L("s2"))
    a(f"s_mov_b64 exec, s[{sVm}:{sVm+1}]")
    a(f"buffer_load_dwordx4 {vr(Vb[0][0],4)}, v{vV0}, s[{sV}:{sV+3}], s{sSV} offen sc1")
    a(f"buffer_load_dwordx4 {vr(Vb[0][1],4)}, v{vV1}, s[{sV}:{sV+3}], s{sSV} offen sc1")
    qk_slow()
    for i in range(16): exp(0, i)
    a("s_nop 0")
    for i in range(8): cvt(0, i)
    a("s_nop 1")
    a(f"v_mfma_f32_32x32x16_bf16 {vr(O[0],16)}, {vr(Vb[0][0],4)}, {vr(P,4)}, {vr(O[0],16)}")
    a(f"v_mfma_f32_32x32x16_bf16 {vr(O[0],16)}, {vr(Vb[0][1],4)}, {vr(P+4,4)}, {vr(O[0],16)}")
    a(f"s_add_u32 s{sSK}, s{sSK}, 512")
    a(f"s_add_u32 s{sSV}, s{sSV}, {WL.VT}")
    a(f"s_cmp_lt_u32 s{sSK}, {WL.PL}")
    a(f"s_cbranch_scc1 {L('s2')}")
    a("s_nop 12")
    bcast_l()
    a(f"s_branch {L('fin')}")
    assert vmax <= (252 if stamps else 256), vmax
    return a.text(), kernel_desc(name, 256, 102), f"; @launch grid=(256,1,1) block=(512,1,1) lds={LDS_SIZE}"

if __name__ == "__main__":
    import sys
    from gen import build
    path = sys.argv[1]
    sn = [x[3:].split(',') for x in sys.argv if x.startswith('sn=')]
    kw = {x.split('=')[0]: eval(x.split('=')[1]) for x in sys.argv[2:] if not x.startswith('sn=')}
    build(path, [gen(stamps=bool(sn), snames=sn[0] if sn else (), **kw)])
```

```python
class Asm:
    def __init__(self):
        self.lines = []
    def __call__(self, s, *a):
        for l in s.split("\n"):
            l = l.strip()
            if l:
                self.lines.append("    " + l)
    def label(self, n):
        self.lines.append(n + ":")
    def raw(self, s):
        self.lines.append(s)
    def c(self, s):
        self.lines.append("    ; " + s)
    def text(self):
        return "\n".join(self.lines) + "\n"

class Alloc:
    def __init__(self, start, limit):
        self.p = start; self.limit = limit; self.hi = start
    def get(self, n=1, align=1):
        if n >= 2 and align < 2: align = 2
        self.p = (self.p + align - 1) // align * align
        r = self.p; self.p += n
        assert self.p <= self.limit, "out of regs"
        self.hi = max(self.hi, self.p)
        return r

def vr(b, n=1):
    return f"v{b}" if n == 1 else f"v[{b}:{b+n-1}]"
def sr(b, n=1):
    return f"s{b}" if n == 1 else f"s[{b}:{b+n-1}]"

def kernel_begin(a, name):
    a.raw(".text")
    a.raw(f".globl {name}")
    a.raw(".p2align 8")
    a.raw(f".type {name},@function")
    a.label(name)

def kernel_desc(name, vgpr, sgpr=96):
    vg = (vgpr + 7) // 8 * 8
    return f""".section .rodata,"a"
.p2align 6
.amdhsa_kernel {name}
  .amdhsa_next_free_vgpr {vg}
  .amdhsa_next_free_sgpr {sgpr}
  .amdhsa_accum_offset {min(256, vg)}
  .amdhsa_group_segment_fixed_size 0
  .amdhsa_kernarg_size 96
  .amdhsa_user_sgpr_count 2
  .amdhsa_user_sgpr_kernarg_segment_ptr 1
  .amdhsa_system_sgpr_workgroup_id_x 1
.end_amdhsa_kernel
"""

def srd(a, d, base, off, nbytes):
    if off == 0:
        a(f"s_mov_b32 s{d}, s{base}")
        a(f"s_and_b32 s{d+1}, s{base+1}, 0xffff")
    else:
        a(f"s_add_u32 s{d}, s{base}, {off if isinstance(off,str) else hex(off)}")
        a(f"s_addc_u32 s{d+1}, s{base+1}, 0")
        a(f"s_and_b32 s{d+1}, s{d+1}, 0xffff")
    a(f"s_mov_b32 s{d+2}, {nbytes if isinstance(nbytes,str) else hex(nbytes)}")
    a(f"s_mov_b32 s{d+3}, 0x20000")

QF_OFF = 0
QF_HS = 64 * 1280
QF_SIZE = 32 * QF_HS
KV_OFF = QF_OFF + QF_SIZE
KV_HS = 64 * 2560
KV_SIZE = 32 * KV_HS
G_OFF = KV_OFF + KV_SIZE
G_SIZE = 32 * 2 * 64 * 1280
OF_OFF = G_OFF + G_SIZE
OF_SIZE = 80 * 2048 * 16
GATE_OFF = OF_OFF + OF_SIZE
GATE_SIZE = 2048 * 8
KA_X, KA_WSRE, KA_WSIM, KA_WDRE, KA_WDIM, KA_BX, KA_WQKV, KA_WO, KA_GW, KA_OUT, KA_DBG, KA_WS = [8*i for i in range(12)]

STAMP_OFF = 1 << 27
class Stamps:
    def __init__(self, a, on, kidx):
        self.a = a; self.on = on; self.kidx = kidx; self.names = []; self.op = 's_memtime'
    def start(self):
        if not self.on: return
        a = self.a
        for i in range(70, 94): a(f"s_mov_b32 s{i}, 0")
        a("s_memrealtime s[70:71]")
        a(f"{self.op} s[74:75]")
        a("s_load_dwordx2 s[68:69], s[0:1], 88")
        a("v_mov_b32 v255, v0")
        a("s_mov_b32 s67, s2")
    def stamp(self, i):
        if not self.on: return
        if isinstance(i, str):
            if i not in self.names: return
            i = self.names.index(i) + 1
        self.a(f"{self.op} s[{74+2*i}:{75+2*i}]")
    def finish(self, i):
        if not self.on: return
        a = self.a
        a("s_mov_b64 exec, -1")
        a("s_waitcnt vmcnt(0)")
        a(f"{self.op} s[{74+2*i}:{75+2*i}]")
        a("s_memrealtime s[72:73]")
        a("s_waitcnt lgkmcnt(0)")
        a(f"s_add_u32 s64, s68, {hex(STAMP_OFF + self.kidx * (1 << 20))}")
        a("s_addc_u32 s65, s69, 0")
        a("s_and_b32 s65, s65, 0xffff")
        a("s_lshl_b32 s68, s67, 10")
        a("s_mov_b32 s66, 0x100000")
        a("s_mov_b32 s67, 0x20000")
        a("v_lshrrev_b32 v254, 6, v255")
        a("v_lshlrev_b32 v254, 6, v254")
        a("v_add_u32 v254, s68, v254")
        a("s_getreg_b32 s69, hwreg(HW_REG_HW_ID)")
        a("s_getreg_b32 s68, hwreg(HW_REG_XCC_ID)")
        a("s_mov_b64 exec, 1")
        for k in range(12):
            a(f"v_mov_b32 v253, s{70+2*k}")
            a(f"buffer_store_dword v253, v254, s[64:67], 0 offen offset:{4*k}")
        a("v_mov_b32 v253, s69")
        a("buffer_store_dword v253, v254, s[64:67], 0 offen offset:48")
        a("v_mov_b32 v253, s68")
        a("buffer_store_dword v253, v254, s[64:67], 0 offen offset:52")
        if self.on == 2:
            a("s_load_dwordx2 s[64:65], s[0:1], 80")
            a("s_waitcnt lgkmcnt(0)")
            a("s_and_b32 s65, s65, 0xffff")
            a("s_mov_b32 s66, 256")
            a("v_mov_b32 v254, 0")
            a("s_not_b32 s68, s70")
            a("v_mov_b32 v253, s68")
            a("buffer_atomic_umax v253, v254, s[64:67], 0 offen offset:8")
            a("v_mov_b32 v253, s72")
            a("buffer_atomic_umax v253, v254, s[64:67], 0 offen offset:12")
            a("v_mov_b32 v253, s70")
            a("buffer_atomic_umax v253, v254, s[64:67], 0 offen offset:16")
            for k in range(1, 10):
                a(f"s_sub_u32 s68, s{74+2*k}, s74")
                a(f"s_cmp_eq_u32 s{74+2*k}, 0")
                a("s_cselect_b32 s68, 0, s68")
                a("v_mov_b32 v253, s68")
                a(f"buffer_atomic_umax v253, v254, s[64:67], 0 offen offset:{24+4*k}")

class WL:
    PL = 32768
    FLAG = 0
    EPOCH = 0
    FG = 1024
    FA = 4096
    FO = FA + 256 * 128
    FLAG_SIZE = FO + 2048 * 128
    GATE = FLAG_SIZE
    QF = 327680
    KF = QF + 80 * PL
    VF = KF + 80 * PL
    VT = 40960
    G = VF + 64 * VT
    GA = 21 * 1024
    G_SIZE = 2 * 64 * GA
    OF = G + G_SIZE
    END = OF + 80 * PL
assert WL.GATE + 16384 <= WL.QF
```

```python
from asm import *

QSCALE = 0x3ea52b5c
NAME = "gated_mix__spectral_fnet__softmax_full_mha__prompt_kernel"
LDS_X = 131072
LDS_CTL = LDS_X + 24576
LDS_SIZE = LDS_CTL + 64
GSTEP = 32 * 176
GIMG = 20 * 5120
SPIN = 200000
STAGE = [0, 0x8000, 0x18000, 0x10000]

def gen(name=NAME, stamps=False, snames=(), rotx=(0, 2, 5, 7, 5, 7, 0, 2), rin=(7, 3), touch=False, tpos=5, gtouch=True, fsplit=5,
        prio=(4, 2, 1), psleep=8, wotouch=True, probe=None, fwait=True, nodma=False, kvsc1=False, noload=False, nowait=False, noexec=False, spread=False, rt=True, fstart=6):
    a = Asm()
    kernel_begin(a, name)
    L = lambda s: f"L_{s}"
    st = Stamps(a, stamps, 0); st.names = list(snames); st.op = 's_memrealtime' if rt else 's_memtime'
    sWS = 26
    sA = 28; sB = 32; sC = 36; sD = 40; sFl = 44; sE = 48
    sW = 52; sXc = 53; sJ = 54; sNonce = 55; sT = 56; sT2 = 57; sCnt = 58
    sLo = 60; sVm = 62; sHi = 94; sDm = 96
    sGF = 25
    sAF = 24
    vL = 1; vT = [2, 3, 4, 5, 6, 7]; vCtl = 8
    VB = 10
    TOP = 252 if stamps else 256

    def spin_begin(lab):
        a(f"s_mov_b32 s59, {SPIN}")
        a.label(L(lab))
    def spin_end(lab, sleep=2):
        a(f"s_sleep {sleep}")
        a("s_sub_u32 s59, s59, 1")
        a("s_cmp_lg_u32 s59, 0")
        a(f"s_cbranch_scc1 {L(lab)}")
    def put_flag(soff):
        a(f"v_mov_b32 v{vT[0]}, 0")
        a(f"v_mov_b32 v{vT[1]}, s{sNonce}")
        a("s_mov_b64 exec, 1")
        a(f"buffer_store_dword v{vT[1]}, v{vT[0]}, s[{sFl}:{sFl+3}], {soff} offen sc1")
        a("s_mov_b64 exec, -1")
    def lds_inc(off):
        a(f"v_mov_b32 v{vT[0]}, 1")
        a("s_mov_b64 exec, 1")
        a(f"ds_add_u32 v{vCtl}, v{vT[0]} offset:{off}")
        a("s_mov_b64 exec, -1")
    def lds_wait(lab, off, val):
        spin_begin(lab)
        a(f"ds_read_b32 v{vT[0]}, v{vCtl} offset:{off}")
        a("s_waitcnt lgkmcnt(0)")
        a(f"v_readfirstlane_b32 s{sT}, v{vT[0]}")
        a("s_nop 1")
        a(f"s_cmp_eq_u32 s{sT}, {val}")
        a(f"s_cbranch_scc1 {L(lab+'d')}")
        spin_end(lab, 1)
        a.label(L(lab + "d"))
    def sel_srd(d, cond_s, p0, p1, size):
        a(f"s_cmp_eq_u32 s{cond_s}, 0")
        a(f"s_cselect_b32 s{d}, s{p0}, s{p1}")
        a(f"s_cselect_b32 s{d+1}, s{p0+1}, s{p1+1}")
        a(f"s_and_b32 s{d+1}, s{d+1}, 0xffff")
        a(f"s_mov_b32 s{d+2}, {size}")
        a(f"s_mov_b32 s{d+3}, 0x20000")
    def after_kernarg():
        a("s_waitcnt lgkmcnt(0)")
        st.stamp("karg")
        a(f"s_load_dword s{sNonce}, s[{sWS}:{sWS+1}], {WL.EPOCH}")
        srd(a, sA, 4, 0, 2048 * 1280)
    def masks():
        a(f"s_mov_b32 s{sGF}, 0"); a(f"s_mov_b32 s{sAF}, 0")
        srd(a, sFl, sWS, WL.FLAG, WL.FLAG_SIZE)
        a(f"v_mov_b32 v{vCtl}, {LDS_CTL}")
        a(f"s_mov_b32 s{sLo}, -1"); a(f"s_mov_b32 s{sLo+1}, 0")
        a(f"s_mov_b32 s{sHi}, 0"); a(f"s_mov_b32 s{sHi+1}, -1")
        a(f"s_mov_b32 s{sVm}, 0xfffff"); a(f"s_mov_b32 s{sVm+1}, 0xfffff")
        a(f"s_mov_b32 s{sDm}, -1"); a(f"s_mov_b32 s{sDm+1}, 0xff")
    def nat_read_addrs(dst, stile, shift):
        a(f"v_and_b32 v{vT[0]}, 31, v{vL}")
        a(f"v_lshrrev_b32 v{vT[1]}, 5, v{vL}")
        a(f"v_bfe_u32 v{vT[2]}, v{vL}, 1, 3")
        a(f"v_xor_b32 v{vT[1]}, v{vT[1]}, v{vT[2]}")
        a(f"v_lshlrev_b32 v{vT[1]}, 4, v{vT[1]}")
        a(f"v_lshl_add_u32 v{vT[0]}, v{vT[0]}, 7, v{vT[1]}")
        a(f"s_lshl_b32 s{sT}, s{stile}, {shift}")
        a(f"v_add_u32 v{dst[0]}, s{sT}, v{vT[0]}")
        for ks in range(1, 4):
            a(f"v_xor_b32 v{dst[ks]}, {32*ks}, v{dst[0]}")

    a("s_cmp_ge_u32 s2, 256")
    a(f"s_cbranch_scc1 {L('end')}")
    st.start()
    if probe: a("s_memrealtime s[70:71]")
    a("s_load_dwordx16 s[4:19], s[0:1], 0")
    a("s_load_dwordx8 s[20:27], s[0:1], 64")
    a(f"v_lshrrev_b32 v{vT[0]}, 6, v0")
    a(f"v_and_b32 v{vL}, 63, v0")
    a(f"v_readfirstlane_b32 s{sW}, v{vT[0]}")
    a(f"s_and_b32 s{sXc}, s2, 7")
    a(f"s_lshr_b32 s{sJ}, s2, 3")
    a(f"s_xor_b32 s{sW}, s{sW}, 4")
    sRb = 98; sCb = 99; sWm = 100; sWn = 101; sWl = 3
    a(f"s_and_b32 s{sRb}, s2, 3")
    a(f"s_lshl_b32 s{sRb}, s{sRb}, 2")
    a(f"s_and_b32 s{sT}, s{sJ}, 3")
    a(f"s_add_u32 s{sRb}, s{sRb}, s{sT}")
    a(f"s_lshr_b32 s{sT}, s{sXc}, 2")
    a(f"s_lshr_b32 s{sCb}, s{sJ}, 2")
    a(f"s_cmp_eq_u32 s{sCb}, 7")
    a(f"s_cselect_b32 s{sT2}, 1, 3")
    a(f"s_lshl_b32 s{sT}, s{sT}, s{sT2}")
    a(f"s_cmp_eq_u32 s{sCb}, 7")
    a(f"s_cselect_b32 s{sT2}, s{sT}, 0")
    a(f"s_cselect_b32 s{sT}, 0, s{sT}")
    a(f"s_add_u32 s{sRb}, s{sRb}, s{sT2}")
    a(f"s_add_u32 s{sCb}, s{sCb}, s{sT}")
    a(f"s_and_b32 s{sWl}, s{sW}, 3")
    a(f"s_and_b32 s{sWm}, s{sW}, 1")
    a(f"s_lshr_b32 s{sWn}, s{sWl}, 1")
    a(f"s_cmp_lt_u32 s{sW}, 4")
    a(f"s_cbranch_scc1 {L('comp')}")

    V = Alloc(VB, TOP)
    vRX = [V.get() for _ in range(4)]
    vFW = [V.get() for _ in range(2)]; vFs = V.get(); vGs = V.get()
    V.get(2)
    XR = [[V.get(4, 4) for _ in range(4)] for _ in range(10)]
    FR = V.get(8, 4); FIn = V.get(8, 4)
    ZA = V.get(16, 4); ZB = V.get(16, 4)
    BF = [[V.get(4, 4) for _ in range(2)] for _ in range(3)]
    vDX = [BF[0][0] + i for i in range(4)]; vDW = [BF[0][1] + i for i in range(4)]
    sOX = sD; sOW = sD + 1; sM0 = sD + 2; sBeta = sD + 3; sSp = sE
    a(f"v_and_b32 v{vT[3]}, 7, v{vL}")
    a(f"v_lshrrev_b32 v{vT[4]}, 4, v{vL}")
    a(f"v_xor_b32 v{vT[3]}, v{vT[3]}, v{vT[4]}")
    a(f"v_lshlrev_b32 v{vT[3]}, 4, v{vT[3]}")
    a(f"v_xor_b32 v{vT[4]}, 64, v{vT[3]}")
    a(f"v_bfe_u32 v{vT[5]}, v{vL}, 3, 2")
    a(f"v_lshrrev_b32 v{vT[1]}, 5, v{vL}")
    a(f"v_lshl_add_u32 v{vT[5]}, v{vT[1]}, 3, v{vT[5]}")
    a(f"s_lshl_b32 s{sT}, s{sRb}, 1")
    a(f"s_add_u32 s{sT}, s{sT}, s{sWn}")
    a(f"s_lshl_b32 s{sT2}, s{sWm}, 5")
    a(f"s_add_u32 s{sCnt}, s{sT}, s{sT2}")
    a(f"v_lshl_add_u32 v{vT[1]}, v{vT[5]}, 6, s{sCnt}")
    a(f"v_mul_u32_u24 v{vT[1]}, 1280, v{vT[1]}")
    a(f"v_add_u32 v{vDX[0]}, v{vT[1]}, v{vT[3]}")
    a(f"v_add_u32 v{vDX[1]}, v{vT[1]}, v{vT[4]}")
    a(f"v_add_u32 v{vDX[1]}, {4*64*1280-1024}, v{vDX[1]}")
    a(f"v_add_u32 v{vDX[2]}, {16*64*1280-2048}, v{vDX[0]}")
    a(f"v_add_u32 v{vDX[3]}, {16*64*1280-2048}, v{vDX[1]}")
    a(f"v_lshrrev_b32 v{vT[0]}, 4, v{vL}")
    a(f"v_bfe_u32 v{vT[1]}, v{vL}, 2, 2")
    a(f"v_xor_b32 v{vT[1]}, v{vT[1]}, v{vT[0]}")
    a(f"v_and_b32 v{vT[2]}, 3, v{vL}")
    a(f"v_lshl_add_u32 v{vT[1]}, v{vT[1]}, 2, v{vT[2]}")
    a(f"v_lshlrev_b32 v{vT[1]}, 4, v{vT[1]}")
    a(f"s_lshl_b32 s{sT}, s{sWl}, 4")
    a(f"v_add_u32 v{vT[0]}, s{sT}, v{vT[0]}")
    a(f"v_mul_u32_u24 v{vT[0]}, 3840, v{vT[0]}")
    a(f"s_lshl_b32 s{sT}, s{sCb}, 8")
    a(f"v_add3_u32 v{vDW[0]}, v{vT[0]}, v{vT[1]}, s{sT}")
    for j in range(1, 4):
        a(f"v_add_u32 v{vDW[j]}, {j*(4*3840-1024)}, v{vDW[0]}")
    rw = 0
    for i, r in enumerate(rotx): rw |= r << (4 * i)
    a(f"s_lshl_b32 s{sT}, s{sXc}, 2")
    a(f"s_lshr_b32 s{sOX}, {hex(rw)}, s{sT}")
    a(f"s_and_b32 s{sOX}, s{sOX}, 15")
    if rin != (0, 0):
        a(f"s_and_b32 s{sT}, s{sJ}, 3")
        a(f"s_mul_i32 s{sT}, s{sT}, {rin[0]}")
        a(f"s_add_u32 s{sOX}, s{sOX}, s{sT}")
        a(f"s_lshr_b32 s{sT}, s{sJ}, 2")
        a(f"s_mul_i32 s{sT}, s{sT}, {rin[1]}")
        a(f"s_add_u32 s{sOX}, s{sOX}, s{sT}")
        a(f"s_mul_i32 s{sT}, s{sOX}, 205")
        a(f"s_lshr_b32 s{sT}, s{sT}, 11")
        a(f"s_mul_i32 s{sT}, s{sT}, 10")
        a(f"s_sub_u32 s{sOX}, s{sOX}, s{sT}")
    a(f"s_mul_i32 s{sOW}, s{sOX}, {64*3840}")
    a(f"s_lshl_b32 s{sOX}, s{sOX}, 7")
    a(f"s_lshl_b32 s{sM0}, s{sWl}, 12")
    after_kernarg()
    a(f"s_cmp_ge_u32 s{sJ}, 30")
    a(f"s_cbranch_scc1 {L('lgate')}")
    srd(a, sB, 16, 0, 640 * 3840)
    def issue(n):
        a(f"s_add_u32 m0, s{sM0}, {STAGE[n%4]}")
        a("s_nop 0")
        for j in range(4): a(f"buffer_load_dwordx4 v{vDX[j]}, s[{sA}:{sA+3}], s{sOX} offen offset:{1024*j} lds")
        a(f"s_add_u32 m0, s{sM0}, {STAGE[n%4]+0x4000}")
        a(f"s_add_u32 s{sOX}, s{sOX}, 128")
        for j in range(4): a(f"buffer_load_dwordx4 v{vDW[j]}, s[{sB}:{sB+3}], s{sOW} offen offset:{1024*j} lds")
        a(f"s_add_u32 s{sOW}, s{sOW}, {64*3840}")
        a(f"s_cmp_eq_u32 s{sOX}, 1280")
        a(f"s_cselect_b32 s{sOX}, 0, s{sOX}")
        a(f"s_cselect_b32 s{sOW}, 0, s{sOW}")
    issue(0); issue(1)
    masks()
    a(f"s_lshr_b32 s{sBeta}, s{sXc}, 2")
    a(f"s_mul_i32 s{sBeta}, s{sBeta}, 5")
    a(f"s_lshr_b32 s{sT}, s{sJ}, 2")
    a(f"s_add_u32 s{sBeta}, s{sBeta}, s{sT}")
    a(f"s_lshl_b32 s{sT}, s{sBeta}, 1")
    a(f"s_add_u32 s{sT}, s{sT}, s{sWm}")
    a(f"s_lshl_b32 s{sT}, s{sT}, 4")
    a(f"v_add_u32 v{vT[5]}, s{sT}, v{vT[5]}")
    a(f"v_mul_u32_u24 v{vT[5]}, 1280, v{vT[5]}")
    a(f"v_add_u32 v{vFW[0]}, v{vT[5]}, v{vT[3]}")
    a(f"v_add_u32 v{vFW[1]}, v{vT[5]}, v{vT[4]}")
    a(f"v_add_u32 v{vFW[1]}, {4*1280-1024}, v{vFW[1]}")
    a(f"v_add_u32 v{vFs}, {320*1280}, v{vT[3]}")
    a(f"v_and_b32 v{vT[0]}, 31, v{vL}")
    a(f"v_lshrrev_b32 v{vT[1]}, 5, v{vL}")
    a(f"v_lshlrev_b32 v{vGs}, 5, v{vT[0]}")
    a(f"v_lshl_add_u32 v{vGs}, v{vT[1]}, 4, v{vGs}")
    a(f"s_mul_i32 s{sT}, s{sCnt}, {WL.GA}")
    a(f"s_lshl_b32 s{sT2}, s{sBeta}, 11")
    a(f"s_add_u32 s{sT}, s{sT}, s{sT2}")
    a(f"v_add_u32 v{vGs}, s{sT}, v{vGs}")
    a(f"s_mul_i32 s{sCnt}, s{sCnt}, 48")
    a(f"s_lshl_b32 s{sT2}, s{sBeta}, 2")
    a(f"s_add_u32 s{sCnt}, s{sCnt}, s{sT2}")
    a(f"s_add_u32 s{sCnt}, s{sCnt}, {WL.FG}")
    nat_read_addrs(vRX, sWl, 12)
    for n in range(10):
        a(f"s_waitcnt vmcnt({8 if n < 9 else 0}) lgkmcnt(0)")
        a("s_barrier")
        for ks in range(4):
            a(f"ds_read_b128 {vr(XR[n][ks],4)}, v{vRX[ks]} offset:{STAGE[n%4] & 0xffff}")
        if n + 2 < 10: issue(n + 2)
        if n < 9 and (STAGE[n % 4] ^ STAGE[(n + 1) % 4]) & 0x10000:
            for ks in range(4): a(f"v_xor_b32 v{vRX[ks]}, 0x10000, v{vRX[ks]}")
    st.stamp("ldone")
    a(f"s_add_u32 s{sNonce}, s{sNonce}, 1")
    a(f"s_cmp_ge_u32 s{sJ}, 20")
    a(f"s_cbranch_scc1 {L('lfree')}")
    a("s_setprio 3")
    a(f"s_mov_b32 s{sGF}, s{sCnt}")
    sel_srd(sB, sWn, 10, 12, 640 * 1280)
    srd(a, sC, 10, 0, 640 * 1280)
    a(f"s_lshl_b32 s{sM0}, s{sWl}, 11")
    a(f"s_lshl_b32 s{sT}, s{sBeta}, 2")
    a(f"s_add_u32 s{sT}, s{sT}, s{sWl}")
    a(f"s_cmp_eq_u32 s{sT}, 2")
    a(f"s_cselect_b32 s{sSp}, 0xffffff00, -1")
    a(f"s_cselect_b64 vcc, -1, 0")
    a(f"s_mov_b32 s{sSp+1}, -1")
    WDB = lambda p: (0x10000 + 8192 * p) if p < 8 else 8192 * (p - 8)
    def wdma(p):
        a(f"s_add_u32 m0, s{sM0}, {WDB(p)}")
        a(f"s_mov_b64 exec, s[{sSp}:{sSp+1}]")
        a(f"buffer_load_dwordx4 v{vFW[0]}, s[{sB}:{sB+3}], s{sOX} offen lds")
        a(f"s_cbranch_vccz {L('fs%d' % p)}")
        a("s_mov_b64 exec, 0xff")
        a(f"buffer_load_dwordx4 v{vFs}, s[{sC}:{sC+3}], s{sOX} offen lds")
        a.label(L("fs%d" % p))
        a("s_mov_b64 exec, -1")
        a(f"buffer_load_dwordx4 v{vFW[1]}, s[{sB}:{sB+3}], s{sOX} offen offset:1024 lds")
        a(f"s_add_u32 s{sOX}, s{sOX}, 128")
        a(f"s_cmp_eq_u32 s{sOX}, 1280")
        a(f"s_cselect_b32 s{sOX}, 0, s{sOX}")
    def twl():
        srd(a, sB, 6, 0, 2048 * 4096)
        srd(a, sC, 8, 0, 2048 * 4096)
        a(f"buffer_load_dwordx4 {vr(FR,4)}, v{vT[2]}, s[{sB}:{sB+3}], 0 offen")
        a(f"buffer_load_dwordx4 {vr(FR+4,4)}, v{vT[2]}, s[{sB}:{sB+3}], 0 offen offset:32")
        a(f"buffer_load_dwordx4 {vr(FIn,4)}, v{vT[2]}, s[{sC}:{sC+3}], 0 offen")
        a(f"buffer_load_dwordx4 {vr(FIn+4,4)}, v{vT[2]}, s[{sC}:{sC+3}], 0 offen offset:32")
    for p in range(fsplit): wdma(p)
    a(f"v_and_b32 v{vT[2]}, 31, v{vL}")
    a(f"v_lshrrev_b32 v{vT[1]}, 5, v{vL}")
    a(f"v_lshlrev_b32 v{vT[2]}, 18, v{vT[2]}")
    a(f"v_lshl_add_u32 v{vT[2]}, v{vT[1]}, 4, v{vT[2]}")
    a(f"s_lshl_b32 s{sT}, s{sWl}, 12")
    a(f"s_sub_u32 s{sT}, 0x10000, s{sT}")
    for ks in range(4): a(f"v_add_u32 v{vRX[ks]}, s{sT}, v{vRX[ks]}")
    assert not STAGE[9 % 4] & 0x10000
    a("s_waitcnt vmcnt(0)")
    lds_inc(12)
    lds_wait("f1", 12, 4)
    st.stamp("fb0")
    if stamps: a("s_waitcnt lgkmcnt(0)")
    def rdB(s):
        p, ks = divmod(s, 4)
        if s == 32:
            for k in range(4): a(f"v_xor_b32 v{vRX[k]}, 0x10000, v{vRX[k]}")
        for part in range(2):
            a(f"ds_read_b128 {vr(BF[s%3][part],4)}, v{vRX[ks]} offset:{(WDB(p) & 0xffff) + 4096*part}")
    rdB(0); rdB(1)
    H = 4 * fsplit
    for s in range(40):
        if s == fstart and fwait: lds_wait("f0", 20, 4)
        if fstart <= s < fstart + 10 - fsplit: wdma(fsplit + s - fstart)
        if s == fstart + 10 - fsplit: twl()
        if s == H - 2:
            a("s_waitcnt vmcnt(4)")
            lds_inc(16)
            lds_wait("f2", 16, 4)
            st.stamp("fb1")
            if stamps: a("s_waitcnt lgkmcnt(0)")
        if s + 2 < 40: rdB(s + 2)
        a(f"s_waitcnt lgkmcnt({4 if s < 38 else 2*(39-s)})")
        for part, Z in enumerate((ZA, ZB)):
            c = "0" if s == 0 else vr(Z, 16)
            a(f"v_mfma_f32_32x32x16_bf16 {vr(Z,16)}, {vr(XR[s//4][s%4],4)}, {vr(BF[s%3][part],4)}, {c}")
    assert fstart + 10 - fsplit < H - 2
    lds_inc(8)
    st.stamp("fend")
    srd(a, sC, sWS, WL.G, WL.G_SIZE)
    FRn = XR[0][0]; G0 = XR[1][0]; G1 = XR[2][0]; G2 = XR[3][0]; G3 = XR[4][0]; ZS = XR[5][0]
    a("s_waitcnt vmcnt(0)")
    for i in range(8):
        a(f"v_xor_b32 v{FRn+i}, 0x80008000, v{FR+i}")
        a(f"v_xor_b32 v{FIn+i}, 0x80008000, v{FIn+i}")
    for Z in (ZA, ZB):
        for i in range(8): a(f"v_cvt_pk_bf16_f32 v{Z+i}, v{Z+2*i}, v{Z+2*i+1}")
    m = lambda d, A, B, c: a(f"v_mfma_f32_32x32x16_bf16 {vr(d,16)}, {vr(A,4)}, {vr(B,4)}, {c}")
    GP = TOP - 24
    a(f"s_mov_b32 s{sT2}, {64*WL.GA}")
    a(f"s_cmp_lg_u32 s{sBeta}, 0")
    a(f"s_cbranch_scc1 {L('fn')}")
    m(G2, ZB, FR, "0"); m(G2, ZB+4, FR+4, vr(G2,16))
    m(G3, ZB, FIn, "0"); m(G3, ZB+4, FIn+4, vr(G3,16))
    a("s_mov_b32 exec_lo, 1"); a("s_mov_b32 exec_hi, 1")
    for i in range(8): a(f"v_mov_b32 v{ZB+i}, 0")
    a(f"s_mov_b64 exec, s[{sLo}:{sLo+1}]")
    a("s_nop 3")
    for i in range(4): a(f"v_mov_b32 v{GP+16+i}, 0"); a(f"v_mov_b32 v{GP+20+i}, 0")
    a(f"v_cvt_pk_bf16_f32 v{GP+16}, v{G2}, 0")
    a(f"v_cvt_pk_bf16_f32 v{GP+20}, v{G3}, 0")
    a(f"v_add_u32 v{vFs}, {20*1024}, v{vGs}")
    a(f"buffer_store_dwordx4 {vr(GP+16,4)}, v{vFs}, s[{sC}:{sC+3}], 0 offen sc1")
    a(f"buffer_store_dwordx4 {vr(GP+20,4)}, v{vFs}, s[{sC}:{sC+3}], s{sT2} offen sc1")
    a("s_mov_b64 exec, -1")
    a.label(L("fn"))
    m(G0, ZA, FR, "0"); m(G0, ZA+4, FR+4, vr(G0,16)); m(G0, ZB, FIn, vr(G0,16)); m(G0, ZB+4, FIn+4, vr(G0,16))
    m(G1, ZB, FRn, "0"); m(G1, ZB+4, FRn+4, vr(G1,16)); m(G1, ZA, FIn, vr(G1,16)); m(G1, ZA+4, FIn+4, vr(G1,16))
    a("s_nop 7")
    for p, g in enumerate((G0, G1)):
        if p == 1: a("s_nop 1")
        for i in range(8): a(f"v_cvt_pk_bf16_f32 v{GP+8*p+i}, v{g+2*i}, v{g+2*i+1}")
        for j in range(2):
            so = "0" if p == 0 else f"s{sT2}"
            a(f"buffer_store_dwordx4 {vr(GP+8*p+4*j,4)}, v{vGs}, s[{sC}:{sC+3}], {so} offen offset:{1024*j} sc1")
    assert ZB + 8 <= GP
    st.stamp("gst")
    a(f"s_branch {L('att')}")
    a.label(L("lgate"))
    if gtouch:
        sel_srd(sB, sWm, 6, 8, 2048 * 4096)
        a(f"v_and_b32 v{vT[0]}, 31, v{vL}")
        a(f"v_lshlrev_b32 v{vT[0]}, 18, v{vT[0]}")
        a(f"buffer_load_dword v{vT[1]}, v{vT[0]}, s[{sB}:{sB+3}], 0 offen")
        sel_srd(sB, sWm, 10, 12, 640 * 1280)
        a(f"s_and_b32 s{sT}, s{sJ}, 1")
        a(f"s_lshl_b32 s{sT}, s{sT}, 1")
        a(f"s_add_u32 s{sT}, s{sT}, s{sWn}")
        a(f"s_mul_i32 s{sT}, s{sT}, {400*128}")
        a(f"s_lshr_b32 s{sT2}, s{sXc}, 2")
        a(f"s_mul_i32 s{sT2}, s{sT2}, {160*1280}")
        a(f"s_add_u32 s{sT}, s{sT}, s{sT2}")
        a(f"v_min_u32 v{vT[0]}, 49, v{vL}")
        a(f"v_lshlrev_b32 v{vT[0]}, 7, v{vT[0]}")
        for i in range(8):
            a(f"buffer_load_dword v{vT[1]}, v{vT[0]}, s[{sB}:{sB+3}], s{sT} offen")
            a(f"s_add_u32 s{sT}, s{sT}, {50*128}")
    masks()
    a("s_waitcnt lgkmcnt(0)")
    a("s_barrier")
    a(f"s_add_u32 s{sNonce}, s{sNonce}, 1")
    a.label(L("lfree"))
    a("s_waitcnt vmcnt(0) lgkmcnt(0)")
    lds_inc(8)
    a(f"s_branch {L('att')}")

    a.label(L("comp"))
    V = Alloc(VB, TOP)
    vRX = [V.get() for _ in range(4)]; vRW = [V.get() for _ in range(2)]
    vE = [V.get() for _ in range(8)]
    vTch = V.get(2)
    XF = [[V.get(4, 4) for _ in range(2)] for _ in range(2)]
    WF = [[V.get(4, 4) for _ in range(2)] for _ in range(2)]
    ACC = [[V.get(16, 4) for _ in range(2)] for _ in range(2)]
    PK = TOP - 32
    sMask = sD; sScale = sD + 2
    a("s_setprio 3")
    nat_read_addrs(vRX, sWm, 13)
    for x in range(2):
        for w in range(2):
            for i in range(16): a(f"v_mov_b32 v{ACC[x][w]+i}, 0")
    after_kernarg()
    masks()
    a(f"s_cmp_lg_u32 s{sW}, 0")
    a(f"s_cbranch_scc1 {L('c1')}")
    a(f"ds_write_b128 v{vCtl}, {vr(ACC[0][0],4)}")
    a(f"ds_write_b128 v{vCtl}, {vr(ACC[0][0],4)} offset:16")
    a.label(L("c1"))
    def mainloop(mode):
        def rdX(s, ks, x): a(f"ds_read_b128 {vr(XF[s][x],4)}, v{vRX[ks]} offset:{4096*x}")
        def rdW(s, ks, w):
            a(f"ds_read_b64_tr_b16 {vr(WF[s][w],2)}, v{vRW[w]} offset:{4096*ks}")
            a(f"ds_read_b64_tr_b16 {vr(WF[s][w]+2,2)}, v{vRW[w]} offset:{4096*ks+1024}")
        def mf(s, x, w):
            A, B = (WF[s][w], XF[s][x]) if mode == 'qk' else (XF[s][x], WF[s][w])
            a(f"v_mfma_f32_32x32x16_bf16 {vr(ACC[x][w],16)}, {vr(A,4)}, {vr(B,4)}, {vr(ACC[x][w],16)}")
        a("s_waitcnt lgkmcnt(0)")
        a("s_barrier")
        st.stamp("b0")
        if stamps: a("s_waitcnt lgkmcnt(0)")
        rdX(0, 0, 0); rdW(0, 0, 0); rdX(0, 0, 1); rdW(0, 0, 1)
        a(f"s_mov_b32 s{sCnt}, 0")
        a.raw(".p2align 5")
        a.label(L(mode + "loop"))
        for ks in range(4):
            s = ks % 2; n = 1 - s; nk = (ks + 1) % 4
            if ks < 3:
                a("s_waitcnt lgkmcnt(3)")
                mf(s, 0, 0)
                if ks == 0 and touch:
                    a(f"s_cmp_lg_u32 s{sCnt}, {tpos}")
                    a(f"s_cbranch_scc1 {L(mode+'nt')}")
                    a(f"buffer_load_dword v{vTch}, v{vTch+1}, s[{sE}:{sE+3}], 0 offen")
                    a.label(L(mode + "nt"))
            else:
                a("s_waitcnt lgkmcnt(0)")
                mf(s, 0, 0)
                a(f"s_add_u32 s{sCnt}, s{sCnt}, 1")
                a(f"s_cmp_eq_u32 s{sCnt}, 10")
                a(f"s_cbranch_scc1 {L(mode+'last')}")
                a("s_barrier")
                for r in vRX + vRW:
                    a(f"v_xor_b32 v{r}, s{sMask}, v{r}")
            rdX(n, nk, 0); rdW(n, nk, 0)
            if ks < 3: a("s_waitcnt lgkmcnt(5)")
            mf(s, 1, 0)
            rdX(n, nk, 1)
            if ks < 3: a("s_waitcnt lgkmcnt(4)")
            mf(s, 0, 1)
            rdW(n, nk, 1)
            if ks == 3: a(f"s_xor_b32 s{sMask}, s{sMask}, 0x18000")
            mf(s, 1, 1)
        a(f"s_branch {L(mode+'loop')}")
        a.label(L(mode + "last"))
        mf(1, 0, 1); mf(1, 1, 0); mf(1, 1, 1)
        lds_inc(8)
        st.stamp("aend")
        a("s_nop 1")
    a(f"s_mov_b32 s{sMask}, 0x8000")
    a(f"s_cmp_ge_u32 s{sJ}, 30")
    a(f"s_cbranch_scc1 {L('gate')}")
    a(f"s_lshl_b32 s{sAF}, s{sCb}, 4")
    a(f"s_add_u32 s{sAF}, s{sAF}, s{sRb}")
    if touch:
        sel_srd(sE, sWm, 10, 12, 640 * 1280)
        a(f"s_lshl_b32 s{sT}, s{sJ}, 1")
        a(f"s_add_u32 s{sT}, s{sT}, s{sWn}")
        a(f"s_mul_i32 s{sT}, s{sT}, {27*128}")
        a(f"s_lshr_b32 s{sT2}, s{sXc}, 2")
        a(f"s_mul_i32 s{sT2}, s{sT2}, {160*1280}")
        a(f"s_add_u32 s{sT}, s{sT}, s{sT2}")
        a(f"v_min_u32 v{vTch+1}, 26, v{vL}")
        a(f"v_lshl_add_u32 v{vTch+1}, v{vTch+1}, 7, s{sT}")
    a(f"v_bfe_u32 v{vT[0]}, v{vL}, 2, 2")
    a(f"v_lshrrev_b32 v{vT[1]}, 5, v{vL}")
    a(f"v_lshl_add_u32 v{vT[1]}, v{vT[1]}, 3, v{vT[0]}")
    a(f"v_lshlrev_b32 v{vT[1]}, 8, v{vT[1]}")
    a(f"s_lshl_b32 s{sT}, s{sWn}, 1")
    a(f"v_xor_b32 v{vT[0]}, s{sT}, v{vT[0]}")
    a(f"v_lshl_add_u32 v{vT[1]}, v{vT[0]}, 6, v{vT[1]}")
    a(f"v_bfe_u32 v{vT[0]}, v{vL}, 4, 1")
    a(f"v_lshl_add_u32 v{vT[1]}, v{vT[0]}, 5, v{vT[1]}")
    a(f"v_add_u32 v{vT[1]}, 0x4000, v{vT[1]}")
    a(f"v_and_b32 v{vT[4]}, 31, v{vL}")
    a(f"v_lshrrev_b32 v{vT[5]}, 5, v{vL}")
    a(f"s_cmp_ge_u32 s{sCb}, 10")
    a(f"s_cbranch_scc1 {L('v')}")
    a(f"v_and_b32 v{vT[0]}, 1, v{vL}")
    a(f"v_lshl_add_u32 v{vT[1]}, v{vT[0]}, 4, v{vT[1]}")
    a(f"v_bfe_u32 v{vT[0]}, v{vL}, 1, 1")
    a(f"v_lshl_add_u32 v{vRW[0]}, v{vT[0]}, 3, v{vT[1]}")
    a(f"v_xor_b32 v{vRW[1]}, 64, v{vRW[0]}")
    a(f"s_cmp_ge_u32 s{sCb}, 5")
    a(f"s_cselect_b32 s{sScale}, 1.0, {hex(QSCALE)}")
    a(f"s_mov_b32 s{sScale+1}, s{sScale}")
    srd(a, sC, sWS, WL.QF, 160 * WL.PL)
    a(f"s_lshl_b32 s{sT}, s{sCb}, 1")
    a(f"s_add_u32 s{sT}, s{sT}, s{sWn}")
    a(f"s_lshl_b32 s{sT}, s{sT}, 18")
    a(f"s_lshl_b32 s{sT2}, s{sRb}, 1")
    a(f"s_add_u32 s{sT2}, s{sT2}, s{sWm}")
    a(f"s_lshl_b32 s{sT2}, s{sT2}, 10")
    a(f"s_add_u32 s{sT}, s{sT}, s{sT2}")
    a(f"v_lshlrev_b32 v{vE[0]}, 15, v{vT[5]}")
    a(f"v_lshl_add_u32 v{vE[0]}, v{vT[4]}, 4, v{vE[0]}")
    a(f"v_add_u32 v{vE[0]}, s{sT}, v{vE[0]}")
    for e in range(1, 4): a(f"v_add_u32 v{vE[e]}, {e*2*WL.PL}, v{vE[0]}")
    mainloop('qk')
    for x in range(2):
        for w in range(2):
            acc = ACC[x][w]; pk = PK + 8 * (2 * x + w)
            for i in range(0, 16, 2): a(f"v_pk_mul_f32 {vr(acc+i,2)}, {vr(acc+i,2)}, s[{sScale}:{sScale+1}]")
            for i in range(8): a(f"v_cvt_pk_bf16_f32 v{pk+i}, v{acc+2*i}, v{acc+2*i+1}")
            for j in range(2):
                a(f"buffer_store_dwordx4 {vr(pk+4*j,4)}, v{vE[2*w+j]}, s[{sC}:{sC+3}], 0 offen offset:{512*x} sc1")
    a(f"s_branch {L('adone')}")
    a.label(L("v"))
    a(f"v_and_b32 v{vT[0]}, 3, v{vL}")
    a(f"v_lshl_add_u32 v{vRW[0]}, v{vT[0]}, 3, v{vT[1]}")
    a(f"v_xor_b32 v{vRW[1]}, 64, v{vRW[0]}")
    srd(a, sC, sWS, WL.VF, 64 * WL.VT)
    a(f"s_lshl_b32 s{sT}, s{sRb}, 1")
    a(f"s_add_u32 s{sT}, s{sT}, s{sWm}")
    a(f"s_mul_i32 s{sT}, s{sT}, {2*WL.VT}")
    a(f"s_sub_u32 s{sT2}, s{sCb}, 10")
    a(f"s_lshl_b32 s{sT2}, s{sT2}, 1")
    a(f"s_add_u32 s{sT2}, s{sT2}, s{sWn}")
    a(f"s_lshl_b32 s{sT2}, s{sT2}, 10")
    a(f"s_add_u32 s{sT}, s{sT}, s{sT2}")
    a(f"v_mul_u32_u24 v{vE[0]}, 10240, v{vT[5]}")
    a(f"v_lshl_add_u32 v{vE[0]}, v{vT[4]}, 4, v{vE[0]}")
    a(f"v_add_u32 v{vE[0]}, s{sT}, v{vE[0]}")
    for e in range(1, 4): a(f"v_add_u32 v{vE[e]}, {e*20480}, v{vE[0]}")
    mainloop('v')
    for x in range(2):
        for w in range(2):
            acc = ACC[x][w]; pk = PK + 8 * (2 * x + w)
            for i in range(8): a(f"v_cvt_pk_bf16_f32 v{pk+i}, v{acc+2*i}, v{acc+2*i+1}")
            for j in range(2):
                a(f"buffer_store_dwordx4 {vr(pk+4*j,4)}, v{vE[2*x+j]}, s[{sC}:{sC+3}], 0 offen offset:{512*w} sc1")
    a(f"s_branch {L('adone')}")
    a.label(L("gate"))
    GW = 40; GX = 60
    assert vTch + 2 <= GW and GX + 160 <= PK
    srd(a, sB, 20, 0, 1280)
    srd(a, sC, sWS, WL.GATE, 2048 * 8)
    a(f"v_and_b32 v{vT[0]}, 15, v{vL}")
    a(f"v_lshlrev_b32 v{vT[0]}, 4, v{vT[0]}")
    a(f"s_and_b32 s{sAF}, s{sXc}, 3")
    a(f"s_lshl_b32 s{sAF}, s{sAF}, 2")
    a(f"s_lshr_b32 s{sT}, s{sXc}, 2")
    a(f"s_lshl_b32 s{sT}, s{sT}, 1")
    a(f"s_add_u32 s{sAF}, s{sAF}, s{sT}")
    a(f"s_add_u32 s{sAF}, s{sAF}, s{sJ}")
    a(f"s_sub_u32 s{sAF}, s{sAF}, 30")
    a(f"s_lshl_b32 s{sT}, s{sAF}, 1")
    a(f"s_add_u32 s{sT}, s{sT}, s{sWn}")
    a(f"s_add_u32 s{sAF}, s{sAF}, 240")
    a(f"s_lshl_b32 s{sT2}, s{sWm}, 5")
    a(f"v_lshrrev_b32 v{vT[5]}, 4, v{vL}")
    a(f"s_add_u32 s{sCnt}, s{sT}, s{sT2}")
    a(f"v_lshl_add_u32 v{vT[2]}, v{vT[5]}, 6, s{sCnt}")
    a(f"v_mul_u32_u24 v{vT[2]}, 1280, v{vT[2]}")
    a(f"v_add_u32 v{vT[2]}, v{vT[2]}, v{vT[0]}")
    a(f"s_lshl_b32 s{sT}, s{sT}, 6")
    a(f"s_add_u32 s{sT}, s{sT}, s{sT2}")
    a(f"v_add_u32 v{vT[5]}, s{sT}, v{vT[5]}")
    a(f"v_lshlrev_b32 v{vT[5]}, 3, v{vT[5]}")
    a(f"v_cmp_eq_u32 vcc, 0, v{vT[0]}")
    a("s_waitcnt lgkmcnt(0)")
    a("s_barrier")
    for p in range(5):
        a(f"buffer_load_dwordx4 {vr(GW+4*p,4)}, v{vT[0]}, s[{sB}:{sB+3}], 0 offen offset:{256*p}")
    for r in range(8):
        b4 = (r & 4) * 4 + (r & 1) * 8 + (r & 2) * 2
        a(f"s_mov_b32 s{sT}, {b4*64*1280}")
        for p in range(5):
            a(f"buffer_load_dwordx4 {vr(GX+20*r+4*p,4)}, v{vT[2]}, s[{sA}:{sA+3}], s{sT} offen offset:{256*p}")
        a(f"v_mov_b32 v{vE[r]}, 0")
    for r in range(8):
        a(f"s_waitcnt vmcnt({35-5*r})")
        for i in range(20):
            a(f"v_dot2c_f32_bf16 v{vE[r]}, v{GX+20*r+i}, v{GW+i}")
    a("s_nop 3")
    for sh in (8, 4, 2, 1):
        for r in range(8):
            a(f"v_add_f32_dpp v{vE[r]}, v{vE[r]}, v{vE[r]} row_ror:{sh} row_mask:0xf bank_mask:0xf")
    GO = PK
    for r in range(8): a(f"v_cvt_pk_bf16_f32 v{vE[r]}, 0, v{vE[r]}")
    for r in range(8): a(f"v_mul_f32 v{vE[r]}, 0xbfb8aa3b, v{vE[r]}")
    for r in range(8): a(f"v_exp_f32 v{vE[r]}, v{vE[r]}")
    for r in range(8): a(f"v_add_f32 v{vE[r]}, 1.0, v{vE[r]}")
    for r in range(8): a(f"v_rcp_f32 v{vE[r]}, v{vE[r]}")
    for r in range(8): a(f"v_cvt_pk_bf16_f32 v{GO+2*r}, 0, v{vE[r]}")
    for r in range(8): a(f"v_sub_f32 v{GO+2*r+1}, 1.0, v{GO+2*r}")
    for r in range(8): a(f"v_cvt_pk_bf16_f32 v{GO+2*r+1}, 0, v{GO+2*r+1}")
    a("s_mov_b64 exec, vcc")
    for r in range(8):
        a(f"buffer_store_dwordx2 {vr(GO+2*r,2)}, v{vT[5]}, s[{sC}:{sC+3}], 0 offen offset:{32*r} sc1")
    a("s_mov_b64 exec, -1")
    lds_inc(8)
    a.label(L("adone"))
    if fwait: lds_inc(20)
    st.stamp("ast")
    a(f"s_add_u32 s{sNonce}, s{sNonce}, 1")
    a(f"s_lshl_b32 s{sAF}, s{sAF}, 7")
    a(f"s_add_u32 s{sAF}, s{sAF}, {WL.FA}")

    a.label(L("att"))
    V = Alloc(VB, TOP)
    vKm = V.get(); vKr = V.get(); vV0 = V.get(); vV1 = V.get(); vM = V.get(); vWo = V.get()
    Qm = [V.get(4, 4) for _ in range(2)]
    Qr = [V.get(2) for _ in range(2)]
    Km = [V.get(4, 4) for _ in range(4)]
    Kr = [V.get(2) for _ in range(4)]
    Vb = [[V.get(4, 4) for _ in range(2)] for _ in range(4)]
    P = V.get(8, 4)
    S = [V.get(16, 4) for _ in range(2)]
    O = [V.get(16, 4) for _ in range(2)]
    K0m = V.get(4, 4); K0r = V.get(2)
    vG = V.get(2); vO = V.get(); vSt = V.get(); vGd = V.get(); vWs = V.get(); vX0 = V.get(); vX1 = V.get(); vGt = V.get(); vDum = V.get()
    WsF = [V.get(4, 4) for _ in range(2)]
    att_keep = V.p
    GFl = V.get(11, 4)
    att_hi = V.p
    assert att_hi <= TOP - 32
    sK = sA; sV = sB; sQ = sC; sWo = sD
    sHead = 98; sQb = 99; sKh = 100; sOK = 101; sOV = 14; sOWo = 15; sM0 = 3; sPar = sE; sHp = sE + 1; sStep = sE + 2; sU0 = sE + 3
    sCc = sHead; sEb8 = sQb; sMs = sPar
    a(f"s_and_b32 s{sT}, s{sJ}, 3")
    a(f"s_lshl_b32 s{sHead}, s{sXc}, 2")
    a(f"s_add_u32 s{sHead}, s{sHead}, s{sT}")
    a(f"s_lshr_b32 s{sQb}, s{sJ}, 2")
    a(f"s_lshr_b32 s{sKh}, s{sW}, 2")
    a(f"s_and_b32 s{sPar}, s{sHead}, 1")
    a(f"s_lshr_b32 s{sHp}, s{sHead}, 1")
    a(f"s_mul_i32 s{sHp}, s{sHp}, {5*WL.PL}")
    a(f"v_and_b32 v{vT[0]}, 31, v{vL}")
    a(f"v_lshrrev_b32 v{vT[1]}, 5, v{vL}")
    a(f"s_mul_i32 s{sT}, s{sPar}, {3*WL.PL}")
    a(f"v_lshlrev_b32 v{vKm}, 15, v{vT[1]}")
    a(f"v_lshl_add_u32 v{vKm}, v{vT[0]}, 4, v{vKm}")
    a(f"v_add_u32 v{vKm}, s{sT}, v{vKm}")
    a(f"s_lshl_b32 s{sT}, s{sPar}, 3")
    a(f"s_add_u32 s{sT}, s{sT}, {2*WL.PL}")
    a(f"v_lshl_add_u32 v{vKr}, v{vT[0]}, 4, s{sT}")
    a(f"v_and_b32 v{vT[2]}, 0x13, v{vT[0]}")
    a(f"v_bfe_u32 v{vT[3]}, v{vT[0]}, 2, 1")
    a(f"v_lshl_add_u32 v{vT[2]}, v{vT[3]}, 3, v{vT[2]}")
    a(f"v_bfe_u32 v{vT[3]}, v{vT[0]}, 3, 1")
    a(f"v_lshl_add_u32 v{vT[2]}, v{vT[3]}, 2, v{vT[2]}")
    a(f"v_and_b32 v{vT[5]}, 15, v{vT[2]}")
    a(f"s_lshl_b32 s{sT}, s{sPar}, 2")
    a(f"v_add_u32 v{vT[2]}, s{sT}, v{vT[2]}")
    a(f"v_subrev_u32 v{vT[3]}, 20, v{vT[2]}")
    a(f"v_min_u32 v{vT[2]}, v{vT[2]}, v{vT[3]}")
    a(f"s_mul_i32 s{sT}, s{sHead}, 320")
    a(f"v_mul_u32_u24 v{vV0}, 10240, v{vT[1]}")
    a(f"v_lshl_add_u32 v{vV0}, v{vT[2]}, 4, v{vV0}")
    a(f"v_add_u32 v{vV0}, s{sT}, v{vV0}")
    a(f"v_add_u32 v{vV1}, 20480, v{vV0}")
    a(f"s_add_u32 s{sT}, s{sHp}, {WL.KF}")
    srd(a, sK, sWS, f"s{sT}", 5 * WL.PL)
    srd(a, sV, sWS, WL.VF, 64 * WL.VT)
    a(f"s_add_u32 s{sT}, s{sHp}, {WL.QF}")
    srd(a, sQ, sWS, f"s{sT}", 5 * WL.PL)
    a(f"s_lshl_b32 s{sOK}, s{sKh}, 14")
    a(f"s_mul_i32 s{sOV}, s{sKh}, {32*WL.VT}")
    a(f"s_lshl_b32 s{sU0}, s{sQb}, 2")
    a(f"s_and_b32 s{sT}, s{sW}, 3")
    a(f"s_add_u32 s{sU0}, s{sU0}, s{sT}")
    a(f"s_lshl_b32 s{sU0}, s{sU0}, 10")
    for r in [K0r] + Kr:
        a(f"v_mov_b32 v{r}, 0x3f803f80")
        a(f"v_mov_b32 v{r+1}, 0x3f80")
    for q in range(2):
        a(f"v_mov_b32 v{Qr[q]}, 0"); a(f"v_mov_b32 v{Qr[q]+1}, 0")
    a(f"v_cmp_eq_u32 vcc, 20, v{vT[0]}")
    a(f"v_mov_b32 v{vT[2]}, 0x3f803f80")
    a(f"v_mov_b32 v{vT[3]}, 0")
    a(f"v_cndmask_b32 v{vT[2]}, v{vT[3]}, v{vT[2]}, vcc")
    for b in range(4):
        for j in range(2):
            for i in range(4): a(f"v_mov_b32 v{Vb[b][j]+i}, v{vT[2]}")
    for q in range(2):
        for i in range(16): a(f"v_mov_b32 v{O[q]+i}, 0")
    for i in range(8): a(f"v_mov_b32 v{P+i}, 0")
    a(f"v_and_b32 v{vT[0]}, 15, v{vL}")
    a(f"v_lshrrev_b32 v{vT[1]}, 4, v{vL}")
    a(f"s_and_b32 s{sT}, s{sW}, 3")
    a(f"s_lshl_b32 s{sT}, s{sT}, 4")
    a(f"s_lshl_b32 s{sT2}, s{sCc}, 6")
    a(f"s_add_u32 s{sT}, s{sT}, s{sT2}")
    a(f"v_add_u32 v{vT[2]}, s{sT}, v{vT[0]}")
    a(f"s_and_b32 s{sT}, s{sW}, 1")
    a(f"s_lshl_b32 s{sT}, s{sT}, 10")
    a(f"s_and_b32 s{sT2}, s{sW}, 2")
    a(f"s_lshl_b32 s{sT2}, s{sT2}, 4")
    a(f"s_add_u32 s{sT}, s{sT}, s{sT2}")
    a(f"s_add_u32 s{sT}, s{sT}, s{sCc}")
    a(f"v_lshl_add_u32 v{vT[0]}, v{vT[5]}, 6, s{sT}")
    a(f"v_lshlrev_b32 v{vWs}, 12, v{vT[0]}")
    a(f"v_lshl_add_u32 v{vWs}, v{vT[1]}, 4, v{vWs}")
    a(f"v_lshlrev_b32 v{vGt}, 3, v{vT[2]}")
    a(f"v_lshlrev_b32 v{vO}, 4, v{vT[2]}")
    a(f"v_lshl_add_u32 v{vO}, v{vT[1]}, 15, v{vO}")
    a(f"v_mul_u32_u24 v{vSt}, 1280, v{vT[0]}")
    a(f"v_lshl_add_u32 v{vSt}, v{vT[1]}, 3, v{vSt}")
    a(f"s_mul_i32 s{sT}, s{sEb8}, 160")
    a(f"v_add_u32 v{vSt}, s{sT}, v{vSt}")
    a(f"v_mul_u32_u24 v{vT[2]}, 205, v{vL}")
    a(f"v_lshrrev_b32 v{vT[2]}, 11, v{vT[2]}")
    a(f"v_mul_u32_u24 v{vWo}, {1280-160}, v{vT[2]}")
    a(f"v_lshl_add_u32 v{vWo}, v{vL}, 4, v{vWo}")
    a(f"v_add_u32 v{vWo}, s{sT}, v{vWo}")
    a(f"v_mul_u32_u24 v{vT[2]}, 187, v{vL}")
    a(f"v_lshrrev_b32 v{vT[2]}, 11, v{vT[2]}")
    a(f"v_mul_u32_u24 v{vT[3]}, 11, v{vT[2]}")
    a(f"v_sub_u32 v{vT[3]}, v{vL}, v{vT[3]}")
    a(f"v_mul_u32_u24 v{vGd}, {WL.GA}, v{vT[2]}")
    a(f"v_lshrrev_b32 v{vT[2]}, 1, v{vT[3]}")
    a(f"v_lshl_add_u32 v{vGd}, v{vT[2]}, 10, v{vGd}")
    a(f"v_and_b32 v{vT[3]}, 1, v{vT[3]}")
    a(f"v_lshl_add_u32 v{vGd}, v{vT[3]}, 4, v{vGd}")
    a(f"s_sub_u32 s{sT}, 7, s{sEb8}")
    a(f"s_sub_u32 s{sT2}, 32, s{sCc}")
    a(f"s_and_b32 s{sT2}, s{sT2}, 31")
    a(f"s_cmp_lt_u32 s{sEb8}, 4")
    a(f"s_cselect_b32 s{sT}, s{sEb8}, s{sT}")
    a(f"s_cselect_b32 s{sT2}, s{sCc}, s{sT2}")
    a(f"s_mul_i32 s{sT}, s{sT}, 5120")
    a(f"s_lshl_b32 s{sT2}, s{sT2}, 5")
    a(f"s_add_u32 s{sT}, s{sT}, s{sT2}")
    a(f"v_add_u32 v{vGd}, s{sT}, v{vGd}")
    a(f"s_mul_i32 s{sOWo}, s{sW}, {4*1280}")
    a(f"s_mov_b32 s{sStep}, {32*1280}")
    a(f"s_mov_b32 s{sMs}, 5120")
    a(f"s_and_b32 s{sT}, s{sW}, 1")
    a(f"s_lshl_b32 s{sT}, s{sT}, 4")
    a(f"s_lshr_b32 s{sT2}, s{sW}, 1")
    a(f"s_lshl_b32 s{sT2}, s{sT2}, 2")
    a(f"s_add_u32 s{sT}, s{sT}, s{sT2}")
    a(f"s_mul_i32 s{sM0}, s{sT}, 160")
    srd(a, sWo, 18, 0, 640 * 1280)
    a(f"s_mul_i32 s{sT}, s{sW}, 3072")
    a(f"s_add_u32 s{sT}, s{sT}, {LDS_X}")
    a(f"v_lshl_add_u32 v{vX0}, v{vL}, 4, s{sT}")
    a(f"s_xor_b32 s{sT}, s{sW}, 4")
    a(f"s_mul_i32 s{sT}, s{sT}, 3072")
    a(f"s_add_u32 s{sT}, s{sT}, {LDS_X}")
    a(f"v_lshl_add_u32 v{vX1}, v{vL}, 4, s{sT}")
    a(f"s_cmp_eq_u32 s{sAF}, 0")
    a(f"s_cbranch_scc1 {L('nsig')}")
    a(f"v_mov_b32 v{vT[0]}, 1")
    a("s_waitcnt vmcnt(0)")
    a("s_mov_b64 exec, 1")
    a(f"ds_add_rtn_u32 v{vT[1]}, v{vCtl}, v{vT[0]} offset:4")
    a("s_mov_b64 exec, -1")
    a("s_waitcnt lgkmcnt(0)")
    a(f"v_readfirstlane_b32 s{sT}, v{vT[1]}")
    a("s_nop 1")
    a(f"s_cmp_lg_u32 s{sT}, 3")
    a(f"s_cbranch_scc1 {L('nsig')}")
    put_flag(f"s{sAF}")
    st.stamp("aflag")
    a.label(L("nsig"))
    def aux_loads():
        sel_srd(sD, sKh, 6, 8, 2048 * 4096)
        a(f"buffer_load_dwordx4 {vr(WsF[0],4)}, v{vWs}, s[{sD}:{sD+3}], 0 offen")
        a(f"buffer_load_dwordx4 {vr(WsF[1],4)}, v{vWs}, s[{sD}:{sD+3}], 0 offen offset:64")
        srd(a, sWo, 18, 0, 640 * 1280)
        if wotouch:
            a(f"s_lshl_b32 s{sT}, s{sJ}, 3")
            a(f"s_add_u32 s{sT}, s{sT}, s{sW}")
            a(f"s_mul_i32 s{sT}, s{sT}, {25*128}")
            a(f"v_min_u32 v{vT[0]}, 24, v{vL}")
            a(f"v_lshlrev_b32 v{vT[0]}, 7, v{vT[0]}")
            a(f"buffer_load_dword v{vDum}, v{vT[0]}, s[{sWo}:{sWo+3}], s{sT} offen")
    a(f"s_cmp_eq_u32 s{sW}, 0")
    a(f"s_cbranch_scc1 {L('poll')}")
    lds_wait("wa", 0, 1)
    a(f"s_branch {L('go')}")
    a.label(L("poll"))
    a(f"s_mul_i32 s{sT}, s{sHead}, 20")
    a(f"v_bfe_u32 v{vT[0]}, v{vL}, 4, 1")
    a(f"v_mul_u32_u24 v{vT[0]}, 19, v{vT[0]}")
    a(f"v_add_u32 v{vT[0]}, s{sT}, v{vT[0]}")
    a(f"v_lshrrev_b32 v{vT[0]}, 7, v{vT[0]}")
    a(f"v_lshrrev_b32 v{vT[1]}, 5, v{vL}")
    a(f"v_mul_u32_u24 v{vT[1]}, 5, v{vT[1]}")
    a(f"v_add3_u32 v{vT[1]}, v{vT[1]}, v{vT[0]}, 5")
    a(f"v_and_b32 v{vT[2]}, 15, v{vL}")
    a(f"v_lshl_add_u32 v{vT[1]}, v{vT[1]}, 4, v{vT[2]}")
    a(f"v_lshlrev_b32 v{vT[1]}, 7, v{vT[1]}")
    a(f"s_lshl_b32 s{sT}, s{sQb}, 1")
    a(f"v_and_b32 v{vT[2]}, 1, v{vL}")
    a(f"v_lshl_add_u32 v{vT[0]}, v{vT[0]}, 4, v{vT[2]}")
    a(f"v_add_u32 v{vT[0]}, s{sT}, v{vT[0]}")
    a(f"v_lshlrev_b32 v{vT[0]}, 7, v{vT[0]}")
    a(f"s_mov_b32 s{sT2}, {WL.FA}")
    spin_begin("pa")
    a(f"buffer_load_dword v{vT[2]}, v{vT[1]}, s[{sFl}:{sFl+3}], s{sT2} offen sc1")
    a(f"buffer_load_dword v{vT[3]}, v{vT[0]}, s[{sFl}:{sFl+3}], s{sT2} offen sc1")
    a("s_waitcnt vmcnt(0)")
    for i in range(2): a(f"v_xor_b32 v{vT[2]+i}, s{sNonce}, v{vT[2]+i}")
    a(f"v_or_b32 v{vT[2]}, v{vT[2]}, v{vT[3]}")
    a(f"v_cmp_ne_u32 vcc, 0, v{vT[2]}")
    a("s_nop 1")
    a("s_cmp_eq_u64 vcc, 0")
    a(f"s_cbranch_scc1 {L('pad')}")
    spin_end("pa", psleep)
    a.label(L("pad"))
    a(f"v_mov_b32 v{vT[0]}, 1")
    a(f"ds_write_b32 v{vCtl}, v{vT[0]}")
    a.label(L("go"))
    st.stamp("ardy")
    a(f"buffer_load_dwordx4 {vr(K0m,4)}, v{vKm}, s[{sK}:{sK+3}], 0 offen sc1")
    a(f"buffer_load_dwordx4 {vr(Qm[0],4)}, v{vKm}, s[{sQ}:{sQ+3}], s{sU0} offen sc1")
    a(f"buffer_load_dwordx4 {vr(Qm[1],4)}, v{vKm}, s[{sQ}:{sQ+3}], s{sU0} offen offset:512 sc1")
    a(f"s_mov_b64 exec, s[{sLo}:{sLo+1}]")
    a(f"buffer_load_dwordx2 {vr(K0r,2)}, v{vKr}, s[{sK}:{sK+3}], 0 offen sc1")
    a(f"buffer_load_dwordx2 {vr(Qr[0],2)}, v{vKr}, s[{sQ}:{sQ+3}], s{sU0} offen sc1")
    a(f"buffer_load_dwordx2 {vr(Qr[1],2)}, v{vKr}, s[{sQ}:{sQ+3}], s{sU0} offen offset:512 sc1")
    a(f"buffer_load_dwordx2 {vr(Kr[0],2)}, v{vKr}, s[{sK}:{sK+3}], s{sOK} offen sc1")
    a("s_mov_b64 exec, -1")
    a(f"buffer_load_dwordx4 {vr(Km[0],4)}, v{vKm}, s[{sK}:{sK+3}], s{sOK} offen sc1")
    SC = ' sc1' if kvsc1 else ''
    def ex(m, inloop):
        if inloop and noexec: return
        a(f"s_mov_b64 exec, s[{m}:{m+1}]" if m is not None else "s_mov_b64 exec, -1")
    def ldKr(kb, koff): a(f"buffer_load_dwordx2 {vr(Kr[kb],2)}, v{vKr}, s[{sK}:{sK+3}], s{sOK} offen offset:{koff}{SC}")
    def ldKm(kb, koff): a(f"buffer_load_dwordx4 {vr(Km[kb],4)}, v{vKm}, s[{sK}:{sK+3}], s{sOK} offen offset:{koff}{SC}")
    def ldV(vb, j): a(f"buffer_load_dwordx4 {vr(Vb[vb][j],4)}, v{vV0+j}, s[{sV}:{sV+3}], s{sOV} offen{SC}")
    def group(kb, vb, koff, inloop=False):
        if inloop and noload: return
        ex(sLo, inloop); ldKr(kb, koff)
        ex(sVm, inloop); ldV(vb, 0); ldV(vb, 1)
        ex(None, inloop); ldKm(kb, koff)
        a(f"s_add_u32 s{sOV}, s{sOV}, {WL.VT}")
    group(1, 0, 512)
    a("s_waitcnt vmcnt(6)")
    st.stamp("qld")
    for q in range(2):
        a(f"v_mfma_f32_32x32x16_bf16 {vr(S[q],16)}, {vr(K0m,4)}, {vr(Qm[q],4)}, 0")
    group(2, 1, 1024)
    a("s_nop 1")
    for q in range(2):
        a(f"v_mfma_f32_32x32x8_bf16 {vr(S[q],16)}, {vr(K0r,2)}, {vr(Qr[q],2)}, {vr(S[q],16)}")
    group(3, 2, 1536)
    a("s_nop 3")
    for q in range(2):
        a(f"v_max3_f32 v{S[q]}, v{S[q]}, v{S[q]+1}, v{S[q]+2}")
        for i in range(3, 15, 2):
            a(f"v_max3_f32 v{S[q]}, v{S[q]}, v{S[q]+i}, v{S[q]+i+1}")
        a(f"v_max_f32 v{S[q]}, v{S[q]}, v{S[q]+15}")
    a(f"s_mov_b64 exec, s[{sHi}:{sHi+1}]")
    for q in range(2):
        a(f"v_cvt_pk_bf16_f32 v{Qr[q]}, -v{S[q]}, 0")
    a("s_mov_b64 exec, -1")
    a("s_waitcnt vmcnt(12)")
    a(f"v_mfma_f32_32x32x16_bf16 {vr(S[0],16)}, {vr(Km[0],4)}, {vr(Qm[0],4)}, 0")
    a(f"s_add_u32 s{sT}, s{sHp}, {WL.OF}")
    srd(a, sQ, sWS, f"s{sT}", 5 * WL.PL)
    a("s_nop 3")
    a(f"v_mfma_f32_32x32x8_bf16 {vr(S[0],16)}, {vr(Kr[0],2)}, {vr(Qr[0],2)}, {vr(S[0],16)}")
    a(f"s_mov_b32 s{sCnt}, 7")
    a("s_mov_b64 vcc, 0")
    a("s_setprio 3")
    st.stamp("lbeg")
    def exp(q, i): a(f"v_exp_f32 v{S[q]+i}, v{S[q]+i}")
    def cvt(q, i): a(f"v_cvt_pk_bf16_f32 v{P+i}, v{S[q]+2*i}, v{S[q]+2*i+1}")
    def slot(kt, q):
        nq = 1 - q
        nk = (kt + q) % 4
        pk = (kt + q - 1) % 4
        a(f"v_mfma_f32_32x32x16_bf16 {vr(S[nq],16)}, {vr(Km[nk],4)}, {vr(Qm[nq],4)}, 0")
        if spread and q == 0:
            ex(sVm, True); ldV((kt - 1) % 4, 0); ex(None, True)
        for i in range(0, 4): exp(q, i)
        a(f"v_mfma_f32_32x32x16_bf16 {vr(O[nq],16)}, {vr(Vb[pk][1],4)}, {vr(P+4,4)}, {vr(O[nq],16)}")
        if spread and q == 0:
            ex(sVm, True); ldV((kt - 1) % 4, 1); ex(None, True)
            a(f"s_add_u32 s{sOV}, s{sOV}, {WL.VT}")
        for i in range(4, 8): exp(q, i)
        cvt(q, 0)
        a(f"v_mfma_f32_32x32x8_bf16 {vr(S[nq],16)}, {vr(Kr[nk],2)}, {vr(Qr[nq],2)}, {vr(S[nq],16)}")
        if q == 0:
            if spread:
                ex(sLo, True); ldKr(kt, 512 * (kt + 4)); ex(None, True)
            else:
                group(kt, (kt - 1) % 4, 512 * (kt + 4), True)
            if kt == 0:
                a(f"s_cmp_eq_u32 s{sCnt}, 0")
                a(f"s_cselect_b32 s{sV+2}, 0, s{sV+2}")
        else:
            a(f"s_cbranch_vccz {L('nd%d' % kt)}")
            a(f"s_mov_b32 m0, s{sM0}")
            a(f"s_mov_b64 exec, s[{sDm}:{sDm+1}]")
            a(f"buffer_load_dwordx4 v{vWo}, s[{sWo}:{sWo+3}], s{sOWo} offen sc1 lds")
            a("s_mov_b64 exec, -1")
            a(f"s_add_u32 s{sM0}, s{sM0}, s{sMs}")
            a(f"s_add_u32 s{sOWo}, s{sOWo}, s{sStep}")
            a.label(L("nd%d" % kt))
        for i in range(1, 4): cvt(q, i)
        for i in range(8, 12): exp(q, i)
        if q == 0 and not nowait: a("s_waitcnt vmcnt(%d)" % (11 if spread else 12))
        a(f"v_mfma_f32_32x32x16_bf16 {vr(O[q],16)}, {vr(Vb[kt][0],4)}, {vr(P,4)}, {vr(O[q],16)}")
        if spread and q == 0: ldKm(kt, 512 * (kt + 4))
        for i in range(12, 16): exp(q, i)
        for i in range(4, 8): cvt(q, i)
    def gfl_loads():
        a(f"v_mul_u32_u24 v{vT[0]}, 48, v{vL}")
        a(f"buffer_load_dwordx4 {vr(GFl,4)}, v{vT[0]}, s[{sFl}:{sFl+3}], 0 offen offset:{WL.FG} sc1")
        a(f"buffer_load_dwordx4 {vr(GFl+4,4)}, v{vT[0]}, s[{sFl}:{sFl+3}], 0 offen offset:{WL.FG+16} sc1")
        a(f"buffer_load_dwordx2 {vr(GFl+8,2)}, v{vT[0]}, s[{sFl}:{sFl+3}], 0 offen offset:{WL.FG+32} sc1")
        a(f"s_lshr_b32 s{sT}, s{sCc}, 1")
        a(f"s_lshl_b32 s{sT}, s{sT}, 7")
        a(f"s_add_u32 s{sT}, s{sT}, {WL.FA + 240*128}")
        a(f"buffer_load_dword v{GFl+10}, off, s[{sFl}:{sFl+3}], s{sT} sc1")
    a("s_nop 7")
    a(f"s_branch {L('loop')}")
    a.label(L("head"))
    for lvl, c in zip((2, 1, 0), prio):
        a(f"s_cmp_lg_u32 s{sCnt}, {c-1}")
        a(f"s_cbranch_scc1 {L('hp%d' % lvl)}")
        a(f"s_setprio {lvl}")
        a.label(L("hp%d" % lvl))
    a(f"s_cmp_eq_u32 s{sCnt}, 5")
    a(f"s_cbranch_scc1 {L('h5')}")
    a(f"s_cmp_eq_u32 s{sCnt}, 0")
    a(f"s_cbranch_scc1 {L('h0')}")
    a(f"s_cmp_eq_u32 s{sCnt}, 1")
    a(f"s_cbranch_scc1 {L('h1')}")
    a(f"s_cmp_lg_u32 s{sCnt}, 6")
    a(f"s_cbranch_scc1 {L('loop')}")
    aux_loads()
    a(f"s_branch {L('loop')}")
    a.label(L("h1"))
    gfl_loads()
    a(f"s_branch {L('loop')}")
    a.label(L("h5"))
    a(f"s_cmp_eq_u32 s{sGF}, 0")
    a(f"s_cbranch_scc1 {L('h5b')}")
    put_flag(f"s{sGF}")
    a.label(L("h5b"))
    lds_wait("wr", 8, 8)
    a("s_mov_b64 vcc, %d" % (0 if nodma else -1))
    a(f"s_branch {L('loop')}")
    a.label(L("h0"))
    a(f"s_mov_b32 s{sK+2}, 0")
    spin_begin("pg")
    for i in range(11): a(f"v_xor_b32 v{GFl+i}, s{sNonce}, v{GFl+i}")
    for i in range(1, 11, 2): a(f"v_or3_b32 v{GFl}, v{GFl}, v{GFl+i}, v{GFl+i+1}")
    a(f"v_cmp_ne_u32 vcc, 0, v{GFl}")
    a("s_nop 1")
    a("s_cmp_eq_u64 vcc, 0")
    a(f"s_cbranch_scc1 {L('pgd')}")
    a("s_sleep 8")
    gfl_loads()
    a("s_waitcnt vmcnt(0)")
    spin_end("pg")
    a.label(L("pgd"))
    a("s_mov_b64 vcc, %d" % (0 if nodma else -1))
    srd(a, sWo, sWS, WL.GATE, 2048 * 8)
    a(f"buffer_load_dwordx2 {vr(vG,2)}, v{vGt}, s[{sWo}:{sWo+3}], 0 offen sc1")
    srd(a, sWo, sWS, WL.G, WL.G_SIZE)
    a(f"v_mov_b32 v{vWo}, v{vGd}")
    a(f"s_mul_i32 s{sOWo}, s{sW}, {4*WL.GA}")
    a(f"s_mov_b32 s{sStep}, {32*WL.GA}")
    a(f"s_mov_b32 s{sMs}, {GSTEP}")
    a(f"s_mov_b32 s{sDm+1}, 0xfff")
    a(f"s_and_b32 s{sT}, s{sW}, 1")
    a(f"s_lshl_b32 s{sT}, s{sT}, 4")
    a(f"s_lshr_b32 s{sT2}, s{sW}, 1")
    a(f"s_lshl_b32 s{sT2}, s{sT2}, 2")
    a(f"s_add_u32 s{sT}, s{sT}, s{sT2}")
    a(f"s_mul_i32 s{sM0}, s{sT}, 176")
    a(f"s_add_u32 s{sM0}, s{sM0}, {GIMG}")
    a.raw(".p2align 6")
    a.label(L("loop"))
    for kt in range(4):
        for q in range(2): slot(kt, q)
    a(f"s_add_u32 s{sOK}, s{sOK}, 2048")
    evm = 0
    for c in [6, 5, 1, 0] + [p - 1 for p in prio if p > 0]: evm |= 1 << c
    a(f"s_sub_u32 s{sCnt}, s{sCnt}, 1")
    a(f"s_bitcmp1_b32 {hex(~evm & 0xff)}, s{sCnt}")
    a(f"s_cbranch_scc1 {L('loop')}")
    a(f"s_cmp_ge_i32 s{sCnt}, 0")
    a(f"s_cbranch_scc1 {L('head')}")
    a(f"v_mfma_f32_32x32x16_bf16 {vr(O[1],16)}, {vr(Vb[3][1],4)}, {vr(P+4,4)}, {vr(O[1],16)}")
    a("s_setprio 3")
    st.stamp("lend")
    a(f"s_lshr_b32 s{sOWo}, s{sU0}, 9")
    a(f"s_add_u32 s{sOWo}, s{sOWo}, s{sKh}")
    a(f"s_lshl_b32 s{sOWo}, s{sOWo}, 5")
    a(f"s_add_u32 s{sOWo}, s{sOWo}, s{sHead}")
    a(f"s_lshl_b32 s{sOWo}, s{sOWo}, 7")
    a(f"s_add_u32 s{sOWo}, s{sOWo}, {WL.FO}")
    a(f"s_lshl_b32 s{sT}, s{sKh}, 9")
    a(f"s_add_u32 s{sOK}, s{sU0}, s{sT}")
    a("s_nop 1")
    a(f"s_cmp_eq_u32 s{sKh}, 0")
    a(f"s_cbranch_scc1 {L('x0')}")
    for r in range(3): a(f"ds_write_b128 v{vX0}, {vr(O[0]+4*r,4)} offset:{1024*r}")
    a("s_waitcnt lgkmcnt(0)")
    for i in range(12): a(f"v_mov_b32 v{O[0]+i}, v{O[1]+i}")
    for i in range(4): a(f"v_mov_b32 v{Qm[0]+i}, v{Qm[1]+i}")
    for i in range(2): a(f"v_mov_b32 v{Qr[0]+i}, v{Qr[1]+i}")
    a(f"s_branch {L('x1')}")
    a.label(L("x0"))
    for r in range(3): a(f"ds_write_b128 v{vX0}, {vr(O[1]+4*r,4)} offset:{1024*r}")
    a.label(L("x1"))
    a("s_waitcnt vmcnt(0) lgkmcnt(0)")
    a("s_barrier")
    st.stamp("x1")
    for r in range(3): a(f"ds_read_b128 {vr(S[0]+4*r,4)}, v{vX1} offset:{1024*r}")
    a("s_waitcnt lgkmcnt(0)")
    for i in range(12): a(f"v_add_f32 v{O[0]+i}, v{O[0]+i}, v{S[0]+i}")
    def bcast_l():
        a(f"v_mov_b32 v{O[0]+12}, v{O[0]+8}")
        a(f"v_mov_b32 v{O[0]+13}, v{O[0]+8}")
        a("s_nop 1")
        a(f"v_permlane32_swap_b32 v{O[0]+13}, v{O[0]+12}")
        a("s_nop 1")
    bcast_l()
    a(f"v_mul_f32 v{vM}, 0, v{O[0]}")
    for i in range(1, 12): a(f"v_fmac_f32 v{vM}, 0, v{O[0]+i}")
    a(f"v_add_f32 v{vM}, v{vM}, v{O[0]+12}")
    a(f"v_cmp_nge_f32 vcc, 0x71800000, v{vM}")
    a(f"s_mov_b32 s{sT}, 0x21800000")
    a(f"v_cmp_gt_f32 s[{sT2+1}:{sT2+2}], s{sT}, v{vM}")
    a("s_nop 1")
    a(f"s_or_b64 vcc, vcc, s[{sT2+1}:{sT2+2}]")
    a(f"s_cbranch_scc1 {L('slow')}")
    a.label(L("fin"))
    a(f"v_rcp_f32 v{vM}, v{O[0]+12}")
    a("s_nop 0")
    for i in range(12): a(f"v_mul_f32 v{O[0]+i}, v{O[0]+i}, v{vM}")
    PO = K0m
    assert K0r == K0m + 4
    for i in range(6): a(f"v_cvt_pk_bf16_f32 v{PO+i}, v{O[0]+2*i}, v{O[0]+2*i+1}")
    a(f"buffer_store_dwordx4 {vr(PO,4)}, v{vKm}, s[{sQ}:{sQ+3}], s{sOK} offen sc1")
    a(f"s_mov_b64 exec, s[{sLo}:{sLo+1}]")
    a(f"buffer_store_dwordx2 {vr(PO+4,2)}, v{vKr}, s[{sQ}:{sQ+3}], s{sOK} offen sc1")
    a("s_mov_b64 exec, -1")
    st.stamp("ost")

    V = Alloc(VB, TOP)
    vR = V.get(); vR2 = V.get()
    NPRE = 7
    AF = [[V.get(4, 4) for _ in range(5)] for _ in range(NPRE)]
    AY4 = V.get(4, 4)
    assert V.p <= PO, (V.p, PO)
    V.p = att_keep
    AY = [V.get(4, 4) for _ in range(4)] + [AY4]
    AB = [V.get(4, 4) for _ in range(4)] + [PO]
    OFr = [V.get(4, 4) for _ in range(10)]
    Y1 = OFr[0:5]; Y2 = OFr[5:10]
    a(f"v_lshrrev_b32 v{vT[0]}, 2, v{vL}")
    a(f"v_and_b32 v{vT[1]}, 3, v{vL}")
    a(f"v_mul_u32_u24 v{vR}, 160, v{vT[0]}")
    a(f"v_lshl_add_u32 v{vR}, v{vT[1]}, 3, v{vR}")
    a(f"s_mul_i32 s{sT}, s{sKh}, {10*5120}")
    a(f"v_add_u32 v{vR}, s{sT}, v{vR}")
    a(f"s_cmp_lt_u32 s{sEb8}, 4")
    a(f"s_cselect_b32 s{sT}, 0, 3")
    a(f"v_xor_b32 v{vT[1]}, s{sT}, v{vT[1]}")
    a(f"v_mul_u32_u24 v{vR2}, 176, v{vT[0]}")
    a(f"v_lshl_add_u32 v{vR2}, v{vT[1]}, 3, v{vR2}")
    a(f"s_mul_i32 s{sT}, s{sKh}, {2*GSTEP}")
    a(f"s_add_u32 s{sT}, s{sT}, {GIMG}")
    a(f"v_add_u32 v{vR2}, s{sT}, v{vR2}")
    def rd(dst, base, off, pitch=160):
        for t in range(5):
            a(f"ds_read_b64_tr_b16 {vr(dst[t],2)}, v{base} offset:{off + 32*t}")
            a(f"ds_read_b64_tr_b16 {vr(dst[t]+2,2)}, v{base} offset:{off + 32*t + 16*pitch}")
    def ymf(Y, F0, F1):
        for s, F in enumerate((F0, F1)):
            for t in range(5):
                c = "0" if s == 0 else vr(Y[t], 4)
                a(f"v_mfma_f32_16x16x32_bf16 {vr(Y[t],4)}, {vr(F[t],4)}, {vr(WsF[s],4)}, {c}")
    rd(AF[5], vR2, 0, 176); rd(AF[6], vR2, GSTEP, 176)
    rd(AF[3], vR2, 8, 176); rd(AF[4], vR2, GSTEP + 8, 176)
    a("s_waitcnt vmcnt(0)")
    put_flag(f"s{sOWo}")
    st.stamp("oflag")
    for s in range(3): rd(AF[s], vR, 5120 * s)
    a("s_waitcnt lgkmcnt(%d)" % (0 if stamps else 15))
    ymf(Y1, AF[5], AF[6])
    ymf(Y2, AF[3], AF[4])
    for s in range(3, NPRE): rd(AF[s], vR, 5120 * s)
    a(f"s_cmp_lt_u32 s{sEb8}, 4")
    a(f"s_cbranch_scc0 {L('ymir')}")
    for t in range(5):
        for i in range(4): a(f"v_mul_f32 v{AY[t]+i}, v{Y1[t]+i}, v{vG}")
    a(f"s_branch {L('ydone')}")
    a.label(L("ymir"))
    a(f"s_lshl_b32 s{sT}, s{sKh}, 31")
    a(f"v_xor_b32 v{vG}, s{sT}, v{vG}")
    for t in range(5):
        a(f"v_mul_f32 v{AY[t]}, v{Y2[4-t]}, v{vG}")
        for i in range(1, 4): a(f"v_mul_f32 v{AY[t]+i}, v{Y1[4-t]+4-i}, v{vG}")
    a.label(L("ydone"))
    srd(a, sA, sWS, WL.OF, 80 * WL.PL)
    srd(a, sC, 22, 0, 2048 * 1280)
    a(f"s_lshl_b32 s{sT}, s{sCc}, 1")
    a(f"s_bfe_u32 s{sT2}, s{sW}, 0x10001")
    a(f"s_add_u32 s{sT}, s{sT}, s{sT2}")
    a(f"s_lshl_b32 s{sT}, s{sT}, 1")
    a(f"s_add_u32 s{sT}, s{sT}, s{sKh}")
    a(f"s_lshl_b32 s{sT2}, s{sT}, 11")
    a(f"s_add_u32 s{sT2}, s{sT2}, {WL.FO}")
    a(f"v_and_b32 v{vT[0]}, 15, v{vL}")
    a(f"v_lshlrev_b32 v{vT[0]}, 7, v{vT[0]}")
    st.stamp("pbeg")
    spin_begin("po")
    a(f"buffer_load_dword v{vT[2]}, v{vT[0]}, s[{sFl}:{sFl+3}], s{sT2} offen sc1")
    a("s_waitcnt vmcnt(0)")
    a(f"v_cmp_ne_u32 vcc, s{sNonce}, v{vT[2]}")
    a("s_nop 1")
    a("s_cmp_eq_u64 vcc, 0")
    a(f"s_cbranch_scc1 {L('pod')}")
    spin_end("po", 1)
    a.label(L("pod"))
    st.stamp("pend")
    a(f"s_mul_i32 s{sT}, s{sKh}, {40*WL.PL}")
    for s in range(10):
        a(f"buffer_load_dwordx4 {vr(OFr[s],4)}, v{vO}, s[{sA}:{sA+3}], s{sT} offen sc1")
        if s < 9: a(f"s_add_u32 s{sT}, s{sT}, {4*WL.PL}")
    a("s_waitcnt lgkmcnt(0)")
    for s in range(10):
        a(f"s_waitcnt vmcnt({9-s})" + (f" lgkmcnt({min(15, 10*(9-s))})" if s >= NPRE else ""))
        for t in range(5):
            c = "0" if s == 0 else vr(AB[t], 4)
            a(f"v_mfma_f32_16x16x32_bf16 {vr(AB[t],4)}, {vr(AF[s % NPRE][t],4)}, {vr(OFr[s],4)}, {c}")
        if s + NPRE < 10: rd(AF[s], vR, 5120 * (s + NPRE))
    st.stamp("dmf")
    a("s_nop 7")
    for t in range(5):
        for i in range(4): a(f"v_fmac_f32 v{AY[t]+i}, v{AB[t]+i}, v{vG+1}")
    if probe:
        a("s_memrealtime s[72:73]")
        a("s_waitcnt lgkmcnt(0)")
        a("s_sub_u32 s72, s72, s70")
        a(f"s_cmp_lt_u32 s72, {probe}")
        a(f"s_cbranch_scc1 {L('prb')}")
        for t in range(5): a(f"v_mov_b32 v{AY[t]}, 0x7fc00000")
        a.label(L("prb"))
    def dfin(keep, send):
        for r, t in enumerate(send): a(f"ds_write_b128 v{vX1}, {vr(AY[t],4)} offset:{1024*r}")
        a("s_waitcnt lgkmcnt(0)")
        a("s_barrier")
        for r, t in enumerate(keep): a(f"ds_read_b128 {vr(AB[t],4)}, v{vX0} offset:{1024*r}")
        for r, t in enumerate(keep):
            a(f"s_waitcnt lgkmcnt({len(keep)-1-r})")
            for i in range(4): a(f"v_add_f32 v{AY[t]+i}, v{AY[t]+i}, v{AB[t]+i}")
            a(f"v_cvt_pk_bf16_f32 v{AY[t]}, v{AY[t]}, v{AY[t]+1}")
            a(f"v_cvt_pk_bf16_f32 v{AY[t]+1}, v{AY[t]+2}, v{AY[t]+3}")
            a(f"buffer_store_dwordx2 {vr(AY[t],2)}, v{vSt}, s[{sC}:{sC+3}], 0 offen offset:{32*t}")
    a(f"s_cmp_eq_u32 s{sKh}, 0")
    a(f"s_cbranch_scc1 {L('d0')}")
    dfin([3, 4], [0, 1, 2])
    a(f"s_branch {L('dend')}")
    a.label(L("d0"))
    dfin([0, 1, 2], [3, 4])
    a.label(L("dend"))
    a(f"s_lshl_b32 s{sT}, s2, 3")
    a(f"s_add_u32 s{sT}, s{sT}, s{sW}")
    a(f"s_cmp_lg_u32 s{sT}, 4")
    a(f"s_cbranch_scc1 {L('ed')}")
    a(f"v_lshlrev_b32 v{vT[0]}, 9, v{vL}")
    a(f"s_mov_b32 s{sT2}, {WL.FA}")
    spin_begin("pe")
    for i in range(4): a(f"buffer_load_dword v{vT[2]+i}, v{vT[0]}, s[{sFl}:{sFl+3}], s{sT2} offen offset:{128*i} sc1")
    a("s_waitcnt vmcnt(0)")
    for i in range(4): a(f"v_xor_b32 v{vT[2]+i}, s{sNonce}, v{vT[2]+i}")
    a(f"v_or3_b32 v{vT[2]}, v{vT[2]}, v{vT[3]}, v{vT[4]}")
    a(f"v_or_b32 v{vT[2]}, v{vT[2]}, v{vT[5]}")
    a(f"v_cmp_ne_u32 vcc, 0, v{vT[2]}")
    a("s_nop 1")
    a("s_cmp_eq_u64 vcc, 0")
    a(f"s_cbranch_scc1 {L('ped')}")
    spin_end("pe")
    a.label(L("ped"))
    put_flag("0")
    a.label(L("ed"))
    st.finish(9)
    a.label(L("end"))
    a("s_endpgm")

    a.label(L("slow"))
    sSK = sT2 + 1; sSV = sT2 + 2
    a("s_waitcnt vmcnt(0)")
    a(f"s_mov_b32 s{sK+2}, {5*WL.PL}")
    a(f"s_mov_b32 s{sV+2}, {64*WL.VT}")
    a(f"s_mov_b64 exec, s[{sHi}:{sHi+1}]")
    a(f"v_mov_b32 v{Qr[0]}, 0")
    a(f"v_mov_b32 v{Qr[0]+1}, 0")
    a("s_mov_b64 exec, -1")
    a(f"v_mov_b32 v{vM}, 0xff800000")
    a(f"s_mov_b32 s{sSK}, 0")
    def qk_slow():
        a(f"s_mov_b64 exec, s[{sLo}:{sLo+1}]")
        a(f"buffer_load_dwordx2 {vr(Kr[0],2)}, v{vKr}, s[{sK}:{sK+3}], s{sSK} offen sc1")
        a("s_mov_b64 exec, -1")
        a(f"buffer_load_dwordx4 {vr(Km[0],4)}, v{vKm}, s[{sK}:{sK+3}], s{sSK} offen sc1")
        a("s_waitcnt vmcnt(0)")
        a(f"v_mfma_f32_32x32x16_bf16 {vr(S[0],16)}, {vr(Km[0],4)}, {vr(Qm[0],4)}, 0")
        a("s_nop 11")
        a(f"v_mfma_f32_32x32x8_bf16 {vr(S[0],16)}, {vr(Kr[0],2)}, {vr(Qr[0],2)}, {vr(S[0],16)}")
        a("s_nop 12")
    a.label(L("s1"))
    qk_slow()
    for i in range(0, 16, 2):
        a(f"v_max3_f32 v{vM}, v{vM}, v{S[0]+i}, v{S[0]+i+1}")
    a(f"s_add_u32 s{sSK}, s{sSK}, 512")
    a(f"s_cmp_lt_u32 s{sSK}, {WL.PL}")
    a(f"s_cbranch_scc1 {L('s1')}")
    a(f"v_mov_b32 v{vT[0]}, v{vM}")
    a("s_nop 1")
    a(f"v_permlane32_swap_b32 v{vT[0]}, v{vM}")
    a("s_nop 1")
    a(f"v_max_f32 v{vM}, v{vM}, v{vT[0]}")
    a(f"v_cvt_pk_bf16_f32 v{S[0]}, 0, -v{vM}")
    a(f"v_sub_f32 v{vT[0]}, 0, v{vM}")
    a(f"v_sub_f32 v{vT[0]}, v{vT[0]}, v{S[0]}")
    a(f"v_cvt_pk_bf16_f32 v{S[0]+1}, 0, v{vT[0]}")
    a(f"v_sub_f32 v{vT[1]}, v{vT[0]}, v{S[0]+1}")
    a(f"s_mov_b64 exec, s[{sHi}:{sHi+1}]")
    a(f"v_cvt_pk_bf16_f32 v{Qr[0]}, v{S[0]}, v{S[0]+1}")
    a(f"v_cvt_pk_bf16_f32 v{Qr[0]+1}, v{vT[1]}, 0")
    a("s_mov_b64 exec, -1")
    for i in range(16): a(f"v_mov_b32 v{O[0]+i}, 0")
    a(f"s_mov_b32 s{sSK}, 0")
    a(f"s_mov_b32 s{sSV}, 0")
    a.label(L("s2"))
    a(f"s_mov_b64 exec, s[{sVm}:{sVm+1}]")
    a(f"buffer_load_dwordx4 {vr(Vb[0][0],4)}, v{vV0}, s[{sV}:{sV+3}], s{sSV} offen sc1")
    a(f"buffer_load_dwordx4 {vr(Vb[0][1],4)}, v{vV1}, s[{sV}:{sV+3}], s{sSV} offen sc1")
    qk_slow()
    for i in range(16): exp(0, i)
    a("s_nop 0")
    for i in range(8): cvt(0, i)
    a("s_nop 1")
    a(f"v_mfma_f32_32x32x16_bf16 {vr(O[0],16)}, {vr(Vb[0][0],4)}, {vr(P,4)}, {vr(O[0],16)}")
    a(f"v_mfma_f32_32x32x16_bf16 {vr(O[0],16)}, {vr(Vb[0][1],4)}, {vr(P+4,4)}, {vr(O[0],16)}")
    a(f"s_add_u32 s{sSK}, s{sSK}, 512")
    a(f"s_add_u32 s{sSV}, s{sSV}, {WL.VT}")
    a(f"s_cmp_lt_u32 s{sSK}, {WL.PL}")
    a(f"s_cbranch_scc1 {L('s2')}")
    a("s_nop 12")
    bcast_l()
    a(f"s_branch {L('fin')}")
    return a.text(), kernel_desc(name, 256, 102), f"; @launch grid=(256,1,1) block=(512,1,1) lds={LDS_SIZE}"

if __name__ == "__main__":
    import sys
    from gen import build
    path = sys.argv[1]
    sn = [x[3:].split(',') for x in sys.argv if x.startswith('sn=')]
    kw = {x.split('=')[0]: eval(x.split('=')[1]) for x in sys.argv[2:] if not x.startswith('sn=')}
    build(path, [gen(stamps=bool(sn), snames=sn[0] if sn else (), **kw)])
```

```python
class Asm:
    def __init__(self):
        self.lines = []
    def __call__(self, s, *a):
        for l in s.split("\n"):
            l = l.strip()
            if l:
                self.lines.append("    " + l)
    def label(self, n):
        self.lines.append(n + ":")
    def raw(self, s):
        self.lines.append(s)
    def c(self, s):
        self.lines.append("    ; " + s)
    def text(self):
        return "\n".join(self.lines) + "\n"

class Alloc:
    def __init__(self, start, limit):
        self.p = start; self.limit = limit; self.hi = start
    def get(self, n=1, align=1):
        if n >= 2 and align < 2: align = 2
        self.p = (self.p + align - 1) // align * align
        r = self.p; self.p += n
        assert self.p <= self.limit, "out of regs"
        self.hi = max(self.hi, self.p)
        return r

def vr(b, n=1):
    return f"v{b}" if n == 1 else f"v[{b}:{b+n-1}]"
def sr(b, n=1):
    return f"s{b}" if n == 1 else f"s[{b}:{b+n-1}]"

def kernel_begin(a, name):
    a.raw(".text")
    a.raw(f".globl {name}")
    a.raw(".p2align 8")
    a.raw(f".type {name},@function")
    a.label(name)

def kernel_desc(name, vgpr, sgpr=96):
    vg = (vgpr + 7) // 8 * 8
    return f""".section .rodata,"a"
.p2align 6
.amdhsa_kernel {name}
  .amdhsa_next_free_vgpr {vg}
  .amdhsa_next_free_sgpr {sgpr}
  .amdhsa_accum_offset {min(256, vg)}
  .amdhsa_group_segment_fixed_size 0
  .amdhsa_kernarg_size 96
  .amdhsa_user_sgpr_count 2
  .amdhsa_user_sgpr_kernarg_segment_ptr 1
  .amdhsa_system_sgpr_workgroup_id_x 1
.end_amdhsa_kernel
"""

def srd(a, d, base, off, nbytes):
    if off == 0:
        a(f"s_mov_b32 s{d}, s{base}")
        a(f"s_and_b32 s{d+1}, s{base+1}, 0xffff")
    else:
        a(f"s_add_u32 s{d}, s{base}, {off if isinstance(off,str) else hex(off)}")
        a(f"s_addc_u32 s{d+1}, s{base+1}, 0")
        a(f"s_and_b32 s{d+1}, s{d+1}, 0xffff")
    a(f"s_mov_b32 s{d+2}, {nbytes if isinstance(nbytes,str) else hex(nbytes)}")
    a(f"s_mov_b32 s{d+3}, 0x20000")

QF_OFF = 0
QF_HS = 64 * 1280
QF_SIZE = 32 * QF_HS
KV_OFF = QF_OFF + QF_SIZE
KV_HS = 64 * 2560
KV_SIZE = 32 * KV_HS
G_OFF = KV_OFF + KV_SIZE
G_SIZE = 32 * 2 * 64 * 1280
OF_OFF = G_OFF + G_SIZE
OF_SIZE = 80 * 2048 * 16
GATE_OFF = OF_OFF + OF_SIZE
GATE_SIZE = 2048 * 8
KA_X, KA_WSRE, KA_WSIM, KA_WDRE, KA_WDIM, KA_BX, KA_WQKV, KA_WO, KA_GW, KA_OUT, KA_DBG, KA_WS = [8*i for i in range(12)]

STAMP_OFF = 1 << 27
class Stamps:
    def __init__(self, a, on, kidx):
        self.a = a; self.on = on; self.kidx = kidx; self.names = []; self.op = 's_memtime'
    def start(self):
        if not self.on: return
        a = self.a
        for i in range(70, 94): a(f"s_mov_b32 s{i}, 0")
        a("s_memrealtime s[70:71]")
        a(f"{self.op} s[74:75]")
        a("s_load_dwordx2 s[68:69], s[0:1], 88")
        a("v_mov_b32 v255, v0")
        a("s_mov_b32 s67, s2")
    def stamp(self, i):
        if not self.on: return
        if isinstance(i, str):
            if i not in self.names: return
            i = self.names.index(i) + 1
        self.a(f"{self.op} s[{74+2*i}:{75+2*i}]")
    def finish(self, i):
        if not self.on: return
        a = self.a
        a("s_mov_b64 exec, -1")
        a("s_waitcnt vmcnt(0)")
        a(f"{self.op} s[{74+2*i}:{75+2*i}]")
        a("s_memrealtime s[72:73]")
        a("s_waitcnt lgkmcnt(0)")
        a(f"s_add_u32 s64, s68, {hex(STAMP_OFF + self.kidx * (1 << 20))}")
        a("s_addc_u32 s65, s69, 0")
        a("s_and_b32 s65, s65, 0xffff")
        a("s_lshl_b32 s68, s67, 10")
        a("s_mov_b32 s66, 0x100000")
        a("s_mov_b32 s67, 0x20000")
        a("v_lshrrev_b32 v254, 6, v255")
        a("v_lshlrev_b32 v254, 6, v254")
        a("v_add_u32 v254, s68, v254")
        a("s_getreg_b32 s69, hwreg(HW_REG_HW_ID)")
        a("s_getreg_b32 s68, hwreg(HW_REG_XCC_ID)")
        a("s_mov_b64 exec, 1")
        for k in range(12):
            a(f"v_mov_b32 v253, s{70+2*k}")
            a(f"buffer_store_dword v253, v254, s[64:67], 0 offen offset:{4*k}")
        a("v_mov_b32 v253, s69")
        a("buffer_store_dword v253, v254, s[64:67], 0 offen offset:48")
        a("v_mov_b32 v253, s68")
        a("buffer_store_dword v253, v254, s[64:67], 0 offen offset:52")
        if self.on == 2:
            a("s_cmp_lg_u32 s2, 136")
            a("s_cbranch_scc1 L_nodbg")
            a("v_readfirstlane_b32 s68, v255")
            a("s_load_dwordx2 s[64:65], s[0:1], 80")
            a("s_waitcnt lgkmcnt(0)")
            a("s_and_b32 s69, s68, 0xc0")
            a("s_cmp_lg_u32 s69, 0")
            a("s_cbranch_scc1 L_nodbg")
            a("s_and_b32 s65, s65, 0xffff")
            a("s_mov_b32 s66, 256")
            a("s_lshr_b32 s68, s68, 3")
            a("v_mov_b32 v254, s68")
            for k in range(2, 10):
                a(f"s_sub_u32 s68, s{74+2*k}, s74")
                a(f"s_cmp_eq_u32 s{74+2*k}, 0")
                a("s_cselect_b32 s68, 0, s68")
                a("v_mov_b32 v253, s68")
                a(f"buffer_store_dword v253, v254, s[64:67], 0 offen offset:{4*(k-2)}")
            a.label("L_nodbg")

class WL:
    PL = 32768
    FLAG = 0
    EPOCH = 0
    FG = 1024
    FA = 4096
    FO = FA + 256 * 128
    FLAG_SIZE = FO + 2048 * 128
    GATE = FLAG_SIZE
    QF = 327680
    KF = QF + 80 * PL
    VF = KF + 80 * PL
    VT = 40960
    G = VF + 64 * VT
    GA = 21 * 1024
    G_SIZE = 2 * 64 * GA
    OF = G + G_SIZE
    WP = OF + 80 * PL
    FP = FO + 16384
    END = WP + 8 * 102400
assert WL.GATE + 16384 <= WL.QF
```

```python
from asm import *

QSCALE = 0x3ea52b5c
NAME = "gated_mix__spectral_fnet__softmax_full_mha__prompt_kernel"
LDS_X = 131072
LDS_CTL = LDS_X + 24576
LDS_SIZE = LDS_CTL + 64
GSTEP = 32 * 176
GIMG = 20 * 5120
SPIN = 200000
STAGE = [0, 0x8000, 0x18000, 0x10000]

def gen(name=NAME, stamps=False, snames=(), rotx=(0, 2, 5, 7, 5, 7, 0, 2), rin=(7, 3), touch=False, tpos=5, gtouch=True, fsplit=5,
        prio=(4, 2, 1), psleep=8, wotouch=True, probe=None, fwait=True, nodma=False, kvsc1=False, noload=False, nowait=False, noexec=False, spread=False, rt=True, fstart=6):
    a = Asm()
    kernel_begin(a, name)
    L = lambda s: f"L_{s}"
    st = Stamps(a, stamps, 0); st.names = list(snames); st.op = 's_memrealtime' if rt else 's_memtime'
    sWS = 26
    sA = 28; sB = 32; sC = 36; sD = 40; sFl = 44; sE = 48
    sW = 52; sXc = 53; sJ = 54; sNonce = 55; sT = 56; sT2 = 57; sCnt = 58
    sLo = 60; sVm = 62; sHi = 94; sDm = 96
    sGF = 25
    sAF = 24
    vL = 1; vT = [2, 3, 4, 5, 6, 7]; vCtl = 8
    VB = 10
    TOP = 252 if stamps else 256

    def spin_begin(lab):
        a(f"s_mov_b32 s59, {SPIN}")
        a.label(L(lab))
    def spin_end(lab, sleep=2):
        a(f"s_sleep {sleep}")
        a("s_sub_u32 s59, s59, 1")
        a("s_cmp_lg_u32 s59, 0")
        a(f"s_cbranch_scc1 {L(lab)}")
    def put_flag(soff):
        a(f"v_mov_b32 v{vT[0]}, 0")
        a(f"v_mov_b32 v{vT[1]}, s{sNonce}")
        a("s_mov_b64 exec, 1")
        a(f"buffer_store_dword v{vT[1]}, v{vT[0]}, s[{sFl}:{sFl+3}], {soff} offen sc1")
        a("s_mov_b64 exec, -1")
    def lds_inc(off):
        a(f"v_mov_b32 v{vT[0]}, 1")
        a("s_mov_b64 exec, 1")
        a(f"ds_add_u32 v{vCtl}, v{vT[0]} offset:{off}")
        a("s_mov_b64 exec, -1")
    def lds_wait(lab, off, val):
        spin_begin(lab)
        a(f"ds_read_b32 v{vT[0]}, v{vCtl} offset:{off}")
        a("s_waitcnt lgkmcnt(0)")
        a(f"v_readfirstlane_b32 s{sT}, v{vT[0]}")
        a("s_nop 1")
        a(f"s_cmp_eq_u32 s{sT}, {val}")
        a(f"s_cbranch_scc1 {L(lab+'d')}")
        spin_end(lab, 1)
        a.label(L(lab + "d"))
    def sel_srd(d, cond_s, p0, p1, size):
        a(f"s_cmp_eq_u32 s{cond_s}, 0")
        a(f"s_cselect_b32 s{d}, s{p0}, s{p1}")
        a(f"s_cselect_b32 s{d+1}, s{p0+1}, s{p1+1}")
        a(f"s_and_b32 s{d+1}, s{d+1}, 0xffff")
        a(f"s_mov_b32 s{d+2}, {size}")
        a(f"s_mov_b32 s{d+3}, 0x20000")
    def after_kernarg():
        a("s_waitcnt lgkmcnt(0)")
        st.stamp("karg")
        a(f"s_load_dword s{sNonce}, s[{sWS}:{sWS+1}], {WL.EPOCH}")
        srd(a, sA, 4, 0, 2048 * 1280)
    def masks():
        a(f"s_mov_b32 s{sGF}, 0"); a(f"s_mov_b32 s{sAF}, 0")
        srd(a, sFl, sWS, WL.FLAG, WL.FLAG_SIZE)
        a(f"v_mov_b32 v{vCtl}, {LDS_CTL}")
        a(f"s_mov_b32 s{sLo}, -1"); a(f"s_mov_b32 s{sLo+1}, 0")
        a(f"s_mov_b32 s{sHi}, 0"); a(f"s_mov_b32 s{sHi+1}, -1")
        a(f"s_mov_b32 s{sVm}, 0xfffff"); a(f"s_mov_b32 s{sVm+1}, 0xfffff")
        a(f"s_mov_b32 s{sDm}, -1"); a(f"s_mov_b32 s{sDm+1}, 0xff")
    def nat_read_addrs(dst, stile, shift):
        a(f"v_and_b32 v{vT[0]}, 31, v{vL}")
        a(f"v_lshrrev_b32 v{vT[1]}, 5, v{vL}")
        a(f"v_bfe_u32 v{vT[2]}, v{vL}, 1, 3")
        a(f"v_xor_b32 v{vT[1]}, v{vT[1]}, v{vT[2]}")
        a(f"v_lshlrev_b32 v{vT[1]}, 4, v{vT[1]}")
        a(f"v_lshl_add_u32 v{vT[0]}, v{vT[0]}, 7, v{vT[1]}")
        a(f"s_lshl_b32 s{sT}, s{stile}, {shift}")
        a(f"v_add_u32 v{dst[0]}, s{sT}, v{vT[0]}")
        for ks in range(1, 4):
            a(f"v_xor_b32 v{dst[ks]}, {32*ks}, v{dst[0]}")

    a("s_cmp_ge_u32 s2, 256")
    a(f"s_cbranch_scc1 {L('end')}")
    st.start()
    if probe:
        a("s_memrealtime s[70:71]")
        a("s_load_dwordx2 s[64:65], s[0:1], 80")
        a("s_waitcnt lgkmcnt(0)")
        a("s_and_b32 s65, s65, 0xffff"); a("s_mov_b32 s66, 256"); a("s_mov_b32 s67, 0x20000")
        a("s_getreg_b32 s68, hwreg(HW_REG_XCC_ID)")
        a("s_xor_b32 s68, s68, s2"); a("s_and_b32 s68, s68, 7")
        a("s_cbranch_scc0 L_pok")
        a("v_mov_b32 v2, 1")
        a("s_mov_b64 exec, 1")
        a("buffer_store_dword v2, off, s[64:67], 0 sc1")
        a("s_mov_b64 exec, -1")
        a.label("L_pok")
    a("s_load_dwordx16 s[4:19], s[0:1], 0")
    a("s_load_dwordx8 s[20:27], s[0:1], 64")
    a(f"v_lshrrev_b32 v{vT[0]}, 6, v0")
    a(f"v_and_b32 v{vL}, 63, v0")
    a(f"v_readfirstlane_b32 s{sW}, v{vT[0]}")
    a(f"s_and_b32 s{sXc}, s2, 7")
    a(f"s_lshr_b32 s{sJ}, s2, 3")
    a(f"s_xor_b32 s{sW}, s{sW}, 4")
    sRb = 98; sCb = 99; sWm = 100; sWn = 101; sWl = 3
    a(f"s_and_b32 s{sRb}, s2, 3")
    a(f"s_lshl_b32 s{sRb}, s{sRb}, 2")
    a(f"s_and_b32 s{sT}, s{sJ}, 3")
    a(f"s_add_u32 s{sRb}, s{sRb}, s{sT}")
    a(f"s_lshr_b32 s{sT}, s{sXc}, 2")
    a(f"s_lshr_b32 s{sCb}, s{sJ}, 2")
    a(f"s_cmp_eq_u32 s{sCb}, 7")
    a(f"s_cselect_b32 s{sT2}, 1, 3")
    a(f"s_lshl_b32 s{sT}, s{sT}, s{sT2}")
    a(f"s_cmp_eq_u32 s{sCb}, 7")
    a(f"s_cselect_b32 s{sT2}, s{sT}, 0")
    a(f"s_cselect_b32 s{sT}, 0, s{sT}")
    a(f"s_add_u32 s{sRb}, s{sRb}, s{sT2}")
    a(f"s_add_u32 s{sCb}, s{sCb}, s{sT}")
    a(f"s_and_b32 s{sWl}, s{sW}, 3")
    a(f"s_and_b32 s{sWm}, s{sW}, 1")
    a(f"s_lshr_b32 s{sWn}, s{sWl}, 1")
    a(f"s_cmp_lt_u32 s{sW}, 4")
    a(f"s_cbranch_scc1 {L('comp')}")

    V = Alloc(VB, TOP)
    vRX = [V.get() for _ in range(4)]
    vFW = [V.get() for _ in range(2)]; vFs = V.get(); vGs = V.get()
    V.get(2)
    XR = [[V.get(4, 4) for _ in range(4)] for _ in range(10)]
    FR = V.get(8, 4); FIn = V.get(8, 4)
    ZA = V.get(16, 4); ZB = V.get(16, 4)
    BF = [[V.get(4, 4) for _ in range(2)] for _ in range(3)]
    vDX = [BF[0][0] + i for i in range(4)]; vDW = [BF[0][1] + i for i in range(4)]
    sOX = sD; sOW = sD + 1; sM0 = sD + 2; sBeta = sD + 3; sSp = sE
    a(f"v_and_b32 v{vT[3]}, 7, v{vL}")
    a(f"v_lshrrev_b32 v{vT[4]}, 4, v{vL}")
    a(f"v_xor_b32 v{vT[3]}, v{vT[3]}, v{vT[4]}")
    a(f"v_lshlrev_b32 v{vT[3]}, 4, v{vT[3]}")
    a(f"v_xor_b32 v{vT[4]}, 64, v{vT[3]}")
    a(f"v_bfe_u32 v{vT[5]}, v{vL}, 3, 2")
    a(f"v_lshrrev_b32 v{vT[1]}, 5, v{vL}")
    a(f"v_lshl_add_u32 v{vT[5]}, v{vT[1]}, 3, v{vT[5]}")
    a(f"s_lshl_b32 s{sT}, s{sRb}, 1")
    a(f"s_add_u32 s{sT}, s{sT}, s{sWn}")
    a(f"s_lshl_b32 s{sT2}, s{sWm}, 5")
    a(f"s_add_u32 s{sCnt}, s{sT}, s{sT2}")
    a(f"v_lshl_add_u32 v{vT[1]}, v{vT[5]}, 6, s{sCnt}")
    a(f"v_mul_u32_u24 v{vT[1]}, 1280, v{vT[1]}")
    a(f"v_add_u32 v{vDX[0]}, v{vT[1]}, v{vT[3]}")
    a(f"v_add_u32 v{vDX[1]}, v{vT[1]}, v{vT[4]}")
    a(f"v_add_u32 v{vDX[1]}, {4*64*1280-1024}, v{vDX[1]}")
    a(f"v_add_u32 v{vDX[2]}, {16*64*1280-2048}, v{vDX[0]}")
    a(f"v_add_u32 v{vDX[3]}, {16*64*1280-2048}, v{vDX[1]}")
    a(f"v_lshrrev_b32 v{vT[0]}, 4, v{vL}")
    a(f"v_bfe_u32 v{vT[1]}, v{vL}, 2, 2")
    a(f"v_xor_b32 v{vT[1]}, v{vT[1]}, v{vT[0]}")
    a(f"v_and_b32 v{vT[2]}, 3, v{vL}")
    a(f"v_lshl_add_u32 v{vT[1]}, v{vT[1]}, 2, v{vT[2]}")
    a(f"v_lshlrev_b32 v{vT[1]}, 4, v{vT[1]}")
    a(f"s_lshl_b32 s{sT}, s{sWl}, 4")
    a(f"v_add_u32 v{vT[0]}, s{sT}, v{vT[0]}")
    a(f"v_mul_u32_u24 v{vT[0]}, 3840, v{vT[0]}")
    a(f"s_lshl_b32 s{sT}, s{sCb}, 8")
    a(f"v_add3_u32 v{vDW[0]}, v{vT[0]}, v{vT[1]}, s{sT}")
    for j in range(1, 4):
        a(f"v_add_u32 v{vDW[j]}, {j*(4*3840-1024)}, v{vDW[0]}")
    rw = 0
    for i, r in enumerate(rotx): rw |= r << (4 * i)
    a(f"s_lshl_b32 s{sT}, s{sXc}, 2")
    a(f"s_lshr_b32 s{sOX}, {hex(rw)}, s{sT}")
    a(f"s_and_b32 s{sOX}, s{sOX}, 15")
    if rin != (0, 0):
        a(f"s_and_b32 s{sT}, s{sJ}, 3")
        a(f"s_mul_i32 s{sT}, s{sT}, {rin[0]}")
        a(f"s_add_u32 s{sOX}, s{sOX}, s{sT}")
        a(f"s_lshr_b32 s{sT}, s{sJ}, 2")
        a(f"s_mul_i32 s{sT}, s{sT}, {rin[1]}")
        a(f"s_add_u32 s{sOX}, s{sOX}, s{sT}")
        a(f"s_mul_i32 s{sT}, s{sOX}, 205")
        a(f"s_lshr_b32 s{sT}, s{sT}, 11")
        a(f"s_mul_i32 s{sT}, s{sT}, 10")
        a(f"s_sub_u32 s{sOX}, s{sOX}, s{sT}")
    a(f"s_mul_i32 s{sOW}, s{sOX}, {64*3840}")
    a(f"s_lshl_b32 s{sOX}, s{sOX}, 7")
    a(f"s_lshl_b32 s{sM0}, s{sWl}, 12")
    after_kernarg()
    a(f"s_cmp_ge_u32 s{sJ}, 30")
    a(f"s_cbranch_scc1 {L('lgate')}")
    srd(a, sB, 16, 0, 640 * 3840)
    def issue(n):
        a(f"s_add_u32 m0, s{sM0}, {STAGE[n%4]}")
        a("s_nop 0")
        for j in range(4): a(f"buffer_load_dwordx4 v{vDX[j]}, s[{sA}:{sA+3}], s{sOX} offen offset:{1024*j} lds")
        a(f"s_add_u32 m0, s{sM0}, {STAGE[n%4]+0x4000}")
        a(f"s_add_u32 s{sOX}, s{sOX}, 128")
        for j in range(4): a(f"buffer_load_dwordx4 v{vDW[j]}, s[{sB}:{sB+3}], s{sOW} offen offset:{1024*j} lds")
        a(f"s_add_u32 s{sOW}, s{sOW}, {64*3840}")
        a(f"s_cmp_eq_u32 s{sOX}, 1280")
        a(f"s_cselect_b32 s{sOX}, 0, s{sOX}")
        a(f"s_cselect_b32 s{sOW}, 0, s{sOW}")
    issue(0); issue(1)
    masks()
    a(f"s_lshr_b32 s{sBeta}, s{sXc}, 2")
    a(f"s_mul_i32 s{sBeta}, s{sBeta}, 5")
    a(f"s_lshr_b32 s{sT}, s{sJ}, 2")
    a(f"s_add_u32 s{sBeta}, s{sBeta}, s{sT}")
    a(f"s_lshl_b32 s{sT}, s{sBeta}, 1")
    a(f"s_add_u32 s{sT}, s{sT}, s{sWm}")
    a(f"s_lshl_b32 s{sT}, s{sT}, 4")
    a(f"v_add_u32 v{vT[5]}, s{sT}, v{vT[5]}")
    a(f"v_mul_u32_u24 v{vT[5]}, 1280, v{vT[5]}")
    a(f"v_add_u32 v{vFW[0]}, v{vT[5]}, v{vT[3]}")
    a(f"v_add_u32 v{vFW[1]}, v{vT[5]}, v{vT[4]}")
    a(f"v_add_u32 v{vFW[1]}, {4*1280-1024}, v{vFW[1]}")
    a(f"v_add_u32 v{vFs}, {320*1280}, v{vT[3]}")
    a(f"v_and_b32 v{vT[0]}, 31, v{vL}")
    a(f"v_lshrrev_b32 v{vT[1]}, 5, v{vL}")
    a(f"v_lshlrev_b32 v{vGs}, 5, v{vT[0]}")
    a(f"v_lshl_add_u32 v{vGs}, v{vT[1]}, 4, v{vGs}")
    a(f"s_mul_i32 s{sT}, s{sCnt}, {WL.GA}")
    a(f"s_lshl_b32 s{sT2}, s{sBeta}, 11")
    a(f"s_add_u32 s{sT}, s{sT}, s{sT2}")
    a(f"v_add_u32 v{vGs}, s{sT}, v{vGs}")
    a(f"s_mul_i32 s{sCnt}, s{sCnt}, 48")
    a(f"s_lshl_b32 s{sT2}, s{sBeta}, 2")
    a(f"s_add_u32 s{sCnt}, s{sCnt}, s{sT2}")
    a(f"s_add_u32 s{sCnt}, s{sCnt}, {WL.FG}")
    nat_read_addrs(vRX, sWl, 12)
    for n in range(10):
        a(f"s_waitcnt vmcnt({8 if n < 9 else 0}) lgkmcnt(0)")
        a("s_barrier")
        for ks in range(4):
            a(f"ds_read_b128 {vr(XR[n][ks],4)}, v{vRX[ks]} offset:{STAGE[n%4] & 0xffff}")
        if n + 2 < 10: issue(n + 2)
        if n < 9 and (STAGE[n % 4] ^ STAGE[(n + 1) % 4]) & 0x10000:
            for ks in range(4): a(f"v_xor_b32 v{vRX[ks]}, 0x10000, v{vRX[ks]}")
    st.stamp("ldone")
    a(f"s_add_u32 s{sNonce}, s{sNonce}, 1")
    a(f"s_cmp_ge_u32 s{sJ}, 20")
    a(f"s_cbranch_scc1 {L('lfree')}")
    a("s_setprio 3")
    a(f"s_mov_b32 s{sGF}, s{sCnt}")
    sel_srd(sB, sWn, 10, 12, 640 * 1280)
    srd(a, sC, 10, 0, 640 * 1280)
    a(f"s_lshl_b32 s{sM0}, s{sWl}, 11")
    a(f"s_lshl_b32 s{sT}, s{sBeta}, 2")
    a(f"s_add_u32 s{sT}, s{sT}, s{sWl}")
    a(f"s_cmp_eq_u32 s{sT}, 2")
    a(f"s_cselect_b32 s{sSp}, 0xffffff00, -1")
    a(f"s_cselect_b64 vcc, -1, 0")
    a(f"s_mov_b32 s{sSp+1}, -1")
    WDB = lambda p: (0x10000 + 8192 * p) if p < 8 else 8192 * (p - 8)
    def wdma(p):
        a(f"s_add_u32 m0, s{sM0}, {WDB(p)}")
        a(f"s_mov_b64 exec, s[{sSp}:{sSp+1}]")
        a(f"buffer_load_dwordx4 v{vFW[0]}, s[{sB}:{sB+3}], s{sOX} offen lds")
        a(f"s_cbranch_vccz {L('fs%d' % p)}")
        a("s_mov_b64 exec, 0xff")
        a(f"buffer_load_dwordx4 v{vFs}, s[{sC}:{sC+3}], s{sOX} offen lds")
        a.label(L("fs%d" % p))
        a("s_mov_b64 exec, -1")
        a(f"buffer_load_dwordx4 v{vFW[1]}, s[{sB}:{sB+3}], s{sOX} offen offset:1024 lds")
        a(f"s_add_u32 s{sOX}, s{sOX}, 128")
        a(f"s_cmp_eq_u32 s{sOX}, 1280")
        a(f"s_cselect_b32 s{sOX}, 0, s{sOX}")
    def twl():
        srd(a, sB, 6, 0, 2048 * 4096)
        srd(a, sC, 8, 0, 2048 * 4096)
        a(f"buffer_load_dwordx4 {vr(FR,4)}, v{vT[2]}, s[{sB}:{sB+3}], 0 offen")
        a(f"buffer_load_dwordx4 {vr(FR+4,4)}, v{vT[2]}, s[{sB}:{sB+3}], 0 offen offset:32")
        a(f"buffer_load_dwordx4 {vr(FIn,4)}, v{vT[2]}, s[{sC}:{sC+3}], 0 offen")
        a(f"buffer_load_dwordx4 {vr(FIn+4,4)}, v{vT[2]}, s[{sC}:{sC+3}], 0 offen offset:32")
    for p in range(fsplit): wdma(p)
    a(f"v_and_b32 v{vT[2]}, 31, v{vL}")
    a(f"v_lshrrev_b32 v{vT[1]}, 5, v{vL}")
    a(f"v_lshlrev_b32 v{vT[2]}, 18, v{vT[2]}")
    a(f"v_lshl_add_u32 v{vT[2]}, v{vT[1]}, 4, v{vT[2]}")
    a(f"s_lshl_b32 s{sT}, s{sWl}, 12")
    a(f"s_sub_u32 s{sT}, 0x10000, s{sT}")
    for ks in range(4): a(f"v_add_u32 v{vRX[ks]}, s{sT}, v{vRX[ks]}")
    assert not STAGE[9 % 4] & 0x10000
    a("s_waitcnt vmcnt(0)")
    lds_inc(12)
    lds_wait("f1", 12, 4)
    st.stamp("fb0")
    if stamps: a("s_waitcnt lgkmcnt(0)")
    def rdB(s):
        p, ks = divmod(s, 4)
        if s == 32:
            for k in range(4): a(f"v_xor_b32 v{vRX[k]}, 0x10000, v{vRX[k]}")
        for part in range(2):
            a(f"ds_read_b128 {vr(BF[s%3][part],4)}, v{vRX[ks]} offset:{(WDB(p) & 0xffff) + 4096*part}")
    rdB(0); rdB(1)
    H = 4 * fsplit
    for s in range(40):
        if s == fstart and fwait: lds_wait("f0", 20, 4)
        if fstart <= s < fstart + 10 - fsplit: wdma(fsplit + s - fstart)
        if s == fstart + 10 - fsplit: twl()
        if s == H - 2:
            a("s_waitcnt vmcnt(4)")
            lds_inc(16)
            lds_wait("f2", 16, 4)
            st.stamp("fb1")
            if stamps: a("s_waitcnt lgkmcnt(0)")
        if s + 2 < 40: rdB(s + 2)
        a(f"s_waitcnt lgkmcnt({4 if s < 38 else 2*(39-s)})")
        for part, Z in enumerate((ZA, ZB)):
            c = "0" if s == 0 else vr(Z, 16)
            a(f"v_mfma_f32_32x32x16_bf16 {vr(Z,16)}, {vr(XR[s//4][s%4],4)}, {vr(BF[s%3][part],4)}, {c}")
    assert fstart + 10 - fsplit < H - 2
    lds_inc(8)
    st.stamp("fend")
    srd(a, sC, sWS, WL.G, WL.G_SIZE)
    FRn = XR[0][0]; G0 = XR[1][0]; G1 = XR[2][0]; G2 = XR[3][0]; G3 = XR[4][0]; ZS = XR[5][0]
    a("s_waitcnt vmcnt(0)")
    for i in range(8):
        a(f"v_xor_b32 v{FRn+i}, 0x80008000, v{FR+i}")
        a(f"v_xor_b32 v{FIn+i}, 0x80008000, v{FIn+i}")
    for Z in (ZA, ZB):
        for i in range(8): a(f"v_cvt_pk_bf16_f32 v{Z+i}, v{Z+2*i}, v{Z+2*i+1}")
    m = lambda d, A, B, c: a(f"v_mfma_f32_32x32x16_bf16 {vr(d,16)}, {vr(A,4)}, {vr(B,4)}, {c}")
    GP = TOP - 24
    a(f"s_mov_b32 s{sT2}, {64*WL.GA}")
    a(f"s_cmp_lg_u32 s{sBeta}, 0")
    a(f"s_cbranch_scc1 {L('fn')}")
    m(G2, ZB, FR, "0"); m(G2, ZB+4, FR+4, vr(G2,16))
    m(G3, ZB, FIn, "0"); m(G3, ZB+4, FIn+4, vr(G3,16))
    a("s_mov_b32 exec_lo, 1"); a("s_mov_b32 exec_hi, 1")
    for i in range(8): a(f"v_mov_b32 v{ZB+i}, 0")
    a(f"s_mov_b64 exec, s[{sLo}:{sLo+1}]")
    a("s_nop 3")
    for i in range(4): a(f"v_mov_b32 v{GP+16+i}, 0"); a(f"v_mov_b32 v{GP+20+i}, 0")
    a(f"v_cvt_pk_bf16_f32 v{GP+16}, v{G2}, 0")
    a(f"v_cvt_pk_bf16_f32 v{GP+20}, v{G3}, 0")
    a(f"v_add_u32 v{vFs}, {20*1024}, v{vGs}")
    a(f"buffer_store_dwordx4 {vr(GP+16,4)}, v{vFs}, s[{sC}:{sC+3}], 0 offen sc1")
    a(f"buffer_store_dwordx4 {vr(GP+20,4)}, v{vFs}, s[{sC}:{sC+3}], s{sT2} offen sc1")
    a("s_mov_b64 exec, -1")
    a.label(L("fn"))
    m(G0, ZA, FR, "0"); m(G0, ZA+4, FR+4, vr(G0,16)); m(G0, ZB, FIn, vr(G0,16)); m(G0, ZB+4, FIn+4, vr(G0,16))
    m(G1, ZB, FRn, "0"); m(G1, ZB+4, FRn+4, vr(G1,16)); m(G1, ZA, FIn, vr(G1,16)); m(G1, ZA+4, FIn+4, vr(G1,16))
    a("s_nop 7")
    for p, g in enumerate((G0, G1)):
        if p == 1: a("s_nop 1")
        for i in range(8): a(f"v_cvt_pk_bf16_f32 v{GP+8*p+i}, v{g+2*i}, v{g+2*i+1}")
        for j in range(2):
            so = "0" if p == 0 else f"s{sT2}"
            a(f"buffer_store_dwordx4 {vr(GP+8*p+4*j,4)}, v{vGs}, s[{sC}:{sC+3}], {so} offen offset:{1024*j} sc1")
    assert ZB + 8 <= GP
    st.stamp("gst")
    a(f"s_branch {L('att')}")
    a.label(L("lgate"))
    if gtouch:
        sel_srd(sB, sWm, 6, 8, 2048 * 4096)
        a(f"v_and_b32 v{vT[0]}, 31, v{vL}")
        a(f"v_lshlrev_b32 v{vT[0]}, 18, v{vT[0]}")
        a(f"buffer_load_dword v{vT[1]}, v{vT[0]}, s[{sB}:{sB+3}], 0 offen")
        sel_srd(sB, sWm, 10, 12, 640 * 1280)
        a(f"s_and_b32 s{sT}, s{sJ}, 1")
        a(f"s_lshl_b32 s{sT}, s{sT}, 1")
        a(f"s_add_u32 s{sT}, s{sT}, s{sWn}")
        a(f"s_mul_i32 s{sT}, s{sT}, {400*128}")
        a(f"s_lshr_b32 s{sT2}, s{sXc}, 2")
        a(f"s_mul_i32 s{sT2}, s{sT2}, {160*1280}")
        a(f"s_add_u32 s{sT}, s{sT}, s{sT2}")
        a(f"v_min_u32 v{vT[0]}, 49, v{vL}")
        a(f"v_lshlrev_b32 v{vT[0]}, 7, v{vT[0]}")
        for i in range(8):
            a(f"buffer_load_dword v{vT[1]}, v{vT[0]}, s[{sB}:{sB+3}], s{sT} offen")
            a(f"s_add_u32 s{sT}, s{sT}, {50*128}")
    masks()
    a("s_waitcnt lgkmcnt(0)")
    a("s_barrier")
    a(f"s_add_u32 s{sNonce}, s{sNonce}, 1")
    a.label(L("lfree"))
    a("s_waitcnt vmcnt(0) lgkmcnt(0)")
    lds_inc(8)
    a(f"s_branch {L('att')}")

    a.label(L("comp"))
    V = Alloc(VB, TOP)
    vRX = [V.get() for _ in range(4)]; vRW = [V.get() for _ in range(2)]
    vE = [V.get() for _ in range(8)]
    vTch = V.get(2)
    XF = [[V.get(4, 4) for _ in range(2)] for _ in range(2)]
    WF = [[V.get(4, 4) for _ in range(2)] for _ in range(2)]
    ACC = [[V.get(16, 4) for _ in range(2)] for _ in range(2)]
    PK = TOP - 32
    sMask = sD; sScale = sD + 2
    a("s_setprio 3")
    nat_read_addrs(vRX, sWm, 13)
    for x in range(2):
        for w in range(2):
            for i in range(16): a(f"v_mov_b32 v{ACC[x][w]+i}, 0")
    after_kernarg()
    masks()
    a(f"s_cmp_lg_u32 s{sW}, 0")
    a(f"s_cbranch_scc1 {L('c1')}")
    a(f"ds_write_b128 v{vCtl}, {vr(ACC[0][0],4)}")
    a(f"ds_write_b128 v{vCtl}, {vr(ACC[0][0],4)} offset:16")
    a.label(L("c1"))
    def mainloop(mode):
        def rdX(s, ks, x): a(f"ds_read_b128 {vr(XF[s][x],4)}, v{vRX[ks]} offset:{4096*x}")
        def rdW(s, ks, w):
            a(f"ds_read_b64_tr_b16 {vr(WF[s][w],2)}, v{vRW[w]} offset:{4096*ks}")
            a(f"ds_read_b64_tr_b16 {vr(WF[s][w]+2,2)}, v{vRW[w]} offset:{4096*ks+1024}")
        def mf(s, x, w):
            A, B = (WF[s][w], XF[s][x]) if mode == 'qk' else (XF[s][x], WF[s][w])
            a(f"v_mfma_f32_32x32x16_bf16 {vr(ACC[x][w],16)}, {vr(A,4)}, {vr(B,4)}, {vr(ACC[x][w],16)}")
        a("s_waitcnt lgkmcnt(0)")
        a("s_barrier")
        st.stamp("b0")
        if stamps: a("s_waitcnt lgkmcnt(0)")
        rdX(0, 0, 0); rdW(0, 0, 0); rdX(0, 0, 1); rdW(0, 0, 1)
        a(f"s_mov_b32 s{sCnt}, 0")
        a.raw(".p2align 5")
        a.label(L(mode + "loop"))
        for ks in range(4):
            s = ks % 2; n = 1 - s; nk = (ks + 1) % 4
            if ks < 3:
                a("s_waitcnt lgkmcnt(3)")
                mf(s, 0, 0)
                if ks == 0 and touch:
                    a(f"s_cmp_lg_u32 s{sCnt}, {tpos}")
                    a(f"s_cbranch_scc1 {L(mode+'nt')}")
                    a(f"buffer_load_dword v{vTch}, v{vTch+1}, s[{sE}:{sE+3}], 0 offen")
                    a.label(L(mode + "nt"))
            else:
                a("s_waitcnt lgkmcnt(0)")
                mf(s, 0, 0)
                a(f"s_add_u32 s{sCnt}, s{sCnt}, 1")
                a(f"s_cmp_eq_u32 s{sCnt}, 10")
                a(f"s_cbranch_scc1 {L(mode+'last')}")
                a("s_barrier")
                for r in vRX + vRW:
                    a(f"v_xor_b32 v{r}, s{sMask}, v{r}")
            rdX(n, nk, 0); rdW(n, nk, 0)
            if ks < 3: a("s_waitcnt lgkmcnt(5)")
            mf(s, 1, 0)
            rdX(n, nk, 1)
            if ks < 3: a("s_waitcnt lgkmcnt(4)")
            mf(s, 0, 1)
            rdW(n, nk, 1)
            if ks == 3: a(f"s_xor_b32 s{sMask}, s{sMask}, 0x18000")
            mf(s, 1, 1)
        a(f"s_branch {L(mode+'loop')}")
        a.label(L(mode + "last"))
        mf(1, 0, 1); mf(1, 1, 0); mf(1, 1, 1)
        lds_inc(8)
        st.stamp("aend")
        a("s_nop 1")
    a(f"s_mov_b32 s{sMask}, 0x8000")
    a(f"s_cmp_ge_u32 s{sJ}, 30")
    a(f"s_cbranch_scc1 {L('gate')}")
    a(f"s_lshl_b32 s{sAF}, s{sCb}, 4")
    a(f"s_add_u32 s{sAF}, s{sAF}, s{sRb}")
    if touch:
        sel_srd(sE, sWm, 10, 12, 640 * 1280)
        a(f"s_lshl_b32 s{sT}, s{sJ}, 1")
        a(f"s_add_u32 s{sT}, s{sT}, s{sWn}")
        a(f"s_mul_i32 s{sT}, s{sT}, {27*128}")
        a(f"s_lshr_b32 s{sT2}, s{sXc}, 2")
        a(f"s_mul_i32 s{sT2}, s{sT2}, {160*1280}")
        a(f"s_add_u32 s{sT}, s{sT}, s{sT2}")
        a(f"v_min_u32 v{vTch+1}, 26, v{vL}")
        a(f"v_lshl_add_u32 v{vTch+1}, v{vTch+1}, 7, s{sT}")
    a(f"v_bfe_u32 v{vT[0]}, v{vL}, 2, 2")
    a(f"v_lshrrev_b32 v{vT[1]}, 5, v{vL}")
    a(f"v_lshl_add_u32 v{vT[1]}, v{vT[1]}, 3, v{vT[0]}")
    a(f"v_lshlrev_b32 v{vT[1]}, 8, v{vT[1]}")
    a(f"s_lshl_b32 s{sT}, s{sWn}, 1")
    a(f"v_xor_b32 v{vT[0]}, s{sT}, v{vT[0]}")
    a(f"v_lshl_add_u32 v{vT[1]}, v{vT[0]}, 6, v{vT[1]}")
    a(f"v_bfe_u32 v{vT[0]}, v{vL}, 4, 1")
    a(f"v_lshl_add_u32 v{vT[1]}, v{vT[0]}, 5, v{vT[1]}")
    a(f"v_add_u32 v{vT[1]}, 0x4000, v{vT[1]}")
    a(f"v_and_b32 v{vT[4]}, 31, v{vL}")
    a(f"v_lshrrev_b32 v{vT[5]}, 5, v{vL}")
    a(f"s_cmp_ge_u32 s{sCb}, 10")
    a(f"s_cbranch_scc1 {L('v')}")
    a(f"v_and_b32 v{vT[0]}, 1, v{vL}")
    a(f"v_lshl_add_u32 v{vT[1]}, v{vT[0]}, 4, v{vT[1]}")
    a(f"v_bfe_u32 v{vT[0]}, v{vL}, 1, 1")
    a(f"v_lshl_add_u32 v{vRW[0]}, v{vT[0]}, 3, v{vT[1]}")
    a(f"v_xor_b32 v{vRW[1]}, 64, v{vRW[0]}")
    a(f"s_cmp_ge_u32 s{sCb}, 5")
    a(f"s_cselect_b32 s{sScale}, 1.0, {hex(QSCALE)}")
    a(f"s_mov_b32 s{sScale+1}, s{sScale}")
    srd(a, sC, sWS, WL.QF, 160 * WL.PL)
    a(f"s_lshl_b32 s{sT}, s{sCb}, 1")
    a(f"s_add_u32 s{sT}, s{sT}, s{sWn}")
    a(f"s_lshl_b32 s{sT}, s{sT}, 18")
    a(f"s_lshl_b32 s{sT2}, s{sRb}, 1")
    a(f"s_add_u32 s{sT2}, s{sT2}, s{sWm}")
    a(f"s_lshl_b32 s{sT2}, s{sT2}, 10")
    a(f"s_add_u32 s{sT}, s{sT}, s{sT2}")
    a(f"v_lshlrev_b32 v{vE[0]}, 15, v{vT[5]}")
    a(f"v_lshl_add_u32 v{vE[0]}, v{vT[4]}, 4, v{vE[0]}")
    a(f"v_add_u32 v{vE[0]}, s{sT}, v{vE[0]}")
    for e in range(1, 4): a(f"v_add_u32 v{vE[e]}, {e*2*WL.PL}, v{vE[0]}")
    mainloop('qk')
    for x in range(2):
        for w in range(2):
            acc = ACC[x][w]; pk = PK + 8 * (2 * x + w)
            for i in range(0, 16, 2): a(f"v_pk_mul_f32 {vr(acc+i,2)}, {vr(acc+i,2)}, s[{sScale}:{sScale+1}]")
            for i in range(8): a(f"v_cvt_pk_bf16_f32 v{pk+i}, v{acc+2*i}, v{acc+2*i+1}")
            for j in range(2):
                a(f"buffer_store_dwordx4 {vr(pk+4*j,4)}, v{vE[2*w+j]}, s[{sC}:{sC+3}], 0 offen offset:{512*x} sc1")
    a(f"s_branch {L('adone')}")
    a.label(L("v"))
    a(f"v_and_b32 v{vT[0]}, 3, v{vL}")
    a(f"v_lshl_add_u32 v{vRW[0]}, v{vT[0]}, 3, v{vT[1]}")
    a(f"v_xor_b32 v{vRW[1]}, 64, v{vRW[0]}")
    srd(a, sC, sWS, WL.VF, 64 * WL.VT)
    a(f"s_lshl_b32 s{sT}, s{sRb}, 1")
    a(f"s_add_u32 s{sT}, s{sT}, s{sWm}")
    a(f"s_mul_i32 s{sT}, s{sT}, {2*WL.VT}")
    a(f"s_sub_u32 s{sT2}, s{sCb}, 10")
    a(f"s_lshl_b32 s{sT2}, s{sT2}, 1")
    a(f"s_add_u32 s{sT2}, s{sT2}, s{sWn}")
    a(f"s_lshl_b32 s{sT2}, s{sT2}, 10")
    a(f"s_add_u32 s{sT}, s{sT}, s{sT2}")
    a(f"v_mul_u32_u24 v{vE[0]}, 10240, v{vT[5]}")
    a(f"v_lshl_add_u32 v{vE[0]}, v{vT[4]}, 4, v{vE[0]}")
    a(f"v_add_u32 v{vE[0]}, s{sT}, v{vE[0]}")
    for e in range(1, 4): a(f"v_add_u32 v{vE[e]}, {e*20480}, v{vE[0]}")
    mainloop('v')
    for x in range(2):
        for w in range(2):
            acc = ACC[x][w]; pk = PK + 8 * (2 * x + w)
            for i in range(8): a(f"v_cvt_pk_bf16_f32 v{pk+i}, v{acc+2*i}, v{acc+2*i+1}")
            for j in range(2):
                a(f"buffer_store_dwordx4 {vr(pk+4*j,4)}, v{vE[2*x+j]}, s[{sC}:{sC+3}], 0 offen offset:{512*w} sc1")
    a(f"s_branch {L('adone')}")
    a.label(L("gate"))
    GW = 40; GX = 60
    assert vTch + 2 <= GW and GX + 160 <= PK
    srd(a, sB, 20, 0, 1280)
    srd(a, sC, sWS, WL.GATE, 2048 * 8)
    a(f"v_and_b32 v{vT[0]}, 15, v{vL}")
    a(f"v_lshlrev_b32 v{vT[0]}, 4, v{vT[0]}")
    a(f"s_and_b32 s{sAF}, s{sXc}, 3")
    a(f"s_lshl_b32 s{sAF}, s{sAF}, 2")
    a(f"s_lshr_b32 s{sT}, s{sXc}, 2")
    a(f"s_lshl_b32 s{sT}, s{sT}, 1")
    a(f"s_add_u32 s{sAF}, s{sAF}, s{sT}")
    a(f"s_add_u32 s{sAF}, s{sAF}, s{sJ}")
    a(f"s_sub_u32 s{sAF}, s{sAF}, 30")
    a(f"s_lshl_b32 s{sT}, s{sAF}, 1")
    a(f"s_add_u32 s{sT}, s{sT}, s{sWn}")
    a(f"s_add_u32 s{sAF}, s{sAF}, 240")
    a(f"s_lshl_b32 s{sT2}, s{sWm}, 5")
    a(f"v_lshrrev_b32 v{vT[5]}, 4, v{vL}")
    a(f"s_add_u32 s{sCnt}, s{sT}, s{sT2}")
    a(f"v_lshl_add_u32 v{vT[2]}, v{vT[5]}, 6, s{sCnt}")
    a(f"v_mul_u32_u24 v{vT[2]}, 1280, v{vT[2]}")
    a(f"v_add_u32 v{vT[2]}, v{vT[2]}, v{vT[0]}")
    a(f"s_lshl_b32 s{sT}, s{sT}, 6")
    a(f"s_add_u32 s{sT}, s{sT}, s{sT2}")
    a(f"v_add_u32 v{vT[5]}, s{sT}, v{vT[5]}")
    a(f"v_lshlrev_b32 v{vT[5]}, 3, v{vT[5]}")
    a(f"v_cmp_eq_u32 vcc, 0, v{vT[0]}")
    a("s_waitcnt lgkmcnt(0)")
    a("s_barrier")
    for p in range(5):
        a(f"buffer_load_dwordx4 {vr(GW+4*p,4)}, v{vT[0]}, s[{sB}:{sB+3}], 0 offen offset:{256*p}")
    for r in range(8):
        b4 = (r & 4) * 4 + (r & 1) * 8 + (r & 2) * 2
        a(f"s_mov_b32 s{sT}, {b4*64*1280}")
        for p in range(5):
            a(f"buffer_load_dwordx4 {vr(GX+20*r+4*p,4)}, v{vT[2]}, s[{sA}:{sA+3}], s{sT} offen offset:{256*p}")
        a(f"v_mov_b32 v{vE[r]}, 0")
    for r in range(8):
        a(f"s_waitcnt vmcnt({35-5*r})")
        for i in range(20):
            a(f"v_dot2c_f32_bf16 v{vE[r]}, v{GX+20*r+i}, v{GW+i}")
    a("s_nop 3")
    for sh in (8, 4, 2, 1):
        for r in range(8):
            a(f"v_add_f32_dpp v{vE[r]}, v{vE[r]}, v{vE[r]} row_ror:{sh} row_mask:0xf bank_mask:0xf")
    GO = PK
    for r in range(8): a(f"v_cvt_pk_bf16_f32 v{vE[r]}, 0, v{vE[r]}")
    for r in range(8): a(f"v_mul_f32 v{vE[r]}, 0xbfb8aa3b, v{vE[r]}")
    for r in range(8): a(f"v_exp_f32 v{vE[r]}, v{vE[r]}")
    for r in range(8): a(f"v_add_f32 v{vE[r]}, 1.0, v{vE[r]}")
    for r in range(8): a(f"v_rcp_f32 v{vE[r]}, v{vE[r]}")
    for r in range(8): a(f"v_cvt_pk_bf16_f32 v{GO+2*r}, 0, v{vE[r]}")
    for r in range(8): a(f"v_sub_f32 v{GO+2*r+1}, 1.0, v{GO+2*r}")
    for r in range(8): a(f"v_cvt_pk_bf16_f32 v{GO+2*r+1}, 0, v{GO+2*r+1}")
    a("s_mov_b64 exec, vcc")
    for r in range(8):
        a(f"buffer_store_dwordx2 {vr(GO+2*r,2)}, v{vT[5]}, s[{sC}:{sC+3}], 0 offen offset:{32*r} sc1")
    a("s_mov_b64 exec, -1")
    lds_inc(8)
    a.label(L("adone"))
    if fwait: lds_inc(20)
    st.stamp("ast")
    a(f"s_add_u32 s{sNonce}, s{sNonce}, 1")
    a(f"s_lshl_b32 s{sAF}, s{sAF}, 7")
    a(f"s_add_u32 s{sAF}, s{sAF}, {WL.FA}")

    a.label(L("att"))
    V = Alloc(VB, TOP)
    vKm = V.get(); vKr = V.get(); vV0 = V.get(); vV1 = V.get(); vM = V.get(); vWo = V.get()
    Qm = [V.get(4, 4) for _ in range(2)]
    Qr = [V.get(2) for _ in range(2)]
    Km = [V.get(4, 4) for _ in range(4)]
    Kr = [V.get(2) for _ in range(4)]
    Vb = [[V.get(4, 4) for _ in range(2)] for _ in range(4)]
    P = V.get(8, 4)
    S = [V.get(16, 4) for _ in range(2)]
    O = [V.get(16, 4) for _ in range(2)]
    K0m = V.get(4, 4); K0r = V.get(2)
    vG = V.get(2); vO = V.get(); vSt = V.get(); vGd = V.get(); vWs = V.get(); vX0 = V.get(); vX1 = V.get(); vGt = V.get(); vDum = V.get()
    WsF = [V.get(4, 4) for _ in range(2)]
    att_keep = V.p
    GFl = V.get(11, 4)
    att_hi = V.p
    assert att_hi <= TOP - 32
    sK = sA; sV = sB; sQ = sC; sWo = sD
    sHead = 98; sQb = 99; sKh = 100; sOK = 101; sOV = 14; sOWo = 15; sM0 = 3; sPar = sE; sHp = sE + 1; sStep = sE + 2; sU0 = sE + 3
    sCc = sHead; sEb8 = sQb; sMs = sPar
    a(f"s_and_b32 s{sT}, s{sJ}, 3")
    a(f"s_lshl_b32 s{sHead}, s{sXc}, 2")
    a(f"s_add_u32 s{sHead}, s{sHead}, s{sT}")
    a(f"s_lshr_b32 s{sQb}, s{sJ}, 2")
    a(f"s_lshr_b32 s{sKh}, s{sW}, 2")
    a(f"s_and_b32 s{sPar}, s{sHead}, 1")
    a(f"s_lshr_b32 s{sHp}, s{sHead}, 1")
    a(f"s_mul_i32 s{sHp}, s{sHp}, {5*WL.PL}")
    a(f"v_and_b32 v{vT[0]}, 31, v{vL}")
    a(f"v_lshrrev_b32 v{vT[1]}, 5, v{vL}")
    a(f"s_mul_i32 s{sT}, s{sPar}, {3*WL.PL}")
    a(f"v_lshlrev_b32 v{vKm}, 15, v{vT[1]}")
    a(f"v_lshl_add_u32 v{vKm}, v{vT[0]}, 4, v{vKm}")
    a(f"v_add_u32 v{vKm}, s{sT}, v{vKm}")
    a(f"s_lshl_b32 s{sT}, s{sPar}, 3")
    a(f"s_add_u32 s{sT}, s{sT}, {2*WL.PL}")
    a(f"v_lshl_add_u32 v{vKr}, v{vT[0]}, 4, s{sT}")
    a(f"v_and_b32 v{vT[2]}, 0x13, v{vT[0]}")
    a(f"v_bfe_u32 v{vT[3]}, v{vT[0]}, 2, 1")
    a(f"v_lshl_add_u32 v{vT[2]}, v{vT[3]}, 3, v{vT[2]}")
    a(f"v_bfe_u32 v{vT[3]}, v{vT[0]}, 3, 1")
    a(f"v_lshl_add_u32 v{vT[2]}, v{vT[3]}, 2, v{vT[2]}")
    a(f"v_and_b32 v{vT[5]}, 15, v{vT[2]}")
    a(f"s_lshl_b32 s{sT}, s{sPar}, 2")
    a(f"v_add_u32 v{vT[2]}, s{sT}, v{vT[2]}")
    a(f"v_subrev_u32 v{vT[3]}, 20, v{vT[2]}")
    a(f"v_min_u32 v{vT[2]}, v{vT[2]}, v{vT[3]}")
    a(f"s_mul_i32 s{sT}, s{sHead}, 320")
    a(f"v_mul_u32_u24 v{vV0}, 10240, v{vT[1]}")
    a(f"v_lshl_add_u32 v{vV0}, v{vT[2]}, 4, v{vV0}")
    a(f"v_add_u32 v{vV0}, s{sT}, v{vV0}")
    a(f"v_add_u32 v{vV1}, 20480, v{vV0}")
    a(f"s_add_u32 s{sT}, s{sHp}, {WL.KF}")
    srd(a, sK, sWS, f"s{sT}", 5 * WL.PL)
    srd(a, sV, sWS, WL.VF, 64 * WL.VT)
    a(f"s_add_u32 s{sT}, s{sHp}, {WL.QF}")
    srd(a, sQ, sWS, f"s{sT}", 5 * WL.PL)
    a(f"s_lshl_b32 s{sOK}, s{sKh}, 14")
    a(f"s_mul_i32 s{sOV}, s{sKh}, {32*WL.VT}")
    a(f"s_lshl_b32 s{sU0}, s{sQb}, 2")
    a(f"s_and_b32 s{sT}, s{sW}, 3")
    a(f"s_add_u32 s{sU0}, s{sU0}, s{sT}")
    a(f"s_lshl_b32 s{sU0}, s{sU0}, 10")
    for r in [K0r] + Kr:
        a(f"v_mov_b32 v{r}, 0x3f803f80")
        a(f"v_mov_b32 v{r+1}, 0x3f80")
    for q in range(2):
        a(f"v_mov_b32 v{Qr[q]}, 0"); a(f"v_mov_b32 v{Qr[q]+1}, 0")
    a(f"v_cmp_eq_u32 vcc, 20, v{vT[0]}")
    a(f"v_mov_b32 v{vT[2]}, 0x3f803f80")
    a(f"v_mov_b32 v{vT[3]}, 0")
    a(f"v_cndmask_b32 v{vT[2]}, v{vT[3]}, v{vT[2]}, vcc")
    for b in range(4):
        for j in range(2):
            for i in range(4): a(f"v_mov_b32 v{Vb[b][j]+i}, v{vT[2]}")
    for q in range(2):
        for i in range(16): a(f"v_mov_b32 v{O[q]+i}, 0")
    for i in range(8): a(f"v_mov_b32 v{P+i}, 0")
    a(f"v_and_b32 v{vT[0]}, 15, v{vL}")
    a(f"v_lshrrev_b32 v{vT[1]}, 4, v{vL}")
    a(f"s_and_b32 s{sT}, s{sW}, 3")
    a(f"s_lshl_b32 s{sT}, s{sT}, 4")
    a(f"s_lshl_b32 s{sT2}, s{sCc}, 6")
    a(f"s_add_u32 s{sT}, s{sT}, s{sT2}")
    a(f"v_add_u32 v{vT[2]}, s{sT}, v{vT[0]}")
    a(f"s_and_b32 s{sT}, s{sW}, 1")
    a(f"s_lshl_b32 s{sT}, s{sT}, 10")
    a(f"s_and_b32 s{sT2}, s{sW}, 2")
    a(f"s_lshl_b32 s{sT2}, s{sT2}, 4")
    a(f"s_add_u32 s{sT}, s{sT}, s{sT2}")
    a(f"s_add_u32 s{sT}, s{sT}, s{sCc}")
    a(f"v_lshl_add_u32 v{vT[0]}, v{vT[5]}, 6, s{sT}")
    a(f"v_lshlrev_b32 v{vWs}, 12, v{vT[0]}")
    a(f"v_lshl_add_u32 v{vWs}, v{vT[1]}, 4, v{vWs}")
    a(f"v_lshlrev_b32 v{vGt}, 3, v{vT[2]}")
    a(f"v_lshlrev_b32 v{vO}, 4, v{vT[2]}")
    a(f"v_lshl_add_u32 v{vO}, v{vT[1]}, 15, v{vO}")
    a(f"v_mul_u32_u24 v{vSt}, 1280, v{vT[0]}")
    a(f"v_lshl_add_u32 v{vSt}, v{vT[1]}, 3, v{vSt}")
    a(f"s_mul_i32 s{sT}, s{sEb8}, 160")
    a(f"v_add_u32 v{vSt}, s{sT}, v{vSt}")
    a(f"v_mul_u32_u24 v{vT[2]}, 205, v{vL}")
    a(f"v_lshrrev_b32 v{vT[2]}, 11, v{vT[2]}")
    a(f"v_mul_u32_u24 v{vWo}, {1280-160}, v{vT[2]}")
    a(f"v_lshl_add_u32 v{vWo}, v{vL}, 4, v{vWo}")
    a(f"v_add_u32 v{vWo}, s{sT}, v{vWo}")
    a(f"v_mul_u32_u24 v{vT[2]}, 187, v{vL}")
    a(f"v_lshrrev_b32 v{vT[2]}, 11, v{vT[2]}")
    a(f"v_mul_u32_u24 v{vT[3]}, 11, v{vT[2]}")
    a(f"v_sub_u32 v{vT[3]}, v{vL}, v{vT[3]}")
    a(f"v_mul_u32_u24 v{vGd}, {WL.GA}, v{vT[2]}")
    a(f"v_lshrrev_b32 v{vT[2]}, 1, v{vT[3]}")
    a(f"v_lshl_add_u32 v{vGd}, v{vT[2]}, 10, v{vGd}")
    a(f"v_and_b32 v{vT[3]}, 1, v{vT[3]}")
    a(f"v_lshl_add_u32 v{vGd}, v{vT[3]}, 4, v{vGd}")
    a(f"s_sub_u32 s{sT}, 7, s{sEb8}")
    a(f"s_sub_u32 s{sT2}, 32, s{sCc}")
    a(f"s_and_b32 s{sT2}, s{sT2}, 31")
    a(f"s_cmp_lt_u32 s{sEb8}, 4")
    a(f"s_cselect_b32 s{sT}, s{sEb8}, s{sT}")
    a(f"s_cselect_b32 s{sT2}, s{sCc}, s{sT2}")
    a(f"s_mul_i32 s{sT}, s{sT}, 5120")
    a(f"s_lshl_b32 s{sT2}, s{sT2}, 5")
    a(f"s_add_u32 s{sT}, s{sT}, s{sT2}")
    a(f"v_add_u32 v{vGd}, s{sT}, v{vGd}")
    a(f"s_mul_i32 s{sOWo}, s{sW}, {4*1280}")
    a(f"s_mov_b32 s{sStep}, {32*1280}")
    a(f"s_mov_b32 s{sMs}, 5120")
    a(f"s_and_b32 s{sT}, s{sW}, 1")
    a(f"s_lshl_b32 s{sT}, s{sT}, 4")
    a(f"s_lshr_b32 s{sT2}, s{sW}, 1")
    a(f"s_lshl_b32 s{sT2}, s{sT2}, 2")
    a(f"s_add_u32 s{sT}, s{sT}, s{sT2}")
    a(f"s_mul_i32 s{sM0}, s{sT}, 160")
    srd(a, sWo, 18, 0, 640 * 1280)
    a(f"s_mul_i32 s{sT}, s{sW}, 3072")
    a(f"s_add_u32 s{sT}, s{sT}, {LDS_X}")
    a(f"v_lshl_add_u32 v{vX0}, v{vL}, 4, s{sT}")
    a(f"s_xor_b32 s{sT}, s{sW}, 4")
    a(f"s_mul_i32 s{sT}, s{sT}, 3072")
    a(f"s_add_u32 s{sT}, s{sT}, {LDS_X}")
    a(f"v_lshl_add_u32 v{vX1}, v{vL}, 4, s{sT}")
    a(f"s_cmp_eq_u32 s{sAF}, 0")
    a(f"s_cbranch_scc1 {L('nsig')}")
    a(f"v_mov_b32 v{vT[0]}, 1")
    a("s_waitcnt vmcnt(0)")
    a("s_mov_b64 exec, 1")
    a(f"ds_add_rtn_u32 v{vT[1]}, v{vCtl}, v{vT[0]} offset:4")
    a("s_mov_b64 exec, -1")
    a("s_waitcnt lgkmcnt(0)")
    a(f"v_readfirstlane_b32 s{sT}, v{vT[1]}")
    a("s_nop 1")
    a(f"s_cmp_lg_u32 s{sT}, 3")
    a(f"s_cbranch_scc1 {L('nsig')}")
    put_flag(f"s{sAF}")
    st.stamp("aflag")
    a.label(L("nsig"))
    def aux_loads():
        sel_srd(sD, sKh, 6, 8, 2048 * 4096)
        a(f"buffer_load_dwordx4 {vr(WsF[0],4)}, v{vWs}, s[{sD}:{sD+3}], 0 offen")
        a(f"buffer_load_dwordx4 {vr(WsF[1],4)}, v{vWs}, s[{sD}:{sD+3}], 0 offen offset:64")
        srd(a, sWo, 18, 0, 640 * 1280)
        if wotouch:
            a(f"s_lshl_b32 s{sT}, s{sJ}, 3")
            a(f"s_add_u32 s{sT}, s{sT}, s{sW}")
            a(f"s_mul_i32 s{sT}, s{sT}, {25*128}")
            a(f"v_min_u32 v{vT[0]}, 24, v{vL}")
            a(f"v_lshlrev_b32 v{vT[0]}, 7, v{vT[0]}")
            a(f"buffer_load_dword v{vDum}, v{vT[0]}, s[{sWo}:{sWo+3}], s{sT} offen")
    a(f"s_cmp_eq_u32 s{sW}, 0")
    a(f"s_cbranch_scc1 {L('poll')}")
    lds_wait("wa", 0, 1)
    a(f"s_branch {L('go')}")
    a.label(L("poll"))
    a(f"s_mul_i32 s{sT}, s{sHead}, 20")
    a(f"v_bfe_u32 v{vT[0]}, v{vL}, 4, 1")
    a(f"v_mul_u32_u24 v{vT[0]}, 19, v{vT[0]}")
    a(f"v_add_u32 v{vT[0]}, s{sT}, v{vT[0]}")
    a(f"v_lshrrev_b32 v{vT[0]}, 7, v{vT[0]}")
    a(f"v_lshrrev_b32 v{vT[1]}, 5, v{vL}")
    a(f"v_mul_u32_u24 v{vT[1]}, 5, v{vT[1]}")
    a(f"v_add3_u32 v{vT[1]}, v{vT[1]}, v{vT[0]}, 5")
    a(f"v_and_b32 v{vT[2]}, 15, v{vL}")
    a(f"v_lshl_add_u32 v{vT[1]}, v{vT[1]}, 4, v{vT[2]}")
    a(f"v_lshlrev_b32 v{vT[1]}, 7, v{vT[1]}")
    a(f"s_lshl_b32 s{sT}, s{sQb}, 1")
    a(f"v_and_b32 v{vT[2]}, 1, v{vL}")
    a(f"v_lshl_add_u32 v{vT[0]}, v{vT[0]}, 4, v{vT[2]}")
    a(f"v_add_u32 v{vT[0]}, s{sT}, v{vT[0]}")
    a(f"v_lshlrev_b32 v{vT[0]}, 7, v{vT[0]}")
    a(f"s_mov_b32 s{sT2}, {WL.FA}")
    spin_begin("pa")
    a(f"buffer_load_dword v{vT[2]}, v{vT[1]}, s[{sFl}:{sFl+3}], s{sT2} offen sc1")
    a(f"buffer_load_dword v{vT[3]}, v{vT[0]}, s[{sFl}:{sFl+3}], s{sT2} offen sc1")
    a("s_waitcnt vmcnt(0)")
    for i in range(2): a(f"v_xor_b32 v{vT[2]+i}, s{sNonce}, v{vT[2]+i}")
    a(f"v_or_b32 v{vT[2]}, v{vT[2]}, v{vT[3]}")
    a(f"v_cmp_ne_u32 vcc, 0, v{vT[2]}")
    a("s_nop 1")
    a("s_cmp_eq_u64 vcc, 0")
    a(f"s_cbranch_scc1 {L('pad')}")
    spin_end("pa", psleep)
    a.label(L("pad"))
    a(f"v_mov_b32 v{vT[0]}, 1")
    a(f"ds_write_b32 v{vCtl}, v{vT[0]}")
    a.label(L("go"))
    st.stamp("ardy")
    a(f"buffer_load_dwordx4 {vr(K0m,4)}, v{vKm}, s[{sK}:{sK+3}], 0 offen sc1")
    a(f"buffer_load_dwordx4 {vr(Qm[0],4)}, v{vKm}, s[{sQ}:{sQ+3}], s{sU0} offen sc1")
    a(f"buffer_load_dwordx4 {vr(Qm[1],4)}, v{vKm}, s[{sQ}:{sQ+3}], s{sU0} offen offset:512 sc1")
    a(f"s_mov_b64 exec, s[{sLo}:{sLo+1}]")
    a(f"buffer_load_dwordx2 {vr(K0r,2)}, v{vKr}, s[{sK}:{sK+3}], 0 offen sc1")
    a(f"buffer_load_dwordx2 {vr(Qr[0],2)}, v{vKr}, s[{sQ}:{sQ+3}], s{sU0} offen sc1")
    a(f"buffer_load_dwordx2 {vr(Qr[1],2)}, v{vKr}, s[{sQ}:{sQ+3}], s{sU0} offen offset:512 sc1")
    a(f"buffer_load_dwordx2 {vr(Kr[0],2)}, v{vKr}, s[{sK}:{sK+3}], s{sOK} offen sc1")
    a("s_mov_b64 exec, -1")
    a(f"buffer_load_dwordx4 {vr(Km[0],4)}, v{vKm}, s[{sK}:{sK+3}], s{sOK} offen sc1")
    SC = ' sc1' if kvsc1 else ''
    def ex(m, inloop):
        if inloop and noexec: return
        a(f"s_mov_b64 exec, s[{m}:{m+1}]" if m is not None else "s_mov_b64 exec, -1")
    def ldKr(kb, koff): a(f"buffer_load_dwordx2 {vr(Kr[kb],2)}, v{vKr}, s[{sK}:{sK+3}], s{sOK} offen offset:{koff}{SC}")
    def ldKm(kb, koff): a(f"buffer_load_dwordx4 {vr(Km[kb],4)}, v{vKm}, s[{sK}:{sK+3}], s{sOK} offen offset:{koff}{SC}")
    def ldV(vb, j): a(f"buffer_load_dwordx4 {vr(Vb[vb][j],4)}, v{vV0+j}, s[{sV}:{sV+3}], s{sOV} offen{SC}")
    def group(kb, vb, koff, inloop=False):
        if inloop and noload: return
        ex(sLo, inloop); ldKr(kb, koff)
        ex(sVm, inloop); ldV(vb, 0); ldV(vb, 1)
        ex(None, inloop); ldKm(kb, koff)
        a(f"s_add_u32 s{sOV}, s{sOV}, {WL.VT}")
    group(1, 0, 512)
    a("s_waitcnt vmcnt(6)")
    st.stamp("qld")
    for q in range(2):
        a(f"v_mfma_f32_32x32x16_bf16 {vr(S[q],16)}, {vr(K0m,4)}, {vr(Qm[q],4)}, 0")
    group(2, 1, 1024)
    a("s_nop 1")
    for q in range(2):
        a(f"v_mfma_f32_32x32x8_bf16 {vr(S[q],16)}, {vr(K0r,2)}, {vr(Qr[q],2)}, {vr(S[q],16)}")
    group(3, 2, 1536)
    a("s_nop 3")
    for q in range(2):
        a(f"v_max3_f32 v{S[q]}, v{S[q]}, v{S[q]+1}, v{S[q]+2}")
        for i in range(3, 15, 2):
            a(f"v_max3_f32 v{S[q]}, v{S[q]}, v{S[q]+i}, v{S[q]+i+1}")
        a(f"v_max_f32 v{S[q]}, v{S[q]}, v{S[q]+15}")
    a(f"s_mov_b64 exec, s[{sHi}:{sHi+1}]")
    for q in range(2):
        a(f"v_cvt_pk_bf16_f32 v{Qr[q]}, -v{S[q]}, 0")
    a("s_mov_b64 exec, -1")
    a("s_waitcnt vmcnt(12)")
    a(f"v_mfma_f32_32x32x16_bf16 {vr(S[0],16)}, {vr(Km[0],4)}, {vr(Qm[0],4)}, 0")
    a(f"s_add_u32 s{sT}, s{sHp}, {WL.OF}")
    srd(a, sQ, sWS, f"s{sT}", 5 * WL.PL)
    a("s_nop 3")
    a(f"v_mfma_f32_32x32x8_bf16 {vr(S[0],16)}, {vr(Kr[0],2)}, {vr(Qr[0],2)}, {vr(S[0],16)}")
    a(f"s_mov_b32 s{sCnt}, 7")
    a("s_mov_b64 vcc, 0")
    a("s_setprio 3")
    st.stamp("lbeg")
    def exp(q, i): a(f"v_exp_f32 v{S[q]+i}, v{S[q]+i}")
    def cvt(q, i): a(f"v_cvt_pk_bf16_f32 v{P+i}, v{S[q]+2*i}, v{S[q]+2*i+1}")
    def slot(kt, q):
        nq = 1 - q
        nk = (kt + q) % 4
        pk = (kt + q - 1) % 4
        a(f"v_mfma_f32_32x32x16_bf16 {vr(S[nq],16)}, {vr(Km[nk],4)}, {vr(Qm[nq],4)}, 0")
        if spread and q == 0:
            ex(sVm, True); ldV((kt - 1) % 4, 0); ex(None, True)
        for i in range(0, 4): exp(q, i)
        a(f"v_mfma_f32_32x32x16_bf16 {vr(O[nq],16)}, {vr(Vb[pk][1],4)}, {vr(P+4,4)}, {vr(O[nq],16)}")
        if spread and q == 0:
            ex(sVm, True); ldV((kt - 1) % 4, 1); ex(None, True)
            a(f"s_add_u32 s{sOV}, s{sOV}, {WL.VT}")
        for i in range(4, 8): exp(q, i)
        cvt(q, 0)
        a(f"v_mfma_f32_32x32x8_bf16 {vr(S[nq],16)}, {vr(Kr[nk],2)}, {vr(Qr[nq],2)}, {vr(S[nq],16)}")
        if q == 0:
            if spread:
                ex(sLo, True); ldKr(kt, 512 * (kt + 4)); ex(None, True)
            else:
                group(kt, (kt - 1) % 4, 512 * (kt + 4), True)
            if kt == 0:
                a(f"s_cmp_eq_u32 s{sCnt}, 0")
                a(f"s_cselect_b32 s{sV+2}, 0, s{sV+2}")
        else:
            a(f"s_cbranch_vccz {L('nd%d' % kt)}")
            a(f"s_mov_b32 m0, s{sM0}")
            a(f"s_mov_b64 exec, s[{sDm}:{sDm+1}]")
            a(f"buffer_load_dwordx4 v{vWo}, s[{sWo}:{sWo+3}], s{sOWo} offen sc1 lds")
            a("s_mov_b64 exec, -1")
            a(f"s_add_u32 s{sM0}, s{sM0}, s{sMs}")
            a(f"s_add_u32 s{sOWo}, s{sOWo}, s{sStep}")
            a.label(L("nd%d" % kt))
        for i in range(1, 4): cvt(q, i)
        for i in range(8, 12): exp(q, i)
        if q == 0 and not nowait: a("s_waitcnt vmcnt(%d)" % (11 if spread else 12))
        a(f"v_mfma_f32_32x32x16_bf16 {vr(O[q],16)}, {vr(Vb[kt][0],4)}, {vr(P,4)}, {vr(O[q],16)}")
        if spread and q == 0: ldKm(kt, 512 * (kt + 4))
        for i in range(12, 16): exp(q, i)
        for i in range(4, 8): cvt(q, i)
    def gfl_loads():
        a(f"v_mul_u32_u24 v{vT[0]}, 48, v{vL}")
        a(f"buffer_load_dwordx4 {vr(GFl,4)}, v{vT[0]}, s[{sFl}:{sFl+3}], 0 offen offset:{WL.FG} sc1")
        a(f"buffer_load_dwordx4 {vr(GFl+4,4)}, v{vT[0]}, s[{sFl}:{sFl+3}], 0 offen offset:{WL.FG+16} sc1")
        a(f"buffer_load_dwordx2 {vr(GFl+8,2)}, v{vT[0]}, s[{sFl}:{sFl+3}], 0 offen offset:{WL.FG+32} sc1")
        a(f"s_lshr_b32 s{sT}, s{sCc}, 1")
        a(f"s_lshl_b32 s{sT}, s{sT}, 7")
        a(f"s_add_u32 s{sT}, s{sT}, {WL.FA + 240*128}")
        a(f"buffer_load_dword v{GFl+10}, off, s[{sFl}:{sFl+3}], s{sT} sc1")
    a("s_nop 7")
    a(f"s_branch {L('loop')}")
    a.label(L("head"))
    for lvl, c in zip((2, 1, 0), prio):
        a(f"s_cmp_lg_u32 s{sCnt}, {c-1}")
        a(f"s_cbranch_scc1 {L('hp%d' % lvl)}")
        a(f"s_setprio {lvl}")
        a.label(L("hp%d" % lvl))
    a(f"s_cmp_eq_u32 s{sCnt}, 5")
    a(f"s_cbranch_scc1 {L('h5')}")
    a(f"s_cmp_eq_u32 s{sCnt}, 0")
    a(f"s_cbranch_scc1 {L('h0')}")
    a(f"s_cmp_eq_u32 s{sCnt}, 1")
    a(f"s_cbranch_scc1 {L('h1')}")
    a(f"s_cmp_lg_u32 s{sCnt}, 6")
    a(f"s_cbranch_scc1 {L('loop')}")
    aux_loads()
    a(f"s_branch {L('loop')}")
    a.label(L("h1"))
    gfl_loads()
    a(f"s_branch {L('loop')}")
    a.label(L("h5"))
    a(f"s_cmp_eq_u32 s{sGF}, 0")
    a(f"s_cbranch_scc1 {L('h5b')}")
    put_flag(f"s{sGF}")
    a.label(L("h5b"))
    lds_wait("wr", 8, 8)
    a("s_mov_b64 vcc, %d" % (0 if nodma else -1))
    a(f"s_branch {L('loop')}")
    a.label(L("h0"))
    a(f"s_mov_b32 s{sK+2}, 0")
    spin_begin("pg")
    for i in range(11): a(f"v_xor_b32 v{GFl+i}, s{sNonce}, v{GFl+i}")
    for i in range(1, 11, 2): a(f"v_or3_b32 v{GFl}, v{GFl}, v{GFl+i}, v{GFl+i+1}")
    a(f"v_cmp_ne_u32 vcc, 0, v{GFl}")
    a("s_nop 1")
    a("s_cmp_eq_u64 vcc, 0")
    a(f"s_cbranch_scc1 {L('pgd')}")
    a("s_sleep 8")
    gfl_loads()
    a("s_waitcnt vmcnt(0)")
    spin_end("pg")
    a.label(L("pgd"))
    a("s_mov_b64 vcc, %d" % (0 if nodma else -1))
    srd(a, sWo, sWS, WL.GATE, 2048 * 8)
    a(f"buffer_load_dwordx2 {vr(vG,2)}, v{vGt}, s[{sWo}:{sWo+3}], 0 offen sc1")
    srd(a, sWo, sWS, WL.G, WL.G_SIZE)
    a(f"v_mov_b32 v{vWo}, v{vGd}")
    a(f"s_mul_i32 s{sOWo}, s{sW}, {4*WL.GA}")
    a(f"s_mov_b32 s{sStep}, {32*WL.GA}")
    a(f"s_mov_b32 s{sMs}, {GSTEP}")
    a(f"s_mov_b32 s{sDm+1}, 0xfff")
    a(f"s_and_b32 s{sT}, s{sW}, 1")
    a(f"s_lshl_b32 s{sT}, s{sT}, 4")
    a(f"s_lshr_b32 s{sT2}, s{sW}, 1")
    a(f"s_lshl_b32 s{sT2}, s{sT2}, 2")
    a(f"s_add_u32 s{sT}, s{sT}, s{sT2}")
    a(f"s_mul_i32 s{sM0}, s{sT}, 176")
    a(f"s_add_u32 s{sM0}, s{sM0}, {GIMG}")
    a.raw(".p2align 6")
    a.label(L("loop"))
    for kt in range(4):
        for q in range(2): slot(kt, q)
    a(f"s_add_u32 s{sOK}, s{sOK}, 2048")
    evm = 0
    for c in [6, 5, 1, 0] + [p - 1 for p in prio if p > 0]: evm |= 1 << c
    a(f"s_sub_u32 s{sCnt}, s{sCnt}, 1")
    a(f"s_bitcmp1_b32 {hex(~evm & 0xff)}, s{sCnt}")
    a(f"s_cbranch_scc1 {L('loop')}")
    a(f"s_cmp_ge_i32 s{sCnt}, 0")
    a(f"s_cbranch_scc1 {L('head')}")
    a(f"v_mfma_f32_32x32x16_bf16 {vr(O[1],16)}, {vr(Vb[3][1],4)}, {vr(P+4,4)}, {vr(O[1],16)}")
    a("s_setprio 3")
    st.stamp("lend")
    a(f"s_lshr_b32 s{sOWo}, s{sU0}, 9")
    a(f"s_add_u32 s{sOWo}, s{sOWo}, s{sKh}")
    a(f"s_lshl_b32 s{sOWo}, s{sOWo}, 5")
    a(f"s_add_u32 s{sOWo}, s{sOWo}, s{sHead}")
    a(f"s_lshl_b32 s{sOWo}, s{sOWo}, 7")
    a(f"s_add_u32 s{sOWo}, s{sOWo}, {WL.FO}")
    a(f"s_lshl_b32 s{sT}, s{sKh}, 9")
    a(f"s_add_u32 s{sOK}, s{sU0}, s{sT}")
    a("s_nop 1")
    a(f"s_cmp_eq_u32 s{sKh}, 0")
    a(f"s_cbranch_scc1 {L('x0')}")
    for r in range(3): a(f"ds_write_b128 v{vX0}, {vr(O[0]+4*r,4)} offset:{1024*r}")
    a("s_waitcnt lgkmcnt(0)")
    for i in range(12): a(f"v_mov_b32 v{O[0]+i}, v{O[1]+i}")
    for i in range(4): a(f"v_mov_b32 v{Qm[0]+i}, v{Qm[1]+i}")
    for i in range(2): a(f"v_mov_b32 v{Qr[0]+i}, v{Qr[1]+i}")
    a(f"s_branch {L('x1')}")
    a.label(L("x0"))
    for r in range(3): a(f"ds_write_b128 v{vX0}, {vr(O[1]+4*r,4)} offset:{1024*r}")
    a.label(L("x1"))
    a("s_waitcnt vmcnt(0) lgkmcnt(0)")
    a("s_barrier")
    st.stamp("x1")
    for r in range(3): a(f"ds_read_b128 {vr(S[0]+4*r,4)}, v{vX1} offset:{1024*r}")
    a("s_waitcnt lgkmcnt(0)")
    for i in range(12): a(f"v_add_f32 v{O[0]+i}, v{O[0]+i}, v{S[0]+i}")
    def bcast_l():
        a(f"v_mov_b32 v{O[0]+12}, v{O[0]+8}")
        a(f"v_mov_b32 v{O[0]+13}, v{O[0]+8}")
        a("s_nop 1")
        a(f"v_permlane32_swap_b32 v{O[0]+13}, v{O[0]+12}")
        a("s_nop 1")
    bcast_l()
    a(f"v_mul_f32 v{vM}, 0, v{O[0]}")
    for i in range(1, 12): a(f"v_fmac_f32 v{vM}, 0, v{O[0]+i}")
    a(f"v_add_f32 v{vM}, v{vM}, v{O[0]+12}")
    a(f"v_cmp_nge_f32 vcc, 0x71800000, v{vM}")
    a(f"s_mov_b32 s{sT}, 0x21800000")
    a(f"v_cmp_gt_f32 s[{sT2+1}:{sT2+2}], s{sT}, v{vM}")
    a("s_nop 1")
    a(f"s_or_b64 vcc, vcc, s[{sT2+1}:{sT2+2}]")
    a(f"s_cbranch_scc1 {L('slow')}")
    a.label(L("fin"))
    a(f"v_rcp_f32 v{vM}, v{O[0]+12}")
    a("s_nop 0")
    for i in range(12): a(f"v_mul_f32 v{O[0]+i}, v{O[0]+i}, v{vM}")
    PO = K0m
    assert K0r == K0m + 4
    for i in range(6): a(f"v_cvt_pk_bf16_f32 v{PO+i}, v{O[0]+2*i}, v{O[0]+2*i+1}")
    a(f"buffer_store_dwordx4 {vr(PO,4)}, v{vKm}, s[{sQ}:{sQ+3}], s{sOK} offen sc1")
    a(f"s_mov_b64 exec, s[{sLo}:{sLo+1}]")
    a(f"buffer_store_dwordx2 {vr(PO+4,2)}, v{vKr}, s[{sQ}:{sQ+3}], s{sOK} offen sc1")
    a("s_mov_b64 exec, -1")
    st.stamp("ost")

    V = Alloc(VB, TOP)
    vR = V.get(); vR2 = V.get()
    NPRE = 7
    AF = [[V.get(4, 4) for _ in range(5)] for _ in range(NPRE)]
    AY4 = V.get(4, 4)
    assert V.p <= PO, (V.p, PO)
    V.p = att_keep
    AY = [V.get(4, 4) for _ in range(4)] + [AY4]
    AB = [V.get(4, 4) for _ in range(4)] + [PO]
    OFr = [V.get(4, 4) for _ in range(10)]
    Y1 = OFr[0:5]; Y2 = OFr[5:10]
    a(f"v_lshrrev_b32 v{vT[0]}, 2, v{vL}")
    a(f"v_and_b32 v{vT[1]}, 3, v{vL}")
    a(f"v_mul_u32_u24 v{vR}, 160, v{vT[0]}")
    a(f"v_lshl_add_u32 v{vR}, v{vT[1]}, 3, v{vR}")
    a(f"s_mul_i32 s{sT}, s{sKh}, {10*5120}")
    a(f"v_add_u32 v{vR}, s{sT}, v{vR}")
    a(f"s_cmp_lt_u32 s{sEb8}, 4")
    a(f"s_cselect_b32 s{sT}, 0, 3")
    a(f"v_xor_b32 v{vT[1]}, s{sT}, v{vT[1]}")
    a(f"v_mul_u32_u24 v{vR2}, 176, v{vT[0]}")
    a(f"v_lshl_add_u32 v{vR2}, v{vT[1]}, 3, v{vR2}")
    a(f"s_mul_i32 s{sT}, s{sKh}, {2*GSTEP}")
    a(f"s_add_u32 s{sT}, s{sT}, {GIMG}")
    a(f"v_add_u32 v{vR2}, s{sT}, v{vR2}")
    def rd(dst, base, off, pitch=160):
        for t in range(5):
            a(f"ds_read_b64_tr_b16 {vr(dst[t],2)}, v{base} offset:{off + 32*t}")
            a(f"ds_read_b64_tr_b16 {vr(dst[t]+2,2)}, v{base} offset:{off + 32*t + 16*pitch}")
    def ymf(Y, F0, F1):
        for s, F in enumerate((F0, F1)):
            for t in range(5):
                c = "0" if s == 0 else vr(Y[t], 4)
                a(f"v_mfma_f32_16x16x32_bf16 {vr(Y[t],4)}, {vr(F[t],4)}, {vr(WsF[s],4)}, {c}")
    rd(AF[5], vR2, 0, 176); rd(AF[6], vR2, GSTEP, 176)
    rd(AF[3], vR2, 8, 176); rd(AF[4], vR2, GSTEP + 8, 176)
    a("s_waitcnt vmcnt(0)")
    put_flag(f"s{sOWo}")
    st.stamp("oflag")
    for s in range(3): rd(AF[s], vR, 5120 * s)
    a("s_waitcnt lgkmcnt(%d)" % (0 if stamps else 15))
    ymf(Y1, AF[5], AF[6])
    ymf(Y2, AF[3], AF[4])
    for s in range(3, NPRE): rd(AF[s], vR, 5120 * s)
    a(f"s_cmp_lt_u32 s{sEb8}, 4")
    a(f"s_cbranch_scc0 {L('ymir')}")
    for t in range(5):
        for i in range(4): a(f"v_mul_f32 v{AY[t]+i}, v{Y1[t]+i}, v{vG}")
    a(f"s_branch {L('ydone')}")
    a.label(L("ymir"))
    a(f"s_lshl_b32 s{sT}, s{sKh}, 31")
    a(f"v_xor_b32 v{vG}, s{sT}, v{vG}")
    for t in range(5):
        a(f"v_mul_f32 v{AY[t]}, v{Y2[4-t]}, v{vG}")
        for i in range(1, 4): a(f"v_mul_f32 v{AY[t]+i}, v{Y1[4-t]+4-i}, v{vG}")
    a.label(L("ydone"))
    srd(a, sA, sWS, WL.OF, 80 * WL.PL)
    srd(a, sC, 22, 0, 2048 * 1280)
    a(f"s_lshl_b32 s{sT}, s{sCc}, 1")
    a(f"s_bfe_u32 s{sT2}, s{sW}, 0x10001")
    a(f"s_add_u32 s{sT}, s{sT}, s{sT2}")
    a(f"s_lshl_b32 s{sT}, s{sT}, 1")
    a(f"s_add_u32 s{sT}, s{sT}, s{sKh}")
    a(f"s_lshl_b32 s{sT2}, s{sT}, 11")
    a(f"s_add_u32 s{sT2}, s{sT2}, {WL.FO}")
    a(f"v_and_b32 v{vT[0]}, 15, v{vL}")
    a(f"v_lshlrev_b32 v{vT[0]}, 7, v{vT[0]}")
    st.stamp("pbeg")
    spin_begin("po")
    a(f"buffer_load_dword v{vT[2]}, v{vT[0]}, s[{sFl}:{sFl+3}], s{sT2} offen sc1")
    a("s_waitcnt vmcnt(0)")
    a(f"v_cmp_ne_u32 vcc, s{sNonce}, v{vT[2]}")
    a("s_nop 1")
    a("s_cmp_eq_u64 vcc, 0")
    a(f"s_cbranch_scc1 {L('pod')}")
    spin_end("po", 1)
    a.label(L("pod"))
    st.stamp("pend")
    a(f"s_mul_i32 s{sT}, s{sKh}, {40*WL.PL}")
    for s in range(10):
        a(f"buffer_load_dwordx4 {vr(OFr[s],4)}, v{vO}, s[{sA}:{sA+3}], s{sT} offen sc1")
        if s < 9: a(f"s_add_u32 s{sT}, s{sT}, {4*WL.PL}")
    a("s_waitcnt lgkmcnt(0)")
    for s in range(10):
        a(f"s_waitcnt vmcnt({9-s})" + (f" lgkmcnt({min(15, 10*(9-s))})" if s >= NPRE else ""))
        for t in range(5):
            c = "0" if s == 0 else vr(AB[t], 4)
            a(f"v_mfma_f32_16x16x32_bf16 {vr(AB[t],4)}, {vr(AF[s % NPRE][t],4)}, {vr(OFr[s],4)}, {c}")
        if s + NPRE < 10: rd(AF[s], vR, 5120 * (s + NPRE))
    st.stamp("dmf")
    a("s_nop 7")
    for t in range(5):
        for i in range(4): a(f"v_fmac_f32 v{AY[t]+i}, v{AB[t]+i}, v{vG+1}")
    if probe:
        a("s_memrealtime s[72:73]")
        a("s_waitcnt lgkmcnt(0)")
        a("s_sub_u32 s72, s72, s70")
        a(f"s_cmp_lt_u32 s72, {probe}")
        a(f"s_cbranch_scc1 {L('prb')}")
        a(f"buffer_load_dword v{vT[0]}, off, s[64:67], 0 sc1")
        a("s_waitcnt vmcnt(0)")
        a(f"v_readfirstlane_b32 s72, v{vT[0]}")
        a("s_nop 1")
        a("s_cmp_lg_u32 s72, 0")
        a(f"s_cbranch_scc1 {L('prb')}")
        for t in range(5): a(f"v_mov_b32 v{AY[t]}, 0x7fc00000")
        a.label(L("prb"))
    def dfin(keep, send):
        for r, t in enumerate(send): a(f"ds_write_b128 v{vX1}, {vr(AY[t],4)} offset:{1024*r}")
        a("s_waitcnt lgkmcnt(0)")
        a("s_barrier")
        for r, t in enumerate(keep): a(f"ds_read_b128 {vr(AB[t],4)}, v{vX0} offset:{1024*r}")
        for r, t in enumerate(keep):
            a(f"s_waitcnt lgkmcnt({len(keep)-1-r})")
            for i in range(4): a(f"v_add_f32 v{AY[t]+i}, v{AY[t]+i}, v{AB[t]+i}")
            a(f"v_cvt_pk_bf16_f32 v{AY[t]}, v{AY[t]}, v{AY[t]+1}")
            a(f"v_cvt_pk_bf16_f32 v{AY[t]+1}, v{AY[t]+2}, v{AY[t]+3}")
            a(f"buffer_store_dwordx2 {vr(AY[t],2)}, v{vSt}, s[{sC}:{sC+3}], 0 offen offset:{32*t}")
    a(f"s_cmp_eq_u32 s{sKh}, 0")
    a(f"s_cbranch_scc1 {L('d0')}")
    dfin([3, 4], [0, 1, 2])
    a(f"s_branch {L('dend')}")
    a.label(L("d0"))
    dfin([0, 1, 2], [3, 4])
    a.label(L("dend"))
    a(f"s_lshl_b32 s{sT}, s2, 3")
    a(f"s_add_u32 s{sT}, s{sT}, s{sW}")
    a(f"s_cmp_lg_u32 s{sT}, 4")
    a(f"s_cbranch_scc1 {L('ed')}")
    a(f"v_lshlrev_b32 v{vT[0]}, 9, v{vL}")
    a(f"s_mov_b32 s{sT2}, {WL.FA}")
    spin_begin("pe")
    for i in range(4): a(f"buffer_load_dword v{vT[2]+i}, v{vT[0]}, s[{sFl}:{sFl+3}], s{sT2} offen offset:{128*i} sc1")
    a("s_waitcnt vmcnt(0)")
    for i in range(4): a(f"v_xor_b32 v{vT[2]+i}, s{sNonce}, v{vT[2]+i}")
    a(f"v_or3_b32 v{vT[2]}, v{vT[2]}, v{vT[3]}, v{vT[4]}")
    a(f"v_or_b32 v{vT[2]}, v{vT[2]}, v{vT[5]}")
    a(f"v_cmp_ne_u32 vcc, 0, v{vT[2]}")
    a("s_nop 1")
    a("s_cmp_eq_u64 vcc, 0")
    a(f"s_cbranch_scc1 {L('ped')}")
    spin_end("pe")
    a.label(L("ped"))
    put_flag("0")
    a.label(L("ed"))
    st.finish(9)
    a.label(L("end"))
    a("s_endpgm")

    a.label(L("slow"))
    sSK = sT2 + 1; sSV = sT2 + 2
    a("s_waitcnt vmcnt(0)")
    a(f"s_mov_b32 s{sK+2}, {5*WL.PL}")
    a(f"s_mov_b32 s{sV+2}, {64*WL.VT}")
    a(f"s_mov_b64 exec, s[{sHi}:{sHi+1}]")
    a(f"v_mov_b32 v{Qr[0]}, 0")
    a(f"v_mov_b32 v{Qr[0]+1}, 0")
    a("s_mov_b64 exec, -1")
    a(f"v_mov_b32 v{vM}, 0xff800000")
    a(f"s_mov_b32 s{sSK}, 0")
    def qk_slow():
        a(f"s_mov_b64 exec, s[{sLo}:{sLo+1}]")
        a(f"buffer_load_dwordx2 {vr(Kr[0],2)}, v{vKr}, s[{sK}:{sK+3}], s{sSK} offen sc1")
        a("s_mov_b64 exec, -1")
        a(f"buffer_load_dwordx4 {vr(Km[0],4)}, v{vKm}, s[{sK}:{sK+3}], s{sSK} offen sc1")
        a("s_waitcnt vmcnt(0)")
        a(f"v_mfma_f32_32x32x16_bf16 {vr(S[0],16)}, {vr(Km[0],4)}, {vr(Qm[0],4)}, 0")
        a("s_nop 11")
        a(f"v_mfma_f32_32x32x8_bf16 {vr(S[0],16)}, {vr(Kr[0],2)}, {vr(Qr[0],2)}, {vr(S[0],16)}")
        a("s_nop 12")
    a.label(L("s1"))
    qk_slow()
    for i in range(0, 16, 2):
        a(f"v_max3_f32 v{vM}, v{vM}, v{S[0]+i}, v{S[0]+i+1}")
    a(f"s_add_u32 s{sSK}, s{sSK}, 512")
    a(f"s_cmp_lt_u32 s{sSK}, {WL.PL}")
    a(f"s_cbranch_scc1 {L('s1')}")
    a(f"v_mov_b32 v{vT[0]}, v{vM}")
    a("s_nop 1")
    a(f"v_permlane32_swap_b32 v{vT[0]}, v{vM}")
    a("s_nop 1")
    a(f"v_max_f32 v{vM}, v{vM}, v{vT[0]}")
    a(f"v_cvt_pk_bf16_f32 v{S[0]}, 0, -v{vM}")
    a(f"v_sub_f32 v{vT[0]}, 0, v{vM}")
    a(f"v_sub_f32 v{vT[0]}, v{vT[0]}, v{S[0]}")
    a(f"v_cvt_pk_bf16_f32 v{S[0]+1}, 0, v{vT[0]}")
    a(f"v_sub_f32 v{vT[1]}, v{vT[0]}, v{S[0]+1}")
    a(f"s_mov_b64 exec, s[{sHi}:{sHi+1}]")
    a(f"v_cvt_pk_bf16_f32 v{Qr[0]}, v{S[0]}, v{S[0]+1}")
    a(f"v_cvt_pk_bf16_f32 v{Qr[0]+1}, v{vT[1]}, 0")
    a("s_mov_b64 exec, -1")
    for i in range(16): a(f"v_mov_b32 v{O[0]+i}, 0")
    a(f"s_mov_b32 s{sSK}, 0")
    a(f"s_mov_b32 s{sSV}, 0")
    a.label(L("s2"))
    a(f"s_mov_b64 exec, s[{sVm}:{sVm+1}]")
    a(f"buffer_load_dwordx4 {vr(Vb[0][0],4)}, v{vV0}, s[{sV}:{sV+3}], s{sSV} offen sc1")
    a(f"buffer_load_dwordx4 {vr(Vb[0][1],4)}, v{vV1}, s[{sV}:{sV+3}], s{sSV} offen sc1")
    qk_slow()
    for i in range(16): exp(0, i)
    a("s_nop 0")
    for i in range(8): cvt(0, i)
    a("s_nop 1")
    a(f"v_mfma_f32_32x32x16_bf16 {vr(O[0],16)}, {vr(Vb[0][0],4)}, {vr(P,4)}, {vr(O[0],16)}")
    a(f"v_mfma_f32_32x32x16_bf16 {vr(O[0],16)}, {vr(Vb[0][1],4)}, {vr(P+4,4)}, {vr(O[0],16)}")
    a(f"s_add_u32 s{sSK}, s{sSK}, 512")
    a(f"s_add_u32 s{sSV}, s{sSV}, {WL.VT}")
    a(f"s_cmp_lt_u32 s{sSK}, {WL.PL}")
    a(f"s_cbranch_scc1 {L('s2')}")
    a("s_nop 12")
    bcast_l()
    a(f"s_branch {L('fin')}")
    return a.text(), kernel_desc(name, 256, 102), f"; @launch grid=(256,1,1) block=(512,1,1) lds={LDS_SIZE}"

if __name__ == "__main__":
    import sys
    from gen import build
    path = sys.argv[1]
    sn = [x[3:].split(',') for x in sys.argv if x.startswith('sn=')]
    kw = {x.split('=')[0]: eval(x.split('=')[1]) for x in sys.argv[2:] if not x.startswith('sn=')}
    hd = kw.pop('hdbg', False)
    build(path, [gen(stamps=(2 if hd else bool(sn)), snames=sn[0] if sn else (), **kw)])
```

```python
from asm import *

QSCALE = 0x3ea52b5c
NAME = "gated_mix__spectral_fnet__softmax_full_mha__prompt_kernel"
LDS_X = 131072
LDS_CTL = LDS_X + 24576
LDS_SIZE = LDS_CTL + 64
GSTEP = 32 * 176
GIMG = 20 * 5120
SPIN = 200000
STAGE = [0, 0x8000, 0x18000, 0x10000]

def gen(name=NAME, stamps=False, snames=(), rotx=(0, 2, 5, 7, 5, 7, 0, 2), rin=(7, 3), touch=False, tpos=5, gtouch=True, fsplit=5,
        prio=(4, 2, 1), psleep=8, wotouch=True, probe=None, fwait=True, nodma=False, kvsc1=False, noload=False, nowait=False, noexec=False, spread=False, rt=True, fstart=6, rprobe=False, enc=None, encw=0):
    a = Asm()
    kernel_begin(a, name)
    L = lambda s: f"L_{s}"
    st = Stamps(a, stamps, 0); st.names = list(snames); st.op = 's_memrealtime' if rt else 's_memtime'
    if enc:
        class Enc:
            names = []
            def start(self): a("s_memrealtime s[70:71]"); a("s_memrealtime s[72:73]")
            def stamp(self, n):
                if n == enc: a("s_memrealtime s[72:73]"); a("s_waitcnt lgkmcnt(0)")
            def finish(self, i):
                a("s_lshl_b32 s68, s2, 3"); a("s_add_u32 s68, s68, s52")
                a(f"s_cmp_lg_u32 s68, {136*8+encw}")
                a("s_cbranch_scc1 L_encd")
                a("s_memrealtime s[74:75]"); a("s_waitcnt lgkmcnt(0)")
                a("s_sub_u32 s72, s72, s70"); a("s_lshl_b32 s72, s72, 2"); a("s_add_u32 s72, s72, s74")
                a.label("L_encl")
                a("s_memrealtime s[74:75]"); a("s_waitcnt lgkmcnt(0)")
                a("s_sub_u32 s68, s74, s72"); a("s_cmp_lt_i32 s68, 0")
                a("s_cbranch_scc1 L_encl")
                a.label("L_encd")
        st = Enc()
    sWS = 26
    sA = 28; sB = 32; sC = 36; sD = 40; sFl = 44; sE = 48
    sW = 52; sXc = 53; sJ = 54; sNonce = 55; sT = 56; sT2 = 57; sCnt = 58
    sLo = 60; sVm = 62; sHi = 94; sDm = 96
    sGF = 25
    sAF = 24
    vL = 1; vT = [2, 3, 4, 5, 6, 7]; vCtl = 8
    VB = 10
    TOP = 252 if stamps else 256

    def spin_begin(lab):
        a(f"s_mov_b32 s59, {SPIN}")
        a.label(L(lab))
    def spin_end(lab, sleep=2):
        a(f"s_sleep {sleep}")
        a("s_sub_u32 s59, s59, 1")
        a("s_cmp_lg_u32 s59, 0")
        a(f"s_cbranch_scc1 {L(lab)}")
    def put_flag(soff):
        a(f"v_mov_b32 v{vT[0]}, 0")
        a(f"v_mov_b32 v{vT[1]}, s{sNonce}")
        a("s_mov_b64 exec, 1")
        a(f"buffer_store_dword v{vT[1]}, v{vT[0]}, s[{sFl}:{sFl+3}], {soff} offen sc1")
        a("s_mov_b64 exec, -1")
    def lds_inc(off):
        a(f"v_mov_b32 v{vT[0]}, 1")
        a("s_mov_b64 exec, 1")
        a(f"ds_add_u32 v{vCtl}, v{vT[0]} offset:{off}")
        a("s_mov_b64 exec, -1")
    def lds_wait(lab, off, val):
        spin_begin(lab)
        a(f"ds_read_b32 v{vT[0]}, v{vCtl} offset:{off}")
        a("s_waitcnt lgkmcnt(0)")
        a(f"v_readfirstlane_b32 s{sT}, v{vT[0]}")
        a("s_nop 1")
        a(f"s_cmp_eq_u32 s{sT}, {val}")
        a(f"s_cbranch_scc1 {L(lab+'d')}")
        spin_end(lab, 1)
        a.label(L(lab + "d"))
    def sel_srd(d, cond_s, p0, p1, size):
        a(f"s_cmp_eq_u32 s{cond_s}, 0")
        a(f"s_cselect_b32 s{d}, s{p0}, s{p1}")
        a(f"s_cselect_b32 s{d+1}, s{p0+1}, s{p1+1}")
        a(f"s_and_b32 s{d+1}, s{d+1}, 0xffff")
        a(f"s_mov_b32 s{d+2}, {size}")
        a(f"s_mov_b32 s{d+3}, 0x20000")
    def after_kernarg():
        a("s_waitcnt lgkmcnt(0)")
        st.stamp("karg")
        a(f"s_load_dword s{sNonce}, s[{sWS}:{sWS+1}], {WL.EPOCH}")
        srd(a, sA, 4, 0, 2048 * 1280)
    def masks():
        a(f"s_mov_b32 s{sGF}, 0"); a(f"s_mov_b32 s{sAF}, 0")
        srd(a, sFl, sWS, WL.FLAG, WL.FLAG_SIZE)
        a(f"v_mov_b32 v{vCtl}, {LDS_CTL}")
        a(f"s_mov_b32 s{sLo}, -1"); a(f"s_mov_b32 s{sLo+1}, 0")
        a(f"s_mov_b32 s{sHi}, 0"); a(f"s_mov_b32 s{sHi+1}, -1")
        a(f"s_mov_b32 s{sVm}, 0xfffff"); a(f"s_mov_b32 s{sVm+1}, 0xfffff")
        a(f"s_mov_b32 s{sDm}, -1"); a(f"s_mov_b32 s{sDm+1}, 0xff")
    def nat_read_addrs(dst, stile, shift):
        a(f"v_and_b32 v{vT[0]}, 31, v{vL}")
        a(f"v_lshrrev_b32 v{vT[1]}, 5, v{vL}")
        a(f"v_bfe_u32 v{vT[2]}, v{vL}, 1, 3")
        a(f"v_xor_b32 v{vT[1]}, v{vT[1]}, v{vT[2]}")
        a(f"v_lshlrev_b32 v{vT[1]}, 4, v{vT[1]}")
        a(f"v_lshl_add_u32 v{vT[0]}, v{vT[0]}, 7, v{vT[1]}")
        a(f"s_lshl_b32 s{sT}, s{stile}, {shift}")
        a(f"v_add_u32 v{dst[0]}, s{sT}, v{vT[0]}")
        for ks in range(1, 4):
            a(f"v_xor_b32 v{dst[ks]}, {32*ks}, v{dst[0]}")

    a("s_cmp_ge_u32 s2, 256")
    a(f"s_cbranch_scc1 {L('end')}")
    st.start()
    if probe:
        a("s_memrealtime s[70:71]")
        a("s_load_dwordx2 s[64:65], s[0:1], 80")
        a("s_waitcnt lgkmcnt(0)")
        a("s_and_b32 s65, s65, 0xffff"); a("s_mov_b32 s66, 256"); a("s_mov_b32 s67, 0x20000")
        a("s_getreg_b32 s68, hwreg(HW_REG_XCC_ID)")
        a("s_xor_b32 s68, s68, s2"); a("s_and_b32 s68, s68, 7")
        a("s_cbranch_scc0 L_pok")
        a("v_mov_b32 v2, 1")
        a("s_mov_b64 exec, 1")
        a("buffer_store_dword v2, off, s[64:67], 0 sc1")
        a("s_mov_b64 exec, -1")
        a.label("L_pok")
    if rprobe:
        a("s_load_dwordx2 s[64:65], s[0:1], 80")
        a("s_waitcnt lgkmcnt(0)")
        a("s_and_b32 s65, s65, 0xffff"); a("s_mov_b32 s66, 256"); a("s_mov_b32 s67, 0x20000")
        a("s_getreg_b32 s68, hwreg(HW_REG_XCC_ID)")
        a("s_sub_u32 s68, s68, s2"); a("s_and_b32 s68, s68, 7")
        a("s_lshl_b32 s68, s68, 2")
        a("v_cmp_eq_u32 vcc, 0, v0")
        a("v_mov_b32 v2, 1")
        a("s_and_saveexec_b64 s[70:71], vcc")
        a("s_cbranch_execz L_rp0")
        a("buffer_store_dword v2, off, s[64:67], s68 sc1")
        a.label("L_rp0")
        a("s_mov_b64 exec, -1")
    a("s_load_dwordx16 s[4:19], s[0:1], 0")
    a("s_load_dwordx8 s[20:27], s[0:1], 64")
    a(f"v_lshrrev_b32 v{vT[0]}, 6, v0")
    a(f"v_and_b32 v{vL}, 63, v0")
    a(f"v_readfirstlane_b32 s{sW}, v{vT[0]}")
    a(f"s_and_b32 s{sXc}, s2, 7")
    a(f"s_lshr_b32 s{sJ}, s2, 3")
    a(f"s_xor_b32 s{sW}, s{sW}, 4")
    sRb = 98; sCb = 99; sWm = 100; sWn = 101; sWl = 3
    a(f"s_and_b32 s{sRb}, s2, 3")
    a(f"s_lshl_b32 s{sRb}, s{sRb}, 2")
    a(f"s_and_b32 s{sT}, s{sJ}, 3")
    a(f"s_add_u32 s{sRb}, s{sRb}, s{sT}")
    a(f"s_lshr_b32 s{sT}, s{sXc}, 2")
    a(f"s_lshr_b32 s{sCb}, s{sJ}, 2")
    a(f"s_cmp_eq_u32 s{sCb}, 7")
    a(f"s_cselect_b32 s{sT2}, 1, 3")
    a(f"s_lshl_b32 s{sT}, s{sT}, s{sT2}")
    a(f"s_cmp_eq_u32 s{sCb}, 7")
    a(f"s_cselect_b32 s{sT2}, s{sT}, 0")
    a(f"s_cselect_b32 s{sT}, 0, s{sT}")
    a(f"s_add_u32 s{sRb}, s{sRb}, s{sT2}")
    a(f"s_add_u32 s{sCb}, s{sCb}, s{sT}")
    a(f"s_and_b32 s{sWl}, s{sW}, 3")
    a(f"s_and_b32 s{sWm}, s{sW}, 1")
    a(f"s_lshr_b32 s{sWn}, s{sWl}, 1")
    a(f"s_cmp_lt_u32 s{sW}, 4")
    a(f"s_cbranch_scc1 {L('comp')}")

    V = Alloc(VB, TOP)
    vRX = [V.get() for _ in range(4)]
    vFW = [V.get() for _ in range(2)]; vFs = V.get(); vGs = V.get()
    V.get(2)
    XR = [[V.get(4, 4) for _ in range(4)] for _ in range(10)]
    FR = V.get(8, 4); FIn = V.get(8, 4)
    ZA = V.get(16, 4); ZB = V.get(16, 4)
    BF = [[V.get(4, 4) for _ in range(2)] for _ in range(3)]
    vDX = [BF[0][0] + i for i in range(4)]; vDW = [BF[0][1] + i for i in range(4)]
    sOX = sD; sOW = sD + 1; sM0 = sD + 2; sBeta = sD + 3; sSp = sE
    a(f"v_and_b32 v{vT[3]}, 7, v{vL}")
    a(f"v_lshrrev_b32 v{vT[4]}, 4, v{vL}")
    a(f"v_xor_b32 v{vT[3]}, v{vT[3]}, v{vT[4]}")
    a(f"v_lshlrev_b32 v{vT[3]}, 4, v{vT[3]}")
    a(f"v_xor_b32 v{vT[4]}, 64, v{vT[3]}")
    a(f"v_bfe_u32 v{vT[5]}, v{vL}, 3, 2")
    a(f"v_lshrrev_b32 v{vT[1]}, 5, v{vL}")
    a(f"v_lshl_add_u32 v{vT[5]}, v{vT[1]}, 3, v{vT[5]}")
    a(f"s_lshl_b32 s{sT}, s{sRb}, 1")
    a(f"s_add_u32 s{sT}, s{sT}, s{sWn}")
    a(f"s_lshl_b32 s{sT2}, s{sWm}, 5")
    a(f"s_add_u32 s{sCnt}, s{sT}, s{sT2}")
    a(f"v_lshl_add_u32 v{vT[1]}, v{vT[5]}, 6, s{sCnt}")
    a(f"v_mul_u32_u24 v{vT[1]}, 1280, v{vT[1]}")
    a(f"v_add_u32 v{vDX[0]}, v{vT[1]}, v{vT[3]}")
    a(f"v_add_u32 v{vDX[1]}, v{vT[1]}, v{vT[4]}")
    a(f"v_add_u32 v{vDX[1]}, {4*64*1280-1024}, v{vDX[1]}")
    a(f"v_add_u32 v{vDX[2]}, {16*64*1280-2048}, v{vDX[0]}")
    a(f"v_add_u32 v{vDX[3]}, {16*64*1280-2048}, v{vDX[1]}")
    a(f"v_lshrrev_b32 v{vT[0]}, 4, v{vL}")
    a(f"v_bfe_u32 v{vT[1]}, v{vL}, 2, 2")
    a(f"v_xor_b32 v{vT[1]}, v{vT[1]}, v{vT[0]}")
    a(f"v_and_b32 v{vT[2]}, 3, v{vL}")
    a(f"v_lshl_add_u32 v{vT[1]}, v{vT[1]}, 2, v{vT[2]}")
    a(f"v_lshlrev_b32 v{vT[1]}, 4, v{vT[1]}")
    a(f"s_lshl_b32 s{sT}, s{sWl}, 4")
    a(f"v_add_u32 v{vT[0]}, s{sT}, v{vT[0]}")
    a(f"v_mul_u32_u24 v{vT[0]}, 3840, v{vT[0]}")
    a(f"s_lshl_b32 s{sT}, s{sCb}, 8")
    a(f"v_add3_u32 v{vDW[0]}, v{vT[0]}, v{vT[1]}, s{sT}")
    for j in range(1, 4):
        a(f"v_add_u32 v{vDW[j]}, {j*(4*3840-1024)}, v{vDW[0]}")
    rw = 0
    for i, r in enumerate(rotx): rw |= r << (4 * i)
    a(f"s_lshl_b32 s{sT}, s{sXc}, 2")
    a(f"s_lshr_b32 s{sOX}, {hex(rw)}, s{sT}")
    a(f"s_and_b32 s{sOX}, s{sOX}, 15")
    if rin != (0, 0):
        a(f"s_and_b32 s{sT}, s{sJ}, 3")
        a(f"s_mul_i32 s{sT}, s{sT}, {rin[0]}")
        a(f"s_add_u32 s{sOX}, s{sOX}, s{sT}")
        a(f"s_lshr_b32 s{sT}, s{sJ}, 2")
        a(f"s_mul_i32 s{sT}, s{sT}, {rin[1]}")
        a(f"s_add_u32 s{sOX}, s{sOX}, s{sT}")
        a(f"s_mul_i32 s{sT}, s{sOX}, 205")
        a(f"s_lshr_b32 s{sT}, s{sT}, 11")
        a(f"s_mul_i32 s{sT}, s{sT}, 10")
        a(f"s_sub_u32 s{sOX}, s{sOX}, s{sT}")
    a(f"s_mul_i32 s{sOW}, s{sOX}, {64*3840}")
    a(f"s_lshl_b32 s{sOX}, s{sOX}, 7")
    a(f"s_lshl_b32 s{sM0}, s{sWl}, 12")
    after_kernarg()
    a(f"s_cmp_ge_u32 s{sJ}, 30")
    a(f"s_cbranch_scc1 {L('lgate')}")
    srd(a, sB, 16, 0, 640 * 3840)
    def issue(n):
        a(f"s_add_u32 m0, s{sM0}, {STAGE[n%4]}")
        a("s_nop 0")
        for j in range(4): a(f"buffer_load_dwordx4 v{vDX[j]}, s[{sA}:{sA+3}], s{sOX} offen offset:{1024*j} lds")
        a(f"s_add_u32 m0, s{sM0}, {STAGE[n%4]+0x4000}")
        a(f"s_add_u32 s{sOX}, s{sOX}, 128")
        for j in range(4): a(f"buffer_load_dwordx4 v{vDW[j]}, s[{sB}:{sB+3}], s{sOW} offen offset:{1024*j} lds")
        a(f"s_add_u32 s{sOW}, s{sOW}, {64*3840}")
        a(f"s_cmp_eq_u32 s{sOX}, 1280")
        a(f"s_cselect_b32 s{sOX}, 0, s{sOX}")
        a(f"s_cselect_b32 s{sOW}, 0, s{sOW}")
    issue(0); issue(1)
    masks()
    a(f"s_lshr_b32 s{sBeta}, s{sXc}, 2")
    a(f"s_mul_i32 s{sBeta}, s{sBeta}, 5")
    a(f"s_lshr_b32 s{sT}, s{sJ}, 2")
    a(f"s_add_u32 s{sBeta}, s{sBeta}, s{sT}")
    a(f"s_lshl_b32 s{sT}, s{sBeta}, 1")
    a(f"s_add_u32 s{sT}, s{sT}, s{sWm}")
    a(f"s_lshl_b32 s{sT}, s{sT}, 4")
    a(f"v_add_u32 v{vT[5]}, s{sT}, v{vT[5]}")
    a(f"v_mul_u32_u24 v{vT[5]}, 1280, v{vT[5]}")
    a(f"v_add_u32 v{vFW[0]}, v{vT[5]}, v{vT[3]}")
    a(f"v_add_u32 v{vFW[1]}, v{vT[5]}, v{vT[4]}")
    a(f"v_add_u32 v{vFW[1]}, {4*1280-1024}, v{vFW[1]}")
    a(f"v_add_u32 v{vFs}, {320*1280}, v{vT[3]}")
    a(f"v_and_b32 v{vT[0]}, 31, v{vL}")
    a(f"v_lshrrev_b32 v{vT[1]}, 5, v{vL}")
    a(f"v_lshlrev_b32 v{vGs}, 5, v{vT[0]}")
    a(f"v_lshl_add_u32 v{vGs}, v{vT[1]}, 4, v{vGs}")
    a(f"s_mul_i32 s{sT}, s{sCnt}, {WL.GA}")
    a(f"s_lshl_b32 s{sT2}, s{sBeta}, 11")
    a(f"s_add_u32 s{sT}, s{sT}, s{sT2}")
    a(f"v_add_u32 v{vGs}, s{sT}, v{vGs}")
    a(f"s_mul_i32 s{sCnt}, s{sCnt}, 48")
    a(f"s_lshl_b32 s{sT2}, s{sBeta}, 2")
    a(f"s_add_u32 s{sCnt}, s{sCnt}, s{sT2}")
    a(f"s_add_u32 s{sCnt}, s{sCnt}, {WL.FG}")
    nat_read_addrs(vRX, sWl, 12)
    for n in range(10):
        a(f"s_waitcnt vmcnt({8 if n < 9 else 0}) lgkmcnt(0)")
        a("s_barrier")
        for ks in range(4):
            a(f"ds_read_b128 {vr(XR[n][ks],4)}, v{vRX[ks]} offset:{STAGE[n%4] & 0xffff}")
        if n + 2 < 10: issue(n + 2)
        if n < 9 and (STAGE[n % 4] ^ STAGE[(n + 1) % 4]) & 0x10000:
            for ks in range(4): a(f"v_xor_b32 v{vRX[ks]}, 0x10000, v{vRX[ks]}")
    st.stamp("ldone")
    a(f"s_add_u32 s{sNonce}, s{sNonce}, 1")
    a(f"s_cmp_ge_u32 s{sJ}, 20")
    a(f"s_cbranch_scc1 {L('lfree')}")
    a("s_setprio 3")
    a(f"s_mov_b32 s{sGF}, s{sCnt}")
    sel_srd(sB, sWn, 10, 12, 640 * 1280)
    srd(a, sC, 10, 0, 640 * 1280)
    a(f"s_lshl_b32 s{sM0}, s{sWl}, 11")
    a(f"s_lshl_b32 s{sT}, s{sBeta}, 2")
    a(f"s_add_u32 s{sT}, s{sT}, s{sWl}")
    a(f"s_cmp_eq_u32 s{sT}, 2")
    a(f"s_cselect_b32 s{sSp}, 0xffffff00, -1")
    a(f"s_cselect_b64 vcc, -1, 0")
    a(f"s_mov_b32 s{sSp+1}, -1")
    WDB = lambda p: (0x10000 + 8192 * p) if p < 8 else 8192 * (p - 8)
    def wdma(p):
        a(f"s_add_u32 m0, s{sM0}, {WDB(p)}")
        a(f"s_mov_b64 exec, s[{sSp}:{sSp+1}]")
        a(f"buffer_load_dwordx4 v{vFW[0]}, s[{sB}:{sB+3}], s{sOX} offen lds")
        a(f"s_cbranch_vccz {L('fs%d' % p)}")
        a("s_mov_b64 exec, 0xff")
        a(f"buffer_load_dwordx4 v{vFs}, s[{sC}:{sC+3}], s{sOX} offen lds")
        a.label(L("fs%d" % p))
        a("s_mov_b64 exec, -1")
        a(f"buffer_load_dwordx4 v{vFW[1]}, s[{sB}:{sB+3}], s{sOX} offen offset:1024 lds")
        a(f"s_add_u32 s{sOX}, s{sOX}, 128")
        a(f"s_cmp_eq_u32 s{sOX}, 1280")
        a(f"s_cselect_b32 s{sOX}, 0, s{sOX}")
    def twl():
        srd(a, sB, 6, 0, 2048 * 4096)
        srd(a, sC, 8, 0, 2048 * 4096)
        a(f"buffer_load_dwordx4 {vr(FR,4)}, v{vT[2]}, s[{sB}:{sB+3}], 0 offen")
        a(f"buffer_load_dwordx4 {vr(FR+4,4)}, v{vT[2]}, s[{sB}:{sB+3}], 0 offen offset:32")
        a(f"buffer_load_dwordx4 {vr(FIn,4)}, v{vT[2]}, s[{sC}:{sC+3}], 0 offen")
        a(f"buffer_load_dwordx4 {vr(FIn+4,4)}, v{vT[2]}, s[{sC}:{sC+3}], 0 offen offset:32")
    for p in range(fsplit): wdma(p)
    a(f"v_and_b32 v{vT[2]}, 31, v{vL}")
    a(f"v_lshrrev_b32 v{vT[1]}, 5, v{vL}")
    a(f"v_lshlrev_b32 v{vT[2]}, 18, v{vT[2]}")
    a(f"v_lshl_add_u32 v{vT[2]}, v{vT[1]}, 4, v{vT[2]}")
    a(f"s_lshl_b32 s{sT}, s{sWl}, 12")
    a(f"s_sub_u32 s{sT}, 0x10000, s{sT}")
    for ks in range(4): a(f"v_add_u32 v{vRX[ks]}, s{sT}, v{vRX[ks]}")
    assert not STAGE[9 % 4] & 0x10000
    a("s_waitcnt vmcnt(0)")
    lds_inc(12)
    lds_wait("f1", 12, 4)
    st.stamp("fb0")
    if stamps: a("s_waitcnt lgkmcnt(0)")
    def rdB(s):
        p, ks = divmod(s, 4)
        if s == 32:
            for k in range(4): a(f"v_xor_b32 v{vRX[k]}, 0x10000, v{vRX[k]}")
        for part in range(2):
            a(f"ds_read_b128 {vr(BF[s%3][part],4)}, v{vRX[ks]} offset:{(WDB(p) & 0xffff) + 4096*part}")
    rdB(0); rdB(1)
    H = 4 * fsplit
    for s in range(40):
        if s == fstart and fwait: lds_wait("f0", 20, 4)
        if fstart <= s < fstart + 10 - fsplit: wdma(fsplit + s - fstart)
        if s == fstart + 10 - fsplit: twl()
        if s == H - 2:
            a("s_waitcnt vmcnt(4)")
            lds_inc(16)
            lds_wait("f2", 16, 4)
            st.stamp("fb1")
            if stamps: a("s_waitcnt lgkmcnt(0)")
        if s + 2 < 40: rdB(s + 2)
        a(f"s_waitcnt lgkmcnt({4 if s < 38 else 2*(39-s)})")
        for part, Z in enumerate((ZA, ZB)):
            c = "0" if s == 0 else vr(Z, 16)
            a(f"v_mfma_f32_32x32x16_bf16 {vr(Z,16)}, {vr(XR[s//4][s%4],4)}, {vr(BF[s%3][part],4)}, {c}")
    assert fstart + 10 - fsplit < H - 2
    lds_inc(8)
    st.stamp("fend")
    srd(a, sC, sWS, WL.G, WL.G_SIZE)
    FRn = XR[0][0]; G0 = XR[1][0]; G1 = XR[2][0]; G2 = XR[3][0]; G3 = XR[4][0]; ZS = XR[5][0]
    a("s_waitcnt vmcnt(0)")
    for i in range(8):
        a(f"v_xor_b32 v{FRn+i}, 0x80008000, v{FR+i}")
        a(f"v_xor_b32 v{FIn+i}, 0x80008000, v{FIn+i}")
    for Z in (ZA, ZB):
        for i in range(8): a(f"v_cvt_pk_bf16_f32 v{Z+i}, v{Z+2*i}, v{Z+2*i+1}")
    m = lambda d, A, B, c: a(f"v_mfma_f32_32x32x16_bf16 {vr(d,16)}, {vr(A,4)}, {vr(B,4)}, {c}")
    GP = TOP - 24
    a(f"s_mov_b32 s{sT2}, {64*WL.GA}")
    a(f"s_cmp_lg_u32 s{sBeta}, 0")
    a(f"s_cbranch_scc1 {L('fn')}")
    m(G2, ZB, FR, "0"); m(G2, ZB+4, FR+4, vr(G2,16))
    m(G3, ZB, FIn, "0"); m(G3, ZB+4, FIn+4, vr(G3,16))
    a("s_mov_b32 exec_lo, 1"); a("s_mov_b32 exec_hi, 1")
    for i in range(8): a(f"v_mov_b32 v{ZB+i}, 0")
    a(f"s_mov_b64 exec, s[{sLo}:{sLo+1}]")
    a("s_nop 3")
    for i in range(4): a(f"v_mov_b32 v{GP+16+i}, 0"); a(f"v_mov_b32 v{GP+20+i}, 0")
    a(f"v_cvt_pk_bf16_f32 v{GP+16}, v{G2}, 0")
    a(f"v_cvt_pk_bf16_f32 v{GP+20}, v{G3}, 0")
    a(f"v_add_u32 v{vFs}, {20*1024}, v{vGs}")
    a(f"buffer_store_dwordx4 {vr(GP+16,4)}, v{vFs}, s[{sC}:{sC+3}], 0 offen sc1")
    a(f"buffer_store_dwordx4 {vr(GP+20,4)}, v{vFs}, s[{sC}:{sC+3}], s{sT2} offen sc1")
    a("s_mov_b64 exec, -1")
    a.label(L("fn"))
    m(G0, ZA, FR, "0"); m(G0, ZA+4, FR+4, vr(G0,16)); m(G0, ZB, FIn, vr(G0,16)); m(G0, ZB+4, FIn+4, vr(G0,16))
    m(G1, ZB, FRn, "0"); m(G1, ZB+4, FRn+4, vr(G1,16)); m(G1, ZA, FIn, vr(G1,16)); m(G1, ZA+4, FIn+4, vr(G1,16))
    a("s_nop 7")
    for p, g in enumerate((G0, G1)):
        if p == 1: a("s_nop 1")
        for i in range(8): a(f"v_cvt_pk_bf16_f32 v{GP+8*p+i}, v{g+2*i}, v{g+2*i+1}")
        for j in range(2):
            so = "0" if p == 0 else f"s{sT2}"
            a(f"buffer_store_dwordx4 {vr(GP+8*p+4*j,4)}, v{vGs}, s[{sC}:{sC+3}], {so} offen offset:{1024*j} sc1")
    assert ZB + 8 <= GP
    st.stamp("gst")
    a(f"s_branch {L('att')}")
    a.label(L("lgate"))
    if gtouch:
        sel_srd(sB, sWm, 6, 8, 2048 * 4096)
        a(f"v_and_b32 v{vT[0]}, 31, v{vL}")
        a(f"v_lshlrev_b32 v{vT[0]}, 18, v{vT[0]}")
        a(f"buffer_load_dword v{vT[1]}, v{vT[0]}, s[{sB}:{sB+3}], 0 offen")
        sel_srd(sB, sWm, 10, 12, 640 * 1280)
        a(f"s_and_b32 s{sT}, s{sJ}, 1")
        a(f"s_lshl_b32 s{sT}, s{sT}, 1")
        a(f"s_add_u32 s{sT}, s{sT}, s{sWn}")
        a(f"s_mul_i32 s{sT}, s{sT}, {400*128}")
        a(f"s_lshr_b32 s{sT2}, s{sXc}, 2")
        a(f"s_mul_i32 s{sT2}, s{sT2}, {160*1280}")
        a(f"s_add_u32 s{sT}, s{sT}, s{sT2}")
        a(f"v_min_u32 v{vT[0]}, 49, v{vL}")
        a(f"v_lshlrev_b32 v{vT[0]}, 7, v{vT[0]}")
        for i in range(8):
            a(f"buffer_load_dword v{vT[1]}, v{vT[0]}, s[{sB}:{sB+3}], s{sT} offen")
            a(f"s_add_u32 s{sT}, s{sT}, {50*128}")
    masks()
    a("s_waitcnt lgkmcnt(0)")
    a("s_barrier")
    a(f"s_add_u32 s{sNonce}, s{sNonce}, 1")
    a.label(L("lfree"))
    a("s_waitcnt vmcnt(0) lgkmcnt(0)")
    lds_inc(8)
    a(f"s_branch {L('att')}")

    a.label(L("comp"))
    V = Alloc(VB, TOP)
    vRX = [V.get() for _ in range(4)]; vRW = [V.get() for _ in range(2)]
    vE = [V.get() for _ in range(8)]
    vTch = V.get(2)
    XF = [[V.get(4, 4) for _ in range(2)] for _ in range(2)]
    WF = [[V.get(4, 4) for _ in range(2)] for _ in range(2)]
    ACC = [[V.get(16, 4) for _ in range(2)] for _ in range(2)]
    PK = TOP - 32
    sMask = sD; sScale = sD + 2
    a("s_setprio 3")
    nat_read_addrs(vRX, sWm, 13)
    for x in range(2):
        for w in range(2):
            for i in range(16): a(f"v_mov_b32 v{ACC[x][w]+i}, 0")
    after_kernarg()
    masks()
    a(f"s_cmp_lg_u32 s{sW}, 0")
    a(f"s_cbranch_scc1 {L('c1')}")
    a(f"ds_write_b128 v{vCtl}, {vr(ACC[0][0],4)}")
    a(f"ds_write_b128 v{vCtl}, {vr(ACC[0][0],4)} offset:16")
    a.label(L("c1"))
    def mainloop(mode):
        def rdX(s, ks, x): a(f"ds_read_b128 {vr(XF[s][x],4)}, v{vRX[ks]} offset:{4096*x}")
        def rdW(s, ks, w):
            a(f"ds_read_b64_tr_b16 {vr(WF[s][w],2)}, v{vRW[w]} offset:{4096*ks}")
            a(f"ds_read_b64_tr_b16 {vr(WF[s][w]+2,2)}, v{vRW[w]} offset:{4096*ks+1024}")
        def mf(s, x, w):
            A, B = (WF[s][w], XF[s][x]) if mode == 'qk' else (XF[s][x], WF[s][w])
            a(f"v_mfma_f32_32x32x16_bf16 {vr(ACC[x][w],16)}, {vr(A,4)}, {vr(B,4)}, {vr(ACC[x][w],16)}")
        a("s_waitcnt lgkmcnt(0)")
        a("s_barrier")
        st.stamp("b0")
        if stamps: a("s_waitcnt lgkmcnt(0)")
        rdX(0, 0, 0); rdW(0, 0, 0); rdX(0, 0, 1); rdW(0, 0, 1)
        a(f"s_mov_b32 s{sCnt}, 0")
        a.raw(".p2align 5")
        a.label(L(mode + "loop"))
        for ks in range(4):
            s = ks % 2; n = 1 - s; nk = (ks + 1) % 4
            if ks < 3:
                a("s_waitcnt lgkmcnt(3)")
                mf(s, 0, 0)
                if ks == 0 and touch:
                    a(f"s_cmp_lg_u32 s{sCnt}, {tpos}")
                    a(f"s_cbranch_scc1 {L(mode+'nt')}")
                    a(f"buffer_load_dword v{vTch}, v{vTch+1}, s[{sE}:{sE+3}], 0 offen")
                    a.label(L(mode + "nt"))
            else:
                a("s_waitcnt lgkmcnt(0)")
                mf(s, 0, 0)
                a(f"s_add_u32 s{sCnt}, s{sCnt}, 1")
                a(f"s_cmp_eq_u32 s{sCnt}, 10")
                a(f"s_cbranch_scc1 {L(mode+'last')}")
                a("s_barrier")
                for r in vRX + vRW:
                    a(f"v_xor_b32 v{r}, s{sMask}, v{r}")
            rdX(n, nk, 0); rdW(n, nk, 0)
            if ks < 3: a("s_waitcnt lgkmcnt(5)")
            mf(s, 1, 0)
            rdX(n, nk, 1)
            if ks < 3: a("s_waitcnt lgkmcnt(4)")
            mf(s, 0, 1)
            rdW(n, nk, 1)
            if ks == 3: a(f"s_xor_b32 s{sMask}, s{sMask}, 0x18000")
            mf(s, 1, 1)
        a(f"s_branch {L(mode+'loop')}")
        a.label(L(mode + "last"))
        mf(1, 0, 1); mf(1, 1, 0); mf(1, 1, 1)
        lds_inc(8)
        st.stamp("aend")
        a("s_nop 1")
    a(f"s_mov_b32 s{sMask}, 0x8000")
    a(f"s_cmp_ge_u32 s{sJ}, 30")
    a(f"s_cbranch_scc1 {L('gate')}")
    a(f"s_lshl_b32 s{sAF}, s{sCb}, 4")
    a(f"s_add_u32 s{sAF}, s{sAF}, s{sRb}")
    if touch:
        sel_srd(sE, sWm, 10, 12, 640 * 1280)
        a(f"s_lshl_b32 s{sT}, s{sJ}, 1")
        a(f"s_add_u32 s{sT}, s{sT}, s{sWn}")
        a(f"s_mul_i32 s{sT}, s{sT}, {27*128}")
        a(f"s_lshr_b32 s{sT2}, s{sXc}, 2")
        a(f"s_mul_i32 s{sT2}, s{sT2}, {160*1280}")
        a(f"s_add_u32 s{sT}, s{sT}, s{sT2}")
        a(f"v_min_u32 v{vTch+1}, 26, v{vL}")
        a(f"v_lshl_add_u32 v{vTch+1}, v{vTch+1}, 7, s{sT}")
    a(f"v_bfe_u32 v{vT[0]}, v{vL}, 2, 2")
    a(f"v_lshrrev_b32 v{vT[1]}, 5, v{vL}")
    a(f"v_lshl_add_u32 v{vT[1]}, v{vT[1]}, 3, v{vT[0]}")
    a(f"v_lshlrev_b32 v{vT[1]}, 8, v{vT[1]}")
    a(f"s_lshl_b32 s{sT}, s{sWn}, 1")
    a(f"v_xor_b32 v{vT[0]}, s{sT}, v{vT[0]}")
    a(f"v_lshl_add_u32 v{vT[1]}, v{vT[0]}, 6, v{vT[1]}")
    a(f"v_bfe_u32 v{vT[0]}, v{vL}, 4, 1")
    a(f"v_lshl_add_u32 v{vT[1]}, v{vT[0]}, 5, v{vT[1]}")
    a(f"v_add_u32 v{vT[1]}, 0x4000, v{vT[1]}")
    a(f"v_and_b32 v{vT[4]}, 31, v{vL}")
    a(f"v_lshrrev_b32 v{vT[5]}, 5, v{vL}")
    a(f"s_cmp_ge_u32 s{sCb}, 10")
    a(f"s_cbranch_scc1 {L('v')}")
    a(f"v_and_b32 v{vT[0]}, 1, v{vL}")
    a(f"v_lshl_add_u32 v{vT[1]}, v{vT[0]}, 4, v{vT[1]}")
    a(f"v_bfe_u32 v{vT[0]}, v{vL}, 1, 1")
    a(f"v_lshl_add_u32 v{vRW[0]}, v{vT[0]}, 3, v{vT[1]}")
    a(f"v_xor_b32 v{vRW[1]}, 64, v{vRW[0]}")
    a(f"s_cmp_ge_u32 s{sCb}, 5")
    a(f"s_cselect_b32 s{sScale}, 1.0, {hex(QSCALE)}")
    a(f"s_mov_b32 s{sScale+1}, s{sScale}")
    srd(a, sC, sWS, WL.QF, 160 * WL.PL)
    a(f"s_lshl_b32 s{sT}, s{sCb}, 1")
    a(f"s_add_u32 s{sT}, s{sT}, s{sWn}")
    a(f"s_lshl_b32 s{sT}, s{sT}, 18")
    a(f"s_lshl_b32 s{sT2}, s{sRb}, 1")
    a(f"s_add_u32 s{sT2}, s{sT2}, s{sWm}")
    a(f"s_lshl_b32 s{sT2}, s{sT2}, 10")
    a(f"s_add_u32 s{sT}, s{sT}, s{sT2}")
    a(f"v_lshlrev_b32 v{vE[0]}, 15, v{vT[5]}")
    a(f"v_lshl_add_u32 v{vE[0]}, v{vT[4]}, 4, v{vE[0]}")
    a(f"v_add_u32 v{vE[0]}, s{sT}, v{vE[0]}")
    for e in range(1, 4): a(f"v_add_u32 v{vE[e]}, {e*2*WL.PL}, v{vE[0]}")
    mainloop('qk')
    for x in range(2):
        for w in range(2):
            acc = ACC[x][w]; pk = PK + 8 * (2 * x + w)
            for i in range(0, 16, 2): a(f"v_pk_mul_f32 {vr(acc+i,2)}, {vr(acc+i,2)}, s[{sScale}:{sScale+1}]")
            for i in range(8): a(f"v_cvt_pk_bf16_f32 v{pk+i}, v{acc+2*i}, v{acc+2*i+1}")
            for j in range(2):
                a(f"buffer_store_dwordx4 {vr(pk+4*j,4)}, v{vE[2*w+j]}, s[{sC}:{sC+3}], 0 offen offset:{512*x} sc1")
    a(f"s_branch {L('adone')}")
    a.label(L("v"))
    a(f"v_and_b32 v{vT[0]}, 3, v{vL}")
    a(f"v_lshl_add_u32 v{vRW[0]}, v{vT[0]}, 3, v{vT[1]}")
    a(f"v_xor_b32 v{vRW[1]}, 64, v{vRW[0]}")
    srd(a, sC, sWS, WL.VF, 64 * WL.VT)
    a(f"s_lshl_b32 s{sT}, s{sRb}, 1")
    a(f"s_add_u32 s{sT}, s{sT}, s{sWm}")
    a(f"s_mul_i32 s{sT}, s{sT}, {2*WL.VT}")
    a(f"s_sub_u32 s{sT2}, s{sCb}, 10")
    a(f"s_lshl_b32 s{sT2}, s{sT2}, 1")
    a(f"s_add_u32 s{sT2}, s{sT2}, s{sWn}")
    a(f"s_lshl_b32 s{sT2}, s{sT2}, 10")
    a(f"s_add_u32 s{sT}, s{sT}, s{sT2}")
    a(f"v_mul_u32_u24 v{vE[0]}, 10240, v{vT[5]}")
    a(f"v_lshl_add_u32 v{vE[0]}, v{vT[4]}, 4, v{vE[0]}")
    a(f"v_add_u32 v{vE[0]}, s{sT}, v{vE[0]}")
    for e in range(1, 4): a(f"v_add_u32 v{vE[e]}, {e*20480}, v{vE[0]}")
    mainloop('v')
    for x in range(2):
        for w in range(2):
            acc = ACC[x][w]; pk = PK + 8 * (2 * x + w)
            for i in range(8): a(f"v_cvt_pk_bf16_f32 v{pk+i}, v{acc+2*i}, v{acc+2*i+1}")
            for j in range(2):
                a(f"buffer_store_dwordx4 {vr(pk+4*j,4)}, v{vE[2*x+j]}, s[{sC}:{sC+3}], 0 offen offset:{512*w} sc1")
    a(f"s_branch {L('adone')}")
    a.label(L("gate"))
    GW = 40; GX = 60
    assert vTch + 2 <= GW and GX + 160 <= PK
    srd(a, sB, 20, 0, 1280)
    srd(a, sC, sWS, WL.GATE, 2048 * 8)
    a(f"v_and_b32 v{vT[0]}, 15, v{vL}")
    a(f"v_lshlrev_b32 v{vT[0]}, 4, v{vT[0]}")
    a(f"s_and_b32 s{sAF}, s{sXc}, 3")
    a(f"s_lshl_b32 s{sAF}, s{sAF}, 2")
    a(f"s_lshr_b32 s{sT}, s{sXc}, 2")
    a(f"s_lshl_b32 s{sT}, s{sT}, 1")
    a(f"s_add_u32 s{sAF}, s{sAF}, s{sT}")
    a(f"s_add_u32 s{sAF}, s{sAF}, s{sJ}")
    a(f"s_sub_u32 s{sAF}, s{sAF}, 30")
    a(f"s_lshl_b32 s{sT}, s{sAF}, 1")
    a(f"s_add_u32 s{sT}, s{sT}, s{sWn}")
    a(f"s_add_u32 s{sAF}, s{sAF}, 240")
    a(f"s_lshl_b32 s{sT2}, s{sWm}, 5")
    a(f"v_lshrrev_b32 v{vT[5]}, 4, v{vL}")
    a(f"s_add_u32 s{sCnt}, s{sT}, s{sT2}")
    a(f"v_lshl_add_u32 v{vT[2]}, v{vT[5]}, 6, s{sCnt}")
    a(f"v_mul_u32_u24 v{vT[2]}, 1280, v{vT[2]}")
    a(f"v_add_u32 v{vT[2]}, v{vT[2]}, v{vT[0]}")
    a(f"s_lshl_b32 s{sT}, s{sT}, 6")
    a(f"s_add_u32 s{sT}, s{sT}, s{sT2}")
    a(f"v_add_u32 v{vT[5]}, s{sT}, v{vT[5]}")
    a(f"v_lshlrev_b32 v{vT[5]}, 3, v{vT[5]}")
    a(f"v_cmp_eq_u32 vcc, 0, v{vT[0]}")
    a("s_waitcnt lgkmcnt(0)")
    a("s_barrier")
    for p in range(5):
        a(f"buffer_load_dwordx4 {vr(GW+4*p,4)}, v{vT[0]}, s[{sB}:{sB+3}], 0 offen offset:{256*p}")
    for r in range(8):
        b4 = (r & 4) * 4 + (r & 1) * 8 + (r & 2) * 2
        a(f"s_mov_b32 s{sT}, {b4*64*1280}")
        for p in range(5):
            a(f"buffer_load_dwordx4 {vr(GX+20*r+4*p,4)}, v{vT[2]}, s[{sA}:{sA+3}], s{sT} offen offset:{256*p}")
        a(f"v_mov_b32 v{vE[r]}, 0")
    for r in range(8):
        a(f"s_waitcnt vmcnt({35-5*r})")
        for i in range(20):
            a(f"v_dot2c_f32_bf16 v{vE[r]}, v{GX+20*r+i}, v{GW+i}")
    a("s_nop 3")
    for sh in (8, 4, 2, 1):
        for r in range(8):
            a(f"v_add_f32_dpp v{vE[r]}, v{vE[r]}, v{vE[r]} row_ror:{sh} row_mask:0xf bank_mask:0xf")
    GO = PK
    for r in range(8): a(f"v_cvt_pk_bf16_f32 v{vE[r]}, 0, v{vE[r]}")
    for r in range(8): a(f"v_mul_f32 v{vE[r]}, 0xbfb8aa3b, v{vE[r]}")
    for r in range(8): a(f"v_exp_f32 v{vE[r]}, v{vE[r]}")
    for r in range(8): a(f"v_add_f32 v{vE[r]}, 1.0, v{vE[r]}")
    for r in range(8): a(f"v_rcp_f32 v{vE[r]}, v{vE[r]}")
    for r in range(8): a(f"v_cvt_pk_bf16_f32 v{GO+2*r}, 0, v{vE[r]}")
    for r in range(8): a(f"v_sub_f32 v{GO+2*r+1}, 1.0, v{GO+2*r}")
    for r in range(8): a(f"v_cvt_pk_bf16_f32 v{GO+2*r+1}, 0, v{GO+2*r+1}")
    a("s_mov_b64 exec, vcc")
    for r in range(8):
        a(f"buffer_store_dwordx2 {vr(GO+2*r,2)}, v{vT[5]}, s[{sC}:{sC+3}], 0 offen offset:{32*r} sc1")
    a("s_mov_b64 exec, -1")
    lds_inc(8)
    a.label(L("adone"))
    if fwait: lds_inc(20)
    st.stamp("ast")
    a(f"s_add_u32 s{sNonce}, s{sNonce}, 1")
    a(f"s_lshl_b32 s{sAF}, s{sAF}, 7")
    a(f"s_add_u32 s{sAF}, s{sAF}, {WL.FA}")

    a.label(L("att"))
    V = Alloc(VB, TOP)
    vKm = V.get(); vKr = V.get(); vV0 = V.get(); vV1 = V.get(); vM = V.get(); vWo = V.get()
    Qm = [V.get(4, 4) for _ in range(2)]
    Qr = [V.get(2) for _ in range(2)]
    Km = [V.get(4, 4) for _ in range(4)]
    Kr = [V.get(2) for _ in range(4)]
    Vb = [[V.get(4, 4) for _ in range(2)] for _ in range(4)]
    P = V.get(8, 4)
    S = [V.get(16, 4) for _ in range(2)]
    O = [V.get(16, 4) for _ in range(2)]
    K0m = V.get(4, 4); K0r = V.get(2)
    vG = V.get(2); vO = V.get(); vSt = V.get(); vGd = V.get(); vWs = V.get(); vX0 = V.get(); vX1 = V.get(); vGt = V.get(); vDum = V.get()
    WsF = [V.get(4, 4) for _ in range(2)]
    att_keep = V.p
    GFl = V.get(11, 4)
    att_hi = V.p
    assert att_hi <= TOP - 32
    sK = sA; sV = sB; sQ = sC; sWo = sD
    sHead = 98; sQb = 99; sKh = 100; sOK = 101; sOV = 14; sOWo = 15; sM0 = 3; sPar = sE; sHp = sE + 1; sStep = sE + 2; sU0 = sE + 3
    sCc = sHead; sEb8 = sQb; sMs = sPar
    a(f"s_and_b32 s{sT}, s{sJ}, 3")
    a(f"s_lshl_b32 s{sHead}, s{sXc}, 2")
    a(f"s_add_u32 s{sHead}, s{sHead}, s{sT}")
    a(f"s_lshr_b32 s{sQb}, s{sJ}, 2")
    a(f"s_lshr_b32 s{sKh}, s{sW}, 2")
    a(f"s_and_b32 s{sPar}, s{sHead}, 1")
    a(f"s_lshr_b32 s{sHp}, s{sHead}, 1")
    a(f"s_mul_i32 s{sHp}, s{sHp}, {5*WL.PL}")
    a(f"v_and_b32 v{vT[0]}, 31, v{vL}")
    a(f"v_lshrrev_b32 v{vT[1]}, 5, v{vL}")
    a(f"s_mul_i32 s{sT}, s{sPar}, {3*WL.PL}")
    a(f"v_lshlrev_b32 v{vKm}, 15, v{vT[1]}")
    a(f"v_lshl_add_u32 v{vKm}, v{vT[0]}, 4, v{vKm}")
    a(f"v_add_u32 v{vKm}, s{sT}, v{vKm}")
    a(f"s_lshl_b32 s{sT}, s{sPar}, 3")
    a(f"s_add_u32 s{sT}, s{sT}, {2*WL.PL}")
    a(f"v_lshl_add_u32 v{vKr}, v{vT[0]}, 4, s{sT}")
    a(f"v_and_b32 v{vT[2]}, 0x13, v{vT[0]}")
    a(f"v_bfe_u32 v{vT[3]}, v{vT[0]}, 2, 1")
    a(f"v_lshl_add_u32 v{vT[2]}, v{vT[3]}, 3, v{vT[2]}")
    a(f"v_bfe_u32 v{vT[3]}, v{vT[0]}, 3, 1")
    a(f"v_lshl_add_u32 v{vT[2]}, v{vT[3]}, 2, v{vT[2]}")
    a(f"v_and_b32 v{vT[5]}, 15, v{vT[2]}")
    a(f"s_lshl_b32 s{sT}, s{sPar}, 2")
    a(f"v_add_u32 v{vT[2]}, s{sT}, v{vT[2]}")
    a(f"v_subrev_u32 v{vT[3]}, 20, v{vT[2]}")
    a(f"v_min_u32 v{vT[2]}, v{vT[2]}, v{vT[3]}")
    a(f"s_mul_i32 s{sT}, s{sHead}, 320")
    a(f"v_mul_u32_u24 v{vV0}, 10240, v{vT[1]}")
    a(f"v_lshl_add_u32 v{vV0}, v{vT[2]}, 4, v{vV0}")
    a(f"v_add_u32 v{vV0}, s{sT}, v{vV0}")
    a(f"v_add_u32 v{vV1}, 20480, v{vV0}")
    a(f"s_add_u32 s{sT}, s{sHp}, {WL.KF}")
    srd(a, sK, sWS, f"s{sT}", 5 * WL.PL)
    srd(a, sV, sWS, WL.VF, 64 * WL.VT)
    a(f"s_add_u32 s{sT}, s{sHp}, {WL.QF}")
    srd(a, sQ, sWS, f"s{sT}", 5 * WL.PL)
    a(f"s_lshl_b32 s{sOK}, s{sKh}, 14")
    a(f"s_mul_i32 s{sOV}, s{sKh}, {32*WL.VT}")
    a(f"s_lshl_b32 s{sU0}, s{sQb}, 2")
    a(f"s_and_b32 s{sT}, s{sW}, 3")
    a(f"s_add_u32 s{sU0}, s{sU0}, s{sT}")
    a(f"s_lshl_b32 s{sU0}, s{sU0}, 10")
    for r in [K0r] + Kr:
        a(f"v_mov_b32 v{r}, 0x3f803f80")
        a(f"v_mov_b32 v{r+1}, 0x3f80")
    for q in range(2):
        a(f"v_mov_b32 v{Qr[q]}, 0"); a(f"v_mov_b32 v{Qr[q]+1}, 0")
    a(f"v_cmp_eq_u32 vcc, 20, v{vT[0]}")
    a(f"v_mov_b32 v{vT[2]}, 0x3f803f80")
    a(f"v_mov_b32 v{vT[3]}, 0")
    a(f"v_cndmask_b32 v{vT[2]}, v{vT[3]}, v{vT[2]}, vcc")
    for b in range(4):
        for j in range(2):
            for i in range(4): a(f"v_mov_b32 v{Vb[b][j]+i}, v{vT[2]}")
    for q in range(2):
        for i in range(16): a(f"v_mov_b32 v{O[q]+i}, 0")
    for i in range(8): a(f"v_mov_b32 v{P+i}, 0")
    a(f"v_and_b32 v{vT[0]}, 15, v{vL}")
    a(f"v_lshrrev_b32 v{vT[1]}, 4, v{vL}")
    a(f"s_and_b32 s{sT}, s{sW}, 3")
    a(f"s_lshl_b32 s{sT}, s{sT}, 4")
    a(f"s_lshl_b32 s{sT2}, s{sCc}, 6")
    a(f"s_add_u32 s{sT}, s{sT}, s{sT2}")
    a(f"v_add_u32 v{vT[2]}, s{sT}, v{vT[0]}")
    a(f"s_and_b32 s{sT}, s{sW}, 1")
    a(f"s_lshl_b32 s{sT}, s{sT}, 10")
    a(f"s_and_b32 s{sT2}, s{sW}, 2")
    a(f"s_lshl_b32 s{sT2}, s{sT2}, 4")
    a(f"s_add_u32 s{sT}, s{sT}, s{sT2}")
    a(f"s_add_u32 s{sT}, s{sT}, s{sCc}")
    a(f"v_lshl_add_u32 v{vT[0]}, v{vT[5]}, 6, s{sT}")
    a(f"v_lshlrev_b32 v{vWs}, 12, v{vT[0]}")
    a(f"v_lshl_add_u32 v{vWs}, v{vT[1]}, 4, v{vWs}")
    a(f"v_lshlrev_b32 v{vGt}, 3, v{vT[2]}")
    a(f"v_lshlrev_b32 v{vO}, 4, v{vT[2]}")
    a(f"v_lshl_add_u32 v{vO}, v{vT[1]}, 15, v{vO}")
    a(f"v_mul_u32_u24 v{vSt}, 1280, v{vT[0]}")
    a(f"v_lshl_add_u32 v{vSt}, v{vT[1]}, 3, v{vSt}")
    a(f"s_mul_i32 s{sT}, s{sEb8}, 160")
    a(f"v_add_u32 v{vSt}, s{sT}, v{vSt}")
    a(f"v_mul_u32_u24 v{vT[2]}, 205, v{vL}")
    a(f"v_lshrrev_b32 v{vT[2]}, 11, v{vT[2]}")
    a(f"v_mul_u32_u24 v{vWo}, {1280-160}, v{vT[2]}")
    a(f"v_lshl_add_u32 v{vWo}, v{vL}, 4, v{vWo}")
    a(f"v_add_u32 v{vWo}, s{sT}, v{vWo}")
    a(f"v_mul_u32_u24 v{vT[2]}, 187, v{vL}")
    a(f"v_lshrrev_b32 v{vT[2]}, 11, v{vT[2]}")
    a(f"v_mul_u32_u24 v{vT[3]}, 11, v{vT[2]}")
    a(f"v_sub_u32 v{vT[3]}, v{vL}, v{vT[3]}")
    a(f"v_mul_u32_u24 v{vGd}, {WL.GA}, v{vT[2]}")
    a(f"v_lshrrev_b32 v{vT[2]}, 1, v{vT[3]}")
    a(f"v_lshl_add_u32 v{vGd}, v{vT[2]}, 10, v{vGd}")
    a(f"v_and_b32 v{vT[3]}, 1, v{vT[3]}")
    a(f"v_lshl_add_u32 v{vGd}, v{vT[3]}, 4, v{vGd}")
    a(f"s_sub_u32 s{sT}, 7, s{sEb8}")
    a(f"s_sub_u32 s{sT2}, 32, s{sCc}")
    a(f"s_and_b32 s{sT2}, s{sT2}, 31")
    a(f"s_cmp_lt_u32 s{sEb8}, 4")
    a(f"s_cselect_b32 s{sT}, s{sEb8}, s{sT}")
    a(f"s_cselect_b32 s{sT2}, s{sCc}, s{sT2}")
    a(f"s_mul_i32 s{sT}, s{sT}, 5120")
    a(f"s_lshl_b32 s{sT2}, s{sT2}, 5")
    a(f"s_add_u32 s{sT}, s{sT}, s{sT2}")
    a(f"v_add_u32 v{vGd}, s{sT}, v{vGd}")
    a(f"s_mul_i32 s{sOWo}, s{sW}, {4*1280}")
    a(f"s_mov_b32 s{sStep}, {32*1280}")
    a(f"s_mov_b32 s{sMs}, 5120")
    a(f"s_and_b32 s{sT}, s{sW}, 1")
    a(f"s_lshl_b32 s{sT}, s{sT}, 4")
    a(f"s_lshr_b32 s{sT2}, s{sW}, 1")
    a(f"s_lshl_b32 s{sT2}, s{sT2}, 2")
    a(f"s_add_u32 s{sT}, s{sT}, s{sT2}")
    a(f"s_mul_i32 s{sM0}, s{sT}, 160")
    srd(a, sWo, 18, 0, 640 * 1280)
    a(f"s_mul_i32 s{sT}, s{sW}, 3072")
    a(f"s_add_u32 s{sT}, s{sT}, {LDS_X}")
    a(f"v_lshl_add_u32 v{vX0}, v{vL}, 4, s{sT}")
    a(f"s_xor_b32 s{sT}, s{sW}, 4")
    a(f"s_mul_i32 s{sT}, s{sT}, 3072")
    a(f"s_add_u32 s{sT}, s{sT}, {LDS_X}")
    a(f"v_lshl_add_u32 v{vX1}, v{vL}, 4, s{sT}")
    a(f"s_cmp_eq_u32 s{sAF}, 0")
    a(f"s_cbranch_scc1 {L('nsig')}")
    a(f"v_mov_b32 v{vT[0]}, 1")
    a("s_waitcnt vmcnt(0)")
    a("s_mov_b64 exec, 1")
    a(f"ds_add_rtn_u32 v{vT[1]}, v{vCtl}, v{vT[0]} offset:4")
    a("s_mov_b64 exec, -1")
    a("s_waitcnt lgkmcnt(0)")
    a(f"v_readfirstlane_b32 s{sT}, v{vT[1]}")
    a("s_nop 1")
    a(f"s_cmp_lg_u32 s{sT}, 3")
    a(f"s_cbranch_scc1 {L('nsig')}")
    put_flag(f"s{sAF}")
    st.stamp("aflag")
    a.label(L("nsig"))
    def aux_loads():
        sel_srd(sD, sKh, 6, 8, 2048 * 4096)
        a(f"buffer_load_dwordx4 {vr(WsF[0],4)}, v{vWs}, s[{sD}:{sD+3}], 0 offen")
        a(f"buffer_load_dwordx4 {vr(WsF[1],4)}, v{vWs}, s[{sD}:{sD+3}], 0 offen offset:64")
        srd(a, sWo, 18, 0, 640 * 1280)
        if wotouch:
            a(f"s_lshl_b32 s{sT}, s{sJ}, 3")
            a(f"s_add_u32 s{sT}, s{sT}, s{sW}")
            a(f"s_mul_i32 s{sT}, s{sT}, {25*128}")
            a(f"v_min_u32 v{vT[0]}, 24, v{vL}")
            a(f"v_lshlrev_b32 v{vT[0]}, 7, v{vT[0]}")
            a(f"buffer_load_dword v{vDum}, v{vT[0]}, s[{sWo}:{sWo+3}], s{sT} offen")
    a(f"s_cmp_eq_u32 s{sW}, 0")
    a(f"s_cbranch_scc1 {L('poll')}")
    lds_wait("wa", 0, 1)
    a(f"s_branch {L('go')}")
    a.label(L("poll"))
    a(f"s_mul_i32 s{sT}, s{sHead}, 20")
    a(f"v_bfe_u32 v{vT[0]}, v{vL}, 4, 1")
    a(f"v_mul_u32_u24 v{vT[0]}, 19, v{vT[0]}")
    a(f"v_add_u32 v{vT[0]}, s{sT}, v{vT[0]}")
    a(f"v_lshrrev_b32 v{vT[0]}, 7, v{vT[0]}")
    a(f"v_lshrrev_b32 v{vT[1]}, 5, v{vL}")
    a(f"v_mul_u32_u24 v{vT[1]}, 5, v{vT[1]}")
    a(f"v_add3_u32 v{vT[1]}, v{vT[1]}, v{vT[0]}, 5")
    a(f"v_and_b32 v{vT[2]}, 15, v{vL}")
    a(f"v_lshl_add_u32 v{vT[1]}, v{vT[1]}, 4, v{vT[2]}")
    a(f"v_lshlrev_b32 v{vT[1]}, 7, v{vT[1]}")
    a(f"s_lshl_b32 s{sT}, s{sQb}, 1")
    a(f"v_and_b32 v{vT[2]}, 1, v{vL}")
    a(f"v_lshl_add_u32 v{vT[0]}, v{vT[0]}, 4, v{vT[2]}")
    a(f"v_add_u32 v{vT[0]}, s{sT}, v{vT[0]}")
    a(f"v_lshlrev_b32 v{vT[0]}, 7, v{vT[0]}")
    a(f"s_mov_b32 s{sT2}, {WL.FA}")
    spin_begin("pa")
    a(f"buffer_load_dword v{vT[2]}, v{vT[1]}, s[{sFl}:{sFl+3}], s{sT2} offen sc1")
    a(f"buffer_load_dword v{vT[3]}, v{vT[0]}, s[{sFl}:{sFl+3}], s{sT2} offen sc1")
    a("s_waitcnt vmcnt(0)")
    for i in range(2): a(f"v_xor_b32 v{vT[2]+i}, s{sNonce}, v{vT[2]+i}")
    a(f"v_or_b32 v{vT[2]}, v{vT[2]}, v{vT[3]}")
    a(f"v_cmp_ne_u32 vcc, 0, v{vT[2]}")
    a("s_nop 1")
    a("s_cmp_eq_u64 vcc, 0")
    a(f"s_cbranch_scc1 {L('pad')}")
    spin_end("pa", psleep)
    a.label(L("pad"))
    a(f"v_mov_b32 v{vT[0]}, 1")
    a(f"ds_write_b32 v{vCtl}, v{vT[0]}")
    a.label(L("go"))
    st.stamp("ardy")
    a(f"buffer_load_dwordx4 {vr(K0m,4)}, v{vKm}, s[{sK}:{sK+3}], 0 offen sc1")
    a(f"buffer_load_dwordx4 {vr(Qm[0],4)}, v{vKm}, s[{sQ}:{sQ+3}], s{sU0} offen sc1")
    a(f"buffer_load_dwordx4 {vr(Qm[1],4)}, v{vKm}, s[{sQ}:{sQ+3}], s{sU0} offen offset:512 sc1")
    a(f"s_mov_b64 exec, s[{sLo}:{sLo+1}]")
    a(f"buffer_load_dwordx2 {vr(K0r,2)}, v{vKr}, s[{sK}:{sK+3}], 0 offen sc1")
    a(f"buffer_load_dwordx2 {vr(Qr[0],2)}, v{vKr}, s[{sQ}:{sQ+3}], s{sU0} offen sc1")
    a(f"buffer_load_dwordx2 {vr(Qr[1],2)}, v{vKr}, s[{sQ}:{sQ+3}], s{sU0} offen offset:512 sc1")
    a(f"buffer_load_dwordx2 {vr(Kr[0],2)}, v{vKr}, s[{sK}:{sK+3}], s{sOK} offen sc1")
    a("s_mov_b64 exec, -1")
    a(f"buffer_load_dwordx4 {vr(Km[0],4)}, v{vKm}, s[{sK}:{sK+3}], s{sOK} offen sc1")
    SC = ' sc1' if kvsc1 else ''
    def ex(m, inloop):
        if inloop and noexec: return
        a(f"s_mov_b64 exec, s[{m}:{m+1}]" if m is not None else "s_mov_b64 exec, -1")
    def ldKr(kb, koff): a(f"buffer_load_dwordx2 {vr(Kr[kb],2)}, v{vKr}, s[{sK}:{sK+3}], s{sOK} offen offset:{koff}{SC}")
    def ldKm(kb, koff): a(f"buffer_load_dwordx4 {vr(Km[kb],4)}, v{vKm}, s[{sK}:{sK+3}], s{sOK} offen offset:{koff}{SC}")
    def ldV(vb, j): a(f"buffer_load_dwordx4 {vr(Vb[vb][j],4)}, v{vV0+j}, s[{sV}:{sV+3}], s{sOV} offen{SC}")
    def group(kb, vb, koff, inloop=False):
        if inloop and noload: return
        ex(sLo, inloop); ldKr(kb, koff)
        ex(sVm, inloop); ldV(vb, 0); ldV(vb, 1)
        ex(None, inloop); ldKm(kb, koff)
        a(f"s_add_u32 s{sOV}, s{sOV}, {WL.VT}")
    group(1, 0, 512)
    a("s_waitcnt vmcnt(6)")
    st.stamp("qld")
    for q in range(2):
        a(f"v_mfma_f32_32x32x16_bf16 {vr(S[q],16)}, {vr(K0m,4)}, {vr(Qm[q],4)}, 0")
    group(2, 1, 1024)
    a("s_nop 1")
    for q in range(2):
        a(f"v_mfma_f32_32x32x8_bf16 {vr(S[q],16)}, {vr(K0r,2)}, {vr(Qr[q],2)}, {vr(S[q],16)}")
    group(3, 2, 1536)
    a("s_nop 3")
    for q in range(2):
        a(f"v_max3_f32 v{S[q]}, v{S[q]}, v{S[q]+1}, v{S[q]+2}")
        for i in range(3, 15, 2):
            a(f"v_max3_f32 v{S[q]}, v{S[q]}, v{S[q]+i}, v{S[q]+i+1}")
        a(f"v_max_f32 v{S[q]}, v{S[q]}, v{S[q]+15}")
    a(f"s_mov_b64 exec, s[{sHi}:{sHi+1}]")
    for q in range(2):
        a(f"v_cvt_pk_bf16_f32 v{Qr[q]}, -v{S[q]}, 0")
    a("s_mov_b64 exec, -1")
    a("s_waitcnt vmcnt(12)")
    a(f"v_mfma_f32_32x32x16_bf16 {vr(S[0],16)}, {vr(Km[0],4)}, {vr(Qm[0],4)}, 0")
    a(f"s_add_u32 s{sT}, s{sHp}, {WL.OF}")
    srd(a, sQ, sWS, f"s{sT}", 5 * WL.PL)
    a("s_nop 3")
    a(f"v_mfma_f32_32x32x8_bf16 {vr(S[0],16)}, {vr(Kr[0],2)}, {vr(Qr[0],2)}, {vr(S[0],16)}")
    a(f"s_mov_b32 s{sCnt}, 7")
    a("s_mov_b64 vcc, 0")
    a("s_setprio 3")
    st.stamp("lbeg")
    def exp(q, i): a(f"v_exp_f32 v{S[q]+i}, v{S[q]+i}")
    def cvt(q, i): a(f"v_cvt_pk_bf16_f32 v{P+i}, v{S[q]+2*i}, v{S[q]+2*i+1}")
    def slot(kt, q):
        nq = 1 - q
        nk = (kt + q) % 4
        pk = (kt + q - 1) % 4
        a(f"v_mfma_f32_32x32x16_bf16 {vr(S[nq],16)}, {vr(Km[nk],4)}, {vr(Qm[nq],4)}, 0")
        if spread and q == 0:
            ex(sVm, True); ldV((kt - 1) % 4, 0); ex(None, True)
        for i in range(0, 4): exp(q, i)
        a(f"v_mfma_f32_32x32x16_bf16 {vr(O[nq],16)}, {vr(Vb[pk][1],4)}, {vr(P+4,4)}, {vr(O[nq],16)}")
        if spread and q == 0:
            ex(sVm, True); ldV((kt - 1) % 4, 1); ex(None, True)
            a(f"s_add_u32 s{sOV}, s{sOV}, {WL.VT}")
        for i in range(4, 8): exp(q, i)
        cvt(q, 0)
        a(f"v_mfma_f32_32x32x8_bf16 {vr(S[nq],16)}, {vr(Kr[nk],2)}, {vr(Qr[nq],2)}, {vr(S[nq],16)}")
        if q == 0:
            if spread:
                ex(sLo, True); ldKr(kt, 512 * (kt + 4)); ex(None, True)
            else:
                group(kt, (kt - 1) % 4, 512 * (kt + 4), True)
            if kt == 0:
                a(f"s_cmp_eq_u32 s{sCnt}, 0")
                a(f"s_cselect_b32 s{sV+2}, 0, s{sV+2}")
        else:
            a(f"s_cbranch_vccz {L('nd%d' % kt)}")
            a(f"s_mov_b32 m0, s{sM0}")
            a(f"s_mov_b64 exec, s[{sDm}:{sDm+1}]")
            a(f"buffer_load_dwordx4 v{vWo}, s[{sWo}:{sWo+3}], s{sOWo} offen sc1 lds")
            a("s_mov_b64 exec, -1")
            a(f"s_add_u32 s{sM0}, s{sM0}, s{sMs}")
            a(f"s_add_u32 s{sOWo}, s{sOWo}, s{sStep}")
            a.label(L("nd%d" % kt))
        for i in range(1, 4): cvt(q, i)
        for i in range(8, 12): exp(q, i)
        if q == 0 and not nowait: a("s_waitcnt vmcnt(%d)" % (11 if spread else 12))
        a(f"v_mfma_f32_32x32x16_bf16 {vr(O[q],16)}, {vr(Vb[kt][0],4)}, {vr(P,4)}, {vr(O[q],16)}")
        if spread and q == 0: ldKm(kt, 512 * (kt + 4))
        for i in range(12, 16): exp(q, i)
        for i in range(4, 8): cvt(q, i)
    def gfl_loads():
        a(f"v_mul_u32_u24 v{vT[0]}, 48, v{vL}")
        a(f"buffer_load_dwordx4 {vr(GFl,4)}, v{vT[0]}, s[{sFl}:{sFl+3}], 0 offen offset:{WL.FG} sc1")
        a(f"buffer_load_dwordx4 {vr(GFl+4,4)}, v{vT[0]}, s[{sFl}:{sFl+3}], 0 offen offset:{WL.FG+16} sc1")
        a(f"buffer_load_dwordx2 {vr(GFl+8,2)}, v{vT[0]}, s[{sFl}:{sFl+3}], 0 offen offset:{WL.FG+32} sc1")
        a(f"s_lshr_b32 s{sT}, s{sCc}, 1")
        a(f"s_lshl_b32 s{sT}, s{sT}, 7")
        a(f"s_add_u32 s{sT}, s{sT}, {WL.FA + 240*128}")
        a(f"buffer_load_dword v{GFl+10}, off, s[{sFl}:{sFl+3}], s{sT} sc1")
    a("s_nop 7")
    a(f"s_branch {L('loop')}")
    a.label(L("head"))
    for lvl, c in zip((2, 1, 0), prio):
        a(f"s_cmp_lg_u32 s{sCnt}, {c-1}")
        a(f"s_cbranch_scc1 {L('hp%d' % lvl)}")
        a(f"s_setprio {lvl}")
        a.label(L("hp%d" % lvl))
    a(f"s_cmp_eq_u32 s{sCnt}, 5")
    a(f"s_cbranch_scc1 {L('h5')}")
    a(f"s_cmp_eq_u32 s{sCnt}, 0")
    a(f"s_cbranch_scc1 {L('h0')}")
    a(f"s_cmp_eq_u32 s{sCnt}, 1")
    a(f"s_cbranch_scc1 {L('h1')}")
    a(f"s_cmp_lg_u32 s{sCnt}, 6")
    a(f"s_cbranch_scc1 {L('loop')}")
    aux_loads()
    a(f"s_branch {L('loop')}")
    a.label(L("h1"))
    gfl_loads()
    a(f"s_branch {L('loop')}")
    a.label(L("h5"))
    a(f"s_cmp_eq_u32 s{sGF}, 0")
    a(f"s_cbranch_scc1 {L('h5b')}")
    put_flag(f"s{sGF}")
    a.label(L("h5b"))
    lds_wait("wr", 8, 8)
    a("s_mov_b64 vcc, %d" % (0 if nodma else -1))
    a(f"s_branch {L('loop')}")
    a.label(L("h0"))
    a(f"s_mov_b32 s{sK+2}, 0")
    spin_begin("pg")
    for i in range(11): a(f"v_xor_b32 v{GFl+i}, s{sNonce}, v{GFl+i}")
    for i in range(1, 11, 2): a(f"v_or3_b32 v{GFl}, v{GFl}, v{GFl+i}, v{GFl+i+1}")
    a(f"v_cmp_ne_u32 vcc, 0, v{GFl}")
    a("s_nop 1")
    a("s_cmp_eq_u64 vcc, 0")
    a(f"s_cbranch_scc1 {L('pgd')}")
    a("s_sleep 8")
    gfl_loads()
    a("s_waitcnt vmcnt(0)")
    spin_end("pg")
    a.label(L("pgd"))
    a("s_mov_b64 vcc, %d" % (0 if nodma else -1))
    srd(a, sWo, sWS, WL.GATE, 2048 * 8)
    a(f"buffer_load_dwordx2 {vr(vG,2)}, v{vGt}, s[{sWo}:{sWo+3}], 0 offen sc1")
    srd(a, sWo, sWS, WL.G, WL.G_SIZE)
    a(f"v_mov_b32 v{vWo}, v{vGd}")
    a(f"s_mul_i32 s{sOWo}, s{sW}, {4*WL.GA}")
    a(f"s_mov_b32 s{sStep}, {32*WL.GA}")
    a(f"s_mov_b32 s{sMs}, {GSTEP}")
    a(f"s_mov_b32 s{sDm+1}, 0xfff")
    a(f"s_and_b32 s{sT}, s{sW}, 1")
    a(f"s_lshl_b32 s{sT}, s{sT}, 4")
    a(f"s_lshr_b32 s{sT2}, s{sW}, 1")
    a(f"s_lshl_b32 s{sT2}, s{sT2}, 2")
    a(f"s_add_u32 s{sT}, s{sT}, s{sT2}")
    a(f"s_mul_i32 s{sM0}, s{sT}, 176")
    a(f"s_add_u32 s{sM0}, s{sM0}, {GIMG}")
    a.raw(".p2align 6")
    a.label(L("loop"))
    for kt in range(4):
        for q in range(2): slot(kt, q)
    a(f"s_add_u32 s{sOK}, s{sOK}, 2048")
    evm = 0
    for c in [6, 5, 1, 0] + [p - 1 for p in prio if p > 0]: evm |= 1 << c
    a(f"s_sub_u32 s{sCnt}, s{sCnt}, 1")
    a(f"s_bitcmp1_b32 {hex(~evm & 0xff)}, s{sCnt}")
    a(f"s_cbranch_scc1 {L('loop')}")
    a(f"s_cmp_ge_i32 s{sCnt}, 0")
    a(f"s_cbranch_scc1 {L('head')}")
    a(f"v_mfma_f32_32x32x16_bf16 {vr(O[1],16)}, {vr(Vb[3][1],4)}, {vr(P+4,4)}, {vr(O[1],16)}")
    a("s_setprio 3")
    st.stamp("lend")
    a(f"s_lshr_b32 s{sOWo}, s{sU0}, 9")
    a(f"s_add_u32 s{sOWo}, s{sOWo}, s{sKh}")
    a(f"s_lshl_b32 s{sOWo}, s{sOWo}, 5")
    a(f"s_add_u32 s{sOWo}, s{sOWo}, s{sHead}")
    a(f"s_lshl_b32 s{sOWo}, s{sOWo}, 7")
    a(f"s_add_u32 s{sOWo}, s{sOWo}, {WL.FO}")
    a(f"s_lshl_b32 s{sT}, s{sKh}, 9")
    a(f"s_add_u32 s{sOK}, s{sU0}, s{sT}")
    a("s_nop 1")
    a(f"s_cmp_eq_u32 s{sKh}, 0")
    a(f"s_cbranch_scc1 {L('x0')}")
    for r in range(3): a(f"ds_write_b128 v{vX0}, {vr(O[0]+4*r,4)} offset:{1024*r}")
    a("s_waitcnt lgkmcnt(0)")
    for i in range(12): a(f"v_mov_b32 v{O[0]+i}, v{O[1]+i}")
    for i in range(4): a(f"v_mov_b32 v{Qm[0]+i}, v{Qm[1]+i}")
    for i in range(2): a(f"v_mov_b32 v{Qr[0]+i}, v{Qr[1]+i}")
    a(f"s_branch {L('x1')}")
    a.label(L("x0"))
    for r in range(3): a(f"ds_write_b128 v{vX0}, {vr(O[1]+4*r,4)} offset:{1024*r}")
    a.label(L("x1"))
    a("s_waitcnt vmcnt(0) lgkmcnt(0)")
    a("s_barrier")
    st.stamp("x1")
    for r in range(3): a(f"ds_read_b128 {vr(S[0]+4*r,4)}, v{vX1} offset:{1024*r}")
    a("s_waitcnt lgkmcnt(0)")
    for i in range(12): a(f"v_add_f32 v{O[0]+i}, v{O[0]+i}, v{S[0]+i}")
    def bcast_l():
        a(f"v_mov_b32 v{O[0]+12}, v{O[0]+8}")
        a(f"v_mov_b32 v{O[0]+13}, v{O[0]+8}")
        a("s_nop 1")
        a(f"v_permlane32_swap_b32 v{O[0]+13}, v{O[0]+12}")
        a("s_nop 1")
    bcast_l()
    a(f"v_mul_f32 v{vM}, 0, v{O[0]}")
    for i in range(1, 12): a(f"v_fmac_f32 v{vM}, 0, v{O[0]+i}")
    a(f"v_add_f32 v{vM}, v{vM}, v{O[0]+12}")
    a(f"v_cmp_nge_f32 vcc, 0x71800000, v{vM}")
    a(f"s_mov_b32 s{sT}, 0x21800000")
    a(f"v_cmp_gt_f32 s[{sT2+1}:{sT2+2}], s{sT}, v{vM}")
    a("s_nop 1")
    a(f"s_or_b64 vcc, vcc, s[{sT2+1}:{sT2+2}]")
    a(f"s_cbranch_scc1 {L('slow')}")
    a.label(L("fin"))
    a(f"v_rcp_f32 v{vM}, v{O[0]+12}")
    a("s_nop 0")
    for i in range(12): a(f"v_mul_f32 v{O[0]+i}, v{O[0]+i}, v{vM}")
    PO = K0m
    assert K0r == K0m + 4
    for i in range(6): a(f"v_cvt_pk_bf16_f32 v{PO+i}, v{O[0]+2*i}, v{O[0]+2*i+1}")
    a(f"buffer_store_dwordx4 {vr(PO,4)}, v{vKm}, s[{sQ}:{sQ+3}], s{sOK} offen sc1")
    a(f"s_mov_b64 exec, s[{sLo}:{sLo+1}]")
    a(f"buffer_store_dwordx2 {vr(PO+4,2)}, v{vKr}, s[{sQ}:{sQ+3}], s{sOK} offen sc1")
    a("s_mov_b64 exec, -1")
    st.stamp("ost")

    V = Alloc(VB, TOP)
    vR = V.get(); vR2 = V.get()
    NPRE = 7
    AF = [[V.get(4, 4) for _ in range(5)] for _ in range(NPRE)]
    AY4 = V.get(4, 4)
    assert V.p <= PO, (V.p, PO)
    V.p = att_keep
    AY = [V.get(4, 4) for _ in range(4)] + [AY4]
    AB = [V.get(4, 4) for _ in range(4)] + [PO]
    OFr = [V.get(4, 4) for _ in range(10)]
    Y1 = OFr[0:5]; Y2 = OFr[5:10]
    a(f"v_lshrrev_b32 v{vT[0]}, 2, v{vL}")
    a(f"v_and_b32 v{vT[1]}, 3, v{vL}")
    a(f"v_mul_u32_u24 v{vR}, 160, v{vT[0]}")
    a(f"v_lshl_add_u32 v{vR}, v{vT[1]}, 3, v{vR}")
    a(f"s_mul_i32 s{sT}, s{sKh}, {10*5120}")
    a(f"v_add_u32 v{vR}, s{sT}, v{vR}")
    a(f"s_cmp_lt_u32 s{sEb8}, 4")
    a(f"s_cselect_b32 s{sT}, 0, 3")
    a(f"v_xor_b32 v{vT[1]}, s{sT}, v{vT[1]}")
    a(f"v_mul_u32_u24 v{vR2}, 176, v{vT[0]}")
    a(f"v_lshl_add_u32 v{vR2}, v{vT[1]}, 3, v{vR2}")
    a(f"s_mul_i32 s{sT}, s{sKh}, {2*GSTEP}")
    a(f"s_add_u32 s{sT}, s{sT}, {GIMG}")
    a(f"v_add_u32 v{vR2}, s{sT}, v{vR2}")
    def rd(dst, base, off, pitch=160):
        for t in range(5):
            a(f"ds_read_b64_tr_b16 {vr(dst[t],2)}, v{base} offset:{off + 32*t}")
            a(f"ds_read_b64_tr_b16 {vr(dst[t]+2,2)}, v{base} offset:{off + 32*t + 16*pitch}")
    def ymf(Y, F0, F1):
        for s, F in enumerate((F0, F1)):
            for t in range(5):
                c = "0" if s == 0 else vr(Y[t], 4)
                a(f"v_mfma_f32_16x16x32_bf16 {vr(Y[t],4)}, {vr(F[t],4)}, {vr(WsF[s],4)}, {c}")
    rd(AF[5], vR2, 0, 176); rd(AF[6], vR2, GSTEP, 176)
    rd(AF[3], vR2, 8, 176); rd(AF[4], vR2, GSTEP + 8, 176)
    a("s_waitcnt vmcnt(0)")
    put_flag(f"s{sOWo}")
    st.stamp("oflag")
    for s in range(3): rd(AF[s], vR, 5120 * s)
    a("s_waitcnt lgkmcnt(%d)" % (0 if stamps else 15))
    ymf(Y1, AF[5], AF[6])
    ymf(Y2, AF[3], AF[4])
    for s in range(3, NPRE): rd(AF[s], vR, 5120 * s)
    a(f"s_cmp_lt_u32 s{sEb8}, 4")
    a(f"s_cbranch_scc0 {L('ymir')}")
    for t in range(5):
        for i in range(4): a(f"v_mul_f32 v{AY[t]+i}, v{Y1[t]+i}, v{vG}")
    a(f"s_branch {L('ydone')}")
    a.label(L("ymir"))
    a(f"s_lshl_b32 s{sT}, s{sKh}, 31")
    a(f"v_xor_b32 v{vG}, s{sT}, v{vG}")
    for t in range(5):
        a(f"v_mul_f32 v{AY[t]}, v{Y2[4-t]}, v{vG}")
        for i in range(1, 4): a(f"v_mul_f32 v{AY[t]+i}, v{Y1[4-t]+4-i}, v{vG}")
    a.label(L("ydone"))
    srd(a, sA, sWS, WL.OF, 80 * WL.PL)
    srd(a, sC, 22, 0, 2048 * 1280)
    a(f"s_lshl_b32 s{sT}, s{sCc}, 1")
    a(f"s_bfe_u32 s{sT2}, s{sW}, 0x10001")
    a(f"s_add_u32 s{sT}, s{sT}, s{sT2}")
    a(f"s_lshl_b32 s{sT}, s{sT}, 1")
    a(f"s_add_u32 s{sT}, s{sT}, s{sKh}")
    a(f"s_lshl_b32 s{sT2}, s{sT}, 11")
    a(f"s_add_u32 s{sT2}, s{sT2}, {WL.FO}")
    a(f"v_and_b32 v{vT[0]}, 15, v{vL}")
    a(f"v_lshlrev_b32 v{vT[0]}, 7, v{vT[0]}")
    st.stamp("pbeg")
    spin_begin("po")
    a(f"buffer_load_dword v{vT[2]}, v{vT[0]}, s[{sFl}:{sFl+3}], s{sT2} offen sc1")
    a("s_waitcnt vmcnt(0)")
    a(f"v_cmp_ne_u32 vcc, s{sNonce}, v{vT[2]}")
    a("s_nop 1")
    a("s_cmp_eq_u64 vcc, 0")
    a(f"s_cbranch_scc1 {L('pod')}")
    spin_end("po", 1)
    a.label(L("pod"))
    st.stamp("pend")
    a(f"s_mul_i32 s{sT}, s{sKh}, {40*WL.PL}")
    for s in range(10):
        a(f"buffer_load_dwordx4 {vr(OFr[s],4)}, v{vO}, s[{sA}:{sA+3}], s{sT} offen sc1")
        if s < 9: a(f"s_add_u32 s{sT}, s{sT}, {4*WL.PL}")
    a("s_waitcnt lgkmcnt(0)")
    for s in range(10):
        a(f"s_waitcnt vmcnt({9-s})" + (f" lgkmcnt({min(15, 10*(9-s))})" if s >= NPRE else ""))
        for t in range(5):
            c = "0" if s == 0 else vr(AB[t], 4)
            a(f"v_mfma_f32_16x16x32_bf16 {vr(AB[t],4)}, {vr(AF[s % NPRE][t],4)}, {vr(OFr[s],4)}, {c}")
        if s + NPRE < 10: rd(AF[s], vR, 5120 * (s + NPRE))
    st.stamp("dmf")
    a("s_nop 7")
    for t in range(5):
        for i in range(4): a(f"v_fmac_f32 v{AY[t]+i}, v{AB[t]+i}, v{vG+1}")
    if probe:
        a("s_memrealtime s[72:73]")
        a("s_waitcnt lgkmcnt(0)")
        a("s_sub_u32 s72, s72, s70")
        a(f"s_cmp_lt_u32 s72, {probe}")
        a(f"s_cbranch_scc1 {L('prb')}")
        a(f"buffer_load_dword v{vT[0]}, off, s[64:67], 0 sc1")
        a("s_waitcnt vmcnt(0)")
        a(f"v_readfirstlane_b32 s72, v{vT[0]}")
        a("s_nop 1")
        a("s_cmp_lg_u32 s72, 0")
        a(f"s_cbranch_scc1 {L('prb')}")
        for t in range(5): a(f"v_mov_b32 v{AY[t]}, 0x7fc00000")
        a.label(L("prb"))
    def dfin(keep, send):
        for r, t in enumerate(send): a(f"ds_write_b128 v{vX1}, {vr(AY[t],4)} offset:{1024*r}")
        a("s_waitcnt lgkmcnt(0)")
        a("s_barrier")
        for r, t in enumerate(keep): a(f"ds_read_b128 {vr(AB[t],4)}, v{vX0} offset:{1024*r}")
        for r, t in enumerate(keep):
            a(f"s_waitcnt lgkmcnt({len(keep)-1-r})")
            for i in range(4): a(f"v_add_f32 v{AY[t]+i}, v{AY[t]+i}, v{AB[t]+i}")
            a(f"v_cvt_pk_bf16_f32 v{AY[t]}, v{AY[t]}, v{AY[t]+1}")
            a(f"v_cvt_pk_bf16_f32 v{AY[t]+1}, v{AY[t]+2}, v{AY[t]+3}")
            a(f"buffer_store_dwordx2 {vr(AY[t],2)}, v{vSt}, s[{sC}:{sC+3}], 0 offen offset:{32*t}")
    a(f"s_cmp_eq_u32 s{sKh}, 0")
    a(f"s_cbranch_scc1 {L('d0')}")
    dfin([3, 4], [0, 1, 2])
    a(f"s_branch {L('dend')}")
    a.label(L("d0"))
    dfin([0, 1, 2], [3, 4])
    a.label(L("dend"))
    a(f"s_lshl_b32 s{sT}, s2, 3")
    a(f"s_add_u32 s{sT}, s{sT}, s{sW}")
    a(f"s_cmp_lg_u32 s{sT}, 4")
    a(f"s_cbranch_scc1 {L('ed')}")
    a(f"v_lshlrev_b32 v{vT[0]}, 9, v{vL}")
    a(f"s_mov_b32 s{sT2}, {WL.FA}")
    spin_begin("pe")
    for i in range(4): a(f"buffer_load_dword v{vT[2]+i}, v{vT[0]}, s[{sFl}:{sFl+3}], s{sT2} offen offset:{128*i} sc1")
    a("s_waitcnt vmcnt(0)")
    for i in range(4): a(f"v_xor_b32 v{vT[2]+i}, s{sNonce}, v{vT[2]+i}")
    a(f"v_or3_b32 v{vT[2]}, v{vT[2]}, v{vT[3]}, v{vT[4]}")
    a(f"v_or_b32 v{vT[2]}, v{vT[2]}, v{vT[5]}")
    a(f"v_cmp_ne_u32 vcc, 0, v{vT[2]}")
    a("s_nop 1")
    a("s_cmp_eq_u64 vcc, 0")
    a(f"s_cbranch_scc1 {L('ped')}")
    spin_end("pe")
    a.label(L("ped"))
    if rprobe:
        a(f"v_lshlrev_b32 v{vT[0]}, 2, v{vL}")
        a(f"buffer_load_dword v{vT[2]}, v{vT[0]}, s[64:67], 0 offen sc1")
        a("s_waitcnt vmcnt(0)")
        a(f"v_cmp_ne_u32 vcc, 0, v{vT[2]}")
        a("s_nop 1")
        a("s_bcnt1_i32_b64 s68, vcc")
        a("s_cmp_lt_u32 s68, 2")
        a("s_cbranch_scc1 L_rp1")
        for _ in range(16): a("s_sleep 127")
        a.label("L_rp1")
    put_flag("0")
    a.label(L("ed"))
    st.finish(9)
    a.label(L("end"))
    a("s_endpgm")

    a.label(L("slow"))
    sSK = sT2 + 1; sSV = sT2 + 2
    a("s_waitcnt vmcnt(0)")
    a(f"s_mov_b32 s{sK+2}, {5*WL.PL}")
    a(f"s_mov_b32 s{sV+2}, {64*WL.VT}")
    a(f"s_mov_b64 exec, s[{sHi}:{sHi+1}]")
    a(f"v_mov_b32 v{Qr[0]}, 0")
    a(f"v_mov_b32 v{Qr[0]+1}, 0")
    a("s_mov_b64 exec, -1")
    a(f"v_mov_b32 v{vM}, 0xff800000")
    a(f"s_mov_b32 s{sSK}, 0")
    def qk_slow():
        a(f"s_mov_b64 exec, s[{sLo}:{sLo+1}]")
        a(f"buffer_load_dwordx2 {vr(Kr[0],2)}, v{vKr}, s[{sK}:{sK+3}], s{sSK} offen sc1")
        a("s_mov_b64 exec, -1")
        a(f"buffer_load_dwordx4 {vr(Km[0],4)}, v{vKm}, s[{sK}:{sK+3}], s{sSK} offen sc1")
        a("s_waitcnt vmcnt(0)")
        a(f"v_mfma_f32_32x32x16_bf16 {vr(S[0],16)}, {vr(Km[0],4)}, {vr(Qm[0],4)}, 0")
        a("s_nop 11")
        a(f"v_mfma_f32_32x32x8_bf16 {vr(S[0],16)}, {vr(Kr[0],2)}, {vr(Qr[0],2)}, {vr(S[0],16)}")
        a("s_nop 12")
    a.label(L("s1"))
    qk_slow()
    for i in range(0, 16, 2):
        a(f"v_max3_f32 v{vM}, v{vM}, v{S[0]+i}, v{S[0]+i+1}")
    a(f"s_add_u32 s{sSK}, s{sSK}, 512")
    a(f"s_cmp_lt_u32 s{sSK}, {WL.PL}")
    a(f"s_cbranch_scc1 {L('s1')}")
    a(f"v_mov_b32 v{vT[0]}, v{vM}")
    a("s_nop 1")
    a(f"v_permlane32_swap_b32 v{vT[0]}, v{vM}")
    a("s_nop 1")
    a(f"v_max_f32 v{vM}, v{vM}, v{vT[0]}")
    a(f"v_cvt_pk_bf16_f32 v{S[0]}, 0, -v{vM}")
    a(f"v_sub_f32 v{vT[0]}, 0, v{vM}")
    a(f"v_sub_f32 v{vT[0]}, v{vT[0]}, v{S[0]}")
    a(f"v_cvt_pk_bf16_f32 v{S[0]+1}, 0, v{vT[0]}")
    a(f"v_sub_f32 v{vT[1]}, v{vT[0]}, v{S[0]+1}")
    a(f"s_mov_b64 exec, s[{sHi}:{sHi+1}]")
    a(f"v_cvt_pk_bf16_f32 v{Qr[0]}, v{S[0]}, v{S[0]+1}")
    a(f"v_cvt_pk_bf16_f32 v{Qr[0]+1}, v{vT[1]}, 0")
    a("s_mov_b64 exec, -1")
    for i in range(16): a(f"v_mov_b32 v{O[0]+i}, 0")
    a(f"s_mov_b32 s{sSK}, 0")
    a(f"s_mov_b32 s{sSV}, 0")
    a.label(L("s2"))
    a(f"s_mov_b64 exec, s[{sVm}:{sVm+1}]")
    a(f"buffer_load_dwordx4 {vr(Vb[0][0],4)}, v{vV0}, s[{sV}:{sV+3}], s{sSV} offen sc1")
    a(f"buffer_load_dwordx4 {vr(Vb[0][1],4)}, v{vV1}, s[{sV}:{sV+3}], s{sSV} offen sc1")
    qk_slow()
    for i in range(16): exp(0, i)
    a("s_nop 0")
    for i in range(8): cvt(0, i)
    a("s_nop 1")
    a(f"v_mfma_f32_32x32x16_bf16 {vr(O[0],16)}, {vr(Vb[0][0],4)}, {vr(P,4)}, {vr(O[0],16)}")
    a(f"v_mfma_f32_32x32x16_bf16 {vr(O[0],16)}, {vr(Vb[0][1],4)}, {vr(P+4,4)}, {vr(O[0],16)}")
    a(f"s_add_u32 s{sSK}, s{sSK}, 512")
    a(f"s_add_u32 s{sSV}, s{sSV}, {WL.VT}")
    a(f"s_cmp_lt_u32 s{sSK}, {WL.PL}")
    a(f"s_cbranch_scc1 {L('s2')}")
    a("s_nop 12")
    bcast_l()
    a(f"s_branch {L('fin')}")
    return a.text(), kernel_desc(name, 256, 102), f"; @launch grid=(256,1,1) block=(512,1,1) lds={LDS_SIZE}"

if __name__ == "__main__":
    import sys
    from gen import build
    path = sys.argv[1]
    sn = [x[3:].split(',') for x in sys.argv if x.startswith('sn=')]
    kw = {x.split('=')[0]: eval(x.split('=')[1]) for x in sys.argv[2:] if not x.startswith('sn=')}
    hd = kw.pop('hdbg', False)
    build(path, [gen(stamps=(2 if hd else bool(sn)), snames=sn[0] if sn else (), **kw)])
```

```python
from asm import *

QSCALE = 0x3ea52b5c
NAME = "gated_mix__spectral_fnet__softmax_full_mha__prompt_kernel"
LDS_X = 131072
LDS_CTL = LDS_X + 24576
LDS_SIZE = LDS_CTL + 64
GSTEP = 32 * 176
GIMG = 20 * 5120
SPIN = 200000
STAGE = [0, 0x8000, 0x18000, 0x10000]

def gen(name=NAME, stamps=False, snames=(), rotx=(0, 2, 5, 7, 5, 7, 0, 2), rin=(7, 3), touch=False, tpos=5, gtouch=True, fsplit=5,
        prio=(4, 2, 1), psleep=8, wotouch=False, probe=None, fwait=True, nodma=False, kvsc1=False, noload=False, nowait=False, noexec=False, spread=False, rt=True, fstart=6, rprobe=False, enc=None, encw=0, oearly=False, rsleep=2, rmode=0, ypost=True, obar=False, nfirst=(0, 0), afirst=True, odelay=0, gdefer=0, pois=3, osc=''):
    a = Asm()
    kernel_begin(a, name)
    L = lambda s: f"L_{s}"
    st = Stamps(a, stamps, 0); st.names = list(snames); st.op = 's_memrealtime' if rt else 's_memtime'
    if enc:
        class Enc:
            names = []
            def start(self): a("s_memrealtime s[70:71]"); a("s_memrealtime s[72:73]")
            def stamp(self, n):
                if n == enc: a("s_memrealtime s[72:73]"); a("s_waitcnt lgkmcnt(0)")
            def finish(self, i):
                a("s_lshl_b32 s68, s2, 3"); a("s_add_u32 s68, s68, s52")
                a(f"s_cmp_lg_u32 s68, {136*8+encw}")
                a("s_cbranch_scc1 L_encd")
                a("s_memrealtime s[74:75]"); a("s_waitcnt lgkmcnt(0)")
                a("s_sub_u32 s72, s72, s70"); a("s_lshl_b32 s72, s72, 2"); a("s_add_u32 s72, s72, s74")
                a.label("L_encl")
                a("s_memrealtime s[74:75]"); a("s_waitcnt lgkmcnt(0)")
                a("s_sub_u32 s68, s74, s72"); a("s_cmp_lt_i32 s68, 0")
                a("s_cbranch_scc1 L_encl")
                a.label("L_encd")
        st = Enc()
    sWS = 26
    sA = 28; sB = 32; sC = 36; sD = 40; sFl = 44; sE = 48
    sW = 52; sXc = 53; sJ = 54; sNonce = 55; sT = 56; sT2 = 57; sCnt = 58
    sLo = 60; sVm = 62; sHi = 94; sDm = 96
    sGF = 25
    sAF = 24
    vL = 1; vT = [2, 3, 4, 5, 6, 7]; vCtl = 8
    VB = 10
    TOP = 252 if stamps else 256

    def spin_begin(lab):
        a(f"s_mov_b32 s59, {SPIN}")
        a.label(L(lab))
    def spin_end(lab, sleep=2):
        a(f"s_sleep {sleep}")
        a("s_sub_u32 s59, s59, 1")
        a("s_cmp_lg_u32 s59, 0")
        a(f"s_cbranch_scc1 {L(lab)}")
    def put_flag(soff):
        a(f"v_mov_b32 v{vT[0]}, 0")
        a(f"v_mov_b32 v{vT[1]}, s{sNonce}")
        a("s_mov_b64 exec, 1")
        a(f"buffer_store_dword v{vT[1]}, v{vT[0]}, s[{sFl}:{sFl+3}], {soff} offen sc1")
        a("s_mov_b64 exec, -1")
    def lds_inc(off):
        a(f"v_mov_b32 v{vT[0]}, 1")
        a("s_mov_b64 exec, 1")
        a(f"ds_add_u32 v{vCtl}, v{vT[0]} offset:{off}")
        a("s_mov_b64 exec, -1")
    def lds_wait(lab, off, val):
        spin_begin(lab)
        a(f"ds_read_b32 v{vT[0]}, v{vCtl} offset:{off}")
        a("s_waitcnt lgkmcnt(0)")
        a(f"v_readfirstlane_b32 s{sT}, v{vT[0]}")
        a("s_nop 1")
        a(f"s_cmp_eq_u32 s{sT}, {val}")
        a(f"s_cbranch_scc1 {L(lab+'d')}")
        spin_end(lab, 1)
        a.label(L(lab + "d"))
    def sel_srd(d, cond_s, p0, p1, size):
        a(f"s_cmp_eq_u32 s{cond_s}, 0")
        a(f"s_cselect_b32 s{d}, s{p0}, s{p1}")
        a(f"s_cselect_b32 s{d+1}, s{p0+1}, s{p1+1}")
        a(f"s_and_b32 s{d+1}, s{d+1}, 0xffff")
        a(f"s_mov_b32 s{d+2}, {size}")
        a(f"s_mov_b32 s{d+3}, 0x20000")
    def after_kernarg():
        a("s_waitcnt lgkmcnt(0)")
        st.stamp("karg")
        a(f"s_load_dword s{sNonce}, s[{sWS}:{sWS+1}], {WL.EPOCH}")
        srd(a, sA, 4, 0, 2048 * 1280)
    def masks():
        a("v_mov_b32 v9, 0")
        a(f"s_mov_b32 s{sGF}, 0"); a(f"s_mov_b32 s{sAF}, 0")
        srd(a, sFl, sWS, WL.FLAG, WL.FLAG_SIZE)
        a(f"v_mov_b32 v{vCtl}, {LDS_CTL}")
        a(f"s_mov_b32 s{sLo}, -1"); a(f"s_mov_b32 s{sLo+1}, 0")
        a(f"s_mov_b32 s{sHi}, 0"); a(f"s_mov_b32 s{sHi+1}, -1")
        a(f"s_mov_b32 s{sVm}, 0xfffff"); a(f"s_mov_b32 s{sVm+1}, 0xfffff")
        a(f"s_mov_b32 s{sDm}, -1"); a(f"s_mov_b32 s{sDm+1}, 0xff")
    def nat_read_addrs(dst, stile, shift):
        a(f"v_and_b32 v{vT[0]}, 31, v{vL}")
        a(f"v_lshrrev_b32 v{vT[1]}, 5, v{vL}")
        a(f"v_bfe_u32 v{vT[2]}, v{vL}, 1, 3")
        a(f"v_xor_b32 v{vT[1]}, v{vT[1]}, v{vT[2]}")
        a(f"v_lshlrev_b32 v{vT[1]}, 4, v{vT[1]}")
        a(f"v_lshl_add_u32 v{vT[0]}, v{vT[0]}, 7, v{vT[1]}")
        a(f"s_lshl_b32 s{sT}, s{stile}, {shift}")
        a(f"v_add_u32 v{dst[0]}, s{sT}, v{vT[0]}")
        for ks in range(1, 4):
            a(f"v_xor_b32 v{dst[ks]}, {32*ks}, v{dst[0]}")

    a("s_cmp_ge_u32 s2, 256")
    a(f"s_cbranch_scc1 {L('end')}")
    st.start()
    if probe:
        a("s_memrealtime s[70:71]")
        a("s_load_dwordx2 s[64:65], s[0:1], 80")
        a("s_waitcnt lgkmcnt(0)")
        a("s_and_b32 s65, s65, 0xffff"); a("s_mov_b32 s66, 256"); a("s_mov_b32 s67, 0x20000")
        a("s_getreg_b32 s68, hwreg(HW_REG_XCC_ID)")
        a("s_xor_b32 s68, s68, s2"); a("s_and_b32 s68, s68, 7")
        a("s_cbranch_scc0 L_pok")
        a("v_mov_b32 v2, 1")
        a("s_mov_b64 exec, 1")
        a("buffer_store_dword v2, off, s[64:67], 0 sc1")
        a("s_mov_b64 exec, -1")
        a.label("L_pok")
    if rprobe:
        a("s_load_dwordx2 s[64:65], s[0:1], 80")
        a("s_waitcnt lgkmcnt(0)")
        a("s_and_b32 s65, s65, 0xffff"); a("s_mov_b32 s66, 256"); a("s_mov_b32 s67, 0x20000")
        a("s_getreg_b32 s68, hwreg(HW_REG_XCC_ID)")
        a("s_sub_u32 s68, s68, s2"); a("s_and_b32 s68, s68, 7")
        a("s_lshl_b32 s68, s68, 2")
        a("v_cmp_eq_u32 vcc, 0, v0")
        a("v_mov_b32 v2, 1")
        a("s_and_saveexec_b64 s[70:71], vcc")
        a("s_cbranch_execz L_rp0")
        a("buffer_store_dword v2, off, s[64:67], s68 sc1")
        a.label("L_rp0")
        a("s_mov_b64 exec, -1")
    a("s_load_dwordx16 s[4:19], s[0:1], 0")
    a("s_load_dwordx8 s[20:27], s[0:1], 64")
    a(f"v_lshrrev_b32 v{vT[0]}, 6, v0")
    a(f"v_and_b32 v{vL}, 63, v0")
    a(f"v_readfirstlane_b32 s{sW}, v{vT[0]}")
    a(f"s_and_b32 s{sXc}, s2, 7")
    a(f"s_lshr_b32 s{sJ}, s2, 3")
    a(f"s_xor_b32 s{sW}, s{sW}, 4")
    sRb = 98; sCb = 99; sWm = 100; sWn = 101; sWl = 3
    a(f"s_and_b32 s{sRb}, s2, 3")
    a(f"s_lshl_b32 s{sRb}, s{sRb}, 2")
    a(f"s_and_b32 s{sT}, s{sJ}, 3")
    a(f"s_add_u32 s{sRb}, s{sRb}, s{sT}")
    a(f"s_lshr_b32 s{sT}, s{sXc}, 2")
    a(f"s_lshr_b32 s{sCb}, s{sJ}, 2")
    a(f"s_cmp_eq_u32 s{sCb}, 7")
    a(f"s_cselect_b32 s{sT2}, 1, 3")
    a(f"s_lshl_b32 s{sT}, s{sT}, s{sT2}")
    a(f"s_cmp_eq_u32 s{sCb}, 7")
    a(f"s_cselect_b32 s{sT2}, s{sT}, 0")
    a(f"s_cselect_b32 s{sT}, 0, s{sT}")
    a(f"s_add_u32 s{sRb}, s{sRb}, s{sT2}")
    a(f"s_add_u32 s{sCb}, s{sCb}, s{sT}")
    a(f"s_and_b32 s{sWl}, s{sW}, 3")
    a(f"s_and_b32 s{sWm}, s{sW}, 1")
    a(f"s_lshr_b32 s{sWn}, s{sWl}, 1")
    a(f"s_cmp_lt_u32 s{sW}, 4")
    a(f"s_cbranch_scc1 {L('comp')}")

    V = Alloc(VB, TOP)
    vRX = [V.get() for _ in range(4)]
    vFW = [V.get() for _ in range(2)]; vFs = V.get(); V.get(); vGs = 9
    V.get(2)
    XR = [[V.get(4, 4) for _ in range(4)] for _ in range(10)]
    FR = V.get(8, 4); FIn = V.get(8, 4)
    ZA = V.get(16, 4); ZB = V.get(16, 4)
    BF = [[V.get(4, 4) for _ in range(2)] for _ in range(3)]
    vDX = [BF[0][0] + i for i in range(4)]; vDW = [BF[0][1] + i for i in range(4)]
    sOX = sD; sOW = sD + 1; sM0 = sD + 2; sBeta = sD + 3; sSp = sE
    a(f"v_and_b32 v{vT[3]}, 7, v{vL}")
    a(f"v_lshrrev_b32 v{vT[4]}, 4, v{vL}")
    a(f"v_xor_b32 v{vT[3]}, v{vT[3]}, v{vT[4]}")
    a(f"v_lshlrev_b32 v{vT[3]}, 4, v{vT[3]}")
    a(f"v_xor_b32 v{vT[4]}, 64, v{vT[3]}")
    a(f"v_bfe_u32 v{vT[5]}, v{vL}, 3, 2")
    a(f"v_lshrrev_b32 v{vT[1]}, 5, v{vL}")
    a(f"v_lshl_add_u32 v{vT[5]}, v{vT[1]}, 3, v{vT[5]}")
    a(f"s_lshl_b32 s{sT}, s{sRb}, 1")
    a(f"s_add_u32 s{sT}, s{sT}, s{sWn}")
    a(f"s_lshl_b32 s{sT2}, s{sWm}, 5")
    a(f"s_add_u32 s{sCnt}, s{sT}, s{sT2}")
    a(f"v_lshl_add_u32 v{vT[1]}, v{vT[5]}, 6, s{sCnt}")
    a(f"v_mul_u32_u24 v{vT[1]}, 1280, v{vT[1]}")
    a(f"v_add_u32 v{vDX[0]}, v{vT[1]}, v{vT[3]}")
    a(f"v_add_u32 v{vDX[1]}, v{vT[1]}, v{vT[4]}")
    a(f"v_add_u32 v{vDX[1]}, {4*64*1280-1024}, v{vDX[1]}")
    a(f"v_add_u32 v{vDX[2]}, {16*64*1280-2048}, v{vDX[0]}")
    a(f"v_add_u32 v{vDX[3]}, {16*64*1280-2048}, v{vDX[1]}")
    a(f"v_lshrrev_b32 v{vT[0]}, 4, v{vL}")
    a(f"v_bfe_u32 v{vT[1]}, v{vL}, 2, 2")
    a(f"v_xor_b32 v{vT[1]}, v{vT[1]}, v{vT[0]}")
    a(f"v_and_b32 v{vT[2]}, 3, v{vL}")
    a(f"v_lshl_add_u32 v{vT[1]}, v{vT[1]}, 2, v{vT[2]}")
    a(f"v_lshlrev_b32 v{vT[1]}, 4, v{vT[1]}")
    a(f"s_lshl_b32 s{sT}, s{sWl}, 4")
    a(f"v_add_u32 v{vT[0]}, s{sT}, v{vT[0]}")
    a(f"v_mul_u32_u24 v{vT[0]}, 3840, v{vT[0]}")
    a(f"s_lshl_b32 s{sT}, s{sCb}, 8")
    a(f"v_add3_u32 v{vDW[0]}, v{vT[0]}, v{vT[1]}, s{sT}")
    for j in range(1, 4):
        a(f"v_add_u32 v{vDW[j]}, {j*(4*3840-1024)}, v{vDW[0]}")
    rw = 0
    for i, r in enumerate(rotx): rw |= r << (4 * i)
    a(f"s_lshl_b32 s{sT}, s{sXc}, 2")
    a(f"s_lshr_b32 s{sOX}, {hex(rw)}, s{sT}")
    a(f"s_and_b32 s{sOX}, s{sOX}, 15")
    if rin != (0, 0):
        a(f"s_and_b32 s{sT}, s{sJ}, 3")
        a(f"s_mul_i32 s{sT}, s{sT}, {rin[0]}")
        a(f"s_add_u32 s{sOX}, s{sOX}, s{sT}")
        a(f"s_lshr_b32 s{sT}, s{sJ}, 2")
        a(f"s_mul_i32 s{sT}, s{sT}, {rin[1]}")
        a(f"s_add_u32 s{sOX}, s{sOX}, s{sT}")
        a(f"s_mul_i32 s{sT}, s{sOX}, 205")
        a(f"s_lshr_b32 s{sT}, s{sT}, 11")
        a(f"s_mul_i32 s{sT}, s{sT}, 10")
        a(f"s_sub_u32 s{sOX}, s{sOX}, s{sT}")
    a(f"s_mul_i32 s{sOW}, s{sOX}, {64*3840}")
    a(f"s_lshl_b32 s{sOX}, s{sOX}, 7")
    a(f"s_lshl_b32 s{sM0}, s{sWl}, 12")
    after_kernarg()
    a(f"s_cmp_ge_u32 s{sJ}, 30")
    a(f"s_cbranch_scc1 {L('lgate')}")
    srd(a, sB, 16, 0, 640 * 3840)
    def issue(n):
        a(f"s_add_u32 m0, s{sM0}, {STAGE[n%4]}")
        a("s_nop 0")
        for j in range(4): a(f"buffer_load_dwordx4 v{vDX[j]}, s[{sA}:{sA+3}], s{sOX} offen offset:{1024*j} lds")
        a(f"s_add_u32 m0, s{sM0}, {STAGE[n%4]+0x4000}")
        a(f"s_add_u32 s{sOX}, s{sOX}, 128")
        for j in range(4): a(f"buffer_load_dwordx4 v{vDW[j]}, s[{sB}:{sB+3}], s{sOW} offen offset:{1024*j} lds")
        a(f"s_add_u32 s{sOW}, s{sOW}, {64*3840}")
        a(f"s_cmp_eq_u32 s{sOX}, 1280")
        a(f"s_cselect_b32 s{sOX}, 0, s{sOX}")
        a(f"s_cselect_b32 s{sOW}, 0, s{sOW}")
    issue(0); issue(1)
    masks()
    a(f"s_lshr_b32 s{sBeta}, s{sXc}, 2")
    a(f"s_mul_i32 s{sBeta}, s{sBeta}, 5")
    a(f"s_lshr_b32 s{sT}, s{sJ}, 2")
    a(f"s_add_u32 s{sBeta}, s{sBeta}, s{sT}")
    a(f"s_lshl_b32 s{sT}, s{sBeta}, 1")
    a(f"s_add_u32 s{sT}, s{sT}, s{sWm}")
    a(f"s_lshl_b32 s{sT}, s{sT}, 4")
    a(f"v_add_u32 v{vT[5]}, s{sT}, v{vT[5]}")
    a(f"v_mul_u32_u24 v{vT[5]}, 1280, v{vT[5]}")
    a(f"v_add_u32 v{vFW[0]}, v{vT[5]}, v{vT[3]}")
    a(f"v_add_u32 v{vFW[1]}, v{vT[5]}, v{vT[4]}")
    a(f"v_add_u32 v{vFW[1]}, {4*1280-1024}, v{vFW[1]}")
    a(f"v_add_u32 v{vFs}, {320*1280}, v{vT[3]}")
    a(f"v_and_b32 v{vT[0]}, 31, v{vL}")
    a(f"v_lshrrev_b32 v{vT[1]}, 5, v{vL}")
    a(f"v_lshlrev_b32 v{vGs}, 5, v{vT[0]}")
    a(f"v_lshl_add_u32 v{vGs}, v{vT[1]}, 4, v{vGs}")
    a(f"s_mul_i32 s{sT}, s{sCnt}, {WL.GA}")
    a(f"s_lshl_b32 s{sT2}, s{sBeta}, 11")
    a(f"s_add_u32 s{sT}, s{sT}, s{sT2}")
    a(f"v_add_u32 v{vGs}, s{sT}, v{vGs}")
    a(f"s_mul_i32 s{sCnt}, s{sCnt}, 48")
    a(f"s_lshl_b32 s{sT2}, s{sBeta}, 2")
    a(f"s_add_u32 s{sCnt}, s{sCnt}, s{sT2}")
    a(f"s_add_u32 s{sCnt}, s{sCnt}, {WL.FG}")
    nat_read_addrs(vRX, sWl, 12)
    for n in range(10):
        a(f"s_waitcnt vmcnt({8 if n < 9 else 0}) lgkmcnt(0)")
        a("s_barrier")
        for ks in range(4):
            a(f"ds_read_b128 {vr(XR[n][ks],4)}, v{vRX[ks]} offset:{STAGE[n%4] & 0xffff}")
        if n + 2 < 10: issue(n + 2)
        if n < 9 and (STAGE[n % 4] ^ STAGE[(n + 1) % 4]) & 0x10000:
            for ks in range(4): a(f"v_xor_b32 v{vRX[ks]}, 0x10000, v{vRX[ks]}")
    st.stamp("ldone")
    a(f"s_add_u32 s{sNonce}, s{sNonce}, 1")
    a(f"s_cmp_ge_u32 s{sJ}, 20")
    a(f"s_cbranch_scc1 {L('lfree')}")
    a("s_setprio 3")
    a(f"s_mov_b32 s{sGF}, s{sCnt}")
    sel_srd(sB, sWn, 10, 12, 640 * 1280)
    srd(a, sC, 10, 0, 640 * 1280)
    a(f"s_lshl_b32 s{sM0}, s{sWl}, 11")
    a(f"s_lshl_b32 s{sT}, s{sBeta}, 2")
    a(f"s_add_u32 s{sT}, s{sT}, s{sWl}")
    a(f"s_cmp_eq_u32 s{sT}, 2")
    a(f"s_cselect_b32 s{sSp}, 0xffffff00, -1")
    a(f"s_cselect_b64 vcc, -1, 0")
    a(f"s_mov_b32 s{sSp+1}, -1")
    WDB = lambda p: (0x10000 + 8192 * p) if p < 8 else 8192 * (p - 8)
    def wdma(p):
        a(f"s_add_u32 m0, s{sM0}, {WDB(p)}")
        a(f"s_mov_b64 exec, s[{sSp}:{sSp+1}]")
        a(f"buffer_load_dwordx4 v{vFW[0]}, s[{sB}:{sB+3}], s{sOX} offen lds")
        a(f"s_cbranch_vccz {L('fs%d' % p)}")
        a("s_mov_b64 exec, 0xff")
        a(f"buffer_load_dwordx4 v{vFs}, s[{sC}:{sC+3}], s{sOX} offen lds")
        a.label(L("fs%d" % p))
        a("s_mov_b64 exec, -1")
        a(f"buffer_load_dwordx4 v{vFW[1]}, s[{sB}:{sB+3}], s{sOX} offen offset:1024 lds")
        a(f"s_add_u32 s{sOX}, s{sOX}, 128")
        a(f"s_cmp_eq_u32 s{sOX}, 1280")
        a(f"s_cselect_b32 s{sOX}, 0, s{sOX}")
    def twl():
        srd(a, sB, 6, 0, 2048 * 4096)
        srd(a, sC, 8, 0, 2048 * 4096)
        a(f"buffer_load_dwordx4 {vr(FR,4)}, v{vT[2]}, s[{sB}:{sB+3}], 0 offen")
        a(f"buffer_load_dwordx4 {vr(FR+4,4)}, v{vT[2]}, s[{sB}:{sB+3}], 0 offen offset:32")
        a(f"buffer_load_dwordx4 {vr(FIn,4)}, v{vT[2]}, s[{sC}:{sC+3}], 0 offen")
        a(f"buffer_load_dwordx4 {vr(FIn+4,4)}, v{vT[2]}, s[{sC}:{sC+3}], 0 offen offset:32")
    for p in range(fsplit): wdma(p)
    a(f"v_and_b32 v{vT[2]}, 31, v{vL}")
    a(f"v_lshrrev_b32 v{vT[1]}, 5, v{vL}")
    a(f"v_lshlrev_b32 v{vT[2]}, 18, v{vT[2]}")
    a(f"v_lshl_add_u32 v{vT[2]}, v{vT[1]}, 4, v{vT[2]}")
    a(f"s_lshl_b32 s{sT}, s{sWl}, 12")
    a(f"s_sub_u32 s{sT}, 0x10000, s{sT}")
    for ks in range(4): a(f"v_add_u32 v{vRX[ks]}, s{sT}, v{vRX[ks]}")
    assert not STAGE[9 % 4] & 0x10000
    a("s_waitcnt vmcnt(0)")
    lds_inc(12)
    lds_wait("f1", 12, 4)
    st.stamp("fb0")
    if stamps: a("s_waitcnt lgkmcnt(0)")
    def rdB(s):
        p, ks = divmod(s, 4)
        if s == 32:
            for k in range(4): a(f"v_xor_b32 v{vRX[k]}, 0x10000, v{vRX[k]}")
        for part in range(2):
            a(f"ds_read_b128 {vr(BF[s%3][part],4)}, v{vRX[ks]} offset:{(WDB(p) & 0xffff) + 4096*part}")
    rdB(0); rdB(1)
    H = 4 * fsplit
    for s in range(40):
        if s == fstart and fwait: lds_wait("f0", 20, 4)
        if fstart <= s < fstart + 10 - fsplit: wdma(fsplit + s - fstart)
        if s == fstart + 10 - fsplit: twl()
        if s == H - 2:
            a("s_waitcnt vmcnt(4)")
            lds_inc(16)
            lds_wait("f2", 16, 4)
            st.stamp("fb1")
            if stamps: a("s_waitcnt lgkmcnt(0)")
        if s + 2 < 40: rdB(s + 2)
        a(f"s_waitcnt lgkmcnt({4 if s < 38 else 2*(39-s)})")
        for part, Z in enumerate((ZA, ZB)):
            c = "0" if s == 0 else vr(Z, 16)
            a(f"v_mfma_f32_32x32x16_bf16 {vr(Z,16)}, {vr(XR[s//4][s%4],4)}, {vr(BF[s%3][part],4)}, {c}")
    assert fstart + 10 - fsplit < H - 2
    lds_inc(8)
    st.stamp("fend")
    FRn = XR[0][0]; G0 = XR[1][0]; G1 = XR[2][0]; G2 = XR[3][0]; G3 = XR[4][0]; ZS = XR[5][0]
    a("s_waitcnt vmcnt(0)")
    for i in range(8):
        a(f"v_xor_b32 v{FRn+i}, 0x80008000, v{FR+i}")
        a(f"v_xor_b32 v{FIn+i}, 0x80008000, v{FIn+i}")
    for Z in (ZA, ZB):
        for i in range(8): a(f"v_cvt_pk_bf16_f32 v{Z+i}, v{Z+2*i}, v{Z+2*i+1}")
    m = lambda d, A, B, c: a(f"v_mfma_f32_32x32x16_bf16 {vr(d,16)}, {vr(A,4)}, {vr(B,4)}, {c}")
    GP = TOP - 24
    a("s_nop 0")
    a(f"s_cmp_lg_u32 s{sBeta}, 0")
    a(f"s_cbranch_scc1 {L('fn')}")
    m(G2, ZB, FR, "0"); m(G2, ZB+4, FR+4, vr(G2,16))
    m(G3, ZB, FIn, "0"); m(G3, ZB+4, FIn+4, vr(G3,16))
    a("s_mov_b32 exec_lo, 1"); a("s_mov_b32 exec_hi, 1")
    for i in range(8): a(f"v_mov_b32 v{ZB+i}, 0")
    a(f"s_mov_b64 exec, s[{sLo}:{sLo+1}]")
    a("s_nop 3")
    for i in range(4): a(f"v_mov_b32 v{GP+16+i}, 0"); a(f"v_mov_b32 v{GP+20+i}, 0")
    a(f"v_cvt_pk_bf16_f32 v{GP+16}, v{G2}, 0")
    a(f"v_cvt_pk_bf16_f32 v{GP+20}, v{G3}, 0")
    a("s_mov_b64 exec, -1")
    a.label(L("fn"))
    m(G0, ZA, FR, "0"); m(G0, ZA+4, FR+4, vr(G0,16)); m(G0, ZB, FIn, vr(G0,16)); m(G0, ZB+4, FIn+4, vr(G0,16))
    m(G1, ZB, FRn, "0"); m(G1, ZB+4, FRn+4, vr(G1,16)); m(G1, ZA, FIn, vr(G1,16)); m(G1, ZA+4, FIn+4, vr(G1,16))
    a("s_nop 7")
    for p, g in enumerate((G0, G1)):
        for i in range(8): a(f"v_cvt_pk_bf16_f32 v{GP+8*p+i}, v{g+2*i}, v{g+2*i+1}")
    def g_stores(sd):
        srd(a, sd, sWS, WL.G, WL.G_SIZE)
        a(f"s_mov_b32 s{sT2}, {64*WL.GA}")
        for p in range(2):
            for j in range(2):
                so = "0" if p == 0 else f"s{sT2}"
                a(f"buffer_store_dwordx4 {vr(GP+8*p+4*j,4)}, v{vGs}, s[{sd}:{sd+3}], {so} offen offset:{1024*j} sc1")
        a(f"s_or_b32 s{sT}, s{sXc}, s{sJ}")
        a(f"s_cmp_ge_u32 s{sT}, 4")
        a(f"s_cbranch_scc1 {L('gs1')}")
        a(f"v_add_u32 v{vGs}, {20*1024}, v{vGs}")
        a(f"s_mov_b64 exec, s[{sLo}:{sLo+1}]")
        a(f"buffer_store_dwordx4 {vr(GP+16,4)}, v{vGs}, s[{sd}:{sd+3}], 0 offen sc1")
        a(f"buffer_store_dwordx4 {vr(GP+20,4)}, v{vGs}, s[{sd}:{sd+3}], s{sT2} offen sc1")
        a("s_mov_b64 exec, -1")
        a.label(L("gs1"))
    if not gdefer: g_stores(sC)
    assert ZB + 8 <= GP
    st.stamp("gst")
    a(f"s_branch {L('att')}")
    a.label(L("lgate"))
    if gtouch:
        sel_srd(sB, sWm, 6, 8, 2048 * 4096)
        a(f"v_and_b32 v{vT[0]}, 31, v{vL}")
        a(f"v_lshlrev_b32 v{vT[0]}, 18, v{vT[0]}")
        a(f"buffer_load_dword v{vT[1]}, v{vT[0]}, s[{sB}:{sB+3}], 0 offen")
        sel_srd(sB, sWm, 10, 12, 640 * 1280)
        a(f"s_and_b32 s{sT}, s{sJ}, 1")
        a(f"s_lshl_b32 s{sT}, s{sT}, 1")
        a(f"s_add_u32 s{sT}, s{sT}, s{sWn}")
        a(f"s_mul_i32 s{sT}, s{sT}, {400*128}")
        a(f"s_lshr_b32 s{sT2}, s{sXc}, 2")
        a(f"s_mul_i32 s{sT2}, s{sT2}, {160*1280}")
        a(f"s_add_u32 s{sT}, s{sT}, s{sT2}")
        a(f"v_min_u32 v{vT[0]}, 49, v{vL}")
        a(f"v_lshlrev_b32 v{vT[0]}, 7, v{vT[0]}")
        for i in range(8):
            a(f"buffer_load_dword v{vT[1]}, v{vT[0]}, s[{sB}:{sB+3}], s{sT} offen")
            a(f"s_add_u32 s{sT}, s{sT}, {50*128}")
    masks()
    a("s_waitcnt lgkmcnt(0)")
    a("s_barrier")
    a(f"s_add_u32 s{sNonce}, s{sNonce}, 1")
    a.label(L("lfree"))
    a("s_waitcnt vmcnt(0) lgkmcnt(0)")
    lds_inc(8)
    a(f"s_branch {L('att')}")

    a.label(L("comp"))
    V = Alloc(VB, TOP)
    vRX = [V.get() for _ in range(4)]; vRW = [V.get() for _ in range(2)]
    vE = [V.get() for _ in range(8)]
    vTch = V.get(2)
    XF = [[V.get(4, 4) for _ in range(2)] for _ in range(2)]
    WF = [[V.get(4, 4) for _ in range(2)] for _ in range(2)]
    ACC = [[V.get(16, 4) for _ in range(2)] for _ in range(2)]
    PK = TOP - 32
    sMask = sD; sScale = sD + 2
    a("s_setprio 3")
    nat_read_addrs(vRX, sWm, 13)
    for x in range(2):
        for w in range(2):
            for i in range(16): a(f"v_mov_b32 v{ACC[x][w]+i}, 0")
    after_kernarg()
    masks()
    a(f"s_cmp_lg_u32 s{sW}, 0")
    a(f"s_cbranch_scc1 {L('c1')}")
    a(f"ds_write_b128 v{vCtl}, {vr(ACC[0][0],4)}")
    a(f"ds_write_b128 v{vCtl}, {vr(ACC[0][0],4)} offset:16")
    a.label(L("c1"))
    def poison(sd, pr):
        a(f"s_and_b32 s{sT}, s{sJ}, 3")
        a(f"s_lshl_b32 s{sT2}, s{sXc}, 2")
        a(f"s_add_u32 s{sT}, s{sT}, s{sT2}")
        a(f"s_and_b32 s{sCnt}, s{sT}, 1")
        a(f"s_lshr_b32 s{sT}, s{sT}, 1")
        a(f"s_mul_i32 s{sT}, s{sT}, {5*WL.PL}")
        a(f"s_add_u32 s{sT}, s{sT}, {WL.OF}")
        srd(a, sd, sWS, f"s{sT}", 5 * WL.PL)
        a(f"s_and_b32 s{sT}, s{sJ}, 28")
        a(f"s_add_u32 s{sT}, s{sT}, s{sW}")
        a(f"s_lshl_b32 s{sT}, s{sT}, 10")
        a(f"v_lshl_add_u32 v{vT[0]}, v{vL}, 4, s{sT}")
        for i in range(4): a(f"v_mov_b32 v{pr+i}, -1")
        a(f"s_mul_i32 s{sT}, s{sCnt}, {3*WL.PL}")
        a(f"buffer_store_dwordx4 {vr(pr,4)}, v{vT[0]}, s[{sd}:{sd+3}], s{sT} offen sc1")
        a(f"s_add_u32 s{sT}, s{sT}, {WL.PL}")
        a(f"buffer_store_dwordx4 {vr(pr,4)}, v{vT[0]}, s[{sd}:{sd+3}], s{sT} offen sc1")
        a(f"s_lshl_b32 s{sT}, s{sCnt}, 3")
        a(f"s_add_u32 s{sT}, s{sT}, {2*WL.PL}")
        a(f"buffer_store_dwordx2 {vr(pr,2)}, v{vT[0]}, s[{sd}:{sd+3}], s{sT} offen sc1")
    if pois == 1: poison(sC, PK)
    def mainloop(mode):
        def rdX(s, ks, x): a(f"ds_read_b128 {vr(XF[s][x],4)}, v{vRX[ks]} offset:{4096*x}")
        def rdW(s, ks, w):
            a(f"ds_read_b64_tr_b16 {vr(WF[s][w],2)}, v{vRW[w]} offset:{4096*ks}")
            a(f"ds_read_b64_tr_b16 {vr(WF[s][w]+2,2)}, v{vRW[w]} offset:{4096*ks+1024}")
        def mf(s, x, w):
            A, B = (WF[s][w], XF[s][x]) if mode == 'qk' else (XF[s][x], WF[s][w])
            a(f"v_mfma_f32_32x32x16_bf16 {vr(ACC[x][w],16)}, {vr(A,4)}, {vr(B,4)}, {vr(ACC[x][w],16)}")
        a("s_waitcnt lgkmcnt(0)")
        a("s_barrier")
        st.stamp("b0")
        if stamps: a("s_waitcnt lgkmcnt(0)")
        rdX(0, 0, 0); rdW(0, 0, 0); rdX(0, 0, 1); rdW(0, 0, 1)
        a(f"s_mov_b32 s{sCnt}, 0")
        a.raw(".p2align 5")
        a.label(L(mode + "loop"))
        for ks in range(4):
            s = ks % 2; n = 1 - s; nk = (ks + 1) % 4
            if ks < 3:
                a("s_waitcnt lgkmcnt(3)")
                mf(s, 0, 0)
                if ks == 0 and touch:
                    a(f"s_cmp_lg_u32 s{sCnt}, {tpos}")
                    a(f"s_cbranch_scc1 {L(mode+'nt')}")
                    a(f"buffer_load_dword v{vTch}, v{vTch+1}, s[{sE}:{sE+3}], 0 offen")
                    a.label(L(mode + "nt"))
            else:
                a("s_waitcnt lgkmcnt(0)")
                mf(s, 0, 0)
                a(f"s_add_u32 s{sCnt}, s{sCnt}, 1")
                a(f"s_cmp_eq_u32 s{sCnt}, 10")
                a(f"s_cbranch_scc1 {L(mode+'last')}")
                a("s_barrier")
                for r in vRX + vRW:
                    a(f"v_xor_b32 v{r}, s{sMask}, v{r}")
            rdX(n, nk, 0); rdW(n, nk, 0)
            if ks < 3: a("s_waitcnt lgkmcnt(5)")
            mf(s, 1, 0)
            rdX(n, nk, 1)
            if ks < 3: a("s_waitcnt lgkmcnt(4)")
            mf(s, 0, 1)
            rdW(n, nk, 1)
            if ks == 3: a(f"s_xor_b32 s{sMask}, s{sMask}, 0x18000")
            mf(s, 1, 1)
        a(f"s_branch {L(mode+'loop')}")
        a.label(L(mode + "last"))
        mf(1, 0, 1); mf(1, 1, 0); mf(1, 1, 1)
        lds_inc(8)
        st.stamp("aend")
        a("s_nop 1")
    a(f"s_mov_b32 s{sMask}, 0x8000")
    a(f"s_cmp_ge_u32 s{sJ}, 30")
    a(f"s_cbranch_scc1 {L('gate')}")
    a(f"s_lshl_b32 s{sAF}, s{sCb}, 4")
    a(f"s_add_u32 s{sAF}, s{sAF}, s{sRb}")
    if touch:
        sel_srd(sE, sWm, 10, 12, 640 * 1280)
        a(f"s_lshl_b32 s{sT}, s{sJ}, 1")
        a(f"s_add_u32 s{sT}, s{sT}, s{sWn}")
        a(f"s_mul_i32 s{sT}, s{sT}, {27*128}")
        a(f"s_lshr_b32 s{sT2}, s{sXc}, 2")
        a(f"s_mul_i32 s{sT2}, s{sT2}, {160*1280}")
        a(f"s_add_u32 s{sT}, s{sT}, s{sT2}")
        a(f"v_min_u32 v{vTch+1}, 26, v{vL}")
        a(f"v_lshl_add_u32 v{vTch+1}, v{vTch+1}, 7, s{sT}")
    a(f"v_bfe_u32 v{vT[0]}, v{vL}, 2, 2")
    a(f"v_lshrrev_b32 v{vT[1]}, 5, v{vL}")
    a(f"v_lshl_add_u32 v{vT[1]}, v{vT[1]}, 3, v{vT[0]}")
    a(f"v_lshlrev_b32 v{vT[1]}, 8, v{vT[1]}")
    a(f"s_lshl_b32 s{sT}, s{sWn}, 1")
    a(f"v_xor_b32 v{vT[0]}, s{sT}, v{vT[0]}")
    a(f"v_lshl_add_u32 v{vT[1]}, v{vT[0]}, 6, v{vT[1]}")
    a(f"v_bfe_u32 v{vT[0]}, v{vL}, 4, 1")
    a(f"v_lshl_add_u32 v{vT[1]}, v{vT[0]}, 5, v{vT[1]}")
    a(f"v_add_u32 v{vT[1]}, 0x4000, v{vT[1]}")
    a(f"v_and_b32 v{vT[4]}, 31, v{vL}")
    a(f"v_lshrrev_b32 v{vT[5]}, 5, v{vL}")
    a(f"s_cmp_ge_u32 s{sCb}, 10")
    a(f"s_cbranch_scc1 {L('v')}")
    a(f"v_and_b32 v{vT[0]}, 1, v{vL}")
    a(f"v_lshl_add_u32 v{vT[1]}, v{vT[0]}, 4, v{vT[1]}")
    a(f"v_bfe_u32 v{vT[0]}, v{vL}, 1, 1")
    a(f"v_lshl_add_u32 v{vRW[0]}, v{vT[0]}, 3, v{vT[1]}")
    a(f"v_xor_b32 v{vRW[1]}, 64, v{vRW[0]}")
    a(f"s_cmp_ge_u32 s{sCb}, 5")
    a(f"s_cselect_b32 s{sScale}, 1.0, {hex(QSCALE)}")
    a(f"s_mov_b32 s{sScale+1}, s{sScale}")
    srd(a, sC, sWS, WL.QF, 160 * WL.PL)
    a(f"s_lshl_b32 s{sT}, s{sCb}, 1")
    a(f"s_add_u32 s{sT}, s{sT}, s{sWn}")
    a(f"s_lshl_b32 s{sT}, s{sT}, 18")
    a(f"s_lshl_b32 s{sT2}, s{sRb}, 1")
    a(f"s_add_u32 s{sT2}, s{sT2}, s{sWm}")
    a(f"s_lshl_b32 s{sT2}, s{sT2}, 10")
    a(f"s_add_u32 s{sT}, s{sT}, s{sT2}")
    a(f"v_lshlrev_b32 v{vE[0]}, 15, v{vT[5]}")
    a(f"v_lshl_add_u32 v{vE[0]}, v{vT[4]}, 4, v{vE[0]}")
    a(f"v_add_u32 v{vE[0]}, s{sT}, v{vE[0]}")
    for e in range(1, 4): a(f"v_add_u32 v{vE[e]}, {e*2*WL.PL}, v{vE[0]}")
    mainloop('qk')
    for x in range(2):
        for w in range(2):
            acc = ACC[x][w]; pk = PK + 8 * (2 * x + w)
            for i in range(0, 16, 2): a(f"v_pk_mul_f32 {vr(acc+i,2)}, {vr(acc+i,2)}, s[{sScale}:{sScale+1}]")
            for i in range(8): a(f"v_cvt_pk_bf16_f32 v{pk+i}, v{acc+2*i}, v{acc+2*i+1}")
            for j in range(2):
                a(f"buffer_store_dwordx4 {vr(pk+4*j,4)}, v{vE[2*w+j]}, s[{sC}:{sC+3}], 0 offen offset:{512*x} sc1")
    a(f"s_branch {L('adone')}")
    a.label(L("v"))
    a(f"v_and_b32 v{vT[0]}, 3, v{vL}")
    a(f"v_lshl_add_u32 v{vRW[0]}, v{vT[0]}, 3, v{vT[1]}")
    a(f"v_xor_b32 v{vRW[1]}, 64, v{vRW[0]}")
    srd(a, sC, sWS, WL.VF, 64 * WL.VT)
    a(f"s_lshl_b32 s{sT}, s{sRb}, 1")
    a(f"s_add_u32 s{sT}, s{sT}, s{sWm}")
    a(f"s_mul_i32 s{sT}, s{sT}, {2*WL.VT}")
    a(f"s_sub_u32 s{sT2}, s{sCb}, 10")
    a(f"s_lshl_b32 s{sT2}, s{sT2}, 1")
    a(f"s_add_u32 s{sT2}, s{sT2}, s{sWn}")
    a(f"s_lshl_b32 s{sT2}, s{sT2}, 10")
    a(f"s_add_u32 s{sT}, s{sT}, s{sT2}")
    a(f"v_mul_u32_u24 v{vE[0]}, 10240, v{vT[5]}")
    a(f"v_lshl_add_u32 v{vE[0]}, v{vT[4]}, 4, v{vE[0]}")
    a(f"v_add_u32 v{vE[0]}, s{sT}, v{vE[0]}")
    for e in range(1, 4): a(f"v_add_u32 v{vE[e]}, {e*20480}, v{vE[0]}")
    mainloop('v')
    for x in range(2):
        for w in range(2):
            acc = ACC[x][w]; pk = PK + 8 * (2 * x + w)
            for i in range(8): a(f"v_cvt_pk_bf16_f32 v{pk+i}, v{acc+2*i}, v{acc+2*i+1}")
            for j in range(2):
                a(f"buffer_store_dwordx4 {vr(pk+4*j,4)}, v{vE[2*x+j]}, s[{sC}:{sC+3}], 0 offen offset:{512*w} sc1")
    a(f"s_branch {L('adone')}")
    a.label(L("gate"))
    GW = 40; GX = 60
    assert vTch + 2 <= GW and GX + 160 <= PK
    srd(a, sB, 20, 0, 1280)
    srd(a, sC, sWS, WL.GATE, 2048 * 8)
    a(f"v_and_b32 v{vT[0]}, 15, v{vL}")
    a(f"v_lshlrev_b32 v{vT[0]}, 4, v{vT[0]}")
    a(f"s_and_b32 s{sAF}, s{sXc}, 3")
    a(f"s_lshl_b32 s{sAF}, s{sAF}, 2")
    a(f"s_lshr_b32 s{sT}, s{sXc}, 2")
    a(f"s_lshl_b32 s{sT}, s{sT}, 1")
    a(f"s_add_u32 s{sAF}, s{sAF}, s{sT}")
    a(f"s_add_u32 s{sAF}, s{sAF}, s{sJ}")
    a(f"s_sub_u32 s{sAF}, s{sAF}, 30")
    a(f"s_lshl_b32 s{sT}, s{sAF}, 1")
    a(f"s_add_u32 s{sT}, s{sT}, s{sWn}")
    a(f"s_add_u32 s{sAF}, s{sAF}, 240")
    a(f"s_lshl_b32 s{sT2}, s{sWm}, 5")
    a(f"v_lshrrev_b32 v{vT[5]}, 4, v{vL}")
    a(f"s_add_u32 s{sCnt}, s{sT}, s{sT2}")
    a(f"v_lshl_add_u32 v{vT[2]}, v{vT[5]}, 6, s{sCnt}")
    a(f"v_mul_u32_u24 v{vT[2]}, 1280, v{vT[2]}")
    a(f"v_add_u32 v{vT[2]}, v{vT[2]}, v{vT[0]}")
    a(f"s_lshl_b32 s{sT}, s{sT}, 6")
    a(f"s_add_u32 s{sT}, s{sT}, s{sT2}")
    a(f"v_add_u32 v{vT[5]}, s{sT}, v{vT[5]}")
    a(f"v_lshlrev_b32 v{vT[5]}, 3, v{vT[5]}")
    a(f"v_cmp_eq_u32 vcc, 0, v{vT[0]}")
    a("s_waitcnt lgkmcnt(0)")
    a("s_barrier")
    for p in range(5):
        a(f"buffer_load_dwordx4 {vr(GW+4*p,4)}, v{vT[0]}, s[{sB}:{sB+3}], 0 offen offset:{256*p}")
    for r in range(8):
        b4 = (r & 4) * 4 + (r & 1) * 8 + (r & 2) * 2
        a(f"s_mov_b32 s{sT}, {b4*64*1280}")
        for p in range(5):
            a(f"buffer_load_dwordx4 {vr(GX+20*r+4*p,4)}, v{vT[2]}, s[{sA}:{sA+3}], s{sT} offen offset:{256*p}")
        a(f"v_mov_b32 v{vE[r]}, 0")
    for r in range(8):
        a(f"s_waitcnt vmcnt({35-5*r})")
        for i in range(20):
            a(f"v_dot2c_f32_bf16 v{vE[r]}, v{GX+20*r+i}, v{GW+i}")
    a("s_nop 3")
    for sh in (8, 4, 2, 1):
        for r in range(8):
            a(f"v_add_f32_dpp v{vE[r]}, v{vE[r]}, v{vE[r]} row_ror:{sh} row_mask:0xf bank_mask:0xf")
    GO = PK
    for r in range(8): a(f"v_cvt_pk_bf16_f32 v{vE[r]}, 0, v{vE[r]}")
    for r in range(8): a(f"v_mul_f32 v{vE[r]}, 0xbfb8aa3b, v{vE[r]}")
    for r in range(8): a(f"v_exp_f32 v{vE[r]}, v{vE[r]}")
    for r in range(8): a(f"v_add_f32 v{vE[r]}, 1.0, v{vE[r]}")
    for r in range(8): a(f"v_rcp_f32 v{vE[r]}, v{vE[r]}")
    for r in range(8): a(f"v_cvt_pk_bf16_f32 v{GO+2*r}, 0, v{vE[r]}")
    for r in range(8): a(f"v_sub_f32 v{GO+2*r+1}, 1.0, v{GO+2*r}")
    for r in range(8): a(f"v_cvt_pk_bf16_f32 v{GO+2*r+1}, 0, v{GO+2*r+1}")
    a("s_mov_b64 exec, vcc")
    for r in range(8):
        a(f"buffer_store_dwordx2 {vr(GO+2*r,2)}, v{vT[5]}, s[{sC}:{sC+3}], 0 offen offset:{32*r} sc1")
    a("s_mov_b64 exec, -1")
    lds_inc(8)
    a.label(L("adone"))
    if pois == 2: poison(sC, XF[0][0])
    if fwait: lds_inc(20)
    st.stamp("ast")
    a(f"s_add_u32 s{sNonce}, s{sNonce}, 1")
    a(f"s_lshl_b32 s{sAF}, s{sAF}, 7")
    a(f"s_add_u32 s{sAF}, s{sAF}, {WL.FA}")

    a.label(L("att"))
    V = Alloc(VB, TOP)
    vKm = V.get(); vKr = V.get(); vV0 = V.get(); vV1 = V.get(); vM = V.get(); vWo = V.get()
    Qm = [V.get(4, 4) for _ in range(2)]
    Qr = [V.get(2) for _ in range(2)]
    Km = [V.get(4, 4) for _ in range(4)]
    Kr = [V.get(2) for _ in range(4)]
    Vb = [[V.get(4, 4) for _ in range(2)] for _ in range(4)]
    P = V.get(8, 4)
    S = [V.get(16, 4) for _ in range(2)]
    O = [V.get(16, 4) for _ in range(2)]
    K0m = V.get(4, 4); K0r = V.get(2)
    vG = V.get(2); vO = V.get(); vSt = V.get(); vGd = V.get(); vWs = V.get(); vX0 = V.get(); vX1 = V.get(); vGt = V.get(); vDum = V.get()
    WsF = [V.get(4, 4) for _ in range(2)]
    GFl = V.get(12, 4)
    att_hi = V.p
    assert att_hi <= TOP - 32
    OFr = [V.get(4, 4) for _ in range(10)]
    AC = [V.get(4, 4) for _ in range(5)]
    sK = sA; sV = sB; sQ = sC; sWo = sD
    sHead = 98; sQb = 99; sKh = 100; sOK = 101; sOV = 14; sOWo = 15; sM0 = 3; sPar = sE; sHp = sE + 1; sStep = sE + 2; sU0 = sE + 3
    sCc = sHead; sEb8 = sQb; sMs = sPar; sStep2 = sAF
    a(f"s_and_b32 s{sT}, s{sJ}, 3")
    a(f"s_lshl_b32 s{sHead}, s{sXc}, 2")
    a(f"s_add_u32 s{sHead}, s{sHead}, s{sT}")
    a(f"s_lshr_b32 s{sQb}, s{sJ}, 2")
    a(f"s_lshr_b32 s{sKh}, s{sW}, 2")
    a(f"s_and_b32 s{sPar}, s{sHead}, 1")
    a(f"s_lshr_b32 s{sHp}, s{sHead}, 1")
    a(f"s_mul_i32 s{sHp}, s{sHp}, {5*WL.PL}")
    a(f"v_and_b32 v{vT[0]}, 31, v{vL}")
    a(f"v_lshrrev_b32 v{vT[1]}, 5, v{vL}")
    a(f"s_mul_i32 s{sT}, s{sPar}, {3*WL.PL}")
    a(f"v_lshlrev_b32 v{vKm}, 15, v{vT[1]}")
    a(f"v_lshl_add_u32 v{vKm}, v{vT[0]}, 4, v{vKm}")
    a(f"v_add_u32 v{vKm}, s{sT}, v{vKm}")
    a(f"s_lshl_b32 s{sT}, s{sPar}, 3")
    a(f"s_add_u32 s{sT}, s{sT}, {2*WL.PL}")
    a(f"v_lshl_add_u32 v{vKr}, v{vT[0]}, 4, s{sT}")
    a(f"v_and_b32 v{vT[2]}, 0x13, v{vT[0]}")
    a(f"v_bfe_u32 v{vT[3]}, v{vT[0]}, 2, 1")
    a(f"v_lshl_add_u32 v{vT[2]}, v{vT[3]}, 3, v{vT[2]}")
    a(f"v_bfe_u32 v{vT[3]}, v{vT[0]}, 3, 1")
    a(f"v_lshl_add_u32 v{vT[2]}, v{vT[3]}, 2, v{vT[2]}")
    a(f"v_and_b32 v{vT[5]}, 15, v{vT[2]}")
    a(f"s_lshl_b32 s{sT}, s{sPar}, 2")
    a(f"v_add_u32 v{vT[2]}, s{sT}, v{vT[2]}")
    a(f"v_subrev_u32 v{vT[3]}, 20, v{vT[2]}")
    a(f"v_min_u32 v{vT[2]}, v{vT[2]}, v{vT[3]}")
    a(f"s_mul_i32 s{sT}, s{sHead}, 320")
    a(f"v_mul_u32_u24 v{vV0}, 10240, v{vT[1]}")
    a(f"v_lshl_add_u32 v{vV0}, v{vT[2]}, 4, v{vV0}")
    a(f"v_add_u32 v{vV0}, s{sT}, v{vV0}")
    a(f"v_add_u32 v{vV1}, 20480, v{vV0}")
    a(f"s_add_u32 s{sT}, s{sHp}, {WL.KF}")
    srd(a, sK, sWS, f"s{sT}", 5 * WL.PL)
    srd(a, sV, sWS, WL.VF, 64 * WL.VT)
    a(f"s_add_u32 s{sT}, s{sHp}, {WL.QF}")
    srd(a, sQ, sWS, f"s{sT}", 5 * WL.PL)
    a(f"s_lshl_b32 s{sOK}, s{sKh}, 14")
    a(f"s_mul_i32 s{sOV}, s{sKh}, {32*WL.VT}")
    a(f"s_lshl_b32 s{sU0}, s{sQb}, 2")
    a(f"s_and_b32 s{sT}, s{sW}, 3")
    a(f"s_add_u32 s{sU0}, s{sU0}, s{sT}")
    a(f"s_lshl_b32 s{sU0}, s{sU0}, 10")
    for r in [K0r] + Kr:
        a(f"v_mov_b32 v{r}, 0x3f803f80")
        a(f"v_mov_b32 v{r+1}, 0x3f80")
    for q in range(2):
        a(f"v_mov_b32 v{Qr[q]}, 0"); a(f"v_mov_b32 v{Qr[q]+1}, 0")
    a(f"v_cmp_eq_u32 vcc, 20, v{vT[0]}")
    a(f"v_mov_b32 v{vT[2]}, 0x3f803f80")
    a(f"v_mov_b32 v{vT[3]}, 0")
    a(f"v_cndmask_b32 v{vT[2]}, v{vT[3]}, v{vT[2]}, vcc")
    for b in range(4):
        for j in range(2):
            for i in range(4): a(f"v_mov_b32 v{Vb[b][j]+i}, v{vT[2]}")
    for q in range(2):
        for i in range(16): a(f"v_mov_b32 v{O[q]+i}, 0")
    for i in range(8): a(f"v_mov_b32 v{P+i}, 0")
    a(f"v_and_b32 v{vT[0]}, 15, v{vL}")
    a(f"v_lshrrev_b32 v{vT[1]}, 4, v{vL}")
    a(f"s_and_b32 s{sT}, s{sW}, 3")
    a(f"s_lshl_b32 s{sT}, s{sT}, 4")
    a(f"s_lshl_b32 s{sT2}, s{sCc}, 6")
    a(f"s_add_u32 s{sT}, s{sT}, s{sT2}")
    a(f"v_add_u32 v{vT[2]}, s{sT}, v{vT[0]}")
    a(f"s_and_b32 s{sT}, s{sW}, 1")
    a(f"s_lshl_b32 s{sT}, s{sT}, 10")
    a(f"s_and_b32 s{sT2}, s{sW}, 2")
    a(f"s_lshl_b32 s{sT2}, s{sT2}, 4")
    a(f"s_add_u32 s{sT}, s{sT}, s{sT2}")
    a(f"s_add_u32 s{sT}, s{sT}, s{sCc}")
    a(f"v_lshl_add_u32 v{vT[0]}, v{vT[5]}, 6, s{sT}")
    a(f"v_lshlrev_b32 v{vWs}, 12, v{vT[0]}")
    a(f"v_lshl_add_u32 v{vWs}, v{vT[1]}, 4, v{vWs}")
    a(f"v_lshlrev_b32 v{vGt}, 3, v{vT[2]}")
    a(f"v_lshlrev_b32 v{vO}, 4, v{vT[2]}")
    a(f"v_lshl_add_u32 v{vO}, v{vT[1]}, 15, v{vO}")
    a(f"s_mul_i32 s{sT}, s{sKh}, {40*WL.PL}")
    a(f"v_add_u32 v{vO}, s{sT}, v{vO}")
    a(f"v_mul_u32_u24 v{vSt}, 1280, v{vT[0]}")
    a(f"v_lshl_add_u32 v{vSt}, v{vT[1]}, 3, v{vSt}")
    a(f"s_mul_i32 s{sT}, s{sEb8}, 160")
    a(f"v_add_u32 v{vSt}, s{sT}, v{vSt}")
    a(f"v_mul_u32_u24 v{vT[2]}, 205, v{vL}")
    a(f"v_lshrrev_b32 v{vT[2]}, 11, v{vT[2]}")
    a(f"v_mul_u32_u24 v{vWo}, {1280-160}, v{vT[2]}")
    a(f"v_lshl_add_u32 v{vWo}, v{vL}, 4, v{vWo}")
    a(f"v_add_u32 v{vWo}, s{sT}, v{vWo}")
    a(f"v_mul_u32_u24 v{vT[2]}, 187, v{vL}")
    a(f"v_lshrrev_b32 v{vT[2]}, 11, v{vT[2]}")
    a(f"v_mul_u32_u24 v{vT[3]}, 11, v{vT[2]}")
    a(f"v_sub_u32 v{vT[3]}, v{vL}, v{vT[3]}")
    a(f"v_mul_u32_u24 v{vGd}, {WL.GA}, v{vT[2]}")
    a(f"v_lshrrev_b32 v{vT[2]}, 1, v{vT[3]}")
    a(f"v_lshl_add_u32 v{vGd}, v{vT[2]}, 10, v{vGd}")
    a(f"v_and_b32 v{vT[3]}, 1, v{vT[3]}")
    a(f"v_lshl_add_u32 v{vGd}, v{vT[3]}, 4, v{vGd}")
    a(f"s_sub_u32 s{sT}, 7, s{sEb8}")
    a(f"s_sub_u32 s{sT2}, 32, s{sCc}")
    a(f"s_and_b32 s{sT2}, s{sT2}, 31")
    a(f"s_cmp_lt_u32 s{sEb8}, 4")
    a(f"s_cselect_b32 s{sT}, s{sEb8}, s{sT}")
    a(f"s_cselect_b32 s{sT2}, s{sCc}, s{sT2}")
    a(f"s_mul_i32 s{sT}, s{sT}, 5120")
    a(f"s_lshl_b32 s{sT2}, s{sT2}, 5")
    a(f"s_add_u32 s{sT}, s{sT}, s{sT2}")
    a(f"v_add_u32 v{vGd}, s{sT}, v{vGd}")
    def dma_params(pitch_g, pitch_l, steps_half, lbase):
        a(f"s_and_b32 s{sT}, s{sW}, 3")
        a(f"s_mul_i32 s{sT2}, s{sKh}, {8*steps_half}")
        a(f"s_add_u32 s{sM0}, s{sT}, s{sT2}")
        a(f"s_mul_i32 s{sM0}, s{sM0}, {4*pitch_l}")
        if lbase: a(f"s_add_u32 s{sM0}, s{sM0}, {lbase}")
        a(f"s_lshl_b32 s{sT}, s{sT}, 1")
        a(f"s_add_u32 s{sOWo}, s{sT}, s{sT2}")
        a(f"s_mul_i32 s{sOWo}, s{sOWo}, {4*pitch_g}")
        a(f"s_mov_b32 s{sStep}, {4*pitch_g}")
        a(f"s_mov_b32 s{sStep2}, {28*pitch_g}")
        a(f"s_mov_b32 s{sMs}, {16*pitch_l}")
    srd(a, sWo, 18, 0, 640 * 1280)
    a(f"s_mul_i32 s{sT}, s{sW}, 3072")
    a(f"s_add_u32 s{sT}, s{sT}, {LDS_X}")
    a(f"v_lshl_add_u32 v{vX0}, v{vL}, 4, s{sT}")
    a(f"s_xor_b32 s{sT}, s{sW}, 4")
    a(f"s_mul_i32 s{sT}, s{sT}, 3072")
    a(f"s_add_u32 s{sT}, s{sT}, {LDS_X}")
    a(f"v_lshl_add_u32 v{vX1}, v{vL}, 4, s{sT}")
    a(f"s_cmp_eq_u32 s{sAF}, 0")
    a(f"s_cbranch_scc1 {L('nsig')}")
    a(f"v_mov_b32 v{vT[0]}, 1")
    a("s_waitcnt vmcnt(0)")
    a("s_mov_b64 exec, 1")
    a(f"ds_add_rtn_u32 v{vT[1]}, v{vCtl}, v{vT[0]} offset:4")
    a("s_mov_b64 exec, -1")
    a("s_waitcnt lgkmcnt(0)")
    a(f"v_readfirstlane_b32 s{sT}, v{vT[1]}")
    a("s_nop 1")
    a(f"s_cmp_lg_u32 s{sT}, 3")
    a(f"s_cbranch_scc1 {L('nsig2')}")
    put_flag(f"s{sAF}")
    st.stamp("aflag")
    a.label(L("nsig2"))
    if pois == 3:
        lds_wait("wp", 4, 4)
        poison(sD, GFl)
        srd(a, sWo, 18, 0, 640 * 1280)
    a.label(L("nsig"))
    dma_params(1280, 160, 10, 0)
    def aux_loads():
        if pois == 4:
            a(f"s_cmp_lg_u32 s{sKh}, 0")
            a(f"s_cbranch_scc1 {L('np4')}")
            poison(sD, GFl)
            a(f"s_mov_b32 s{sCnt}, 6")
            a.label(L("np4"))
        if gdefer == 1:
            a(f"s_cmp_eq_u32 s{sGF}, 0")
            a(f"s_cbranch_scc1 {L('gs2')}")
            g_stores(sD)
            a.label(L("gs2"))
        sel_srd(sD, sKh, 6, 8, 2048 * 4096)
        a(f"buffer_load_dwordx4 {vr(WsF[0],4)}, v{vWs}, s[{sD}:{sD+3}], 0 offen")
        a(f"buffer_load_dwordx4 {vr(WsF[1],4)}, v{vWs}, s[{sD}:{sD+3}], 0 offen offset:64")
        srd(a, sWo, 18, 0, 640 * 1280)
        if wotouch:
            a(f"s_lshl_b32 s{sT}, s{sJ}, 3")
            a(f"s_add_u32 s{sT}, s{sT}, s{sW}")
            a(f"s_mul_i32 s{sT}, s{sT}, {25*128}")
            a(f"v_min_u32 v{vT[0]}, 24, v{vL}")
            a(f"v_lshlrev_b32 v{vT[0]}, 7, v{vT[0]}")
            a(f"buffer_load_dword v{vDum}, v{vT[0]}, s[{sWo}:{sWo+3}], s{sT} offen")
    a(f"s_cmp_eq_u32 s{sW}, 0")
    a(f"s_cbranch_scc1 {L('poll')}")
    lds_wait("wa", 0, 1)
    a(f"s_branch {L('go')}")
    a.label(L("poll"))
    a(f"s_mul_i32 s{sT}, s{sHead}, 20")
    a(f"v_bfe_u32 v{vT[0]}, v{vL}, 4, 1")
    a(f"v_mul_u32_u24 v{vT[0]}, 19, v{vT[0]}")
    a(f"v_add_u32 v{vT[0]}, s{sT}, v{vT[0]}")
    a(f"v_lshrrev_b32 v{vT[0]}, 7, v{vT[0]}")
    a(f"v_lshrrev_b32 v{vT[1]}, 5, v{vL}")
    a(f"v_mul_u32_u24 v{vT[1]}, 5, v{vT[1]}")
    a(f"v_add3_u32 v{vT[1]}, v{vT[1]}, v{vT[0]}, 5")
    a(f"v_and_b32 v{vT[2]}, 15, v{vL}")
    a(f"v_lshl_add_u32 v{vT[1]}, v{vT[1]}, 4, v{vT[2]}")
    a(f"v_lshlrev_b32 v{vT[1]}, 7, v{vT[1]}")
    a(f"s_lshl_b32 s{sT}, s{sQb}, 1")
    a(f"v_and_b32 v{vT[2]}, 1, v{vL}")
    a(f"v_lshl_add_u32 v{vT[0]}, v{vT[0]}, 4, v{vT[2]}")
    a(f"v_add_u32 v{vT[0]}, s{sT}, v{vT[0]}")
    a(f"v_lshlrev_b32 v{vT[0]}, 7, v{vT[0]}")
    a(f"s_mov_b32 s{sT2}, {WL.FA}")
    spin_begin("pa")
    a(f"buffer_load_dword v{vT[2]}, v{vT[1]}, s[{sFl}:{sFl+3}], s{sT2} offen sc1")
    a(f"buffer_load_dword v{vT[3]}, v{vT[0]}, s[{sFl}:{sFl+3}], s{sT2} offen sc1")
    a("s_waitcnt vmcnt(0)")
    for i in range(2): a(f"v_xor_b32 v{vT[2]+i}, s{sNonce}, v{vT[2]+i}")
    a(f"v_or_b32 v{vT[2]}, v{vT[2]}, v{vT[3]}")
    a(f"v_cmp_ne_u32 vcc, 0, v{vT[2]}")
    a("s_nop 1")
    a("s_cmp_eq_u64 vcc, 0")
    a(f"s_cbranch_scc1 {L('pad')}")
    spin_end("pa", psleep)
    a.label(L("pad"))
    a(f"v_mov_b32 v{vT[0]}, 1")
    a(f"ds_write_b32 v{vCtl}, v{vT[0]}")
    a.label(L("go"))
    st.stamp("ardy")
    a(f"buffer_load_dwordx4 {vr(K0m,4)}, v{vKm}, s[{sK}:{sK+3}], 0 offen sc1")
    a(f"buffer_load_dwordx4 {vr(Qm[0],4)}, v{vKm}, s[{sQ}:{sQ+3}], s{sU0} offen sc1")
    a(f"buffer_load_dwordx4 {vr(Qm[1],4)}, v{vKm}, s[{sQ}:{sQ+3}], s{sU0} offen offset:512 sc1")
    a(f"s_mov_b64 exec, s[{sLo}:{sLo+1}]")
    a(f"buffer_load_dwordx2 {vr(K0r,2)}, v{vKr}, s[{sK}:{sK+3}], 0 offen sc1")
    a(f"buffer_load_dwordx2 {vr(Qr[0],2)}, v{vKr}, s[{sQ}:{sQ+3}], s{sU0} offen sc1")
    a(f"buffer_load_dwordx2 {vr(Qr[1],2)}, v{vKr}, s[{sQ}:{sQ+3}], s{sU0} offen offset:512 sc1")
    a(f"buffer_load_dwordx2 {vr(Kr[0],2)}, v{vKr}, s[{sK}:{sK+3}], s{sOK} offen sc1")
    a("s_mov_b64 exec, -1")
    a(f"buffer_load_dwordx4 {vr(Km[0],4)}, v{vKm}, s[{sK}:{sK+3}], s{sOK} offen sc1")
    SC = ' sc1' if kvsc1 else ''
    def ex(m, inloop):
        if inloop and noexec: return
        a(f"s_mov_b64 exec, s[{m}:{m+1}]" if m is not None else "s_mov_b64 exec, -1")
    def ldKr(kb, koff): a(f"buffer_load_dwordx2 {vr(Kr[kb],2)}, v{vKr}, s[{sK}:{sK+3}], s{sOK} offen offset:{koff}{SC}")
    def ldKm(kb, koff): a(f"buffer_load_dwordx4 {vr(Km[kb],4)}, v{vKm}, s[{sK}:{sK+3}], s{sOK} offen offset:{koff}{SC}")
    def ldV(vb, j): a(f"buffer_load_dwordx4 {vr(Vb[vb][j],4)}, v{vV0+j}, s[{sV}:{sV+3}], s{sOV} offen{SC}")
    def group(kb, vb, koff, inloop=False):
        if inloop and noload: return
        ex(sLo, inloop); ldKr(kb, koff)
        ex(sVm, inloop); ldV(vb, 0); ldV(vb, 1)
        ex(None, inloop); ldKm(kb, koff)
        a(f"s_add_u32 s{sOV}, s{sOV}, {WL.VT}")
    group(1, 0, 512)
    a("s_waitcnt vmcnt(6)")
    st.stamp("qld")
    for q in range(2):
        a(f"v_mfma_f32_32x32x16_bf16 {vr(S[q],16)}, {vr(K0m,4)}, {vr(Qm[q],4)}, 0")
    group(2, 1, 1024)
    a("s_nop 1")
    for q in range(2):
        a(f"v_mfma_f32_32x32x8_bf16 {vr(S[q],16)}, {vr(K0r,2)}, {vr(Qr[q],2)}, {vr(S[q],16)}")
    group(3, 2, 1536)
    a("s_nop 3")
    for q in range(2):
        a(f"v_max3_f32 v{S[q]}, v{S[q]}, v{S[q]+1}, v{S[q]+2}")
        for i in range(3, 15, 2):
            a(f"v_max3_f32 v{S[q]}, v{S[q]}, v{S[q]+i}, v{S[q]+i+1}")
        a(f"v_max_f32 v{S[q]}, v{S[q]}, v{S[q]+15}")
    a(f"s_mov_b64 exec, s[{sHi}:{sHi+1}]")
    for q in range(2):
        a(f"v_cvt_pk_bf16_f32 v{Qr[q]}, -v{S[q]}, 0")
    a("s_mov_b64 exec, -1")
    a("s_waitcnt vmcnt(12)")
    a(f"v_mfma_f32_32x32x16_bf16 {vr(S[0],16)}, {vr(Km[0],4)}, {vr(Qm[0],4)}, 0")
    a(f"s_add_u32 s{sT}, s{sHp}, {WL.OF}")
    srd(a, sQ, sWS, f"s{sT}", 5 * WL.PL)
    a("s_nop 3")
    a(f"v_mfma_f32_32x32x8_bf16 {vr(S[0],16)}, {vr(Kr[0],2)}, {vr(Qr[0],2)}, {vr(S[0],16)}")
    if gdefer == 2:
        a(f"s_cmp_eq_u32 s{sGF}, 0")
        a(f"s_cbranch_scc1 {L('gs2')}")
        g_stores(sD)
        a.label(L("gs2"))
    a(f"s_mov_b32 s{sCnt}, 7")
    a("s_mov_b64 vcc, 0")
    a("s_setprio 3")
    st.stamp("lbeg")
    def exp(q, i): a(f"v_exp_f32 v{S[q]+i}, v{S[q]+i}")
    def cvt(q, i): a(f"v_cvt_pk_bf16_f32 v{P+i}, v{S[q]+2*i}, v{S[q]+2*i+1}")
    def slot(kt, q):
        nq = 1 - q
        nk = (kt + q) % 4
        pk = (kt + q - 1) % 4
        a(f"v_mfma_f32_32x32x16_bf16 {vr(S[nq],16)}, {vr(Km[nk],4)}, {vr(Qm[nq],4)}, 0")
        if spread and q == 0:
            ex(sVm, True); ldV((kt - 1) % 4, 0); ex(None, True)
        for i in range(0, 4): exp(q, i)
        a(f"v_mfma_f32_32x32x16_bf16 {vr(O[nq],16)}, {vr(Vb[pk][1],4)}, {vr(P+4,4)}, {vr(O[nq],16)}")
        if spread and q == 0:
            ex(sVm, True); ldV((kt - 1) % 4, 1); ex(None, True)
            a(f"s_add_u32 s{sOV}, s{sOV}, {WL.VT}")
        for i in range(4, 8): exp(q, i)
        cvt(q, 0)
        a(f"v_mfma_f32_32x32x8_bf16 {vr(S[nq],16)}, {vr(Kr[nk],2)}, {vr(Qr[nq],2)}, {vr(S[nq],16)}")
        if q == 0:
            if spread:
                ex(sLo, True); ldKr(kt, 512 * (kt + 4)); ex(None, True)
            else:
                group(kt, (kt - 1) % 4, 512 * (kt + 4), True)
            if kt == 0:
                a(f"s_cmp_eq_u32 s{sCnt}, 0")
                a(f"s_cselect_b32 s{sV+2}, 0, s{sV+2}")
        else:
            a(f"s_cbranch_vccz {L('nd%d' % kt)}")
            a(f"s_mov_b32 m0, s{sM0}")
            a(f"s_mov_b64 exec, s[{sDm}:{sDm+1}]")
            a(f"buffer_load_dwordx4 v{vWo}, s[{sWo}:{sWo+3}], s{sOWo} offen sc1 lds")
            a("s_mov_b64 exec, -1")
            a(f"s_add_u32 s{sM0}, s{sM0}, s{sMs}")
            a(f"s_add_u32 s{sOWo}, s{sOWo}, s{sStep2 if kt % 2 else sStep}")
            a.label(L("nd%d" % kt))
        for i in range(1, 4): cvt(q, i)
        for i in range(8, 12): exp(q, i)
        if q == 0 and not nowait: a("s_waitcnt vmcnt(%d)" % (11 if spread else 12))
        a(f"v_mfma_f32_32x32x16_bf16 {vr(O[q],16)}, {vr(Vb[kt][0],4)}, {vr(P,4)}, {vr(O[q],16)}")
        if spread and q == 0: ldKm(kt, 512 * (kt + 4))
        for i in range(12, 16): exp(q, i)
        for i in range(4, 8): cvt(q, i)
    def gfl_loads():
        a(f"v_mul_u32_u24 v{vT[0]}, 48, v{vL}")
        a(f"buffer_load_dwordx4 {vr(GFl,4)}, v{vT[0]}, s[{sFl}:{sFl+3}], 0 offen offset:{WL.FG} sc1")
        a(f"buffer_load_dwordx4 {vr(GFl+4,4)}, v{vT[0]}, s[{sFl}:{sFl+3}], 0 offen offset:{WL.FG+16} sc1")
        a(f"buffer_load_dwordx2 {vr(GFl+8,2)}, v{vT[0]}, s[{sFl}:{sFl+3}], 0 offen offset:{WL.FG+32} sc1")
        a(f"s_lshr_b32 s{sT}, s{sCc}, 1")
        a(f"s_lshr_b32 s{sT2}, s{sU0}, 11")
        a(f"v_mov_b32 v{vT[0]}, s{sT}")
        a(f"s_mov_b64 exec, s[{sHi}:{sHi+1}]")
        a(f"v_mov_b32 v{vT[0]}, s{sT2}")
        a("s_mov_b64 exec, -1")
        a(f"v_lshlrev_b32 v{vT[0]}, 7, v{vT[0]}")
        a(f"s_mov_b32 s{sT}, {WL.FA + 240*128}")
        a(f"buffer_load_dword v{GFl+10}, v{vT[0]}, s[{sFl}:{sFl+3}], s{sT} offen sc1")
        a(f"s_lshl_b32 s{sT}, s{sCc}, 1")
        a(f"s_add_u32 s{sT}, s{sT}, s{sKh}")
        a(f"s_lshl_b32 s{sT}, s{sT}, 6")
        a(f"s_add_u32 s{sT}, s{sT}, {WL.FO}")
        a(f"v_and_b32 v{vT[0]}, 15, v{vL}")
        a(f"v_lshlrev_b32 v{vT[0]}, 2, v{vT[0]}")
        a(f"buffer_load_dword v{GFl+11}, v{vT[0]}, s[{sFl}:{sFl+3}], s{sT} offen sc1")
    a("s_nop 7")
    a(f"s_branch {L('loop')}")
    a.label(L("head"))
    for lvl, c in zip((2, 1, 0), prio):
        a(f"s_cmp_lg_u32 s{sCnt}, {c-1}")
        a(f"s_cbranch_scc1 {L('hp%d' % lvl)}")
        a(f"s_setprio {lvl}")
        a.label(L("hp%d" % lvl))
    for c in (4, 2, 1, 0):
        a(f"s_cmp_eq_u32 s{sCnt}, {c}")
        a(f"s_cbranch_scc1 {L('h%d' % c)}")
    a(f"s_cmp_lg_u32 s{sCnt}, 6")
    a(f"s_cbranch_scc1 {L('loop')}")
    aux_loads()
    lds_wait("wr", 8, 8)
    a("s_mov_b64 vcc, %d" % (0 if nodma else -1))
    a(f"s_branch {L('loop')}")
    a.label(L("h4"))
    a(f"s_cmp_lg_u32 s{sKh}, 0")
    a(f"s_cbranch_scc1 {L('h4b')}")
    a(f"s_lshr_b32 s{sGF}, s{sU0}, 5")
    a(f"s_add_u32 s{sGF}, s{sGF}, s{sHead}")
    a(f"s_lshl_b32 s{sGF}, s{sGF}, 2")
    a(f"s_add_u32 s{sGF}, s{sGF}, {WL.FO}")
    a.label(L("h4b"))
    a(f"s_cmp_eq_u32 s{sGF}, 0")
    a(f"s_cbranch_scc1 {L('loop')}")
    put_flag(f"s{sGF}")
    a(f"s_branch {L('loop')}")
    a.label(L("h2"))
    a(f"s_lshl_b32 s{sT}, s2, 3")
    a(f"s_add_u32 s{sT}, s{sT}, s{sW}")
    a(f"s_cmp_lg_u32 s{sT}, 4")
    a(f"s_cbranch_scc1 {L('ed')}")
    a(f"v_lshlrev_b32 v{vT[0]}, 9, v{vL}")
    a(f"s_mov_b32 s{sT2}, {WL.FA}")
    spin_begin("pe")
    for i in range(4): a(f"buffer_load_dword v{vT[2]+i}, v{vT[0]}, s[{sFl}:{sFl+3}], s{sT2} offen offset:{128*i} sc1")
    a("s_waitcnt vmcnt(0)")
    for i in range(4): a(f"v_xor_b32 v{vT[2]+i}, s{sNonce}, v{vT[2]+i}")
    a(f"v_or3_b32 v{vT[2]}, v{vT[2]}, v{vT[3]}, v{vT[4]}")
    a(f"v_or_b32 v{vT[2]}, v{vT[2]}, v{vT[5]}")
    a(f"v_cmp_ne_u32 vcc, 0, v{vT[2]}")
    a("s_nop 1")
    a("s_cmp_eq_u64 vcc, 0")
    a(f"s_cbranch_scc1 {L('ped')}")
    spin_end("pe")
    a.label(L("ped"))
    if rprobe:
        a(f"v_lshlrev_b32 v{vT[0]}, 2, v{vL}")
        a(f"buffer_load_dword v{vT[2]}, v{vT[0]}, s[64:67], 0 offen sc1")
        a("s_waitcnt vmcnt(0)")
        a(f"v_cmp_ne_u32 vcc, 0, v{vT[2]}")
        a("s_nop 1")
        a("s_bcnt1_i32_b64 s68, vcc")
        a("s_cmp_lt_u32 s68, 2")
        a("s_cbranch_scc1 L_rp1")
        for _ in range(16): a("s_sleep 127")
        a.label("L_rp1")
    put_flag("0")
    a("s_mov_b64 vcc, %d" % (0 if nodma else -1))
    a.label(L("ed"))
    gfl_loads()
    a(f"s_branch {L('loop')}")
    a.label(L("h1"))
    spin_begin("pg")
    for i in range(12): a(f"v_xor_b32 v{GFl+i}, s{sNonce}, v{GFl+i}")
    for i in range(1, 11, 2): a(f"v_or3_b32 v{GFl}, v{GFl}, v{GFl+i}, v{GFl+i+1}")
    a(f"v_or_b32 v{GFl}, v{GFl}, v{GFl+11}")
    a(f"v_cmp_ne_u32 vcc, 0, v{GFl}")
    a("s_nop 1")
    a("s_cmp_eq_u64 vcc, 0")
    a(f"s_cbranch_scc1 {L('pgd')}")
    a("s_sleep 8")
    gfl_loads()
    a("s_waitcnt vmcnt(0)")
    spin_end("pg")
    a.label(L("pgd"))
    a("s_mov_b64 vcc, %d" % (0 if nodma else -1))
    srd(a, sWo, sWS, WL.GATE, 2048 * 8)
    a(f"buffer_load_dword v{vG}, v{vGt}, s[{sWo}:{sWo+3}], 0 offen sc1")
    a(f"v_and_b32 v{vT[0]}, 31, v{vL}")
    a(f"v_lshlrev_b32 v{vT[0]}, 3, v{vT[0]}")
    a(f"s_lshl_b32 s{sT}, s{sKh}, 9")
    a(f"s_add_u32 s{sT}, s{sU0}, s{sT}")
    a(f"s_lshr_b32 s{sT}, s{sT}, 1")
    a(f"buffer_load_dword v{vG+1}, v{vT[0]}, s[{sWo}:{sWo+3}], s{sT} offen offset:4 sc1")
    srd(a, sWo, sWS, WL.G, WL.G_SIZE)
    a(f"v_mov_b32 v{vWo}, v{vGd}")
    a(f"s_mov_b32 s{sDm+1}, 0xfff")
    dma_params(WL.GA, 176, 2, GIMG)
    a(f"s_branch {L('loop')}")
    a.label(L("h0"))
    a(f"s_mov_b32 s{sK+2}, 0")
    a("s_mov_b64 vcc, 0")
    vR = vGd; vR2 = vWs
    a(f"v_lshrrev_b32 v{vT[2]}, 2, v{vL}")
    a(f"v_and_b32 v{vT[1]}, 3, v{vL}")
    a(f"v_mul_u32_u24 v{vR}, 160, v{vT[2]}")
    a(f"v_lshl_add_u32 v{vR}, v{vT[1]}, 3, v{vR}")
    a(f"s_mul_i32 s{sT}, s{sKh}, {10*5120}")
    a(f"v_add_u32 v{vR}, s{sT}, v{vR}")
    a(f"s_cmp_lt_u32 s{sEb8}, 4")
    a(f"s_cselect_b32 s{sT}, 0, 3")
    a(f"v_xor_b32 v{vT[1]}, s{sT}, v{vT[1]}")
    a(f"v_mul_u32_u24 v{vR2}, 176, v{vT[2]}")
    a(f"v_lshl_add_u32 v{vR2}, v{vT[1]}, 3, v{vR2}")
    a(f"s_mul_i32 s{sT}, s{sKh}, {2*GSTEP}")
    a(f"s_add_u32 s{sT}, s{sT}, {GIMG}")
    a(f"v_add_u32 v{vR2}, s{sT}, v{vR2}")
    def rd(dst, base, off, pitch=160):
        for t in range(5):
            a(f"ds_read_b64_tr_b16 {vr(dst[t],2)}, v{base} offset:{off + 32*t}")
            a(f"ds_read_b64_tr_b16 {vr(dst[t]+2,2)}, v{base} offset:{off + 32*t + 16*pitch}")
    AY = AC
    AF = [[Km[0] + 20 * k + 4 * t for t in range(5)] for k in range(4)] + [[O[0] + 4 * t for t in range(5)]]
    def ycomp(FA, FB, done):
        def ymf(off):
            rd(FA, vR2, off, 176); rd(FB, vR2, GSTEP + off, 176)
            for s_, F in enumerate((FA, FB)):
                a(f"s_waitcnt lgkmcnt({10 - 10*s_})")
                for t in range(5):
                    c = "0" if s_ == 0 else vr(AY[t], 4)
                    a(f"v_mfma_f32_16x16x32_bf16 {vr(AY[t],4)}, {vr(F[t],4)}, {vr(WsF[s_],4)}, {c}")
            a("s_nop 7")
        a(f"s_cmp_lt_u32 s{sEb8}, 4")
        a(f"s_cbranch_scc0 {L('ymir')}")
        ymf(0)
        for t in range(5):
            for i in range(4): a(f"v_mul_f32 v{AY[t]+i}, v{AY[t]+i}, v{vG}")
        a(f"s_branch {L(done)}")
        a.label(L("ymir"))
        a(f"s_lshl_b32 s{sT}, s{sKh}, 31")
        a(f"v_xor_b32 v{vG}, s{sT}, v{vG}")
        ymf(8)
        for t in range(5): a(f"v_mul_f32 v{GFl+t}, v{AY[4-t]}, v{vG}")
        ymf(0)
        for t in range(5):
            for i in range(1, 4): a(f"v_mul_f32 v{FA[t]+i}, v{AY[4-t]+4-i}, v{vG}")
        for t in range(5):
            a(f"v_mov_b32 v{AY[t]}, v{GFl+t}")
            for i in range(1, 4): a(f"v_mov_b32 v{AY[t]+i}, v{FA[t]+i}")
    if not ypost:
        a(f"s_lshl_b32 s{sT}, s{sKh}, 2")
        a(f"v_add_u32 v{vCtl}, s{sT}, v{vCtl}")
        a("s_waitcnt vmcnt(0)")
        lds_inc(24)
        lds_wait("wi", 24, 4)
        ycomp(OFr[0:5], OFr[5:10], "loop")
    a.raw(".p2align 6")
    a.label(L("loop"))
    for kt in range(4):
        for q in range(2): slot(kt, q)
    a(f"s_add_u32 s{sOK}, s{sOK}, 2048")
    evm = 0
    for c in [6, 4, 2, 1, 0] + [p - 1 for p in prio if p > 0]: evm |= 1 << c
    a(f"s_sub_u32 s{sCnt}, s{sCnt}, 1")
    a(f"s_bitcmp1_b32 {hex(~evm & 0xff)}, s{sCnt}")
    a(f"s_cbranch_scc1 {L('loop')}")
    a(f"s_cmp_ge_i32 s{sCnt}, 0")
    a(f"s_cbranch_scc1 {L('head')}")
    a(f"v_mfma_f32_32x32x16_bf16 {vr(O[1],16)}, {vr(Vb[3][1],4)}, {vr(P+4,4)}, {vr(O[1],16)}")
    a("s_setprio 3")
    st.stamp("lend")
    srd(a, sD, sWS, WL.OF, 80 * WL.PL)
    def ldO(s_):
        a(f"s_mov_b32 s{sT}, {4*WL.PL*s_}")
        a(f"buffer_load_dwordx4 {vr(OFr[s_],4)}, v{vO}, s[{sD}:{sD+3}], s{sT} offen sc1")
    a(f"s_lshl_b32 s{sT}, s{sKh}, 9")
    a(f"s_add_u32 s{sOK}, s{sU0}, s{sT}")
    a("s_nop 1")
    a(f"s_cmp_eq_u32 s{sKh}, 0")
    a(f"s_cbranch_scc1 {L('x0')}")
    for r in range(3): a(f"ds_write_b128 v{vX0}, {vr(O[0]+4*r,4)} offset:{1024*r}")
    a("s_waitcnt lgkmcnt(0)")
    for i in range(12): a(f"v_mov_b32 v{O[0]+i}, v{O[1]+i}")
    for i in range(4): a(f"v_mov_b32 v{Qm[0]+i}, v{Qm[1]+i}")
    for i in range(2): a(f"v_mov_b32 v{Qr[0]+i}, v{Qr[1]+i}")
    a(f"s_branch {L('x1')}")
    a.label(L("x0"))
    for r in range(3): a(f"ds_write_b128 v{vX0}, {vr(O[1]+4*r,4)} offset:{1024*r}")
    a.label(L("x1"))
    a("s_waitcnt vmcnt(0) lgkmcnt(0)")
    assert Km[0] + 80 <= O[0] and O[0] + 20 <= K0m
    EX = GFl
    if oearly:
        for s_ in range(10): ldO(s_)
    a("s_barrier")
    st.stamp("x1")
    for r in range(3): a(f"ds_read_b128 {vr(EX+4*r,4)}, v{vX1} offset:{1024*r}")
    a("s_waitcnt vmcnt(%d)" % (10 if oearly else 0))
    rd(AF[0], vR, 0)
    a("s_waitcnt lgkmcnt(%d)" % (0 if (stamps and "x1" in snames) else 10))
    for i in range(12): a(f"v_add_f32 v{O[0]+i}, v{O[0]+i}, v{EX+i}")
    def bcast_l():
        a(f"v_mov_b32 v{O[0]+12}, v{O[0]+8}")
        a(f"v_mov_b32 v{O[0]+13}, v{O[0]+8}")
        a("s_nop 1")
        a(f"v_permlane32_swap_b32 v{O[0]+13}, v{O[0]+12}")
        a("s_nop 1")
    bcast_l()
    a(f"v_mul_f32 v{vM}, 0, v{O[0]}")
    for i in range(1, 12): a(f"v_fmac_f32 v{vM}, 0, v{O[0]+i}")
    a(f"v_add_f32 v{vM}, v{vM}, v{O[0]+12}")
    a(f"v_cmp_nge_f32 vcc, 0x71800000, v{vM}")
    a(f"s_mov_b32 s{sT}, 0x21800000")
    a(f"v_cmp_gt_f32 s[{sT2+1}:{sT2+2}], s{sT}, v{vM}")
    a("s_nop 1")
    a(f"s_or_b64 vcc, vcc, s[{sT2+1}:{sT2+2}]")
    a(f"s_cbranch_scc1 {L('slow')}")
    a.label(L("fin"))
    a(f"v_rcp_f32 v{vM}, v{O[0]+12}")
    a("s_nop 0")
    a(f"v_mul_f32 v{vM}, v{vM}, v{vG+1}")
    for i in range(12): a(f"v_mul_f32 v{O[0]+i}, v{O[0]+i}, v{vM}")
    PO = K0m
    assert K0r == K0m + 4
    for i in range(6): a(f"v_cvt_pk_bf16_f32 v{PO+i}, v{O[0]+2*i}, v{O[0]+2*i+1}")
    for i in range(6): a(f"v_min_u32 v{PO+i}, -2, v{PO+i}")
    a(f"buffer_store_dwordx4 {vr(PO,4)}, v{vKm}, s[{sQ}:{sQ+3}], s{sOK} offen sc1")
    a(f"s_mov_b64 exec, s[{sLo}:{sLo+1}]")
    a(f"buffer_store_dwordx2 {vr(PO+4,2)}, v{vKr}, s[{sQ}:{sQ+3}], s{sOK} offen sc1")
    a("s_mov_b64 exec, -1")
    st.stamp("ost")
    if stamps and "ost" in snames: a("s_waitcnt lgkmcnt(0)")

    if not oearly:
        if obar: a("s_barrier")
        lo, hi = min(nfirst), max(nfirst)
        for s_ in range(lo): ldO(s_)
        if hi > lo:
            a(f"s_cmp_eq_u32 s{sKh}, 0")
            a(f"s_cbranch_scc1 {L('nf1')}")
            for s_ in range(lo, hi): ldO(s_)
            a.label(L("nf1"))
    if ypost:
        ycomp(AF[2], AF[3], "ydone")
        a.label(L("ydone"))
    if not oearly:
        if hi > lo:
            a(f"s_cmp_lg_u32 s{sKh}, 0")
            a(f"s_cbranch_scc1 {L('nf2')}")
            for s_ in range(lo, hi): ldO(s_)
            a.label(L("nf2"))
        if afirst:
            for k in range(1, 4): rd(AF[k], vR, 5120 * k)
        if odelay: a(f"s_sleep {odelay}")
        for s_ in range(hi, 10): ldO(s_)
    AB = AF[0]
    if not afirst:
        for k in range(1, 4): rd(AF[k], vR, 5120 * k)
    srd(a, sC, 22, 0, 2048 * 1280)
    a(f"s_mov_b32 s59, {SPIN}")
    st.stamp("pbeg")
    if stamps and "pbeg" in snames: a("s_waitcnt lgkmcnt(0)")
    def chk(s_):
        o = OFr[s_]
        a(f"v_max3_u32 v{vT[0]}, v{o}, v{o+1}, v{o+2}")
        a(f"v_max_u32 v{vT[0]}, v{vT[0]}, v{o+3}")
        a(f"v_cmp_eq_u32 vcc, -1, v{vT[0]}")
        a("s_nop 1")
        a("s_cmp_eq_u64 vcc, 0")
    nst = 2 if oearly else 0
    for s_ in range(10):
        a.label(L("st%d" % s_))
        a(f"s_waitcnt vmcnt({9 - s_ + nst})")
        chk(s_)
        a(f"s_cbranch_scc1 {L('ok%d' % s_)}")
        if rmode == 1:
            a.label(L("sp%d" % s_))
            a(f"s_sleep {rsleep}")
            ldO(s_)
            a("s_waitcnt vmcnt(0)")
            a("s_sub_u32 s59, s59, 1")
            a("s_cmp_lt_i32 s59, 0")
            a(f"s_cbranch_scc1 {L('ok%d' % s_)}")
            chk(s_)
            a(f"s_cbranch_scc0 {L('sp%d' % s_)}")
            if s_ < 9: a(f"s_call_b64 s[{sE}:{sE+1}], {L('retry')}")
        else:
            a(f"s_call_b64 s[{sE}:{sE+1}], {L('retry')}")
            a(f"s_cbranch_scc1 {L('st%d' % s_)}")
        a.label(L("ok%d" % s_))
        a("s_waitcnt lgkmcnt(%d)" % (0 if s_ == 9 else (15 if s_ < 8 else 10)))
        for t in range(5):
            a(f"v_mfma_f32_16x16x32_bf16 {vr(AY[t],4)}, {vr(AF[s_ % 5][t],4)}, {vr(OFr[s_],4)}, {vr(AY[t],4)}")
        if s_ + 4 < 10: rd(AF[(s_ + 4) % 5], vR, 5120 * (s_ + 4))
    st.stamp("dmf")
    a("s_nop 7")
    if probe:
        a("s_memrealtime s[72:73]")
        a("s_waitcnt lgkmcnt(0)")
        a("s_sub_u32 s72, s72, s70")
        a(f"s_cmp_lt_u32 s72, {probe}")
        a(f"s_cbranch_scc1 {L('prb')}")
        a(f"buffer_load_dword v{vT[0]}, off, s[64:67], 0 sc1")
        a("s_waitcnt vmcnt(0)")
        a(f"v_readfirstlane_b32 s72, v{vT[0]}")
        a("s_nop 1")
        a("s_cmp_lg_u32 s72, 0")
        a(f"s_cbranch_scc1 {L('prb')}")
        for t in range(5): a(f"v_mov_b32 v{AY[t]}, 0x7fc00000")
        a.label(L("prb"))
    def dfin(keep, send):
        for r, t in enumerate(send): a(f"ds_write_b128 v{vX1}, {vr(AY[t],4)} offset:{1024*r}")
        a("s_waitcnt lgkmcnt(0)")
        a("s_barrier")
        for r, t in enumerate(keep): a(f"ds_read_b128 {vr(AB[t],4)}, v{vX0} offset:{1024*r}")
        for r, t in enumerate(keep):
            a(f"s_waitcnt lgkmcnt({len(keep)-1-r})")
            for i in range(4): a(f"v_add_f32 v{AY[t]+i}, v{AY[t]+i}, v{AB[t]+i}")
            a(f"v_cvt_pk_bf16_f32 v{AY[t]}, v{AY[t]}, v{AY[t]+1}")
            a(f"v_cvt_pk_bf16_f32 v{AY[t]+1}, v{AY[t]+2}, v{AY[t]+3}")
            a(f"buffer_store_dwordx2 {vr(AY[t],2)}, v{vSt}, s[{sC}:{sC+3}], 0 offen offset:{32*t} {osc}")
    a(f"s_cmp_eq_u32 s{sKh}, 0")
    a(f"s_cbranch_scc1 {L('d0')}")
    dfin([3, 4], [0, 1, 2])
    a(f"s_branch {L('dend')}")
    a.label(L("d0"))
    dfin([0, 1, 2], [3, 4])
    a.label(L("dend"))
    st.finish(9)
    a.label(L("end"))
    a("s_endpgm")

    a.label(L("retry"))
    a("s_waitcnt vmcnt(0)")
    if rsleep and rmode == 0: a(f"s_sleep {rsleep}")
    for s_ in range(10):
        chk(s_)
        a(f"s_cbranch_scc1 {L('rt%d' % s_)}")
        ldO(s_)
        a.label(L("rt%d" % s_))
    a("s_waitcnt vmcnt(0)")
    a("s_sub_u32 s59, s59, 1")
    a("s_cmp_gt_i32 s59, 0")
    a(f"s_setpc_b64 s[{sE}:{sE+1}]")
    a.label(L("slow"))
    sSK = sT2 + 1; sSV = sT2 + 2
    a("s_waitcnt vmcnt(0) lgkmcnt(0)")
    assert AF[0][4] + 4 <= Vb[0][0]
    a(f"v_mov_b32 v{Kr[0]}, 0x3f803f80")
    a(f"v_mov_b32 v{Kr[0]+1}, 0x3f80")
    a(f"s_mov_b32 s{sK+2}, {5*WL.PL}")
    a(f"s_mov_b32 s{sV+2}, {64*WL.VT}")
    a(f"s_mov_b64 exec, s[{sHi}:{sHi+1}]")
    a(f"v_mov_b32 v{Qr[0]}, 0")
    a(f"v_mov_b32 v{Qr[0]+1}, 0")
    a("s_mov_b64 exec, -1")
    a(f"v_mov_b32 v{vM}, 0xff800000")
    a(f"s_mov_b32 s{sSK}, 0")
    def qk_slow():
        a(f"s_mov_b64 exec, s[{sLo}:{sLo+1}]")
        a(f"buffer_load_dwordx2 {vr(Kr[0],2)}, v{vKr}, s[{sK}:{sK+3}], s{sSK} offen sc1")
        a("s_mov_b64 exec, -1")
        a(f"buffer_load_dwordx4 {vr(Km[0],4)}, v{vKm}, s[{sK}:{sK+3}], s{sSK} offen sc1")
        a("s_waitcnt vmcnt(0)")
        a(f"v_mfma_f32_32x32x16_bf16 {vr(S[0],16)}, {vr(Km[0],4)}, {vr(Qm[0],4)}, 0")
        a("s_nop 11")
        a(f"v_mfma_f32_32x32x8_bf16 {vr(S[0],16)}, {vr(Kr[0],2)}, {vr(Qr[0],2)}, {vr(S[0],16)}")
        a("s_nop 12")
    a.label(L("s1"))
    qk_slow()
    for i in range(0, 16, 2):
        a(f"v_max3_f32 v{vM}, v{vM}, v{S[0]+i}, v{S[0]+i+1}")
    a(f"s_add_u32 s{sSK}, s{sSK}, 512")
    a(f"s_cmp_lt_u32 s{sSK}, {WL.PL}")
    a(f"s_cbranch_scc1 {L('s1')}")
    a(f"v_mov_b32 v{vT[0]}, v{vM}")
    a("s_nop 1")
    a(f"v_permlane32_swap_b32 v{vT[0]}, v{vM}")
    a("s_nop 1")
    a(f"v_max_f32 v{vM}, v{vM}, v{vT[0]}")
    a(f"v_cvt_pk_bf16_f32 v{S[0]}, 0, -v{vM}")
    a(f"v_sub_f32 v{vT[0]}, 0, v{vM}")
    a(f"v_sub_f32 v{vT[0]}, v{vT[0]}, v{S[0]}")
    a(f"v_cvt_pk_bf16_f32 v{S[0]+1}, 0, v{vT[0]}")
    a(f"v_sub_f32 v{vT[1]}, v{vT[0]}, v{S[0]+1}")
    a(f"s_mov_b64 exec, s[{sHi}:{sHi+1}]")
    a(f"v_cvt_pk_bf16_f32 v{Qr[0]}, v{S[0]}, v{S[0]+1}")
    a(f"v_cvt_pk_bf16_f32 v{Qr[0]+1}, v{vT[1]}, 0")
    a("s_mov_b64 exec, -1")
    for i in range(16): a(f"v_mov_b32 v{O[0]+i}, 0")
    a(f"s_mov_b32 s{sSK}, 0")
    a(f"s_mov_b32 s{sSV}, 0")
    a.label(L("s2"))
    a(f"s_mov_b64 exec, s[{sVm}:{sVm+1}]")
    a(f"buffer_load_dwordx4 {vr(Vb[0][0],4)}, v{vV0}, s[{sV}:{sV+3}], s{sSV} offen sc1")
    a(f"buffer_load_dwordx4 {vr(Vb[0][1],4)}, v{vV1}, s[{sV}:{sV+3}], s{sSV} offen sc1")
    qk_slow()
    for i in range(16): exp(0, i)
    a("s_nop 0")
    for i in range(8): cvt(0, i)
    a("s_nop 1")
    a(f"v_mfma_f32_32x32x16_bf16 {vr(O[0],16)}, {vr(Vb[0][0],4)}, {vr(P,4)}, {vr(O[0],16)}")
    a(f"v_mfma_f32_32x32x16_bf16 {vr(O[0],16)}, {vr(Vb[0][1],4)}, {vr(P+4,4)}, {vr(O[0],16)}")
    a(f"s_add_u32 s{sSK}, s{sSK}, 512")
    a(f"s_add_u32 s{sSV}, s{sSV}, {WL.VT}")
    a(f"s_cmp_lt_u32 s{sSK}, {WL.PL}")
    a(f"s_cbranch_scc1 {L('s2')}")
    a("s_nop 12")
    rd(AF[0], vR, 0)
    bcast_l()
    a(f"s_branch {L('fin')}")
    return a.text(), kernel_desc(name, 256, 102), f"; @launch grid=(256,1,1) block=(512,1,1) lds={LDS_SIZE}"

if __name__ == "__main__":
    import sys
    from gen import build
    path = sys.argv[1]
    sn = [x[3:].split(',') for x in sys.argv if x.startswith('sn=')]
    kw = {x.split('=')[0]: eval(x.split('=')[1]) for x in sys.argv[2:] if not x.startswith('sn=')}
    hd = kw.pop('hdbg', False)
    build(path, [gen(stamps=(2 if hd else bool(sn)), snames=sn[0] if sn else (), **kw)])
```

```python
from asm import *

QSCALE = 0x3ea52b5c
NAME = "gated_mix__spectral_fnet__softmax_full_mha__prompt_kernel"
LDS_X = 131072
LDS_CTL = LDS_X + 24576
LDS_SIZE = LDS_CTL + 64
GSTEP = 32 * 176
GIMG = 20 * 5120
SPIN = 200000
STAGE = [0, 0x8000, 0x18000, 0x10000]

def gen(name=NAME, stamps=False, snames=(), rotx=(0, 2, 5, 7, 5, 7, 0, 2), rin=(5, 5), touch=False, tpos=5, gtouch=True, fsplit=5,
        prio=(4, 2, 1), psleep=8, wotouch=False, probe=None, fwait=True, nodma=False, kvsc1=False, noload=False, nowait=False, noexec=False, spread=False, rt=True, fstart=6, rprobe=False, enc=None, encw=0, oearly=False, rsleep=2, rmode=0, ypost=True, obar=False, nfirst=(0, 0), afirst=True, odelay=0, gdefer=0, pois=3, osc='', lprio=3, cprio=2, wsleep=3, ldelay=0, pplain=True, glate=False, m8=False, wsbase=0):
    a = Asm()
    kernel_begin(a, name)
    L = lambda s: f"L_{s}"
    st = Stamps(a, stamps, 0); st.names = list(snames); st.op = 's_memrealtime' if rt else 's_memtime'
    if enc:
        class Enc:
            names = []
            def start(self): a("s_memrealtime s[70:71]"); a("s_memrealtime s[72:73]")
            def stamp(self, n):
                if n == enc: a("s_memrealtime s[72:73]"); a("s_waitcnt lgkmcnt(0)")
            def finish(self, i):
                a("s_lshl_b32 s68, s2, 3"); a("s_add_u32 s68, s68, s52")
                a(f"s_cmp_lg_u32 s68, {136*8+encw}")
                a("s_cbranch_scc1 L_encd")
                a("s_memrealtime s[74:75]"); a("s_waitcnt lgkmcnt(0)")
                a("s_sub_u32 s72, s72, s70"); a("s_lshl_b32 s72, s72, 2"); a("s_add_u32 s72, s72, s74")
                a.label("L_encl")
                a("s_memrealtime s[74:75]"); a("s_waitcnt lgkmcnt(0)")
                a("s_sub_u32 s68, s74, s72"); a("s_cmp_lt_i32 s68, 0")
                a("s_cbranch_scc1 L_encl")
                a.label("L_encd")
        st = Enc()
    sWS = 26
    sA = 28; sB = 32; sC = 36; sD = 40; sFl = 44; sE = 48
    sW = 52; sXc = 53; sJ = 54; sNonce = 55; sT = 56; sT2 = 57; sCnt = 58
    sLo = 60; sVm = 62; sHi = 94; sDm = 96
    sGF = 25
    sAF = 24
    vL = 1; vT = [2, 3, 4, 5, 6, 7]; vCtl = 8
    VB = 10
    TOP = 252 if stamps else 256

    def spin_begin(lab):
        a(f"s_mov_b32 s59, {SPIN}")
        a.label(L(lab))
    def spin_end(lab, sleep=2):
        a(f"s_sleep {sleep}")
        a("s_sub_u32 s59, s59, 1")
        a("s_cmp_lg_u32 s59, 0")
        a(f"s_cbranch_scc1 {L(lab)}")
    def put_flag(soff):
        a(f"v_mov_b32 v{vT[0]}, 0")
        a(f"v_mov_b32 v{vT[1]}, s{sNonce}")
        a("s_mov_b64 exec, 1")
        a(f"buffer_store_dword v{vT[1]}, v{vT[0]}, s[{sFl}:{sFl+3}], {soff} offen sc1")
        a("s_mov_b64 exec, -1")
    def lds_inc(off):
        a(f"v_mov_b32 v{vT[0]}, 1")
        a("s_mov_b64 exec, 1")
        a(f"ds_add_u32 v{vCtl}, v{vT[0]} offset:{off}")
        a("s_mov_b64 exec, -1")
    def lds_wait(lab, off, val, sl=1):
        spin_begin(lab)
        a(f"ds_read_b32 v{vT[0]}, v{vCtl} offset:{off}")
        a("s_waitcnt lgkmcnt(0)")
        a(f"v_readfirstlane_b32 s{sT}, v{vT[0]}")
        a("s_nop 1")
        a(f"s_cmp_eq_u32 s{sT}, {val}")
        a(f"s_cbranch_scc1 {L(lab+'d')}")
        spin_end(lab, sl)
        a.label(L(lab + "d"))
    def sel_srd(d, cond_s, p0, p1, size):
        a(f"s_cmp_eq_u32 s{cond_s}, 0")
        a(f"s_cselect_b32 s{d}, s{p0}, s{p1}")
        a(f"s_cselect_b32 s{d+1}, s{p0+1}, s{p1+1}")
        a(f"s_and_b32 s{d+1}, s{d+1}, 0xffff")
        a(f"s_mov_b32 s{d+2}, {size}")
        a(f"s_mov_b32 s{d+3}, 0x20000")
    def after_kernarg():
        a("s_waitcnt lgkmcnt(0)")
        st.stamp("karg")
        if wsbase:
            a(f"s_add_u32 s{sWS}, s{sWS}, {hex(wsbase << 20)}")
            a(f"s_addc_u32 s{sWS+1}, s{sWS+1}, 0")
        a(f"s_load_dword s{sNonce}, s[{sWS}:{sWS+1}], {WL.EPOCH}")
        srd(a, sA, 4, 0, 2048 * 1280)
    def masks():
        a("v_mov_b32 v9, 0")
        a(f"s_mov_b32 s{sGF}, 0"); a(f"s_mov_b32 s{sAF}, 0")
        srd(a, sFl, sWS, WL.FLAG, WL.FLAG_SIZE)
        a(f"v_mov_b32 v{vCtl}, {LDS_CTL}")
        a(f"s_mov_b32 s{sLo}, -1"); a(f"s_mov_b32 s{sLo+1}, 0")
        a(f"s_mov_b32 s{sHi}, 0"); a(f"s_mov_b32 s{sHi+1}, -1")
        a(f"s_mov_b32 s{sVm}, 0xfffff"); a(f"s_mov_b32 s{sVm+1}, 0xfffff")
        a(f"s_mov_b32 s{sDm}, -1"); a(f"s_mov_b32 s{sDm+1}, 0xff")
    def nat_read_addrs(dst, stile, shift):
        a(f"v_and_b32 v{vT[0]}, 31, v{vL}")
        a(f"v_lshrrev_b32 v{vT[1]}, 5, v{vL}")
        a(f"v_bfe_u32 v{vT[2]}, v{vL}, 1, 3")
        a(f"v_xor_b32 v{vT[1]}, v{vT[1]}, v{vT[2]}")
        a(f"v_lshlrev_b32 v{vT[1]}, 4, v{vT[1]}")
        a(f"v_lshl_add_u32 v{vT[0]}, v{vT[0]}, 7, v{vT[1]}")
        a(f"s_lshl_b32 s{sT}, s{stile}, {shift}")
        a(f"v_add_u32 v{dst[0]}, s{sT}, v{vT[0]}")
        for ks in range(1, 4):
            a(f"v_xor_b32 v{dst[ks]}, {32*ks}, v{dst[0]}")

    a("s_cmp_ge_u32 s2, 256")
    a(f"s_cbranch_scc1 {L('end')}")
    st.start()
    if probe:
        a("s_memrealtime s[70:71]")
        a("s_load_dwordx2 s[64:65], s[0:1], 80")
        a("s_waitcnt lgkmcnt(0)")
        a("s_and_b32 s65, s65, 0xffff"); a("s_mov_b32 s66, 256"); a("s_mov_b32 s67, 0x20000")
        a("s_getreg_b32 s68, hwreg(HW_REG_XCC_ID)")
        a("s_xor_b32 s68, s68, s2"); a("s_and_b32 s68, s68, 7")
        a("s_cbranch_scc0 L_pok")
        a("v_mov_b32 v2, 1")
        a("s_mov_b64 exec, 1")
        a("buffer_store_dword v2, off, s[64:67], 0 sc1")
        a("s_mov_b64 exec, -1")
        a.label("L_pok")
    if rprobe:
        a("s_load_dwordx2 s[64:65], s[0:1], 80")
        a("s_waitcnt lgkmcnt(0)")
        a("s_and_b32 s65, s65, 0xffff"); a("s_mov_b32 s66, 256"); a("s_mov_b32 s67, 0x20000")
        a("s_getreg_b32 s68, hwreg(HW_REG_XCC_ID)")
        a("s_sub_u32 s68, s68, s2"); a("s_and_b32 s68, s68, 7")
        a("s_lshl_b32 s68, s68, 2")
        a("v_cmp_eq_u32 vcc, 0, v0")
        a("v_mov_b32 v2, 1")
        a("s_and_saveexec_b64 s[70:71], vcc")
        a("s_cbranch_execz L_rp0")
        a("buffer_store_dword v2, off, s[64:67], s68 sc1")
        a.label("L_rp0")
        a("s_mov_b64 exec, -1")
    a("s_load_dwordx16 s[4:19], s[0:1], 0")
    a("s_load_dwordx8 s[20:27], s[0:1], 64")
    a(f"v_lshrrev_b32 v{vT[0]}, 6, v0")
    a(f"v_and_b32 v{vL}, 63, v0")
    a(f"v_readfirstlane_b32 s{sW}, v{vT[0]}")
    a(f"s_and_b32 s{sXc}, s2, 7")
    a(f"s_lshr_b32 s{sJ}, s2, 3")
    a(f"s_xor_b32 s{sW}, s{sW}, 4")
    sRb = 98; sCb = 99; sWm = 100; sWn = 101; sWl = 3
    a(f"s_and_b32 s{sRb}, s2, 3")
    a(f"s_lshl_b32 s{sRb}, s{sRb}, 2")
    a(f"s_and_b32 s{sT}, s{sJ}, 3")
    a(f"s_add_u32 s{sRb}, s{sRb}, s{sT}")
    a(f"s_lshr_b32 s{sT}, s{sXc}, 2")
    a(f"s_lshr_b32 s{sCb}, s{sJ}, 2")
    a(f"s_cmp_eq_u32 s{sCb}, 7")
    a(f"s_cselect_b32 s{sT2}, 1, 3")
    a(f"s_lshl_b32 s{sT}, s{sT}, s{sT2}")
    a(f"s_cmp_eq_u32 s{sCb}, 7")
    a(f"s_cselect_b32 s{sT2}, s{sT}, 0")
    a(f"s_cselect_b32 s{sT}, 0, s{sT}")
    a(f"s_add_u32 s{sRb}, s{sRb}, s{sT2}")
    a(f"s_add_u32 s{sCb}, s{sCb}, s{sT}")
    a(f"s_and_b32 s{sWl}, s{sW}, 3")
    a(f"s_and_b32 s{sWm}, s{sW}, 1")
    a(f"s_lshr_b32 s{sWn}, s{sWl}, 1")
    a(f"s_cmp_lt_u32 s{sW}, 4")
    a(f"s_cbranch_scc1 {L('comp')}")

    V = Alloc(VB, TOP)
    vRX = [V.get() for _ in range(4)]
    vFW = [V.get() for _ in range(2)]; vFs = V.get(); V.get(); vGs = 9
    V.get(2)
    XR = [[V.get(4, 4) for _ in range(4)] for _ in range(10)]
    FR = V.get(8, 4); FIn = V.get(8, 4)
    ZA = V.get(16, 4); ZB = V.get(16, 4)
    BF = [[V.get(4, 4) for _ in range(2)] for _ in range(3)]
    vDX = [BF[0][0] + i for i in range(4)]; vDW = [BF[0][1] + i for i in range(4)]
    sOX = sD; sOW = sD + 1; sM0 = sD + 2; sBeta = sD + 3; sSp = sE
    if lprio: a(f"s_setprio {lprio}")
    a(f"v_and_b32 v{vT[3]}, 7, v{vL}")
    a(f"v_lshrrev_b32 v{vT[4]}, 4, v{vL}")
    a(f"v_xor_b32 v{vT[3]}, v{vT[3]}, v{vT[4]}")
    a(f"v_lshlrev_b32 v{vT[3]}, 4, v{vT[3]}")
    a(f"v_xor_b32 v{vT[4]}, 64, v{vT[3]}")
    a(f"v_bfe_u32 v{vT[5]}, v{vL}, 3, 2")
    a(f"v_lshrrev_b32 v{vT[1]}, 5, v{vL}")
    a(f"v_lshl_add_u32 v{vT[5]}, v{vT[1]}, 3, v{vT[5]}")
    a(f"s_lshl_b32 s{sT}, s{sRb}, 1")
    a(f"s_add_u32 s{sT}, s{sT}, s{sWn}")
    a(f"s_lshl_b32 s{sT2}, s{sWm}, 5")
    a(f"s_add_u32 s{sCnt}, s{sT}, s{sT2}")
    a(f"v_lshl_add_u32 v{vT[1]}, v{vT[5]}, 6, s{sCnt}")
    a(f"v_mul_u32_u24 v{vT[1]}, 1280, v{vT[1]}")
    a(f"v_add_u32 v{vDX[0]}, v{vT[1]}, v{vT[3]}")
    a(f"v_add_u32 v{vDX[1]}, v{vT[1]}, v{vT[4]}")
    a(f"v_add_u32 v{vDX[1]}, {4*64*1280-1024}, v{vDX[1]}")
    a(f"v_add_u32 v{vDX[2]}, {16*64*1280-2048}, v{vDX[0]}")
    a(f"v_add_u32 v{vDX[3]}, {16*64*1280-2048}, v{vDX[1]}")
    a(f"v_lshrrev_b32 v{vT[0]}, 4, v{vL}")
    a(f"v_bfe_u32 v{vT[1]}, v{vL}, 2, 2")
    a(f"v_xor_b32 v{vT[1]}, v{vT[1]}, v{vT[0]}")
    a(f"v_and_b32 v{vT[2]}, 3, v{vL}")
    a(f"v_lshl_add_u32 v{vT[1]}, v{vT[1]}, 2, v{vT[2]}")
    a(f"v_lshlrev_b32 v{vT[1]}, 4, v{vT[1]}")
    a(f"s_lshl_b32 s{sT}, s{sWl}, 4")
    a(f"v_add_u32 v{vT[0]}, s{sT}, v{vT[0]}")
    a(f"v_mul_u32_u24 v{vT[0]}, 3840, v{vT[0]}")
    a(f"s_lshl_b32 s{sT}, s{sCb}, 8")
    a(f"v_add3_u32 v{vDW[0]}, v{vT[0]}, v{vT[1]}, s{sT}")
    for j in range(1, 4):
        a(f"v_add_u32 v{vDW[j]}, {j*(4*3840-1024)}, v{vDW[0]}")
    rw = 0
    for i, r in enumerate(rotx): rw |= r << (4 * i)
    a(f"s_lshl_b32 s{sT}, s{sXc}, 2")
    a(f"s_lshr_b32 s{sOX}, {hex(rw)}, s{sT}")
    a(f"s_and_b32 s{sOX}, s{sOX}, 15")
    if rin != (0, 0):
        a(f"s_and_b32 s{sT}, s{sJ}, 3")
        a(f"s_mul_i32 s{sT}, s{sT}, {rin[0]}")
        a(f"s_add_u32 s{sOX}, s{sOX}, s{sT}")
        a(f"s_lshr_b32 s{sT}, s{sJ}, 2")
        a(f"s_mul_i32 s{sT}, s{sT}, {rin[1]}")
        a(f"s_add_u32 s{sOX}, s{sOX}, s{sT}")
        a(f"s_mul_i32 s{sT}, s{sOX}, 205")
        a(f"s_lshr_b32 s{sT}, s{sT}, 11")
        a(f"s_mul_i32 s{sT}, s{sT}, 10")
        a(f"s_sub_u32 s{sOX}, s{sOX}, s{sT}")
    a(f"s_mul_i32 s{sOW}, s{sOX}, {64*3840}")
    a(f"s_lshl_b32 s{sOX}, s{sOX}, 7")
    a(f"s_lshl_b32 s{sM0}, s{sWl}, 12")
    after_kernarg()
    a(f"s_cmp_ge_u32 s{sJ}, 30")
    a(f"s_cbranch_scc1 {L('lgate')}")
    srd(a, sB, 16, 0, 640 * 3840)
    def issue(n):
        a(f"s_add_u32 m0, s{sM0}, {STAGE[n%4]}")
        a("s_nop 0")
        for j in range(4): a(f"buffer_load_dwordx4 v{vDX[j]}, s[{sA}:{sA+3}], s{sOX} offen offset:{1024*j} lds")
        a(f"s_add_u32 m0, s{sM0}, {STAGE[n%4]+0x4000}")
        a(f"s_add_u32 s{sOX}, s{sOX}, 128")
        for j in range(4): a(f"buffer_load_dwordx4 v{vDW[j]}, s[{sB}:{sB+3}], s{sOW} offen offset:{1024*j} lds")
        a(f"s_add_u32 s{sOW}, s{sOW}, {64*3840}")
        a(f"s_cmp_eq_u32 s{sOX}, 1280")
        a(f"s_cselect_b32 s{sOX}, 0, s{sOX}")
        a(f"s_cselect_b32 s{sOW}, 0, s{sOW}")
    issue(0); issue(1)
    masks()
    a(f"s_lshr_b32 s{sBeta}, s{sXc}, 2")
    a(f"s_mul_i32 s{sBeta}, s{sBeta}, 5")
    a(f"s_lshr_b32 s{sT}, s{sJ}, 2")
    a(f"s_add_u32 s{sBeta}, s{sBeta}, s{sT}")
    a(f"s_lshl_b32 s{sT}, s{sBeta}, 1")
    a(f"s_add_u32 s{sT}, s{sT}, s{sWm}")
    a(f"s_lshl_b32 s{sT}, s{sT}, 4")
    a(f"v_add_u32 v{vT[5]}, s{sT}, v{vT[5]}")
    a(f"v_mul_u32_u24 v{vT[5]}, 1280, v{vT[5]}")
    a(f"v_add_u32 v{vFW[0]}, v{vT[5]}, v{vT[3]}")
    a(f"v_add_u32 v{vFW[1]}, v{vT[5]}, v{vT[4]}")
    a(f"v_add_u32 v{vFW[1]}, {4*1280-1024}, v{vFW[1]}")
    a(f"v_add_u32 v{vFs}, {320*1280}, v{vT[3]}")
    a(f"v_and_b32 v{vT[0]}, 31, v{vL}")
    a(f"v_lshrrev_b32 v{vT[1]}, 5, v{vL}")
    a(f"v_lshlrev_b32 v{vGs}, 5, v{vT[0]}")
    a(f"v_lshl_add_u32 v{vGs}, v{vT[1]}, 4, v{vGs}")
    a(f"s_mul_i32 s{sT}, s{sCnt}, {WL.GA}")
    a(f"s_lshl_b32 s{sT2}, s{sBeta}, 11")
    a(f"s_add_u32 s{sT}, s{sT}, s{sT2}")
    a(f"v_add_u32 v{vGs}, s{sT}, v{vGs}")
    a(f"s_mul_i32 s{sCnt}, s{sCnt}, 48")
    a(f"s_lshl_b32 s{sT2}, s{sBeta}, 2")
    a(f"s_add_u32 s{sCnt}, s{sCnt}, s{sT2}")
    a(f"s_add_u32 s{sCnt}, s{sCnt}, {WL.FG}")
    nat_read_addrs(vRX, sWl, 12)
    for n in range(10):
        a(f"s_waitcnt vmcnt({8 if n < 9 else 0}) lgkmcnt(0)")
        a("s_barrier")
        for ks in range(4):
            a(f"ds_read_b128 {vr(XR[n][ks],4)}, v{vRX[ks]} offset:{STAGE[n%4] & 0xffff}")
        if n + 2 < 10: issue(n + 2)
        if n < 9 and (STAGE[n % 4] ^ STAGE[(n + 1) % 4]) & 0x10000:
            for ks in range(4): a(f"v_xor_b32 v{vRX[ks]}, 0x10000, v{vRX[ks]}")
    st.stamp("ldone")
    a(f"s_add_u32 s{sNonce}, s{sNonce}, 1")
    a(f"s_cmp_ge_u32 s{sJ}, 20")
    a(f"s_cbranch_scc1 {L('lfree')}")
    a("s_setprio 3")
    a(f"s_mov_b32 s{sGF}, s{sCnt}")
    sel_srd(sB, sWn, 10, 12, 640 * 1280)
    srd(a, sC, 10, 0, 640 * 1280)
    a(f"s_lshl_b32 s{sM0}, s{sWl}, 11")
    a(f"s_lshl_b32 s{sT}, s{sBeta}, 2")
    a(f"s_add_u32 s{sT}, s{sT}, s{sWl}")
    a(f"s_cmp_eq_u32 s{sT}, 2")
    a(f"s_cselect_b32 s{sSp}, 0xffffff00, -1")
    a(f"s_cselect_b64 vcc, -1, 0")
    a(f"s_mov_b32 s{sSp+1}, -1")
    WDB = lambda p: (0x10000 + 8192 * p) if p < 8 else 8192 * (p - 8)
    def wdma(p):
        a(f"s_add_u32 m0, s{sM0}, {WDB(p)}")
        a(f"s_mov_b64 exec, s[{sSp}:{sSp+1}]")
        a(f"buffer_load_dwordx4 v{vFW[0]}, s[{sB}:{sB+3}], s{sOX} offen lds")
        a(f"s_cbranch_vccz {L('fs%d' % p)}")
        a("s_mov_b64 exec, 0xff")
        a(f"buffer_load_dwordx4 v{vFs}, s[{sC}:{sC+3}], s{sOX} offen lds")
        a.label(L("fs%d" % p))
        a("s_mov_b64 exec, -1")
        a(f"buffer_load_dwordx4 v{vFW[1]}, s[{sB}:{sB+3}], s{sOX} offen offset:1024 lds")
        a(f"s_add_u32 s{sOX}, s{sOX}, 128")
        a(f"s_cmp_eq_u32 s{sOX}, 1280")
        a(f"s_cselect_b32 s{sOX}, 0, s{sOX}")
    def twl():
        srd(a, sB, 6, 0, 2048 * 4096)
        srd(a, sC, 8, 0, 2048 * 4096)
        a(f"buffer_load_dwordx4 {vr(FR,4)}, v{vT[2]}, s[{sB}:{sB+3}], 0 offen")
        a(f"buffer_load_dwordx4 {vr(FR+4,4)}, v{vT[2]}, s[{sB}:{sB+3}], 0 offen offset:32")
        a(f"buffer_load_dwordx4 {vr(FIn,4)}, v{vT[2]}, s[{sC}:{sC+3}], 0 offen")
        a(f"buffer_load_dwordx4 {vr(FIn+4,4)}, v{vT[2]}, s[{sC}:{sC+3}], 0 offen offset:32")
    for p in range(fsplit): wdma(p)
    a(f"v_and_b32 v{vT[2]}, 31, v{vL}")
    a(f"v_lshrrev_b32 v{vT[1]}, 5, v{vL}")
    a(f"v_lshlrev_b32 v{vT[2]}, 18, v{vT[2]}")
    a(f"v_lshl_add_u32 v{vT[2]}, v{vT[1]}, 4, v{vT[2]}")
    a(f"s_lshl_b32 s{sT}, s{sWl}, 12")
    a(f"s_sub_u32 s{sT}, 0x10000, s{sT}")
    for ks in range(4): a(f"v_add_u32 v{vRX[ks]}, s{sT}, v{vRX[ks]}")
    assert not STAGE[9 % 4] & 0x10000
    a("s_waitcnt vmcnt(0)")
    lds_inc(12)
    lds_wait("f1", 12, 4)
    st.stamp("fb0")
    if stamps: a("s_waitcnt lgkmcnt(0)")
    def rdB(s):
        p, ks = divmod(s, 4)
        if s == 32:
            for k in range(4): a(f"v_xor_b32 v{vRX[k]}, 0x10000, v{vRX[k]}")
        for part in range(2):
            a(f"ds_read_b128 {vr(BF[s%3][part],4)}, v{vRX[ks]} offset:{(WDB(p) & 0xffff) + 4096*part}")
    rdB(0); rdB(1)
    H = 4 * fsplit
    for s in range(40):
        if s == fstart and fwait: lds_wait("f0", 20, 4)
        if fstart <= s < fstart + 10 - fsplit: wdma(fsplit + s - fstart)
        if s == fstart + 10 - fsplit: twl()
        if s == H - 2:
            a("s_waitcnt vmcnt(4)")
            lds_inc(16)
            lds_wait("f2", 16, 4)
            st.stamp("fb1")
            if stamps: a("s_waitcnt lgkmcnt(0)")
        if s + 2 < 40: rdB(s + 2)
        a(f"s_waitcnt lgkmcnt({4 if s < 38 else 2*(39-s)})")
        for part, Z in enumerate((ZA, ZB)):
            c = "0" if s == 0 else vr(Z, 16)
            a(f"v_mfma_f32_32x32x16_bf16 {vr(Z,16)}, {vr(XR[s//4][s%4],4)}, {vr(BF[s%3][part],4)}, {c}")
    assert fstart + 10 - fsplit < H - 2
    lds_inc(8)
    st.stamp("fend")
    FRn = XR[0][0]; G0 = XR[1][0]; G1 = XR[2][0]; G2 = XR[3][0]; G3 = XR[4][0]; ZS = XR[5][0]
    a("s_waitcnt vmcnt(0)")
    for i in range(8):
        a(f"v_xor_b32 v{FRn+i}, 0x80008000, v{FR+i}")
        a(f"v_xor_b32 v{FIn+i}, 0x80008000, v{FIn+i}")
    for Z in (ZA, ZB):
        for i in range(8): a(f"v_cvt_pk_bf16_f32 v{Z+i}, v{Z+2*i}, v{Z+2*i+1}")
    m = lambda d, A, B, c: a(f"v_mfma_f32_32x32x16_bf16 {vr(d,16)}, {vr(A,4)}, {vr(B,4)}, {c}")
    GP = TOP - 24
    a("s_nop 0")
    a(f"s_cmp_lg_u32 s{sBeta}, 0")
    a(f"s_cbranch_scc1 {L('fn')}")
    m(G2, ZB, FR, "0"); m(G2, ZB+4, FR+4, vr(G2,16))
    m(G3, ZB, FIn, "0"); m(G3, ZB+4, FIn+4, vr(G3,16))
    a("s_mov_b32 exec_lo, 1"); a("s_mov_b32 exec_hi, 1")
    for i in range(8): a(f"v_mov_b32 v{ZB+i}, 0")
    a(f"s_mov_b64 exec, s[{sLo}:{sLo+1}]")
    a("s_nop 3")
    for i in range(4): a(f"v_mov_b32 v{GP+16+i}, 0"); a(f"v_mov_b32 v{GP+20+i}, 0")
    a(f"v_cvt_pk_bf16_f32 v{GP+16}, v{G2}, 0")
    a(f"v_cvt_pk_bf16_f32 v{GP+20}, v{G3}, 0")
    a("s_mov_b64 exec, -1")
    a.label(L("fn"))
    m(G0, ZA, FR, "0"); m(G0, ZA+4, FR+4, vr(G0,16)); m(G0, ZB, FIn, vr(G0,16)); m(G0, ZB+4, FIn+4, vr(G0,16))
    m(G1, ZB, FRn, "0"); m(G1, ZB+4, FRn+4, vr(G1,16)); m(G1, ZA, FIn, vr(G1,16)); m(G1, ZA+4, FIn+4, vr(G1,16))
    a("s_nop 7")
    for p, g in enumerate((G0, G1)):
        for i in range(8): a(f"v_cvt_pk_bf16_f32 v{GP+8*p+i}, v{g+2*i}, v{g+2*i+1}")
    def g_stores(sd):
        srd(a, sd, sWS, WL.G, WL.G_SIZE)
        a(f"s_mov_b32 s{sT2}, {64*WL.GA}")
        for p in range(2):
            for j in range(2):
                so = "0" if p == 0 else f"s{sT2}"
                a(f"buffer_store_dwordx4 {vr(GP+8*p+4*j,4)}, v{vGs}, s[{sd}:{sd+3}], {so} offen offset:{1024*j} sc1")
        a(f"s_or_b32 s{sT}, s{sXc}, s{sJ}")
        a(f"s_cmp_ge_u32 s{sT}, 4")
        a(f"s_cbranch_scc1 {L('gs1')}")
        a(f"v_add_u32 v{vGs}, {20*1024}, v{vGs}")
        a(f"s_mov_b64 exec, s[{sLo}:{sLo+1}]")
        a(f"buffer_store_dwordx4 {vr(GP+16,4)}, v{vGs}, s[{sd}:{sd+3}], 0 offen sc1")
        a(f"buffer_store_dwordx4 {vr(GP+20,4)}, v{vGs}, s[{sd}:{sd+3}], s{sT2} offen sc1")
        a("s_mov_b64 exec, -1")
        a.label(L("gs1"))
    if not gdefer: g_stores(sC)
    assert ZB + 8 <= GP
    st.stamp("gst")
    a(f"s_branch {L('att')}")
    a.label(L("lgate"))
    if gtouch:
        sel_srd(sB, sWm, 6, 8, 2048 * 4096)
        a(f"v_and_b32 v{vT[0]}, 31, v{vL}")
        a(f"v_lshlrev_b32 v{vT[0]}, 18, v{vT[0]}")
        a(f"buffer_load_dword v{vT[1]}, v{vT[0]}, s[{sB}:{sB+3}], 0 offen")
        sel_srd(sB, sWm, 10, 12, 640 * 1280)
        a(f"s_and_b32 s{sT}, s{sJ}, 1")
        a(f"s_lshl_b32 s{sT}, s{sT}, 1")
        a(f"s_add_u32 s{sT}, s{sT}, s{sWn}")
        a(f"s_mul_i32 s{sT}, s{sT}, {400*128}")
        a(f"s_lshr_b32 s{sT2}, s{sXc}, 2")
        a(f"s_mul_i32 s{sT2}, s{sT2}, {160*1280}")
        a(f"s_add_u32 s{sT}, s{sT}, s{sT2}")
        a(f"v_min_u32 v{vT[0]}, 49, v{vL}")
        a(f"v_lshlrev_b32 v{vT[0]}, 7, v{vT[0]}")
        for i in range(8):
            a(f"buffer_load_dword v{vT[1]}, v{vT[0]}, s[{sB}:{sB+3}], s{sT} offen")
            a(f"s_add_u32 s{sT}, s{sT}, {50*128}")
    masks()
    a("s_waitcnt lgkmcnt(0)")
    a("s_barrier")
    a(f"s_add_u32 s{sNonce}, s{sNonce}, 1")
    a.label(L("lfree"))
    a("s_waitcnt vmcnt(0) lgkmcnt(0)")
    lds_inc(8)
    a(f"s_branch {L('att')}")

    a.label(L("comp"))
    V = Alloc(VB, TOP)
    vRX = [V.get() for _ in range(4)]; vRW = [V.get() for _ in range(2)]
    vE = [V.get() for _ in range(8)]
    vTch = V.get(2)
    XF = [[V.get(4, 4) for _ in range(2)] for _ in range(2)]
    WF = [[V.get(4, 4) for _ in range(2)] for _ in range(2)]
    ACC = [[V.get(16, 4) for _ in range(2)] for _ in range(2)]
    PK = TOP - 32
    sMask = sD; sScale = sD + 2
    a(f"s_setprio {cprio}")
    nat_read_addrs(vRX, sWm, 13)
    for x in range(2):
        for w in range(2):
            for i in range(16): a(f"v_mov_b32 v{ACC[x][w]+i}, 0")
    after_kernarg()
    masks()
    a(f"s_cmp_lg_u32 s{sW}, 0")
    a(f"s_cbranch_scc1 {L('c1')}")
    a(f"ds_write_b128 v{vCtl}, {vr(ACC[0][0],4)}")
    a(f"ds_write_b128 v{vCtl}, {vr(ACC[0][0],4)} offset:16")
    a.label(L("c1"))
    def poison(sd, pr):
        a(f"s_and_b32 s{sT}, s{sJ}, 3")
        a(f"s_lshl_b32 s{sT2}, s{sXc}, 2")
        a(f"s_add_u32 s{sT}, s{sT}, s{sT2}")
        a(f"s_and_b32 s{sCnt}, s{sT}, 1")
        a(f"s_lshr_b32 s{sT}, s{sT}, 1")
        a(f"s_mul_i32 s{sT}, s{sT}, {5*WL.PL}")
        a(f"s_add_u32 s{sT}, s{sT}, {WL.OF}")
        srd(a, sd, sWS, f"s{sT}", 5 * WL.PL)
        a(f"s_and_b32 s{sT}, s{sJ}, 28")
        a(f"s_add_u32 s{sT}, s{sT}, s{sW}")
        a(f"s_lshl_b32 s{sT}, s{sT}, 10")
        a(f"v_lshl_add_u32 v{vT[0]}, v{vL}, 4, s{sT}")
        for i in range(4): a(f"v_mov_b32 v{pr+i}, -1")
        a(f"s_mul_i32 s{sT}, s{sCnt}, {3*WL.PL}")
        a(f"buffer_store_dwordx4 {vr(pr,4)}, v{vT[0]}, s[{sd}:{sd+3}], s{sT} offen sc1")
        a(f"s_add_u32 s{sT}, s{sT}, {WL.PL}")
        a(f"buffer_store_dwordx4 {vr(pr,4)}, v{vT[0]}, s[{sd}:{sd+3}], s{sT} offen sc1")
        a(f"s_lshl_b32 s{sT}, s{sCnt}, 3")
        a(f"s_add_u32 s{sT}, s{sT}, {2*WL.PL}")
        a(f"buffer_store_dwordx2 {vr(pr,2)}, v{vT[0]}, s[{sd}:{sd+3}], s{sT} offen sc1")
    if pois == 1: poison(sC, PK)
    def mainloop(mode):
        def rdX(s, ks, x): a(f"ds_read_b128 {vr(XF[s][x],4)}, v{vRX[ks]} offset:{4096*x}")
        def rdW(s, ks, w):
            a(f"ds_read_b64_tr_b16 {vr(WF[s][w],2)}, v{vRW[w]} offset:{4096*ks}")
            a(f"ds_read_b64_tr_b16 {vr(WF[s][w]+2,2)}, v{vRW[w]} offset:{4096*ks+1024}")
        def mf(s, x, w):
            A, B = (WF[s][w], XF[s][x]) if mode == 'qk' else (XF[s][x], WF[s][w])
            a(f"v_mfma_f32_32x32x16_bf16 {vr(ACC[x][w],16)}, {vr(A,4)}, {vr(B,4)}, {vr(ACC[x][w],16)}")
        a("s_waitcnt lgkmcnt(0)")
        a("s_barrier")
        st.stamp("b0")
        if stamps: a("s_waitcnt lgkmcnt(0)")
        rdX(0, 0, 0); rdW(0, 0, 0); rdX(0, 0, 1); rdW(0, 0, 1)
        a(f"s_mov_b32 s{sCnt}, 0")
        a.raw(".p2align 5")
        a.label(L(mode + "loop"))
        for ks in range(4):
            s = ks % 2; n = 1 - s; nk = (ks + 1) % 4
            if ks < 3:
                a("s_waitcnt lgkmcnt(3)")
                mf(s, 0, 0)
                if ks == 0 and touch:
                    a(f"s_cmp_lg_u32 s{sCnt}, {tpos}")
                    a(f"s_cbranch_scc1 {L(mode+'nt')}")
                    a(f"buffer_load_dword v{vTch}, v{vTch+1}, s[{sE}:{sE+3}], 0 offen")
                    a.label(L(mode + "nt"))
            else:
                a("s_waitcnt lgkmcnt(0)")
                mf(s, 0, 0)
                a(f"s_add_u32 s{sCnt}, s{sCnt}, 1")
                a(f"s_cmp_eq_u32 s{sCnt}, 10")
                a(f"s_cbranch_scc1 {L(mode+'last')}")
                a("s_barrier")
                for r in vRX + vRW:
                    a(f"v_xor_b32 v{r}, s{sMask}, v{r}")
            rdX(n, nk, 0); rdW(n, nk, 0)
            if ks < 3: a("s_waitcnt lgkmcnt(5)")
            mf(s, 1, 0)
            rdX(n, nk, 1)
            if ks < 3: a("s_waitcnt lgkmcnt(4)")
            mf(s, 0, 1)
            rdW(n, nk, 1)
            if ks == 3: a(f"s_xor_b32 s{sMask}, s{sMask}, 0x18000")
            mf(s, 1, 1)
        a(f"s_branch {L(mode+'loop')}")
        a.label(L(mode + "last"))
        mf(1, 0, 1); mf(1, 1, 0); mf(1, 1, 1)
        lds_inc(8)
        st.stamp("aend")
        a("s_nop 1")
    a(f"s_mov_b32 s{sMask}, 0x8000")
    a(f"s_cmp_ge_u32 s{sJ}, 30")
    a(f"s_cbranch_scc1 {L('gate')}")
    a(f"s_lshl_b32 s{sAF}, s{sCb}, 4")
    a(f"s_add_u32 s{sAF}, s{sAF}, s{sRb}")
    if touch:
        sel_srd(sE, sWm, 10, 12, 640 * 1280)
        a(f"s_lshl_b32 s{sT}, s{sJ}, 1")
        a(f"s_add_u32 s{sT}, s{sT}, s{sWn}")
        a(f"s_mul_i32 s{sT}, s{sT}, {27*128}")
        a(f"s_lshr_b32 s{sT2}, s{sXc}, 2")
        a(f"s_mul_i32 s{sT2}, s{sT2}, {160*1280}")
        a(f"s_add_u32 s{sT}, s{sT}, s{sT2}")
        a(f"v_min_u32 v{vTch+1}, 26, v{vL}")
        a(f"v_lshl_add_u32 v{vTch+1}, v{vTch+1}, 7, s{sT}")
    a(f"v_bfe_u32 v{vT[0]}, v{vL}, 2, 2")
    a(f"v_lshrrev_b32 v{vT[1]}, 5, v{vL}")
    a(f"v_lshl_add_u32 v{vT[1]}, v{vT[1]}, 3, v{vT[0]}")
    a(f"v_lshlrev_b32 v{vT[1]}, 8, v{vT[1]}")
    a(f"s_lshl_b32 s{sT}, s{sWn}, 1")
    a(f"v_xor_b32 v{vT[0]}, s{sT}, v{vT[0]}")
    a(f"v_lshl_add_u32 v{vT[1]}, v{vT[0]}, 6, v{vT[1]}")
    a(f"v_bfe_u32 v{vT[0]}, v{vL}, 4, 1")
    a(f"v_lshl_add_u32 v{vT[1]}, v{vT[0]}, 5, v{vT[1]}")
    a(f"v_add_u32 v{vT[1]}, 0x4000, v{vT[1]}")
    a(f"v_and_b32 v{vT[4]}, 31, v{vL}")
    a(f"v_lshrrev_b32 v{vT[5]}, 5, v{vL}")
    a(f"s_cmp_ge_u32 s{sCb}, 10")
    a(f"s_cbranch_scc1 {L('v')}")
    a(f"v_and_b32 v{vT[0]}, 1, v{vL}")
    a(f"v_lshl_add_u32 v{vT[1]}, v{vT[0]}, 4, v{vT[1]}")
    a(f"v_bfe_u32 v{vT[0]}, v{vL}, 1, 1")
    a(f"v_lshl_add_u32 v{vRW[0]}, v{vT[0]}, 3, v{vT[1]}")
    a(f"v_xor_b32 v{vRW[1]}, 64, v{vRW[0]}")
    a(f"s_cmp_ge_u32 s{sCb}, 5")
    a(f"s_cselect_b32 s{sScale}, 1.0, {hex(QSCALE)}")
    a(f"s_mov_b32 s{sScale+1}, s{sScale}")
    srd(a, sC, sWS, WL.QF, 160 * WL.PL)
    a(f"s_lshl_b32 s{sT}, s{sCb}, 1")
    a(f"s_add_u32 s{sT}, s{sT}, s{sWn}")
    a(f"s_lshl_b32 s{sT}, s{sT}, 18")
    a(f"s_lshl_b32 s{sT2}, s{sRb}, 1")
    a(f"s_add_u32 s{sT2}, s{sT2}, s{sWm}")
    a(f"s_lshl_b32 s{sT2}, s{sT2}, 10")
    a(f"s_add_u32 s{sT}, s{sT}, s{sT2}")
    a(f"v_lshlrev_b32 v{vE[0]}, 15, v{vT[5]}")
    a(f"v_lshl_add_u32 v{vE[0]}, v{vT[4]}, 4, v{vE[0]}")
    a(f"v_add_u32 v{vE[0]}, s{sT}, v{vE[0]}")
    for e in range(1, 4): a(f"v_add_u32 v{vE[e]}, {e*2*WL.PL}, v{vE[0]}")
    mainloop('qk')
    for x in range(2):
        for w in range(2):
            acc = ACC[x][w]; pk = PK + 8 * (2 * x + w)
            for i in range(0, 16, 2): a(f"v_pk_mul_f32 {vr(acc+i,2)}, {vr(acc+i,2)}, s[{sScale}:{sScale+1}]")
            for i in range(8): a(f"v_cvt_pk_bf16_f32 v{pk+i}, v{acc+2*i}, v{acc+2*i+1}")
            for j in range(2):
                a(f"buffer_store_dwordx4 {vr(pk+4*j,4)}, v{vE[2*w+j]}, s[{sC}:{sC+3}], 0 offen offset:{512*x} sc1")
    a(f"s_branch {L('adone')}")
    a.label(L("v"))
    a(f"v_and_b32 v{vT[0]}, 3, v{vL}")
    a(f"v_lshl_add_u32 v{vRW[0]}, v{vT[0]}, 3, v{vT[1]}")
    a(f"v_xor_b32 v{vRW[1]}, 64, v{vRW[0]}")
    srd(a, sC, sWS, WL.VF, 64 * WL.VT)
    a(f"s_lshl_b32 s{sT}, s{sRb}, 1")
    a(f"s_add_u32 s{sT}, s{sT}, s{sWm}")
    a(f"s_mul_i32 s{sT}, s{sT}, {2*WL.VT}")
    a(f"s_sub_u32 s{sT2}, s{sCb}, 10")
    a(f"s_lshl_b32 s{sT2}, s{sT2}, 1")
    a(f"s_add_u32 s{sT2}, s{sT2}, s{sWn}")
    a(f"s_lshl_b32 s{sT2}, s{sT2}, 10")
    a(f"s_add_u32 s{sT}, s{sT}, s{sT2}")
    a(f"v_mul_u32_u24 v{vE[0]}, 10240, v{vT[5]}")
    a(f"v_lshl_add_u32 v{vE[0]}, v{vT[4]}, 4, v{vE[0]}")
    a(f"v_add_u32 v{vE[0]}, s{sT}, v{vE[0]}")
    for e in range(1, 4): a(f"v_add_u32 v{vE[e]}, {e*20480}, v{vE[0]}")
    mainloop('v')
    for x in range(2):
        for w in range(2):
            acc = ACC[x][w]; pk = PK + 8 * (2 * x + w)
            for i in range(8): a(f"v_cvt_pk_bf16_f32 v{pk+i}, v{acc+2*i}, v{acc+2*i+1}")
            for j in range(2):
                a(f"buffer_store_dwordx4 {vr(pk+4*j,4)}, v{vE[2*x+j]}, s[{sC}:{sC+3}], 0 offen offset:{512*w} sc1")
    a(f"s_branch {L('adone')}")
    a.label(L("gate"))
    GW = 40; GX = 60
    assert vTch + 2 <= GW and GX + 160 <= PK
    srd(a, sB, 20, 0, 1280)
    srd(a, sC, sWS, WL.GATE, 2048 * 8)
    a(f"v_and_b32 v{vT[0]}, 15, v{vL}")
    a(f"v_lshlrev_b32 v{vT[0]}, 4, v{vT[0]}")
    a(f"s_and_b32 s{sAF}, s{sXc}, 3")
    a(f"s_lshl_b32 s{sAF}, s{sAF}, 2")
    a(f"s_lshr_b32 s{sT}, s{sXc}, 2")
    a(f"s_lshl_b32 s{sT}, s{sT}, 1")
    a(f"s_add_u32 s{sAF}, s{sAF}, s{sT}")
    a(f"s_add_u32 s{sAF}, s{sAF}, s{sJ}")
    a(f"s_sub_u32 s{sAF}, s{sAF}, 30")
    a(f"s_lshl_b32 s{sT}, s{sAF}, 1")
    a(f"s_add_u32 s{sT}, s{sT}, s{sWn}")
    a(f"s_add_u32 s{sAF}, s{sAF}, 240")
    a(f"s_lshl_b32 s{sT2}, s{sWm}, 5")
    a(f"v_lshrrev_b32 v{vT[5]}, 4, v{vL}")
    a(f"s_add_u32 s{sCnt}, s{sT}, s{sT2}")
    a(f"v_lshl_add_u32 v{vT[2]}, v{vT[5]}, 6, s{sCnt}")
    a(f"v_mul_u32_u24 v{vT[2]}, 1280, v{vT[2]}")
    a(f"v_add_u32 v{vT[2]}, v{vT[2]}, v{vT[0]}")
    a(f"s_lshl_b32 s{sT}, s{sT}, 6")
    a(f"s_add_u32 s{sT}, s{sT}, s{sT2}")
    a(f"v_add_u32 v{vT[5]}, s{sT}, v{vT[5]}")
    a(f"v_lshlrev_b32 v{vT[5]}, 3, v{vT[5]}")
    a(f"v_cmp_eq_u32 vcc, 0, v{vT[0]}")
    a("s_waitcnt lgkmcnt(0)")
    a("s_barrier")
    for p in range(5):
        a(f"buffer_load_dwordx4 {vr(GW+4*p,4)}, v{vT[0]}, s[{sB}:{sB+3}], 0 offen offset:{256*p}")
    for r in range(8):
        b4 = (r & 4) * 4 + (r & 1) * 8 + (r & 2) * 2
        a(f"s_mov_b32 s{sT}, {b4*64*1280}")
        for p in range(5):
            a(f"buffer_load_dwordx4 {vr(GX+20*r+4*p,4)}, v{vT[2]}, s[{sA}:{sA+3}], s{sT} offen offset:{256*p}")
        a(f"v_mov_b32 v{vE[r]}, 0")
    for r in range(8):
        a(f"s_waitcnt vmcnt({35-5*r})")
        for i in range(20):
            a(f"v_dot2c_f32_bf16 v{vE[r]}, v{GX+20*r+i}, v{GW+i}")
    a("s_nop 3")
    for sh in (8, 4, 2, 1):
        for r in range(8):
            a(f"v_add_f32_dpp v{vE[r]}, v{vE[r]}, v{vE[r]} row_ror:{sh} row_mask:0xf bank_mask:0xf")
    GO = PK
    for r in range(8): a(f"v_cvt_pk_bf16_f32 v{vE[r]}, 0, v{vE[r]}")
    for r in range(8): a(f"v_mul_f32 v{vE[r]}, 0xbfb8aa3b, v{vE[r]}")
    for r in range(8): a(f"v_exp_f32 v{vE[r]}, v{vE[r]}")
    for r in range(8): a(f"v_add_f32 v{vE[r]}, 1.0, v{vE[r]}")
    for r in range(8): a(f"v_rcp_f32 v{vE[r]}, v{vE[r]}")
    for r in range(8): a(f"v_cvt_pk_bf16_f32 v{GO+2*r}, 0, v{vE[r]}")
    for r in range(8): a(f"v_sub_f32 v{GO+2*r+1}, 1.0, v{GO+2*r}")
    for r in range(8): a(f"v_cvt_pk_bf16_f32 v{GO+2*r+1}, 0, v{GO+2*r+1}")
    a("s_mov_b64 exec, vcc")
    for r in range(8):
        a(f"buffer_store_dwordx2 {vr(GO+2*r,2)}, v{vT[5]}, s[{sC}:{sC+3}], 0 offen offset:{32*r} sc1")
    a("s_mov_b64 exec, -1")
    lds_inc(8)
    a.label(L("adone"))
    if pois == 2: poison(sC, XF[0][0])
    if fwait: lds_inc(20)
    st.stamp("ast")
    a(f"s_add_u32 s{sNonce}, s{sNonce}, 1")
    a(f"s_lshl_b32 s{sAF}, s{sAF}, 7")
    a(f"s_add_u32 s{sAF}, s{sAF}, {WL.FA}")

    a.label(L("att"))
    V = Alloc(VB, TOP)
    vKm = V.get(); vKr = V.get(); vV0 = V.get(); vV1 = V.get(); vM = V.get(); vWo = V.get()
    Qm = [V.get(4, 4) for _ in range(2)]
    Qr = [V.get(2) for _ in range(2)]
    Km = [V.get(4, 4) for _ in range(4)]
    Kr = [V.get(2) for _ in range(4)]
    Vb = [[V.get(4, 4) for _ in range(2)] for _ in range(4)]
    P = V.get(8, 4)
    S = [V.get(16, 4) for _ in range(2)]
    O = [V.get(16, 4) for _ in range(2)]
    K0m = V.get(4, 4); K0r = V.get(2)
    vG = V.get(2); vO = V.get(); vSt = V.get(); vGd = V.get(); vWs = V.get(); vX0 = V.get(); vX1 = V.get(); vGt = V.get(); vDum = V.get()
    WsF = [V.get(4, 4) for _ in range(2)]
    GFl = V.get(12, 4)
    att_hi = V.p
    assert att_hi <= TOP - 32
    OFr = [V.get(4, 4) for _ in range(10)]
    AC = [V.get(4, 4) for _ in range(5)]
    sK = sA; sV = sB; sQ = sC; sWo = sD
    sHead = 98; sQb = 99; sKh = 100; sOK = 101; sOV = 14; sOWo = 15; sM0 = 3; sPar = sE; sHp = sE + 1; sStep = sE + 2; sU0 = sE + 3
    sCc = sHead; sEb8 = sQb; sMs = sPar; sStep2 = sAF
    a(f"s_and_b32 s{sT}, s{sJ}, 3")
    a(f"s_lshl_b32 s{sHead}, s{sXc}, 2")
    a(f"s_add_u32 s{sHead}, s{sHead}, s{sT}")
    a(f"s_lshr_b32 s{sQb}, s{sJ}, 2")
    a(f"s_lshr_b32 s{sKh}, s{sW}, 2")
    a(f"s_and_b32 s{sPar}, s{sHead}, 1")
    a(f"s_lshr_b32 s{sHp}, s{sHead}, 1")
    a(f"s_mul_i32 s{sHp}, s{sHp}, {5*WL.PL}")
    a(f"v_and_b32 v{vT[0]}, 31, v{vL}")
    a(f"v_lshrrev_b32 v{vT[1]}, 5, v{vL}")
    a(f"s_mul_i32 s{sT}, s{sPar}, {3*WL.PL}")
    a(f"v_lshlrev_b32 v{vKm}, 15, v{vT[1]}")
    a(f"v_lshl_add_u32 v{vKm}, v{vT[0]}, 4, v{vKm}")
    a(f"v_add_u32 v{vKm}, s{sT}, v{vKm}")
    a(f"s_lshl_b32 s{sT}, s{sPar}, 3")
    a(f"s_add_u32 s{sT}, s{sT}, {2*WL.PL}")
    a(f"v_lshl_add_u32 v{vKr}, v{vT[0]}, 4, s{sT}")
    a(f"v_and_b32 v{vT[2]}, 0x13, v{vT[0]}")
    a(f"v_bfe_u32 v{vT[3]}, v{vT[0]}, 2, 1")
    a(f"v_lshl_add_u32 v{vT[2]}, v{vT[3]}, 3, v{vT[2]}")
    a(f"v_bfe_u32 v{vT[3]}, v{vT[0]}, 3, 1")
    a(f"v_lshl_add_u32 v{vT[2]}, v{vT[3]}, 2, v{vT[2]}")
    a(f"v_and_b32 v{vT[5]}, 15, v{vT[2]}")
    a(f"s_lshl_b32 s{sT}, s{sPar}, 2")
    a(f"v_add_u32 v{vT[2]}, s{sT}, v{vT[2]}")
    a(f"v_subrev_u32 v{vT[3]}, 20, v{vT[2]}")
    a(f"v_min_u32 v{vT[2]}, v{vT[2]}, v{vT[3]}")
    a(f"s_mul_i32 s{sT}, s{sHead}, 320")
    a(f"v_mul_u32_u24 v{vV0}, 10240, v{vT[1]}")
    a(f"v_lshl_add_u32 v{vV0}, v{vT[2]}, 4, v{vV0}")
    a(f"v_add_u32 v{vV0}, s{sT}, v{vV0}")
    a(f"v_add_u32 v{vV1}, 20480, v{vV0}")
    a(f"s_add_u32 s{sT}, s{sHp}, {WL.KF}")
    srd(a, sK, sWS, f"s{sT}", 5 * WL.PL)
    srd(a, sV, sWS, WL.VF, 64 * WL.VT)
    a(f"s_add_u32 s{sT}, s{sHp}, {WL.QF}")
    srd(a, sQ, sWS, f"s{sT}", 5 * WL.PL)
    a(f"s_lshl_b32 s{sOK}, s{sKh}, 14")
    a(f"s_mul_i32 s{sOV}, s{sKh}, {32*WL.VT}")
    a(f"s_lshl_b32 s{sU0}, s{sQb}, 2")
    a(f"s_and_b32 s{sT}, s{sW}, 3")
    a(f"s_add_u32 s{sU0}, s{sU0}, s{sT}")
    a(f"s_lshl_b32 s{sU0}, s{sU0}, 10")
    for r in [K0r] + Kr:
        a(f"v_mov_b32 v{r}, 0x3f803f80")
        a(f"v_mov_b32 v{r+1}, 0x3f80")
    for q in range(2):
        a(f"v_mov_b32 v{Qr[q]}, 0"); a(f"v_mov_b32 v{Qr[q]+1}, 0")
    a(f"v_cmp_eq_u32 vcc, 20, v{vT[0]}")
    a(f"v_mov_b32 v{vT[2]}, 0x3f803f80")
    a(f"v_mov_b32 v{vT[3]}, 0")
    a(f"v_cndmask_b32 v{vT[2]}, v{vT[3]}, v{vT[2]}, vcc")
    for b in range(4):
        for j in range(2):
            for i in range(4): a(f"v_mov_b32 v{Vb[b][j]+i}, v{vT[2]}")
    for q in range(2):
        for i in range(16): a(f"v_mov_b32 v{O[q]+i}, 0")
    for i in range(8): a(f"v_mov_b32 v{P+i}, 0")
    a(f"v_and_b32 v{vT[0]}, 15, v{vL}")
    a(f"v_lshrrev_b32 v{vT[1]}, 4, v{vL}")
    a(f"s_and_b32 s{sT}, s{sW}, 3")
    a(f"s_lshl_b32 s{sT}, s{sT}, 4")
    a(f"s_lshl_b32 s{sT2}, s{sCc}, 6")
    a(f"s_add_u32 s{sT}, s{sT}, s{sT2}")
    a(f"v_add_u32 v{vT[2]}, s{sT}, v{vT[0]}")
    a(f"s_and_b32 s{sT}, s{sW}, 1")
    a(f"s_lshl_b32 s{sT}, s{sT}, 10")
    a(f"s_and_b32 s{sT2}, s{sW}, 2")
    a(f"s_lshl_b32 s{sT2}, s{sT2}, 4")
    a(f"s_add_u32 s{sT}, s{sT}, s{sT2}")
    a(f"s_add_u32 s{sT}, s{sT}, s{sCc}")
    a(f"v_lshl_add_u32 v{vT[0]}, v{vT[5]}, 6, s{sT}")
    a(f"v_lshlrev_b32 v{vWs}, 12, v{vT[0]}")
    a(f"v_lshl_add_u32 v{vWs}, v{vT[1]}, 4, v{vWs}")
    a(f"v_lshlrev_b32 v{vGt}, 3, v{vT[2]}")
    a(f"v_lshlrev_b32 v{vO}, 4, v{vT[2]}")
    a(f"v_lshl_add_u32 v{vO}, v{vT[1]}, 15, v{vO}")
    a(f"s_mul_i32 s{sT}, s{sKh}, {40*WL.PL}")
    a(f"v_add_u32 v{vO}, s{sT}, v{vO}")
    a(f"v_mul_u32_u24 v{vSt}, 1280, v{vT[0]}")
    a(f"v_lshl_add_u32 v{vSt}, v{vT[1]}, 3, v{vSt}")
    a(f"s_mul_i32 s{sT}, s{sEb8}, 160")
    a(f"v_add_u32 v{vSt}, s{sT}, v{vSt}")
    a(f"v_mul_u32_u24 v{vT[2]}, 205, v{vL}")
    a(f"v_lshrrev_b32 v{vT[2]}, 11, v{vT[2]}")
    a(f"v_mul_u32_u24 v{vWo}, {1280-160}, v{vT[2]}")
    a(f"v_lshl_add_u32 v{vWo}, v{vL}, 4, v{vWo}")
    a(f"v_add_u32 v{vWo}, s{sT}, v{vWo}")
    a(f"v_mul_u32_u24 v{vT[2]}, 187, v{vL}")
    a(f"v_lshrrev_b32 v{vT[2]}, 11, v{vT[2]}")
    a(f"v_mul_u32_u24 v{vT[3]}, 11, v{vT[2]}")
    a(f"v_sub_u32 v{vT[3]}, v{vL}, v{vT[3]}")
    a(f"v_mul_u32_u24 v{vGd}, {WL.GA}, v{vT[2]}")
    a(f"v_lshrrev_b32 v{vT[2]}, 1, v{vT[3]}")
    a(f"v_lshl_add_u32 v{vGd}, v{vT[2]}, 10, v{vGd}")
    a(f"v_and_b32 v{vT[3]}, 1, v{vT[3]}")
    a(f"v_lshl_add_u32 v{vGd}, v{vT[3]}, 4, v{vGd}")
    a(f"s_sub_u32 s{sT}, 7, s{sEb8}")
    a(f"s_sub_u32 s{sT2}, 32, s{sCc}")
    a(f"s_and_b32 s{sT2}, s{sT2}, 31")
    a(f"s_cmp_lt_u32 s{sEb8}, 4")
    a(f"s_cselect_b32 s{sT}, s{sEb8}, s{sT}")
    a(f"s_cselect_b32 s{sT2}, s{sCc}, s{sT2}")
    a(f"s_mul_i32 s{sT}, s{sT}, 5120")
    a(f"s_lshl_b32 s{sT2}, s{sT2}, 5")
    a(f"s_add_u32 s{sT}, s{sT}, s{sT2}")
    a(f"v_add_u32 v{vGd}, s{sT}, v{vGd}")
    def dma_params(pitch_g, pitch_l, steps_half, lbase):
        a(f"s_and_b32 s{sT}, s{sW}, 3")
        a(f"s_mul_i32 s{sT2}, s{sKh}, {8*steps_half}")
        a(f"s_add_u32 s{sM0}, s{sT}, s{sT2}")
        a(f"s_mul_i32 s{sM0}, s{sM0}, {4*pitch_l}")
        if lbase: a(f"s_add_u32 s{sM0}, s{sM0}, {lbase}")
        a(f"s_lshl_b32 s{sT}, s{sT}, 1")
        a(f"s_add_u32 s{sOWo}, s{sT}, s{sT2}")
        a(f"s_mul_i32 s{sOWo}, s{sOWo}, {4*pitch_g}")
        a(f"s_mov_b32 s{sStep}, {4*pitch_g}")
        a(f"s_mov_b32 s{sStep2}, {28*pitch_g}")
        a(f"s_mov_b32 s{sMs}, {16*pitch_l}")
    srd(a, sWo, 18, 0, 640 * 1280)
    a(f"s_mul_i32 s{sT}, s{sW}, 3072")
    a(f"s_add_u32 s{sT}, s{sT}, {LDS_X}")
    a(f"v_lshl_add_u32 v{vX0}, v{vL}, 4, s{sT}")
    a(f"s_xor_b32 s{sT}, s{sW}, 4")
    a(f"s_mul_i32 s{sT}, s{sT}, 3072")
    a(f"s_add_u32 s{sT}, s{sT}, {LDS_X}")
    a(f"v_lshl_add_u32 v{vX1}, v{vL}, 4, s{sT}")
    a(f"s_cmp_eq_u32 s{sAF}, 0")
    a(f"s_cbranch_scc1 {L('nsig')}")
    a(f"v_mov_b32 v{vT[0]}, 1")
    a("s_waitcnt vmcnt(0)")
    a("s_mov_b64 exec, 1")
    a(f"ds_add_rtn_u32 v{vT[1]}, v{vCtl}, v{vT[0]} offset:4")
    a("s_mov_b64 exec, -1")
    a("s_waitcnt lgkmcnt(0)")
    a(f"v_readfirstlane_b32 s{sT}, v{vT[1]}")
    a("s_nop 1")
    a(f"s_cmp_lg_u32 s{sT}, 3")
    a(f"s_cbranch_scc1 {L('nsig2')}")
    put_flag(f"s{sAF}")
    st.stamp("aflag")
    a.label(L("nsig2"))
    if pois == 3:
        lds_wait("wp", 4, 4)
        poison(sD, GFl)
        srd(a, sWo, 18, 0, 640 * 1280)
    a.label(L("nsig"))
    dma_params(1280, 160, 10, 0)
    def aux_loads():
        if pois == 4:
            a(f"s_cmp_lg_u32 s{sKh}, 0")
            a(f"s_cbranch_scc1 {L('np4')}")
            poison(sD, GFl)
            a(f"s_mov_b32 s{sCnt}, 6")
            a.label(L("np4"))
        if gdefer == 1:
            a(f"s_cmp_eq_u32 s{sGF}, 0")
            a(f"s_cbranch_scc1 {L('gs2')}")
            g_stores(sD)
            a.label(L("gs2"))
        sel_srd(sD, sKh, 6, 8, 2048 * 4096)
        a(f"buffer_load_dwordx4 {vr(WsF[0],4)}, v{vWs}, s[{sD}:{sD+3}], 0 offen")
        a(f"buffer_load_dwordx4 {vr(WsF[1],4)}, v{vWs}, s[{sD}:{sD+3}], 0 offen offset:64")
        srd(a, sWo, 18, 0, 640 * 1280)
        if wotouch:
            a(f"s_lshl_b32 s{sT}, s{sJ}, 3")
            a(f"s_add_u32 s{sT}, s{sT}, s{sW}")
            a(f"s_mul_i32 s{sT}, s{sT}, {25*128}")
            a(f"v_min_u32 v{vT[0]}, 24, v{vL}")
            a(f"v_lshlrev_b32 v{vT[0]}, 7, v{vT[0]}")
            a(f"buffer_load_dword v{vDum}, v{vT[0]}, s[{sWo}:{sWo+3}], s{sT} offen")
    a(f"s_cmp_eq_u32 s{sW}, 0")
    a(f"s_cbranch_scc1 {L('poll')}")
    if ldelay:
        a(f"ds_read_b32 v{vT[0]}, v{vCtl}")
        a("s_waitcnt lgkmcnt(0)")
        a(f"v_readfirstlane_b32 s{sT}, v{vT[0]}")
        a("s_nop 1")
        a(f"s_cmp_eq_u32 s{sT}, 1")
        a(f"s_cbranch_scc1 {L('go')}")
    lds_wait("wa", 0, 1, wsleep)
    if ldelay:
        a(f"s_cmp_eq_u32 s{sKh}, 0")
        a(f"s_cbranch_scc1 {L('go')}")
        a(f"s_sleep {ldelay}")
    a(f"s_branch {L('go')}")
    a.label(L("poll"))
    a(f"s_mul_i32 s{sT}, s{sHead}, 20")
    a(f"v_bfe_u32 v{vT[0]}, v{vL}, 4, 1")
    a(f"v_mul_u32_u24 v{vT[0]}, 19, v{vT[0]}")
    a(f"v_add_u32 v{vT[0]}, s{sT}, v{vT[0]}")
    a(f"v_lshrrev_b32 v{vT[0]}, 7, v{vT[0]}")
    a(f"v_lshrrev_b32 v{vT[1]}, 5, v{vL}")
    a(f"v_mul_u32_u24 v{vT[1]}, 5, v{vT[1]}")
    a(f"v_add3_u32 v{vT[1]}, v{vT[1]}, v{vT[0]}, 5")
    a(f"v_and_b32 v{vT[2]}, 15, v{vL}")
    a(f"v_lshl_add_u32 v{vT[1]}, v{vT[1]}, 4, v{vT[2]}")
    a(f"v_lshlrev_b32 v{vT[1]}, 7, v{vT[1]}")
    a(f"s_lshl_b32 s{sT}, s{sQb}, 1")
    a(f"v_and_b32 v{vT[2]}, 1, v{vL}")
    a(f"v_lshl_add_u32 v{vT[0]}, v{vT[0]}, 4, v{vT[2]}")
    a(f"v_add_u32 v{vT[0]}, s{sT}, v{vT[0]}")
    a(f"v_lshlrev_b32 v{vT[0]}, 7, v{vT[0]}")
    a(f"s_mov_b32 s{sT2}, {WL.FA}")
    spin_begin("pa")
    a(f"buffer_load_dword v{vT[2]}, v{vT[1]}, s[{sFl}:{sFl+3}], s{sT2} offen sc1")
    a(f"buffer_load_dword v{vT[3]}, v{vT[0]}, s[{sFl}:{sFl+3}], s{sT2} offen sc1")
    a("s_waitcnt vmcnt(0)")
    for i in range(2): a(f"v_xor_b32 v{vT[2]+i}, s{sNonce}, v{vT[2]+i}")
    a(f"v_or_b32 v{vT[2]}, v{vT[2]}, v{vT[3]}")
    a(f"v_cmp_ne_u32 vcc, 0, v{vT[2]}")
    a("s_nop 1")
    a("s_cmp_eq_u64 vcc, 0")
    a(f"s_cbranch_scc1 {L('pad')}")
    spin_end("pa", psleep)
    a.label(L("pad"))
    a(f"v_mov_b32 v{vT[0]}, 1")
    a(f"ds_write_b32 v{vCtl}, v{vT[0]}")
    a.label(L("go"))
    st.stamp("ardy")
    PS = '' if pplain else ' sc1'
    a(f"buffer_load_dwordx4 {vr(K0m,4)}, v{vKm}, s[{sK}:{sK+3}], 0 offen{PS}")
    a(f"buffer_load_dwordx4 {vr(Qm[0],4)}, v{vKm}, s[{sQ}:{sQ+3}], s{sU0} offen{PS}")
    a(f"buffer_load_dwordx4 {vr(Qm[1],4)}, v{vKm}, s[{sQ}:{sQ+3}], s{sU0} offen offset:512{PS}")
    a(f"s_mov_b64 exec, s[{sLo}:{sLo+1}]")
    a(f"buffer_load_dwordx2 {vr(K0r,2)}, v{vKr}, s[{sK}:{sK+3}], 0 offen{PS}")
    a(f"buffer_load_dwordx2 {vr(Qr[0],2)}, v{vKr}, s[{sQ}:{sQ+3}], s{sU0} offen{PS}")
    a(f"buffer_load_dwordx2 {vr(Qr[1],2)}, v{vKr}, s[{sQ}:{sQ+3}], s{sU0} offen offset:512{PS}")
    a(f"buffer_load_dwordx2 {vr(Kr[0],2)}, v{vKr}, s[{sK}:{sK+3}], s{sOK} offen{PS}")
    a("s_mov_b64 exec, -1")
    a(f"buffer_load_dwordx4 {vr(Km[0],4)}, v{vKm}, s[{sK}:{sK+3}], s{sOK} offen{PS}")
    SC = ' sc1' if kvsc1 else ''
    def ex(m, inloop):
        if inloop and noexec: return
        a(f"s_mov_b64 exec, s[{m}:{m+1}]" if m is not None else "s_mov_b64 exec, -1")
    def ldKr(kb, koff): a(f"buffer_load_dwordx2 {vr(Kr[kb],2)}, v{vKr}, s[{sK}:{sK+3}], s{sOK} offen offset:{koff}{SC}")
    def ldKm(kb, koff): a(f"buffer_load_dwordx4 {vr(Km[kb],4)}, v{vKm}, s[{sK}:{sK+3}], s{sOK} offen offset:{koff}{SC}")
    def ldV(vb, j): a(f"buffer_load_dwordx4 {vr(Vb[vb][j],4)}, v{vV0+j}, s[{sV}:{sV+3}], s{sOV} offen{SC}")
    def group(kb, vb, koff, inloop=False):
        if inloop and noload: return
        ex(sLo, inloop); ldKr(kb, koff)
        ex(sVm, inloop); ldV(vb, 0); ldV(vb, 1)
        ex(None, inloop); ldKm(kb, koff)
        a(f"s_add_u32 s{sOV}, s{sOV}, {WL.VT}")
    group(1, 0, 512)
    a("s_waitcnt vmcnt(6)")
    st.stamp("qld")
    for q in range(2):
        a(f"v_mfma_f32_32x32x16_bf16 {vr(S[q],16)}, {vr(K0m,4)}, {vr(Qm[q],4)}, 0")
    if glate: a("s_nop 7")
    else: group(2, 1, 1024)
    a("s_nop 1")
    for q in range(2):
        a(f"v_mfma_f32_32x32x8_bf16 {vr(S[q],16)}, {vr(K0r,2)}, {vr(Qr[q],2)}, {vr(S[q],16)}")
    if glate: a("s_nop 7")
    else: group(3, 2, 1536)
    a("s_nop 3")
    for q in range(2):
        a(f"v_max3_f32 v{S[q]}, v{S[q]}, v{S[q]+1}, v{S[q]+2}")
        for i in range(3, 9 if m8 else 15, 2):
            a(f"v_max3_f32 v{S[q]}, v{S[q]}, v{S[q]+i}, v{S[q]+i+1}")
        if not m8: a(f"v_max_f32 v{S[q]}, v{S[q]}, v{S[q]+15}")
    a(f"s_mov_b64 exec, s[{sHi}:{sHi+1}]")
    for q in range(2):
        a(f"v_cvt_pk_bf16_f32 v{Qr[q]}, -v{S[q]}, 0")
    a("s_mov_b64 exec, -1")
    a("s_waitcnt vmcnt(%d)" % (4 if glate else 12))
    a(f"v_mfma_f32_32x32x16_bf16 {vr(S[0],16)}, {vr(Km[0],4)}, {vr(Qm[0],4)}, 0")
    a(f"s_add_u32 s{sT}, s{sHp}, {WL.OF}")
    srd(a, sQ, sWS, f"s{sT}", 5 * WL.PL)
    a("s_nop 3")
    a(f"v_mfma_f32_32x32x8_bf16 {vr(S[0],16)}, {vr(Kr[0],2)}, {vr(Qr[0],2)}, {vr(S[0],16)}")
    if glate:
        group(2, 1, 1024); group(3, 2, 1536)
    if gdefer == 2:
        a(f"s_cmp_eq_u32 s{sGF}, 0")
        a(f"s_cbranch_scc1 {L('gs2')}")
        g_stores(sD)
        a.label(L("gs2"))
    a(f"s_mov_b32 s{sCnt}, 7")
    a("s_mov_b64 vcc, 0")
    a("s_setprio 3")
    st.stamp("lbeg")
    def exp(q, i): a(f"v_exp_f32 v{S[q]+i}, v{S[q]+i}")
    def cvt(q, i): a(f"v_cvt_pk_bf16_f32 v{P+i}, v{S[q]+2*i}, v{S[q]+2*i+1}")
    def slot(kt, q):
        nq = 1 - q
        nk = (kt + q) % 4
        pk = (kt + q - 1) % 4
        a(f"v_mfma_f32_32x32x16_bf16 {vr(S[nq],16)}, {vr(Km[nk],4)}, {vr(Qm[nq],4)}, 0")
        if spread and q == 0:
            ex(sVm, True); ldV((kt - 1) % 4, 0); ex(None, True)
        for i in range(0, 4): exp(q, i)
        a(f"v_mfma_f32_32x32x16_bf16 {vr(O[nq],16)}, {vr(Vb[pk][1],4)}, {vr(P+4,4)}, {vr(O[nq],16)}")
        if spread and q == 0:
            ex(sVm, True); ldV((kt - 1) % 4, 1); ex(None, True)
            a(f"s_add_u32 s{sOV}, s{sOV}, {WL.VT}")
        for i in range(4, 8): exp(q, i)
        cvt(q, 0)
        a(f"v_mfma_f32_32x32x8_bf16 {vr(S[nq],16)}, {vr(Kr[nk],2)}, {vr(Qr[nq],2)}, {vr(S[nq],16)}")
        if q == 0:
            if spread:
                ex(sLo, True); ldKr(kt, 512 * (kt + 4)); ex(None, True)
            else:
                group(kt, (kt - 1) % 4, 512 * (kt + 4), True)
            if kt == 0:
                a(f"s_cmp_eq_u32 s{sCnt}, 0")
                a(f"s_cselect_b32 s{sV+2}, 0, s{sV+2}")
        else:
            a(f"s_cbranch_vccz {L('nd%d' % kt)}")
            a(f"s_mov_b32 m0, s{sM0}")
            a(f"s_mov_b64 exec, s[{sDm}:{sDm+1}]")
            a(f"buffer_load_dwordx4 v{vWo}, s[{sWo}:{sWo+3}], s{sOWo} offen sc1 lds")
            a("s_mov_b64 exec, -1")
            a(f"s_add_u32 s{sM0}, s{sM0}, s{sMs}")
            a(f"s_add_u32 s{sOWo}, s{sOWo}, s{sStep2 if kt % 2 else sStep}")
            a.label(L("nd%d" % kt))
        for i in range(1, 4): cvt(q, i)
        for i in range(8, 12): exp(q, i)
        if q == 0 and not nowait: a("s_waitcnt vmcnt(%d)" % (11 if spread else 12))
        a(f"v_mfma_f32_32x32x16_bf16 {vr(O[q],16)}, {vr(Vb[kt][0],4)}, {vr(P,4)}, {vr(O[q],16)}")
        if spread and q == 0: ldKm(kt, 512 * (kt + 4))
        for i in range(12, 16): exp(q, i)
        for i in range(4, 8): cvt(q, i)
    def gfl_loads():
        a(f"v_mul_u32_u24 v{vT[0]}, 48, v{vL}")
        a(f"buffer_load_dwordx4 {vr(GFl,4)}, v{vT[0]}, s[{sFl}:{sFl+3}], 0 offen offset:{WL.FG} sc1")
        a(f"buffer_load_dwordx4 {vr(GFl+4,4)}, v{vT[0]}, s[{sFl}:{sFl+3}], 0 offen offset:{WL.FG+16} sc1")
        a(f"buffer_load_dwordx2 {vr(GFl+8,2)}, v{vT[0]}, s[{sFl}:{sFl+3}], 0 offen offset:{WL.FG+32} sc1")
        a(f"s_lshr_b32 s{sT}, s{sCc}, 1")
        a(f"s_lshr_b32 s{sT2}, s{sU0}, 11")
        a(f"v_mov_b32 v{vT[0]}, s{sT}")
        a(f"s_mov_b64 exec, s[{sHi}:{sHi+1}]")
        a(f"v_mov_b32 v{vT[0]}, s{sT2}")
        a("s_mov_b64 exec, -1")
        a(f"v_lshlrev_b32 v{vT[0]}, 7, v{vT[0]}")
        a(f"s_mov_b32 s{sT}, {WL.FA + 240*128}")
        a(f"buffer_load_dword v{GFl+10}, v{vT[0]}, s[{sFl}:{sFl+3}], s{sT} offen sc1")
        a(f"s_lshl_b32 s{sT}, s{sCc}, 1")
        a(f"s_add_u32 s{sT}, s{sT}, s{sKh}")
        a(f"s_lshl_b32 s{sT}, s{sT}, 6")
        a(f"s_add_u32 s{sT}, s{sT}, {WL.FO}")
        a(f"v_and_b32 v{vT[0]}, 15, v{vL}")
        a(f"v_lshlrev_b32 v{vT[0]}, 2, v{vT[0]}")
        a(f"buffer_load_dword v{GFl+11}, v{vT[0]}, s[{sFl}:{sFl+3}], s{sT} offen sc1")
    a("s_nop 7")
    a(f"s_branch {L('loop')}")
    a.label(L("head"))
    for lvl, c in zip((2, 1, 0), prio):
        a(f"s_cmp_lg_u32 s{sCnt}, {c-1}")
        a(f"s_cbranch_scc1 {L('hp%d' % lvl)}")
        a(f"s_setprio {lvl}")
        a.label(L("hp%d" % lvl))
    for c in (4, 2, 1, 0):
        a(f"s_cmp_eq_u32 s{sCnt}, {c}")
        a(f"s_cbranch_scc1 {L('h%d' % c)}")
    a(f"s_cmp_lg_u32 s{sCnt}, 6")
    a(f"s_cbranch_scc1 {L('loop')}")
    aux_loads()
    lds_wait("wr", 8, 8)
    a("s_mov_b64 vcc, %d" % (0 if nodma else -1))
    a(f"s_branch {L('loop')}")
    a.label(L("h4"))
    a(f"s_cmp_lg_u32 s{sKh}, 0")
    a(f"s_cbranch_scc1 {L('h4b')}")
    a(f"s_lshr_b32 s{sGF}, s{sU0}, 5")
    a(f"s_add_u32 s{sGF}, s{sGF}, s{sHead}")
    a(f"s_lshl_b32 s{sGF}, s{sGF}, 2")
    a(f"s_add_u32 s{sGF}, s{sGF}, {WL.FO}")
    a.label(L("h4b"))
    a(f"s_cmp_eq_u32 s{sGF}, 0")
    a(f"s_cbranch_scc1 {L('loop')}")
    put_flag(f"s{sGF}")
    a(f"s_branch {L('loop')}")
    a.label(L("h2"))
    a(f"s_lshl_b32 s{sT}, s2, 3")
    a(f"s_add_u32 s{sT}, s{sT}, s{sW}")
    a(f"s_cmp_lg_u32 s{sT}, 4")
    a(f"s_cbranch_scc1 {L('ed')}")
    a(f"v_lshlrev_b32 v{vT[0]}, 9, v{vL}")
    a(f"s_mov_b32 s{sT2}, {WL.FA}")
    spin_begin("pe")
    for i in range(4): a(f"buffer_load_dword v{vT[2]+i}, v{vT[0]}, s[{sFl}:{sFl+3}], s{sT2} offen offset:{128*i} sc1")
    a("s_waitcnt vmcnt(0)")
    for i in range(4): a(f"v_xor_b32 v{vT[2]+i}, s{sNonce}, v{vT[2]+i}")
    a(f"v_or3_b32 v{vT[2]}, v{vT[2]}, v{vT[3]}, v{vT[4]}")
    a(f"v_or_b32 v{vT[2]}, v{vT[2]}, v{vT[5]}")
    a(f"v_cmp_ne_u32 vcc, 0, v{vT[2]}")
    a("s_nop 1")
    a("s_cmp_eq_u64 vcc, 0")
    a(f"s_cbranch_scc1 {L('ped')}")
    spin_end("pe")
    a.label(L("ped"))
    if rprobe:
        a(f"v_lshlrev_b32 v{vT[0]}, 2, v{vL}")
        a(f"buffer_load_dword v{vT[2]}, v{vT[0]}, s[64:67], 0 offen sc1")
        a("s_waitcnt vmcnt(0)")
        a(f"v_cmp_ne_u32 vcc, 0, v{vT[2]}")
        a("s_nop 1")
        a("s_bcnt1_i32_b64 s68, vcc")
        a("s_cmp_lt_u32 s68, 2")
        a("s_cbranch_scc1 L_rp1")
        for _ in range(16): a("s_sleep 127")
        a.label("L_rp1")
    put_flag("0")
    a("s_mov_b64 vcc, %d" % (0 if nodma else -1))
    a.label(L("ed"))
    gfl_loads()
    a(f"s_branch {L('loop')}")
    a.label(L("h1"))
    spin_begin("pg")
    for i in range(12): a(f"v_xor_b32 v{GFl+i}, s{sNonce}, v{GFl+i}")
    for i in range(1, 11, 2): a(f"v_or3_b32 v{GFl}, v{GFl}, v{GFl+i}, v{GFl+i+1}")
    a(f"v_or_b32 v{GFl}, v{GFl}, v{GFl+11}")
    a(f"v_cmp_ne_u32 vcc, 0, v{GFl}")
    a("s_nop 1")
    a("s_cmp_eq_u64 vcc, 0")
    a(f"s_cbranch_scc1 {L('pgd')}")
    a("s_sleep 8")
    gfl_loads()
    a("s_waitcnt vmcnt(0)")
    spin_end("pg")
    a.label(L("pgd"))
    a("s_mov_b64 vcc, %d" % (0 if nodma else -1))
    srd(a, sWo, sWS, WL.GATE, 2048 * 8)
    a(f"buffer_load_dword v{vG}, v{vGt}, s[{sWo}:{sWo+3}], 0 offen sc1")
    a(f"v_and_b32 v{vT[0]}, 31, v{vL}")
    a(f"v_lshlrev_b32 v{vT[0]}, 3, v{vT[0]}")
    a(f"s_lshl_b32 s{sT}, s{sKh}, 9")
    a(f"s_add_u32 s{sT}, s{sU0}, s{sT}")
    a(f"s_lshr_b32 s{sT}, s{sT}, 1")
    a(f"buffer_load_dword v{vG+1}, v{vT[0]}, s[{sWo}:{sWo+3}], s{sT} offen offset:4 sc1")
    srd(a, sWo, sWS, WL.G, WL.G_SIZE)
    a(f"v_mov_b32 v{vWo}, v{vGd}")
    a(f"s_mov_b32 s{sDm+1}, 0xfff")
    dma_params(WL.GA, 176, 2, GIMG)
    a(f"s_branch {L('loop')}")
    a.label(L("h0"))
    a(f"s_mov_b32 s{sK+2}, 0")
    a("s_mov_b64 vcc, 0")
    vR = vGd; vR2 = vWs
    a(f"v_lshrrev_b32 v{vT[2]}, 2, v{vL}")
    a(f"v_and_b32 v{vT[1]}, 3, v{vL}")
    a(f"v_mul_u32_u24 v{vR}, 160, v{vT[2]}")
    a(f"v_lshl_add_u32 v{vR}, v{vT[1]}, 3, v{vR}")
    a(f"s_mul_i32 s{sT}, s{sKh}, {10*5120}")
    a(f"v_add_u32 v{vR}, s{sT}, v{vR}")
    a(f"s_cmp_lt_u32 s{sEb8}, 4")
    a(f"s_cselect_b32 s{sT}, 0, 3")
    a(f"v_xor_b32 v{vT[1]}, s{sT}, v{vT[1]}")
    a(f"v_mul_u32_u24 v{vR2}, 176, v{vT[2]}")
    a(f"v_lshl_add_u32 v{vR2}, v{vT[1]}, 3, v{vR2}")
    a(f"s_mul_i32 s{sT}, s{sKh}, {2*GSTEP}")
    a(f"s_add_u32 s{sT}, s{sT}, {GIMG}")
    a(f"v_add_u32 v{vR2}, s{sT}, v{vR2}")
    def rd(dst, base, off, pitch=160):
        for t in range(5):
            a(f"ds_read_b64_tr_b16 {vr(dst[t],2)}, v{base} offset:{off + 32*t}")
            a(f"ds_read_b64_tr_b16 {vr(dst[t]+2,2)}, v{base} offset:{off + 32*t + 16*pitch}")
    AY = AC
    AF = [[Km[0] + 20 * k + 4 * t for t in range(5)] for k in range(4)] + [[O[0] + 4 * t for t in range(5)]]
    def ycomp(FA, FB, done):
        def ymf(off):
            rd(FA, vR2, off, 176); rd(FB, vR2, GSTEP + off, 176)
            for s_, F in enumerate((FA, FB)):
                a(f"s_waitcnt lgkmcnt({10 - 10*s_})")
                for t in range(5):
                    c = "0" if s_ == 0 else vr(AY[t], 4)
                    a(f"v_mfma_f32_16x16x32_bf16 {vr(AY[t],4)}, {vr(F[t],4)}, {vr(WsF[s_],4)}, {c}")
            a("s_nop 7")
        a(f"s_cmp_lt_u32 s{sEb8}, 4")
        a(f"s_cbranch_scc0 {L('ymir')}")
        ymf(0)
        for t in range(5):
            for i in range(4): a(f"v_mul_f32 v{AY[t]+i}, v{AY[t]+i}, v{vG}")
        a(f"s_branch {L(done)}")
        a.label(L("ymir"))
        a(f"s_lshl_b32 s{sT}, s{sKh}, 31")
        a(f"v_xor_b32 v{vG}, s{sT}, v{vG}")
        ymf(8)
        for t in range(5): a(f"v_mul_f32 v{GFl+t}, v{AY[4-t]}, v{vG}")
        ymf(0)
        for t in range(5):
            for i in range(1, 4): a(f"v_mul_f32 v{FA[t]+i}, v{AY[4-t]+4-i}, v{vG}")
        for t in range(5):
            a(f"v_mov_b32 v{AY[t]}, v{GFl+t}")
            for i in range(1, 4): a(f"v_mov_b32 v{AY[t]+i}, v{FA[t]+i}")
    if not ypost:
        a(f"s_lshl_b32 s{sT}, s{sKh}, 2")
        a(f"v_add_u32 v{vCtl}, s{sT}, v{vCtl}")
        a("s_waitcnt vmcnt(0)")
        lds_inc(24)
        lds_wait("wi", 24, 4)
        ycomp(OFr[0:5], OFr[5:10], "loop")
    a.raw(".p2align 6")
    a.label(L("loop"))
    for kt in range(4):
        for q in range(2): slot(kt, q)
    a(f"s_add_u32 s{sOK}, s{sOK}, 2048")
    evm = 0
    for c in [6, 4, 2, 1, 0] + [p - 1 for p in prio if p > 0]: evm |= 1 << c
    a(f"s_sub_u32 s{sCnt}, s{sCnt}, 1")
    a(f"s_bitcmp1_b32 {hex(~evm & 0xff)}, s{sCnt}")
    a(f"s_cbranch_scc1 {L('loop')}")
    a(f"s_cmp_ge_i32 s{sCnt}, 0")
    a(f"s_cbranch_scc1 {L('head')}")
    a(f"v_mfma_f32_32x32x16_bf16 {vr(O[1],16)}, {vr(Vb[3][1],4)}, {vr(P+4,4)}, {vr(O[1],16)}")
    a("s_setprio 3")
    st.stamp("lend")
    srd(a, sD, sWS, WL.OF, 80 * WL.PL)
    def ldO(s_):
        a(f"s_mov_b32 s{sT}, {4*WL.PL*s_}")
        a(f"buffer_load_dwordx4 {vr(OFr[s_],4)}, v{vO}, s[{sD}:{sD+3}], s{sT} offen sc1")
    a(f"s_lshl_b32 s{sT}, s{sKh}, 9")
    a(f"s_add_u32 s{sOK}, s{sU0}, s{sT}")
    a("s_nop 1")
    a(f"s_cmp_eq_u32 s{sKh}, 0")
    a(f"s_cbranch_scc1 {L('x0')}")
    for r in range(3): a(f"ds_write_b128 v{vX0}, {vr(O[0]+4*r,4)} offset:{1024*r}")
    a("s_waitcnt lgkmcnt(0)")
    for i in range(12): a(f"v_mov_b32 v{O[0]+i}, v{O[1]+i}")
    for i in range(4): a(f"v_mov_b32 v{Qm[0]+i}, v{Qm[1]+i}")
    for i in range(2): a(f"v_mov_b32 v{Qr[0]+i}, v{Qr[1]+i}")
    a(f"s_branch {L('x1')}")
    a.label(L("x0"))
    for r in range(3): a(f"ds_write_b128 v{vX0}, {vr(O[1]+4*r,4)} offset:{1024*r}")
    a.label(L("x1"))
    a("s_waitcnt vmcnt(0) lgkmcnt(0)")
    assert Km[0] + 80 <= O[0] and O[0] + 20 <= K0m
    EX = GFl
    if oearly:
        for s_ in range(10): ldO(s_)
    a("s_barrier")
    st.stamp("x1")
    for r in range(3): a(f"ds_read_b128 {vr(EX+4*r,4)}, v{vX1} offset:{1024*r}")
    a("s_waitcnt vmcnt(%d)" % (10 if oearly else 0))
    rd(AF[0], vR, 0)
    a("s_waitcnt lgkmcnt(%d)" % (0 if (stamps and "x1" in snames) else 10))
    for i in range(12): a(f"v_add_f32 v{O[0]+i}, v{O[0]+i}, v{EX+i}")
    def bcast_l():
        a(f"v_mov_b32 v{O[0]+12}, v{O[0]+8}")
        a(f"v_mov_b32 v{O[0]+13}, v{O[0]+8}")
        a("s_nop 1")
        a(f"v_permlane32_swap_b32 v{O[0]+13}, v{O[0]+12}")
        a("s_nop 1")
    bcast_l()
    a(f"v_mul_f32 v{vM}, 0, v{O[0]}")
    for i in range(1, 12): a(f"v_fmac_f32 v{vM}, 0, v{O[0]+i}")
    a(f"v_add_f32 v{vM}, v{vM}, v{O[0]+12}")
    a(f"v_cmp_nge_f32 vcc, 0x71800000, v{vM}")
    a(f"s_mov_b32 s{sT}, 0x21800000")
    a(f"v_cmp_gt_f32 s[{sT2+1}:{sT2+2}], s{sT}, v{vM}")
    a("s_nop 1")
    a(f"s_or_b64 vcc, vcc, s[{sT2+1}:{sT2+2}]")
    a(f"s_cbranch_scc1 {L('slow')}")
    a.label(L("fin"))
    a(f"v_rcp_f32 v{vM}, v{O[0]+12}")
    a("s_nop 0")
    a(f"v_mul_f32 v{vM}, v{vM}, v{vG+1}")
    for i in range(12): a(f"v_mul_f32 v{O[0]+i}, v{O[0]+i}, v{vM}")
    PO = K0m
    assert K0r == K0m + 4
    for i in range(6): a(f"v_cvt_pk_bf16_f32 v{PO+i}, v{O[0]+2*i}, v{O[0]+2*i+1}")
    for i in range(6): a(f"v_min_u32 v{PO+i}, -2, v{PO+i}")
    a(f"buffer_store_dwordx4 {vr(PO,4)}, v{vKm}, s[{sQ}:{sQ+3}], s{sOK} offen sc1")
    a(f"s_mov_b64 exec, s[{sLo}:{sLo+1}]")
    a(f"buffer_store_dwordx2 {vr(PO+4,2)}, v{vKr}, s[{sQ}:{sQ+3}], s{sOK} offen sc1")
    a("s_mov_b64 exec, -1")
    st.stamp("ost")
    if stamps and "ost" in snames: a("s_waitcnt lgkmcnt(0)")

    if not oearly:
        if obar: a("s_barrier")
        lo, hi = min(nfirst), max(nfirst)
        for s_ in range(lo): ldO(s_)
        if hi > lo:
            a(f"s_cmp_eq_u32 s{sKh}, 0")
            a(f"s_cbranch_scc1 {L('nf1')}")
            for s_ in range(lo, hi): ldO(s_)
            a.label(L("nf1"))
    if ypost:
        ycomp(AF[2], AF[3], "ydone")
        a.label(L("ydone"))
    if not oearly:
        if hi > lo:
            a(f"s_cmp_lg_u32 s{sKh}, 0")
            a(f"s_cbranch_scc1 {L('nf2')}")
            for s_ in range(lo, hi): ldO(s_)
            a.label(L("nf2"))
        if afirst:
            for k in range(1, 4): rd(AF[k], vR, 5120 * k)
        if odelay: a(f"s_sleep {odelay}")
        for s_ in range(hi, 10): ldO(s_)
    AB = AF[0]
    if not afirst:
        for k in range(1, 4): rd(AF[k], vR, 5120 * k)
    srd(a, sC, 22, 0, 2048 * 1280)
    a(f"s_mov_b32 s59, {SPIN}")
    st.stamp("pbeg")
    if stamps and "pbeg" in snames: a("s_waitcnt lgkmcnt(0)")
    def chk(s_):
        o = OFr[s_]
        a(f"v_max3_u32 v{vT[0]}, v{o}, v{o+1}, v{o+2}")
        a(f"v_max_u32 v{vT[0]}, v{vT[0]}, v{o+3}")
        a(f"v_cmp_eq_u32 vcc, -1, v{vT[0]}")
        a("s_nop 1")
        a("s_cmp_eq_u64 vcc, 0")
    nst = 2 if oearly else 0
    for s_ in range(10):
        a.label(L("st%d" % s_))
        a(f"s_waitcnt vmcnt({9 - s_ + nst})")
        chk(s_)
        a(f"s_cbranch_scc1 {L('ok%d' % s_)}")
        if rmode == 1:
            a.label(L("sp%d" % s_))
            a(f"s_sleep {rsleep}")
            ldO(s_)
            a("s_waitcnt vmcnt(0)")
            a("s_sub_u32 s59, s59, 1")
            a("s_cmp_lt_i32 s59, 0")
            a(f"s_cbranch_scc1 {L('ok%d' % s_)}")
            chk(s_)
            a(f"s_cbranch_scc0 {L('sp%d' % s_)}")
            if s_ < 9: a(f"s_call_b64 s[{sE}:{sE+1}], {L('retry')}")
        else:
            a(f"s_call_b64 s[{sE}:{sE+1}], {L('retry')}")
            a(f"s_cbranch_scc1 {L('st%d' % s_)}")
        a.label(L("ok%d" % s_))
        a("s_waitcnt lgkmcnt(%d)" % (0 if s_ == 9 else (15 if s_ < 8 else 10)))
        for t in range(5):
            a(f"v_mfma_f32_16x16x32_bf16 {vr(AY[t],4)}, {vr(AF[s_ % 5][t],4)}, {vr(OFr[s_],4)}, {vr(AY[t],4)}")
        if s_ + 4 < 10: rd(AF[(s_ + 4) % 5], vR, 5120 * (s_ + 4))
    st.stamp("dmf")
    a("s_nop 7")
    if probe:
        a("s_memrealtime s[72:73]")
        a("s_waitcnt lgkmcnt(0)")
        a("s_sub_u32 s72, s72, s70")
        a(f"s_cmp_lt_u32 s72, {probe}")
        a(f"s_cbranch_scc1 {L('prb')}")
        a(f"buffer_load_dword v{vT[0]}, off, s[64:67], 0 sc1")
        a("s_waitcnt vmcnt(0)")
        a(f"v_readfirstlane_b32 s72, v{vT[0]}")
        a("s_nop 1")
        a("s_cmp_lg_u32 s72, 0")
        a(f"s_cbranch_scc1 {L('prb')}")
        for t in range(5): a(f"v_mov_b32 v{AY[t]}, 0x7fc00000")
        a.label(L("prb"))
    def dfin(keep, send):
        for r, t in enumerate(send): a(f"ds_write_b128 v{vX1}, {vr(AY[t],4)} offset:{1024*r}")
        a("s_waitcnt lgkmcnt(0)")
        a("s_barrier")
        for r, t in enumerate(keep): a(f"ds_read_b128 {vr(AB[t],4)}, v{vX0} offset:{1024*r}")
        for r, t in enumerate(keep):
            a(f"s_waitcnt lgkmcnt({len(keep)-1-r})")
            for i in range(4): a(f"v_add_f32 v{AY[t]+i}, v{AY[t]+i}, v{AB[t]+i}")
            a(f"v_cvt_pk_bf16_f32 v{AY[t]}, v{AY[t]}, v{AY[t]+1}")
            a(f"v_cvt_pk_bf16_f32 v{AY[t]+1}, v{AY[t]+2}, v{AY[t]+3}")
            a(f"buffer_store_dwordx2 {vr(AY[t],2)}, v{vSt}, s[{sC}:{sC+3}], 0 offen offset:{32*t} {osc}")
    a(f"s_cmp_eq_u32 s{sKh}, 0")
    a(f"s_cbranch_scc1 {L('d0')}")
    dfin([3, 4], [0, 1, 2])
    a(f"s_branch {L('dend')}")
    a.label(L("d0"))
    dfin([0, 1, 2], [3, 4])
    a.label(L("dend"))
    st.finish(9)
    a.label(L("end"))
    a("s_endpgm")

    a.label(L("retry"))
    a("s_waitcnt vmcnt(0)")
    if rsleep and rmode == 0: a(f"s_sleep {rsleep}")
    for s_ in range(10):
        chk(s_)
        a(f"s_cbranch_scc1 {L('rt%d' % s_)}")
        ldO(s_)
        a.label(L("rt%d" % s_))
    a("s_waitcnt vmcnt(0)")
    a("s_sub_u32 s59, s59, 1")
    a("s_cmp_gt_i32 s59, 0")
    a(f"s_setpc_b64 s[{sE}:{sE+1}]")
    a.label(L("slow"))
    sSK = sT2 + 1; sSV = sT2 + 2
    a("s_waitcnt vmcnt(0) lgkmcnt(0)")
    assert AF[0][4] + 4 <= Vb[0][0]
    a(f"v_mov_b32 v{Kr[0]}, 0x3f803f80")
    a(f"v_mov_b32 v{Kr[0]+1}, 0x3f80")
    a(f"s_mov_b32 s{sK+2}, {5*WL.PL}")
    a(f"s_mov_b32 s{sV+2}, {64*WL.VT}")
    a(f"s_mov_b64 exec, s[{sHi}:{sHi+1}]")
    a(f"v_mov_b32 v{Qr[0]}, 0")
    a(f"v_mov_b32 v{Qr[0]+1}, 0")
    a("s_mov_b64 exec, -1")
    a(f"v_mov_b32 v{vM}, 0xff800000")
    a(f"s_mov_b32 s{sSK}, 0")
    def qk_slow():
        a(f"s_mov_b64 exec, s[{sLo}:{sLo+1}]")
        a(f"buffer_load_dwordx2 {vr(Kr[0],2)}, v{vKr}, s[{sK}:{sK+3}], s{sSK} offen sc1")
        a("s_mov_b64 exec, -1")
        a(f"buffer_load_dwordx4 {vr(Km[0],4)}, v{vKm}, s[{sK}:{sK+3}], s{sSK} offen sc1")
        a("s_waitcnt vmcnt(0)")
        a(f"v_mfma_f32_32x32x16_bf16 {vr(S[0],16)}, {vr(Km[0],4)}, {vr(Qm[0],4)}, 0")
        a("s_nop 11")
        a(f"v_mfma_f32_32x32x8_bf16 {vr(S[0],16)}, {vr(Kr[0],2)}, {vr(Qr[0],2)}, {vr(S[0],16)}")
        a("s_nop 12")
    a.label(L("s1"))
    qk_slow()
    for i in range(0, 16, 2):
        a(f"v_max3_f32 v{vM}, v{vM}, v{S[0]+i}, v{S[0]+i+1}")
    a(f"s_add_u32 s{sSK}, s{sSK}, 512")
    a(f"s_cmp_lt_u32 s{sSK}, {WL.PL}")
    a(f"s_cbranch_scc1 {L('s1')}")
    a(f"v_mov_b32 v{vT[0]}, v{vM}")
    a("s_nop 1")
    a(f"v_permlane32_swap_b32 v{vT[0]}, v{vM}")
    a("s_nop 1")
    a(f"v_max_f32 v{vM}, v{vM}, v{vT[0]}")
    a(f"v_cvt_pk_bf16_f32 v{S[0]}, 0, -v{vM}")
    a(f"v_sub_f32 v{vT[0]}, 0, v{vM}")
    a(f"v_sub_f32 v{vT[0]}, v{vT[0]}, v{S[0]}")
    a(f"v_cvt_pk_bf16_f32 v{S[0]+1}, 0, v{vT[0]}")
    a(f"v_sub_f32 v{vT[1]}, v{vT[0]}, v{S[0]+1}")
    a(f"s_mov_b64 exec, s[{sHi}:{sHi+1}]")
    a(f"v_cvt_pk_bf16_f32 v{Qr[0]}, v{S[0]}, v{S[0]+1}")
    a(f"v_cvt_pk_bf16_f32 v{Qr[0]+1}, v{vT[1]}, 0")
    a("s_mov_b64 exec, -1")
    for i in range(16): a(f"v_mov_b32 v{O[0]+i}, 0")
    a(f"s_mov_b32 s{sSK}, 0")
    a(f"s_mov_b32 s{sSV}, 0")
    a.label(L("s2"))
    a(f"s_mov_b64 exec, s[{sVm}:{sVm+1}]")
    a(f"buffer_load_dwordx4 {vr(Vb[0][0],4)}, v{vV0}, s[{sV}:{sV+3}], s{sSV} offen sc1")
    a(f"buffer_load_dwordx4 {vr(Vb[0][1],4)}, v{vV1}, s[{sV}:{sV+3}], s{sSV} offen sc1")
    qk_slow()
    for i in range(16): exp(0, i)
    a("s_nop 0")
    for i in range(8): cvt(0, i)
    a("s_nop 1")
    a(f"v_mfma_f32_32x32x16_bf16 {vr(O[0],16)}, {vr(Vb[0][0],4)}, {vr(P,4)}, {vr(O[0],16)}")
    a(f"v_mfma_f32_32x32x16_bf16 {vr(O[0],16)}, {vr(Vb[0][1],4)}, {vr(P+4,4)}, {vr(O[0],16)}")
    a(f"s_add_u32 s{sSK}, s{sSK}, 512")
    a(f"s_add_u32 s{sSV}, s{sSV}, {WL.VT}")
    a(f"s_cmp_lt_u32 s{sSK}, {WL.PL}")
    a(f"s_cbranch_scc1 {L('s2')}")
    a("s_nop 12")
    rd(AF[0], vR, 0)
    bcast_l()
    a(f"s_branch {L('fin')}")
    return a.text(), kernel_desc(name, 256, 102), f"; @launch grid=(256,1,1) block=(512,1,1) lds={LDS_SIZE}"

if __name__ == "__main__":
    import sys
    from gen import build
    path = sys.argv[1]
    sn = [x[3:].split(',') for x in sys.argv if x.startswith('sn=')]
    kw = {x.split('=')[0]: eval(x.split('=')[1]) for x in sys.argv[2:] if not x.startswith('sn=')}
    hd = kw.pop('hdbg', False)
    build(path, [gen(stamps=(2 if hd else bool(sn)), snames=sn[0] if sn else (), **kw)])
```

```python
from asm import *

QSCALE = 0x3ea52b5c
NAME = "gated_mix__spectral_fnet__softmax_full_mha__prompt_kernel"
LDS_X = 131072
LDS_CTL = LDS_X + 24576
LDS_SIZE = LDS_CTL + 64
GSTEP = 32 * 176
GIMG = 20 * 5120
SPIN = 200000
STAGE = [0, 0x8000, 0x18000, 0x10000]

def gen(name=NAME, stamps=False, snames=(), rotx=(0, 2, 5, 7, 5, 7, 0, 2), rin=(5, 5), touch=False, tpos=5, gtouch=True, fsplit=5,
        prio=(4, 2, 1), psleep=8, wotouch=False, probe=None, fwait=True, nodma=False, kvsc1=False, noload=False, nowait=False, noexec=False, spread=False, rt=True, fstart=6, rprobe=False, enc=None, encw=0, oearly=False, rsleep=2, rmode=0, ypost=True, obar=False, nfirst=(0, 0), afirst=True, odelay=0, gdefer=0, pois=4, osc='', lprio=3, cprio=2, wsleep=3, ldelay=0, pplain=True, glate=False, m8=False, wsbase=0, cbperm=True, prog=True, strict=True, defer=False, dmask=6, s2late=True, noaux=False, cwarm=False, oahead=4):
    a = Asm()
    kernel_begin(a, name)
    L = lambda s: f"L_{s}"
    st = Stamps(a, stamps, 0); st.names = list(snames); st.op = 's_memrealtime' if rt else 's_memtime'
    if enc:
        class Enc:
            names = []
            def start(self): a("s_memrealtime s[70:71]"); a("s_memrealtime s[72:73]")
            def stamp(self, n):
                if n == enc: a("s_memrealtime s[72:73]"); a("s_waitcnt lgkmcnt(0)")
            def finish(self, i):
                a("s_lshl_b32 s68, s2, 3"); a("s_add_u32 s68, s68, s52")
                a(f"s_cmp_lg_u32 s68, {136*8+encw}")
                a("s_cbranch_scc1 L_encd")
                a("s_memrealtime s[74:75]"); a("s_waitcnt lgkmcnt(0)")
                a("s_sub_u32 s72, s72, s70"); a("s_lshl_b32 s72, s72, 2"); a("s_add_u32 s72, s72, s74")
                a.label("L_encl")
                a("s_memrealtime s[74:75]"); a("s_waitcnt lgkmcnt(0)")
                a("s_sub_u32 s68, s74, s72"); a("s_cmp_lt_i32 s68, 0")
                a("s_cbranch_scc1 L_encl")
                a.label("L_encd")
        st = Enc()
    sWS = 26
    sA = 28; sB = 32; sC = 36; sD = 40; sFl = 44; sE = 48
    sW = 52; sXc = 53; sJ = 54; sNonce = 55; sT = 56; sT2 = 57; sCnt = 58
    sLo = 60; sVm = 62; sHi = 94; sDm = 96
    sGF = 25
    sAF = 24
    vL = 1; vT = [2, 3, 4, 5, 6, 7]; vCtl = 8
    VB = 10
    TOP = 252 if stamps else 256

    def spin_begin(lab, n=SPIN):
        a(f"s_mov_b32 s59, {n}")
        a.label(L(lab))
    def spin_end(lab, sleep=2):
        a(f"s_sleep {sleep}")
        a("s_sub_u32 s59, s59, 1")
        a("s_cmp_lg_u32 s59, 0")
        a(f"s_cbranch_scc1 {L(lab)}")
    def put_flag(soff):
        a(f"v_mov_b32 v{vT[0]}, 0")
        a(f"v_mov_b32 v{vT[1]}, s{sNonce}")
        a("s_mov_b64 exec, 1")
        a(f"buffer_store_dword v{vT[1]}, v{vT[0]}, s[{sFl}:{sFl+3}], {soff} offen sc1")
        a("s_mov_b64 exec, -1")
    def lds_inc(off):
        a(f"v_mov_b32 v{vT[0]}, 1")
        a("s_mov_b64 exec, 1")
        a(f"ds_add_u32 v{vCtl}, v{vT[0]} offset:{off}")
        a("s_mov_b64 exec, -1")
    def lds_wait(lab, off, val, sl=1):
        spin_begin(lab, 8 * SPIN)
        a(f"ds_read_b32 v{vT[0]}, v{vCtl} offset:{off}")
        a("s_waitcnt lgkmcnt(0)")
        a(f"v_readfirstlane_b32 s{sT}, v{vT[0]}")
        a("s_nop 1")
        a(f"s_cmp_eq_u32 s{sT}, {val}")
        a(f"s_cbranch_scc1 {L(lab+'d')}")
        spin_end(lab, sl)
        a.label(L(lab + "d"))
    def sel_srd(d, cond_s, p0, p1, size):
        a(f"s_cmp_eq_u32 s{cond_s}, 0")
        a(f"s_cselect_b32 s{d}, s{p0}, s{p1}")
        a(f"s_cselect_b32 s{d+1}, s{p0+1}, s{p1+1}")
        a(f"s_and_b32 s{d+1}, s{d+1}, 0xffff")
        a(f"s_mov_b32 s{d+2}, {size}")
        a(f"s_mov_b32 s{d+3}, 0x20000")
    def after_kernarg():
        a("s_waitcnt lgkmcnt(0)")
        st.stamp("karg")
        if wsbase:
            a(f"s_add_u32 s{sWS}, s{sWS}, {hex(wsbase << 20)}")
            a(f"s_addc_u32 s{sWS+1}, s{sWS+1}, 0")
        a(f"s_load_dword s{sNonce}, s[{sWS}:{sWS+1}], {WL.EPOCH}")
        srd(a, sA, 4, 0, 2048 * 1280)
    def masks():
        a("v_mov_b32 v9, 0")
        for i in range(4): a(f"v_mov_b32 v{TOP-36+i}, 0")
        a(f"s_mov_b32 s{sGF}, 0"); a(f"s_mov_b32 s{sAF}, 0"); a("s_mov_b32 s15, 0")
        srd(a, sFl, sWS, WL.FLAG, WL.FLAG_SIZE)
        a(f"v_mov_b32 v{vCtl}, {LDS_CTL}")
        a(f"s_mov_b32 s{sLo}, -1"); a(f"s_mov_b32 s{sLo+1}, 0")
        a(f"s_mov_b32 s{sHi}, 0"); a(f"s_mov_b32 s{sHi+1}, -1")
        a(f"s_mov_b32 s{sVm}, 0xfffff"); a(f"s_mov_b32 s{sVm+1}, 0xfffff")
        a(f"s_mov_b32 s{sDm}, -1"); a(f"s_mov_b32 s{sDm+1}, 0xff")
    def nat_read_addrs(dst, stile, shift):
        a(f"v_and_b32 v{vT[0]}, 31, v{vL}")
        a(f"v_lshrrev_b32 v{vT[1]}, 5, v{vL}")
        a(f"v_bfe_u32 v{vT[2]}, v{vL}, 1, 3")
        a(f"v_xor_b32 v{vT[1]}, v{vT[1]}, v{vT[2]}")
        a(f"v_lshlrev_b32 v{vT[1]}, 4, v{vT[1]}")
        a(f"v_lshl_add_u32 v{vT[0]}, v{vT[0]}, 7, v{vT[1]}")
        a(f"s_lshl_b32 s{sT}, s{stile}, {shift}")
        a(f"v_add_u32 v{dst[0]}, s{sT}, v{vT[0]}")
        for ks in range(1, 4):
            a(f"v_xor_b32 v{dst[ks]}, {32*ks}, v{dst[0]}")

    a("s_cmp_ge_u32 s2, 256")
    a(f"s_cbranch_scc1 {L('end')}")
    st.start()
    if probe:
        a("s_memrealtime s[70:71]")
        a("s_load_dwordx2 s[64:65], s[0:1], 80")
        a("s_waitcnt lgkmcnt(0)")
        a("s_and_b32 s65, s65, 0xffff"); a("s_mov_b32 s66, 256"); a("s_mov_b32 s67, 0x20000")
        a("s_getreg_b32 s68, hwreg(HW_REG_XCC_ID)")
        a("s_xor_b32 s68, s68, s2"); a("s_and_b32 s68, s68, 7")
        a("s_cbranch_scc0 L_pok")
        a("v_mov_b32 v2, 1")
        a("s_mov_b64 exec, 1")
        a("buffer_store_dword v2, off, s[64:67], 0 sc1")
        a("s_mov_b64 exec, -1")
        a.label("L_pok")
    if rprobe:
        a("s_load_dwordx2 s[64:65], s[0:1], 80")
        a("s_waitcnt lgkmcnt(0)")
        a("s_and_b32 s65, s65, 0xffff"); a("s_mov_b32 s66, 256"); a("s_mov_b32 s67, 0x20000")
        a("s_getreg_b32 s68, hwreg(HW_REG_XCC_ID)")
        a("s_sub_u32 s68, s68, s2"); a("s_and_b32 s68, s68, 7")
        a("s_lshl_b32 s68, s68, 2")
        a("v_cmp_eq_u32 vcc, 0, v0")
        a("v_mov_b32 v2, 1")
        a("s_and_saveexec_b64 s[70:71], vcc")
        a("s_cbranch_execz L_rp0")
        a("buffer_store_dword v2, off, s[64:67], s68 sc1")
        a.label("L_rp0")
        a("s_mov_b64 exec, -1")
    a("s_load_dwordx16 s[4:19], s[0:1], 0")
    a("s_load_dwordx8 s[20:27], s[0:1], 64")
    a(f"v_lshrrev_b32 v{vT[0]}, 6, v0")
    a(f"v_and_b32 v{vL}, 63, v0")
    a(f"v_readfirstlane_b32 s{sW}, v{vT[0]}")
    a(f"s_and_b32 s{sXc}, s2, 7")
    a(f"s_lshr_b32 s{sJ}, s2, 3")
    a(f"s_xor_b32 s{sW}, s{sW}, 4")
    sRb = 98; sCb = 99; sWm = 100; sWn = 101; sWl = 3
    a(f"s_and_b32 s{sRb}, s2, 3")
    a(f"s_lshl_b32 s{sRb}, s{sRb}, 2")
    a(f"s_and_b32 s{sT}, s{sJ}, 3")
    a(f"s_add_u32 s{sRb}, s{sRb}, s{sT}")
    a(f"s_lshr_b32 s{sT}, s{sXc}, 2")
    a(f"s_lshr_b32 s{sCb}, s{sJ}, 2")
    a(f"s_cmp_eq_u32 s{sCb}, 7")
    a(f"s_cselect_b32 s{sT2}, 1, 3")
    a(f"s_lshl_b32 s{sT}, s{sT}, s{sT2}")
    a(f"s_cmp_eq_u32 s{sCb}, 7")
    a(f"s_cselect_b32 s{sT2}, s{sT}, 0")
    a(f"s_cselect_b32 s{sT}, 0, s{sT}")
    a(f"s_add_u32 s{sRb}, s{sRb}, s{sT2}")
    a(f"s_add_u32 s{sCb}, s{sCb}, s{sT}")
    if cbperm:
        tab = [5, 6, 7, 10, 11, 0, 1, 2, 8, 9, 12, 13, 14, 3, 4, 0]
        tv = sum(c << (4 * i) for i, c in enumerate(tab))
        a(f"s_mov_b32 s{sT}, {hex(tv & 0xffffffff)}")
        a(f"s_mov_b32 s{sT2}, {hex(tv >> 32)}")
        a(f"s_lshl_b32 s{sCb}, s{sCb}, 2")
        a(f"s_lshr_b64 s[{sT}:{sT2}], s[{sT}:{sT2}], s{sCb}")
        a(f"s_and_b32 s{sCb}, s{sT}, 15")
    a(f"s_and_b32 s{sWl}, s{sW}, 3")
    a(f"s_and_b32 s{sWm}, s{sW}, 1")
    a(f"s_lshr_b32 s{sWn}, s{sWl}, 1")
    a(f"s_cmp_lt_u32 s{sW}, 4")
    a(f"s_cbranch_scc1 {L('comp')}")

    V = Alloc(VB, TOP)
    vRX = [V.get() for _ in range(4)]
    vFW = [V.get() for _ in range(2)]; vFs = V.get(); V.get(); vGs = 9
    V.get(2)
    XR = [[V.get(4, 4) for _ in range(4)] for _ in range(10)]
    FR = V.get(8, 4); FIn = V.get(8, 4)
    ZA = V.get(16, 4); ZB = V.get(16, 4)
    BF = [[V.get(4, 4) for _ in range(2)] for _ in range(3)]
    vDX = [BF[0][0] + i for i in range(4)]; vDW = [BF[0][1] + i for i in range(4)]
    sOX = sD; sOW = sD + 1; sM0 = sD + 2; sBeta = sD + 3; sSp = sE
    if lprio: a(f"s_setprio {lprio}")
    a(f"v_and_b32 v{vT[3]}, 7, v{vL}")
    a(f"v_lshrrev_b32 v{vT[4]}, 4, v{vL}")
    a(f"v_xor_b32 v{vT[3]}, v{vT[3]}, v{vT[4]}")
    a(f"v_lshlrev_b32 v{vT[3]}, 4, v{vT[3]}")
    a(f"v_xor_b32 v{vT[4]}, 64, v{vT[3]}")
    a(f"v_bfe_u32 v{vT[5]}, v{vL}, 3, 2")
    a(f"v_lshrrev_b32 v{vT[1]}, 5, v{vL}")
    a(f"v_lshl_add_u32 v{vT[5]}, v{vT[1]}, 3, v{vT[5]}")
    a(f"s_lshl_b32 s{sT}, s{sRb}, 1")
    a(f"s_add_u32 s{sT}, s{sT}, s{sWn}")
    a(f"s_lshl_b32 s{sT2}, s{sWm}, 5")
    a(f"s_add_u32 s{sCnt}, s{sT}, s{sT2}")
    a(f"v_lshl_add_u32 v{vT[1]}, v{vT[5]}, 6, s{sCnt}")
    a(f"v_mul_u32_u24 v{vT[1]}, 1280, v{vT[1]}")
    a(f"v_add_u32 v{vDX[0]}, v{vT[1]}, v{vT[3]}")
    a(f"v_add_u32 v{vDX[1]}, v{vT[1]}, v{vT[4]}")
    a(f"v_add_u32 v{vDX[1]}, {4*64*1280-1024}, v{vDX[1]}")
    a(f"v_add_u32 v{vDX[2]}, {16*64*1280-2048}, v{vDX[0]}")
    a(f"v_add_u32 v{vDX[3]}, {16*64*1280-2048}, v{vDX[1]}")
    a(f"v_lshrrev_b32 v{vT[0]}, 4, v{vL}")
    a(f"v_bfe_u32 v{vT[1]}, v{vL}, 2, 2")
    a(f"v_xor_b32 v{vT[1]}, v{vT[1]}, v{vT[0]}")
    a(f"v_and_b32 v{vT[2]}, 3, v{vL}")
    a(f"v_lshl_add_u32 v{vT[1]}, v{vT[1]}, 2, v{vT[2]}")
    a(f"v_lshlrev_b32 v{vT[1]}, 4, v{vT[1]}")
    a(f"s_lshl_b32 s{sT}, s{sWl}, 4")
    a(f"v_add_u32 v{vT[0]}, s{sT}, v{vT[0]}")
    a(f"v_mul_u32_u24 v{vT[0]}, 3840, v{vT[0]}")
    a(f"s_lshl_b32 s{sT}, s{sCb}, 8")
    a(f"v_add3_u32 v{vDW[0]}, v{vT[0]}, v{vT[1]}, s{sT}")
    for j in range(1, 4):
        a(f"v_add_u32 v{vDW[j]}, {j*(4*3840-1024)}, v{vDW[0]}")
    rw = 0
    for i, r in enumerate(rotx): rw |= r << (4 * i)
    a(f"s_lshl_b32 s{sT}, s{sXc}, 2")
    a(f"s_lshr_b32 s{sOX}, {hex(rw)}, s{sT}")
    a(f"s_and_b32 s{sOX}, s{sOX}, 15")
    if rin != (0, 0):
        a(f"s_and_b32 s{sT}, s{sJ}, 3")
        a(f"s_mul_i32 s{sT}, s{sT}, {rin[0]}")
        a(f"s_add_u32 s{sOX}, s{sOX}, s{sT}")
        a(f"s_lshr_b32 s{sT}, s{sJ}, 2")
        a(f"s_mul_i32 s{sT}, s{sT}, {rin[1]}")
        a(f"s_add_u32 s{sOX}, s{sOX}, s{sT}")
        a(f"s_mul_i32 s{sT}, s{sOX}, 205")
        a(f"s_lshr_b32 s{sT}, s{sT}, 11")
        a(f"s_mul_i32 s{sT}, s{sT}, 10")
        a(f"s_sub_u32 s{sOX}, s{sOX}, s{sT}")
    a(f"s_mul_i32 s{sOW}, s{sOX}, {64*3840}")
    a(f"s_lshl_b32 s{sOX}, s{sOX}, 7")
    a(f"s_lshl_b32 s{sM0}, s{sWl}, 12")
    after_kernarg()
    a(f"s_cmp_ge_u32 s{sJ}, 30")
    a(f"s_cbranch_scc1 {L('lgate')}")
    srd(a, sB, 16, 0, 640 * 3840)
    def issue(n):
        a(f"s_add_u32 m0, s{sM0}, {STAGE[n%4]}")
        a("s_nop 0")
        for j in range(4): a(f"buffer_load_dwordx4 v{vDX[j]}, s[{sA}:{sA+3}], s{sOX} offen offset:{1024*j} lds")
        a(f"s_add_u32 m0, s{sM0}, {STAGE[n%4]+0x4000}")
        a(f"s_add_u32 s{sOX}, s{sOX}, 128")
        for j in range(4): a(f"buffer_load_dwordx4 v{vDW[j]}, s[{sB}:{sB+3}], s{sOW} offen offset:{1024*j} lds")
        a(f"s_add_u32 s{sOW}, s{sOW}, {64*3840}")
        a(f"s_cmp_eq_u32 s{sOX}, 1280")
        a(f"s_cselect_b32 s{sOX}, 0, s{sOX}")
        a(f"s_cselect_b32 s{sOW}, 0, s{sOW}")
    issue(0); issue(1)
    masks()
    a(f"s_lshr_b32 s{sBeta}, s{sXc}, 2")
    a(f"s_mul_i32 s{sBeta}, s{sBeta}, 5")
    a(f"s_lshr_b32 s{sT}, s{sJ}, 2")
    a(f"s_add_u32 s{sBeta}, s{sBeta}, s{sT}")
    a(f"s_lshl_b32 s{sT}, s{sBeta}, 1")
    a(f"s_add_u32 s{sT}, s{sT}, s{sWm}")
    a(f"s_lshl_b32 s{sT}, s{sT}, 4")
    a(f"v_add_u32 v{vT[5]}, s{sT}, v{vT[5]}")
    a(f"v_mul_u32_u24 v{vT[5]}, 1280, v{vT[5]}")
    a(f"v_add_u32 v{vFW[0]}, v{vT[5]}, v{vT[3]}")
    a(f"v_add_u32 v{vFW[1]}, v{vT[5]}, v{vT[4]}")
    a(f"v_add_u32 v{vFW[1]}, {4*1280-1024}, v{vFW[1]}")
    a(f"v_add_u32 v{vFs}, {320*1280}, v{vT[3]}")
    a(f"v_and_b32 v{vT[0]}, 31, v{vL}")
    a(f"v_lshrrev_b32 v{vT[1]}, 5, v{vL}")
    a(f"v_lshlrev_b32 v{vGs}, 5, v{vT[0]}")
    a(f"v_lshl_add_u32 v{vGs}, v{vT[1]}, 4, v{vGs}")
    a(f"s_mul_i32 s{sT}, s{sCnt}, {WL.GA}")
    a(f"s_lshl_b32 s{sT2}, s{sBeta}, 11")
    a(f"s_add_u32 s{sT}, s{sT}, s{sT2}")
    a(f"v_add_u32 v{vGs}, s{sT}, v{vGs}")
    a(f"s_mul_i32 s{sCnt}, s{sCnt}, 48")
    a(f"s_lshl_b32 s{sT2}, s{sBeta}, 2")
    a(f"s_add_u32 s{sCnt}, s{sCnt}, s{sT2}")
    a(f"s_add_u32 s{sCnt}, s{sCnt}, {WL.FG}")
    nat_read_addrs(vRX, sWl, 12)
    for n in range(10):
        a(f"s_waitcnt vmcnt({8 if n < 9 else 0}) lgkmcnt(0)")
        a("s_barrier")
        for ks in range(4):
            a(f"ds_read_b128 {vr(XR[n][ks],4)}, v{vRX[ks]} offset:{STAGE[n%4] & 0xffff}")
        if n + 2 < 10: issue(n + 2)
        if n < 9 and (STAGE[n % 4] ^ STAGE[(n + 1) % 4]) & 0x10000:
            for ks in range(4): a(f"v_xor_b32 v{vRX[ks]}, 0x10000, v{vRX[ks]}")
    st.stamp("ldone")
    a(f"s_add_u32 s{sNonce}, s{sNonce}, 1")
    a(f"s_cmp_ge_u32 s{sJ}, 20")
    a(f"s_cbranch_scc1 {L('lfree')}")
    a("s_setprio 3")
    a(f"s_mov_b32 s{sGF}, s{sCnt}")
    sel_srd(sB, sWn, 10, 12, 640 * 1280)
    srd(a, sC, 10, 0, 640 * 1280)
    a(f"s_lshl_b32 s{sM0}, s{sWl}, 11")
    a(f"s_lshl_b32 s{sT}, s{sBeta}, 2")
    a(f"s_add_u32 s{sT}, s{sT}, s{sWl}")
    a(f"s_cmp_eq_u32 s{sT}, 2")
    a(f"s_cselect_b32 s{sSp}, 0xffffff00, -1")
    a(f"s_cselect_b64 vcc, -1, 0")
    a(f"s_mov_b32 s{sSp+1}, -1")
    WDB = lambda p: (0x10000 + 8192 * p) if p < 8 else 8192 * (p - 8)
    def wdma(p):
        a(f"s_add_u32 m0, s{sM0}, {WDB(p)}")
        a(f"s_mov_b64 exec, s[{sSp}:{sSp+1}]")
        a(f"buffer_load_dwordx4 v{vFW[0]}, s[{sB}:{sB+3}], s{sOX} offen lds")
        a(f"s_cbranch_vccz {L('fs%d' % p)}")
        a("s_mov_b64 exec, 0xff")
        a(f"buffer_load_dwordx4 v{vFs}, s[{sC}:{sC+3}], s{sOX} offen lds")
        a.label(L("fs%d" % p))
        a("s_mov_b64 exec, -1")
        a(f"buffer_load_dwordx4 v{vFW[1]}, s[{sB}:{sB+3}], s{sOX} offen offset:1024 lds")
        a(f"s_add_u32 s{sOX}, s{sOX}, 128")
        a(f"s_cmp_eq_u32 s{sOX}, 1280")
        a(f"s_cselect_b32 s{sOX}, 0, s{sOX}")
    def twl():
        srd(a, sB, 6, 0, 2048 * 4096)
        srd(a, sC, 8, 0, 2048 * 4096)
        a(f"buffer_load_dwordx4 {vr(FR,4)}, v{vT[2]}, s[{sB}:{sB+3}], 0 offen")
        a(f"buffer_load_dwordx4 {vr(FR+4,4)}, v{vT[2]}, s[{sB}:{sB+3}], 0 offen offset:32")
        a(f"buffer_load_dwordx4 {vr(FIn,4)}, v{vT[2]}, s[{sC}:{sC+3}], 0 offen")
        a(f"buffer_load_dwordx4 {vr(FIn+4,4)}, v{vT[2]}, s[{sC}:{sC+3}], 0 offen offset:32")
    for p in range(fsplit): wdma(p)
    a(f"v_and_b32 v{vT[2]}, 31, v{vL}")
    a(f"v_lshrrev_b32 v{vT[1]}, 5, v{vL}")
    a(f"v_lshlrev_b32 v{vT[2]}, 18, v{vT[2]}")
    a(f"v_lshl_add_u32 v{vT[2]}, v{vT[1]}, 4, v{vT[2]}")
    a(f"s_lshl_b32 s{sT}, s{sWl}, 12")
    a(f"s_sub_u32 s{sT}, 0x10000, s{sT}")
    for ks in range(4): a(f"v_add_u32 v{vRX[ks]}, s{sT}, v{vRX[ks]}")
    assert not STAGE[9 % 4] & 0x10000
    a("s_waitcnt vmcnt(0)")
    lds_inc(12)
    lds_wait("f1", 12, 4)
    st.stamp("fb0")
    if stamps: a("s_waitcnt lgkmcnt(0)")
    def rdB(s):
        p, ks = divmod(s, 4)
        if s == 32:
            for k in range(4): a(f"v_xor_b32 v{vRX[k]}, 0x10000, v{vRX[k]}")
        for part in range(2):
            a(f"ds_read_b128 {vr(BF[s%3][part],4)}, v{vRX[ks]} offset:{(WDB(p) & 0xffff) + 4096*part}")
    rdB(0); rdB(1)
    H = 4 * fsplit
    for s in range(40):
        if s == fstart and fwait: lds_wait("f0", 20, 4)
        if fstart <= s < fstart + 10 - fsplit: wdma(fsplit + s - fstart)
        if s == fstart + 10 - fsplit: twl()
        if s == H - 2:
            a("s_waitcnt vmcnt(4)")
            lds_inc(16)
            lds_wait("f2", 16, 4)
            st.stamp("fb1")
            if stamps: a("s_waitcnt lgkmcnt(0)")
        if s + 2 < 40: rdB(s + 2)
        a(f"s_waitcnt lgkmcnt({4 if s < 38 else 2*(39-s)})")
        for part, Z in enumerate((ZA, ZB)):
            c = "0" if s == 0 else vr(Z, 16)
            a(f"v_mfma_f32_32x32x16_bf16 {vr(Z,16)}, {vr(XR[s//4][s%4],4)}, {vr(BF[s%3][part],4)}, {c}")
    assert fstart + 10 - fsplit < H - 2
    lds_inc(8)
    st.stamp("fend")
    FRn = XR[0][0]; G0 = XR[1][0]; G1 = XR[2][0]; G2 = XR[3][0]; G3 = XR[4][0]; ZS = XR[5][0]
    a("s_waitcnt vmcnt(0)")
    for i in range(8):
        a(f"v_xor_b32 v{FRn+i}, 0x80008000, v{FR+i}")
        a(f"v_xor_b32 v{FIn+i}, 0x80008000, v{FIn+i}")
    for Z in (ZA, ZB):
        for i in range(8): a(f"v_cvt_pk_bf16_f32 v{Z+i}, v{Z+2*i}, v{Z+2*i+1}")
    m = lambda d, A, B, c: a(f"v_mfma_f32_32x32x16_bf16 {vr(d,16)}, {vr(A,4)}, {vr(B,4)}, {c}")
    GP = TOP - 24
    a("s_nop 0")
    a(f"s_cmp_lg_u32 s{sBeta}, 0")
    a(f"s_cbranch_scc1 {L('fn')}")
    m(G2, ZB, FR, "0"); m(G2, ZB+4, FR+4, vr(G2,16))
    m(G3, ZB, FIn, "0"); m(G3, ZB+4, FIn+4, vr(G3,16))
    a("s_mov_b32 exec_lo, 1"); a("s_mov_b32 exec_hi, 1")
    for i in range(8): a(f"v_mov_b32 v{ZB+i}, 0")
    a(f"s_mov_b64 exec, s[{sLo}:{sLo+1}]")
    a("s_nop 3")
    for i in range(4): a(f"v_mov_b32 v{GP+16+i}, 0"); a(f"v_mov_b32 v{GP+20+i}, 0")
    a(f"v_cvt_pk_bf16_f32 v{GP+16}, v{G2}, 0")
    a(f"v_cvt_pk_bf16_f32 v{GP+20}, v{G3}, 0")
    a("s_mov_b64 exec, -1")
    a.label(L("fn"))
    m(G0, ZA, FR, "0"); m(G0, ZA+4, FR+4, vr(G0,16)); m(G0, ZB, FIn, vr(G0,16)); m(G0, ZB+4, FIn+4, vr(G0,16))
    m(G1, ZB, FRn, "0"); m(G1, ZB+4, FRn+4, vr(G1,16)); m(G1, ZA, FIn, vr(G1,16)); m(G1, ZA+4, FIn+4, vr(G1,16))
    a("s_nop 7")
    for p, g in enumerate((G0, G1)):
        for i in range(8): a(f"v_cvt_pk_bf16_f32 v{GP+8*p+i}, v{g+2*i}, v{g+2*i+1}")
    def g_stores(sd):
        srd(a, sd, sWS, WL.G, WL.G_SIZE)
        a(f"s_mov_b32 s{sT2}, {64*WL.GA}")
        for p in range(2):
            for j in range(2):
                so = "0" if p == 0 else f"s{sT2}"
                a(f"buffer_store_dwordx4 {vr(GP+8*p+4*j,4)}, v{vGs}, s[{sd}:{sd+3}], {so} offen offset:{1024*j} sc1")
        a(f"s_or_b32 s{sT}, s{sXc}, s{sJ}")
        a(f"s_cmp_ge_u32 s{sT}, 4")
        a(f"s_cbranch_scc1 {L('gs1')}")
        a(f"v_add_u32 v{vGs}, {20*1024}, v{vGs}")
        a(f"s_mov_b64 exec, s[{sLo}:{sLo+1}]")
        a(f"buffer_store_dwordx4 {vr(GP+16,4)}, v{vGs}, s[{sd}:{sd+3}], 0 offen sc1")
        a(f"buffer_store_dwordx4 {vr(GP+20,4)}, v{vGs}, s[{sd}:{sd+3}], s{sT2} offen sc1")
        a("s_mov_b64 exec, -1")
        a.label(L("gs1"))
    if not gdefer: g_stores(sC)
    assert ZB + 8 <= GP
    st.stamp("gst")
    a(f"s_branch {L('att')}")
    a.label(L("lgate"))
    if cwarm:
        a(f"s_getpc_b64 s[{sT}:{sT2}]")
        a.label(L("pc0"))
        a(f"s_sub_u32 s{sT}, s{sT}, {L('pc0')}-{name}")
        a(f"s_subb_u32 s{sT2}, s{sT2}, 0")
        a(f"s_lshl_b32 s{sCnt}, s{sWl}, 13")
        a(f"v_lshl_add_u32 v{vT[0]}, v{vL}, 7, s{sCnt}")
        a(f"v_min_u32 v{vT[0]}, {L('cend')}-{name}-4, v{vT[0]}")
        a(f"global_load_dword v{vT[1]}, v{vT[0]}, s[{sT}:{sT2}]")
    if gtouch:
        sel_srd(sB, sWm, 6, 8, 2048 * 4096)
        a(f"v_and_b32 v{vT[0]}, 31, v{vL}")
        a(f"v_lshlrev_b32 v{vT[0]}, 18, v{vT[0]}")
        a(f"buffer_load_dword v{vT[1]}, v{vT[0]}, s[{sB}:{sB+3}], 0 offen")
        sel_srd(sB, sWm, 10, 12, 640 * 1280)
        a(f"s_and_b32 s{sT}, s{sJ}, 1")
        a(f"s_lshl_b32 s{sT}, s{sT}, 1")
        a(f"s_add_u32 s{sT}, s{sT}, s{sWn}")
        a(f"s_mul_i32 s{sT}, s{sT}, {400*128}")
        a(f"s_lshr_b32 s{sT2}, s{sXc}, 2")
        a(f"s_mul_i32 s{sT2}, s{sT2}, {160*1280}")
        a(f"s_add_u32 s{sT}, s{sT}, s{sT2}")
        a(f"v_min_u32 v{vT[0]}, 49, v{vL}")
        a(f"v_lshlrev_b32 v{vT[0]}, 7, v{vT[0]}")
        for i in range(8):
            a(f"buffer_load_dword v{vT[1]}, v{vT[0]}, s[{sB}:{sB+3}], s{sT} offen")
            a(f"s_add_u32 s{sT}, s{sT}, {50*128}")
    masks()
    a("s_waitcnt lgkmcnt(0)")
    a("s_barrier")
    a(f"s_add_u32 s{sNonce}, s{sNonce}, 1")
    a.label(L("lfree"))
    a("s_waitcnt vmcnt(0) lgkmcnt(0)")
    lds_inc(8)
    a(f"s_branch {L('att')}")

    a.label(L("comp"))
    V = Alloc(VB, TOP)
    vRX = [V.get() for _ in range(4)]; vRW = [V.get() for _ in range(2)]
    vE = [V.get() for _ in range(8)]
    vTch = V.get(2)
    XF = [[V.get(4, 4) for _ in range(2)] for _ in range(2)]
    WF = [[V.get(4, 4) for _ in range(2)] for _ in range(2)]
    ACC = [[V.get(16, 4) for _ in range(2)] for _ in range(2)]
    PK = TOP - 32
    vS = [PK - 4 + i for i in range(4)]
    sDef = 15
    sMask = sD; sScale = sD + 2
    a(f"s_setprio {cprio}")
    nat_read_addrs(vRX, sWm, 13)
    for x in range(2):
        for w in range(2):
            for i in range(16): a(f"v_mov_b32 v{ACC[x][w]+i}, 0")
    after_kernarg()
    masks()
    a(f"s_cmp_lg_u32 s{sW}, 0")
    a(f"s_cbranch_scc1 {L('c1')}")
    a(f"ds_write_b128 v{vCtl}, {vr(ACC[0][0],4)}")
    a(f"ds_write_b128 v{vCtl}, {vr(ACC[0][0],4)} offset:16")
    a.label(L("c1"))
    def poison(sd, pr):
        a(f"s_and_b32 s{sT}, s{sJ}, 3")
        a(f"s_lshl_b32 s{sT2}, s{sXc}, 2")
        a(f"s_add_u32 s{sT}, s{sT}, s{sT2}")
        a(f"s_and_b32 s{sCnt}, s{sT}, 1")
        a(f"s_lshr_b32 s{sT}, s{sT}, 1")
        a(f"s_mul_i32 s{sT}, s{sT}, {5*WL.PL}")
        a(f"s_add_u32 s{sT}, s{sT}, {WL.OF}")
        srd(a, sd, sWS, f"s{sT}", 5 * WL.PL)
        a(f"s_and_b32 s{sT}, s{sJ}, 28")
        a(f"s_add_u32 s{sT}, s{sT}, s{sW}")
        a(f"s_lshl_b32 s{sT}, s{sT}, 10")
        a(f"v_lshl_add_u32 v{vT[0]}, v{vL}, 4, s{sT}")
        for i in range(4): a(f"v_mov_b32 v{pr+i}, -1")
        a(f"s_mul_i32 s{sT}, s{sCnt}, {3*WL.PL}")
        a(f"buffer_store_dwordx4 {vr(pr,4)}, v{vT[0]}, s[{sd}:{sd+3}], s{sT} offen sc1")
        a(f"s_add_u32 s{sT}, s{sT}, {WL.PL}")
        a(f"buffer_store_dwordx4 {vr(pr,4)}, v{vT[0]}, s[{sd}:{sd+3}], s{sT} offen sc1")
        a(f"s_lshl_b32 s{sT}, s{sCnt}, 3")
        a(f"s_add_u32 s{sT}, s{sT}, {2*WL.PL}")
        a(f"buffer_store_dwordx2 {vr(pr,2)}, v{vT[0]}, s[{sd}:{sd+3}], s{sT} offen sc1")
    if pois == 1: poison(sC, PK)
    def mainloop(mode):
        def rdX(s, ks, x): a(f"ds_read_b128 {vr(XF[s][x],4)}, v{vRX[ks]} offset:{4096*x}")
        def rdW(s, ks, w):
            a(f"ds_read_b64_tr_b16 {vr(WF[s][w],2)}, v{vRW[w]} offset:{4096*ks}")
            a(f"ds_read_b64_tr_b16 {vr(WF[s][w]+2,2)}, v{vRW[w]} offset:{4096*ks+1024}")
        def mf(s, x, w):
            A, B = (WF[s][w], XF[s][x]) if mode == 'qk' else (XF[s][x], WF[s][w])
            a(f"v_mfma_f32_32x32x16_bf16 {vr(ACC[x][w],16)}, {vr(A,4)}, {vr(B,4)}, {vr(ACC[x][w],16)}")
        a("s_waitcnt lgkmcnt(0)")
        a("s_barrier")
        st.stamp("b0")
        if stamps: a("s_waitcnt lgkmcnt(0)")
        rdX(0, 0, 0); rdW(0, 0, 0); rdX(0, 0, 1); rdW(0, 0, 1)
        a(f"s_mov_b32 s{sCnt}, 0")
        a.raw(".p2align 5")
        a.label(L(mode + "loop"))
        for ks in range(4):
            s = ks % 2; n = 1 - s; nk = (ks + 1) % 4
            if ks < 3:
                a("s_waitcnt lgkmcnt(3)")
                mf(s, 0, 0)
                if ks == 0 and touch:
                    a(f"s_cmp_lg_u32 s{sCnt}, {tpos}")
                    a(f"s_cbranch_scc1 {L(mode+'nt')}")
                    a(f"buffer_load_dword v{vTch}, v{vTch+1}, s[{sE}:{sE+3}], 0 offen")
                    a.label(L(mode + "nt"))
            else:
                a("s_waitcnt lgkmcnt(0)")
                mf(s, 0, 0)
                a(f"s_add_u32 s{sCnt}, s{sCnt}, 1")
                a(f"s_cmp_eq_u32 s{sCnt}, 10")
                a(f"s_cbranch_scc1 {L(mode+'last')}")
                a("s_barrier")
                for r in vRX + vRW:
                    a(f"v_xor_b32 v{r}, s{sMask}, v{r}")
            rdX(n, nk, 0); rdW(n, nk, 0)
            if ks < 3: a("s_waitcnt lgkmcnt(5)")
            mf(s, 1, 0)
            rdX(n, nk, 1)
            if ks < 3: a("s_waitcnt lgkmcnt(4)")
            mf(s, 0, 1)
            rdW(n, nk, 1)
            if ks == 3: a(f"s_xor_b32 s{sMask}, s{sMask}, 0x18000")
            mf(s, 1, 1)
        a(f"s_branch {L(mode+'loop')}")
        a.label(L(mode + "last"))
        mf(1, 0, 1); mf(1, 1, 0); mf(1, 1, 1)
        lds_inc(8)
        st.stamp("aend")
        a("s_nop 1")
    a(f"s_mov_b32 s{sMask}, 0x8000")
    a(f"s_cmp_ge_u32 s{sJ}, 30")
    a(f"s_cbranch_scc1 {L('gate')}")
    a(f"s_lshl_b32 s{sAF}, s{sCb}, 4")
    a(f"s_add_u32 s{sAF}, s{sAF}, s{sRb}")
    if touch:
        sel_srd(sE, sWm, 10, 12, 640 * 1280)
        a(f"s_lshl_b32 s{sT}, s{sJ}, 1")
        a(f"s_add_u32 s{sT}, s{sT}, s{sWn}")
        a(f"s_mul_i32 s{sT}, s{sT}, {27*128}")
        a(f"s_lshr_b32 s{sT2}, s{sXc}, 2")
        a(f"s_mul_i32 s{sT2}, s{sT2}, {160*1280}")
        a(f"s_add_u32 s{sT}, s{sT}, s{sT2}")
        a(f"v_min_u32 v{vTch+1}, 26, v{vL}")
        a(f"v_lshl_add_u32 v{vTch+1}, v{vTch+1}, 7, s{sT}")
    def astore(sd, aa, bb, lab=None):
        if lab and defer: a(f"s_cbranch_vccnz {L('as%s%d%d' % (lab, aa, bb))}")
        for j in range(2):
            a(f"buffer_store_dwordx4 {vr(PK+8*(2*bb+aa)+4*j,4)}, v{vS[2*aa+j]}, s[{sd}:{sd+3}], 0 offen offset:{512*bb} sc1")
        if lab and defer: a.label(L('as%s%d%d' % (lab, aa, bb)))
    srd(a, sC, sWS, WL.QF, WL.G - WL.QF)
    if defer:
        a(f"s_and_b32 s{sDef}, s{sRb}, {dmask}")
        a(f"s_cmp_lt_u32 s{sCb}, 5")
        a(f"s_cselect_b32 s{sDef}, 0, s{sDef}")
        a(f"s_cmp_lg_u32 s{sDef}, 0")
        a("s_cselect_b64 vcc, -1, 0")
    a(f"v_bfe_u32 v{vT[0]}, v{vL}, 2, 2")
    a(f"v_lshrrev_b32 v{vT[1]}, 5, v{vL}")
    a(f"v_lshl_add_u32 v{vT[1]}, v{vT[1]}, 3, v{vT[0]}")
    a(f"v_lshlrev_b32 v{vT[1]}, 8, v{vT[1]}")
    a(f"s_lshl_b32 s{sT}, s{sWn}, 1")
    a(f"v_xor_b32 v{vT[0]}, s{sT}, v{vT[0]}")
    a(f"v_lshl_add_u32 v{vT[1]}, v{vT[0]}, 6, v{vT[1]}")
    a(f"v_bfe_u32 v{vT[0]}, v{vL}, 4, 1")
    a(f"v_lshl_add_u32 v{vT[1]}, v{vT[0]}, 5, v{vT[1]}")
    a(f"v_add_u32 v{vT[1]}, 0x4000, v{vT[1]}")
    a(f"v_and_b32 v{vT[4]}, 31, v{vL}")
    a(f"v_lshrrev_b32 v{vT[5]}, 5, v{vL}")
    a(f"s_cmp_ge_u32 s{sCb}, 10")
    a(f"s_cbranch_scc1 {L('v')}")
    a(f"v_and_b32 v{vT[0]}, 1, v{vL}")
    a(f"v_lshl_add_u32 v{vT[1]}, v{vT[0]}, 4, v{vT[1]}")
    a(f"v_bfe_u32 v{vT[0]}, v{vL}, 1, 1")
    a(f"v_lshl_add_u32 v{vRW[0]}, v{vT[0]}, 3, v{vT[1]}")
    a(f"v_xor_b32 v{vRW[1]}, 64, v{vRW[0]}")
    a(f"s_cmp_ge_u32 s{sCb}, 5")
    a(f"s_cselect_b32 s{sScale}, 1.0, {hex(QSCALE)}")
    a(f"s_mov_b32 s{sScale+1}, s{sScale}")
    a(f"s_lshl_b32 s{sT}, s{sCb}, 1")
    a(f"s_add_u32 s{sT}, s{sT}, s{sWn}")
    a(f"s_lshl_b32 s{sT}, s{sT}, 18")
    a(f"s_lshl_b32 s{sT2}, s{sRb}, 1")
    a(f"s_add_u32 s{sT2}, s{sT2}, s{sWm}")
    a(f"s_lshl_b32 s{sT2}, s{sT2}, 10")
    a(f"s_add_u32 s{sT}, s{sT}, s{sT2}")
    a(f"v_lshlrev_b32 v{vS[0]}, 15, v{vT[5]}")
    a(f"v_lshl_add_u32 v{vS[0]}, v{vT[4]}, 4, v{vS[0]}")
    a(f"v_add_u32 v{vS[0]}, s{sT}, v{vS[0]}")
    for e in range(1, 4): a(f"v_add_u32 v{vS[e]}, {e*2*WL.PL}, v{vS[0]}")
    mainloop('qk')
    for x in range(2):
        for w in range(2):
            acc = ACC[x][w]; pk = PK + 8 * (2 * x + w)
            for i in range(0, 16, 2): a(f"v_pk_mul_f32 {vr(acc+i,2)}, {vr(acc+i,2)}, s[{sScale}:{sScale+1}]")
            for i in range(8): a(f"v_cvt_pk_bf16_f32 v{pk+i}, v{acc+2*i}, v{acc+2*i+1}")
            astore(sC, w, x, "q")
    a(f"s_branch {L('adone')}")
    a.label(L("v"))
    a(f"v_and_b32 v{vT[0]}, 3, v{vL}")
    a(f"v_lshl_add_u32 v{vRW[0]}, v{vT[0]}, 3, v{vT[1]}")
    a(f"v_xor_b32 v{vRW[1]}, 64, v{vRW[0]}")
    a(f"s_lshl_b32 s{sT}, s{sRb}, 1")
    a(f"s_add_u32 s{sT}, s{sT}, s{sWm}")
    a(f"s_mul_i32 s{sT}, s{sT}, {2*WL.VT}")
    a(f"s_sub_u32 s{sT2}, s{sCb}, 10")
    a(f"s_lshl_b32 s{sT2}, s{sT2}, 1")
    a(f"s_add_u32 s{sT2}, s{sT2}, s{sWn}")
    a(f"s_lshl_b32 s{sT2}, s{sT2}, 10")
    a(f"s_add_u32 s{sT}, s{sT}, s{sT2}")
    a(f"s_add_u32 s{sT}, s{sT}, {WL.VF - WL.QF}")
    a(f"v_mul_u32_u24 v{vS[0]}, 10240, v{vT[5]}")
    a(f"v_lshl_add_u32 v{vS[0]}, v{vT[4]}, 4, v{vS[0]}")
    a(f"v_add_u32 v{vS[0]}, s{sT}, v{vS[0]}")
    for e in range(1, 4): a(f"v_add_u32 v{vS[e]}, {e*20480}, v{vS[0]}")
    mainloop('v')
    for x in range(2):
        for w in range(2):
            acc = ACC[x][w]; pk = PK + 8 * (2 * w + x)
            for i in range(8): a(f"v_cvt_pk_bf16_f32 v{pk+i}, v{acc+2*i}, v{acc+2*i+1}")
            astore(sC, x, w, "v")
    a(f"s_branch {L('adone')}")
    a.label(L("gate"))
    GW = 40; GX = 60
    assert vTch + 2 <= GW and GX + 160 <= PK
    srd(a, sB, 20, 0, 1280)
    srd(a, sC, sWS, WL.GATE, 2048 * 8)
    a(f"v_and_b32 v{vT[0]}, 15, v{vL}")
    a(f"v_lshlrev_b32 v{vT[0]}, 4, v{vT[0]}")
    a(f"s_and_b32 s{sAF}, s{sXc}, 3")
    a(f"s_lshl_b32 s{sAF}, s{sAF}, 2")
    a(f"s_lshr_b32 s{sT}, s{sXc}, 2")
    a(f"s_lshl_b32 s{sT}, s{sT}, 1")
    a(f"s_add_u32 s{sAF}, s{sAF}, s{sT}")
    a(f"s_add_u32 s{sAF}, s{sAF}, s{sJ}")
    a(f"s_sub_u32 s{sAF}, s{sAF}, 30")
    a(f"s_lshl_b32 s{sT}, s{sAF}, 1")
    a(f"s_add_u32 s{sT}, s{sT}, s{sWn}")
    a(f"s_add_u32 s{sAF}, s{sAF}, 240")
    a(f"s_lshl_b32 s{sT2}, s{sWm}, 5")
    a(f"v_lshrrev_b32 v{vT[5]}, 4, v{vL}")
    a(f"s_add_u32 s{sCnt}, s{sT}, s{sT2}")
    a(f"v_lshl_add_u32 v{vT[2]}, v{vT[5]}, 6, s{sCnt}")
    a(f"v_mul_u32_u24 v{vT[2]}, 1280, v{vT[2]}")
    a(f"v_add_u32 v{vT[2]}, v{vT[2]}, v{vT[0]}")
    a(f"s_lshl_b32 s{sT}, s{sT}, 6")
    a(f"s_add_u32 s{sT}, s{sT}, s{sT2}")
    a(f"v_add_u32 v{vT[5]}, s{sT}, v{vT[5]}")
    a(f"v_lshlrev_b32 v{vT[5]}, 3, v{vT[5]}")
    a(f"v_cmp_eq_u32 vcc, 0, v{vT[0]}")
    a("s_waitcnt lgkmcnt(0)")
    a("s_barrier")
    for p in range(5):
        a(f"buffer_load_dwordx4 {vr(GW+4*p,4)}, v{vT[0]}, s[{sB}:{sB+3}], 0 offen offset:{256*p}")
    for r in range(8):
        b4 = (r & 4) * 4 + (r & 1) * 8 + (r & 2) * 2
        a(f"s_mov_b32 s{sT}, {b4*64*1280}")
        for p in range(5):
            a(f"buffer_load_dwordx4 {vr(GX+20*r+4*p,4)}, v{vT[2]}, s[{sA}:{sA+3}], s{sT} offen offset:{256*p}")
        a(f"v_mov_b32 v{vE[r]}, 0")
    for r in range(8):
        a(f"s_waitcnt vmcnt({35-5*r})")
        for i in range(20):
            a(f"v_dot2c_f32_bf16 v{vE[r]}, v{GX+20*r+i}, v{GW+i}")
    a("s_nop 3")
    for sh in (8, 4, 2, 1):
        for r in range(8):
            a(f"v_add_f32_dpp v{vE[r]}, v{vE[r]}, v{vE[r]} row_ror:{sh} row_mask:0xf bank_mask:0xf")
    GO = PK
    for r in range(8): a(f"v_cvt_pk_bf16_f32 v{vE[r]}, 0, v{vE[r]}")
    for r in range(8): a(f"v_mul_f32 v{vE[r]}, 0xbfb8aa3b, v{vE[r]}")
    for r in range(8): a(f"v_exp_f32 v{vE[r]}, v{vE[r]}")
    for r in range(8): a(f"v_add_f32 v{vE[r]}, 1.0, v{vE[r]}")
    for r in range(8): a(f"v_rcp_f32 v{vE[r]}, v{vE[r]}")
    for r in range(8): a(f"v_cvt_pk_bf16_f32 v{GO+2*r}, 0, v{vE[r]}")
    for r in range(8): a(f"v_sub_f32 v{GO+2*r+1}, 1.0, v{GO+2*r}")
    for r in range(8): a(f"v_cvt_pk_bf16_f32 v{GO+2*r+1}, 0, v{GO+2*r+1}")
    a("s_mov_b64 exec, vcc")
    for r in range(8):
        a(f"buffer_store_dwordx2 {vr(GO+2*r,2)}, v{vT[5]}, s[{sC}:{sC+3}], 0 offen offset:{32*r} sc1")
    a("s_mov_b64 exec, -1")
    lds_inc(8)
    a.label(L("adone"))
    if pois == 2: poison(sC, XF[0][0])
    if fwait: lds_inc(20)
    st.stamp("ast")
    a(f"s_add_u32 s{sNonce}, s{sNonce}, 1")
    a(f"s_lshl_b32 s{sAF}, s{sAF}, 7")
    a(f"s_add_u32 s{sAF}, s{sAF}, {WL.FA}")

    a.label(L("att"))
    V = Alloc(VB, TOP)
    vKm = V.get(); vKr = V.get(); vV0 = V.get(); vV1 = V.get(); vM = V.get(); vWo = V.get()
    Qm = [V.get(4, 4) for _ in range(2)]
    Qr = [V.get(2) for _ in range(2)]
    Km = [V.get(4, 4) for _ in range(4)]
    Kr = [V.get(2) for _ in range(4)]
    Vb = [[V.get(4, 4) for _ in range(2)] for _ in range(4)]
    P = V.get(8, 4)
    S = [V.get(16, 4) for _ in range(2)]
    O = [V.get(16, 4) for _ in range(2)]
    K0m = V.get(4, 4); K0r = V.get(2)
    vG = V.get(2); vO = V.get(); vSt = V.get(); vGd = V.get(); vWs = V.get(); vX0 = V.get(); vX1 = V.get(); vGt = V.get(); vDum = V.get()
    WsF = [V.get(4, 4) for _ in range(2)]
    GFl = V.get(12, 4)
    vKF = GFl + 10; vQF = GFl + 11
    att_hi = V.p
    assert att_hi <= TOP - 32
    OFr = [V.get(4, 4) for _ in range(10)]
    AC = [V.get(4, 4) for _ in range(5)]
    sK = sA; sV = sB; sQ = sC; sWo = sD
    sHead = 98; sQb = 99; sKh = 100; sOK = 101; sOV = 14; sOWo = 15; sM0 = 3; sPar = sE; sHp = sE + 1; sStep = sE + 2; sU0 = sE + 3
    sCc = sHead; sEb8 = sQb; sMs = sPar; sStep2 = sAF
    a(f"s_and_b32 s{sT}, s{sJ}, 3")
    a(f"s_lshl_b32 s{sHead}, s{sXc}, 2")
    a(f"s_add_u32 s{sHead}, s{sHead}, s{sT}")
    a(f"s_lshr_b32 s{sQb}, s{sJ}, 2")
    a(f"s_lshr_b32 s{sKh}, s{sW}, 2")
    a(f"s_and_b32 s{sPar}, s{sHead}, 1")
    a(f"s_lshr_b32 s{sHp}, s{sHead}, 1")
    a(f"s_mul_i32 s{sHp}, s{sHp}, {5*WL.PL}")
    a(f"v_and_b32 v{vT[0]}, 31, v{vL}")
    a(f"v_lshrrev_b32 v{vT[1]}, 5, v{vL}")
    a(f"s_mul_i32 s{sT}, s{sPar}, {3*WL.PL}")
    a(f"v_lshlrev_b32 v{vKm}, 15, v{vT[1]}")
    a(f"v_lshl_add_u32 v{vKm}, v{vT[0]}, 4, v{vKm}")
    a(f"v_add_u32 v{vKm}, s{sT}, v{vKm}")
    a(f"s_lshl_b32 s{sT}, s{sPar}, 3")
    a(f"s_add_u32 s{sT}, s{sT}, {2*WL.PL}")
    a(f"v_lshl_add_u32 v{vKr}, v{vT[0]}, 4, s{sT}")
    a(f"v_and_b32 v{vT[2]}, 0x13, v{vT[0]}")
    a(f"v_bfe_u32 v{vT[3]}, v{vT[0]}, 2, 1")
    a(f"v_lshl_add_u32 v{vT[2]}, v{vT[3]}, 3, v{vT[2]}")
    a(f"v_bfe_u32 v{vT[3]}, v{vT[0]}, 3, 1")
    a(f"v_lshl_add_u32 v{vT[2]}, v{vT[3]}, 2, v{vT[2]}")
    a(f"v_and_b32 v{vSt}, 15, v{vT[2]}")
    a(f"s_lshl_b32 s{sT}, s{sPar}, 2")
    a(f"v_add_u32 v{vT[2]}, s{sT}, v{vT[2]}")
    a(f"v_subrev_u32 v{vT[3]}, 20, v{vT[2]}")
    a(f"v_min_u32 v{vT[2]}, v{vT[2]}, v{vT[3]}")
    a(f"s_mul_i32 s{sT}, s{sHead}, 320")
    a(f"v_mul_u32_u24 v{vV0}, 10240, v{vT[1]}")
    a(f"v_lshl_add_u32 v{vV0}, v{vT[2]}, 4, v{vV0}")
    a(f"v_add_u32 v{vV0}, s{sT}, v{vV0}")
    a(f"v_add_u32 v{vV1}, 20480, v{vV0}")
    a(f"s_add_u32 s{sT}, s{sHp}, {WL.KF}")
    srd(a, sK, sWS, f"s{sT}", 5 * WL.PL)
    srd(a, sV, sWS, WL.VF, 64 * WL.VT)
    a(f"s_add_u32 s{sT}, s{sHp}, {WL.QF}")
    srd(a, sQ, sWS, f"s{sT}", 5 * WL.PL)
    a(f"s_lshl_b32 s{sOK}, s{sKh}, 14")
    a(f"s_mul_i32 s{sOV}, s{sKh}, {32*WL.VT}")
    a(f"s_lshl_b32 s{sU0}, s{sQb}, 2")
    a(f"s_and_b32 s{sT}, s{sW}, 3")
    a(f"s_add_u32 s{sU0}, s{sU0}, s{sT}")
    a(f"s_lshl_b32 s{sU0}, s{sU0}, 10")
    for r in [K0r] + Kr:
        a(f"v_mov_b32 v{r}, 0x3f803f80")
        a(f"v_mov_b32 v{r+1}, 0x3f80")
    for q in range(2):
        a(f"v_mov_b32 v{Qr[q]}, 0"); a(f"v_mov_b32 v{Qr[q]+1}, 0")
    a(f"v_cmp_eq_u32 vcc, 20, v{vT[0]}")
    a(f"v_mov_b32 v{vT[2]}, 0x3f803f80")
    a(f"v_mov_b32 v{vT[3]}, 0")
    a(f"v_cndmask_b32 v{vT[2]}, v{vT[3]}, v{vT[2]}, vcc")
    a(f"v_mov_b32 v{vT[3]}, v{vT[2]}")
    for b in range(4):
        for j in range(2):
            for i in range(0, 4, 2): a(f"v_mov_b64 {vr(Vb[b][j]+i,2)}, {vr(vT[2],2)}")
    def setup2():
        for q in range(2):
            for i in range(0, 16, 2): a(f"v_mov_b64 {vr(O[q]+i,2)}, 0")
        for i in range(4, 8, 2): a(f"v_mov_b64 {vr(P+i,2)}, 0")
        a(f"v_and_b32 v{vT[0]}, 15, v{vL}")
        a(f"v_lshrrev_b32 v{vT[1]}, 4, v{vL}")
        a(f"s_and_b32 s{sT}, s{sW}, 3")
        a(f"s_lshl_b32 s{sT}, s{sT}, 4")
        a(f"s_lshl_b32 s{sT2}, s{sCc}, 6")
        a(f"s_add_u32 s{sT}, s{sT}, s{sT2}")
        a(f"v_add_u32 v{vT[2]}, s{sT}, v{vT[0]}")
        a(f"s_and_b32 s{sT}, s{sW}, 1")
        a(f"s_lshl_b32 s{sT}, s{sT}, 10")
        a(f"s_and_b32 s{sT2}, s{sW}, 2")
        a(f"s_lshl_b32 s{sT2}, s{sT2}, 4")
        a(f"s_add_u32 s{sT}, s{sT}, s{sT2}")
        a(f"s_add_u32 s{sT}, s{sT}, s{sCc}")
        a(f"v_lshl_add_u32 v{vT[0]}, v{vSt}, 6, s{sT}")
        a(f"v_lshlrev_b32 v{vWs}, 12, v{vT[0]}")
        a(f"v_lshl_add_u32 v{vWs}, v{vT[1]}, 4, v{vWs}")
        a(f"v_lshlrev_b32 v{vGt}, 3, v{vT[2]}")
        a(f"v_lshlrev_b32 v{vO}, 4, v{vT[2]}")
        a(f"v_lshl_add_u32 v{vO}, v{vT[1]}, 15, v{vO}")
        a(f"s_mul_i32 s{sT}, s{sKh}, {40*WL.PL}")
        a(f"v_add_u32 v{vO}, s{sT}, v{vO}")
        a(f"v_mul_u32_u24 v{vSt}, 1280, v{vT[0]}")
        a(f"v_lshl_add_u32 v{vSt}, v{vT[1]}, 3, v{vSt}")
        a(f"s_mul_i32 s{sT}, s{sEb8}, 160")
        a(f"v_add_u32 v{vSt}, s{sT}, v{vSt}")
        a(f"v_mul_u32_u24 v{vT[2]}, 205, v{vL}")
        a(f"v_lshrrev_b32 v{vT[2]}, 11, v{vT[2]}")
        a(f"v_mul_u32_u24 v{vWo}, {1280-160}, v{vT[2]}")
        a(f"v_lshl_add_u32 v{vWo}, v{vL}, 4, v{vWo}")
        a(f"v_add_u32 v{vWo}, s{sT}, v{vWo}")
        a(f"v_mul_u32_u24 v{vT[2]}, 187, v{vL}")
        a(f"v_lshrrev_b32 v{vT[2]}, 11, v{vT[2]}")
        a(f"v_mul_u32_u24 v{vT[3]}, 11, v{vT[2]}")
        a(f"v_sub_u32 v{vT[3]}, v{vL}, v{vT[3]}")
        a(f"v_mul_u32_u24 v{vGd}, {WL.GA}, v{vT[2]}")
        a(f"v_lshrrev_b32 v{vT[2]}, 1, v{vT[3]}")
        a(f"v_lshl_add_u32 v{vGd}, v{vT[2]}, 10, v{vGd}")
        a(f"v_and_b32 v{vT[3]}, 1, v{vT[3]}")
        a(f"v_lshl_add_u32 v{vGd}, v{vT[3]}, 4, v{vGd}")
        a(f"s_sub_u32 s{sT}, 7, s{sEb8}")
        a(f"s_sub_u32 s{sT2}, 32, s{sCc}")
        a(f"s_and_b32 s{sT2}, s{sT2}, 31")
        a(f"s_cmp_lt_u32 s{sEb8}, 4")
        a(f"s_cselect_b32 s{sT}, s{sEb8}, s{sT}")
        a(f"s_cselect_b32 s{sT2}, s{sCc}, s{sT2}")
        a(f"s_mul_i32 s{sT}, s{sT}, 5120")
        a(f"s_lshl_b32 s{sT2}, s{sT2}, 5")
        a(f"s_add_u32 s{sT}, s{sT}, s{sT2}")
        a(f"v_add_u32 v{vGd}, s{sT}, v{vGd}")
        srd(a, sWo, 18, 0, 640 * 1280)
        a(f"s_mul_i32 s{sT}, s{sW}, 3072")
        a(f"s_add_u32 s{sT}, s{sT}, {LDS_X}")
        a(f"v_lshl_add_u32 v{vX0}, v{vL}, 4, s{sT}")
        a(f"s_xor_b32 s{sT}, s{sW}, 4")
        a(f"s_mul_i32 s{sT}, s{sT}, 3072")
        a(f"s_add_u32 s{sT}, s{sT}, {LDS_X}")
        a(f"v_lshl_add_u32 v{vX1}, v{vL}, 4, s{sT}")
    if not s2late: setup2()
    def dma_params(pitch_g, pitch_l, steps_half, lbase):
        a(f"s_and_b32 s{sT}, s{sW}, 3")
        a(f"s_mul_i32 s{sT2}, s{sKh}, {8*steps_half}")
        a(f"s_add_u32 s{sM0}, s{sT}, s{sT2}")
        a(f"s_mul_i32 s{sM0}, s{sM0}, {4*pitch_l}")
        if lbase: a(f"s_add_u32 s{sM0}, s{sM0}, {lbase}")
        a(f"s_lshl_b32 s{sT}, s{sT}, 1")
        a(f"s_add_u32 s{sOWo}, s{sT}, s{sT2}")
        a(f"s_mul_i32 s{sOWo}, s{sOWo}, {4*pitch_g}")
        a(f"s_mov_b32 s{sStep}, {4*pitch_g}")
        a(f"s_mov_b32 s{sStep2}, {28*pitch_g}")
        a(f"s_mov_b32 s{sMs}, {16*pitch_l}")
    a(f"s_mul_i32 s{sT}, s{sHead}, 20")
    a(f"v_bfe_u32 v{vT[0]}, v{vL}, 4, 1")
    a(f"v_mul_u32_u24 v{vT[0]}, 19, v{vT[0]}")
    a(f"v_add_u32 v{vT[0]}, s{sT}, v{vT[0]}")
    a(f"v_lshrrev_b32 v{vT[0]}, 7, v{vT[0]}")
    a(f"v_lshrrev_b32 v{vT[1]}, 5, v{vL}")
    a(f"v_mul_u32_u24 v{vT[1]}, 5, v{vT[1]}")
    a(f"v_add3_u32 v{vT[1]}, v{vT[1]}, v{vT[0]}, 5")
    a(f"v_and_b32 v{vT[2]}, 15, v{vL}")
    a(f"v_lshl_add_u32 v{vT[1]}, v{vT[1]}, 4, v{vT[2]}")
    a(f"v_lshlrev_b32 v{vKF}, 7, v{vT[1]}")
    a(f"s_lshl_b32 s{sT}, s{sQb}, 1")
    a(f"v_and_b32 v{vT[2]}, 1, v{vL}")
    a(f"v_lshl_add_u32 v{vT[0]}, v{vT[0]}, 4, v{vT[2]}")
    a(f"v_add_u32 v{vT[0]}, s{sT}, v{vT[0]}")
    a(f"v_lshlrev_b32 v{vQF}, 7, v{vT[0]}")
    def signal(lab):
        a(f"v_mov_b32 v{vT[0]}, 1")
        a("s_waitcnt vmcnt(0)")
        a("s_mov_b64 exec, 1")
        a(f"ds_add_rtn_u32 v{vT[1]}, v{vCtl}, v{vT[0]} offset:4")
        a("s_mov_b64 exec, -1")
        a("s_waitcnt lgkmcnt(0)")
        a(f"v_readfirstlane_b32 s{sT}, v{vT[1]}")
        a("s_nop 1")
        a(f"s_cmp_lg_u32 s{sT}, 3")
        a(f"s_cbranch_scc1 {L(lab)}")
        put_flag(f"s{sAF}")
        st.stamp("aflag")
        a.label(L(lab))
    a(f"s_cmp_eq_u32 s{sAF}, 0")
    a(f"s_cbranch_scc1 {L('nsig')}")
    a(f"s_cmp_lg_u32 s{sDef}, 0")
    a(f"s_cbranch_scc1 {L('nsig')}")
    signal("nsig2")
    if pois == 3:
        lds_wait("wp", 4, 4)
        poison(sD, GFl)
        srd(a, sWo, 18, 0, 640 * 1280)
    a.label(L("nsig"))
    def aux_loads():
        if pois == 4:
            a(f"s_cmp_lg_u32 s{sKh}, 0")
            a(f"s_cbranch_scc1 {L('np4')}")
            poison(sD, GFl)
            a(f"s_mov_b32 s{sCnt}, 6")
            a.label(L("np4"))
        if gdefer == 1:
            a(f"s_cmp_eq_u32 s{sGF}, 0")
            a(f"s_cbranch_scc1 {L('gs2')}")
            g_stores(sD)
            a.label(L("gs2"))
        sel_srd(sD, sKh, 6, 8, 2048 * 4096)
        a(f"buffer_load_dwordx4 {vr(WsF[0],4)}, v{vWs}, s[{sD}:{sD+3}], 0 offen")
        a(f"buffer_load_dwordx4 {vr(WsF[1],4)}, v{vWs}, s[{sD}:{sD+3}], 0 offen offset:64")
        srd(a, sWo, 18, 0, 640 * 1280)
        if wotouch:
            a(f"s_lshl_b32 s{sT}, s{sJ}, 3")
            a(f"s_add_u32 s{sT}, s{sT}, s{sW}")
            a(f"s_mul_i32 s{sT}, s{sT}, {25*128}")
            a(f"v_min_u32 v{vT[0]}, 24, v{vL}")
            a(f"v_lshlrev_b32 v{vT[0]}, 7, v{vT[0]}")
            a(f"buffer_load_dword v{vDum}, v{vT[0]}, s[{sWo}:{sWo+3}], s{sT} offen")
    a(f"s_cmp_eq_u32 s{sW}, 0")
    a(f"s_cbranch_scc1 {L('poll')}")
    if ldelay:
        a(f"ds_read_b32 v{vT[0]}, v{vCtl}")
        a("s_waitcnt lgkmcnt(0)")
        a(f"v_readfirstlane_b32 s{sT}, v{vT[0]}")
        a("s_nop 1")
        a(f"s_cmp_eq_u32 s{sT}, 1")
        a(f"s_cbranch_scc1 {L('go')}")
    lds_wait("wa", 0, 1, wsleep)
    if ldelay:
        a(f"s_cmp_eq_u32 s{sKh}, 0")
        a(f"s_cbranch_scc1 {L('go')}")
        a(f"s_sleep {ldelay}")
    a(f"s_branch {L('go')}")
    a.label(L("poll"))
    a(f"v_mov_b32 v{vT[1]}, v{vKF}")
    if prog:
        a(f"v_and_b32 v{vT[1]}, {hex(~(dmask << 7) & 0xffffffff)}, v{vT[1]}")
    a(f"s_mov_b32 s{sT2}, {WL.FA}")
    spin_begin("pa")
    a(f"buffer_load_dword v{vT[2]}, v{vT[1]}, s[{sFl}:{sFl+3}], s{sT2} offen sc1")
    a(f"buffer_load_dword v{vT[3]}, v{vQF}, s[{sFl}:{sFl+3}], s{sT2} offen sc1")
    a("s_waitcnt vmcnt(0)")
    for i in range(2): a(f"v_xor_b32 v{vT[2]+i}, s{sNonce}, v{vT[2]+i}")
    a(f"v_or_b32 v{vT[2]}, v{vT[2]}, v{vT[3]}")
    a(f"v_cmp_ne_u32 vcc, 0, v{vT[2]}")
    a("s_nop 1")
    a("s_cmp_eq_u64 vcc, 0")
    a(f"s_cbranch_scc1 {L('pad')}")
    spin_end("pa", psleep)
    a.label(L("pad"))
    a(f"v_mov_b32 v{vT[0]}, 1")
    a(f"ds_write_b32 v{vCtl}, v{vT[0]}")
    a.label(L("go"))
    st.stamp("ardy")
    PS = '' if pplain else ' sc1'
    a(f"buffer_load_dwordx4 {vr(K0m,4)}, v{vKm}, s[{sK}:{sK+3}], 0 offen{PS}")
    a(f"buffer_load_dwordx4 {vr(Qm[0],4)}, v{vKm}, s[{sQ}:{sQ+3}], s{sU0} offen{PS}")
    a(f"buffer_load_dwordx4 {vr(Qm[1],4)}, v{vKm}, s[{sQ}:{sQ+3}], s{sU0} offen offset:512{PS}")
    a(f"s_mov_b64 exec, s[{sLo}:{sLo+1}]")
    a(f"buffer_load_dwordx2 {vr(K0r,2)}, v{vKr}, s[{sK}:{sK+3}], 0 offen{PS}")
    a(f"buffer_load_dwordx2 {vr(Qr[0],2)}, v{vKr}, s[{sQ}:{sQ+3}], s{sU0} offen{PS}")
    a(f"buffer_load_dwordx2 {vr(Qr[1],2)}, v{vKr}, s[{sQ}:{sQ+3}], s{sU0} offen offset:512{PS}")
    a(f"buffer_load_dwordx2 {vr(Kr[0],2)}, v{vKr}, s[{sK}:{sK+3}], s{sOK} offen{PS}")
    a("s_mov_b64 exec, -1")
    a(f"buffer_load_dwordx4 {vr(Km[0],4)}, v{vKm}, s[{sK}:{sK+3}], s{sOK} offen{PS}")
    SC = ' sc1' if kvsc1 else ''
    def ex(m, inloop):
        if inloop and noexec: return
        a(f"s_mov_b64 exec, s[{m}:{m+1}]" if m is not None else "s_mov_b64 exec, -1")
    def ldKr(kb, koff): a(f"buffer_load_dwordx2 {vr(Kr[kb],2)}, v{vKr}, s[{sK}:{sK+3}], s{sOK} offen offset:{koff}{SC}")
    def ldKm(kb, koff): a(f"buffer_load_dwordx4 {vr(Km[kb],4)}, v{vKm}, s[{sK}:{sK+3}], s{sOK} offen offset:{koff}{SC}")
    def ldV(vb, j): a(f"buffer_load_dwordx4 {vr(Vb[vb][j],4)}, v{vV0+j}, s[{sV}:{sV+3}], s{sOV} offen{SC}")
    def group(kb, vb, koff, inloop=False):
        if inloop and noload: return
        ex(sLo, inloop); ldKr(kb, koff)
        ex(sVm, inloop); ldV(vb, 0); ldV(vb, 1)
        ex(None, inloop); ldKm(kb, koff)
        a(f"s_add_u32 s{sOV}, s{sOV}, {WL.VT}")
    group(1, 0, 512)
    if s2late: setup2()
    a("s_waitcnt vmcnt(6)")
    st.stamp("qld")
    for q in range(2):
        a(f"v_mfma_f32_32x32x16_bf16 {vr(S[q],16)}, {vr(K0m,4)}, {vr(Qm[q],4)}, 0")
    if glate: a("s_nop 7")
    else: group(2, 1, 1024)
    a("s_nop 1")
    for q in range(2):
        a(f"v_mfma_f32_32x32x8_bf16 {vr(S[q],16)}, {vr(K0r,2)}, {vr(Qr[q],2)}, {vr(S[q],16)}")
    if glate: a("s_nop 7")
    else: group(3, 2, 1536)
    a("s_nop 3")
    for q in range(2):
        a(f"v_max3_f32 v{S[q]}, v{S[q]}, v{S[q]+1}, v{S[q]+2}")
        for i in range(3, 9 if m8 else 15, 2):
            a(f"v_max3_f32 v{S[q]}, v{S[q]}, v{S[q]+i}, v{S[q]+i+1}")
        if not m8: a(f"v_max_f32 v{S[q]}, v{S[q]}, v{S[q]+15}")
    a(f"s_mov_b64 exec, s[{sHi}:{sHi+1}]")
    for q in range(2):
        a(f"v_cvt_pk_bf16_f32 v{Qr[q]}, -v{S[q]}, 0")
    a("s_mov_b64 exec, -1")
    a("s_waitcnt vmcnt(%d)" % (4 if glate else 12))
    a(f"v_mfma_f32_32x32x16_bf16 {vr(S[0],16)}, {vr(Km[0],4)}, {vr(Qm[0],4)}, 0")
    a(f"s_add_u32 s{sT}, s{sHp}, {WL.OF}")
    srd(a, sQ, sWS, f"s{sT}", 5 * WL.PL)
    a("s_nop 3")
    a(f"v_mfma_f32_32x32x8_bf16 {vr(S[0],16)}, {vr(Kr[0],2)}, {vr(Qr[0],2)}, {vr(S[0],16)}")
    if glate:
        group(2, 1, 1024); group(3, 2, 1536)
    if gdefer == 2:
        a(f"s_cmp_eq_u32 s{sGF}, 0")
        a(f"s_cbranch_scc1 {L('gs2')}")
        g_stores(sD)
        a.label(L("gs2"))
    if defer:
        a(f"s_cmp_eq_u32 s{sDef}, 0")
        a(f"s_cbranch_scc1 {L('nd')}")
        srd(a, sD, sWS, WL.QF, WL.G - WL.QF)
        for bb in range(2):
            for aa in range(2): astore(sD, aa, bb)
        signal("nd")
    dma_params(1280, 160, 10, 0)
    if prog:
        a(f"s_and_b32 s{sT}, s{sW}, 3")
        a(f"s_cbranch_scc1 {L('np2')}")
        a(f"s_mov_b32 s{sT2}, {WL.FA}")
        a(f"buffer_load_dword v{vQF}, v{vKF}, s[{sFl}:{sFl+3}], s{sT2} offen sc1")
        a.label(L("np2"))
    a(f"s_mov_b32 s{sCnt}, 7")
    a("s_mov_b64 vcc, 0")
    a("s_setprio 3")
    st.stamp("lbeg")
    def exp(q, i): a(f"v_exp_f32 v{S[q]+i}, v{S[q]+i}")
    def cvt(q, i): a(f"v_cvt_pk_bf16_f32 v{P+i}, v{S[q]+2*i}, v{S[q]+2*i+1}")
    def slot(kt, q):
        nq = 1 - q
        nk = (kt + q) % 4
        pk = (kt + q - 1) % 4
        a(f"v_mfma_f32_32x32x16_bf16 {vr(S[nq],16)}, {vr(Km[nk],4)}, {vr(Qm[nq],4)}, 0")
        if spread and q == 0:
            ex(sVm, True); ldV((kt - 1) % 4, 0); ex(None, True)
        for i in range(0, 4): exp(q, i)
        a(f"v_mfma_f32_32x32x16_bf16 {vr(O[nq],16)}, {vr(Vb[pk][1],4)}, {vr(P+4,4)}, {vr(O[nq],16)}")
        if spread and q == 0:
            ex(sVm, True); ldV((kt - 1) % 4, 1); ex(None, True)
            a(f"s_add_u32 s{sOV}, s{sOV}, {WL.VT}")
        for i in range(4, 8): exp(q, i)
        cvt(q, 0)
        a(f"v_mfma_f32_32x32x8_bf16 {vr(S[nq],16)}, {vr(Kr[nk],2)}, {vr(Qr[nq],2)}, {vr(S[nq],16)}")
        if q == 0:
            if spread:
                ex(sLo, True); ldKr(kt, 512 * (kt + 4)); ex(None, True)
            else:
                group(kt, (kt - 1) % 4, 512 * (kt + 4), True)
            if kt == 0:
                a(f"s_cmp_eq_u32 s{sCnt}, 0")
                a(f"s_cselect_b32 s{sV+2}, 0, s{sV+2}")
        else:
            a(f"s_cbranch_vccz {L('nd%d' % kt)}")
            a(f"s_mov_b32 m0, s{sM0}")
            a(f"s_mov_b64 exec, s[{sDm}:{sDm+1}]")
            a(f"buffer_load_dwordx4 v{vWo}, s[{sWo}:{sWo+3}], s{sOWo} offen sc1 lds")
            a("s_mov_b64 exec, -1")
            a(f"s_add_u32 s{sM0}, s{sM0}, s{sMs}")
            a(f"s_add_u32 s{sOWo}, s{sOWo}, s{sStep2 if kt % 2 else sStep}")
            a.label(L("nd%d" % kt))
        for i in range(1, 4): cvt(q, i)
        for i in range(8, 12): exp(q, i)
        if q == 0 and not nowait: a("s_waitcnt vmcnt(%d)" % (11 if spread else 12))
        a(f"v_mfma_f32_32x32x16_bf16 {vr(O[q],16)}, {vr(Vb[kt][0],4)}, {vr(P,4)}, {vr(O[q],16)}")
        if spread and q == 0: ldKm(kt, 512 * (kt + 4))
        for i in range(12, 16): exp(q, i)
        for i in range(4, 8): cvt(q, i)
    def gfl_loads():
        a(f"v_mul_u32_u24 v{vT[0]}, 48, v{vL}")
        a(f"buffer_load_dwordx4 {vr(GFl,4)}, v{vT[0]}, s[{sFl}:{sFl+3}], 0 offen offset:{WL.FG} sc1")
        a(f"buffer_load_dwordx4 {vr(GFl+4,4)}, v{vT[0]}, s[{sFl}:{sFl+3}], 0 offen offset:{WL.FG+16} sc1")
        a(f"buffer_load_dwordx2 {vr(GFl+8,2)}, v{vT[0]}, s[{sFl}:{sFl+3}], 0 offen offset:{WL.FG+32} sc1")
        a(f"s_lshr_b32 s{sT}, s{sCc}, 1")
        a(f"s_lshr_b32 s{sT2}, s{sU0}, 11")
        a(f"v_mov_b32 v{vT[0]}, s{sT}")
        a(f"s_mov_b64 exec, s[{sHi}:{sHi+1}]")
        a(f"v_mov_b32 v{vT[0]}, s{sT2}")
        a("s_mov_b64 exec, -1")
        a(f"v_lshlrev_b32 v{vT[0]}, 7, v{vT[0]}")
        a(f"s_mov_b32 s{sT}, {WL.FA + 240*128}")
        a(f"buffer_load_dword v{GFl+10}, v{vT[0]}, s[{sFl}:{sFl+3}], s{sT} offen sc1")
        a(f"s_lshl_b32 s{sT}, s{sCc}, 1")
        a(f"s_add_u32 s{sT}, s{sT}, s{sKh}")
        a(f"s_lshl_b32 s{sT}, s{sT}, 6")
        a(f"s_add_u32 s{sT}, s{sT}, {WL.FO}")
        a(f"v_and_b32 v{vT[0]}, 15, v{vL}")
        a(f"v_lshlrev_b32 v{vT[0]}, 2, v{vT[0]}")
        a(f"buffer_load_dword v{GFl+11}, v{vT[0]}, s[{sFl}:{sFl+3}], s{sT} offen sc1")
    a("s_nop 7")
    a(f"s_branch {L('loop')}")
    a.label(L("head"))
    for lvl, c in zip((2, 1, 0), prio):
        a(f"s_cmp_lg_u32 s{sCnt}, {c-1}")
        a(f"s_cbranch_scc1 {L('hp%d' % lvl)}")
        a(f"s_setprio {lvl}")
        a.label(L("hp%d" % lvl))
    for c in (4, 2, 1, 0):
        a(f"s_cmp_eq_u32 s{sCnt}, {c}")
        a(f"s_cbranch_scc1 {L('h%d' % c)}")
    a(f"s_cmp_lg_u32 s{sCnt}, 6")
    a(f"s_cbranch_scc1 {L('loop')}")
    if prog:
        a(f"s_and_b32 s{sT}, s{sW}, 3")
        a(f"s_cbranch_scc1 {L('p2w')}")
        a(f"s_mov_b32 s{sT2}, {WL.FA}")
        spin_begin("p2")
        a(f"v_cmp_ne_u32 vcc, s{sNonce}, v{vQF}")
        a("s_nop 1")
        a("s_cmp_eq_u64 vcc, 0")
        a(f"s_cbranch_scc1 {L('p2d')}")
        a(f"buffer_load_dword v{vQF}, v{vKF}, s[{sFl}:{sFl+3}], s{sT2} offen sc1")
        a("s_waitcnt vmcnt(0)")
        spin_end("p2", 4)
        a.label(L("p2d"))
        a(f"v_mov_b32 v{vT[0]}, 1")
        a(f"ds_write_b32 v{vCtl}, v{vT[0]} offset:24")
        a.label(L("p2w"))
        lds_wait("wb", 24, 1)
    if not noaux: aux_loads()
    lds_wait("wr", 8, 8)
    a("s_mov_b64 vcc, %d" % (0 if nodma else -1))
    a(f"s_branch {L('loop')}")
    a.label(L("h4"))
    a(f"s_cmp_lg_u32 s{sKh}, 0")
    a(f"s_cbranch_scc1 {L('h4b')}")
    a(f"s_lshr_b32 s{sGF}, s{sU0}, 5")
    a(f"s_add_u32 s{sGF}, s{sGF}, s{sHead}")
    a(f"s_lshl_b32 s{sGF}, s{sGF}, 2")
    a(f"s_add_u32 s{sGF}, s{sGF}, {WL.FO}")
    a.label(L("h4b"))
    if strict: a("s_waitcnt vmcnt(0)")
    a(f"s_cmp_eq_u32 s{sGF}, 0")
    a(f"s_cbranch_scc1 {L('loop')}")
    put_flag(f"s{sGF}")
    a(f"s_branch {L('loop')}")
    a.label(L("h2"))
    a(f"s_lshl_b32 s{sT}, s2, 3")
    a(f"s_add_u32 s{sT}, s{sT}, s{sW}")
    a(f"s_cmp_lg_u32 s{sT}, 4")
    a(f"s_cbranch_scc1 {L('ed')}")
    a(f"v_lshlrev_b32 v{vT[0]}, 9, v{vL}")
    a(f"s_mov_b32 s{sT2}, {WL.FA}")
    spin_begin("pe")
    for i in range(4): a(f"buffer_load_dword v{vT[2]+i}, v{vT[0]}, s[{sFl}:{sFl+3}], s{sT2} offen offset:{128*i} sc1")
    a("s_waitcnt vmcnt(0)")
    for i in range(4): a(f"v_xor_b32 v{vT[2]+i}, s{sNonce}, v{vT[2]+i}")
    a(f"v_or3_b32 v{vT[2]}, v{vT[2]}, v{vT[3]}, v{vT[4]}")
    a(f"v_or_b32 v{vT[2]}, v{vT[2]}, v{vT[5]}")
    a(f"v_cmp_ne_u32 vcc, 0, v{vT[2]}")
    a("s_nop 1")
    a("s_cmp_eq_u64 vcc, 0")
    a(f"s_cbranch_scc1 {L('ped')}")
    spin_end("pe")
    a.label(L("ped"))
    if rprobe:
        a(f"v_lshlrev_b32 v{vT[0]}, 2, v{vL}")
        a(f"buffer_load_dword v{vT[2]}, v{vT[0]}, s[64:67], 0 offen sc1")
        a("s_waitcnt vmcnt(0)")
        a(f"v_cmp_ne_u32 vcc, 0, v{vT[2]}")
        a("s_nop 1")
        a("s_bcnt1_i32_b64 s68, vcc")
        a("s_cmp_lt_u32 s68, 2")
        a("s_cbranch_scc1 L_rp1")
        for _ in range(16): a("s_sleep 127")
        a.label("L_rp1")
    put_flag("0")
    a("s_mov_b64 vcc, %d" % (0 if nodma else -1))
    a.label(L("ed"))
    gfl_loads()
    a(f"s_branch {L('loop')}")
    a.label(L("h1"))
    spin_begin("pg")
    for i in range(12): a(f"v_xor_b32 v{GFl+i}, s{sNonce}, v{GFl+i}")
    for i in range(1, 11, 2): a(f"v_or3_b32 v{GFl}, v{GFl}, v{GFl+i}, v{GFl+i+1}")
    a(f"v_or_b32 v{GFl}, v{GFl}, v{GFl+11}")
    a(f"v_cmp_ne_u32 vcc, 0, v{GFl}")
    a("s_nop 1")
    a("s_cmp_eq_u64 vcc, 0")
    a(f"s_cbranch_scc1 {L('pgd')}")
    a("s_sleep 8")
    gfl_loads()
    a("s_waitcnt vmcnt(0)")
    spin_end("pg")
    a.label(L("pgd"))
    a("s_mov_b64 vcc, %d" % (0 if nodma else -1))
    srd(a, sWo, sWS, WL.GATE, 2048 * 8)
    a(f"buffer_load_dword v{vG}, v{vGt}, s[{sWo}:{sWo+3}], 0 offen sc1")
    a(f"v_and_b32 v{vT[0]}, 31, v{vL}")
    a(f"v_lshlrev_b32 v{vT[0]}, 3, v{vT[0]}")
    a(f"s_lshl_b32 s{sT}, s{sKh}, 9")
    a(f"s_add_u32 s{sT}, s{sU0}, s{sT}")
    a(f"s_lshr_b32 s{sT}, s{sT}, 1")
    a(f"buffer_load_dword v{vG+1}, v{vT[0]}, s[{sWo}:{sWo+3}], s{sT} offen offset:4 sc1")
    srd(a, sWo, sWS, WL.G, WL.G_SIZE)
    a(f"v_mov_b32 v{vWo}, v{vGd}")
    a(f"s_mov_b32 s{sDm+1}, 0xfff")
    dma_params(WL.GA, 176, 2, GIMG)
    a(f"s_branch {L('loop')}")
    a.label(L("h0"))
    a(f"s_mov_b32 s{sK+2}, 0")
    a("s_mov_b64 vcc, 0")
    vR = vGd; vR2 = vWs
    a(f"v_lshrrev_b32 v{vT[2]}, 2, v{vL}")
    a(f"v_and_b32 v{vT[1]}, 3, v{vL}")
    a(f"v_mul_u32_u24 v{vR}, 160, v{vT[2]}")
    a(f"v_lshl_add_u32 v{vR}, v{vT[1]}, 3, v{vR}")
    a(f"s_mul_i32 s{sT}, s{sKh}, {10*5120}")
    a(f"v_add_u32 v{vR}, s{sT}, v{vR}")
    a(f"s_cmp_lt_u32 s{sEb8}, 4")
    a(f"s_cselect_b32 s{sT}, 0, 3")
    a(f"v_xor_b32 v{vT[1]}, s{sT}, v{vT[1]}")
    a(f"v_mul_u32_u24 v{vR2}, 176, v{vT[2]}")
    a(f"v_lshl_add_u32 v{vR2}, v{vT[1]}, 3, v{vR2}")
    a(f"s_mul_i32 s{sT}, s{sKh}, {2*GSTEP}")
    a(f"s_add_u32 s{sT}, s{sT}, {GIMG}")
    a(f"v_add_u32 v{vR2}, s{sT}, v{vR2}")
    def rd(dst, base, off, pitch=160):
        for t in range(5):
            a(f"ds_read_b64_tr_b16 {vr(dst[t],2)}, v{base} offset:{off + 32*t}")
            a(f"ds_read_b64_tr_b16 {vr(dst[t]+2,2)}, v{base} offset:{off + 32*t + 16*pitch}")
    AY = AC
    AF = [[Km[0] + 20 * k + 4 * t for t in range(5)] for k in range(4)] + [[O[0] + 4 * t for t in range(5)]]
    def ycomp(FA, FB, done):
        def ymf(off):
            rd(FA, vR2, off, 176); rd(FB, vR2, GSTEP + off, 176)
            for s_, F in enumerate((FA, FB)):
                a(f"s_waitcnt lgkmcnt({10 - 10*s_})")
                for t in range(5):
                    c = "0" if s_ == 0 else vr(AY[t], 4)
                    a(f"v_mfma_f32_16x16x32_bf16 {vr(AY[t],4)}, {vr(F[t],4)}, {vr(WsF[s_],4)}, {c}")
            a("s_nop 7")
        a(f"s_cmp_lt_u32 s{sEb8}, 4")
        a(f"s_cbranch_scc0 {L('ymir')}")
        ymf(0)
        for t in range(5):
            for i in range(4): a(f"v_mul_f32 v{AY[t]+i}, v{AY[t]+i}, v{vG}")
        a(f"s_branch {L(done)}")
        a.label(L("ymir"))
        a(f"s_lshl_b32 s{sT}, s{sKh}, 31")
        a(f"v_xor_b32 v{vG}, s{sT}, v{vG}")
        ymf(8)
        for t in range(5): a(f"v_mul_f32 v{GFl+t}, v{AY[4-t]}, v{vG}")
        ymf(0)
        for t in range(5):
            for i in range(1, 4): a(f"v_mul_f32 v{FA[t]+i}, v{AY[4-t]+4-i}, v{vG}")
        for t in range(5):
            a(f"v_mov_b32 v{AY[t]}, v{GFl+t}")
            for i in range(1, 4): a(f"v_mov_b32 v{AY[t]+i}, v{FA[t]+i}")
    if not ypost:
        a(f"s_lshl_b32 s{sT}, s{sKh}, 2")
        a(f"v_add_u32 v{vCtl}, s{sT}, v{vCtl}")
        a("s_waitcnt vmcnt(0)")
        lds_inc(24)
        lds_wait("wi", 24, 4)
        ycomp(OFr[0:5], OFr[5:10], "loop")
    a.raw(".p2align 6")
    a.label(L("loop"))
    for kt in range(4):
        for q in range(2): slot(kt, q)
    a(f"s_add_u32 s{sOK}, s{sOK}, 2048")
    evm = 0
    for c in [6, 4, 2, 1, 0] + [p - 1 for p in prio if p > 0]: evm |= 1 << c
    a(f"s_sub_u32 s{sCnt}, s{sCnt}, 1")
    a(f"s_bitcmp1_b32 {hex(~evm & 0xff)}, s{sCnt}")
    a(f"s_cbranch_scc1 {L('loop')}")
    a(f"s_cmp_ge_i32 s{sCnt}, 0")
    a(f"s_cbranch_scc1 {L('head')}")
    a(f"v_mfma_f32_32x32x16_bf16 {vr(O[1],16)}, {vr(Vb[3][1],4)}, {vr(P+4,4)}, {vr(O[1],16)}")
    a("s_setprio 3")
    st.stamp("lend")
    srd(a, sD, sWS, WL.OF, 80 * WL.PL)
    def ldO(s_):
        a(f"s_mov_b32 s{sT}, {4*WL.PL*s_}")
        a(f"buffer_load_dwordx4 {vr(OFr[s_],4)}, v{vO}, s[{sD}:{sD+3}], s{sT} offen sc1")
    a(f"s_lshl_b32 s{sT}, s{sKh}, 9")
    a(f"s_add_u32 s{sOK}, s{sU0}, s{sT}")
    a("s_nop 1")
    a(f"s_cmp_eq_u32 s{sKh}, 0")
    a(f"s_cbranch_scc1 {L('x0')}")
    for r in range(3): a(f"ds_write_b128 v{vX0}, {vr(O[0]+4*r,4)} offset:{1024*r}")
    a("s_waitcnt lgkmcnt(0)")
    for i in range(12): a(f"v_mov_b32 v{O[0]+i}, v{O[1]+i}")
    for i in range(4): a(f"v_mov_b32 v{Qm[0]+i}, v{Qm[1]+i}")
    for i in range(2): a(f"v_mov_b32 v{Qr[0]+i}, v{Qr[1]+i}")
    a(f"s_branch {L('x1')}")
    a.label(L("x0"))
    for r in range(3): a(f"ds_write_b128 v{vX0}, {vr(O[1]+4*r,4)} offset:{1024*r}")
    a.label(L("x1"))
    a("s_waitcnt vmcnt(0) lgkmcnt(0)")
    assert Km[0] + 80 <= O[0] and O[0] + 20 <= K0m
    EX = GFl
    if oearly:
        for s_ in range(10): ldO(s_)
    a("s_barrier")
    st.stamp("x1")
    for r in range(3): a(f"ds_read_b128 {vr(EX+4*r,4)}, v{vX1} offset:{1024*r}")
    a("s_waitcnt vmcnt(%d)" % (10 if oearly else 0))
    rd(AF[0], vR, 0)
    a("s_waitcnt lgkmcnt(%d)" % (0 if (stamps and "x1" in snames) else 10))
    for i in range(12): a(f"v_add_f32 v{O[0]+i}, v{O[0]+i}, v{EX+i}")
    def bcast_l():
        a(f"v_mov_b32 v{O[0]+12}, v{O[0]+8}")
        a(f"v_mov_b32 v{O[0]+13}, v{O[0]+8}")
        a("s_nop 1")
        a(f"v_permlane32_swap_b32 v{O[0]+13}, v{O[0]+12}")
        a("s_nop 1")
    bcast_l()
    a(f"v_mul_f32 v{vM}, 0, v{O[0]}")
    for i in range(1, 12): a(f"v_fmac_f32 v{vM}, 0, v{O[0]+i}")
    a(f"v_add_f32 v{vM}, v{vM}, v{O[0]+12}")
    a(f"v_cmp_nge_f32 vcc, 0x71800000, v{vM}")
    a(f"s_mov_b32 s{sT}, 0x21800000")
    a(f"v_cmp_gt_f32 s[{sT2+1}:{sT2+2}], s{sT}, v{vM}")
    a("s_nop 1")
    a(f"s_or_b64 vcc, vcc, s[{sT2+1}:{sT2+2}]")
    a(f"s_cbranch_scc1 {L('slow')}")
    a.label(L("fin"))
    a(f"v_rcp_f32 v{vM}, v{O[0]+12}")
    a("s_nop 0")
    a(f"v_mul_f32 v{vM}, v{vM}, v{vG+1}")
    for i in range(12): a(f"v_mul_f32 v{O[0]+i}, v{O[0]+i}, v{vM}")
    PO = K0m
    assert K0r == K0m + 4
    for i in range(6): a(f"v_cvt_pk_bf16_f32 v{PO+i}, v{O[0]+2*i}, v{O[0]+2*i+1}")
    for i in range(6): a(f"v_min_u32 v{PO+i}, -2, v{PO+i}")
    a(f"buffer_store_dwordx4 {vr(PO,4)}, v{vKm}, s[{sQ}:{sQ+3}], s{sOK} offen sc1")
    a(f"s_mov_b64 exec, s[{sLo}:{sLo+1}]")
    a(f"buffer_store_dwordx2 {vr(PO+4,2)}, v{vKr}, s[{sQ}:{sQ+3}], s{sOK} offen sc1")
    a("s_mov_b64 exec, -1")
    st.stamp("ost")
    if stamps and "ost" in snames: a("s_waitcnt lgkmcnt(0)")

    if not oearly:
        if obar: a("s_barrier")
        lo, hi = min(nfirst), max(nfirst)
        for s_ in range(lo): ldO(s_)
        if hi > lo:
            a(f"s_cmp_eq_u32 s{sKh}, 0")
            a(f"s_cbranch_scc1 {L('nf1')}")
            for s_ in range(lo, hi): ldO(s_)
            a.label(L("nf1"))
    if ypost:
        ycomp(AF[2], AF[3], "ydone")
        a.label(L("ydone"))
    if not oearly:
        if hi > lo:
            a(f"s_cmp_lg_u32 s{sKh}, 0")
            a(f"s_cbranch_scc1 {L('nf2')}")
            for s_ in range(lo, hi): ldO(s_)
            a.label(L("nf2"))
        if afirst:
            for k in range(1, 4): rd(AF[k], vR, 5120 * k)
        if odelay: a(f"s_sleep {odelay}")
        for s_ in range(hi, oahead): ldO(s_)
    AB = AF[0]
    if not afirst:
        for k in range(1, 4): rd(AF[k], vR, 5120 * k)
    srd(a, sC, 22, 0, 2048 * 1280)
    a(f"s_mov_b32 s59, {SPIN}")
    st.stamp("pbeg")
    if stamps and "pbeg" in snames: a("s_waitcnt lgkmcnt(0)")
    def chk(s_):
        o = OFr[s_]
        a(f"v_max3_u32 v{vT[0]}, v{o}, v{o+1}, v{o+2}")
        a(f"v_max_u32 v{vT[0]}, v{vT[0]}, v{o+3}")
        a(f"v_cmp_eq_u32 vcc, -1, v{vT[0]}")
        a("s_nop 1")
        a("s_cmp_eq_u64 vcc, 0")
    nst = 2 if oearly else 0
    for s_ in range(10):
        a.label(L("st%d" % s_))
        a(f"s_waitcnt vmcnt({min(9 - s_, oahead - 1) + nst})")
        chk(s_)
        a(f"s_cbranch_scc1 {L('ok%d' % s_)}")
        if rmode == 1:
            a.label(L("sp%d" % s_))
            a(f"s_sleep {rsleep}")
            ldO(s_)
            a("s_waitcnt vmcnt(0)")
            a("s_sub_u32 s59, s59, 1")
            a("s_cmp_lt_i32 s59, 0")
            a(f"s_cbranch_scc1 {L('ok%d' % s_)}")
            chk(s_)
            a(f"s_cbranch_scc0 {L('sp%d' % s_)}")
            if s_ < 9: a(f"s_call_b64 s[{sE}:{sE+1}], {L('retry')}")
        else:
            a(f"s_call_b64 s[{sE}:{sE+1}], {L('retry')}")
            a(f"s_cbranch_scc1 {L('st%d' % s_)}")
        a.label(L("ok%d" % s_))
        if s_ + oahead < 10: ldO(s_ + oahead)
        st.stamp("s%d" % s_)
        if stamps and ("s%d" % s_) in snames: a("s_waitcnt lgkmcnt(0)")
        a("s_waitcnt lgkmcnt(%d)" % (0 if s_ == 9 else (15 if s_ < 8 else 10)))
        for t in range(5):
            a(f"v_mfma_f32_16x16x32_bf16 {vr(AY[t],4)}, {vr(AF[s_ % 5][t],4)}, {vr(OFr[s_],4)}, {vr(AY[t],4)}")
        if s_ + 4 < 10: rd(AF[(s_ + 4) % 5], vR, 5120 * (s_ + 4))
    st.stamp("dmf")
    a("s_nop 7")
    if probe:
        a("s_memrealtime s[72:73]")
        a("s_waitcnt lgkmcnt(0)")
        a("s_sub_u32 s72, s72, s70")
        a(f"s_cmp_lt_u32 s72, {probe}")
        a(f"s_cbranch_scc1 {L('prb')}")
        a(f"buffer_load_dword v{vT[0]}, off, s[64:67], 0 sc1")
        a("s_waitcnt vmcnt(0)")
        a(f"v_readfirstlane_b32 s72, v{vT[0]}")
        a("s_nop 1")
        a("s_cmp_lg_u32 s72, 0")
        a(f"s_cbranch_scc1 {L('prb')}")
        for t in range(5): a(f"v_mov_b32 v{AY[t]}, 0x7fc00000")
        a.label(L("prb"))
    def dfin(keep, send):
        for r, t in enumerate(send): a(f"ds_write_b128 v{vX1}, {vr(AY[t],4)} offset:{1024*r}")
        a("s_waitcnt lgkmcnt(0)")
        a("s_barrier")
        for r, t in enumerate(keep): a(f"ds_read_b128 {vr(AB[t],4)}, v{vX0} offset:{1024*r}")
        for r, t in enumerate(keep):
            a(f"s_waitcnt lgkmcnt({len(keep)-1-r})")
            for i in range(4): a(f"v_add_f32 v{AY[t]+i}, v{AY[t]+i}, v{AB[t]+i}")
            a(f"v_cvt_pk_bf16_f32 v{AY[t]}, v{AY[t]}, v{AY[t]+1}")
            a(f"v_cvt_pk_bf16_f32 v{AY[t]+1}, v{AY[t]+2}, v{AY[t]+3}")
            a(f"buffer_store_dwordx2 {vr(AY[t],2)}, v{vSt}, s[{sC}:{sC+3}], 0 offen offset:{32*t} {osc}")
    a(f"s_cmp_eq_u32 s{sKh}, 0")
    a(f"s_cbranch_scc1 {L('d0')}")
    dfin([3, 4], [0, 1, 2])
    a(f"s_branch {L('dend')}")
    a.label(L("d0"))
    dfin([0, 1, 2], [3, 4])
    a.label(L("dend"))
    st.finish(9)
    a.label(L("end"))
    a("s_endpgm")

    a.label(L("retry"))
    a("s_waitcnt vmcnt(0)")
    if rsleep and rmode == 0: a(f"s_sleep {rsleep}")
    for s_ in range(10):
        chk(s_)
        a(f"s_cbranch_scc1 {L('rt%d' % s_)}")
        ldO(s_)
        a.label(L("rt%d" % s_))
    a("s_waitcnt vmcnt(0)")
    a("s_sub_u32 s59, s59, 1")
    a("s_cmp_gt_i32 s59, 0")
    a(f"s_setpc_b64 s[{sE}:{sE+1}]")
    a.label(L("slow"))
    sSK = sT2 + 1; sSV = sT2 + 2
    a("s_waitcnt vmcnt(0) lgkmcnt(0)")
    assert AF[0][4] + 4 <= Vb[0][0]
    a(f"v_mov_b32 v{Kr[0]}, 0x3f803f80")
    a(f"v_mov_b32 v{Kr[0]+1}, 0x3f80")
    a(f"s_mov_b32 s{sK+2}, {5*WL.PL}")
    a(f"s_mov_b32 s{sV+2}, {64*WL.VT}")
    a(f"s_mov_b64 exec, s[{sHi}:{sHi+1}]")
    a(f"v_mov_b32 v{Qr[0]}, 0")
    a(f"v_mov_b32 v{Qr[0]+1}, 0")
    a("s_mov_b64 exec, -1")
    a(f"v_mov_b32 v{vM}, 0xff800000")
    a(f"s_mov_b32 s{sSK}, 0")
    def qk_slow():
        a(f"s_mov_b64 exec, s[{sLo}:{sLo+1}]")
        a(f"buffer_load_dwordx2 {vr(Kr[0],2)}, v{vKr}, s[{sK}:{sK+3}], s{sSK} offen sc1")
        a("s_mov_b64 exec, -1")
        a(f"buffer_load_dwordx4 {vr(Km[0],4)}, v{vKm}, s[{sK}:{sK+3}], s{sSK} offen sc1")
        a("s_waitcnt vmcnt(0)")
        a(f"v_mfma_f32_32x32x16_bf16 {vr(S[0],16)}, {vr(Km[0],4)}, {vr(Qm[0],4)}, 0")
        a("s_nop 11")
        a(f"v_mfma_f32_32x32x8_bf16 {vr(S[0],16)}, {vr(Kr[0],2)}, {vr(Qr[0],2)}, {vr(S[0],16)}")
        a("s_nop 12")
    a.label(L("s1"))
    qk_slow()
    for i in range(0, 16, 2):
        a(f"v_max3_f32 v{vM}, v{vM}, v{S[0]+i}, v{S[0]+i+1}")
    a(f"s_add_u32 s{sSK}, s{sSK}, 512")
    a(f"s_cmp_lt_u32 s{sSK}, {WL.PL}")
    a(f"s_cbranch_scc1 {L('s1')}")
    a(f"v_mov_b32 v{vT[0]}, v{vM}")
    a("s_nop 1")
    a(f"v_permlane32_swap_b32 v{vT[0]}, v{vM}")
    a("s_nop 1")
    a(f"v_max_f32 v{vM}, v{vM}, v{vT[0]}")
    a(f"v_cvt_pk_bf16_f32 v{S[0]}, 0, -v{vM}")
    a(f"v_sub_f32 v{vT[0]}, 0, v{vM}")
    a(f"v_sub_f32 v{vT[0]}, v{vT[0]}, v{S[0]}")
    a(f"v_cvt_pk_bf16_f32 v{S[0]+1}, 0, v{vT[0]}")
    a(f"v_sub_f32 v{vT[1]}, v{vT[0]}, v{S[0]+1}")
    a(f"s_mov_b64 exec, s[{sHi}:{sHi+1}]")
    a(f"v_cvt_pk_bf16_f32 v{Qr[0]}, v{S[0]}, v{S[0]+1}")
    a(f"v_cvt_pk_bf16_f32 v{Qr[0]+1}, v{vT[1]}, 0")
    a("s_mov_b64 exec, -1")
    for i in range(16): a(f"v_mov_b32 v{O[0]+i}, 0")
    a(f"s_mov_b32 s{sSK}, 0")
    a(f"s_mov_b32 s{sSV}, 0")
    a.label(L("s2"))
    a(f"s_mov_b64 exec, s[{sVm}:{sVm+1}]")
    a(f"buffer_load_dwordx4 {vr(Vb[0][0],4)}, v{vV0}, s[{sV}:{sV+3}], s{sSV} offen sc1")
    a(f"buffer_load_dwordx4 {vr(Vb[0][1],4)}, v{vV1}, s[{sV}:{sV+3}], s{sSV} offen sc1")
    qk_slow()
    for i in range(16): exp(0, i)
    a("s_nop 0")
    for i in range(8): cvt(0, i)
    a("s_nop 1")
    a(f"v_mfma_f32_32x32x16_bf16 {vr(O[0],16)}, {vr(Vb[0][0],4)}, {vr(P,4)}, {vr(O[0],16)}")
    a(f"v_mfma_f32_32x32x16_bf16 {vr(O[0],16)}, {vr(Vb[0][1],4)}, {vr(P+4,4)}, {vr(O[0],16)}")
    a(f"s_add_u32 s{sSK}, s{sSK}, 512")
    a(f"s_add_u32 s{sSV}, s{sSV}, {WL.VT}")
    a(f"s_cmp_lt_u32 s{sSK}, {WL.PL}")
    a(f"s_cbranch_scc1 {L('s2')}")
    a("s_nop 12")
    rd(AF[0], vR, 0)
    bcast_l()
    a(f"s_branch {L('fin')}")
    a.label(L("cend"))
    return a.text(), kernel_desc(name, 256, 102), f"; @launch grid=(256,1,1) block=(512,1,1) lds={LDS_SIZE}"

if __name__ == "__main__":
    import sys
    from gen import build
    path = sys.argv[1]
    sn = [x[3:].split(',') for x in sys.argv if x.startswith('sn=')]
    kw = {x.split('=')[0]: eval(x.split('=')[1]) for x in sys.argv[2:] if not x.startswith('sn=')}
    hd = kw.pop('hdbg', False)
    build(path, [gen(stamps=(2 if hd else bool(sn)), snames=sn[0] if sn else (), **kw)])
```

```python
from asm import *

QSCALE = 0x3ea52b5c
NAME = "gated_mix__spectral_fnet__softmax_full_mha__prompt_kernel"
LDS_X = 131072
LDS_CTL = LDS_X + 24576
LDS_SIZE = LDS_CTL + 64
GSTEP = 32 * 176
GIMG = 20 * 5120
SPIN = 200000
STAGE = [0, 0x8000, 0x18000, 0x10000]

def gen(name=NAME, stamps=False, snames=(), rotx=(0, 2, 5, 7, 5, 7, 0, 2), rin=(5, 5), touch=False, tpos=5, gtouch=True, fsplit=5,
        prio=(4, 2, 1), psleep=4, wotouch=False, probe=None, fwait=True, nodma=False, kvsc1=False, noload=False, nowait=False, noexec=False, spread=False, rt=True, fstart=6, rprobe=False, enc=None, encw=0, oearly=False, rsleep=2, rmode=0, ypost=True, obar=False, nfirst=(0, 0), afirst=True, odelay=0, gdefer=0, pois=4, osc='', lprio=3, cprio=2, wsleep=3, ldelay=0, pplain=True, glate=False, m8=False, wsbase=0, cbperm=True, prog=True, strict=True, defer=False, dmask=6, s2late=True, noaux=False, cwarm=False, oahead=4, dsc1=False, dzero=False, dburst=False, dnt=False, dpair=False, peel=True, fcrit=True, cdelay=0, lpos=3, oflag=0, nows=False):
    a = Asm()
    kernel_begin(a, name)
    L = lambda s: f"L_{s}"
    st = Stamps(a, stamps, 0); st.names = list(snames); st.op = 's_memrealtime' if rt else 's_memtime'
    if enc:
        class Enc:
            names = []
            def start(self): a("s_memrealtime s[70:71]"); a("s_memrealtime s[72:73]")
            def stamp(self, n):
                if n == enc: a("s_memrealtime s[72:73]"); a("s_waitcnt lgkmcnt(0)")
            def finish(self, i):
                a("s_lshl_b32 s68, s2, 3"); a("s_add_u32 s68, s68, s52")
                a(f"s_cmp_lg_u32 s68, {136*8+encw}")
                a("s_cbranch_scc1 L_encd")
                a("s_memrealtime s[74:75]"); a("s_waitcnt lgkmcnt(0)")
                a("s_sub_u32 s72, s72, s70"); a("s_lshl_b32 s72, s72, 2"); a("s_add_u32 s72, s72, s74")
                a.label("L_encl")
                a("s_memrealtime s[74:75]"); a("s_waitcnt lgkmcnt(0)")
                a("s_sub_u32 s68, s74, s72"); a("s_cmp_lt_i32 s68, 0")
                a("s_cbranch_scc1 L_encl")
                a.label("L_encd")
        st = Enc()
    sWS = 26
    sA = 28; sB = 32; sC = 36; sD = 40; sFl = 44; sE = 48
    sW = 52; sXc = 53; sJ = 54; sNonce = 55; sT = 56; sT2 = 57; sCnt = 58
    sLo = 60; sVm = 62; sHi = 94; sDm = 96
    sGF = 25
    sAF = 24
    vL = 1; vT = [2, 3, 4, 5, 6, 7]; vCtl = 8
    VB = 10
    TOP = 252 if stamps else 256

    def spin_begin(lab, n=SPIN):
        a(f"s_mov_b32 s59, {n}")
        a.label(L(lab))
    def spin_end(lab, sleep=2):
        a(f"s_sleep {sleep}")
        a("s_sub_u32 s59, s59, 1")
        a("s_cmp_lg_u32 s59, 0")
        a(f"s_cbranch_scc1 {L(lab)}")
    def put_flag(soff):
        a(f"v_mov_b32 v{vT[0]}, 0")
        a(f"v_mov_b32 v{vT[1]}, s{sNonce}")
        a("s_mov_b64 exec, 1")
        a(f"buffer_store_dword v{vT[1]}, v{vT[0]}, s[{sFl}:{sFl+3}], {soff} offen sc1")
        a("s_mov_b64 exec, -1")
    def lds_inc(off):
        a(f"v_mov_b32 v{vT[0]}, 1")
        a("s_mov_b64 exec, 1")
        a(f"ds_add_u32 v{vCtl}, v{vT[0]} offset:{off}")
        a("s_mov_b64 exec, -1")
    def lds_wait(lab, off, val, sl=1):
        spin_begin(lab, 8 * SPIN)
        a(f"ds_read_b32 v{vT[0]}, v{vCtl} offset:{off}")
        a("s_waitcnt lgkmcnt(0)")
        a(f"v_readfirstlane_b32 s{sT}, v{vT[0]}")
        a("s_nop 1")
        a(f"s_cmp_eq_u32 s{sT}, {val}")
        a(f"s_cbranch_scc1 {L(lab+'d')}")
        spin_end(lab, sl)
        a.label(L(lab + "d"))
    def sel_srd(d, cond_s, p0, p1, size):
        a(f"s_cmp_eq_u32 s{cond_s}, 0")
        a(f"s_cselect_b32 s{d}, s{p0}, s{p1}")
        a(f"s_cselect_b32 s{d+1}, s{p0+1}, s{p1+1}")
        a(f"s_and_b32 s{d+1}, s{d+1}, 0xffff")
        a(f"s_mov_b32 s{d+2}, {size}")
        a(f"s_mov_b32 s{d+3}, 0x20000")
    def after_kernarg():
        a("s_waitcnt lgkmcnt(0)")
        st.stamp("karg")
        if wsbase:
            a(f"s_add_u32 s{sWS}, s{sWS}, {hex(wsbase << 20)}")
            a(f"s_addc_u32 s{sWS+1}, s{sWS+1}, 0")
        a(f"s_load_dword s{sNonce}, s[{sWS}:{sWS+1}], {WL.EPOCH}")
        srd(a, sA, 4, 0, 2048 * 1280)
    def masks():
        a("v_mov_b32 v9, 0")
        for i in range(4): a(f"v_mov_b32 v{TOP-36+i}, 0")
        a(f"s_mov_b32 s{sGF}, 0"); a(f"s_mov_b32 s{sAF}, 0"); a("s_mov_b32 s15, 0")
        srd(a, sFl, sWS, WL.FLAG, WL.FLAG_SIZE)
        a(f"v_mov_b32 v{vCtl}, {LDS_CTL}")
        a(f"s_mov_b32 s{sLo}, -1"); a(f"s_mov_b32 s{sLo+1}, 0")
        a(f"s_mov_b32 s{sHi}, 0"); a(f"s_mov_b32 s{sHi+1}, -1")
        a(f"s_mov_b32 s{sVm}, 0xfffff"); a(f"s_mov_b32 s{sVm+1}, 0xfffff")
        a(f"s_mov_b32 s{sDm}, -1"); a(f"s_mov_b32 s{sDm+1}, 0xff")
    def nat_read_addrs(dst, stile, shift):
        a(f"v_and_b32 v{vT[0]}, 31, v{vL}")
        a(f"v_lshrrev_b32 v{vT[1]}, 5, v{vL}")
        a(f"v_bfe_u32 v{vT[2]}, v{vL}, 1, 3")
        a(f"v_xor_b32 v{vT[1]}, v{vT[1]}, v{vT[2]}")
        a(f"v_lshlrev_b32 v{vT[1]}, 4, v{vT[1]}")
        a(f"v_lshl_add_u32 v{vT[0]}, v{vT[0]}, 7, v{vT[1]}")
        a(f"s_lshl_b32 s{sT}, s{stile}, {shift}")
        a(f"v_add_u32 v{dst[0]}, s{sT}, v{vT[0]}")
        for ks in range(1, 4):
            a(f"v_xor_b32 v{dst[ks]}, {32*ks}, v{dst[0]}")

    a("s_cmp_ge_u32 s2, 256")
    a(f"s_cbranch_scc1 {L('end')}")
    st.start()
    if probe:
        a("s_memrealtime s[70:71]")
        a("s_load_dwordx2 s[64:65], s[0:1], 80")
        a("s_waitcnt lgkmcnt(0)")
        a("s_and_b32 s65, s65, 0xffff"); a("s_mov_b32 s66, 256"); a("s_mov_b32 s67, 0x20000")
        a("s_getreg_b32 s68, hwreg(HW_REG_XCC_ID)")
        a("s_xor_b32 s68, s68, s2"); a("s_and_b32 s68, s68, 7")
        a("s_cbranch_scc0 L_pok")
        a("v_mov_b32 v2, 1")
        a("s_mov_b64 exec, 1")
        a("buffer_store_dword v2, off, s[64:67], 0 sc1")
        a("s_mov_b64 exec, -1")
        a.label("L_pok")
    if rprobe:
        a("s_load_dwordx2 s[64:65], s[0:1], 80")
        a("s_waitcnt lgkmcnt(0)")
        a("s_and_b32 s65, s65, 0xffff"); a("s_mov_b32 s66, 256"); a("s_mov_b32 s67, 0x20000")
        a("s_getreg_b32 s68, hwreg(HW_REG_XCC_ID)")
        a("s_sub_u32 s68, s68, s2"); a("s_and_b32 s68, s68, 7")
        a("s_lshl_b32 s68, s68, 2")
        a("v_cmp_eq_u32 vcc, 0, v0")
        a("v_mov_b32 v2, 1")
        a("s_and_saveexec_b64 s[70:71], vcc")
        a("s_cbranch_execz L_rp0")
        a("buffer_store_dword v2, off, s[64:67], s68 sc1")
        a.label("L_rp0")
        a("s_mov_b64 exec, -1")
    a("s_load_dwordx16 s[4:19], s[0:1], 0")
    a("s_load_dwordx8 s[20:27], s[0:1], 64")
    a(f"v_lshrrev_b32 v{vT[0]}, 6, v0")
    a(f"v_and_b32 v{vL}, 63, v0")
    a(f"v_readfirstlane_b32 s{sW}, v{vT[0]}")
    a(f"s_and_b32 s{sXc}, s2, 7")
    a(f"s_lshr_b32 s{sJ}, s2, 3")
    a(f"s_xor_b32 s{sW}, s{sW}, 4")
    sRb = 98; sCb = 99; sWm = 100; sWn = 101; sWl = 3
    a(f"s_and_b32 s{sRb}, s2, 3")
    a(f"s_lshl_b32 s{sRb}, s{sRb}, 2")
    a(f"s_and_b32 s{sT}, s{sJ}, 3")
    a(f"s_add_u32 s{sRb}, s{sRb}, s{sT}")
    a(f"s_lshr_b32 s{sT}, s{sXc}, 2")
    a(f"s_lshr_b32 s{sCb}, s{sJ}, 2")
    a(f"s_cmp_eq_u32 s{sCb}, 7")
    a(f"s_cselect_b32 s{sT2}, 1, 3")
    a(f"s_lshl_b32 s{sT}, s{sT}, s{sT2}")
    a(f"s_cmp_eq_u32 s{sCb}, 7")
    a(f"s_cselect_b32 s{sT2}, s{sT}, 0")
    a(f"s_cselect_b32 s{sT}, 0, s{sT}")
    a(f"s_add_u32 s{sRb}, s{sRb}, s{sT2}")
    a(f"s_add_u32 s{sCb}, s{sCb}, s{sT}")
    if cbperm:
        tab = [5, 6, 7, 10, 11, 0, 1, 2, 8, 9, 12, 13, 14, 3, 4, 0]
        tv = sum(c << (4 * i) for i, c in enumerate(tab))
        a(f"s_mov_b32 s{sT}, {hex(tv & 0xffffffff)}")
        a(f"s_mov_b32 s{sT2}, {hex(tv >> 32)}")
        a(f"s_lshl_b32 s{sCb}, s{sCb}, 2")
        a(f"s_lshr_b64 s[{sT}:{sT2}], s[{sT}:{sT2}], s{sCb}")
        a(f"s_and_b32 s{sCb}, s{sT}, 15")
    a(f"s_and_b32 s{sWl}, s{sW}, 3")
    a(f"s_and_b32 s{sWm}, s{sW}, 1")
    a(f"s_lshr_b32 s{sWn}, s{sWl}, 1")
    a(f"s_cmp_lt_u32 s{sW}, 4")
    a(f"s_cbranch_scc1 {L('comp')}")

    V = Alloc(VB, TOP)
    vRX = [V.get() for _ in range(4)]
    vFW = [V.get() for _ in range(2)]; vFs = V.get(); V.get(); vGs = 9
    V.get(2)
    XR = [[V.get(4, 4) for _ in range(4)] for _ in range(10)]
    FR = V.get(8, 4); FIn = V.get(8, 4)
    ZA = V.get(16, 4); ZB = V.get(16, 4)
    BF = [[V.get(4, 4) for _ in range(2)] for _ in range(3)]
    vDX = [BF[0][0] + i for i in range(4)]; vDW = [BF[0][1] + i for i in range(4)]
    sOX = sD; sOW = sD + 1; sM0 = sD + 2; sBeta = sD + 3; sSp = sE
    if lprio: a(f"s_setprio {lprio}")
    a(f"v_and_b32 v{vT[3]}, 7, v{vL}")
    a(f"v_lshrrev_b32 v{vT[4]}, 4, v{vL}")
    a(f"v_xor_b32 v{vT[3]}, v{vT[3]}, v{vT[4]}")
    a(f"v_lshlrev_b32 v{vT[3]}, 4, v{vT[3]}")
    a(f"v_xor_b32 v{vT[4]}, 64, v{vT[3]}")
    a(f"v_bfe_u32 v{vT[5]}, v{vL}, 3, 2")
    a(f"v_lshrrev_b32 v{vT[1]}, 5, v{vL}")
    a(f"v_lshl_add_u32 v{vT[5]}, v{vT[1]}, 3, v{vT[5]}")
    a(f"s_lshl_b32 s{sT}, s{sRb}, 1")
    a(f"s_add_u32 s{sT}, s{sT}, s{sWn}")
    a(f"s_lshl_b32 s{sT2}, s{sWm}, 5")
    a(f"s_add_u32 s{sCnt}, s{sT}, s{sT2}")
    a(f"v_lshl_add_u32 v{vT[1]}, v{vT[5]}, 6, s{sCnt}")
    a(f"v_mul_u32_u24 v{vT[1]}, 1280, v{vT[1]}")
    a(f"v_add_u32 v{vDX[0]}, v{vT[1]}, v{vT[3]}")
    a(f"v_add_u32 v{vDX[1]}, v{vT[1]}, v{vT[4]}")
    a(f"v_add_u32 v{vDX[1]}, {4*64*1280-1024}, v{vDX[1]}")
    a(f"v_add_u32 v{vDX[2]}, {16*64*1280-2048}, v{vDX[0]}")
    a(f"v_add_u32 v{vDX[3]}, {16*64*1280-2048}, v{vDX[1]}")
    a(f"v_lshrrev_b32 v{vT[0]}, 4, v{vL}")
    a(f"v_bfe_u32 v{vT[1]}, v{vL}, 2, 2")
    a(f"v_xor_b32 v{vT[1]}, v{vT[1]}, v{vT[0]}")
    a(f"v_and_b32 v{vT[2]}, 3, v{vL}")
    a(f"v_lshl_add_u32 v{vT[1]}, v{vT[1]}, 2, v{vT[2]}")
    a(f"v_lshlrev_b32 v{vT[1]}, 4, v{vT[1]}")
    a(f"s_lshl_b32 s{sT}, s{sWl}, 4")
    a(f"v_add_u32 v{vT[0]}, s{sT}, v{vT[0]}")
    a(f"v_mul_u32_u24 v{vT[0]}, 3840, v{vT[0]}")
    a(f"s_lshl_b32 s{sT}, s{sCb}, 8")
    a(f"v_add3_u32 v{vDW[0]}, v{vT[0]}, v{vT[1]}, s{sT}")
    for j in range(1, 4):
        a(f"v_add_u32 v{vDW[j]}, {j*(4*3840-1024)}, v{vDW[0]}")
    rw = 0
    for i, r in enumerate(rotx): rw |= r << (4 * i)
    a(f"s_lshl_b32 s{sT}, s{sXc}, 2")
    a(f"s_lshr_b32 s{sOX}, {hex(rw)}, s{sT}")
    a(f"s_and_b32 s{sOX}, s{sOX}, 15")
    if rin != (0, 0):
        a(f"s_and_b32 s{sT}, s{sJ}, 3")
        a(f"s_mul_i32 s{sT}, s{sT}, {rin[0]}")
        a(f"s_add_u32 s{sOX}, s{sOX}, s{sT}")
        a(f"s_lshr_b32 s{sT}, s{sJ}, 2")
        a(f"s_mul_i32 s{sT}, s{sT}, {rin[1]}")
        a(f"s_add_u32 s{sOX}, s{sOX}, s{sT}")
        a(f"s_mul_i32 s{sT}, s{sOX}, 205")
        a(f"s_lshr_b32 s{sT}, s{sT}, 11")
        a(f"s_mul_i32 s{sT}, s{sT}, 10")
        a(f"s_sub_u32 s{sOX}, s{sOX}, s{sT}")
    a(f"s_mul_i32 s{sOW}, s{sOX}, {64*3840}")
    a(f"s_lshl_b32 s{sOX}, s{sOX}, 7")
    a(f"s_lshl_b32 s{sM0}, s{sWl}, 12")
    after_kernarg()
    a(f"s_cmp_ge_u32 s{sJ}, 30")
    a(f"s_cbranch_scc1 {L('lgate')}")
    srd(a, sB, 16, 0, 640 * 3840)
    def issue(n):
        a(f"s_add_u32 m0, s{sM0}, {STAGE[n%4]}")
        a("s_nop 0")
        for j in range(4): a(f"buffer_load_dwordx4 v{vDX[j]}, s[{sA}:{sA+3}], s{sOX} offen offset:{1024*j} lds")
        a(f"s_add_u32 m0, s{sM0}, {STAGE[n%4]+0x4000}")
        a(f"s_add_u32 s{sOX}, s{sOX}, 128")
        for j in range(4): a(f"buffer_load_dwordx4 v{vDW[j]}, s[{sB}:{sB+3}], s{sOW} offen offset:{1024*j} lds")
        a(f"s_add_u32 s{sOW}, s{sOW}, {64*3840}")
        a(f"s_cmp_eq_u32 s{sOX}, 1280")
        a(f"s_cselect_b32 s{sOX}, 0, s{sOX}")
        a(f"s_cselect_b32 s{sOW}, 0, s{sOW}")
    issue(0); issue(1)
    masks()
    a(f"s_lshr_b32 s{sBeta}, s{sXc}, 2")
    a(f"s_mul_i32 s{sBeta}, s{sBeta}, 5")
    a(f"s_lshr_b32 s{sT}, s{sJ}, 2")
    a(f"s_add_u32 s{sBeta}, s{sBeta}, s{sT}")
    a(f"s_lshl_b32 s{sT}, s{sBeta}, 1")
    a(f"s_add_u32 s{sT}, s{sT}, s{sWm}")
    a(f"s_lshl_b32 s{sT}, s{sT}, 4")
    a(f"v_add_u32 v{vT[5]}, s{sT}, v{vT[5]}")
    a(f"v_mul_u32_u24 v{vT[5]}, 1280, v{vT[5]}")
    a(f"v_add_u32 v{vFW[0]}, v{vT[5]}, v{vT[3]}")
    a(f"v_add_u32 v{vFW[1]}, v{vT[5]}, v{vT[4]}")
    a(f"v_add_u32 v{vFW[1]}, {4*1280-1024}, v{vFW[1]}")
    a(f"v_add_u32 v{vFs}, {320*1280}, v{vT[3]}")
    a(f"v_and_b32 v{vT[0]}, 31, v{vL}")
    a(f"v_lshrrev_b32 v{vT[1]}, 5, v{vL}")
    a(f"v_lshlrev_b32 v{vGs}, 5, v{vT[0]}")
    a(f"v_lshl_add_u32 v{vGs}, v{vT[1]}, 4, v{vGs}")
    a(f"s_mul_i32 s{sT}, s{sCnt}, {WL.GA}")
    a(f"s_lshl_b32 s{sT2}, s{sBeta}, 11")
    a(f"s_add_u32 s{sT}, s{sT}, s{sT2}")
    a(f"v_add_u32 v{vGs}, s{sT}, v{vGs}")
    a(f"s_mul_i32 s{sCnt}, s{sCnt}, 48")
    a(f"s_lshl_b32 s{sT2}, s{sBeta}, 2")
    a(f"s_add_u32 s{sCnt}, s{sCnt}, s{sT2}")
    a(f"s_add_u32 s{sCnt}, s{sCnt}, {WL.FG}")
    nat_read_addrs(vRX, sWl, 12)
    for n in range(10):
        a(f"s_waitcnt vmcnt({8 if n < 9 else 0}) lgkmcnt(0)")
        a("s_barrier")
        for ks in range(4):
            a(f"ds_read_b128 {vr(XR[n][ks],4)}, v{vRX[ks]} offset:{STAGE[n%4] & 0xffff}")
        if n + 2 < 10: issue(n + 2)
        if n < 9 and (STAGE[n % 4] ^ STAGE[(n + 1) % 4]) & 0x10000:
            for ks in range(4): a(f"v_xor_b32 v{vRX[ks]}, 0x10000, v{vRX[ks]}")
    st.stamp("ldone")
    a(f"s_add_u32 s{sNonce}, s{sNonce}, 1")
    a(f"s_cmp_ge_u32 s{sJ}, 20")
    a(f"s_cbranch_scc1 {L('lfree')}")
    a("s_setprio 3")
    a(f"s_mov_b32 s{sGF}, s{sCnt}")
    sel_srd(sB, sWn, 10, 12, 640 * 1280)
    srd(a, sC, 10, 0, 640 * 1280)
    a(f"s_lshl_b32 s{sM0}, s{sWl}, 11")
    a(f"s_lshl_b32 s{sT}, s{sBeta}, 2")
    a(f"s_add_u32 s{sT}, s{sT}, s{sWl}")
    a(f"s_cmp_eq_u32 s{sT}, 2")
    a(f"s_cselect_b32 s{sSp}, 0xffffff00, -1")
    a(f"s_cselect_b64 vcc, -1, 0")
    a(f"s_mov_b32 s{sSp+1}, -1")
    WDB = lambda p: (0x10000 + 8192 * p) if p < 8 else 8192 * (p - 8)
    def wdma(p):
        a(f"s_add_u32 m0, s{sM0}, {WDB(p)}")
        a(f"s_mov_b64 exec, s[{sSp}:{sSp+1}]")
        a(f"buffer_load_dwordx4 v{vFW[0]}, s[{sB}:{sB+3}], s{sOX} offen lds")
        a(f"s_cbranch_vccz {L('fs%d' % p)}")
        a("s_mov_b64 exec, 0xff")
        a(f"buffer_load_dwordx4 v{vFs}, s[{sC}:{sC+3}], s{sOX} offen lds")
        a.label(L("fs%d" % p))
        a("s_mov_b64 exec, -1")
        a(f"buffer_load_dwordx4 v{vFW[1]}, s[{sB}:{sB+3}], s{sOX} offen offset:1024 lds")
        a(f"s_add_u32 s{sOX}, s{sOX}, 128")
        a(f"s_cmp_eq_u32 s{sOX}, 1280")
        a(f"s_cselect_b32 s{sOX}, 0, s{sOX}")
    def twl():
        srd(a, sB, 6, 0, 2048 * 4096)
        srd(a, sC, 8, 0, 2048 * 4096)
        a(f"buffer_load_dwordx4 {vr(FR,4)}, v{vT[2]}, s[{sB}:{sB+3}], 0 offen")
        a(f"buffer_load_dwordx4 {vr(FR+4,4)}, v{vT[2]}, s[{sB}:{sB+3}], 0 offen offset:32")
        a(f"buffer_load_dwordx4 {vr(FIn,4)}, v{vT[2]}, s[{sC}:{sC+3}], 0 offen")
        a(f"buffer_load_dwordx4 {vr(FIn+4,4)}, v{vT[2]}, s[{sC}:{sC+3}], 0 offen offset:32")
    if fcrit:
        a(f"s_and_b32 s{sT}, s{sRb}, 6")
        a(f"s_cbranch_scc1 {L('f0d')}")
        lds_wait("f0", 20, 4)
    for p in range(10 if fcrit else fsplit): wdma(p)
    a(f"v_and_b32 v{vT[2]}, 31, v{vL}")
    a(f"v_lshrrev_b32 v{vT[1]}, 5, v{vL}")
    a(f"v_lshlrev_b32 v{vT[2]}, 18, v{vT[2]}")
    a(f"v_lshl_add_u32 v{vT[2]}, v{vT[1]}, 4, v{vT[2]}")
    a(f"s_lshl_b32 s{sT}, s{sWl}, 12")
    a(f"s_sub_u32 s{sT}, 0x10000, s{sT}")
    for ks in range(4): a(f"v_add_u32 v{vRX[ks]}, s{sT}, v{vRX[ks]}")
    assert not STAGE[9 % 4] & 0x10000
    if fcrit: twl()
    a("s_waitcnt vmcnt(%d)" % (4 + 2 * (10 - fsplit) if fcrit else 0))
    lds_inc(12)
    lds_wait("f1", 12, 4)
    st.stamp("fb0")
    if stamps: a("s_waitcnt lgkmcnt(0)")
    def rdB(s):
        p, ks = divmod(s, 4)
        if s == 32:
            for k in range(4): a(f"v_xor_b32 v{vRX[k]}, 0x10000, v{vRX[k]}")
        for part in range(2):
            a(f"ds_read_b128 {vr(BF[s%3][part],4)}, v{vRX[ks]} offset:{(WDB(p) & 0xffff) + 4096*part}")
    rdB(0); rdB(1)
    H = 4 * fsplit
    for s in range(40):
        if not fcrit:
            if s == fstart and fwait: lds_wait("f0", 20, 4)
            if fstart <= s < fstart + 10 - fsplit: wdma(fsplit + s - fstart)
            if s == fstart + 10 - fsplit: twl()
        if s == H - 2:
            a("s_waitcnt vmcnt(4)")
            lds_inc(16)
            lds_wait("f2", 16, 4)
            st.stamp("fb1")
            if stamps: a("s_waitcnt lgkmcnt(0)")
        if s + 2 < 40: rdB(s + 2)
        a(f"s_waitcnt lgkmcnt({4 if s < 38 else 2*(39-s)})")
        for part, Z in enumerate((ZA, ZB)):
            c = "0" if s == 0 else vr(Z, 16)
            a(f"v_mfma_f32_32x32x16_bf16 {vr(Z,16)}, {vr(XR[s//4][s%4],4)}, {vr(BF[s%3][part],4)}, {c}")
    assert fstart + 10 - fsplit < H - 2
    lds_inc(8)
    st.stamp("fend")
    FRn = XR[0][0]; G0 = XR[1][0]; G1 = XR[2][0]; G2 = XR[3][0]; G3 = XR[4][0]; ZS = XR[5][0]
    a("s_waitcnt vmcnt(0)")
    for i in range(8):
        a(f"v_xor_b32 v{FRn+i}, 0x80008000, v{FR+i}")
        a(f"v_xor_b32 v{FIn+i}, 0x80008000, v{FIn+i}")
    for Z in (ZA, ZB):
        for i in range(8): a(f"v_cvt_pk_bf16_f32 v{Z+i}, v{Z+2*i}, v{Z+2*i+1}")
    m = lambda d, A, B, c: a(f"v_mfma_f32_32x32x16_bf16 {vr(d,16)}, {vr(A,4)}, {vr(B,4)}, {c}")
    GP = TOP - 24
    a("s_nop 0")
    a(f"s_cmp_lg_u32 s{sBeta}, 0")
    a(f"s_cbranch_scc1 {L('fn')}")
    m(G2, ZB, FR, "0"); m(G2, ZB+4, FR+4, vr(G2,16))
    m(G3, ZB, FIn, "0"); m(G3, ZB+4, FIn+4, vr(G3,16))
    a("s_mov_b32 exec_lo, 1"); a("s_mov_b32 exec_hi, 1")
    for i in range(8): a(f"v_mov_b32 v{ZB+i}, 0")
    a(f"s_mov_b64 exec, s[{sLo}:{sLo+1}]")
    a("s_nop 3")
    for i in range(4): a(f"v_mov_b32 v{GP+16+i}, 0"); a(f"v_mov_b32 v{GP+20+i}, 0")
    a(f"v_cvt_pk_bf16_f32 v{GP+16}, v{G2}, 0")
    a(f"v_cvt_pk_bf16_f32 v{GP+20}, v{G3}, 0")
    a("s_mov_b64 exec, -1")
    a.label(L("fn"))
    m(G0, ZA, FR, "0"); m(G0, ZA+4, FR+4, vr(G0,16)); m(G0, ZB, FIn, vr(G0,16)); m(G0, ZB+4, FIn+4, vr(G0,16))
    m(G1, ZB, FRn, "0"); m(G1, ZB+4, FRn+4, vr(G1,16)); m(G1, ZA, FIn, vr(G1,16)); m(G1, ZA+4, FIn+4, vr(G1,16))
    a("s_nop 7")
    for p, g in enumerate((G0, G1)):
        for i in range(8): a(f"v_cvt_pk_bf16_f32 v{GP+8*p+i}, v{g+2*i}, v{g+2*i+1}")
    def g_stores(sd):
        srd(a, sd, sWS, WL.G, WL.G_SIZE)
        a(f"s_mov_b32 s{sT2}, {64*WL.GA}")
        for p in range(2):
            for j in range(2):
                so = "0" if p == 0 else f"s{sT2}"
                a(f"buffer_store_dwordx4 {vr(GP+8*p+4*j,4)}, v{vGs}, s[{sd}:{sd+3}], {so} offen offset:{1024*j} sc1")
        a(f"s_or_b32 s{sT}, s{sXc}, s{sJ}")
        a(f"s_cmp_ge_u32 s{sT}, 4")
        a(f"s_cbranch_scc1 {L('gs1')}")
        a(f"v_add_u32 v{vGs}, {20*1024}, v{vGs}")
        a(f"s_mov_b64 exec, s[{sLo}:{sLo+1}]")
        a(f"buffer_store_dwordx4 {vr(GP+16,4)}, v{vGs}, s[{sd}:{sd+3}], 0 offen sc1")
        a(f"buffer_store_dwordx4 {vr(GP+20,4)}, v{vGs}, s[{sd}:{sd+3}], s{sT2} offen sc1")
        a("s_mov_b64 exec, -1")
        a.label(L("gs1"))
    if not gdefer: g_stores(sC)
    assert ZB + 8 <= GP
    st.stamp("gst")
    a(f"s_branch {L('att')}")
    a.label(L("lgate"))
    if cwarm:
        a(f"s_getpc_b64 s[{sT}:{sT2}]")
        a.label(L("pc0"))
        a(f"s_sub_u32 s{sT}, s{sT}, {L('pc0')}-{name}")
        a(f"s_subb_u32 s{sT2}, s{sT2}, 0")
        a(f"s_lshl_b32 s{sCnt}, s{sWl}, 13")
        a(f"v_lshl_add_u32 v{vT[0]}, v{vL}, 7, s{sCnt}")
        a(f"v_min_u32 v{vT[0]}, {L('cend')}-{name}-4, v{vT[0]}")
        a(f"global_load_dword v{vT[1]}, v{vT[0]}, s[{sT}:{sT2}]")
    if gtouch:
        sel_srd(sB, sWm, 6, 8, 2048 * 4096)
        a(f"v_and_b32 v{vT[0]}, 31, v{vL}")
        a(f"v_lshlrev_b32 v{vT[0]}, 18, v{vT[0]}")
        a(f"buffer_load_dword v{vT[1]}, v{vT[0]}, s[{sB}:{sB+3}], 0 offen")
        sel_srd(sB, sWm, 10, 12, 640 * 1280)
        a(f"s_and_b32 s{sT}, s{sJ}, 1")
        a(f"s_lshl_b32 s{sT}, s{sT}, 1")
        a(f"s_add_u32 s{sT}, s{sT}, s{sWn}")
        a(f"s_mul_i32 s{sT}, s{sT}, {400*128}")
        a(f"s_lshr_b32 s{sT2}, s{sXc}, 2")
        a(f"s_mul_i32 s{sT2}, s{sT2}, {160*1280}")
        a(f"s_add_u32 s{sT}, s{sT}, s{sT2}")
        a(f"v_min_u32 v{vT[0]}, 49, v{vL}")
        a(f"v_lshlrev_b32 v{vT[0]}, 7, v{vT[0]}")
        for i in range(8):
            a(f"buffer_load_dword v{vT[1]}, v{vT[0]}, s[{sB}:{sB+3}], s{sT} offen")
            a(f"s_add_u32 s{sT}, s{sT}, {50*128}")
    masks()
    a("s_waitcnt lgkmcnt(0)")
    a("s_barrier")
    a(f"s_add_u32 s{sNonce}, s{sNonce}, 1")
    a.label(L("lfree"))
    a("s_waitcnt vmcnt(0) lgkmcnt(0)")
    lds_inc(8)
    a(f"s_branch {L('att')}")

    a.label(L("comp"))
    V = Alloc(VB, TOP)
    vRX = [V.get() for _ in range(4)]; vRW = [V.get() for _ in range(2)]
    vE = [V.get() for _ in range(8)]
    vTch = V.get(2)
    XF = [[V.get(4, 4) for _ in range(2)] for _ in range(4)]
    WF = [[V.get(4, 4) for _ in range(2)] for _ in range(4)]
    ACC = [[V.get(16, 4) for _ in range(2)] for _ in range(2)]
    PK = TOP - 32
    vS = [PK - 4 + i for i in range(4)]
    sDef = 15
    sMask = sD; sScale = sD + 2
    a(f"s_setprio {cprio}")
    nat_read_addrs(vRX, sWm, 13)
    for x in range(2):
        for w in range(2):
            for i in range(16): a(f"v_mov_b32 v{ACC[x][w]+i}, 0")
    after_kernarg()
    masks()
    a(f"s_cmp_lg_u32 s{sW}, 0")
    a(f"s_cbranch_scc1 {L('c1')}")
    a(f"ds_write_b128 v{vCtl}, {vr(ACC[0][0],4)}")
    for o_ in (16, 32, 48): a(f"ds_write_b128 v{vCtl}, {vr(ACC[0][0],4)} offset:{o_}")
    a.label(L("c1"))
    def poison(sd, pr):
        a(f"s_and_b32 s{sT}, s{sJ}, 3")
        a(f"s_lshl_b32 s{sT2}, s{sXc}, 2")
        a(f"s_add_u32 s{sT}, s{sT}, s{sT2}")
        a(f"s_and_b32 s{sCnt}, s{sT}, 1")
        a(f"s_lshr_b32 s{sT}, s{sT}, 1")
        a(f"s_mul_i32 s{sT}, s{sT}, {5*WL.PL}")
        a(f"s_add_u32 s{sT}, s{sT}, {WL.OF}")
        srd(a, sd, sWS, f"s{sT}", 5 * WL.PL)
        a(f"s_and_b32 s{sT}, s{sJ}, 28")
        a(f"s_add_u32 s{sT}, s{sT}, s{sW}")
        a(f"s_lshl_b32 s{sT}, s{sT}, 10")
        a(f"v_lshl_add_u32 v{vT[0]}, v{vL}, 4, s{sT}")
        for i in range(4): a(f"v_mov_b32 v{pr+i}, -1")
        a(f"s_mul_i32 s{sT}, s{sCnt}, {3*WL.PL}")
        a(f"buffer_store_dwordx4 {vr(pr,4)}, v{vT[0]}, s[{sd}:{sd+3}], s{sT} offen sc1")
        a(f"s_add_u32 s{sT}, s{sT}, {WL.PL}")
        a(f"buffer_store_dwordx4 {vr(pr,4)}, v{vT[0]}, s[{sd}:{sd+3}], s{sT} offen sc1")
        a(f"s_lshl_b32 s{sT}, s{sCnt}, 3")
        a(f"s_add_u32 s{sT}, s{sT}, {2*WL.PL}")
        a(f"buffer_store_dwordx2 {vr(pr,2)}, v{vT[0]}, s[{sd}:{sd+3}], s{sT} offen sc1")
    if pois == 1: poison(sC, PK)
    def mainloop(mode, epi):
        def rdX(s, ks, x): a(f"ds_read_b128 {vr(XF[s][x],4)}, v{vRX[ks]} offset:{4096*x}")
        def rdW(s, ks, w):
            a(f"ds_read_b64_tr_b16 {vr(WF[s][w],2)}, v{vRW[w]} offset:{4096*ks}")
            a(f"ds_read_b64_tr_b16 {vr(WF[s][w]+2,2)}, v{vRW[w]} offset:{4096*ks+1024}")
        def mf(s, x, w):
            A, B = (WF[s][w], XF[s][x]) if mode == 'qk' else (XF[s][x], WF[s][w])
            a(f"v_mfma_f32_32x32x16_bf16 {vr(ACC[x][w],16)}, {vr(A,4)}, {vr(B,4)}, {vr(ACC[x][w],16)}")
        a("s_waitcnt lgkmcnt(0)")
        a("s_barrier")
        st.stamp("b0")
        if stamps: a("s_waitcnt lgkmcnt(0)")
        rdX(0, 0, 0); rdW(0, 0, 0); rdX(0, 0, 1); rdW(0, 0, 1)
        a(f"s_mov_b32 s{sCnt}, 0")
        a.raw(".p2align 5")
        a.label(L(mode + "loop"))
        for ks in range(4):
            s = ks % 2; n = 1 - s; nk = (ks + 1) % 4
            if ks < 3:
                a("s_waitcnt lgkmcnt(3)")
                mf(s, 0, 0)
                if ks == 0 and touch:
                    a(f"s_cmp_lg_u32 s{sCnt}, {tpos}")
                    a(f"s_cbranch_scc1 {L(mode+'nt')}")
                    a(f"buffer_load_dword v{vTch}, v{vTch+1}, s[{sE}:{sE+3}], 0 offen")
                    a.label(L(mode + "nt"))
            else:
                a("s_waitcnt lgkmcnt(0)")
                mf(s, 0, 0)
                a(f"s_add_u32 s{sCnt}, s{sCnt}, 1")
                if not peel:
                    a(f"s_cmp_eq_u32 s{sCnt}, 10")
                    a(f"s_cbranch_scc1 {L(mode+'last')}")
                a("s_barrier")
                for r in vRX + vRW:
                    a(f"v_xor_b32 v{r}, s{sMask}, v{r}")
            rdX(n, nk, 0); rdW(n, nk, 0)
            if ks < 3: a("s_waitcnt lgkmcnt(5)")
            mf(s, 1, 0)
            rdX(n, nk, 1)
            if ks < 3: a("s_waitcnt lgkmcnt(4)")
            mf(s, 0, 1)
            rdW(n, nk, 1)
            if ks == 3: a(f"s_xor_b32 s{sMask}, s{sMask}, 0x18000")
            if ks == 3 and peel: a(f"s_cmp_lg_u32 s{sCnt}, 9")
            mf(s, 1, 1)
        if not peel:
            a(f"s_branch {L(mode+'loop')}")
            a.label(L(mode + "last"))
            mf(1, 0, 1); mf(1, 1, 0); mf(1, 1, 1)
            lds_inc(8)
            st.stamp("aend")
            a("s_nop 1")
            for x in range(2):
                for w in range(2): epi(x, w)
            return
        a(f"s_cbranch_scc1 {L(mode+'loop')}")
        for ks in range(1, 4): rdX(ks, ks, 0); rdW(ks, ks, 0)
        for ks in range(4):
            a(f"s_waitcnt lgkmcnt({[12, 6, 5, 4][ks]})")
            mf(ks, 0, 0)
            if ks >= 1: rdW(ks, ks, 1)
        for ks in range(4):
            if ks: a(f"s_waitcnt lgkmcnt({[0, 4, 3, 2][ks]})")
            mf(ks, 0, 1)
            if ks >= 1: rdX(ks, ks, 1)
        mf(0, 1, 0)
        a("s_waitcnt lgkmcnt(0)")
        mf(1, 1, 0)
        lds_inc(8)
        mf(2, 1, 0)
        epi(0, 0)
        mf(3, 1, 0); mf(0, 1, 1)
        epi(0, 1)
        mf(1, 1, 1); mf(2, 1, 1); mf(3, 1, 1)
        st.stamp("aend")
        epi(1, 0)
        a("s_nop 1")
        epi(1, 1)
    a(f"s_mov_b32 s{sMask}, 0x8000")
    a(f"s_cmp_ge_u32 s{sJ}, 30")
    a(f"s_cbranch_scc1 {L('gate')}")
    a(f"s_lshl_b32 s{sAF}, s{sCb}, 4")
    a(f"s_add_u32 s{sAF}, s{sAF}, s{sRb}")
    if touch:
        sel_srd(sE, sWm, 10, 12, 640 * 1280)
        a(f"s_lshl_b32 s{sT}, s{sJ}, 1")
        a(f"s_add_u32 s{sT}, s{sT}, s{sWn}")
        a(f"s_mul_i32 s{sT}, s{sT}, {27*128}")
        a(f"s_lshr_b32 s{sT2}, s{sXc}, 2")
        a(f"s_mul_i32 s{sT2}, s{sT2}, {160*1280}")
        a(f"s_add_u32 s{sT}, s{sT}, s{sT2}")
        a(f"v_min_u32 v{vTch+1}, 26, v{vL}")
        a(f"v_lshl_add_u32 v{vTch+1}, v{vTch+1}, 7, s{sT}")
    def astore(sd, aa, bb, lab=None):
        if lab and defer: a(f"s_cbranch_vccnz {L('as%s%d%d' % (lab, aa, bb))}")
        for j in range(2):
            a(f"buffer_store_dwordx4 {vr(PK+8*(2*bb+aa)+4*j,4)}, v{vS[2*aa+j]}, s[{sd}:{sd+3}], 0 offen offset:{512*bb} sc1")
        if lab and defer: a.label(L('as%s%d%d' % (lab, aa, bb)))
    srd(a, sC, sWS, WL.QF, WL.G - WL.QF)
    if defer:
        a(f"s_and_b32 s{sDef}, s{sRb}, {dmask}")
        a(f"s_cmp_lt_u32 s{sCb}, 5")
        a(f"s_cselect_b32 s{sDef}, 0, s{sDef}")
        a(f"s_cmp_lg_u32 s{sDef}, 0")
        a("s_cselect_b64 vcc, -1, 0")
    a(f"v_bfe_u32 v{vT[0]}, v{vL}, 2, 2")
    a(f"v_lshrrev_b32 v{vT[1]}, 5, v{vL}")
    a(f"v_lshl_add_u32 v{vT[1]}, v{vT[1]}, 3, v{vT[0]}")
    a(f"v_lshlrev_b32 v{vT[1]}, 8, v{vT[1]}")
    a(f"s_lshl_b32 s{sT}, s{sWn}, 1")
    a(f"v_xor_b32 v{vT[0]}, s{sT}, v{vT[0]}")
    a(f"v_lshl_add_u32 v{vT[1]}, v{vT[0]}, 6, v{vT[1]}")
    a(f"v_bfe_u32 v{vT[0]}, v{vL}, 4, 1")
    a(f"v_lshl_add_u32 v{vT[1]}, v{vT[0]}, 5, v{vT[1]}")
    a(f"v_add_u32 v{vT[1]}, 0x4000, v{vT[1]}")
    a(f"v_and_b32 v{vT[4]}, 31, v{vL}")
    a(f"v_lshrrev_b32 v{vT[5]}, 5, v{vL}")
    a(f"s_cmp_ge_u32 s{sCb}, 10")
    a(f"s_cbranch_scc1 {L('v')}")
    a(f"v_and_b32 v{vT[0]}, 1, v{vL}")
    a(f"v_lshl_add_u32 v{vT[1]}, v{vT[0]}, 4, v{vT[1]}")
    a(f"v_bfe_u32 v{vT[0]}, v{vL}, 1, 1")
    a(f"v_lshl_add_u32 v{vRW[0]}, v{vT[0]}, 3, v{vT[1]}")
    a(f"v_xor_b32 v{vRW[1]}, 64, v{vRW[0]}")
    a(f"s_cmp_ge_u32 s{sCb}, 5")
    a(f"s_cselect_b32 s{sScale}, 1.0, {hex(QSCALE)}")
    a(f"s_mov_b32 s{sScale+1}, s{sScale}")
    a(f"s_lshl_b32 s{sT}, s{sCb}, 1")
    a(f"s_add_u32 s{sT}, s{sT}, s{sWn}")
    a(f"s_lshl_b32 s{sT}, s{sT}, 18")
    a(f"s_lshl_b32 s{sT2}, s{sRb}, 1")
    a(f"s_add_u32 s{sT2}, s{sT2}, s{sWm}")
    a(f"s_lshl_b32 s{sT2}, s{sT2}, 10")
    a(f"s_add_u32 s{sT}, s{sT}, s{sT2}")
    a(f"v_lshlrev_b32 v{vS[0]}, 15, v{vT[5]}")
    a(f"v_lshl_add_u32 v{vS[0]}, v{vT[4]}, 4, v{vS[0]}")
    a(f"v_add_u32 v{vS[0]}, s{sT}, v{vS[0]}")
    for e in range(1, 4): a(f"v_add_u32 v{vS[e]}, {e*2*WL.PL}, v{vS[0]}")
    def epi_qk(x, w):
        acc = ACC[x][w]; pk = PK + 8 * (2 * x + w)
        for i in range(0, 16, 2): a(f"v_pk_mul_f32 {vr(acc+i,2)}, {vr(acc+i,2)}, s[{sScale}:{sScale+1}]")
        for i in range(8): a(f"v_cvt_pk_bf16_f32 v{pk+i}, v{acc+2*i}, v{acc+2*i+1}")
        astore(sC, w, x, "q")
    mainloop('qk', epi_qk)
    a(f"s_branch {L('adone')}")
    a.label(L("v"))
    a(f"v_and_b32 v{vT[0]}, 3, v{vL}")
    a(f"v_lshl_add_u32 v{vRW[0]}, v{vT[0]}, 3, v{vT[1]}")
    a(f"v_xor_b32 v{vRW[1]}, 64, v{vRW[0]}")
    a(f"s_lshl_b32 s{sT}, s{sRb}, 1")
    a(f"s_add_u32 s{sT}, s{sT}, s{sWm}")
    a(f"s_mul_i32 s{sT}, s{sT}, {2*WL.VT}")
    a(f"s_sub_u32 s{sT2}, s{sCb}, 10")
    a(f"s_lshl_b32 s{sT2}, s{sT2}, 1")
    a(f"s_add_u32 s{sT2}, s{sT2}, s{sWn}")
    a(f"s_lshl_b32 s{sT2}, s{sT2}, 10")
    a(f"s_add_u32 s{sT}, s{sT}, s{sT2}")
    a(f"s_add_u32 s{sT}, s{sT}, {WL.VF - WL.QF}")
    a(f"v_mul_u32_u24 v{vS[0]}, 10240, v{vT[5]}")
    a(f"v_lshl_add_u32 v{vS[0]}, v{vT[4]}, 4, v{vS[0]}")
    a(f"v_add_u32 v{vS[0]}, s{sT}, v{vS[0]}")
    for e in range(1, 4): a(f"v_add_u32 v{vS[e]}, {e*20480}, v{vS[0]}")
    def epi_v(x, w):
        acc = ACC[x][w]; pk = PK + 8 * (2 * w + x)
        for i in range(8): a(f"v_cvt_pk_bf16_f32 v{pk+i}, v{acc+2*i}, v{acc+2*i+1}")
        astore(sC, x, w, "v")
    mainloop('v', epi_v)
    a(f"s_branch {L('adone')}")
    a.label(L("gate"))
    GW = 40; GX = 60
    assert vTch + 2 <= GW and GX + 160 <= PK
    srd(a, sB, 20, 0, 1280)
    srd(a, sC, sWS, WL.GATE, 2048 * 8)
    a(f"v_and_b32 v{vT[0]}, 15, v{vL}")
    a(f"v_lshlrev_b32 v{vT[0]}, 4, v{vT[0]}")
    a(f"s_and_b32 s{sAF}, s{sXc}, 3")
    a(f"s_lshl_b32 s{sAF}, s{sAF}, 2")
    a(f"s_lshr_b32 s{sT}, s{sXc}, 2")
    a(f"s_lshl_b32 s{sT}, s{sT}, 1")
    a(f"s_add_u32 s{sAF}, s{sAF}, s{sT}")
    a(f"s_add_u32 s{sAF}, s{sAF}, s{sJ}")
    a(f"s_sub_u32 s{sAF}, s{sAF}, 30")
    a(f"s_lshl_b32 s{sT}, s{sAF}, 1")
    a(f"s_add_u32 s{sT}, s{sT}, s{sWn}")
    a(f"s_add_u32 s{sAF}, s{sAF}, 240")
    a(f"s_lshl_b32 s{sT2}, s{sWm}, 5")
    a(f"v_lshrrev_b32 v{vT[5]}, 4, v{vL}")
    a(f"s_add_u32 s{sCnt}, s{sT}, s{sT2}")
    a(f"v_lshl_add_u32 v{vT[2]}, v{vT[5]}, 6, s{sCnt}")
    a(f"v_mul_u32_u24 v{vT[2]}, 1280, v{vT[2]}")
    a(f"v_add_u32 v{vT[2]}, v{vT[2]}, v{vT[0]}")
    a(f"s_lshl_b32 s{sT}, s{sT}, 6")
    a(f"s_add_u32 s{sT}, s{sT}, s{sT2}")
    a(f"v_add_u32 v{vT[5]}, s{sT}, v{vT[5]}")
    a(f"v_lshlrev_b32 v{vT[5]}, 3, v{vT[5]}")
    a(f"v_cmp_eq_u32 vcc, 0, v{vT[0]}")
    a("s_waitcnt lgkmcnt(0)")
    a("s_barrier")
    for p in range(5):
        a(f"buffer_load_dwordx4 {vr(GW+4*p,4)}, v{vT[0]}, s[{sB}:{sB+3}], 0 offen offset:{256*p}")
    for r in range(8):
        b4 = (r & 4) * 4 + (r & 1) * 8 + (r & 2) * 2
        a(f"s_mov_b32 s{sT}, {b4*64*1280}")
        for p in range(5):
            a(f"buffer_load_dwordx4 {vr(GX+20*r+4*p,4)}, v{vT[2]}, s[{sA}:{sA+3}], s{sT} offen offset:{256*p}")
        a(f"v_mov_b32 v{vE[r]}, 0")
    for r in range(8):
        a(f"s_waitcnt vmcnt({35-5*r})")
        for i in range(20):
            a(f"v_dot2c_f32_bf16 v{vE[r]}, v{GX+20*r+i}, v{GW+i}")
    a("s_nop 3")
    for sh in (8, 4, 2, 1):
        for r in range(8):
            a(f"v_add_f32_dpp v{vE[r]}, v{vE[r]}, v{vE[r]} row_ror:{sh} row_mask:0xf bank_mask:0xf")
    GO = PK
    for r in range(8): a(f"v_cvt_pk_bf16_f32 v{vE[r]}, 0, v{vE[r]}")
    for r in range(8): a(f"v_mul_f32 v{vE[r]}, 0xbfb8aa3b, v{vE[r]}")
    for r in range(8): a(f"v_exp_f32 v{vE[r]}, v{vE[r]}")
    for r in range(8): a(f"v_add_f32 v{vE[r]}, 1.0, v{vE[r]}")
    for r in range(8): a(f"v_rcp_f32 v{vE[r]}, v{vE[r]}")
    for r in range(8): a(f"v_cvt_pk_bf16_f32 v{GO+2*r}, 0, v{vE[r]}")
    for r in range(8): a(f"v_sub_f32 v{GO+2*r+1}, 1.0, v{GO+2*r}")
    for r in range(8): a(f"v_cvt_pk_bf16_f32 v{GO+2*r+1}, 0, v{GO+2*r+1}")
    a("s_mov_b64 exec, vcc")
    for r in range(8):
        a(f"buffer_store_dwordx2 {vr(GO+2*r,2)}, v{vT[5]}, s[{sC}:{sC+3}], 0 offen offset:{32*r} sc1")
    a("s_mov_b64 exec, -1")
    lds_inc(8)
    a.label(L("adone"))
    if pois == 2: poison(sC, XF[0][0])
    if fwait: lds_inc(20)
    st.stamp("ast")
    a(f"s_add_u32 s{sNonce}, s{sNonce}, 1")
    a(f"s_lshl_b32 s{sAF}, s{sAF}, 7")
    a(f"s_add_u32 s{sAF}, s{sAF}, {WL.FA}")

    a.label(L("att"))
    V = Alloc(VB, TOP)
    vKm = V.get(); vKr = V.get(); vV0 = V.get(); vV1 = V.get(); vM = V.get(); vWo = V.get()
    Qm = [V.get(4, 4) for _ in range(2)]
    Qr = [V.get(2) for _ in range(2)]
    Km = [V.get(4, 4) for _ in range(4)]
    Kr = [V.get(2) for _ in range(4)]
    Vb = [[V.get(4, 4) for _ in range(2)] for _ in range(4)]
    P = V.get(8, 4)
    S = [V.get(16, 4) for _ in range(2)]
    O = [V.get(16, 4) for _ in range(2)]
    K0m = V.get(4, 4); K0r = V.get(2)
    vG = V.get(2); vO = V.get(); vSt = V.get(); vGd = V.get(); vWs = V.get(); vX0 = V.get(); vX1 = V.get(); vGt = V.get(); vDum = V.get(); vIdx = vDum
    WsF = [V.get(4, 4) for _ in range(2)]
    GFl = V.get(12, 4)
    vKF = GFl + 10; vQF = GFl + 11
    att_hi = V.p
    assert att_hi <= TOP - 32
    OFr = [V.get(4, 4) for _ in range(10)]
    AC = [V.get(4, 4) for _ in range(5)]
    sK = sA; sV = sB; sQ = sC; sWo = sD
    sHead = 98; sQb = 99; sKh = 100; sOK = 101; sOV = 14; sOWo = 15; sM0 = 3; sPar = sE; sHp = sE + 1; sStep = sE + 2; sU0 = sE + 3
    sCc = sHead; sEb8 = sQb; sMs = sPar; sStep2 = sAF
    a(f"s_and_b32 s{sT}, s{sJ}, 3")
    a(f"s_lshl_b32 s{sHead}, s{sXc}, 2")
    a(f"s_add_u32 s{sHead}, s{sHead}, s{sT}")
    a(f"s_lshr_b32 s{sQb}, s{sJ}, 2")
    a(f"s_lshr_b32 s{sKh}, s{sW}, 2")
    a(f"s_and_b32 s{sPar}, s{sHead}, 1")
    a(f"s_lshr_b32 s{sHp}, s{sHead}, 1")
    a(f"s_mul_i32 s{sHp}, s{sHp}, {5*WL.PL}")
    a(f"v_and_b32 v{vT[0]}, 31, v{vL}")
    a(f"v_lshrrev_b32 v{vT[1]}, 5, v{vL}")
    a(f"v_and_b32 v{vT[2]}, 0x13, v{vT[0]}")
    a(f"v_bfe_u32 v{vT[3]}, v{vT[0]}, 2, 1")
    a(f"v_lshl_add_u32 v{vT[2]}, v{vT[3]}, 3, v{vT[2]}")
    a(f"v_bfe_u32 v{vT[3]}, v{vT[0]}, 3, 1")
    a(f"v_lshl_add_u32 v{vT[2]}, v{vT[3]}, 2, v{vT[2]}")
    a(f"v_and_b32 v{vSt}, 15, v{vT[2]}")
    a(f"s_mul_i32 s{sT}, s{sPar}, {3*WL.PL}")
    a(f"v_lshlrev_b32 v{vKm}, 15, v{vT[1]}")
    a(f"v_lshl_add_u32 v{vKm}, v{vT[2]}, 4, v{vKm}")
    a(f"v_add_u32 v{vKm}, s{sT}, v{vKm}")
    a(f"s_lshl_b32 s{sT}, s{sPar}, 3")
    a(f"s_add_u32 s{sT}, s{sT}, {2*WL.PL}")
    a(f"v_lshl_add_u32 v{vKr}, v{vT[2]}, 4, s{sT}")
    a(f"v_mov_b32 v{vIdx}, 0xdddddddd")
    a(f"s_lshl_b32 s{sT}, s{sPar}, 2")
    a(f"v_add_u32 v{vT[2]}, s{sT}, v{vT[2]}")
    a(f"v_subrev_u32 v{vT[3]}, 20, v{vT[2]}")
    a(f"v_min_u32 v{vT[2]}, v{vT[2]}, v{vT[3]}")
    a(f"s_mul_i32 s{sT}, s{sHead}, 320")
    a(f"v_mul_u32_u24 v{vV0}, 10240, v{vT[1]}")
    a(f"v_lshl_add_u32 v{vV0}, v{vT[2]}, 4, v{vV0}")
    a(f"v_add_u32 v{vV0}, s{sT}, v{vV0}")
    a(f"v_add_u32 v{vV1}, 20480, v{vV0}")
    a(f"s_add_u32 s{sT}, s{sHp}, {WL.KF}")
    srd(a, sK, sWS, f"s{sT}", 5 * WL.PL)
    srd(a, sV, sWS, WL.VF, 64 * WL.VT)
    a(f"s_add_u32 s{sT}, s{sHp}, {WL.QF}")
    srd(a, sQ, sWS, f"s{sT}", 5 * WL.PL)
    a(f"s_lshl_b32 s{sOK}, s{sKh}, 14")
    a(f"s_mul_i32 s{sOV}, s{sKh}, {32*WL.VT}")
    a(f"s_lshl_b32 s{sU0}, s{sQb}, 2")
    a(f"s_and_b32 s{sT}, s{sW}, 3")
    a(f"s_add_u32 s{sU0}, s{sU0}, s{sT}")
    a(f"s_lshl_b32 s{sU0}, s{sU0}, 10")
    for r in [K0r] + Kr:
        a(f"v_mov_b32 v{r}, 0x3f803f80")
        a(f"v_mov_b32 v{r+1}, 0x3f80")
    for q in range(2):
        a(f"v_mov_b32 v{Qr[q]}, 0"); a(f"v_mov_b32 v{Qr[q]+1}, 0")
    a(f"v_cmp_eq_u32 vcc, 20, v{vT[0]}")
    a(f"v_mov_b32 v{vT[2]}, 0x3f803f80")
    a(f"v_mov_b32 v{vT[3]}, 0")
    a(f"v_cndmask_b32 v{vT[2]}, v{vT[3]}, v{vT[2]}, vcc")
    a(f"v_mov_b32 v{vT[3]}, v{vT[2]}")
    for b in range(4):
        for j in range(2):
            for i in range(0, 4, 2): a(f"v_mov_b64 {vr(Vb[b][j]+i,2)}, {vr(vT[2],2)}")
    def setup2():
        for q in range(2):
            for i in range(0, 16, 2): a(f"v_mov_b64 {vr(O[q]+i,2)}, 0")
        a(f"v_and_b32 v{vT[0]}, 15, v{vL}")
        a(f"v_lshrrev_b32 v{vT[1]}, 4, v{vL}")
        a(f"s_and_b32 s{sT}, s{sW}, 3")
        a(f"s_lshl_b32 s{sT}, s{sT}, 4")
        a(f"s_lshl_b32 s{sT2}, s{sCc}, 6")
        a(f"s_add_u32 s{sT}, s{sT}, s{sT2}")
        a(f"v_add_u32 v{vT[2]}, s{sT}, v{vT[0]}")
        a(f"s_and_b32 s{sT}, s{sW}, 1")
        a(f"s_lshl_b32 s{sT}, s{sT}, 10")
        a(f"s_and_b32 s{sT2}, s{sW}, 2")
        a(f"s_lshl_b32 s{sT2}, s{sT2}, 4")
        a(f"s_add_u32 s{sT}, s{sT}, s{sT2}")
        a(f"s_add_u32 s{sT}, s{sT}, s{sCc}")
        a(f"v_lshl_add_u32 v{vT[0]}, v{vSt}, 6, s{sT}")
        a(f"v_lshlrev_b32 v{vWs}, 12, v{vT[0]}")
        a(f"v_lshl_add_u32 v{vWs}, v{vT[1]}, 4, v{vWs}")
        a(f"v_lshlrev_b32 v{vGt}, 3, v{vT[2]}")
        a(f"v_lshlrev_b32 v{vO}, 4, v{vT[2]}")
        a(f"v_lshl_add_u32 v{vO}, v{vT[1]}, 15, v{vO}")
        a(f"s_mul_i32 s{sT}, s{sKh}, {40*WL.PL}")
        a(f"v_add_u32 v{vO}, s{sT}, v{vO}")
        a(f"v_mul_u32_u24 v{vSt}, 1280, v{vT[0]}")
        a(f"v_lshl_add_u32 v{vSt}, v{vT[1]}, 3, v{vSt}")
        a(f"s_mul_i32 s{sT}, s{sEb8}, 160")
        a(f"v_add_u32 v{vSt}, s{sT}, v{vSt}")
        a(f"v_mul_u32_u24 v{vT[2]}, 205, v{vL}")
        a(f"v_lshrrev_b32 v{vT[2]}, 11, v{vT[2]}")
        a(f"v_mul_u32_u24 v{vWo}, {1280-160}, v{vT[2]}")
        a(f"v_lshl_add_u32 v{vWo}, v{vL}, 4, v{vWo}")
        a(f"v_add_u32 v{vWo}, s{sT}, v{vWo}")
        a(f"v_mul_u32_u24 v{vT[2]}, 187, v{vL}")
        a(f"v_lshrrev_b32 v{vT[2]}, 11, v{vT[2]}")
        a(f"v_mul_u32_u24 v{vT[3]}, 11, v{vT[2]}")
        a(f"v_sub_u32 v{vT[3]}, v{vL}, v{vT[3]}")
        a(f"v_mul_u32_u24 v{vGd}, {WL.GA}, v{vT[2]}")
        a(f"v_lshrrev_b32 v{vT[2]}, 1, v{vT[3]}")
        a(f"v_lshl_add_u32 v{vGd}, v{vT[2]}, 10, v{vGd}")
        a(f"v_and_b32 v{vT[3]}, 1, v{vT[3]}")
        a(f"v_lshl_add_u32 v{vGd}, v{vT[3]}, 4, v{vGd}")
        a(f"s_sub_u32 s{sT}, 7, s{sEb8}")
        a(f"s_sub_u32 s{sT2}, 32, s{sCc}")
        a(f"s_and_b32 s{sT2}, s{sT2}, 31")
        a(f"s_cmp_lt_u32 s{sEb8}, 4")
        a(f"s_cselect_b32 s{sT}, s{sEb8}, s{sT}")
        a(f"s_cselect_b32 s{sT2}, s{sCc}, s{sT2}")
        a(f"s_mul_i32 s{sT}, s{sT}, 5120")
        a(f"s_lshl_b32 s{sT2}, s{sT2}, 5")
        a(f"s_add_u32 s{sT}, s{sT}, s{sT2}")
        a(f"v_add_u32 v{vGd}, s{sT}, v{vGd}")
        srd(a, sWo, 18, 0, 640 * 1280)
        a(f"s_mul_i32 s{sT}, s{sW}, 3072")
        a(f"s_add_u32 s{sT}, s{sT}, {LDS_X}")
        a(f"v_lshl_add_u32 v{vX0}, v{vL}, 4, s{sT}")
        a(f"s_xor_b32 s{sT}, s{sW}, 4")
        a(f"s_mul_i32 s{sT}, s{sT}, 3072")
        a(f"s_add_u32 s{sT}, s{sT}, {LDS_X}")
        a(f"v_lshl_add_u32 v{vX1}, v{vL}, 4, s{sT}")
    if not s2late: setup2()
    def dma_params(pitch_g, pitch_l, steps_half, lbase):
        a(f"s_and_b32 s{sT}, s{sW}, 3")
        a(f"s_mul_i32 s{sT2}, s{sKh}, {8*steps_half}")
        a(f"s_add_u32 s{sM0}, s{sT}, s{sT2}")
        a(f"s_mul_i32 s{sM0}, s{sM0}, {4*pitch_l}")
        if lbase: a(f"s_add_u32 s{sM0}, s{sM0}, {lbase}")
        a(f"s_lshl_b32 s{sT}, s{sT}, 1")
        a(f"s_add_u32 s{sOWo}, s{sT}, s{sT2}")
        a(f"s_mul_i32 s{sOWo}, s{sOWo}, {4*pitch_g}")
        a(f"s_mov_b32 s{sStep}, {4*pitch_g}")
        a(f"s_mov_b32 s{sStep2}, {28*pitch_g}")
        a(f"s_mov_b32 s{sMs}, {16*pitch_l}")
    a(f"s_mul_i32 s{sT}, s{sHead}, 20")
    a(f"v_bfe_u32 v{vT[0]}, v{vL}, 4, 1")
    a(f"v_mul_u32_u24 v{vT[0]}, 19, v{vT[0]}")
    a(f"v_add_u32 v{vT[0]}, s{sT}, v{vT[0]}")
    a(f"v_lshrrev_b32 v{vT[0]}, 7, v{vT[0]}")
    a(f"v_lshrrev_b32 v{vT[1]}, 5, v{vL}")
    a(f"v_mul_u32_u24 v{vT[1]}, 5, v{vT[1]}")
    a(f"v_add3_u32 v{vT[1]}, v{vT[1]}, v{vT[0]}, 5")
    a(f"v_and_b32 v{vT[2]}, 15, v{vL}")
    a(f"v_lshl_add_u32 v{vT[1]}, v{vT[1]}, 4, v{vT[2]}")
    a(f"v_lshlrev_b32 v{vKF}, 7, v{vT[1]}")
    a(f"s_lshl_b32 s{sT}, s{sQb}, 1")
    a(f"v_and_b32 v{vT[2]}, 1, v{vL}")
    a(f"v_lshl_add_u32 v{vT[0]}, v{vT[0]}, 4, v{vT[2]}")
    a(f"v_add_u32 v{vT[0]}, s{sT}, v{vT[0]}")
    a(f"v_lshlrev_b32 v{vQF}, 7, v{vT[0]}")
    def signal(lab):
        a(f"v_mov_b32 v{vT[0]}, 1")
        a("s_waitcnt vmcnt(0)")
        a("s_mov_b64 exec, 1")
        a(f"ds_add_rtn_u32 v{vT[1]}, v{vCtl}, v{vT[0]} offset:4")
        a("s_mov_b64 exec, -1")
        a("s_waitcnt lgkmcnt(0)")
        a(f"v_readfirstlane_b32 s{sT}, v{vT[1]}")
        a("s_nop 1")
        a(f"s_cmp_lg_u32 s{sT}, 3")
        a(f"s_cbranch_scc1 {L(lab)}")
        put_flag(f"s{sAF}")
        st.stamp("aflag")
        a.label(L(lab))
    a(f"s_cmp_eq_u32 s{sAF}, 0")
    a(f"s_cbranch_scc1 {L('nsig')}")
    a(f"s_cmp_lg_u32 s{sDef}, 0")
    a(f"s_cbranch_scc1 {L('nsig')}")
    signal("nsig2")
    if pois == 3:
        lds_wait("wp", 4, 4)
        poison(sD, GFl)
        srd(a, sWo, 18, 0, 640 * 1280)
    a.label(L("nsig"))
    def aux_loads():
        if pois == 4 and not oflag:
            a(f"s_cmp_lg_u32 s{sKh}, 0")
            a(f"s_cbranch_scc1 {L('np4')}")
            poison(sD, GFl)
            a(f"s_mov_b32 s{sCnt}, 6")
            a.label(L("np4"))
        if gdefer == 1:
            a(f"s_cmp_eq_u32 s{sGF}, 0")
            a(f"s_cbranch_scc1 {L('gs2')}")
            g_stores(sD)
            a.label(L("gs2"))
        sel_srd(sD, sKh, 6, 8, 2048 * 4096)
        if not nows:
            a(f"buffer_load_dwordx4 {vr(WsF[0],4)}, v{vWs}, s[{sD}:{sD+3}], 0 offen")
            a(f"buffer_load_dwordx4 {vr(WsF[1],4)}, v{vWs}, s[{sD}:{sD+3}], 0 offen offset:64")
        srd(a, sWo, 18, 0, 0 if dzero else 640 * 1280)
        if wotouch:
            a(f"s_lshl_b32 s{sT}, s{sJ}, 3")
            a(f"s_add_u32 s{sT}, s{sT}, s{sW}")
            a(f"s_mul_i32 s{sT}, s{sT}, {25*128}")
            a(f"v_min_u32 v{vT[0]}, 24, v{vL}")
            a(f"v_lshlrev_b32 v{vT[0]}, 7, v{vT[0]}")
            a(f"buffer_load_dword v{vDum}, v{vT[0]}, s[{sWo}:{sWo+3}], s{sT} offen")
    a(f"s_cmp_eq_u32 s{sW}, 0")
    a(f"s_cbranch_scc1 {L('poll')}")
    if ldelay:
        a(f"ds_read_b32 v{vT[0]}, v{vCtl}")
        a("s_waitcnt lgkmcnt(0)")
        a(f"v_readfirstlane_b32 s{sT}, v{vT[0]}")
        a("s_nop 1")
        a(f"s_cmp_eq_u32 s{sT}, 1")
        a(f"s_cbranch_scc1 {L('go')}")
    lds_wait("wa", 0, 1, wsleep)
    if ldelay:
        a(f"s_cmp_eq_u32 s{sKh}, 0")
        a(f"s_cbranch_scc1 {L('go')}")
        a(f"s_sleep {ldelay}")
    a(f"s_branch {L('go')}")
    a.label(L("poll"))
    a(f"v_mov_b32 v{vT[1]}, v{vKF}")
    if prog:
        a(f"v_and_b32 v{vT[1]}, {hex(~(dmask << 7) & 0xffffffff)}, v{vT[1]}")
    a(f"s_mov_b32 s{sT2}, {WL.FA}")
    spin_begin("pa")
    a(f"buffer_load_dword v{vT[2]}, v{vT[1]}, s[{sFl}:{sFl+3}], s{sT2} offen sc1")
    a(f"buffer_load_dword v{vT[3]}, v{vQF}, s[{sFl}:{sFl+3}], s{sT2} offen sc1")
    a("s_waitcnt vmcnt(0)")
    for i in range(2): a(f"v_xor_b32 v{vT[2]+i}, s{sNonce}, v{vT[2]+i}")
    a(f"v_or_b32 v{vT[2]}, v{vT[2]}, v{vT[3]}")
    a(f"v_cmp_ne_u32 vcc, 0, v{vT[2]}")
    a("s_nop 1")
    a("s_cmp_eq_u64 vcc, 0")
    a(f"s_cbranch_scc1 {L('pad')}")
    spin_end("pa", psleep)
    a.label(L("pad"))
    a(f"v_mov_b32 v{vT[0]}, 1")
    a(f"ds_write_b32 v{vCtl}, v{vT[0]}")
    a.label(L("go"))
    st.stamp("ardy")
    PS = '' if pplain else ' sc1'
    a(f"buffer_load_dwordx4 {vr(K0m,4)}, v{vKm}, s[{sK}:{sK+3}], 0 offen{PS}")
    a(f"buffer_load_dwordx4 {vr(Qm[0],4)}, v{vKm}, s[{sQ}:{sQ+3}], s{sU0} offen{PS}")
    a(f"buffer_load_dwordx4 {vr(Qm[1],4)}, v{vKm}, s[{sQ}:{sQ+3}], s{sU0} offen offset:512{PS}")
    a(f"s_mov_b64 exec, s[{sLo}:{sLo+1}]")
    a(f"buffer_load_dwordx2 {vr(K0r,2)}, v{vKr}, s[{sK}:{sK+3}], 0 offen{PS}")
    a(f"buffer_load_dwordx2 {vr(Qr[0],2)}, v{vKr}, s[{sQ}:{sQ+3}], s{sU0} offen{PS}")
    a(f"buffer_load_dwordx2 {vr(Qr[1],2)}, v{vKr}, s[{sQ}:{sQ+3}], s{sU0} offen offset:512{PS}")
    a(f"buffer_load_dwordx2 {vr(Kr[0],2)}, v{vKr}, s[{sK}:{sK+3}], s{sOK} offen{PS}")
    a("s_mov_b64 exec, -1")
    a(f"buffer_load_dwordx4 {vr(Km[0],4)}, v{vKm}, s[{sK}:{sK+3}], s{sOK} offen{PS}")
    SC = ' sc1' if kvsc1 else ''
    def ex(m, inloop):
        if inloop and noexec: return
        a(f"s_mov_b64 exec, s[{m}:{m+1}]" if m is not None else "s_mov_b64 exec, -1")
    def ldKr(kb, koff): a(f"buffer_load_dwordx2 {vr(Kr[kb],2)}, v{vKr}, s[{sK}:{sK+3}], s{sOK} offen offset:{koff}{SC}")
    def ldKm(kb, koff): a(f"buffer_load_dwordx4 {vr(Km[kb],4)}, v{vKm}, s[{sK}:{sK+3}], s{sOK} offen offset:{koff}{SC}")
    def ldV(vb, j): a(f"buffer_load_dwordx4 {vr(Vb[vb][j],4)}, v{vV0+j}, s[{sV}:{sV+3}], s{sOV} offen{SC}")
    def group(kb, vb, koff, inloop=False):
        if inloop and noload: return
        ex(sLo, inloop); ldKr(kb, koff)
        ex(sVm, inloop); ldV(vb, 0); ldV(vb, 1)
        ex(None, inloop); ldKm(kb, koff)
        a(f"s_add_u32 s{sOV}, s{sOV}, {WL.VT}")
    group(1, 0, 512)
    if s2late: setup2()
    a("s_waitcnt vmcnt(6)")
    st.stamp("qld")
    for q in range(2):
        a(f"v_mfma_f32_32x32x16_bf16 {vr(S[q],16)}, {vr(K0m,4)}, {vr(Qm[q],4)}, 0")
    if glate: a("s_nop 7")
    else: group(2, 1, 1024)
    a("s_nop 1")
    for q in range(2):
        a(f"v_mfma_f32_32x32x8_bf16 {vr(S[q],16)}, {vr(K0r,2)}, {vr(Qr[q],2)}, {vr(S[q],16)}")
    if glate: a("s_nop 7")
    else: group(3, 2, 1536)
    a("s_nop 3")
    for q in range(2):
        a(f"v_max3_f32 v{S[q]}, v{S[q]}, v{S[q]+1}, v{S[q]+2}")
        for i in range(3, 9 if m8 else 15, 2):
            a(f"v_max3_f32 v{S[q]}, v{S[q]}, v{S[q]+i}, v{S[q]+i+1}")
        if not m8: a(f"v_max_f32 v{S[q]}, v{S[q]}, v{S[q]+15}")
    a(f"s_mov_b64 exec, s[{sHi}:{sHi+1}]")
    for q in range(2):
        a(f"v_cvt_pk_bf16_f32 v{Qr[q]}, -v{S[q]}, 0")
    a("s_mov_b64 exec, -1")
    for i in range(8, 16, 2): a(f"v_mov_b64 {vr(S[1]+i,2)}, 0")
    a("s_waitcnt vmcnt(%d)" % (4 if glate else 12))
    a(f"v_mfma_f32_32x32x16_bf16 {vr(S[0],16)}, {vr(Km[0],4)}, {vr(Qm[0],4)}, 0")
    a(f"s_add_u32 s{sT}, s{sHp}, {WL.OF}")
    srd(a, sQ, sWS, f"s{sT}", 5 * WL.PL)
    a("s_nop 3")
    a(f"v_mfma_f32_32x32x8_bf16 {vr(S[0],16)}, {vr(Kr[0],2)}, {vr(Qr[0],2)}, {vr(S[0],16)}")
    if glate:
        group(2, 1, 1024); group(3, 2, 1536)
    if gdefer == 2:
        a(f"s_cmp_eq_u32 s{sGF}, 0")
        a(f"s_cbranch_scc1 {L('gs2')}")
        g_stores(sD)
        a.label(L("gs2"))
    if defer:
        a(f"s_cmp_eq_u32 s{sDef}, 0")
        a(f"s_cbranch_scc1 {L('nd')}")
        srd(a, sD, sWS, WL.QF, WL.G - WL.QF)
        for bb in range(2):
            for aa in range(2): astore(sD, aa, bb)
        signal("nd")
    dma_params(1280, 160, 10, 0)
    if prog:
        a(f"s_and_b32 s{sT}, s{sW}, 3")
        a(f"s_cbranch_scc1 {L('np2')}")
        a(f"s_mov_b32 s{sT2}, {WL.FA}")
        a(f"buffer_load_dword v{vQF}, v{vKF}, s[{sFl}:{sFl+3}], s{sT2} offen sc1")
        a.label(L("np2"))
    a(f"s_mov_b32 s{sCnt}, 7")
    a("s_mov_b64 vcc, 0")
    a("s_setprio 3")
    st.stamp("lbeg")
    def exp(q, i): a(f"v_exp_f32 v{S[q]+i}, v{S[q]+i}")
    def pv(o, vb, sreg):
        a(f"v_smfmac_f32_32x32x32_bf16 {vr(o,16)}, {vr(vb,4)}, {vr(sreg,8)}, v{vIdx}")
    def slot(kt, q):
        nq = 1 - q
        nk = (kt + q) % 4
        pk = (kt + q - 1) % 4
        def mem():
            if q == 0:
                group(kt, (kt - 1) % 4, 512 * (kt + 4), True)
                if kt == 0:
                    a(f"s_cmp_eq_u32 s{sCnt}, 0")
                    a(f"s_cselect_b32 s{sV+2}, 0, s{sV+2}")
            else:
                a(f"s_cbranch_vccz {L('nd%d' % kt)}")
                a(f"s_mov_b64 exec, s[{sDm}:{sDm+1}]")
                a(f"s_mov_b32 m0, s{sM0}")
                a(f"s_add_u32 s{sM0}, s{sM0}, s{sMs}")
                a(f"buffer_load_dwordx4 v{vWo}, s[{sWo}:{sWo+3}], s{sOWo} offen lds")
                a(f"s_add_u32 s{sOWo}, s{sOWo}, s{sStep2 if kt % 2 else sStep}")
                a("s_mov_b64 exec, -1")
                a.label(L("nd%d" % kt))
        exp(q, 0); exp(q, 1)
        pv(O[nq], Vb[pk][1], S[nq] + 8)
        for i in range(2, 5): exp(q, i)
        a(f"v_mfma_f32_32x32x16_bf16 {vr(S[nq],16)}, {vr(Km[nk],4)}, {vr(Qm[nq],4)}, 0")
        for i in range(5, 8): exp(q, i)
        a(f"v_mfma_f32_32x32x8_bf16 {vr(S[nq],16)}, {vr(Kr[nk],2)}, {vr(Qr[nq],2)}, {vr(S[nq],16)}")
        if lpos == 2: mem()
        for i in range(8, 12): exp(q, i)
        if q == 0 and not nowait: a("s_waitcnt vmcnt(%d)" % (12 if lpos == 2 else 8))
        pv(O[q], Vb[kt][0], S[q])
        if lpos == 3: mem()
        for i in range(12, 16): exp(q, i)
    def gfl_loads():
        a(f"v_mul_u32_u24 v{vT[0]}, 48, v{vL}")
        a(f"buffer_load_dwordx4 {vr(GFl,4)}, v{vT[0]}, s[{sFl}:{sFl+3}], 0 offen offset:{WL.FG} sc1")
        a(f"buffer_load_dwordx4 {vr(GFl+4,4)}, v{vT[0]}, s[{sFl}:{sFl+3}], 0 offen offset:{WL.FG+16} sc1")
        a(f"buffer_load_dwordx2 {vr(GFl+8,2)}, v{vT[0]}, s[{sFl}:{sFl+3}], 0 offen offset:{WL.FG+32} sc1")
        a(f"s_lshr_b32 s{sT}, s{sCc}, 1")
        a(f"s_lshr_b32 s{sT2}, s{sU0}, 11")
        a(f"v_mov_b32 v{vT[0]}, s{sT}")
        a(f"s_mov_b64 exec, s[{sHi}:{sHi+1}]")
        a(f"v_mov_b32 v{vT[0]}, s{sT2}")
        a("s_mov_b64 exec, -1")
        a(f"v_lshlrev_b32 v{vT[0]}, 7, v{vT[0]}")
        a(f"s_mov_b32 s{sT}, {WL.FA + 240*128}")
        a(f"buffer_load_dword v{GFl+10}, v{vT[0]}, s[{sFl}:{sFl+3}], s{sT} offen sc1")
        a(f"s_lshl_b32 s{sT}, s{sCc}, 1")
        a(f"s_add_u32 s{sT}, s{sT}, s{sKh}")
        a(f"s_lshl_b32 s{sT}, s{sT}, 6")
        a(f"s_add_u32 s{sT}, s{sT}, {WL.FO}")
        a(f"v_and_b32 v{vT[0]}, 15, v{vL}")
        a(f"v_lshlrev_b32 v{vT[0]}, 2, v{vT[0]}")
        if oflag: a(f"v_mov_b32 v{GFl+11}, s{sNonce}")
        else: a(f"buffer_load_dword v{GFl+11}, v{vT[0]}, s[{sFl}:{sFl+3}], s{sT} offen sc1")
    a("s_nop 9")
    a(f"s_branch {L('loop')}")
    a.label(L("head"))
    for lvl, c in zip((2, 1, 0), prio):
        a(f"s_cmp_lg_u32 s{sCnt}, {c-1}")
        a(f"s_cbranch_scc1 {L('hp%d' % lvl)}")
        a(f"s_setprio {lvl}")
        a.label(L("hp%d" % lvl))
    for c in (4, 2, 1, 0):
        a(f"s_cmp_eq_u32 s{sCnt}, {c}")
        a(f"s_cbranch_scc1 {L('h%d' % c)}")
    a(f"s_cmp_lg_u32 s{sCnt}, 6")
    a(f"s_cbranch_scc1 {L('loop')}")
    if prog:
        a(f"s_and_b32 s{sT}, s{sW}, 3")
        a(f"s_cbranch_scc1 {L('p2w')}")
        a(f"s_mov_b32 s{sT2}, {WL.FA}")
        spin_begin("p2")
        a(f"v_cmp_ne_u32 vcc, s{sNonce}, v{vQF}")
        a("s_nop 1")
        a("s_cmp_eq_u64 vcc, 0")
        a(f"s_cbranch_scc1 {L('p2d')}")
        a(f"buffer_load_dword v{vQF}, v{vKF}, s[{sFl}:{sFl+3}], s{sT2} offen sc1")
        a("s_waitcnt vmcnt(0)")
        spin_end("p2", 4)
        a.label(L("p2d"))
        a(f"v_mov_b32 v{vT[0]}, 1")
        a(f"ds_write_b32 v{vCtl}, v{vT[0]} offset:24")
        a.label(L("p2w"))
        lds_wait("wb", 24, 1)
    if not noaux: aux_loads()
    lds_wait("wr", 8, 8)
    a("s_mov_b64 vcc, %d" % (0 if nodma else -1))
    a(f"s_branch {L('loop')}")
    a.label(L("h4"))
    a(f"s_cmp_lg_u32 s{sKh}, {2 if oflag else 0}")
    a(f"s_cbranch_scc1 {L('h4b')}")
    a(f"s_lshr_b32 s{sGF}, s{sU0}, 5")
    a(f"s_add_u32 s{sGF}, s{sGF}, s{sHead}")
    a(f"s_lshl_b32 s{sGF}, s{sGF}, 2")
    a(f"s_add_u32 s{sGF}, s{sGF}, {WL.FO}")
    a.label(L("h4b"))
    a(f"s_cmp_eq_u32 s{sGF}, 0")
    a(f"s_cbranch_scc1 {L('loop')}")
    if strict: a("s_waitcnt vmcnt(0)")
    put_flag(f"s{sGF}")
    a(f"s_branch {L('loop')}")
    a.label(L("h2"))
    a(f"s_lshl_b32 s{sT}, s2, 3")
    a(f"s_add_u32 s{sT}, s{sT}, s{sW}")
    a(f"s_cmp_lg_u32 s{sT}, 4")
    a(f"s_cbranch_scc1 {L('ed')}")
    a(f"v_lshlrev_b32 v{vT[0]}, 9, v{vL}")
    a(f"s_mov_b32 s{sT2}, {WL.FA}")
    spin_begin("pe")
    for i in range(4): a(f"buffer_load_dword v{vT[2]+i}, v{vT[0]}, s[{sFl}:{sFl+3}], s{sT2} offen offset:{128*i} sc1")
    a("s_waitcnt vmcnt(0)")
    for i in range(4): a(f"v_xor_b32 v{vT[2]+i}, s{sNonce}, v{vT[2]+i}")
    a(f"v_or3_b32 v{vT[2]}, v{vT[2]}, v{vT[3]}, v{vT[4]}")
    a(f"v_or_b32 v{vT[2]}, v{vT[2]}, v{vT[5]}")
    a(f"v_cmp_ne_u32 vcc, 0, v{vT[2]}")
    a("s_nop 1")
    a("s_cmp_eq_u64 vcc, 0")
    a(f"s_cbranch_scc1 {L('ped')}")
    spin_end("pe")
    a.label(L("ped"))
    if rprobe:
        a(f"v_lshlrev_b32 v{vT[0]}, 2, v{vL}")
        a(f"buffer_load_dword v{vT[2]}, v{vT[0]}, s[64:67], 0 offen sc1")
        a("s_waitcnt vmcnt(0)")
        a(f"v_cmp_ne_u32 vcc, 0, v{vT[2]}")
        a("s_nop 1")
        a("s_bcnt1_i32_b64 s68, vcc")
        a("s_cmp_lt_u32 s68, 2")
        a("s_cbranch_scc1 L_rp1")
        for _ in range(16): a("s_sleep 127")
        a.label("L_rp1")
    put_flag("0")
    a("s_mov_b64 vcc, %d" % (0 if nodma else -1))
    a.label(L("ed"))
    gfl_loads()
    a(f"s_branch {L('loop')}")
    a.label(L("h1"))
    spin_begin("pg")
    for i in range(12): a(f"v_xor_b32 v{GFl+i}, s{sNonce}, v{GFl+i}")
    for i in range(1, 11, 2): a(f"v_or3_b32 v{GFl}, v{GFl}, v{GFl+i}, v{GFl+i+1}")
    a(f"v_or_b32 v{GFl}, v{GFl}, v{GFl+11}")
    a(f"v_cmp_ne_u32 vcc, 0, v{GFl}")
    a("s_nop 1")
    a("s_cmp_eq_u64 vcc, 0")
    a(f"s_cbranch_scc1 {L('pgd')}")
    a("s_sleep 8")
    gfl_loads()
    a("s_waitcnt vmcnt(0)")
    spin_end("pg")
    a.label(L("pgd"))
    a("s_mov_b64 vcc, %d" % (0 if nodma else -1))
    srd(a, sWo, sWS, WL.GATE, 2048 * 8)
    a(f"buffer_load_dword v{vG}, v{vGt}, s[{sWo}:{sWo+3}], 0 offen sc1")
    a(f"v_bfe_u32 v{vT[0]}, v{vKr}, 4, 5")
    a(f"v_lshlrev_b32 v{vT[0]}, 3, v{vT[0]}")
    a(f"s_lshl_b32 s{sT}, s{sKh}, 9")
    a(f"s_add_u32 s{sT}, s{sU0}, s{sT}")
    a(f"s_lshr_b32 s{sT}, s{sT}, 1")
    a(f"buffer_load_dword v{vG+1}, v{vT[0]}, s[{sWo}:{sWo+3}], s{sT} offen offset:4 sc1")
    srd(a, sWo, sWS, WL.G, 0 if dzero else WL.G_SIZE)
    a(f"v_mov_b32 v{vWo}, v{vGd}")
    a(f"s_mov_b32 s{sDm+1}, 0xfff")
    dma_params(WL.GA, 176, 2, GIMG)
    a(f"s_branch {L('loop')}")
    a.label(L("h0"))
    a(f"s_mov_b32 s{sK+2}, 0")
    a("s_mov_b64 vcc, 0")
    vR = vGd; vR2 = vWs
    a(f"v_lshrrev_b32 v{vT[2]}, 2, v{vL}")
    a(f"v_and_b32 v{vT[1]}, 3, v{vL}")
    a(f"v_mul_u32_u24 v{vR}, 160, v{vT[2]}")
    a(f"v_lshl_add_u32 v{vR}, v{vT[1]}, 3, v{vR}")
    a(f"s_mul_i32 s{sT}, s{sKh}, {10*5120}")
    a(f"v_add_u32 v{vR}, s{sT}, v{vR}")
    a(f"s_cmp_lt_u32 s{sEb8}, 4")
    a(f"s_cselect_b32 s{sT}, 0, 3")
    a(f"v_xor_b32 v{vT[1]}, s{sT}, v{vT[1]}")
    a(f"v_mul_u32_u24 v{vR2}, 176, v{vT[2]}")
    a(f"v_lshl_add_u32 v{vR2}, v{vT[1]}, 3, v{vR2}")
    a(f"s_mul_i32 s{sT}, s{sKh}, {2*GSTEP}")
    a(f"s_add_u32 s{sT}, s{sT}, {GIMG}")
    a(f"v_add_u32 v{vR2}, s{sT}, v{vR2}")
    def rd(dst, base, off, pitch=160):
        for t in range(5):
            a(f"ds_read_b64_tr_b16 {vr(dst[t],2)}, v{base} offset:{off + 32*t}")
            a(f"ds_read_b64_tr_b16 {vr(dst[t]+2,2)}, v{base} offset:{off + 32*t + 16*pitch}")
    AY = AC
    AF = [[Km[0] + 20 * k + 4 * t for t in range(5)] for k in range(4)] + [[O[0] + 4 * t for t in range(5)]]
    def ycomp(FA, FB, done):
        def ymf(off):
            rd(FA, vR2, off, 176); rd(FB, vR2, GSTEP + off, 176)
            for s_, F in enumerate((FA, FB)):
                a(f"s_waitcnt lgkmcnt({10 - 10*s_})")
                for t in range(5):
                    c = "0" if s_ == 0 else vr(AY[t], 4)
                    a(f"v_mfma_f32_16x16x32_bf16 {vr(AY[t],4)}, {vr(F[t],4)}, {vr(WsF[s_],4)}, {c}")
            a("s_nop 7")
        a(f"s_cmp_lt_u32 s{sEb8}, 4")
        a(f"s_cbranch_scc0 {L('ymir')}")
        ymf(0)
        for t in range(5):
            for i in range(4): a(f"v_mul_f32 v{AY[t]+i}, v{AY[t]+i}, v{vG}")
        a(f"s_branch {L(done)}")
        a.label(L("ymir"))
        a(f"s_lshl_b32 s{sT}, s{sKh}, 31")
        a(f"v_xor_b32 v{vG}, s{sT}, v{vG}")
        ymf(8)
        for t in range(5): a(f"v_mul_f32 v{GFl+t}, v{AY[4-t]}, v{vG}")
        ymf(0)
        for t in range(5):
            for i in range(1, 4): a(f"v_mul_f32 v{FA[t]+i}, v{AY[4-t]+4-i}, v{vG}")
        for t in range(5):
            a(f"v_mov_b32 v{AY[t]}, v{GFl+t}")
            for i in range(1, 4): a(f"v_mov_b32 v{AY[t]+i}, v{FA[t]+i}")
    if not ypost:
        a(f"s_lshl_b32 s{sT}, s{sKh}, 2")
        a(f"v_add_u32 v{vCtl}, s{sT}, v{vCtl}")
        a("s_waitcnt vmcnt(0)")
        lds_inc(24)
        lds_wait("wi", 24, 4)
        ycomp(OFr[0:5], OFr[5:10], "loop")
    a.raw(".p2align 6")
    a.label(L("loop"))
    for kt in range(4):
        for q in range(2): slot(kt, q)
    a(f"s_add_u32 s{sOK}, s{sOK}, 2048")
    evm = 0
    for c in [6, 4, 2, 1, 0] + [p - 1 for p in prio if p > 0]: evm |= 1 << c
    a(f"s_sub_u32 s{sCnt}, s{sCnt}, 1")
    a(f"s_bitcmp1_b32 {hex(~evm & 0xff)}, s{sCnt}")
    a(f"s_cbranch_scc1 {L('loop')}")
    a(f"s_cmp_ge_i32 s{sCnt}, 0")
    a(f"s_cbranch_scc1 {L('head')}")
    pv(O[1], Vb[3][1], S[1] + 8)
    a("s_setprio 3")
    st.stamp("lend")
    srd(a, sD, sWS, WL.OF, 80 * WL.PL)
    def ldO(s_):
        a(f"s_mov_b32 s{sT}, {4*WL.PL*s_}")
        a(f"buffer_load_dwordx4 {vr(OFr[s_],4)}, v{vO}, s[{sD}:{sD+3}], s{sT} offen sc1")
    a(f"s_lshl_b32 s{sT}, s{sKh}, 9")
    a(f"s_add_u32 s{sOK}, s{sU0}, s{sT}")
    a("s_nop 1")
    a(f"s_cmp_eq_u32 s{sKh}, 0")
    a(f"s_cbranch_scc1 {L('x0')}")
    for r in range(3): a(f"ds_write_b128 v{vX0}, {vr(O[0]+4*r,4)} offset:{1024*r}")
    a("s_waitcnt lgkmcnt(0)")
    for i in range(12): a(f"v_mov_b32 v{O[0]+i}, v{O[1]+i}")
    for i in range(4): a(f"v_mov_b32 v{Qm[0]+i}, v{Qm[1]+i}")
    for i in range(2): a(f"v_mov_b32 v{Qr[0]+i}, v{Qr[1]+i}")
    a(f"s_branch {L('x1')}")
    a.label(L("x0"))
    for r in range(3): a(f"ds_write_b128 v{vX0}, {vr(O[1]+4*r,4)} offset:{1024*r}")
    a.label(L("x1"))
    a("s_waitcnt vmcnt(0) lgkmcnt(0)")
    assert Km[0] + 80 <= O[0] and O[0] + 20 <= K0m
    EX = GFl
    if oearly:
        for s_ in range(10): ldO(s_)
    a("s_barrier")
    st.stamp("x1")
    for r in range(3): a(f"ds_read_b128 {vr(EX+4*r,4)}, v{vX1} offset:{1024*r}")
    a("s_waitcnt vmcnt(%d)" % (10 if oearly else 0))
    rd(AF[0], vR, 0)
    a("s_waitcnt lgkmcnt(%d)" % (0 if (stamps and "x1" in snames) else 10))
    for i in range(12): a(f"v_add_f32 v{O[0]+i}, v{O[0]+i}, v{EX+i}")
    def bcast_l():
        a(f"v_mov_b32 v{O[0]+12}, v{O[0]+8}")
        a(f"v_mov_b32 v{O[0]+13}, v{O[0]+8}")
        a("s_nop 1")
        a(f"v_permlane32_swap_b32 v{O[0]+13}, v{O[0]+12}")
        a("s_nop 1")
    bcast_l()
    a(f"v_mul_f32 v{vM}, 0, v{O[0]}")
    for i in range(1, 12): a(f"v_fmac_f32 v{vM}, 0, v{O[0]+i}")
    a(f"v_add_f32 v{vM}, v{vM}, v{O[0]+12}")
    a(f"v_cmp_nge_f32 vcc, 0x71800000, v{vM}")
    a(f"s_mov_b32 s{sT}, 0x21800000")
    a(f"v_cmp_gt_f32 s[{sT2+1}:{sT2+2}], s{sT}, v{vM}")
    a("s_nop 1")
    a(f"s_or_b64 vcc, vcc, s[{sT2+1}:{sT2+2}]")
    a(f"s_cbranch_scc1 {L('slow')}")
    a.label(L("fin"))
    a(f"v_rcp_f32 v{vM}, v{O[0]+12}")
    a("s_nop 0")
    a(f"v_mul_f32 v{vM}, v{vM}, v{vG+1}")
    for i in range(12): a(f"v_mul_f32 v{O[0]+i}, v{O[0]+i}, v{vM}")
    PO = K0m
    assert K0r == K0m + 4
    for i in range(6): a(f"v_cvt_pk_bf16_f32 v{PO+i}, v{O[0]+2*i}, v{O[0]+2*i+1}")
    for i in range(6): a(f"v_min_u32 v{PO+i}, -2, v{PO+i}")
    a(f"buffer_store_dwordx4 {vr(PO,4)}, v{vKm}, s[{sQ}:{sQ+3}], s{sOK} offen sc1")
    a(f"s_mov_b64 exec, s[{sLo}:{sLo+1}]")
    a(f"buffer_store_dwordx2 {vr(PO+4,2)}, v{vKr}, s[{sQ}:{sQ+3}], s{sOK} offen sc1")
    a("s_mov_b64 exec, -1")
    st.stamp("ost")
    if stamps and "ost" in snames: a("s_waitcnt lgkmcnt(0)")

    if not oearly:
        if obar: a("s_barrier")
        lo, hi = min(nfirst), max(nfirst)
        for s_ in range(lo): ldO(s_)
        if hi > lo:
            a(f"s_cmp_eq_u32 s{sKh}, 0")
            a(f"s_cbranch_scc1 {L('nf1')}")
            for s_ in range(lo, hi): ldO(s_)
            a.label(L("nf1"))
    def o_flag():
        a(f"s_lshr_b32 s{sT2}, s{sU0}, 9")
        a(f"s_add_u32 s{sT2}, s{sT2}, s{sKh}")
        a(f"s_lshl_b32 s{sT2}, s{sT2}, 5")
        a(f"s_add_u32 s{sT2}, s{sT2}, s{sHead}")
        a(f"s_lshl_b32 s{sT2}, s{sT2}, 7")
        a(f"s_add_u32 s{sT2}, s{sT2}, {WL.FO}")
        a("s_waitcnt vmcnt(0)")
        put_flag(f"s{sT2}")
    if oflag == 1:
        rd(AF[1], vR, 5120)
        o_flag()
    if ypost:
        ycomp(AF[2], AF[3], "ydone")
        a.label(L("ydone"))
    if oflag == 2: o_flag()
    if not oearly:
        if hi > lo:
            a(f"s_cmp_lg_u32 s{sKh}, 0")
            a(f"s_cbranch_scc1 {L('nf2')}")
            for s_ in range(lo, hi): ldO(s_)
            a.label(L("nf2"))
        if afirst:
            for k in range(2 if oflag == 1 else 1, 4): rd(AF[k], vR, 5120 * k)
        if odelay: a(f"s_sleep {odelay}")
        if oflag:
            a(f"s_lshl_b32 s{sT}, s{sCc}, 1")
            a(f"s_bfe_u32 s{sT2}, s{sW}, 0x10001")
            a(f"s_add_u32 s{sT}, s{sT}, s{sT2}")
            a(f"s_lshl_b32 s{sT}, s{sT}, 1")
            a(f"s_add_u32 s{sT}, s{sT}, s{sKh}")
            a(f"s_lshl_b32 s{sT2}, s{sT}, 11")
            a(f"s_add_u32 s{sT2}, s{sT2}, {WL.FO}")
            a(f"v_and_b32 v{vT[0]}, 15, v{vL}")
            a(f"v_lshlrev_b32 v{vT[0]}, 7, v{vT[0]}")
            spin_begin("po")
            a(f"buffer_load_dword v{vT[2]}, v{vT[0]}, s[{sFl}:{sFl+3}], s{sT2} offen sc1")
            a("s_waitcnt vmcnt(0)")
            a(f"v_cmp_ne_u32 vcc, s{sNonce}, v{vT[2]}")
            a("s_nop 1")
            a("s_cmp_eq_u64 vcc, 0")
            a(f"s_cbranch_scc1 {L('pod')}")
            spin_end("po", 2)
            a.label(L("pod"))
        for s_ in range(hi, oahead): ldO(s_)
    AB = AF[0]
    if not afirst:
        for k in range(1, 4): rd(AF[k], vR, 5120 * k)
    srd(a, sC, 22, 0, 2048 * 1280)
    a(f"s_mov_b32 s59, {SPIN}")
    st.stamp("pbeg")
    if stamps and "pbeg" in snames: a("s_waitcnt lgkmcnt(0)")
    def chk(s_):
        o = OFr[s_]
        a(f"v_max3_u32 v{vT[0]}, v{o}, v{o+1}, v{o+2}")
        a(f"v_max_u32 v{vT[0]}, v{vT[0]}, v{o+3}")
        a(f"v_cmp_eq_u32 vcc, -1, v{vT[0]}")
        a("s_nop 1")
        a("s_cmp_eq_u64 vcc, 0")
    nst = 2 if oearly else 0
    for s_ in range(10):
        a.label(L("st%d" % s_))
        a(f"s_waitcnt vmcnt({min(9 - s_, oahead - 1) + nst})")
        if not oflag:
            chk(s_)
            a(f"s_cbranch_scc1 {L('ok%d' % s_)}")
        if oflag: pass
        elif rmode == 1:
            a.label(L("sp%d" % s_))
            a(f"s_sleep {rsleep}")
            ldO(s_)
            a("s_waitcnt vmcnt(0)")
            a("s_sub_u32 s59, s59, 1")
            a("s_cmp_lt_i32 s59, 0")
            a(f"s_cbranch_scc1 {L('ok%d' % s_)}")
            chk(s_)
            a(f"s_cbranch_scc0 {L('sp%d' % s_)}")
            if s_ < 9: a(f"s_call_b64 s[{sE}:{sE+1}], {L('retry')}")
        else:
            a(f"s_call_b64 s[{sE}:{sE+1}], {L('retry')}")
            a(f"s_cbranch_scc1 {L('st%d' % s_)}")
        a.label(L("ok%d" % s_))
        if s_ + oahead < 10: ldO(s_ + oahead)
        st.stamp("s%d" % s_)
        if stamps and ("s%d" % s_) in snames: a("s_waitcnt lgkmcnt(0)")
        a("s_waitcnt lgkmcnt(%d)" % (0 if s_ == 9 else (15 if s_ < 8 else 10)))
        for t in range(5):
            a(f"v_mfma_f32_16x16x32_bf16 {vr(AY[t],4)}, {vr(AF[s_ % 5][t],4)}, {vr(OFr[s_],4)}, {vr(AY[t],4)}")
        if s_ + 4 < 10: rd(AF[(s_ + 4) % 5], vR, 5120 * (s_ + 4))
    st.stamp("dmf")
    if dpair:
        a(f"s_lshl_b32 s{sT}, s{sW}, 2")
        a(f"v_add_u32 v{vT[4]}, s{sT}, v{vCtl}")
        a(f"v_mov_b32 v{vT[5]}, 1")
        a(f"v_xor_b32 v{vCtl}, 16, v{vT[4]}")
        a("s_nop 1")
    else:
        a("s_nop 7")
    if probe:
        a("s_memrealtime s[72:73]")
        a("s_waitcnt lgkmcnt(0)")
        a("s_sub_u32 s72, s72, s70")
        a(f"s_cmp_lt_u32 s72, {probe}")
        a(f"s_cbranch_scc1 {L('prb')}")
        a(f"buffer_load_dword v{vT[0]}, off, s[64:67], 0 sc1")
        a("s_waitcnt vmcnt(0)")
        a(f"v_readfirstlane_b32 s72, v{vT[0]}")
        a("s_nop 1")
        a("s_cmp_lg_u32 s72, 0")
        a(f"s_cbranch_scc1 {L('prb')}")
        for t in range(5): a(f"v_mov_b32 v{AY[t]}, 0x7fc00000")
        a.label(L("prb"))
    def dfin(keep, send):
        for r, t in enumerate(send): a(f"ds_write_b128 v{vX1}, {vr(AY[t],4)} offset:{1024*r}")
        a("s_waitcnt lgkmcnt(0)")
        if dpair:
            a(f"ds_write_b32 v{vT[4]}, v{vT[5]} offset:32")
            lds_wait("wd%d" % keep[0], 32, 1, 0)
        else:
            a("s_barrier")
        for r, t in enumerate(keep): a(f"ds_read_b128 {vr(AB[t],4)}, v{vX0} offset:{1024*r}")
        for r, t in enumerate(keep):
            a(f"s_waitcnt lgkmcnt({len(keep)-1-r})")
            for i in range(4): a(f"v_add_f32 v{AY[t]+i}, v{AY[t]+i}, v{AB[t]+i}")
            a(f"v_cvt_pk_bf16_f32 v{AY[t]}, v{AY[t]}, v{AY[t]+1}")
            a(f"v_cvt_pk_bf16_f32 v{AY[t]+1}, v{AY[t]+2}, v{AY[t]+3}")
            a(f"buffer_store_dwordx2 {vr(AY[t],2)}, v{vSt}, s[{sC}:{sC+3}], 0 offen offset:{32*t} {osc}")
    a(f"s_cmp_eq_u32 s{sKh}, 0")
    a(f"s_cbranch_scc1 {L('d0')}")
    dfin([3, 4], [0, 1, 2])
    a(f"s_branch {L('dend')}")
    a.label(L("d0"))
    dfin([0, 1, 2], [3, 4])
    a.label(L("dend"))
    st.finish(9)
    a.label(L("end"))
    a("s_endpgm")

    a.label(L("retry"))
    a("s_waitcnt vmcnt(0)")
    if rsleep and rmode == 0: a(f"s_sleep {rsleep}")
    for s_ in range(10):
        chk(s_)
        a(f"s_cbranch_scc1 {L('rt%d' % s_)}")
        ldO(s_)
        a.label(L("rt%d" % s_))
    a("s_waitcnt vmcnt(0)")
    a("s_sub_u32 s59, s59, 1")
    a("s_cmp_gt_i32 s59, 0")
    a(f"s_setpc_b64 s[{sE}:{sE+1}]")
    a.label(L("slow"))
    sSK = sT2 + 1; sSV = sT2 + 2
    a("s_waitcnt vmcnt(0) lgkmcnt(0)")
    assert AF[0][4] + 4 <= Vb[0][0]
    a(f"v_mov_b32 v{Kr[0]}, 0x3f803f80")
    a(f"v_mov_b32 v{Kr[0]+1}, 0x3f80")
    a(f"s_mov_b32 s{sK+2}, {5*WL.PL}")
    a(f"s_mov_b32 s{sV+2}, {64*WL.VT}")
    a(f"s_mov_b64 exec, s[{sHi}:{sHi+1}]")
    a(f"v_mov_b32 v{Qr[0]}, 0")
    a(f"v_mov_b32 v{Qr[0]+1}, 0")
    a("s_mov_b64 exec, -1")
    a(f"v_mov_b32 v{vM}, 0xff800000")
    a(f"s_mov_b32 s{sSK}, 0")
    def qk_slow():
        a(f"s_mov_b64 exec, s[{sLo}:{sLo+1}]")
        a(f"buffer_load_dwordx2 {vr(Kr[0],2)}, v{vKr}, s[{sK}:{sK+3}], s{sSK} offen sc1")
        a("s_mov_b64 exec, -1")
        a(f"buffer_load_dwordx4 {vr(Km[0],4)}, v{vKm}, s[{sK}:{sK+3}], s{sSK} offen sc1")
        a("s_waitcnt vmcnt(0)")
        a(f"v_mfma_f32_32x32x16_bf16 {vr(S[0],16)}, {vr(Km[0],4)}, {vr(Qm[0],4)}, 0")
        a("s_nop 11")
        a(f"v_mfma_f32_32x32x8_bf16 {vr(S[0],16)}, {vr(Kr[0],2)}, {vr(Qr[0],2)}, {vr(S[0],16)}")
        a("s_nop 12")
    a.label(L("s1"))
    qk_slow()
    for i in range(0, 16, 2):
        a(f"v_max3_f32 v{vM}, v{vM}, v{S[0]+i}, v{S[0]+i+1}")
    a(f"s_add_u32 s{sSK}, s{sSK}, 512")
    a(f"s_cmp_lt_u32 s{sSK}, {WL.PL}")
    a(f"s_cbranch_scc1 {L('s1')}")
    a(f"v_mov_b32 v{vT[0]}, v{vM}")
    a("s_nop 1")
    a(f"v_permlane32_swap_b32 v{vT[0]}, v{vM}")
    a("s_nop 1")
    a(f"v_max_f32 v{vM}, v{vM}, v{vT[0]}")
    a(f"v_cvt_pk_bf16_f32 v{S[0]}, 0, -v{vM}")
    a(f"v_sub_f32 v{vT[0]}, 0, v{vM}")
    a(f"v_sub_f32 v{vT[0]}, v{vT[0]}, v{S[0]}")
    a(f"v_cvt_pk_bf16_f32 v{S[0]+1}, 0, v{vT[0]}")
    a(f"v_sub_f32 v{vT[1]}, v{vT[0]}, v{S[0]+1}")
    a(f"s_mov_b64 exec, s[{sHi}:{sHi+1}]")
    a(f"v_cvt_pk_bf16_f32 v{Qr[0]}, v{S[0]}, v{S[0]+1}")
    a(f"v_cvt_pk_bf16_f32 v{Qr[0]+1}, v{vT[1]}, 0")
    a("s_mov_b64 exec, -1")
    for i in range(16): a(f"v_mov_b32 v{O[0]+i}, 0")
    a(f"s_mov_b32 s{sSK}, 0")
    a(f"s_mov_b32 s{sSV}, 0")
    a.label(L("s2"))
    a(f"s_mov_b64 exec, s[{sVm}:{sVm+1}]")
    a(f"buffer_load_dwordx4 {vr(Vb[0][0],4)}, v{vV0}, s[{sV}:{sV+3}], s{sSV} offen sc1")
    a(f"buffer_load_dwordx4 {vr(Vb[0][1],4)}, v{vV1}, s[{sV}:{sV+3}], s{sSV} offen sc1")
    qk_slow()
    for i in range(16): exp(0, i)
    a("s_nop 1")
    pv(O[0], Vb[0][0], S[0])
    pv(O[0], Vb[0][1], S[0] + 8)
    a(f"s_add_u32 s{sSK}, s{sSK}, 512")
    a(f"s_add_u32 s{sSV}, s{sSV}, {WL.VT}")
    a(f"s_cmp_lt_u32 s{sSK}, {WL.PL}")
    a(f"s_cbranch_scc1 {L('s2')}")
    a("s_nop 12")
    rd(AF[0], vR, 0)
    bcast_l()
    a(f"s_branch {L('fin')}")
    a.label(L("cend"))
    return a.text(), kernel_desc(name, 256, 102), f"; @launch grid=(256,1,1) block=(512,1,1) lds={LDS_SIZE}"

if __name__ == "__main__":
    import sys
    from gen import build
    path = sys.argv[1]
    sn = [x[3:].split(',') for x in sys.argv if x.startswith('sn=')]
    kw = {x.split('=')[0]: eval(x.split('=')[1]) for x in sys.argv[2:] if not x.startswith('sn=')}
    hd = kw.pop('hdbg', False)
    build(path, [gen(stamps=(2 if hd else bool(sn)), snames=sn[0] if sn else (), **kw)])
```

```python
from asm import *

QSCALE = 0x3ea52b5c
NAME = "gated_mix__spectral_fnet__softmax_full_mha__prompt_kernel"
LDS_X = 131072
LDS_CTL = LDS_X + 24576
LDS_SIZE = LDS_CTL + 64
GSTEP = 32 * 176
GIMG = 20 * 5120
SPIN = 200000
STAGE = [0, 0x8000, 0x18000, 0x10000]

def gen(name=NAME, stamps=False, snames=(), rotx=(0, 2, 5, 7, 5, 7, 0, 2), rin=(5, 5), touch=False, tpos=5, gtouch=True, fsplit=5,
        prio=(4, 2, 1), psleep=4, wotouch=False, probe=None, fwait=True, nodma=False, kvsc1=False, noload=False, nowait=False, noexec=False, spread=False, rt=True, fstart=6, rprobe=False, enc=None, encw=0, oearly=False, rsleep=2, rmode=0, ypost=True, obar=False, nfirst=(0, 0), afirst=True, odelay=0, gdefer=0, pois=4, osc='', lprio=3, cprio=2, wsleep=3, ldelay=0, pplain=True, glate=False, m8=False, wsbase=0, cbperm=True, prog=True, strict=True, defer=False, dmask=6, s2late=True, noaux=False, cwarm=False, oahead=4, dsc1=False, dzero=False, dburst=False, dnt=False, dpair=False, peel=True, fcrit=True, cdelay=0, lpos=3, oflag=0, nows=False, krskip=False, dhalf=False, wpack=True, wdtouch=False, nowo=False, nog=False):
    a = Asm()
    kernel_begin(a, name)
    L = lambda s: f"L_{s}"
    st = Stamps(a, stamps, 0); st.names = list(snames); st.op = 's_memrealtime' if rt else 's_memtime'
    if enc:
        class Enc:
            names = []
            def start(self): a("s_memrealtime s[70:71]"); a("s_memrealtime s[72:73]")
            def stamp(self, n):
                if n == enc: a("s_memrealtime s[72:73]"); a("s_waitcnt lgkmcnt(0)")
            def finish(self, i):
                a("s_lshl_b32 s68, s2, 3"); a("s_add_u32 s68, s68, s52")
                a(f"s_cmp_lg_u32 s68, {136*8+encw}")
                a("s_cbranch_scc1 L_encd")
                a("s_memrealtime s[74:75]"); a("s_waitcnt lgkmcnt(0)")
                a("s_sub_u32 s72, s72, s70"); a("s_lshl_b32 s72, s72, 2"); a("s_add_u32 s72, s72, s74")
                a.label("L_encl")
                a("s_memrealtime s[74:75]"); a("s_waitcnt lgkmcnt(0)")
                a("s_sub_u32 s68, s74, s72"); a("s_cmp_lt_i32 s68, 0")
                a("s_cbranch_scc1 L_encl")
                a.label("L_encd")
        st = Enc()
    sWS = 26
    sA = 28; sB = 32; sC = 36; sD = 40; sFl = 44; sE = 48
    sW = 52; sXc = 53; sJ = 54; sNonce = 55; sT = 56; sT2 = 57; sCnt = 58
    sLo = 60; sVm = 62; sHi = 94; sDm = 96
    sGF = 25
    sAF = 24
    vL = 1; vT = [2, 3, 4, 5, 6, 7]; vCtl = 8
    VB = 10
    TOP = 252 if stamps else 256

    def spin_begin(lab, n=SPIN):
        a(f"s_mov_b32 s59, {n}")
        a.label(L(lab))
    def spin_end(lab, sleep=2):
        a(f"s_sleep {sleep}")
        a("s_sub_u32 s59, s59, 1")
        a("s_cmp_lg_u32 s59, 0")
        a(f"s_cbranch_scc1 {L(lab)}")
    def put_flag(soff):
        a(f"v_mov_b32 v{vT[0]}, 0")
        a(f"v_mov_b32 v{vT[1]}, s{sNonce}")
        a("s_mov_b64 exec, 1")
        a(f"buffer_store_dword v{vT[1]}, v{vT[0]}, s[{sFl}:{sFl+3}], {soff} offen sc1")
        a("s_mov_b64 exec, -1")
    def lds_inc(off):
        a(f"v_mov_b32 v{vT[0]}, 1")
        a("s_mov_b64 exec, 1")
        a(f"ds_add_u32 v{vCtl}, v{vT[0]} offset:{off}")
        a("s_mov_b64 exec, -1")
    def lds_wait(lab, off, val, sl=1):
        spin_begin(lab, 8 * SPIN)
        a(f"ds_read_b32 v{vT[0]}, v{vCtl} offset:{off}")
        a("s_waitcnt lgkmcnt(0)")
        a(f"v_readfirstlane_b32 s{sT}, v{vT[0]}")
        a("s_nop 1")
        a(f"s_cmp_eq_u32 s{sT}, {val}")
        a(f"s_cbranch_scc1 {L(lab+'d')}")
        spin_end(lab, sl)
        a.label(L(lab + "d"))
    def sel_srd(d, cond_s, p0, p1, size):
        a(f"s_cmp_eq_u32 s{cond_s}, 0")
        a(f"s_cselect_b32 s{d}, s{p0}, s{p1}")
        a(f"s_cselect_b32 s{d+1}, s{p0+1}, s{p1+1}")
        a(f"s_and_b32 s{d+1}, s{d+1}, 0xffff")
        a(f"s_mov_b32 s{d+2}, {size}")
        a(f"s_mov_b32 s{d+3}, 0x20000")
    def after_kernarg():
        a("s_waitcnt lgkmcnt(0)")
        st.stamp("karg")
        if wsbase:
            a(f"s_add_u32 s{sWS}, s{sWS}, {hex(wsbase << 20)}")
            a(f"s_addc_u32 s{sWS+1}, s{sWS+1}, 0")
        a(f"s_load_dword s{sNonce}, s[{sWS}:{sWS+1}], {WL.EPOCH}")
        srd(a, sA, 4, 0, 2048 * 1280)
    def masks():
        a("v_mov_b32 v9, 0")
        for i in range(4): a(f"v_mov_b32 v{TOP-36+i}, 0")
        a(f"s_mov_b32 s{sGF}, 0"); a(f"s_mov_b32 s{sAF}, 0"); a("s_mov_b32 s15, 0")
        srd(a, sFl, sWS, WL.FLAG, WL.FLAG_SIZE)
        a(f"v_mov_b32 v{vCtl}, {LDS_CTL}")
        a(f"s_mov_b32 s{sLo}, -1"); a(f"s_mov_b32 s{sLo+1}, 0")
        a(f"s_mov_b32 s{sHi}, 0"); a(f"s_mov_b32 s{sHi+1}, -1")
        a(f"s_mov_b32 s{sVm}, 0xfffff"); a(f"s_mov_b32 s{sVm+1}, 0xfffff")
        a(f"s_mov_b32 s{sDm}, -1"); a(f"s_mov_b32 s{sDm+1}, 0xff")
    def nat_read_addrs(dst, stile, shift):
        a(f"v_and_b32 v{vT[0]}, 31, v{vL}")
        a(f"v_lshrrev_b32 v{vT[1]}, 5, v{vL}")
        a(f"v_bfe_u32 v{vT[2]}, v{vL}, 1, 3")
        a(f"v_xor_b32 v{vT[1]}, v{vT[1]}, v{vT[2]}")
        a(f"v_lshlrev_b32 v{vT[1]}, 4, v{vT[1]}")
        a(f"v_lshl_add_u32 v{vT[0]}, v{vT[0]}, 7, v{vT[1]}")
        a(f"s_lshl_b32 s{sT}, s{stile}, {shift}")
        a(f"v_add_u32 v{dst[0]}, s{sT}, v{vT[0]}")
        for ks in range(1, 4):
            a(f"v_xor_b32 v{dst[ks]}, {32*ks}, v{dst[0]}")

    a("s_cmp_ge_u32 s2, 256")
    a(f"s_cbranch_scc1 {L('end')}")
    st.start()
    if probe:
        a("s_memrealtime s[70:71]")
        a("s_load_dwordx2 s[64:65], s[0:1], 80")
        a("s_waitcnt lgkmcnt(0)")
        a("s_and_b32 s65, s65, 0xffff"); a("s_mov_b32 s66, 256"); a("s_mov_b32 s67, 0x20000")
        a("s_getreg_b32 s68, hwreg(HW_REG_XCC_ID)")
        a("s_xor_b32 s68, s68, s2"); a("s_and_b32 s68, s68, 7")
        a("s_cbranch_scc0 L_pok")
        a("v_mov_b32 v2, 1")
        a("s_mov_b64 exec, 1")
        a("buffer_store_dword v2, off, s[64:67], 0 sc1")
        a("s_mov_b64 exec, -1")
        a.label("L_pok")
    if rprobe:
        a("s_load_dwordx2 s[64:65], s[0:1], 80")
        a("s_waitcnt lgkmcnt(0)")
        a("s_and_b32 s65, s65, 0xffff"); a("s_mov_b32 s66, 256"); a("s_mov_b32 s67, 0x20000")
        a("s_getreg_b32 s68, hwreg(HW_REG_XCC_ID)")
        a("s_sub_u32 s68, s68, s2"); a("s_and_b32 s68, s68, 7")
        a("s_lshl_b32 s68, s68, 2")
        a("v_cmp_eq_u32 vcc, 0, v0")
        a("v_mov_b32 v2, 1")
        a("s_and_saveexec_b64 s[70:71], vcc")
        a("s_cbranch_execz L_rp0")
        a("buffer_store_dword v2, off, s[64:67], s68 sc1")
        a.label("L_rp0")
        a("s_mov_b64 exec, -1")
    a("s_load_dwordx16 s[4:19], s[0:1], 0")
    a("s_load_dwordx8 s[20:27], s[0:1], 64")
    a(f"v_lshrrev_b32 v{vT[0]}, 6, v0")
    a(f"v_and_b32 v{vL}, 63, v0")
    a(f"v_readfirstlane_b32 s{sW}, v{vT[0]}")
    a(f"s_and_b32 s{sXc}, s2, 7")
    a(f"s_lshr_b32 s{sJ}, s2, 3")
    a(f"s_xor_b32 s{sW}, s{sW}, 4")
    sRb = 98; sCb = 99; sWm = 100; sWn = 101; sWl = 3
    a(f"s_and_b32 s{sRb}, s2, 3")
    a(f"s_lshl_b32 s{sRb}, s{sRb}, 2")
    a(f"s_and_b32 s{sT}, s{sJ}, 3")
    a(f"s_add_u32 s{sRb}, s{sRb}, s{sT}")
    a(f"s_lshr_b32 s{sT}, s{sXc}, 2")
    a(f"s_lshr_b32 s{sCb}, s{sJ}, 2")
    a(f"s_cmp_eq_u32 s{sCb}, 7")
    a(f"s_cselect_b32 s{sT2}, 1, 3")
    a(f"s_lshl_b32 s{sT}, s{sT}, s{sT2}")
    a(f"s_cmp_eq_u32 s{sCb}, 7")
    a(f"s_cselect_b32 s{sT2}, s{sT}, 0")
    a(f"s_cselect_b32 s{sT}, 0, s{sT}")
    a(f"s_add_u32 s{sRb}, s{sRb}, s{sT2}")
    a(f"s_add_u32 s{sCb}, s{sCb}, s{sT}")
    if cbperm:
        tab = [5, 6, 7, 10, 11, 0, 1, 2, 8, 9, 12, 13, 14, 3, 4, 0]
        tv = sum(c << (4 * i) for i, c in enumerate(tab))
        a(f"s_mov_b32 s{sT}, {hex(tv & 0xffffffff)}")
        a(f"s_mov_b32 s{sT2}, {hex(tv >> 32)}")
        a(f"s_lshl_b32 s{sCb}, s{sCb}, 2")
        a(f"s_lshr_b64 s[{sT}:{sT2}], s[{sT}:{sT2}], s{sCb}")
        a(f"s_and_b32 s{sCb}, s{sT}, 15")
    a(f"s_and_b32 s{sWl}, s{sW}, 3")
    a(f"s_and_b32 s{sWm}, s{sW}, 1")
    a(f"s_lshr_b32 s{sWn}, s{sWl}, 1")
    a(f"s_cmp_lt_u32 s{sW}, 4")
    a(f"s_cbranch_scc1 {L('comp')}")

    V = Alloc(VB, TOP)
    vRX = [V.get() for _ in range(4)]
    vFW = [V.get() for _ in range(2)]; vFs = V.get(); V.get(); vGs = 9
    V.get(2)
    XR = [[V.get(4, 4) for _ in range(4)] for _ in range(10)]
    FR = V.get(8, 4); FIn = V.get(8, 4)
    ZA = V.get(16, 4); ZB = V.get(16, 4)
    BF = [[V.get(4, 4) for _ in range(2)] for _ in range(3)]
    vDX = [BF[0][0] + i for i in range(4)]; vDW = [BF[0][1] + i for i in range(4)]
    sOX = sD; sOW = sD + 1; sM0 = sD + 2; sBeta = sD + 3; sSp = sE
    if lprio: a(f"s_setprio {lprio}")
    a(f"v_and_b32 v{vT[3]}, 7, v{vL}")
    a(f"v_lshrrev_b32 v{vT[4]}, 4, v{vL}")
    a(f"v_xor_b32 v{vT[3]}, v{vT[3]}, v{vT[4]}")
    a(f"v_lshlrev_b32 v{vT[3]}, 4, v{vT[3]}")
    a(f"v_xor_b32 v{vT[4]}, 64, v{vT[3]}")
    a(f"v_bfe_u32 v{vT[5]}, v{vL}, 3, 2")
    a(f"v_lshrrev_b32 v{vT[1]}, 5, v{vL}")
    a(f"v_lshl_add_u32 v{vT[5]}, v{vT[1]}, 3, v{vT[5]}")
    a(f"s_lshl_b32 s{sT}, s{sRb}, 1")
    a(f"s_add_u32 s{sT}, s{sT}, s{sWn}")
    a(f"s_lshl_b32 s{sT2}, s{sWm}, 5")
    a(f"s_add_u32 s{sCnt}, s{sT}, s{sT2}")
    a(f"v_lshl_add_u32 v{vT[1]}, v{vT[5]}, 6, s{sCnt}")
    a(f"v_mul_u32_u24 v{vT[1]}, 1280, v{vT[1]}")
    a(f"v_add_u32 v{vDX[0]}, v{vT[1]}, v{vT[3]}")
    a(f"v_add_u32 v{vDX[1]}, v{vT[1]}, v{vT[4]}")
    a(f"v_add_u32 v{vDX[1]}, {4*64*1280-1024}, v{vDX[1]}")
    a(f"v_add_u32 v{vDX[2]}, {16*64*1280-2048}, v{vDX[0]}")
    a(f"v_add_u32 v{vDX[3]}, {16*64*1280-2048}, v{vDX[1]}")
    a(f"v_lshrrev_b32 v{vT[0]}, 4, v{vL}")
    a(f"v_bfe_u32 v{vT[1]}, v{vL}, 2, 2")
    a(f"v_xor_b32 v{vT[1]}, v{vT[1]}, v{vT[0]}")
    a(f"v_and_b32 v{vT[2]}, 3, v{vL}")
    a(f"v_lshl_add_u32 v{vT[1]}, v{vT[1]}, 2, v{vT[2]}")
    a(f"v_lshlrev_b32 v{vT[1]}, 4, v{vT[1]}")
    a(f"s_lshl_b32 s{sT}, s{sWl}, 4")
    a(f"v_add_u32 v{vT[0]}, s{sT}, v{vT[0]}")
    a(f"v_mul_u32_u24 v{vT[0]}, 3840, v{vT[0]}")
    a(f"s_lshl_b32 s{sT}, s{sCb}, 8")
    a(f"v_add3_u32 v{vDW[0]}, v{vT[0]}, v{vT[1]}, s{sT}")
    for j in range(1, 4):
        a(f"v_add_u32 v{vDW[j]}, {j*(4*3840-1024)}, v{vDW[0]}")
    rw = 0
    for i, r in enumerate(rotx): rw |= r << (4 * i)
    a(f"s_lshl_b32 s{sT}, s{sXc}, 2")
    a(f"s_lshr_b32 s{sOX}, {hex(rw)}, s{sT}")
    a(f"s_and_b32 s{sOX}, s{sOX}, 15")
    if rin != (0, 0):
        a(f"s_and_b32 s{sT}, s{sJ}, 3")
        a(f"s_mul_i32 s{sT}, s{sT}, {rin[0]}")
        a(f"s_add_u32 s{sOX}, s{sOX}, s{sT}")
        a(f"s_lshr_b32 s{sT}, s{sJ}, 2")
        a(f"s_mul_i32 s{sT}, s{sT}, {rin[1]}")
        a(f"s_add_u32 s{sOX}, s{sOX}, s{sT}")
        a(f"s_mul_i32 s{sT}, s{sOX}, 205")
        a(f"s_lshr_b32 s{sT}, s{sT}, 11")
        a(f"s_mul_i32 s{sT}, s{sT}, 10")
        a(f"s_sub_u32 s{sOX}, s{sOX}, s{sT}")
    a(f"s_mul_i32 s{sOW}, s{sOX}, {64*3840}")
    a(f"s_lshl_b32 s{sOX}, s{sOX}, 7")
    a(f"s_lshl_b32 s{sM0}, s{sWl}, 12")
    after_kernarg()
    a(f"s_cmp_ge_u32 s{sJ}, 30")
    a(f"s_cbranch_scc1 {L('lgate')}")
    srd(a, sB, 16, 0, 640 * 3840)
    def issue(n):
        a(f"s_add_u32 m0, s{sM0}, {STAGE[n%4]}")
        a("s_nop 0")
        for j in range(4): a(f"buffer_load_dwordx4 v{vDX[j]}, s[{sA}:{sA+3}], s{sOX} offen offset:{1024*j} lds")
        a(f"s_add_u32 m0, s{sM0}, {STAGE[n%4]+0x4000}")
        a(f"s_add_u32 s{sOX}, s{sOX}, 128")
        for j in range(4): a(f"buffer_load_dwordx4 v{vDW[j]}, s[{sB}:{sB+3}], s{sOW} offen offset:{1024*j} lds")
        a(f"s_add_u32 s{sOW}, s{sOW}, {64*3840}")
        a(f"s_cmp_eq_u32 s{sOX}, 1280")
        a(f"s_cselect_b32 s{sOX}, 0, s{sOX}")
        a(f"s_cselect_b32 s{sOW}, 0, s{sOW}")
    issue(0); issue(1)
    masks()
    a(f"s_lshr_b32 s{sBeta}, s{sXc}, 2")
    a(f"s_mul_i32 s{sBeta}, s{sBeta}, 5")
    a(f"s_lshr_b32 s{sT}, s{sJ}, 2")
    a(f"s_add_u32 s{sBeta}, s{sBeta}, s{sT}")
    a(f"s_lshl_b32 s{sT}, s{sBeta}, 1")
    a(f"s_add_u32 s{sT}, s{sT}, s{sWm}")
    a(f"s_lshl_b32 s{sT}, s{sT}, 4")
    a(f"v_add_u32 v{vT[5]}, s{sT}, v{vT[5]}")
    a(f"v_mul_u32_u24 v{vT[5]}, 1280, v{vT[5]}")
    a(f"v_add_u32 v{vFW[0]}, v{vT[5]}, v{vT[3]}")
    a(f"v_add_u32 v{vFW[1]}, v{vT[5]}, v{vT[4]}")
    a(f"v_add_u32 v{vFW[1]}, {4*1280-1024}, v{vFW[1]}")
    a(f"v_add_u32 v{vFs}, {320*1280}, v{vT[3]}")
    a(f"v_and_b32 v{vT[0]}, 31, v{vL}")
    a(f"v_lshrrev_b32 v{vT[1]}, 5, v{vL}")
    a(f"v_lshlrev_b32 v{vGs}, 5, v{vT[0]}")
    a(f"v_lshl_add_u32 v{vGs}, v{vT[1]}, 4, v{vGs}")
    a(f"s_mul_i32 s{sT}, s{sCnt}, {WL.GA}")
    a(f"s_lshl_b32 s{sT2}, s{sBeta}, 11")
    a(f"s_add_u32 s{sT}, s{sT}, s{sT2}")
    a(f"v_add_u32 v{vGs}, s{sT}, v{vGs}")
    a(f"s_mul_i32 s{sCnt}, s{sCnt}, 48")
    a(f"s_lshl_b32 s{sT2}, s{sBeta}, 2")
    a(f"s_add_u32 s{sCnt}, s{sCnt}, s{sT2}")
    a(f"s_add_u32 s{sCnt}, s{sCnt}, {WL.FG}")
    nat_read_addrs(vRX, sWl, 12)
    for n in range(10):
        a(f"s_waitcnt vmcnt({8 if n < 9 else 0}) lgkmcnt(0)")
        a("s_barrier")
        for ks in range(4):
            a(f"ds_read_b128 {vr(XR[n][ks],4)}, v{vRX[ks]} offset:{STAGE[n%4] & 0xffff}")
        if n + 2 < 10: issue(n + 2)
        if n < 9 and (STAGE[n % 4] ^ STAGE[(n + 1) % 4]) & 0x10000:
            for ks in range(4): a(f"v_xor_b32 v{vRX[ks]}, 0x10000, v{vRX[ks]}")
    st.stamp("ldone")
    a(f"s_add_u32 s{sNonce}, s{sNonce}, 1")
    a(f"s_cmp_ge_u32 s{sJ}, 20")
    a(f"s_cbranch_scc1 {L('lfree')}")
    a("s_setprio 3")
    a(f"s_mov_b32 s{sGF}, s{sCnt}")
    sel_srd(sB, sWn, 10, 12, 640 * 1280)
    srd(a, sC, 10, 0, 640 * 1280)
    a(f"s_lshl_b32 s{sM0}, s{sWl}, 11")
    a(f"s_lshl_b32 s{sT}, s{sBeta}, 2")
    a(f"s_add_u32 s{sT}, s{sT}, s{sWl}")
    a(f"s_cmp_eq_u32 s{sT}, 2")
    a(f"s_cselect_b32 s{sSp}, 0xffffff00, -1")
    a(f"s_cselect_b64 vcc, -1, 0")
    a(f"s_mov_b32 s{sSp+1}, -1")
    WDB = lambda p: (0x10000 + 8192 * p) if p < 8 else 8192 * (p - 8)
    def wdma(p):
        a(f"s_add_u32 m0, s{sM0}, {WDB(p)}")
        a(f"s_mov_b64 exec, s[{sSp}:{sSp+1}]")
        a(f"buffer_load_dwordx4 v{vFW[0]}, s[{sB}:{sB+3}], s{sOX} offen lds")
        a(f"s_cbranch_vccz {L('fs%d' % p)}")
        a("s_mov_b64 exec, 0xff")
        a(f"buffer_load_dwordx4 v{vFs}, s[{sC}:{sC+3}], s{sOX} offen lds")
        a.label(L("fs%d" % p))
        a("s_mov_b64 exec, -1")
        a(f"buffer_load_dwordx4 v{vFW[1]}, s[{sB}:{sB+3}], s{sOX} offen offset:1024 lds")
        a(f"s_add_u32 s{sOX}, s{sOX}, 128")
        a(f"s_cmp_eq_u32 s{sOX}, 1280")
        a(f"s_cselect_b32 s{sOX}, 0, s{sOX}")
    def twl():
        srd(a, sB, 6, 0, 2048 * 4096)
        srd(a, sC, 8, 0, 2048 * 4096)
        a(f"buffer_load_dwordx4 {vr(FR,4)}, v{vT[2]}, s[{sB}:{sB+3}], 0 offen")
        a(f"buffer_load_dwordx4 {vr(FR+4,4)}, v{vT[2]}, s[{sB}:{sB+3}], 0 offen offset:32")
        a(f"buffer_load_dwordx4 {vr(FIn,4)}, v{vT[2]}, s[{sC}:{sC+3}], 0 offen")
        a(f"buffer_load_dwordx4 {vr(FIn+4,4)}, v{vT[2]}, s[{sC}:{sC+3}], 0 offen offset:32")
    if fcrit:
        a(f"s_and_b32 s{sT}, s{sRb}, 6")
        a(f"s_cbranch_scc1 {L('f0d')}")
        lds_wait("f0", 20, 4)
    for p in range(10 if fcrit else fsplit): wdma(p)
    a(f"v_and_b32 v{vT[2]}, 31, v{vL}")
    a(f"v_lshrrev_b32 v{vT[1]}, 5, v{vL}")
    a(f"v_lshlrev_b32 v{vT[2]}, 18, v{vT[2]}")
    a(f"v_lshl_add_u32 v{vT[2]}, v{vT[1]}, 4, v{vT[2]}")
    a(f"s_lshl_b32 s{sT}, s{sWl}, 12")
    a(f"s_sub_u32 s{sT}, 0x10000, s{sT}")
    for ks in range(4): a(f"v_add_u32 v{vRX[ks]}, s{sT}, v{vRX[ks]}")
    assert not STAGE[9 % 4] & 0x10000
    if fcrit: twl()
    a("s_waitcnt vmcnt(%d)" % (4 + 2 * (10 - fsplit) if fcrit else 0))
    lds_inc(12)
    lds_wait("f1", 12, 4)
    st.stamp("fb0")
    if stamps: a("s_waitcnt lgkmcnt(0)")
    def rdB(s):
        p, ks = divmod(s, 4)
        if s == 32:
            for k in range(4): a(f"v_xor_b32 v{vRX[k]}, 0x10000, v{vRX[k]}")
        for part in range(2):
            a(f"ds_read_b128 {vr(BF[s%3][part],4)}, v{vRX[ks]} offset:{(WDB(p) & 0xffff) + 4096*part}")
    rdB(0); rdB(1)
    H = 4 * fsplit
    for s in range(40):
        if not fcrit:
            if s == fstart and fwait: lds_wait("f0", 20, 4)
            if fstart <= s < fstart + 10 - fsplit: wdma(fsplit + s - fstart)
            if s == fstart + 10 - fsplit: twl()
        if s == H - 2:
            a("s_waitcnt vmcnt(4)")
            lds_inc(16)
            lds_wait("f2", 16, 4)
            st.stamp("fb1")
            if stamps: a("s_waitcnt lgkmcnt(0)")
        if s + 2 < 40: rdB(s + 2)
        a(f"s_waitcnt lgkmcnt({4 if s < 38 else 2*(39-s)})")
        for part, Z in enumerate((ZA, ZB)):
            c = "0" if s == 0 else vr(Z, 16)
            a(f"v_mfma_f32_32x32x16_bf16 {vr(Z,16)}, {vr(XR[s//4][s%4],4)}, {vr(BF[s%3][part],4)}, {c}")
    assert fstart + 10 - fsplit < H - 2
    lds_inc(8)
    st.stamp("fend")
    FRn = XR[0][0]; G0 = XR[1][0]; G1 = XR[2][0]; G2 = XR[3][0]; G3 = XR[4][0]; ZS = XR[5][0]
    a("s_waitcnt vmcnt(0)")
    for i in range(8):
        a(f"v_xor_b32 v{FRn+i}, 0x80008000, v{FR+i}")
        a(f"v_xor_b32 v{FIn+i}, 0x80008000, v{FIn+i}")
    for Z in (ZA, ZB):
        for i in range(8): a(f"v_cvt_pk_bf16_f32 v{Z+i}, v{Z+2*i}, v{Z+2*i+1}")
    m = lambda d, A, B, c: a(f"v_mfma_f32_32x32x16_bf16 {vr(d,16)}, {vr(A,4)}, {vr(B,4)}, {c}")
    GP = TOP - 24
    a("s_nop 0")
    a(f"s_cmp_lg_u32 s{sBeta}, 0")
    a(f"s_cbranch_scc1 {L('fn')}")
    m(G2, ZB, FR, "0"); m(G2, ZB+4, FR+4, vr(G2,16))
    m(G3, ZB, FIn, "0"); m(G3, ZB+4, FIn+4, vr(G3,16))
    a("s_mov_b32 exec_lo, 1"); a("s_mov_b32 exec_hi, 1")
    for i in range(8): a(f"v_mov_b32 v{ZB+i}, 0")
    a(f"s_mov_b64 exec, s[{sLo}:{sLo+1}]")
    a("s_nop 3")
    for i in range(4): a(f"v_mov_b32 v{GP+16+i}, 0"); a(f"v_mov_b32 v{GP+20+i}, 0")
    a(f"v_cvt_pk_bf16_f32 v{GP+16}, v{G2}, 0")
    a(f"v_cvt_pk_bf16_f32 v{GP+20}, v{G3}, 0")
    a("s_mov_b64 exec, -1")
    a.label(L("fn"))
    m(G0, ZA, FR, "0"); m(G0, ZA+4, FR+4, vr(G0,16)); m(G0, ZB, FIn, vr(G0,16)); m(G0, ZB+4, FIn+4, vr(G0,16))
    m(G1, ZB, FRn, "0"); m(G1, ZB+4, FRn+4, vr(G1,16)); m(G1, ZA, FIn, vr(G1,16)); m(G1, ZA+4, FIn+4, vr(G1,16))
    a("s_nop 7")
    for p, g in enumerate((G0, G1)):
        for i in range(8): a(f"v_cvt_pk_bf16_f32 v{GP+8*p+i}, v{g+2*i}, v{g+2*i+1}")
    def g_stores(sd):
        srd(a, sd, sWS, WL.G, WL.G_SIZE)
        a(f"s_mov_b32 s{sT2}, {64*WL.GA}")
        for p in range(2):
            for j in range(2):
                so = "0" if p == 0 else f"s{sT2}"
                a(f"buffer_store_dwordx4 {vr(GP+8*p+4*j,4)}, v{vGs}, s[{sd}:{sd+3}], {so} offen offset:{1024*j} sc1")
        a(f"s_or_b32 s{sT}, s{sXc}, s{sJ}")
        a(f"s_cmp_ge_u32 s{sT}, 4")
        a(f"s_cbranch_scc1 {L('gs1')}")
        a(f"v_add_u32 v{vGs}, {20*1024}, v{vGs}")
        a(f"s_mov_b64 exec, s[{sLo}:{sLo+1}]")
        a(f"buffer_store_dwordx4 {vr(GP+16,4)}, v{vGs}, s[{sd}:{sd+3}], 0 offen sc1")
        a(f"buffer_store_dwordx4 {vr(GP+20,4)}, v{vGs}, s[{sd}:{sd+3}], s{sT2} offen sc1")
        a("s_mov_b64 exec, -1")
        a.label(L("gs1"))
    if not gdefer: g_stores(sC)
    assert ZB + 8 <= GP
    st.stamp("gst")
    a(f"s_branch {L('att')}")
    a.label(L("lgate"))
    if cwarm:
        a(f"s_getpc_b64 s[{sT}:{sT2}]")
        a.label(L("pc0"))
        a(f"s_sub_u32 s{sT}, s{sT}, {L('pc0')}-{name}")
        a(f"s_subb_u32 s{sT2}, s{sT2}, 0")
        a(f"s_lshl_b32 s{sCnt}, s{sWl}, 13")
        a(f"v_lshl_add_u32 v{vT[0]}, v{vL}, 7, s{sCnt}")
        a(f"v_min_u32 v{vT[0]}, {L('cend')}-{name}-4, v{vT[0]}")
        a(f"global_load_dword v{vT[1]}, v{vT[0]}, s[{sT}:{sT2}]")
    if gtouch:
        sel_srd(sB, sWm, 6, 8, 2048 * 4096)
        a(f"v_and_b32 v{vT[0]}, 31, v{vL}")
        a(f"v_lshlrev_b32 v{vT[0]}, 18, v{vT[0]}")
        a(f"buffer_load_dword v{vT[1]}, v{vT[0]}, s[{sB}:{sB+3}], 0 offen")
    if gtouch and wdtouch:
        sel_srd(sB, sWm, 10, 12, 640 * 1280)
        a(f"s_and_b32 s{sT}, s{sJ}, 1")
        a(f"s_lshl_b32 s{sT}, s{sT}, 1")
        a(f"s_add_u32 s{sT}, s{sT}, s{sWn}")
        a(f"s_mul_i32 s{sT}, s{sT}, {400*128}")
        a(f"s_lshr_b32 s{sT2}, s{sXc}, 2")
        a(f"s_mul_i32 s{sT2}, s{sT2}, {160*1280}")
        a(f"s_add_u32 s{sT}, s{sT}, s{sT2}")
        a(f"v_min_u32 v{vT[0]}, 49, v{vL}")
        a(f"v_lshlrev_b32 v{vT[0]}, 7, v{vT[0]}")
        for i in range(8):
            a(f"buffer_load_dword v{vT[1]}, v{vT[0]}, s[{sB}:{sB+3}], s{sT} offen")
            a(f"s_add_u32 s{sT}, s{sT}, {50*128}")
    masks()
    if wpack:
        srd(a, sB, 18, 0, 640 * 1280)
        srd(a, sC, sWS, WL.WP, 8 * 102400)
        a(f"s_and_b32 s{sT}, s{sJ}, 1")
        a(f"s_lshl_b32 s{sT}, s{sT}, 2")
        a(f"s_add_u32 s{sCnt}, s{sT}, s{sWl}")
        a(f"v_mul_u32_u24 v{vT[2]}, 205, v{vL}")
        a(f"v_lshrrev_b32 v{vT[2]}, 11, v{vT[2]}")
        a(f"v_mul_u32_u24 v{vT[3]}, {1280-160}, v{vT[2]}")
        a(f"v_lshl_add_u32 v{vT[3]}, v{vL}, 4, v{vT[3]}")
        a(f"s_mul_i32 s{sT}, s{sXc}, 160")
        a(f"v_add_u32 v{vT[3]}, s{sT}, v{vT[3]}")
        a(f"s_mul_i32 s{sT}, s{sXc}, 102400")
        a(f"s_mul_i32 s{sT2}, s{sCnt}, {5*2560}")
        a(f"s_add_u32 s{sT}, s{sT}, s{sT2}")
        a(f"v_lshl_add_u32 v{vT[4]}, v{vL}, 4, s{sT}")
        a(f"s_mul_i32 s{sOX}, s{sCnt}, 5")
        a(f"s_mov_b64 exec, s[{sDm}:{sDm+1}]")
        for u_ in range(5):
            a(f"s_add_u32 s{sT}, s{sOX}, {u_}")
            a(f"s_lshr_b32 s{sT2}, s{sT}, 1")
            a(f"s_and_b32 s{sT}, s{sT}, 1")
            a(f"s_lshl_b32 s{sT2}, s{sT2}, 3")
            a(f"s_add_u32 s{sT}, s{sT}, s{sT2}")
            a(f"s_mul_i32 s{sT}, s{sT}, {4*1280}")
            for g_ in range(4):
                a(f"buffer_load_dwordx4 {vr(XR[u_][g_],4)}, v{vT[3]}, s[{sB}:{sB+3}], s{sT} offen")
                if g_ < 3: a(f"s_add_u32 s{sT}, s{sT}, {8*1280}")
        a("s_mov_b64 exec, -1")
    a("s_waitcnt lgkmcnt(0)")
    a("s_barrier")
    a(f"s_add_u32 s{sNonce}, s{sNonce}, 1")
    if wpack:
        a(f"s_mov_b64 exec, s[{sDm}:{sDm+1}]")
        a("s_waitcnt vmcnt(0)")
        for u_ in range(5):
            a(f"s_mov_b32 s{sT}, {2560*u_}")
            for g_ in range(4):
                a(f"buffer_store_dwordx4 {vr(XR[u_][g_],4)}, v{vT[4]}, s[{sC}:{sC+3}], s{sT} offen offset:{640*g_} sc1")
        a("s_mov_b64 exec, -1")
        a(f"s_lshl_b32 s{sT}, s{sXc}, 3")
        a(f"s_add_u32 s{sT}, s{sT}, s{sCnt}")
        a(f"s_lshl_b32 s{sT}, s{sT}, 2")
        a(f"s_add_u32 s{sT}, s{sT}, {WL.FP}")
        a("s_waitcnt vmcnt(0)")
        put_flag(f"s{sT}")
    a.label(L("lfree"))
    a("s_waitcnt vmcnt(0) lgkmcnt(0)")
    lds_inc(8)
    a(f"s_branch {L('att')}")

    a.label(L("comp"))
    V = Alloc(VB, TOP)
    vRX = [V.get() for _ in range(4)]; vRW = [V.get() for _ in range(2)]
    vE = [V.get() for _ in range(8)]
    vTch = V.get(2)
    XF = [[V.get(4, 4) for _ in range(2)] for _ in range(4)]
    WF = [[V.get(4, 4) for _ in range(2)] for _ in range(4)]
    ACC = [[V.get(16, 4) for _ in range(2)] for _ in range(2)]
    PK = TOP - 32
    vS = [PK - 4 + i for i in range(4)]
    sDef = 15
    sMask = sD; sScale = sD + 2
    a(f"s_setprio {cprio}")
    nat_read_addrs(vRX, sWm, 13)
    for x in range(2):
        for w in range(2):
            for i in range(16): a(f"v_mov_b32 v{ACC[x][w]+i}, 0")
    after_kernarg()
    masks()
    a(f"s_cmp_lg_u32 s{sW}, 0")
    a(f"s_cbranch_scc1 {L('c1')}")
    a(f"ds_write_b128 v{vCtl}, {vr(ACC[0][0],4)}")
    for o_ in (16, 32, 48): a(f"ds_write_b128 v{vCtl}, {vr(ACC[0][0],4)} offset:{o_}")
    a.label(L("c1"))
    def poison(sd, pr):
        a(f"s_and_b32 s{sT}, s{sJ}, 3")
        a(f"s_lshl_b32 s{sT2}, s{sXc}, 2")
        a(f"s_add_u32 s{sT}, s{sT}, s{sT2}")
        a(f"s_and_b32 s{sCnt}, s{sT}, 1")
        a(f"s_lshr_b32 s{sT}, s{sT}, 1")
        a(f"s_mul_i32 s{sT}, s{sT}, {5*WL.PL}")
        a(f"s_add_u32 s{sT}, s{sT}, {WL.OF}")
        srd(a, sd, sWS, f"s{sT}", 5 * WL.PL)
        a(f"s_and_b32 s{sT}, s{sJ}, 28")
        a(f"s_add_u32 s{sT}, s{sT}, s{sW}")
        a(f"s_lshl_b32 s{sT}, s{sT}, 10")
        a(f"v_lshl_add_u32 v{vT[0]}, v{vL}, 4, s{sT}")
        for i in range(4): a(f"v_mov_b32 v{pr+i}, -1")
        a(f"s_mul_i32 s{sT}, s{sCnt}, {3*WL.PL}")
        a(f"buffer_store_dwordx4 {vr(pr,4)}, v{vT[0]}, s[{sd}:{sd+3}], s{sT} offen sc1")
        a(f"s_add_u32 s{sT}, s{sT}, {WL.PL}")
        a(f"buffer_store_dwordx4 {vr(pr,4)}, v{vT[0]}, s[{sd}:{sd+3}], s{sT} offen sc1")
        a(f"s_lshl_b32 s{sT}, s{sCnt}, 3")
        a(f"s_add_u32 s{sT}, s{sT}, {2*WL.PL}")
        a(f"buffer_store_dwordx2 {vr(pr,2)}, v{vT[0]}, s[{sd}:{sd+3}], s{sT} offen sc1")
    if pois == 1: poison(sC, PK)
    def mainloop(mode, epi):
        def rdX(s, ks, x): a(f"ds_read_b128 {vr(XF[s][x],4)}, v{vRX[ks]} offset:{4096*x}")
        def rdW(s, ks, w):
            a(f"ds_read_b64_tr_b16 {vr(WF[s][w],2)}, v{vRW[w]} offset:{4096*ks}")
            a(f"ds_read_b64_tr_b16 {vr(WF[s][w]+2,2)}, v{vRW[w]} offset:{4096*ks+1024}")
        def mf(s, x, w):
            A, B = (WF[s][w], XF[s][x]) if mode == 'qk' else (XF[s][x], WF[s][w])
            a(f"v_mfma_f32_32x32x16_bf16 {vr(ACC[x][w],16)}, {vr(A,4)}, {vr(B,4)}, {vr(ACC[x][w],16)}")
        a("s_waitcnt lgkmcnt(0)")
        a("s_barrier")
        st.stamp("b0")
        if stamps: a("s_waitcnt lgkmcnt(0)")
        rdX(0, 0, 0); rdW(0, 0, 0); rdX(0, 0, 1); rdW(0, 0, 1)
        a(f"s_mov_b32 s{sCnt}, 0")
        a.raw(".p2align 5")
        a.label(L(mode + "loop"))
        for ks in range(4):
            s = ks % 2; n = 1 - s; nk = (ks + 1) % 4
            if ks < 3:
                a("s_waitcnt lgkmcnt(3)")
                mf(s, 0, 0)
                if ks == 0 and touch:
                    a(f"s_cmp_lg_u32 s{sCnt}, {tpos}")
                    a(f"s_cbranch_scc1 {L(mode+'nt')}")
                    a(f"buffer_load_dword v{vTch}, v{vTch+1}, s[{sE}:{sE+3}], 0 offen")
                    a.label(L(mode + "nt"))
            else:
                a("s_waitcnt lgkmcnt(0)")
                mf(s, 0, 0)
                a(f"s_add_u32 s{sCnt}, s{sCnt}, 1")
                if not peel:
                    a(f"s_cmp_eq_u32 s{sCnt}, 10")
                    a(f"s_cbranch_scc1 {L(mode+'last')}")
                a("s_barrier")
                for r in vRX + vRW:
                    a(f"v_xor_b32 v{r}, s{sMask}, v{r}")
            rdX(n, nk, 0); rdW(n, nk, 0)
            if ks < 3: a("s_waitcnt lgkmcnt(5)")
            mf(s, 1, 0)
            rdX(n, nk, 1)
            if ks < 3: a("s_waitcnt lgkmcnt(4)")
            mf(s, 0, 1)
            rdW(n, nk, 1)
            if ks == 3: a(f"s_xor_b32 s{sMask}, s{sMask}, 0x18000")
            if ks == 3 and peel: a(f"s_cmp_lg_u32 s{sCnt}, 9")
            mf(s, 1, 1)
        if not peel:
            a(f"s_branch {L(mode+'loop')}")
            a.label(L(mode + "last"))
            mf(1, 0, 1); mf(1, 1, 0); mf(1, 1, 1)
            lds_inc(8)
            st.stamp("aend")
            a("s_nop 1")
            for x in range(2):
                for w in range(2): epi(x, w)
            return
        a(f"s_cbranch_scc1 {L(mode+'loop')}")
        for ks in range(1, 4): rdX(ks, ks, 0); rdW(ks, ks, 0)
        for ks in range(4):
            a(f"s_waitcnt lgkmcnt({[12, 6, 5, 4][ks]})")
            mf(ks, 0, 0)
            if ks >= 1: rdW(ks, ks, 1)
        for ks in range(4):
            if ks: a(f"s_waitcnt lgkmcnt({[0, 4, 3, 2][ks]})")
            mf(ks, 0, 1)
            if ks >= 1: rdX(ks, ks, 1)
        mf(0, 1, 0)
        a("s_waitcnt lgkmcnt(0)")
        mf(1, 1, 0)
        lds_inc(8)
        mf(2, 1, 0)
        epi(0, 0)
        mf(3, 1, 0); mf(0, 1, 1)
        epi(0, 1)
        mf(1, 1, 1); mf(2, 1, 1); mf(3, 1, 1)
        st.stamp("aend")
        epi(1, 0)
        a("s_nop 1")
        epi(1, 1)
    a(f"s_mov_b32 s{sMask}, 0x8000")
    a(f"s_cmp_ge_u32 s{sJ}, 30")
    a(f"s_cbranch_scc1 {L('gate')}")
    a(f"s_lshl_b32 s{sAF}, s{sCb}, 4")
    a(f"s_add_u32 s{sAF}, s{sAF}, s{sRb}")
    if touch:
        sel_srd(sE, sWm, 10, 12, 640 * 1280)
        a(f"s_lshl_b32 s{sT}, s{sJ}, 1")
        a(f"s_add_u32 s{sT}, s{sT}, s{sWn}")
        a(f"s_mul_i32 s{sT}, s{sT}, {27*128}")
        a(f"s_lshr_b32 s{sT2}, s{sXc}, 2")
        a(f"s_mul_i32 s{sT2}, s{sT2}, {160*1280}")
        a(f"s_add_u32 s{sT}, s{sT}, s{sT2}")
        a(f"v_min_u32 v{vTch+1}, 26, v{vL}")
        a(f"v_lshl_add_u32 v{vTch+1}, v{vTch+1}, 7, s{sT}")
    def astore(sd, aa, bb, lab=None):
        if lab and defer: a(f"s_cbranch_vccnz {L('as%s%d%d' % (lab, aa, bb))}")
        for j in range(2):
            a(f"buffer_store_dwordx4 {vr(PK+8*(2*bb+aa)+4*j,4)}, v{vS[2*aa+j]}, s[{sd}:{sd+3}], 0 offen offset:{512*bb} sc1")
        if lab and defer: a.label(L('as%s%d%d' % (lab, aa, bb)))
    srd(a, sC, sWS, WL.QF, WL.G - WL.QF)
    if defer:
        a(f"s_and_b32 s{sDef}, s{sRb}, {dmask}")
        a(f"s_cmp_lt_u32 s{sCb}, 5")
        a(f"s_cselect_b32 s{sDef}, 0, s{sDef}")
        a(f"s_cmp_lg_u32 s{sDef}, 0")
        a("s_cselect_b64 vcc, -1, 0")
    a(f"v_bfe_u32 v{vT[0]}, v{vL}, 2, 2")
    a(f"v_lshrrev_b32 v{vT[1]}, 5, v{vL}")
    a(f"v_lshl_add_u32 v{vT[1]}, v{vT[1]}, 3, v{vT[0]}")
    a(f"v_lshlrev_b32 v{vT[1]}, 8, v{vT[1]}")
    a(f"s_lshl_b32 s{sT}, s{sWn}, 1")
    a(f"v_xor_b32 v{vT[0]}, s{sT}, v{vT[0]}")
    a(f"v_lshl_add_u32 v{vT[1]}, v{vT[0]}, 6, v{vT[1]}")
    a(f"v_bfe_u32 v{vT[0]}, v{vL}, 4, 1")
    a(f"v_lshl_add_u32 v{vT[1]}, v{vT[0]}, 5, v{vT[1]}")
    a(f"v_add_u32 v{vT[1]}, 0x4000, v{vT[1]}")
    a(f"v_and_b32 v{vT[4]}, 31, v{vL}")
    a(f"v_lshrrev_b32 v{vT[5]}, 5, v{vL}")
    a(f"s_cmp_ge_u32 s{sCb}, 10")
    a(f"s_cbranch_scc1 {L('v')}")
    a(f"v_and_b32 v{vT[0]}, 1, v{vL}")
    a(f"v_lshl_add_u32 v{vT[1]}, v{vT[0]}, 4, v{vT[1]}")
    a(f"v_bfe_u32 v{vT[0]}, v{vL}, 1, 1")
    a(f"v_lshl_add_u32 v{vRW[0]}, v{vT[0]}, 3, v{vT[1]}")
    a(f"v_xor_b32 v{vRW[1]}, 64, v{vRW[0]}")
    a(f"s_cmp_ge_u32 s{sCb}, 5")
    a(f"s_cselect_b32 s{sScale}, 1.0, {hex(QSCALE)}")
    a(f"s_mov_b32 s{sScale+1}, s{sScale}")
    a(f"s_lshl_b32 s{sT}, s{sCb}, 1")
    a(f"s_add_u32 s{sT}, s{sT}, s{sWn}")
    a(f"s_lshl_b32 s{sT}, s{sT}, 18")
    a(f"s_lshl_b32 s{sT2}, s{sRb}, 1")
    a(f"s_add_u32 s{sT2}, s{sT2}, s{sWm}")
    a(f"s_lshl_b32 s{sT2}, s{sT2}, 10")
    a(f"s_add_u32 s{sT}, s{sT}, s{sT2}")
    a(f"v_lshlrev_b32 v{vS[0]}, 15, v{vT[5]}")
    a(f"v_lshl_add_u32 v{vS[0]}, v{vT[4]}, 4, v{vS[0]}")
    a(f"v_add_u32 v{vS[0]}, s{sT}, v{vS[0]}")
    for e in range(1, 4): a(f"v_add_u32 v{vS[e]}, {e*2*WL.PL}, v{vS[0]}")
    def epi_qk(x, w):
        acc = ACC[x][w]; pk = PK + 8 * (2 * x + w)
        for i in range(0, 16, 2): a(f"v_pk_mul_f32 {vr(acc+i,2)}, {vr(acc+i,2)}, s[{sScale}:{sScale+1}]")
        for i in range(8): a(f"v_cvt_pk_bf16_f32 v{pk+i}, v{acc+2*i}, v{acc+2*i+1}")
        astore(sC, w, x, "q")
    mainloop('qk', epi_qk)
    a(f"s_branch {L('adone')}")
    a.label(L("v"))
    a(f"v_and_b32 v{vT[0]}, 3, v{vL}")
    a(f"v_lshl_add_u32 v{vRW[0]}, v{vT[0]}, 3, v{vT[1]}")
    a(f"v_xor_b32 v{vRW[1]}, 64, v{vRW[0]}")
    a(f"s_lshl_b32 s{sT}, s{sRb}, 1")
    a(f"s_add_u32 s{sT}, s{sT}, s{sWm}")
    a(f"s_mul_i32 s{sT}, s{sT}, {2*WL.VT}")
    a(f"s_sub_u32 s{sT2}, s{sCb}, 10")
    a(f"s_lshl_b32 s{sT2}, s{sT2}, 1")
    a(f"s_add_u32 s{sT2}, s{sT2}, s{sWn}")
    a(f"s_lshl_b32 s{sT2}, s{sT2}, 10")
    a(f"s_add_u32 s{sT}, s{sT}, s{sT2}")
    a(f"s_add_u32 s{sT}, s{sT}, {WL.VF - WL.QF}")
    a(f"v_mul_u32_u24 v{vS[0]}, 10240, v{vT[5]}")
    a(f"v_lshl_add_u32 v{vS[0]}, v{vT[4]}, 4, v{vS[0]}")
    a(f"v_add_u32 v{vS[0]}, s{sT}, v{vS[0]}")
    for e in range(1, 4): a(f"v_add_u32 v{vS[e]}, {e*20480}, v{vS[0]}")
    def epi_v(x, w):
        acc = ACC[x][w]; pk = PK + 8 * (2 * w + x)
        for i in range(8): a(f"v_cvt_pk_bf16_f32 v{pk+i}, v{acc+2*i}, v{acc+2*i+1}")
        astore(sC, x, w, "v")
    mainloop('v', epi_v)
    a(f"s_branch {L('adone')}")
    a.label(L("gate"))
    GW = 40; GX = 60
    assert vTch + 2 <= GW and GX + 160 <= PK
    srd(a, sB, 20, 0, 1280)
    srd(a, sC, sWS, WL.GATE, 2048 * 8)
    a(f"v_and_b32 v{vT[0]}, 15, v{vL}")
    a(f"v_lshlrev_b32 v{vT[0]}, 4, v{vT[0]}")
    a(f"s_and_b32 s{sAF}, s{sXc}, 3")
    a(f"s_lshl_b32 s{sAF}, s{sAF}, 2")
    a(f"s_lshr_b32 s{sT}, s{sXc}, 2")
    a(f"s_lshl_b32 s{sT}, s{sT}, 1")
    a(f"s_add_u32 s{sAF}, s{sAF}, s{sT}")
    a(f"s_add_u32 s{sAF}, s{sAF}, s{sJ}")
    a(f"s_sub_u32 s{sAF}, s{sAF}, 30")
    a(f"s_lshl_b32 s{sT}, s{sAF}, 1")
    a(f"s_add_u32 s{sT}, s{sT}, s{sWn}")
    a(f"s_add_u32 s{sAF}, s{sAF}, 240")
    a(f"s_lshl_b32 s{sT2}, s{sWm}, 5")
    a(f"v_lshrrev_b32 v{vT[5]}, 4, v{vL}")
    a(f"s_add_u32 s{sCnt}, s{sT}, s{sT2}")
    a(f"v_lshl_add_u32 v{vT[2]}, v{vT[5]}, 6, s{sCnt}")
    a(f"v_mul_u32_u24 v{vT[2]}, 1280, v{vT[2]}")
    a(f"v_add_u32 v{vT[2]}, v{vT[2]}, v{vT[0]}")
    a(f"s_lshl_b32 s{sT}, s{sT}, 6")
    a(f"s_add_u32 s{sT}, s{sT}, s{sT2}")
    a(f"v_add_u32 v{vT[5]}, s{sT}, v{vT[5]}")
    a(f"v_lshlrev_b32 v{vT[5]}, 3, v{vT[5]}")
    a(f"v_cmp_eq_u32 vcc, 0, v{vT[0]}")
    a("s_waitcnt lgkmcnt(0)")
    a("s_barrier")
    for p in range(5):
        a(f"buffer_load_dwordx4 {vr(GW+4*p,4)}, v{vT[0]}, s[{sB}:{sB+3}], 0 offen offset:{256*p}")
    for r in range(8):
        b4 = (r & 4) * 4 + (r & 1) * 8 + (r & 2) * 2
        a(f"s_mov_b32 s{sT}, {b4*64*1280}")
        for p in range(5):
            a(f"buffer_load_dwordx4 {vr(GX+20*r+4*p,4)}, v{vT[2]}, s[{sA}:{sA+3}], s{sT} offen offset:{256*p}")
        a(f"v_mov_b32 v{vE[r]}, 0")
    for r in range(8):
        a(f"s_waitcnt vmcnt({35-5*r})")
        for i in range(20):
            a(f"v_dot2c_f32_bf16 v{vE[r]}, v{GX+20*r+i}, v{GW+i}")
    a("s_nop 3")
    for sh in (8, 4, 2, 1):
        for r in range(8):
            a(f"v_add_f32_dpp v{vE[r]}, v{vE[r]}, v{vE[r]} row_ror:{sh} row_mask:0xf bank_mask:0xf")
    GO = PK
    for r in range(8): a(f"v_cvt_pk_bf16_f32 v{vE[r]}, 0, v{vE[r]}")
    for r in range(8): a(f"v_mul_f32 v{vE[r]}, 0xbfb8aa3b, v{vE[r]}")
    for r in range(8): a(f"v_exp_f32 v{vE[r]}, v{vE[r]}")
    for r in range(8): a(f"v_add_f32 v{vE[r]}, 1.0, v{vE[r]}")
    for r in range(8): a(f"v_rcp_f32 v{vE[r]}, v{vE[r]}")
    for r in range(8): a(f"v_cvt_pk_bf16_f32 v{GO+2*r}, 0, v{vE[r]}")
    for r in range(8): a(f"v_sub_f32 v{GO+2*r+1}, 1.0, v{GO+2*r}")
    for r in range(8): a(f"v_cvt_pk_bf16_f32 v{GO+2*r+1}, 0, v{GO+2*r+1}")
    a("s_mov_b64 exec, vcc")
    for r in range(8):
        a(f"buffer_store_dwordx2 {vr(GO+2*r,2)}, v{vT[5]}, s[{sC}:{sC+3}], 0 offen offset:{32*r} sc1")
    a("s_mov_b64 exec, -1")
    lds_inc(8)
    a.label(L("adone"))
    if pois == 2: poison(sC, XF[0][0])
    if fwait: lds_inc(20)
    st.stamp("ast")
    a(f"s_add_u32 s{sNonce}, s{sNonce}, 1")
    a(f"s_lshl_b32 s{sAF}, s{sAF}, 7")
    a(f"s_add_u32 s{sAF}, s{sAF}, {WL.FA}")

    a.label(L("att"))
    V = Alloc(VB, TOP)
    vKm = V.get(); vKr = V.get(); vV0 = V.get(); vV1 = V.get(); vM = V.get(); vWo = V.get()
    Qm = [V.get(4, 4) for _ in range(2)]
    Qr = [V.get(2) for _ in range(2)]
    Km = [V.get(4, 4) for _ in range(4)]
    Kr = [V.get(2) for _ in range(4)]
    Vb = [[V.get(4, 4) for _ in range(2)] for _ in range(4)]
    P = V.get(8, 4)
    S = [V.get(16, 4) for _ in range(2)]
    O = [V.get(16, 4) for _ in range(2)]
    K0m = V.get(4, 4); K0r = V.get(2)
    vG = V.get(2); vO = V.get(); vSt = V.get(); vGd = V.get(); vWs = V.get(); vX0 = V.get(); vX1 = V.get(); vGt = V.get(); vDum = V.get(); vIdx = vDum
    WsF = [V.get(4, 4) for _ in range(2)]
    GFl = V.get(12, 4)
    vKF = GFl + 10; vQF = GFl + 11
    att_hi = V.p
    assert att_hi <= TOP - 32
    OFr = [V.get(4, 4) for _ in range(10)]
    AC = [V.get(4, 4) for _ in range(5)]
    sK = sA; sV = sB; sQ = sC; sWo = sD
    sHead = 98; sQb = 99; sKh = 100; sOK = 101; sOV = 14; sOWo = 15; sM0 = 3; sPar = sE; sHp = sE + 1; sStep = sE + 2; sU0 = sE + 3
    sCc = sHead; sEb8 = sQb; sMs = sPar; sStep2 = sAF
    a(f"s_and_b32 s{sT}, s{sJ}, 3")
    a(f"s_lshl_b32 s{sHead}, s{sXc}, 2")
    a(f"s_add_u32 s{sHead}, s{sHead}, s{sT}")
    a(f"s_lshr_b32 s{sQb}, s{sJ}, 2")
    a(f"s_lshr_b32 s{sKh}, s{sW}, 2")
    a(f"s_and_b32 s{sPar}, s{sHead}, 1")
    a(f"s_lshr_b32 s{sHp}, s{sHead}, 1")
    a(f"s_mul_i32 s{sHp}, s{sHp}, {5*WL.PL}")
    a(f"v_and_b32 v{vT[0]}, 31, v{vL}")
    a(f"v_lshrrev_b32 v{vT[1]}, 5, v{vL}")
    a(f"v_and_b32 v{vT[2]}, 0x13, v{vT[0]}")
    a(f"v_bfe_u32 v{vT[3]}, v{vT[0]}, 2, 1")
    a(f"v_lshl_add_u32 v{vT[2]}, v{vT[3]}, 3, v{vT[2]}")
    a(f"v_bfe_u32 v{vT[3]}, v{vT[0]}, 3, 1")
    a(f"v_lshl_add_u32 v{vT[2]}, v{vT[3]}, 2, v{vT[2]}")
    a(f"v_and_b32 v{vSt}, 15, v{vT[2]}")
    a(f"s_mul_i32 s{sT}, s{sPar}, {3*WL.PL}")
    a(f"v_lshlrev_b32 v{vKm}, 15, v{vT[1]}")
    a(f"v_lshl_add_u32 v{vKm}, v{vT[2]}, 4, v{vKm}")
    a(f"v_add_u32 v{vKm}, s{sT}, v{vKm}")
    a(f"s_lshl_b32 s{sT}, s{sPar}, 3")
    a(f"s_add_u32 s{sT}, s{sT}, {2*WL.PL}")
    a(f"v_lshl_add_u32 v{vKr}, v{vT[2]}, 4, s{sT}")
    a(f"v_mov_b32 v{vIdx}, 0xdddddddd")
    a(f"s_lshl_b32 s{sT}, s{sPar}, 2")
    a(f"v_add_u32 v{vT[2]}, s{sT}, v{vT[2]}")
    a(f"v_subrev_u32 v{vT[3]}, 20, v{vT[2]}")
    a(f"v_min_u32 v{vT[2]}, v{vT[2]}, v{vT[3]}")
    a(f"s_mul_i32 s{sT}, s{sHead}, 320")
    a(f"v_mul_u32_u24 v{vV0}, 10240, v{vT[1]}")
    a(f"v_lshl_add_u32 v{vV0}, v{vT[2]}, 4, v{vV0}")
    a(f"v_add_u32 v{vV0}, s{sT}, v{vV0}")
    a(f"v_add_u32 v{vV1}, 20480, v{vV0}")
    a(f"s_add_u32 s{sT}, s{sHp}, {WL.KF}")
    srd(a, sK, sWS, f"s{sT}", 5 * WL.PL)
    srd(a, sV, sWS, WL.VF, 64 * WL.VT)
    a(f"s_add_u32 s{sT}, s{sHp}, {WL.QF}")
    srd(a, sQ, sWS, f"s{sT}", 5 * WL.PL)
    a(f"s_lshl_b32 s{sOK}, s{sKh}, 14")
    a(f"s_mul_i32 s{sOV}, s{sKh}, {32*WL.VT}")
    a(f"s_lshl_b32 s{sU0}, s{sQb}, 2")
    a(f"s_and_b32 s{sT}, s{sW}, 3")
    a(f"s_add_u32 s{sU0}, s{sU0}, s{sT}")
    a(f"s_lshl_b32 s{sU0}, s{sU0}, 10")
    for r in [K0r] + Kr:
        a(f"v_mov_b32 v{r}, 0x3f803f80")
        a(f"v_mov_b32 v{r+1}, 0x3f80")
    for q in range(2):
        a(f"v_mov_b32 v{Qr[q]}, 0"); a(f"v_mov_b32 v{Qr[q]+1}, 0")
    a(f"v_cmp_eq_u32 vcc, 20, v{vT[0]}")
    a(f"v_mov_b32 v{vT[2]}, 0x3f803f80")
    a(f"v_mov_b32 v{vT[3]}, 0")
    a(f"v_cndmask_b32 v{vT[2]}, v{vT[3]}, v{vT[2]}, vcc")
    a(f"v_mov_b32 v{vT[3]}, v{vT[2]}")
    for b in range(4):
        for j in range(2):
            for i in range(0, 4, 2): a(f"v_mov_b64 {vr(Vb[b][j]+i,2)}, {vr(vT[2],2)}")
    def setup2():
        for q in range(2):
            for i in range(0, 16, 2): a(f"v_mov_b64 {vr(O[q]+i,2)}, 0")
        a(f"v_and_b32 v{vT[0]}, 15, v{vL}")
        a(f"v_lshrrev_b32 v{vT[1]}, 4, v{vL}")
        a(f"s_and_b32 s{sT}, s{sW}, 3")
        a(f"s_lshl_b32 s{sT}, s{sT}, 4")
        a(f"s_lshl_b32 s{sT2}, s{sCc}, 6")
        a(f"s_add_u32 s{sT}, s{sT}, s{sT2}")
        a(f"v_add_u32 v{vT[2]}, s{sT}, v{vT[0]}")
        a(f"s_and_b32 s{sT}, s{sW}, 1")
        a(f"s_lshl_b32 s{sT}, s{sT}, 10")
        a(f"s_and_b32 s{sT2}, s{sW}, 2")
        a(f"s_lshl_b32 s{sT2}, s{sT2}, 4")
        a(f"s_add_u32 s{sT}, s{sT}, s{sT2}")
        a(f"s_add_u32 s{sT}, s{sT}, s{sCc}")
        a(f"v_lshl_add_u32 v{vT[0]}, v{vSt}, 6, s{sT}")
        a(f"v_lshlrev_b32 v{vWs}, 12, v{vT[0]}")
        a(f"v_lshl_add_u32 v{vWs}, v{vT[1]}, 4, v{vWs}")
        a(f"v_lshlrev_b32 v{vGt}, 3, v{vT[2]}")
        a(f"v_lshlrev_b32 v{vO}, 4, v{vT[2]}")
        a(f"v_lshl_add_u32 v{vO}, v{vT[1]}, 15, v{vO}")
        a(f"s_mul_i32 s{sT}, s{sKh}, {40*WL.PL}")
        a(f"v_add_u32 v{vO}, s{sT}, v{vO}")
        a(f"v_mul_u32_u24 v{vSt}, 1280, v{vT[0]}")
        a(f"v_lshl_add_u32 v{vSt}, v{vT[1]}, 3, v{vSt}")
        a(f"s_mul_i32 s{sT}, s{sEb8}, 160")
        a(f"v_add_u32 v{vSt}, s{sT}, v{vSt}")
        a(f"v_mul_u32_u24 v{vT[2]}, 205, v{vL}")
        a(f"v_lshrrev_b32 v{vT[2]}, 11, v{vT[2]}")
        a(f"v_mul_u32_u24 v{vWo}, {1280-160}, v{vT[2]}")
        a(f"v_lshl_add_u32 v{vWo}, v{vL}, 4, v{vWo}")
        a(f"v_add_u32 v{vWo}, s{sT}, v{vWo}")
        a(f"v_mul_u32_u24 v{vT[2]}, 187, v{vL}")
        a(f"v_lshrrev_b32 v{vT[2]}, 11, v{vT[2]}")
        a(f"v_mul_u32_u24 v{vT[3]}, 11, v{vT[2]}")
        a(f"v_sub_u32 v{vT[3]}, v{vL}, v{vT[3]}")
        a(f"v_mul_u32_u24 v{vGd}, {WL.GA}, v{vT[2]}")
        a(f"v_lshrrev_b32 v{vT[2]}, 1, v{vT[3]}")
        a(f"v_lshl_add_u32 v{vGd}, v{vT[2]}, 10, v{vGd}")
        a(f"v_and_b32 v{vT[3]}, 1, v{vT[3]}")
        a(f"v_lshl_add_u32 v{vGd}, v{vT[3]}, 4, v{vGd}")
        a(f"s_sub_u32 s{sT}, 7, s{sEb8}")
        a(f"s_sub_u32 s{sT2}, 32, s{sCc}")
        a(f"s_and_b32 s{sT2}, s{sT2}, 31")
        a(f"s_cmp_lt_u32 s{sEb8}, 4")
        a(f"s_cselect_b32 s{sT}, s{sEb8}, s{sT}")
        a(f"s_cselect_b32 s{sT2}, s{sCc}, s{sT2}")
        a(f"s_mul_i32 s{sT}, s{sT}, 5120")
        a(f"s_lshl_b32 s{sT2}, s{sT2}, 5")
        a(f"s_add_u32 s{sT}, s{sT}, s{sT2}")
        a(f"v_add_u32 v{vGd}, s{sT}, v{vGd}")
        srd(a, sWo, 18, 0, 640 * 1280)
        a(f"s_mul_i32 s{sT}, s{sW}, 3072")
        a(f"s_add_u32 s{sT}, s{sT}, {LDS_X}")
        a(f"v_lshl_add_u32 v{vX0}, v{vL}, 4, s{sT}")
        a(f"s_xor_b32 s{sT}, s{sW}, 4")
        a(f"s_mul_i32 s{sT}, s{sT}, 3072")
        a(f"s_add_u32 s{sT}, s{sT}, {LDS_X}")
        a(f"v_lshl_add_u32 v{vX1}, v{vL}, 4, s{sT}")
    if not s2late: setup2()
    def dma_params(pitch_g, pitch_l, steps_half, lbase):
        a(f"s_and_b32 s{sT}, s{sW}, 3")
        a(f"s_mul_i32 s{sT2}, s{sKh}, {8*steps_half}")
        a(f"s_add_u32 s{sM0}, s{sT}, s{sT2}")
        a(f"s_mul_i32 s{sM0}, s{sM0}, {4*pitch_l}")
        if lbase: a(f"s_add_u32 s{sM0}, s{sM0}, {lbase}")
        a(f"s_lshl_b32 s{sT}, s{sT}, 1")
        a(f"s_add_u32 s{sOWo}, s{sT}, s{sT2}")
        a(f"s_mul_i32 s{sOWo}, s{sOWo}, {4*pitch_g}")
        a(f"s_mov_b32 s{sStep}, {4*pitch_g}")
        a(f"s_mov_b32 s{sStep2}, {28*pitch_g}")
        a(f"s_mov_b32 s{sMs}, {16*pitch_l}")
    a(f"s_mul_i32 s{sT}, s{sHead}, 20")
    a(f"v_bfe_u32 v{vT[0]}, v{vL}, 4, 1")
    a(f"v_mul_u32_u24 v{vT[0]}, 19, v{vT[0]}")
    a(f"v_add_u32 v{vT[0]}, s{sT}, v{vT[0]}")
    a(f"v_lshrrev_b32 v{vT[0]}, 7, v{vT[0]}")
    a(f"v_lshrrev_b32 v{vT[1]}, 5, v{vL}")
    a(f"v_mul_u32_u24 v{vT[1]}, 5, v{vT[1]}")
    a(f"v_add3_u32 v{vT[1]}, v{vT[1]}, v{vT[0]}, 5")
    a(f"v_and_b32 v{vT[2]}, 15, v{vL}")
    a(f"v_lshl_add_u32 v{vT[1]}, v{vT[1]}, 4, v{vT[2]}")
    a(f"v_lshlrev_b32 v{vKF}, 7, v{vT[1]}")
    a(f"s_lshl_b32 s{sT}, s{sQb}, 1")
    a(f"v_and_b32 v{vT[2]}, 1, v{vL}")
    a(f"v_lshl_add_u32 v{vT[0]}, v{vT[0]}, 4, v{vT[2]}")
    a(f"v_add_u32 v{vT[0]}, s{sT}, v{vT[0]}")
    a(f"v_lshlrev_b32 v{vQF}, 7, v{vT[0]}")
    def signal(lab):
        a(f"v_mov_b32 v{vT[0]}, 1")
        a("s_waitcnt vmcnt(0)")
        a("s_mov_b64 exec, 1")
        a(f"ds_add_rtn_u32 v{vT[1]}, v{vCtl}, v{vT[0]} offset:4")
        a("s_mov_b64 exec, -1")
        a("s_waitcnt lgkmcnt(0)")
        a(f"v_readfirstlane_b32 s{sT}, v{vT[1]}")
        a("s_nop 1")
        a(f"s_cmp_lg_u32 s{sT}, 3")
        a(f"s_cbranch_scc1 {L(lab)}")
        put_flag(f"s{sAF}")
        st.stamp("aflag")
        a.label(L(lab))
    a(f"s_cmp_eq_u32 s{sAF}, 0")
    a(f"s_cbranch_scc1 {L('nsig')}")
    a(f"s_cmp_lg_u32 s{sDef}, 0")
    a(f"s_cbranch_scc1 {L('nsig')}")
    signal("nsig2")
    if pois == 3:
        lds_wait("wp", 4, 4)
        poison(sD, GFl)
        srd(a, sWo, 18, 0, 640 * 1280)
    a.label(L("nsig"))
    def aux_loads():
        if pois == 4 and not oflag:
            a(f"s_cmp_lg_u32 s{sKh}, 0")
            a(f"s_cbranch_scc1 {L('np4')}")
            poison(sD, GFl)
            a(f"s_mov_b32 s{sCnt}, 6")
            a.label(L("np4"))
        if gdefer == 1:
            a(f"s_cmp_eq_u32 s{sGF}, 0")
            a(f"s_cbranch_scc1 {L('gs2')}")
            g_stores(sD)
            a.label(L("gs2"))
        sel_srd(sD, sKh, 6, 8, 2048 * 4096)
        if not nows:
            a(f"buffer_load_dwordx4 {vr(WsF[0],4)}, v{vWs}, s[{sD}:{sD+3}], 0 offen")
            a(f"buffer_load_dwordx4 {vr(WsF[1],4)}, v{vWs}, s[{sD}:{sD+3}], 0 offen offset:64")
        if wpack:
            a(f"s_lshl_b32 s{sT}, s{sEb8}, 1")
            a(f"s_add_u32 s{sT}, s{sT}, s{sKh}")
            a(f"s_mul_i32 s{sT}, s{sT}, 51200")
            a(f"s_add_u32 s{sT}, s{sT}, {WL.WP}")
            srd(a, sWo, sWS, f"s{sT}", 51200)
        else:
            srd(a, sWo, 18, 0, 0 if dzero else 640 * 1280)
        if wotouch:
            a(f"s_lshl_b32 s{sT}, s{sJ}, 3")
            a(f"s_add_u32 s{sT}, s{sT}, s{sW}")
            a(f"s_mul_i32 s{sT}, s{sT}, {25*128}")
            a(f"v_min_u32 v{vT[0]}, 24, v{vL}")
            a(f"v_lshlrev_b32 v{vT[0]}, 7, v{vT[0]}")
            a(f"buffer_load_dword v{vDum}, v{vT[0]}, s[{sWo}:{sWo+3}], s{sT} offen")
    a(f"s_cmp_eq_u32 s{sW}, 0")
    a(f"s_cbranch_scc1 {L('poll')}")
    if ldelay:
        a(f"ds_read_b32 v{vT[0]}, v{vCtl}")
        a("s_waitcnt lgkmcnt(0)")
        a(f"v_readfirstlane_b32 s{sT}, v{vT[0]}")
        a("s_nop 1")
        a(f"s_cmp_eq_u32 s{sT}, 1")
        a(f"s_cbranch_scc1 {L('go')}")
    lds_wait("wa", 0, 1, wsleep)
    if ldelay:
        a(f"s_cmp_eq_u32 s{sKh}, 0")
        a(f"s_cbranch_scc1 {L('go')}")
        a(f"s_sleep {ldelay}")
    a(f"s_branch {L('go')}")
    a.label(L("poll"))
    a(f"v_mov_b32 v{vT[1]}, v{vKF}")
    if prog:
        a(f"v_and_b32 v{vT[1]}, {hex(~(dmask << 7) & 0xffffffff)}, v{vT[1]}")
    a(f"s_mov_b32 s{sT2}, {WL.FA}")
    spin_begin("pa")
    a(f"buffer_load_dword v{vT[2]}, v{vT[1]}, s[{sFl}:{sFl+3}], s{sT2} offen sc1")
    a(f"buffer_load_dword v{vT[3]}, v{vQF}, s[{sFl}:{sFl+3}], s{sT2} offen sc1")
    a("s_waitcnt vmcnt(0)")
    for i in range(2): a(f"v_xor_b32 v{vT[2]+i}, s{sNonce}, v{vT[2]+i}")
    a(f"v_or_b32 v{vT[2]}, v{vT[2]}, v{vT[3]}")
    a(f"v_cmp_ne_u32 vcc, 0, v{vT[2]}")
    a("s_nop 1")
    a("s_cmp_eq_u64 vcc, 0")
    a(f"s_cbranch_scc1 {L('pad')}")
    spin_end("pa", psleep)
    a.label(L("pad"))
    a(f"v_mov_b32 v{vT[0]}, 1")
    a(f"ds_write_b32 v{vCtl}, v{vT[0]}")
    a.label(L("go"))
    st.stamp("ardy")
    PS = '' if pplain else ' sc1'
    a(f"buffer_load_dwordx4 {vr(K0m,4)}, v{vKm}, s[{sK}:{sK+3}], 0 offen{PS}")
    a(f"buffer_load_dwordx4 {vr(Qm[0],4)}, v{vKm}, s[{sQ}:{sQ+3}], s{sU0} offen{PS}")
    a(f"buffer_load_dwordx4 {vr(Qm[1],4)}, v{vKm}, s[{sQ}:{sQ+3}], s{sU0} offen offset:512{PS}")
    a(f"s_mov_b64 exec, s[{sLo}:{sLo+1}]")
    a(f"buffer_load_dwordx2 {vr(K0r,2)}, v{vKr}, s[{sK}:{sK+3}], 0 offen{PS}")
    a(f"buffer_load_dwordx2 {vr(Qr[0],2)}, v{vKr}, s[{sQ}:{sQ+3}], s{sU0} offen{PS}")
    a(f"buffer_load_dwordx2 {vr(Qr[1],2)}, v{vKr}, s[{sQ}:{sQ+3}], s{sU0} offen offset:512{PS}")
    a(f"buffer_load_dwordx2 {vr(Kr[0],2)}, v{vKr}, s[{sK}:{sK+3}], s{sOK} offen{PS}")
    a("s_mov_b64 exec, -1")
    a(f"buffer_load_dwordx4 {vr(Km[0],4)}, v{vKm}, s[{sK}:{sK+3}], s{sOK} offen{PS}")
    SC = ' sc1' if kvsc1 else ''
    def ex(m, inloop):
        if inloop and noexec: return
        a(f"s_mov_b64 exec, s[{m}:{m+1}]" if m is not None else "s_mov_b64 exec, -1")
    def ldKr(kb, koff): a(f"buffer_load_dwordx2 {vr(Kr[kb],2)}, v{vKr}, s[{sK}:{sK+3}], s{sOK} offen offset:{koff}{SC}")
    def ldKm(kb, koff): a(f"buffer_load_dwordx4 {vr(Km[kb],4)}, v{vKm}, s[{sK}:{sK+3}], s{sOK} offen offset:{koff}{SC}")
    def ldV(vb, j): a(f"buffer_load_dwordx4 {vr(Vb[vb][j],4)}, v{vV0+j}, s[{sV}:{sV+3}], s{sOV} offen{SC}")
    def group(kb, vb, koff, inloop=False):
        if inloop and noload: return
        if not (krskip and inloop):
            ex(sLo, inloop); ldKr(kb, koff)
        elif kb % 2 == 0:
            a(f"buffer_load_dwordx2 {vr(P,2)}, v{vKr}, s[{sK}:{sK+3}], s{sOK} offen offset:{koff}")
        ex(sVm, inloop); ldV(vb, 0); ldV(vb, 1)
        ex(None, inloop); ldKm(kb, koff)
        a(f"s_add_u32 s{sOV}, s{sOV}, {WL.VT}")
    group(1, 0, 512)
    if s2late: setup2()
    a("s_waitcnt vmcnt(6)")
    st.stamp("qld")
    for q in range(2):
        a(f"v_mfma_f32_32x32x16_bf16 {vr(S[q],16)}, {vr(K0m,4)}, {vr(Qm[q],4)}, 0")
    if glate: a("s_nop 7")
    else: group(2, 1, 1024)
    a("s_nop 1")
    for q in range(2):
        a(f"v_mfma_f32_32x32x8_bf16 {vr(S[q],16)}, {vr(K0r,2)}, {vr(Qr[q],2)}, {vr(S[q],16)}")
    if glate: a("s_nop 7")
    else: group(3, 2, 1536)
    a("s_nop 3")
    for q in range(2):
        a(f"v_max3_f32 v{S[q]}, v{S[q]}, v{S[q]+1}, v{S[q]+2}")
        for i in range(3, 9 if m8 else 15, 2):
            a(f"v_max3_f32 v{S[q]}, v{S[q]}, v{S[q]+i}, v{S[q]+i+1}")
        if not m8: a(f"v_max_f32 v{S[q]}, v{S[q]}, v{S[q]+15}")
    a(f"s_mov_b64 exec, s[{sHi}:{sHi+1}]")
    for q in range(2):
        a(f"v_cvt_pk_bf16_f32 v{Qr[q]}, -v{S[q]}, 0")
    a("s_mov_b64 exec, -1")
    for i in range(8, 16, 2): a(f"v_mov_b64 {vr(S[1]+i,2)}, 0")
    a("s_waitcnt vmcnt(%d)" % (4 if glate else 12))
    a(f"v_mfma_f32_32x32x16_bf16 {vr(S[0],16)}, {vr(Km[0],4)}, {vr(Qm[0],4)}, 0")
    a(f"s_add_u32 s{sT}, s{sHp}, {WL.OF}")
    srd(a, sQ, sWS, f"s{sT}", 5 * WL.PL)
    a("s_nop 3")
    a(f"v_mfma_f32_32x32x8_bf16 {vr(S[0],16)}, {vr(Kr[0],2)}, {vr(Qr[0],2)}, {vr(S[0],16)}")
    if glate:
        group(2, 1, 1024); group(3, 2, 1536)
    if gdefer == 2:
        a(f"s_cmp_eq_u32 s{sGF}, 0")
        a(f"s_cbranch_scc1 {L('gs2')}")
        g_stores(sD)
        a.label(L("gs2"))
    def p2_loads():
        a(f"buffer_load_dword v{vQF}, v{vKF}, s[{sFl}:{sFl+3}], s{sT2} offen sc1")
        if wpack:
            a(f"v_lshlrev_b32 v{vT[0]}, 2, v{vL}")
            a(f"s_mov_b32 s{sT}, {WL.FP}")
            a(f"buffer_load_dword v{GFl+9}, v{vT[0]}, s[{sFl}:{sFl+3}], s{sT} offen sc1")
    if defer:
        a(f"s_cmp_eq_u32 s{sDef}, 0")
        a(f"s_cbranch_scc1 {L('nd')}")
        srd(a, sD, sWS, WL.QF, WL.G - WL.QF)
        for bb in range(2):
            for aa in range(2): astore(sD, aa, bb)
        signal("nd")
    if wpack:
        a(f"v_lshlrev_b32 v{vWo}, 4, v{vL}")
        a(f"s_and_b32 s{sT}, s{sW}, 3")
        a(f"s_lshl_b32 s{sOWo}, s{sT}, 10")
        a(f"s_mul_i32 s{sM0}, s{sKh}, 51200")
        a(f"s_add_u32 s{sM0}, s{sM0}, s{sOWo}")
        a(f"s_mov_b32 s{sStep}, 4096"); a(f"s_mov_b32 s{sStep2}, 4096"); a(f"s_mov_b32 s{sMs}, 4096")
        a(f"s_mov_b32 s{sDm+1}, -1")
    else:
        dma_params(1280, 160, 10, 0)
    if prog:
        a(f"s_and_b32 s{sT}, s{sW}, 3")
        a(f"s_cbranch_scc1 {L('np2')}")
        a(f"s_mov_b32 s{sT2}, {WL.FA}")
        p2_loads()
        a.label(L("np2"))
    a(f"s_mov_b32 s{sCnt}, 7")
    a("s_mov_b64 vcc, 0")
    a("s_setprio 3")
    st.stamp("lbeg")
    def exp(q, i): a(f"v_exp_f32 v{S[q]+i}, v{S[q]+i}")
    def pv(o, vb, sreg):
        a(f"v_smfmac_f32_32x32x32_bf16 {vr(o,16)}, {vr(vb,4)}, {vr(sreg,8)}, v{vIdx}")
    def slot(kt, q):
        nq = 1 - q
        nk = (kt + q) % 4
        pk = (kt + q - 1) % 4
        def mem():
            if q == 0:
                group(kt, (kt - 1) % 4, 512 * (kt + 4), True)
                if kt == 0:
                    a(f"s_cmp_eq_u32 s{sCnt}, 0")
                    a(f"s_cselect_b32 s{sV+2}, 0, s{sV+2}")
            elif not (dhalf and kt % 2):
                a(f"s_cbranch_vccz {L('nd%d' % kt)}")
                a(f"s_mov_b64 exec, s[{sDm}:{sDm+1}]")
                a(f"s_mov_b32 m0, s{sM0}")
                a(f"s_add_u32 s{sM0}, s{sM0}, s{sMs}")
                a(f"buffer_load_dwordx4 v{vWo}, s[{sWo}:{sWo+3}], s{sOWo} offen{' sc1' if dsc1 else ''} lds")
                a(f"s_add_u32 s{sOWo}, s{sOWo}, s{sStep2 if kt % 2 else sStep}")
                a("s_mov_b64 exec, -1")
                a.label(L("nd%d" % kt))
        exp(q, 0); exp(q, 1)
        pv(O[nq], Vb[pk][1], S[nq] + 8)
        for i in range(2, 5): exp(q, i)
        a(f"v_mfma_f32_32x32x16_bf16 {vr(S[nq],16)}, {vr(Km[nk],4)}, {vr(Qm[nq],4)}, 0")
        for i in range(5, 8): exp(q, i)
        a(f"v_mfma_f32_32x32x8_bf16 {vr(S[nq],16)}, {vr(Kr[nk],2)}, {vr(Qr[nq],2)}, {vr(S[nq],16)}")
        if lpos == 2: mem()
        for i in range(8, 12): exp(q, i)
        if q == 0 and not nowait: a("s_waitcnt vmcnt(%d)" % (12 if lpos == 2 else 8))
        pv(O[q], Vb[kt][0], S[q])
        if lpos == 3: mem()
        for i in range(12, 16): exp(q, i)
    def gfl_loads():
        a(f"v_mul_u32_u24 v{vT[0]}, 48, v{vL}")
        a(f"buffer_load_dwordx4 {vr(GFl,4)}, v{vT[0]}, s[{sFl}:{sFl+3}], 0 offen offset:{WL.FG} sc1")
        a(f"buffer_load_dwordx4 {vr(GFl+4,4)}, v{vT[0]}, s[{sFl}:{sFl+3}], 0 offen offset:{WL.FG+16} sc1")
        a(f"buffer_load_dwordx2 {vr(GFl+8,2)}, v{vT[0]}, s[{sFl}:{sFl+3}], 0 offen offset:{WL.FG+32} sc1")
        a(f"s_lshr_b32 s{sT}, s{sCc}, 1")
        a(f"s_lshr_b32 s{sT2}, s{sU0}, 11")
        a(f"v_mov_b32 v{vT[0]}, s{sT}")
        a(f"s_mov_b64 exec, s[{sHi}:{sHi+1}]")
        a(f"v_mov_b32 v{vT[0]}, s{sT2}")
        a("s_mov_b64 exec, -1")
        a(f"v_lshlrev_b32 v{vT[0]}, 7, v{vT[0]}")
        a(f"s_mov_b32 s{sT}, {WL.FA + 240*128}")
        a(f"buffer_load_dword v{GFl+10}, v{vT[0]}, s[{sFl}:{sFl+3}], s{sT} offen sc1")
        a(f"s_lshl_b32 s{sT}, s{sCc}, 1")
        a(f"s_add_u32 s{sT}, s{sT}, s{sKh}")
        a(f"s_lshl_b32 s{sT}, s{sT}, 6")
        a(f"s_add_u32 s{sT}, s{sT}, {WL.FO}")
        a(f"v_and_b32 v{vT[0]}, 15, v{vL}")
        a(f"v_lshlrev_b32 v{vT[0]}, 2, v{vT[0]}")
        if oflag: a(f"v_mov_b32 v{GFl+11}, s{sNonce}")
        else: a(f"buffer_load_dword v{GFl+11}, v{vT[0]}, s[{sFl}:{sFl+3}], s{sT} offen sc1")
    a("s_nop 9")
    a(f"s_branch {L('loop')}")
    a.label(L("head"))
    for lvl, c in zip((2, 1, 0), prio):
        a(f"s_cmp_lg_u32 s{sCnt}, {c-1}")
        a(f"s_cbranch_scc1 {L('hp%d' % lvl)}")
        a(f"s_setprio {lvl}")
        a.label(L("hp%d" % lvl))
    if wpack:
        a(f"s_cmp_eq_u32 s{sCnt}, 3")
        a("s_cselect_b64 vcc, 0, vcc")
    for c in (4, 2, 1, 0):
        a(f"s_cmp_eq_u32 s{sCnt}, {c}")
        a(f"s_cbranch_scc1 {L('h%d' % c)}")
    a(f"s_cmp_lg_u32 s{sCnt}, 6")
    a(f"s_cbranch_scc1 {L('loop')}")
    if prog:
        a(f"s_and_b32 s{sT}, s{sW}, 3")
        a(f"s_cbranch_scc1 {L('p2w')}")
        a(f"s_mov_b32 s{sT2}, {WL.FA}")
        spin_begin("p2")
        if wpack:
            a(f"v_xor_b32 v{GFl+9}, s{sNonce}, v{GFl+9}")
            a(f"v_xor_b32 v{vQF}, s{sNonce}, v{vQF}")
            a(f"v_or_b32 v{vQF}, v{vQF}, v{GFl+9}")
            a(f"v_cmp_ne_u32 vcc, 0, v{vQF}")
        else:
            a(f"v_cmp_ne_u32 vcc, s{sNonce}, v{vQF}")
        a("s_nop 1")
        a("s_cmp_eq_u64 vcc, 0")
        a(f"s_cbranch_scc1 {L('p2d')}")
        p2_loads()
        a("s_waitcnt vmcnt(0)")
        spin_end("p2", 4)
        a.label(L("p2d"))
        a(f"v_mov_b32 v{vT[0]}, 1")
        a(f"ds_write_b32 v{vCtl}, v{vT[0]} offset:24")
        a.label(L("p2w"))
        lds_wait("wb", 24, 1)
    if not noaux: aux_loads()
    lds_wait("wr", 8, 8)
    a("s_mov_b64 vcc, %d" % (0 if (nodma or nowo) else -1))
    if wpack:
        a(f"s_bitcmp1_b32 s{sW}, 1")
        a(f"s_cbranch_scc1 {L('loop')}")
        a(f"s_add_u32 m0, s{sM0}, {48*1024}")
        a(f"s_add_u32 s{sT}, s{sOWo}, {48*1024}")
        a(f"buffer_load_dwordx4 v{vWo}, s[{sWo}:{sWo+3}], s{sT} offen lds")
    a(f"s_branch {L('loop')}")
    a.label(L("h4"))
    a(f"s_cmp_lg_u32 s{sKh}, {2 if oflag else 0}")
    a(f"s_cbranch_scc1 {L('h4b')}")
    a(f"s_lshr_b32 s{sGF}, s{sU0}, 5")
    a(f"s_add_u32 s{sGF}, s{sGF}, s{sHead}")
    a(f"s_lshl_b32 s{sGF}, s{sGF}, 2")
    a(f"s_add_u32 s{sGF}, s{sGF}, {WL.FO}")
    a.label(L("h4b"))
    a(f"s_cmp_eq_u32 s{sGF}, 0")
    a(f"s_cbranch_scc1 {L('loop')}")
    if strict: a("s_waitcnt vmcnt(0)")
    put_flag(f"s{sGF}")
    a(f"s_branch {L('loop')}")
    a.label(L("h2"))
    a(f"s_lshl_b32 s{sT}, s2, 3")
    a(f"s_add_u32 s{sT}, s{sT}, s{sW}")
    a(f"s_cmp_lg_u32 s{sT}, 4")
    a(f"s_cbranch_scc1 {L('ed')}")
    a(f"v_lshlrev_b32 v{vT[0]}, 9, v{vL}")
    a(f"s_mov_b32 s{sT2}, {WL.FA}")
    spin_begin("pe")
    for i in range(4): a(f"buffer_load_dword v{vT[2]+i}, v{vT[0]}, s[{sFl}:{sFl+3}], s{sT2} offen offset:{128*i} sc1")
    a("s_waitcnt vmcnt(0)")
    for i in range(4): a(f"v_xor_b32 v{vT[2]+i}, s{sNonce}, v{vT[2]+i}")
    a(f"v_or3_b32 v{vT[2]}, v{vT[2]}, v{vT[3]}, v{vT[4]}")
    a(f"v_or_b32 v{vT[2]}, v{vT[2]}, v{vT[5]}")
    a(f"v_cmp_ne_u32 vcc, 0, v{vT[2]}")
    a("s_nop 1")
    a("s_cmp_eq_u64 vcc, 0")
    a(f"s_cbranch_scc1 {L('ped')}")
    spin_end("pe")
    a.label(L("ped"))
    if rprobe:
        a(f"v_lshlrev_b32 v{vT[0]}, 2, v{vL}")
        a(f"buffer_load_dword v{vT[2]}, v{vT[0]}, s[64:67], 0 offen sc1")
        a("s_waitcnt vmcnt(0)")
        a(f"v_cmp_ne_u32 vcc, 0, v{vT[2]}")
        a("s_nop 1")
        a("s_bcnt1_i32_b64 s68, vcc")
        a("s_cmp_lt_u32 s68, 2")
        a("s_cbranch_scc1 L_rp1")
        for _ in range(16): a("s_sleep 127")
        a.label("L_rp1")
    put_flag("0")
    a("s_mov_b64 vcc, %d" % (0 if (nodma or wpack) else -1))
    a.label(L("ed"))
    gfl_loads()
    a(f"s_branch {L('loop')}")
    a.label(L("h1"))
    spin_begin("pg")
    for i in range(12): a(f"v_xor_b32 v{GFl+i}, s{sNonce}, v{GFl+i}")
    for i in range(1, 11, 2): a(f"v_or3_b32 v{GFl}, v{GFl}, v{GFl+i}, v{GFl+i+1}")
    a(f"v_or_b32 v{GFl}, v{GFl}, v{GFl+11}")
    a(f"v_cmp_ne_u32 vcc, 0, v{GFl}")
    a("s_nop 1")
    a("s_cmp_eq_u64 vcc, 0")
    a(f"s_cbranch_scc1 {L('pgd')}")
    a("s_sleep 8")
    gfl_loads()
    a("s_waitcnt vmcnt(0)")
    spin_end("pg")
    a.label(L("pgd"))
    a("s_mov_b64 vcc, %d" % (0 if (nodma or nog) else -1))
    srd(a, sWo, sWS, WL.GATE, 2048 * 8)
    a(f"buffer_load_dword v{vG}, v{vGt}, s[{sWo}:{sWo+3}], 0 offen sc1")
    a(f"v_bfe_u32 v{vT[0]}, v{vKr}, 4, 5")
    a(f"v_lshlrev_b32 v{vT[0]}, 3, v{vT[0]}")
    a(f"s_lshl_b32 s{sT}, s{sKh}, 9")
    a(f"s_add_u32 s{sT}, s{sU0}, s{sT}")
    a(f"s_lshr_b32 s{sT}, s{sT}, 1")
    a(f"buffer_load_dword v{vG+1}, v{vT[0]}, s[{sWo}:{sWo+3}], s{sT} offen offset:4 sc1")
    srd(a, sWo, sWS, WL.G, 0 if dzero else WL.G_SIZE)
    a(f"v_mov_b32 v{vWo}, v{vGd}")
    a(f"s_mov_b32 s{sDm+1}, 0xfff")
    dma_params(WL.GA, 176, 2, GIMG)
    a(f"s_branch {L('loop')}")
    a.label(L("h0"))
    a(f"s_mov_b32 s{sK+2}, 0")
    a("s_mov_b64 vcc, 0")
    vR = vGd; vR2 = vWs
    a(f"v_lshrrev_b32 v{vT[2]}, 2, v{vL}")
    a(f"v_and_b32 v{vT[1]}, 3, v{vL}")
    a(f"v_mul_u32_u24 v{vR}, 160, v{vT[2]}")
    a(f"v_lshl_add_u32 v{vR}, v{vT[1]}, 3, v{vR}")
    a(f"s_mul_i32 s{sT}, s{sKh}, {10*5120}")
    a(f"v_add_u32 v{vR}, s{sT}, v{vR}")
    a(f"s_cmp_lt_u32 s{sEb8}, 4")
    a(f"s_cselect_b32 s{sT}, 0, 3")
    a(f"v_xor_b32 v{vT[1]}, s{sT}, v{vT[1]}")
    a(f"v_mul_u32_u24 v{vR2}, 176, v{vT[2]}")
    a(f"v_lshl_add_u32 v{vR2}, v{vT[1]}, 3, v{vR2}")
    a(f"s_mul_i32 s{sT}, s{sKh}, {2*GSTEP}")
    a(f"s_add_u32 s{sT}, s{sT}, {GIMG}")
    a(f"v_add_u32 v{vR2}, s{sT}, v{vR2}")
    def rd(dst, base, off, pitch=160):
        for t in range(5):
            a(f"ds_read_b64_tr_b16 {vr(dst[t],2)}, v{base} offset:{off + 32*t}")
            a(f"ds_read_b64_tr_b16 {vr(dst[t]+2,2)}, v{base} offset:{off + 32*t + 16*pitch}")
    AY = AC
    AF = [[Km[0] + 20 * k + 4 * t for t in range(5)] for k in range(4)] + [[O[0] + 4 * t for t in range(5)]]
    def ycomp(FA, FB, done):
        def ymf(off):
            rd(FA, vR2, off, 176); rd(FB, vR2, GSTEP + off, 176)
            for s_, F in enumerate((FA, FB)):
                a(f"s_waitcnt lgkmcnt({10 - 10*s_})")
                for t in range(5):
                    c = "0" if s_ == 0 else vr(AY[t], 4)
                    a(f"v_mfma_f32_16x16x32_bf16 {vr(AY[t],4)}, {vr(F[t],4)}, {vr(WsF[s_],4)}, {c}")
            a("s_nop 7")
        a(f"s_cmp_lt_u32 s{sEb8}, 4")
        a(f"s_cbranch_scc0 {L('ymir')}")
        ymf(0)
        for t in range(5):
            for i in range(4): a(f"v_mul_f32 v{AY[t]+i}, v{AY[t]+i}, v{vG}")
        a(f"s_branch {L(done)}")
        a.label(L("ymir"))
        a(f"s_lshl_b32 s{sT}, s{sKh}, 31")
        a(f"v_xor_b32 v{vG}, s{sT}, v{vG}")
        ymf(8)
        for t in range(5): a(f"v_mul_f32 v{GFl+t}, v{AY[4-t]}, v{vG}")
        ymf(0)
        for t in range(5):
            for i in range(1, 4): a(f"v_mul_f32 v{FA[t]+i}, v{AY[4-t]+4-i}, v{vG}")
        for t in range(5):
            a(f"v_mov_b32 v{AY[t]}, v{GFl+t}")
            for i in range(1, 4): a(f"v_mov_b32 v{AY[t]+i}, v{FA[t]+i}")
    if not ypost:
        a(f"s_lshl_b32 s{sT}, s{sKh}, 2")
        a(f"v_add_u32 v{vCtl}, s{sT}, v{vCtl}")
        a("s_waitcnt vmcnt(0)")
        lds_inc(24)
        lds_wait("wi", 24, 4)
        ycomp(OFr[0:5], OFr[5:10], "loop")
    a.raw(".p2align 6")
    a.label(L("loop"))
    for kt in range(4):
        for q in range(2): slot(kt, q)
    a(f"s_add_u32 s{sOK}, s{sOK}, 2048")
    evm = 0
    for c in [6, 4, 3, 2, 1, 0] + [p - 1 for p in prio if p > 0]: evm |= 1 << c
    a(f"s_sub_u32 s{sCnt}, s{sCnt}, 1")
    a(f"s_bitcmp1_b32 {hex(~evm & 0xff)}, s{sCnt}")
    a(f"s_cbranch_scc1 {L('loop')}")
    a(f"s_cmp_ge_i32 s{sCnt}, 0")
    a(f"s_cbranch_scc1 {L('head')}")
    pv(O[1], Vb[3][1], S[1] + 8)
    a("s_setprio 3")
    st.stamp("lend")
    srd(a, sD, sWS, WL.OF, 80 * WL.PL)
    def ldO(s_):
        a(f"s_mov_b32 s{sT}, {4*WL.PL*s_}")
        a(f"buffer_load_dwordx4 {vr(OFr[s_],4)}, v{vO}, s[{sD}:{sD+3}], s{sT} offen sc1")
    a(f"s_lshl_b32 s{sT}, s{sKh}, 9")
    a(f"s_add_u32 s{sOK}, s{sU0}, s{sT}")
    a("s_nop 1")
    a(f"s_cmp_eq_u32 s{sKh}, 0")
    a(f"s_cbranch_scc1 {L('x0')}")
    for r in range(3): a(f"ds_write_b128 v{vX0}, {vr(O[0]+4*r,4)} offset:{1024*r}")
    a("s_waitcnt lgkmcnt(0)")
    for i in range(12): a(f"v_mov_b32 v{O[0]+i}, v{O[1]+i}")
    for i in range(4): a(f"v_mov_b32 v{Qm[0]+i}, v{Qm[1]+i}")
    for i in range(2): a(f"v_mov_b32 v{Qr[0]+i}, v{Qr[1]+i}")
    a(f"s_branch {L('x1')}")
    a.label(L("x0"))
    for r in range(3): a(f"ds_write_b128 v{vX0}, {vr(O[1]+4*r,4)} offset:{1024*r}")
    a.label(L("x1"))
    a("s_waitcnt vmcnt(0) lgkmcnt(0)")
    assert Km[0] + 80 <= O[0] and O[0] + 20 <= K0m
    EX = GFl
    if oearly:
        for s_ in range(10): ldO(s_)
    a("s_barrier")
    st.stamp("x1")
    for r in range(3): a(f"ds_read_b128 {vr(EX+4*r,4)}, v{vX1} offset:{1024*r}")
    a("s_waitcnt vmcnt(%d)" % (10 if oearly else 0))
    rd(AF[0], vR, 0)
    a("s_waitcnt lgkmcnt(%d)" % (0 if (stamps and "x1" in snames) else 10))
    for i in range(12): a(f"v_add_f32 v{O[0]+i}, v{O[0]+i}, v{EX+i}")
    def bcast_l():
        a(f"v_mov_b32 v{O[0]+12}, v{O[0]+8}")
        a(f"v_mov_b32 v{O[0]+13}, v{O[0]+8}")
        a("s_nop 1")
        a(f"v_permlane32_swap_b32 v{O[0]+13}, v{O[0]+12}")
        a("s_nop 1")
    bcast_l()
    a(f"v_mul_f32 v{vM}, 0, v{O[0]}")
    for i in range(1, 12): a(f"v_fmac_f32 v{vM}, 0, v{O[0]+i}")
    a(f"v_add_f32 v{vM}, v{vM}, v{O[0]+12}")
    a(f"v_cmp_nge_f32 vcc, 0x71800000, v{vM}")
    a(f"s_mov_b32 s{sT}, 0x21800000")
    a(f"v_cmp_gt_f32 s[{sT2+1}:{sT2+2}], s{sT}, v{vM}")
    a("s_nop 1")
    a(f"s_or_b64 vcc, vcc, s[{sT2+1}:{sT2+2}]")
    a(f"s_cbranch_scc1 {L('slow')}")
    a.label(L("fin"))
    a(f"v_rcp_f32 v{vM}, v{O[0]+12}")
    a("s_nop 0")
    a(f"v_mul_f32 v{vM}, v{vM}, v{vG+1}")
    for i in range(12): a(f"v_mul_f32 v{O[0]+i}, v{O[0]+i}, v{vM}")
    PO = K0m
    assert K0r == K0m + 4
    for i in range(6): a(f"v_cvt_pk_bf16_f32 v{PO+i}, v{O[0]+2*i}, v{O[0]+2*i+1}")
    for i in range(6): a(f"v_min_u32 v{PO+i}, -2, v{PO+i}")
    a(f"buffer_store_dwordx4 {vr(PO,4)}, v{vKm}, s[{sQ}:{sQ+3}], s{sOK} offen sc1")
    a(f"s_mov_b64 exec, s[{sLo}:{sLo+1}]")
    a(f"buffer_store_dwordx2 {vr(PO+4,2)}, v{vKr}, s[{sQ}:{sQ+3}], s{sOK} offen sc1")
    a("s_mov_b64 exec, -1")
    st.stamp("ost")
    if stamps and "ost" in snames: a("s_waitcnt lgkmcnt(0)")

    if not oearly:
        if obar: a("s_barrier")
        lo, hi = min(nfirst), max(nfirst)
        for s_ in range(lo): ldO(s_)
        if hi > lo:
            a(f"s_cmp_eq_u32 s{sKh}, 0")
            a(f"s_cbranch_scc1 {L('nf1')}")
            for s_ in range(lo, hi): ldO(s_)
            a.label(L("nf1"))
    def o_flag():
        a(f"s_lshr_b32 s{sT2}, s{sU0}, 9")
        a(f"s_add_u32 s{sT2}, s{sT2}, s{sKh}")
        a(f"s_lshl_b32 s{sT2}, s{sT2}, 5")
        a(f"s_add_u32 s{sT2}, s{sT2}, s{sHead}")
        a(f"s_lshl_b32 s{sT2}, s{sT2}, 7")
        a(f"s_add_u32 s{sT2}, s{sT2}, {WL.FO}")
        a("s_waitcnt vmcnt(0)")
        put_flag(f"s{sT2}")
    if oflag == 1:
        rd(AF[1], vR, 5120)
        o_flag()
    if ypost:
        ycomp(AF[2], AF[3], "ydone")
        a.label(L("ydone"))
    if oflag == 2: o_flag()
    if not oearly:
        if hi > lo:
            a(f"s_cmp_lg_u32 s{sKh}, 0")
            a(f"s_cbranch_scc1 {L('nf2')}")
            for s_ in range(lo, hi): ldO(s_)
            a.label(L("nf2"))
        if afirst:
            for k in range(2 if oflag == 1 else 1, 4): rd(AF[k], vR, 5120 * k)
        if odelay: a(f"s_sleep {odelay}")
        if oflag:
            a(f"s_lshl_b32 s{sT}, s{sCc}, 1")
            a(f"s_bfe_u32 s{sT2}, s{sW}, 0x10001")
            a(f"s_add_u32 s{sT}, s{sT}, s{sT2}")
            a(f"s_lshl_b32 s{sT}, s{sT}, 1")
            a(f"s_add_u32 s{sT}, s{sT}, s{sKh}")
            a(f"s_lshl_b32 s{sT2}, s{sT}, 11")
            a(f"s_add_u32 s{sT2}, s{sT2}, {WL.FO}")
            a(f"v_and_b32 v{vT[0]}, 15, v{vL}")
            a(f"v_lshlrev_b32 v{vT[0]}, 7, v{vT[0]}")
            spin_begin("po")
            a(f"buffer_load_dword v{vT[2]}, v{vT[0]}, s[{sFl}:{sFl+3}], s{sT2} offen sc1")
            a("s_waitcnt vmcnt(0)")
            a(f"v_cmp_ne_u32 vcc, s{sNonce}, v{vT[2]}")
            a("s_nop 1")
            a("s_cmp_eq_u64 vcc, 0")
            a(f"s_cbranch_scc1 {L('pod')}")
            spin_end("po", 2)
            a.label(L("pod"))
        for s_ in range(hi, oahead): ldO(s_)
    AB = AF[0]
    if not afirst:
        for k in range(1, 4): rd(AF[k], vR, 5120 * k)
    srd(a, sC, 22, 0, 2048 * 1280)
    a(f"s_mov_b32 s59, {SPIN}")
    st.stamp("pbeg")
    if stamps and "pbeg" in snames: a("s_waitcnt lgkmcnt(0)")
    def chk(s_):
        o = OFr[s_]
        a(f"v_max3_u32 v{vT[0]}, v{o}, v{o+1}, v{o+2}")
        a(f"v_max_u32 v{vT[0]}, v{vT[0]}, v{o+3}")
        a(f"v_cmp_eq_u32 vcc, -1, v{vT[0]}")
        a("s_nop 1")
        a("s_cmp_eq_u64 vcc, 0")
    nst = 2 if oearly else 0
    for s_ in range(10):
        a.label(L("st%d" % s_))
        a(f"s_waitcnt vmcnt({min(9 - s_, oahead - 1) + nst})")
        if not oflag:
            chk(s_)
            a(f"s_cbranch_scc1 {L('ok%d' % s_)}")
        if oflag: pass
        elif rmode == 1:
            a.label(L("sp%d" % s_))
            a(f"s_sleep {rsleep}")
            ldO(s_)
            a("s_waitcnt vmcnt(0)")
            a("s_sub_u32 s59, s59, 1")
            a("s_cmp_lt_i32 s59, 0")
            a(f"s_cbranch_scc1 {L('ok%d' % s_)}")
            chk(s_)
            a(f"s_cbranch_scc0 {L('sp%d' % s_)}")
            if s_ < 9: a(f"s_call_b64 s[{sE}:{sE+1}], {L('retry')}")
        else:
            a(f"s_call_b64 s[{sE}:{sE+1}], {L('retry')}")
            a(f"s_cbranch_scc1 {L('st%d' % s_)}")
        a.label(L("ok%d" % s_))
        if s_ + oahead < 10: ldO(s_ + oahead)
        st.stamp("s%d" % s_)
        if stamps and ("s%d" % s_) in snames: a("s_waitcnt lgkmcnt(0)")
        a("s_waitcnt lgkmcnt(%d)" % (0 if s_ == 9 else (15 if s_ < 8 else 10)))
        for t in range(5):
            a(f"v_mfma_f32_16x16x32_bf16 {vr(AY[t],4)}, {vr(AF[s_ % 5][t],4)}, {vr(OFr[s_],4)}, {vr(AY[t],4)}")
        if s_ + 4 < 10: rd(AF[(s_ + 4) % 5], vR, 5120 * (s_ + 4))
    st.stamp("dmf")
    if dpair:
        a(f"s_lshl_b32 s{sT}, s{sW}, 2")
        a(f"v_add_u32 v{vT[4]}, s{sT}, v{vCtl}")
        a(f"v_mov_b32 v{vT[5]}, 1")
        a(f"v_xor_b32 v{vCtl}, 16, v{vT[4]}")
        a("s_nop 1")
    else:
        a("s_nop 7")
    if probe:
        a("s_memrealtime s[72:73]")
        a("s_waitcnt lgkmcnt(0)")
        a("s_sub_u32 s72, s72, s70")
        a(f"s_cmp_lt_u32 s72, {probe}")
        a(f"s_cbranch_scc1 {L('prb')}")
        a(f"buffer_load_dword v{vT[0]}, off, s[64:67], 0 sc1")
        a("s_waitcnt vmcnt(0)")
        a(f"v_readfirstlane_b32 s72, v{vT[0]}")
        a("s_nop 1")
        a("s_cmp_lg_u32 s72, 0")
        a(f"s_cbranch_scc1 {L('prb')}")
        for t in range(5): a(f"v_mov_b32 v{AY[t]}, 0x7fc00000")
        a.label(L("prb"))
    def dfin(keep, send):
        for r, t in enumerate(send): a(f"ds_write_b128 v{vX1}, {vr(AY[t],4)} offset:{1024*r}")
        a("s_waitcnt lgkmcnt(0)")
        if dpair:
            a(f"ds_write_b32 v{vT[4]}, v{vT[5]} offset:32")
            lds_wait("wd%d" % keep[0], 32, 1, 0)
        else:
            a("s_barrier")
        for r, t in enumerate(keep): a(f"ds_read_b128 {vr(AB[t],4)}, v{vX0} offset:{1024*r}")
        for r, t in enumerate(keep):
            a(f"s_waitcnt lgkmcnt({len(keep)-1-r})")
            for i in range(4): a(f"v_add_f32 v{AY[t]+i}, v{AY[t]+i}, v{AB[t]+i}")
            a(f"v_cvt_pk_bf16_f32 v{AY[t]}, v{AY[t]}, v{AY[t]+1}")
            a(f"v_cvt_pk_bf16_f32 v{AY[t]+1}, v{AY[t]+2}, v{AY[t]+3}")
            a(f"buffer_store_dwordx2 {vr(AY[t],2)}, v{vSt}, s[{sC}:{sC+3}], 0 offen offset:{32*t} {osc}")
    a(f"s_cmp_eq_u32 s{sKh}, 0")
    a(f"s_cbranch_scc1 {L('d0')}")
    dfin([3, 4], [0, 1, 2])
    a(f"s_branch {L('dend')}")
    a.label(L("d0"))
    dfin([0, 1, 2], [3, 4])
    a.label(L("dend"))
    st.finish(9)
    a.label(L("end"))
    a("s_endpgm")

    a.label(L("retry"))
    a("s_waitcnt vmcnt(0)")
    if rsleep and rmode == 0: a(f"s_sleep {rsleep}")
    for s_ in range(10):
        chk(s_)
        a(f"s_cbranch_scc1 {L('rt%d' % s_)}")
        ldO(s_)
        a.label(L("rt%d" % s_))
    a("s_waitcnt vmcnt(0)")
    a("s_sub_u32 s59, s59, 1")
    a("s_cmp_gt_i32 s59, 0")
    a(f"s_setpc_b64 s[{sE}:{sE+1}]")
    a.label(L("slow"))
    sSK = sT2 + 1; sSV = sT2 + 2
    a("s_waitcnt vmcnt(0) lgkmcnt(0)")
    assert AF[0][4] + 4 <= Vb[0][0]
    a(f"v_mov_b32 v{Kr[0]}, 0x3f803f80")
    a(f"v_mov_b32 v{Kr[0]+1}, 0x3f80")
    a(f"s_mov_b32 s{sK+2}, {5*WL.PL}")
    a(f"s_mov_b32 s{sV+2}, {64*WL.VT}")
    a(f"s_mov_b64 exec, s[{sHi}:{sHi+1}]")
    a(f"v_mov_b32 v{Qr[0]}, 0")
    a(f"v_mov_b32 v{Qr[0]+1}, 0")
    a("s_mov_b64 exec, -1")
    a(f"v_mov_b32 v{vM}, 0xff800000")
    a(f"s_mov_b32 s{sSK}, 0")
    def qk_slow():
        a(f"s_mov_b64 exec, s[{sLo}:{sLo+1}]")
        a(f"buffer_load_dwordx2 {vr(Kr[0],2)}, v{vKr}, s[{sK}:{sK+3}], s{sSK} offen sc1")
        a("s_mov_b64 exec, -1")
        a(f"buffer_load_dwordx4 {vr(Km[0],4)}, v{vKm}, s[{sK}:{sK+3}], s{sSK} offen sc1")
        a("s_waitcnt vmcnt(0)")
        a(f"v_mfma_f32_32x32x16_bf16 {vr(S[0],16)}, {vr(Km[0],4)}, {vr(Qm[0],4)}, 0")
        a("s_nop 11")
        a(f"v_mfma_f32_32x32x8_bf16 {vr(S[0],16)}, {vr(Kr[0],2)}, {vr(Qr[0],2)}, {vr(S[0],16)}")
        a("s_nop 12")
    a.label(L("s1"))
    qk_slow()
    for i in range(0, 16, 2):
        a(f"v_max3_f32 v{vM}, v{vM}, v{S[0]+i}, v{S[0]+i+1}")
    a(f"s_add_u32 s{sSK}, s{sSK}, 512")
    a(f"s_cmp_lt_u32 s{sSK}, {WL.PL}")
    a(f"s_cbranch_scc1 {L('s1')}")
    a(f"v_mov_b32 v{vT[0]}, v{vM}")
    a("s_nop 1")
    a(f"v_permlane32_swap_b32 v{vT[0]}, v{vM}")
    a("s_nop 1")
    a(f"v_max_f32 v{vM}, v{vM}, v{vT[0]}")
    a(f"v_cvt_pk_bf16_f32 v{S[0]}, 0, -v{vM}")
    a(f"v_sub_f32 v{vT[0]}, 0, v{vM}")
    a(f"v_sub_f32 v{vT[0]}, v{vT[0]}, v{S[0]}")
    a(f"v_cvt_pk_bf16_f32 v{S[0]+1}, 0, v{vT[0]}")
    a(f"v_sub_f32 v{vT[1]}, v{vT[0]}, v{S[0]+1}")
    a(f"s_mov_b64 exec, s[{sHi}:{sHi+1}]")
    a(f"v_cvt_pk_bf16_f32 v{Qr[0]}, v{S[0]}, v{S[0]+1}")
    a(f"v_cvt_pk_bf16_f32 v{Qr[0]+1}, v{vT[1]}, 0")
    a("s_mov_b64 exec, -1")
    for i in range(16): a(f"v_mov_b32 v{O[0]+i}, 0")
    a(f"s_mov_b32 s{sSK}, 0")
    a(f"s_mov_b32 s{sSV}, 0")
    a.label(L("s2"))
    a(f"s_mov_b64 exec, s[{sVm}:{sVm+1}]")
    a(f"buffer_load_dwordx4 {vr(Vb[0][0],4)}, v{vV0}, s[{sV}:{sV+3}], s{sSV} offen sc1")
    a(f"buffer_load_dwordx4 {vr(Vb[0][1],4)}, v{vV1}, s[{sV}:{sV+3}], s{sSV} offen sc1")
    qk_slow()
    for i in range(16): exp(0, i)
    a("s_nop 1")
    pv(O[0], Vb[0][0], S[0])
    pv(O[0], Vb[0][1], S[0] + 8)
    a(f"s_add_u32 s{sSK}, s{sSK}, 512")
    a(f"s_add_u32 s{sSV}, s{sSV}, {WL.VT}")
    a(f"s_cmp_lt_u32 s{sSK}, {WL.PL}")
    a(f"s_cbranch_scc1 {L('s2')}")
    a("s_nop 12")
    rd(AF[0], vR, 0)
    bcast_l()
    a(f"s_branch {L('fin')}")
    a.label(L("cend"))
    return a.text(), kernel_desc(name, 256, 102), f"; @launch grid=(256,1,1) block=(512,1,1) lds={LDS_SIZE}"

if __name__ == "__main__":
    import sys
    from gen import build
    path = sys.argv[1]
    sn = [x[3:].split(',') for x in sys.argv if x.startswith('sn=')]
    kw = {x.split('=')[0]: eval(x.split('=')[1]) for x in sys.argv[2:] if not x.startswith('sn=')}
    hd = kw.pop('hdbg', False)
    build(path, [gen(stamps=(2 if hd else bool(sn)), snames=sn[0] if sn else (), **kw)])
```

```python
class Asm:
    def __init__(self):
        self.lines = []
    def __call__(self, s, *a):
        for l in s.split("\n"):
            l = l.strip()
            if l:
                self.lines.append("    " + l)
    def label(self, n):
        self.lines.append(n + ":")
    def raw(self, s):
        self.lines.append(s)
    def c(self, s):
        self.lines.append("    ; " + s)
    def text(self):
        return "\n".join(self.lines) + "\n"

class Alloc:
    def __init__(self, start, limit):
        self.p = start; self.limit = limit; self.hi = start
    def get(self, n=1, align=1):
        if n >= 2 and align < 2: align = 2
        self.p = (self.p + align - 1) // align * align
        r = self.p; self.p += n
        assert self.p <= self.limit, "out of regs"
        self.hi = max(self.hi, self.p)
        return r

def vr(b, n=1):
    return f"v{b}" if n == 1 else f"v[{b}:{b+n-1}]"
def sr(b, n=1):
    return f"s{b}" if n == 1 else f"s[{b}:{b+n-1}]"

def kernel_begin(a, name):
    a.raw(".text")
    a.raw(f".globl {name}")
    a.raw(".p2align 8")
    a.raw(f".type {name},@function")
    a.label(name)

def kernel_desc(name, vgpr, sgpr=96):
    vg = (vgpr + 7) // 8 * 8
    return f""".section .rodata,"a"
.p2align 6
.amdhsa_kernel {name}
  .amdhsa_next_free_vgpr {vg}
  .amdhsa_next_free_sgpr {sgpr}
  .amdhsa_accum_offset {min(256, vg)}
  .amdhsa_group_segment_fixed_size 0
  .amdhsa_kernarg_size 96
  .amdhsa_user_sgpr_count 2
  .amdhsa_user_sgpr_kernarg_segment_ptr 1
  .amdhsa_system_sgpr_workgroup_id_x 1
.end_amdhsa_kernel
"""

def srd(a, d, base, off, nbytes):
    if off == 0:
        a(f"s_mov_b32 s{d}, s{base}")
        a(f"s_and_b32 s{d+1}, s{base+1}, 0xffff")
    else:
        a(f"s_add_u32 s{d}, s{base}, {off if isinstance(off,str) else hex(off)}")
        a(f"s_addc_u32 s{d+1}, s{base+1}, 0")
        a(f"s_and_b32 s{d+1}, s{d+1}, 0xffff")
    a(f"s_mov_b32 s{d+2}, {nbytes if isinstance(nbytes,str) else hex(nbytes)}")
    a(f"s_mov_b32 s{d+3}, 0x20000")

QF_OFF = 0
QF_HS = 64 * 1280
QF_SIZE = 32 * QF_HS
KV_OFF = QF_OFF + QF_SIZE
KV_HS = 64 * 2560
KV_SIZE = 32 * KV_HS
G_OFF = KV_OFF + KV_SIZE
G_SIZE = 32 * 2 * 64 * 1280
OF_OFF = G_OFF + G_SIZE
OF_SIZE = 80 * 2048 * 16
GATE_OFF = OF_OFF + OF_SIZE
GATE_SIZE = 2048 * 8
KA_X, KA_WSRE, KA_WSIM, KA_WDRE, KA_WDIM, KA_BX, KA_WQKV, KA_WO, KA_GW, KA_OUT, KA_DBG, KA_WS = [8*i for i in range(12)]

STAMP_OFF = 1 << 27
class Stamps:
    def __init__(self, a, on, kidx):
        self.a = a; self.on = on; self.kidx = kidx; self.names = []; self.op = 's_memtime'
    def start(self):
        if not self.on: return
        a = self.a
        for i in range(70, 94): a(f"s_mov_b32 s{i}, 0")
        a("s_memrealtime s[70:71]")
        a(f"{self.op} s[74:75]")
        a("s_load_dwordx2 s[68:69], s[0:1], 88")
        a("v_mov_b32 v255, v0")
        a("s_mov_b32 s67, s2")
    def stamp(self, i):
        if not self.on: return
        if isinstance(i, str):
            if i not in self.names: return
            i = self.names.index(i) + 1
        self.a(f"{self.op} s[{74+2*i}:{75+2*i}]")
    def finish(self, i):
        if not self.on: return
        a = self.a
        a("s_mov_b64 exec, -1")
        a("s_waitcnt vmcnt(0)")
        a(f"{self.op} s[{74+2*i}:{75+2*i}]")
        a("s_memrealtime s[72:73]")
        a("s_waitcnt lgkmcnt(0)")
        a(f"s_add_u32 s64, s68, {hex(STAMP_OFF + self.kidx * (1 << 20))}")
        a("s_addc_u32 s65, s69, 0")
        a("s_and_b32 s65, s65, 0xffff")
        a("s_lshl_b32 s68, s67, 10")
        a("s_mov_b32 s66, 0x100000")
        a("s_mov_b32 s67, 0x20000")
        a("v_lshrrev_b32 v254, 6, v255")
        a("v_lshlrev_b32 v254, 6, v254")
        a("v_add_u32 v254, s68, v254")
        a("s_getreg_b32 s69, hwreg(HW_REG_HW_ID)")
        a("s_getreg_b32 s68, hwreg(HW_REG_XCC_ID)")
        a("s_mov_b64 exec, 1")
        for k in range(12):
            a(f"v_mov_b32 v253, s{70+2*k}")
            a(f"buffer_store_dword v253, v254, s[64:67], 0 offen offset:{4*k}")
        a("v_mov_b32 v253, s69")
        a("buffer_store_dword v253, v254, s[64:67], 0 offen offset:48")
        a("v_mov_b32 v253, s68")
        a("buffer_store_dword v253, v254, s[64:67], 0 offen offset:52")
        if self.on == 2:
            a("s_cmp_lg_u32 s2, 136")
            a("s_cbranch_scc1 L_nodbg")
            a("v_readfirstlane_b32 s68, v255")
            a("s_load_dwordx2 s[64:65], s[0:1], 80")
            a("s_waitcnt lgkmcnt(0)")
            a("s_and_b32 s69, s68, 0xc0")
            a("s_cmp_lg_u32 s69, 0")
            a("s_cbranch_scc1 L_nodbg")
            a("s_and_b32 s65, s65, 0xffff")
            a("s_mov_b32 s66, 256")
            a("s_lshr_b32 s68, s68, 3")
            a("v_mov_b32 v254, s68")
            for k in range(2, 10):
                a(f"s_sub_u32 s68, s{74+2*k}, s74")
                a(f"s_cmp_eq_u32 s{74+2*k}, 0")
                a("s_cselect_b32 s68, 0, s68")
                a("v_mov_b32 v253, s68")
                a(f"buffer_store_dword v253, v254, s[64:67], 0 offen offset:{4*(k-2)}")
            a.label("L_nodbg")

class WL:
    PL = 32768
    FLAG = 0
    EPOCH = 0
    FG = 1024
    FA = 4096
    FO = FA + 256 * 128
    FLAG_SIZE = FO + 2048 * 128
    GATE = FLAG_SIZE
    QF = 327680
    KF = QF + 80 * PL
    KC = KF + 80 * PL
    VF = KC + PL
    VR = 10368
    VT = 4 * VR
    G = VF + 64 * VT
    GA = 21 * 1024
    G_SIZE = 2 * 64 * GA
    OF = G + G_SIZE
    WP = OF + 80 * PL
    FP = FO + 16384
    END = WP + 8 * 102400
assert WL.GATE + 16384 <= WL.QF
```

```python
from asm import *

QSCALE = 0x3ea52b5c
NAME = "gated_mix__spectral_fnet__softmax_full_mha__prompt_kernel"
LDS_X = 131072
LDS_CTL = LDS_X + 24576
LDS_SIZE = LDS_CTL + 64
GSTEP = 32 * 176
GIMG = 20 * 5120
SPIN = 200000
STAGE = [0, 0x8000, 0x18000, 0x10000]

def gen(hbar=True, wdep=1, hp0=0, hp1=0, hsl=4, NL=12, gdel=True, wpace=16, ldel=8, mpos=1, name=NAME, stamps=False, snames=(), rotx=(0, 2, 5, 7, 5, 7, 0, 2), rin=(5, 5), touch=False, tpos=5, gtouch=True, fsplit=5,
        prio=(4, 2, 1), psleep=4, wotouch=False, probe=None, fwait=True, nodma=False, kvsc1=False, noload=False, nowait=False, noexec=False, spread=False, rt=True, fstart=6, rprobe=False, enc=None, encw=0, oearly=False, rsleep=2, rmode=0, ypost=True, obar=False, nfirst=(0, 0), afirst=True, odelay=8, gdefer=0, pois=5, osc='', lprio=3, cprio=2, wsleep=3, ldelay=0, pplain=True, glate=False, m8=False, wsbase=0, cbperm=True, prog=True, strict=True, defer=False, dmask=6, s2late=True, noaux=False, cwarm=False, oahead=4, dsc1=False, dzero=False, dburst=False, dnt=False, dpair=False, peel=True, fcrit=True, cdelay=0, lpos=3, oflag=0, nows=False, krskip=False, dhalf=False, wpack=True, wdtouch=False, nowo=False, nog=False, pfirst=False):
    a = Asm()
    kernel_begin(a, name)
    L = lambda s: f"L_{s}"
    st = Stamps(a, stamps, 0); st.names = list(snames); st.op = 's_memrealtime' if rt else 's_memtime'
    if enc:
        class Enc:
            names = []
            def start(self): a("s_memrealtime s[70:71]"); a("s_memrealtime s[72:73]")
            def stamp(self, n):
                if n == enc: a("s_memrealtime s[72:73]"); a("s_waitcnt lgkmcnt(0)")
            def finish(self, i):
                a("s_lshl_b32 s68, s2, 3"); a("s_add_u32 s68, s68, s52")
                a(f"s_cmp_lg_u32 s68, {136*8+encw}")
                a("s_cbranch_scc1 L_encd")
                a("s_memrealtime s[74:75]"); a("s_waitcnt lgkmcnt(0)")
                a("s_sub_u32 s72, s72, s70"); a("s_lshl_b32 s72, s72, 2"); a("s_add_u32 s72, s72, s74")
                a.label("L_encl")
                a("s_memrealtime s[74:75]"); a("s_waitcnt lgkmcnt(0)")
                a("s_sub_u32 s68, s74, s72"); a("s_cmp_lt_i32 s68, 0")
                a("s_cbranch_scc1 L_encl")
                a.label("L_encd")
        st = Enc()
    sWS = 26
    sA = 28; sB = 32; sC = 36; sD = 40; sFl = 44; sE = 48
    sW = 52; sXc = 53; sJ = 54; sNonce = 55; sT = 56; sT2 = 57; sCnt = 58
    sLo = 60; sVm = 62; sHi = 94; sDm = 96
    sGF = 25
    sAF = 24
    vL = 1; vT = [2, 3, 4, 5, 6, 7]; vCtl = 8
    VB = 10
    TOP = 252 if stamps else 256

    def spin_begin(lab, n=SPIN):
        a(f"s_mov_b32 s59, {n}")
        a.label(L(lab))
    def spin_end(lab, sleep=2):
        a(f"s_sleep {sleep}")
        a("s_sub_u32 s59, s59, 1")
        a("s_cmp_lg_u32 s59, 0")
        a(f"s_cbranch_scc1 {L(lab)}")
    def put_flag(soff):
        a(f"v_mov_b32 v{vT[0]}, 0")
        a(f"v_mov_b32 v{vT[1]}, s{sNonce}")
        a("s_mov_b64 exec, 1")
        a(f"buffer_store_dword v{vT[1]}, v{vT[0]}, s[{sFl}:{sFl+3}], {soff} offen sc1")
        a("s_mov_b64 exec, -1")
    def lds_inc(off):
        a(f"v_mov_b32 v{vT[0]}, 1")
        a("s_mov_b64 exec, 1")
        a(f"ds_add_u32 v{vCtl}, v{vT[0]} offset:{off}")
        a("s_mov_b64 exec, -1")
    def lds_wait(lab, off, val, sl=1):
        spin_begin(lab, 8 * SPIN)
        a(f"ds_read_b32 v{vT[0]}, v{vCtl} offset:{off}")
        a("s_waitcnt lgkmcnt(0)")
        a(f"v_readfirstlane_b32 s{sT}, v{vT[0]}")
        a("s_nop 1")
        a(f"s_cmp_eq_u32 s{sT}, {val}")
        a(f"s_cbranch_scc1 {L(lab+'d')}")
        spin_end(lab, sl)
        a.label(L(lab + "d"))
    def sel_srd(d, cond_s, p0, p1, size):
        a(f"s_cmp_eq_u32 s{cond_s}, 0")
        a(f"s_cselect_b32 s{d}, s{p0}, s{p1}")
        a(f"s_cselect_b32 s{d+1}, s{p0+1}, s{p1+1}")
        a(f"s_and_b32 s{d+1}, s{d+1}, 0xffff")
        a(f"s_mov_b32 s{d+2}, {size}")
        a(f"s_mov_b32 s{d+3}, 0x20000")
    def after_kernarg():
        a("s_waitcnt lgkmcnt(0)")
        st.stamp("karg")
        if wsbase:
            a(f"s_add_u32 s{sWS}, s{sWS}, {hex(wsbase << 20)}")
            a(f"s_addc_u32 s{sWS+1}, s{sWS+1}, 0")
        a(f"s_load_dword s{sNonce}, s[{sWS}:{sWS+1}], {WL.EPOCH}")
        srd(a, sA, 4, 0, 2048 * 1280)
    def masks():
        a("v_mov_b32 v9, 0")
        for i in range(4): a(f"v_mov_b32 v{TOP-36+i}, 0")
        a(f"s_mov_b32 s{sGF}, 0"); a(f"s_mov_b32 s{sAF}, 0"); a("s_mov_b32 s15, 0")
        srd(a, sFl, sWS, WL.FLAG, WL.FLAG_SIZE)
        a(f"v_mov_b32 v{vCtl}, {LDS_CTL}")
        a(f"s_mov_b32 s{sLo}, -1"); a(f"s_mov_b32 s{sLo+1}, 0")
        a(f"s_mov_b32 s{sHi}, 0"); a(f"s_mov_b32 s{sHi+1}, -1")
        a(f"s_mov_b32 s{sVm}, 0xfffff"); a(f"s_mov_b32 s{sVm+1}, 0xfffff")
        a(f"s_mov_b32 s{sDm}, -1"); a(f"s_mov_b32 s{sDm+1}, 0xff")
    def nat_read_addrs(dst, stile, shift):
        a(f"v_and_b32 v{vT[0]}, 31, v{vL}")
        a(f"v_lshrrev_b32 v{vT[1]}, 5, v{vL}")
        a(f"v_bfe_u32 v{vT[2]}, v{vL}, 1, 3")
        a(f"v_xor_b32 v{vT[1]}, v{vT[1]}, v{vT[2]}")
        a(f"v_lshlrev_b32 v{vT[1]}, 4, v{vT[1]}")
        a(f"v_lshl_add_u32 v{vT[0]}, v{vT[0]}, 7, v{vT[1]}")
        a(f"s_lshl_b32 s{sT}, s{stile}, {shift}")
        a(f"v_add_u32 v{dst[0]}, s{sT}, v{vT[0]}")
        for ks in range(1, 4):
            a(f"v_xor_b32 v{dst[ks]}, {32*ks}, v{dst[0]}")

    a("s_cmp_ge_u32 s2, 256")
    a(f"s_cbranch_scc1 {L('end')}")
    st.start()
    if probe:
        a("s_memrealtime s[70:71]")
        a("s_load_dwordx2 s[64:65], s[0:1], 80")
        a("s_waitcnt lgkmcnt(0)")
        a("s_and_b32 s65, s65, 0xffff"); a("s_mov_b32 s66, 256"); a("s_mov_b32 s67, 0x20000")
        a("s_getreg_b32 s68, hwreg(HW_REG_XCC_ID)")
        a("s_xor_b32 s68, s68, s2"); a("s_and_b32 s68, s68, 7")
        a("s_cbranch_scc0 L_pok")
        a("v_mov_b32 v2, 1")
        a("s_mov_b64 exec, 1")
        a("buffer_store_dword v2, off, s[64:67], 0 sc1")
        a("s_mov_b64 exec, -1")
        a.label("L_pok")
    if rprobe:
        a("s_load_dwordx2 s[64:65], s[0:1], 80")
        a("s_waitcnt lgkmcnt(0)")
        a("s_and_b32 s65, s65, 0xffff"); a("s_mov_b32 s66, 256"); a("s_mov_b32 s67, 0x20000")
        a("s_getreg_b32 s68, hwreg(HW_REG_XCC_ID)")
        a("s_sub_u32 s68, s68, s2"); a("s_and_b32 s68, s68, 7")
        a("s_lshl_b32 s68, s68, 2")
        a("v_cmp_eq_u32 vcc, 0, v0")
        a("v_mov_b32 v2, 1")
        a("s_and_saveexec_b64 s[70:71], vcc")
        a("s_cbranch_execz L_rp0")
        a("buffer_store_dword v2, off, s[64:67], s68 sc1")
        a.label("L_rp0")
        a("s_mov_b64 exec, -1")
    a("s_load_dwordx16 s[4:19], s[0:1], 0")
    a("s_load_dwordx8 s[20:27], s[0:1], 64")
    a(f"v_lshrrev_b32 v{vT[0]}, 6, v0")
    a(f"v_and_b32 v{vL}, 63, v0")
    a(f"v_readfirstlane_b32 s{sW}, v{vT[0]}")
    a(f"s_and_b32 s{sXc}, s2, 7")
    a(f"s_lshr_b32 s{sJ}, s2, 3")
    a(f"s_xor_b32 s{sW}, s{sW}, 4")
    sRb = 98; sCb = 99; sWm = 100; sWn = 101; sWl = 3
    a(f"s_and_b32 s{sRb}, s2, 3")
    a(f"s_lshl_b32 s{sRb}, s{sRb}, 2")
    a(f"s_and_b32 s{sT}, s{sJ}, 3")
    a(f"s_add_u32 s{sRb}, s{sRb}, s{sT}")
    a(f"s_lshr_b32 s{sT}, s{sXc}, 2")
    a(f"s_lshr_b32 s{sCb}, s{sJ}, 2")
    a(f"s_cmp_eq_u32 s{sCb}, 7")
    a(f"s_cselect_b32 s{sT2}, 1, 3")
    a(f"s_lshl_b32 s{sT}, s{sT}, s{sT2}")
    a(f"s_cmp_eq_u32 s{sCb}, 7")
    a(f"s_cselect_b32 s{sT2}, s{sT}, 0")
    a(f"s_cselect_b32 s{sT}, 0, s{sT}")
    a(f"s_add_u32 s{sRb}, s{sRb}, s{sT2}")
    a(f"s_add_u32 s{sCb}, s{sCb}, s{sT}")
    if cbperm:
        tab = [5, 6, 7, 10, 11, 0, 1, 2, 8, 9, 12, 13, 14, 3, 4, 0]
        tv = sum(c << (4 * i) for i, c in enumerate(tab))
        a(f"s_mov_b32 s{sT}, {hex(tv & 0xffffffff)}")
        a(f"s_mov_b32 s{sT2}, {hex(tv >> 32)}")
        a(f"s_lshl_b32 s{sCb}, s{sCb}, 2")
        a(f"s_lshr_b64 s[{sT}:{sT2}], s[{sT}:{sT2}], s{sCb}")
        a(f"s_and_b32 s{sCb}, s{sT}, 15")
    a(f"s_and_b32 s{sWl}, s{sW}, 3")
    a(f"s_and_b32 s{sWm}, s{sW}, 1")
    a(f"s_lshr_b32 s{sWn}, s{sWl}, 1")
    a(f"s_cmp_lt_u32 s{sW}, 4")
    a(f"s_cbranch_scc1 {L('comp')}")

    V = Alloc(VB, TOP)
    vRX = [V.get() for _ in range(4)]
    vFW = [V.get() for _ in range(2)]; vFs = V.get(); V.get(); vGs = 9
    V.get(2)
    XR = [[V.get(4, 4) for _ in range(4)] for _ in range(10)]
    FR = V.get(8, 4); FIn = V.get(8, 4)
    ZA = V.get(16, 4); ZB = V.get(16, 4)
    BF = [[V.get(4, 4) for _ in range(2)] for _ in range(3)]
    vDX = [BF[0][0] + i for i in range(4)]; vDW = [BF[0][1] + i for i in range(4)]
    sOX = sD; sOW = sD + 1; sM0 = sD + 2; sBeta = sD + 3; sSp = sE
    if lprio: a(f"s_setprio {lprio}")
    a(f"v_and_b32 v{vT[3]}, 7, v{vL}")
    a(f"v_lshrrev_b32 v{vT[4]}, 4, v{vL}")
    a(f"v_xor_b32 v{vT[3]}, v{vT[3]}, v{vT[4]}")
    a(f"v_lshlrev_b32 v{vT[3]}, 4, v{vT[3]}")
    a(f"v_xor_b32 v{vT[4]}, 64, v{vT[3]}")
    a(f"v_bfe_u32 v{vT[5]}, v{vL}, 3, 2")
    a(f"v_lshrrev_b32 v{vT[1]}, 5, v{vL}")
    a(f"v_lshl_add_u32 v{vT[5]}, v{vT[1]}, 3, v{vT[5]}")
    a(f"s_lshl_b32 s{sT}, s{sRb}, 1")
    a(f"s_add_u32 s{sT}, s{sT}, s{sWn}")
    a(f"s_lshl_b32 s{sT2}, s{sWm}, 5")
    a(f"s_add_u32 s{sCnt}, s{sT}, s{sT2}")
    a(f"v_lshl_add_u32 v{vT[1]}, v{vT[5]}, 6, s{sCnt}")
    a(f"v_mul_u32_u24 v{vT[1]}, 1280, v{vT[1]}")
    a(f"v_add_u32 v{vDX[0]}, v{vT[1]}, v{vT[3]}")
    a(f"v_add_u32 v{vDX[1]}, v{vT[1]}, v{vT[4]}")
    a(f"v_add_u32 v{vDX[1]}, {4*64*1280-1024}, v{vDX[1]}")
    a(f"v_add_u32 v{vDX[2]}, {16*64*1280-2048}, v{vDX[0]}")
    a(f"v_add_u32 v{vDX[3]}, {16*64*1280-2048}, v{vDX[1]}")
    a(f"v_lshrrev_b32 v{vT[0]}, 4, v{vL}")
    a(f"v_bfe_u32 v{vT[1]}, v{vL}, 2, 2")
    a(f"v_xor_b32 v{vT[1]}, v{vT[1]}, v{vT[0]}")
    a(f"v_and_b32 v{vT[2]}, 3, v{vL}")
    a(f"v_lshl_add_u32 v{vT[1]}, v{vT[1]}, 2, v{vT[2]}")
    a(f"v_lshlrev_b32 v{vT[1]}, 4, v{vT[1]}")
    a(f"s_lshl_b32 s{sT}, s{sWl}, 4")
    a(f"v_add_u32 v{vT[0]}, s{sT}, v{vT[0]}")
    a(f"v_mul_u32_u24 v{vT[0]}, 3840, v{vT[0]}")
    a(f"s_lshl_b32 s{sT}, s{sCb}, 8")
    a(f"v_add3_u32 v{vDW[0]}, v{vT[0]}, v{vT[1]}, s{sT}")
    for j in range(1, 4):
        a(f"v_add_u32 v{vDW[j]}, {j*(4*3840-1024)}, v{vDW[0]}")
    rw = 0
    for i, r in enumerate(rotx): rw |= r << (4 * i)
    a(f"s_lshl_b32 s{sT}, s{sXc}, 2")
    a(f"s_lshr_b32 s{sOX}, {hex(rw)}, s{sT}")
    a(f"s_and_b32 s{sOX}, s{sOX}, 15")
    if rin != (0, 0):
        a(f"s_and_b32 s{sT}, s{sJ}, 3")
        a(f"s_mul_i32 s{sT}, s{sT}, {rin[0]}")
        a(f"s_add_u32 s{sOX}, s{sOX}, s{sT}")
        a(f"s_lshr_b32 s{sT}, s{sJ}, 2")
        a(f"s_mul_i32 s{sT}, s{sT}, {rin[1]}")
        a(f"s_add_u32 s{sOX}, s{sOX}, s{sT}")
        a(f"s_mul_i32 s{sT}, s{sOX}, 205")
        a(f"s_lshr_b32 s{sT}, s{sT}, 11")
        a(f"s_mul_i32 s{sT}, s{sT}, 10")
        a(f"s_sub_u32 s{sOX}, s{sOX}, s{sT}")
    a(f"s_mul_i32 s{sOW}, s{sOX}, {64*3840}")
    a(f"s_lshl_b32 s{sOX}, s{sOX}, 7")
    a(f"s_lshl_b32 s{sM0}, s{sWl}, 12")
    after_kernarg()
    a(f"s_cmp_ge_u32 s{sJ}, 30")
    a(f"s_cbranch_scc1 {L('lgate')}")
    srd(a, sB, 16, 0, 640 * 3840)
    def issue(n):
        a(f"s_add_u32 m0, s{sM0}, {STAGE[n%4]}")
        a("s_nop 0")
        for j in range(4): a(f"buffer_load_dwordx4 v{vDX[j]}, s[{sA}:{sA+3}], s{sOX} offen offset:{1024*j} lds")
        a(f"s_add_u32 m0, s{sM0}, {STAGE[n%4]+0x4000}")
        a(f"s_add_u32 s{sOX}, s{sOX}, 128")
        for j in range(4): a(f"buffer_load_dwordx4 v{vDW[j]}, s[{sB}:{sB+3}], s{sOW} offen offset:{1024*j} lds")
        a(f"s_add_u32 s{sOW}, s{sOW}, {64*3840}")
        a(f"s_cmp_eq_u32 s{sOX}, 1280")
        a(f"s_cselect_b32 s{sOX}, 0, s{sOX}")
        a(f"s_cselect_b32 s{sOW}, 0, s{sOW}")
    issue(0); issue(1)
    masks()
    a(f"s_lshr_b32 s{sBeta}, s{sXc}, 2")
    a(f"s_mul_i32 s{sBeta}, s{sBeta}, 5")
    a(f"s_lshr_b32 s{sT}, s{sJ}, 2")
    a(f"s_add_u32 s{sBeta}, s{sBeta}, s{sT}")
    a(f"s_lshl_b32 s{sT}, s{sBeta}, 1")
    a(f"s_add_u32 s{sT}, s{sT}, s{sWm}")
    a(f"s_lshl_b32 s{sT}, s{sT}, 4")
    a(f"v_add_u32 v{vT[5]}, s{sT}, v{vT[5]}")
    a(f"v_mul_u32_u24 v{vT[5]}, 1280, v{vT[5]}")
    a(f"v_add_u32 v{vFW[0]}, v{vT[5]}, v{vT[3]}")
    a(f"v_add_u32 v{vFW[1]}, v{vT[5]}, v{vT[4]}")
    a(f"v_add_u32 v{vFW[1]}, {4*1280-1024}, v{vFW[1]}")
    a(f"v_add_u32 v{vFs}, {320*1280}, v{vT[3]}")
    a(f"v_and_b32 v{vT[0]}, 31, v{vL}")
    a(f"v_lshrrev_b32 v{vT[1]}, 5, v{vL}")
    a(f"v_lshlrev_b32 v{vGs}, 5, v{vT[0]}")
    a(f"v_lshl_add_u32 v{vGs}, v{vT[1]}, 4, v{vGs}")
    a(f"s_mul_i32 s{sT}, s{sCnt}, {WL.GA}")
    a(f"s_lshl_b32 s{sT2}, s{sBeta}, 11")
    a(f"s_add_u32 s{sT}, s{sT}, s{sT2}")
    a(f"v_add_u32 v{vGs}, s{sT}, v{vGs}")
    a(f"s_mul_i32 s{sCnt}, s{sCnt}, 48")
    a(f"s_lshl_b32 s{sT2}, s{sBeta}, 2")
    a(f"s_add_u32 s{sCnt}, s{sCnt}, s{sT2}")
    a(f"s_add_u32 s{sCnt}, s{sCnt}, {WL.FG}")
    nat_read_addrs(vRX, sWl, 12)
    for n in range(10):
        a(f"s_waitcnt vmcnt({8 if n < 9 else 0}) lgkmcnt(0)")
        a("s_barrier")
        for ks in range(4):
            a(f"ds_read_b128 {vr(XR[n][ks],4)}, v{vRX[ks]} offset:{STAGE[n%4] & 0xffff}")
        if n + 2 < 10: issue(n + 2)
        if n < 9 and (STAGE[n % 4] ^ STAGE[(n + 1) % 4]) & 0x10000:
            for ks in range(4): a(f"v_xor_b32 v{vRX[ks]}, 0x10000, v{vRX[ks]}")
    st.stamp("ldone")
    a(f"s_add_u32 s{sNonce}, s{sNonce}, 1")
    a(f"s_cmp_ge_u32 s{sJ}, 20")
    a(f"s_cbranch_scc1 {L('lq')}")
    a("s_setprio 3")
    a(f"s_mov_b32 s{sGF}, s{sCnt}")
    sel_srd(sB, sWn, 10, 12, 640 * 1280)
    srd(a, sC, 10, 0, 640 * 1280)
    a(f"s_lshl_b32 s{sM0}, s{sWl}, 11")
    a(f"s_lshl_b32 s{sT}, s{sBeta}, 2")
    a(f"s_add_u32 s{sT}, s{sT}, s{sWl}")
    a(f"s_cmp_eq_u32 s{sT}, 2")
    a(f"s_cselect_b32 s{sSp}, 0xffffff00, -1")
    a(f"s_cselect_b64 vcc, -1, 0")
    a(f"s_mov_b32 s{sSp+1}, -1")
    WDB = lambda p: (0x10000 + 8192 * p) if p < 8 else 8192 * (p - 8)
    def wdma(p):
        a(f"s_add_u32 m0, s{sM0}, {WDB(p)}")
        a(f"s_mov_b64 exec, s[{sSp}:{sSp+1}]")
        a(f"buffer_load_dwordx4 v{vFW[0]}, s[{sB}:{sB+3}], s{sOX} offen lds")
        a(f"s_cbranch_vccz {L('fs%d' % p)}")
        a("s_mov_b64 exec, 0xff")
        a(f"buffer_load_dwordx4 v{vFs}, s[{sC}:{sC+3}], s{sOX} offen lds")
        a.label(L("fs%d" % p))
        a("s_mov_b64 exec, -1")
        a(f"buffer_load_dwordx4 v{vFW[1]}, s[{sB}:{sB+3}], s{sOX} offen offset:1024 lds")
        a(f"s_add_u32 s{sOX}, s{sOX}, 128")
        a(f"s_cmp_eq_u32 s{sOX}, 1280")
        a(f"s_cselect_b32 s{sOX}, 0, s{sOX}")
    def twl():
        srd(a, sB, 6, 0, 2048 * 4096)
        srd(a, sC, 8, 0, 2048 * 4096)
        a(f"buffer_load_dwordx4 {vr(FR,4)}, v{vT[2]}, s[{sB}:{sB+3}], 0 offen")
        a(f"buffer_load_dwordx4 {vr(FR+4,4)}, v{vT[2]}, s[{sB}:{sB+3}], 0 offen offset:32")
        a(f"buffer_load_dwordx4 {vr(FIn,4)}, v{vT[2]}, s[{sC}:{sC+3}], 0 offen")
        a(f"buffer_load_dwordx4 {vr(FIn+4,4)}, v{vT[2]}, s[{sC}:{sC+3}], 0 offen offset:32")
    if fcrit:
        a(f"s_and_b32 s{sT}, s{sRb}, 6")
        a(f"s_cbranch_scc1 {L('f0d')}")
        lds_wait("f0", 20, 4)
    for p in range(10 if fcrit else fsplit): wdma(p)
    a(f"v_and_b32 v{vT[2]}, 31, v{vL}")
    a(f"v_lshrrev_b32 v{vT[1]}, 5, v{vL}")
    a(f"v_lshlrev_b32 v{vT[2]}, 18, v{vT[2]}")
    a(f"v_lshl_add_u32 v{vT[2]}, v{vT[1]}, 4, v{vT[2]}")
    a(f"s_lshl_b32 s{sT}, s{sWl}, 12")
    a(f"s_sub_u32 s{sT}, 0x10000, s{sT}")
    for ks in range(4): a(f"v_add_u32 v{vRX[ks]}, s{sT}, v{vRX[ks]}")
    assert not STAGE[9 % 4] & 0x10000
    if fcrit: twl()
    a("s_waitcnt vmcnt(%d)" % (4 + 2 * (10 - fsplit) if fcrit else 0))
    lds_inc(12)
    lds_wait("f1", 12, 4)
    st.stamp("fb0")
    if stamps: a("s_waitcnt lgkmcnt(0)")
    def rdB(s):
        p, ks = divmod(s, 4)
        if s == 32:
            for k in range(4): a(f"v_xor_b32 v{vRX[k]}, 0x10000, v{vRX[k]}")
        for part in range(2):
            a(f"ds_read_b128 {vr(BF[s%3][part],4)}, v{vRX[ks]} offset:{(WDB(p) & 0xffff) + 4096*part}")
    rdB(0); rdB(1)
    H = 4 * fsplit
    for s in range(40):
        if not fcrit:
            if s == fstart and fwait: lds_wait("f0", 20, 4)
            if fstart <= s < fstart + 10 - fsplit: wdma(fsplit + s - fstart)
            if s == fstart + 10 - fsplit: twl()
        if s == H - 2:
            a("s_waitcnt vmcnt(4)")
            lds_inc(16)
            lds_wait("f2", 16, 4)
            st.stamp("fb1")
            if stamps: a("s_waitcnt lgkmcnt(0)")
        if s + 2 < 40: rdB(s + 2)
        a(f"s_waitcnt lgkmcnt({4 if s < 38 else 2*(39-s)})")
        for part, Z in enumerate((ZA, ZB)):
            c = "0" if s == 0 else vr(Z, 16)
            a(f"v_mfma_f32_32x32x16_bf16 {vr(Z,16)}, {vr(XR[s//4][s%4],4)}, {vr(BF[s%3][part],4)}, {c}")
    assert fstart + 10 - fsplit < H - 2
    lds_inc(8)
    st.stamp("fend")
    FRn = XR[0][0]; G0 = XR[1][0]; G1 = XR[2][0]; G2 = XR[3][0]; G3 = XR[4][0]; ZS = XR[5][0]
    a("s_waitcnt vmcnt(0)")
    for i in range(8):
        a(f"v_xor_b32 v{FRn+i}, 0x80008000, v{FR+i}")
        a(f"v_xor_b32 v{FIn+i}, 0x80008000, v{FIn+i}")
    for Z in (ZA, ZB):
        for i in range(8): a(f"v_cvt_pk_bf16_f32 v{Z+i}, v{Z+2*i}, v{Z+2*i+1}")
    m = lambda d, A, B, c: a(f"v_mfma_f32_32x32x16_bf16 {vr(d,16)}, {vr(A,4)}, {vr(B,4)}, {c}")
    GP = TOP - 24
    a("s_nop 0")
    a(f"s_cmp_lg_u32 s{sBeta}, 0")
    a(f"s_cbranch_scc1 {L('fn')}")
    m(G2, ZB, FR, "0"); m(G2, ZB+4, FR+4, vr(G2,16))
    m(G3, ZB, FIn, "0"); m(G3, ZB+4, FIn+4, vr(G3,16))
    a("s_mov_b32 exec_lo, 1"); a("s_mov_b32 exec_hi, 1")
    for i in range(8): a(f"v_mov_b32 v{ZB+i}, 0")
    a(f"s_mov_b64 exec, s[{sLo}:{sLo+1}]")
    a("s_nop 3")
    for i in range(4): a(f"v_mov_b32 v{GP+16+i}, 0"); a(f"v_mov_b32 v{GP+20+i}, 0")
    a(f"v_cvt_pk_bf16_f32 v{GP+16}, v{G2}, 0")
    a(f"v_cvt_pk_bf16_f32 v{GP+20}, v{G3}, 0")
    a("s_mov_b64 exec, -1")
    a.label(L("fn"))
    m(G0, ZA, FR, "0"); m(G0, ZA+4, FR+4, vr(G0,16)); m(G0, ZB, FIn, vr(G0,16)); m(G0, ZB+4, FIn+4, vr(G0,16))
    m(G1, ZB, FRn, "0"); m(G1, ZB+4, FRn+4, vr(G1,16)); m(G1, ZA, FIn, vr(G1,16)); m(G1, ZA+4, FIn+4, vr(G1,16))
    a("s_nop 7")
    for p, g in enumerate((G0, G1)):
        for i in range(8): a(f"v_cvt_pk_bf16_f32 v{GP+8*p+i}, v{g+2*i}, v{g+2*i+1}")
    def g_stores(sd):
        srd(a, sd, sWS, WL.G, WL.G_SIZE)
        a(f"s_mov_b32 s{sT2}, {64*WL.GA}")
        for p in range(2):
            for j in range(2):
                so = "0" if p == 0 else f"s{sT2}"
                a(f"buffer_store_dwordx4 {vr(GP+8*p+4*j,4)}, v{vGs}, s[{sd}:{sd+3}], {so} offen offset:{1024*j} sc1")
        a(f"s_or_b32 s{sT}, s{sXc}, s{sJ}")
        a(f"s_cmp_ge_u32 s{sT}, 4")
        a(f"s_cbranch_scc1 {L('gs1')}")
        a(f"v_add_u32 v{vGs}, {20*1024}, v{vGs}")
        a(f"s_mov_b64 exec, s[{sLo}:{sLo+1}]")
        a(f"buffer_store_dwordx4 {vr(GP+16,4)}, v{vGs}, s[{sd}:{sd+3}], 0 offen sc1")
        a(f"buffer_store_dwordx4 {vr(GP+20,4)}, v{vGs}, s[{sd}:{sd+3}], s{sT2} offen sc1")
        a("s_mov_b64 exec, -1")
        a.label(L("gs1"))
    assert ZB + 8 <= GP
    st.stamp("gst")
    a(f"s_branch {L('help')}")
    a.label(L("lgate"))
    if cwarm:
        a(f"s_getpc_b64 s[{sT}:{sT2}]")
        a.label(L("pc0"))
        a(f"s_sub_u32 s{sT}, s{sT}, {L('pc0')}-{name}")
        a(f"s_subb_u32 s{sT2}, s{sT2}, 0")
        a(f"s_lshl_b32 s{sCnt}, s{sWl}, 13")
        a(f"v_lshl_add_u32 v{vT[0]}, v{vL}, 7, s{sCnt}")
        a(f"v_min_u32 v{vT[0]}, {L('cend')}-{name}-4, v{vT[0]}")
        a(f"global_load_dword v{vT[1]}, v{vT[0]}, s[{sT}:{sT2}]")
    if gtouch:
        sel_srd(sB, sWm, 6, 8, 2048 * 4096)
        a(f"v_and_b32 v{vT[0]}, 31, v{vL}")
        a(f"v_lshlrev_b32 v{vT[0]}, 18, v{vT[0]}")
        a(f"buffer_load_dword v{vT[1]}, v{vT[0]}, s[{sB}:{sB+3}], 0 offen")
    masks()
    a(f"s_lshl_b32 s{sT}, s2, 3")
    a(f"s_add_u32 s{sT}, s{sT}, s{sW}")
    a(f"s_cmp_lg_u32 s{sT}, {240*8+4}")
    a(f"s_cbranch_scc1 {L('ncw')}")
    srd(a, sC, sWS, WL.KC, WL.G - WL.KC)
    for i in range(4): a(f"v_mov_b32 v{ZA+i}, 0x3f803f80")
    a(f"v_mov_b32 v{ZA+4}, 0x3f803f80"); a(f"v_mov_b32 v{ZA+5}, 0x3f80"); a(f"v_mov_b32 v{ZA+6}, 0x3f803f80"); a(f"v_mov_b32 v{ZA+7}, 0x3f80")
    a(f"v_mul_u32_u24 v{vT[2]}, {WL.VR}, v{vL}")
    for i in range(4):
        a(f"s_mov_b32 s{sT}, {WL.PL + 10240 + 64*i*WL.VR}")
        a(f"buffer_store_dwordx4 {vr(ZA,4)}, v{vT[2]}, s[{sC}:{sC+3}], s{sT} offen sc1")
    a(f"v_and_b32 v{vT[2]}, 31, v{vL}")
    a(f"v_lshlrev_b32 v{vT[2]}, 10, v{vT[2]}")
    a(f"buffer_store_dwordx4 {vr(ZA+4,4)}, v{vT[2]}, s[{sC}:{sC+3}], 0 offen sc1")
    a("s_waitcnt vmcnt(0) lgkmcnt(0)")
    a(f"s_add_u32 s{sNonce}, s{sNonce}, 1")
    a(f"s_mov_b32 s{sT}, {WL.FA + 256*128}")
    put_flag(f"s{sT}")
    a(f"s_sub_u32 s{sNonce}, s{sNonce}, 1")
    a.label(L("ncw"))
    if wpack:
        srd(a, sB, 18, 0, 640 * 1280)
        srd(a, sC, sWS, WL.WP, 8 * 102400)
        a(f"s_and_b32 s{sT}, s{sJ}, 1")
        a(f"s_lshl_b32 s{sT}, s{sT}, 2")
        a(f"s_add_u32 s{sCnt}, s{sT}, s{sWl}")
        a(f"v_mul_u32_u24 v{vT[2]}, 205, v{vL}")
        a(f"v_lshrrev_b32 v{vT[2]}, 11, v{vT[2]}")
        a(f"v_mul_u32_u24 v{vT[3]}, {1280-160}, v{vT[2]}")
        a(f"v_lshl_add_u32 v{vT[3]}, v{vL}, 4, v{vT[3]}")
        a(f"s_mul_i32 s{sT}, s{sXc}, 160")
        a(f"v_add_u32 v{vT[3]}, s{sT}, v{vT[3]}")
        a(f"s_mul_i32 s{sT}, s{sXc}, 102400")
        a(f"s_mul_i32 s{sT2}, s{sCnt}, {5*2560}")
        a(f"s_add_u32 s{sT}, s{sT}, s{sT2}")
        a(f"v_lshl_add_u32 v{vT[4]}, v{vL}, 4, s{sT}")
        a(f"s_mul_i32 s{sOX}, s{sCnt}, 5")
        a(f"s_mov_b64 exec, s[{sDm}:{sDm+1}]")
        for u_ in range(5):
            a(f"s_add_u32 s{sT}, s{sOX}, {u_}")
            a(f"s_lshr_b32 s{sT2}, s{sT}, 1")
            a(f"s_and_b32 s{sT}, s{sT}, 1")
            a(f"s_lshl_b32 s{sT2}, s{sT2}, 3")
            a(f"s_add_u32 s{sT}, s{sT}, s{sT2}")
            a(f"s_mul_i32 s{sT}, s{sT}, {4*1280}")
            for g_ in range(4):
                a(f"buffer_load_dwordx4 {vr(XR[u_][g_],4)}, v{vT[3]}, s[{sB}:{sB+3}], s{sT} offen")
                if g_ < 3: a(f"s_add_u32 s{sT}, s{sT}, {8*1280}")
        a("s_mov_b64 exec, -1")
    a("s_waitcnt lgkmcnt(0)")
    a("s_barrier")
    a(f"s_add_u32 s{sNonce}, s{sNonce}, 1")
    if wpack:
        a(f"s_mov_b64 exec, s[{sDm}:{sDm+1}]")
        a("s_waitcnt vmcnt(0)")
        for u_ in range(5):
            a(f"s_mov_b32 s{sT}, {2560*u_}")
            for g_ in range(4):
                a(f"buffer_store_dwordx4 {vr(XR[u_][g_],4)}, v{vT[4]}, s[{sC}:{sC+3}], s{sT} offen offset:{640*g_} sc1")
        a("s_mov_b64 exec, -1")
        a(f"s_lshl_b32 s{sT}, s{sXc}, 3")
        a(f"s_add_u32 s{sT}, s{sT}, s{sCnt}")
        a(f"s_lshl_b32 s{sT}, s{sT}, 2")
        a(f"s_add_u32 s{sT}, s{sT}, {WL.FP}")
        a("s_waitcnt vmcnt(0)")
        put_flag(f"s{sT}")
    a("s_waitcnt vmcnt(0)")
    a(f"s_branch {L('lfree')}")
    a.label(L("lq"))
    a(f"s_cmp_lg_u32 s{sCb}, 0")
    a(f"s_cbranch_scc1 {L('lfree')}")
    lds_wait("g0", 20, 4)
    srd(a, sB, 20, 0, 1280)
    a(f"s_mul_i32 s{sM0}, s{sW}, 3072")
    a(f"s_add_u32 s{sM0}, s{sM0}, {LDS_X}")
    for i in range(3):
        a(f"v_lshlrev_b32 v{vT[0]}, 4, v{vL}")
        if i: a(f"v_add_u32 v{vT[0]}, {1024*i}, v{vT[0]}")
        a(f"v_subrev_u32 v{vT[1]}, 1280, v{vT[0]}")
        a(f"v_min_u32 v{vT[0]}, v{vT[0]}, v{vT[1]}")
        a(f"s_add_u32 m0, s{sM0}, {1024*i}")
        a("s_nop 0")
        a(f"buffer_load_dwordx4 v{vT[0]}, s[{sB}:{sB+3}], 0 offen lds")
    a(f"v_lshrrev_b32 v{vT[2]}, 5, v{vL}")
    a(f"s_add_u32 s{sT}, s{sM0}, s{sOX}")
    a(f"v_lshl_add_u32 v{vT[2]}, v{vT[2]}, 4, s{sT}")
    srd(a, sC, sWS, WL.GATE, 2048 * 8)
    a(f"s_lshl_b32 s{sCnt}, s{sRb}, 2")
    a(f"s_add_u32 s{sCnt}, s{sCnt}, s{sWl}")
    a("s_waitcnt vmcnt(0)")
    GB = [BF[0][0], BF[0][1], BF[1][0], BF[1][1], BF[2][0], BF[2][1]]
    for s_ in range(5): a(f"ds_read_b128 {vr(GB[s_],4)}, v{vT[2]} offset:{32*s_}")
    for s_ in range(40):
        if s_ + 5 < 40: a(f"ds_read_b128 {vr(GB[(s_+5)%6],4)}, v{vT[2]} offset:{32*(s_+5)}")
        a(f"s_waitcnt lgkmcnt({min(5, 39 - s_)})")
        c = "0" if s_ == 0 else vr(ZA, 16)
        a(f"v_mfma_f32_32x32x16_bf16 {vr(ZA,16)}, {vr(GB[s_%6],4)}, {vr(XR[s_//4][s_%4],4)}, {c}")
    a("s_nop 12")
    a(f"v_cvt_pk_bf16_f32 v{ZA}, 0, v{ZA}")
    a(f"v_mul_f32 v{ZA}, 0xbfb8aa3b, v{ZA}")
    a(f"v_exp_f32 v{ZA}, v{ZA}")
    a(f"v_lshlrev_b32 v{vT[2]}, 3, v{vL}")
    a(f"v_add_f32 v{ZA}, 1.0, v{ZA}")
    a(f"v_rcp_f32 v{ZA}, v{ZA}")
    a(f"s_lshl_b32 s{sT}, s{sCnt}, 8")
    a(f"v_cvt_pk_bf16_f32 v{ZB}, 0, v{ZA}")
    a(f"v_sub_f32 v{ZB+1}, 1.0, v{ZB}")
    a(f"v_cvt_pk_bf16_f32 v{ZB+1}, 0, v{ZB+1}")
    a(f"s_mov_b64 exec, s[{sLo}:{sLo+1}]")
    a(f"buffer_store_dwordx2 {vr(ZB,2)}, v{vT[2]}, s[{sC}:{sC+3}], s{sT} offen sc1")
    a("s_mov_b64 exec, -1")
    a(f"s_lshl_b32 s{sGF}, s{sCnt}, 2")
    a(f"s_add_u32 s{sGF}, s{sGF}, {WL.FP + 256}")
    a.label(L("lfree"))
    a("s_waitcnt lgkmcnt(0)")
    lds_inc(8)
    a(f"s_branch {L('help')}")

    a.label(L("comp"))
    V = Alloc(VB, TOP)
    vRX = [V.get() for _ in range(4)]; vRW = [V.get() for _ in range(2)]
    vE = [V.get() for _ in range(8)]
    vTch = V.get(2)
    XF = [[V.get(4, 4) for _ in range(2)] for _ in range(4)]
    WF = [[V.get(4, 4) for _ in range(2)] for _ in range(4)]
    ACC = [[V.get(16, 4) for _ in range(2)] for _ in range(2)]
    PK = TOP - 32
    vS = [PK - 4 + i for i in range(4)]
    sDef = 15
    sMask = sD; sScale = sD + 2
    a(f"s_setprio {cprio}")
    nat_read_addrs(vRX, sWm, 13)
    for x in range(2):
        for w in range(2):
            for i in range(16): a(f"v_mov_b32 v{ACC[x][w]+i}, 0")
    after_kernarg()
    masks()
    a(f"s_cmp_lg_u32 s{sW}, 0")
    a(f"s_cbranch_scc1 {L('c1')}")
    a(f"ds_write_b128 v{vCtl}, {vr(ACC[0][0],4)}")
    for o_ in (16, 32, 48): a(f"ds_write_b128 v{vCtl}, {vr(ACC[0][0],4)} offset:{o_}")
    a.label(L("c1"))
    def poison(sd, pr):
        a(f"s_and_b32 s{sT}, s{sJ}, 3")
        a(f"s_lshl_b32 s{sT2}, s{sXc}, 2")
        a(f"s_add_u32 s{sT}, s{sT}, s{sT2}")
        a(f"s_and_b32 s{sCnt}, s{sT}, 1")
        a(f"s_lshr_b32 s{sT}, s{sT}, 1")
        a(f"s_mul_i32 s{sT}, s{sT}, {5*WL.PL}")
        a(f"s_add_u32 s{sT}, s{sT}, {WL.OF}")
        srd(a, sd, sWS, f"s{sT}", 5 * WL.PL)
        a(f"s_and_b32 s{sT}, s{sJ}, 28")
        a(f"s_add_u32 s{sT}, s{sT}, s{sW}")
        a(f"s_lshl_b32 s{sT}, s{sT}, 10")
        a(f"v_lshl_add_u32 v{vT[0]}, v{vL}, 4, s{sT}")
        for i in range(4): a(f"v_mov_b32 v{pr+i}, -1")
        a(f"s_mul_i32 s{sT}, s{sCnt}, {3*WL.PL}")
        a(f"buffer_store_dwordx4 {vr(pr,4)}, v{vT[0]}, s[{sd}:{sd+3}], s{sT} offen sc1")
        a(f"s_add_u32 s{sT}, s{sT}, {WL.PL}")
        a(f"buffer_store_dwordx4 {vr(pr,4)}, v{vT[0]}, s[{sd}:{sd+3}], s{sT} offen sc1")
        a(f"s_lshl_b32 s{sT}, s{sCnt}, 3")
        a(f"s_add_u32 s{sT}, s{sT}, {2*WL.PL}")
        a(f"buffer_store_dwordx2 {vr(pr,2)}, v{vT[0]}, s[{sd}:{sd+3}], s{sT} offen sc1")
    if pois == 1: poison(sC, PK)
    def mainloop(mode, epi):
        def rdX(s, ks, x): a(f"ds_read_b128 {vr(XF[s][x],4)}, v{vRX[ks]} offset:{4096*x}")
        def rdW(s, ks, w):
            a(f"ds_read_b64_tr_b16 {vr(WF[s][w],2)}, v{vRW[w]} offset:{4096*ks}")
            a(f"ds_read_b64_tr_b16 {vr(WF[s][w]+2,2)}, v{vRW[w]} offset:{4096*ks+1024}")
        def mf(s, x, w):
            A, B = (WF[s][w], XF[s][x]) if mode == 'qk' else (XF[s][x], WF[s][w])
            a(f"v_mfma_f32_32x32x16_bf16 {vr(ACC[x][w],16)}, {vr(A,4)}, {vr(B,4)}, {vr(ACC[x][w],16)}")
        a("s_waitcnt lgkmcnt(0)")
        a("s_barrier")
        st.stamp("b0")
        if stamps: a("s_waitcnt lgkmcnt(0)")
        rdX(0, 0, 0); rdW(0, 0, 0); rdX(0, 0, 1); rdW(0, 0, 1)
        a(f"s_mov_b32 s{sCnt}, 0")
        a.raw(".p2align 5")
        a.label(L(mode + "loop"))
        for ks in range(4):
            s = ks % 2; n = 1 - s; nk = (ks + 1) % 4
            if ks < 3:
                a("s_waitcnt lgkmcnt(3)")
                mf(s, 0, 0)
                if ks == 0 and touch:
                    a(f"s_cmp_lg_u32 s{sCnt}, {tpos}")
                    a(f"s_cbranch_scc1 {L(mode+'nt')}")
                    a(f"buffer_load_dword v{vTch}, v{vTch+1}, s[{sE}:{sE+3}], 0 offen")
                    a.label(L(mode + "nt"))
            else:
                a("s_waitcnt lgkmcnt(0)")
                mf(s, 0, 0)
                a(f"s_add_u32 s{sCnt}, s{sCnt}, 1")
                if not peel:
                    a(f"s_cmp_eq_u32 s{sCnt}, 10")
                    a(f"s_cbranch_scc1 {L(mode+'last')}")
                a("s_barrier")
                for r in vRX + vRW:
                    a(f"v_xor_b32 v{r}, s{sMask}, v{r}")
            rdX(n, nk, 0); rdW(n, nk, 0)
            if ks < 3: a("s_waitcnt lgkmcnt(5)")
            mf(s, 1, 0)
            rdX(n, nk, 1)
            if ks < 3: a("s_waitcnt lgkmcnt(4)")
            mf(s, 0, 1)
            rdW(n, nk, 1)
            if ks == 3: a(f"s_xor_b32 s{sMask}, s{sMask}, 0x18000")
            if ks == 3 and peel: a(f"s_cmp_lg_u32 s{sCnt}, 9")
            mf(s, 1, 1)
        if not peel:
            a(f"s_branch {L(mode+'loop')}")
            a.label(L(mode + "last"))
            mf(1, 0, 1); mf(1, 1, 0); mf(1, 1, 1)
            lds_inc(8)
            st.stamp("aend")
            a("s_nop 1")
            for x in range(2):
                for w in range(2): epi(x, w)
            return
        a(f"s_cbranch_scc1 {L(mode+'loop')}")
        for ks in range(1, 4): rdX(ks, ks, 0); rdW(ks, ks, 0)
        for ks in range(4):
            a(f"s_waitcnt lgkmcnt({[12, 6, 5, 4][ks]})")
            mf(ks, 0, 0)
            if ks >= 1: rdW(ks, ks, 1)
        for ks in range(4):
            if ks: a(f"s_waitcnt lgkmcnt({[0, 4, 3, 2][ks]})")
            mf(ks, 0, 1)
            if ks >= 1: rdX(ks, ks, 1)
        mf(0, 1, 0)
        a("s_waitcnt lgkmcnt(0)")
        mf(1, 1, 0)
        lds_inc(8)
        mf(2, 1, 0)
        epi(0, 0)
        mf(3, 1, 0); mf(0, 1, 1)
        epi(0, 1)
        mf(1, 1, 1); mf(2, 1, 1); mf(3, 1, 1)
        st.stamp("aend")
        epi(1, 0)
        a("s_nop 1")
        epi(1, 1)
    a(f"s_mov_b32 s{sMask}, 0x8000")
    a(f"s_cmp_ge_u32 s{sJ}, 30")
    a(f"s_cbranch_scc1 {L('gate')}")
    a(f"s_lshl_b32 s{sAF}, s{sCb}, 4")
    a(f"s_add_u32 s{sAF}, s{sAF}, s{sRb}")
    if touch:
        sel_srd(sE, sWm, 10, 12, 640 * 1280)
        a(f"s_lshl_b32 s{sT}, s{sJ}, 1")
        a(f"s_add_u32 s{sT}, s{sT}, s{sWn}")
        a(f"s_mul_i32 s{sT}, s{sT}, {27*128}")
        a(f"s_lshr_b32 s{sT2}, s{sXc}, 2")
        a(f"s_mul_i32 s{sT2}, s{sT2}, {160*1280}")
        a(f"s_add_u32 s{sT}, s{sT}, s{sT2}")
        a(f"v_min_u32 v{vTch+1}, 26, v{vL}")
        a(f"v_lshl_add_u32 v{vTch+1}, v{vTch+1}, 7, s{sT}")
    def astore(sd, aa, bb, lab=None):
        if lab and defer: a(f"s_cbranch_vccnz {L('as%s%d%d' % (lab, aa, bb))}")
        for j in range(2):
            a(f"buffer_store_dwordx4 {vr(PK+8*(2*bb+aa)+4*j,4)}, v{vS[2*aa+j]}, s[{sd}:{sd+3}], 0 offen offset:{512*bb} sc1")
        if lab and defer: a.label(L('as%s%d%d' % (lab, aa, bb)))
    srd(a, sC, sWS, WL.QF, WL.G - WL.QF)
    if defer:
        a(f"s_and_b32 s{sDef}, s{sRb}, {dmask}")
        a(f"s_cmp_lt_u32 s{sCb}, 5")
        a(f"s_cselect_b32 s{sDef}, 0, s{sDef}")
        a(f"s_cmp_lg_u32 s{sDef}, 0")
        a("s_cselect_b64 vcc, -1, 0")
    a(f"v_bfe_u32 v{vT[0]}, v{vL}, 2, 2")
    a(f"v_lshrrev_b32 v{vT[1]}, 5, v{vL}")
    a(f"v_lshl_add_u32 v{vT[1]}, v{vT[1]}, 3, v{vT[0]}")
    a(f"v_lshlrev_b32 v{vT[1]}, 8, v{vT[1]}")
    a(f"s_lshl_b32 s{sT}, s{sWn}, 1")
    a(f"v_xor_b32 v{vT[0]}, s{sT}, v{vT[0]}")
    a(f"v_lshl_add_u32 v{vT[1]}, v{vT[0]}, 6, v{vT[1]}")
    a(f"v_bfe_u32 v{vT[0]}, v{vL}, 4, 1")
    a(f"v_lshl_add_u32 v{vT[1]}, v{vT[0]}, 5, v{vT[1]}")
    a(f"v_add_u32 v{vT[1]}, 0x4000, v{vT[1]}")
    a(f"v_and_b32 v{vT[4]}, 31, v{vL}")
    a(f"v_lshrrev_b32 v{vT[5]}, 5, v{vL}")
    a(f"s_cmp_ge_u32 s{sCb}, 10")
    a(f"s_cbranch_scc1 {L('v')}")
    a(f"v_and_b32 v{vT[0]}, 1, v{vL}")
    a(f"v_lshl_add_u32 v{vT[1]}, v{vT[0]}, 4, v{vT[1]}")
    a(f"v_bfe_u32 v{vT[0]}, v{vL}, 1, 1")
    a(f"v_lshl_add_u32 v{vRW[0]}, v{vT[0]}, 3, v{vT[1]}")
    a(f"v_xor_b32 v{vRW[1]}, 64, v{vRW[0]}")
    a(f"s_cmp_ge_u32 s{sCb}, 5")
    a(f"s_cselect_b32 s{sScale}, 1.0, {hex(QSCALE)}")
    a(f"s_mov_b32 s{sScale+1}, s{sScale}")
    a(f"s_lshl_b32 s{sT}, s{sCb}, 1")
    a(f"s_add_u32 s{sT}, s{sT}, s{sWn}")
    sR5 = sD + 1
    a(f"s_lshl_b32 s{sR5}, s{sT}, 3")
    a(f"s_mul_i32 s{sT2}, s{sR5}, 205")
    a(f"s_lshr_b32 s{sT2}, s{sT2}, 10")
    a(f"s_mul_i32 s{sT2}, s{sT2}, 5")
    a(f"s_sub_u32 s{sR5}, s{sR5}, s{sT2}")
    a(f"s_lshl_b32 s{sT}, s{sT}, 18")
    a(f"s_lshl_b32 s{sT2}, s{sRb}, 1")
    a(f"s_add_u32 s{sT2}, s{sT2}, s{sWm}")
    a(f"s_lshl_b32 s{sT2}, s{sT2}, 10")
    a(f"s_add_u32 s{sT}, s{sT}, s{sT2}")
    a(f"v_lshlrev_b32 v{vS[0]}, 15, v{vT[5]}")
    a(f"v_lshl_add_u32 v{vS[0]}, v{vT[4]}, 4, v{vS[0]}")
    a(f"v_add_u32 v{vS[0]}, s{sT}, v{vS[0]}")
    for e in range(1, 4): a(f"v_add_u32 v{vS[e]}, {e*2*WL.PL}, v{vS[0]}")
    def epi_qk(x, w):
        acc = ACC[x][w]; pk = PK + 8 * (2 * x + w)
        for i in range(0, 16, 2): a(f"v_pk_mul_f32 {vr(acc+i,2)}, {vr(acc+i,2)}, s[{sScale}:{sScale+1}]")
        for i in range(8): a(f"v_cvt_pk_bf16_f32 v{pk+i}, v{acc+2*i}, v{acc+2*i+1}")
        if x == 0: return
        for j in range(2):
            t5 = (2 - 2 * (2 * w + j)) % 5
            a(f"s_cmp_eq_u32 s{sR5}, {t5}")
            a("s_cselect_b32 exec_lo, -1, 0")
            a(f"s_cmp_eq_u32 s{sR5}, {(t5 - 1) % 5}")
            a("s_cselect_b32 exec_hi, -1, 0")
            for i in range(2): a(f"v_swap_b32 v{PK+8*w+4*j+2+i}, v{PK+8*(2+w)+4*j+i}")
        a("s_mov_b64 exec, -1")
        astore(sC, w, 0, "q"); astore(sC, w, 1, "q")
    mainloop('qk', epi_qk)
    a(f"s_branch {L('adone')}")
    a.label(L("v"))
    a(f"v_and_b32 v{vT[0]}, 3, v{vL}")
    a(f"v_lshl_add_u32 v{vRW[0]}, v{vT[0]}, 3, v{vT[1]}")
    a(f"v_xor_b32 v{vRW[1]}, 64, v{vRW[0]}")
    a(f"s_lshl_b32 s{sT}, s{sRb}, 1")
    a(f"s_add_u32 s{sT}, s{sT}, s{sWm}")
    a(f"s_mul_i32 s{sT}, s{sT}, {2*WL.VT}")
    a(f"s_sub_u32 s{sT2}, s{sCb}, 10")
    a(f"s_lshl_b32 s{sT2}, s{sT2}, 1")
    a(f"s_add_u32 s{sT2}, s{sT2}, s{sWn}")
    a(f"s_lshl_b32 s{sT2}, s{sT2}, 10")
    a(f"s_add_u32 s{sT}, s{sT}, s{sT2}")
    a(f"s_add_u32 s{sT}, s{sT}, {WL.VF - WL.QF}")
    a(f"v_mul_u32_u24 v{vS[0]}, {WL.VR}, v{vT[5]}")
    a(f"v_lshl_add_u32 v{vS[0]}, v{vT[4]}, 4, v{vS[0]}")
    a(f"v_add_u32 v{vS[0]}, s{sT}, v{vS[0]}")
    for e in range(1, 4): a(f"v_add_u32 v{vS[e]}, {e*2*WL.VR}, v{vS[0]}")
    def epi_v(x, w):
        acc = ACC[x][w]; pk = PK + 8 * (2 * w + x)
        for i in range(8): a(f"v_cvt_pk_bf16_f32 v{pk+i}, v{acc+2*i}, v{acc+2*i+1}")
        astore(sC, x, w, "v")
    mainloop('v', epi_v)
    a(f"s_branch {L('adone')}")
    a.label(L("gate"))
    a(f"s_mov_b32 s{sAF}, s2")
    a("s_waitcnt lgkmcnt(0)")
    a("s_barrier")
    def spoison():
        srd(a, sC, sWS, WL.OF, 80 * WL.PL)
        a(f"s_sub_u32 s{sT}, s2, 240")
        a(f"s_lshl_b32 s{sT}, s{sT}, 2")
        a(f"s_add_u32 s{sT}, s{sT}, s{sW}")
        a(f"s_mul_i32 s{sT}, s{sT}, 40960")
        a(f"s_add_u32 s{sT2}, s{sT}, 40960")
        a(f"v_lshlrev_b32 v{vT[3]}, 4, v{vL}")
        for i in range(4): a(f"v_mov_b32 v{PK+4+i}, -1")
        a.label(L("spl"))
        for i in range(4): a(f"buffer_store_dwordx4 {vr(PK+4,4)}, v{vT[3]}, s[{sC}:{sC+3}], s{sT} offen offset:{1024*i} sc1")
        a(f"s_add_u32 s{sT}, s{sT}, 4096")
        a(f"s_cmp_lt_u32 s{sT}, s{sT2}")
        a(f"s_cbranch_scc1 {L('spl')}")
    if pois == 5 and pfirst: spoison()
    if wdtouch:
        sel_srd(sB, sWm, 10, 12, 640 * 1280)
        a(f"s_and_b32 s{sT}, s{sJ}, 1")
        a(f"s_lshl_b32 s{sT}, s{sT}, 1")
        a(f"s_add_u32 s{sT}, s{sT}, s{sWn}")
        a(f"s_mul_i32 s{sT}, s{sT}, {400*128}")
        a(f"s_lshr_b32 s{sT2}, s{sXc}, 2")
        a(f"s_mul_i32 s{sT2}, s{sT2}, {160*1280}")
        a(f"s_add_u32 s{sT}, s{sT}, s{sT2}")
        a(f"v_min_u32 v{vT[2]}, 49, v{vL}")
        a(f"v_lshlrev_b32 v{vT[2]}, 7, v{vT[2]}")
        for i in range(8):
            a(f"buffer_load_dword v{PK}, v{vT[2]}, s[{sB}:{sB+3}], s{sT} offen")
            a(f"s_add_u32 s{sT}, s{sT}, {50*128}")
    if pois == 5 and not pfirst: spoison()
    lds_inc(8)
    a.label(L("adone"))
    if pois == 2: poison(sC, XF[0][0])
    if fwait: lds_inc(20)
    st.stamp("ast")
    a(f"s_add_u32 s{sNonce}, s{sNonce}, 1")
    a(f"s_lshl_b32 s{sAF}, s{sAF}, 7")
    a(f"s_add_u32 s{sAF}, s{sAF}, {WL.FA}")

    vKm = 10; vKr = 11; vIdx = 12; vM = 13
    vVa = [[14 + 2 * b, 15 + 2 * b] for b in range(4)]; vV0, vV1 = vVa[0]
    vG1 = 22
    Qm = [24 + 4 * q for q in range(4)]; Qr = [40 + 2 * q for q in range(4)]
    Km = [48 + 4 * b for b in range(4)]; Kr = [64 + 2 * b for b in range(4)]
    Vb = [[72 + 8 * b, 76 + 8 * b] for b in range(4)]
    S = [104 + 16 * q for q in range(4)]; O = [168 + 16 * q for q in range(4)]
    K0m = 232; K0r = 236; cO = 238; cSt = 239; cX0 = 240; cX1 = 241; cR = 242; cD0 = 243; cD1 = 244
    vKF = S[0]; vQF = S[0] + 1
    sK = sA; sV = sB; sQ = sC
    sHead = 98; sQb = 99; sKh = 100; sOK = 101; sOV = 14; sPar = sE; sHp = sE + 2; sU0 = sE + 3
    sCc = sHead; sEb8 = sQb; sRet = sE
    def coords():
        a(f"s_and_b32 s{sT}, s{sJ}, 3")
        a(f"s_lshl_b32 s{sHead}, s{sXc}, 2")
        a(f"s_add_u32 s{sHead}, s{sHead}, s{sT}")
        a(f"s_lshr_b32 s{sQb}, s{sJ}, 2")
    def swap23(dst, src, tmp):
        a(f"v_and_b32 v{dst}, 0x13, v{src}")
        a(f"v_bfe_u32 v{tmp}, v{src}, 2, 1")
        a(f"v_lshl_add_u32 v{dst}, v{tmp}, 3, v{dst}")
        a(f"v_bfe_u32 v{tmp}, v{src}, 3, 1")
        a(f"v_lshl_add_u32 v{dst}, v{tmp}, 2, v{dst}")
    def kv_flag_offsets(kf):
        a(f"s_mul_i32 s{sT}, s{sHead}, 20")
        a(f"v_bfe_u32 v{vT[0]}, v{vL}, 4, 1")
        a(f"v_mul_u32_u24 v{vT[0]}, 19, v{vT[0]}")
        a(f"v_add_u32 v{vT[0]}, s{sT}, v{vT[0]}")
        a(f"v_lshrrev_b32 v{vT[0]}, 7, v{vT[0]}")
        a(f"v_lshrrev_b32 v{vT[1]}, 5, v{vL}")
        a(f"v_mul_u32_u24 v{vT[1]}, 5, v{vT[1]}")
        a(f"v_add3_u32 v{vT[1]}, v{vT[1]}, v{vT[0]}, 5")
        a(f"v_and_b32 v{vT[2]}, 15, v{vL}")
        a(f"v_lshl_add_u32 v{vT[1]}, v{vT[1]}, 4, v{vT[2]}")
        a(f"v_lshlrev_b32 v{kf}, 7, v{vT[1]}")
    def d_addrs(vo, vst, vr_, step0, vws=None, vgt=None):
        a(f"v_and_b32 v{vT[0]}, 15, v{vL}")
        a(f"v_lshrrev_b32 v{vT[1]}, 4, v{vL}")
        swap23(vT[4], vT[0], vT[3])
        a(f"s_and_b32 s{sT}, s{sW}, 3")
        a(f"s_lshl_b32 s{sT}, s{sT}, 4")
        a(f"s_lshl_b32 s{sT2}, s{sCc}, 6")
        a(f"s_add_u32 s{sT}, s{sT}, s{sT2}")
        a(f"v_add_u32 v{vT[2]}, s{sT}, v{vT[0]}")
        a(f"s_and_b32 s{sT}, s{sW}, 1")
        a(f"s_lshl_b32 s{sT}, s{sT}, 10")
        a(f"s_and_b32 s{sT2}, s{sW}, 2")
        a(f"s_lshl_b32 s{sT2}, s{sT2}, 4")
        a(f"s_add_u32 s{sT}, s{sT}, s{sT2}")
        a(f"s_add_u32 s{sT}, s{sT}, s{sCc}")
        a(f"v_lshl_add_u32 v{vT[0]}, v{vT[4]}, 6, s{sT}")
        if vws is not None:
            a(f"v_lshlrev_b32 v{vws}, 12, v{vT[0]}")
            a(f"v_lshl_add_u32 v{vws}, v{vT[1]}, 4, v{vws}")
            a(f"v_lshlrev_b32 v{vgt}, 3, v{vT[2]}")
        a(f"v_lshlrev_b32 v{vo}, 4, v{vT[2]}")
        a(f"v_lshl_add_u32 v{vo}, v{vT[1]}, 15, v{vo}")
        if step0: a(f"v_add_u32 v{vo}, {4*WL.PL*step0}, v{vo}")
        a(f"v_mul_u32_u24 v{vst}, 1280, v{vT[0]}")
        a(f"v_lshl_add_u32 v{vst}, v{vT[1]}, 3, v{vst}")
        a(f"s_mul_i32 s{sT}, s{sEb8}, 160")
        a(f"v_add_u32 v{vst}, s{sT}, v{vst}")
        a(f"v_lshrrev_b32 v{vT[2]}, 2, v{vL}")
        a(f"v_and_b32 v{vT[1]}, 3, v{vL}")
        a(f"v_mul_u32_u24 v{vr_}, 160, v{vT[2]}")
        a(f"v_lshl_add_u32 v{vr_}, v{vT[1]}, 3, v{vr_}")
        if step0: a(f"v_add_u32 v{vr_}, {5120*step0}, v{vr_}")
    def slot_addr(dst, xor, add):
        a(f"s_and_b32 s{sT}, s{sW}, 3")
        if xor: a(f"s_xor_b32 s{sT}, s{sT}, {xor}")
        a(f"s_mul_i32 s{sT}, s{sT}, 6144")
        a(f"s_add_u32 s{sT}, s{sT}, {LDS_X + add}")
        a(f"v_lshl_add_u32 v{dst}, v{vL}, 4, s{sT}")
    def all_nonce(regs, lab):
        for r in regs: a(f"v_xor_b32 v{r}, s{sNonce}, v{r}")
        rest = regs[1:]
        while len(rest) >= 2:
            a(f"v_or3_b32 v{regs[0]}, v{regs[0]}, v{rest[0]}, v{rest[1]}"); rest = rest[2:]
        if rest: a(f"v_or_b32 v{regs[0]}, v{regs[0]}, v{rest[0]}")
        a(f"v_cmp_ne_u32 vcc, 0, v{regs[0]}")
        a("s_nop 1")
        a("s_cmp_eq_u64 vcc, 0")
        a(f"s_cbranch_scc1 {L(lab)}")
    def lds_set(off):
        a(f"v_mov_b32 v{vT[0]}, 1")
        a(f"ds_write_b32 v{vCtl}, v{vT[0]} offset:{off}")
    def rd(dst, base, off, pitch=160):
        for t in range(5):
            a(f"ds_read_b64_tr_b16 {vr(dst[t],2)}, v{base} offset:{off + 32*t}")
            a(f"ds_read_b64_tr_b16 {vr(dst[t]+2,2)}, v{base} offset:{off + 32*t + 16*pitch}")
    coords()
    a(f"s_lshr_b32 s{sKh}, s{sW}, 1")
    a(f"s_and_b32 s{sPar}, s{sHead}, 1")
    a(f"s_lshr_b32 s{sHp}, s{sHead}, 1")
    a(f"s_mul_i32 s{sHp}, s{sHp}, {5*WL.PL}")
    a(f"v_and_b32 v{vT[0]}, 31, v{vL}")
    a(f"v_lshrrev_b32 v{vT[1]}, 5, v{vL}")
    swap23(vT[2], vT[0], vT[3])
    a(f"s_mul_i32 s{sT}, s{sPar}, {3*WL.PL}")
    a(f"v_lshlrev_b32 v{vKm}, 15, v{vT[1]}")
    a(f"v_lshl_add_u32 v{vKm}, v{vT[2]}, 4, v{vKm}")
    a(f"v_add_u32 v{vKm}, s{sT}, v{vKm}")
    a(f"s_lshl_b32 s{sT}, s{sPar}, 9")
    a(f"s_add_u32 s{sT}, s{sT}, {2*WL.PL}")
    a(f"v_lshl_add_u32 v{vKr}, v{vT[2]}, 4, s{sT}")
    a(f"s_sub_u32 s{sT}, {80*WL.PL}, s{sHp}")
    a(f"s_mov_b64 exec, s[{sHi}:{sHi+1}]")
    a(f"v_mov_b32 v{vKr}, s{sT}")
    a("s_mov_b64 exec, -1")
    a(f"v_mov_b32 v{vIdx}, 0xdddddddd")
    a(f"s_lshl_b32 s{sT}, s{sPar}, 2")
    a(f"v_add_u32 v{vT[2]}, s{sT}, v{vT[2]}")
    a(f"v_subrev_u32 v{vT[3]}, 20, v{vT[2]}")
    a(f"v_min_u32 v{vT[2]}, v{vT[2]}, v{vT[3]}")
    a(f"s_mul_i32 s{sT}, s{sHead}, 320")
    a(f"v_mul_u32_u24 v{vV0}, {WL.VR}, v{vT[1]}")
    a(f"v_lshl_add_u32 v{vV0}, v{vT[2]}, 4, v{vV0}")
    a(f"v_add_u32 v{vV0}, s{sT}, v{vV0}")
    a("s_mov_b32 exec_lo, 0x100000"); a("s_mov_b32 exec_hi, 0x100000")
    a(f"v_mul_u32_u24 v{vV0}, {WL.VR}, v{vT[1]}")
    a(f"v_add_u32 v{vV0}, 10240, v{vV0}")
    a("s_mov_b32 exec_lo, 0xffe00000"); a("s_mov_b32 exec_hi, 0xffe00000")
    a(f"v_mov_b32 v{vV0}, 0x40000000")
    a("s_mov_b64 exec, -1")
    for b in range(4):
        for j in range(2):
            if b or j: a(f"v_add_u32 v{vVa[b][j]}, {b*WL.VT + j*2*WL.VR}, v{vV0}")
    a(f"s_add_u32 s{sT}, s{sHp}, {WL.KF}")
    srd(a, sK, sWS, f"s{sT}", 81 * WL.PL)
    srd(a, sV, sWS, WL.VF, 32 * WL.VT)
    a(f"s_lshl_b32 s{sV+2}, s{sV+2}, s{sKh}")
    a(f"s_add_u32 s{sT}, s{sHp}, {WL.QF}")
    srd(a, sQ, sWS, f"s{sT}", 5 * WL.PL)
    a(f"s_lshl_b32 s{sOK}, s{sKh}, 14")
    a(f"s_mul_i32 s{sOV}, s{sKh}, {32*WL.VT}")
    a(f"s_lshl_b32 s{sU0}, s{sQb}, 1")
    a(f"s_and_b32 s{sT}, s{sW}, 1")
    a(f"s_add_u32 s{sU0}, s{sU0}, s{sT}")
    a(f"s_lshl_b32 s{sU0}, s{sU0}, 11")
    for i in range(0, 8, 2): a(f"v_mov_b64 {vr(Qr[0]+i,2)}, 0")
    for i in (0, 2): a(f"v_mov_b64 {vr(Vb[3][1]+i,2)}, 0")
    kv_flag_offsets(vKF)
    a(f"v_and_b32 v{vKF}, {hex(~(6 << 7) & 0xffffffff)}, v{vKF}")
    a(f"s_lshl_b32 s{sT}, s{sQb}, 1")
    a(f"v_and_b32 v{vT[2]}, 1, v{vL}")
    a(f"v_lshl_add_u32 v{vT[0]}, v{vT[0]}, 4, v{vT[2]}")
    a(f"v_add_u32 v{vT[0]}, s{sT}, v{vT[0]}")
    a(f"s_mov_b64 exec, s[{sHi}:{sHi+1}]")
    a(f"v_mov_b32 v{vT[0]}, 256")
    a("s_mov_b64 exec, -1")
    a(f"v_lshlrev_b32 v{vQF}, 7, v{vT[0]}")
    a(f"v_mov_b32 v{vT[0]}, 1")
    a("s_waitcnt vmcnt(0)")
    a("s_mov_b64 exec, 1")
    a(f"ds_add_rtn_u32 v{vT[1]}, v{vCtl}, v{vT[0]} offset:4")
    a("s_mov_b64 exec, -1")
    a("s_waitcnt lgkmcnt(0)")
    a(f"v_readfirstlane_b32 s{sT}, v{vT[1]}")
    a("s_nop 1")
    a(f"s_cmp_lg_u32 s{sT}, 3")
    a(f"s_cbranch_scc1 {L('nsig')}")
    put_flag(f"s{sAF}")
    st.stamp("aflag")
    a.label(L("nsig"))
    for q in range(4):
        for i in range(0, 16, 2): a(f"v_mov_b64 {vr(O[q]+i,2)}, 0")
    d_addrs(cO, cSt, cR, NL)
    slot_addr(cX0, 0, 0); slot_addr(cX1, 2, 0)
    a(f"s_cmp_eq_u32 s{sW}, 0")
    a(f"s_cbranch_scc1 {L('poll')}")
    lds_wait("wa", 0, 1, 2)
    a(f"s_branch {L('go')}")
    a.label(L("poll"))
    a(f"s_mov_b32 s{sT2}, {WL.FA}")
    spin_begin("pa")
    a(f"buffer_load_dword v{vT[2]}, v{vKF}, s[{sFl}:{sFl+3}], s{sT2} offen sc1")
    a(f"buffer_load_dword v{vT[3]}, v{vQF}, s[{sFl}:{sFl+3}], s{sT2} offen sc1")
    a("s_waitcnt vmcnt(0)")
    all_nonce([vT[2], vT[3]], "pad")
    spin_end("pa", psleep)
    a.label(L("pad"))
    lds_set(0)
    a.label(L("go"))
    a("s_setprio 3")
    st.stamp("ardy")
    def ldKr(kb, koff): a(f"buffer_load_dwordx4 {vr(Kr[kb],4)}, v{vKr}, s[{sK}:{sK+3}], s{sOK} offen offset:{koff}")
    def ldKm(kb, koff): a(f"buffer_load_dwordx4 {vr(Km[kb],4)}, v{vKm}, s[{sK}:{sK+3}], s{sOK} offen offset:{koff}")
    def ldV(vb, j): a(f"buffer_load_dwordx4 {vr(Vb[vb][j],4)}, v{vVa[vb][j]}, s[{sV}:{sV+3}], s{sOV} offen")
    a(f"buffer_load_dwordx4 {vr(K0m,4)}, v{vKm}, s[{sK}:{sK+3}], 0 offen")
    for q in range(4): a(f"buffer_load_dwordx4 {vr(Qm[q],4)}, v{vKm}, s[{sQ}:{sQ+3}], s{sU0} offen offset:{512*q}")
    a(f"s_mov_b64 exec, s[{sLo}:{sLo+1}]")
    for q in (0, 2): a(f"buffer_load_dwordx4 {vr(Qr[q],4)}, v{vKr}, s[{sQ}:{sQ+3}], s{sU0} offen offset:{512*q}")
    a("s_mov_b64 exec, -1")
    a(f"buffer_load_dwordx2 {vr(K0r,2)}, v{vKr}, s[{sK}:{sK+3}], 0 offen")
    ldKr(0, 0); ldKm(0, 0)
    for kb in range(1, 4):
        ldV(kb - 1, 0); ldV(kb - 1, 1); ldKm(kb, 512 * kb)
    ldKr(2, 1024)
    lds_inc(56)
    a(f"s_add_u32 s{sT}, s{sHp}, {WL.OF}")
    srd(a, sQ, sWS, f"s{sT}", 5 * WL.PL)
    def qka(s_, k, q): a(f"v_mfma_f32_32x32x16_bf16 {vr(s_,16)}, {vr(k,4)}, {vr(Qm[q],4)}, 0")
    def qkb(s_, k, q): a(f"v_mfma_f32_32x32x8_bf16 {vr(s_,16)}, {vr(k,2)}, {vr(Qr[q],2)}, {vr(s_,16)}")
    def exp(q, i): a(f"v_exp_f32 v{S[q]+i}, v{S[q]+i}")
    def pv(o, vb, sreg):
        a(f"v_smfmac_f32_32x32x32_bf16 {vr(o,16)}, {vr(vb,4)}, {vr(sreg,8)}, v{vIdx}")
    a("s_waitcnt vmcnt(12)")
    st.stamp("qld")
    for q in range(4): qka(S[q], K0m, q)
    for q in range(4): qkb(S[q], K0r, q)
    a("s_nop 8")
    a(f"s_mov_b64 exec, s[{sHi}:{sHi+1}]")
    for q in range(4):
        a(f"v_max3_f32 v{S[q]}, v{S[q]}, v{S[q]+1}, v{S[q]+2}")
        for i in range(3, 15, 2):
            a(f"v_max3_f32 v{S[q]}, v{S[q]}, v{S[q]+i}, v{S[q]+i+1}")
        a(f"v_max_f32 v{S[q]}, v{S[q]}, v{S[q]+15}")
        a(f"v_cvt_pk_bf16_f32 v{Qr[q]}, -v{S[q]}, 0")
        if q == 0:
            a("s_mov_b64 exec, -1")
            a("s_waitcnt vmcnt(7)")
            qka(S[0], Km[0], 0)
            a(f"s_mov_b64 exec, s[{sHi}:{sHi+1}]")
        if q == 1:
            a("s_mov_b64 exec, -1")
            qkb(S[0], Kr[0], 0)
            qka(S[1], Km[0], 1)
            a(f"s_mov_b64 exec, s[{sHi}:{sHi+1}]")
    a("s_mov_b64 exec, -1")
    for i in range(8, 16, 2): a(f"v_mov_b64 {vr(S[3]+i,2)}, 0")
    a(f"s_mov_b32 s{sCnt}, 0")
    st.stamp("lbeg")
    def slot(kt, q):
        k1, q1 = (kt + (q + 1) // 4) % 4, (q + 1) % 4
        k2, q2 = (kt + (q + 2) // 4) % 4, (q + 2) % 4
        kp, qp = (kt - (q == 0)) % 4, (q - 1) % 4
        def mem():
            if noload: return
            if q < 2:
                ldV((kt - 1) % 4, q)
                if q == 1 and kt == 0: a(f"s_add_u32 s{sOV}, s{sOV}, {4*WL.VT}")
            elif q == 2: ldKm(kt, 512 * (kt + 4))
            elif kt % 2: ldKr(kt - 1, 512 * (kt + 3))
        if q == 3: a("s_waitcnt vmcnt(6)")
        qkb(S[q1], Kr[k1], q1)
        for i in range(0, 4): exp(q, i)
        pv(O[qp], Vb[kp][1], S[qp] + 8)
        if mpos == 1: mem()
        for i in range(4, 8): exp(q, i)
        qka(S[q2], Km[k2], q2)
        for i in range(8, 12): exp(q, i)
        pv(O[q], Vb[kt][0], S[q])
        if mpos == 3: mem()
        for i in range(12, 16): exp(q, i)
    def block():
        for kt in range(4):
            for q in range(4): slot(kt, q)
        a(f"s_add_u32 s{sOK}, s{sOK}, 2048")
    a.raw(".p2align 6")
    a.label(L("loop"))
    block()
    a(f"s_bitcmp1_b32 9, s{sCnt}")
    a(f"s_cbranch_scc1 {L('hook')}")
    a.label(L("hookr"))
    block()
    a(f"s_add_u32 s{sCnt}, s{sCnt}, 1")
    a(f"s_cmp_lg_u32 s{sCnt}, 4")
    a(f"s_cbranch_scc1 {L('loop')}")
    pv(O[3], Vb[3][1], S[3] + 8)
    st.stamp("lend")
    AF = [[48 + 20 * k + 4 * t for t in range(5)] for k in range(4)] + [[O[0] + 4 * t for t in range(5)]]
    EX = 144; PO = 128
    cOF = [200 + 4 * i for i in range(20 - NL)]; cAC = [24 + 4 * t for t in range(5)]
    assert cOF[-1] + 4 <= K0m
    srd(a, sD, sWS, WL.OF, 80 * WL.PL)
    a(f"s_lshl_b32 s{sT}, s{sKh}, 10")
    a(f"s_add_u32 s{sOK}, s{sU0}, s{sT}")
    a(f"s_lshl_b32 s{sT}, s{sW}, 2")
    a(f"v_add_u32 v{vT[4]}, s{sT}, v{vCtl}")
    a(f"v_mov_b32 v{vT[5]}, 1")
    a(f"s_cmp_eq_u32 s{sKh}, 0")
    a(f"s_cbranch_scc1 {L('x0')}")
    for q in range(2):
        for r in range(3): a(f"ds_write_b128 v{cX0}, {vr(O[q]+4*r,4)} offset:{3072*q+1024*r}")
    a("s_waitcnt lgkmcnt(0)")
    a(f"ds_write_b32 v{vT[4]}, v{vT[5]} offset:32")
    for q in range(2):
        for i in range(0, 12, 2): a(f"v_mov_b64 {vr(O[q]+i,2)}, {vr(O[q+2]+i,2)}")
    for i in range(0, 8, 2): a(f"v_mov_b64 {vr(Qm[0]+i,2)}, {vr(Qm[2]+i,2)}")
    for i in range(0, 4, 2): a(f"v_mov_b64 {vr(Qr[0]+i,2)}, {vr(Qr[2]+i,2)}")
    a(f"s_branch {L('x1')}")
    a.label(L("x0"))
    for q in range(2):
        for r in range(3): a(f"ds_write_b128 v{cX0}, {vr(O[q+2]+4*r,4)} offset:{3072*q+1024*r}")
    a("s_waitcnt lgkmcnt(0)")
    a(f"ds_write_b32 v{vT[4]}, v{vT[5]} offset:32")
    a.label(L("x1"))
    a(f"v_xor_b32 v{vT[4]}, 8, v{vT[4]}")
    spin_begin("wx", 8 * SPIN)
    a(f"ds_read_b32 v{vT[0]}, v{vT[4]} offset:32")
    a(f"ds_read_b32 v{vT[1]}, v{vCtl} offset:48")
    a("s_waitcnt lgkmcnt(0)")
    a(f"v_add_u32 v{vT[0]}, v{vT[0]}, v{vT[1]}")
    a("s_nop 0")
    a(f"v_readfirstlane_b32 s{sT}, v{vT[0]}")
    a("s_nop 1")
    a(f"s_cmp_eq_u32 s{sT}, 5")
    a(f"s_cbranch_scc1 {L('wxd')}")
    spin_end("wx", 0)
    a.label(L("wxd"))
    st.stamp("x1")
    for r in range(6): a(f"ds_read_b128 {vr(EX+4*r,4)}, v{cX1} offset:{1024*r}")
    a(f"v_and_b32 v{vT[5]}, 0x1f0, v{vKm}")
    a(f"s_and_b32 s{sT}, s{sHead}, 1")
    a(f"s_lshl_b32 s{sT}, s{sT}, 3")
    a(f"s_add_u32 s{sT}, s{sT}, {2*WL.PL}")
    a(f"v_add_u32 v{vT[5]}, s{sT}, v{vT[5]}")
    def bcast_l(o):
        a(f"v_mov_b32 v{o+12}, v{o+8}")
        a(f"v_mov_b32 v{o+13}, v{o+8}")
        a("s_nop 1")
        a(f"v_permlane32_swap_b32 v{o+13}, v{o+12}")
        a("s_nop 1")
    for q in range(2):
        o = O[q]
        a(f"s_waitcnt lgkmcnt({3 - 3*q})")
        for i in (8, 10, 0, 2, 4, 6): a(f"v_pk_add_f32 {vr(o+i,2)}, {vr(o+i,2)}, {vr(EX+12*q+i,2)}")
        a(f"v_mov_b32 v{o+12}, v{o+8}")
        a(f"v_mov_b32 v{o+13}, v{o+8}")
        a(f"v_pk_mul_f32 {vr(o+14,2)}, {vr(o,2)}, 0")
        a(f"v_pk_fma_f32 {vr(o+14,2)}, {vr(o+2,2)}, 0, {vr(o+14,2)}")
        a(f"v_permlane32_swap_b32 v{o+13}, v{o+12}")
        for i in range(4, 12, 2): a(f"v_pk_fma_f32 {vr(o+14,2)}, {vr(o+i,2)}, 0, {vr(o+14,2)}")
        a(f"v_add_f32 v{vM}, v{o+14}, v{o+15}")
        a(f"v_add_f32 v{vM}, v{vM}, v{o+12}")
        a(f"v_cmp_nge_f32 vcc, 0x71800000, v{vM}")
        a(f"s_mov_b32 s{sT}, 0x21800000")
        a(f"v_cmp_gt_f32 s[{sT2+1}:{sT2+2}], s{sT}, v{vM}")
        a("s_nop 1")
        a(f"s_or_b64 vcc, vcc, s[{sT2+1}:{sT2+2}]")
        a(f"s_cbranch_scc0 {L('fin%d' % q)}")
        if q == 1:
            for i in range(0, 4, 2): a(f"v_mov_b64 {vr(Qm[0]+i,2)}, {vr(Qm[1]+i,2)}")
            a(f"v_mov_b64 {vr(Qr[0],2)}, {vr(Qr[1],2)}")
        a(f"s_call_b64 s[{sRet}:{sRet+1}], {L('slow')}")
        for i in range(0, 14, 2): a(f"v_mov_b64 {vr(o+i,2)}, {vr(O[2]+i,2)}")
        a.label(L("fin%d" % q))
        a(f"v_rcp_f32 v{vM}, v{o+12}")
        if q == 0: a("s_waitcnt vmcnt(0)")
        else: a("s_nop 0")
        a(f"v_mul_f32 v{o+14}, v{vM}, v{vG1+q}")
        for i in range(0, 12, 2): a(f"v_pk_mul_f32 {vr(o+i,2)}, {vr(o+i,2)}, {vr(o+14,2)} op_sel_hi:[1,0]")
        po = PO + 8 * q
        for i in range(6): a(f"v_cvt_pk_bf16_f32 v{po+i}, v{o+2*i}, v{o+2*i+1}")
        for i in range(6): a(f"v_min_u32 v{po+i}, -2, v{po+i}")
        a(f"buffer_store_dwordx4 {vr(po,4)}, v{vKm}, s[{sQ}:{sQ+3}], s{sOK} offen offset:{512*q} sc1")
        a(f"s_mov_b64 exec, s[{sLo}:{sLo+1}]")
        a(f"buffer_store_dwordx2 {vr(po+4,2)}, v{vT[5]}, s[{sQ}:{sQ+3}], s{sOK} offen offset:{512*q} sc1")
        a("s_mov_b64 exec, -1")
    st.stamp("ost")
    if hbar: a("s_barrier")
    else: lds_inc(52)
    def chk(o):
        a(f"v_max3_u32 v{vT[0]}, v{o}, v{o+1}, v{o+2}")
        a(f"v_max_u32 v{vT[0]}, v{vT[0]}, v{o+3}")
        a(f"v_cmp_eq_u32 vcc, -1, v{vT[0]}")
        a("s_nop 1")
        a("s_cmp_eq_u64 vcc, 0")
    def ldO(OF_, vo, s_):
        a(f"s_mov_b32 s{sT}, {4*WL.PL*s_}")
        a(f"buffer_load_dwordx4 {vr(OF_[s_],4)}, v{vo}, s[{sD}:{sD+3}], s{sT} offen sc1")
    def stages(tag, n, OF_, vo, AF_, nres, vr_, AC_, first0):
        for s_ in range(min(oahead, n)): ldO(OF_, vo, s_)
        srd(a, sC, 22, 0, 2048 * 1280)
        a(f"s_mov_b32 s59, {SPIN}")
        for s_ in range(n):
            a.label(L(f"{tag}st{s_}"))
            a(f"s_waitcnt vmcnt({min(n - 1 - s_, oahead - 1)})")
            chk(OF_[s_])
            a(f"s_cbranch_scc1 {L(f'{tag}ok{s_}')}")
            a(f"s_call_b64 s[{sRet}:{sRet+1}], {L(tag + 'retry')}")
            a(f"s_cbranch_scc1 {L(f'{tag}st{s_}')}")
            a.label(L(f"{tag}ok{s_}"))
            if s_ + oahead < n: ldO(OF_, vo, s_ + oahead)
            younger = min(n, s_ + nres) - 1 - s_
            a(f"s_waitcnt lgkmcnt({min(15, 10 * younger)})")
            for t in range(5):
                c = "0" if (first0 and s_ == 0) else vr(AC_[t], 4)
                a(f"v_mfma_f32_16x16x32_bf16 {vr(AC_[t],4)}, {vr(AF_[s_ % len(AF_)][t],4)}, {vr(OF_[s_],4)}, {c}")
            if s_ + nres < n: rd(AF_[(s_ + nres) % len(AF_)], vr_, 5120 * (s_ + nres))
        st.stamp("dmf")
        a("s_nop 7")
    def retry(tag, n, OF_, vo):
        a.label(L(tag + "retry"))
        a("s_waitcnt vmcnt(0)")
        a(f"s_sleep {rsleep}")
        for s_ in range(n):
            chk(OF_[s_])
            a(f"s_cbranch_scc1 {L(f'{tag}rt{s_}')}")
            ldO(OF_, vo, s_)
            a.label(L(f"{tag}rt{s_}"))
        a("s_waitcnt vmcnt(0)")
        a("s_sub_u32 s59, s59, 1")
        a("s_cmp_gt_i32 s59, 0")
        a(f"s_setpc_b64 s[{sRet}:{sRet+1}]")
    def dfin(keep, send, AC_, AB_, wr, rdd, vst):
        for r, t in enumerate(send): a(f"ds_write_b128 v{wr}, {vr(AC_[t],4)} offset:{1024*r}")
        a("s_waitcnt lgkmcnt(0)")
        a("s_barrier")
        for r, t in enumerate(keep): a(f"ds_read_b128 {vr(AB_[t],4)}, v{rdd} offset:{1024*r}")
        for r, t in enumerate(keep):
            a(f"s_waitcnt lgkmcnt({len(keep)-1-r})")
            for i in range(4): a(f"v_add_f32 v{AC_[t]+i}, v{AC_[t]+i}, v{AB_[t]+i}")
            a(f"v_cvt_pk_bf16_f32 v{AC_[t]}, v{AC_[t]}, v{AC_[t]+1}")
            a(f"v_cvt_pk_bf16_f32 v{AC_[t]+1}, v{AC_[t]+2}, v{AC_[t]+3}")
            a(f"buffer_store_dwordx2 {vr(AC_[t],2)}, v{vst}, s[{sC}:{sC+3}], 0 offen offset:{32*t}")
    for k in range(4): rd(AF[k], cR, 5120 * k)
    for o_ in cOF:
        pass
    a(f"v_add_u32 v{cD1}, 3072, v{cX1}")
    if odelay: a(f"s_sleep {odelay}")
    stages("c", 20 - NL, cOF, cO, AF, 4, cR, cAC, True)
    dfin([0, 1, 2], [3, 4], cAC, AF[4 if (20 - NL) % 5 != 0 else 0], cX1, cD1, cSt)
    a(f"s_branch {L('dend')}")

    a.label(L("hook"))
    a(f"s_cmp_eq_u32 s{sCnt}, 0")
    a(f"s_cbranch_scc0 {L('hook3')}")
    lds_wait("wb", 24, 1)
    a(f"s_branch {L('hookr')}")
    a.label(L("hook3"))
    lds_wait("wg", 28, 1)
    a(f"s_mov_b32 s{sK+2}, 0")
    srd(a, sD, sWS, WL.GATE, 2048 * 8)
    a(f"v_bfe_u32 v{vT[0]}, v{vKm}, 4, 5")
    a(f"v_lshlrev_b32 v{vT[0]}, 3, v{vT[0]}")
    a(f"s_lshl_b32 s{sT}, s{sKh}, 10")
    a(f"s_add_u32 s{sT}, s{sU0}, s{sT}")
    a(f"s_lshr_b32 s{sT}, s{sT}, 1")
    for q in range(2): a(f"buffer_load_dword v{vG1+q}, v{vT[0]}, s[{sD}:{sD+3}], s{sT} offen offset:{4+256*q} sc1")
    a(f"s_branch {L('hookr')}")

    a.label(L("help"))
    hR = 10; hR2 = 11; hO = 12; hSt = 13; hD0 = 14; hD1 = 15; hG = 16; hWo = 17; hGd = 18; hWs = 19
    hAC = [20 + 4 * t for t in range(5)]
    hOF = [40 + 4 * i for i in range(NL)]
    NH = (TOP - (40 + 4 * NL)) // 20
    hAF = [[40 + 4 * NL + 20 * k + 4 * t for t in range(5)] for k in range(NH)]
    WsF = hOF[0:4]; GFl = hOF[4]; hGt = GFl + 12; hKF = GFl + 13
    sWo = sD; sM0 = 3
    coords()
    kv_flag_offsets(hKF)
    d_addrs(hO, hSt, hR, 0, hWs, hGt)
    a(f"s_cmp_lt_u32 s{sEb8}, 4")
    a(f"s_cselect_b32 s{sT}, 0, 3")
    a(f"v_xor_b32 v{vT[1]}, s{sT}, v{vT[1]}")
    a(f"v_mul_u32_u24 v{hR2}, 176, v{vT[2]}")
    a(f"v_lshl_add_u32 v{hR2}, v{vT[1]}, 3, v{hR2}")
    a(f"v_add_u32 v{hR2}, {GIMG}, v{hR2}")
    slot_addr(hD0, 2, 0)
    a(f"v_add_u32 v{hD1}, 3072, v{hD0}")
    a(f"v_mul_u32_u24 v{vT[2]}, 187, v{vL}")
    a(f"v_lshrrev_b32 v{vT[2]}, 11, v{vT[2]}")
    a(f"v_mul_u32_u24 v{vT[3]}, 11, v{vT[2]}")
    a(f"v_sub_u32 v{vT[3]}, v{vL}, v{vT[3]}")
    a(f"v_mul_u32_u24 v{hGd}, {WL.GA}, v{vT[2]}")
    a(f"v_lshrrev_b32 v{vT[2]}, 1, v{vT[3]}")
    a(f"v_lshl_add_u32 v{hGd}, v{vT[2]}, 10, v{hGd}")
    a(f"v_and_b32 v{vT[3]}, 1, v{vT[3]}")
    a(f"v_lshl_add_u32 v{hGd}, v{vT[3]}, 4, v{hGd}")
    a(f"s_sub_u32 s{sT}, 7, s{sEb8}")
    a(f"s_sub_u32 s{sT2}, 32, s{sCc}")
    a(f"s_and_b32 s{sT2}, s{sT2}, 31")
    a(f"s_cmp_lt_u32 s{sEb8}, 4")
    a(f"s_cselect_b32 s{sT}, s{sEb8}, s{sT}")
    a(f"s_cselect_b32 s{sT2}, s{sCc}, s{sT2}")
    a(f"s_mul_i32 s{sT}, s{sT}, 5120")
    a(f"s_lshl_b32 s{sT2}, s{sT2}, 5")
    a(f"s_add_u32 s{sT}, s{sT}, s{sT2}")
    a(f"v_add_u32 v{hGd}, s{sT}, v{hGd}")
    a(f"v_lshlrev_b32 v{hWo}, 4, v{vL}")
    lds_wait("hw", 56, 4, 4)
    a(f"s_cmp_lg_u32 s{sW}, 4")
    a(f"s_cbranch_scc1 {L('hp2')}")
    a(f"v_lshlrev_b32 v{vT[4]}, 2, v{vL}")
    spin_begin("p2")
    a(f"s_mov_b32 s{sT2}, {WL.FA}")
    a(f"buffer_load_dword v{vT[2]}, v{hKF}, s[{sFl}:{sFl+3}], s{sT2} offen sc1")
    a(f"s_mov_b32 s{sT2}, {WL.FP}")
    a(f"buffer_load_dword v{vT[3]}, v{vT[4]}, s[{sFl}:{sFl+3}], s{sT2} offen sc1")
    a("s_waitcnt vmcnt(0)")
    all_nonce([vT[2], vT[3]], "p2d")
    spin_end("p2", 6)
    a.label(L("p2d"))
    lds_set(24)
    a.label(L("hp2"))
    lds_wait("hb", 24, 1, 4)
    a(f"s_setprio {hp0}")
    a(f"s_cmp_eq_u32 s{sGF}, 0")
    a(f"s_cbranch_scc1 {L('hg')}")
    a(f"s_cmp_ge_u32 s{sJ}, 20")
    a(f"s_cbranch_scc1 {L('hg1')}")
    g_stores(sC)
    a.label(L("hg1"))
    a("s_waitcnt vmcnt(0)")
    put_flag(f"s{sGF}")
    a.label(L("hg"))
    lds_wait("hr", 8, 8, 4)
    st.stamp("hp2")
    for p_ in range(2):
        srd(a, sD, 6 + 2 * p_, 0, 2048 * 4096)
        a(f"buffer_load_dwordx4 {vr(WsF[2*p_],4)}, v{hWs}, s[{sD}:{sD+3}], 0 offen")
        a(f"buffer_load_dwordx4 {vr(WsF[2*p_+1],4)}, v{hWs}, s[{sD}:{sD+3}], 0 offen offset:64")
    a(f"s_mul_i32 s{sT}, s{sEb8}, 102400")
    a(f"s_add_u32 s{sT}, s{sT}, {WL.WP}")
    srd(a, sWo, sWS, f"s{sT}", 102400)
    a(f"s_and_b32 s{sM0}, s{sW}, 3")
    a(f"s_lshl_b32 s{sM0}, s{sM0}, 10")
    a.label(L("hwo"))
    a(f"s_mov_b32 m0, s{sM0}")
    a(f"s_waitcnt vmcnt({wdep})")
    a(f"buffer_load_dwordx4 v{hWo}, s[{sWo}:{sWo+3}], s{sM0} offen lds")
    a(f"s_sleep {wpace // 4}")
    a(f"s_add_u32 s{sM0}, s{sM0}, 4096")
    a(f"s_cmp_lt_u32 s{sM0}, 102400")
    a(f"s_cbranch_scc1 {L('hwo')}")
    st.stamp("hwo")
    a(f"s_cmp_lg_u32 s{sW}, 4")
    a(f"s_cbranch_scc1 {L('hpg')}")
    a("s_cmp_lg_u32 s2, 0")
    a(f"s_cbranch_scc1 {L('ed')}")
    a(f"v_lshlrev_b32 v{vT[0]}, 9, v{vL}")
    a(f"s_mov_b32 s{sT2}, {WL.FA}")
    spin_begin("pe")
    for i in range(4): a(f"buffer_load_dword v{vT[2]+i}, v{vT[0]}, s[{sFl}:{sFl+3}], s{sT2} offen offset:{128*i} sc1")
    a("s_waitcnt vmcnt(0)")
    all_nonce([vT[2], vT[3], vT[4], vT[5]], "ped")
    spin_end("pe")
    a.label(L("ped"))
    put_flag("0")
    a.label(L("ed"))
    spin_begin("pg")
    a(f"v_mul_u32_u24 v{vT[0]}, 48, v{vL}")
    a(f"buffer_load_dwordx4 {vr(GFl,4)}, v{vT[0]}, s[{sFl}:{sFl+3}], 0 offen offset:{WL.FG} sc1")
    a(f"buffer_load_dwordx4 {vr(GFl+4,4)}, v{vT[0]}, s[{sFl}:{sFl+3}], 0 offen offset:{WL.FG+16} sc1")
    a(f"buffer_load_dwordx2 {vr(GFl+8,2)}, v{vT[0]}, s[{sFl}:{sFl+3}], 0 offen offset:{WL.FG+32} sc1")
    a(f"v_lshlrev_b32 v{vT[0]}, 2, v{vL}")
    a(f"s_mov_b32 s{sT}, {WL.FP + 256}")
    a(f"buffer_load_dword v{GFl+10}, v{vT[0]}, s[{sFl}:{sFl+3}], s{sT} offen sc1")
    a(f"s_mov_b32 s{sT}, {WL.FA + 240*128}")
    a(f"v_and_b32 v{vT[0]}, 15, v{vL}")
    a(f"v_lshlrev_b32 v{vT[0]}, 7, v{vT[0]}")
    a(f"buffer_load_dword v{GFl+11}, v{vT[0]}, s[{sFl}:{sFl+3}], s{sT} offen sc1")
    a("s_waitcnt vmcnt(0)")
    all_nonce([GFl + i for i in range(12)], "pgd")
    spin_end("pg", 16)
    a.label(L("pgd"))
    lds_set(28)
    a.label(L("hpg"))
    lds_wait("hq", 28, 1, 4)
    srd(a, sWo, sWS, WL.GATE, 2048 * 8)
    a(f"buffer_load_dword v{hG}, v{hGt}, s[{sWo}:{sWo+3}], 0 offen sc1")
    srd(a, sWo, sWS, WL.G, WL.G_SIZE)
    a(f"s_and_b32 s{sT2}, s{sW}, 3")
    a(f"s_mul_i32 s{sM0}, s{sT2}, {4*176}")
    a(f"s_mul_i32 s{sT2}, s{sT2}, {8*WL.GA}")
    a("s_mov_b32 exec_hi, 0xfff")
    for i in range(8):
        a(f"s_add_u32 m0, s{sM0}, {GIMG + 16*176*i}")
        a(f"s_add_u32 s{sT}, s{sT2}, {(32*(i//2) + 4*(i%2))*WL.GA}")
        a(f"s_waitcnt vmcnt({wdep})")
        a(f"buffer_load_dwordx4 v{hGd}, s[{sWo}:{sWo+3}], s{sT} offen lds")
    a("s_mov_b64 exec, -1")
    a("s_waitcnt vmcnt(0)")
    lds_inc(48)
    lds_wait("hi", 48, 4, 2)
    st.stamp("him")
    if stamps: a("s_waitcnt lgkmcnt(0)")
    a(f"s_setprio {hp1}")
    def ymf(off):
        for k in range(4): rd(hAF[k], hR2, GSTEP * k + off, 176)
        for k in range(4):
            a(f"s_waitcnt lgkmcnt({min(15, 30 - 10*k)})")
            for t in range(5):
                c = "0" if k == 0 else vr(hAC[t], 4)
                a(f"v_mfma_f32_16x16x32_bf16 {vr(hAC[t],4)}, {vr(hAF[k][t],4)}, {vr(WsF[k],4)}, {c}")
        a("s_nop 7")
    a(f"s_cmp_lt_u32 s{sEb8}, 4")
    a(f"s_cbranch_scc0 {L('ymir')}")
    ymf(0)
    for t in range(5):
        for i in range(4): a(f"v_mul_f32 v{hAC[t]+i}, v{hAC[t]+i}, v{hG}")
    a(f"s_branch {L('ydone')}")
    a.label(L("ymir"))
    for i in range(8): a(f"v_xor_b32 v{WsF[2]+i}, 0x80008000, v{WsF[2]+i}")
    ymf(8)
    for t in range(5): a(f"v_mul_f32 v{hAF[4][t]}, v{hAC[4-t]}, v{hG}")
    ymf(0)
    for t in range(5):
        for i in range(1, 4): a(f"v_mul_f32 v{hAF[4][t]+i}, v{hAC[4-t]+4-i}, v{hG}")
    for t in range(5):
        for i in (0, 2): a(f"v_mov_b64 {vr(hAC[t]+i,2)}, {vr(hAF[4][t]+i,2)}")
    a.label(L("ydone"))
    for k in range(NH): rd(hAF[k], hR, 5120 * k)
    for o_ in hOF:
        for i in (0, 2): a(f"v_mov_b64 {vr(o_+i,2)}, 0")
    srd(a, sD, sWS, WL.OF, 80 * WL.PL)
    st.stamp("hrdy")
    if hbar:
        a("s_waitcnt lgkmcnt(0)")
        a("s_barrier")
    else: lds_wait("ho", 52, 4, hsl)
    a("s_setprio 3")
    if ldel: a(f"s_sleep {ldel}")
    stages("h", NL, hOF, hO, hAF, NH, hR, hAC, False)
    dfin([3, 4], [0, 1, 2], hAC, hAF[NH - 1], hD1, hD0, hSt)
    a.label(L("dend"))
    st.finish(9)
    a.label(L("end"))
    a("s_endpgm")
    retry("c", 20 - NL, cOF, cO)
    retry("h", NL, hOF, hO)

    a.label(L("slow"))
    sSK = sT2 + 1; sSV = sT2 + 2
    a("s_waitcnt vmcnt(0) lgkmcnt(0)")
    a(f"s_mov_b32 s{sK+2}, {81*WL.PL}")
    a(f"s_mov_b32 s{sV+2}, {64*WL.VT}")
    a(f"s_mov_b64 exec, s[{sHi}:{sHi+1}]")
    a(f"v_mov_b64 {vr(Qr[0],2)}, 0")
    a("s_mov_b64 exec, -1")
    a(f"v_mov_b32 v{vM}, 0xff800000")
    a(f"s_mov_b32 s{sSK}, 0")
    def qk_slow():
        a(f"s_bfe_u32 s{sT}, s{sSK}, 0x10009")
        a(f"s_mul_i32 s{sT}, s{sT}, 504")
        a(f"s_sub_u32 s{sT}, s{sSK}, s{sT}")
        a(f"buffer_load_dwordx2 {vr(Kr[0],2)}, v{vKr}, s[{sK}:{sK+3}], s{sT} offen")
        a(f"buffer_load_dwordx4 {vr(Km[0],4)}, v{vKm}, s[{sK}:{sK+3}], s{sSK} offen")
        a("s_waitcnt vmcnt(0)")
        qka(S[0], Km[0], 0)
        a("s_nop 11")
        qkb(S[0], Kr[0], 0)
        a("s_nop 12")
    a.label(L("s1"))
    qk_slow()
    for i in range(0, 16, 2):
        a(f"v_max3_f32 v{vM}, v{vM}, v{S[0]+i}, v{S[0]+i+1}")
    a(f"s_add_u32 s{sSK}, s{sSK}, 512")
    a(f"s_cmp_lt_u32 s{sSK}, {WL.PL}")
    a(f"s_cbranch_scc1 {L('s1')}")
    a(f"v_mov_b32 v{vT[0]}, v{vM}")
    a("s_nop 1")
    a(f"v_permlane32_swap_b32 v{vT[0]}, v{vM}")
    a("s_nop 1")
    a(f"v_max_f32 v{vM}, v{vM}, v{vT[0]}")
    a(f"v_cvt_pk_bf16_f32 v{S[0]}, 0, -v{vM}")
    a(f"v_sub_f32 v{vT[0]}, 0, v{vM}")
    a(f"v_sub_f32 v{vT[0]}, v{vT[0]}, v{S[0]}")
    a(f"v_cvt_pk_bf16_f32 v{S[0]+1}, 0, v{vT[0]}")
    a(f"v_sub_f32 v{vT[1]}, v{vT[0]}, v{S[0]+1}")
    a(f"s_mov_b64 exec, s[{sHi}:{sHi+1}]")
    a(f"v_cvt_pk_bf16_f32 v{Qr[0]}, v{S[0]}, v{S[0]+1}")
    a(f"v_cvt_pk_bf16_f32 v{Qr[0]+1}, v{vT[1]}, 0")
    a("s_mov_b64 exec, -1")
    for i in range(0, 16, 2): a(f"v_mov_b64 {vr(O[2]+i,2)}, 0")
    a(f"s_mov_b32 s{sSK}, 0")
    a(f"s_mov_b32 s{sSV}, 0")
    a.label(L("s2"))
    a(f"buffer_load_dwordx4 {vr(Vb[0][0],4)}, v{vV0}, s[{sV}:{sV+3}], s{sSV} offen")
    a(f"buffer_load_dwordx4 {vr(Vb[0][1],4)}, v{vV1}, s[{sV}:{sV+3}], s{sSV} offen")
    qk_slow()
    for i in range(16): exp(0, i)
    a("s_nop 1")
    pv(O[2], Vb[0][0], S[0])
    pv(O[2], Vb[0][1], S[0] + 8)
    a(f"s_add_u32 s{sSK}, s{sSK}, 512")
    a(f"s_add_u32 s{sSV}, s{sSV}, {WL.VT}")
    a(f"s_cmp_lt_u32 s{sSK}, {WL.PL}")
    a(f"s_cbranch_scc1 {L('s2')}")
    a("s_nop 12")
    bcast_l(O[2])
    a(f"s_setpc_b64 s[{sRet}:{sRet+1}]")
    a.label(L("cend"))
    return a.text(), kernel_desc(name, 256, 102), f"; @launch grid=(256,1,1) block=(512,1,1) lds={LDS_SIZE}"

if __name__ == "__main__":
    import sys
    from gen import build
    path = sys.argv[1]
    sn = [x[3:].split(',') for x in sys.argv if x.startswith('sn=')]
    kw = {x.split('=')[0]: eval(x.split('=')[1]) for x in sys.argv[2:] if not x.startswith('sn=')}
    hd = kw.pop('hdbg', False)
    build(path, [gen(stamps=(2 if hd else bool(sn)), snames=sn[0] if sn else (), **kw)])
```

```python
from asm import *

QSCALE = 0x3ea52b5c
NAME = "gated_mix__spectral_fnet__softmax_full_mha__prompt_kernel"
LDS_X = 131072
LDS_CTL = LDS_X + 24576
LDS_SIZE = LDS_CTL + 64
GSTEP = 32 * 176
GIMG = 20 * 5120
SPIN = 200000
STAGE = [0, 0x8000, 0x18000, 0x10000]

def gen(deep=False, bpos=0, gun=2, wgen=True, gprio=2, fall=0, fprio=3, hbar=True, wdep=1, hp0=0, hp1=0, hsl=4, NL=12, gdel=True, wpace=16, ldel=8, mpos=1, name=NAME, stamps=False, snames=(), rotx=(0, 2, 5, 7, 5, 7, 0, 2), rin=(5, 5), touch=False, tpos=5, gtouch=True, fsplit=5,
        prio=(4, 2, 1), psleep=4, wotouch=False, probe=None, fwait=True, nodma=False, kvsc1=False, noload=False, nowait=False, noexec=False, spread=False, rt=True, fstart=6, rprobe=False, enc=None, encw=0, oearly=False, rsleep=2, rmode=0, ypost=True, obar=False, nfirst=(0, 0), afirst=True, odelay=8, gdefer=0, pois=5, osc='', lprio=3, cprio=2, wsleep=3, ldelay=0, pplain=True, glate=False, m8=False, wsbase=0, cbperm=True, prog=True, strict=True, defer=False, dmask=6, s2late=True, noaux=False, cwarm=False, oahead=4, dsc1=False, dzero=False, dburst=False, dnt=False, dpair=False, peel=True, fcrit=True, cdelay=0, lpos=3, oflag=0, nows=False, krskip=False, dhalf=False, wpack=True, wdtouch=False, nowo=False, nog=False, pfirst=False):
    a = Asm()
    kernel_begin(a, name)
    L = lambda s: f"L_{s}"
    st = Stamps(a, stamps, 0); st.names = list(snames); st.op = 's_memrealtime' if rt else 's_memtime'
    if enc:
        class Enc:
            names = []
            def start(self): a("s_memrealtime s[70:71]"); a("s_memrealtime s[72:73]")
            def stamp(self, n):
                if n == enc: a("s_memrealtime s[72:73]"); a("s_waitcnt lgkmcnt(0)")
            def finish(self, i):
                a("s_lshl_b32 s68, s2, 3"); a("s_add_u32 s68, s68, s52")
                a(f"s_cmp_lg_u32 s68, {136*8+encw}")
                a("s_cbranch_scc1 L_encd")
                a("s_memrealtime s[74:75]"); a("s_waitcnt lgkmcnt(0)")
                a("s_sub_u32 s72, s72, s70"); a("s_lshl_b32 s72, s72, 2"); a("s_add_u32 s72, s72, s74")
                a.label("L_encl")
                a("s_memrealtime s[74:75]"); a("s_waitcnt lgkmcnt(0)")
                a("s_sub_u32 s68, s74, s72"); a("s_cmp_lt_i32 s68, 0")
                a("s_cbranch_scc1 L_encl")
                a.label("L_encd")
        st = Enc()
    sWS = 26
    sA = 28; sB = 32; sC = 36; sD = 40; sFl = 44; sE = 48
    sW = 52; sXc = 53; sJ = 54; sNonce = 55; sT = 56; sT2 = 57; sCnt = 58
    sLo = 60; sVm = 62; sHi = 94; sDm = 96
    sGF = 25
    sAF = 24
    vL = 1; vT = [2, 3, 4, 5, 6, 7]; vCtl = 8
    VB = 10
    TOP = 252 if stamps else 256

    def spin_begin(lab, n=SPIN):
        a(f"s_mov_b32 s59, {n}")
        a.label(L(lab))
    def spin_end(lab, sleep=2):
        a(f"s_sleep {sleep}")
        a("s_sub_u32 s59, s59, 1")
        a("s_cmp_lg_u32 s59, 0")
        a(f"s_cbranch_scc1 {L(lab)}")
    def put_flag(soff):
        a(f"v_mov_b32 v{vT[0]}, 0")
        a(f"v_mov_b32 v{vT[1]}, s{sNonce}")
        a("s_mov_b64 exec, 1")
        a(f"buffer_store_dword v{vT[1]}, v{vT[0]}, s[{sFl}:{sFl+3}], {soff} offen sc1")
        a("s_mov_b64 exec, -1")
    def lds_inc(off):
        a(f"v_mov_b32 v{vT[0]}, 1")
        a("s_mov_b64 exec, 1")
        a(f"ds_add_u32 v{vCtl}, v{vT[0]} offset:{off}")
        a("s_mov_b64 exec, -1")
    def lds_wait(lab, off, val, sl=1):
        spin_begin(lab, 8 * SPIN)
        a(f"ds_read_b32 v{vT[0]}, v{vCtl} offset:{off}")
        a("s_waitcnt lgkmcnt(0)")
        a(f"v_readfirstlane_b32 s{sT}, v{vT[0]}")
        a("s_nop 1")
        a(f"s_cmp_eq_u32 s{sT}, {val}")
        a(f"s_cbranch_scc1 {L(lab+'d')}")
        spin_end(lab, sl)
        a.label(L(lab + "d"))
    def sel_srd(d, cond_s, p0, p1, size):
        a(f"s_cmp_eq_u32 s{cond_s}, 0")
        a(f"s_cselect_b32 s{d}, s{p0}, s{p1}")
        a(f"s_cselect_b32 s{d+1}, s{p0+1}, s{p1+1}")
        a(f"s_and_b32 s{d+1}, s{d+1}, 0xffff")
        a(f"s_mov_b32 s{d+2}, {size}")
        a(f"s_mov_b32 s{d+3}, 0x20000")
    def after_kernarg():
        a("s_waitcnt lgkmcnt(0)")
        st.stamp("karg")
        if wsbase:
            a(f"s_add_u32 s{sWS}, s{sWS}, {hex(wsbase << 20)}")
            a(f"s_addc_u32 s{sWS+1}, s{sWS+1}, 0")
        a(f"s_load_dword s{sNonce}, s[{sWS}:{sWS+1}], {WL.EPOCH}")
        srd(a, sA, 4, 0, 2048 * 1280)
    def masks():
        a("v_mov_b32 v9, 0")
        for i in range(4): a(f"v_mov_b32 v{TOP-36+i}, 0")
        a(f"s_mov_b32 s{sGF}, 0"); a(f"s_mov_b32 s{sAF}, 0"); a("s_mov_b32 s15, 0")
        srd(a, sFl, sWS, WL.FLAG, WL.FLAG_SIZE)
        a(f"v_mov_b32 v{vCtl}, {LDS_CTL}")
        a(f"s_mov_b32 s{sLo}, -1"); a(f"s_mov_b32 s{sLo+1}, 0")
        a(f"s_mov_b32 s{sHi}, 0"); a(f"s_mov_b32 s{sHi+1}, -1")
        a(f"s_mov_b32 s{sVm}, 0xfffff"); a(f"s_mov_b32 s{sVm+1}, 0xfffff")
        a(f"s_mov_b32 s{sDm}, -1"); a(f"s_mov_b32 s{sDm+1}, 0xff")
    def nat_read_addrs(dst, stile, shift):
        a(f"v_and_b32 v{vT[0]}, 31, v{vL}")
        a(f"v_lshrrev_b32 v{vT[1]}, 5, v{vL}")
        a(f"v_bfe_u32 v{vT[2]}, v{vL}, 1, 3")
        a(f"v_xor_b32 v{vT[1]}, v{vT[1]}, v{vT[2]}")
        a(f"v_lshlrev_b32 v{vT[1]}, 4, v{vT[1]}")
        a(f"v_lshl_add_u32 v{vT[0]}, v{vT[0]}, 7, v{vT[1]}")
        a(f"s_lshl_b32 s{sT}, s{stile}, {shift}")
        a(f"v_add_u32 v{dst[0]}, s{sT}, v{vT[0]}")
        for ks in range(1, 4):
            a(f"v_xor_b32 v{dst[ks]}, {32*ks}, v{dst[0]}")

    a("s_cmp_ge_u32 s2, 256")
    a(f"s_cbranch_scc1 {L('end')}")
    st.start()
    if probe:
        a("s_memrealtime s[70:71]")
        a("s_load_dwordx2 s[64:65], s[0:1], 80")
        a("s_waitcnt lgkmcnt(0)")
        a("s_and_b32 s65, s65, 0xffff"); a("s_mov_b32 s66, 256"); a("s_mov_b32 s67, 0x20000")
        a("s_getreg_b32 s68, hwreg(HW_REG_XCC_ID)")
        a("s_xor_b32 s68, s68, s2"); a("s_and_b32 s68, s68, 7")
        a("s_cbranch_scc0 L_pok")
        a("v_mov_b32 v2, 1")
        a("s_mov_b64 exec, 1")
        a("buffer_store_dword v2, off, s[64:67], 0 sc1")
        a("s_mov_b64 exec, -1")
        a.label("L_pok")
    if rprobe:
        a("s_load_dwordx2 s[64:65], s[0:1], 80")
        a("s_waitcnt lgkmcnt(0)")
        a("s_and_b32 s65, s65, 0xffff"); a("s_mov_b32 s66, 256"); a("s_mov_b32 s67, 0x20000")
        a("s_getreg_b32 s68, hwreg(HW_REG_XCC_ID)")
        a("s_sub_u32 s68, s68, s2"); a("s_and_b32 s68, s68, 7")
        a("s_lshl_b32 s68, s68, 2")
        a("v_cmp_eq_u32 vcc, 0, v0")
        a("v_mov_b32 v2, 1")
        a("s_and_saveexec_b64 s[70:71], vcc")
        a("s_cbranch_execz L_rp0")
        a("buffer_store_dword v2, off, s[64:67], s68 sc1")
        a.label("L_rp0")
        a("s_mov_b64 exec, -1")
    a("s_load_dwordx16 s[4:19], s[0:1], 0")
    a("s_load_dwordx8 s[20:27], s[0:1], 64")
    a(f"v_lshrrev_b32 v{vT[0]}, 6, v0")
    a(f"v_and_b32 v{vL}, 63, v0")
    a(f"v_readfirstlane_b32 s{sW}, v{vT[0]}")
    a(f"s_and_b32 s{sXc}, s2, 7")
    a(f"s_lshr_b32 s{sJ}, s2, 3")
    a(f"s_xor_b32 s{sW}, s{sW}, 4")
    sRb = 98; sCb = 99; sWm = 100; sWn = 101; sWl = 3
    a(f"s_and_b32 s{sRb}, s2, 3")
    a(f"s_lshl_b32 s{sRb}, s{sRb}, 2")
    a(f"s_and_b32 s{sT}, s{sJ}, 3")
    a(f"s_add_u32 s{sRb}, s{sRb}, s{sT}")
    a(f"s_lshr_b32 s{sT}, s{sXc}, 2")
    a(f"s_lshr_b32 s{sCb}, s{sJ}, 2")
    a(f"s_cmp_eq_u32 s{sCb}, 7")
    a(f"s_cselect_b32 s{sT2}, 1, 3")
    a(f"s_lshl_b32 s{sT}, s{sT}, s{sT2}")
    a(f"s_cmp_eq_u32 s{sCb}, 7")
    a(f"s_cselect_b32 s{sT2}, s{sT}, 0")
    a(f"s_cselect_b32 s{sT}, 0, s{sT}")
    a(f"s_add_u32 s{sRb}, s{sRb}, s{sT2}")
    a(f"s_add_u32 s{sCb}, s{sCb}, s{sT}")
    if cbperm:
        tab = [5, 6, 7, 10, 11, 0, 1, 2, 8, 9, 12, 13, 14, 3, 4, 0]
        tv = sum(c << (4 * i) for i, c in enumerate(tab))
        a(f"s_mov_b32 s{sT}, {hex(tv & 0xffffffff)}")
        a(f"s_mov_b32 s{sT2}, {hex(tv >> 32)}")
        a(f"s_lshl_b32 s{sCb}, s{sCb}, 2")
        a(f"s_lshr_b64 s[{sT}:{sT2}], s[{sT}:{sT2}], s{sCb}")
        a(f"s_and_b32 s{sCb}, s{sT}, 15")
    a(f"s_and_b32 s{sWl}, s{sW}, 3")
    a(f"s_and_b32 s{sWm}, s{sW}, 1")
    a(f"s_lshr_b32 s{sWn}, s{sWl}, 1")
    a(f"s_cmp_lt_u32 s{sW}, 4")
    a(f"s_cbranch_scc1 {L('comp')}")

    V = Alloc(VB, TOP)
    vRX = [V.get() for _ in range(4)]
    vFW = [V.get() for _ in range(2)]; vFs = V.get(); V.get(); vGs = 9
    V.get(2)
    XR = [[V.get(4, 4) for _ in range(4)] for _ in range(10)]
    FR = V.get(8, 4); FIn = V.get(8, 4)
    ZA = V.get(16, 4); ZB = V.get(16, 4)
    BF = [[V.get(4, 4) for _ in range(2)] for _ in range(3)]
    vDX = [BF[0][0] + i for i in range(4)]; vDW = [BF[0][1] + i for i in range(4)]
    sOX = sD; sOW = sD + 1; sM0 = sD + 2; sBeta = sD + 3; sSp = sE
    if lprio: a(f"s_setprio {lprio}")
    a(f"v_and_b32 v{vT[3]}, 7, v{vL}")
    a(f"v_lshrrev_b32 v{vT[4]}, 4, v{vL}")
    a(f"v_xor_b32 v{vT[3]}, v{vT[3]}, v{vT[4]}")
    a(f"v_lshlrev_b32 v{vT[3]}, 4, v{vT[3]}")
    a(f"v_xor_b32 v{vT[4]}, 64, v{vT[3]}")
    a(f"v_bfe_u32 v{vT[5]}, v{vL}, 3, 2")
    a(f"v_lshrrev_b32 v{vT[1]}, 5, v{vL}")
    a(f"v_lshl_add_u32 v{vT[5]}, v{vT[1]}, 3, v{vT[5]}")
    a(f"s_lshl_b32 s{sT}, s{sRb}, 1")
    a(f"s_add_u32 s{sT}, s{sT}, s{sWn}")
    a(f"s_lshl_b32 s{sT2}, s{sWm}, 5")
    a(f"s_add_u32 s{sCnt}, s{sT}, s{sT2}")
    a(f"v_lshl_add_u32 v{vT[1]}, v{vT[5]}, 6, s{sCnt}")
    a(f"v_mul_u32_u24 v{vT[1]}, 1280, v{vT[1]}")
    a(f"v_add_u32 v{vDX[0]}, v{vT[1]}, v{vT[3]}")
    a(f"v_add_u32 v{vDX[1]}, v{vT[1]}, v{vT[4]}")
    a(f"v_add_u32 v{vDX[1]}, {4*64*1280-1024}, v{vDX[1]}")
    a(f"v_add_u32 v{vDX[2]}, {16*64*1280-2048}, v{vDX[0]}")
    a(f"v_add_u32 v{vDX[3]}, {16*64*1280-2048}, v{vDX[1]}")
    a(f"v_lshrrev_b32 v{vT[0]}, 4, v{vL}")
    a(f"v_bfe_u32 v{vT[1]}, v{vL}, 2, 2")
    a(f"v_xor_b32 v{vT[1]}, v{vT[1]}, v{vT[0]}")
    a(f"v_and_b32 v{vT[2]}, 3, v{vL}")
    a(f"v_lshl_add_u32 v{vT[1]}, v{vT[1]}, 2, v{vT[2]}")
    a(f"v_lshlrev_b32 v{vT[1]}, 4, v{vT[1]}")
    a(f"s_lshl_b32 s{sT}, s{sWl}, 4")
    a(f"v_add_u32 v{vT[0]}, s{sT}, v{vT[0]}")
    a(f"v_mul_u32_u24 v{vT[0]}, 3840, v{vT[0]}")
    a(f"s_lshl_b32 s{sT}, s{sCb}, 8")
    a(f"v_add3_u32 v{vDW[0]}, v{vT[0]}, v{vT[1]}, s{sT}")
    for j in range(1, 4):
        a(f"v_add_u32 v{vDW[j]}, {j*(4*3840-1024)}, v{vDW[0]}")
    rw = 0
    for i, r in enumerate(rotx): rw |= r << (4 * i)
    a(f"s_lshl_b32 s{sT}, s{sXc}, 2")
    a(f"s_lshr_b32 s{sOX}, {hex(rw)}, s{sT}")
    a(f"s_and_b32 s{sOX}, s{sOX}, 15")
    if rin != (0, 0):
        a(f"s_and_b32 s{sT}, s{sJ}, 3")
        a(f"s_mul_i32 s{sT}, s{sT}, {rin[0]}")
        a(f"s_add_u32 s{sOX}, s{sOX}, s{sT}")
        a(f"s_lshr_b32 s{sT}, s{sJ}, 2")
        a(f"s_mul_i32 s{sT}, s{sT}, {rin[1]}")
        a(f"s_add_u32 s{sOX}, s{sOX}, s{sT}")
        a(f"s_mul_i32 s{sT}, s{sOX}, 205")
        a(f"s_lshr_b32 s{sT}, s{sT}, 11")
        a(f"s_mul_i32 s{sT}, s{sT}, 10")
        a(f"s_sub_u32 s{sOX}, s{sOX}, s{sT}")
    a(f"s_mul_i32 s{sOW}, s{sOX}, {64*3840}")
    a(f"s_lshl_b32 s{sOX}, s{sOX}, 7")
    a(f"s_lshl_b32 s{sM0}, s{sWl}, 12")
    after_kernarg()
    a(f"s_cmp_ge_u32 s{sJ}, 30")
    a(f"s_cbranch_scc1 {L('lgate')}")
    srd(a, sB, 16, 0, 640 * 3840)
    def issue(n):
        a(f"s_add_u32 m0, s{sM0}, {STAGE[n%4]}")
        a("s_nop 0")
        for j in range(4): a(f"buffer_load_dwordx4 v{vDX[j]}, s[{sA}:{sA+3}], s{sOX} offen offset:{1024*j} lds")
        a(f"s_add_u32 m0, s{sM0}, {STAGE[n%4]+0x4000}")
        a(f"s_add_u32 s{sOX}, s{sOX}, 128")
        for j in range(4): a(f"buffer_load_dwordx4 v{vDW[j]}, s[{sB}:{sB+3}], s{sOW} offen offset:{1024*j} lds")
        a(f"s_add_u32 s{sOW}, s{sOW}, {64*3840}")
        a(f"s_cmp_eq_u32 s{sOX}, 1280")
        a(f"s_cselect_b32 s{sOX}, 0, s{sOX}")
        a(f"s_cselect_b32 s{sOW}, 0, s{sOW}")
    issue(0); issue(1)
    masks()
    a(f"s_lshr_b32 s{sBeta}, s{sXc}, 2")
    a(f"s_mul_i32 s{sBeta}, s{sBeta}, 5")
    a(f"s_lshr_b32 s{sT}, s{sJ}, 2")
    a(f"s_add_u32 s{sBeta}, s{sBeta}, s{sT}")
    a(f"s_lshl_b32 s{sT}, s{sBeta}, 1")
    a(f"s_add_u32 s{sT}, s{sT}, s{sWm}")
    a(f"s_lshl_b32 s{sT}, s{sT}, 4")
    a(f"v_add_u32 v{vT[5]}, s{sT}, v{vT[5]}")
    a(f"v_mul_u32_u24 v{vT[5]}, 1280, v{vT[5]}")
    a(f"v_add_u32 v{vFW[0]}, v{vT[5]}, v{vT[3]}")
    a(f"v_add_u32 v{vFW[1]}, v{vT[5]}, v{vT[4]}")
    a(f"v_add_u32 v{vFW[1]}, {4*1280-1024}, v{vFW[1]}")
    a(f"v_add_u32 v{vFs}, {320*1280}, v{vT[3]}")
    a(f"v_and_b32 v{vT[0]}, 31, v{vL}")
    a(f"v_lshrrev_b32 v{vT[1]}, 5, v{vL}")
    a(f"v_lshlrev_b32 v{vGs}, 5, v{vT[0]}")
    a(f"v_lshl_add_u32 v{vGs}, v{vT[1]}, 4, v{vGs}")
    a(f"s_mul_i32 s{sT}, s{sCnt}, {WL.GA}")
    a(f"s_lshl_b32 s{sT2}, s{sBeta}, 11")
    a(f"s_add_u32 s{sT}, s{sT}, s{sT2}")
    a(f"v_add_u32 v{vGs}, s{sT}, v{vGs}")
    a(f"s_mul_i32 s{sCnt}, s{sCnt}, 48")
    a(f"s_lshl_b32 s{sT2}, s{sBeta}, 2")
    a(f"s_add_u32 s{sCnt}, s{sCnt}, s{sT2}")
    a(f"s_add_u32 s{sCnt}, s{sCnt}, {WL.FG}")
    nat_read_addrs(vRX, sWl, 12)
    for n in range(10):
        a(f"s_waitcnt vmcnt({8 if n < 9 else 0}) lgkmcnt(0)")
        a("s_barrier")
        for ks in range(4):
            a(f"ds_read_b128 {vr(XR[n][ks],4)}, v{vRX[ks]} offset:{STAGE[n%4] & 0xffff}")
        if n + 2 < 10: issue(n + 2)
        if n < 9 and (STAGE[n % 4] ^ STAGE[(n + 1) % 4]) & 0x10000:
            for ks in range(4): a(f"v_xor_b32 v{vRX[ks]}, 0x10000, v{vRX[ks]}")
    st.stamp("ldone")
    a(f"s_add_u32 s{sNonce}, s{sNonce}, 1")
    a(f"s_cmp_ge_u32 s{sJ}, 20")
    a(f"s_cbranch_scc1 {L('lq')}")
    if not wgen:
        a("s_setprio 3")
        a(f"s_mov_b32 s{sGF}, s{sCnt}")
        sel_srd(sB, sWn, 10, 12, 640 * 1280)
        srd(a, sC, 10, 0, 640 * 1280)
        a(f"s_lshl_b32 s{sM0}, s{sWl}, 11")
        a(f"s_lshl_b32 s{sT}, s{sBeta}, 2")
        a(f"s_add_u32 s{sT}, s{sT}, s{sWl}")
        a(f"s_cmp_eq_u32 s{sT}, 2")
        a(f"s_cselect_b32 s{sSp}, 0xffffff00, -1")
        a(f"s_cselect_b64 vcc, -1, 0")
        a(f"s_mov_b32 s{sSp+1}, -1")
        WDB = lambda p: (0x10000 + 8192 * p) if p < 8 else 8192 * (p - 8)
        def wdma(p):
            a(f"s_add_u32 m0, s{sM0}, {WDB(p)}")
            a(f"s_mov_b64 exec, s[{sSp}:{sSp+1}]")
            a(f"buffer_load_dwordx4 v{vFW[0]}, s[{sB}:{sB+3}], s{sOX} offen lds")
            a(f"s_cbranch_vccz {L('fs%d' % p)}")
            a("s_mov_b64 exec, 0xff")
            a(f"buffer_load_dwordx4 v{vFs}, s[{sC}:{sC+3}], s{sOX} offen lds")
            a.label(L("fs%d" % p))
            a("s_mov_b64 exec, -1")
            a(f"buffer_load_dwordx4 v{vFW[1]}, s[{sB}:{sB+3}], s{sOX} offen offset:1024 lds")
            a(f"s_add_u32 s{sOX}, s{sOX}, 128")
            a(f"s_cmp_eq_u32 s{sOX}, 1280")
            a(f"s_cselect_b32 s{sOX}, 0, s{sOX}")
        def twl():
            srd(a, sB, 6, 0, 2048 * 4096)
            srd(a, sC, 8, 0, 2048 * 4096)
            a(f"buffer_load_dwordx4 {vr(FR,4)}, v{vT[2]}, s[{sB}:{sB+3}], 0 offen")
            a(f"buffer_load_dwordx4 {vr(FR+4,4)}, v{vT[2]}, s[{sB}:{sB+3}], 0 offen offset:32")
            a(f"buffer_load_dwordx4 {vr(FIn,4)}, v{vT[2]}, s[{sC}:{sC+3}], 0 offen")
            a(f"buffer_load_dwordx4 {vr(FIn+4,4)}, v{vT[2]}, s[{sC}:{sC+3}], 0 offen offset:32")
        if fcrit:
            if not fall:
                a(f"s_and_b32 s{sT}, s{sRb}, 6")
                a(f"s_cbranch_scc1 {L('f0d')}")
            if fall == 2: lds_wait("f0", 4, 4, 2)
            elif fall == 3:
                a(f"s_call_b64 s[{sVm}:{sVm+1}], {L('p2sub')}")
                a(f"s_lshl_b32 s{sT}, s{sBeta}, 2")
                a(f"s_add_u32 s{sT}, s{sT}, s{sWl}")
                a(f"s_cmp_eq_u32 s{sT}, 2")
                a(f"s_cselect_b64 vcc, -1, 0")
                a(f"s_setprio {fprio}")
            else: lds_wait("f0", 20, 4)
        for p in range(10 if fcrit else fsplit): wdma(p)
        a(f"v_and_b32 v{vT[2]}, 31, v{vL}")
        a(f"v_lshrrev_b32 v{vT[1]}, 5, v{vL}")
        a(f"v_lshlrev_b32 v{vT[2]}, 18, v{vT[2]}")
        a(f"v_lshl_add_u32 v{vT[2]}, v{vT[1]}, 4, v{vT[2]}")
        a(f"s_lshl_b32 s{sT}, s{sWl}, 12")
        a(f"s_sub_u32 s{sT}, 0x10000, s{sT}")
        for ks in range(4): a(f"v_add_u32 v{vRX[ks]}, s{sT}, v{vRX[ks]}")
        assert not STAGE[9 % 4] & 0x10000
        if fcrit: twl()
        a("s_waitcnt vmcnt(%d)" % (4 + 2 * (10 - fsplit) if fcrit else 0))
        lds_inc(12)
        lds_wait("f1", 12, 4)
        st.stamp("fb0")
        if stamps: a("s_waitcnt lgkmcnt(0)")
        def rdB(s):
            p, ks = divmod(s, 4)
            if s == 32:
                for k in range(4): a(f"v_xor_b32 v{vRX[k]}, 0x10000, v{vRX[k]}")
            for part in range(2):
                a(f"ds_read_b128 {vr(BF[s%3][part],4)}, v{vRX[ks]} offset:{(WDB(p) & 0xffff) + 4096*part}")
        rdB(0); rdB(1)
        H = 4 * fsplit
        for s in range(40):
            if not fcrit:
                if s == fstart and fwait: lds_wait("f0", 20, 4)
                if fstart <= s < fstart + 10 - fsplit: wdma(fsplit + s - fstart)
                if s == fstart + 10 - fsplit: twl()
            if s == H - 2:
                a("s_waitcnt vmcnt(4)")
                lds_inc(16)
                lds_wait("f2", 16, 4)
                st.stamp("fb1")
                if stamps: a("s_waitcnt lgkmcnt(0)")
            if s + 2 < 40: rdB(s + 2)
            a(f"s_waitcnt lgkmcnt({4 if s < 38 else 2*(39-s)})")
            for part, Z in enumerate((ZA, ZB)):
                c = "0" if s == 0 else vr(Z, 16)
                a(f"v_mfma_f32_32x32x16_bf16 {vr(Z,16)}, {vr(XR[s//4][s%4],4)}, {vr(BF[s%3][part],4)}, {c}")
        assert fstart + 10 - fsplit < H - 2
    if wgen:
        a(f"s_setprio {gprio}")
        a(f"s_mov_b32 s{sGF}, s{sCnt}")
        WDB = lambda p: 0x10000 + 8192 * p
        vE_ = vFW[0]; vF_ = vFW[1]; vD_ = vFs; vA_ = vRX[0]; vB_ = vRX[1]
        a(f"v_and_b32 v{vT[0]}, 31, v{vL}")
        a(f"v_and_b32 v{vE_}, 0x13, v{vT[0]}")
        a(f"v_bfe_u32 v{vT[1]}, v{vT[0]}, 2, 1")
        a(f"v_lshl_add_u32 v{vE_}, v{vT[1]}, 3, v{vE_}")
        a(f"v_bfe_u32 v{vT[1]}, v{vT[0]}, 3, 1")
        a(f"v_lshl_add_u32 v{vE_}, v{vT[1]}, 2, v{vE_}")
        a(f"s_lshl_b32 s{sT}, s{sBeta}, 5")
        a(f"v_add_u32 v{vE_}, s{sT}, v{vE_}")
        a(f"v_cvt_f32_u32 v{vF_}, v{vE_}")
        a(f"v_mul_f32 v{vF_}, 0x3acccccd, v{vF_}")
        a(f"v_lshrrev_b32 v{vD_}, 5, v{vL}")
        a(f"s_lshl_b32 s{sT}, s{sWl}, 4")
        a(f"v_lshl_add_u32 v{vD_}, v{vD_}, 3, s{sT}")
        a(f"s_lshl_b32 s{sT}, s{sWl}, 11")
        a(f"s_add_u32 s{sT}, s{sT}, 0x10000")
        a(f"v_lshlrev_b32 v{vB_}, 4, v{vL}")
        a(f"v_add_u32 v{vA_}, s{sT}, v{vB_}")
        a(f"s_cmp_eq_u32 s{sBeta}, 0")
        a(f"s_cselect_b32 s{sSp}, 1, 0")
        a(f"s_mov_b32 s{sSp+1}, s{sSp}")
        a(f"s_mov_b32 s{sOW}, 0")
        vK_ = vRX[2]
        assert vK_ % 2 == 0
        def kappa():
            a(f"v_cos_f32 v{vK_}, v{vF_}")
            a("s_nop 0")
            a(f"v_add_f32 v{vK_}, v{vK_}, v{vK_}")
            a(f"v_mov_b32 v{vK_+1}, v{vK_}")
        def inter(f, g):
            keep = a.lines
            a.lines = []; f(); l1 = a.lines
            a.lines = []; g(); l2 = a.lines
            a.lines = keep
            for x_, y_ in zip(l1, l2): a.lines += [x_, y_]
        def trig1(Z, step):
            a(f"v_fract_f32 v{Z}, v{Z}")
            a(f"v_add_f32 v{Z+2}, v{Z}, v{step}")
            a(f"v_sin_f32 v{Z+1}, -v{Z}")
            a(f"v_cos_f32 v{Z}, v{Z}")
            a(f"v_sin_f32 v{Z+3}, -v{Z+2}")
            a(f"v_cos_f32 v{Z+2}, v{Z+2}")
            for i in range(2, 8):
                a(f"v_pk_fma_f32 {vr(Z+2*i,2)}, {vr(Z+2*i-2,2)}, {vr(vK_,2)}, {vr(Z+2*i-4,2)} neg_lo:[0,0,1] neg_hi:[0,0,1]")
        def trig2(Z, dc, ds_):
            for i in range(4): a(f"v_cvt_pk_bf16_f32 v{dc+i}, v{Z+4*i}, v{Z+4*i+2}")
            for i in range(4): a(f"v_cvt_pk_bf16_f32 v{ds_+i}, v{Z+4*i+1}, v{Z+4*i+3}")
        def seed(Z, add):
            a(f"v_add3_u32 v{Z}, s{sT}, v{vD_}, {add}")
            a(f"v_mul_u32_u24 v{Z}, v{Z}, v{vE_}")
            a(f"v_cvt_f32_u32 v{Z}, v{Z}")
            a(f"v_mul_f32 v{Z}, 0x3acccccd, v{Z}")
            trig1(Z, vF_)
        kappa()
        GO = BF[0][0]
        a(f"s_lshr_b32 s{sT}, s{sOX}, 1")
        a.label(L("wgl"))
        inter(lambda: seed(ZA, 0), lambda: seed(ZB, 64))
        a("s_waitcnt lgkmcnt(0)")
        for h_, Z in enumerate((ZA, ZB)):
            trig2(Z, GO + 8 * h_, GO + 8 * h_ + 4)
            a(f"s_mov_b64 exec, s[{sSp}:{sSp+1}]")
            for i in range(4): a(f"v_mov_b32 v{GO+8*h_+4+i}, 0xbf803f80")
            a("s_mov_b64 exec, -1")
            a(f"ds_write_b128 v{vA_}, {vr(GO+8*h_,4)} offset:{8192*h_}")
            a(f"ds_write_b128 v{vA_}, {vr(GO+8*h_+4,4)} offset:{8192*h_+1024}")
        a(f"v_add_u32 v{vA_}, 16384, v{vA_}")
        a(f"s_add_u32 s{sT}, s{sT}, 128")
        a(f"s_cmp_ge_u32 s{sT}, 640")
        a(f"s_cselect_b32 s{sT2}, 640, 0")
        a(f"s_sub_u32 s{sT}, s{sT}, s{sT2}")
        a(f"s_add_u32 s{sOW}, s{sOW}, 1")
        a(f"s_cmp_lg_u32 s{sOW}, 5")
        a(f"s_cbranch_scc1 {L('wgl')}")
        a("s_waitcnt lgkmcnt(0)")
        lds_inc(12)
        a(f"v_and_b32 v{vT[2]}, 31, v{vL}")
        a(f"v_cvt_f32_u32 v{vF_}, v{vT[2]}")
        a(f"v_mul_f32 v{vF_}, 0x3d000000, v{vF_}")
        a(f"v_and_b32 v{vD_}, 8, v{vD_}")
        kappa()
        def tw(Z, j):
            a(f"v_add_u32 v{Z}, {16*j}, v{vD_}")
            a(f"v_cvt_f32_u32 v{Z}, v{Z}")
            a(f"v_mul_f32 v{Z}, v{Z}, v{vF_}")
            trig1(Z, vF_)
            trig2(Z, FR + 4 * j, FIn + 4 * j)
        inter(lambda: tw(ZA, 0), lambda: tw(ZB, 1))
        a(f"v_add_u32 v{vA_}, 0x10000, v{vB_}")
        a(f"v_add_u32 v{vB_}, 0x20000, v{vB_}")
        a("s_setprio 3")
        lds_wait("f1", 12, 4)
        st.stamp("fb0")
        if stamps: a("s_waitcnt lgkmcnt(0)")
        def rdB(s):
            p, ks = divmod(s, 4)
            for part in range(2):
                a(f"ds_read_b128 {vr(BF[s%3][part],4)}, v{vA_ if p < 8 else vB_} offset:{(WDB(p) & 0xffff) + 2048*ks + 1024*part}")
        rdB(0); rdB(1)
        for s in range(40):
            if s + 2 < 40: rdB(s + 2)
            a(f"s_waitcnt lgkmcnt({4 if s < 38 else 2*(39-s)})")
            for part, Z in enumerate((ZA, ZB)):
                c = "0" if s == 0 else vr(Z, 16)
                a(f"v_mfma_f32_32x32x16_bf16 {vr(Z,16)}, {vr(XR[s//4][s%4],4)}, {vr(BF[s%3][part],4)}, {c}")
    lds_inc(8)
    st.stamp("fend")
    FRn = XR[0][0]; G0 = XR[1][0]; G1 = XR[2][0]; G2 = XR[3][0]; G3 = XR[4][0]; ZS = XR[5][0]
    a("s_waitcnt vmcnt(0)")
    for i in range(8):
        a(f"v_xor_b32 v{FRn+i}, 0x80008000, v{FR+i}")
        a(f"v_xor_b32 v{FIn+i}, 0x80008000, v{FIn+i}")
    for Z in (ZA, ZB):
        for i in range(8): a(f"v_cvt_pk_bf16_f32 v{Z+i}, v{Z+2*i}, v{Z+2*i+1}")
    m = lambda d, A, B, c: a(f"v_mfma_f32_32x32x16_bf16 {vr(d,16)}, {vr(A,4)}, {vr(B,4)}, {c}")
    GP = TOP - 24
    a("s_nop 0")
    a(f"s_cmp_lg_u32 s{sBeta}, 0")
    a(f"s_cbranch_scc1 {L('fn')}")
    m(G2, ZB, FR, "0"); m(G2, ZB+4, FR+4, vr(G2,16))
    m(G3, ZB, FIn, "0"); m(G3, ZB+4, FIn+4, vr(G3,16))
    a("s_mov_b32 exec_lo, 1"); a("s_mov_b32 exec_hi, 1")
    for i in range(8): a(f"v_mov_b32 v{ZB+i}, 0")
    a(f"s_mov_b64 exec, s[{sLo}:{sLo+1}]")
    a("s_nop 3")
    for i in range(4): a(f"v_mov_b32 v{GP+16+i}, 0"); a(f"v_mov_b32 v{GP+20+i}, 0")
    a(f"v_cvt_pk_bf16_f32 v{GP+16}, v{G2}, 0")
    a(f"v_cvt_pk_bf16_f32 v{GP+20}, v{G3}, 0")
    a("s_mov_b64 exec, -1")
    a.label(L("fn"))
    m(G0, ZA, FR, "0"); m(G0, ZA+4, FR+4, vr(G0,16)); m(G0, ZB, FIn, vr(G0,16)); m(G0, ZB+4, FIn+4, vr(G0,16))
    m(G1, ZB, FRn, "0"); m(G1, ZB+4, FRn+4, vr(G1,16)); m(G1, ZA, FIn, vr(G1,16)); m(G1, ZA+4, FIn+4, vr(G1,16))
    a("s_nop 7")
    for p, g in enumerate((G0, G1)):
        for i in range(8): a(f"v_cvt_pk_bf16_f32 v{GP+8*p+i}, v{g+2*i}, v{g+2*i+1}")
    def g_stores(sd):
        srd(a, sd, sWS, WL.G, WL.G_SIZE)
        a(f"s_mov_b32 s{sT2}, {64*WL.GA}")
        for p in range(2):
            for j in range(2):
                so = "0" if p == 0 else f"s{sT2}"
                a(f"buffer_store_dwordx4 {vr(GP+8*p+4*j,4)}, v{vGs}, s[{sd}:{sd+3}], {so} offen offset:{1024*j} sc1")
        a(f"s_or_b32 s{sT}, s{sXc}, s{sJ}")
        a(f"s_cmp_ge_u32 s{sT}, 4")
        a(f"s_cbranch_scc1 {L('gs1')}")
        a(f"v_add_u32 v{vGs}, {20*1024}, v{vGs}")
        a(f"s_mov_b64 exec, s[{sLo}:{sLo+1}]")
        a(f"buffer_store_dwordx4 {vr(GP+16,4)}, v{vGs}, s[{sd}:{sd+3}], 0 offen sc1")
        a(f"buffer_store_dwordx4 {vr(GP+20,4)}, v{vGs}, s[{sd}:{sd+3}], s{sT2} offen sc1")
        a("s_mov_b64 exec, -1")
        a.label(L("gs1"))
    assert ZB + 8 <= GP
    st.stamp("gst")
    a(f"s_branch {L('help')}")
    a.label(L("lgate"))
    if cwarm:
        a(f"s_getpc_b64 s[{sT}:{sT2}]")
        a.label(L("pc0"))
        a(f"s_sub_u32 s{sT}, s{sT}, {L('pc0')}-{name}")
        a(f"s_subb_u32 s{sT2}, s{sT2}, 0")
        a(f"s_lshl_b32 s{sCnt}, s{sWl}, 13")
        a(f"v_lshl_add_u32 v{vT[0]}, v{vL}, 7, s{sCnt}")
        a(f"v_min_u32 v{vT[0]}, {L('cend')}-{name}-4, v{vT[0]}")
        a(f"global_load_dword v{vT[1]}, v{vT[0]}, s[{sT}:{sT2}]")
    if gtouch and not wgen:
        sel_srd(sB, sWm, 6, 8, 2048 * 4096)
        a(f"v_and_b32 v{vT[0]}, 31, v{vL}")
        a(f"v_lshlrev_b32 v{vT[0]}, 18, v{vT[0]}")
        a(f"buffer_load_dword v{vT[1]}, v{vT[0]}, s[{sB}:{sB+3}], 0 offen")
    masks()
    a(f"s_lshl_b32 s{sT}, s2, 3")
    a(f"s_add_u32 s{sT}, s{sT}, s{sW}")
    a(f"s_cmp_lg_u32 s{sT}, {240*8+4}")
    a(f"s_cbranch_scc1 {L('ncw')}")
    srd(a, sC, sWS, WL.KC, WL.G - WL.KC)
    for i in range(4): a(f"v_mov_b32 v{ZA+i}, 0x3f803f80")
    a(f"v_mov_b32 v{ZA+4}, 0x3f803f80"); a(f"v_mov_b32 v{ZA+5}, 0x3f80"); a(f"v_mov_b32 v{ZA+6}, 0x3f803f80"); a(f"v_mov_b32 v{ZA+7}, 0x3f80")
    a(f"v_mul_u32_u24 v{vT[2]}, {WL.VR}, v{vL}")
    for i in range(4):
        a(f"s_mov_b32 s{sT}, {WL.PL + 10240 + 64*i*WL.VR}")
        a(f"buffer_store_dwordx4 {vr(ZA,4)}, v{vT[2]}, s[{sC}:{sC+3}], s{sT} offen sc1")
    a(f"v_and_b32 v{vT[2]}, 31, v{vL}")
    a(f"v_lshlrev_b32 v{vT[2]}, 10, v{vT[2]}")
    a(f"buffer_store_dwordx4 {vr(ZA+4,4)}, v{vT[2]}, s[{sC}:{sC+3}], 0 offen sc1")
    a("s_waitcnt vmcnt(0) lgkmcnt(0)")
    a(f"s_add_u32 s{sNonce}, s{sNonce}, 1")
    a(f"s_mov_b32 s{sT}, {WL.FA + 256*128}")
    put_flag(f"s{sT}")
    a(f"s_sub_u32 s{sNonce}, s{sNonce}, 1")
    a.label(L("ncw"))
    if wpack:
        srd(a, sB, 18, 0, 640 * 1280)
        srd(a, sC, sWS, WL.WP, 8 * 102400)
        a(f"s_and_b32 s{sT}, s{sJ}, 1")
        a(f"s_lshl_b32 s{sT}, s{sT}, 2")
        a(f"s_add_u32 s{sCnt}, s{sT}, s{sWl}")
        a(f"v_mul_u32_u24 v{vT[2]}, 205, v{vL}")
        a(f"v_lshrrev_b32 v{vT[2]}, 11, v{vT[2]}")
        a(f"v_mul_u32_u24 v{vT[3]}, {1280-160}, v{vT[2]}")
        a(f"v_lshl_add_u32 v{vT[3]}, v{vL}, 4, v{vT[3]}")
        a(f"s_mul_i32 s{sT}, s{sXc}, 160")
        a(f"v_add_u32 v{vT[3]}, s{sT}, v{vT[3]}")
        a(f"s_mul_i32 s{sT}, s{sXc}, 102400")
        a(f"s_mul_i32 s{sT2}, s{sCnt}, {5*2560}")
        a(f"s_add_u32 s{sT}, s{sT}, s{sT2}")
        a(f"v_lshl_add_u32 v{vT[4]}, v{vL}, 4, s{sT}")
        a(f"s_mul_i32 s{sOX}, s{sCnt}, 5")
        a(f"s_mov_b64 exec, s[{sDm}:{sDm+1}]")
        for u_ in range(5):
            a(f"s_add_u32 s{sT}, s{sOX}, {u_}")
            a(f"s_lshr_b32 s{sT2}, s{sT}, 1")
            a(f"s_and_b32 s{sT}, s{sT}, 1")
            a(f"s_lshl_b32 s{sT2}, s{sT2}, 3")
            a(f"s_add_u32 s{sT}, s{sT}, s{sT2}")
            a(f"s_mul_i32 s{sT}, s{sT}, {4*1280}")
            for g_ in range(4):
                a(f"buffer_load_dwordx4 {vr(XR[u_][g_],4)}, v{vT[3]}, s[{sB}:{sB+3}], s{sT} offen")
                if g_ < 3: a(f"s_add_u32 s{sT}, s{sT}, {8*1280}")
        a("s_mov_b64 exec, -1")
    a("s_waitcnt lgkmcnt(0)")
    a("s_barrier")
    a(f"s_add_u32 s{sNonce}, s{sNonce}, 1")
    if wpack:
        a(f"s_mov_b64 exec, s[{sDm}:{sDm+1}]")
        a("s_waitcnt vmcnt(0)")
        for u_ in range(5):
            a(f"s_mov_b32 s{sT}, {2560*u_}")
            for g_ in range(4):
                a(f"buffer_store_dwordx4 {vr(XR[u_][g_],4)}, v{vT[4]}, s[{sC}:{sC+3}], s{sT} offen offset:{640*g_} sc1")
        a("s_mov_b64 exec, -1")
        a(f"s_lshl_b32 s{sT}, s{sXc}, 3")
        a(f"s_add_u32 s{sT}, s{sT}, s{sCnt}")
        a(f"s_lshl_b32 s{sT}, s{sT}, 2")
        a(f"s_add_u32 s{sT}, s{sT}, {WL.FP}")
        a("s_waitcnt vmcnt(0)")
        put_flag(f"s{sT}")
    a("s_waitcnt vmcnt(0)")
    a(f"s_branch {L('lfree')}")
    a.label(L("lq"))
    a(f"s_cmp_lg_u32 s{sCb}, 0")
    a(f"s_cbranch_scc1 {L('lfree')}")
    lds_wait("g0", 20, 4)
    srd(a, sB, 20, 0, 1280)
    a(f"s_mul_i32 s{sM0}, s{sW}, 3072")
    a(f"s_add_u32 s{sM0}, s{sM0}, {LDS_X}")
    for i in range(3):
        a(f"v_lshlrev_b32 v{vT[0]}, 4, v{vL}")
        if i: a(f"v_add_u32 v{vT[0]}, {1024*i}, v{vT[0]}")
        a(f"v_subrev_u32 v{vT[1]}, 1280, v{vT[0]}")
        a(f"v_min_u32 v{vT[0]}, v{vT[0]}, v{vT[1]}")
        a(f"s_add_u32 m0, s{sM0}, {1024*i}")
        a("s_nop 0")
        a(f"buffer_load_dwordx4 v{vT[0]}, s[{sB}:{sB+3}], 0 offen lds")
    a(f"v_lshrrev_b32 v{vT[2]}, 5, v{vL}")
    a(f"s_add_u32 s{sT}, s{sM0}, s{sOX}")
    a(f"v_lshl_add_u32 v{vT[2]}, v{vT[2]}, 4, s{sT}")
    srd(a, sC, sWS, WL.GATE, 2048 * 8)
    a(f"s_lshl_b32 s{sCnt}, s{sRb}, 2")
    a(f"s_add_u32 s{sCnt}, s{sCnt}, s{sWl}")
    a("s_waitcnt vmcnt(0)")
    GB = [BF[0][0], BF[0][1], BF[1][0], BF[1][1], BF[2][0], BF[2][1]]
    for s_ in range(5): a(f"ds_read_b128 {vr(GB[s_],4)}, v{vT[2]} offset:{32*s_}")
    for s_ in range(40):
        if s_ + 5 < 40: a(f"ds_read_b128 {vr(GB[(s_+5)%6],4)}, v{vT[2]} offset:{32*(s_+5)}")
        a(f"s_waitcnt lgkmcnt({min(5, 39 - s_)})")
        c = "0" if s_ == 0 else vr(ZA, 16)
        a(f"v_mfma_f32_32x32x16_bf16 {vr(ZA,16)}, {vr(GB[s_%6],4)}, {vr(XR[s_//4][s_%4],4)}, {c}")
    a("s_nop 12")
    a(f"v_cvt_pk_bf16_f32 v{ZA}, 0, v{ZA}")
    a(f"v_mul_f32 v{ZA}, 0xbfb8aa3b, v{ZA}")
    a(f"v_exp_f32 v{ZA}, v{ZA}")
    a(f"v_lshlrev_b32 v{vT[2]}, 3, v{vL}")
    a(f"v_add_f32 v{ZA}, 1.0, v{ZA}")
    a(f"v_rcp_f32 v{ZA}, v{ZA}")
    a(f"s_lshl_b32 s{sT}, s{sCnt}, 8")
    a(f"v_cvt_pk_bf16_f32 v{ZB}, 0, v{ZA}")
    a(f"v_sub_f32 v{ZB+1}, 1.0, v{ZB}")
    a(f"v_cvt_pk_bf16_f32 v{ZB+1}, 0, v{ZB+1}")
    a(f"s_mov_b64 exec, s[{sLo}:{sLo+1}]")
    a(f"buffer_store_dwordx2 {vr(ZB,2)}, v{vT[2]}, s[{sC}:{sC+3}], s{sT} offen sc1")
    a("s_mov_b64 exec, -1")
    a(f"s_lshl_b32 s{sGF}, s{sCnt}, 2")
    a(f"s_add_u32 s{sGF}, s{sGF}, {WL.FP + 256}")
    a.label(L("lfree"))
    a("s_waitcnt lgkmcnt(0)")
    lds_inc(8)
    a(f"s_branch {L('help')}")

    a.label(L("comp"))
    V = Alloc(VB, TOP)
    vRX = [V.get() for _ in range(4)]; vRW = [V.get() for _ in range(2)]
    vE = [V.get() for _ in range(8)]
    vTch = V.get(2)
    XF = [[V.get(4, 4) for _ in range(2)] for _ in range(4)]
    WF = [[V.get(4, 4) for _ in range(2)] for _ in range(4)]
    ACC = [[V.get(16, 4) for _ in range(2)] for _ in range(2)]
    PK = TOP - 32
    vS = [PK - 4 + i for i in range(4)]
    sDef = 15
    sMask = sD; sScale = sD + 2
    a(f"s_setprio {cprio}")
    nat_read_addrs(vRX, sWm, 13)
    for x in range(2):
        for w in range(2):
            for i in range(16): a(f"v_mov_b32 v{ACC[x][w]+i}, 0")
    after_kernarg()
    masks()
    a(f"s_cmp_lg_u32 s{sW}, 0")
    a(f"s_cbranch_scc1 {L('c1')}")
    a(f"ds_write_b128 v{vCtl}, {vr(ACC[0][0],4)}")
    for o_ in (16, 32, 48): a(f"ds_write_b128 v{vCtl}, {vr(ACC[0][0],4)} offset:{o_}")
    a.label(L("c1"))
    def poison(sd, pr):
        a(f"s_and_b32 s{sT}, s{sJ}, 3")
        a(f"s_lshl_b32 s{sT2}, s{sXc}, 2")
        a(f"s_add_u32 s{sT}, s{sT}, s{sT2}")
        a(f"s_and_b32 s{sCnt}, s{sT}, 1")
        a(f"s_lshr_b32 s{sT}, s{sT}, 1")
        a(f"s_mul_i32 s{sT}, s{sT}, {5*WL.PL}")
        a(f"s_add_u32 s{sT}, s{sT}, {WL.OF}")
        srd(a, sd, sWS, f"s{sT}", 5 * WL.PL)
        a(f"s_and_b32 s{sT}, s{sJ}, 28")
        a(f"s_add_u32 s{sT}, s{sT}, s{sW}")
        a(f"s_lshl_b32 s{sT}, s{sT}, 10")
        a(f"v_lshl_add_u32 v{vT[0]}, v{vL}, 4, s{sT}")
        for i in range(4): a(f"v_mov_b32 v{pr+i}, -1")
        a(f"s_mul_i32 s{sT}, s{sCnt}, {3*WL.PL}")
        a(f"buffer_store_dwordx4 {vr(pr,4)}, v{vT[0]}, s[{sd}:{sd+3}], s{sT} offen sc1")
        a(f"s_add_u32 s{sT}, s{sT}, {WL.PL}")
        a(f"buffer_store_dwordx4 {vr(pr,4)}, v{vT[0]}, s[{sd}:{sd+3}], s{sT} offen sc1")
        a(f"s_lshl_b32 s{sT}, s{sCnt}, 3")
        a(f"s_add_u32 s{sT}, s{sT}, {2*WL.PL}")
        a(f"buffer_store_dwordx2 {vr(pr,2)}, v{vT[0]}, s[{sd}:{sd+3}], s{sT} offen sc1")
    if pois == 1: poison(sC, PK)
    def mainloop(mode, epi):
        def rdX(s, ks, x): a(f"ds_read_b128 {vr(XF[s][x],4)}, v{vRX[ks]} offset:{4096*x}")
        def rdW(s, ks, w):
            a(f"ds_read_b64_tr_b16 {vr(WF[s][w],2)}, v{vRW[w]} offset:{4096*ks}")
            a(f"ds_read_b64_tr_b16 {vr(WF[s][w]+2,2)}, v{vRW[w]} offset:{4096*ks+1024}")
        def mf(s, x, w):
            A, B = (WF[s][w], XF[s][x]) if mode == 'qk' else (XF[s][x], WF[s][w])
            a(f"v_mfma_f32_32x32x16_bf16 {vr(ACC[x][w],16)}, {vr(A,4)}, {vr(B,4)}, {vr(ACC[x][w],16)}")
        a("s_waitcnt lgkmcnt(0)")
        a("s_barrier")
        st.stamp("b0")
        if stamps: a("s_waitcnt lgkmcnt(0)")
        if deep:
            for k_ in range(2): rdX(k_, k_, 0); rdW(k_, k_, 0); rdX(k_, k_, 1); rdW(k_, k_, 1)
            a(f"s_mov_b32 s{sCnt}, 0")
            a.raw(".p2align 5")
            a.label(L(mode + "loop"))
            for ks in range(4):
                nk = (ks + 2) % 4
                a("s_waitcnt lgkmcnt(9)")
                mf(ks, 0, 0)
                if ks == 2:
                    a("s_barrier")
                    for r in (vRX[0], vRW[0], vRW[1], vRX[1]): a(f"v_xor_b32 v{r}, s{sMask}, v{r}")
                rdX(nk, nk, 0); rdW(nk, nk, 0)
                a("s_waitcnt lgkmcnt(11)")
                mf(ks, 1, 0)
                rdX(nk, nk, 1)
                if ks == 2:
                    for r in (vRX[2], vRX[3]): a(f"v_xor_b32 v{r}, s{sMask}, v{r}")
                    a(f"s_xor_b32 s{sMask}, s{sMask}, 0x18000")
                a("s_waitcnt lgkmcnt(10)")
                mf(ks, 0, 1)
                rdW(nk, nk, 1)
                if ks == 3:
                    a(f"s_add_u32 s{sCnt}, s{sCnt}, 1")
                    a(f"s_cmp_lg_u32 s{sCnt}, 9")
                mf(ks, 1, 1)
            a(f"s_cbranch_scc1 {L(mode+'loop')}")
            a("s_waitcnt lgkmcnt(9)")
            mf(0, 0, 0)
            rdX(2, 2, 0); rdW(2, 2, 0); rdX(3, 3, 0); rdW(3, 3, 0)
            a("s_waitcnt lgkmcnt(9)")
            mf(1, 0, 0)
            rdW(2, 2, 1); rdW(3, 3, 1)
            mf(0, 0, 1)
            rdX(2, 2, 1); rdX(3, 3, 1)
            a("s_waitcnt lgkmcnt(9)")
            mf(1, 0, 1)
            mf(2, 0, 0)
            a("s_waitcnt lgkmcnt(6)")
            mf(3, 0, 0)
            a("s_waitcnt lgkmcnt(2)")
            mf(2, 0, 1); mf(3, 0, 1)
            mf(0, 1, 0); mf(1, 1, 0)
            a("s_waitcnt lgkmcnt(0)")
            lds_inc(8)
            a("s_nop 1")
            mf(2, 1, 0)
            epi(0, 0)
            mf(3, 1, 0); mf(0, 1, 1)
            epi(0, 1)
            mf(1, 1, 1); mf(2, 1, 1); mf(3, 1, 1)
            st.stamp("aend")
            epi(1, 0)
            a("s_nop 1")
            epi(1, 1)
            return
        rdX(0, 0, 0); rdW(0, 0, 0); rdX(0, 0, 1); rdW(0, 0, 1)
        a(f"s_mov_b32 s{sCnt}, 0")
        a.raw(".p2align 5")
        a.label(L(mode + "loop"))
        for ks in range(4):
            s = ks % 2; n = 1 - s; nk = (ks + 1) % 4
            if ks < 3:
                a("s_waitcnt lgkmcnt(3)")
                mf(s, 0, 0)
                if ks == 0 and touch:
                    a(f"s_cmp_lg_u32 s{sCnt}, {tpos}")
                    a(f"s_cbranch_scc1 {L(mode+'nt')}")
                    a(f"buffer_load_dword v{vTch}, v{vTch+1}, s[{sE}:{sE+3}], 0 offen")
                    a.label(L(mode + "nt"))
            else:
                a("s_waitcnt lgkmcnt(0)")
                mf(s, 0, 0)
                a(f"s_add_u32 s{sCnt}, s{sCnt}, 1")
                if not peel:
                    a(f"s_cmp_eq_u32 s{sCnt}, 10")
                    a(f"s_cbranch_scc1 {L(mode+'last')}")
                a("s_barrier")
                for r in vRX + vRW:
                    a(f"v_xor_b32 v{r}, s{sMask}, v{r}")
            rdX(n, nk, 0); rdW(n, nk, 0)
            if ks < 3: a("s_waitcnt lgkmcnt(5)")
            mf(s, 1, 0)
            rdX(n, nk, 1)
            if ks < 3: a("s_waitcnt lgkmcnt(4)")
            mf(s, 0, 1)
            rdW(n, nk, 1)
            if ks == 3: a(f"s_xor_b32 s{sMask}, s{sMask}, 0x18000")
            if ks == 3 and peel: a(f"s_cmp_lg_u32 s{sCnt}, 9")
            mf(s, 1, 1)
        if not peel:
            a(f"s_branch {L(mode+'loop')}")
            a.label(L(mode + "last"))
            mf(1, 0, 1); mf(1, 1, 0); mf(1, 1, 1)
            lds_inc(8)
            st.stamp("aend")
            a("s_nop 1")
            for x in range(2):
                for w in range(2): epi(x, w)
            return
        a(f"s_cbranch_scc1 {L(mode+'loop')}")
        for ks in range(1, 4): rdX(ks, ks, 0); rdW(ks, ks, 0)
        for ks in range(4):
            a(f"s_waitcnt lgkmcnt({[12, 6, 5, 4][ks]})")
            mf(ks, 0, 0)
            if ks >= 1: rdW(ks, ks, 1)
        for ks in range(4):
            if ks: a(f"s_waitcnt lgkmcnt({[0, 4, 3, 2][ks]})")
            mf(ks, 0, 1)
            if ks >= 1: rdX(ks, ks, 1)
        mf(0, 1, 0)
        a("s_waitcnt lgkmcnt(0)")
        mf(1, 1, 0)
        lds_inc(8)
        mf(2, 1, 0)
        epi(0, 0)
        mf(3, 1, 0); mf(0, 1, 1)
        epi(0, 1)
        mf(1, 1, 1); mf(2, 1, 1); mf(3, 1, 1)
        st.stamp("aend")
        epi(1, 0)
        a("s_nop 1")
        epi(1, 1)
    a(f"s_mov_b32 s{sMask}, 0x8000")
    a(f"s_cmp_ge_u32 s{sJ}, 30")
    a(f"s_cbranch_scc1 {L('gate')}")
    a(f"s_lshl_b32 s{sAF}, s{sCb}, 4")
    a(f"s_add_u32 s{sAF}, s{sAF}, s{sRb}")
    if touch:
        sel_srd(sE, sWm, 10, 12, 640 * 1280)
        a(f"s_lshl_b32 s{sT}, s{sJ}, 1")
        a(f"s_add_u32 s{sT}, s{sT}, s{sWn}")
        a(f"s_mul_i32 s{sT}, s{sT}, {27*128}")
        a(f"s_lshr_b32 s{sT2}, s{sXc}, 2")
        a(f"s_mul_i32 s{sT2}, s{sT2}, {160*1280}")
        a(f"s_add_u32 s{sT}, s{sT}, s{sT2}")
        a(f"v_min_u32 v{vTch+1}, 26, v{vL}")
        a(f"v_lshl_add_u32 v{vTch+1}, v{vTch+1}, 7, s{sT}")
    def astore(sd, aa, bb, lab=None):
        if lab and defer: a(f"s_cbranch_vccnz {L('as%s%d%d' % (lab, aa, bb))}")
        for j in range(2):
            a(f"buffer_store_dwordx4 {vr(PK+8*(2*bb+aa)+4*j,4)}, v{vS[2*aa+j]}, s[{sd}:{sd+3}], 0 offen offset:{512*bb} sc1")
        if lab and defer: a.label(L('as%s%d%d' % (lab, aa, bb)))
    srd(a, sC, sWS, WL.QF, WL.G - WL.QF)
    if defer:
        a(f"s_and_b32 s{sDef}, s{sRb}, {dmask}")
        a(f"s_cmp_lt_u32 s{sCb}, 5")
        a(f"s_cselect_b32 s{sDef}, 0, s{sDef}")
        a(f"s_cmp_lg_u32 s{sDef}, 0")
        a("s_cselect_b64 vcc, -1, 0")
    a(f"v_bfe_u32 v{vT[0]}, v{vL}, 2, 2")
    a(f"v_lshrrev_b32 v{vT[1]}, 5, v{vL}")
    a(f"v_lshl_add_u32 v{vT[1]}, v{vT[1]}, 3, v{vT[0]}")
    a(f"v_lshlrev_b32 v{vT[1]}, 8, v{vT[1]}")
    a(f"s_lshl_b32 s{sT}, s{sWn}, 1")
    a(f"v_xor_b32 v{vT[0]}, s{sT}, v{vT[0]}")
    a(f"v_lshl_add_u32 v{vT[1]}, v{vT[0]}, 6, v{vT[1]}")
    a(f"v_bfe_u32 v{vT[0]}, v{vL}, 4, 1")
    a(f"v_lshl_add_u32 v{vT[1]}, v{vT[0]}, 5, v{vT[1]}")
    a(f"v_add_u32 v{vT[1]}, 0x4000, v{vT[1]}")
    a(f"v_and_b32 v{vT[4]}, 31, v{vL}")
    a(f"v_lshrrev_b32 v{vT[5]}, 5, v{vL}")
    a(f"s_cmp_ge_u32 s{sCb}, 10")
    a(f"s_cbranch_scc1 {L('v')}")
    a(f"v_and_b32 v{vT[0]}, 1, v{vL}")
    a(f"v_lshl_add_u32 v{vT[1]}, v{vT[0]}, 4, v{vT[1]}")
    a(f"v_bfe_u32 v{vT[0]}, v{vL}, 1, 1")
    a(f"v_lshl_add_u32 v{vRW[0]}, v{vT[0]}, 3, v{vT[1]}")
    a(f"v_xor_b32 v{vRW[1]}, 64, v{vRW[0]}")
    a(f"s_cmp_ge_u32 s{sCb}, 5")
    a(f"s_cselect_b32 s{sScale}, 1.0, {hex(QSCALE)}")
    a(f"s_mov_b32 s{sScale+1}, s{sScale}")
    a(f"s_lshl_b32 s{sT}, s{sCb}, 1")
    a(f"s_add_u32 s{sT}, s{sT}, s{sWn}")
    sR5 = sD + 1
    a(f"s_lshl_b32 s{sR5}, s{sT}, 3")
    a(f"s_mul_i32 s{sT2}, s{sR5}, 205")
    a(f"s_lshr_b32 s{sT2}, s{sT2}, 10")
    a(f"s_mul_i32 s{sT2}, s{sT2}, 5")
    a(f"s_sub_u32 s{sR5}, s{sR5}, s{sT2}")
    a(f"s_lshl_b32 s{sT}, s{sT}, 18")
    a(f"s_lshl_b32 s{sT2}, s{sRb}, 1")
    a(f"s_add_u32 s{sT2}, s{sT2}, s{sWm}")
    a(f"s_lshl_b32 s{sT2}, s{sT2}, 10")
    a(f"s_add_u32 s{sT}, s{sT}, s{sT2}")
    a(f"v_lshlrev_b32 v{vS[0]}, 15, v{vT[5]}")
    a(f"v_lshl_add_u32 v{vS[0]}, v{vT[4]}, 4, v{vS[0]}")
    a(f"v_add_u32 v{vS[0]}, s{sT}, v{vS[0]}")
    for e in range(1, 4): a(f"v_add_u32 v{vS[e]}, {e*2*WL.PL}, v{vS[0]}")
    def epi_qk(x, w):
        acc = ACC[x][w]; pk = PK + 8 * (2 * x + w)
        for i in range(0, 16, 2): a(f"v_pk_mul_f32 {vr(acc+i,2)}, {vr(acc+i,2)}, s[{sScale}:{sScale+1}]")
        for i in range(8): a(f"v_cvt_pk_bf16_f32 v{pk+i}, v{acc+2*i}, v{acc+2*i+1}")
        if x == 0: return
        for j in range(2):
            t5 = (2 - 2 * (2 * w + j)) % 5
            a(f"s_cmp_eq_u32 s{sR5}, {t5}")
            a("s_cselect_b32 exec_lo, -1, 0")
            a(f"s_cmp_eq_u32 s{sR5}, {(t5 - 1) % 5}")
            a("s_cselect_b32 exec_hi, -1, 0")
            for i in range(2): a(f"v_swap_b32 v{PK+8*w+4*j+2+i}, v{PK+8*(2+w)+4*j+i}")
        a("s_mov_b64 exec, -1")
        astore(sC, w, 0, "q"); astore(sC, w, 1, "q")
    mainloop('qk', epi_qk)
    a(f"s_branch {L('adone')}")
    a.label(L("v"))
    a(f"v_and_b32 v{vT[0]}, 3, v{vL}")
    a(f"v_lshl_add_u32 v{vRW[0]}, v{vT[0]}, 3, v{vT[1]}")
    a(f"v_xor_b32 v{vRW[1]}, 64, v{vRW[0]}")
    a(f"s_lshl_b32 s{sT}, s{sRb}, 1")
    a(f"s_add_u32 s{sT}, s{sT}, s{sWm}")
    a(f"s_mul_i32 s{sT}, s{sT}, {2*WL.VT}")
    a(f"s_sub_u32 s{sT2}, s{sCb}, 10")
    a(f"s_lshl_b32 s{sT2}, s{sT2}, 1")
    a(f"s_add_u32 s{sT2}, s{sT2}, s{sWn}")
    a(f"s_lshl_b32 s{sT2}, s{sT2}, 10")
    a(f"s_add_u32 s{sT}, s{sT}, s{sT2}")
    a(f"s_add_u32 s{sT}, s{sT}, {WL.VF - WL.QF}")
    a(f"v_mul_u32_u24 v{vS[0]}, {WL.VR}, v{vT[5]}")
    a(f"v_lshl_add_u32 v{vS[0]}, v{vT[4]}, 4, v{vS[0]}")
    a(f"v_add_u32 v{vS[0]}, s{sT}, v{vS[0]}")
    for e in range(1, 4): a(f"v_add_u32 v{vS[e]}, {e*2*WL.VR}, v{vS[0]}")
    def epi_v(x, w):
        acc = ACC[x][w]; pk = PK + 8 * (2 * w + x)
        for i in range(8): a(f"v_cvt_pk_bf16_f32 v{pk+i}, v{acc+2*i}, v{acc+2*i+1}")
        astore(sC, x, w, "v")
    mainloop('v', epi_v)
    a(f"s_branch {L('adone')}")
    a.label(L("gate"))
    a(f"s_mov_b32 s{sAF}, s2")
    a("s_waitcnt lgkmcnt(0)")
    a("s_barrier")
    def spoison():
        srd(a, sC, sWS, WL.OF, 80 * WL.PL)
        a(f"s_sub_u32 s{sT}, s2, 240")
        a(f"s_lshl_b32 s{sT}, s{sT}, 2")
        a(f"s_add_u32 s{sT}, s{sT}, s{sW}")
        a(f"s_mul_i32 s{sT}, s{sT}, 40960")
        a(f"s_add_u32 s{sT2}, s{sT}, 40960")
        a(f"v_lshlrev_b32 v{vT[3]}, 4, v{vL}")
        for i in range(4): a(f"v_mov_b32 v{PK+4+i}, -1")
        a.label(L("spl"))
        for i in range(4): a(f"buffer_store_dwordx4 {vr(PK+4,4)}, v{vT[3]}, s[{sC}:{sC+3}], s{sT} offen offset:{1024*i} sc1")
        a(f"s_add_u32 s{sT}, s{sT}, 4096")
        a(f"s_cmp_lt_u32 s{sT}, s{sT2}")
        a(f"s_cbranch_scc1 {L('spl')}")
    if pois == 5 and pfirst: spoison()
    if wdtouch:
        sel_srd(sB, sWm, 10, 12, 640 * 1280)
        a(f"s_and_b32 s{sT}, s{sJ}, 1")
        a(f"s_lshl_b32 s{sT}, s{sT}, 1")
        a(f"s_add_u32 s{sT}, s{sT}, s{sWn}")
        a(f"s_mul_i32 s{sT}, s{sT}, {400*128}")
        a(f"s_lshr_b32 s{sT2}, s{sXc}, 2")
        a(f"s_mul_i32 s{sT2}, s{sT2}, {160*1280}")
        a(f"s_add_u32 s{sT}, s{sT}, s{sT2}")
        a(f"v_min_u32 v{vT[2]}, 49, v{vL}")
        a(f"v_lshlrev_b32 v{vT[2]}, 7, v{vT[2]}")
        for i in range(8):
            a(f"buffer_load_dword v{PK}, v{vT[2]}, s[{sB}:{sB+3}], s{sT} offen")
            a(f"s_add_u32 s{sT}, s{sT}, {50*128}")
    if pois == 5 and not pfirst: spoison()
    lds_inc(8)
    a.label(L("adone"))
    if pois == 2: poison(sC, XF[0][0])
    if fwait: lds_inc(20)
    st.stamp("ast")
    a(f"s_add_u32 s{sNonce}, s{sNonce}, 1")
    a(f"s_lshl_b32 s{sAF}, s{sAF}, 7")
    a(f"s_add_u32 s{sAF}, s{sAF}, {WL.FA}")

    vKm = 10; vKr = 11; vIdx = 12; vM = 13
    vVa = [[14 + 2 * b, 15 + 2 * b] for b in range(4)]; vV0, vV1 = vVa[0]
    vG1 = 22
    Qm = [24 + 4 * q for q in range(4)]; Qr = [40 + 2 * q for q in range(4)]
    Km = [48 + 4 * b for b in range(4)]; Kr = [64 + 2 * b for b in range(4)]
    Vb = [[72 + 8 * b, 76 + 8 * b] for b in range(4)]
    S = [104 + 16 * q for q in range(4)]; O = [168 + 16 * q for q in range(4)]
    K0m = 232; K0r = 236; cO = 238; cSt = 239; cX0 = 240; cX1 = 241; cR = 242; cD0 = 243; cD1 = 244
    vKF = S[0]; vQF = S[0] + 1
    sK = sA; sV = sB; sQ = sC
    sHead = 98; sQb = 99; sKh = 100; sOK = 101; sOV = 14; sPar = sE; sHp = sE + 2; sU0 = sE + 3
    sCc = sHead; sEb8 = sQb; sRet = sE
    def coords():
        a(f"s_and_b32 s{sT}, s{sJ}, 3")
        a(f"s_lshl_b32 s{sHead}, s{sXc}, 2")
        a(f"s_add_u32 s{sHead}, s{sHead}, s{sT}")
        a(f"s_lshr_b32 s{sQb}, s{sJ}, 2")
    def swap23(dst, src, tmp):
        a(f"v_and_b32 v{dst}, 0x13, v{src}")
        a(f"v_bfe_u32 v{tmp}, v{src}, 2, 1")
        a(f"v_lshl_add_u32 v{dst}, v{tmp}, 3, v{dst}")
        a(f"v_bfe_u32 v{tmp}, v{src}, 3, 1")
        a(f"v_lshl_add_u32 v{dst}, v{tmp}, 2, v{dst}")
    def kv_flag_offsets(kf):
        a(f"s_mul_i32 s{sT}, s{sHead}, 20")
        a(f"v_bfe_u32 v{vT[0]}, v{vL}, 4, 1")
        a(f"v_mul_u32_u24 v{vT[0]}, 19, v{vT[0]}")
        a(f"v_add_u32 v{vT[0]}, s{sT}, v{vT[0]}")
        a(f"v_lshrrev_b32 v{vT[0]}, 7, v{vT[0]}")
        a(f"v_lshrrev_b32 v{vT[1]}, 5, v{vL}")
        a(f"v_mul_u32_u24 v{vT[1]}, 5, v{vT[1]}")
        a(f"v_add3_u32 v{vT[1]}, v{vT[1]}, v{vT[0]}, 5")
        a(f"v_and_b32 v{vT[2]}, 15, v{vL}")
        a(f"v_lshl_add_u32 v{vT[1]}, v{vT[1]}, 4, v{vT[2]}")
        a(f"v_lshlrev_b32 v{kf}, 7, v{vT[1]}")
    def d_addrs(vo, vst, vr_, step0, vws=None, vgt=None):
        a(f"v_and_b32 v{vT[0]}, 15, v{vL}")
        a(f"v_lshrrev_b32 v{vT[1]}, 4, v{vL}")
        swap23(vT[4], vT[0], vT[3])
        a(f"s_and_b32 s{sT}, s{sW}, 3")
        a(f"s_lshl_b32 s{sT}, s{sT}, 4")
        a(f"s_lshl_b32 s{sT2}, s{sCc}, 6")
        a(f"s_add_u32 s{sT}, s{sT}, s{sT2}")
        a(f"v_add_u32 v{vT[2]}, s{sT}, v{vT[0]}")
        a(f"s_and_b32 s{sT}, s{sW}, 1")
        a(f"s_lshl_b32 s{sT}, s{sT}, 10")
        a(f"s_and_b32 s{sT2}, s{sW}, 2")
        a(f"s_lshl_b32 s{sT2}, s{sT2}, 4")
        a(f"s_add_u32 s{sT}, s{sT}, s{sT2}")
        a(f"s_add_u32 s{sT}, s{sT}, s{sCc}")
        a(f"v_lshl_add_u32 v{vT[0]}, v{vT[4]}, 6, s{sT}")
        if vws is not None:
            a(f"v_lshlrev_b32 v{vws}, 12, v{vT[0]}")
            a(f"v_lshl_add_u32 v{vws}, v{vT[1]}, 4, v{vws}")
            a(f"v_lshlrev_b32 v{vgt}, 3, v{vT[2]}")
        a(f"v_lshlrev_b32 v{vo}, 4, v{vT[2]}")
        a(f"v_lshl_add_u32 v{vo}, v{vT[1]}, 15, v{vo}")
        if step0: a(f"v_add_u32 v{vo}, {4*WL.PL*step0}, v{vo}")
        a(f"v_mul_u32_u24 v{vst}, 1280, v{vT[0]}")
        a(f"v_lshl_add_u32 v{vst}, v{vT[1]}, 3, v{vst}")
        a(f"s_mul_i32 s{sT}, s{sEb8}, 160")
        a(f"v_add_u32 v{vst}, s{sT}, v{vst}")
        a(f"v_lshrrev_b32 v{vT[2]}, 2, v{vL}")
        a(f"v_and_b32 v{vT[1]}, 3, v{vL}")
        a(f"v_mul_u32_u24 v{vr_}, 160, v{vT[2]}")
        a(f"v_lshl_add_u32 v{vr_}, v{vT[1]}, 3, v{vr_}")
        if step0: a(f"v_add_u32 v{vr_}, {5120*step0}, v{vr_}")
    def slot_addr(dst, xor, add):
        a(f"s_and_b32 s{sT}, s{sW}, 3")
        if xor: a(f"s_xor_b32 s{sT}, s{sT}, {xor}")
        a(f"s_mul_i32 s{sT}, s{sT}, 6144")
        a(f"s_add_u32 s{sT}, s{sT}, {LDS_X + add}")
        a(f"v_lshl_add_u32 v{dst}, v{vL}, 4, s{sT}")
    def all_nonce(regs, lab):
        for r in regs: a(f"v_xor_b32 v{r}, s{sNonce}, v{r}")
        rest = regs[1:]
        while len(rest) >= 2:
            a(f"v_or3_b32 v{regs[0]}, v{regs[0]}, v{rest[0]}, v{rest[1]}"); rest = rest[2:]
        if rest: a(f"v_or_b32 v{regs[0]}, v{regs[0]}, v{rest[0]}")
        a(f"v_cmp_ne_u32 vcc, 0, v{regs[0]}")
        a("s_nop 1")
        a("s_cmp_eq_u64 vcc, 0")
        a(f"s_cbranch_scc1 {L(lab)}")
    def lds_set(off):
        a(f"v_mov_b32 v{vT[0]}, 1")
        a(f"ds_write_b32 v{vCtl}, v{vT[0]} offset:{off}")
    def rd(dst, base, off, pitch=160):
        for t in range(5):
            a(f"ds_read_b64_tr_b16 {vr(dst[t],2)}, v{base} offset:{off + 32*t}")
            a(f"ds_read_b64_tr_b16 {vr(dst[t]+2,2)}, v{base} offset:{off + 32*t + 16*pitch}")
    coords()
    a(f"s_lshr_b32 s{sKh}, s{sW}, 1")
    a(f"s_and_b32 s{sPar}, s{sHead}, 1")
    a(f"s_lshr_b32 s{sHp}, s{sHead}, 1")
    a(f"s_mul_i32 s{sHp}, s{sHp}, {5*WL.PL}")
    a(f"v_and_b32 v{vT[0]}, 31, v{vL}")
    a(f"v_lshrrev_b32 v{vT[1]}, 5, v{vL}")
    swap23(vT[2], vT[0], vT[3])
    a(f"s_mul_i32 s{sT}, s{sPar}, {3*WL.PL}")
    a(f"v_lshlrev_b32 v{vKm}, 15, v{vT[1]}")
    a(f"v_lshl_add_u32 v{vKm}, v{vT[2]}, 4, v{vKm}")
    a(f"v_add_u32 v{vKm}, s{sT}, v{vKm}")
    a(f"s_lshl_b32 s{sT}, s{sPar}, 9")
    a(f"s_add_u32 s{sT}, s{sT}, {2*WL.PL}")
    a(f"v_lshl_add_u32 v{vKr}, v{vT[2]}, 4, s{sT}")
    a(f"s_sub_u32 s{sT}, {80*WL.PL}, s{sHp}")
    a(f"s_mov_b64 exec, s[{sHi}:{sHi+1}]")
    a(f"v_mov_b32 v{vKr}, s{sT}")
    a("s_mov_b64 exec, -1")
    a(f"v_mov_b32 v{vIdx}, 0xdddddddd")
    a(f"s_lshl_b32 s{sT}, s{sPar}, 2")
    a(f"v_add_u32 v{vT[2]}, s{sT}, v{vT[2]}")
    a(f"v_subrev_u32 v{vT[3]}, 20, v{vT[2]}")
    a(f"v_min_u32 v{vT[2]}, v{vT[2]}, v{vT[3]}")
    a(f"s_mul_i32 s{sT}, s{sHead}, 320")
    a(f"v_mul_u32_u24 v{vV0}, {WL.VR}, v{vT[1]}")
    a(f"v_lshl_add_u32 v{vV0}, v{vT[2]}, 4, v{vV0}")
    a(f"v_add_u32 v{vV0}, s{sT}, v{vV0}")
    a("s_mov_b32 exec_lo, 0x100000"); a("s_mov_b32 exec_hi, 0x100000")
    a(f"v_mul_u32_u24 v{vV0}, {WL.VR}, v{vT[1]}")
    a(f"v_add_u32 v{vV0}, 10240, v{vV0}")
    a("s_mov_b32 exec_lo, 0xffe00000"); a("s_mov_b32 exec_hi, 0xffe00000")
    a(f"v_mov_b32 v{vV0}, 0x40000000")
    a("s_mov_b64 exec, -1")
    for b in range(4):
        for j in range(2):
            if b or j: a(f"v_add_u32 v{vVa[b][j]}, {b*WL.VT + j*2*WL.VR}, v{vV0}")
    a(f"s_add_u32 s{sT}, s{sHp}, {WL.KF}")
    srd(a, sK, sWS, f"s{sT}", 81 * WL.PL)
    srd(a, sV, sWS, WL.VF, 32 * WL.VT)
    a(f"s_lshl_b32 s{sV+2}, s{sV+2}, s{sKh}")
    a(f"s_add_u32 s{sT}, s{sHp}, {WL.QF}")
    srd(a, sQ, sWS, f"s{sT}", 5 * WL.PL)
    a(f"s_lshl_b32 s{sOK}, s{sKh}, 14")
    a(f"s_mul_i32 s{sOV}, s{sKh}, {32*WL.VT}")
    a(f"s_lshl_b32 s{sU0}, s{sQb}, 1")
    a(f"s_and_b32 s{sT}, s{sW}, 1")
    a(f"s_add_u32 s{sU0}, s{sU0}, s{sT}")
    a(f"s_lshl_b32 s{sU0}, s{sU0}, 11")
    for i in range(0, 8, 2): a(f"v_mov_b64 {vr(Qr[0]+i,2)}, 0")
    for i in (0, 2): a(f"v_mov_b64 {vr(Vb[3][1]+i,2)}, 0")
    kv_flag_offsets(vKF)
    a(f"v_and_b32 v{vKF}, {hex(~(6 << 7) & 0xffffffff)}, v{vKF}")
    a(f"s_lshl_b32 s{sT}, s{sQb}, 1")
    a(f"v_and_b32 v{vT[2]}, 1, v{vL}")
    a(f"v_lshl_add_u32 v{vT[0]}, v{vT[0]}, 4, v{vT[2]}")
    a(f"v_add_u32 v{vT[0]}, s{sT}, v{vT[0]}")
    a(f"s_mov_b64 exec, s[{sHi}:{sHi+1}]")
    a(f"v_mov_b32 v{vT[0]}, 256")
    a("s_mov_b64 exec, -1")
    a(f"v_lshlrev_b32 v{vQF}, 7, v{vT[0]}")
    a(f"v_mov_b32 v{vT[0]}, 1")
    a("s_waitcnt vmcnt(0)")
    a("s_mov_b64 exec, 1")
    a(f"ds_add_rtn_u32 v{vT[1]}, v{vCtl}, v{vT[0]} offset:4")
    a("s_mov_b64 exec, -1")
    a("s_waitcnt lgkmcnt(0)")
    a(f"v_readfirstlane_b32 s{sT}, v{vT[1]}")
    a("s_nop 1")
    a(f"s_cmp_lg_u32 s{sT}, 3")
    a(f"s_cbranch_scc1 {L('nsig')}")
    put_flag(f"s{sAF}")
    st.stamp("aflag")
    a.label(L("nsig"))
    for q in range(4):
        for i in range(0, 16, 2): a(f"v_mov_b64 {vr(O[q]+i,2)}, 0")
    d_addrs(cO, cSt, cR, NL)
    slot_addr(cX0, 0, 0); slot_addr(cX1, 2, 0)
    a(f"s_cmp_eq_u32 s{sW}, 0")
    a(f"s_cbranch_scc1 {L('poll')}")
    lds_wait("wa", 0, 1, 2)
    a(f"s_branch {L('go')}")
    a.label(L("poll"))
    a(f"s_mov_b32 s{sT2}, {WL.FA}")
    spin_begin("pa")
    a(f"buffer_load_dword v{vT[2]}, v{vKF}, s[{sFl}:{sFl+3}], s{sT2} offen sc1")
    a(f"buffer_load_dword v{vT[3]}, v{vQF}, s[{sFl}:{sFl+3}], s{sT2} offen sc1")
    a("s_waitcnt vmcnt(0)")
    all_nonce([vT[2], vT[3]], "pad")
    spin_end("pa", psleep)
    a.label(L("pad"))
    lds_set(0)
    a.label(L("go"))
    a("s_setprio 3")
    st.stamp("ardy")
    def ldKr(kb, koff): a(f"buffer_load_dwordx4 {vr(Kr[kb],4)}, v{vKr}, s[{sK}:{sK+3}], s{sOK} offen offset:{koff}")
    def ldKm(kb, koff): a(f"buffer_load_dwordx4 {vr(Km[kb],4)}, v{vKm}, s[{sK}:{sK+3}], s{sOK} offen offset:{koff}")
    def ldV(vb, j): a(f"buffer_load_dwordx4 {vr(Vb[vb][j],4)}, v{vVa[vb][j]}, s[{sV}:{sV+3}], s{sOV} offen")
    a(f"buffer_load_dwordx4 {vr(K0m,4)}, v{vKm}, s[{sK}:{sK+3}], 0 offen")
    for q in range(4): a(f"buffer_load_dwordx4 {vr(Qm[q],4)}, v{vKm}, s[{sQ}:{sQ+3}], s{sU0} offen offset:{512*q}")
    a(f"s_mov_b64 exec, s[{sLo}:{sLo+1}]")
    for q in (0, 2): a(f"buffer_load_dwordx4 {vr(Qr[q],4)}, v{vKr}, s[{sQ}:{sQ+3}], s{sU0} offen offset:{512*q}")
    a("s_mov_b64 exec, -1")
    a(f"buffer_load_dwordx2 {vr(K0r,2)}, v{vKr}, s[{sK}:{sK+3}], 0 offen")
    ldKr(0, 0); ldKm(0, 0)
    for kb in range(1, 4):
        ldV(kb - 1, 0); ldV(kb - 1, 1); ldKm(kb, 512 * kb)
    ldKr(2, 1024)
    lds_inc(56)
    a(f"s_add_u32 s{sT}, s{sHp}, {WL.OF}")
    srd(a, sQ, sWS, f"s{sT}", 5 * WL.PL)
    def qka(s_, k, q): a(f"v_mfma_f32_32x32x16_bf16 {vr(s_,16)}, {vr(k,4)}, {vr(Qm[q],4)}, 0")
    def qkb(s_, k, q): a(f"v_mfma_f32_32x32x8_bf16 {vr(s_,16)}, {vr(k,2)}, {vr(Qr[q],2)}, {vr(s_,16)}")
    def exp(q, i): a(f"v_exp_f32 v{S[q]+i}, v{S[q]+i}")
    def pv(o, vb, sreg):
        a(f"v_smfmac_f32_32x32x32_bf16 {vr(o,16)}, {vr(vb,4)}, {vr(sreg,8)}, v{vIdx}")
    a("s_waitcnt vmcnt(12)")
    st.stamp("qld")
    for q in range(4): qka(S[q], K0m, q)
    for q in range(4): qkb(S[q], K0r, q)
    a("s_nop 8")
    a(f"s_mov_b64 exec, s[{sHi}:{sHi+1}]")
    for q in range(4):
        a(f"v_max3_f32 v{S[q]}, v{S[q]}, v{S[q]+1}, v{S[q]+2}")
        for i in range(3, 15, 2):
            a(f"v_max3_f32 v{S[q]}, v{S[q]}, v{S[q]+i}, v{S[q]+i+1}")
        a(f"v_max_f32 v{S[q]}, v{S[q]}, v{S[q]+15}")
        a(f"v_cvt_pk_bf16_f32 v{Qr[q]}, -v{S[q]}, 0")
        if q == 0:
            a("s_mov_b64 exec, -1")
            a("s_waitcnt vmcnt(7)")
            qka(S[0], Km[0], 0)
            a(f"s_mov_b64 exec, s[{sHi}:{sHi+1}]")
        if q == 1:
            a("s_mov_b64 exec, -1")
            qkb(S[0], Kr[0], 0)
            qka(S[1], Km[0], 1)
            a(f"s_mov_b64 exec, s[{sHi}:{sHi+1}]")
    a("s_mov_b64 exec, -1")
    for i in range(8, 16, 2): a(f"v_mov_b64 {vr(S[3]+i,2)}, 0")
    a(f"s_mov_b32 s{sCnt}, 0")
    st.stamp("lbeg")
    def slot(kt, q):
        k1, q1 = (kt + (q + 1) // 4) % 4, (q + 1) % 4
        k2, q2 = (kt + (q + 2) // 4) % 4, (q + 2) % 4
        kp, qp = (kt - (q == 0)) % 4, (q - 1) % 4
        def mem():
            if noload: return
            if q < 2:
                ldV((kt - 1) % 4, q)
                if q == 1 and kt == 0: a(f"s_add_u32 s{sOV}, s{sOV}, {4*WL.VT}")
            elif q == 2: ldKm(kt, 512 * (kt + 4))
            elif kt % 2: ldKr(kt - 1, 512 * (kt + 3))
        if q == 3: a("s_waitcnt vmcnt(6)")
        qkb(S[q1], Kr[k1], q1)
        for i in range(0, 4): exp(q, i)
        pv(O[qp], Vb[kp][1], S[qp] + 8)
        if mpos == 1: mem()
        for i in range(4, 8): exp(q, i)
        qka(S[q2], Km[k2], q2)
        for i in range(8, 12): exp(q, i)
        pv(O[q], Vb[kt][0], S[q])
        if mpos == 3: mem()
        for i in range(12, 16): exp(q, i)
    def block():
        for kt in range(4):
            for q in range(4): slot(kt, q)
        a(f"s_add_u32 s{sOK}, s{sOK}, 2048")
    a.raw(".p2align 6")
    a.label(L("loop"))
    block()
    a(f"s_bitcmp1_b32 9, s{sCnt}")
    a(f"s_cbranch_scc1 {L('hook')}")
    a.label(L("hookr"))
    block()
    a(f"s_add_u32 s{sCnt}, s{sCnt}, 1")
    a(f"s_cmp_lg_u32 s{sCnt}, 4")
    a(f"s_cbranch_scc1 {L('loop')}")
    pv(O[3], Vb[3][1], S[3] + 8)
    st.stamp("lend")
    AF = [[48 + 20 * k + 4 * t for t in range(5)] for k in range(4)] + [[O[0] + 4 * t for t in range(5)]]
    EX = 144; PO = 128
    cOF = [200 + 4 * i for i in range(20 - NL)]; cAC = [24 + 4 * t for t in range(5)]
    assert cOF[-1] + 4 <= K0m
    srd(a, sD, sWS, WL.OF, 80 * WL.PL)
    a(f"s_lshl_b32 s{sT}, s{sKh}, 10")
    a(f"s_add_u32 s{sOK}, s{sU0}, s{sT}")
    a(f"s_lshl_b32 s{sT}, s{sW}, 2")
    a(f"v_add_u32 v{vT[4]}, s{sT}, v{vCtl}")
    a(f"v_mov_b32 v{vT[5]}, 1")
    a(f"s_cmp_eq_u32 s{sKh}, 0")
    a(f"s_cbranch_scc1 {L('x0')}")
    for q in range(2):
        for r in range(3): a(f"ds_write_b128 v{cX0}, {vr(O[q]+4*r,4)} offset:{3072*q+1024*r}")
    a("s_waitcnt lgkmcnt(0)")
    a(f"ds_write_b32 v{vT[4]}, v{vT[5]} offset:32")
    for q in range(2):
        for i in range(0, 12, 2): a(f"v_mov_b64 {vr(O[q]+i,2)}, {vr(O[q+2]+i,2)}")
    for i in range(0, 8, 2): a(f"v_mov_b64 {vr(Qm[0]+i,2)}, {vr(Qm[2]+i,2)}")
    for i in range(0, 4, 2): a(f"v_mov_b64 {vr(Qr[0]+i,2)}, {vr(Qr[2]+i,2)}")
    a(f"s_branch {L('x1')}")
    a.label(L("x0"))
    for q in range(2):
        for r in range(3): a(f"ds_write_b128 v{cX0}, {vr(O[q+2]+4*r,4)} offset:{3072*q+1024*r}")
    a("s_waitcnt lgkmcnt(0)")
    a(f"ds_write_b32 v{vT[4]}, v{vT[5]} offset:32")
    a.label(L("x1"))
    a(f"v_xor_b32 v{vT[4]}, 8, v{vT[4]}")
    spin_begin("wx", 8 * SPIN)
    a(f"ds_read_b32 v{vT[0]}, v{vT[4]} offset:32")
    a(f"ds_read_b32 v{vT[1]}, v{vCtl} offset:48")
    a("s_waitcnt lgkmcnt(0)")
    a(f"v_add_u32 v{vT[0]}, v{vT[0]}, v{vT[1]}")
    a("s_nop 0")
    a(f"v_readfirstlane_b32 s{sT}, v{vT[0]}")
    a("s_nop 1")
    a(f"s_cmp_eq_u32 s{sT}, 5")
    a(f"s_cbranch_scc1 {L('wxd')}")
    spin_end("wx", 0)
    a.label(L("wxd"))
    st.stamp("x1")
    for r in range(6): a(f"ds_read_b128 {vr(EX+4*r,4)}, v{cX1} offset:{1024*r}")
    a(f"v_and_b32 v{vT[5]}, 0x1f0, v{vKm}")
    a(f"s_and_b32 s{sT}, s{sHead}, 1")
    a(f"s_lshl_b32 s{sT}, s{sT}, 3")
    a(f"s_add_u32 s{sT}, s{sT}, {2*WL.PL}")
    a(f"v_add_u32 v{vT[5]}, s{sT}, v{vT[5]}")
    def bcast_l(o):
        a(f"v_mov_b32 v{o+12}, v{o+8}")
        a(f"v_mov_b32 v{o+13}, v{o+8}")
        a("s_nop 1")
        a(f"v_permlane32_swap_b32 v{o+13}, v{o+12}")
        a("s_nop 1")
    for q in range(2):
        o = O[q]
        a(f"s_waitcnt lgkmcnt({3 - 3*q})")
        for i in (8, 10, 0, 2, 4, 6): a(f"v_pk_add_f32 {vr(o+i,2)}, {vr(o+i,2)}, {vr(EX+12*q+i,2)}")
        a(f"v_mov_b32 v{o+12}, v{o+8}")
        a(f"v_mov_b32 v{o+13}, v{o+8}")
        a(f"v_pk_mul_f32 {vr(o+14,2)}, {vr(o,2)}, 0")
        a(f"v_pk_fma_f32 {vr(o+14,2)}, {vr(o+2,2)}, 0, {vr(o+14,2)}")
        a(f"v_permlane32_swap_b32 v{o+13}, v{o+12}")
        for i in range(4, 12, 2): a(f"v_pk_fma_f32 {vr(o+14,2)}, {vr(o+i,2)}, 0, {vr(o+14,2)}")
        a(f"v_add_f32 v{vM}, v{o+14}, v{o+15}")
        a(f"v_add_f32 v{vM}, v{vM}, v{o+12}")
        a(f"v_cmp_nge_f32 vcc, 0x71800000, v{vM}")
        a(f"s_mov_b32 s{sT}, 0x21800000")
        a(f"v_cmp_gt_f32 s[{sT2+1}:{sT2+2}], s{sT}, v{vM}")
        a("s_nop 1")
        a(f"s_or_b64 vcc, vcc, s[{sT2+1}:{sT2+2}]")
        a(f"s_cbranch_scc0 {L('fin%d' % q)}")
        if q == 1:
            for i in range(0, 4, 2): a(f"v_mov_b64 {vr(Qm[0]+i,2)}, {vr(Qm[1]+i,2)}")
            a(f"v_mov_b64 {vr(Qr[0],2)}, {vr(Qr[1],2)}")
        a(f"s_call_b64 s[{sRet}:{sRet+1}], {L('slow')}")
        for i in range(0, 14, 2): a(f"v_mov_b64 {vr(o+i,2)}, {vr(O[2]+i,2)}")
        a.label(L("fin%d" % q))
        a(f"v_rcp_f32 v{vM}, v{o+12}")
        if q == 0: a("s_waitcnt vmcnt(0)")
        else: a("s_nop 0")
        a(f"v_mul_f32 v{o+14}, v{vM}, v{vG1+q}")
        for i in range(0, 12, 2): a(f"v_pk_mul_f32 {vr(o+i,2)}, {vr(o+i,2)}, {vr(o+14,2)} op_sel_hi:[1,0]")
        po = PO + 8 * q
        for i in range(6): a(f"v_cvt_pk_bf16_f32 v{po+i}, v{o+2*i}, v{o+2*i+1}")
        for i in range(6): a(f"v_min_u32 v{po+i}, -2, v{po+i}")
        a(f"buffer_store_dwordx4 {vr(po,4)}, v{vKm}, s[{sQ}:{sQ+3}], s{sOK} offen offset:{512*q} sc1")
        a(f"s_mov_b64 exec, s[{sLo}:{sLo+1}]")
        a(f"buffer_store_dwordx2 {vr(po+4,2)}, v{vT[5]}, s[{sQ}:{sQ+3}], s{sOK} offen offset:{512*q} sc1")
        a("s_mov_b64 exec, -1")
    st.stamp("ost")
    if hbar: a("s_barrier")
    else: lds_inc(52)
    def chk(o):
        a(f"v_max3_u32 v{vT[0]}, v{o}, v{o+1}, v{o+2}")
        a(f"v_max_u32 v{vT[0]}, v{vT[0]}, v{o+3}")
        a(f"v_cmp_eq_u32 vcc, -1, v{vT[0]}")
        a("s_nop 1")
        a("s_cmp_eq_u64 vcc, 0")
    def ldO(OF_, vo, s_):
        a(f"s_mov_b32 s{sT}, {4*WL.PL*s_}")
        a(f"buffer_load_dwordx4 {vr(OF_[s_],4)}, v{vo}, s[{sD}:{sD+3}], s{sT} offen sc1")
    def stages(tag, n, OF_, vo, AF_, nres, vr_, AC_, first0):
        for s_ in range(min(oahead, n)): ldO(OF_, vo, s_)
        srd(a, sC, 22, 0, 2048 * 1280)
        a(f"s_mov_b32 s59, {SPIN}")
        for s_ in range(n):
            a.label(L(f"{tag}st{s_}"))
            a(f"s_waitcnt vmcnt({min(n - 1 - s_, oahead - 1)})")
            chk(OF_[s_])
            a(f"s_cbranch_scc1 {L(f'{tag}ok{s_}')}")
            a(f"s_call_b64 s[{sRet}:{sRet+1}], {L(tag + 'retry')}")
            a(f"s_cbranch_scc1 {L(f'{tag}st{s_}')}")
            a.label(L(f"{tag}ok{s_}"))
            if s_ + oahead < n: ldO(OF_, vo, s_ + oahead)
            younger = min(n, s_ + nres) - 1 - s_
            a(f"s_waitcnt lgkmcnt({min(15, 10 * younger)})")
            for t in range(5):
                c = "0" if (first0 and s_ == 0) else vr(AC_[t], 4)
                a(f"v_mfma_f32_16x16x32_bf16 {vr(AC_[t],4)}, {vr(AF_[s_ % len(AF_)][t],4)}, {vr(OF_[s_],4)}, {c}")
            if s_ + nres < n: rd(AF_[(s_ + nres) % len(AF_)], vr_, 5120 * (s_ + nres))
        st.stamp("dmf")
        a("s_nop 7")
    def retry(tag, n, OF_, vo):
        a.label(L(tag + "retry"))
        a("s_waitcnt vmcnt(0)")
        a(f"s_sleep {rsleep}")
        for s_ in range(n):
            chk(OF_[s_])
            a(f"s_cbranch_scc1 {L(f'{tag}rt{s_}')}")
            ldO(OF_, vo, s_)
            a.label(L(f"{tag}rt{s_}"))
        a("s_waitcnt vmcnt(0)")
        a("s_sub_u32 s59, s59, 1")
        a("s_cmp_gt_i32 s59, 0")
        a(f"s_setpc_b64 s[{sRet}:{sRet+1}]")
    def dfin(keep, send, AC_, AB_, wr, rdd, vst):
        for r, t in enumerate(send): a(f"ds_write_b128 v{wr}, {vr(AC_[t],4)} offset:{1024*r}")
        a("s_waitcnt lgkmcnt(0)")
        a("s_barrier")
        for r, t in enumerate(keep): a(f"ds_read_b128 {vr(AB_[t],4)}, v{rdd} offset:{1024*r}")
        for r, t in enumerate(keep):
            a(f"s_waitcnt lgkmcnt({len(keep)-1-r})")
            for i in range(4): a(f"v_add_f32 v{AC_[t]+i}, v{AC_[t]+i}, v{AB_[t]+i}")
            a(f"v_cvt_pk_bf16_f32 v{AC_[t]}, v{AC_[t]}, v{AC_[t]+1}")
            a(f"v_cvt_pk_bf16_f32 v{AC_[t]+1}, v{AC_[t]+2}, v{AC_[t]+3}")
            a(f"buffer_store_dwordx2 {vr(AC_[t],2)}, v{vst}, s[{sC}:{sC+3}], 0 offen offset:{32*t}")
    for k in range(4): rd(AF[k], cR, 5120 * k)
    for o_ in cOF:
        pass
    a(f"v_add_u32 v{cD1}, 3072, v{cX1}")
    if odelay: a(f"s_sleep {odelay}")
    stages("c", 20 - NL, cOF, cO, AF, 4, cR, cAC, True)
    dfin([0, 1, 2], [3, 4], cAC, AF[4 if (20 - NL) % 5 != 0 else 0], cX1, cD1, cSt)
    a(f"s_branch {L('dend')}")

    a.label(L("hook"))
    a(f"s_cmp_eq_u32 s{sCnt}, 0")
    a(f"s_cbranch_scc0 {L('hook3')}")
    lds_wait("wb", 24, 1)
    a(f"s_branch {L('hookr')}")
    a.label(L("hook3"))
    lds_wait("wg", 28, 1)
    a(f"s_mov_b32 s{sK+2}, 0")
    srd(a, sD, sWS, WL.GATE, 2048 * 8)
    a(f"v_bfe_u32 v{vT[0]}, v{vKm}, 4, 5")
    a(f"v_lshlrev_b32 v{vT[0]}, 3, v{vT[0]}")
    a(f"s_lshl_b32 s{sT}, s{sKh}, 10")
    a(f"s_add_u32 s{sT}, s{sU0}, s{sT}")
    a(f"s_lshr_b32 s{sT}, s{sT}, 1")
    for q in range(2): a(f"buffer_load_dword v{vG1+q}, v{vT[0]}, s[{sD}:{sD+3}], s{sT} offen offset:{4+256*q} sc1")
    a(f"s_branch {L('hookr')}")

    a.label(L("help"))
    hR = 10; hR2 = 11; hO = 12; hSt = 13; hD0 = 14; hD1 = 15; hG = 16; hWo = 17; hGd = 18; hWs = 19
    hAC = [20 + 4 * t for t in range(5)]
    hOF = [40 + 4 * i for i in range(NL)]
    NH = (TOP - (40 + 4 * NL)) // 20
    hAF = [[40 + 4 * NL + 20 * k + 4 * t for t in range(5)] for k in range(NH)]
    WsF = hOF[0:4]; GFl = hOF[4]; hGt = GFl + 12; hKF = GFl + 13
    sWo = sD; sM0 = 3
    a("s_setprio 3")
    coords()
    d_addrs(hO, hSt, hR, 0, hWs, hGt)
    a(f"s_cmp_lt_u32 s{sEb8}, 4")
    a(f"s_cselect_b32 s{sT}, 0, 3")
    a(f"v_xor_b32 v{vT[1]}, s{sT}, v{vT[1]}")
    a(f"v_mul_u32_u24 v{hR2}, 176, v{vT[2]}")
    a(f"v_lshl_add_u32 v{hR2}, v{vT[1]}, 3, v{hR2}")
    a(f"v_add_u32 v{hR2}, {GIMG}, v{hR2}")
    slot_addr(hD0, 2, 0)
    a(f"v_add_u32 v{hD1}, 3072, v{hD0}")
    a(f"v_mul_u32_u24 v{vT[2]}, 187, v{vL}")
    a(f"v_lshrrev_b32 v{vT[2]}, 11, v{vT[2]}")
    a(f"v_mul_u32_u24 v{vT[3]}, 11, v{vT[2]}")
    a(f"v_sub_u32 v{vT[3]}, v{vL}, v{vT[3]}")
    a(f"v_mul_u32_u24 v{hGd}, {WL.GA}, v{vT[2]}")
    a(f"v_lshrrev_b32 v{vT[2]}, 1, v{vT[3]}")
    a(f"v_lshl_add_u32 v{hGd}, v{vT[2]}, 10, v{hGd}")
    a(f"v_and_b32 v{vT[3]}, 1, v{vT[3]}")
    a(f"v_lshl_add_u32 v{hGd}, v{vT[3]}, 4, v{hGd}")
    a(f"s_sub_u32 s{sT}, 7, s{sEb8}")
    a(f"s_sub_u32 s{sT2}, 32, s{sCc}")
    a(f"s_and_b32 s{sT2}, s{sT2}, 31")
    a(f"s_cmp_lt_u32 s{sEb8}, 4")
    a(f"s_cselect_b32 s{sT}, s{sEb8}, s{sT}")
    a(f"s_cselect_b32 s{sT2}, s{sCc}, s{sT2}")
    a(f"s_mul_i32 s{sT}, s{sT}, 5120")
    a(f"s_lshl_b32 s{sT2}, s{sT2}, 5")
    a(f"s_add_u32 s{sT}, s{sT}, s{sT2}")
    a(f"v_add_u32 v{hGd}, s{sT}, v{hGd}")
    a(f"v_lshlrev_b32 v{hWo}, 4, v{vL}")
    a(f"s_call_b64 s[{sVm}:{sVm+1}], {L('p2sub')}")
    lds_wait("hb", 24, 1, 4)
    a(f"s_setprio {hp0}")
    a(f"s_cmp_eq_u32 s{sGF}, 0")
    a(f"s_cbranch_scc1 {L('hg')}")
    a(f"s_cmp_ge_u32 s{sJ}, 20")
    a(f"s_cbranch_scc1 {L('hg1')}")
    g_stores(sC)
    a.label(L("hg1"))
    a("s_waitcnt vmcnt(0)")
    put_flag(f"s{sGF}")
    a.label(L("hg"))
    lds_wait("hr", 8, 8, 4)
    st.stamp("hp2")
    for p_ in range(2):
        srd(a, sD, 6 + 2 * p_, 0, 2048 * 4096)
        a(f"buffer_load_dwordx4 {vr(WsF[2*p_],4)}, v{hWs}, s[{sD}:{sD+3}], 0 offen")
        a(f"buffer_load_dwordx4 {vr(WsF[2*p_+1],4)}, v{hWs}, s[{sD}:{sD+3}], 0 offen offset:64")
    a(f"s_mul_i32 s{sT}, s{sEb8}, 102400")
    a(f"s_add_u32 s{sT}, s{sT}, {WL.WP}")
    srd(a, sWo, sWS, f"s{sT}", 102400)
    a(f"s_and_b32 s{sM0}, s{sW}, 3")
    a(f"s_lshl_b32 s{sM0}, s{sM0}, 10")
    a.label(L("hwo"))
    a(f"s_mov_b32 m0, s{sM0}")
    a(f"s_waitcnt vmcnt({wdep})")
    a(f"buffer_load_dwordx4 v{hWo}, s[{sWo}:{sWo+3}], s{sM0} offen lds")
    a(f"s_sleep {wpace // 4}")
    a(f"s_add_u32 s{sM0}, s{sM0}, 4096")
    a(f"s_cmp_lt_u32 s{sM0}, 102400")
    a(f"s_cbranch_scc1 {L('hwo')}")
    st.stamp("hwo")
    a(f"s_cmp_lg_u32 s{sW}, 4")
    a(f"s_cbranch_scc1 {L('hpg')}")
    a("s_cmp_lg_u32 s2, 0")
    a(f"s_cbranch_scc1 {L('ed')}")
    a(f"v_lshlrev_b32 v{vT[0]}, 9, v{vL}")
    a(f"s_mov_b32 s{sT2}, {WL.FA}")
    spin_begin("pe")
    for i in range(4): a(f"buffer_load_dword v{vT[2]+i}, v{vT[0]}, s[{sFl}:{sFl+3}], s{sT2} offen offset:{128*i} sc1")
    a("s_waitcnt vmcnt(0)")
    all_nonce([vT[2], vT[3], vT[4], vT[5]], "ped")
    spin_end("pe")
    a.label(L("ped"))
    put_flag("0")
    a.label(L("ed"))
    spin_begin("pg")
    a(f"v_mul_u32_u24 v{vT[0]}, 48, v{vL}")
    a(f"buffer_load_dwordx4 {vr(GFl,4)}, v{vT[0]}, s[{sFl}:{sFl+3}], 0 offen offset:{WL.FG} sc1")
    a(f"buffer_load_dwordx4 {vr(GFl+4,4)}, v{vT[0]}, s[{sFl}:{sFl+3}], 0 offen offset:{WL.FG+16} sc1")
    a(f"buffer_load_dwordx2 {vr(GFl+8,2)}, v{vT[0]}, s[{sFl}:{sFl+3}], 0 offen offset:{WL.FG+32} sc1")
    a(f"v_lshlrev_b32 v{vT[0]}, 2, v{vL}")
    a(f"s_mov_b32 s{sT}, {WL.FP + 256}")
    a(f"buffer_load_dword v{GFl+10}, v{vT[0]}, s[{sFl}:{sFl+3}], s{sT} offen sc1")
    a(f"s_mov_b32 s{sT}, {WL.FA + 240*128}")
    a(f"v_and_b32 v{vT[0]}, 15, v{vL}")
    a(f"v_lshlrev_b32 v{vT[0]}, 7, v{vT[0]}")
    a(f"buffer_load_dword v{GFl+11}, v{vT[0]}, s[{sFl}:{sFl+3}], s{sT} offen sc1")
    a("s_waitcnt vmcnt(0)")
    all_nonce([GFl + i for i in range(12)], "pgd")
    spin_end("pg", 16)
    a.label(L("pgd"))
    lds_set(28)
    a.label(L("hpg"))
    lds_wait("hq", 28, 1, 4)
    srd(a, sWo, sWS, WL.GATE, 2048 * 8)
    a(f"buffer_load_dword v{hG}, v{hGt}, s[{sWo}:{sWo+3}], 0 offen sc1")
    srd(a, sWo, sWS, WL.G, WL.G_SIZE)
    a(f"s_and_b32 s{sT2}, s{sW}, 3")
    a(f"s_mul_i32 s{sM0}, s{sT2}, {4*176}")
    a(f"s_mul_i32 s{sT2}, s{sT2}, {8*WL.GA}")
    a("s_mov_b32 exec_hi, 0xfff")
    for i in range(8):
        a(f"s_add_u32 m0, s{sM0}, {GIMG + 16*176*i}")
        a(f"s_add_u32 s{sT}, s{sT2}, {(32*(i//2) + 4*(i%2))*WL.GA}")
        a(f"s_waitcnt vmcnt({wdep})")
        a(f"buffer_load_dwordx4 v{hGd}, s[{sWo}:{sWo+3}], s{sT} offen lds")
    a("s_mov_b64 exec, -1")
    a("s_waitcnt vmcnt(0)")
    lds_inc(48)
    lds_wait("hi", 48, 4, 2)
    st.stamp("him")
    if stamps: a("s_waitcnt lgkmcnt(0)")
    a(f"s_setprio {hp1}")
    def ymf(off):
        for k in range(4): rd(hAF[k], hR2, GSTEP * k + off, 176)
        for k in range(4):
            a(f"s_waitcnt lgkmcnt({min(15, 30 - 10*k)})")
            for t in range(5):
                c = "0" if k == 0 else vr(hAC[t], 4)
                a(f"v_mfma_f32_16x16x32_bf16 {vr(hAC[t],4)}, {vr(hAF[k][t],4)}, {vr(WsF[k],4)}, {c}")
        a("s_nop 7")
    a(f"s_cmp_lt_u32 s{sEb8}, 4")
    a(f"s_cbranch_scc0 {L('ymir')}")
    ymf(0)
    for t in range(5):
        for i in range(4): a(f"v_mul_f32 v{hAC[t]+i}, v{hAC[t]+i}, v{hG}")
    a(f"s_branch {L('ydone')}")
    a.label(L("ymir"))
    for i in range(8): a(f"v_xor_b32 v{WsF[2]+i}, 0x80008000, v{WsF[2]+i}")
    ymf(8)
    for t in range(5): a(f"v_mul_f32 v{hAF[4][t]}, v{hAC[4-t]}, v{hG}")
    ymf(0)
    for t in range(5):
        for i in range(1, 4): a(f"v_mul_f32 v{hAF[4][t]+i}, v{hAC[4-t]+4-i}, v{hG}")
    for t in range(5):
        for i in (0, 2): a(f"v_mov_b64 {vr(hAC[t]+i,2)}, {vr(hAF[4][t]+i,2)}")
    a.label(L("ydone"))
    for k in range(NH): rd(hAF[k], hR, 5120 * k)
    for o_ in hOF:
        for i in (0, 2): a(f"v_mov_b64 {vr(o_+i,2)}, 0")
    srd(a, sD, sWS, WL.OF, 80 * WL.PL)
    st.stamp("hrdy")
    if hbar:
        a("s_waitcnt lgkmcnt(0)")
        a("s_barrier")
    else: lds_wait("ho", 52, 4, hsl)
    a("s_setprio 3")
    if ldel: a(f"s_sleep {ldel}")
    stages("h", NL, hOF, hO, hAF, NH, hR, hAC, False)
    dfin([3, 4], [0, 1, 2], hAC, hAF[NH - 1], hD1, hD0, hSt)
    a.label(L("dend"))
    st.finish(9)
    a.label(L("end"))
    a("s_endpgm")
    a.label(L("p2sub"))
    lds_wait("hw", 56, 4, 4)
    a(f"s_cmp_lg_u32 s{sW}, 4")
    a(f"s_cbranch_scc1 {L('hp2')}")
    coords()
    kv_flag_offsets(vT[5])
    a(f"v_lshlrev_b32 v{vT[4]}, 2, v{vL}")
    spin_begin("p2")
    a(f"s_mov_b32 s{sT2}, {WL.FA}")
    a(f"buffer_load_dword v{vT[2]}, v{vT[5]}, s[{sFl}:{sFl+3}], s{sT2} offen sc1")
    a(f"s_mov_b32 s{sT2}, {WL.FP}")
    a(f"buffer_load_dword v{vT[3]}, v{vT[4]}, s[{sFl}:{sFl+3}], s{sT2} offen sc1")
    a("s_waitcnt vmcnt(0)")
    all_nonce([vT[2], vT[3]], "p2d")
    spin_end("p2", 6)
    a.label(L("p2d"))
    lds_set(24)
    a.label(L("hp2"))
    a(f"s_setpc_b64 s[{sVm}:{sVm+1}]")
    retry("c", 20 - NL, cOF, cO)
    retry("h", NL, hOF, hO)

    a.label(L("slow"))
    sSK = sT2 + 1; sSV = sT2 + 2
    a("s_waitcnt vmcnt(0) lgkmcnt(0)")
    a(f"s_mov_b32 s{sK+2}, {81*WL.PL}")
    a(f"s_mov_b32 s{sV+2}, {64*WL.VT}")
    a(f"s_mov_b64 exec, s[{sHi}:{sHi+1}]")
    a(f"v_mov_b64 {vr(Qr[0],2)}, 0")
    a("s_mov_b64 exec, -1")
    a(f"v_mov_b32 v{vM}, 0xff800000")
    a(f"s_mov_b32 s{sSK}, 0")
    def qk_slow():
        a(f"s_bfe_u32 s{sT}, s{sSK}, 0x10009")
        a(f"s_mul_i32 s{sT}, s{sT}, 504")
        a(f"s_sub_u32 s{sT}, s{sSK}, s{sT}")
        a(f"buffer_load_dwordx2 {vr(Kr[0],2)}, v{vKr}, s[{sK}:{sK+3}], s{sT} offen")
        a(f"buffer_load_dwordx4 {vr(Km[0],4)}, v{vKm}, s[{sK}:{sK+3}], s{sSK} offen")
        a("s_waitcnt vmcnt(0)")
        qka(S[0], Km[0], 0)
        a("s_nop 11")
        qkb(S[0], Kr[0], 0)
        a("s_nop 12")
    a.label(L("s1"))
    qk_slow()
    for i in range(0, 16, 2):
        a(f"v_max3_f32 v{vM}, v{vM}, v{S[0]+i}, v{S[0]+i+1}")
    a(f"s_add_u32 s{sSK}, s{sSK}, 512")
    a(f"s_cmp_lt_u32 s{sSK}, {WL.PL}")
    a(f"s_cbranch_scc1 {L('s1')}")
    a(f"v_mov_b32 v{vT[0]}, v{vM}")
    a("s_nop 1")
    a(f"v_permlane32_swap_b32 v{vT[0]}, v{vM}")
    a("s_nop 1")
    a(f"v_max_f32 v{vM}, v{vM}, v{vT[0]}")
    a(f"v_cvt_pk_bf16_f32 v{S[0]}, 0, -v{vM}")
    a(f"v_sub_f32 v{vT[0]}, 0, v{vM}")
    a(f"v_sub_f32 v{vT[0]}, v{vT[0]}, v{S[0]}")
    a(f"v_cvt_pk_bf16_f32 v{S[0]+1}, 0, v{vT[0]}")
    a(f"v_sub_f32 v{vT[1]}, v{vT[0]}, v{S[0]+1}")
    a(f"s_mov_b64 exec, s[{sHi}:{sHi+1}]")
    a(f"v_cvt_pk_bf16_f32 v{Qr[0]}, v{S[0]}, v{S[0]+1}")
    a(f"v_cvt_pk_bf16_f32 v{Qr[0]+1}, v{vT[1]}, 0")
    a("s_mov_b64 exec, -1")
    for i in range(0, 16, 2): a(f"v_mov_b64 {vr(O[2]+i,2)}, 0")
    a(f"s_mov_b32 s{sSK}, 0")
    a(f"s_mov_b32 s{sSV}, 0")
    a.label(L("s2"))
    a(f"buffer_load_dwordx4 {vr(Vb[0][0],4)}, v{vV0}, s[{sV}:{sV+3}], s{sSV} offen")
    a(f"buffer_load_dwordx4 {vr(Vb[0][1],4)}, v{vV1}, s[{sV}:{sV+3}], s{sSV} offen")
    qk_slow()
    for i in range(16): exp(0, i)
    a("s_nop 1")
    pv(O[2], Vb[0][0], S[0])
    pv(O[2], Vb[0][1], S[0] + 8)
    a(f"s_add_u32 s{sSK}, s{sSK}, 512")
    a(f"s_add_u32 s{sSV}, s{sSV}, {WL.VT}")
    a(f"s_cmp_lt_u32 s{sSK}, {WL.PL}")
    a(f"s_cbranch_scc1 {L('s2')}")
    a("s_nop 12")
    bcast_l(O[2])
    a(f"s_setpc_b64 s[{sRet}:{sRet+1}]")
    a.label(L("cend"))
    return a.text(), kernel_desc(name, 256, 102), f"; @launch grid=(256,1,1) block=(512,1,1) lds={LDS_SIZE}"

if __name__ == "__main__":
    import sys
    from gen import build
    path = sys.argv[1]
    sn = [x[3:].split(',') for x in sys.argv if x.startswith('sn=')]
    kw = {x.split('=')[0]: eval(x.split('=')[1]) for x in sys.argv[2:] if not x.startswith('sn=')}
    hd = kw.pop('hdbg', False)
    build(path, [gen(stamps=(2 if hd else bool(sn)), snames=sn[0] if sn else (), **kw)])
```

```python
from asm import *

QSCALE = 0x3ea52b5c
NAME = "gated_mix__spectral_fnet__softmax_full_mha__prompt_kernel"
LDS_X = 131072
LDS_CTL = LDS_X + 24576
LDS_SIZE = LDS_CTL + 64
GSTEP = 32 * 176
GIMG = 20 * 5120
SPIN = 200000
STAGE = [0, 0x8000, 0x18000, 0x10000]

def gen(hz=False, poll2=False, xq=True, hearly=False, hrs=8, hoa=4, si=0, pgp=False, owait=True, deep=False, bpos=0, gun=2, wgen=True, gprio=2, fall=0, fprio=3, hbar=True, wdep=1, hp0=0, hp1=0, hsl=4, NL=12, gdel=True, wpace=0, ldel=8, mpos=1, name=NAME, stamps=False, snames=(), rotx=(0, 2, 5, 7, 5, 7, 0, 2), rin=(5, 5), touch=False, tpos=5, gtouch=True, fsplit=5,
        prio=(4, 2, 1), psleep=4, wotouch=False, probe=None, fwait=True, nodma=False, kvsc1=False, noload=False, nowait=False, noexec=False, spread=False, rt=True, fstart=6, rprobe=False, enc=None, encw=0, oearly=False, rsleep=2, rmode=0, ypost=True, obar=False, nfirst=(0, 0), afirst=True, odelay=8, gdefer=0, pois=5, osc='', lprio=3, cprio=2, wsleep=3, ldelay=0, pplain=True, glate=False, m8=False, wsbase=0, cbperm=True, prog=True, strict=True, defer=False, dmask=6, s2late=True, noaux=False, cwarm=False, oahead=4, dsc1=False, dzero=False, dburst=False, dnt=False, dpair=False, peel=True, fcrit=True, cdelay=0, lpos=3, oflag=0, nows=False, krskip=False, dhalf=False, wpack=True, wdtouch=False, nowo=False, nog=False, pfirst=False):
    a = Asm()
    kernel_begin(a, name)
    L = lambda s: f"L_{s}"
    st = Stamps(a, stamps, 0); st.names = list(snames); st.op = 's_memrealtime' if rt else 's_memtime'
    if enc:
        class Enc:
            names = []
            def start(self): a("s_memrealtime s[70:71]"); a("s_memrealtime s[72:73]")
            def stamp(self, n):
                if n == enc: a("s_memrealtime s[72:73]"); a("s_waitcnt lgkmcnt(0)")
            def finish(self, i):
                a("s_lshl_b32 s68, s2, 3"); a("s_add_u32 s68, s68, s52")
                a(f"s_cmp_lg_u32 s68, {136*8+encw}")
                a("s_cbranch_scc1 L_encd")
                a("s_memrealtime s[74:75]"); a("s_waitcnt lgkmcnt(0)")
                a("s_sub_u32 s72, s72, s70"); a("s_lshl_b32 s72, s72, 2"); a("s_add_u32 s72, s72, s74")
                a.label("L_encl")
                a("s_memrealtime s[74:75]"); a("s_waitcnt lgkmcnt(0)")
                a("s_sub_u32 s68, s74, s72"); a("s_cmp_lt_i32 s68, 0")
                a("s_cbranch_scc1 L_encl")
                a.label("L_encd")
        st = Enc()
    sWS = 26
    sA = 28; sB = 32; sC = 36; sD = 40; sFl = 44; sE = 48
    sW = 52; sXc = 53; sJ = 54; sNonce = 55; sT = 56; sT2 = 57; sCnt = 58
    sLo = 60; sVm = 62; sHi = 94; sDm = 96
    sGF = 25
    sAF = 24
    vL = 1; vT = [2, 3, 4, 5, 6, 7]; vCtl = 8
    VB = 10
    TOP = 252 if stamps else 256

    def spin_begin(lab, n=SPIN):
        a(f"s_mov_b32 s59, {n}")
        a.label(L(lab))
    def spin_end(lab, sleep=2):
        a(f"s_sleep {sleep}")
        a("s_sub_u32 s59, s59, 1")
        a("s_cmp_lg_u32 s59, 0")
        a(f"s_cbranch_scc1 {L(lab)}")
    def put_flag(soff):
        a(f"v_mov_b32 v{vT[0]}, 0")
        a(f"v_mov_b32 v{vT[1]}, s{sNonce}")
        a("s_mov_b64 exec, 1")
        a(f"buffer_store_dword v{vT[1]}, v{vT[0]}, s[{sFl}:{sFl+3}], {soff} offen sc1")
        a("s_mov_b64 exec, -1")
    def lds_inc(off):
        a(f"v_mov_b32 v{vT[0]}, 1")
        a("s_mov_b64 exec, 1")
        a(f"ds_add_u32 v{vCtl}, v{vT[0]} offset:{off}")
        a("s_mov_b64 exec, -1")
    def lds_wait(lab, off, val, sl=1):
        spin_begin(lab, 8 * SPIN)
        a(f"ds_read_b32 v{vT[0]}, v{vCtl} offset:{off}")
        a("s_waitcnt lgkmcnt(0)")
        a(f"v_readfirstlane_b32 s{sT}, v{vT[0]}")
        a("s_nop 1")
        a(f"s_cmp_eq_u32 s{sT}, {val}")
        a(f"s_cbranch_scc1 {L(lab+'d')}")
        spin_end(lab, sl)
        a.label(L(lab + "d"))
    def sel_srd(d, cond_s, p0, p1, size):
        a(f"s_cmp_eq_u32 s{cond_s}, 0")
        a(f"s_cselect_b32 s{d}, s{p0}, s{p1}")
        a(f"s_cselect_b32 s{d+1}, s{p0+1}, s{p1+1}")
        a(f"s_and_b32 s{d+1}, s{d+1}, 0xffff")
        a(f"s_mov_b32 s{d+2}, {size}")
        a(f"s_mov_b32 s{d+3}, 0x20000")
    def after_kernarg():
        a("s_waitcnt lgkmcnt(0)")
        st.stamp("karg")
        if wsbase:
            a(f"s_add_u32 s{sWS}, s{sWS}, {hex(wsbase << 20)}")
            a(f"s_addc_u32 s{sWS+1}, s{sWS+1}, 0")
        a(f"s_load_dword s{sNonce}, s[{sWS}:{sWS+1}], {WL.EPOCH}")
        srd(a, sA, 4, 0, 2048 * 1280)
    def masks():
        a("v_mov_b32 v9, 0")
        for i in range(4): a(f"v_mov_b32 v{TOP-36+i}, 0")
        a(f"s_mov_b32 s{sGF}, 0"); a(f"s_mov_b32 s{sAF}, 0"); a("s_mov_b32 s15, 0")
        srd(a, sFl, sWS, WL.FLAG, WL.FLAG_SIZE)
        a(f"v_mov_b32 v{vCtl}, {LDS_CTL}")
        a(f"s_mov_b32 s{sLo}, -1"); a(f"s_mov_b32 s{sLo+1}, 0")
        a(f"s_mov_b32 s{sHi}, 0"); a(f"s_mov_b32 s{sHi+1}, -1")
        a(f"s_mov_b32 s{sVm}, 0xfffff"); a(f"s_mov_b32 s{sVm+1}, 0xfffff")
        a(f"s_mov_b32 s{sDm}, -1"); a(f"s_mov_b32 s{sDm+1}, 0xff")
    def nat_read_addrs(dst, stile, shift):
        a(f"v_and_b32 v{vT[0]}, 31, v{vL}")
        a(f"v_lshrrev_b32 v{vT[1]}, 5, v{vL}")
        a(f"v_bfe_u32 v{vT[2]}, v{vL}, 1, 3")
        a(f"v_xor_b32 v{vT[1]}, v{vT[1]}, v{vT[2]}")
        a(f"v_lshlrev_b32 v{vT[1]}, 4, v{vT[1]}")
        a(f"v_lshl_add_u32 v{vT[0]}, v{vT[0]}, 7, v{vT[1]}")
        a(f"s_lshl_b32 s{sT}, s{stile}, {shift}")
        a(f"v_add_u32 v{dst[0]}, s{sT}, v{vT[0]}")
        for ks in range(1, 4):
            a(f"v_xor_b32 v{dst[ks]}, {32*ks}, v{dst[0]}")

    a("s_cmp_ge_u32 s2, 256")
    a(f"s_cbranch_scc1 {L('end')}")
    st.start()
    if probe:
        a("s_memrealtime s[70:71]")
        a("s_load_dwordx2 s[64:65], s[0:1], 80")
        a("s_waitcnt lgkmcnt(0)")
        a("s_and_b32 s65, s65, 0xffff"); a("s_mov_b32 s66, 256"); a("s_mov_b32 s67, 0x20000")
        a("s_getreg_b32 s68, hwreg(HW_REG_XCC_ID)")
        a("s_xor_b32 s68, s68, s2"); a("s_and_b32 s68, s68, 7")
        a("s_cbranch_scc0 L_pok")
        a("v_mov_b32 v2, 1")
        a("s_mov_b64 exec, 1")
        a("buffer_store_dword v2, off, s[64:67], 0 sc1")
        a("s_mov_b64 exec, -1")
        a.label("L_pok")
    if rprobe:
        a("s_load_dwordx2 s[64:65], s[0:1], 80")
        a("s_waitcnt lgkmcnt(0)")
        a("s_and_b32 s65, s65, 0xffff"); a("s_mov_b32 s66, 256"); a("s_mov_b32 s67, 0x20000")
        a("s_getreg_b32 s68, hwreg(HW_REG_XCC_ID)")
        a("s_sub_u32 s68, s68, s2"); a("s_and_b32 s68, s68, 7")
        a("s_lshl_b32 s68, s68, 2")
        a("v_cmp_eq_u32 vcc, 0, v0")
        a("v_mov_b32 v2, 1")
        a("s_and_saveexec_b64 s[70:71], vcc")
        a("s_cbranch_execz L_rp0")
        a("buffer_store_dword v2, off, s[64:67], s68 sc1")
        a.label("L_rp0")
        a("s_mov_b64 exec, -1")
    a("s_load_dwordx16 s[4:19], s[0:1], 0")
    a("s_load_dwordx8 s[20:27], s[0:1], 64")
    a(f"v_lshrrev_b32 v{vT[0]}, 6, v0")
    a(f"v_and_b32 v{vL}, 63, v0")
    a(f"v_readfirstlane_b32 s{sW}, v{vT[0]}")
    a(f"s_and_b32 s{sXc}, s2, 7")
    a(f"s_lshr_b32 s{sJ}, s2, 3")
    a(f"s_xor_b32 s{sW}, s{sW}, 4")
    sRb = 98; sCb = 99; sWm = 100; sWn = 101; sWl = 3
    a(f"s_and_b32 s{sRb}, s2, 3")
    a(f"s_lshl_b32 s{sRb}, s{sRb}, 2")
    a(f"s_and_b32 s{sT}, s{sJ}, 3")
    a(f"s_add_u32 s{sRb}, s{sRb}, s{sT}")
    a(f"s_lshr_b32 s{sT}, s{sXc}, 2")
    a(f"s_lshr_b32 s{sCb}, s{sJ}, 2")
    a(f"s_cmp_eq_u32 s{sCb}, 7")
    a(f"s_cselect_b32 s{sT2}, 1, 3")
    a(f"s_lshl_b32 s{sT}, s{sT}, s{sT2}")
    a(f"s_cmp_eq_u32 s{sCb}, 7")
    a(f"s_cselect_b32 s{sT2}, s{sT}, 0")
    a(f"s_cselect_b32 s{sT}, 0, s{sT}")
    a(f"s_add_u32 s{sRb}, s{sRb}, s{sT2}")
    a(f"s_add_u32 s{sCb}, s{sCb}, s{sT}")
    if cbperm:
        tab = [5, 6, 7, 10, 11, 0, 1, 2, 8, 9, 12, 13, 14, 3, 4, 0]
        tv = sum(c << (4 * i) for i, c in enumerate(tab))
        a(f"s_mov_b32 s{sT}, {hex(tv & 0xffffffff)}")
        a(f"s_mov_b32 s{sT2}, {hex(tv >> 32)}")
        a(f"s_lshl_b32 s{sCb}, s{sCb}, 2")
        a(f"s_lshr_b64 s[{sT}:{sT2}], s[{sT}:{sT2}], s{sCb}")
        a(f"s_and_b32 s{sCb}, s{sT}, 15")
    a(f"s_and_b32 s{sWl}, s{sW}, 3")
    a(f"s_and_b32 s{sWm}, s{sW}, 1")
    a(f"s_lshr_b32 s{sWn}, s{sWl}, 1")
    a(f"s_cmp_lt_u32 s{sW}, 4")
    a(f"s_cbranch_scc1 {L('comp')}")

    V = Alloc(VB, TOP)
    vRX = [V.get() for _ in range(4)]
    vFW = [V.get() for _ in range(2)]; vFs = V.get(); V.get(); vGs = 9
    V.get(2)
    XR = [[V.get(4, 4) for _ in range(4)] for _ in range(10)]
    FR = V.get(8, 4); FIn = V.get(8, 4)
    ZA = V.get(16, 4); ZB = V.get(16, 4)
    BF = [[V.get(4, 4) for _ in range(2)] for _ in range(3)]
    vDX = [BF[0][0] + i for i in range(4)]; vDW = [BF[0][1] + i for i in range(4)]
    sOX = sD; sOW = sD + 1; sM0 = sD + 2; sBeta = sD + 3; sSp = sE
    if lprio: a(f"s_setprio {lprio}")
    a(f"v_and_b32 v{vT[3]}, 7, v{vL}")
    a(f"v_lshrrev_b32 v{vT[4]}, 4, v{vL}")
    a(f"v_xor_b32 v{vT[3]}, v{vT[3]}, v{vT[4]}")
    a(f"v_lshlrev_b32 v{vT[3]}, 4, v{vT[3]}")
    a(f"v_xor_b32 v{vT[4]}, 64, v{vT[3]}")
    a(f"v_bfe_u32 v{vT[5]}, v{vL}, 3, 2")
    a(f"v_lshrrev_b32 v{vT[1]}, 5, v{vL}")
    a(f"v_lshl_add_u32 v{vT[5]}, v{vT[1]}, 3, v{vT[5]}")
    a(f"s_lshl_b32 s{sT}, s{sRb}, 1")
    a(f"s_add_u32 s{sT}, s{sT}, s{sWn}")
    a(f"s_lshl_b32 s{sT2}, s{sWm}, 5")
    a(f"s_add_u32 s{sCnt}, s{sT}, s{sT2}")
    a(f"v_lshl_add_u32 v{vT[1]}, v{vT[5]}, 6, s{sCnt}")
    a(f"v_mul_u32_u24 v{vT[1]}, 1280, v{vT[1]}")
    a(f"v_add_u32 v{vDX[0]}, v{vT[1]}, v{vT[3]}")
    a(f"v_add_u32 v{vDX[1]}, v{vT[1]}, v{vT[4]}")
    a(f"v_add_u32 v{vDX[1]}, {4*64*1280-1024}, v{vDX[1]}")
    a(f"v_add_u32 v{vDX[2]}, {16*64*1280-2048}, v{vDX[0]}")
    a(f"v_add_u32 v{vDX[3]}, {16*64*1280-2048}, v{vDX[1]}")
    a(f"v_lshrrev_b32 v{vT[0]}, 4, v{vL}")
    a(f"v_bfe_u32 v{vT[1]}, v{vL}, 2, 2")
    a(f"v_xor_b32 v{vT[1]}, v{vT[1]}, v{vT[0]}")
    a(f"v_and_b32 v{vT[2]}, 3, v{vL}")
    a(f"v_lshl_add_u32 v{vT[1]}, v{vT[1]}, 2, v{vT[2]}")
    a(f"v_lshlrev_b32 v{vT[1]}, 4, v{vT[1]}")
    a(f"s_lshl_b32 s{sT}, s{sWl}, 4")
    a(f"v_add_u32 v{vT[0]}, s{sT}, v{vT[0]}")
    a(f"v_mul_u32_u24 v{vT[0]}, 3840, v{vT[0]}")
    a(f"s_lshl_b32 s{sT}, s{sCb}, 8")
    a(f"v_add3_u32 v{vDW[0]}, v{vT[0]}, v{vT[1]}, s{sT}")
    for j in range(1, 4):
        a(f"v_add_u32 v{vDW[j]}, {j*(4*3840-1024)}, v{vDW[0]}")
    rw = 0
    for i, r in enumerate(rotx): rw |= r << (4 * i)
    a(f"s_lshl_b32 s{sT}, s{sXc}, 2")
    a(f"s_lshr_b32 s{sOX}, {hex(rw)}, s{sT}")
    a(f"s_and_b32 s{sOX}, s{sOX}, 15")
    if rin != (0, 0):
        a(f"s_and_b32 s{sT}, s{sJ}, 3")
        a(f"s_mul_i32 s{sT}, s{sT}, {rin[0]}")
        a(f"s_add_u32 s{sOX}, s{sOX}, s{sT}")
        a(f"s_lshr_b32 s{sT}, s{sJ}, 2")
        a(f"s_mul_i32 s{sT}, s{sT}, {rin[1]}")
        a(f"s_add_u32 s{sOX}, s{sOX}, s{sT}")
        a(f"s_mul_i32 s{sT}, s{sOX}, 205")
        a(f"s_lshr_b32 s{sT}, s{sT}, 11")
        a(f"s_mul_i32 s{sT}, s{sT}, 10")
        a(f"s_sub_u32 s{sOX}, s{sOX}, s{sT}")
    a(f"s_mul_i32 s{sOW}, s{sOX}, {64*3840}")
    a(f"s_lshl_b32 s{sOX}, s{sOX}, 7")
    a(f"s_lshl_b32 s{sM0}, s{sWl}, 12")
    after_kernarg()
    a(f"s_cmp_ge_u32 s{sJ}, 30")
    a(f"s_cbranch_scc1 {L('lgate')}")
    srd(a, sB, 16, 0, 640 * 3840)
    def issue(n):
        a(f"s_add_u32 m0, s{sM0}, {STAGE[n%4]}")
        a("s_nop 0")
        for j in range(4): a(f"buffer_load_dwordx4 v{vDX[j]}, s[{sA}:{sA+3}], s{sOX} offen offset:{1024*j} lds")
        a(f"s_add_u32 m0, s{sM0}, {STAGE[n%4]+0x4000}")
        a(f"s_add_u32 s{sOX}, s{sOX}, 128")
        for j in range(4): a(f"buffer_load_dwordx4 v{vDW[j]}, s[{sB}:{sB+3}], s{sOW} offen offset:{1024*j} lds")
        a(f"s_add_u32 s{sOW}, s{sOW}, {64*3840}")
        a(f"s_cmp_eq_u32 s{sOX}, 1280")
        a(f"s_cselect_b32 s{sOX}, 0, s{sOX}")
        a(f"s_cselect_b32 s{sOW}, 0, s{sOW}")
    issue(0); issue(1)
    masks()
    a(f"s_lshr_b32 s{sBeta}, s{sXc}, 2")
    a(f"s_mul_i32 s{sBeta}, s{sBeta}, 5")
    a(f"s_lshr_b32 s{sT}, s{sJ}, 2")
    a(f"s_add_u32 s{sBeta}, s{sBeta}, s{sT}")
    a(f"s_lshl_b32 s{sT}, s{sBeta}, 1")
    a(f"s_add_u32 s{sT}, s{sT}, s{sWm}")
    a(f"s_lshl_b32 s{sT}, s{sT}, 4")
    a(f"v_add_u32 v{vT[5]}, s{sT}, v{vT[5]}")
    a(f"v_mul_u32_u24 v{vT[5]}, 1280, v{vT[5]}")
    a(f"v_add_u32 v{vFW[0]}, v{vT[5]}, v{vT[3]}")
    a(f"v_add_u32 v{vFW[1]}, v{vT[5]}, v{vT[4]}")
    a(f"v_add_u32 v{vFW[1]}, {4*1280-1024}, v{vFW[1]}")
    a(f"v_add_u32 v{vFs}, {320*1280}, v{vT[3]}")
    a(f"v_and_b32 v{vT[0]}, 31, v{vL}")
    a(f"v_lshrrev_b32 v{vT[1]}, 5, v{vL}")
    a(f"v_lshlrev_b32 v{vGs}, 5, v{vT[0]}")
    a(f"v_lshl_add_u32 v{vGs}, v{vT[1]}, 4, v{vGs}")
    a(f"s_mul_i32 s{sT}, s{sCnt}, {WL.GA}")
    a(f"s_lshl_b32 s{sT2}, s{sBeta}, 11")
    a(f"s_add_u32 s{sT}, s{sT}, s{sT2}")
    a(f"v_add_u32 v{vGs}, s{sT}, v{vGs}")
    a(f"s_mul_i32 s{sCnt}, s{sCnt}, 48")
    a(f"s_lshl_b32 s{sT2}, s{sBeta}, 2")
    a(f"s_add_u32 s{sCnt}, s{sCnt}, s{sT2}")
    a(f"s_add_u32 s{sCnt}, s{sCnt}, {WL.FG}")
    nat_read_addrs(vRX, sWl, 12)
    if xq:
        a(f"s_sub_u32 s{sT}, s{sCb}, 1")
        a(f"s_cmp_lt_u32 s{sT}, 4")
        a("s_cselect_b64 vcc, -1, 0")
    for n in range(10):
        a(f"s_waitcnt vmcnt({8 if n < 9 else 0}) lgkmcnt(0)")
        a("s_barrier")
        if xq: a(f"s_cbranch_vccnz {L('nx%d' % n)}")
        for ks in range(4):
            a(f"ds_read_b128 {vr(XR[n][ks],4)}, v{vRX[ks]} offset:{STAGE[n%4] & 0xffff}")
        if xq: a.label(L('nx%d' % n))
        if n + 2 < 10: issue(n + 2)
        if n < 9 and (STAGE[n % 4] ^ STAGE[(n + 1) % 4]) & 0x10000:
            for ks in range(4): a(f"v_xor_b32 v{vRX[ks]}, 0x10000, v{vRX[ks]}")
    st.stamp("ldone")
    a(f"s_add_u32 s{sNonce}, s{sNonce}, 1")
    a(f"s_cmp_ge_u32 s{sJ}, 20")
    a(f"s_cbranch_scc1 {L('lq')}")
    if not wgen:
        a("s_setprio 3")
        a(f"s_mov_b32 s{sGF}, s{sCnt}")
        sel_srd(sB, sWn, 10, 12, 640 * 1280)
        srd(a, sC, 10, 0, 640 * 1280)
        a(f"s_lshl_b32 s{sM0}, s{sWl}, 11")
        a(f"s_lshl_b32 s{sT}, s{sBeta}, 2")
        a(f"s_add_u32 s{sT}, s{sT}, s{sWl}")
        a(f"s_cmp_eq_u32 s{sT}, 2")
        a(f"s_cselect_b32 s{sSp}, 0xffffff00, -1")
        a(f"s_cselect_b64 vcc, -1, 0")
        a(f"s_mov_b32 s{sSp+1}, -1")
        WDB = lambda p: (0x10000 + 8192 * p) if p < 8 else 8192 * (p - 8)
        def wdma(p):
            a(f"s_add_u32 m0, s{sM0}, {WDB(p)}")
            a(f"s_mov_b64 exec, s[{sSp}:{sSp+1}]")
            a(f"buffer_load_dwordx4 v{vFW[0]}, s[{sB}:{sB+3}], s{sOX} offen lds")
            a(f"s_cbranch_vccz {L('fs%d' % p)}")
            a("s_mov_b64 exec, 0xff")
            a(f"buffer_load_dwordx4 v{vFs}, s[{sC}:{sC+3}], s{sOX} offen lds")
            a.label(L("fs%d" % p))
            a("s_mov_b64 exec, -1")
            a(f"buffer_load_dwordx4 v{vFW[1]}, s[{sB}:{sB+3}], s{sOX} offen offset:1024 lds")
            a(f"s_add_u32 s{sOX}, s{sOX}, 128")
            a(f"s_cmp_eq_u32 s{sOX}, 1280")
            a(f"s_cselect_b32 s{sOX}, 0, s{sOX}")
        def twl():
            srd(a, sB, 6, 0, 2048 * 4096)
            srd(a, sC, 8, 0, 2048 * 4096)
            a(f"buffer_load_dwordx4 {vr(FR,4)}, v{vT[2]}, s[{sB}:{sB+3}], 0 offen")
            a(f"buffer_load_dwordx4 {vr(FR+4,4)}, v{vT[2]}, s[{sB}:{sB+3}], 0 offen offset:32")
            a(f"buffer_load_dwordx4 {vr(FIn,4)}, v{vT[2]}, s[{sC}:{sC+3}], 0 offen")
            a(f"buffer_load_dwordx4 {vr(FIn+4,4)}, v{vT[2]}, s[{sC}:{sC+3}], 0 offen offset:32")
        if fcrit:
            if not fall:
                a(f"s_and_b32 s{sT}, s{sRb}, 6")
                a(f"s_cbranch_scc1 {L('f0d')}")
            if fall == 2: lds_wait("f0", 4, 4, 2)
            elif fall == 3:
                a(f"s_call_b64 s[{sVm}:{sVm+1}], {L('p2sub')}")
                a(f"s_lshl_b32 s{sT}, s{sBeta}, 2")
                a(f"s_add_u32 s{sT}, s{sT}, s{sWl}")
                a(f"s_cmp_eq_u32 s{sT}, 2")
                a(f"s_cselect_b64 vcc, -1, 0")
                a(f"s_setprio {fprio}")
            else: lds_wait("f0", 20, 4)
        for p in range(10 if fcrit else fsplit): wdma(p)
        a(f"v_and_b32 v{vT[2]}, 31, v{vL}")
        a(f"v_lshrrev_b32 v{vT[1]}, 5, v{vL}")
        a(f"v_lshlrev_b32 v{vT[2]}, 18, v{vT[2]}")
        a(f"v_lshl_add_u32 v{vT[2]}, v{vT[1]}, 4, v{vT[2]}")
        a(f"s_lshl_b32 s{sT}, s{sWl}, 12")
        a(f"s_sub_u32 s{sT}, 0x10000, s{sT}")
        for ks in range(4): a(f"v_add_u32 v{vRX[ks]}, s{sT}, v{vRX[ks]}")
        assert not STAGE[9 % 4] & 0x10000
        if fcrit: twl()
        a("s_waitcnt vmcnt(%d)" % (4 + 2 * (10 - fsplit) if fcrit else 0))
        lds_inc(12)
        lds_wait("f1", 12, 4)
        st.stamp("fb0")
        if stamps: a("s_waitcnt lgkmcnt(0)")
        def rdB(s):
            p, ks = divmod(s, 4)
            if s == 32:
                for k in range(4): a(f"v_xor_b32 v{vRX[k]}, 0x10000, v{vRX[k]}")
            for part in range(2):
                a(f"ds_read_b128 {vr(BF[s%3][part],4)}, v{vRX[ks]} offset:{(WDB(p) & 0xffff) + 4096*part}")
        rdB(0); rdB(1)
        H = 4 * fsplit
        for s in range(40):
            if not fcrit:
                if s == fstart and fwait: lds_wait("f0", 20, 4)
                if fstart <= s < fstart + 10 - fsplit: wdma(fsplit + s - fstart)
                if s == fstart + 10 - fsplit: twl()
            if s == H - 2:
                a("s_waitcnt vmcnt(4)")
                lds_inc(16)
                lds_wait("f2", 16, 4)
                st.stamp("fb1")
                if stamps: a("s_waitcnt lgkmcnt(0)")
            if s + 2 < 40: rdB(s + 2)
            a(f"s_waitcnt lgkmcnt({4 if s < 38 else 2*(39-s)})")
            for part, Z in enumerate((ZA, ZB)):
                c = "0" if s == 0 else vr(Z, 16)
                a(f"v_mfma_f32_32x32x16_bf16 {vr(Z,16)}, {vr(XR[s//4][s%4],4)}, {vr(BF[s%3][part],4)}, {c}")
        assert fstart + 10 - fsplit < H - 2
    if wgen:
        a(f"s_setprio {gprio}")
        a(f"s_mov_b32 s{sGF}, s{sCnt}")
        WDB = lambda p: 0x10000 + 8192 * p
        vE_ = vFW[0]; vF_ = vFW[1]; vD_ = vFs; vA_ = vRX[0]; vB_ = vRX[1]
        a(f"v_and_b32 v{vT[0]}, 31, v{vL}")
        a(f"v_and_b32 v{vE_}, 0x13, v{vT[0]}")
        a(f"v_bfe_u32 v{vT[1]}, v{vT[0]}, 2, 1")
        a(f"v_lshl_add_u32 v{vE_}, v{vT[1]}, 3, v{vE_}")
        a(f"v_bfe_u32 v{vT[1]}, v{vT[0]}, 3, 1")
        a(f"v_lshl_add_u32 v{vE_}, v{vT[1]}, 2, v{vE_}")
        a(f"s_lshl_b32 s{sT}, s{sBeta}, 5")
        a(f"v_add_u32 v{vE_}, s{sT}, v{vE_}")
        a(f"v_cvt_f32_u32 v{vF_}, v{vE_}")
        a(f"v_mul_f32 v{vF_}, 0x3acccccd, v{vF_}")
        a(f"v_lshrrev_b32 v{vD_}, 5, v{vL}")
        a(f"s_lshl_b32 s{sT}, s{sWl}, 4")
        a(f"v_lshl_add_u32 v{vD_}, v{vD_}, 3, s{sT}")
        a(f"s_lshl_b32 s{sT}, s{sWl}, 11")
        a(f"s_add_u32 s{sT}, s{sT}, 0x10000")
        a(f"v_lshlrev_b32 v{vB_}, 4, v{vL}")
        a(f"v_add_u32 v{vA_}, s{sT}, v{vB_}")
        a(f"s_cmp_eq_u32 s{sBeta}, 0")
        a(f"s_cselect_b32 s{sSp}, 1, 0")
        a(f"s_mov_b32 s{sSp+1}, s{sSp}")
        a(f"s_mov_b32 s{sOW}, 0")
        vK_ = vRX[2]
        assert vK_ % 2 == 0
        def kappa():
            a(f"v_cos_f32 v{vK_}, v{vF_}")
            a("s_nop 0")
            a(f"v_add_f32 v{vK_}, v{vK_}, v{vK_}")
            a(f"v_mov_b32 v{vK_+1}, v{vK_}")
        def inter(f, g):
            keep = a.lines
            a.lines = []; f(); l1 = a.lines
            a.lines = []; g(); l2 = a.lines
            a.lines = keep
            for x_, y_ in zip(l1, l2): a.lines += [x_, y_]
        def trig1(Z, step):
            a(f"v_fract_f32 v{Z}, v{Z}")
            a(f"v_add_f32 v{Z+2}, v{Z}, v{step}")
            a(f"v_sin_f32 v{Z+1}, -v{Z}")
            a(f"v_cos_f32 v{Z}, v{Z}")
            a(f"v_sin_f32 v{Z+3}, -v{Z+2}")
            a(f"v_cos_f32 v{Z+2}, v{Z+2}")
            for i in range(2, 8):
                a(f"v_pk_fma_f32 {vr(Z+2*i,2)}, {vr(Z+2*i-2,2)}, {vr(vK_,2)}, {vr(Z+2*i-4,2)} neg_lo:[0,0,1] neg_hi:[0,0,1]")
        def trig2(Z, dc, ds_):
            for i in range(4): a(f"v_cvt_pk_bf16_f32 v{dc+i}, v{Z+4*i}, v{Z+4*i+2}")
            for i in range(4): a(f"v_cvt_pk_bf16_f32 v{ds_+i}, v{Z+4*i+1}, v{Z+4*i+3}")
        def seed(Z, add):
            a(f"v_add3_u32 v{Z}, s{sT}, v{vD_}, {add}")
            a(f"v_mul_u32_u24 v{Z}, v{Z}, v{vE_}")
            a(f"v_cvt_f32_u32 v{Z}, v{Z}")
            a(f"v_mul_f32 v{Z}, 0x3acccccd, v{Z}")
            trig1(Z, vF_)
        kappa()
        GO = BF[0][0]
        a(f"s_lshr_b32 s{sT}, s{sOX}, 1")
        a.label(L("wgl"))
        inter(lambda: seed(ZA, 0), lambda: seed(ZB, 64))
        a("s_waitcnt lgkmcnt(0)")
        for h_, Z in enumerate((ZA, ZB)):
            trig2(Z, GO + 8 * h_, GO + 8 * h_ + 4)
            a(f"s_mov_b64 exec, s[{sSp}:{sSp+1}]")
            for i in range(4): a(f"v_mov_b32 v{GO+8*h_+4+i}, 0xbf803f80")
            a("s_mov_b64 exec, -1")
            a(f"ds_write_b128 v{vA_}, {vr(GO+8*h_,4)} offset:{8192*h_}")
            a(f"ds_write_b128 v{vA_}, {vr(GO+8*h_+4,4)} offset:{8192*h_+1024}")
        a(f"v_add_u32 v{vA_}, 16384, v{vA_}")
        a(f"s_add_u32 s{sT}, s{sT}, 128")
        a(f"s_cmp_ge_u32 s{sT}, 640")
        a(f"s_cselect_b32 s{sT2}, 640, 0")
        a(f"s_sub_u32 s{sT}, s{sT}, s{sT2}")
        a(f"s_add_u32 s{sOW}, s{sOW}, 1")
        a(f"s_cmp_lg_u32 s{sOW}, 5")
        a(f"s_cbranch_scc1 {L('wgl')}")
        a("s_waitcnt lgkmcnt(0)")
        lds_inc(12)
        a(f"v_and_b32 v{vT[2]}, 31, v{vL}")
        a(f"v_cvt_f32_u32 v{vF_}, v{vT[2]}")
        a(f"v_mul_f32 v{vF_}, 0x3d000000, v{vF_}")
        a(f"v_and_b32 v{vD_}, 8, v{vD_}")
        kappa()
        def tw(Z, j):
            a(f"v_add_u32 v{Z}, {16*j}, v{vD_}")
            a(f"v_cvt_f32_u32 v{Z}, v{Z}")
            a(f"v_mul_f32 v{Z}, v{Z}, v{vF_}")
            trig1(Z, vF_)
            trig2(Z, FR + 4 * j, FIn + 4 * j)
        inter(lambda: tw(ZA, 0), lambda: tw(ZB, 1))
        a(f"v_add_u32 v{vA_}, 0x10000, v{vB_}")
        a(f"v_add_u32 v{vB_}, 0x20000, v{vB_}")
        a("s_setprio 3")
        lds_wait("f1", 12, 4)
        st.stamp("fb0")
        if stamps: a("s_waitcnt lgkmcnt(0)")
        def rdB(s):
            p, ks = divmod(s, 4)
            for part in range(2):
                a(f"ds_read_b128 {vr(BF[s%3][part],4)}, v{vA_ if p < 8 else vB_} offset:{(WDB(p) & 0xffff) + 2048*ks + 1024*part}")
        rdB(0); rdB(1)
        for s in range(40):
            if s + 2 < 40: rdB(s + 2)
            a(f"s_waitcnt lgkmcnt({4 if s < 38 else 2*(39-s)})")
            for part, Z in enumerate((ZA, ZB)):
                c = "0" if s == 0 else vr(Z, 16)
                a(f"v_mfma_f32_32x32x16_bf16 {vr(Z,16)}, {vr(XR[s//4][s%4],4)}, {vr(BF[s%3][part],4)}, {c}")
    lds_inc(8)
    st.stamp("fend")
    FRn = XR[0][0]; G0 = XR[1][0]; G1 = XR[2][0]; G2 = XR[3][0]; G3 = XR[4][0]; ZS = XR[5][0]
    a("s_waitcnt vmcnt(0)")
    for i in range(8):
        a(f"v_xor_b32 v{FRn+i}, 0x80008000, v{FR+i}")
        a(f"v_xor_b32 v{FIn+i}, 0x80008000, v{FIn+i}")
    for Z in (ZA, ZB):
        for i in range(8): a(f"v_cvt_pk_bf16_f32 v{Z+i}, v{Z+2*i}, v{Z+2*i+1}")
    m = lambda d, A, B, c: a(f"v_mfma_f32_32x32x16_bf16 {vr(d,16)}, {vr(A,4)}, {vr(B,4)}, {c}")
    GP = TOP - 24
    a("s_nop 0")
    a(f"s_cmp_lg_u32 s{sBeta}, 0")
    a(f"s_cbranch_scc1 {L('fn')}")
    m(G2, ZB, FR, "0"); m(G2, ZB+4, FR+4, vr(G2,16))
    m(G3, ZB, FIn, "0"); m(G3, ZB+4, FIn+4, vr(G3,16))
    a("s_mov_b32 exec_lo, 1"); a("s_mov_b32 exec_hi, 1")
    for i in range(8): a(f"v_mov_b32 v{ZB+i}, 0")
    a(f"s_mov_b64 exec, s[{sLo}:{sLo+1}]")
    a("s_nop 3")
    for i in range(4): a(f"v_mov_b32 v{GP+16+i}, 0"); a(f"v_mov_b32 v{GP+20+i}, 0")
    a(f"v_cvt_pk_bf16_f32 v{GP+16}, v{G2}, 0")
    a(f"v_cvt_pk_bf16_f32 v{GP+20}, v{G3}, 0")
    a("s_mov_b64 exec, -1")
    a.label(L("fn"))
    m(G0, ZA, FR, "0"); m(G0, ZA+4, FR+4, vr(G0,16)); m(G0, ZB, FIn, vr(G0,16)); m(G0, ZB+4, FIn+4, vr(G0,16))
    m(G1, ZB, FRn, "0"); m(G1, ZB+4, FRn+4, vr(G1,16)); m(G1, ZA, FIn, vr(G1,16)); m(G1, ZA+4, FIn+4, vr(G1,16))
    a("s_nop 7")
    for p, g in enumerate((G0, G1)):
        for i in range(8): a(f"v_cvt_pk_bf16_f32 v{GP+8*p+i}, v{g+2*i}, v{g+2*i+1}")
    def g_stores(sd):
        srd(a, sd, sWS, WL.G, WL.G_SIZE)
        a(f"s_mov_b32 s{sT2}, {64*WL.GA}")
        for p in range(2):
            for j in range(2):
                so = "0" if p == 0 else f"s{sT2}"
                a(f"buffer_store_dwordx4 {vr(GP+8*p+4*j,4)}, v{vGs}, s[{sd}:{sd+3}], {so} offen offset:{1024*j} sc1")
        a(f"s_or_b32 s{sT}, s{sXc}, s{sJ}")
        a(f"s_cmp_ge_u32 s{sT}, 4")
        a(f"s_cbranch_scc1 {L('gs1')}")
        a(f"v_add_u32 v{vGs}, {20*1024}, v{vGs}")
        a(f"s_mov_b64 exec, s[{sLo}:{sLo+1}]")
        a(f"buffer_store_dwordx4 {vr(GP+16,4)}, v{vGs}, s[{sd}:{sd+3}], 0 offen sc1")
        a(f"buffer_store_dwordx4 {vr(GP+20,4)}, v{vGs}, s[{sd}:{sd+3}], s{sT2} offen sc1")
        a("s_mov_b64 exec, -1")
        a.label(L("gs1"))
    assert ZB + 8 <= GP
    st.stamp("gst")
    a(f"s_branch {L('help')}")
    a.label(L("lgate"))
    if cwarm:
        a(f"s_getpc_b64 s[{sT}:{sT2}]")
        a.label(L("pc0"))
        a(f"s_sub_u32 s{sT}, s{sT}, {L('pc0')}-{name}")
        a(f"s_subb_u32 s{sT2}, s{sT2}, 0")
        a(f"s_lshl_b32 s{sCnt}, s{sWl}, 13")
        a(f"v_lshl_add_u32 v{vT[0]}, v{vL}, 7, s{sCnt}")
        a(f"v_min_u32 v{vT[0]}, {L('cend')}-{name}-4, v{vT[0]}")
        a(f"global_load_dword v{vT[1]}, v{vT[0]}, s[{sT}:{sT2}]")
    if gtouch and not wgen:
        sel_srd(sB, sWm, 6, 8, 2048 * 4096)
        a(f"v_and_b32 v{vT[0]}, 31, v{vL}")
        a(f"v_lshlrev_b32 v{vT[0]}, 18, v{vT[0]}")
        a(f"buffer_load_dword v{vT[1]}, v{vT[0]}, s[{sB}:{sB+3}], 0 offen")
    masks()
    a(f"s_lshl_b32 s{sT}, s2, 3")
    a(f"s_add_u32 s{sT}, s{sT}, s{sW}")
    a(f"s_cmp_lg_u32 s{sT}, {240*8+4}")
    a(f"s_cbranch_scc1 {L('ncw')}")
    srd(a, sC, sWS, WL.KC, WL.G - WL.KC)
    for i in range(4): a(f"v_mov_b32 v{ZA+i}, 0x3f803f80")
    a(f"v_mov_b32 v{ZA+4}, 0x3f803f80"); a(f"v_mov_b32 v{ZA+5}, 0x3f80"); a(f"v_mov_b32 v{ZA+6}, 0x3f803f80"); a(f"v_mov_b32 v{ZA+7}, 0x3f80")
    a(f"v_mul_u32_u24 v{vT[2]}, {WL.VR}, v{vL}")
    for i in range(4):
        a(f"s_mov_b32 s{sT}, {WL.PL + 10240 + 64*i*WL.VR}")
        a(f"buffer_store_dwordx4 {vr(ZA,4)}, v{vT[2]}, s[{sC}:{sC+3}], s{sT} offen sc1")
    a(f"v_and_b32 v{vT[2]}, 31, v{vL}")
    a(f"v_lshlrev_b32 v{vT[2]}, 10, v{vT[2]}")
    a(f"buffer_store_dwordx4 {vr(ZA+4,4)}, v{vT[2]}, s[{sC}:{sC+3}], 0 offen sc1")
    a("s_waitcnt vmcnt(0) lgkmcnt(0)")
    a(f"s_add_u32 s{sNonce}, s{sNonce}, 1")
    a(f"s_mov_b32 s{sT}, {WL.FA + 256*128}")
    put_flag(f"s{sT}")
    a(f"s_sub_u32 s{sNonce}, s{sNonce}, 1")
    a.label(L("ncw"))
    if wpack:
        srd(a, sB, 18, 0, 640 * 1280)
        srd(a, sC, sWS, WL.WP, 8 * 102400)
        a(f"s_and_b32 s{sT}, s{sJ}, 1")
        a(f"s_lshl_b32 s{sT}, s{sT}, 2")
        a(f"s_add_u32 s{sCnt}, s{sT}, s{sWl}")
        a(f"v_mul_u32_u24 v{vT[2]}, 205, v{vL}")
        a(f"v_lshrrev_b32 v{vT[2]}, 11, v{vT[2]}")
        a(f"v_mul_u32_u24 v{vT[3]}, {1280-160}, v{vT[2]}")
        a(f"v_lshl_add_u32 v{vT[3]}, v{vL}, 4, v{vT[3]}")
        a(f"s_mul_i32 s{sT}, s{sXc}, 160")
        a(f"v_add_u32 v{vT[3]}, s{sT}, v{vT[3]}")
        a(f"s_mul_i32 s{sT}, s{sXc}, 102400")
        a(f"s_mul_i32 s{sT2}, s{sCnt}, {5*2560}")
        a(f"s_add_u32 s{sT}, s{sT}, s{sT2}")
        a(f"v_lshl_add_u32 v{vT[4]}, v{vL}, 4, s{sT}")
        a(f"s_mul_i32 s{sOX}, s{sCnt}, 5")
        a(f"s_mov_b64 exec, s[{sDm}:{sDm+1}]")
        for u_ in range(5):
            a(f"s_add_u32 s{sT}, s{sOX}, {u_}")
            a(f"s_lshr_b32 s{sT2}, s{sT}, 1")
            a(f"s_and_b32 s{sT}, s{sT}, 1")
            a(f"s_lshl_b32 s{sT2}, s{sT2}, 3")
            a(f"s_add_u32 s{sT}, s{sT}, s{sT2}")
            a(f"s_mul_i32 s{sT}, s{sT}, {4*1280}")
            for g_ in range(4):
                a(f"buffer_load_dwordx4 {vr(XR[u_][g_],4)}, v{vT[3]}, s[{sB}:{sB+3}], s{sT} offen")
                if g_ < 3: a(f"s_add_u32 s{sT}, s{sT}, {8*1280}")
        a("s_mov_b64 exec, -1")
    a("s_waitcnt lgkmcnt(0)")
    a("s_barrier")
    a(f"s_add_u32 s{sNonce}, s{sNonce}, 1")
    if wpack:
        a(f"s_mov_b64 exec, s[{sDm}:{sDm+1}]")
        a("s_waitcnt vmcnt(0)")
        for u_ in range(5):
            a(f"s_mov_b32 s{sT}, {2560*u_}")
            for g_ in range(4):
                a(f"buffer_store_dwordx4 {vr(XR[u_][g_],4)}, v{vT[4]}, s[{sC}:{sC+3}], s{sT} offen offset:{640*g_} sc1")
        a("s_mov_b64 exec, -1")
        a(f"s_lshl_b32 s{sT}, s{sXc}, 3")
        a(f"s_add_u32 s{sT}, s{sT}, s{sCnt}")
        a(f"s_lshl_b32 s{sT}, s{sT}, 2")
        a(f"s_add_u32 s{sT}, s{sT}, {WL.FP}")
        a("s_waitcnt vmcnt(0)")
        put_flag(f"s{sT}")
    a("s_waitcnt vmcnt(0)")
    a(f"s_branch {L('lfree')}")
    a.label(L("lq"))
    a(f"s_cmp_lg_u32 s{sCb}, 0")
    a(f"s_cbranch_scc1 {L('lfree')}")
    lds_wait("g0", 20, 4)
    srd(a, sB, 20, 0, 1280)
    a(f"s_mul_i32 s{sM0}, s{sW}, 3072")
    a(f"s_add_u32 s{sM0}, s{sM0}, {LDS_X}")
    for i in range(3):
        a(f"v_lshlrev_b32 v{vT[0]}, 4, v{vL}")
        if i: a(f"v_add_u32 v{vT[0]}, {1024*i}, v{vT[0]}")
        a(f"v_subrev_u32 v{vT[1]}, 1280, v{vT[0]}")
        a(f"v_min_u32 v{vT[0]}, v{vT[0]}, v{vT[1]}")
        a(f"s_add_u32 m0, s{sM0}, {1024*i}")
        a("s_nop 0")
        a(f"buffer_load_dwordx4 v{vT[0]}, s[{sB}:{sB+3}], 0 offen lds")
    a(f"v_lshrrev_b32 v{vT[2]}, 5, v{vL}")
    a(f"s_add_u32 s{sT}, s{sM0}, s{sOX}")
    a(f"v_lshl_add_u32 v{vT[2]}, v{vT[2]}, 4, s{sT}")
    srd(a, sC, sWS, WL.GATE, 2048 * 8)
    a(f"s_lshl_b32 s{sCnt}, s{sRb}, 2")
    a(f"s_add_u32 s{sCnt}, s{sCnt}, s{sWl}")
    a("s_waitcnt vmcnt(0)")
    GB = [BF[0][0], BF[0][1], BF[1][0], BF[1][1], BF[2][0], BF[2][1]]
    for s_ in range(5): a(f"ds_read_b128 {vr(GB[s_],4)}, v{vT[2]} offset:{32*s_}")
    for s_ in range(40):
        if s_ + 5 < 40: a(f"ds_read_b128 {vr(GB[(s_+5)%6],4)}, v{vT[2]} offset:{32*(s_+5)}")
        a(f"s_waitcnt lgkmcnt({min(5, 39 - s_)})")
        c = "0" if s_ == 0 else vr(ZA, 16)
        a(f"v_mfma_f32_32x32x16_bf16 {vr(ZA,16)}, {vr(GB[s_%6],4)}, {vr(XR[s_//4][s_%4],4)}, {c}")
    a("s_nop 12")
    a(f"v_cvt_pk_bf16_f32 v{ZA}, 0, v{ZA}")
    a(f"v_mul_f32 v{ZA}, 0xbfb8aa3b, v{ZA}")
    a(f"v_exp_f32 v{ZA}, v{ZA}")
    a(f"v_lshlrev_b32 v{vT[2]}, 3, v{vL}")
    a(f"v_add_f32 v{ZA}, 1.0, v{ZA}")
    a(f"v_rcp_f32 v{ZA}, v{ZA}")
    a(f"s_lshl_b32 s{sT}, s{sCnt}, 8")
    a(f"v_cvt_pk_bf16_f32 v{ZB}, 0, v{ZA}")
    a(f"v_sub_f32 v{ZB+1}, 1.0, v{ZB}")
    a(f"v_cvt_pk_bf16_f32 v{ZB+1}, 0, v{ZB+1}")
    a(f"s_mov_b64 exec, s[{sLo}:{sLo+1}]")
    a(f"buffer_store_dwordx2 {vr(ZB,2)}, v{vT[2]}, s[{sC}:{sC+3}], s{sT} offen sc1")
    a("s_mov_b64 exec, -1")
    a(f"s_lshl_b32 s{sGF}, s{sCnt}, 2")
    a(f"s_add_u32 s{sGF}, s{sGF}, {WL.FP + 256}")
    a.label(L("lfree"))
    a("s_waitcnt lgkmcnt(0)")
    lds_inc(8)
    a(f"s_branch {L('help')}")

    a.label(L("comp"))
    V = Alloc(VB, TOP)
    vRX = [V.get() for _ in range(4)]; vRW = [V.get() for _ in range(2)]
    vE = [V.get() for _ in range(8)]
    vTch = V.get(2)
    XF = [[V.get(4, 4) for _ in range(2)] for _ in range(4)]
    WF = [[V.get(4, 4) for _ in range(2)] for _ in range(4)]
    ACC = [[V.get(16, 4) for _ in range(2)] for _ in range(2)]
    PK = TOP - 32
    vS = [PK - 4 + i for i in range(4)]
    sDef = 15
    sMask = sD; sScale = sD + 2
    a(f"s_setprio {cprio}")
    nat_read_addrs(vRX, sWm, 13)
    for x in range(2):
        for w in range(2):
            for i in range(16): a(f"v_mov_b32 v{ACC[x][w]+i}, 0")
    after_kernarg()
    masks()
    a(f"s_cmp_lg_u32 s{sW}, 0")
    a(f"s_cbranch_scc1 {L('c1')}")
    a(f"ds_write_b128 v{vCtl}, {vr(ACC[0][0],4)}")
    for o_ in (16, 32, 48): a(f"ds_write_b128 v{vCtl}, {vr(ACC[0][0],4)} offset:{o_}")
    a.label(L("c1"))
    def poison(sd, pr):
        a(f"s_and_b32 s{sT}, s{sJ}, 3")
        a(f"s_lshl_b32 s{sT2}, s{sXc}, 2")
        a(f"s_add_u32 s{sT}, s{sT}, s{sT2}")
        a(f"s_and_b32 s{sCnt}, s{sT}, 1")
        a(f"s_lshr_b32 s{sT}, s{sT}, 1")
        a(f"s_mul_i32 s{sT}, s{sT}, {5*WL.PL}")
        a(f"s_add_u32 s{sT}, s{sT}, {WL.OF}")
        srd(a, sd, sWS, f"s{sT}", 5 * WL.PL)
        a(f"s_and_b32 s{sT}, s{sJ}, 28")
        a(f"s_add_u32 s{sT}, s{sT}, s{sW}")
        a(f"s_lshl_b32 s{sT}, s{sT}, 10")
        a(f"v_lshl_add_u32 v{vT[0]}, v{vL}, 4, s{sT}")
        for i in range(4): a(f"v_mov_b32 v{pr+i}, -1")
        a(f"s_mul_i32 s{sT}, s{sCnt}, {3*WL.PL}")
        a(f"buffer_store_dwordx4 {vr(pr,4)}, v{vT[0]}, s[{sd}:{sd+3}], s{sT} offen sc1")
        a(f"s_add_u32 s{sT}, s{sT}, {WL.PL}")
        a(f"buffer_store_dwordx4 {vr(pr,4)}, v{vT[0]}, s[{sd}:{sd+3}], s{sT} offen sc1")
        a(f"s_lshl_b32 s{sT}, s{sCnt}, 3")
        a(f"s_add_u32 s{sT}, s{sT}, {2*WL.PL}")
        a(f"buffer_store_dwordx2 {vr(pr,2)}, v{vT[0]}, s[{sd}:{sd+3}], s{sT} offen sc1")
    if pois == 1: poison(sC, PK)
    def mainloop(mode, epi):
        def rdX(s, ks, x): a(f"ds_read_b128 {vr(XF[s][x],4)}, v{vRX[ks]} offset:{4096*x}")
        def rdW(s, ks, w):
            a(f"ds_read_b64_tr_b16 {vr(WF[s][w],2)}, v{vRW[w]} offset:{4096*ks}")
            a(f"ds_read_b64_tr_b16 {vr(WF[s][w]+2,2)}, v{vRW[w]} offset:{4096*ks+1024}")
        def mf(s, x, w):
            A, B = (WF[s][w], XF[s][x]) if mode == 'qk' else (XF[s][x], WF[s][w])
            a(f"v_mfma_f32_32x32x16_bf16 {vr(ACC[x][w],16)}, {vr(A,4)}, {vr(B,4)}, {vr(ACC[x][w],16)}")
        a("s_waitcnt lgkmcnt(0)")
        a("s_barrier")
        st.stamp("b0")
        if stamps: a("s_waitcnt lgkmcnt(0)")
        if deep:
            for k_ in range(2): rdX(k_, k_, 0); rdW(k_, k_, 0); rdX(k_, k_, 1); rdW(k_, k_, 1)
            a(f"s_mov_b32 s{sCnt}, 0")
            a.raw(".p2align 5")
            a.label(L(mode + "loop"))
            for ks in range(4):
                nk = (ks + 2) % 4
                a("s_waitcnt lgkmcnt(9)")
                mf(ks, 0, 0)
                if ks == 2:
                    a("s_barrier")
                    for r in (vRX[0], vRW[0], vRW[1], vRX[1]): a(f"v_xor_b32 v{r}, s{sMask}, v{r}")
                rdX(nk, nk, 0); rdW(nk, nk, 0)
                a("s_waitcnt lgkmcnt(11)")
                mf(ks, 1, 0)
                rdX(nk, nk, 1)
                if ks == 2:
                    for r in (vRX[2], vRX[3]): a(f"v_xor_b32 v{r}, s{sMask}, v{r}")
                    a(f"s_xor_b32 s{sMask}, s{sMask}, 0x18000")
                a("s_waitcnt lgkmcnt(10)")
                mf(ks, 0, 1)
                rdW(nk, nk, 1)
                if ks == 3:
                    a(f"s_add_u32 s{sCnt}, s{sCnt}, 1")
                    a(f"s_cmp_lg_u32 s{sCnt}, 9")
                mf(ks, 1, 1)
            a(f"s_cbranch_scc1 {L(mode+'loop')}")
            a("s_waitcnt lgkmcnt(9)")
            mf(0, 0, 0)
            rdX(2, 2, 0); rdW(2, 2, 0); rdX(3, 3, 0); rdW(3, 3, 0)
            a("s_waitcnt lgkmcnt(9)")
            mf(1, 0, 0)
            rdW(2, 2, 1); rdW(3, 3, 1)
            mf(0, 0, 1)
            rdX(2, 2, 1); rdX(3, 3, 1)
            a("s_waitcnt lgkmcnt(9)")
            mf(1, 0, 1)
            mf(2, 0, 0)
            a("s_waitcnt lgkmcnt(6)")
            mf(3, 0, 0)
            a("s_waitcnt lgkmcnt(2)")
            mf(2, 0, 1); mf(3, 0, 1)
            mf(0, 1, 0); mf(1, 1, 0)
            a("s_waitcnt lgkmcnt(0)")
            lds_inc(8)
            a("s_nop 1")
            mf(2, 1, 0)
            epi(0, 0)
            mf(3, 1, 0); mf(0, 1, 1)
            epi(0, 1)
            mf(1, 1, 1); mf(2, 1, 1); mf(3, 1, 1)
            st.stamp("aend")
            epi(1, 0)
            a("s_nop 1")
            epi(1, 1)
            return
        rdX(0, 0, 0); rdW(0, 0, 0); rdX(0, 0, 1); rdW(0, 0, 1)
        a(f"s_mov_b32 s{sCnt}, 0")
        a.raw(".p2align 5")
        a.label(L(mode + "loop"))
        for ks in range(4):
            s = ks % 2; n = 1 - s; nk = (ks + 1) % 4
            if ks < 3:
                a("s_waitcnt lgkmcnt(3)")
                mf(s, 0, 0)
                if ks == 0 and touch:
                    a(f"s_cmp_lg_u32 s{sCnt}, {tpos}")
                    a(f"s_cbranch_scc1 {L(mode+'nt')}")
                    a(f"buffer_load_dword v{vTch}, v{vTch+1}, s[{sE}:{sE+3}], 0 offen")
                    a.label(L(mode + "nt"))
            else:
                a("s_waitcnt lgkmcnt(0)")
                mf(s, 0, 0)
                a(f"s_add_u32 s{sCnt}, s{sCnt}, 1")
                if not peel:
                    a(f"s_cmp_eq_u32 s{sCnt}, 10")
                    a(f"s_cbranch_scc1 {L(mode+'last')}")
                a("s_barrier")
                for r in vRX + vRW:
                    a(f"v_xor_b32 v{r}, s{sMask}, v{r}")
            rdX(n, nk, 0); rdW(n, nk, 0)
            if ks < 3: a("s_waitcnt lgkmcnt(5)")
            mf(s, 1, 0)
            rdX(n, nk, 1)
            if ks < 3: a("s_waitcnt lgkmcnt(4)")
            mf(s, 0, 1)
            rdW(n, nk, 1)
            if ks == 3: a(f"s_xor_b32 s{sMask}, s{sMask}, 0x18000")
            if ks == 3 and peel: a(f"s_cmp_lg_u32 s{sCnt}, 9")
            mf(s, 1, 1)
        if not peel:
            a(f"s_branch {L(mode+'loop')}")
            a.label(L(mode + "last"))
            mf(1, 0, 1); mf(1, 1, 0); mf(1, 1, 1)
            lds_inc(8)
            st.stamp("aend")
            a("s_nop 1")
            for x in range(2):
                for w in range(2): epi(x, w)
            return
        a(f"s_cbranch_scc1 {L(mode+'loop')}")
        for ks in range(1, 4): rdX(ks, ks, 0); rdW(ks, ks, 0)
        for ks in range(4):
            a(f"s_waitcnt lgkmcnt({[12, 6, 5, 4][ks]})")
            mf(ks, 0, 0)
            if ks >= 1: rdW(ks, ks, 1)
        for ks in range(4):
            if ks: a(f"s_waitcnt lgkmcnt({[0, 4, 3, 2][ks]})")
            mf(ks, 0, 1)
            if ks >= 1: rdX(ks, ks, 1)
        mf(0, 1, 0)
        a("s_waitcnt lgkmcnt(0)")
        mf(1, 1, 0)
        lds_inc(8)
        mf(2, 1, 0)
        epi(0, 0)
        mf(3, 1, 0); mf(0, 1, 1)
        epi(0, 1)
        mf(1, 1, 1); mf(2, 1, 1); mf(3, 1, 1)
        st.stamp("aend")
        epi(1, 0)
        a("s_nop 1")
        epi(1, 1)
    a(f"s_mov_b32 s{sMask}, 0x8000")
    a(f"s_cmp_ge_u32 s{sJ}, 30")
    a(f"s_cbranch_scc1 {L('gate')}")
    a(f"s_lshl_b32 s{sAF}, s{sCb}, 4")
    a(f"s_add_u32 s{sAF}, s{sAF}, s{sRb}")
    if touch:
        sel_srd(sE, sWm, 10, 12, 640 * 1280)
        a(f"s_lshl_b32 s{sT}, s{sJ}, 1")
        a(f"s_add_u32 s{sT}, s{sT}, s{sWn}")
        a(f"s_mul_i32 s{sT}, s{sT}, {27*128}")
        a(f"s_lshr_b32 s{sT2}, s{sXc}, 2")
        a(f"s_mul_i32 s{sT2}, s{sT2}, {160*1280}")
        a(f"s_add_u32 s{sT}, s{sT}, s{sT2}")
        a(f"v_min_u32 v{vTch+1}, 26, v{vL}")
        a(f"v_lshl_add_u32 v{vTch+1}, v{vTch+1}, 7, s{sT}")
    def astore(sd, aa, bb, lab=None):
        if lab and defer: a(f"s_cbranch_vccnz {L('as%s%d%d' % (lab, aa, bb))}")
        for j in range(2):
            a(f"buffer_store_dwordx4 {vr(PK+8*(2*bb+aa)+4*j,4)}, v{vS[2*aa+j]}, s[{sd}:{sd+3}], 0 offen offset:{512*bb} sc1")
        if lab and defer: a.label(L('as%s%d%d' % (lab, aa, bb)))
    srd(a, sC, sWS, WL.QF, WL.G - WL.QF)
    if defer:
        a(f"s_and_b32 s{sDef}, s{sRb}, {dmask}")
        a(f"s_cmp_lt_u32 s{sCb}, 5")
        a(f"s_cselect_b32 s{sDef}, 0, s{sDef}")
        a(f"s_cmp_lg_u32 s{sDef}, 0")
        a("s_cselect_b64 vcc, -1, 0")
    a(f"v_bfe_u32 v{vT[0]}, v{vL}, 2, 2")
    a(f"v_lshrrev_b32 v{vT[1]}, 5, v{vL}")
    a(f"v_lshl_add_u32 v{vT[1]}, v{vT[1]}, 3, v{vT[0]}")
    a(f"v_lshlrev_b32 v{vT[1]}, 8, v{vT[1]}")
    a(f"s_lshl_b32 s{sT}, s{sWn}, 1")
    a(f"v_xor_b32 v{vT[0]}, s{sT}, v{vT[0]}")
    a(f"v_lshl_add_u32 v{vT[1]}, v{vT[0]}, 6, v{vT[1]}")
    a(f"v_bfe_u32 v{vT[0]}, v{vL}, 4, 1")
    a(f"v_lshl_add_u32 v{vT[1]}, v{vT[0]}, 5, v{vT[1]}")
    a(f"v_add_u32 v{vT[1]}, 0x4000, v{vT[1]}")
    a(f"v_and_b32 v{vT[4]}, 31, v{vL}")
    a(f"v_lshrrev_b32 v{vT[5]}, 5, v{vL}")
    a(f"s_cmp_ge_u32 s{sCb}, 10")
    a(f"s_cbranch_scc1 {L('v')}")
    a(f"v_and_b32 v{vT[0]}, 1, v{vL}")
    a(f"v_lshl_add_u32 v{vT[1]}, v{vT[0]}, 4, v{vT[1]}")
    a(f"v_bfe_u32 v{vT[0]}, v{vL}, 1, 1")
    a(f"v_lshl_add_u32 v{vRW[0]}, v{vT[0]}, 3, v{vT[1]}")
    a(f"v_xor_b32 v{vRW[1]}, 64, v{vRW[0]}")
    a(f"s_cmp_ge_u32 s{sCb}, 5")
    a(f"s_cselect_b32 s{sScale}, 1.0, {hex(QSCALE)}")
    a(f"s_mov_b32 s{sScale+1}, s{sScale}")
    a(f"s_lshl_b32 s{sT}, s{sCb}, 1")
    a(f"s_add_u32 s{sT}, s{sT}, s{sWn}")
    sR5 = sD + 1
    a(f"s_lshl_b32 s{sR5}, s{sT}, 3")
    a(f"s_mul_i32 s{sT2}, s{sR5}, 205")
    a(f"s_lshr_b32 s{sT2}, s{sT2}, 10")
    a(f"s_mul_i32 s{sT2}, s{sT2}, 5")
    a(f"s_sub_u32 s{sR5}, s{sR5}, s{sT2}")
    a(f"s_lshl_b32 s{sT}, s{sT}, 18")
    a(f"s_lshl_b32 s{sT2}, s{sRb}, 1")
    a(f"s_add_u32 s{sT2}, s{sT2}, s{sWm}")
    a(f"s_lshl_b32 s{sT2}, s{sT2}, 10")
    a(f"s_add_u32 s{sT}, s{sT}, s{sT2}")
    a(f"v_lshlrev_b32 v{vS[0]}, 15, v{vT[5]}")
    a(f"v_lshl_add_u32 v{vS[0]}, v{vT[4]}, 4, v{vS[0]}")
    a(f"v_add_u32 v{vS[0]}, s{sT}, v{vS[0]}")
    for e in range(1, 4): a(f"v_add_u32 v{vS[e]}, {e*2*WL.PL}, v{vS[0]}")
    def epi_qk(x, w):
        acc = ACC[x][w]; pk = PK + 8 * (2 * x + w)
        for i in range(0, 16, 2): a(f"v_pk_mul_f32 {vr(acc+i,2)}, {vr(acc+i,2)}, s[{sScale}:{sScale+1}]")
        for i in range(8): a(f"v_cvt_pk_bf16_f32 v{pk+i}, v{acc+2*i}, v{acc+2*i+1}")
        if x == 0: return
        for j in range(2):
            t5 = (2 - 2 * (2 * w + j)) % 5
            a(f"s_cmp_eq_u32 s{sR5}, {t5}")
            a("s_cselect_b32 exec_lo, -1, 0")
            a(f"s_cmp_eq_u32 s{sR5}, {(t5 - 1) % 5}")
            a("s_cselect_b32 exec_hi, -1, 0")
            for i in range(2): a(f"v_swap_b32 v{PK+8*w+4*j+2+i}, v{PK+8*(2+w)+4*j+i}")
        a("s_mov_b64 exec, -1")
        astore(sC, w, 0, "q"); astore(sC, w, 1, "q")
    mainloop('qk', epi_qk)
    a(f"s_branch {L('adone')}")
    a.label(L("v"))
    a(f"v_and_b32 v{vT[0]}, 3, v{vL}")
    a(f"v_lshl_add_u32 v{vRW[0]}, v{vT[0]}, 3, v{vT[1]}")
    a(f"v_xor_b32 v{vRW[1]}, 64, v{vRW[0]}")
    a(f"s_lshl_b32 s{sT}, s{sRb}, 1")
    a(f"s_add_u32 s{sT}, s{sT}, s{sWm}")
    a(f"s_mul_i32 s{sT}, s{sT}, {2*WL.VT}")
    a(f"s_sub_u32 s{sT2}, s{sCb}, 10")
    a(f"s_lshl_b32 s{sT2}, s{sT2}, 1")
    a(f"s_add_u32 s{sT2}, s{sT2}, s{sWn}")
    a(f"s_lshl_b32 s{sT2}, s{sT2}, 10")
    a(f"s_add_u32 s{sT}, s{sT}, s{sT2}")
    a(f"s_add_u32 s{sT}, s{sT}, {WL.VF - WL.QF}")
    a(f"v_mul_u32_u24 v{vS[0]}, {WL.VR}, v{vT[5]}")
    a(f"v_lshl_add_u32 v{vS[0]}, v{vT[4]}, 4, v{vS[0]}")
    a(f"v_add_u32 v{vS[0]}, s{sT}, v{vS[0]}")
    for e in range(1, 4): a(f"v_add_u32 v{vS[e]}, {e*2*WL.VR}, v{vS[0]}")
    def epi_v(x, w):
        acc = ACC[x][w]; pk = PK + 8 * (2 * w + x)
        for i in range(8): a(f"v_cvt_pk_bf16_f32 v{pk+i}, v{acc+2*i}, v{acc+2*i+1}")
        astore(sC, x, w, "v")
    mainloop('v', epi_v)
    a(f"s_branch {L('adone')}")
    a.label(L("gate"))
    a(f"s_mov_b32 s{sAF}, s2")
    a("s_waitcnt lgkmcnt(0)")
    a("s_barrier")
    def spoison():
        srd(a, sC, sWS, WL.OF, 80 * WL.PL)
        a(f"s_sub_u32 s{sT}, s2, 240")
        a(f"s_lshl_b32 s{sT}, s{sT}, 2")
        a(f"s_add_u32 s{sT}, s{sT}, s{sW}")
        a(f"s_mul_i32 s{sT}, s{sT}, 40960")
        a(f"s_add_u32 s{sT2}, s{sT}, 40960")
        a(f"v_lshlrev_b32 v{vT[3]}, 4, v{vL}")
        for i in range(4): a(f"v_mov_b32 v{PK+4+i}, -1")
        a.label(L("spl"))
        for i in range(4): a(f"buffer_store_dwordx4 {vr(PK+4,4)}, v{vT[3]}, s[{sC}:{sC+3}], s{sT} offen offset:{1024*i} sc1")
        a(f"s_add_u32 s{sT}, s{sT}, 4096")
        a(f"s_cmp_lt_u32 s{sT}, s{sT2}")
        a(f"s_cbranch_scc1 {L('spl')}")
    if pois == 5 and pfirst: spoison()
    if wdtouch:
        sel_srd(sB, sWm, 10, 12, 640 * 1280)
        a(f"s_and_b32 s{sT}, s{sJ}, 1")
        a(f"s_lshl_b32 s{sT}, s{sT}, 1")
        a(f"s_add_u32 s{sT}, s{sT}, s{sWn}")
        a(f"s_mul_i32 s{sT}, s{sT}, {400*128}")
        a(f"s_lshr_b32 s{sT2}, s{sXc}, 2")
        a(f"s_mul_i32 s{sT2}, s{sT2}, {160*1280}")
        a(f"s_add_u32 s{sT}, s{sT}, s{sT2}")
        a(f"v_min_u32 v{vT[2]}, 49, v{vL}")
        a(f"v_lshlrev_b32 v{vT[2]}, 7, v{vT[2]}")
        for i in range(8):
            a(f"buffer_load_dword v{PK}, v{vT[2]}, s[{sB}:{sB+3}], s{sT} offen")
            a(f"s_add_u32 s{sT}, s{sT}, {50*128}")
    if pois == 5 and not pfirst: spoison()
    lds_inc(8)
    a.label(L("adone"))
    if pois == 2: poison(sC, XF[0][0])
    if fwait: lds_inc(20)
    st.stamp("ast")
    a(f"s_add_u32 s{sNonce}, s{sNonce}, 1")
    a(f"s_lshl_b32 s{sAF}, s{sAF}, 7")
    a(f"s_add_u32 s{sAF}, s{sAF}, {WL.FA}")

    vKm = 10; vKr = 11; vIdx = 12; vM = 13
    vVa = [[14 + 2 * b, 15 + 2 * b] for b in range(4)]; vV0, vV1 = vVa[0]
    vG1 = 22
    Qm = [24 + 4 * q for q in range(4)]; Qr = [40 + 2 * q for q in range(4)]
    Km = [48 + 4 * b for b in range(4)]; Kr = [64 + 2 * b for b in range(4)]
    Vb = [[72 + 8 * b, 76 + 8 * b] for b in range(4)]
    S = [104 + 16 * q for q in range(4)]; O = [168 + 16 * q for q in range(4)]
    K0m = 232; K0r = 236; cO = 238; cSt = 239; cX0 = 240; cX1 = 241; cR = 242; cD0 = 243; cD1 = 244
    vKF = S[0]; vQF = S[0] + 1
    sK = sA; sV = sB; sQ = sC
    sHead = 98; sQb = 99; sKh = 100; sOK = 101; sOV = 14; sPar = sE; sHp = sE + 2; sU0 = sE + 3
    sCc = sHead; sEb8 = sQb; sRet = sE
    def coords():
        a(f"s_and_b32 s{sT}, s{sJ}, 3")
        a(f"s_lshl_b32 s{sHead}, s{sXc}, 2")
        a(f"s_add_u32 s{sHead}, s{sHead}, s{sT}")
        a(f"s_lshr_b32 s{sQb}, s{sJ}, 2")
    def swap23(dst, src, tmp):
        a(f"v_and_b32 v{dst}, 0x13, v{src}")
        a(f"v_bfe_u32 v{tmp}, v{src}, 2, 1")
        a(f"v_lshl_add_u32 v{dst}, v{tmp}, 3, v{dst}")
        a(f"v_bfe_u32 v{tmp}, v{src}, 3, 1")
        a(f"v_lshl_add_u32 v{dst}, v{tmp}, 2, v{dst}")
    def kv_flag_offsets(kf):
        a(f"s_mul_i32 s{sT}, s{sHead}, 20")
        a(f"v_bfe_u32 v{vT[0]}, v{vL}, 4, 1")
        a(f"v_mul_u32_u24 v{vT[0]}, 19, v{vT[0]}")
        a(f"v_add_u32 v{vT[0]}, s{sT}, v{vT[0]}")
        a(f"v_lshrrev_b32 v{vT[0]}, 7, v{vT[0]}")
        a(f"v_lshrrev_b32 v{vT[1]}, 5, v{vL}")
        a(f"v_mul_u32_u24 v{vT[1]}, 5, v{vT[1]}")
        a(f"v_add3_u32 v{vT[1]}, v{vT[1]}, v{vT[0]}, 5")
        a(f"v_and_b32 v{vT[2]}, 15, v{vL}")
        a(f"v_lshl_add_u32 v{vT[1]}, v{vT[1]}, 4, v{vT[2]}")
        a(f"v_lshlrev_b32 v{kf}, 7, v{vT[1]}")
    def d_addrs(vo, vst, vr_, step0, vws=None, vgt=None):
        a(f"v_and_b32 v{vT[0]}, 15, v{vL}")
        a(f"v_lshrrev_b32 v{vT[1]}, 4, v{vL}")
        swap23(vT[4], vT[0], vT[3])
        a(f"s_and_b32 s{sT}, s{sW}, 3")
        a(f"s_lshl_b32 s{sT}, s{sT}, 4")
        a(f"s_lshl_b32 s{sT2}, s{sCc}, 6")
        a(f"s_add_u32 s{sT}, s{sT}, s{sT2}")
        a(f"v_add_u32 v{vT[2]}, s{sT}, v{vT[0]}")
        a(f"s_and_b32 s{sT}, s{sW}, 1")
        a(f"s_lshl_b32 s{sT}, s{sT}, 10")
        a(f"s_and_b32 s{sT2}, s{sW}, 2")
        a(f"s_lshl_b32 s{sT2}, s{sT2}, 4")
        a(f"s_add_u32 s{sT}, s{sT}, s{sT2}")
        a(f"s_add_u32 s{sT}, s{sT}, s{sCc}")
        a(f"v_lshl_add_u32 v{vT[0]}, v{vT[4]}, 6, s{sT}")
        if vws is not None:
            a(f"v_lshlrev_b32 v{vws}, 12, v{vT[0]}")
            a(f"v_lshl_add_u32 v{vws}, v{vT[1]}, 4, v{vws}")
            a(f"v_lshlrev_b32 v{vgt}, 3, v{vT[2]}")
        a(f"v_lshlrev_b32 v{vo}, 4, v{vT[2]}")
        a(f"v_lshl_add_u32 v{vo}, v{vT[1]}, 15, v{vo}")
        if step0: a(f"v_add_u32 v{vo}, {4*WL.PL*step0}, v{vo}")
        a(f"v_mul_u32_u24 v{vst}, 1280, v{vT[0]}")
        a(f"v_lshl_add_u32 v{vst}, v{vT[1]}, 3, v{vst}")
        a(f"s_mul_i32 s{sT}, s{sEb8}, 160")
        a(f"v_add_u32 v{vst}, s{sT}, v{vst}")
        a(f"v_lshrrev_b32 v{vT[2]}, 2, v{vL}")
        a(f"v_and_b32 v{vT[1]}, 3, v{vL}")
        a(f"v_mul_u32_u24 v{vr_}, 160, v{vT[2]}")
        a(f"v_lshl_add_u32 v{vr_}, v{vT[1]}, 3, v{vr_}")
        if step0: a(f"v_add_u32 v{vr_}, {5120*step0}, v{vr_}")
    def slot_addr(dst, xor, add):
        a(f"s_and_b32 s{sT}, s{sW}, 3")
        if xor: a(f"s_xor_b32 s{sT}, s{sT}, {xor}")
        a(f"s_mul_i32 s{sT}, s{sT}, 6144")
        a(f"s_add_u32 s{sT}, s{sT}, {LDS_X + add}")
        a(f"v_lshl_add_u32 v{dst}, v{vL}, 4, s{sT}")
    def all_nonce(regs, lab):
        for r in regs: a(f"v_xor_b32 v{r}, s{sNonce}, v{r}")
        rest = regs[1:]
        while len(rest) >= 2:
            a(f"v_or3_b32 v{regs[0]}, v{regs[0]}, v{rest[0]}, v{rest[1]}"); rest = rest[2:]
        if rest: a(f"v_or_b32 v{regs[0]}, v{regs[0]}, v{rest[0]}")
        a(f"v_cmp_ne_u32 vcc, 0, v{regs[0]}")
        a("s_nop 1")
        a("s_cmp_eq_u64 vcc, 0")
        a(f"s_cbranch_scc1 {L(lab)}")
    def lds_set(off):
        a(f"v_mov_b32 v{vT[0]}, 1")
        a(f"ds_write_b32 v{vCtl}, v{vT[0]} offset:{off}")
    def rd(dst, base, off, pitch=160):
        for t in range(5):
            a(f"ds_read_b64_tr_b16 {vr(dst[t],2)}, v{base} offset:{off + 32*t}")
            a(f"ds_read_b64_tr_b16 {vr(dst[t]+2,2)}, v{base} offset:{off + 32*t + 16*pitch}")
    coords()
    a(f"s_lshr_b32 s{sKh}, s{sW}, 1")
    a(f"s_and_b32 s{sPar}, s{sHead}, 1")
    a(f"s_lshr_b32 s{sHp}, s{sHead}, 1")
    a(f"s_mul_i32 s{sHp}, s{sHp}, {5*WL.PL}")
    a(f"v_and_b32 v{vT[0]}, 31, v{vL}")
    a(f"v_lshrrev_b32 v{vT[1]}, 5, v{vL}")
    swap23(vT[2], vT[0], vT[3])
    a(f"s_mul_i32 s{sT}, s{sPar}, {3*WL.PL}")
    a(f"v_lshlrev_b32 v{vKm}, 15, v{vT[1]}")
    a(f"v_lshl_add_u32 v{vKm}, v{vT[2]}, 4, v{vKm}")
    a(f"v_add_u32 v{vKm}, s{sT}, v{vKm}")
    a(f"s_lshl_b32 s{sT}, s{sPar}, 9")
    a(f"s_add_u32 s{sT}, s{sT}, {2*WL.PL}")
    a(f"v_lshl_add_u32 v{vKr}, v{vT[2]}, 4, s{sT}")
    a(f"s_sub_u32 s{sT}, {80*WL.PL}, s{sHp}")
    a(f"s_mov_b64 exec, s[{sHi}:{sHi+1}]")
    a(f"v_mov_b32 v{vKr}, s{sT}")
    a("s_mov_b64 exec, -1")
    a(f"v_mov_b32 v{vIdx}, 0xdddddddd")
    a(f"s_lshl_b32 s{sT}, s{sPar}, 2")
    a(f"v_add_u32 v{vT[2]}, s{sT}, v{vT[2]}")
    a(f"v_subrev_u32 v{vT[3]}, 20, v{vT[2]}")
    a(f"v_min_u32 v{vT[2]}, v{vT[2]}, v{vT[3]}")
    a(f"s_mul_i32 s{sT}, s{sHead}, 320")
    a(f"v_mul_u32_u24 v{vV0}, {WL.VR}, v{vT[1]}")
    a(f"v_lshl_add_u32 v{vV0}, v{vT[2]}, 4, v{vV0}")
    a(f"v_add_u32 v{vV0}, s{sT}, v{vV0}")
    a("s_mov_b32 exec_lo, 0x100000"); a("s_mov_b32 exec_hi, 0x100000")
    a(f"v_mul_u32_u24 v{vV0}, {WL.VR}, v{vT[1]}")
    a(f"v_add_u32 v{vV0}, 10240, v{vV0}")
    a("s_mov_b32 exec_lo, 0xffe00000"); a("s_mov_b32 exec_hi, 0xffe00000")
    a(f"v_mov_b32 v{vV0}, 0x40000000")
    a("s_mov_b64 exec, -1")
    for b in range(4):
        for j in range(2):
            if b or j: a(f"v_add_u32 v{vVa[b][j]}, {b*WL.VT + j*2*WL.VR}, v{vV0}")
    a(f"s_add_u32 s{sT}, s{sHp}, {WL.KF}")
    srd(a, sK, sWS, f"s{sT}", 81 * WL.PL)
    srd(a, sV, sWS, WL.VF, 32 * WL.VT)
    a(f"s_lshl_b32 s{sV+2}, s{sV+2}, s{sKh}")
    a(f"s_add_u32 s{sT}, s{sHp}, {WL.QF}")
    srd(a, sQ, sWS, f"s{sT}", 5 * WL.PL)
    a(f"s_lshl_b32 s{sOK}, s{sKh}, 14")
    a(f"s_mul_i32 s{sOV}, s{sKh}, {32*WL.VT}")
    a(f"s_lshl_b32 s{sU0}, s{sQb}, 1")
    a(f"s_and_b32 s{sT}, s{sW}, 1")
    a(f"s_add_u32 s{sU0}, s{sU0}, s{sT}")
    a(f"s_lshl_b32 s{sU0}, s{sU0}, 11")
    for i in range(0, 8, 2): a(f"v_mov_b64 {vr(Qr[0]+i,2)}, 0")
    for i in (0, 2): a(f"v_mov_b64 {vr(Vb[3][1]+i,2)}, 0")
    kv_flag_offsets(vKF)
    a(f"v_and_b32 v{vKF}, {hex(~(6 << 7) & 0xffffffff)}, v{vKF}")
    a(f"s_lshl_b32 s{sT}, s{sQb}, 1")
    a(f"v_and_b32 v{vT[2]}, 1, v{vL}")
    a(f"v_lshl_add_u32 v{vT[0]}, v{vT[0]}, 4, v{vT[2]}")
    a(f"v_add_u32 v{vT[0]}, s{sT}, v{vT[0]}")
    a(f"s_mov_b64 exec, s[{sHi}:{sHi+1}]")
    a(f"v_mov_b32 v{vT[0]}, 256")
    a("s_mov_b64 exec, -1")
    a(f"v_lshlrev_b32 v{vQF}, 7, v{vT[0]}")
    if defer:
        a(f"s_cmp_eq_u32 s{sDef}, 0")
        a(f"s_cbranch_scc1 {L('nd')}")
        if defer == 2: lds_wait("dw", 12, 4, 2)
        srd(a, sD, sWS, WL.QF, WL.G - WL.QF)
        for bb in range(2):
            for aa in range(2): astore(sD, aa, bb)
        a.label(L("nd"))
    a(f"v_mov_b32 v{vT[0]}, 1")
    a("s_waitcnt vmcnt(0)")
    a("s_mov_b64 exec, 1")
    a(f"ds_add_rtn_u32 v{vT[1]}, v{vCtl}, v{vT[0]} offset:4")
    a("s_mov_b64 exec, -1")
    a("s_waitcnt lgkmcnt(0)")
    a(f"v_readfirstlane_b32 s{sT}, v{vT[1]}")
    a("s_nop 1")
    a(f"s_cmp_lg_u32 s{sT}, 3")
    a(f"s_cbranch_scc1 {L('nsig')}")
    put_flag(f"s{sAF}")
    st.stamp("aflag")
    a.label(L("nsig"))
    for q in range(4):
        for i in range(0, 16, 2): a(f"v_mov_b64 {vr(O[q]+i,2)}, 0")
    d_addrs(cO, cSt, cR, NL)
    slot_addr(cX0, 0, 0); slot_addr(cX1, 2, 0)
    if not poll2:
        a(f"s_cmp_eq_u32 s{sW}, 0")
        a(f"s_cbranch_scc1 {L('poll')}")
        lds_wait("wa", 0, 1, 2)
        a(f"s_branch {L('go')}")
    a.label(L("poll"))
    a(f"s_mov_b32 s{sT2}, {WL.FA}")
    spin_begin("pa")
    a(f"buffer_load_dword v{vT[2]}, v{vKF}, s[{sFl}:{sFl+3}], s{sT2} offen sc1")
    a(f"buffer_load_dword v{vT[3]}, v{vQF}, s[{sFl}:{sFl+3}], s{sT2} offen sc1")
    a("s_waitcnt vmcnt(0)")
    all_nonce([vT[2], vT[3]], "pad")
    spin_end("pa", psleep)
    a.label(L("pad"))
    lds_set(0)
    a.label(L("go"))
    a("s_setprio 3")
    st.stamp("ardy")
    def ldKr(kb, koff): a(f"buffer_load_dwordx4 {vr(Kr[kb],4)}, v{vKr}, s[{sK}:{sK+3}], s{sOK} offen offset:{koff}")
    def ldKm(kb, koff): a(f"buffer_load_dwordx4 {vr(Km[kb],4)}, v{vKm}, s[{sK}:{sK+3}], s{sOK} offen offset:{koff}")
    def ldV(vb, j): a(f"buffer_load_dwordx4 {vr(Vb[vb][j],4)}, v{vVa[vb][j]}, s[{sV}:{sV+3}], s{sOV} offen")
    a(f"buffer_load_dwordx4 {vr(K0m,4)}, v{vKm}, s[{sK}:{sK+3}], 0 offen")
    for q in range(4): a(f"buffer_load_dwordx4 {vr(Qm[q],4)}, v{vKm}, s[{sQ}:{sQ+3}], s{sU0} offen offset:{512*q}")
    a(f"s_mov_b64 exec, s[{sLo}:{sLo+1}]")
    for q in (0, 2): a(f"buffer_load_dwordx4 {vr(Qr[q],4)}, v{vKr}, s[{sQ}:{sQ+3}], s{sU0} offen offset:{512*q}")
    a("s_mov_b64 exec, -1")
    a(f"buffer_load_dwordx2 {vr(K0r,2)}, v{vKr}, s[{sK}:{sK+3}], 0 offen")
    ldKr(0, 0); ldKm(0, 0)
    for kb in range(1, 4):
        ldV(kb - 1, 0); ldV(kb - 1, 1); ldKm(kb, 512 * kb)
    ldKr(2, 1024)
    lds_inc(56)
    a(f"s_add_u32 s{sT}, s{sHp}, {WL.OF}")
    srd(a, sQ, sWS, f"s{sT}", 5 * WL.PL)
    def qka(s_, k, q): a(f"v_mfma_f32_32x32x16_bf16 {vr(s_,16)}, {vr(k,4)}, {vr(Qm[q],4)}, 0")
    def qkb(s_, k, q): a(f"v_mfma_f32_32x32x8_bf16 {vr(s_,16)}, {vr(k,2)}, {vr(Qr[q],2)}, {vr(s_,16)}")
    def exp(q, i): a(f"v_exp_f32 v{S[q]+i}, v{S[q]+i}")
    def pv(o, vb, sreg):
        a(f"v_smfmac_f32_32x32x32_bf16 {vr(o,16)}, {vr(vb,4)}, {vr(sreg,8)}, v{vIdx}")
    a("s_waitcnt vmcnt(12)")
    st.stamp("qld")
    for q in range(4): qka(S[q], K0m, q)
    if si == 0:
        for q in range(4): qkb(S[q], K0r, q)
    a("s_nop 8")
    a(f"s_mov_b64 exec, s[{sHi}:{sHi+1}]")
    for q in range(4):
        a(f"v_max3_f32 v{S[q]}, v{S[q]}, v{S[q]+1}, v{S[q]+2}")
        for i in range(3, 15 if si < 2 else 9, 2):
            a(f"v_max3_f32 v{S[q]}, v{S[q]}, v{S[q]+i}, v{S[q]+i+1}")
        if si < 2: a(f"v_max_f32 v{S[q]}, v{S[q]}, v{S[q]+15}")
        a(f"v_cvt_pk_bf16_f32 v{Qr[q]}, -v{S[q]}, 0")
        if q == 0:
            a("s_mov_b64 exec, -1")
            a("s_waitcnt vmcnt(7)")
            qka(S[0], Km[0], 0)
            a(f"s_mov_b64 exec, s[{sHi}:{sHi+1}]")
        if q == 1:
            a("s_mov_b64 exec, -1")
            qkb(S[0], Kr[0], 0)
            qka(S[1], Km[0], 1)
            a(f"s_mov_b64 exec, s[{sHi}:{sHi+1}]")
    a("s_mov_b64 exec, -1")
    for i in range(8, 16, 2): a(f"v_mov_b64 {vr(S[3]+i,2)}, 0")
    a(f"s_mov_b32 s{sCnt}, 0")
    st.stamp("lbeg")
    def slot(kt, q):
        k1, q1 = (kt + (q + 1) // 4) % 4, (q + 1) % 4
        k2, q2 = (kt + (q + 2) // 4) % 4, (q + 2) % 4
        kp, qp = (kt - (q == 0)) % 4, (q - 1) % 4
        def mem():
            if noload: return
            if q < 2:
                ldV((kt - 1) % 4, q)
                if q == 1 and kt == 0: a(f"s_add_u32 s{sOV}, s{sOV}, {4*WL.VT}")
            elif q == 2: ldKm(kt, 512 * (kt + 4))
            elif kt % 2: ldKr(kt - 1, 512 * (kt + 3))
        if q == 3: a("s_waitcnt vmcnt(6)")
        qkb(S[q1], Kr[k1], q1)
        for i in range(0, 4): exp(q, i)
        pv(O[qp], Vb[kp][1], S[qp] + 8)
        if mpos == 1: mem()
        for i in range(4, 8): exp(q, i)
        qka(S[q2], Km[k2], q2)
        for i in range(8, 12): exp(q, i)
        pv(O[q], Vb[kt][0], S[q])
        if mpos == 3: mem()
        for i in range(12, 16): exp(q, i)
    def block():
        for kt in range(4):
            for q in range(4): slot(kt, q)
        a(f"s_add_u32 s{sOK}, s{sOK}, 2048")
    a.raw(".p2align 6")
    a.label(L("loop"))
    block()
    a(f"s_bitcmp1_b32 9, s{sCnt}")
    a(f"s_cbranch_scc1 {L('hook')}")
    a.label(L("hookr"))
    block()
    if stamps and "it1" in snames:
        for i_ in range(3):
            a(f"s_cmp_lg_u32 s{sCnt}, {i_}")
            a(f"s_cbranch_scc1 {L('its%d' % i_)}")
            st.stamp("it%d" % (i_ + 1))
            a.label(L("its%d" % i_))
    a(f"s_add_u32 s{sCnt}, s{sCnt}, 1")
    a(f"s_cmp_lg_u32 s{sCnt}, 4")
    a(f"s_cbranch_scc1 {L('loop')}")
    pv(O[3], Vb[3][1], S[3] + 8)
    st.stamp("lend")
    AF = [[48 + 20 * k + 4 * t for t in range(5)] for k in range(4)] + [[O[0] + 4 * t for t in range(5)]]
    EX = 144; PO = 128
    cOF = [200 + 4 * i for i in range(20 - NL)]; cAC = [24 + 4 * t for t in range(5)]
    assert cOF[-1] + 4 <= K0m
    srd(a, sD, sWS, WL.OF, 80 * WL.PL)
    a(f"s_lshl_b32 s{sT}, s{sKh}, 10")
    a(f"s_add_u32 s{sOK}, s{sU0}, s{sT}")
    a(f"s_lshl_b32 s{sT}, s{sW}, 2")
    a(f"v_add_u32 v{vT[4]}, s{sT}, v{vCtl}")
    a(f"v_mov_b32 v{vT[5]}, 1")
    a(f"s_cmp_eq_u32 s{sKh}, 0")
    a(f"s_cbranch_scc1 {L('x0')}")
    for q in range(2):
        for r in range(3): a(f"ds_write_b128 v{cX0}, {vr(O[q]+4*r,4)} offset:{3072*q+1024*r}")
    a("s_waitcnt lgkmcnt(0)")
    a(f"ds_write_b32 v{vT[4]}, v{vT[5]} offset:32")
    for q in range(2):
        for i in range(0, 12, 2): a(f"v_mov_b64 {vr(O[q]+i,2)}, {vr(O[q+2]+i,2)}")
    for i in range(0, 8, 2): a(f"v_mov_b64 {vr(Qm[0]+i,2)}, {vr(Qm[2]+i,2)}")
    for i in range(0, 4, 2): a(f"v_mov_b64 {vr(Qr[0]+i,2)}, {vr(Qr[2]+i,2)}")
    a(f"s_branch {L('x1')}")
    a.label(L("x0"))
    for q in range(2):
        for r in range(3): a(f"ds_write_b128 v{cX0}, {vr(O[q+2]+4*r,4)} offset:{3072*q+1024*r}")
    a("s_waitcnt lgkmcnt(0)")
    a(f"ds_write_b32 v{vT[4]}, v{vT[5]} offset:32")
    a.label(L("x1"))
    a(f"v_xor_b32 v{vT[4]}, 8, v{vT[4]}")
    spin_begin("wx", 8 * SPIN)
    a(f"ds_read_b32 v{vT[0]}, v{vT[4]} offset:32")
    a(f"ds_read_b32 v{vT[1]}, v{vCtl} offset:48")
    a("s_waitcnt lgkmcnt(0)")
    a(f"v_add_u32 v{vT[0]}, v{vT[0]}, v{vT[1]}")
    a("s_nop 0")
    a(f"v_readfirstlane_b32 s{sT}, v{vT[0]}")
    a("s_nop 1")
    a(f"s_cmp_eq_u32 s{sT}, 5")
    a(f"s_cbranch_scc1 {L('wxd')}")
    spin_end("wx", 0)
    a.label(L("wxd"))
    st.stamp("x1")
    for r in range(6): a(f"ds_read_b128 {vr(EX+4*r,4)}, v{cX1} offset:{1024*r}")
    a(f"v_and_b32 v{vT[5]}, 0x1f0, v{vKm}")
    a(f"s_and_b32 s{sT}, s{sHead}, 1")
    a(f"s_lshl_b32 s{sT}, s{sT}, 3")
    a(f"s_add_u32 s{sT}, s{sT}, {2*WL.PL}")
    a(f"v_add_u32 v{vT[5]}, s{sT}, v{vT[5]}")
    def bcast_l(o):
        a(f"v_mov_b32 v{o+12}, v{o+8}")
        a(f"v_mov_b32 v{o+13}, v{o+8}")
        a("s_nop 1")
        a(f"v_permlane32_swap_b32 v{o+13}, v{o+12}")
        a("s_nop 1")
    for q in range(2):
        o = O[q]
        a(f"s_waitcnt lgkmcnt({3 - 3*q})")
        for i in (8, 10, 0, 2, 4, 6): a(f"v_pk_add_f32 {vr(o+i,2)}, {vr(o+i,2)}, {vr(EX+12*q+i,2)}")
        a(f"v_mov_b32 v{o+12}, v{o+8}")
        a(f"v_mov_b32 v{o+13}, v{o+8}")
        a(f"v_pk_mul_f32 {vr(o+14,2)}, {vr(o,2)}, 0")
        a(f"v_pk_fma_f32 {vr(o+14,2)}, {vr(o+2,2)}, 0, {vr(o+14,2)}")
        a(f"v_permlane32_swap_b32 v{o+13}, v{o+12}")
        for i in range(4, 12, 2): a(f"v_pk_fma_f32 {vr(o+14,2)}, {vr(o+i,2)}, 0, {vr(o+14,2)}")
        a(f"v_add_f32 v{vM}, v{o+14}, v{o+15}")
        a(f"v_add_f32 v{vM}, v{vM}, v{o+12}")
        a(f"v_cmp_nge_f32 vcc, 0x71800000, v{vM}")
        a(f"s_mov_b32 s{sT}, 0x21800000")
        a(f"v_cmp_gt_f32 s[{sT2+1}:{sT2+2}], s{sT}, v{vM}")
        a("s_nop 1")
        a(f"s_or_b64 vcc, vcc, s[{sT2+1}:{sT2+2}]")
        a(f"s_cbranch_scc0 {L('fin%d' % q)}")
        if q == 1:
            for i in range(0, 4, 2): a(f"v_mov_b64 {vr(Qm[0]+i,2)}, {vr(Qm[1]+i,2)}")
            a(f"v_mov_b64 {vr(Qr[0],2)}, {vr(Qr[1],2)}")
        a(f"s_call_b64 s[{sRet}:{sRet+1}], {L('slow')}")
        for i in range(0, 14, 2): a(f"v_mov_b64 {vr(o+i,2)}, {vr(O[2]+i,2)}")
        a.label(L("fin%d" % q))
        a(f"v_rcp_f32 v{vM}, v{o+12}")
        if q == 0: a("s_waitcnt vmcnt(0)")
        else: a("s_nop 0")
        a(f"v_mul_f32 v{o+14}, v{vM}, v{vG1+q}")
        for i in range(0, 12, 2): a(f"v_pk_mul_f32 {vr(o+i,2)}, {vr(o+i,2)}, {vr(o+14,2)} op_sel_hi:[1,0]")
        po = PO + 8 * q
        for i in range(6): a(f"v_cvt_pk_bf16_f32 v{po+i}, v{o+2*i}, v{o+2*i+1}")
        for i in range(6): a(f"v_min_u32 v{po+i}, -2, v{po+i}")
        a(f"buffer_store_dwordx4 {vr(po,4)}, v{vKm}, s[{sQ}:{sQ+3}], s{sOK} offen offset:{512*q} sc1")
        a(f"s_mov_b64 exec, s[{sLo}:{sLo+1}]")
        a(f"buffer_store_dwordx2 {vr(po+4,2)}, v{vT[5]}, s[{sQ}:{sQ+3}], s{sOK} offen offset:{512*q} sc1")
        a("s_mov_b64 exec, -1")
    st.stamp("ost")
    if not owait:
        if hbar: a("s_barrier")
        else: lds_inc(52)
    coa = oahead
    def chk(o):
        a(f"v_max3_u32 v{vT[0]}, v{o}, v{o+1}, v{o+2}")
        a(f"v_max_u32 v{vT[0]}, v{vT[0]}, v{o+3}")
        a(f"v_cmp_eq_u32 vcc, -1, v{vT[0]}")
        a("s_nop 1")
        a("s_cmp_eq_u64 vcc, 0")
    def ldO(OF_, vo, s_):
        a(f"s_mov_b32 s{sT}, {4*WL.PL*s_}")
        a(f"buffer_load_dwordx4 {vr(OF_[s_],4)}, v{vo}, s[{sD}:{sD+3}], s{sT} offen sc1")
    def stages(tag, n, OF_, vo, AF_, nres, vr_, AC_, first0):
        oahead = hoa if tag == 'h' else coa
        for s_ in range(min(oahead, n)): ldO(OF_, vo, s_)
        srd(a, sC, 22, 0, 2048 * 1280)
        a(f"s_mov_b32 s59, {SPIN}")
        for s_ in range(n):
            a.label(L(f"{tag}st{s_}"))
            a(f"s_waitcnt vmcnt({min(n - 1 - s_, oahead - 1)})")
            chk(OF_[s_])
            a(f"s_cbranch_scc1 {L(f'{tag}ok{s_}')}")
            a(f"s_call_b64 s[{sRet}:{sRet+1}], {L(tag + 'retry')}")
            a(f"s_cbranch_scc1 {L(f'{tag}st{s_}')}")
            a.label(L(f"{tag}ok{s_}"))
            if s_ + oahead < n: ldO(OF_, vo, s_ + oahead)
            younger = min(n, s_ + nres) - 1 - s_
            a(f"s_waitcnt lgkmcnt({min(15, 10 * younger)})")
            for t in range(5):
                c = "0" if (first0 and s_ == 0) else vr(AC_[t], 4)
                a(f"v_mfma_f32_16x16x32_bf16 {vr(AC_[t],4)}, {vr(AF_[s_ % len(AF_)][t],4)}, {vr(OF_[s_],4)}, {c}")
            if s_ + nres < n: rd(AF_[(s_ + nres) % len(AF_)], vr_, 5120 * (s_ + nres))
        st.stamp("dmf")
        a("s_nop 7")
    def retry(tag, n, OF_, vo):
        a.label(L(tag + "retry"))
        a("s_waitcnt vmcnt(0)")
        a(f"s_sleep {hrs if (hearly and tag == 'h') else rsleep}")
        for s_ in range(n):
            chk(OF_[s_])
            a(f"s_cbranch_scc1 {L(f'{tag}rt{s_}')}")
            ldO(OF_, vo, s_)
            a.label(L(f"{tag}rt{s_}"))
        a("s_waitcnt vmcnt(0)")
        a("s_sub_u32 s59, s59, 1")
        a("s_cmp_gt_i32 s59, 0")
        a(f"s_setpc_b64 s[{sRet}:{sRet+1}]")
    def dfin(keep, send, AC_, AB_, wr, rdd, vst):
        for r, t in enumerate(send): a(f"ds_write_b128 v{wr}, {vr(AC_[t],4)} offset:{1024*r}")
        a("s_waitcnt lgkmcnt(0)")
        a("s_barrier")
        for r, t in enumerate(keep): a(f"ds_read_b128 {vr(AB_[t],4)}, v{rdd} offset:{1024*r}")
        for r, t in enumerate(keep):
            a(f"s_waitcnt lgkmcnt({len(keep)-1-r})")
            for i in range(4): a(f"v_add_f32 v{AC_[t]+i}, v{AC_[t]+i}, v{AB_[t]+i}")
            a(f"v_cvt_pk_bf16_f32 v{AC_[t]}, v{AC_[t]}, v{AC_[t]+1}")
            a(f"v_cvt_pk_bf16_f32 v{AC_[t]+1}, v{AC_[t]+2}, v{AC_[t]+3}")
            a(f"buffer_store_dwordx2 {vr(AC_[t],2)}, v{vst}, s[{sC}:{sC+3}], 0 offen offset:{32*t}")
    for k in range(4): rd(AF[k], cR, 5120 * k)
    for o_ in cOF:
        pass
    a(f"v_add_u32 v{cD1}, 3072, v{cX1}")
    if owait:
        if hearly: lds_inc(52)
        a("s_waitcnt vmcnt(0)")
        if not hearly: a("s_barrier")
        else: a("s_waitcnt lgkmcnt(0)")
    elif odelay: a(f"s_sleep {odelay}")
    stages("c", 20 - NL, cOF, cO, AF, 4, cR, cAC, True)
    dfin([0, 1, 2], [3, 4], cAC, AF[4 if (20 - NL) % 5 != 0 else 0], cX1, cD1, cSt)
    a(f"s_branch {L('dend')}")

    a.label(L("hook"))
    a(f"s_cmp_eq_u32 s{sCnt}, 0")
    a(f"s_cbranch_scc0 {L('hook3')}")
    st.stamp("k0a")
    lds_wait("wb", 24, 1)
    st.stamp("k0b")
    a(f"s_branch {L('hookr')}")
    a.label(L("hook3"))
    st.stamp("k3a")
    lds_wait("wg", 28, 1)
    a(f"s_mov_b32 s{sK+2}, 0")
    srd(a, sD, sWS, WL.GATE, 2048 * 8)
    a(f"v_bfe_u32 v{vT[0]}, v{vKm}, 4, 5")
    a(f"v_lshlrev_b32 v{vT[0]}, 3, v{vT[0]}")
    a(f"s_lshl_b32 s{sT}, s{sKh}, 10")
    a(f"s_add_u32 s{sT}, s{sU0}, s{sT}")
    a(f"s_lshr_b32 s{sT}, s{sT}, 1")
    for q in range(2): a(f"buffer_load_dword v{vG1+q}, v{vT[0]}, s[{sD}:{sD+3}], s{sT} offen offset:{4+256*q} sc1")
    a(f"s_branch {L('hookr')}")

    a.label(L("help"))
    hR = 10; hR2 = 11; hO = 12; hSt = 13; hD0 = 14; hD1 = 15; hG = 16; hWo = 17; hGd = 18; hWs = 19
    hAC = [20 + 4 * t for t in range(5)]
    hOF = [40 + 4 * i for i in range(NL)]
    NH = (TOP - (40 + 4 * NL)) // 20
    hAF = [[40 + 4 * NL + 20 * k + 4 * t for t in range(5)] for k in range(NH)]
    WsF = hOF[0:4]; GFl = hOF[4]; hGt = GFl + 12; hKF = GFl + 13
    sWo = sD; sM0 = 3
    a("s_setprio 3")
    coords()
    d_addrs(hO, hSt, hR, 0, hWs, hGt)
    a(f"s_cmp_lt_u32 s{sEb8}, 4")
    a(f"s_cselect_b32 s{sT}, 0, 3")
    a(f"v_xor_b32 v{vT[1]}, s{sT}, v{vT[1]}")
    a(f"v_mul_u32_u24 v{hR2}, 176, v{vT[2]}")
    a(f"v_lshl_add_u32 v{hR2}, v{vT[1]}, 3, v{hR2}")
    a(f"v_add_u32 v{hR2}, {GIMG}, v{hR2}")
    slot_addr(hD0, 2, 0)
    a(f"v_add_u32 v{hD1}, 3072, v{hD0}")
    a(f"v_mul_u32_u24 v{vT[2]}, 187, v{vL}")
    a(f"v_lshrrev_b32 v{vT[2]}, 11, v{vT[2]}")
    a(f"v_mul_u32_u24 v{vT[3]}, 11, v{vT[2]}")
    a(f"v_sub_u32 v{vT[3]}, v{vL}, v{vT[3]}")
    a(f"v_mul_u32_u24 v{hGd}, {WL.GA}, v{vT[2]}")
    a(f"v_lshrrev_b32 v{vT[2]}, 1, v{vT[3]}")
    a(f"v_lshl_add_u32 v{hGd}, v{vT[2]}, 10, v{hGd}")
    a(f"v_and_b32 v{vT[3]}, 1, v{vT[3]}")
    a(f"v_lshl_add_u32 v{hGd}, v{vT[3]}, 4, v{hGd}")
    a(f"s_sub_u32 s{sT}, 7, s{sEb8}")
    a(f"s_sub_u32 s{sT2}, 32, s{sCc}")
    a(f"s_and_b32 s{sT2}, s{sT2}, 31")
    a(f"s_cmp_lt_u32 s{sEb8}, 4")
    a(f"s_cselect_b32 s{sT}, s{sEb8}, s{sT}")
    a(f"s_cselect_b32 s{sT2}, s{sCc}, s{sT2}")
    a(f"s_mul_i32 s{sT}, s{sT}, 5120")
    a(f"s_lshl_b32 s{sT2}, s{sT2}, 5")
    a(f"s_add_u32 s{sT}, s{sT}, s{sT2}")
    a(f"v_add_u32 v{hGd}, s{sT}, v{hGd}")
    a(f"v_lshlrev_b32 v{hWo}, 4, v{vL}")
    a(f"s_call_b64 s[{sVm}:{sVm+1}], {L('p2sub')}")
    lds_wait("hb", 24, 1, 4)
    a(f"s_setprio {hp0}")
    a(f"s_cmp_eq_u32 s{sGF}, 0")
    a(f"s_cbranch_scc1 {L('hg')}")
    a(f"s_cmp_ge_u32 s{sJ}, 20")
    a(f"s_cbranch_scc1 {L('hg1')}")
    g_stores(sC)
    a.label(L("hg1"))
    a("s_waitcnt vmcnt(0)")
    put_flag(f"s{sGF}")
    a.label(L("hg"))
    lds_wait("hr", 8, 8, 4)
    st.stamp("hp2")
    for p_ in range(2):
        srd(a, sD, 6 + 2 * p_, 0, 2048 * 4096)
        a(f"buffer_load_dwordx4 {vr(WsF[2*p_],4)}, v{hWs}, s[{sD}:{sD+3}], 0 offen")
        a(f"buffer_load_dwordx4 {vr(WsF[2*p_+1],4)}, v{hWs}, s[{sD}:{sD+3}], 0 offen offset:64")
    a(f"s_mul_i32 s{sT}, s{sEb8}, 102400")
    a(f"s_add_u32 s{sT}, s{sT}, {WL.WP}")
    srd(a, sWo, sWS, f"s{sT}", 102400)
    a(f"s_and_b32 s{sM0}, s{sW}, 3")
    a(f"s_lshl_b32 s{sM0}, s{sM0}, 10")
    a.label(L("hwo"))
    a(f"s_mov_b32 m0, s{sM0}")
    a(f"s_waitcnt vmcnt({wdep})")
    a(f"buffer_load_dwordx4 v{hWo}, s[{sWo}:{sWo+3}], s{sM0} offen lds")
    if wpace: a(f"s_sleep {wpace // 4}")
    a(f"s_add_u32 s{sM0}, s{sM0}, 4096")
    a(f"s_cmp_lt_u32 s{sM0}, 102400")
    a(f"s_cbranch_scc1 {L('hwo')}")
    st.stamp("hwo")
    if pgp: a("s_setprio 3")
    a(f"s_cmp_lg_u32 s{sW}, 4")
    a(f"s_cbranch_scc1 {L('hpg')}")
    a("s_cmp_lg_u32 s2, 0")
    a(f"s_cbranch_scc1 {L('ed')}")
    a(f"v_lshlrev_b32 v{vT[0]}, 9, v{vL}")
    a(f"s_mov_b32 s{sT2}, {WL.FA}")
    spin_begin("pe")
    for i in range(4): a(f"buffer_load_dword v{vT[2]+i}, v{vT[0]}, s[{sFl}:{sFl+3}], s{sT2} offen offset:{128*i} sc1")
    a("s_waitcnt vmcnt(0)")
    all_nonce([vT[2], vT[3], vT[4], vT[5]], "ped")
    spin_end("pe")
    a.label(L("ped"))
    put_flag("0")
    a.label(L("ed"))
    spin_begin("pg")
    a(f"v_mul_u32_u24 v{vT[0]}, 48, v{vL}")
    a(f"buffer_load_dwordx4 {vr(GFl,4)}, v{vT[0]}, s[{sFl}:{sFl+3}], 0 offen offset:{WL.FG} sc1")
    a(f"buffer_load_dwordx4 {vr(GFl+4,4)}, v{vT[0]}, s[{sFl}:{sFl+3}], 0 offen offset:{WL.FG+16} sc1")
    a(f"buffer_load_dwordx2 {vr(GFl+8,2)}, v{vT[0]}, s[{sFl}:{sFl+3}], 0 offen offset:{WL.FG+32} sc1")
    a(f"v_lshlrev_b32 v{vT[0]}, 2, v{vL}")
    a(f"s_mov_b32 s{sT}, {WL.FP + 256}")
    a(f"buffer_load_dword v{GFl+10}, v{vT[0]}, s[{sFl}:{sFl+3}], s{sT} offen sc1")
    a(f"s_mov_b32 s{sT}, {WL.FA + 240*128}")
    a(f"v_and_b32 v{vT[0]}, 15, v{vL}")
    a(f"v_lshlrev_b32 v{vT[0]}, 7, v{vT[0]}")
    a(f"buffer_load_dword v{GFl+11}, v{vT[0]}, s[{sFl}:{sFl+3}], s{sT} offen sc1")
    a("s_waitcnt vmcnt(0)")
    all_nonce([GFl + i for i in range(12)], "pgd")
    spin_end("pg", 16)
    a.label(L("pgd"))
    lds_set(28)
    a.label(L("hpg"))
    lds_wait("hq", 28, 1, 4)
    srd(a, sWo, sWS, WL.GATE, 2048 * 8)
    a(f"buffer_load_dword v{hG}, v{hGt}, s[{sWo}:{sWo+3}], 0 offen sc1")
    srd(a, sWo, sWS, WL.G, WL.G_SIZE)
    a(f"s_and_b32 s{sT2}, s{sW}, 3")
    a(f"s_mul_i32 s{sM0}, s{sT2}, {4*176}")
    a(f"s_mul_i32 s{sT2}, s{sT2}, {8*WL.GA}")
    a("s_mov_b32 exec_hi, 0xfff")
    for i in range(8):
        a(f"s_add_u32 m0, s{sM0}, {GIMG + 16*176*i}")
        a(f"s_add_u32 s{sT}, s{sT2}, {(32*(i//2) + 4*(i%2))*WL.GA}")
        a(f"s_waitcnt vmcnt({wdep})")
        a(f"buffer_load_dwordx4 v{hGd}, s[{sWo}:{sWo+3}], s{sT} offen lds")
    a("s_mov_b64 exec, -1")
    a("s_waitcnt vmcnt(0)")
    lds_inc(48)
    lds_wait("hi", 48, 4, 2)
    st.stamp("him")
    if stamps: a("s_waitcnt lgkmcnt(0)")
    a(f"s_setprio {hp1}")
    def ymf(off):
        for k in range(4): rd(hAF[k], hR2, GSTEP * k + off, 176)
        for k in range(4):
            a(f"s_waitcnt lgkmcnt({min(15, 30 - 10*k)})")
            for t in range(5):
                c = "0" if k == 0 else vr(hAC[t], 4)
                a(f"v_mfma_f32_16x16x32_bf16 {vr(hAC[t],4)}, {vr(hAF[k][t],4)}, {vr(WsF[k],4)}, {c}")
        a("s_nop 7")
    a(f"s_cmp_lt_u32 s{sEb8}, 4")
    a(f"s_cbranch_scc0 {L('ymir')}")
    ymf(0)
    for t in range(5):
        for i in range(4): a(f"v_mul_f32 v{hAC[t]+i}, v{hAC[t]+i}, v{hG}")
    a(f"s_branch {L('ydone')}")
    a.label(L("ymir"))
    for i in range(8): a(f"v_xor_b32 v{WsF[2]+i}, 0x80008000, v{WsF[2]+i}")
    ymf(8)
    for t in range(5): a(f"v_mul_f32 v{hAF[4][t]}, v{hAC[4-t]}, v{hG}")
    ymf(0)
    for t in range(5):
        for i in range(1, 4): a(f"v_mul_f32 v{hAF[4][t]+i}, v{hAC[4-t]+4-i}, v{hG}")
    for t in range(5):
        for i in (0, 2): a(f"v_mov_b64 {vr(hAC[t]+i,2)}, {vr(hAF[4][t]+i,2)}")
    a.label(L("ydone"))
    for k in range(NH): rd(hAF[k], hR, 5120 * k)
    for o_ in hOF:
        for i in (0, 2):
            if hz: a(f"v_mov_b64 {vr(o_+i,2)}, 0")
    srd(a, sD, sWS, WL.OF, 80 * WL.PL)
    st.stamp("hrdy")
    if hearly:
        a("s_waitcnt lgkmcnt(0)")
    elif hbar:
        a("s_waitcnt lgkmcnt(0)")
        a("s_barrier")
    else: lds_wait("ho", 52, 4, hsl)
    a("s_setprio %d" % (0 if hearly else 3))
    if ldel and not owait: a(f"s_sleep {ldel}")
    stages("h", NL, hOF, hO, hAF, NH, hR, hAC, False)
    if hearly: lds_wait("ho", 52, 4, 1)
    dfin([3, 4], [0, 1, 2], hAC, hAF[NH - 1], hD1, hD0, hSt)
    a.label(L("dend"))
    st.finish(9)
    a.label(L("end"))
    a("s_endpgm")
    a.label(L("p2sub"))
    lds_wait("hw", 56, 4, 4)
    a(f"s_cmp_lg_u32 s{sW}, 4")
    a(f"s_cbranch_scc1 {L('hp2')}")
    coords()
    kv_flag_offsets(vT[5])
    a(f"v_lshlrev_b32 v{vT[4]}, 2, v{vL}")
    spin_begin("p2")
    a(f"s_mov_b32 s{sT2}, {WL.FA}")
    a(f"buffer_load_dword v{vT[2]}, v{vT[5]}, s[{sFl}:{sFl+3}], s{sT2} offen sc1")
    a(f"s_mov_b32 s{sT2}, {WL.FP}")
    a(f"buffer_load_dword v{vT[3]}, v{vT[4]}, s[{sFl}:{sFl+3}], s{sT2} offen sc1")
    a("s_waitcnt vmcnt(0)")
    all_nonce([vT[2], vT[3]], "p2d")
    spin_end("p2", 6)
    a.label(L("p2d"))
    lds_set(24)
    a.label(L("hp2"))
    a(f"s_setpc_b64 s[{sVm}:{sVm+1}]")
    retry("c", 20 - NL, cOF, cO)
    retry("h", NL, hOF, hO)

    a.label(L("slow"))
    sSK = sT2 + 1; sSV = sT2 + 2
    a("s_waitcnt vmcnt(0) lgkmcnt(0)")
    a(f"s_mov_b32 s{sK+2}, {81*WL.PL}")
    a(f"s_mov_b32 s{sV+2}, {64*WL.VT}")
    a(f"s_mov_b64 exec, s[{sHi}:{sHi+1}]")
    a(f"v_mov_b64 {vr(Qr[0],2)}, 0")
    a("s_mov_b64 exec, -1")
    a(f"v_mov_b32 v{vM}, 0xff800000")
    a(f"s_mov_b32 s{sSK}, 0")
    def qk_slow():
        a(f"s_bfe_u32 s{sT}, s{sSK}, 0x10009")
        a(f"s_mul_i32 s{sT}, s{sT}, 504")
        a(f"s_sub_u32 s{sT}, s{sSK}, s{sT}")
        a(f"buffer_load_dwordx2 {vr(Kr[0],2)}, v{vKr}, s[{sK}:{sK+3}], s{sT} offen")
        a(f"buffer_load_dwordx4 {vr(Km[0],4)}, v{vKm}, s[{sK}:{sK+3}], s{sSK} offen")
        a("s_waitcnt vmcnt(0)")
        qka(S[0], Km[0], 0)
        a("s_nop 11")
        qkb(S[0], Kr[0], 0)
        a("s_nop 12")
    a.label(L("s1"))
    qk_slow()
    for i in range(0, 16, 2):
        a(f"v_max3_f32 v{vM}, v{vM}, v{S[0]+i}, v{S[0]+i+1}")
    a(f"s_add_u32 s{sSK}, s{sSK}, 512")
    a(f"s_cmp_lt_u32 s{sSK}, {WL.PL}")
    a(f"s_cbranch_scc1 {L('s1')}")
    a(f"v_mov_b32 v{vT[0]}, v{vM}")
    a("s_nop 1")
    a(f"v_permlane32_swap_b32 v{vT[0]}, v{vM}")
    a("s_nop 1")
    a(f"v_max_f32 v{vM}, v{vM}, v{vT[0]}")
    a(f"v_cvt_pk_bf16_f32 v{S[0]}, 0, -v{vM}")
    a(f"v_sub_f32 v{vT[0]}, 0, v{vM}")
    a(f"v_sub_f32 v{vT[0]}, v{vT[0]}, v{S[0]}")
    a(f"v_cvt_pk_bf16_f32 v{S[0]+1}, 0, v{vT[0]}")
    a(f"v_sub_f32 v{vT[1]}, v{vT[0]}, v{S[0]+1}")
    a(f"s_mov_b64 exec, s[{sHi}:{sHi+1}]")
    a(f"v_cvt_pk_bf16_f32 v{Qr[0]}, v{S[0]}, v{S[0]+1}")
    a(f"v_cvt_pk_bf16_f32 v{Qr[0]+1}, v{vT[1]}, 0")
    a("s_mov_b64 exec, -1")
    for i in range(0, 16, 2): a(f"v_mov_b64 {vr(O[2]+i,2)}, 0")
    a(f"s_mov_b32 s{sSK}, 0")
    a(f"s_mov_b32 s{sSV}, 0")
    a.label(L("s2"))
    a(f"buffer_load_dwordx4 {vr(Vb[0][0],4)}, v{vV0}, s[{sV}:{sV+3}], s{sSV} offen")
    a(f"buffer_load_dwordx4 {vr(Vb[0][1],4)}, v{vV1}, s[{sV}:{sV+3}], s{sSV} offen")
    qk_slow()
    for i in range(16): exp(0, i)
    a("s_nop 1")
    pv(O[2], Vb[0][0], S[0])
    pv(O[2], Vb[0][1], S[0] + 8)
    a(f"s_add_u32 s{sSK}, s{sSK}, 512")
    a(f"s_add_u32 s{sSV}, s{sSV}, {WL.VT}")
    a(f"s_cmp_lt_u32 s{sSK}, {WL.PL}")
    a(f"s_cbranch_scc1 {L('s2')}")
    a("s_nop 12")
    bcast_l(O[2])
    a(f"s_setpc_b64 s[{sRet}:{sRet+1}]")
    a.label(L("cend"))
    return a.text(), kernel_desc(name, 256, 102), f"; @launch grid=(256,1,1) block=(512,1,1) lds={LDS_SIZE}"

if __name__ == "__main__":
    import sys
    from gen import build
    path = sys.argv[1]
    sn = [x[3:].split(',') for x in sys.argv if x.startswith('sn=')]
    kw = {x.split('=')[0]: eval(x.split('=')[1]) for x in sys.argv[2:] if not x.startswith('sn=')}
    hd = kw.pop('hdbg', False)
    build(path, [gen(stamps=(2 if hd else bool(sn)), snames=sn[0] if sn else (), **kw)])
```

```python
from asm import *

QSCALE = 0x3ea52b5c
NAME = "gated_mix__spectral_fnet__softmax_full_mha__prompt_kernel"
LDS_X = 131072
LDS_CTL = LDS_X + 24576
LDS_SIZE = LDS_CTL + 64
GSTEP = 32 * 176
GIMG = 20 * 5120
SPIN = 200000
STAGE = [0, 0x8000, 0x18000, 0x10000]

def gen(nox=False, nomf=False, ym6=True, wsg=True, ot=False, wt=1, hz=False, poll2=False, xq=True, hearly=False, hrs=8, hoa=4, si=0, pgp=False, owait=True, deep=False, bpos=0, gun=2, wgen=True, gprio=2, fall=0, fprio=3, hbar=True, wdep=1, hp0=0, hp1=0, hsl=4, NL=12, gdel=True, wpace=0, ldel=8, mpos=1, name=NAME, stamps=False, snames=(), rotx=(0, 2, 5, 7, 5, 7, 0, 2), rin=(5, 5), touch=False, tpos=5, gtouch=True, fsplit=5,
        prio=(4, 2, 1), psleep=4, wotouch=False, probe=None, fwait=True, nodma=False, kvsc1=False, noload=False, nowait=False, noexec=False, spread=False, rt=True, fstart=6, rprobe=False, enc=None, encw=0, oearly=False, rsleep=2, rmode=0, ypost=True, obar=False, nfirst=(0, 0), afirst=True, odelay=8, gdefer=0, pois=5, osc='', lprio=3, cprio=2, wsleep=3, ldelay=0, pplain=True, glate=False, m8=False, wsbase=0, cbperm=True, prog=True, strict=True, defer=False, dmask=6, s2late=True, noaux=False, cwarm=False, oahead=4, dsc1=False, dzero=False, dburst=False, dnt=False, dpair=False, peel=True, fcrit=True, cdelay=0, lpos=3, oflag=0, nows=False, krskip=False, dhalf=False, wpack=True, wdtouch=False, nowo=False, nog=False, pfirst=False):
    a = Asm()
    kernel_begin(a, name)
    L = lambda s: f"L_{s}"
    st = Stamps(a, stamps, 0); st.names = list(snames); st.op = 's_memrealtime' if rt else 's_memtime'
    if enc:
        class Enc:
            names = []
            def start(self): a("s_memrealtime s[70:71]"); a("s_memrealtime s[72:73]")
            def stamp(self, n):
                if n == enc: a("s_memrealtime s[72:73]"); a("s_waitcnt lgkmcnt(0)")
            def finish(self, i):
                a("s_lshl_b32 s68, s2, 3"); a("s_add_u32 s68, s68, s52")
                a(f"s_cmp_lg_u32 s68, {136*8+encw}")
                a("s_cbranch_scc1 L_encd")
                a("s_memrealtime s[74:75]"); a("s_waitcnt lgkmcnt(0)")
                a("s_sub_u32 s72, s72, s70"); a("s_lshl_b32 s72, s72, 2"); a("s_add_u32 s72, s72, s74")
                a.label("L_encl")
                a("s_memrealtime s[74:75]"); a("s_waitcnt lgkmcnt(0)")
                a("s_sub_u32 s68, s74, s72"); a("s_cmp_lt_i32 s68, 0")
                a("s_cbranch_scc1 L_encl")
                a.label("L_encd")
        st = Enc()
    sWS = 26
    sA = 28; sB = 32; sC = 36; sD = 40; sFl = 44; sE = 48
    sW = 52; sXc = 53; sJ = 54; sNonce = 55; sT = 56; sT2 = 57; sCnt = 58
    sLo = 60; sVm = 62; sHi = 94; sDm = 96
    sGF = 25
    sAF = 24
    vL = 1; vT = [2, 3, 4, 5, 6, 7]; vCtl = 8
    VB = 10
    TOP = 252 if stamps else 256

    def spin_begin(lab, n=SPIN):
        a(f"s_mov_b32 s59, {n}")
        a.label(L(lab))
    def spin_end(lab, sleep=2):
        a(f"s_sleep {sleep}")
        a("s_sub_u32 s59, s59, 1")
        a("s_cmp_lg_u32 s59, 0")
        a(f"s_cbranch_scc1 {L(lab)}")
    def put_flag(soff):
        a(f"v_mov_b32 v{vT[0]}, 0")
        a(f"v_mov_b32 v{vT[1]}, s{sNonce}")
        a("s_mov_b64 exec, 1")
        a(f"buffer_store_dword v{vT[1]}, v{vT[0]}, s[{sFl}:{sFl+3}], {soff} offen sc1")
        a("s_mov_b64 exec, -1")
    def lds_inc(off):
        a(f"v_mov_b32 v{vT[0]}, 1")
        a("s_mov_b64 exec, 1")
        a(f"ds_add_u32 v{vCtl}, v{vT[0]} offset:{off}")
        a("s_mov_b64 exec, -1")
    def lds_wait(lab, off, val, sl=1):
        spin_begin(lab, 8 * SPIN)
        a(f"ds_read_b32 v{vT[0]}, v{vCtl} offset:{off}")
        a("s_waitcnt lgkmcnt(0)")
        a(f"v_readfirstlane_b32 s{sT}, v{vT[0]}")
        a("s_nop 1")
        a(f"s_cmp_eq_u32 s{sT}, {val}")
        a(f"s_cbranch_scc1 {L(lab+'d')}")
        spin_end(lab, sl)
        a.label(L(lab + "d"))
    def sel_srd(d, cond_s, p0, p1, size):
        a(f"s_cmp_eq_u32 s{cond_s}, 0")
        a(f"s_cselect_b32 s{d}, s{p0}, s{p1}")
        a(f"s_cselect_b32 s{d+1}, s{p0+1}, s{p1+1}")
        a(f"s_and_b32 s{d+1}, s{d+1}, 0xffff")
        a(f"s_mov_b32 s{d+2}, {size}")
        a(f"s_mov_b32 s{d+3}, 0x20000")
    def after_kernarg():
        a("s_waitcnt lgkmcnt(0)")
        st.stamp("karg")
        if wsbase:
            a(f"s_add_u32 s{sWS}, s{sWS}, {hex(wsbase << 20)}")
            a(f"s_addc_u32 s{sWS+1}, s{sWS+1}, 0")
        a(f"s_load_dword s{sNonce}, s[{sWS}:{sWS+1}], {WL.EPOCH}")
        srd(a, sA, 4, 0, 2048 * 1280)
    def masks():
        a("v_mov_b32 v9, 0")
        for i in range(4): a(f"v_mov_b32 v{TOP-36+i}, 0")
        a(f"s_mov_b32 s{sGF}, 0"); a(f"s_mov_b32 s{sAF}, 0"); a("s_mov_b32 s15, 0")
        srd(a, sFl, sWS, WL.FLAG, WL.FLAG_SIZE)
        a(f"v_mov_b32 v{vCtl}, {LDS_CTL}")
        a(f"s_mov_b32 s{sLo}, -1"); a(f"s_mov_b32 s{sLo+1}, 0")
        a(f"s_mov_b32 s{sHi}, 0"); a(f"s_mov_b32 s{sHi+1}, -1")
        a(f"s_mov_b32 s{sVm}, 0xfffff"); a(f"s_mov_b32 s{sVm+1}, 0xfffff")
        a(f"s_mov_b32 s{sDm}, -1"); a(f"s_mov_b32 s{sDm+1}, 0xff")
    def nat_read_addrs(dst, stile, shift):
        a(f"v_and_b32 v{vT[0]}, 31, v{vL}")
        a(f"v_lshrrev_b32 v{vT[1]}, 5, v{vL}")
        a(f"v_bfe_u32 v{vT[2]}, v{vL}, 1, 3")
        a(f"v_xor_b32 v{vT[1]}, v{vT[1]}, v{vT[2]}")
        a(f"v_lshlrev_b32 v{vT[1]}, 4, v{vT[1]}")
        a(f"v_lshl_add_u32 v{vT[0]}, v{vT[0]}, 7, v{vT[1]}")
        a(f"s_lshl_b32 s{sT}, s{stile}, {shift}")
        a(f"v_add_u32 v{dst[0]}, s{sT}, v{vT[0]}")
        for ks in range(1, 4):
            a(f"v_xor_b32 v{dst[ks]}, {32*ks}, v{dst[0]}")

    a("s_cmp_ge_u32 s2, 256")
    a(f"s_cbranch_scc1 {L('end')}")
    st.start()
    if probe:
        a("s_memrealtime s[70:71]")
        a("s_load_dwordx2 s[64:65], s[0:1], 80")
        a("s_waitcnt lgkmcnt(0)")
        a("s_and_b32 s65, s65, 0xffff"); a("s_mov_b32 s66, 256"); a("s_mov_b32 s67, 0x20000")
        a("s_getreg_b32 s68, hwreg(HW_REG_XCC_ID)")
        a("s_xor_b32 s68, s68, s2"); a("s_and_b32 s68, s68, 7")
        a("s_cbranch_scc0 L_pok")
        a("v_mov_b32 v2, 1")
        a("s_mov_b64 exec, 1")
        a("buffer_store_dword v2, off, s[64:67], 0 sc1")
        a("s_mov_b64 exec, -1")
        a.label("L_pok")
    if rprobe:
        a("s_load_dwordx2 s[64:65], s[0:1], 80")
        a("s_waitcnt lgkmcnt(0)")
        a("s_and_b32 s65, s65, 0xffff"); a("s_mov_b32 s66, 256"); a("s_mov_b32 s67, 0x20000")
        a("s_getreg_b32 s68, hwreg(HW_REG_XCC_ID)")
        a("s_sub_u32 s68, s68, s2"); a("s_and_b32 s68, s68, 7")
        a("s_lshl_b32 s68, s68, 2")
        a("v_cmp_eq_u32 vcc, 0, v0")
        a("v_mov_b32 v2, 1")
        a("s_and_saveexec_b64 s[70:71], vcc")
        a("s_cbranch_execz L_rp0")
        a("buffer_store_dword v2, off, s[64:67], s68 sc1")
        a.label("L_rp0")
        a("s_mov_b64 exec, -1")
    a("s_load_dwordx16 s[4:19], s[0:1], 0")
    a("s_load_dwordx8 s[20:27], s[0:1], 64")
    a(f"v_lshrrev_b32 v{vT[0]}, 6, v0")
    a(f"v_and_b32 v{vL}, 63, v0")
    a(f"v_readfirstlane_b32 s{sW}, v{vT[0]}")
    a(f"s_and_b32 s{sXc}, s2, 7")
    a(f"s_lshr_b32 s{sJ}, s2, 3")
    a(f"s_xor_b32 s{sW}, s{sW}, 4")
    sRb = 98; sCb = 99; sWm = 100; sWn = 101; sWl = 3
    a(f"s_and_b32 s{sRb}, s2, 3")
    a(f"s_lshl_b32 s{sRb}, s{sRb}, 2")
    a(f"s_and_b32 s{sT}, s{sJ}, 3")
    a(f"s_add_u32 s{sRb}, s{sRb}, s{sT}")
    a(f"s_lshr_b32 s{sT}, s{sXc}, 2")
    a(f"s_lshr_b32 s{sCb}, s{sJ}, 2")
    a(f"s_cmp_eq_u32 s{sCb}, 7")
    a(f"s_cselect_b32 s{sT2}, 1, 3")
    a(f"s_lshl_b32 s{sT}, s{sT}, s{sT2}")
    a(f"s_cmp_eq_u32 s{sCb}, 7")
    a(f"s_cselect_b32 s{sT2}, s{sT}, 0")
    a(f"s_cselect_b32 s{sT}, 0, s{sT}")
    a(f"s_add_u32 s{sRb}, s{sRb}, s{sT2}")
    a(f"s_add_u32 s{sCb}, s{sCb}, s{sT}")
    if cbperm:
        tab = [5, 6, 7, 10, 11, 0, 1, 2, 8, 9, 12, 13, 14, 3, 4, 0]
        tv = sum(c << (4 * i) for i, c in enumerate(tab))
        a(f"s_mov_b32 s{sT}, {hex(tv & 0xffffffff)}")
        a(f"s_mov_b32 s{sT2}, {hex(tv >> 32)}")
        a(f"s_lshl_b32 s{sCb}, s{sCb}, 2")
        a(f"s_lshr_b64 s[{sT}:{sT2}], s[{sT}:{sT2}], s{sCb}")
        a(f"s_and_b32 s{sCb}, s{sT}, 15")
    a(f"s_and_b32 s{sWl}, s{sW}, 3")
    a(f"s_and_b32 s{sWm}, s{sW}, 1")
    a(f"s_lshr_b32 s{sWn}, s{sWl}, 1")
    a(f"s_cmp_lt_u32 s{sW}, 4")
    a(f"s_cbranch_scc1 {L('comp')}")

    V = Alloc(VB, TOP)
    vRX = [V.get() for _ in range(4)]
    vFW = [V.get() for _ in range(2)]; vFs = V.get(); V.get(); vGs = 9
    V.get(2)
    XR = [[V.get(4, 4) for _ in range(4)] for _ in range(10)]
    FR = V.get(8, 4); FIn = V.get(8, 4)
    ZA = V.get(16, 4); ZB = V.get(16, 4)
    BF = [[V.get(4, 4) for _ in range(2)] for _ in range(3)]
    vDX = [BF[0][0] + i for i in range(4)]; vDW = [BF[0][1] + i for i in range(4)]
    sOX = sD; sOW = sD + 1; sM0 = sD + 2; sBeta = sD + 3; sSp = sE
    if lprio: a(f"s_setprio {lprio}")
    a(f"v_and_b32 v{vT[3]}, 7, v{vL}")
    a(f"v_lshrrev_b32 v{vT[4]}, 4, v{vL}")
    a(f"v_xor_b32 v{vT[3]}, v{vT[3]}, v{vT[4]}")
    a(f"v_lshlrev_b32 v{vT[3]}, 4, v{vT[3]}")
    a(f"v_xor_b32 v{vT[4]}, 64, v{vT[3]}")
    a(f"v_bfe_u32 v{vT[5]}, v{vL}, 3, 2")
    a(f"v_lshrrev_b32 v{vT[1]}, 5, v{vL}")
    a(f"v_lshl_add_u32 v{vT[5]}, v{vT[1]}, 3, v{vT[5]}")
    a(f"s_lshl_b32 s{sT}, s{sRb}, 1")
    a(f"s_add_u32 s{sT}, s{sT}, s{sWn}")
    a(f"s_lshl_b32 s{sT2}, s{sWm}, 5")
    a(f"s_add_u32 s{sCnt}, s{sT}, s{sT2}")
    a(f"v_lshl_add_u32 v{vT[1]}, v{vT[5]}, 6, s{sCnt}")
    a(f"v_mul_u32_u24 v{vT[1]}, 1280, v{vT[1]}")
    a(f"v_add_u32 v{vDX[0]}, v{vT[1]}, v{vT[3]}")
    a(f"v_add_u32 v{vDX[1]}, v{vT[1]}, v{vT[4]}")
    a(f"v_add_u32 v{vDX[1]}, {4*64*1280-1024}, v{vDX[1]}")
    a(f"v_add_u32 v{vDX[2]}, {16*64*1280-2048}, v{vDX[0]}")
    a(f"v_add_u32 v{vDX[3]}, {16*64*1280-2048}, v{vDX[1]}")
    a(f"v_lshrrev_b32 v{vT[0]}, 4, v{vL}")
    a(f"v_bfe_u32 v{vT[1]}, v{vL}, 2, 2")
    a(f"v_xor_b32 v{vT[1]}, v{vT[1]}, v{vT[0]}")
    a(f"v_and_b32 v{vT[2]}, 3, v{vL}")
    a(f"v_lshl_add_u32 v{vT[1]}, v{vT[1]}, 2, v{vT[2]}")
    a(f"v_lshlrev_b32 v{vT[1]}, 4, v{vT[1]}")
    a(f"s_lshl_b32 s{sT}, s{sWl}, 4")
    a(f"v_add_u32 v{vT[0]}, s{sT}, v{vT[0]}")
    a(f"v_mul_u32_u24 v{vT[0]}, 3840, v{vT[0]}")
    a(f"s_lshl_b32 s{sT}, s{sCb}, 8")
    a(f"v_add3_u32 v{vDW[0]}, v{vT[0]}, v{vT[1]}, s{sT}")
    for j in range(1, 4):
        a(f"v_add_u32 v{vDW[j]}, {j*(4*3840-1024)}, v{vDW[0]}")
    rw = 0
    for i, r in enumerate(rotx): rw |= r << (4 * i)
    a(f"s_lshl_b32 s{sT}, s{sXc}, 2")
    a(f"s_lshr_b32 s{sOX}, {hex(rw)}, s{sT}")
    a(f"s_and_b32 s{sOX}, s{sOX}, 15")
    if rin != (0, 0):
        a(f"s_and_b32 s{sT}, s{sJ}, 3")
        a(f"s_mul_i32 s{sT}, s{sT}, {rin[0]}")
        a(f"s_add_u32 s{sOX}, s{sOX}, s{sT}")
        a(f"s_lshr_b32 s{sT}, s{sJ}, 2")
        a(f"s_mul_i32 s{sT}, s{sT}, {rin[1]}")
        a(f"s_add_u32 s{sOX}, s{sOX}, s{sT}")
        a(f"s_mul_i32 s{sT}, s{sOX}, 205")
        a(f"s_lshr_b32 s{sT}, s{sT}, 11")
        a(f"s_mul_i32 s{sT}, s{sT}, 10")
        a(f"s_sub_u32 s{sOX}, s{sOX}, s{sT}")
    a(f"s_mul_i32 s{sOW}, s{sOX}, {64*3840}")
    a(f"s_lshl_b32 s{sOX}, s{sOX}, 7")
    a(f"s_lshl_b32 s{sM0}, s{sWl}, 12")
    after_kernarg()
    a(f"s_cmp_ge_u32 s{sJ}, 30")
    a(f"s_cbranch_scc1 {L('lgate')}")
    srd(a, sB, 16, 0, 640 * 3840)
    def issue(n):
        a(f"s_add_u32 m0, s{sM0}, {STAGE[n%4]}")
        a("s_nop 0")
        for j in range(4): a(f"buffer_load_dwordx4 v{vDX[j]}, s[{sA}:{sA+3}], s{sOX} offen offset:{1024*j} lds")
        a(f"s_add_u32 m0, s{sM0}, {STAGE[n%4]+0x4000}")
        a(f"s_add_u32 s{sOX}, s{sOX}, 128")
        for j in range(4): a(f"buffer_load_dwordx4 v{vDW[j]}, s[{sB}:{sB+3}], s{sOW} offen offset:{1024*j} lds")
        a(f"s_add_u32 s{sOW}, s{sOW}, {64*3840}")
        a(f"s_cmp_eq_u32 s{sOX}, 1280")
        a(f"s_cselect_b32 s{sOX}, 0, s{sOX}")
        a(f"s_cselect_b32 s{sOW}, 0, s{sOW}")
    issue(0); issue(1)
    masks()
    a(f"s_lshr_b32 s{sBeta}, s{sXc}, 2")
    a(f"s_mul_i32 s{sBeta}, s{sBeta}, 5")
    a(f"s_lshr_b32 s{sT}, s{sJ}, 2")
    a(f"s_add_u32 s{sBeta}, s{sBeta}, s{sT}")
    a(f"s_lshl_b32 s{sT}, s{sBeta}, 1")
    a(f"s_add_u32 s{sT}, s{sT}, s{sWm}")
    a(f"s_lshl_b32 s{sT}, s{sT}, 4")
    a(f"v_add_u32 v{vT[5]}, s{sT}, v{vT[5]}")
    a(f"v_mul_u32_u24 v{vT[5]}, 1280, v{vT[5]}")
    a(f"v_add_u32 v{vFW[0]}, v{vT[5]}, v{vT[3]}")
    a(f"v_add_u32 v{vFW[1]}, v{vT[5]}, v{vT[4]}")
    a(f"v_add_u32 v{vFW[1]}, {4*1280-1024}, v{vFW[1]}")
    a(f"v_add_u32 v{vFs}, {320*1280}, v{vT[3]}")
    a(f"v_and_b32 v{vT[0]}, 31, v{vL}")
    a(f"v_lshrrev_b32 v{vT[1]}, 5, v{vL}")
    a(f"v_lshlrev_b32 v{vGs}, 5, v{vT[0]}")
    a(f"v_lshl_add_u32 v{vGs}, v{vT[1]}, 4, v{vGs}")
    a(f"s_mul_i32 s{sT}, s{sCnt}, {WL.GA}")
    a(f"s_lshl_b32 s{sT2}, s{sBeta}, 11")
    a(f"s_add_u32 s{sT}, s{sT}, s{sT2}")
    a(f"v_add_u32 v{vGs}, s{sT}, v{vGs}")
    a(f"s_mul_i32 s{sCnt}, s{sCnt}, 48")
    a(f"s_lshl_b32 s{sT2}, s{sBeta}, 2")
    a(f"s_add_u32 s{sCnt}, s{sCnt}, s{sT2}")
    a(f"s_add_u32 s{sCnt}, s{sCnt}, {WL.FG}")
    nat_read_addrs(vRX, sWl, 12)
    if xq:
        a(f"s_sub_u32 s{sT}, s{sCb}, 1")
        a(f"s_cmp_lt_u32 s{sT}, {40 if nox else 4}")
        a("s_cselect_b64 vcc, -1, 0")
    for n in range(10):
        a(f"s_waitcnt vmcnt({8 if n < 9 else 0}) lgkmcnt(0)")
        a("s_barrier")
        if xq: a(f"s_cbranch_vccnz {L('nx%d' % n)}")
        for ks in range(4):
            a(f"ds_read_b128 {vr(XR[n][ks],4)}, v{vRX[ks]} offset:{STAGE[n%4] & 0xffff}")
        if xq: a.label(L('nx%d' % n))
        if n + 2 < 10: issue(n + 2)
        if n < 9 and (STAGE[n % 4] ^ STAGE[(n + 1) % 4]) & 0x10000:
            for ks in range(4): a(f"v_xor_b32 v{vRX[ks]}, 0x10000, v{vRX[ks]}")
    st.stamp("ldone")
    a(f"s_add_u32 s{sNonce}, s{sNonce}, 1")
    a(f"s_cmp_ge_u32 s{sJ}, 20")
    a(f"s_cbranch_scc1 {L('lq')}")
    if not wgen:
        a("s_setprio 3")
        a(f"s_mov_b32 s{sGF}, s{sCnt}")
        sel_srd(sB, sWn, 10, 12, 640 * 1280)
        srd(a, sC, 10, 0, 640 * 1280)
        a(f"s_lshl_b32 s{sM0}, s{sWl}, 11")
        a(f"s_lshl_b32 s{sT}, s{sBeta}, 2")
        a(f"s_add_u32 s{sT}, s{sT}, s{sWl}")
        a(f"s_cmp_eq_u32 s{sT}, 2")
        a(f"s_cselect_b32 s{sSp}, 0xffffff00, -1")
        a(f"s_cselect_b64 vcc, -1, 0")
        a(f"s_mov_b32 s{sSp+1}, -1")
        WDB = lambda p: (0x10000 + 8192 * p) if p < 8 else 8192 * (p - 8)
        def wdma(p):
            a(f"s_add_u32 m0, s{sM0}, {WDB(p)}")
            a(f"s_mov_b64 exec, s[{sSp}:{sSp+1}]")
            a(f"buffer_load_dwordx4 v{vFW[0]}, s[{sB}:{sB+3}], s{sOX} offen lds")
            a(f"s_cbranch_vccz {L('fs%d' % p)}")
            a("s_mov_b64 exec, 0xff")
            a(f"buffer_load_dwordx4 v{vFs}, s[{sC}:{sC+3}], s{sOX} offen lds")
            a.label(L("fs%d" % p))
            a("s_mov_b64 exec, -1")
            a(f"buffer_load_dwordx4 v{vFW[1]}, s[{sB}:{sB+3}], s{sOX} offen offset:1024 lds")
            a(f"s_add_u32 s{sOX}, s{sOX}, 128")
            a(f"s_cmp_eq_u32 s{sOX}, 1280")
            a(f"s_cselect_b32 s{sOX}, 0, s{sOX}")
        def twl():
            srd(a, sB, 6, 0, 2048 * 4096)
            srd(a, sC, 8, 0, 2048 * 4096)
            a(f"buffer_load_dwordx4 {vr(FR,4)}, v{vT[2]}, s[{sB}:{sB+3}], 0 offen")
            a(f"buffer_load_dwordx4 {vr(FR+4,4)}, v{vT[2]}, s[{sB}:{sB+3}], 0 offen offset:32")
            a(f"buffer_load_dwordx4 {vr(FIn,4)}, v{vT[2]}, s[{sC}:{sC+3}], 0 offen")
            a(f"buffer_load_dwordx4 {vr(FIn+4,4)}, v{vT[2]}, s[{sC}:{sC+3}], 0 offen offset:32")
        if fcrit:
            if not fall:
                a(f"s_and_b32 s{sT}, s{sRb}, 6")
                a(f"s_cbranch_scc1 {L('f0d')}")
            if fall == 2: lds_wait("f0", 4, 4, 2)
            elif fall == 3:
                a(f"s_call_b64 s[{sVm}:{sVm+1}], {L('p2sub')}")
                a(f"s_lshl_b32 s{sT}, s{sBeta}, 2")
                a(f"s_add_u32 s{sT}, s{sT}, s{sWl}")
                a(f"s_cmp_eq_u32 s{sT}, 2")
                a(f"s_cselect_b64 vcc, -1, 0")
                a(f"s_setprio {fprio}")
            else: lds_wait("f0", 20, 4)
        for p in range(10 if fcrit else fsplit): wdma(p)
        a(f"v_and_b32 v{vT[2]}, 31, v{vL}")
        a(f"v_lshrrev_b32 v{vT[1]}, 5, v{vL}")
        a(f"v_lshlrev_b32 v{vT[2]}, 18, v{vT[2]}")
        a(f"v_lshl_add_u32 v{vT[2]}, v{vT[1]}, 4, v{vT[2]}")
        a(f"s_lshl_b32 s{sT}, s{sWl}, 12")
        a(f"s_sub_u32 s{sT}, 0x10000, s{sT}")
        for ks in range(4): a(f"v_add_u32 v{vRX[ks]}, s{sT}, v{vRX[ks]}")
        assert not STAGE[9 % 4] & 0x10000
        if fcrit: twl()
        a("s_waitcnt vmcnt(%d)" % (4 + 2 * (10 - fsplit) if fcrit else 0))
        lds_inc(12)
        lds_wait("f1", 12, 4)
        st.stamp("fb0")
        if stamps: a("s_waitcnt lgkmcnt(0)")
        def rdB(s):
            p, ks = divmod(s, 4)
            if s == 32:
                for k in range(4): a(f"v_xor_b32 v{vRX[k]}, 0x10000, v{vRX[k]}")
            for part in range(2):
                a(f"ds_read_b128 {vr(BF[s%3][part],4)}, v{vRX[ks]} offset:{(WDB(p) & 0xffff) + 4096*part}")
        rdB(0); rdB(1)
        H = 4 * fsplit
        for s in range(40):
            if not fcrit:
                if s == fstart and fwait: lds_wait("f0", 20, 4)
                if fstart <= s < fstart + 10 - fsplit: wdma(fsplit + s - fstart)
                if s == fstart + 10 - fsplit: twl()
            if s == H - 2:
                a("s_waitcnt vmcnt(4)")
                lds_inc(16)
                lds_wait("f2", 16, 4)
                st.stamp("fb1")
                if stamps: a("s_waitcnt lgkmcnt(0)")
            if s + 2 < 40: rdB(s + 2)
            a(f"s_waitcnt lgkmcnt({4 if s < 38 else 2*(39-s)})")
            for part, Z in enumerate((ZA, ZB)):
                c = "0" if s == 0 else vr(Z, 16)
                a(f"v_mfma_f32_32x32x16_bf16 {vr(Z,16)}, {vr(XR[s//4][s%4],4)}, {vr(BF[s%3][part],4)}, {c}")
        assert fstart + 10 - fsplit < H - 2
    if wgen:
        a(f"s_setprio {gprio}")
        a(f"s_mov_b32 s{sGF}, s{sCnt}")
        WDB = lambda p: 0x10000 + 8192 * p
        vE_ = vFW[0]; vF_ = vFW[1]; vD_ = vFs; vA_ = vRX[0]; vB_ = vRX[1]
        a(f"v_and_b32 v{vT[0]}, 31, v{vL}")
        a(f"v_and_b32 v{vE_}, 0x13, v{vT[0]}")
        a(f"v_bfe_u32 v{vT[1]}, v{vT[0]}, 2, 1")
        a(f"v_lshl_add_u32 v{vE_}, v{vT[1]}, 3, v{vE_}")
        a(f"v_bfe_u32 v{vT[1]}, v{vT[0]}, 3, 1")
        a(f"v_lshl_add_u32 v{vE_}, v{vT[1]}, 2, v{vE_}")
        a(f"s_lshl_b32 s{sT}, s{sBeta}, 5")
        a(f"v_add_u32 v{vE_}, s{sT}, v{vE_}")
        a(f"v_cvt_f32_u32 v{vF_}, v{vE_}")
        a(f"v_mul_f32 v{vF_}, 0x3acccccd, v{vF_}")
        a(f"v_lshrrev_b32 v{vD_}, 5, v{vL}")
        a(f"s_lshl_b32 s{sT}, s{sWl}, 4")
        a(f"v_lshl_add_u32 v{vD_}, v{vD_}, 3, s{sT}")
        a(f"s_lshl_b32 s{sT}, s{sWl}, 11")
        a(f"s_add_u32 s{sT}, s{sT}, 0x10000")
        a(f"v_lshlrev_b32 v{vB_}, 4, v{vL}")
        a(f"v_add_u32 v{vA_}, s{sT}, v{vB_}")
        a(f"s_cmp_eq_u32 s{sBeta}, 0")
        a(f"s_cselect_b32 s{sSp}, 1, 0")
        a(f"s_mov_b32 s{sSp+1}, s{sSp}")
        a(f"s_mov_b32 s{sOW}, 0")
        vK_ = vRX[2]
        assert vK_ % 2 == 0
        def kappa():
            a(f"v_cos_f32 v{vK_}, v{vF_}")
            a("s_nop 0")
            a(f"v_add_f32 v{vK_}, v{vK_}, v{vK_}")
            a(f"v_mov_b32 v{vK_+1}, v{vK_}")
        def inter(f, g):
            keep = a.lines
            a.lines = []; f(); l1 = a.lines
            a.lines = []; g(); l2 = a.lines
            a.lines = keep
            for x_, y_ in zip(l1, l2): a.lines += [x_, y_]
        def trig1(Z, step, vK_=vK_):
            a(f"v_fract_f32 v{Z}, v{Z}")
            a(f"v_add_f32 v{Z+2}, v{Z}, v{step}")
            a(f"v_sin_f32 v{Z+1}, -v{Z}")
            a(f"v_cos_f32 v{Z}, v{Z}")
            a(f"v_sin_f32 v{Z+3}, -v{Z+2}")
            a(f"v_cos_f32 v{Z+2}, v{Z+2}")
            for i in range(2, 8):
                a(f"v_pk_fma_f32 {vr(Z+2*i,2)}, {vr(Z+2*i-2,2)}, {vr(vK_,2)}, {vr(Z+2*i-4,2)} neg_lo:[0,0,1] neg_hi:[0,0,1]")
        def trig2(Z, dc, ds_):
            for i in range(4): a(f"v_cvt_pk_bf16_f32 v{dc+i}, v{Z+4*i}, v{Z+4*i+2}")
            for i in range(4): a(f"v_cvt_pk_bf16_f32 v{ds_+i}, v{Z+4*i+1}, v{Z+4*i+3}")
        def seed(Z, add):
            a(f"v_add3_u32 v{Z}, s{sT}, v{vD_}, {add}")
            a(f"v_mul_u32_u24 v{Z}, v{Z}, v{vE_}")
            a(f"v_cvt_f32_u32 v{Z}, v{Z}")
            a(f"v_mul_f32 v{Z}, 0x3acccccd, v{Z}")
            trig1(Z, vF_)
        kappa()
        GO = BF[0][0]
        a(f"s_lshr_b32 s{sT}, s{sOX}, 1")
        a.label(L("wgl"))
        inter(lambda: seed(ZA, 0), lambda: seed(ZB, 64))
        a("s_waitcnt lgkmcnt(0)")
        for h_, Z in enumerate((ZA, ZB)):
            trig2(Z, GO + 8 * h_, GO + 8 * h_ + 4)
            a(f"s_mov_b64 exec, s[{sSp}:{sSp+1}]")
            for i in range(4): a(f"v_mov_b32 v{GO+8*h_+4+i}, 0xbf803f80")
            a("s_mov_b64 exec, -1")
            a(f"ds_write_b128 v{vA_}, {vr(GO+8*h_,4)} offset:{8192*h_}")
            a(f"ds_write_b128 v{vA_}, {vr(GO+8*h_+4,4)} offset:{8192*h_+1024}")
        a(f"v_add_u32 v{vA_}, 16384, v{vA_}")
        a(f"s_add_u32 s{sT}, s{sT}, 128")
        a(f"s_cmp_ge_u32 s{sT}, 640")
        a(f"s_cselect_b32 s{sT2}, 640, 0")
        a(f"s_sub_u32 s{sT}, s{sT}, s{sT2}")
        a(f"s_add_u32 s{sOW}, s{sOW}, 1")
        a(f"s_cmp_lg_u32 s{sOW}, 5")
        a(f"s_cbranch_scc1 {L('wgl')}")
        a("s_waitcnt lgkmcnt(0)")
        lds_inc(12)
        a(f"v_and_b32 v{vT[2]}, 31, v{vL}")
        a(f"v_cvt_f32_u32 v{vF_}, v{vT[2]}")
        a(f"v_mul_f32 v{vF_}, 0x3d000000, v{vF_}")
        a(f"v_and_b32 v{vD_}, 8, v{vD_}")
        kappa()
        def tw(Z, j):
            a(f"v_add_u32 v{Z}, {16*j}, v{vD_}")
            a(f"v_cvt_f32_u32 v{Z}, v{Z}")
            a(f"v_mul_f32 v{Z}, v{Z}, v{vF_}")
            trig1(Z, vF_)
            trig2(Z, FR + 4 * j, FIn + 4 * j)
        inter(lambda: tw(ZA, 0), lambda: tw(ZB, 1))
        a(f"v_add_u32 v{vA_}, 0x10000, v{vB_}")
        a(f"v_add_u32 v{vB_}, 0x20000, v{vB_}")
        a("s_setprio 3")
        lds_wait("f1", 12, 4)
        st.stamp("fb0")
        if stamps: a("s_waitcnt lgkmcnt(0)")
        def rdB(s):
            p, ks = divmod(s, 4)
            for part in range(2):
                a(f"ds_read_b128 {vr(BF[s%3][part],4)}, v{vA_ if p < 8 else vB_} offset:{(WDB(p) & 0xffff) + 2048*ks + 1024*part}")
        rdB(0); rdB(1)
        for s in range(40):
            if s + 2 < 40: rdB(s + 2)
            a(f"s_waitcnt lgkmcnt({4 if s < 38 else 2*(39-s)})")
            for part, Z in enumerate((ZA, ZB)):
                c = "0" if s == 0 else vr(Z, 16)
                a(f"v_mfma_f32_32x32x16_bf16 {vr(Z,16)}, {vr(XR[s//4][s%4],4)}, {vr(BF[s%3][part],4)}, {c}")
    lds_inc(8)
    st.stamp("fend")
    FRn = XR[0][0]; G0 = XR[1][0]; G1 = XR[2][0]; G2 = XR[3][0]; G3 = XR[4][0]; ZS = XR[5][0]
    a("s_waitcnt vmcnt(0)")
    for i in range(8):
        a(f"v_xor_b32 v{FRn+i}, 0x80008000, v{FR+i}")
        a(f"v_xor_b32 v{FIn+i}, 0x80008000, v{FIn+i}")
    for Z in (ZA, ZB):
        for i in range(8): a(f"v_cvt_pk_bf16_f32 v{Z+i}, v{Z+2*i}, v{Z+2*i+1}")
    m = lambda d, A, B, c: a(f"v_mfma_f32_32x32x16_bf16 {vr(d,16)}, {vr(A,4)}, {vr(B,4)}, {c}")
    GP = TOP - 24
    a("s_nop 0")
    a(f"s_cmp_lg_u32 s{sBeta}, 0")
    a(f"s_cbranch_scc1 {L('fn')}")
    m(G2, ZB, FR, "0"); m(G2, ZB+4, FR+4, vr(G2,16))
    m(G3, ZB, FIn, "0"); m(G3, ZB+4, FIn+4, vr(G3,16))
    a("s_mov_b32 exec_lo, 1"); a("s_mov_b32 exec_hi, 1")
    for i in range(8): a(f"v_mov_b32 v{ZB+i}, 0")
    a(f"s_mov_b64 exec, s[{sLo}:{sLo+1}]")
    a("s_nop 3")
    for i in range(4): a(f"v_mov_b32 v{GP+16+i}, 0"); a(f"v_mov_b32 v{GP+20+i}, 0")
    a(f"v_cvt_pk_bf16_f32 v{GP+16}, v{G2}, 0")
    a(f"v_cvt_pk_bf16_f32 v{GP+20}, v{G3}, 0")
    a("s_mov_b64 exec, -1")
    a.label(L("fn"))
    m(G0, ZA, FR, "0"); m(G0, ZA+4, FR+4, vr(G0,16)); m(G0, ZB, FIn, vr(G0,16)); m(G0, ZB+4, FIn+4, vr(G0,16))
    m(G1, ZB, FRn, "0"); m(G1, ZB+4, FRn+4, vr(G1,16)); m(G1, ZA, FIn, vr(G1,16)); m(G1, ZA+4, FIn+4, vr(G1,16))
    a("s_nop 7")
    for p, g in enumerate((G0, G1)):
        for i in range(8): a(f"v_cvt_pk_bf16_f32 v{GP+8*p+i}, v{g+2*i}, v{g+2*i+1}")
    def g_stores(sd):
        srd(a, sd, sWS, WL.G, WL.G_SIZE)
        a(f"s_mov_b32 s{sT2}, {64*WL.GA}")
        for p in range(2):
            for j in range(2):
                so = "0" if p == 0 else f"s{sT2}"
                a(f"buffer_store_dwordx4 {vr(GP+8*p+4*j,4)}, v{vGs}, s[{sd}:{sd+3}], {so} offen offset:{1024*j} sc1")
        a(f"s_or_b32 s{sT}, s{sXc}, s{sJ}")
        a(f"s_cmp_ge_u32 s{sT}, 4")
        a(f"s_cbranch_scc1 {L('gs1')}")
        a(f"v_add_u32 v{vGs}, {20*1024}, v{vGs}")
        a(f"s_mov_b64 exec, s[{sLo}:{sLo+1}]")
        a(f"buffer_store_dwordx4 {vr(GP+16,4)}, v{vGs}, s[{sd}:{sd+3}], 0 offen sc1")
        a(f"buffer_store_dwordx4 {vr(GP+20,4)}, v{vGs}, s[{sd}:{sd+3}], s{sT2} offen sc1")
        a("s_mov_b64 exec, -1")
        a.label(L("gs1"))
    assert ZB + 8 <= GP
    st.stamp("gst")
    a(f"s_branch {L('help')}")
    a.label(L("lgate"))
    if cwarm:
        a(f"s_getpc_b64 s[{sT}:{sT2}]")
        a.label(L("pc0"))
        a(f"s_sub_u32 s{sT}, s{sT}, {L('pc0')}-{name}")
        a(f"s_subb_u32 s{sT2}, s{sT2}, 0")
        a(f"s_lshl_b32 s{sCnt}, s{sWl}, 13")
        a(f"v_lshl_add_u32 v{vT[0]}, v{vL}, 7, s{sCnt}")
        a(f"v_min_u32 v{vT[0]}, {L('cend')}-{name}-4, v{vT[0]}")
        a(f"global_load_dword v{vT[1]}, v{vT[0]}, s[{sT}:{sT2}]")
    if gtouch and not wgen:
        sel_srd(sB, sWm, 6, 8, 2048 * 4096)
        a(f"v_and_b32 v{vT[0]}, 31, v{vL}")
        a(f"v_lshlrev_b32 v{vT[0]}, 18, v{vT[0]}")
        a(f"buffer_load_dword v{vT[1]}, v{vT[0]}, s[{sB}:{sB+3}], 0 offen")
    masks()
    a(f"s_lshl_b32 s{sT}, s2, 3")
    a(f"s_add_u32 s{sT}, s{sT}, s{sW}")
    a(f"s_cmp_lg_u32 s{sT}, {240*8+4}")
    a(f"s_cbranch_scc1 {L('ncw')}")
    srd(a, sC, sWS, WL.KC, WL.G - WL.KC)
    for i in range(4): a(f"v_mov_b32 v{ZA+i}, 0x3f803f80")
    a(f"v_mov_b32 v{ZA+4}, 0x3f803f80"); a(f"v_mov_b32 v{ZA+5}, 0x3f80"); a(f"v_mov_b32 v{ZA+6}, 0x3f803f80"); a(f"v_mov_b32 v{ZA+7}, 0x3f80")
    a(f"v_mul_u32_u24 v{vT[2]}, {WL.VR}, v{vL}")
    for i in range(4):
        a(f"s_mov_b32 s{sT}, {WL.PL + 10240 + 64*i*WL.VR}")
        a(f"buffer_store_dwordx4 {vr(ZA,4)}, v{vT[2]}, s[{sC}:{sC+3}], s{sT} offen sc1")
    a(f"v_and_b32 v{vT[2]}, 31, v{vL}")
    a(f"v_lshlrev_b32 v{vT[2]}, 10, v{vT[2]}")
    a(f"buffer_store_dwordx4 {vr(ZA+4,4)}, v{vT[2]}, s[{sC}:{sC+3}], 0 offen sc1")
    a("s_waitcnt vmcnt(0) lgkmcnt(0)")
    a(f"s_add_u32 s{sNonce}, s{sNonce}, 1")
    a(f"s_mov_b32 s{sT}, {WL.FA + 256*128}")
    put_flag(f"s{sT}")
    a(f"s_sub_u32 s{sNonce}, s{sNonce}, 1")
    a.label(L("ncw"))
    if wpack:
        srd(a, sB, 18, 0, 640 * 1280)
        srd(a, sC, sWS, WL.WP, 8 * 102400)
        a(f"s_and_b32 s{sT}, s{sJ}, 1")
        a(f"s_lshl_b32 s{sT}, s{sT}, 2")
        a(f"s_add_u32 s{sCnt}, s{sT}, s{sWl}")
        a(f"v_mul_u32_u24 v{vT[2]}, 205, v{vL}")
        a(f"v_lshrrev_b32 v{vT[2]}, 11, v{vT[2]}")
        a(f"v_mul_u32_u24 v{vT[3]}, {1280-160}, v{vT[2]}")
        a(f"v_lshl_add_u32 v{vT[3]}, v{vL}, 4, v{vT[3]}")
        a(f"s_mul_i32 s{sT}, s{sXc}, 160")
        a(f"v_add_u32 v{vT[3]}, s{sT}, v{vT[3]}")
        a(f"s_mul_i32 s{sT}, s{sXc}, 102400")
        a(f"s_mul_i32 s{sT2}, s{sCnt}, {5*2560}")
        a(f"s_add_u32 s{sT}, s{sT}, s{sT2}")
        a(f"v_lshl_add_u32 v{vT[4]}, v{vL}, 4, s{sT}")
        a(f"s_mul_i32 s{sOX}, s{sCnt}, 5")
        a(f"s_mov_b64 exec, s[{sDm}:{sDm+1}]")
        for u_ in range(5):
            a(f"s_add_u32 s{sT}, s{sOX}, {u_}")
            a(f"s_lshr_b32 s{sT2}, s{sT}, 1")
            a(f"s_and_b32 s{sT}, s{sT}, 1")
            a(f"s_lshl_b32 s{sT2}, s{sT2}, 3")
            a(f"s_add_u32 s{sT}, s{sT}, s{sT2}")
            a(f"s_mul_i32 s{sT}, s{sT}, {4*1280}")
            for g_ in range(4):
                a(f"buffer_load_dwordx4 {vr(XR[u_][g_],4)}, v{vT[3]}, s[{sB}:{sB+3}], s{sT} offen")
                if g_ < 3: a(f"s_add_u32 s{sT}, s{sT}, {8*1280}")
        a("s_mov_b64 exec, -1")
    a("s_waitcnt lgkmcnt(0)")
    a("s_barrier")
    a(f"s_add_u32 s{sNonce}, s{sNonce}, 1")
    if wpack:
        a(f"s_mov_b64 exec, s[{sDm}:{sDm+1}]")
        a("s_waitcnt vmcnt(0)")
        for u_ in range(5):
            a(f"s_mov_b32 s{sT}, {2560*u_}")
            for g_ in range(4):
                a(f"buffer_store_dwordx4 {vr(XR[u_][g_],4)}, v{vT[4]}, s[{sC}:{sC+3}], s{sT} offen offset:{640*g_} sc1")
        a("s_mov_b64 exec, -1")
        a(f"s_lshl_b32 s{sT}, s{sXc}, 3")
        a(f"s_add_u32 s{sT}, s{sT}, s{sCnt}")
        a(f"s_lshl_b32 s{sT}, s{sT}, 2")
        a(f"s_add_u32 s{sT}, s{sT}, {WL.FP}")
        a("s_waitcnt vmcnt(0)")
        put_flag(f"s{sT}")
    a("s_waitcnt vmcnt(0)")
    a(f"s_branch {L('lfree')}")
    a.label(L("lq"))
    a(f"s_cmp_lg_u32 s{sCb}, 0")
    a(f"s_cbranch_scc1 {L('lfree')}")
    lds_wait("g0", 20, 4)
    srd(a, sB, 20, 0, 1280)
    a(f"s_mul_i32 s{sM0}, s{sW}, 3072")
    a(f"s_add_u32 s{sM0}, s{sM0}, {LDS_X}")
    for i in range(3):
        a(f"v_lshlrev_b32 v{vT[0]}, 4, v{vL}")
        if i: a(f"v_add_u32 v{vT[0]}, {1024*i}, v{vT[0]}")
        a(f"v_subrev_u32 v{vT[1]}, 1280, v{vT[0]}")
        a(f"v_min_u32 v{vT[0]}, v{vT[0]}, v{vT[1]}")
        a(f"s_add_u32 m0, s{sM0}, {1024*i}")
        a("s_nop 0")
        a(f"buffer_load_dwordx4 v{vT[0]}, s[{sB}:{sB+3}], 0 offen lds")
    a(f"v_lshrrev_b32 v{vT[2]}, 5, v{vL}")
    a(f"s_add_u32 s{sT}, s{sM0}, s{sOX}")
    a(f"v_lshl_add_u32 v{vT[2]}, v{vT[2]}, 4, s{sT}")
    srd(a, sC, sWS, WL.GATE, 2048 * 8)
    a(f"s_lshl_b32 s{sCnt}, s{sRb}, 2")
    a(f"s_add_u32 s{sCnt}, s{sCnt}, s{sWl}")
    a("s_waitcnt vmcnt(0)")
    GB = [BF[0][0], BF[0][1], BF[1][0], BF[1][1], BF[2][0], BF[2][1]]
    for s_ in range(5): a(f"ds_read_b128 {vr(GB[s_],4)}, v{vT[2]} offset:{32*s_}")
    for s_ in range(40):
        if s_ + 5 < 40: a(f"ds_read_b128 {vr(GB[(s_+5)%6],4)}, v{vT[2]} offset:{32*(s_+5)}")
        a(f"s_waitcnt lgkmcnt({min(5, 39 - s_)})")
        c = "0" if s_ == 0 else vr(ZA, 16)
        a(f"v_mfma_f32_32x32x16_bf16 {vr(ZA,16)}, {vr(GB[s_%6],4)}, {vr(XR[s_//4][s_%4],4)}, {c}")
    a("s_nop 12")
    a(f"v_cvt_pk_bf16_f32 v{ZA}, 0, v{ZA}")
    a(f"v_mul_f32 v{ZA}, 0xbfb8aa3b, v{ZA}")
    a(f"v_exp_f32 v{ZA}, v{ZA}")
    a(f"v_lshlrev_b32 v{vT[2]}, 3, v{vL}")
    a(f"v_add_f32 v{ZA}, 1.0, v{ZA}")
    a(f"v_rcp_f32 v{ZA}, v{ZA}")
    a(f"s_lshl_b32 s{sT}, s{sCnt}, 8")
    a(f"v_cvt_pk_bf16_f32 v{ZB}, 0, v{ZA}")
    a(f"v_sub_f32 v{ZB+1}, 1.0, v{ZB}")
    a(f"v_cvt_pk_bf16_f32 v{ZB+1}, 0, v{ZB+1}")
    a(f"s_mov_b64 exec, s[{sLo}:{sLo+1}]")
    a(f"buffer_store_dwordx2 {vr(ZB,2)}, v{vT[2]}, s[{sC}:{sC+3}], s{sT} offen sc1")
    a("s_mov_b64 exec, -1")
    a(f"s_lshl_b32 s{sGF}, s{sCnt}, 2")
    a(f"s_add_u32 s{sGF}, s{sGF}, {WL.FP + 256}")
    a.label(L("lfree"))
    a("s_waitcnt lgkmcnt(0)")
    lds_inc(8)
    a(f"s_branch {L('help')}")

    a.label(L("comp"))
    V = Alloc(VB, TOP)
    vRX = [V.get() for _ in range(4)]; vRW = [V.get() for _ in range(2)]
    vE = [V.get() for _ in range(8)]
    vTch = V.get(2)
    XF = [[V.get(4, 4) for _ in range(2)] for _ in range(4)]
    WF = [[V.get(4, 4) for _ in range(2)] for _ in range(4)]
    ACC = [[V.get(16, 4) for _ in range(2)] for _ in range(2)]
    PK = TOP - 32
    vS = [PK - 4 + i for i in range(4)]
    sDef = 15
    sMask = sD; sScale = sD + 2
    a(f"s_setprio {cprio}")
    nat_read_addrs(vRX, sWm, 13)
    for x in range(2):
        for w in range(2):
            for i in range(16): a(f"v_mov_b32 v{ACC[x][w]+i}, 0")
    after_kernarg()
    masks()
    a(f"s_cmp_lg_u32 s{sW}, 0")
    a(f"s_cbranch_scc1 {L('c1')}")
    a(f"ds_write_b128 v{vCtl}, {vr(ACC[0][0],4)}")
    for o_ in (16, 32, 48): a(f"ds_write_b128 v{vCtl}, {vr(ACC[0][0],4)} offset:{o_}")
    a.label(L("c1"))
    if wt:
        srd(a, sC, sWS, 0, WL.END)
        a(f"v_and_b32 v{vT[0]}, {wt-1}, v{vL}")
        a(f"v_lshlrev_b32 v{vT[0]}, 20, v{vT[0]}")
        a(f"buffer_load_dword v{vTch}, v{vT[0]}, s[{sC}:{sC+3}], 0 offen offset:512 sc1")
    def poison(sd, pr):
        a(f"s_and_b32 s{sT}, s{sJ}, 3")
        a(f"s_lshl_b32 s{sT2}, s{sXc}, 2")
        a(f"s_add_u32 s{sT}, s{sT}, s{sT2}")
        a(f"s_and_b32 s{sCnt}, s{sT}, 1")
        a(f"s_lshr_b32 s{sT}, s{sT}, 1")
        a(f"s_mul_i32 s{sT}, s{sT}, {5*WL.PL}")
        a(f"s_add_u32 s{sT}, s{sT}, {WL.OF}")
        srd(a, sd, sWS, f"s{sT}", 5 * WL.PL)
        a(f"s_and_b32 s{sT}, s{sJ}, 28")
        a(f"s_add_u32 s{sT}, s{sT}, s{sW}")
        a(f"s_lshl_b32 s{sT}, s{sT}, 10")
        a(f"v_lshl_add_u32 v{vT[0]}, v{vL}, 4, s{sT}")
        for i in range(4): a(f"v_mov_b32 v{pr+i}, -1")
        a(f"s_mul_i32 s{sT}, s{sCnt}, {3*WL.PL}")
        a(f"buffer_store_dwordx4 {vr(pr,4)}, v{vT[0]}, s[{sd}:{sd+3}], s{sT} offen sc1")
        a(f"s_add_u32 s{sT}, s{sT}, {WL.PL}")
        a(f"buffer_store_dwordx4 {vr(pr,4)}, v{vT[0]}, s[{sd}:{sd+3}], s{sT} offen sc1")
        a(f"s_lshl_b32 s{sT}, s{sCnt}, 3")
        a(f"s_add_u32 s{sT}, s{sT}, {2*WL.PL}")
        a(f"buffer_store_dwordx2 {vr(pr,2)}, v{vT[0]}, s[{sd}:{sd+3}], s{sT} offen sc1")
    if pois == 1: poison(sC, PK)
    def mainloop(mode, epi):
        def rdX(s, ks, x): a(f"ds_read_b128 {vr(XF[s][x],4)}, v{vRX[ks]} offset:{4096*x}")
        def rdW(s, ks, w):
            a(f"ds_read_b64_tr_b16 {vr(WF[s][w],2)}, v{vRW[w]} offset:{4096*ks}")
            a(f"ds_read_b64_tr_b16 {vr(WF[s][w]+2,2)}, v{vRW[w]} offset:{4096*ks+1024}")
        def mf(s, x, w):
            A, B = (WF[s][w], XF[s][x]) if mode == 'qk' else (XF[s][x], WF[s][w])
            if nomf == 1: return
            if nomf == 2:
                for h_ in range(2):
                    d_ = ACC[x][w] + 8 * (s % 2) + 4 * h_
                    A2, B2 = (A, B) if h_ == 0 else (B, A)
                    a(f"v_mfma_f32_16x16x32_bf16 {vr(d_,4)}, {vr(A2,4)}, {vr(B2,4)}, {vr(d_,4)}")
                return
            a(f"v_mfma_f32_32x32x16_bf16 {vr(ACC[x][w],16)}, {vr(A,4)}, {vr(B,4)}, {vr(ACC[x][w],16)}")
        a("s_waitcnt lgkmcnt(0)")
        a("s_barrier")
        st.stamp("b0")
        if stamps: a("s_waitcnt lgkmcnt(0)")
        if deep:
            for k_ in range(2): rdX(k_, k_, 0); rdW(k_, k_, 0); rdX(k_, k_, 1); rdW(k_, k_, 1)
            a(f"s_mov_b32 s{sCnt}, 0")
            a.raw(".p2align 5")
            a.label(L(mode + "loop"))
            for ks in range(4):
                nk = (ks + 2) % 4
                a("s_waitcnt lgkmcnt(9)")
                mf(ks, 0, 0)
                if ks == 2:
                    a("s_barrier")
                    for r in (vRX[0], vRW[0], vRW[1], vRX[1]): a(f"v_xor_b32 v{r}, s{sMask}, v{r}")
                rdX(nk, nk, 0); rdW(nk, nk, 0)
                a("s_waitcnt lgkmcnt(11)")
                mf(ks, 1, 0)
                rdX(nk, nk, 1)
                if ks == 2:
                    for r in (vRX[2], vRX[3]): a(f"v_xor_b32 v{r}, s{sMask}, v{r}")
                    a(f"s_xor_b32 s{sMask}, s{sMask}, 0x18000")
                a("s_waitcnt lgkmcnt(10)")
                mf(ks, 0, 1)
                rdW(nk, nk, 1)
                if ks == 3:
                    a(f"s_add_u32 s{sCnt}, s{sCnt}, 1")
                    a(f"s_cmp_lg_u32 s{sCnt}, 9")
                mf(ks, 1, 1)
            a(f"s_cbranch_scc1 {L(mode+'loop')}")
            a("s_waitcnt lgkmcnt(9)")
            mf(0, 0, 0)
            rdX(2, 2, 0); rdW(2, 2, 0); rdX(3, 3, 0); rdW(3, 3, 0)
            a("s_waitcnt lgkmcnt(9)")
            mf(1, 0, 0)
            rdW(2, 2, 1); rdW(3, 3, 1)
            mf(0, 0, 1)
            rdX(2, 2, 1); rdX(3, 3, 1)
            a("s_waitcnt lgkmcnt(9)")
            mf(1, 0, 1)
            mf(2, 0, 0)
            a("s_waitcnt lgkmcnt(6)")
            mf(3, 0, 0)
            a("s_waitcnt lgkmcnt(2)")
            mf(2, 0, 1); mf(3, 0, 1)
            mf(0, 1, 0); mf(1, 1, 0)
            a("s_waitcnt lgkmcnt(0)")
            lds_inc(8)
            a("s_nop 1")
            mf(2, 1, 0)
            epi(0, 0)
            mf(3, 1, 0); mf(0, 1, 1)
            epi(0, 1)
            mf(1, 1, 1); mf(2, 1, 1); mf(3, 1, 1)
            st.stamp("aend")
            epi(1, 0)
            a("s_nop 1")
            epi(1, 1)
            return
        rdX(0, 0, 0); rdW(0, 0, 0); rdX(0, 0, 1); rdW(0, 0, 1)
        a(f"s_mov_b32 s{sCnt}, 0")
        a.raw(".p2align 5")
        a.label(L(mode + "loop"))
        for ks in range(4):
            s = ks % 2; n = 1 - s; nk = (ks + 1) % 4
            if ks < 3:
                a("s_waitcnt lgkmcnt(3)")
                mf(s, 0, 0)
                if ks == 0 and touch:
                    a(f"s_cmp_lg_u32 s{sCnt}, {tpos}")
                    a(f"s_cbranch_scc1 {L(mode+'nt')}")
                    a(f"buffer_load_dword v{vTch}, v{vTch+1}, s[{sE}:{sE+3}], 0 offen")
                    a.label(L(mode + "nt"))
            else:
                a("s_waitcnt lgkmcnt(0)")
                mf(s, 0, 0)
                a(f"s_add_u32 s{sCnt}, s{sCnt}, 1")
                if not peel:
                    a(f"s_cmp_eq_u32 s{sCnt}, 10")
                    a(f"s_cbranch_scc1 {L(mode+'last')}")
                a("s_barrier")
                for r in vRX + vRW:
                    a(f"v_xor_b32 v{r}, s{sMask}, v{r}")
            rdX(n, nk, 0); rdW(n, nk, 0)
            if ks < 3: a("s_waitcnt lgkmcnt(5)")
            mf(s, 1, 0)
            rdX(n, nk, 1)
            if ks < 3: a("s_waitcnt lgkmcnt(4)")
            mf(s, 0, 1)
            rdW(n, nk, 1)
            if ks == 3: a(f"s_xor_b32 s{sMask}, s{sMask}, 0x18000")
            if ks == 3 and peel: a(f"s_cmp_lg_u32 s{sCnt}, 9")
            mf(s, 1, 1)
        if not peel:
            a(f"s_branch {L(mode+'loop')}")
            a.label(L(mode + "last"))
            mf(1, 0, 1); mf(1, 1, 0); mf(1, 1, 1)
            lds_inc(8)
            st.stamp("aend")
            a("s_nop 1")
            for x in range(2):
                for w in range(2): epi(x, w)
            return
        a(f"s_cbranch_scc1 {L(mode+'loop')}")
        for ks in range(1, 4): rdX(ks, ks, 0); rdW(ks, ks, 0)
        for ks in range(4):
            a(f"s_waitcnt lgkmcnt({[12, 6, 5, 4][ks]})")
            mf(ks, 0, 0)
            if ks >= 1: rdW(ks, ks, 1)
        for ks in range(4):
            if ks: a(f"s_waitcnt lgkmcnt({[0, 4, 3, 2][ks]})")
            mf(ks, 0, 1)
            if ks >= 1: rdX(ks, ks, 1)
        mf(0, 1, 0)
        a("s_waitcnt lgkmcnt(0)")
        mf(1, 1, 0)
        lds_inc(8)
        mf(2, 1, 0)
        epi(0, 0)
        mf(3, 1, 0); mf(0, 1, 1)
        epi(0, 1)
        mf(1, 1, 1); mf(2, 1, 1); mf(3, 1, 1)
        st.stamp("aend")
        epi(1, 0)
        a("s_nop 1")
        epi(1, 1)
    a(f"s_mov_b32 s{sMask}, 0x8000")
    a(f"s_cmp_ge_u32 s{sJ}, 30")
    a(f"s_cbranch_scc1 {L('gate')}")
    a(f"s_lshl_b32 s{sAF}, s{sCb}, 4")
    a(f"s_add_u32 s{sAF}, s{sAF}, s{sRb}")
    if touch:
        sel_srd(sE, sWm, 10, 12, 640 * 1280)
        a(f"s_lshl_b32 s{sT}, s{sJ}, 1")
        a(f"s_add_u32 s{sT}, s{sT}, s{sWn}")
        a(f"s_mul_i32 s{sT}, s{sT}, {27*128}")
        a(f"s_lshr_b32 s{sT2}, s{sXc}, 2")
        a(f"s_mul_i32 s{sT2}, s{sT2}, {160*1280}")
        a(f"s_add_u32 s{sT}, s{sT}, s{sT2}")
        a(f"v_min_u32 v{vTch+1}, 26, v{vL}")
        a(f"v_lshl_add_u32 v{vTch+1}, v{vTch+1}, 7, s{sT}")
    def astore(sd, aa, bb, lab=None):
        if lab and defer: a(f"s_cbranch_vccnz {L('as%s%d%d' % (lab, aa, bb))}")
        for j in range(2):
            a(f"buffer_store_dwordx4 {vr(PK+8*(2*bb+aa)+4*j,4)}, v{vS[2*aa+j]}, s[{sd}:{sd+3}], 0 offen offset:{512*bb} sc1")
        if lab and defer: a.label(L('as%s%d%d' % (lab, aa, bb)))
    srd(a, sC, sWS, WL.QF, WL.G - WL.QF)
    if defer:
        a(f"s_and_b32 s{sDef}, s{sRb}, {dmask}")
        a(f"s_cmp_lt_u32 s{sCb}, 5")
        a(f"s_cselect_b32 s{sDef}, 0, s{sDef}")
        a(f"s_cmp_lg_u32 s{sDef}, 0")
        a("s_cselect_b64 vcc, -1, 0")
    a(f"v_bfe_u32 v{vT[0]}, v{vL}, 2, 2")
    a(f"v_lshrrev_b32 v{vT[1]}, 5, v{vL}")
    a(f"v_lshl_add_u32 v{vT[1]}, v{vT[1]}, 3, v{vT[0]}")
    a(f"v_lshlrev_b32 v{vT[1]}, 8, v{vT[1]}")
    a(f"s_lshl_b32 s{sT}, s{sWn}, 1")
    a(f"v_xor_b32 v{vT[0]}, s{sT}, v{vT[0]}")
    a(f"v_lshl_add_u32 v{vT[1]}, v{vT[0]}, 6, v{vT[1]}")
    a(f"v_bfe_u32 v{vT[0]}, v{vL}, 4, 1")
    a(f"v_lshl_add_u32 v{vT[1]}, v{vT[0]}, 5, v{vT[1]}")
    a(f"v_add_u32 v{vT[1]}, 0x4000, v{vT[1]}")
    a(f"v_and_b32 v{vT[4]}, 31, v{vL}")
    a(f"v_lshrrev_b32 v{vT[5]}, 5, v{vL}")
    a(f"s_cmp_ge_u32 s{sCb}, 10")
    a(f"s_cbranch_scc1 {L('v')}")
    a(f"v_and_b32 v{vT[0]}, 1, v{vL}")
    a(f"v_lshl_add_u32 v{vT[1]}, v{vT[0]}, 4, v{vT[1]}")
    a(f"v_bfe_u32 v{vT[0]}, v{vL}, 1, 1")
    a(f"v_lshl_add_u32 v{vRW[0]}, v{vT[0]}, 3, v{vT[1]}")
    a(f"v_xor_b32 v{vRW[1]}, 64, v{vRW[0]}")
    a(f"s_cmp_ge_u32 s{sCb}, 5")
    a(f"s_cselect_b32 s{sScale}, 1.0, {hex(QSCALE)}")
    a(f"s_mov_b32 s{sScale+1}, s{sScale}")
    a(f"s_lshl_b32 s{sT}, s{sCb}, 1")
    a(f"s_add_u32 s{sT}, s{sT}, s{sWn}")
    sR5 = sD + 1
    a(f"s_lshl_b32 s{sR5}, s{sT}, 3")
    a(f"s_mul_i32 s{sT2}, s{sR5}, 205")
    a(f"s_lshr_b32 s{sT2}, s{sT2}, 10")
    a(f"s_mul_i32 s{sT2}, s{sT2}, 5")
    a(f"s_sub_u32 s{sR5}, s{sR5}, s{sT2}")
    a(f"s_lshl_b32 s{sT}, s{sT}, 18")
    a(f"s_lshl_b32 s{sT2}, s{sRb}, 1")
    a(f"s_add_u32 s{sT2}, s{sT2}, s{sWm}")
    a(f"s_lshl_b32 s{sT2}, s{sT2}, 10")
    a(f"s_add_u32 s{sT}, s{sT}, s{sT2}")
    a(f"v_lshlrev_b32 v{vS[0]}, 15, v{vT[5]}")
    a(f"v_lshl_add_u32 v{vS[0]}, v{vT[4]}, 4, v{vS[0]}")
    a(f"v_add_u32 v{vS[0]}, s{sT}, v{vS[0]}")
    for e in range(1, 4): a(f"v_add_u32 v{vS[e]}, {e*2*WL.PL}, v{vS[0]}")
    def epi_qk(x, w):
        acc = ACC[x][w]; pk = PK + 8 * (2 * x + w)
        for i in range(0, 16, 2): a(f"v_pk_mul_f32 {vr(acc+i,2)}, {vr(acc+i,2)}, s[{sScale}:{sScale+1}]")
        for i in range(8): a(f"v_cvt_pk_bf16_f32 v{pk+i}, v{acc+2*i}, v{acc+2*i+1}")
        if x == 0: return
        for j in range(2):
            t5 = (2 - 2 * (2 * w + j)) % 5
            a(f"s_cmp_eq_u32 s{sR5}, {t5}")
            a("s_cselect_b32 exec_lo, -1, 0")
            a(f"s_cmp_eq_u32 s{sR5}, {(t5 - 1) % 5}")
            a("s_cselect_b32 exec_hi, -1, 0")
            for i in range(2): a(f"v_swap_b32 v{PK+8*w+4*j+2+i}, v{PK+8*(2+w)+4*j+i}")
        a("s_mov_b64 exec, -1")
        astore(sC, w, 0, "q"); astore(sC, w, 1, "q")
    mainloop('qk', epi_qk)
    a(f"s_branch {L('adone')}")
    a.label(L("v"))
    a(f"v_and_b32 v{vT[0]}, 3, v{vL}")
    a(f"v_lshl_add_u32 v{vRW[0]}, v{vT[0]}, 3, v{vT[1]}")
    a(f"v_xor_b32 v{vRW[1]}, 64, v{vRW[0]}")
    a(f"s_lshl_b32 s{sT}, s{sRb}, 1")
    a(f"s_add_u32 s{sT}, s{sT}, s{sWm}")
    a(f"s_mul_i32 s{sT}, s{sT}, {2*WL.VT}")
    a(f"s_sub_u32 s{sT2}, s{sCb}, 10")
    a(f"s_lshl_b32 s{sT2}, s{sT2}, 1")
    a(f"s_add_u32 s{sT2}, s{sT2}, s{sWn}")
    a(f"s_lshl_b32 s{sT2}, s{sT2}, 10")
    a(f"s_add_u32 s{sT}, s{sT}, s{sT2}")
    a(f"s_add_u32 s{sT}, s{sT}, {WL.VF - WL.QF}")
    a(f"v_mul_u32_u24 v{vS[0]}, {WL.VR}, v{vT[5]}")
    a(f"v_lshl_add_u32 v{vS[0]}, v{vT[4]}, 4, v{vS[0]}")
    a(f"v_add_u32 v{vS[0]}, s{sT}, v{vS[0]}")
    for e in range(1, 4): a(f"v_add_u32 v{vS[e]}, {e*2*WL.VR}, v{vS[0]}")
    def epi_v(x, w):
        acc = ACC[x][w]; pk = PK + 8 * (2 * w + x)
        for i in range(8): a(f"v_cvt_pk_bf16_f32 v{pk+i}, v{acc+2*i}, v{acc+2*i+1}")
        astore(sC, x, w, "v")
    mainloop('v', epi_v)
    a(f"s_branch {L('adone')}")
    a.label(L("gate"))
    a(f"s_mov_b32 s{sAF}, s2")
    a("s_waitcnt lgkmcnt(0)")
    a("s_barrier")
    def spoison():
        srd(a, sC, sWS, WL.OF, 80 * WL.PL)
        a(f"s_sub_u32 s{sT}, s2, 240")
        a(f"s_lshl_b32 s{sT}, s{sT}, 2")
        a(f"s_add_u32 s{sT}, s{sT}, s{sW}")
        a(f"s_mul_i32 s{sT}, s{sT}, 40960")
        a(f"s_add_u32 s{sT2}, s{sT}, 40960")
        a(f"v_lshlrev_b32 v{vT[3]}, 4, v{vL}")
        for i in range(4): a(f"v_mov_b32 v{PK+4+i}, -1")
        a.label(L("spl"))
        for i in range(4): a(f"buffer_store_dwordx4 {vr(PK+4,4)}, v{vT[3]}, s[{sC}:{sC+3}], s{sT} offen offset:{1024*i} sc1")
        a(f"s_add_u32 s{sT}, s{sT}, 4096")
        a(f"s_cmp_lt_u32 s{sT}, s{sT2}")
        a(f"s_cbranch_scc1 {L('spl')}")
    if pois == 5 and pfirst: spoison()
    if wdtouch:
        sel_srd(sB, sWm, 10, 12, 640 * 1280)
        a(f"s_and_b32 s{sT}, s{sJ}, 1")
        a(f"s_lshl_b32 s{sT}, s{sT}, 1")
        a(f"s_add_u32 s{sT}, s{sT}, s{sWn}")
        a(f"s_mul_i32 s{sT}, s{sT}, {400*128}")
        a(f"s_lshr_b32 s{sT2}, s{sXc}, 2")
        a(f"s_mul_i32 s{sT2}, s{sT2}, {160*1280}")
        a(f"s_add_u32 s{sT}, s{sT}, s{sT2}")
        a(f"v_min_u32 v{vT[2]}, 49, v{vL}")
        a(f"v_lshlrev_b32 v{vT[2]}, 7, v{vT[2]}")
        for i in range(8):
            a(f"buffer_load_dword v{PK}, v{vT[2]}, s[{sB}:{sB+3}], s{sT} offen")
            a(f"s_add_u32 s{sT}, s{sT}, {50*128}")
    if pois == 5 and not pfirst: spoison()
    lds_inc(8)
    a.label(L("adone"))
    if pois == 2: poison(sC, XF[0][0])
    if fwait: lds_inc(20)
    st.stamp("ast")
    a(f"s_add_u32 s{sNonce}, s{sNonce}, 1")
    a(f"s_lshl_b32 s{sAF}, s{sAF}, 7")
    a(f"s_add_u32 s{sAF}, s{sAF}, {WL.FA}")

    vKm = 10; vKr = 11; vIdx = 12; vM = 13
    vVa = [[14 + 2 * b, 15 + 2 * b] for b in range(4)]; vV0, vV1 = vVa[0]
    vG1 = 22
    Qm = [24 + 4 * q for q in range(4)]; Qr = [40 + 2 * q for q in range(4)]
    Km = [48 + 4 * b for b in range(4)]; Kr = [64 + 2 * b for b in range(4)]
    Vb = [[72 + 8 * b, 76 + 8 * b] for b in range(4)]
    S = [104 + 16 * q for q in range(4)]; O = [168 + 16 * q for q in range(4)]
    K0m = 232; K0r = 236; cO = 238; cSt = 239; cX0 = 240; cX1 = 241; cR = 242; cD0 = 243; cD1 = 244
    vKF = S[0]; vQF = S[0] + 1
    sK = sA; sV = sB; sQ = sC
    sHead = 98; sQb = 99; sKh = 100; sOK = 101; sOV = 14; sPar = sE; sHp = sE + 2; sU0 = sE + 3
    sCc = sHead; sEb8 = sQb; sRet = sE
    def coords():
        a(f"s_and_b32 s{sT}, s{sJ}, 3")
        a(f"s_lshl_b32 s{sHead}, s{sXc}, 2")
        a(f"s_add_u32 s{sHead}, s{sHead}, s{sT}")
        a(f"s_lshr_b32 s{sQb}, s{sJ}, 2")
    def swap23(dst, src, tmp):
        a(f"v_and_b32 v{dst}, 0x13, v{src}")
        a(f"v_bfe_u32 v{tmp}, v{src}, 2, 1")
        a(f"v_lshl_add_u32 v{dst}, v{tmp}, 3, v{dst}")
        a(f"v_bfe_u32 v{tmp}, v{src}, 3, 1")
        a(f"v_lshl_add_u32 v{dst}, v{tmp}, 2, v{dst}")
    def kv_flag_offsets(kf):
        a(f"s_mul_i32 s{sT}, s{sHead}, 20")
        a(f"v_bfe_u32 v{vT[0]}, v{vL}, 4, 1")
        a(f"v_mul_u32_u24 v{vT[0]}, 19, v{vT[0]}")
        a(f"v_add_u32 v{vT[0]}, s{sT}, v{vT[0]}")
        a(f"v_lshrrev_b32 v{vT[0]}, 7, v{vT[0]}")
        a(f"v_lshrrev_b32 v{vT[1]}, 5, v{vL}")
        a(f"v_mul_u32_u24 v{vT[1]}, 5, v{vT[1]}")
        a(f"v_add3_u32 v{vT[1]}, v{vT[1]}, v{vT[0]}, 5")
        a(f"v_and_b32 v{vT[2]}, 15, v{vL}")
        a(f"v_lshl_add_u32 v{vT[1]}, v{vT[1]}, 4, v{vT[2]}")
        a(f"v_lshlrev_b32 v{kf}, 7, v{vT[1]}")
    def d_addrs(vo, vst, vr_, step0, vws=None, vgt=None):
        a(f"v_and_b32 v{vT[0]}, 15, v{vL}")
        a(f"v_lshrrev_b32 v{vT[1]}, 4, v{vL}")
        swap23(vT[4], vT[0], vT[3])
        a(f"s_and_b32 s{sT}, s{sW}, 3")
        a(f"s_lshl_b32 s{sT}, s{sT}, 4")
        a(f"s_lshl_b32 s{sT2}, s{sCc}, 6")
        a(f"s_add_u32 s{sT}, s{sT}, s{sT2}")
        a(f"v_add_u32 v{vT[2]}, s{sT}, v{vT[0]}")
        a(f"s_and_b32 s{sT}, s{sW}, 1")
        a(f"s_lshl_b32 s{sT}, s{sT}, 10")
        a(f"s_and_b32 s{sT2}, s{sW}, 2")
        a(f"s_lshl_b32 s{sT2}, s{sT2}, 4")
        a(f"s_add_u32 s{sT}, s{sT}, s{sT2}")
        a(f"s_add_u32 s{sT}, s{sT}, s{sCc}")
        a(f"v_lshl_add_u32 v{vT[0]}, v{vT[4]}, 6, s{sT}")
        if vws is not None:
            if wsg:
                a(f"v_mov_b32 v{vws}, v{vT[0]}")
            else:
                a(f"v_lshlrev_b32 v{vws}, 12, v{vT[0]}")
                a(f"v_lshl_add_u32 v{vws}, v{vT[1]}, 4, v{vws}")
            a(f"v_lshlrev_b32 v{vgt}, 3, v{vT[2]}")
        a(f"v_lshlrev_b32 v{vo}, 4, v{vT[2]}")
        a(f"v_lshl_add_u32 v{vo}, v{vT[1]}, 15, v{vo}")
        if step0: a(f"v_add_u32 v{vo}, {4*WL.PL*step0}, v{vo}")
        a(f"v_mul_u32_u24 v{vst}, 1280, v{vT[0]}")
        a(f"v_lshl_add_u32 v{vst}, v{vT[1]}, 3, v{vst}")
        a(f"s_mul_i32 s{sT}, s{sEb8}, 160")
        a(f"v_add_u32 v{vst}, s{sT}, v{vst}")
        a(f"v_lshrrev_b32 v{vT[2]}, 2, v{vL}")
        a(f"v_and_b32 v{vT[1]}, 3, v{vL}")
        a(f"v_mul_u32_u24 v{vr_}, 160, v{vT[2]}")
        a(f"v_lshl_add_u32 v{vr_}, v{vT[1]}, 3, v{vr_}")
        if step0: a(f"v_add_u32 v{vr_}, {5120*step0}, v{vr_}")
    def slot_addr(dst, xor, add):
        a(f"s_and_b32 s{sT}, s{sW}, 3")
        if xor: a(f"s_xor_b32 s{sT}, s{sT}, {xor}")
        a(f"s_mul_i32 s{sT}, s{sT}, 6144")
        a(f"s_add_u32 s{sT}, s{sT}, {LDS_X + add}")
        a(f"v_lshl_add_u32 v{dst}, v{vL}, 4, s{sT}")
    def all_nonce(regs, lab):
        for r in regs: a(f"v_xor_b32 v{r}, s{sNonce}, v{r}")
        rest = regs[1:]
        while len(rest) >= 2:
            a(f"v_or3_b32 v{regs[0]}, v{regs[0]}, v{rest[0]}, v{rest[1]}"); rest = rest[2:]
        if rest: a(f"v_or_b32 v{regs[0]}, v{regs[0]}, v{rest[0]}")
        a(f"v_cmp_ne_u32 vcc, 0, v{regs[0]}")
        a("s_nop 1")
        a("s_cmp_eq_u64 vcc, 0")
        a(f"s_cbranch_scc1 {L(lab)}")
    def lds_set(off):
        a(f"v_mov_b32 v{vT[0]}, 1")
        a(f"ds_write_b32 v{vCtl}, v{vT[0]} offset:{off}")
    def rd(dst, base, off, pitch=160):
        for t in range(5):
            a(f"ds_read_b64_tr_b16 {vr(dst[t],2)}, v{base} offset:{off + 32*t}")
            a(f"ds_read_b64_tr_b16 {vr(dst[t]+2,2)}, v{base} offset:{off + 32*t + 16*pitch}")
    coords()
    a(f"s_lshr_b32 s{sKh}, s{sW}, 1")
    a(f"s_and_b32 s{sPar}, s{sHead}, 1")
    a(f"s_lshr_b32 s{sHp}, s{sHead}, 1")
    a(f"s_mul_i32 s{sHp}, s{sHp}, {5*WL.PL}")
    a(f"v_and_b32 v{vT[0]}, 31, v{vL}")
    a(f"v_lshrrev_b32 v{vT[1]}, 5, v{vL}")
    swap23(vT[2], vT[0], vT[3])
    a(f"s_mul_i32 s{sT}, s{sPar}, {3*WL.PL}")
    a(f"v_lshlrev_b32 v{vKm}, 15, v{vT[1]}")
    a(f"v_lshl_add_u32 v{vKm}, v{vT[2]}, 4, v{vKm}")
    a(f"v_add_u32 v{vKm}, s{sT}, v{vKm}")
    a(f"s_lshl_b32 s{sT}, s{sPar}, 9")
    a(f"s_add_u32 s{sT}, s{sT}, {2*WL.PL}")
    a(f"v_lshl_add_u32 v{vKr}, v{vT[2]}, 4, s{sT}")
    a(f"s_sub_u32 s{sT}, {80*WL.PL}, s{sHp}")
    a(f"s_mov_b64 exec, s[{sHi}:{sHi+1}]")
    a(f"v_mov_b32 v{vKr}, s{sT}")
    a("s_mov_b64 exec, -1")
    a(f"v_mov_b32 v{vIdx}, 0xdddddddd")
    a(f"s_lshl_b32 s{sT}, s{sPar}, 2")
    a(f"v_add_u32 v{vT[2]}, s{sT}, v{vT[2]}")
    a(f"v_subrev_u32 v{vT[3]}, 20, v{vT[2]}")
    a(f"v_min_u32 v{vT[2]}, v{vT[2]}, v{vT[3]}")
    a(f"s_mul_i32 s{sT}, s{sHead}, 320")
    a(f"v_mul_u32_u24 v{vV0}, {WL.VR}, v{vT[1]}")
    a(f"v_lshl_add_u32 v{vV0}, v{vT[2]}, 4, v{vV0}")
    a(f"v_add_u32 v{vV0}, s{sT}, v{vV0}")
    a("s_mov_b32 exec_lo, 0x100000"); a("s_mov_b32 exec_hi, 0x100000")
    a(f"v_mul_u32_u24 v{vV0}, {WL.VR}, v{vT[1]}")
    a(f"v_add_u32 v{vV0}, 10240, v{vV0}")
    a("s_mov_b32 exec_lo, 0xffe00000"); a("s_mov_b32 exec_hi, 0xffe00000")
    a(f"v_mov_b32 v{vV0}, 0x40000000")
    a("s_mov_b64 exec, -1")
    for b in range(4):
        for j in range(2):
            if b or j: a(f"v_add_u32 v{vVa[b][j]}, {b*WL.VT + j*2*WL.VR}, v{vV0}")
    a(f"s_add_u32 s{sT}, s{sHp}, {WL.KF}")
    srd(a, sK, sWS, f"s{sT}", 81 * WL.PL)
    srd(a, sV, sWS, WL.VF, 32 * WL.VT)
    a(f"s_lshl_b32 s{sV+2}, s{sV+2}, s{sKh}")
    a(f"s_add_u32 s{sT}, s{sHp}, {WL.QF}")
    srd(a, sQ, sWS, f"s{sT}", 5 * WL.PL)
    a(f"s_lshl_b32 s{sOK}, s{sKh}, 14")
    a(f"s_mul_i32 s{sOV}, s{sKh}, {32*WL.VT}")
    a(f"s_lshl_b32 s{sU0}, s{sQb}, 1")
    a(f"s_and_b32 s{sT}, s{sW}, 1")
    a(f"s_add_u32 s{sU0}, s{sU0}, s{sT}")
    a(f"s_lshl_b32 s{sU0}, s{sU0}, 11")
    for i in range(0, 8, 2): a(f"v_mov_b64 {vr(Qr[0]+i,2)}, 0")
    for i in (0, 2): a(f"v_mov_b64 {vr(Vb[3][1]+i,2)}, 0")
    kv_flag_offsets(vKF)
    a(f"v_and_b32 v{vKF}, {hex(~(6 << 7) & 0xffffffff)}, v{vKF}")
    a(f"s_lshl_b32 s{sT}, s{sQb}, 1")
    a(f"v_and_b32 v{vT[2]}, 1, v{vL}")
    a(f"v_lshl_add_u32 v{vT[0]}, v{vT[0]}, 4, v{vT[2]}")
    a(f"v_add_u32 v{vT[0]}, s{sT}, v{vT[0]}")
    a(f"s_mov_b64 exec, s[{sHi}:{sHi+1}]")
    a(f"v_mov_b32 v{vT[0]}, 256")
    a("s_mov_b64 exec, -1")
    a(f"v_lshlrev_b32 v{vQF}, 7, v{vT[0]}")
    if defer:
        a(f"s_cmp_eq_u32 s{sDef}, 0")
        a(f"s_cbranch_scc1 {L('nd')}")
        if defer == 2: lds_wait("dw", 12, 4, 2)
        srd(a, sD, sWS, WL.QF, WL.G - WL.QF)
        for bb in range(2):
            for aa in range(2): astore(sD, aa, bb)
        a.label(L("nd"))
    a(f"v_mov_b32 v{vT[0]}, 1")
    a("s_waitcnt vmcnt(0)")
    a("s_mov_b64 exec, 1")
    a(f"ds_add_rtn_u32 v{vT[1]}, v{vCtl}, v{vT[0]} offset:4")
    a("s_mov_b64 exec, -1")
    a("s_waitcnt lgkmcnt(0)")
    a(f"v_readfirstlane_b32 s{sT}, v{vT[1]}")
    a("s_nop 1")
    a(f"s_cmp_lg_u32 s{sT}, 3")
    a(f"s_cbranch_scc1 {L('nsig')}")
    put_flag(f"s{sAF}")
    st.stamp("aflag")
    a.label(L("nsig"))
    for q in range(4):
        for i in range(0, 16, 2): a(f"v_mov_b64 {vr(O[q]+i,2)}, 0")
    d_addrs(cO, cSt, cR, NL)
    slot_addr(cX0, 0, 0); slot_addr(cX1, 2, 0)
    if not poll2:
        a(f"s_cmp_eq_u32 s{sW}, 0")
        a(f"s_cbranch_scc1 {L('poll')}")
        lds_wait("wa", 0, 1, 2)
        a(f"s_branch {L('go')}")
    a.label(L("poll"))
    a(f"s_mov_b32 s{sT2}, {WL.FA}")
    spin_begin("pa")
    a(f"buffer_load_dword v{vT[2]}, v{vKF}, s[{sFl}:{sFl+3}], s{sT2} offen sc1")
    a(f"buffer_load_dword v{vT[3]}, v{vQF}, s[{sFl}:{sFl+3}], s{sT2} offen sc1")
    a("s_waitcnt vmcnt(0)")
    all_nonce([vT[2], vT[3]], "pad")
    spin_end("pa", psleep)
    a.label(L("pad"))
    lds_set(0)
    a.label(L("go"))
    a("s_setprio 3")
    st.stamp("ardy")
    def ldKr(kb, koff): a(f"buffer_load_dwordx4 {vr(Kr[kb],4)}, v{vKr}, s[{sK}:{sK+3}], s{sOK} offen offset:{koff}")
    def ldKm(kb, koff): a(f"buffer_load_dwordx4 {vr(Km[kb],4)}, v{vKm}, s[{sK}:{sK+3}], s{sOK} offen offset:{koff}")
    def ldV(vb, j): a(f"buffer_load_dwordx4 {vr(Vb[vb][j],4)}, v{vVa[vb][j]}, s[{sV}:{sV+3}], s{sOV} offen")
    a(f"buffer_load_dwordx4 {vr(K0m,4)}, v{vKm}, s[{sK}:{sK+3}], 0 offen")
    for q in range(4): a(f"buffer_load_dwordx4 {vr(Qm[q],4)}, v{vKm}, s[{sQ}:{sQ+3}], s{sU0} offen offset:{512*q}")
    a(f"s_mov_b64 exec, s[{sLo}:{sLo+1}]")
    for q in (0, 2): a(f"buffer_load_dwordx4 {vr(Qr[q],4)}, v{vKr}, s[{sQ}:{sQ+3}], s{sU0} offen offset:{512*q}")
    a("s_mov_b64 exec, -1")
    a(f"buffer_load_dwordx2 {vr(K0r,2)}, v{vKr}, s[{sK}:{sK+3}], 0 offen")
    ldKr(0, 0); ldKm(0, 0)
    for kb in range(1, 4):
        ldV(kb - 1, 0); ldV(kb - 1, 1); ldKm(kb, 512 * kb)
    ldKr(2, 1024)
    lds_inc(56)
    a(f"s_add_u32 s{sT}, s{sHp}, {WL.OF}")
    srd(a, sQ, sWS, f"s{sT}", 5 * WL.PL)
    def qka(s_, k, q): a(f"v_mfma_f32_32x32x16_bf16 {vr(s_,16)}, {vr(k,4)}, {vr(Qm[q],4)}, 0")
    def qkb(s_, k, q): a(f"v_mfma_f32_32x32x8_bf16 {vr(s_,16)}, {vr(k,2)}, {vr(Qr[q],2)}, {vr(s_,16)}")
    def exp(q, i): a(f"v_exp_f32 v{S[q]+i}, v{S[q]+i}")
    def pv(o, vb, sreg):
        a(f"v_smfmac_f32_32x32x32_bf16 {vr(o,16)}, {vr(vb,4)}, {vr(sreg,8)}, v{vIdx}")
    a("s_waitcnt vmcnt(12)")
    st.stamp("qld")
    for q in range(4): qka(S[q], K0m, q)
    if si == 0:
        for q in range(4): qkb(S[q], K0r, q)
    a("s_nop 8")
    a(f"s_mov_b64 exec, s[{sHi}:{sHi+1}]")
    for q in range(4):
        a(f"v_max3_f32 v{S[q]}, v{S[q]}, v{S[q]+1}, v{S[q]+2}")
        for i in range(3, 15 if si < 2 else 9, 2):
            a(f"v_max3_f32 v{S[q]}, v{S[q]}, v{S[q]+i}, v{S[q]+i+1}")
        if si < 2: a(f"v_max_f32 v{S[q]}, v{S[q]}, v{S[q]+15}")
        a(f"v_cvt_pk_bf16_f32 v{Qr[q]}, -v{S[q]}, 0")
        if q == 0:
            a("s_mov_b64 exec, -1")
            a("s_waitcnt vmcnt(7)")
            qka(S[0], Km[0], 0)
            a(f"s_mov_b64 exec, s[{sHi}:{sHi+1}]")
        if q == 1:
            a("s_mov_b64 exec, -1")
            qkb(S[0], Kr[0], 0)
            qka(S[1], Km[0], 1)
            a(f"s_mov_b64 exec, s[{sHi}:{sHi+1}]")
    a("s_mov_b64 exec, -1")
    for i in range(8, 16, 2): a(f"v_mov_b64 {vr(S[3]+i,2)}, 0")
    a(f"s_mov_b32 s{sCnt}, 0")
    st.stamp("lbeg")
    def slot(kt, q):
        k1, q1 = (kt + (q + 1) // 4) % 4, (q + 1) % 4
        k2, q2 = (kt + (q + 2) // 4) % 4, (q + 2) % 4
        kp, qp = (kt - (q == 0)) % 4, (q - 1) % 4
        def mem():
            if noload: return
            if q < 2:
                ldV((kt - 1) % 4, q)
                if q == 1 and kt == 0: a(f"s_add_u32 s{sOV}, s{sOV}, {4*WL.VT}")
            elif q == 2: ldKm(kt, 512 * (kt + 4))
            elif kt % 2: ldKr(kt - 1, 512 * (kt + 3))
        if q == 3: a("s_waitcnt vmcnt(6)")
        qkb(S[q1], Kr[k1], q1)
        for i in range(0, 4): exp(q, i)
        pv(O[qp], Vb[kp][1], S[qp] + 8)
        if mpos == 1: mem()
        for i in range(4, 8): exp(q, i)
        qka(S[q2], Km[k2], q2)
        for i in range(8, 12): exp(q, i)
        pv(O[q], Vb[kt][0], S[q])
        if mpos == 3: mem()
        for i in range(12, 16): exp(q, i)
    def block():
        for kt in range(4):
            for q in range(4): slot(kt, q)
        a(f"s_add_u32 s{sOK}, s{sOK}, 2048")
    a.raw(".p2align 6")
    a.label(L("loop"))
    block()
    a(f"s_bitcmp1_b32 9, s{sCnt}")
    a(f"s_cbranch_scc1 {L('hook')}")
    a.label(L("hookr"))
    block()
    if stamps and "it1" in snames:
        for i_ in range(3):
            a(f"s_cmp_lg_u32 s{sCnt}, {i_}")
            a(f"s_cbranch_scc1 {L('its%d' % i_)}")
            st.stamp("it%d" % (i_ + 1))
            a.label(L("its%d" % i_))
    a(f"s_add_u32 s{sCnt}, s{sCnt}, 1")
    a(f"s_cmp_lg_u32 s{sCnt}, 4")
    a(f"s_cbranch_scc1 {L('loop')}")
    pv(O[3], Vb[3][1], S[3] + 8)
    st.stamp("lend")
    AF = [[48 + 20 * k + 4 * t for t in range(5)] for k in range(4)] + [[O[0] + 4 * t for t in range(5)]]
    EX = 144; PO = 128
    cOF = [200 + 4 * i for i in range(20 - NL)]; cAC = [24 + 4 * t for t in range(5)]
    assert cOF[-1] + 4 <= K0m
    srd(a, sD, sWS, WL.OF, 80 * WL.PL)
    a(f"s_lshl_b32 s{sT}, s{sKh}, 10")
    a(f"s_add_u32 s{sOK}, s{sU0}, s{sT}")
    a(f"s_lshl_b32 s{sT}, s{sW}, 2")
    a(f"v_add_u32 v{vT[4]}, s{sT}, v{vCtl}")
    a(f"v_mov_b32 v{vT[5]}, 1")
    a(f"s_cmp_eq_u32 s{sKh}, 0")
    a(f"s_cbranch_scc1 {L('x0')}")
    for q in range(2):
        for r in range(3): a(f"ds_write_b128 v{cX0}, {vr(O[q]+4*r,4)} offset:{3072*q+1024*r}")
    a("s_waitcnt lgkmcnt(0)")
    a(f"ds_write_b32 v{vT[4]}, v{vT[5]} offset:32")
    for q in range(2):
        for i in range(0, 12, 2): a(f"v_mov_b64 {vr(O[q]+i,2)}, {vr(O[q+2]+i,2)}")
    for i in range(0, 8, 2): a(f"v_mov_b64 {vr(Qm[0]+i,2)}, {vr(Qm[2]+i,2)}")
    for i in range(0, 4, 2): a(f"v_mov_b64 {vr(Qr[0]+i,2)}, {vr(Qr[2]+i,2)}")
    a(f"s_branch {L('x1')}")
    a.label(L("x0"))
    for q in range(2):
        for r in range(3): a(f"ds_write_b128 v{cX0}, {vr(O[q+2]+4*r,4)} offset:{3072*q+1024*r}")
    a("s_waitcnt lgkmcnt(0)")
    a(f"ds_write_b32 v{vT[4]}, v{vT[5]} offset:32")
    a.label(L("x1"))
    a(f"v_xor_b32 v{vT[4]}, 8, v{vT[4]}")
    spin_begin("wx", 8 * SPIN)
    a(f"ds_read_b32 v{vT[0]}, v{vT[4]} offset:32")
    a(f"ds_read_b32 v{vT[1]}, v{vCtl} offset:48")
    a("s_waitcnt lgkmcnt(0)")
    a(f"v_add_u32 v{vT[0]}, v{vT[0]}, v{vT[1]}")
    a("s_nop 0")
    a(f"v_readfirstlane_b32 s{sT}, v{vT[0]}")
    a("s_nop 1")
    a(f"s_cmp_eq_u32 s{sT}, 5")
    a(f"s_cbranch_scc1 {L('wxd')}")
    spin_end("wx", 0)
    a.label(L("wxd"))
    st.stamp("x1")
    for r in range(6): a(f"ds_read_b128 {vr(EX+4*r,4)}, v{cX1} offset:{1024*r}")
    a(f"v_and_b32 v{vT[5]}, 0x1f0, v{vKm}")
    a(f"s_and_b32 s{sT}, s{sHead}, 1")
    a(f"s_lshl_b32 s{sT}, s{sT}, 3")
    a(f"s_add_u32 s{sT}, s{sT}, {2*WL.PL}")
    a(f"v_add_u32 v{vT[5]}, s{sT}, v{vT[5]}")
    def bcast_l(o):
        a(f"v_mov_b32 v{o+12}, v{o+8}")
        a(f"v_mov_b32 v{o+13}, v{o+8}")
        a("s_nop 1")
        a(f"v_permlane32_swap_b32 v{o+13}, v{o+12}")
        a("s_nop 1")
    for q in range(2):
        o = O[q]
        a(f"s_waitcnt lgkmcnt({3 - 3*q})")
        for i in (8, 10, 0, 2, 4, 6): a(f"v_pk_add_f32 {vr(o+i,2)}, {vr(o+i,2)}, {vr(EX+12*q+i,2)}")
        a(f"v_mov_b32 v{o+12}, v{o+8}")
        a(f"v_mov_b32 v{o+13}, v{o+8}")
        a(f"v_pk_mul_f32 {vr(o+14,2)}, {vr(o,2)}, 0")
        a(f"v_pk_fma_f32 {vr(o+14,2)}, {vr(o+2,2)}, 0, {vr(o+14,2)}")
        a(f"v_permlane32_swap_b32 v{o+13}, v{o+12}")
        for i in range(4, 12, 2): a(f"v_pk_fma_f32 {vr(o+14,2)}, {vr(o+i,2)}, 0, {vr(o+14,2)}")
        a(f"v_add_f32 v{vM}, v{o+14}, v{o+15}")
        a(f"v_add_f32 v{vM}, v{vM}, v{o+12}")
        a(f"v_cmp_nge_f32 vcc, 0x71800000, v{vM}")
        a(f"s_mov_b32 s{sT}, 0x21800000")
        a(f"v_cmp_gt_f32 s[{sT2+1}:{sT2+2}], s{sT}, v{vM}")
        a("s_nop 1")
        a(f"s_or_b64 vcc, vcc, s[{sT2+1}:{sT2+2}]")
        a(f"s_cbranch_scc0 {L('fin%d' % q)}")
        if q == 1:
            for i in range(0, 4, 2): a(f"v_mov_b64 {vr(Qm[0]+i,2)}, {vr(Qm[1]+i,2)}")
            a(f"v_mov_b64 {vr(Qr[0],2)}, {vr(Qr[1],2)}")
        a(f"s_call_b64 s[{sRet}:{sRet+1}], {L('slow')}")
        for i in range(0, 14, 2): a(f"v_mov_b64 {vr(o+i,2)}, {vr(O[2]+i,2)}")
        a.label(L("fin%d" % q))
        a(f"v_rcp_f32 v{vM}, v{o+12}")
        if q == 0: a("s_waitcnt vmcnt(0)")
        else: a("s_nop 0")
        a(f"v_mul_f32 v{o+14}, v{vM}, v{vG1+q}")
        for i in range(0, 12, 2): a(f"v_pk_mul_f32 {vr(o+i,2)}, {vr(o+i,2)}, {vr(o+14,2)} op_sel_hi:[1,0]")
        po = PO + 8 * q
        for i in range(6): a(f"v_cvt_pk_bf16_f32 v{po+i}, v{o+2*i}, v{o+2*i+1}")
        for i in range(6): a(f"v_min_u32 v{po+i}, -2, v{po+i}")
        a(f"buffer_store_dwordx4 {vr(po,4)}, v{vKm}, s[{sQ}:{sQ+3}], s{sOK} offen offset:{512*q} sc1")
        a(f"s_mov_b64 exec, s[{sLo}:{sLo+1}]")
        a(f"buffer_store_dwordx2 {vr(po+4,2)}, v{vT[5]}, s[{sQ}:{sQ+3}], s{sOK} offen offset:{512*q} sc1")
        a("s_mov_b64 exec, -1")
    st.stamp("ost")
    if not owait:
        if hbar: a("s_barrier")
        else: lds_inc(52)
    coa = oahead
    def chk(o):
        a(f"v_max3_u32 v{vT[0]}, v{o}, v{o+1}, v{o+2}")
        a(f"v_max_u32 v{vT[0]}, v{vT[0]}, v{o+3}")
        a(f"v_cmp_eq_u32 vcc, -1, v{vT[0]}")
        a("s_nop 1")
        a("s_cmp_eq_u64 vcc, 0")
    def ldO(OF_, vo, s_):
        a(f"s_mov_b32 s{sT}, {4*WL.PL*s_}")
        a(f"buffer_load_dwordx4 {vr(OF_[s_],4)}, v{vo}, s[{sD}:{sD+3}], s{sT} offen sc1")
    def stages(tag, n, OF_, vo, AF_, nres, vr_, AC_, first0):
        oahead = hoa if tag == 'h' else coa
        for s_ in range(min(oahead, n)): ldO(OF_, vo, s_)
        srd(a, sC, 22, 0, 2048 * 1280)
        a(f"s_mov_b32 s59, {SPIN}")
        for s_ in range(n):
            a.label(L(f"{tag}st{s_}"))
            a(f"s_waitcnt vmcnt({min(n - 1 - s_, oahead - 1)})")
            chk(OF_[s_])
            a(f"s_cbranch_scc1 {L(f'{tag}ok{s_}')}")
            a(f"s_call_b64 s[{sRet}:{sRet+1}], {L(tag + 'retry')}")
            a(f"s_cbranch_scc1 {L(f'{tag}st{s_}')}")
            a.label(L(f"{tag}ok{s_}"))
            if s_ + oahead < n: ldO(OF_, vo, s_ + oahead)
            younger = min(n, s_ + nres) - 1 - s_
            a(f"s_waitcnt lgkmcnt({min(15, 10 * younger)})")
            for t in range(5):
                c = "0" if (first0 and s_ == 0) else vr(AC_[t], 4)
                a(f"v_mfma_f32_16x16x32_bf16 {vr(AC_[t],4)}, {vr(AF_[s_ % len(AF_)][t],4)}, {vr(OF_[s_],4)}, {c}")
            if s_ + nres < n: rd(AF_[(s_ + nres) % len(AF_)], vr_, 5120 * (s_ + nres))
        st.stamp("dmf")
        a("s_nop 7")
    def retry(tag, n, OF_, vo):
        a.label(L(tag + "retry"))
        a("s_waitcnt vmcnt(0)")
        a(f"s_sleep {hrs if (hearly and tag == 'h') else rsleep}")
        for s_ in range(n):
            chk(OF_[s_])
            a(f"s_cbranch_scc1 {L(f'{tag}rt{s_}')}")
            ldO(OF_, vo, s_)
            a.label(L(f"{tag}rt{s_}"))
        a("s_waitcnt vmcnt(0)")
        a("s_sub_u32 s59, s59, 1")
        a("s_cmp_gt_i32 s59, 0")
        a(f"s_setpc_b64 s[{sRet}:{sRet+1}]")
    def dfin(keep, send, AC_, AB_, wr, rdd, vst):
        for r, t in enumerate(send): a(f"ds_write_b128 v{wr}, {vr(AC_[t],4)} offset:{1024*r}")
        a("s_waitcnt lgkmcnt(0)")
        a("s_barrier")
        for r, t in enumerate(keep): a(f"ds_read_b128 {vr(AB_[t],4)}, v{rdd} offset:{1024*r}")
        for r, t in enumerate(keep):
            a(f"s_waitcnt lgkmcnt({len(keep)-1-r})")
            for i in range(4): a(f"v_add_f32 v{AC_[t]+i}, v{AC_[t]+i}, v{AB_[t]+i}")
            a(f"v_cvt_pk_bf16_f32 v{AC_[t]}, v{AC_[t]}, v{AC_[t]+1}")
            a(f"v_cvt_pk_bf16_f32 v{AC_[t]+1}, v{AC_[t]+2}, v{AC_[t]+3}")
            a(f"buffer_store_dwordx2 {vr(AC_[t],2)}, v{vst}, s[{sC}:{sC+3}], 0 offen offset:{32*t}")
    for k in range(4): rd(AF[k], cR, 5120 * k)
    for o_ in cOF:
        pass
    a(f"v_add_u32 v{cD1}, 3072, v{cX1}")
    if owait:
        if hearly: lds_inc(52)
        a("s_waitcnt vmcnt(0)")
        if not hearly: a("s_barrier")
        else: a("s_waitcnt lgkmcnt(0)")
    elif odelay: a(f"s_sleep {odelay}")
    stages("c", 20 - NL, cOF, cO, AF, 4, cR, cAC, True)
    dfin([0, 1, 2], [3, 4], cAC, AF[4 if (20 - NL) % 5 != 0 else 0], cX1, cD1, cSt)
    a(f"s_branch {L('dend')}")

    a.label(L("hook"))
    a(f"s_cmp_eq_u32 s{sCnt}, 0")
    a(f"s_cbranch_scc0 {L('hook3')}")
    st.stamp("k0a")
    lds_wait("wb", 24, 1)
    st.stamp("k0b")
    a(f"s_branch {L('hookr')}")
    a.label(L("hook3"))
    st.stamp("k3a")
    lds_wait("wg", 28, 1)
    a(f"s_mov_b32 s{sK+2}, 0")
    srd(a, sD, sWS, WL.GATE, 2048 * 8)
    a(f"v_bfe_u32 v{vT[0]}, v{vKm}, 4, 5")
    a(f"v_lshlrev_b32 v{vT[0]}, 3, v{vT[0]}")
    a(f"s_lshl_b32 s{sT}, s{sKh}, 10")
    a(f"s_add_u32 s{sT}, s{sU0}, s{sT}")
    a(f"s_lshr_b32 s{sT}, s{sT}, 1")
    for q in range(2): a(f"buffer_load_dword v{vG1+q}, v{vT[0]}, s[{sD}:{sD+3}], s{sT} offen offset:{4+256*q} sc1")
    a(f"s_branch {L('hookr')}")

    a.label(L("help"))
    hR = 10; hR2 = 11; hO = 12; hSt = 13; hD0 = 14; hD1 = 15; hG = 16; hWo = 17; hGd = 18; hWs = 19
    hAC = [20 + 4 * t for t in range(5)]
    hOF = [40 + 4 * i for i in range(NL)]
    NH = (TOP - (40 + 4 * NL)) // 20
    hAF = [[40 + 4 * NL + 20 * k + 4 * t for t in range(5)] for k in range(NH)]
    WsF = hOF[0:4]; GFl = hOF[4]; hGt = GFl + 12; hKF = GFl + 13
    sWo = sD; sM0 = 3
    a("s_setprio 3")
    coords()
    d_addrs(hO, hSt, hR, 0, hWs, hGt)
    a(f"s_cmp_lt_u32 s{sEb8}, 4")
    a(f"s_cselect_b32 s{sT}, 0, 3")
    a(f"v_xor_b32 v{vT[1]}, s{sT}, v{vT[1]}")
    a(f"v_mul_u32_u24 v{hR2}, 176, v{vT[2]}")
    a(f"v_lshl_add_u32 v{hR2}, v{vT[1]}, 3, v{hR2}")
    a(f"v_add_u32 v{hR2}, {GIMG}, v{hR2}")
    slot_addr(hD0, 2, 0)
    a(f"v_add_u32 v{hD1}, 3072, v{hD0}")
    a(f"v_mul_u32_u24 v{vT[2]}, 187, v{vL}")
    a(f"v_lshrrev_b32 v{vT[2]}, 11, v{vT[2]}")
    a(f"v_mul_u32_u24 v{vT[3]}, 11, v{vT[2]}")
    a(f"v_sub_u32 v{vT[3]}, v{vL}, v{vT[3]}")
    a(f"v_mul_u32_u24 v{hGd}, {WL.GA}, v{vT[2]}")
    a(f"v_lshrrev_b32 v{vT[2]}, 1, v{vT[3]}")
    a(f"v_lshl_add_u32 v{hGd}, v{vT[2]}, 10, v{hGd}")
    a(f"v_and_b32 v{vT[3]}, 1, v{vT[3]}")
    a(f"v_lshl_add_u32 v{hGd}, v{vT[3]}, 4, v{hGd}")
    a(f"s_sub_u32 s{sT}, 7, s{sEb8}")
    a(f"s_sub_u32 s{sT2}, 32, s{sCc}")
    a(f"s_and_b32 s{sT2}, s{sT2}, 31")
    a(f"s_cmp_lt_u32 s{sEb8}, 4")
    a(f"s_cselect_b32 s{sT}, s{sEb8}, s{sT}")
    a(f"s_cselect_b32 s{sT2}, s{sCc}, s{sT2}")
    a(f"s_mul_i32 s{sT}, s{sT}, 5120")
    a(f"s_lshl_b32 s{sT2}, s{sT2}, 5")
    a(f"s_add_u32 s{sT}, s{sT}, s{sT2}")
    a(f"v_add_u32 v{hGd}, s{sT}, v{hGd}")
    a(f"v_lshlrev_b32 v{hWo}, 4, v{vL}")
    if wsg:
        wZ = [hAF[0][0], hAF[1][0]]; wK = hAF[2][0]; wF = wK + 2
        a(f"v_cvt_f32_u32 v{wF}, v{hWs}")
        a(f"v_mul_f32 v{wF}, 0x3a000000, v{wF}")
        a(f"v_cos_f32 v{wK}, v{wF}")
        a(f"v_lshrrev_b32 v{vT[2]}, 4, v{vL}")
        a(f"v_add_f32 v{wK}, v{wK}, v{wK}")
        a(f"v_mov_b32 v{wK+1}, v{wK}")
        def wsf(s_):
            Z = wZ[s_]
            a(f"v_lshl_add_u32 v{Z}, v{vT[2]}, 3, {32*s_}")
            a(f"v_cvt_f32_u32 v{Z}, v{Z}")
            a(f"v_mul_f32 v{Z}, v{Z}, v{wF}")
            trig1(Z, wF, wK)
            trig2(Z, WsF[s_], WsF[2 + s_])
        inter(lambda: wsf(0), lambda: wsf(1))
    a(f"s_call_b64 s[{sVm}:{sVm+1}], {L('p2sub')}")
    lds_wait("hb", 24, 1, 4)
    a(f"s_setprio {hp0}")
    a(f"s_cmp_eq_u32 s{sGF}, 0")
    a(f"s_cbranch_scc1 {L('hg')}")
    a(f"s_cmp_ge_u32 s{sJ}, 20")
    a(f"s_cbranch_scc1 {L('hg1')}")
    g_stores(sC)
    a.label(L("hg1"))
    a("s_waitcnt vmcnt(0)")
    put_flag(f"s{sGF}")
    a.label(L("hg"))
    lds_wait("hr", 8, 8, 4)
    st.stamp("hp2")
    for p_ in range(0 if wsg else 2):
        srd(a, sD, 6 + 2 * p_, 0, 2048 * 4096)
        a(f"buffer_load_dwordx4 {vr(WsF[2*p_],4)}, v{hWs}, s[{sD}:{sD+3}], 0 offen")
        a(f"buffer_load_dwordx4 {vr(WsF[2*p_+1],4)}, v{hWs}, s[{sD}:{sD+3}], 0 offen offset:64")
    if ot:
        srd(a, sC, 22, 0, 2048 * 1280)
        a(f"buffer_load_dword v{hG}, v{hSt}, s[{sC}:{sC+3}], 0 offen sc1")
        a(f"buffer_load_dword v{hG}, v{hSt}, s[{sC}:{sC+3}], 0 offen offset:128 sc1")
    a(f"s_mul_i32 s{sT}, s{sEb8}, 102400")
    a(f"s_add_u32 s{sT}, s{sT}, {WL.WP}")
    srd(a, sWo, sWS, f"s{sT}", 102400)
    a(f"s_and_b32 s{sM0}, s{sW}, 3")
    a(f"s_lshl_b32 s{sM0}, s{sM0}, 10")
    a.label(L("hwo"))
    a(f"s_mov_b32 m0, s{sM0}")
    a(f"s_waitcnt vmcnt({wdep})")
    a(f"buffer_load_dwordx4 v{hWo}, s[{sWo}:{sWo+3}], s{sM0} offen lds")
    if wpace: a(f"s_sleep {wpace // 4}")
    a(f"s_add_u32 s{sM0}, s{sM0}, 4096")
    a(f"s_cmp_lt_u32 s{sM0}, 102400")
    a(f"s_cbranch_scc1 {L('hwo')}")
    st.stamp("hwo")
    if pgp: a("s_setprio 3")
    a(f"s_cmp_lg_u32 s{sW}, 4")
    a(f"s_cbranch_scc1 {L('hpg')}")
    a("s_cmp_lg_u32 s2, 0")
    a(f"s_cbranch_scc1 {L('ed')}")
    a(f"v_lshlrev_b32 v{vT[0]}, 9, v{vL}")
    a(f"s_mov_b32 s{sT2}, {WL.FA}")
    spin_begin("pe")
    for i in range(4): a(f"buffer_load_dword v{vT[2]+i}, v{vT[0]}, s[{sFl}:{sFl+3}], s{sT2} offen offset:{128*i} sc1")
    a("s_waitcnt vmcnt(0)")
    all_nonce([vT[2], vT[3], vT[4], vT[5]], "ped")
    spin_end("pe")
    a.label(L("ped"))
    put_flag("0")
    a.label(L("ed"))
    spin_begin("pg")
    a(f"v_mul_u32_u24 v{vT[0]}, 48, v{vL}")
    a(f"buffer_load_dwordx4 {vr(GFl,4)}, v{vT[0]}, s[{sFl}:{sFl+3}], 0 offen offset:{WL.FG} sc1")
    a(f"buffer_load_dwordx4 {vr(GFl+4,4)}, v{vT[0]}, s[{sFl}:{sFl+3}], 0 offen offset:{WL.FG+16} sc1")
    a(f"buffer_load_dwordx2 {vr(GFl+8,2)}, v{vT[0]}, s[{sFl}:{sFl+3}], 0 offen offset:{WL.FG+32} sc1")
    a(f"v_lshlrev_b32 v{vT[0]}, 2, v{vL}")
    a(f"s_mov_b32 s{sT}, {WL.FP + 256}")
    a(f"buffer_load_dword v{GFl+10}, v{vT[0]}, s[{sFl}:{sFl+3}], s{sT} offen sc1")
    a(f"s_mov_b32 s{sT}, {WL.FA + 240*128}")
    a(f"v_and_b32 v{vT[0]}, 15, v{vL}")
    a(f"v_lshlrev_b32 v{vT[0]}, 7, v{vT[0]}")
    a(f"buffer_load_dword v{GFl+11}, v{vT[0]}, s[{sFl}:{sFl+3}], s{sT} offen sc1")
    a("s_waitcnt vmcnt(0)")
    all_nonce([GFl + i for i in range(12)], "pgd")
    spin_end("pg", 16)
    a.label(L("pgd"))
    lds_set(28)
    a.label(L("hpg"))
    lds_wait("hq", 28, 1, 4)
    srd(a, sWo, sWS, WL.GATE, 2048 * 8)
    a(f"buffer_load_dword v{hG}, v{hGt}, s[{sWo}:{sWo+3}], 0 offen sc1")
    srd(a, sWo, sWS, WL.G, WL.G_SIZE)
    a(f"s_and_b32 s{sT2}, s{sW}, 3")
    a(f"s_mul_i32 s{sM0}, s{sT2}, {4*176}")
    a(f"s_mul_i32 s{sT2}, s{sT2}, {8*WL.GA}")
    a("s_mov_b32 exec_hi, 0xfff")
    for i in range(8):
        a(f"s_add_u32 m0, s{sM0}, {GIMG + 16*176*i}")
        a(f"s_add_u32 s{sT}, s{sT2}, {(32*(i//2) + 4*(i%2))*WL.GA}")
        a(f"s_waitcnt vmcnt({wdep})")
        a(f"buffer_load_dwordx4 v{hGd}, s[{sWo}:{sWo+3}], s{sT} offen lds")
    a("s_mov_b64 exec, -1")
    a("s_waitcnt vmcnt(0)")
    lds_inc(48)
    lds_wait("hi", 48, 4, 2)
    st.stamp("him")
    if stamps: a("s_waitcnt lgkmcnt(0)")
    a(f"s_setprio {hp1}")
    def ymf(off):
        for k in range(4): rd(hAF[k], hR2, GSTEP * k + off, 176)
        for k in range(4):
            a(f"s_waitcnt lgkmcnt({min(15, 30 - 10*k)})")
            for t in range(5):
                c = "0" if k == 0 else vr(hAC[t], 4)
                a(f"v_mfma_f32_16x16x32_bf16 {vr(hAC[t],4)}, {vr(hAF[k][t],4)}, {vr(WsF[k],4)}, {c}")
        a("s_nop 7")
    a(f"s_cmp_lt_u32 s{sEb8}, 4")
    a(f"s_cbranch_scc0 {L('ymir')}")
    ymf(0)
    for t in range(5):
        for i in (0, 2): a(f"v_pk_mul_f32 {vr(hAC[t]+i,2)}, {vr(hAC[t]+i,2)}, {vr(hG,2)} op_sel_hi:[1,0]")
    a(f"s_branch {L('ydone')}")
    a.label(L("ymir"))
    for i in range(8): a(f"v_xor_b32 v{WsF[2]+i}, 0x80008000, v{WsF[2]+i}")
    if ym6:
        Y5 = hAF[6][0]
        for k in range(4):
            a(f"ds_read_b64_tr_b16 {vr(hAF[5][k],2)}, v{hR2} offset:{GSTEP*k + 160}")
            a(f"ds_read_b64_tr_b16 {vr(hAF[5][k]+2,2)}, v{hR2} offset:{GSTEP*k + 160 + 16*176}")
        a(f"v_add_u32 v{vT[0]}, 48, v{vL}")
        a(f"v_lshlrev_b32 v{vT[0]}, 2, v{vT[0]}")
        a("s_waitcnt lgkmcnt(0)")
        for k in range(4):
            a(f"v_mfma_f32_16x16x32_bf16 {vr(Y5,4)}, {vr(hAF[5][k],4)}, {vr(WsF[k],4)}, {'0' if k == 0 else vr(Y5,4)}")
        ymf(0)
        a("s_mov_b32 exec_lo, 0"); a("s_mov_b32 exec_hi, 0xffff0000")
        for t in range(5): a(f"v_mov_b32 v{hAC[t]}, v{hAC[t+1] if t < 4 else Y5}")
        a("s_mov_b64 exec, -1")
        for t in range(5): a(f"ds_bpermute_b32 v{hAF[4][t]}, v{vT[0]}, v{hAC[4-t]}")
    else:
        ymf(8)
        for t in range(5): a(f"v_mul_f32 v{hAF[4][t]}, v{hAC[4-t]}, v{hG}")
        ymf(0)
    for t in range(5):
        for i in range(1, 4): a(f"v_mul_f32 v{hAF[4][t]+i}, v{hAC[4-t]+4-i}, v{hG}")
    if ym6:
        a("s_waitcnt lgkmcnt(0)")
        for t in range(5): a(f"v_mul_f32 v{hAF[4][t]}, v{hAF[4][t]}, v{hG}")
    for t in range(5):
        for i in (0, 2): a(f"v_mov_b64 {vr(hAC[t]+i,2)}, {vr(hAF[4][t]+i,2)}")
    a.label(L("ydone"))
    for k in range(NH): rd(hAF[k], hR, 5120 * k)
    for o_ in hOF:
        for i in (0, 2):
            if hz: a(f"v_mov_b64 {vr(o_+i,2)}, 0")
    srd(a, sD, sWS, WL.OF, 80 * WL.PL)
    st.stamp("hrdy")
    if hearly:
        a("s_waitcnt lgkmcnt(0)")
    elif hbar:
        a("s_waitcnt lgkmcnt(0)")
        a("s_barrier")
    else: lds_wait("ho", 52, 4, hsl)
    a("s_setprio %d" % (0 if hearly else 3))
    if ldel and not owait: a(f"s_sleep {ldel}")
    stages("h", NL, hOF, hO, hAF, NH, hR, hAC, False)
    if hearly: lds_wait("ho", 52, 4, 1)
    dfin([3, 4], [0, 1, 2], hAC, hAF[NH - 1], hD1, hD0, hSt)
    a.label(L("dend"))
    st.finish(9)
    a.label(L("end"))
    a("s_endpgm")
    a.label(L("p2sub"))
    lds_wait("hw", 56, 4, 4)
    a(f"s_cmp_lg_u32 s{sW}, 4")
    a(f"s_cbranch_scc1 {L('hp2')}")
    coords()
    kv_flag_offsets(vT[5])
    a(f"v_lshlrev_b32 v{vT[4]}, 2, v{vL}")
    spin_begin("p2")
    a(f"s_mov_b32 s{sT2}, {WL.FA}")
    a(f"buffer_load_dword v{vT[2]}, v{vT[5]}, s[{sFl}:{sFl+3}], s{sT2} offen sc1")
    a(f"s_mov_b32 s{sT2}, {WL.FP}")
    a(f"buffer_load_dword v{vT[3]}, v{vT[4]}, s[{sFl}:{sFl+3}], s{sT2} offen sc1")
    a("s_waitcnt vmcnt(0)")
    all_nonce([vT[2], vT[3]], "p2d")
    spin_end("p2", 6)
    a.label(L("p2d"))
    lds_set(24)
    a.label(L("hp2"))
    a(f"s_setpc_b64 s[{sVm}:{sVm+1}]")
    retry("c", 20 - NL, cOF, cO)
    retry("h", NL, hOF, hO)

    a.label(L("slow"))
    sSK = sT2 + 1; sSV = sT2 + 2
    a("s_waitcnt vmcnt(0) lgkmcnt(0)")
    a(f"s_mov_b32 s{sK+2}, {81*WL.PL}")
    a(f"s_mov_b32 s{sV+2}, {64*WL.VT}")
    a(f"s_mov_b64 exec, s[{sHi}:{sHi+1}]")
    a(f"v_mov_b64 {vr(Qr[0],2)}, 0")
    a("s_mov_b64 exec, -1")
    a(f"v_mov_b32 v{vM}, 0xff800000")
    a(f"s_mov_b32 s{sSK}, 0")
    def qk_slow():
        a(f"s_bfe_u32 s{sT}, s{sSK}, 0x10009")
        a(f"s_mul_i32 s{sT}, s{sT}, 504")
        a(f"s_sub_u32 s{sT}, s{sSK}, s{sT}")
        a(f"buffer_load_dwordx2 {vr(Kr[0],2)}, v{vKr}, s[{sK}:{sK+3}], s{sT} offen")
        a(f"buffer_load_dwordx4 {vr(Km[0],4)}, v{vKm}, s[{sK}:{sK+3}], s{sSK} offen")
        a("s_waitcnt vmcnt(0)")
        qka(S[0], Km[0], 0)
        a("s_nop 11")
        qkb(S[0], Kr[0], 0)
        a("s_nop 12")
    a.label(L("s1"))
    qk_slow()
    for i in range(0, 16, 2):
        a(f"v_max3_f32 v{vM}, v{vM}, v{S[0]+i}, v{S[0]+i+1}")
    a(f"s_add_u32 s{sSK}, s{sSK}, 512")
    a(f"s_cmp_lt_u32 s{sSK}, {WL.PL}")
    a(f"s_cbranch_scc1 {L('s1')}")
    a(f"v_mov_b32 v{vT[0]}, v{vM}")
    a("s_nop 1")
    a(f"v_permlane32_swap_b32 v{vT[0]}, v{vM}")
    a("s_nop 1")
    a(f"v_max_f32 v{vM}, v{vM}, v{vT[0]}")
    a(f"v_cvt_pk_bf16_f32 v{S[0]}, 0, -v{vM}")
    a(f"v_sub_f32 v{vT[0]}, 0, v{vM}")
    a(f"v_sub_f32 v{vT[0]}, v{vT[0]}, v{S[0]}")
    a(f"v_cvt_pk_bf16_f32 v{S[0]+1}, 0, v{vT[0]}")
    a(f"v_sub_f32 v{vT[1]}, v{vT[0]}, v{S[0]+1}")
    a(f"s_mov_b64 exec, s[{sHi}:{sHi+1}]")
    a(f"v_cvt_pk_bf16_f32 v{Qr[0]}, v{S[0]}, v{S[0]+1}")
    a(f"v_cvt_pk_bf16_f32 v{Qr[0]+1}, v{vT[1]}, 0")
    a("s_mov_b64 exec, -1")
    for i in range(0, 16, 2): a(f"v_mov_b64 {vr(O[2]+i,2)}, 0")
    a(f"s_mov_b32 s{sSK}, 0")
    a(f"s_mov_b32 s{sSV}, 0")
    a.label(L("s2"))
    a(f"buffer_load_dwordx4 {vr(Vb[0][0],4)}, v{vV0}, s[{sV}:{sV+3}], s{sSV} offen")
    a(f"buffer_load_dwordx4 {vr(Vb[0][1],4)}, v{vV1}, s[{sV}:{sV+3}], s{sSV} offen")
    qk_slow()
    for i in range(16): exp(0, i)
    a("s_nop 1")
    pv(O[2], Vb[0][0], S[0])
    pv(O[2], Vb[0][1], S[0] + 8)
    a(f"s_add_u32 s{sSK}, s{sSK}, 512")
    a(f"s_add_u32 s{sSV}, s{sSV}, {WL.VT}")
    a(f"s_cmp_lt_u32 s{sSK}, {WL.PL}")
    a(f"s_cbranch_scc1 {L('s2')}")
    a("s_nop 12")
    bcast_l(O[2])
    a(f"s_setpc_b64 s[{sRet}:{sRet+1}]")
    a.label(L("cend"))
    return a.text(), kernel_desc(name, 256, 102), f"; @launch grid=(256,1,1) block=(512,1,1) lds={LDS_SIZE}"

if __name__ == "__main__":
    import sys
    from gen import build
    path = sys.argv[1]
    sn = [x[3:].split(',') for x in sys.argv if x.startswith('sn=')]
    kw = {x.split('=')[0]: eval(x.split('=')[1]) for x in sys.argv[2:] if not x.startswith('sn=')}
    hd = kw.pop('hdbg', False)
    build(path, [gen(stamps=(2 if hd else bool(sn)), snames=sn[0] if sn else (), **kw)])
```

```python
from asm import *

QSCALE = 0x3ea52b5c
NAME = "gated_mix__spectral_fnet__softmax_full_mha__prompt_kernel"
LDS_X = 131072
LDS_CTL = LDS_X + 24576
LDS_SIZE = LDS_CTL + 64
GSTEP = 32 * 176
GIMG = 20 * 5120
SPIN = 200000
STAGE = [0, 0x8000, 0x18000, 0x10000]

DOC = """; ---------------------------------------------------------------------------------------------------------
;  phase A  QKV = x @ wqkv in 128x128 tiles (4 loader waves LDS-DMA, 4 compute waves MFMA), written through to d_ws
; ---------------------------------------------------------------------------------------------------------
"""

def gen(pre=False, xlate=False, nox=False, nomf=False, ym6=True, wsg=True, ot=False, wt=1, hz=False, poll2=False, xq=True, hearly=False, hrs=8, hoa=4, si=0, pgp=False, owait=True, deep=False, bpos=0, gun=2, wgen=True, gprio=2, fall=0, fprio=3, hbar=True, wdep=1, hp0=0, hp1=0, hsl=4, NL=12, gdel=True, wpace=0, ldel=8, mpos=1, name=NAME, stamps=False, snames=(), rotx=(0, 2, 5, 7, 5, 7, 0, 2), rin=(5, 5), touch=False, tpos=5, gtouch=True, fsplit=5,
        prio=(4, 2, 1), psleep=4, wotouch=False, probe=None, fwait=True, nodma=False, kvsc1=False, noload=False, nowait=False, noexec=False, spread=False, rt=True, fstart=6, rprobe=False, enc=None, encw=0, oearly=False, rsleep=2, rmode=0, ypost=True, obar=False, nfirst=(0, 0), afirst=True, odelay=8, gdefer=0, pois=5, osc='', lprio=3, cprio=2, wsleep=3, ldelay=0, pplain=True, glate=False, m8=False, wsbase=0, cbperm=True, prog=True, strict=True, defer=False, dmask=6, s2late=True, noaux=False, cwarm=False, oahead=4, dsc1=False, dzero=False, dburst=False, dnt=False, dpair=False, peel=True, fcrit=True, cdelay=0, lpos=3, oflag=0, nows=False, krskip=False, dhalf=False, wpack=True, wdtouch=False, nowo=False, nog=False, pfirst=False):
    a = Asm()
    kernel_begin(a, name)
    L = lambda s: f"L_{s}"
    st = Stamps(a, stamps, 0); st.names = list(snames); st.op = 's_memrealtime' if rt else 's_memtime'
    if enc:
        class Enc:
            names = []
            def start(self): a("s_memrealtime s[70:71]"); a("s_memrealtime s[72:73]")
            def stamp(self, n):
                if n == enc: a("s_memrealtime s[72:73]"); a("s_waitcnt lgkmcnt(0)")
            def finish(self, i):
                a("s_lshl_b32 s68, s2, 3"); a("s_add_u32 s68, s68, s52")
                a(f"s_cmp_lg_u32 s68, {136*8+encw}")
                a("s_cbranch_scc1 L_encd")
                a("s_memrealtime s[74:75]"); a("s_waitcnt lgkmcnt(0)")
                a("s_sub_u32 s72, s72, s70"); a("s_lshl_b32 s72, s72, 2"); a("s_add_u32 s72, s72, s74")
                a.label("L_encl")
                a("s_memrealtime s[74:75]"); a("s_waitcnt lgkmcnt(0)")
                a("s_sub_u32 s68, s74, s72"); a("s_cmp_lt_i32 s68, 0")
                a("s_cbranch_scc1 L_encl")
                a.label("L_encd")
        st = Enc()
    sWS = 26
    sA = 28; sB = 32; sC = 36; sD = 40; sFl = 44; sE = 48
    sW = 52; sXc = 53; sJ = 54; sNonce = 55; sT = 56; sT2 = 57; sCnt = 58
    sLo = 60; sVm = 62; sHi = 94; sDm = 96
    sGF = 25
    sAF = 24
    vL = 1; vT = [2, 3, 4, 5, 6, 7]; vCtl = 8
    VB = 10
    TOP = 252 if stamps else 256

    def spin_begin(lab, n=SPIN):
        a(f"s_mov_b32 s59, {n}")
        a.label(L(lab))
    def spin_end(lab, sleep=2):
        a(f"s_sleep {sleep}")
        a("s_sub_u32 s59, s59, 1")
        a("s_cmp_lg_u32 s59, 0")
        a(f"s_cbranch_scc1 {L(lab)}")
    def put_flag(soff):
        a(f"v_mov_b32 v{vT[0]}, 0")
        a(f"v_mov_b32 v{vT[1]}, s{sNonce}")
        a("s_mov_b64 exec, 1")
        a(f"buffer_store_dword v{vT[1]}, v{vT[0]}, s[{sFl}:{sFl+3}], {soff} offen sc1")
        a("s_mov_b64 exec, -1")
    def lds_inc(off):
        a(f"v_mov_b32 v{vT[0]}, 1")
        a("s_mov_b64 exec, 1")
        a(f"ds_add_u32 v{vCtl}, v{vT[0]} offset:{off}")
        a("s_mov_b64 exec, -1")
    def lds_wait(lab, off, val, sl=1):
        spin_begin(lab, 8 * SPIN)
        a(f"ds_read_b32 v{vT[0]}, v{vCtl} offset:{off}")
        a("s_waitcnt lgkmcnt(0)")
        a(f"v_readfirstlane_b32 s{sT}, v{vT[0]}")
        a("s_nop 1")
        a(f"s_cmp_eq_u32 s{sT}, {val}")
        a(f"s_cbranch_scc1 {L(lab+'d')}")
        spin_end(lab, sl)
        a.label(L(lab + "d"))
    def sel_srd(d, cond_s, p0, p1, size):
        a(f"s_cmp_eq_u32 s{cond_s}, 0")
        a(f"s_cselect_b32 s{d}, s{p0}, s{p1}")
        a(f"s_cselect_b32 s{d+1}, s{p0+1}, s{p1+1}")
        a(f"s_and_b32 s{d+1}, s{d+1}, 0xffff")
        a(f"s_mov_b32 s{d+2}, {size}")
        a(f"s_mov_b32 s{d+3}, 0x20000")
    def after_kernarg():
        a("s_waitcnt lgkmcnt(0)")
        st.stamp("karg")
        if wsbase:
            a(f"s_add_u32 s{sWS}, s{sWS}, {hex(wsbase << 20)}")
            a(f"s_addc_u32 s{sWS+1}, s{sWS+1}, 0")
        a(f"s_load_dword s{sNonce}, s[{sWS}:{sWS+1}], {WL.EPOCH}")
        srd(a, sA, 4, 0, 2048 * 1280)
    def masks():
        a("v_mov_b32 v9, 0")
        for i in range(4): a(f"v_mov_b32 v{TOP-36+i}, 0")
        a(f"s_mov_b32 s{sGF}, 0"); a(f"s_mov_b32 s{sAF}, 0"); a("s_mov_b32 s15, 0")
        srd(a, sFl, sWS, WL.FLAG, WL.FLAG_SIZE)
        a(f"v_mov_b32 v{vCtl}, {LDS_CTL}")
        a(f"s_mov_b32 s{sLo}, -1"); a(f"s_mov_b32 s{sLo+1}, 0")
        a(f"s_mov_b32 s{sHi}, 0"); a(f"s_mov_b32 s{sHi+1}, -1")
        a(f"s_mov_b32 s{sVm}, 0xfffff"); a(f"s_mov_b32 s{sVm+1}, 0xfffff")
        a(f"s_mov_b32 s{sDm}, -1"); a(f"s_mov_b32 s{sDm+1}, 0xff")
    def nat_read_addrs(dst, stile, shift):
        a(f"v_and_b32 v{vT[0]}, 31, v{vL}")
        a(f"v_lshrrev_b32 v{vT[1]}, 5, v{vL}")
        a(f"v_bfe_u32 v{vT[2]}, v{vL}, 1, 3")
        a(f"v_xor_b32 v{vT[1]}, v{vT[1]}, v{vT[2]}")
        a(f"v_lshlrev_b32 v{vT[1]}, 4, v{vT[1]}")
        a(f"v_lshl_add_u32 v{vT[0]}, v{vT[0]}, 7, v{vT[1]}")
        a(f"s_lshl_b32 s{sT}, s{stile}, {shift}")
        a(f"v_add_u32 v{dst[0]}, s{sT}, v{vT[0]}")
        for ks in range(1, 4):
            a(f"v_xor_b32 v{dst[ks]}, {32*ks}, v{dst[0]}")

    a("s_cmp_ge_u32 s2, 256")
    a(f"s_cbranch_scc1 {L('end')}")
    st.start()
    if probe:
        a("s_memrealtime s[70:71]")
        a("s_load_dwordx2 s[64:65], s[0:1], 80")
        a("s_waitcnt lgkmcnt(0)")
        a("s_and_b32 s65, s65, 0xffff"); a("s_mov_b32 s66, 256"); a("s_mov_b32 s67, 0x20000")
        a("s_getreg_b32 s68, hwreg(HW_REG_XCC_ID)")
        a("s_xor_b32 s68, s68, s2"); a("s_and_b32 s68, s68, 7")
        a("s_cbranch_scc0 L_pok")
        a("v_mov_b32 v2, 1")
        a("s_mov_b64 exec, 1")
        a("buffer_store_dword v2, off, s[64:67], 0 sc1")
        a("s_mov_b64 exec, -1")
        a.label("L_pok")
    if rprobe:
        a("s_load_dwordx2 s[64:65], s[0:1], 80")
        a("s_waitcnt lgkmcnt(0)")
        a("s_and_b32 s65, s65, 0xffff"); a("s_mov_b32 s66, 256"); a("s_mov_b32 s67, 0x20000")
        a("s_getreg_b32 s68, hwreg(HW_REG_XCC_ID)")
        a("s_sub_u32 s68, s68, s2"); a("s_and_b32 s68, s68, 7")
        a("s_lshl_b32 s68, s68, 2")
        a("v_cmp_eq_u32 vcc, 0, v0")
        a("v_mov_b32 v2, 1")
        a("s_and_saveexec_b64 s[70:71], vcc")
        a("s_cbranch_execz L_rp0")
        a("buffer_store_dword v2, off, s[64:67], s68 sc1")
        a.label("L_rp0")
        a("s_mov_b64 exec, -1")
    a("s_load_dwordx16 s[4:19], s[0:1], 0")
    a("s_load_dwordx8 s[20:27], s[0:1], 64")
    a(f"v_lshrrev_b32 v{vT[0]}, 6, v0")
    a(f"v_and_b32 v{vL}, 63, v0")
    a(f"v_readfirstlane_b32 s{sW}, v{vT[0]}")
    a(f"s_and_b32 s{sXc}, s2, 7")
    a(f"s_lshr_b32 s{sJ}, s2, 3")
    a(f"s_xor_b32 s{sW}, s{sW}, 4")
    sRb = 98; sCb = 99; sWm = 100; sWn = 101; sWl = 3
    a(f"s_and_b32 s{sRb}, s2, 3")
    a(f"s_lshl_b32 s{sRb}, s{sRb}, 2")
    a(f"s_and_b32 s{sT}, s{sJ}, 3")
    a(f"s_add_u32 s{sRb}, s{sRb}, s{sT}")
    a(f"s_lshr_b32 s{sT}, s{sXc}, 2")
    a(f"s_lshr_b32 s{sCb}, s{sJ}, 2")
    a(f"s_cmp_eq_u32 s{sCb}, 7")
    a(f"s_cselect_b32 s{sT2}, 1, 3")
    a(f"s_lshl_b32 s{sT}, s{sT}, s{sT2}")
    a(f"s_cmp_eq_u32 s{sCb}, 7")
    a(f"s_cselect_b32 s{sT2}, s{sT}, 0")
    a(f"s_cselect_b32 s{sT}, 0, s{sT}")
    a(f"s_add_u32 s{sRb}, s{sRb}, s{sT2}")
    a(f"s_add_u32 s{sCb}, s{sCb}, s{sT}")
    if cbperm:
        tab = [5, 6, 7, 10, 11, 0, 1, 2, 8, 9, 12, 13, 14, 3, 4, 0]
        tv = sum(c << (4 * i) for i, c in enumerate(tab))
        a(f"s_mov_b32 s{sT}, {hex(tv & 0xffffffff)}")
        a(f"s_mov_b32 s{sT2}, {hex(tv >> 32)}")
        a(f"s_lshl_b32 s{sCb}, s{sCb}, 2")
        a(f"s_lshr_b64 s[{sT}:{sT2}], s[{sT}:{sT2}], s{sCb}")
        a(f"s_and_b32 s{sCb}, s{sT}, 15")
    a(f"s_and_b32 s{sWl}, s{sW}, 3")
    a(f"s_and_b32 s{sWm}, s{sW}, 1")
    a(f"s_lshr_b32 s{sWn}, s{sWl}, 1")
    a(f"s_cmp_lt_u32 s{sW}, 4")
    a(f"s_cbranch_scc1 {L('comp')}")

    a.c("=" * 20 + " " + 'LOADER WAVES (also compute phase F)')
    V = Alloc(VB, TOP)
    vRX = [V.get() for _ in range(4)]
    vFW = [V.get() for _ in range(2)]; vFs = V.get(); V.get(); vGs = 9
    V.get(2)
    XR = [[V.get(4, 4) for _ in range(4)] for _ in range(10)]
    FR = V.get(8, 4); FIn = V.get(8, 4)
    ZA = V.get(16, 4); ZB = V.get(16, 4)
    BF = [[V.get(4, 4) for _ in range(2)] for _ in range(3)]
    vDX = [BF[0][0] + i for i in range(4)]; vDW = [BF[0][1] + i for i in range(4)]
    sOX = sD; sOW = sD + 1; sM0 = sD + 2; sBeta = sD + 3; sSp = sE
    if lprio: a(f"s_setprio {lprio}")
    a(f"v_and_b32 v{vT[3]}, 7, v{vL}")
    a(f"v_lshrrev_b32 v{vT[4]}, 4, v{vL}")
    a(f"v_xor_b32 v{vT[3]}, v{vT[3]}, v{vT[4]}")
    a(f"v_lshlrev_b32 v{vT[3]}, 4, v{vT[3]}")
    a(f"v_xor_b32 v{vT[4]}, 64, v{vT[3]}")
    a(f"v_bfe_u32 v{vT[5]}, v{vL}, 3, 2")
    a(f"v_lshrrev_b32 v{vT[1]}, 5, v{vL}")
    a(f"v_lshl_add_u32 v{vT[5]}, v{vT[1]}, 3, v{vT[5]}")
    a(f"s_lshl_b32 s{sT}, s{sRb}, 1")
    a(f"s_add_u32 s{sT}, s{sT}, s{sWn}")
    a(f"s_lshl_b32 s{sT2}, s{sWm}, 5")
    a(f"s_add_u32 s{sCnt}, s{sT}, s{sT2}")
    a(f"v_lshl_add_u32 v{vT[1]}, v{vT[5]}, 6, s{sCnt}")
    a(f"v_mul_u32_u24 v{vT[1]}, 1280, v{vT[1]}")
    a(f"v_add_u32 v{vDX[0]}, v{vT[1]}, v{vT[3]}")
    a(f"v_add_u32 v{vDX[1]}, v{vT[1]}, v{vT[4]}")
    a(f"v_add_u32 v{vDX[1]}, {4*64*1280-1024}, v{vDX[1]}")
    a(f"v_add_u32 v{vDX[2]}, {16*64*1280-2048}, v{vDX[0]}")
    a(f"v_add_u32 v{vDX[3]}, {16*64*1280-2048}, v{vDX[1]}")
    a(f"v_lshrrev_b32 v{vT[0]}, 4, v{vL}")
    a(f"v_bfe_u32 v{vT[1]}, v{vL}, 2, 2")
    a(f"v_xor_b32 v{vT[1]}, v{vT[1]}, v{vT[0]}")
    a(f"v_and_b32 v{vT[2]}, 3, v{vL}")
    a(f"v_lshl_add_u32 v{vT[1]}, v{vT[1]}, 2, v{vT[2]}")
    a(f"v_lshlrev_b32 v{vT[1]}, 4, v{vT[1]}")
    a(f"s_lshl_b32 s{sT}, s{sWl}, 4")
    a(f"v_add_u32 v{vT[0]}, s{sT}, v{vT[0]}")
    a(f"v_mul_u32_u24 v{vT[0]}, 3840, v{vT[0]}")
    a(f"s_lshl_b32 s{sT}, s{sCb}, 8")
    a(f"v_add3_u32 v{vDW[0]}, v{vT[0]}, v{vT[1]}, s{sT}")
    for j in range(1, 4):
        a(f"v_add_u32 v{vDW[j]}, {j*(4*3840-1024)}, v{vDW[0]}")
    rw = 0
    for i, r in enumerate(rotx): rw |= r << (4 * i)
    a(f"s_lshl_b32 s{sT}, s{sXc}, 2")
    a(f"s_lshr_b32 s{sOX}, {hex(rw)}, s{sT}")
    a(f"s_and_b32 s{sOX}, s{sOX}, 15")
    if rin != (0, 0):
        a(f"s_and_b32 s{sT}, s{sJ}, 3")
        a(f"s_mul_i32 s{sT}, s{sT}, {rin[0]}")
        a(f"s_add_u32 s{sOX}, s{sOX}, s{sT}")
        a(f"s_lshr_b32 s{sT}, s{sJ}, 2")
        a(f"s_mul_i32 s{sT}, s{sT}, {rin[1]}")
        a(f"s_add_u32 s{sOX}, s{sOX}, s{sT}")
        a(f"s_mul_i32 s{sT}, s{sOX}, 205")
        a(f"s_lshr_b32 s{sT}, s{sT}, 11")
        a(f"s_mul_i32 s{sT}, s{sT}, 10")
        a(f"s_sub_u32 s{sOX}, s{sOX}, s{sT}")
    a(f"s_mul_i32 s{sOW}, s{sOX}, {64*3840}")
    a(f"s_lshl_b32 s{sOX}, s{sOX}, 7")
    a(f"s_lshl_b32 s{sM0}, s{sWl}, 12")
    after_kernarg()
    a(f"s_cmp_ge_u32 s{sJ}, 30")
    a(f"s_cbranch_scc1 {L('lgate')}")
    srd(a, sB, 16, 0, 640 * 3840)
    def issueX(n):
        a(f"s_add_u32 m0, s{sM0}, {STAGE[n%4]}")
        a("s_nop 0")
        for j in range(4): a(f"buffer_load_dwordx4 v{vDX[j]}, s[{sA}:{sA+3}], s{sOX} offen offset:{1024*j} lds")
    def issueW(n):
        a(f"s_add_u32 m0, s{sM0}, {STAGE[n%4]+0x4000}")
        a(f"s_add_u32 s{sOX}, s{sOX}, 128")
        for j in range(4): a(f"buffer_load_dwordx4 v{vDW[j]}, s[{sB}:{sB+3}], s{sOW} offen offset:{1024*j} lds")
        a(f"s_add_u32 s{sOW}, s{sOW}, {64*3840}")
        a(f"s_cmp_eq_u32 s{sOX}, 1280")
        a(f"s_cselect_b32 s{sOX}, 0, s{sOX}")
        a(f"s_cselect_b32 s{sOW}, 0, s{sOW}")
    def issue(n): issueX(n); issueW(n)
    issue(0); issue(1)
    masks()
    a(f"s_lshr_b32 s{sBeta}, s{sXc}, 2")
    a(f"s_mul_i32 s{sBeta}, s{sBeta}, 5")
    a(f"s_lshr_b32 s{sT}, s{sJ}, 2")
    a(f"s_add_u32 s{sBeta}, s{sBeta}, s{sT}")
    a(f"s_lshl_b32 s{sT}, s{sBeta}, 1")
    a(f"s_add_u32 s{sT}, s{sT}, s{sWm}")
    a(f"s_lshl_b32 s{sT}, s{sT}, 4")
    a(f"v_add_u32 v{vT[5]}, s{sT}, v{vT[5]}")
    a(f"v_mul_u32_u24 v{vT[5]}, 1280, v{vT[5]}")
    a(f"v_add_u32 v{vFW[0]}, v{vT[5]}, v{vT[3]}")
    a(f"v_add_u32 v{vFW[1]}, v{vT[5]}, v{vT[4]}")
    a(f"v_add_u32 v{vFW[1]}, {4*1280-1024}, v{vFW[1]}")
    a(f"v_add_u32 v{vFs}, {320*1280}, v{vT[3]}")
    a(f"v_and_b32 v{vT[0]}, 31, v{vL}")
    a(f"v_lshrrev_b32 v{vT[1]}, 5, v{vL}")
    a(f"v_lshlrev_b32 v{vGs}, 5, v{vT[0]}")
    a(f"v_lshl_add_u32 v{vGs}, v{vT[1]}, 4, v{vGs}")
    a(f"s_mul_i32 s{sT}, s{sCnt}, {WL.GA}")
    a(f"s_lshl_b32 s{sT2}, s{sBeta}, 11")
    a(f"s_add_u32 s{sT}, s{sT}, s{sT2}")
    a(f"v_add_u32 v{vGs}, s{sT}, v{vGs}")
    a(f"s_mul_i32 s{sCnt}, s{sCnt}, 48")
    a(f"s_lshl_b32 s{sT2}, s{sBeta}, 2")
    a(f"s_add_u32 s{sCnt}, s{sCnt}, s{sT2}")
    a(f"s_add_u32 s{sCnt}, s{sCnt}, {WL.FG}")
    nat_read_addrs(vRX, sWl, 12)
    if xq:
        a(f"s_sub_u32 s{sT}, s{sCb}, 1")
        a(f"s_cmp_lt_u32 s{sT}, {40 if nox else 4}")
        a("s_cselect_b64 vcc, -1, 0")
    for n in range(10):
        pr = pre and 1 <= n < 8
        if pr: issueX(n + 2)
        a(f"s_waitcnt vmcnt({(12 if pr else 8) if n < 9 else 0}) lgkmcnt(0)")
        a("s_barrier")
        if xlate and n + 2 < 10: (issueW if pr else issue)(n + 2)
        if xq: a(f"s_cbranch_vccnz {L('nx%d' % n)}")
        for ks in range(4):
            a(f"ds_read_b128 {vr(XR[n][ks],4)}, v{vRX[ks]} offset:{STAGE[n%4] & 0xffff}")
        if xq: a.label(L('nx%d' % n))
        if not xlate and n + 2 < 10: (issueW if pr else issue)(n + 2)
        if n < 9 and (STAGE[n % 4] ^ STAGE[(n + 1) % 4]) & 0x10000:
            for ks in range(4): a(f"v_xor_b32 v{vRX[ks]}, 0x10000, v{vRX[ks]}")
    st.stamp("ldone")
    a(f"s_add_u32 s{sNonce}, s{sNonce}, 1")
    a(f"s_cmp_ge_u32 s{sJ}, 20")
    a(f"s_cbranch_scc1 {L('lq')}")
    if not wgen:
        a("s_setprio 3")
        a(f"s_mov_b32 s{sGF}, s{sCnt}")
        sel_srd(sB, sWn, 10, 12, 640 * 1280)
        srd(a, sC, 10, 0, 640 * 1280)
        a(f"s_lshl_b32 s{sM0}, s{sWl}, 11")
        a(f"s_lshl_b32 s{sT}, s{sBeta}, 2")
        a(f"s_add_u32 s{sT}, s{sT}, s{sWl}")
        a(f"s_cmp_eq_u32 s{sT}, 2")
        a(f"s_cselect_b32 s{sSp}, 0xffffff00, -1")
        a(f"s_cselect_b64 vcc, -1, 0")
        a(f"s_mov_b32 s{sSp+1}, -1")
        WDB = lambda p: (0x10000 + 8192 * p) if p < 8 else 8192 * (p - 8)
        def wdma(p):
            a(f"s_add_u32 m0, s{sM0}, {WDB(p)}")
            a(f"s_mov_b64 exec, s[{sSp}:{sSp+1}]")
            a(f"buffer_load_dwordx4 v{vFW[0]}, s[{sB}:{sB+3}], s{sOX} offen lds")
            a(f"s_cbranch_vccz {L('fs%d' % p)}")
            a("s_mov_b64 exec, 0xff")
            a(f"buffer_load_dwordx4 v{vFs}, s[{sC}:{sC+3}], s{sOX} offen lds")
            a.label(L("fs%d" % p))
            a("s_mov_b64 exec, -1")
            a(f"buffer_load_dwordx4 v{vFW[1]}, s[{sB}:{sB+3}], s{sOX} offen offset:1024 lds")
            a(f"s_add_u32 s{sOX}, s{sOX}, 128")
            a(f"s_cmp_eq_u32 s{sOX}, 1280")
            a(f"s_cselect_b32 s{sOX}, 0, s{sOX}")
        def twl():
            srd(a, sB, 6, 0, 2048 * 4096)
            srd(a, sC, 8, 0, 2048 * 4096)
            a(f"buffer_load_dwordx4 {vr(FR,4)}, v{vT[2]}, s[{sB}:{sB+3}], 0 offen")
            a(f"buffer_load_dwordx4 {vr(FR+4,4)}, v{vT[2]}, s[{sB}:{sB+3}], 0 offen offset:32")
            a(f"buffer_load_dwordx4 {vr(FIn,4)}, v{vT[2]}, s[{sC}:{sC+3}], 0 offen")
            a(f"buffer_load_dwordx4 {vr(FIn+4,4)}, v{vT[2]}, s[{sC}:{sC+3}], 0 offen offset:32")
        if fcrit:
            if not fall:
                a(f"s_and_b32 s{sT}, s{sRb}, 6")
                a(f"s_cbranch_scc1 {L('f0d')}")
            if fall == 2: lds_wait("f0", 4, 4, 2)
            elif fall == 3:
                a(f"s_call_b64 s[{sVm}:{sVm+1}], {L('p2sub')}")
                a(f"s_lshl_b32 s{sT}, s{sBeta}, 2")
                a(f"s_add_u32 s{sT}, s{sT}, s{sWl}")
                a(f"s_cmp_eq_u32 s{sT}, 2")
                a(f"s_cselect_b64 vcc, -1, 0")
                a(f"s_setprio {fprio}")
            else: lds_wait("f0", 20, 4)
        for p in range(10 if fcrit else fsplit): wdma(p)
        a(f"v_and_b32 v{vT[2]}, 31, v{vL}")
        a(f"v_lshrrev_b32 v{vT[1]}, 5, v{vL}")
        a(f"v_lshlrev_b32 v{vT[2]}, 18, v{vT[2]}")
        a(f"v_lshl_add_u32 v{vT[2]}, v{vT[1]}, 4, v{vT[2]}")
        a(f"s_lshl_b32 s{sT}, s{sWl}, 12")
        a(f"s_sub_u32 s{sT}, 0x10000, s{sT}")
        for ks in range(4): a(f"v_add_u32 v{vRX[ks]}, s{sT}, v{vRX[ks]}")
        assert not STAGE[9 % 4] & 0x10000
        if fcrit: twl()
        a("s_waitcnt vmcnt(%d)" % (4 + 2 * (10 - fsplit) if fcrit else 0))
        lds_inc(12)
        lds_wait("f1", 12, 4)
        st.stamp("fb0")
        if stamps: a("s_waitcnt lgkmcnt(0)")
        def rdB(s):
            p, ks = divmod(s, 4)
            if s == 32:
                for k in range(4): a(f"v_xor_b32 v{vRX[k]}, 0x10000, v{vRX[k]}")
            for part in range(2):
                a(f"ds_read_b128 {vr(BF[s%3][part],4)}, v{vRX[ks]} offset:{(WDB(p) & 0xffff) + 4096*part}")
        rdB(0); rdB(1)
        H = 4 * fsplit
        for s in range(40):
            if not fcrit:
                if s == fstart and fwait: lds_wait("f0", 20, 4)
                if fstart <= s < fstart + 10 - fsplit: wdma(fsplit + s - fstart)
                if s == fstart + 10 - fsplit: twl()
            if s == H - 2:
                a("s_waitcnt vmcnt(4)")
                lds_inc(16)
                lds_wait("f2", 16, 4)
                st.stamp("fb1")
                if stamps: a("s_waitcnt lgkmcnt(0)")
            if s + 2 < 40: rdB(s + 2)
            a(f"s_waitcnt lgkmcnt({4 if s < 38 else 2*(39-s)})")
            for part, Z in enumerate((ZA, ZB)):
                c = "0" if s == 0 else vr(Z, 16)
                a(f"v_mfma_f32_32x32x16_bf16 {vr(Z,16)}, {vr(XR[s//4][s%4],4)}, {vr(BF[s%3][part],4)}, {c}")
        assert fstart + 10 - fsplit < H - 2
    if wgen:
        a(f"s_setprio {gprio}")
        a(f"s_mov_b32 s{sGF}, s{sCnt}")
        WDB = lambda p: 0x10000 + 8192 * p
        vE_ = vFW[0]; vF_ = vFW[1]; vD_ = vFs; vA_ = vRX[0]; vB_ = vRX[1]
        a(f"v_and_b32 v{vT[0]}, 31, v{vL}")
        a(f"v_and_b32 v{vE_}, 0x13, v{vT[0]}")
        a(f"v_bfe_u32 v{vT[1]}, v{vT[0]}, 2, 1")
        a(f"v_lshl_add_u32 v{vE_}, v{vT[1]}, 3, v{vE_}")
        a(f"v_bfe_u32 v{vT[1]}, v{vT[0]}, 3, 1")
        a(f"v_lshl_add_u32 v{vE_}, v{vT[1]}, 2, v{vE_}")
        a(f"s_lshl_b32 s{sT}, s{sBeta}, 5")
        a(f"v_add_u32 v{vE_}, s{sT}, v{vE_}")
        a(f"v_cvt_f32_u32 v{vF_}, v{vE_}")
        a(f"v_mul_f32 v{vF_}, 0x3acccccd, v{vF_}")
        a(f"v_lshrrev_b32 v{vD_}, 5, v{vL}")
        a(f"s_lshl_b32 s{sT}, s{sWl}, 4")
        a(f"v_lshl_add_u32 v{vD_}, v{vD_}, 3, s{sT}")
        a(f"s_lshl_b32 s{sT}, s{sWl}, 11")
        a(f"s_add_u32 s{sT}, s{sT}, 0x10000")
        a(f"v_lshlrev_b32 v{vB_}, 4, v{vL}")
        a(f"v_add_u32 v{vA_}, s{sT}, v{vB_}")
        a(f"s_cmp_eq_u32 s{sBeta}, 0")
        a(f"s_cselect_b32 s{sSp}, 1, 0")
        a(f"s_mov_b32 s{sSp+1}, s{sSp}")
        a(f"s_mov_b32 s{sOW}, 0")
        vK_ = vRX[2]
        assert vK_ % 2 == 0
        def kappa():
            a(f"v_cos_f32 v{vK_}, v{vF_}")
            a("s_nop 0")
            a(f"v_add_f32 v{vK_}, v{vK_}, v{vK_}")
            a(f"v_mov_b32 v{vK_+1}, v{vK_}")
        def inter(f, g):
            keep = a.lines
            a.lines = []; f(); l1 = a.lines
            a.lines = []; g(); l2 = a.lines
            a.lines = keep
            for x_, y_ in zip(l1, l2): a.lines += [x_, y_]
        def trig1(Z, step, vK_=vK_):
            a(f"v_fract_f32 v{Z}, v{Z}")
            a(f"v_add_f32 v{Z+2}, v{Z}, v{step}")
            a(f"v_sin_f32 v{Z+1}, -v{Z}")
            a(f"v_cos_f32 v{Z}, v{Z}")
            a(f"v_sin_f32 v{Z+3}, -v{Z+2}")
            a(f"v_cos_f32 v{Z+2}, v{Z+2}")
            for i in range(2, 8):
                a(f"v_pk_fma_f32 {vr(Z+2*i,2)}, {vr(Z+2*i-2,2)}, {vr(vK_,2)}, {vr(Z+2*i-4,2)} neg_lo:[0,0,1] neg_hi:[0,0,1]")
        def trig2(Z, dc, ds_):
            for i in range(4): a(f"v_cvt_pk_bf16_f32 v{dc+i}, v{Z+4*i}, v{Z+4*i+2}")
            for i in range(4): a(f"v_cvt_pk_bf16_f32 v{ds_+i}, v{Z+4*i+1}, v{Z+4*i+3}")
        def seed(Z, add):
            a(f"v_add3_u32 v{Z}, s{sT}, v{vD_}, {add}")
            a(f"v_mul_u32_u24 v{Z}, v{Z}, v{vE_}")
            a(f"v_cvt_f32_u32 v{Z}, v{Z}")
            a(f"v_mul_f32 v{Z}, 0x3acccccd, v{Z}")
            trig1(Z, vF_)
        kappa()
        GO = BF[0][0]
        a(f"s_lshr_b32 s{sT}, s{sOX}, 1")
        a.label(L("wgl"))
        inter(lambda: seed(ZA, 0), lambda: seed(ZB, 64))
        a("s_waitcnt lgkmcnt(0)")
        for h_, Z in enumerate((ZA, ZB)):
            trig2(Z, GO + 8 * h_, GO + 8 * h_ + 4)
            a(f"s_mov_b64 exec, s[{sSp}:{sSp+1}]")
            for i in range(4): a(f"v_mov_b32 v{GO+8*h_+4+i}, 0xbf803f80")
            a("s_mov_b64 exec, -1")
            a(f"ds_write_b128 v{vA_}, {vr(GO+8*h_,4)} offset:{8192*h_}")
            a(f"ds_write_b128 v{vA_}, {vr(GO+8*h_+4,4)} offset:{8192*h_+1024}")
        a(f"v_add_u32 v{vA_}, 16384, v{vA_}")
        a(f"s_add_u32 s{sT}, s{sT}, 128")
        a(f"s_cmp_ge_u32 s{sT}, 640")
        a(f"s_cselect_b32 s{sT2}, 640, 0")
        a(f"s_sub_u32 s{sT}, s{sT}, s{sT2}")
        a(f"s_add_u32 s{sOW}, s{sOW}, 1")
        a(f"s_cmp_lg_u32 s{sOW}, 5")
        a(f"s_cbranch_scc1 {L('wgl')}")
        a("s_waitcnt lgkmcnt(0)")
        lds_inc(12)
        a(f"v_and_b32 v{vT[2]}, 31, v{vL}")
        a(f"v_cvt_f32_u32 v{vF_}, v{vT[2]}")
        a(f"v_mul_f32 v{vF_}, 0x3d000000, v{vF_}")
        a(f"v_and_b32 v{vD_}, 8, v{vD_}")
        kappa()
        def tw(Z, j):
            a(f"v_add_u32 v{Z}, {16*j}, v{vD_}")
            a(f"v_cvt_f32_u32 v{Z}, v{Z}")
            a(f"v_mul_f32 v{Z}, v{Z}, v{vF_}")
            trig1(Z, vF_)
            trig2(Z, FR + 4 * j, FIn + 4 * j)
        inter(lambda: tw(ZA, 0), lambda: tw(ZB, 1))
        a(f"v_add_u32 v{vA_}, 0x10000, v{vB_}")
        a(f"v_add_u32 v{vB_}, 0x20000, v{vB_}")
        a("s_setprio 3")
        lds_wait("f1", 12, 4)
        st.stamp("fb0")
        if stamps: a("s_waitcnt lgkmcnt(0)")
        def rdB(s):
            p, ks = divmod(s, 4)
            for part in range(2):
                a(f"ds_read_b128 {vr(BF[s%3][part],4)}, v{vA_ if p < 8 else vB_} offset:{(WDB(p) & 0xffff) + 2048*ks + 1024*part}")
        rdB(0); rdB(1)
        for s in range(40):
            if s + 2 < 40: rdB(s + 2)
            a(f"s_waitcnt lgkmcnt({4 if s < 38 else 2*(39-s)})")
            for part, Z in enumerate((ZA, ZB)):
                c = "0" if s == 0 else vr(Z, 16)
                a(f"v_mfma_f32_32x32x16_bf16 {vr(Z,16)}, {vr(XR[s//4][s%4],4)}, {vr(BF[s%3][part],4)}, {c}")
    lds_inc(8)
    st.stamp("fend")
    FRn = XR[0][0]; G0 = XR[1][0]; G1 = XR[2][0]; G2 = XR[3][0]; G3 = XR[4][0]; ZS = XR[5][0]
    a("s_waitcnt vmcnt(0)")
    for i in range(8):
        a(f"v_xor_b32 v{FRn+i}, 0x80008000, v{FR+i}")
        a(f"v_xor_b32 v{FIn+i}, 0x80008000, v{FIn+i}")
    for Z in (ZA, ZB):
        for i in range(8): a(f"v_cvt_pk_bf16_f32 v{Z+i}, v{Z+2*i}, v{Z+2*i+1}")
    m = lambda d, A, B, c: a(f"v_mfma_f32_32x32x16_bf16 {vr(d,16)}, {vr(A,4)}, {vr(B,4)}, {c}")
    GP = TOP - 24
    a("s_nop 0")
    a(f"s_cmp_lg_u32 s{sBeta}, 0")
    a(f"s_cbranch_scc1 {L('fn')}")
    m(G2, ZB, FR, "0"); m(G2, ZB+4, FR+4, vr(G2,16))
    m(G3, ZB, FIn, "0"); m(G3, ZB+4, FIn+4, vr(G3,16))
    a("s_mov_b32 exec_lo, 1"); a("s_mov_b32 exec_hi, 1")
    for i in range(8): a(f"v_mov_b32 v{ZB+i}, 0")
    a(f"s_mov_b64 exec, s[{sLo}:{sLo+1}]")
    a("s_nop 3")
    for i in range(4): a(f"v_mov_b32 v{GP+16+i}, 0"); a(f"v_mov_b32 v{GP+20+i}, 0")
    a(f"v_cvt_pk_bf16_f32 v{GP+16}, v{G2}, 0")
    a(f"v_cvt_pk_bf16_f32 v{GP+20}, v{G3}, 0")
    a("s_mov_b64 exec, -1")
    a.label(L("fn"))
    m(G0, ZA, FR, "0"); m(G0, ZA+4, FR+4, vr(G0,16)); m(G0, ZB, FIn, vr(G0,16)); m(G0, ZB+4, FIn+4, vr(G0,16))
    m(G1, ZB, FRn, "0"); m(G1, ZB+4, FRn+4, vr(G1,16)); m(G1, ZA, FIn, vr(G1,16)); m(G1, ZA+4, FIn+4, vr(G1,16))
    a("s_nop 7")
    for p, g in enumerate((G0, G1)):
        for i in range(8): a(f"v_cvt_pk_bf16_f32 v{GP+8*p+i}, v{g+2*i}, v{g+2*i+1}")
    def g_stores(sd):
        srd(a, sd, sWS, WL.G, WL.G_SIZE)
        a(f"s_mov_b32 s{sT2}, {64*WL.GA}")
        for p in range(2):
            for j in range(2):
                so = "0" if p == 0 else f"s{sT2}"
                a(f"buffer_store_dwordx4 {vr(GP+8*p+4*j,4)}, v{vGs}, s[{sd}:{sd+3}], {so} offen offset:{1024*j} sc1")
        a(f"s_or_b32 s{sT}, s{sXc}, s{sJ}")
        a(f"s_cmp_ge_u32 s{sT}, 4")
        a(f"s_cbranch_scc1 {L('gs1')}")
        a(f"v_add_u32 v{vGs}, {20*1024}, v{vGs}")
        a(f"s_mov_b64 exec, s[{sLo}:{sLo+1}]")
        a(f"buffer_store_dwordx4 {vr(GP+16,4)}, v{vGs}, s[{sd}:{sd+3}], 0 offen sc1")
        a(f"buffer_store_dwordx4 {vr(GP+20,4)}, v{vGs}, s[{sd}:{sd+3}], s{sT2} offen sc1")
        a("s_mov_b64 exec, -1")
        a.label(L("gs1"))
    assert ZB + 8 <= GP
    st.stamp("gst")
    a(f"s_branch {L('help')}")
    a.label(L("lgate"))
    if cwarm:
        a(f"s_getpc_b64 s[{sT}:{sT2}]")
        a.label(L("pc0"))
        a(f"s_sub_u32 s{sT}, s{sT}, {L('pc0')}-{name}")
        a(f"s_subb_u32 s{sT2}, s{sT2}, 0")
        a(f"s_lshl_b32 s{sCnt}, s{sWl}, 13")
        a(f"v_lshl_add_u32 v{vT[0]}, v{vL}, 7, s{sCnt}")
        a(f"v_min_u32 v{vT[0]}, {L('cend')}-{name}-4, v{vT[0]}")
        a(f"global_load_dword v{vT[1]}, v{vT[0]}, s[{sT}:{sT2}]")
    if gtouch and not wgen:
        sel_srd(sB, sWm, 6, 8, 2048 * 4096)
        a(f"v_and_b32 v{vT[0]}, 31, v{vL}")
        a(f"v_lshlrev_b32 v{vT[0]}, 18, v{vT[0]}")
        a(f"buffer_load_dword v{vT[1]}, v{vT[0]}, s[{sB}:{sB+3}], 0 offen")
    masks()
    a(f"s_lshl_b32 s{sT}, s2, 3")
    a(f"s_add_u32 s{sT}, s{sT}, s{sW}")
    a(f"s_cmp_lg_u32 s{sT}, {240*8+4}")
    a(f"s_cbranch_scc1 {L('ncw')}")
    srd(a, sC, sWS, WL.KC, WL.G - WL.KC)
    for i in range(4): a(f"v_mov_b32 v{ZA+i}, 0x3f803f80")
    a(f"v_mov_b32 v{ZA+4}, 0x3f803f80"); a(f"v_mov_b32 v{ZA+5}, 0x3f80"); a(f"v_mov_b32 v{ZA+6}, 0x3f803f80"); a(f"v_mov_b32 v{ZA+7}, 0x3f80")
    a(f"v_mul_u32_u24 v{vT[2]}, {WL.VR}, v{vL}")
    for i in range(4):
        a(f"s_mov_b32 s{sT}, {WL.PL + 10240 + 64*i*WL.VR}")
        a(f"buffer_store_dwordx4 {vr(ZA,4)}, v{vT[2]}, s[{sC}:{sC+3}], s{sT} offen sc1")
    a(f"v_and_b32 v{vT[2]}, 31, v{vL}")
    a(f"v_lshlrev_b32 v{vT[2]}, 10, v{vT[2]}")
    a(f"buffer_store_dwordx4 {vr(ZA+4,4)}, v{vT[2]}, s[{sC}:{sC+3}], 0 offen sc1")
    a("s_waitcnt vmcnt(0) lgkmcnt(0)")
    a(f"s_add_u32 s{sNonce}, s{sNonce}, 1")
    a(f"s_mov_b32 s{sT}, {WL.FA + 256*128}")
    put_flag(f"s{sT}")
    a(f"s_sub_u32 s{sNonce}, s{sNonce}, 1")
    a.label(L("ncw"))
    if wpack:
        srd(a, sB, 18, 0, 640 * 1280)
        srd(a, sC, sWS, WL.WP, 8 * 102400)
        a(f"s_and_b32 s{sT}, s{sJ}, 1")
        a(f"s_lshl_b32 s{sT}, s{sT}, 2")
        a(f"s_add_u32 s{sCnt}, s{sT}, s{sWl}")
        a(f"v_mul_u32_u24 v{vT[2]}, 205, v{vL}")
        a(f"v_lshrrev_b32 v{vT[2]}, 11, v{vT[2]}")
        a(f"v_mul_u32_u24 v{vT[3]}, {1280-160}, v{vT[2]}")
        a(f"v_lshl_add_u32 v{vT[3]}, v{vL}, 4, v{vT[3]}")
        a(f"s_mul_i32 s{sT}, s{sXc}, 160")
        a(f"v_add_u32 v{vT[3]}, s{sT}, v{vT[3]}")
        a(f"s_mul_i32 s{sT}, s{sXc}, 102400")
        a(f"s_mul_i32 s{sT2}, s{sCnt}, {5*2560}")
        a(f"s_add_u32 s{sT}, s{sT}, s{sT2}")
        a(f"v_lshl_add_u32 v{vT[4]}, v{vL}, 4, s{sT}")
        a(f"s_mul_i32 s{sOX}, s{sCnt}, 5")
        a(f"s_mov_b64 exec, s[{sDm}:{sDm+1}]")
        for u_ in range(5):
            a(f"s_add_u32 s{sT}, s{sOX}, {u_}")
            a(f"s_lshr_b32 s{sT2}, s{sT}, 1")
            a(f"s_and_b32 s{sT}, s{sT}, 1")
            a(f"s_lshl_b32 s{sT2}, s{sT2}, 3")
            a(f"s_add_u32 s{sT}, s{sT}, s{sT2}")
            a(f"s_mul_i32 s{sT}, s{sT}, {4*1280}")
            for g_ in range(4):
                a(f"buffer_load_dwordx4 {vr(XR[u_][g_],4)}, v{vT[3]}, s[{sB}:{sB+3}], s{sT} offen")
                if g_ < 3: a(f"s_add_u32 s{sT}, s{sT}, {8*1280}")
        a("s_mov_b64 exec, -1")
    a("s_waitcnt lgkmcnt(0)")
    a("s_barrier")
    a(f"s_add_u32 s{sNonce}, s{sNonce}, 1")
    if wpack:
        a(f"s_mov_b64 exec, s[{sDm}:{sDm+1}]")
        a("s_waitcnt vmcnt(0)")
        for u_ in range(5):
            a(f"s_mov_b32 s{sT}, {2560*u_}")
            for g_ in range(4):
                a(f"buffer_store_dwordx4 {vr(XR[u_][g_],4)}, v{vT[4]}, s[{sC}:{sC+3}], s{sT} offen offset:{640*g_} sc1")
        a("s_mov_b64 exec, -1")
        a(f"s_lshl_b32 s{sT}, s{sXc}, 3")
        a(f"s_add_u32 s{sT}, s{sT}, s{sCnt}")
        a(f"s_lshl_b32 s{sT}, s{sT}, 2")
        a(f"s_add_u32 s{sT}, s{sT}, {WL.FP}")
        a("s_waitcnt vmcnt(0)")
        put_flag(f"s{sT}")
    a("s_waitcnt vmcnt(0)")
    a(f"s_branch {L('lfree')}")
    a.label(L("lq"))
    a(f"s_cmp_lg_u32 s{sCb}, 0")
    a(f"s_cbranch_scc1 {L('lfree')}")
    lds_wait("g0", 20, 4)
    srd(a, sB, 20, 0, 1280)
    a(f"s_mul_i32 s{sM0}, s{sW}, 3072")
    a(f"s_add_u32 s{sM0}, s{sM0}, {LDS_X}")
    for i in range(3):
        a(f"v_lshlrev_b32 v{vT[0]}, 4, v{vL}")
        if i: a(f"v_add_u32 v{vT[0]}, {1024*i}, v{vT[0]}")
        a(f"v_subrev_u32 v{vT[1]}, 1280, v{vT[0]}")
        a(f"v_min_u32 v{vT[0]}, v{vT[0]}, v{vT[1]}")
        a(f"s_add_u32 m0, s{sM0}, {1024*i}")
        a("s_nop 0")
        a(f"buffer_load_dwordx4 v{vT[0]}, s[{sB}:{sB+3}], 0 offen lds")
    a(f"v_lshrrev_b32 v{vT[2]}, 5, v{vL}")
    a(f"s_add_u32 s{sT}, s{sM0}, s{sOX}")
    a(f"v_lshl_add_u32 v{vT[2]}, v{vT[2]}, 4, s{sT}")
    srd(a, sC, sWS, WL.GATE, 2048 * 8)
    a(f"s_lshl_b32 s{sCnt}, s{sRb}, 2")
    a(f"s_add_u32 s{sCnt}, s{sCnt}, s{sWl}")
    a("s_waitcnt vmcnt(0)")
    GB = [BF[0][0], BF[0][1], BF[1][0], BF[1][1], BF[2][0], BF[2][1]]
    for s_ in range(5): a(f"ds_read_b128 {vr(GB[s_],4)}, v{vT[2]} offset:{32*s_}")
    for s_ in range(40):
        if s_ + 5 < 40: a(f"ds_read_b128 {vr(GB[(s_+5)%6],4)}, v{vT[2]} offset:{32*(s_+5)}")
        a(f"s_waitcnt lgkmcnt({min(5, 39 - s_)})")
        c = "0" if s_ == 0 else vr(ZA, 16)
        a(f"v_mfma_f32_32x32x16_bf16 {vr(ZA,16)}, {vr(GB[s_%6],4)}, {vr(XR[s_//4][s_%4],4)}, {c}")
    a("s_nop 12")
    a(f"v_cvt_pk_bf16_f32 v{ZA}, 0, v{ZA}")
    a(f"v_mul_f32 v{ZA}, 0xbfb8aa3b, v{ZA}")
    a(f"v_exp_f32 v{ZA}, v{ZA}")
    a(f"v_lshlrev_b32 v{vT[2]}, 3, v{vL}")
    a(f"v_add_f32 v{ZA}, 1.0, v{ZA}")
    a(f"v_rcp_f32 v{ZA}, v{ZA}")
    a(f"s_lshl_b32 s{sT}, s{sCnt}, 8")
    a(f"v_cvt_pk_bf16_f32 v{ZB}, 0, v{ZA}")
    a(f"v_sub_f32 v{ZB+1}, 1.0, v{ZB}")
    a(f"v_cvt_pk_bf16_f32 v{ZB+1}, 0, v{ZB+1}")
    a(f"s_mov_b64 exec, s[{sLo}:{sLo+1}]")
    a(f"buffer_store_dwordx2 {vr(ZB,2)}, v{vT[2]}, s[{sC}:{sC+3}], s{sT} offen sc1")
    a("s_mov_b64 exec, -1")
    a(f"s_lshl_b32 s{sGF}, s{sCnt}, 2")
    a(f"s_add_u32 s{sGF}, s{sGF}, {WL.FP + 256}")
    a.label(L("lfree"))
    a("s_waitcnt lgkmcnt(0)")
    lds_inc(8)
    a(f"s_branch {L('help')}")

    a.c("=" * 20 + " " + 'COMPUTE WAVES')
    a.label(L("comp"))
    V = Alloc(VB, TOP)
    vRX = [V.get() for _ in range(4)]; vRW = [V.get() for _ in range(2)]
    vE = [V.get() for _ in range(8)]
    vTch = V.get(2)
    XF = [[V.get(4, 4) for _ in range(2)] for _ in range(4)]
    WF = [[V.get(4, 4) for _ in range(2)] for _ in range(4)]
    ACC = [[V.get(16, 4) for _ in range(2)] for _ in range(2)]
    PK = TOP - 32
    vS = [PK - 4 + i for i in range(4)]
    sDef = 15
    sMask = sD; sScale = sD + 2
    a(f"s_setprio {cprio}")
    nat_read_addrs(vRX, sWm, 13)
    for x in range(2):
        for w in range(2):
            for i in range(16): a(f"v_mov_b32 v{ACC[x][w]+i}, 0")
    after_kernarg()
    masks()
    a(f"s_cmp_lg_u32 s{sW}, 0")
    a(f"s_cbranch_scc1 {L('c1')}")
    a(f"ds_write_b128 v{vCtl}, {vr(ACC[0][0],4)}")
    for o_ in (16, 32, 48): a(f"ds_write_b128 v{vCtl}, {vr(ACC[0][0],4)} offset:{o_}")
    a.label(L("c1"))
    if wt:
        srd(a, sC, sWS, 0, WL.END)
        a(f"v_and_b32 v{vT[0]}, {wt-1}, v{vL}")
        a(f"v_lshlrev_b32 v{vT[0]}, 20, v{vT[0]}")
        a(f"buffer_load_dword v{vTch}, v{vT[0]}, s[{sC}:{sC+3}], 0 offen offset:512 sc1")
    def poison(sd, pr):
        a(f"s_and_b32 s{sT}, s{sJ}, 3")
        a(f"s_lshl_b32 s{sT2}, s{sXc}, 2")
        a(f"s_add_u32 s{sT}, s{sT}, s{sT2}")
        a(f"s_and_b32 s{sCnt}, s{sT}, 1")
        a(f"s_lshr_b32 s{sT}, s{sT}, 1")
        a(f"s_mul_i32 s{sT}, s{sT}, {5*WL.PL}")
        a(f"s_add_u32 s{sT}, s{sT}, {WL.OF}")
        srd(a, sd, sWS, f"s{sT}", 5 * WL.PL)
        a(f"s_and_b32 s{sT}, s{sJ}, 28")
        a(f"s_add_u32 s{sT}, s{sT}, s{sW}")
        a(f"s_lshl_b32 s{sT}, s{sT}, 10")
        a(f"v_lshl_add_u32 v{vT[0]}, v{vL}, 4, s{sT}")
        for i in range(4): a(f"v_mov_b32 v{pr+i}, -1")
        a(f"s_mul_i32 s{sT}, s{sCnt}, {3*WL.PL}")
        a(f"buffer_store_dwordx4 {vr(pr,4)}, v{vT[0]}, s[{sd}:{sd+3}], s{sT} offen sc1")
        a(f"s_add_u32 s{sT}, s{sT}, {WL.PL}")
        a(f"buffer_store_dwordx4 {vr(pr,4)}, v{vT[0]}, s[{sd}:{sd+3}], s{sT} offen sc1")
        a(f"s_lshl_b32 s{sT}, s{sCnt}, 3")
        a(f"s_add_u32 s{sT}, s{sT}, {2*WL.PL}")
        a(f"buffer_store_dwordx2 {vr(pr,2)}, v{vT[0]}, s[{sd}:{sd+3}], s{sT} offen sc1")
    if pois == 1: poison(sC, PK)
    def mainloop(mode, epi):
        def rdX(s, ks, x): a(f"ds_read_b128 {vr(XF[s][x],4)}, v{vRX[ks]} offset:{4096*x}")
        def rdW(s, ks, w):
            a(f"ds_read_b64_tr_b16 {vr(WF[s][w],2)}, v{vRW[w]} offset:{4096*ks}")
            a(f"ds_read_b64_tr_b16 {vr(WF[s][w]+2,2)}, v{vRW[w]} offset:{4096*ks+1024}")
        def mf(s, x, w):
            A, B = (WF[s][w], XF[s][x]) if mode == 'qk' else (XF[s][x], WF[s][w])
            if nomf == 1: return
            if nomf == 2:
                for h_ in range(2):
                    d_ = ACC[x][w] + 8 * (s % 2) + 4 * h_
                    A2, B2 = (A, B) if h_ == 0 else (B, A)
                    a(f"v_mfma_f32_16x16x32_bf16 {vr(d_,4)}, {vr(A2,4)}, {vr(B2,4)}, {vr(d_,4)}")
                return
            a(f"v_mfma_f32_32x32x16_bf16 {vr(ACC[x][w],16)}, {vr(A,4)}, {vr(B,4)}, {vr(ACC[x][w],16)}")
        a("s_waitcnt lgkmcnt(0)")
        a("s_barrier")
        st.stamp("b0")
        if stamps: a("s_waitcnt lgkmcnt(0)")
        if deep:
            for k_ in range(2): rdX(k_, k_, 0); rdW(k_, k_, 0); rdX(k_, k_, 1); rdW(k_, k_, 1)
            a(f"s_mov_b32 s{sCnt}, 0")
            a.raw(".p2align 5")
            a.label(L(mode + "loop"))
            for ks in range(4):
                nk = (ks + 2) % 4
                a("s_waitcnt lgkmcnt(9)")
                mf(ks, 0, 0)
                if ks == 2:
                    a("s_barrier")
                    for r in (vRX[0], vRW[0], vRW[1], vRX[1]): a(f"v_xor_b32 v{r}, s{sMask}, v{r}")
                rdX(nk, nk, 0); rdW(nk, nk, 0)
                a("s_waitcnt lgkmcnt(11)")
                mf(ks, 1, 0)
                rdX(nk, nk, 1)
                if ks == 2:
                    for r in (vRX[2], vRX[3]): a(f"v_xor_b32 v{r}, s{sMask}, v{r}")
                    a(f"s_xor_b32 s{sMask}, s{sMask}, 0x18000")
                a("s_waitcnt lgkmcnt(10)")
                mf(ks, 0, 1)
                rdW(nk, nk, 1)
                if ks == 3:
                    a(f"s_add_u32 s{sCnt}, s{sCnt}, 1")
                    a(f"s_cmp_lg_u32 s{sCnt}, 9")
                mf(ks, 1, 1)
            a(f"s_cbranch_scc1 {L(mode+'loop')}")
            a("s_waitcnt lgkmcnt(9)")
            mf(0, 0, 0)
            rdX(2, 2, 0); rdW(2, 2, 0); rdX(3, 3, 0); rdW(3, 3, 0)
            a("s_waitcnt lgkmcnt(9)")
            mf(1, 0, 0)
            rdW(2, 2, 1); rdW(3, 3, 1)
            mf(0, 0, 1)
            rdX(2, 2, 1); rdX(3, 3, 1)
            a("s_waitcnt lgkmcnt(9)")
            mf(1, 0, 1)
            mf(2, 0, 0)
            a("s_waitcnt lgkmcnt(6)")
            mf(3, 0, 0)
            a("s_waitcnt lgkmcnt(2)")
            mf(2, 0, 1); mf(3, 0, 1)
            mf(0, 1, 0); mf(1, 1, 0)
            a("s_waitcnt lgkmcnt(0)")
            lds_inc(8)
            a("s_nop 1")
            mf(2, 1, 0)
            epi(0, 0)
            mf(3, 1, 0); mf(0, 1, 1)
            epi(0, 1)
            mf(1, 1, 1); mf(2, 1, 1); mf(3, 1, 1)
            st.stamp("aend")
            epi(1, 0)
            a("s_nop 1")
            epi(1, 1)
            return
        rdX(0, 0, 0); rdW(0, 0, 0); rdX(0, 0, 1); rdW(0, 0, 1)
        a(f"s_mov_b32 s{sCnt}, 0")
        a.raw(".p2align 5")
        a.label(L(mode + "loop"))
        for ks in range(4):
            s = ks % 2; n = 1 - s; nk = (ks + 1) % 4
            if ks < 3:
                a("s_waitcnt lgkmcnt(3)")
                mf(s, 0, 0)
                if ks == 0 and touch:
                    a(f"s_cmp_lg_u32 s{sCnt}, {tpos}")
                    a(f"s_cbranch_scc1 {L(mode+'nt')}")
                    a(f"buffer_load_dword v{vTch}, v{vTch+1}, s[{sE}:{sE+3}], 0 offen")
                    a.label(L(mode + "nt"))
            else:
                a("s_waitcnt lgkmcnt(0)")
                mf(s, 0, 0)
                a(f"s_add_u32 s{sCnt}, s{sCnt}, 1")
                if not peel:
                    a(f"s_cmp_eq_u32 s{sCnt}, 10")
                    a(f"s_cbranch_scc1 {L(mode+'last')}")
                a("s_barrier")
                for r in vRX + vRW:
                    a(f"v_xor_b32 v{r}, s{sMask}, v{r}")
            rdX(n, nk, 0); rdW(n, nk, 0)
            if ks < 3: a("s_waitcnt lgkmcnt(5)")
            mf(s, 1, 0)
            rdX(n, nk, 1)
            if ks < 3: a("s_waitcnt lgkmcnt(4)")
            mf(s, 0, 1)
            rdW(n, nk, 1)
            if ks == 3: a(f"s_xor_b32 s{sMask}, s{sMask}, 0x18000")
            if ks == 3 and peel: a(f"s_cmp_lg_u32 s{sCnt}, 9")
            mf(s, 1, 1)
        if not peel:
            a(f"s_branch {L(mode+'loop')}")
            a.label(L(mode + "last"))
            mf(1, 0, 1); mf(1, 1, 0); mf(1, 1, 1)
            lds_inc(8)
            st.stamp("aend")
            a("s_nop 1")
            for x in range(2):
                for w in range(2): epi(x, w)
            return
        a(f"s_cbranch_scc1 {L(mode+'loop')}")
        for ks in range(1, 4): rdX(ks, ks, 0); rdW(ks, ks, 0)
        for ks in range(4):
            a(f"s_waitcnt lgkmcnt({[12, 6, 5, 4][ks]})")
            mf(ks, 0, 0)
            if ks >= 1: rdW(ks, ks, 1)
        for ks in range(4):
            if ks: a(f"s_waitcnt lgkmcnt({[0, 4, 3, 2][ks]})")
            mf(ks, 0, 1)
            if ks >= 1: rdX(ks, ks, 1)
        mf(0, 1, 0)
        a("s_waitcnt lgkmcnt(0)")
        mf(1, 1, 0)
        lds_inc(8)
        mf(2, 1, 0)
        epi(0, 0)
        mf(3, 1, 0); mf(0, 1, 1)
        epi(0, 1)
        mf(1, 1, 1); mf(2, 1, 1); mf(3, 1, 1)
        st.stamp("aend")
        epi(1, 0)
        a("s_nop 1")
        epi(1, 1)
    a(f"s_mov_b32 s{sMask}, 0x8000")
    a(f"s_cmp_ge_u32 s{sJ}, 30")
    a(f"s_cbranch_scc1 {L('gate')}")
    a(f"s_lshl_b32 s{sAF}, s{sCb}, 4")
    a(f"s_add_u32 s{sAF}, s{sAF}, s{sRb}")
    if touch:
        sel_srd(sE, sWm, 10, 12, 640 * 1280)
        a(f"s_lshl_b32 s{sT}, s{sJ}, 1")
        a(f"s_add_u32 s{sT}, s{sT}, s{sWn}")
        a(f"s_mul_i32 s{sT}, s{sT}, {27*128}")
        a(f"s_lshr_b32 s{sT2}, s{sXc}, 2")
        a(f"s_mul_i32 s{sT2}, s{sT2}, {160*1280}")
        a(f"s_add_u32 s{sT}, s{sT}, s{sT2}")
        a(f"v_min_u32 v{vTch+1}, 26, v{vL}")
        a(f"v_lshl_add_u32 v{vTch+1}, v{vTch+1}, 7, s{sT}")
    def astore(sd, aa, bb, lab=None):
        if lab and defer: a(f"s_cbranch_vccnz {L('as%s%d%d' % (lab, aa, bb))}")
        for j in range(2):
            a(f"buffer_store_dwordx4 {vr(PK+8*(2*bb+aa)+4*j,4)}, v{vS[2*aa+j]}, s[{sd}:{sd+3}], 0 offen offset:{512*bb} sc1")
        if lab and defer: a.label(L('as%s%d%d' % (lab, aa, bb)))
    srd(a, sC, sWS, WL.QF, WL.G - WL.QF)
    if defer:
        a(f"s_and_b32 s{sDef}, s{sRb}, {dmask}")
        a(f"s_cmp_lt_u32 s{sCb}, 5")
        a(f"s_cselect_b32 s{sDef}, 0, s{sDef}")
        a(f"s_cmp_lg_u32 s{sDef}, 0")
        a("s_cselect_b64 vcc, -1, 0")
    a(f"v_bfe_u32 v{vT[0]}, v{vL}, 2, 2")
    a(f"v_lshrrev_b32 v{vT[1]}, 5, v{vL}")
    a(f"v_lshl_add_u32 v{vT[1]}, v{vT[1]}, 3, v{vT[0]}")
    a(f"v_lshlrev_b32 v{vT[1]}, 8, v{vT[1]}")
    a(f"s_lshl_b32 s{sT}, s{sWn}, 1")
    a(f"v_xor_b32 v{vT[0]}, s{sT}, v{vT[0]}")
    a(f"v_lshl_add_u32 v{vT[1]}, v{vT[0]}, 6, v{vT[1]}")
    a(f"v_bfe_u32 v{vT[0]}, v{vL}, 4, 1")
    a(f"v_lshl_add_u32 v{vT[1]}, v{vT[0]}, 5, v{vT[1]}")
    a(f"v_add_u32 v{vT[1]}, 0x4000, v{vT[1]}")
    a(f"v_and_b32 v{vT[4]}, 31, v{vL}")
    a(f"v_lshrrev_b32 v{vT[5]}, 5, v{vL}")
    a(f"s_cmp_ge_u32 s{sCb}, 10")
    a(f"s_cbranch_scc1 {L('v')}")
    a(f"v_and_b32 v{vT[0]}, 1, v{vL}")
    a(f"v_lshl_add_u32 v{vT[1]}, v{vT[0]}, 4, v{vT[1]}")
    a(f"v_bfe_u32 v{vT[0]}, v{vL}, 1, 1")
    a(f"v_lshl_add_u32 v{vRW[0]}, v{vT[0]}, 3, v{vT[1]}")
    a(f"v_xor_b32 v{vRW[1]}, 64, v{vRW[0]}")
    a(f"s_cmp_ge_u32 s{sCb}, 5")
    a(f"s_cselect_b32 s{sScale}, 1.0, {hex(QSCALE)}")
    a(f"s_mov_b32 s{sScale+1}, s{sScale}")
    a(f"s_lshl_b32 s{sT}, s{sCb}, 1")
    a(f"s_add_u32 s{sT}, s{sT}, s{sWn}")
    sR5 = sD + 1
    a(f"s_lshl_b32 s{sR5}, s{sT}, 3")
    a(f"s_mul_i32 s{sT2}, s{sR5}, 205")
    a(f"s_lshr_b32 s{sT2}, s{sT2}, 10")
    a(f"s_mul_i32 s{sT2}, s{sT2}, 5")
    a(f"s_sub_u32 s{sR5}, s{sR5}, s{sT2}")
    a(f"s_lshl_b32 s{sT}, s{sT}, 18")
    a(f"s_lshl_b32 s{sT2}, s{sRb}, 1")
    a(f"s_add_u32 s{sT2}, s{sT2}, s{sWm}")
    a(f"s_lshl_b32 s{sT2}, s{sT2}, 10")
    a(f"s_add_u32 s{sT}, s{sT}, s{sT2}")
    a(f"v_lshlrev_b32 v{vS[0]}, 15, v{vT[5]}")
    a(f"v_lshl_add_u32 v{vS[0]}, v{vT[4]}, 4, v{vS[0]}")
    a(f"v_add_u32 v{vS[0]}, s{sT}, v{vS[0]}")
    for e in range(1, 4): a(f"v_add_u32 v{vS[e]}, {e*2*WL.PL}, v{vS[0]}")
    def epi_qk(x, w):
        acc = ACC[x][w]; pk = PK + 8 * (2 * x + w)
        for i in range(0, 16, 2): a(f"v_pk_mul_f32 {vr(acc+i,2)}, {vr(acc+i,2)}, s[{sScale}:{sScale+1}]")
        for i in range(8): a(f"v_cvt_pk_bf16_f32 v{pk+i}, v{acc+2*i}, v{acc+2*i+1}")
        if x == 0: return
        for j in range(2):
            t5 = (2 - 2 * (2 * w + j)) % 5
            a(f"s_cmp_eq_u32 s{sR5}, {t5}")
            a("s_cselect_b32 exec_lo, -1, 0")
            a(f"s_cmp_eq_u32 s{sR5}, {(t5 - 1) % 5}")
            a("s_cselect_b32 exec_hi, -1, 0")
            for i in range(2): a(f"v_swap_b32 v{PK+8*w+4*j+2+i}, v{PK+8*(2+w)+4*j+i}")
        a("s_mov_b64 exec, -1")
        astore(sC, w, 0, "q"); astore(sC, w, 1, "q")
    mainloop('qk', epi_qk)
    a(f"s_branch {L('adone')}")
    a.label(L("v"))
    a(f"v_and_b32 v{vT[0]}, 3, v{vL}")
    a(f"v_lshl_add_u32 v{vRW[0]}, v{vT[0]}, 3, v{vT[1]}")
    a(f"v_xor_b32 v{vRW[1]}, 64, v{vRW[0]}")
    a(f"s_lshl_b32 s{sT}, s{sRb}, 1")
    a(f"s_add_u32 s{sT}, s{sT}, s{sWm}")
    a(f"s_mul_i32 s{sT}, s{sT}, {2*WL.VT}")
    a(f"s_sub_u32 s{sT2}, s{sCb}, 10")
    a(f"s_lshl_b32 s{sT2}, s{sT2}, 1")
    a(f"s_add_u32 s{sT2}, s{sT2}, s{sWn}")
    a(f"s_lshl_b32 s{sT2}, s{sT2}, 10")
    a(f"s_add_u32 s{sT}, s{sT}, s{sT2}")
    a(f"s_add_u32 s{sT}, s{sT}, {WL.VF - WL.QF}")
    a(f"v_mul_u32_u24 v{vS[0]}, {WL.VR}, v{vT[5]}")
    a(f"v_lshl_add_u32 v{vS[0]}, v{vT[4]}, 4, v{vS[0]}")
    a(f"v_add_u32 v{vS[0]}, s{sT}, v{vS[0]}")
    for e in range(1, 4): a(f"v_add_u32 v{vS[e]}, {e*2*WL.VR}, v{vS[0]}")
    def epi_v(x, w):
        acc = ACC[x][w]; pk = PK + 8 * (2 * w + x)
        for i in range(8): a(f"v_cvt_pk_bf16_f32 v{pk+i}, v{acc+2*i}, v{acc+2*i+1}")
        astore(sC, x, w, "v")
    mainloop('v', epi_v)
    a(f"s_branch {L('adone')}")
    a.label(L("gate"))
    a(f"s_mov_b32 s{sAF}, s2")
    a("s_waitcnt lgkmcnt(0)")
    a("s_barrier")
    def spoison():
        srd(a, sC, sWS, WL.OF, 80 * WL.PL)
        a(f"s_sub_u32 s{sT}, s2, 240")
        a(f"s_lshl_b32 s{sT}, s{sT}, 2")
        a(f"s_add_u32 s{sT}, s{sT}, s{sW}")
        a(f"s_mul_i32 s{sT}, s{sT}, 40960")
        a(f"s_add_u32 s{sT2}, s{sT}, 40960")
        a(f"v_lshlrev_b32 v{vT[3]}, 4, v{vL}")
        for i in range(4): a(f"v_mov_b32 v{PK+4+i}, -1")
        a.label(L("spl"))
        for i in range(4): a(f"buffer_store_dwordx4 {vr(PK+4,4)}, v{vT[3]}, s[{sC}:{sC+3}], s{sT} offen offset:{1024*i} sc1")
        a(f"s_add_u32 s{sT}, s{sT}, 4096")
        a(f"s_cmp_lt_u32 s{sT}, s{sT2}")
        a(f"s_cbranch_scc1 {L('spl')}")
    if pois == 5 and pfirst: spoison()
    if wdtouch:
        sel_srd(sB, sWm, 10, 12, 640 * 1280)
        a(f"s_and_b32 s{sT}, s{sJ}, 1")
        a(f"s_lshl_b32 s{sT}, s{sT}, 1")
        a(f"s_add_u32 s{sT}, s{sT}, s{sWn}")
        a(f"s_mul_i32 s{sT}, s{sT}, {400*128}")
        a(f"s_lshr_b32 s{sT2}, s{sXc}, 2")
        a(f"s_mul_i32 s{sT2}, s{sT2}, {160*1280}")
        a(f"s_add_u32 s{sT}, s{sT}, s{sT2}")
        a(f"v_min_u32 v{vT[2]}, 49, v{vL}")
        a(f"v_lshlrev_b32 v{vT[2]}, 7, v{vT[2]}")
        for i in range(8):
            a(f"buffer_load_dword v{PK}, v{vT[2]}, s[{sB}:{sB+3}], s{sT} offen")
            a(f"s_add_u32 s{sT}, s{sT}, {50*128}")
    if pois == 5 and not pfirst: spoison()
    lds_inc(8)
    a.label(L("adone"))
    if pois == 2: poison(sC, XF[0][0])
    if fwait: lds_inc(20)
    st.stamp("ast")
    a(f"s_add_u32 s{sNonce}, s{sNonce}, 1")
    a(f"s_lshl_b32 s{sAF}, s{sAF}, 7")
    a(f"s_add_u32 s{sAF}, s{sAF}, {WL.FA}")

    a.c("=" * 20 + " " + 'ATTENTION (compute waves: 128 queries x 1024 keys)')
    vKm = 10; vKr = 11; vIdx = 12; vM = 13
    vVa = [[14 + 2 * b, 15 + 2 * b] for b in range(4)]; vV0, vV1 = vVa[0]
    vG1 = 22
    Qm = [24 + 4 * q for q in range(4)]; Qr = [40 + 2 * q for q in range(4)]
    Km = [48 + 4 * b for b in range(4)]; Kr = [64 + 2 * b for b in range(4)]
    Vb = [[72 + 8 * b, 76 + 8 * b] for b in range(4)]
    S = [104 + 16 * q for q in range(4)]; O = [168 + 16 * q for q in range(4)]
    K0m = 232; K0r = 236; cO = 238; cSt = 239; cX0 = 240; cX1 = 241; cR = 242; cD0 = 243; cD1 = 244
    vKF = S[0]; vQF = S[0] + 1
    sK = sA; sV = sB; sQ = sC
    sHead = 98; sQb = 99; sKh = 100; sOK = 101; sOV = 14; sPar = sE; sHp = sE + 2; sU0 = sE + 3
    sCc = sHead; sEb8 = sQb; sRet = sE
    def coords():
        a(f"s_and_b32 s{sT}, s{sJ}, 3")
        a(f"s_lshl_b32 s{sHead}, s{sXc}, 2")
        a(f"s_add_u32 s{sHead}, s{sHead}, s{sT}")
        a(f"s_lshr_b32 s{sQb}, s{sJ}, 2")
    def swap23(dst, src, tmp):
        a(f"v_and_b32 v{dst}, 0x13, v{src}")
        a(f"v_bfe_u32 v{tmp}, v{src}, 2, 1")
        a(f"v_lshl_add_u32 v{dst}, v{tmp}, 3, v{dst}")
        a(f"v_bfe_u32 v{tmp}, v{src}, 3, 1")
        a(f"v_lshl_add_u32 v{dst}, v{tmp}, 2, v{dst}")
    def kv_flag_offsets(kf):
        a(f"s_mul_i32 s{sT}, s{sHead}, 20")
        a(f"v_bfe_u32 v{vT[0]}, v{vL}, 4, 1")
        a(f"v_mul_u32_u24 v{vT[0]}, 19, v{vT[0]}")
        a(f"v_add_u32 v{vT[0]}, s{sT}, v{vT[0]}")
        a(f"v_lshrrev_b32 v{vT[0]}, 7, v{vT[0]}")
        a(f"v_lshrrev_b32 v{vT[1]}, 5, v{vL}")
        a(f"v_mul_u32_u24 v{vT[1]}, 5, v{vT[1]}")
        a(f"v_add3_u32 v{vT[1]}, v{vT[1]}, v{vT[0]}, 5")
        a(f"v_and_b32 v{vT[2]}, 15, v{vL}")
        a(f"v_lshl_add_u32 v{vT[1]}, v{vT[1]}, 4, v{vT[2]}")
        a(f"v_lshlrev_b32 v{kf}, 7, v{vT[1]}")
    def d_addrs(vo, vst, vr_, step0, vws=None, vgt=None):
        a(f"v_and_b32 v{vT[0]}, 15, v{vL}")
        a(f"v_lshrrev_b32 v{vT[1]}, 4, v{vL}")
        swap23(vT[4], vT[0], vT[3])
        a(f"s_and_b32 s{sT}, s{sW}, 3")
        a(f"s_lshl_b32 s{sT}, s{sT}, 4")
        a(f"s_lshl_b32 s{sT2}, s{sCc}, 6")
        a(f"s_add_u32 s{sT}, s{sT}, s{sT2}")
        a(f"v_add_u32 v{vT[2]}, s{sT}, v{vT[0]}")
        a(f"s_and_b32 s{sT}, s{sW}, 1")
        a(f"s_lshl_b32 s{sT}, s{sT}, 10")
        a(f"s_and_b32 s{sT2}, s{sW}, 2")
        a(f"s_lshl_b32 s{sT2}, s{sT2}, 4")
        a(f"s_add_u32 s{sT}, s{sT}, s{sT2}")
        a(f"s_add_u32 s{sT}, s{sT}, s{sCc}")
        a(f"v_lshl_add_u32 v{vT[0]}, v{vT[4]}, 6, s{sT}")
        if vws is not None:
            if wsg:
                a(f"v_mov_b32 v{vws}, v{vT[0]}")
            else:
                a(f"v_lshlrev_b32 v{vws}, 12, v{vT[0]}")
                a(f"v_lshl_add_u32 v{vws}, v{vT[1]}, 4, v{vws}")
            a(f"v_lshlrev_b32 v{vgt}, 3, v{vT[2]}")
        a(f"v_lshlrev_b32 v{vo}, 4, v{vT[2]}")
        a(f"v_lshl_add_u32 v{vo}, v{vT[1]}, 15, v{vo}")
        if step0: a(f"v_add_u32 v{vo}, {4*WL.PL*step0}, v{vo}")
        a(f"v_mul_u32_u24 v{vst}, 1280, v{vT[0]}")
        a(f"v_lshl_add_u32 v{vst}, v{vT[1]}, 3, v{vst}")
        a(f"s_mul_i32 s{sT}, s{sEb8}, 160")
        a(f"v_add_u32 v{vst}, s{sT}, v{vst}")
        a(f"v_lshrrev_b32 v{vT[2]}, 2, v{vL}")
        a(f"v_and_b32 v{vT[1]}, 3, v{vL}")
        a(f"v_mul_u32_u24 v{vr_}, 160, v{vT[2]}")
        a(f"v_lshl_add_u32 v{vr_}, v{vT[1]}, 3, v{vr_}")
        if step0: a(f"v_add_u32 v{vr_}, {5120*step0}, v{vr_}")
    def slot_addr(dst, xor, add):
        a(f"s_and_b32 s{sT}, s{sW}, 3")
        if xor: a(f"s_xor_b32 s{sT}, s{sT}, {xor}")
        a(f"s_mul_i32 s{sT}, s{sT}, 6144")
        a(f"s_add_u32 s{sT}, s{sT}, {LDS_X + add}")
        a(f"v_lshl_add_u32 v{dst}, v{vL}, 4, s{sT}")
    def all_nonce(regs, lab):
        for r in regs: a(f"v_xor_b32 v{r}, s{sNonce}, v{r}")
        rest = regs[1:]
        while len(rest) >= 2:
            a(f"v_or3_b32 v{regs[0]}, v{regs[0]}, v{rest[0]}, v{rest[1]}"); rest = rest[2:]
        if rest: a(f"v_or_b32 v{regs[0]}, v{regs[0]}, v{rest[0]}")
        a(f"v_cmp_ne_u32 vcc, 0, v{regs[0]}")
        a("s_nop 1")
        a("s_cmp_eq_u64 vcc, 0")
        a(f"s_cbranch_scc1 {L(lab)}")
    def lds_set(off):
        a(f"v_mov_b32 v{vT[0]}, 1")
        a(f"ds_write_b32 v{vCtl}, v{vT[0]} offset:{off}")
    def rd(dst, base, off, pitch=160):
        for t in range(5):
            a(f"ds_read_b64_tr_b16 {vr(dst[t],2)}, v{base} offset:{off + 32*t}")
            a(f"ds_read_b64_tr_b16 {vr(dst[t]+2,2)}, v{base} offset:{off + 32*t + 16*pitch}")
    coords()
    a(f"s_lshr_b32 s{sKh}, s{sW}, 1")
    a(f"s_and_b32 s{sPar}, s{sHead}, 1")
    a(f"s_lshr_b32 s{sHp}, s{sHead}, 1")
    a(f"s_mul_i32 s{sHp}, s{sHp}, {5*WL.PL}")
    a(f"v_and_b32 v{vT[0]}, 31, v{vL}")
    a(f"v_lshrrev_b32 v{vT[1]}, 5, v{vL}")
    swap23(vT[2], vT[0], vT[3])
    a(f"s_mul_i32 s{sT}, s{sPar}, {3*WL.PL}")
    a(f"v_lshlrev_b32 v{vKm}, 15, v{vT[1]}")
    a(f"v_lshl_add_u32 v{vKm}, v{vT[2]}, 4, v{vKm}")
    a(f"v_add_u32 v{vKm}, s{sT}, v{vKm}")
    a(f"s_lshl_b32 s{sT}, s{sPar}, 9")
    a(f"s_add_u32 s{sT}, s{sT}, {2*WL.PL}")
    a(f"v_lshl_add_u32 v{vKr}, v{vT[2]}, 4, s{sT}")
    a(f"s_sub_u32 s{sT}, {80*WL.PL}, s{sHp}")
    a(f"s_mov_b64 exec, s[{sHi}:{sHi+1}]")
    a(f"v_mov_b32 v{vKr}, s{sT}")
    a("s_mov_b64 exec, -1")
    a(f"v_mov_b32 v{vIdx}, 0xdddddddd")
    a(f"s_lshl_b32 s{sT}, s{sPar}, 2")
    a(f"v_add_u32 v{vT[2]}, s{sT}, v{vT[2]}")
    a(f"v_subrev_u32 v{vT[3]}, 20, v{vT[2]}")
    a(f"v_min_u32 v{vT[2]}, v{vT[2]}, v{vT[3]}")
    a(f"s_mul_i32 s{sT}, s{sHead}, 320")
    a(f"v_mul_u32_u24 v{vV0}, {WL.VR}, v{vT[1]}")
    a(f"v_lshl_add_u32 v{vV0}, v{vT[2]}, 4, v{vV0}")
    a(f"v_add_u32 v{vV0}, s{sT}, v{vV0}")
    a("s_mov_b32 exec_lo, 0x100000"); a("s_mov_b32 exec_hi, 0x100000")
    a(f"v_mul_u32_u24 v{vV0}, {WL.VR}, v{vT[1]}")
    a(f"v_add_u32 v{vV0}, 10240, v{vV0}")
    a("s_mov_b32 exec_lo, 0xffe00000"); a("s_mov_b32 exec_hi, 0xffe00000")
    a(f"v_mov_b32 v{vV0}, 0x40000000")
    a("s_mov_b64 exec, -1")
    for b in range(4):
        for j in range(2):
            if b or j: a(f"v_add_u32 v{vVa[b][j]}, {b*WL.VT + j*2*WL.VR}, v{vV0}")
    a(f"s_add_u32 s{sT}, s{sHp}, {WL.KF}")
    srd(a, sK, sWS, f"s{sT}", 81 * WL.PL)
    srd(a, sV, sWS, WL.VF, 32 * WL.VT)
    a(f"s_lshl_b32 s{sV+2}, s{sV+2}, s{sKh}")
    a(f"s_add_u32 s{sT}, s{sHp}, {WL.QF}")
    srd(a, sQ, sWS, f"s{sT}", 5 * WL.PL)
    a(f"s_lshl_b32 s{sOK}, s{sKh}, 14")
    a(f"s_mul_i32 s{sOV}, s{sKh}, {32*WL.VT}")
    a(f"s_lshl_b32 s{sU0}, s{sQb}, 1")
    a(f"s_and_b32 s{sT}, s{sW}, 1")
    a(f"s_add_u32 s{sU0}, s{sU0}, s{sT}")
    a(f"s_lshl_b32 s{sU0}, s{sU0}, 11")
    for i in range(0, 8, 2): a(f"v_mov_b64 {vr(Qr[0]+i,2)}, 0")
    for i in (0, 2): a(f"v_mov_b64 {vr(Vb[3][1]+i,2)}, 0")
    kv_flag_offsets(vKF)
    a(f"v_and_b32 v{vKF}, {hex(~(6 << 7) & 0xffffffff)}, v{vKF}")
    a(f"s_lshl_b32 s{sT}, s{sQb}, 1")
    a(f"v_and_b32 v{vT[2]}, 1, v{vL}")
    a(f"v_lshl_add_u32 v{vT[0]}, v{vT[0]}, 4, v{vT[2]}")
    a(f"v_add_u32 v{vT[0]}, s{sT}, v{vT[0]}")
    a(f"s_mov_b64 exec, s[{sHi}:{sHi+1}]")
    a(f"v_mov_b32 v{vT[0]}, 256")
    a("s_mov_b64 exec, -1")
    a(f"v_lshlrev_b32 v{vQF}, 7, v{vT[0]}")
    if defer:
        a(f"s_cmp_eq_u32 s{sDef}, 0")
        a(f"s_cbranch_scc1 {L('nd')}")
        if defer == 2: lds_wait("dw", 12, 4, 2)
        srd(a, sD, sWS, WL.QF, WL.G - WL.QF)
        for bb in range(2):
            for aa in range(2): astore(sD, aa, bb)
        a.label(L("nd"))
    a(f"v_mov_b32 v{vT[0]}, 1")
    a("s_waitcnt vmcnt(0)")
    a("s_mov_b64 exec, 1")
    a(f"ds_add_rtn_u32 v{vT[1]}, v{vCtl}, v{vT[0]} offset:4")
    a("s_mov_b64 exec, -1")
    a("s_waitcnt lgkmcnt(0)")
    a(f"v_readfirstlane_b32 s{sT}, v{vT[1]}")
    a("s_nop 1")
    a(f"s_cmp_lg_u32 s{sT}, 3")
    a(f"s_cbranch_scc1 {L('nsig')}")
    put_flag(f"s{sAF}")
    st.stamp("aflag")
    a.label(L("nsig"))
    for q in range(4):
        for i in range(0, 16, 2): a(f"v_mov_b64 {vr(O[q]+i,2)}, 0")
    d_addrs(cO, cSt, cR, NL)
    slot_addr(cX0, 0, 0); slot_addr(cX1, 2, 0)
    if not poll2:
        a(f"s_cmp_eq_u32 s{sW}, 0")
        a(f"s_cbranch_scc1 {L('poll')}")
        lds_wait("wa", 0, 1, 2)
        a(f"s_branch {L('go')}")
    a.label(L("poll"))
    a(f"s_mov_b32 s{sT2}, {WL.FA}")
    spin_begin("pa")
    a(f"buffer_load_dword v{vT[2]}, v{vKF}, s[{sFl}:{sFl+3}], s{sT2} offen sc1")
    a(f"buffer_load_dword v{vT[3]}, v{vQF}, s[{sFl}:{sFl+3}], s{sT2} offen sc1")
    a("s_waitcnt vmcnt(0)")
    all_nonce([vT[2], vT[3]], "pad")
    spin_end("pa", psleep)
    a.label(L("pad"))
    lds_set(0)
    a.label(L("go"))
    a("s_setprio 3")
    st.stamp("ardy")
    def ldKr(kb, koff): a(f"buffer_load_dwordx4 {vr(Kr[kb],4)}, v{vKr}, s[{sK}:{sK+3}], s{sOK} offen offset:{koff}")
    def ldKm(kb, koff): a(f"buffer_load_dwordx4 {vr(Km[kb],4)}, v{vKm}, s[{sK}:{sK+3}], s{sOK} offen offset:{koff}")
    def ldV(vb, j): a(f"buffer_load_dwordx4 {vr(Vb[vb][j],4)}, v{vVa[vb][j]}, s[{sV}:{sV+3}], s{sOV} offen")
    a(f"buffer_load_dwordx4 {vr(K0m,4)}, v{vKm}, s[{sK}:{sK+3}], 0 offen")
    for q in range(4): a(f"buffer_load_dwordx4 {vr(Qm[q],4)}, v{vKm}, s[{sQ}:{sQ+3}], s{sU0} offen offset:{512*q}")
    a(f"s_mov_b64 exec, s[{sLo}:{sLo+1}]")
    for q in (0, 2): a(f"buffer_load_dwordx4 {vr(Qr[q],4)}, v{vKr}, s[{sQ}:{sQ+3}], s{sU0} offen offset:{512*q}")
    a("s_mov_b64 exec, -1")
    a(f"buffer_load_dwordx2 {vr(K0r,2)}, v{vKr}, s[{sK}:{sK+3}], 0 offen")
    ldKr(0, 0); ldKm(0, 0)
    for kb in range(1, 4):
        ldV(kb - 1, 0); ldV(kb - 1, 1); ldKm(kb, 512 * kb)
    ldKr(2, 1024)
    lds_inc(56)
    a(f"s_add_u32 s{sT}, s{sHp}, {WL.OF}")
    srd(a, sQ, sWS, f"s{sT}", 5 * WL.PL)
    def qka(s_, k, q): a(f"v_mfma_f32_32x32x16_bf16 {vr(s_,16)}, {vr(k,4)}, {vr(Qm[q],4)}, 0")
    def qkb(s_, k, q): a(f"v_mfma_f32_32x32x8_bf16 {vr(s_,16)}, {vr(k,2)}, {vr(Qr[q],2)}, {vr(s_,16)}")
    def exp(q, i): a(f"v_exp_f32 v{S[q]+i}, v{S[q]+i}")
    def pv(o, vb, sreg):
        a(f"v_smfmac_f32_32x32x32_bf16 {vr(o,16)}, {vr(vb,4)}, {vr(sreg,8)}, v{vIdx}")
    a("s_waitcnt vmcnt(12)")
    st.stamp("qld")
    for q in range(4): qka(S[q], K0m, q)
    if si == 0:
        for q in range(4): qkb(S[q], K0r, q)
    a("s_nop 8")
    a(f"s_mov_b64 exec, s[{sHi}:{sHi+1}]")
    for q in range(4):
        a(f"v_max3_f32 v{S[q]}, v{S[q]}, v{S[q]+1}, v{S[q]+2}")
        for i in range(3, 15 if si < 2 else 9, 2):
            a(f"v_max3_f32 v{S[q]}, v{S[q]}, v{S[q]+i}, v{S[q]+i+1}")
        if si < 2: a(f"v_max_f32 v{S[q]}, v{S[q]}, v{S[q]+15}")
        a(f"v_cvt_pk_bf16_f32 v{Qr[q]}, -v{S[q]}, 0")
        if q == 0:
            a("s_mov_b64 exec, -1")
            a("s_waitcnt vmcnt(7)")
            qka(S[0], Km[0], 0)
            a(f"s_mov_b64 exec, s[{sHi}:{sHi+1}]")
        if q == 1:
            a("s_mov_b64 exec, -1")
            qkb(S[0], Kr[0], 0)
            qka(S[1], Km[0], 1)
            a(f"s_mov_b64 exec, s[{sHi}:{sHi+1}]")
    a("s_mov_b64 exec, -1")
    for i in range(8, 16, 2): a(f"v_mov_b64 {vr(S[3]+i,2)}, 0")
    a(f"s_mov_b32 s{sCnt}, 0")
    st.stamp("lbeg")
    def slot(kt, q):
        k1, q1 = (kt + (q + 1) // 4) % 4, (q + 1) % 4
        k2, q2 = (kt + (q + 2) // 4) % 4, (q + 2) % 4
        kp, qp = (kt - (q == 0)) % 4, (q - 1) % 4
        def mem():
            if noload: return
            if q < 2:
                ldV((kt - 1) % 4, q)
                if q == 1 and kt == 0: a(f"s_add_u32 s{sOV}, s{sOV}, {4*WL.VT}")
            elif q == 2: ldKm(kt, 512 * (kt + 4))
            elif kt % 2: ldKr(kt - 1, 512 * (kt + 3))
        if q == 3: a("s_waitcnt vmcnt(6)")
        qkb(S[q1], Kr[k1], q1)
        for i in range(0, 4): exp(q, i)
        pv(O[qp], Vb[kp][1], S[qp] + 8)
        if mpos == 1: mem()
        for i in range(4, 8): exp(q, i)
        qka(S[q2], Km[k2], q2)
        for i in range(8, 12): exp(q, i)
        pv(O[q], Vb[kt][0], S[q])
        if mpos == 3: mem()
        for i in range(12, 16): exp(q, i)
    def block():
        for kt in range(4):
            for q in range(4): slot(kt, q)
        a(f"s_add_u32 s{sOK}, s{sOK}, 2048")
    a.raw(".p2align 6")
    a.label(L("loop"))
    block()
    a(f"s_bitcmp1_b32 9, s{sCnt}")
    a(f"s_cbranch_scc1 {L('hook')}")
    a.label(L("hookr"))
    block()
    if stamps and "it1" in snames:
        for i_ in range(3):
            a(f"s_cmp_lg_u32 s{sCnt}, {i_}")
            a(f"s_cbranch_scc1 {L('its%d' % i_)}")
            st.stamp("it%d" % (i_ + 1))
            a.label(L("its%d" % i_))
    a(f"s_add_u32 s{sCnt}, s{sCnt}, 1")
    a(f"s_cmp_lg_u32 s{sCnt}, 4")
    a(f"s_cbranch_scc1 {L('loop')}")
    pv(O[3], Vb[3][1], S[3] + 8)
    st.stamp("lend")
    AF = [[48 + 20 * k + 4 * t for t in range(5)] for k in range(4)] + [[O[0] + 4 * t for t in range(5)]]
    EX = 144; PO = 128
    cOF = [200 + 4 * i for i in range(20 - NL)]; cAC = [24 + 4 * t for t in range(5)]
    assert cOF[-1] + 4 <= K0m
    srd(a, sD, sWS, WL.OF, 80 * WL.PL)
    a(f"s_lshl_b32 s{sT}, s{sKh}, 10")
    a(f"s_add_u32 s{sOK}, s{sU0}, s{sT}")
    a(f"s_lshl_b32 s{sT}, s{sW}, 2")
    a(f"v_add_u32 v{vT[4]}, s{sT}, v{vCtl}")
    a(f"v_mov_b32 v{vT[5]}, 1")
    a(f"s_cmp_eq_u32 s{sKh}, 0")
    a(f"s_cbranch_scc1 {L('x0')}")
    for q in range(2):
        for r in range(3): a(f"ds_write_b128 v{cX0}, {vr(O[q]+4*r,4)} offset:{3072*q+1024*r}")
    a("s_waitcnt lgkmcnt(0)")
    a(f"ds_write_b32 v{vT[4]}, v{vT[5]} offset:32")
    for q in range(2):
        for i in range(0, 12, 2): a(f"v_mov_b64 {vr(O[q]+i,2)}, {vr(O[q+2]+i,2)}")
    for i in range(0, 8, 2): a(f"v_mov_b64 {vr(Qm[0]+i,2)}, {vr(Qm[2]+i,2)}")
    for i in range(0, 4, 2): a(f"v_mov_b64 {vr(Qr[0]+i,2)}, {vr(Qr[2]+i,2)}")
    a(f"s_branch {L('x1')}")
    a.label(L("x0"))
    for q in range(2):
        for r in range(3): a(f"ds_write_b128 v{cX0}, {vr(O[q+2]+4*r,4)} offset:{3072*q+1024*r}")
    a("s_waitcnt lgkmcnt(0)")
    a(f"ds_write_b32 v{vT[4]}, v{vT[5]} offset:32")
    a.label(L("x1"))
    a(f"v_xor_b32 v{vT[4]}, 8, v{vT[4]}")
    spin_begin("wx", 8 * SPIN)
    a(f"ds_read_b32 v{vT[0]}, v{vT[4]} offset:32")
    a(f"ds_read_b32 v{vT[1]}, v{vCtl} offset:48")
    a("s_waitcnt lgkmcnt(0)")
    a(f"v_add_u32 v{vT[0]}, v{vT[0]}, v{vT[1]}")
    a("s_nop 0")
    a(f"v_readfirstlane_b32 s{sT}, v{vT[0]}")
    a("s_nop 1")
    a(f"s_cmp_eq_u32 s{sT}, 5")
    a(f"s_cbranch_scc1 {L('wxd')}")
    spin_end("wx", 0)
    a.label(L("wxd"))
    st.stamp("x1")
    for r in range(6): a(f"ds_read_b128 {vr(EX+4*r,4)}, v{cX1} offset:{1024*r}")
    a(f"v_and_b32 v{vT[5]}, 0x1f0, v{vKm}")
    a(f"s_and_b32 s{sT}, s{sHead}, 1")
    a(f"s_lshl_b32 s{sT}, s{sT}, 3")
    a(f"s_add_u32 s{sT}, s{sT}, {2*WL.PL}")
    a(f"v_add_u32 v{vT[5]}, s{sT}, v{vT[5]}")
    def bcast_l(o):
        a(f"v_mov_b32 v{o+12}, v{o+8}")
        a(f"v_mov_b32 v{o+13}, v{o+8}")
        a("s_nop 1")
        a(f"v_permlane32_swap_b32 v{o+13}, v{o+12}")
        a("s_nop 1")
    for q in range(2):
        o = O[q]
        a(f"s_waitcnt lgkmcnt({3 - 3*q})")
        for i in (8, 10, 0, 2, 4, 6): a(f"v_pk_add_f32 {vr(o+i,2)}, {vr(o+i,2)}, {vr(EX+12*q+i,2)}")
        a(f"v_mov_b32 v{o+12}, v{o+8}")
        a(f"v_mov_b32 v{o+13}, v{o+8}")
        a(f"v_pk_mul_f32 {vr(o+14,2)}, {vr(o,2)}, 0")
        a(f"v_pk_fma_f32 {vr(o+14,2)}, {vr(o+2,2)}, 0, {vr(o+14,2)}")
        a(f"v_permlane32_swap_b32 v{o+13}, v{o+12}")
        for i in range(4, 12, 2): a(f"v_pk_fma_f32 {vr(o+14,2)}, {vr(o+i,2)}, 0, {vr(o+14,2)}")
        a(f"v_add_f32 v{vM}, v{o+14}, v{o+15}")
        a(f"v_add_f32 v{vM}, v{vM}, v{o+12}")
        a(f"v_cmp_nge_f32 vcc, 0x71800000, v{vM}")
        a(f"s_mov_b32 s{sT}, 0x21800000")
        a(f"v_cmp_gt_f32 s[{sT2+1}:{sT2+2}], s{sT}, v{vM}")
        a("s_nop 1")
        a(f"s_or_b64 vcc, vcc, s[{sT2+1}:{sT2+2}]")
        a(f"s_cbranch_scc0 {L('fin%d' % q)}")
        if q == 1:
            for i in range(0, 4, 2): a(f"v_mov_b64 {vr(Qm[0]+i,2)}, {vr(Qm[1]+i,2)}")
            a(f"v_mov_b64 {vr(Qr[0],2)}, {vr(Qr[1],2)}")
        a(f"s_call_b64 s[{sRet}:{sRet+1}], {L('slow')}")
        for i in range(0, 14, 2): a(f"v_mov_b64 {vr(o+i,2)}, {vr(O[2]+i,2)}")
        a.label(L("fin%d" % q))
        a(f"v_rcp_f32 v{vM}, v{o+12}")
        if q == 0: a("s_waitcnt vmcnt(0)")
        else: a("s_nop 0")
        a(f"v_mul_f32 v{o+14}, v{vM}, v{vG1+q}")
        for i in range(0, 12, 2): a(f"v_pk_mul_f32 {vr(o+i,2)}, {vr(o+i,2)}, {vr(o+14,2)} op_sel_hi:[1,0]")
        po = PO + 8 * q
        for i in range(6): a(f"v_cvt_pk_bf16_f32 v{po+i}, v{o+2*i}, v{o+2*i+1}")
        for i in range(6): a(f"v_min_u32 v{po+i}, -2, v{po+i}")
        a(f"buffer_store_dwordx4 {vr(po,4)}, v{vKm}, s[{sQ}:{sQ+3}], s{sOK} offen offset:{512*q} sc1")
        a(f"s_mov_b64 exec, s[{sLo}:{sLo+1}]")
        a(f"buffer_store_dwordx2 {vr(po+4,2)}, v{vT[5]}, s[{sQ}:{sQ+3}], s{sOK} offen offset:{512*q} sc1")
        a("s_mov_b64 exec, -1")
    st.stamp("ost")
    if not owait:
        if hbar: a("s_barrier")
        else: lds_inc(52)
    a.c("=" * 20 + " " + 'PHASE D')
    coa = oahead
    def chk(o):
        a(f"v_max3_u32 v{vT[0]}, v{o}, v{o+1}, v{o+2}")
        a(f"v_max_u32 v{vT[0]}, v{vT[0]}, v{o+3}")
        a(f"v_cmp_eq_u32 vcc, -1, v{vT[0]}")
        a("s_nop 1")
        a("s_cmp_eq_u64 vcc, 0")
    def ldO(OF_, vo, s_):
        a(f"s_mov_b32 s{sT}, {4*WL.PL*s_}")
        a(f"buffer_load_dwordx4 {vr(OF_[s_],4)}, v{vo}, s[{sD}:{sD+3}], s{sT} offen sc1")
    def stages(tag, n, OF_, vo, AF_, nres, vr_, AC_, first0):
        oahead = hoa if tag == 'h' else coa
        for s_ in range(min(oahead, n)): ldO(OF_, vo, s_)
        srd(a, sC, 22, 0, 2048 * 1280)
        a(f"s_mov_b32 s59, {SPIN}")
        for s_ in range(n):
            a.label(L(f"{tag}st{s_}"))
            a(f"s_waitcnt vmcnt({min(n - 1 - s_, oahead - 1)})")
            chk(OF_[s_])
            a(f"s_cbranch_scc1 {L(f'{tag}ok{s_}')}")
            a(f"s_call_b64 s[{sRet}:{sRet+1}], {L(tag + 'retry')}")
            a(f"s_cbranch_scc1 {L(f'{tag}st{s_}')}")
            a.label(L(f"{tag}ok{s_}"))
            if s_ + oahead < n: ldO(OF_, vo, s_ + oahead)
            younger = min(n, s_ + nres) - 1 - s_
            a(f"s_waitcnt lgkmcnt({min(15, 10 * younger)})")
            for t in range(5):
                c = "0" if (first0 and s_ == 0) else vr(AC_[t], 4)
                a(f"v_mfma_f32_16x16x32_bf16 {vr(AC_[t],4)}, {vr(AF_[s_ % len(AF_)][t],4)}, {vr(OF_[s_],4)}, {c}")
            if s_ + nres < n: rd(AF_[(s_ + nres) % len(AF_)], vr_, 5120 * (s_ + nres))
        st.stamp("dmf")
        a("s_nop 7")
    def retry(tag, n, OF_, vo):
        a.label(L(tag + "retry"))
        a("s_waitcnt vmcnt(0)")
        a(f"s_sleep {hrs if (hearly and tag == 'h') else rsleep}")
        for s_ in range(n):
            chk(OF_[s_])
            a(f"s_cbranch_scc1 {L(f'{tag}rt{s_}')}")
            ldO(OF_, vo, s_)
            a.label(L(f"{tag}rt{s_}"))
        a("s_waitcnt vmcnt(0)")
        a("s_sub_u32 s59, s59, 1")
        a("s_cmp_gt_i32 s59, 0")
        a(f"s_setpc_b64 s[{sRet}:{sRet+1}]")
    def dfin(keep, send, AC_, AB_, wr, rdd, vst):
        for r, t in enumerate(send): a(f"ds_write_b128 v{wr}, {vr(AC_[t],4)} offset:{1024*r}")
        a("s_waitcnt lgkmcnt(0)")
        a("s_barrier")
        for r, t in enumerate(keep): a(f"ds_read_b128 {vr(AB_[t],4)}, v{rdd} offset:{1024*r}")
        for r, t in enumerate(keep):
            a(f"s_waitcnt lgkmcnt({len(keep)-1-r})")
            for i in range(4): a(f"v_add_f32 v{AC_[t]+i}, v{AC_[t]+i}, v{AB_[t]+i}")
            a(f"v_cvt_pk_bf16_f32 v{AC_[t]}, v{AC_[t]}, v{AC_[t]+1}")
            a(f"v_cvt_pk_bf16_f32 v{AC_[t]+1}, v{AC_[t]+2}, v{AC_[t]+3}")
            a(f"buffer_store_dwordx2 {vr(AC_[t],2)}, v{vst}, s[{sC}:{sC+3}], 0 offen offset:{32*t} {osc}")
    for k in range(4): rd(AF[k], cR, 5120 * k)
    for o_ in cOF:
        pass
    a(f"v_add_u32 v{cD1}, 3072, v{cX1}")
    if owait:
        if hearly: lds_inc(52)
        a("s_waitcnt vmcnt(0)")
        if not hearly: a("s_barrier")
        else: a("s_waitcnt lgkmcnt(0)")
    elif odelay: a(f"s_sleep {odelay}")
    stages("c", 20 - NL, cOF, cO, AF, 4, cR, cAC, True)
    dfin([0, 1, 2], [3, 4], cAC, AF[4 if (20 - NL) % 5 != 0 else 0], cX1, cD1, cSt)
    a(f"s_branch {L('dend')}")

    a.label(L("hook"))
    a(f"s_cmp_eq_u32 s{sCnt}, 0")
    a(f"s_cbranch_scc0 {L('hook3')}")
    st.stamp("k0a")
    lds_wait("wb", 24, 1)
    st.stamp("k0b")
    a(f"s_branch {L('hookr')}")
    a.label(L("hook3"))
    st.stamp("k3a")
    lds_wait("wg", 28, 1)
    a(f"s_mov_b32 s{sK+2}, 0")
    srd(a, sD, sWS, WL.GATE, 2048 * 8)
    a(f"v_bfe_u32 v{vT[0]}, v{vKm}, 4, 5")
    a(f"v_lshlrev_b32 v{vT[0]}, 3, v{vT[0]}")
    a(f"s_lshl_b32 s{sT}, s{sKh}, 10")
    a(f"s_add_u32 s{sT}, s{sU0}, s{sT}")
    a(f"s_lshr_b32 s{sT}, s{sT}, 1")
    for q in range(2): a(f"buffer_load_dword v{vG1+q}, v{vT[0]}, s[{sD}:{sD+3}], s{sT} offen offset:{4+256*q} sc1")
    a(f"s_branch {L('hookr')}")

    a.c("=" * 20 + " " + 'HELPER WAVES (the loaders, during attention)')
    a.label(L("help"))
    hR = 10; hR2 = 11; hO = 12; hSt = 13; hD0 = 14; hD1 = 15; hG = 16; hWo = 17; hGd = 18; hWs = 19
    hAC = [20 + 4 * t for t in range(5)]
    hOF = [40 + 4 * i for i in range(NL)]
    NH = (TOP - (40 + 4 * NL)) // 20
    hAF = [[40 + 4 * NL + 20 * k + 4 * t for t in range(5)] for k in range(NH)]
    WsF = hOF[0:4]; GFl = hOF[4]; hGt = GFl + 12; hKF = GFl + 13
    sWo = sD; sM0 = 3
    a("s_setprio 3")
    coords()
    d_addrs(hO, hSt, hR, 0, hWs, hGt)
    a(f"s_cmp_lt_u32 s{sEb8}, 4")
    a(f"s_cselect_b32 s{sT}, 0, 3")
    a(f"v_xor_b32 v{vT[1]}, s{sT}, v{vT[1]}")
    a(f"v_mul_u32_u24 v{hR2}, 176, v{vT[2]}")
    a(f"v_lshl_add_u32 v{hR2}, v{vT[1]}, 3, v{hR2}")
    a(f"v_add_u32 v{hR2}, {GIMG}, v{hR2}")
    slot_addr(hD0, 2, 0)
    a(f"v_add_u32 v{hD1}, 3072, v{hD0}")
    a(f"v_mul_u32_u24 v{vT[2]}, 187, v{vL}")
    a(f"v_lshrrev_b32 v{vT[2]}, 11, v{vT[2]}")
    a(f"v_mul_u32_u24 v{vT[3]}, 11, v{vT[2]}")
    a(f"v_sub_u32 v{vT[3]}, v{vL}, v{vT[3]}")
    a(f"v_mul_u32_u24 v{hGd}, {WL.GA}, v{vT[2]}")
    a(f"v_lshrrev_b32 v{vT[2]}, 1, v{vT[3]}")
    a(f"v_lshl_add_u32 v{hGd}, v{vT[2]}, 10, v{hGd}")
    a(f"v_and_b32 v{vT[3]}, 1, v{vT[3]}")
    a(f"v_lshl_add_u32 v{hGd}, v{vT[3]}, 4, v{hGd}")
    a(f"s_sub_u32 s{sT}, 7, s{sEb8}")
    a(f"s_sub_u32 s{sT2}, 32, s{sCc}")
    a(f"s_and_b32 s{sT2}, s{sT2}, 31")
    a(f"s_cmp_lt_u32 s{sEb8}, 4")
    a(f"s_cselect_b32 s{sT}, s{sEb8}, s{sT}")
    a(f"s_cselect_b32 s{sT2}, s{sCc}, s{sT2}")
    a(f"s_mul_i32 s{sT}, s{sT}, 5120")
    a(f"s_lshl_b32 s{sT2}, s{sT2}, 5")
    a(f"s_add_u32 s{sT}, s{sT}, s{sT2}")
    a(f"v_add_u32 v{hGd}, s{sT}, v{hGd}")
    a(f"v_lshlrev_b32 v{hWo}, 4, v{vL}")
    if wsg:
        wZ = [hAF[0][0], hAF[1][0]]; wK = hAF[2][0]; wF = wK + 2
        a(f"v_cvt_f32_u32 v{wF}, v{hWs}")
        a(f"v_mul_f32 v{wF}, 0x3a000000, v{wF}")
        a(f"v_cos_f32 v{wK}, v{wF}")
        a(f"v_lshrrev_b32 v{vT[2]}, 4, v{vL}")
        a(f"v_add_f32 v{wK}, v{wK}, v{wK}")
        a(f"v_mov_b32 v{wK+1}, v{wK}")
        def wsf(s_):
            Z = wZ[s_]
            a(f"v_lshl_add_u32 v{Z}, v{vT[2]}, 3, {32*s_}")
            a(f"v_cvt_f32_u32 v{Z}, v{Z}")
            a(f"v_mul_f32 v{Z}, v{Z}, v{wF}")
            trig1(Z, wF, wK)
            trig2(Z, WsF[s_], WsF[2 + s_])
        inter(lambda: wsf(0), lambda: wsf(1))
    a(f"s_call_b64 s[{sVm}:{sVm+1}], {L('p2sub')}")
    lds_wait("hb", 24, 1, 4)
    a(f"s_setprio {hp0}")
    a(f"s_cmp_eq_u32 s{sGF}, 0")
    a(f"s_cbranch_scc1 {L('hg')}")
    a(f"s_cmp_ge_u32 s{sJ}, 20")
    a(f"s_cbranch_scc1 {L('hg1')}")
    g_stores(sC)
    a.label(L("hg1"))
    a("s_waitcnt vmcnt(0)")
    put_flag(f"s{sGF}")
    a.label(L("hg"))
    lds_wait("hr", 8, 8, 4)
    st.stamp("hp2")
    for p_ in range(0 if wsg else 2):
        srd(a, sD, 6 + 2 * p_, 0, 2048 * 4096)
        a(f"buffer_load_dwordx4 {vr(WsF[2*p_],4)}, v{hWs}, s[{sD}:{sD+3}], 0 offen")
        a(f"buffer_load_dwordx4 {vr(WsF[2*p_+1],4)}, v{hWs}, s[{sD}:{sD+3}], 0 offen offset:64")
    if ot:
        srd(a, sC, 22, 0, 2048 * 1280)
        a(f"buffer_load_dword v{hG}, v{hSt}, s[{sC}:{sC+3}], 0 offen sc1")
        a(f"buffer_load_dword v{hG}, v{hSt}, s[{sC}:{sC+3}], 0 offen offset:128 sc1")
    a(f"s_mul_i32 s{sT}, s{sEb8}, 102400")
    a(f"s_add_u32 s{sT}, s{sT}, {WL.WP}")
    srd(a, sWo, sWS, f"s{sT}", 102400)
    a(f"s_and_b32 s{sM0}, s{sW}, 3")
    a(f"s_lshl_b32 s{sM0}, s{sM0}, 10")
    a.label(L("hwo"))
    a(f"s_mov_b32 m0, s{sM0}")
    a(f"s_waitcnt vmcnt({wdep})")
    a(f"buffer_load_dwordx4 v{hWo}, s[{sWo}:{sWo+3}], s{sM0} offen lds")
    if wpace: a(f"s_sleep {wpace // 4}")
    a(f"s_add_u32 s{sM0}, s{sM0}, 4096")
    a(f"s_cmp_lt_u32 s{sM0}, 102400")
    a(f"s_cbranch_scc1 {L('hwo')}")
    st.stamp("hwo")
    if pgp: a("s_setprio 3")
    a(f"s_cmp_lg_u32 s{sW}, 4")
    a(f"s_cbranch_scc1 {L('hpg')}")
    a("s_cmp_lg_u32 s2, 0")
    a(f"s_cbranch_scc1 {L('ed')}")
    a(f"v_lshlrev_b32 v{vT[0]}, 9, v{vL}")
    a(f"s_mov_b32 s{sT2}, {WL.FA}")
    spin_begin("pe")
    for i in range(4): a(f"buffer_load_dword v{vT[2]+i}, v{vT[0]}, s[{sFl}:{sFl+3}], s{sT2} offen offset:{128*i} sc1")
    a("s_waitcnt vmcnt(0)")
    all_nonce([vT[2], vT[3], vT[4], vT[5]], "ped")
    spin_end("pe")
    a.label(L("ped"))
    put_flag("0")
    a.label(L("ed"))
    spin_begin("pg")
    a(f"v_mul_u32_u24 v{vT[0]}, 48, v{vL}")
    a(f"buffer_load_dwordx4 {vr(GFl,4)}, v{vT[0]}, s[{sFl}:{sFl+3}], 0 offen offset:{WL.FG} sc1")
    a(f"buffer_load_dwordx4 {vr(GFl+4,4)}, v{vT[0]}, s[{sFl}:{sFl+3}], 0 offen offset:{WL.FG+16} sc1")
    a(f"buffer_load_dwordx2 {vr(GFl+8,2)}, v{vT[0]}, s[{sFl}:{sFl+3}], 0 offen offset:{WL.FG+32} sc1")
    a(f"v_lshlrev_b32 v{vT[0]}, 2, v{vL}")
    a(f"s_mov_b32 s{sT}, {WL.FP + 256}")
    a(f"buffer_load_dword v{GFl+10}, v{vT[0]}, s[{sFl}:{sFl+3}], s{sT} offen sc1")
    a(f"s_mov_b32 s{sT}, {WL.FA + 240*128}")
    a(f"v_and_b32 v{vT[0]}, 15, v{vL}")
    a(f"v_lshlrev_b32 v{vT[0]}, 7, v{vT[0]}")
    a(f"buffer_load_dword v{GFl+11}, v{vT[0]}, s[{sFl}:{sFl+3}], s{sT} offen sc1")
    a("s_waitcnt vmcnt(0)")
    all_nonce([GFl + i for i in range(12)], "pgd")
    spin_end("pg", 16)
    a.label(L("pgd"))
    lds_set(28)
    a.label(L("hpg"))
    lds_wait("hq", 28, 1, 4)
    srd(a, sWo, sWS, WL.GATE, 2048 * 8)
    a(f"buffer_load_dword v{hG}, v{hGt}, s[{sWo}:{sWo+3}], 0 offen sc1")
    srd(a, sWo, sWS, WL.G, WL.G_SIZE)
    a(f"s_and_b32 s{sT2}, s{sW}, 3")
    a(f"s_mul_i32 s{sM0}, s{sT2}, {4*176}")
    a(f"s_mul_i32 s{sT2}, s{sT2}, {8*WL.GA}")
    a("s_mov_b32 exec_hi, 0xfff")
    for i in range(8):
        a(f"s_add_u32 m0, s{sM0}, {GIMG + 16*176*i}")
        a(f"s_add_u32 s{sT}, s{sT2}, {(32*(i//2) + 4*(i%2))*WL.GA}")
        a(f"s_waitcnt vmcnt({wdep})")
        a(f"buffer_load_dwordx4 v{hGd}, s[{sWo}:{sWo+3}], s{sT} offen lds")
    a("s_mov_b64 exec, -1")
    a("s_waitcnt vmcnt(0)")
    lds_inc(48)
    lds_wait("hi", 48, 4, 2)
    st.stamp("him")
    if stamps: a("s_waitcnt lgkmcnt(0)")
    a(f"s_setprio {hp1}")
    def ymf(off):
        for k in range(4): rd(hAF[k], hR2, GSTEP * k + off, 176)
        for k in range(4):
            a(f"s_waitcnt lgkmcnt({min(15, 30 - 10*k)})")
            for t in range(5):
                c = "0" if k == 0 else vr(hAC[t], 4)
                a(f"v_mfma_f32_16x16x32_bf16 {vr(hAC[t],4)}, {vr(hAF[k][t],4)}, {vr(WsF[k],4)}, {c}")
        a("s_nop 7")
    a(f"s_cmp_lt_u32 s{sEb8}, 4")
    a(f"s_cbranch_scc0 {L('ymir')}")
    ymf(0)
    for t in range(5):
        for i in (0, 2): a(f"v_pk_mul_f32 {vr(hAC[t]+i,2)}, {vr(hAC[t]+i,2)}, {vr(hG,2)} op_sel_hi:[1,0]")
    a(f"s_branch {L('ydone')}")
    a.label(L("ymir"))
    for i in range(8): a(f"v_xor_b32 v{WsF[2]+i}, 0x80008000, v{WsF[2]+i}")
    if ym6:
        Y5 = hAF[6][0]
        for k in range(4):
            a(f"ds_read_b64_tr_b16 {vr(hAF[5][k],2)}, v{hR2} offset:{GSTEP*k + 160}")
            a(f"ds_read_b64_tr_b16 {vr(hAF[5][k]+2,2)}, v{hR2} offset:{GSTEP*k + 160 + 16*176}")
        a(f"v_add_u32 v{vT[0]}, 48, v{vL}")
        a(f"v_lshlrev_b32 v{vT[0]}, 2, v{vT[0]}")
        a("s_waitcnt lgkmcnt(0)")
        for k in range(4):
            a(f"v_mfma_f32_16x16x32_bf16 {vr(Y5,4)}, {vr(hAF[5][k],4)}, {vr(WsF[k],4)}, {'0' if k == 0 else vr(Y5,4)}")
        ymf(0)
        a("s_mov_b32 exec_lo, 0"); a("s_mov_b32 exec_hi, 0xffff0000")
        for t in range(5): a(f"v_mov_b32 v{hAC[t]}, v{hAC[t+1] if t < 4 else Y5}")
        a("s_mov_b64 exec, -1")
        for t in range(5): a(f"ds_bpermute_b32 v{hAF[4][t]}, v{vT[0]}, v{hAC[4-t]}")
    else:
        ymf(8)
        for t in range(5): a(f"v_mul_f32 v{hAF[4][t]}, v{hAC[4-t]}, v{hG}")
        ymf(0)
    for t in range(5):
        for i in range(1, 4): a(f"v_mul_f32 v{hAF[4][t]+i}, v{hAC[4-t]+4-i}, v{hG}")
    if ym6:
        a("s_waitcnt lgkmcnt(0)")
        for t in range(5): a(f"v_mul_f32 v{hAF[4][t]}, v{hAF[4][t]}, v{hG}")
    for t in range(5):
        for i in (0, 2): a(f"v_mov_b64 {vr(hAC[t]+i,2)}, {vr(hAF[4][t]+i,2)}")
    a.label(L("ydone"))
    for k in range(NH): rd(hAF[k], hR, 5120 * k)
    for o_ in hOF:
        for i in (0, 2):
            if hz: a(f"v_mov_b64 {vr(o_+i,2)}, 0")
    srd(a, sD, sWS, WL.OF, 80 * WL.PL)
    st.stamp("hrdy")
    if hearly:
        a("s_waitcnt lgkmcnt(0)")
    elif hbar:
        a("s_waitcnt lgkmcnt(0)")
        a("s_barrier")
    else: lds_wait("ho", 52, 4, hsl)
    a("s_setprio %d" % (0 if hearly else 3))
    if ldel and not owait: a(f"s_sleep {ldel}")
    stages("h", NL, hOF, hO, hAF, NH, hR, hAC, False)
    if hearly: lds_wait("ho", 52, 4, 1)
    dfin([3, 4], [0, 1, 2], hAC, hAF[NH - 1], hD1, hD0, hSt)
    a.label(L("dend"))
    st.finish(9)
    a.label(L("end"))
    a("s_endpgm")
    a.label(L("p2sub"))
    lds_wait("hw", 56, 4, 4)
    a(f"s_cmp_lg_u32 s{sW}, 4")
    a(f"s_cbranch_scc1 {L('hp2')}")
    coords()
    kv_flag_offsets(vT[5])
    a(f"v_lshlrev_b32 v{vT[4]}, 2, v{vL}")
    spin_begin("p2")
    a(f"s_mov_b32 s{sT2}, {WL.FA}")
    a(f"buffer_load_dword v{vT[2]}, v{vT[5]}, s[{sFl}:{sFl+3}], s{sT2} offen sc1")
    a(f"s_mov_b32 s{sT2}, {WL.FP}")
    a(f"buffer_load_dword v{vT[3]}, v{vT[4]}, s[{sFl}:{sFl+3}], s{sT2} offen sc1")
    a("s_waitcnt vmcnt(0)")
    all_nonce([vT[2], vT[3]], "p2d")
    spin_end("p2", 6)
    a.label(L("p2d"))
    lds_set(24)
    a.label(L("hp2"))
    a(f"s_setpc_b64 s[{sVm}:{sVm+1}]")
    retry("c", 20 - NL, cOF, cO)
    retry("h", NL, hOF, hO)

    a.c("=" * 20 + " " + 'slow path (exact row max): tile Qm[0]/Qr[0] -> O[2]')
    a.label(L("slow"))
    sSK = sT2 + 1; sSV = sT2 + 2
    a("s_waitcnt vmcnt(0) lgkmcnt(0)")
    a(f"s_mov_b32 s{sK+2}, {81*WL.PL}")
    a(f"s_mov_b32 s{sV+2}, {64*WL.VT}")
    a(f"s_mov_b64 exec, s[{sHi}:{sHi+1}]")
    a(f"v_mov_b64 {vr(Qr[0],2)}, 0")
    a("s_mov_b64 exec, -1")
    a(f"v_mov_b32 v{vM}, 0xff800000")
    a(f"s_mov_b32 s{sSK}, 0")
    def qk_slow():
        a(f"s_bfe_u32 s{sT}, s{sSK}, 0x10009")
        a(f"s_mul_i32 s{sT}, s{sT}, 504")
        a(f"s_sub_u32 s{sT}, s{sSK}, s{sT}")
        a(f"buffer_load_dwordx2 {vr(Kr[0],2)}, v{vKr}, s[{sK}:{sK+3}], s{sT} offen")
        a(f"buffer_load_dwordx4 {vr(Km[0],4)}, v{vKm}, s[{sK}:{sK+3}], s{sSK} offen")
        a("s_waitcnt vmcnt(0)")
        qka(S[0], Km[0], 0)
        a("s_nop 11")
        qkb(S[0], Kr[0], 0)
        a("s_nop 12")
    a.label(L("s1"))
    qk_slow()
    for i in range(0, 16, 2):
        a(f"v_max3_f32 v{vM}, v{vM}, v{S[0]+i}, v{S[0]+i+1}")
    a(f"s_add_u32 s{sSK}, s{sSK}, 512")
    a(f"s_cmp_lt_u32 s{sSK}, {WL.PL}")
    a(f"s_cbranch_scc1 {L('s1')}")
    a(f"v_mov_b32 v{vT[0]}, v{vM}")
    a("s_nop 1")
    a(f"v_permlane32_swap_b32 v{vT[0]}, v{vM}")
    a("s_nop 1")
    a(f"v_max_f32 v{vM}, v{vM}, v{vT[0]}")
    a(f"v_cvt_pk_bf16_f32 v{S[0]}, 0, -v{vM}")
    a(f"v_sub_f32 v{vT[0]}, 0, v{vM}")
    a(f"v_sub_f32 v{vT[0]}, v{vT[0]}, v{S[0]}")
    a(f"v_cvt_pk_bf16_f32 v{S[0]+1}, 0, v{vT[0]}")
    a(f"v_sub_f32 v{vT[1]}, v{vT[0]}, v{S[0]+1}")
    a(f"s_mov_b64 exec, s[{sHi}:{sHi+1}]")
    a(f"v_cvt_pk_bf16_f32 v{Qr[0]}, v{S[0]}, v{S[0]+1}")
    a(f"v_cvt_pk_bf16_f32 v{Qr[0]+1}, v{vT[1]}, 0")
    a("s_mov_b64 exec, -1")
    for i in range(0, 16, 2): a(f"v_mov_b64 {vr(O[2]+i,2)}, 0")
    a(f"s_mov_b32 s{sSK}, 0")
    a(f"s_mov_b32 s{sSV}, 0")
    a.label(L("s2"))
    a(f"buffer_load_dwordx4 {vr(Vb[0][0],4)}, v{vV0}, s[{sV}:{sV+3}], s{sSV} offen")
    a(f"buffer_load_dwordx4 {vr(Vb[0][1],4)}, v{vV1}, s[{sV}:{sV+3}], s{sSV} offen")
    qk_slow()
    for i in range(16): exp(0, i)
    a("s_nop 1")
    pv(O[2], Vb[0][0], S[0])
    pv(O[2], Vb[0][1], S[0] + 8)
    a(f"s_add_u32 s{sSK}, s{sSK}, 512")
    a(f"s_add_u32 s{sSV}, s{sSV}, {WL.VT}")
    a(f"s_cmp_lt_u32 s{sSK}, {WL.PL}")
    a(f"s_cbranch_scc1 {L('s2')}")
    a("s_nop 12")
    bcast_l(O[2])
    a(f"s_setpc_b64 s[{sRet}:{sRet+1}]")
    a.label(L("cend"))
    return DOC + a.text(), kernel_desc(name, 256, 102), f"; @launch grid=(256,1,1) block=(512,1,1) lds={LDS_SIZE}"

if __name__ == "__main__":
    import sys
    from gen import build
    path = sys.argv[1]
    sn = [x[3:].split(',') for x in sys.argv if x.startswith('sn=')]
    kw = {x.split('=')[0]: eval(x.split('=')[1]) for x in sys.argv[2:] if not x.startswith('sn=')}
    hd = kw.pop('hdbg', False)
    build(path, [gen(stamps=(2 if hd else bool(sn)), snames=sn[0] if sn else (), **kw)])
```

```python
from asm import *

QSCALE = 0x3ea52b5c
NAME = "gated_mix__spectral_fnet__softmax_full_mha__prompt_kernel"
LDS_X = 131072
LDS_CTL = LDS_X + 24576
LDS_SIZE = LDS_CTL + 64
GSTEP = 32 * 176
GIMG = 20 * 5120
SPIN = 200000
STAGE = [0, 0x8000, 0x18000, 0x10000]

DOC = """; ---------------------------------------------------------------------------------------------------------
;  phase A  QKV = x @ wqkv in 128x128 tiles (4 loader waves LDS-DMA, 4 compute waves MFMA), written through to d_ws
; ---------------------------------------------------------------------------------------------------------
"""

def gen(quad=2, wmv=True, so0=True, rwin=2, orot=False, oplain=False, ool=True, pre=False, xlate=False, nox=False, nomf=False, ym6=True, wsg=True, ot=False, wt=1, hz=False, poll2=False, xq=True, hearly=False, hrs=8, hoa=4, si=0, pgp=2, owait=True, deep=False, bpos=0, gun=2, wgen=True, gprio=2, fall=0, fprio=3, hbar=True, wdep=1, hp0=0, hp1=0, hsl=4, NL=12, gdel=True, wpace=0, ldel=8, mpos=1, name=NAME, stamps=False, snames=(), rotx=(0, 2, 5, 7, 5, 7, 0, 2), rin=(5, 5), touch=False, tpos=5, gtouch=True, fsplit=5,
        prio=(4, 2, 1), psleep=4, wotouch=False, probe=None, fwait=True, nodma=False, kvsc1=False, noload=False, nowait=False, noexec=False, spread=False, rt=True, fstart=6, rprobe=False, enc=None, encw=0, oearly=False, rsleep=4, rmode=0, ypost=True, obar=False, nfirst=(0, 0), afirst=True, odelay=8, gdefer=0, pois=5, osc='', lprio=3, cprio=2, wsleep=3, ldelay=0, pplain=True, glate=False, m8=False, wsbase=0, cbperm=True, prog=True, strict=True, defer=False, dmask=6, s2late=True, noaux=False, cwarm=False, oahead=4, dsc1=False, dzero=False, dburst=False, dnt=False, dpair=False, peel=True, fcrit=True, cdelay=0, lpos=3, oflag=0, nows=False, krskip=False, dhalf=False, wpack=True, wdtouch=False, nowo=False, nog=False, pfirst=False):
    a = Asm()
    kernel_begin(a, name)
    L = lambda s: f"L_{s}"
    st = Stamps(a, stamps, 0); st.names = list(snames); st.op = 's_memrealtime' if rt else 's_memtime'
    if enc:
        class Enc:
            names = []
            def start(self): a("s_memrealtime s[70:71]"); a("s_memrealtime s[72:73]")
            def stamp(self, n):
                if n == enc: a("s_memrealtime s[72:73]"); a("s_waitcnt lgkmcnt(0)")
            def finish(self, i):
                a("s_lshl_b32 s68, s2, 3"); a("s_add_u32 s68, s68, s52")
                a(f"s_cmp_lg_u32 s68, {136*8+encw}")
                a("s_cbranch_scc1 L_encd")
                a("s_memrealtime s[74:75]"); a("s_waitcnt lgkmcnt(0)")
                a("s_sub_u32 s72, s72, s70"); a("s_lshl_b32 s72, s72, 2"); a("s_add_u32 s72, s72, s74")
                a.label("L_encl")
                a("s_memrealtime s[74:75]"); a("s_waitcnt lgkmcnt(0)")
                a("s_sub_u32 s68, s74, s72"); a("s_cmp_lt_i32 s68, 0")
                a("s_cbranch_scc1 L_encl")
                a.label("L_encd")
        st = Enc()
    sWS = 26
    sA = 28; sB = 32; sC = 36; sD = 40; sFl = 44; sE = 48
    sW = 52; sXc = 53; sJ = 54; sNonce = 55; sT = 56; sT2 = 57; sCnt = 58
    sLo = 60; sVm = 62; sHi = 94; sDm = 96
    sGF = 25
    sAF = 24
    vL = 1; vT = [2, 3, 4, 5, 6, 7]; vCtl = 8
    VB = 10
    TOP = 252 if stamps else 256

    cold = []
    def out_of_line(f):
        keep = a.lines; a.lines = []; f(); cold.extend(a.lines); a.lines = keep
    def spin_begin(lab, n=SPIN):
        a(f"s_mov_b32 s59, {n}")
        a.label(L(lab))
    def spin_end(lab, sleep=2):
        a(f"s_sleep {sleep}")
        a("s_sub_u32 s59, s59, 1")
        a("s_cmp_lg_u32 s59, 0")
        a(f"s_cbranch_scc1 {L(lab)}")
    def put_flag(soff):
        a(f"v_mov_b32 v{vT[0]}, 0")
        a(f"v_mov_b32 v{vT[1]}, s{sNonce}")
        a("s_mov_b64 exec, 1")
        a(f"buffer_store_dword v{vT[1]}, v{vT[0]}, s[{sFl}:{sFl+3}], {soff} offen sc1")
        a("s_mov_b64 exec, -1")
    def lds_inc(off):
        a(f"v_mov_b32 v{vT[0]}, 1")
        a("s_mov_b64 exec, 1")
        a(f"ds_add_u32 v{vCtl}, v{vT[0]} offset:{off}")
        a("s_mov_b64 exec, -1")
    def lds_wait(lab, off, val, sl=1):
        spin_begin(lab, 8 * SPIN)
        a(f"ds_read_b32 v{vT[0]}, v{vCtl} offset:{off}")
        a("s_waitcnt lgkmcnt(0)")
        a(f"v_readfirstlane_b32 s{sT}, v{vT[0]}")
        a("s_nop 1")
        a(f"s_cmp_eq_u32 s{sT}, {val}")
        if ool:
            a(f"s_cbranch_scc0 {L(lab+'s')}")
            def f_():
                a.label(L(lab + "s")); spin_end(lab, sl); a(f"s_branch {L(lab+'d')}")
            out_of_line(f_)
        else:
            a(f"s_cbranch_scc1 {L(lab+'d')}")
            spin_end(lab, sl)
        a.label(L(lab + "d"))
    def sel_srd(d, cond_s, p0, p1, size):
        a(f"s_cmp_eq_u32 s{cond_s}, 0")
        a(f"s_cselect_b32 s{d}, s{p0}, s{p1}")
        a(f"s_cselect_b32 s{d+1}, s{p0+1}, s{p1+1}")
        a(f"s_and_b32 s{d+1}, s{d+1}, 0xffff")
        a(f"s_mov_b32 s{d+2}, {size}")
        a(f"s_mov_b32 s{d+3}, 0x20000")
    def after_kernarg():
        a("s_waitcnt lgkmcnt(0)")
        st.stamp("karg")
        if wsbase:
            a(f"s_add_u32 s{sWS}, s{sWS}, {hex(wsbase << 20)}")
            a(f"s_addc_u32 s{sWS+1}, s{sWS+1}, 0")
        a(f"s_load_dword s{sNonce}, s[{sWS}:{sWS+1}], {WL.EPOCH}")
        srd(a, sA, 4, 0, 2048 * 1280)
    def masks():
        a("v_mov_b32 v9, 0")
        for i in range(4): a(f"v_mov_b32 v{TOP-36+i}, 0")
        a(f"s_mov_b32 s{sGF}, 0"); a(f"s_mov_b32 s{sAF}, 0"); a("s_mov_b32 s15, 0")
        srd(a, sFl, sWS, WL.FLAG, WL.FLAG_SIZE)
        a(f"v_mov_b32 v{vCtl}, {LDS_CTL}")
        a(f"s_mov_b32 s{sLo}, -1"); a(f"s_mov_b32 s{sLo+1}, 0")
        a(f"s_mov_b32 s{sHi}, 0"); a(f"s_mov_b32 s{sHi+1}, -1")
        a(f"s_mov_b32 s{sVm}, 0xfffff"); a(f"s_mov_b32 s{sVm+1}, 0xfffff")
        a(f"s_mov_b32 s{sDm}, -1"); a(f"s_mov_b32 s{sDm+1}, 0xff")
    def nat_read_addrs(dst, stile, shift):
        a(f"v_and_b32 v{vT[0]}, 31, v{vL}")
        a(f"v_lshrrev_b32 v{vT[1]}, 5, v{vL}")
        a(f"v_bfe_u32 v{vT[2]}, v{vL}, 1, 3")
        a(f"v_xor_b32 v{vT[1]}, v{vT[1]}, v{vT[2]}")
        a(f"v_lshlrev_b32 v{vT[1]}, 4, v{vT[1]}")
        a(f"v_lshl_add_u32 v{vT[0]}, v{vT[0]}, 7, v{vT[1]}")
        a(f"s_lshl_b32 s{sT}, s{stile}, {shift}")
        a(f"v_add_u32 v{dst[0]}, s{sT}, v{vT[0]}")
        for ks in range(1, 4):
            a(f"v_xor_b32 v{dst[ks]}, {32*ks}, v{dst[0]}")

    a("s_cmp_ge_u32 s2, 256")
    a(f"s_cbranch_scc1 {L('end')}")
    st.start()
    if probe:
        a("s_memrealtime s[70:71]")
        a("s_load_dwordx2 s[64:65], s[0:1], 80")
        a("s_waitcnt lgkmcnt(0)")
        a("s_and_b32 s65, s65, 0xffff"); a("s_mov_b32 s66, 256"); a("s_mov_b32 s67, 0x20000")
        a("s_getreg_b32 s68, hwreg(HW_REG_XCC_ID)")
        a("s_xor_b32 s68, s68, s2"); a("s_and_b32 s68, s68, 7")
        a("s_cbranch_scc0 L_pok")
        a("v_mov_b32 v2, 1")
        a("s_mov_b64 exec, 1")
        a("buffer_store_dword v2, off, s[64:67], 0 sc1")
        a("s_mov_b64 exec, -1")
        a.label("L_pok")
    if rprobe:
        a("s_load_dwordx2 s[64:65], s[0:1], 80")
        a("s_waitcnt lgkmcnt(0)")
        a("s_and_b32 s65, s65, 0xffff"); a("s_mov_b32 s66, 256"); a("s_mov_b32 s67, 0x20000")
        a("s_getreg_b32 s68, hwreg(HW_REG_XCC_ID)")
        a("s_sub_u32 s68, s68, s2"); a("s_and_b32 s68, s68, 7")
        a("s_lshl_b32 s68, s68, 2")
        a("v_cmp_eq_u32 vcc, 0, v0")
        a("v_mov_b32 v2, 1")
        a("s_and_saveexec_b64 s[70:71], vcc")
        a("s_cbranch_execz L_rp0")
        a("buffer_store_dword v2, off, s[64:67], s68 sc1")
        a.label("L_rp0")
        a("s_mov_b64 exec, -1")
    a("s_load_dwordx16 s[4:19], s[0:1], 0")
    a("s_load_dwordx8 s[20:27], s[0:1], 64")
    a(f"v_lshrrev_b32 v{vT[0]}, 6, v0")
    a(f"v_and_b32 v{vL}, 63, v0")
    a(f"v_readfirstlane_b32 s{sW}, v{vT[0]}")
    a(f"s_and_b32 s{sXc}, s2, 7")
    a(f"s_lshr_b32 s{sJ}, s2, 3")
    a(f"s_xor_b32 s{sW}, s{sW}, 4")
    sRb = 98; sCb = 99; sWm = 100; sWn = 101; sWl = 3
    a(f"s_and_b32 s{sRb}, s2, 3")
    a(f"s_lshl_b32 s{sRb}, s{sRb}, 2")
    a(f"s_and_b32 s{sT}, s{sJ}, 3")
    a(f"s_add_u32 s{sRb}, s{sRb}, s{sT}")
    a(f"s_lshr_b32 s{sT}, s{sXc}, 2")
    a(f"s_lshr_b32 s{sCb}, s{sJ}, 2")
    a(f"s_cmp_eq_u32 s{sCb}, 7")
    a(f"s_cselect_b32 s{sT2}, 1, 3")
    a(f"s_lshl_b32 s{sT}, s{sT}, s{sT2}")
    a(f"s_cmp_eq_u32 s{sCb}, 7")
    a(f"s_cselect_b32 s{sT2}, s{sT}, 0")
    a(f"s_cselect_b32 s{sT}, 0, s{sT}")
    a(f"s_add_u32 s{sRb}, s{sRb}, s{sT2}")
    a(f"s_add_u32 s{sCb}, s{sCb}, s{sT}")
    if cbperm:
        tab = [5, 6, 7, 10, 11, 0, 1, 2, 8, 9, 12, 13, 14, 3, 4, 0]
        tv = sum(c << (4 * i) for i, c in enumerate(tab))
        a(f"s_mov_b32 s{sT}, {hex(tv & 0xffffffff)}")
        a(f"s_mov_b32 s{sT2}, {hex(tv >> 32)}")
        a(f"s_lshl_b32 s{sCb}, s{sCb}, 2")
        a(f"s_lshr_b64 s[{sT}:{sT2}], s[{sT}:{sT2}], s{sCb}")
        a(f"s_and_b32 s{sCb}, s{sT}, 15")
    a(f"s_and_b32 s{sWl}, s{sW}, 3")
    a(f"s_and_b32 s{sWm}, s{sW}, 1")
    a(f"s_lshr_b32 s{sWn}, s{sWl}, 1")
    a(f"s_cmp_lt_u32 s{sW}, 4")
    a(f"s_cbranch_scc1 {L('comp')}")

    a.c("=" * 20 + " " + 'LOADER WAVES (also compute phase F)')
    V = Alloc(VB, TOP)
    vRX = [V.get() for _ in range(4)]
    vFW = [V.get() for _ in range(2)]; vFs = V.get(); V.get(); vGs = 9
    V.get(2)
    XR = [[V.get(4, 4) for _ in range(4)] for _ in range(10)]
    FR = V.get(8, 4); FIn = V.get(8, 4)
    ZA = V.get(16, 4); ZB = V.get(16, 4)
    BF = [[V.get(4, 4) for _ in range(2)] for _ in range(3)]
    vDX = [BF[0][0] + i for i in range(4)]; vDW = [BF[0][1] + i for i in range(4)]
    sOX = sD; sOW = sD + 1; sM0 = sD + 2; sBeta = sD + 3; sSp = sE
    if lprio: a(f"s_setprio {lprio}")
    a(f"v_and_b32 v{vT[3]}, 7, v{vL}")
    a(f"v_lshrrev_b32 v{vT[4]}, 4, v{vL}")
    a(f"v_xor_b32 v{vT[3]}, v{vT[3]}, v{vT[4]}")
    a(f"v_lshlrev_b32 v{vT[3]}, 4, v{vT[3]}")
    a(f"v_xor_b32 v{vT[4]}, 64, v{vT[3]}")
    a(f"v_bfe_u32 v{vT[5]}, v{vL}, 3, 2")
    a(f"v_lshrrev_b32 v{vT[1]}, 5, v{vL}")
    a(f"v_lshl_add_u32 v{vT[5]}, v{vT[1]}, 3, v{vT[5]}")
    a(f"s_lshl_b32 s{sT}, s{sRb}, 1")
    a(f"s_add_u32 s{sT}, s{sT}, s{sWn}")
    a(f"s_lshl_b32 s{sT2}, s{sWm}, 5")
    a(f"s_add_u32 s{sCnt}, s{sT}, s{sT2}")
    a(f"v_lshl_add_u32 v{vT[1]}, v{vT[5]}, 6, s{sCnt}")
    a(f"v_mul_u32_u24 v{vT[1]}, 1280, v{vT[1]}")
    a(f"v_add_u32 v{vDX[0]}, v{vT[1]}, v{vT[3]}")
    a(f"v_add_u32 v{vDX[1]}, v{vT[1]}, v{vT[4]}")
    a(f"v_add_u32 v{vDX[1]}, {4*64*1280-1024}, v{vDX[1]}")
    a(f"v_add_u32 v{vDX[2]}, {16*64*1280-2048}, v{vDX[0]}")
    a(f"v_add_u32 v{vDX[3]}, {16*64*1280-2048}, v{vDX[1]}")
    a(f"v_lshrrev_b32 v{vT[0]}, 4, v{vL}")
    a(f"v_bfe_u32 v{vT[1]}, v{vL}, 2, 2")
    a(f"v_xor_b32 v{vT[1]}, v{vT[1]}, v{vT[0]}")
    a(f"v_and_b32 v{vT[2]}, 3, v{vL}")
    a(f"v_lshl_add_u32 v{vT[1]}, v{vT[1]}, 2, v{vT[2]}")
    a(f"v_lshlrev_b32 v{vT[1]}, 4, v{vT[1]}")
    a(f"s_lshl_b32 s{sT}, s{sWl}, 4")
    a(f"v_add_u32 v{vT[0]}, s{sT}, v{vT[0]}")
    a(f"v_mul_u32_u24 v{vT[0]}, 3840, v{vT[0]}")
    a(f"s_lshl_b32 s{sT}, s{sCb}, 8")
    a(f"v_add3_u32 v{vDW[0]}, v{vT[0]}, v{vT[1]}, s{sT}")
    for j in range(1, 4):
        a(f"v_add_u32 v{vDW[j]}, {j*(4*3840-1024)}, v{vDW[0]}")
    rw = 0
    for i, r in enumerate(rotx): rw |= r << (4 * i)
    a(f"s_lshl_b32 s{sT}, s{sXc}, 2")
    a(f"s_lshr_b32 s{sOX}, {hex(rw)}, s{sT}")
    a(f"s_and_b32 s{sOX}, s{sOX}, 15")
    if rin != (0, 0):
        a(f"s_and_b32 s{sT}, s{sJ}, 3")
        a(f"s_mul_i32 s{sT}, s{sT}, {rin[0]}")
        a(f"s_add_u32 s{sOX}, s{sOX}, s{sT}")
        a(f"s_lshr_b32 s{sT}, s{sJ}, 2")
        a(f"s_mul_i32 s{sT}, s{sT}, {rin[1]}")
        a(f"s_add_u32 s{sOX}, s{sOX}, s{sT}")
        a(f"s_mul_i32 s{sT}, s{sOX}, 205")
        a(f"s_lshr_b32 s{sT}, s{sT}, 11")
        a(f"s_mul_i32 s{sT}, s{sT}, 10")
        a(f"s_sub_u32 s{sOX}, s{sOX}, s{sT}")
    a(f"s_mul_i32 s{sOW}, s{sOX}, {64*3840}")
    a(f"s_lshl_b32 s{sOX}, s{sOX}, 7")
    a(f"s_lshl_b32 s{sM0}, s{sWl}, 12")
    after_kernarg()
    a(f"s_cmp_ge_u32 s{sJ}, 30")
    a(f"s_cbranch_scc1 {L('lgate')}")
    srd(a, sB, 16, 0, 640 * 3840)
    def issueX(n):
        a(f"s_add_u32 m0, s{sM0}, {STAGE[n%4]}")
        a("s_nop 0")
        for j in range(4): a(f"buffer_load_dwordx4 v{vDX[j]}, s[{sA}:{sA+3}], s{sOX} offen offset:{1024*j} lds")
    def issueW(n):
        a(f"s_add_u32 m0, s{sM0}, {STAGE[n%4]+0x4000}")
        a(f"s_add_u32 s{sOX}, s{sOX}, 128")
        for j in range(4): a(f"buffer_load_dwordx4 v{vDW[j]}, s[{sB}:{sB+3}], s{sOW} offen offset:{1024*j} lds")
        a(f"s_add_u32 s{sOW}, s{sOW}, {64*3840}")
        a(f"s_cmp_eq_u32 s{sOX}, 1280")
        a(f"s_cselect_b32 s{sOX}, 0, s{sOX}")
        a(f"s_cselect_b32 s{sOW}, 0, s{sOW}")
    def issue(n): issueX(n); issueW(n)
    issue(0); issue(1)
    masks()
    a(f"s_lshr_b32 s{sBeta}, s{sXc}, 2")
    a(f"s_mul_i32 s{sBeta}, s{sBeta}, 5")
    a(f"s_lshr_b32 s{sT}, s{sJ}, 2")
    a(f"s_add_u32 s{sBeta}, s{sBeta}, s{sT}")
    a(f"s_lshl_b32 s{sT}, s{sBeta}, 1")
    a(f"s_add_u32 s{sT}, s{sT}, s{sWm}")
    a(f"s_lshl_b32 s{sT}, s{sT}, 4")
    a(f"v_add_u32 v{vT[5]}, s{sT}, v{vT[5]}")
    a(f"v_mul_u32_u24 v{vT[5]}, 1280, v{vT[5]}")
    a(f"v_add_u32 v{vFW[0]}, v{vT[5]}, v{vT[3]}")
    a(f"v_add_u32 v{vFW[1]}, v{vT[5]}, v{vT[4]}")
    a(f"v_add_u32 v{vFW[1]}, {4*1280-1024}, v{vFW[1]}")
    a(f"v_add_u32 v{vFs}, {320*1280}, v{vT[3]}")
    a(f"v_and_b32 v{vT[0]}, 31, v{vL}")
    a(f"v_lshrrev_b32 v{vT[1]}, 5, v{vL}")
    a(f"v_lshlrev_b32 v{vGs}, 5, v{vT[0]}")
    a(f"v_lshl_add_u32 v{vGs}, v{vT[1]}, 4, v{vGs}")
    a(f"s_mul_i32 s{sT}, s{sCnt}, {WL.GA}")
    a(f"s_lshl_b32 s{sT2}, s{sBeta}, 11")
    a(f"s_add_u32 s{sT}, s{sT}, s{sT2}")
    a(f"v_add_u32 v{vGs}, s{sT}, v{vGs}")
    a(f"s_mul_i32 s{sCnt}, s{sCnt}, 48")
    a(f"s_lshl_b32 s{sT2}, s{sBeta}, 2")
    a(f"s_add_u32 s{sCnt}, s{sCnt}, s{sT2}")
    a(f"s_add_u32 s{sCnt}, s{sCnt}, {WL.FG}")
    nat_read_addrs(vRX, sWl, 12)
    if xq:
        a(f"s_sub_u32 s{sT}, s{sCb}, 1")
        a(f"s_cmp_lt_u32 s{sT}, {40 if nox else 4}")
        a("s_cselect_b64 vcc, -1, 0")
    for n in range(10):
        pr = pre and 1 <= n < 8
        if pr: issueX(n + 2)
        a(f"s_waitcnt vmcnt({(12 if pr else 8) if n < 9 else 0}) lgkmcnt(0)")
        a("s_barrier")
        if xlate and n + 2 < 10: (issueW if pr else issue)(n + 2)
        if xq: a(f"s_cbranch_vccnz {L('nx%d' % n)}")
        for ks in range(4):
            a(f"ds_read_b128 {vr(XR[n][ks],4)}, v{vRX[ks]} offset:{STAGE[n%4] & 0xffff}")
        if xq: a.label(L('nx%d' % n))
        if not xlate and n + 2 < 10: (issueW if pr else issue)(n + 2)
        if n < 9 and (STAGE[n % 4] ^ STAGE[(n + 1) % 4]) & 0x10000:
            for ks in range(4): a(f"v_xor_b32 v{vRX[ks]}, 0x10000, v{vRX[ks]}")
    st.stamp("ldone")
    a(f"s_add_u32 s{sNonce}, s{sNonce}, 1")
    a(f"s_cmp_ge_u32 s{sJ}, 20")
    a(f"s_cbranch_scc1 {L('lq')}")
    if not wgen:
        a("s_setprio 3")
        a(f"s_mov_b32 s{sGF}, s{sCnt}")
        sel_srd(sB, sWn, 10, 12, 640 * 1280)
        srd(a, sC, 10, 0, 640 * 1280)
        a(f"s_lshl_b32 s{sM0}, s{sWl}, 11")
        a(f"s_lshl_b32 s{sT}, s{sBeta}, 2")
        a(f"s_add_u32 s{sT}, s{sT}, s{sWl}")
        a(f"s_cmp_eq_u32 s{sT}, 2")
        a(f"s_cselect_b32 s{sSp}, 0xffffff00, -1")
        a(f"s_cselect_b64 vcc, -1, 0")
        a(f"s_mov_b32 s{sSp+1}, -1")
        WDB = lambda p: (0x10000 + 8192 * p) if p < 8 else 8192 * (p - 8)
        def wdma(p):
            a(f"s_add_u32 m0, s{sM0}, {WDB(p)}")
            a(f"s_mov_b64 exec, s[{sSp}:{sSp+1}]")
            a(f"buffer_load_dwordx4 v{vFW[0]}, s[{sB}:{sB+3}], s{sOX} offen lds")
            a(f"s_cbranch_vccz {L('fs%d' % p)}")
            a("s_mov_b64 exec, 0xff")
            a(f"buffer_load_dwordx4 v{vFs}, s[{sC}:{sC+3}], s{sOX} offen lds")
            a.label(L("fs%d" % p))
            a("s_mov_b64 exec, -1")
            a(f"buffer_load_dwordx4 v{vFW[1]}, s[{sB}:{sB+3}], s{sOX} offen offset:1024 lds")
            a(f"s_add_u32 s{sOX}, s{sOX}, 128")
            a(f"s_cmp_eq_u32 s{sOX}, 1280")
            a(f"s_cselect_b32 s{sOX}, 0, s{sOX}")
        def twl():
            srd(a, sB, 6, 0, 2048 * 4096)
            srd(a, sC, 8, 0, 2048 * 4096)
            a(f"buffer_load_dwordx4 {vr(FR,4)}, v{vT[2]}, s[{sB}:{sB+3}], 0 offen")
            a(f"buffer_load_dwordx4 {vr(FR+4,4)}, v{vT[2]}, s[{sB}:{sB+3}], 0 offen offset:32")
            a(f"buffer_load_dwordx4 {vr(FIn,4)}, v{vT[2]}, s[{sC}:{sC+3}], 0 offen")
            a(f"buffer_load_dwordx4 {vr(FIn+4,4)}, v{vT[2]}, s[{sC}:{sC+3}], 0 offen offset:32")
        if fcrit:
            if not fall:
                a(f"s_and_b32 s{sT}, s{sRb}, 6")
                a(f"s_cbranch_scc1 {L('f0d')}")
            if fall == 2: lds_wait("f0", 4, 4, 2)
            elif fall == 3:
                a(f"s_call_b64 s[{sVm}:{sVm+1}], {L('p2sub')}")
                a(f"s_lshl_b32 s{sT}, s{sBeta}, 2")
                a(f"s_add_u32 s{sT}, s{sT}, s{sWl}")
                a(f"s_cmp_eq_u32 s{sT}, 2")
                a(f"s_cselect_b64 vcc, -1, 0")
                a(f"s_setprio {fprio}")
            else: lds_wait("f0", 20, 4)
        for p in range(10 if fcrit else fsplit): wdma(p)
        a(f"v_and_b32 v{vT[2]}, 31, v{vL}")
        a(f"v_lshrrev_b32 v{vT[1]}, 5, v{vL}")
        a(f"v_lshlrev_b32 v{vT[2]}, 18, v{vT[2]}")
        a(f"v_lshl_add_u32 v{vT[2]}, v{vT[1]}, 4, v{vT[2]}")
        a(f"s_lshl_b32 s{sT}, s{sWl}, 12")
        a(f"s_sub_u32 s{sT}, 0x10000, s{sT}")
        for ks in range(4): a(f"v_add_u32 v{vRX[ks]}, s{sT}, v{vRX[ks]}")
        assert not STAGE[9 % 4] & 0x10000
        if fcrit: twl()
        a("s_waitcnt vmcnt(%d)" % (4 + 2 * (10 - fsplit) if fcrit else 0))
        lds_inc(12)
        lds_wait("f1", 12, 4)
        st.stamp("fb0")
        if stamps: a("s_waitcnt lgkmcnt(0)")
        def rdB(s):
            p, ks = divmod(s, 4)
            if s == 32:
                for k in range(4): a(f"v_xor_b32 v{vRX[k]}, 0x10000, v{vRX[k]}")
            for part in range(2):
                a(f"ds_read_b128 {vr(BF[s%3][part],4)}, v{vRX[ks]} offset:{(WDB(p) & 0xffff) + 4096*part}")
        rdB(0); rdB(1)
        H = 4 * fsplit
        for s in range(40):
            if not fcrit:
                if s == fstart and fwait: lds_wait("f0", 20, 4)
                if fstart <= s < fstart + 10 - fsplit: wdma(fsplit + s - fstart)
                if s == fstart + 10 - fsplit: twl()
            if s == H - 2:
                a("s_waitcnt vmcnt(4)")
                lds_inc(16)
                lds_wait("f2", 16, 4)
                st.stamp("fb1")
                if stamps: a("s_waitcnt lgkmcnt(0)")
            if s + 2 < 40: rdB(s + 2)
            a(f"s_waitcnt lgkmcnt({4 if s < 38 else 2*(39-s)})")
            for part, Z in enumerate((ZA, ZB)):
                c = "0" if s == 0 else vr(Z, 16)
                a(f"v_mfma_f32_32x32x16_bf16 {vr(Z,16)}, {vr(XR[s//4][s%4],4)}, {vr(BF[s%3][part],4)}, {c}")
        assert fstart + 10 - fsplit < H - 2
    if wgen:
        a(f"s_setprio {gprio}")
        a(f"s_mov_b32 s{sGF}, s{sCnt}")
        WDB = lambda p: 0x10000 + 8192 * p
        vE_ = vFW[0]; vF_ = vFW[1]; vD_ = vFs; vA_ = vRX[0]; vB_ = vRX[1]
        a(f"v_and_b32 v{vT[0]}, 31, v{vL}")
        a(f"v_and_b32 v{vE_}, 0x13, v{vT[0]}")
        a(f"v_bfe_u32 v{vT[1]}, v{vT[0]}, 2, 1")
        a(f"v_lshl_add_u32 v{vE_}, v{vT[1]}, 3, v{vE_}")
        a(f"v_bfe_u32 v{vT[1]}, v{vT[0]}, 3, 1")
        a(f"v_lshl_add_u32 v{vE_}, v{vT[1]}, 2, v{vE_}")
        a(f"s_lshl_b32 s{sT}, s{sBeta}, 5")
        a(f"v_add_u32 v{vE_}, s{sT}, v{vE_}")
        a(f"v_cvt_f32_u32 v{vF_}, v{vE_}")
        a(f"v_mul_f32 v{vF_}, 0x3acccccd, v{vF_}")
        a(f"v_lshrrev_b32 v{vD_}, 5, v{vL}")
        a(f"s_lshl_b32 s{sT}, s{sWl}, 4")
        a(f"v_lshl_add_u32 v{vD_}, v{vD_}, 3, s{sT}")
        a(f"s_lshl_b32 s{sT}, s{sWl}, 11")
        a(f"s_add_u32 s{sT}, s{sT}, 0x10000")
        a(f"v_lshlrev_b32 v{vB_}, 4, v{vL}")
        a(f"v_add_u32 v{vA_}, s{sT}, v{vB_}")
        a(f"s_cmp_eq_u32 s{sBeta}, 0")
        a(f"s_cselect_b32 s{sSp}, 1, 0")
        a(f"s_mov_b32 s{sSp+1}, s{sSp}")
        a(f"s_mov_b32 s{sOW}, 0")
        vK_ = vRX[2]
        assert vK_ % 2 == 0
        def kappa():
            a(f"v_cos_f32 v{vK_}, v{vF_}")
            a("s_nop 0")
            a(f"v_add_f32 v{vK_}, v{vK_}, v{vK_}")
            a(f"v_mov_b32 v{vK_+1}, v{vK_}")
        def inter(f, g):
            keep = a.lines
            a.lines = []; f(); l1 = a.lines
            a.lines = []; g(); l2 = a.lines
            a.lines = keep
            for x_, y_ in zip(l1, l2): a.lines += [x_, y_]
        def trig1(Z, step, vK_=vK_):
            a(f"v_fract_f32 v{Z}, v{Z}")
            a(f"v_add_f32 v{Z+2}, v{Z}, v{step}")
            a(f"v_sin_f32 v{Z+1}, -v{Z}")
            a(f"v_cos_f32 v{Z}, v{Z}")
            a(f"v_sin_f32 v{Z+3}, -v{Z+2}")
            a(f"v_cos_f32 v{Z+2}, v{Z+2}")
            for i in range(2, 8):
                a(f"v_pk_fma_f32 {vr(Z+2*i,2)}, {vr(Z+2*i-2,2)}, {vr(vK_,2)}, {vr(Z+2*i-4,2)} neg_lo:[0,0,1] neg_hi:[0,0,1]")
        def trig2(Z, dc, ds_):
            for i in range(4): a(f"v_cvt_pk_bf16_f32 v{dc+i}, v{Z+4*i}, v{Z+4*i+2}")
            for i in range(4): a(f"v_cvt_pk_bf16_f32 v{ds_+i}, v{Z+4*i+1}, v{Z+4*i+3}")
        def seed(Z, add):
            a(f"v_add3_u32 v{Z}, s{sT}, v{vD_}, {add}")
            a(f"v_mul_u32_u24 v{Z}, v{Z}, v{vE_}")
            a(f"v_cvt_f32_u32 v{Z}, v{Z}")
            a(f"v_mul_f32 v{Z}, 0x3acccccd, v{Z}")
            trig1(Z, vF_)
        kappa()
        GO = BF[0][0]
        a(f"s_lshr_b32 s{sT}, s{sOX}, 1")
        a.label(L("wgl"))
        inter(lambda: seed(ZA, 0), lambda: seed(ZB, 64))
        a("s_waitcnt lgkmcnt(0)")
        for h_, Z in enumerate((ZA, ZB)):
            trig2(Z, GO + 8 * h_, GO + 8 * h_ + 4)
            a(f"s_mov_b64 exec, s[{sSp}:{sSp+1}]")
            for i in range(4): a(f"v_mov_b32 v{GO+8*h_+4+i}, 0xbf803f80")
            a("s_mov_b64 exec, -1")
            a(f"ds_write_b128 v{vA_}, {vr(GO+8*h_,4)} offset:{8192*h_}")
            a(f"ds_write_b128 v{vA_}, {vr(GO+8*h_+4,4)} offset:{8192*h_+1024}")
        a(f"v_add_u32 v{vA_}, 16384, v{vA_}")
        a(f"s_add_u32 s{sT}, s{sT}, 128")
        a(f"s_cmp_ge_u32 s{sT}, 640")
        a(f"s_cselect_b32 s{sT2}, 640, 0")
        a(f"s_sub_u32 s{sT}, s{sT}, s{sT2}")
        a(f"s_add_u32 s{sOW}, s{sOW}, 1")
        a(f"s_cmp_lg_u32 s{sOW}, 5")
        a(f"s_cbranch_scc1 {L('wgl')}")
        a("s_waitcnt lgkmcnt(0)")
        lds_inc(12)
        a(f"v_and_b32 v{vT[2]}, 31, v{vL}")
        a(f"v_cvt_f32_u32 v{vF_}, v{vT[2]}")
        a(f"v_mul_f32 v{vF_}, 0x3d000000, v{vF_}")
        a(f"v_and_b32 v{vD_}, 8, v{vD_}")
        kappa()
        def tw(Z, j):
            a(f"v_add_u32 v{Z}, {16*j}, v{vD_}")
            a(f"v_cvt_f32_u32 v{Z}, v{Z}")
            a(f"v_mul_f32 v{Z}, v{Z}, v{vF_}")
            trig1(Z, vF_)
            trig2(Z, FR + 4 * j, FIn + 4 * j)
        inter(lambda: tw(ZA, 0), lambda: tw(ZB, 1))
        a(f"v_add_u32 v{vA_}, 0x10000, v{vB_}")
        a(f"v_add_u32 v{vB_}, 0x20000, v{vB_}")
        a("s_setprio 3")
        lds_wait("f1", 12, 4)
        st.stamp("fb0")
        if stamps: a("s_waitcnt lgkmcnt(0)")
        def rdB(s):
            p, ks = divmod(s, 4)
            for part in range(2):
                a(f"ds_read_b128 {vr(BF[s%3][part],4)}, v{vA_ if p < 8 else vB_} offset:{(WDB(p) & 0xffff) + 2048*ks + 1024*part}")
        rdB(0); rdB(1)
        for s in range(40):
            if s + 2 < 40: rdB(s + 2)
            a(f"s_waitcnt lgkmcnt({4 if s < 38 else 2*(39-s)})")
            for part, Z in enumerate((ZA, ZB)):
                c = "0" if s == 0 else vr(Z, 16)
                a(f"v_mfma_f32_32x32x16_bf16 {vr(Z,16)}, {vr(XR[s//4][s%4],4)}, {vr(BF[s%3][part],4)}, {c}")
    lds_inc(8)
    st.stamp("fend")
    FRn = XR[0][0]; G0 = XR[1][0]; G1 = XR[2][0]; G2 = XR[3][0]; G3 = XR[4][0]; ZS = XR[5][0]
    a("s_waitcnt vmcnt(0)")
    for i in range(8):
        a(f"v_xor_b32 v{FRn+i}, 0x80008000, v{FR+i}")
        a(f"v_xor_b32 v{FIn+i}, 0x80008000, v{FIn+i}")
    for Z in (ZA, ZB):
        for i in range(8): a(f"v_cvt_pk_bf16_f32 v{Z+i}, v{Z+2*i}, v{Z+2*i+1}")
    m = lambda d, A, B, c: a(f"v_mfma_f32_32x32x16_bf16 {vr(d,16)}, {vr(A,4)}, {vr(B,4)}, {c}")
    GP = TOP - 24
    a("s_nop 0")
    a(f"s_cmp_lg_u32 s{sBeta}, 0")
    a(f"s_cbranch_scc1 {L('fn')}")
    m(G2, ZB, FR, "0"); m(G2, ZB+4, FR+4, vr(G2,16))
    m(G3, ZB, FIn, "0"); m(G3, ZB+4, FIn+4, vr(G3,16))
    a("s_mov_b32 exec_lo, 1"); a("s_mov_b32 exec_hi, 1")
    for i in range(8): a(f"v_mov_b32 v{ZB+i}, 0")
    a(f"s_mov_b64 exec, s[{sLo}:{sLo+1}]")
    a("s_nop 3")
    for i in range(4): a(f"v_mov_b32 v{GP+16+i}, 0"); a(f"v_mov_b32 v{GP+20+i}, 0")
    a(f"v_cvt_pk_bf16_f32 v{GP+16}, v{G2}, 0")
    a(f"v_cvt_pk_bf16_f32 v{GP+20}, v{G3}, 0")
    a("s_mov_b64 exec, -1")
    a.label(L("fn"))
    m(G0, ZA, FR, "0"); m(G0, ZA+4, FR+4, vr(G0,16)); m(G0, ZB, FIn, vr(G0,16)); m(G0, ZB+4, FIn+4, vr(G0,16))
    m(G1, ZB, FRn, "0"); m(G1, ZB+4, FRn+4, vr(G1,16)); m(G1, ZA, FIn, vr(G1,16)); m(G1, ZA+4, FIn+4, vr(G1,16))
    a("s_nop 7")
    for p, g in enumerate((G0, G1)):
        for i in range(8): a(f"v_cvt_pk_bf16_f32 v{GP+8*p+i}, v{g+2*i}, v{g+2*i+1}")
    def g_stores(sd):
        srd(a, sd, sWS, WL.G, WL.G_SIZE)
        a(f"s_mov_b32 s{sT2}, {64*WL.GA}")
        for p in range(2):
            for j in range(2):
                so = "0" if p == 0 else f"s{sT2}"
                a(f"buffer_store_dwordx4 {vr(GP+8*p+4*j,4)}, v{vGs}, s[{sd}:{sd+3}], {so} offen offset:{1024*j} sc1")
        a(f"s_or_b32 s{sT}, s{sXc}, s{sJ}")
        a(f"s_cmp_ge_u32 s{sT}, 4")
        a(f"s_cbranch_scc1 {L('gs1')}")
        a(f"v_add_u32 v{vGs}, {20*1024}, v{vGs}")
        a(f"s_mov_b64 exec, s[{sLo}:{sLo+1}]")
        a(f"buffer_store_dwordx4 {vr(GP+16,4)}, v{vGs}, s[{sd}:{sd+3}], 0 offen sc1")
        a(f"buffer_store_dwordx4 {vr(GP+20,4)}, v{vGs}, s[{sd}:{sd+3}], s{sT2} offen sc1")
        a("s_mov_b64 exec, -1")
        a.label(L("gs1"))
    assert ZB + 8 <= GP
    st.stamp("gst")
    a(f"s_branch {L('help')}")
    a.label(L("lgate"))
    if cwarm:
        a(f"s_getpc_b64 s[{sT}:{sT2}]")
        a.label(L("pc0"))
        a(f"s_sub_u32 s{sT}, s{sT}, {L('pc0')}-{name}")
        a(f"s_subb_u32 s{sT2}, s{sT2}, 0")
        a(f"s_lshl_b32 s{sCnt}, s{sWl}, 13")
        a(f"v_lshl_add_u32 v{vT[0]}, v{vL}, 7, s{sCnt}")
        a(f"v_min_u32 v{vT[0]}, {L('cend')}-{name}-4, v{vT[0]}")
        a(f"global_load_dword v{vT[1]}, v{vT[0]}, s[{sT}:{sT2}]")
    if gtouch and not wgen:
        sel_srd(sB, sWm, 6, 8, 2048 * 4096)
        a(f"v_and_b32 v{vT[0]}, 31, v{vL}")
        a(f"v_lshlrev_b32 v{vT[0]}, 18, v{vT[0]}")
        a(f"buffer_load_dword v{vT[1]}, v{vT[0]}, s[{sB}:{sB+3}], 0 offen")
    masks()
    a(f"s_lshl_b32 s{sT}, s2, 3")
    a(f"s_add_u32 s{sT}, s{sT}, s{sW}")
    a(f"s_cmp_lg_u32 s{sT}, {240*8+4}")
    a(f"s_cbranch_scc1 {L('ncw')}")
    srd(a, sC, sWS, WL.KC, WL.G - WL.KC)
    for i in range(4): a(f"v_mov_b32 v{ZA+i}, 0x3f803f80")
    a(f"v_mov_b32 v{ZA+4}, 0x3f803f80"); a(f"v_mov_b32 v{ZA+5}, 0x3f80"); a(f"v_mov_b32 v{ZA+6}, 0x3f803f80"); a(f"v_mov_b32 v{ZA+7}, 0x3f80")
    a(f"v_mul_u32_u24 v{vT[2]}, {WL.VR}, v{vL}")
    for i in range(4):
        a(f"s_mov_b32 s{sT}, {WL.PL + 10240 + 64*i*WL.VR}")
        a(f"buffer_store_dwordx4 {vr(ZA,4)}, v{vT[2]}, s[{sC}:{sC+3}], s{sT} offen sc1")
    a(f"v_and_b32 v{vT[2]}, 31, v{vL}")
    a(f"v_lshlrev_b32 v{vT[2]}, 10, v{vT[2]}")
    a(f"buffer_store_dwordx4 {vr(ZA+4,4)}, v{vT[2]}, s[{sC}:{sC+3}], 0 offen sc1")
    a("s_waitcnt vmcnt(0) lgkmcnt(0)")
    a(f"s_add_u32 s{sNonce}, s{sNonce}, 1")
    a(f"s_mov_b32 s{sT}, {WL.FA + 256*128}")
    put_flag(f"s{sT}")
    a(f"s_sub_u32 s{sNonce}, s{sNonce}, 1")
    a.label(L("ncw"))
    if wpack:
        srd(a, sB, 18, 0, 640 * 1280)
        srd(a, sC, sWS, WL.WP, 8 * 102400)
        a(f"s_and_b32 s{sT}, s{sJ}, 1")
        a(f"s_lshl_b32 s{sT}, s{sT}, 2")
        a(f"s_add_u32 s{sCnt}, s{sT}, s{sWl}")
        a(f"v_mul_u32_u24 v{vT[2]}, 205, v{vL}")
        a(f"v_lshrrev_b32 v{vT[2]}, 11, v{vT[2]}")
        a(f"v_mul_u32_u24 v{vT[3]}, {1280-160}, v{vT[2]}")
        a(f"v_lshl_add_u32 v{vT[3]}, v{vL}, 4, v{vT[3]}")
        a(f"s_mul_i32 s{sT}, s{sXc}, 160")
        a(f"v_add_u32 v{vT[3]}, s{sT}, v{vT[3]}")
        a(f"s_mul_i32 s{sT}, s{sXc}, 102400")
        a(f"s_mul_i32 s{sT2}, s{sCnt}, {5*2560}")
        a(f"s_add_u32 s{sT}, s{sT}, s{sT2}")
        a(f"v_lshl_add_u32 v{vT[4]}, v{vL}, 4, s{sT}")
        a(f"s_mul_i32 s{sOX}, s{sCnt}, 5")
        a(f"s_mul_i32 s{sOW}, s{sXc}, 5")
        a(f"s_lshr_b32 s{sOW}, s{sOW}, 1")
        a(f"s_mov_b64 exec, s[{sDm}:{sDm+1}]")
        for u_ in range(5):
            a(f"s_add_u32 s{sT}, s{sOX}, {u_}")
            a(f"s_lshr_b32 s{sT2}, s{sT}, 1")
            if orot:
                a(f"s_add_u32 s{sT2}, s{sT2}, s{sOW}")
                a(f"s_cmp_ge_u32 s{sT2}, 20")
                a(f"s_cselect_b32 s{sM0}, 20, 0")
                a(f"s_sub_u32 s{sT2}, s{sT2}, s{sM0}")
            a(f"s_and_b32 s{sT}, s{sT}, 1")
            a(f"s_lshl_b32 s{sT2}, s{sT2}, 3")
            a(f"s_add_u32 s{sT}, s{sT}, s{sT2}")
            a(f"s_mul_i32 s{sT}, s{sT}, {4*1280}")
            for g_ in range(4):
                a(f"buffer_load_dwordx4 {vr(XR[u_][g_],4)}, v{vT[3]}, s[{sB}:{sB+3}], s{sT} offen")
                if g_ < 3: a(f"s_add_u32 s{sT}, s{sT}, {8*1280}")
        a("s_mov_b64 exec, -1")
    a("s_waitcnt lgkmcnt(0)")
    a("s_barrier")
    a(f"s_add_u32 s{sNonce}, s{sNonce}, 1")
    if wpack:
        a(f"s_mov_b64 exec, s[{sDm}:{sDm+1}]")
        a("s_waitcnt vmcnt(0)")
        for u_ in range(5):
            a(f"s_mov_b32 s{sT}, {2560*u_}")
            for g_ in range(4):
                a(f"buffer_store_dwordx4 {vr(XR[u_][g_],4)}, v{vT[4]}, s[{sC}:{sC+3}], s{sT} offen offset:{640*g_} sc1")
        a("s_mov_b64 exec, -1")
        a(f"s_lshl_b32 s{sT}, s{sXc}, 3")
        a(f"s_add_u32 s{sT}, s{sT}, s{sCnt}")
        a(f"s_lshl_b32 s{sT}, s{sT}, 2")
        a(f"s_add_u32 s{sT}, s{sT}, {WL.FP}")
        a("s_waitcnt vmcnt(0)")
        put_flag(f"s{sT}")
    a("s_waitcnt vmcnt(0)")
    a(f"s_branch {L('lfree')}")
    a.label(L("lq"))
    a(f"s_cmp_lg_u32 s{sCb}, 0")
    a(f"s_cbranch_scc1 {L('lfree')}")
    lds_wait("g0", 20, 4)
    srd(a, sB, 20, 0, 1280)
    a(f"s_mul_i32 s{sM0}, s{sW}, 3072")
    a(f"s_add_u32 s{sM0}, s{sM0}, {LDS_X}")
    for i in range(3):
        a(f"v_lshlrev_b32 v{vT[0]}, 4, v{vL}")
        if i: a(f"v_add_u32 v{vT[0]}, {1024*i}, v{vT[0]}")
        a(f"v_subrev_u32 v{vT[1]}, 1280, v{vT[0]}")
        a(f"v_min_u32 v{vT[0]}, v{vT[0]}, v{vT[1]}")
        a(f"s_add_u32 m0, s{sM0}, {1024*i}")
        a("s_nop 0")
        a(f"buffer_load_dwordx4 v{vT[0]}, s[{sB}:{sB+3}], 0 offen lds")
    a(f"v_lshrrev_b32 v{vT[2]}, 5, v{vL}")
    a(f"s_add_u32 s{sT}, s{sM0}, s{sOX}")
    a(f"v_lshl_add_u32 v{vT[2]}, v{vT[2]}, 4, s{sT}")
    srd(a, sC, sWS, WL.GATE, 2048 * 8)
    a(f"s_lshl_b32 s{sCnt}, s{sRb}, 2")
    a(f"s_add_u32 s{sCnt}, s{sCnt}, s{sWl}")
    a("s_waitcnt vmcnt(0)")
    GB = [BF[0][0], BF[0][1], BF[1][0], BF[1][1], BF[2][0], BF[2][1]]
    for s_ in range(5): a(f"ds_read_b128 {vr(GB[s_],4)}, v{vT[2]} offset:{32*s_}")
    for s_ in range(40):
        if s_ + 5 < 40: a(f"ds_read_b128 {vr(GB[(s_+5)%6],4)}, v{vT[2]} offset:{32*(s_+5)}")
        a(f"s_waitcnt lgkmcnt({min(5, 39 - s_)})")
        c = "0" if s_ == 0 else vr(ZA, 16)
        a(f"v_mfma_f32_32x32x16_bf16 {vr(ZA,16)}, {vr(GB[s_%6],4)}, {vr(XR[s_//4][s_%4],4)}, {c}")
    a("s_nop 12")
    a(f"v_cvt_pk_bf16_f32 v{ZA}, 0, v{ZA}")
    a(f"v_mul_f32 v{ZA}, 0xbfb8aa3b, v{ZA}")
    a(f"v_exp_f32 v{ZA}, v{ZA}")
    a(f"v_lshlrev_b32 v{vT[2]}, 3, v{vL}")
    a(f"v_add_f32 v{ZA}, 1.0, v{ZA}")
    a(f"v_rcp_f32 v{ZA}, v{ZA}")
    a(f"s_lshl_b32 s{sT}, s{sCnt}, 8")
    a(f"v_cvt_pk_bf16_f32 v{ZB}, 0, v{ZA}")
    a(f"v_sub_f32 v{ZB+1}, 1.0, v{ZB}")
    a(f"v_cvt_pk_bf16_f32 v{ZB+1}, 0, v{ZB+1}")
    a(f"s_mov_b64 exec, s[{sLo}:{sLo+1}]")
    a(f"buffer_store_dwordx2 {vr(ZB,2)}, v{vT[2]}, s[{sC}:{sC+3}], s{sT} offen sc1")
    a("s_mov_b64 exec, -1")
    a(f"s_lshl_b32 s{sGF}, s{sCnt}, 2")
    a(f"s_add_u32 s{sGF}, s{sGF}, {WL.FP + 256}")
    a.label(L("lfree"))
    a("s_waitcnt lgkmcnt(0)")
    lds_inc(8)
    a(f"s_branch {L('help')}")

    a.c("=" * 20 + " " + 'COMPUTE WAVES')
    a.label(L("comp"))
    V = Alloc(VB, TOP)
    vRX = [V.get() for _ in range(4)]; vRW = [V.get() for _ in range(2)]
    vE = [V.get() for _ in range(8)]
    vTch = V.get(2)
    XF = [[V.get(4, 4) for _ in range(2)] for _ in range(4)]
    WF = [[V.get(4, 4) for _ in range(2)] for _ in range(4)]
    ACC = [[V.get(16, 4) for _ in range(2)] for _ in range(2)]
    PK = TOP - 32
    vS = [PK - 4 + i for i in range(4)]
    sDef = 15
    sMask = sD; sScale = sD + 2
    a(f"s_setprio {cprio}")
    nat_read_addrs(vRX, sWm, 13)
    for x in range(2):
        for w in range(2):
            for i in range(16): a(f"v_mov_b32 v{ACC[x][w]+i}, 0")
    after_kernarg()
    masks()
    a(f"s_cmp_lg_u32 s{sW}, 0")
    a(f"s_cbranch_scc1 {L('c1')}")
    a(f"ds_write_b128 v{vCtl}, {vr(ACC[0][0],4)}")
    for o_ in (16, 32, 48): a(f"ds_write_b128 v{vCtl}, {vr(ACC[0][0],4)} offset:{o_}")
    a.label(L("c1"))
    if wt:
        srd(a, sC, sWS, 0, WL.END)
        a(f"v_and_b32 v{vT[0]}, {wt-1}, v{vL}")
        a(f"v_lshlrev_b32 v{vT[0]}, 20, v{vT[0]}")
        a(f"buffer_load_dword v{vTch}, v{vT[0]}, s[{sC}:{sC+3}], 0 offen offset:512 sc1")
    def poison(sd, pr):
        a(f"s_and_b32 s{sT}, s{sJ}, 3")
        a(f"s_lshl_b32 s{sT2}, s{sXc}, 2")
        a(f"s_add_u32 s{sT}, s{sT}, s{sT2}")
        a(f"s_and_b32 s{sCnt}, s{sT}, 1")
        a(f"s_lshr_b32 s{sT}, s{sT}, 1")
        a(f"s_mul_i32 s{sT}, s{sT}, {5*WL.PL}")
        a(f"s_add_u32 s{sT}, s{sT}, {WL.OF}")
        srd(a, sd, sWS, f"s{sT}", 5 * WL.PL)
        a(f"s_and_b32 s{sT}, s{sJ}, 28")
        a(f"s_add_u32 s{sT}, s{sT}, s{sW}")
        a(f"s_lshl_b32 s{sT}, s{sT}, 10")
        a(f"v_lshl_add_u32 v{vT[0]}, v{vL}, 4, s{sT}")
        for i in range(4): a(f"v_mov_b32 v{pr+i}, -1")
        a(f"s_mul_i32 s{sT}, s{sCnt}, {3*WL.PL}")
        a(f"buffer_store_dwordx4 {vr(pr,4)}, v{vT[0]}, s[{sd}:{sd+3}], s{sT} offen sc1")
        a(f"s_add_u32 s{sT}, s{sT}, {WL.PL}")
        a(f"buffer_store_dwordx4 {vr(pr,4)}, v{vT[0]}, s[{sd}:{sd+3}], s{sT} offen sc1")
        a(f"s_lshl_b32 s{sT}, s{sCnt}, 3")
        a(f"s_add_u32 s{sT}, s{sT}, {2*WL.PL}")
        a(f"buffer_store_dwordx2 {vr(pr,2)}, v{vT[0]}, s[{sd}:{sd+3}], s{sT} offen sc1")
    if pois == 1: poison(sC, PK)
    def mainloop(mode, epi):
        def rdX(s, ks, x): a(f"ds_read_b128 {vr(XF[s][x],4)}, v{vRX[ks]} offset:{4096*x}")
        def rdW(s, ks, w):
            a(f"ds_read_b64_tr_b16 {vr(WF[s][w],2)}, v{vRW[w]} offset:{4096*ks}")
            a(f"ds_read_b64_tr_b16 {vr(WF[s][w]+2,2)}, v{vRW[w]} offset:{4096*ks+1024}")
        def mf(s, x, w):
            A, B = (WF[s][w], XF[s][x]) if mode == 'qk' else (XF[s][x], WF[s][w])
            if nomf == 1: return
            if nomf == 2:
                for h_ in range(2):
                    d_ = ACC[x][w] + 8 * (s % 2) + 4 * h_
                    A2, B2 = (A, B) if h_ == 0 else (B, A)
                    a(f"v_mfma_f32_16x16x32_bf16 {vr(d_,4)}, {vr(A2,4)}, {vr(B2,4)}, {vr(d_,4)}")
                return
            a(f"v_mfma_f32_32x32x16_bf16 {vr(ACC[x][w],16)}, {vr(A,4)}, {vr(B,4)}, {vr(ACC[x][w],16)}")
        a("s_waitcnt lgkmcnt(0)")
        a("s_barrier")
        st.stamp("b0")
        if stamps: a("s_waitcnt lgkmcnt(0)")
        if deep:
            for k_ in range(2): rdX(k_, k_, 0); rdW(k_, k_, 0); rdX(k_, k_, 1); rdW(k_, k_, 1)
            a(f"s_mov_b32 s{sCnt}, 0")
            a.raw(".p2align 5")
            a.label(L(mode + "loop"))
            for ks in range(4):
                nk = (ks + 2) % 4
                a("s_waitcnt lgkmcnt(9)")
                mf(ks, 0, 0)
                if ks == 2:
                    a("s_barrier")
                    for r in (vRX[0], vRW[0], vRW[1], vRX[1]): a(f"v_xor_b32 v{r}, s{sMask}, v{r}")
                rdX(nk, nk, 0); rdW(nk, nk, 0)
                a("s_waitcnt lgkmcnt(11)")
                mf(ks, 1, 0)
                rdX(nk, nk, 1)
                if ks == 2:
                    for r in (vRX[2], vRX[3]): a(f"v_xor_b32 v{r}, s{sMask}, v{r}")
                    a(f"s_xor_b32 s{sMask}, s{sMask}, 0x18000")
                a("s_waitcnt lgkmcnt(10)")
                mf(ks, 0, 1)
                rdW(nk, nk, 1)
                if ks == 3:
                    a(f"s_add_u32 s{sCnt}, s{sCnt}, 1")
                    a(f"s_cmp_lg_u32 s{sCnt}, 9")
                mf(ks, 1, 1)
            a(f"s_cbranch_scc1 {L(mode+'loop')}")
            a("s_waitcnt lgkmcnt(9)")
            mf(0, 0, 0)
            rdX(2, 2, 0); rdW(2, 2, 0); rdX(3, 3, 0); rdW(3, 3, 0)
            a("s_waitcnt lgkmcnt(9)")
            mf(1, 0, 0)
            rdW(2, 2, 1); rdW(3, 3, 1)
            mf(0, 0, 1)
            rdX(2, 2, 1); rdX(3, 3, 1)
            a("s_waitcnt lgkmcnt(9)")
            mf(1, 0, 1)
            mf(2, 0, 0)
            a("s_waitcnt lgkmcnt(6)")
            mf(3, 0, 0)
            a("s_waitcnt lgkmcnt(2)")
            mf(2, 0, 1); mf(3, 0, 1)
            mf(0, 1, 0); mf(1, 1, 0)
            a("s_waitcnt lgkmcnt(0)")
            lds_inc(8)
            a("s_nop 1")
            mf(2, 1, 0)
            epi(0, 0)
            mf(3, 1, 0); mf(0, 1, 1)
            epi(0, 1)
            mf(1, 1, 1); mf(2, 1, 1); mf(3, 1, 1)
            st.stamp("aend")
            epi(1, 0)
            a("s_nop 1")
            epi(1, 1)
            return
        rdX(0, 0, 0); rdW(0, 0, 0); rdX(0, 0, 1); rdW(0, 0, 1)
        a(f"s_mov_b32 s{sCnt}, 0")
        a.raw(".p2align 5")
        a.label(L(mode + "loop"))
        for ks in range(4):
            s = ks % 2; n = 1 - s; nk = (ks + 1) % 4
            if ks < 3:
                a("s_waitcnt lgkmcnt(3)")
                mf(s, 0, 0)
                if ks == 0 and touch:
                    a(f"s_cmp_lg_u32 s{sCnt}, {tpos}")
                    a(f"s_cbranch_scc1 {L(mode+'nt')}")
                    a(f"buffer_load_dword v{vTch}, v{vTch+1}, s[{sE}:{sE+3}], 0 offen")
                    a.label(L(mode + "nt"))
            else:
                a("s_waitcnt lgkmcnt(0)")
                mf(s, 0, 0)
                a(f"s_add_u32 s{sCnt}, s{sCnt}, 1")
                if not peel:
                    a(f"s_cmp_eq_u32 s{sCnt}, 10")
                    a(f"s_cbranch_scc1 {L(mode+'last')}")
                a("s_barrier")
                for r in vRX + vRW:
                    a(f"v_xor_b32 v{r}, s{sMask}, v{r}")
            rdX(n, nk, 0); rdW(n, nk, 0)
            if ks < 3: a("s_waitcnt lgkmcnt(5)")
            mf(s, 1, 0)
            rdX(n, nk, 1)
            if ks < 3: a("s_waitcnt lgkmcnt(4)")
            mf(s, 0, 1)
            rdW(n, nk, 1)
            if ks == 3: a(f"s_xor_b32 s{sMask}, s{sMask}, 0x18000")
            if ks == 3 and peel: a(f"s_cmp_lg_u32 s{sCnt}, 9")
            mf(s, 1, 1)
        if not peel:
            a(f"s_branch {L(mode+'loop')}")
            a.label(L(mode + "last"))
            mf(1, 0, 1); mf(1, 1, 0); mf(1, 1, 1)
            lds_inc(8)
            st.stamp("aend")
            a("s_nop 1")
            for x in range(2):
                for w in range(2): epi(x, w)
            return
        a(f"s_cbranch_scc1 {L(mode+'loop')}")
        for ks in range(1, 4): rdX(ks, ks, 0); rdW(ks, ks, 0)
        for ks in range(4):
            a(f"s_waitcnt lgkmcnt({[12, 6, 5, 4][ks]})")
            mf(ks, 0, 0)
            if ks >= 1: rdW(ks, ks, 1)
        for ks in range(4):
            if ks: a(f"s_waitcnt lgkmcnt({[0, 4, 3, 2][ks]})")
            mf(ks, 0, 1)
            if ks >= 1: rdX(ks, ks, 1)
        mf(0, 1, 0)
        a("s_waitcnt lgkmcnt(0)")
        mf(1, 1, 0)
        lds_inc(8)
        mf(2, 1, 0)
        epi(0, 0)
        mf(3, 1, 0); mf(0, 1, 1)
        epi(0, 1)
        mf(1, 1, 1); mf(2, 1, 1); mf(3, 1, 1)
        st.stamp("aend")
        epi(1, 0)
        a("s_nop 1")
        epi(1, 1)
    a(f"s_mov_b32 s{sMask}, 0x8000")
    a(f"s_cmp_ge_u32 s{sJ}, 30")
    a(f"s_cbranch_scc1 {L('gate')}")
    a(f"s_lshl_b32 s{sAF}, s{sCb}, 4")
    a(f"s_add_u32 s{sAF}, s{sAF}, s{sRb}")
    if touch:
        sel_srd(sE, sWm, 10, 12, 640 * 1280)
        a(f"s_lshl_b32 s{sT}, s{sJ}, 1")
        a(f"s_add_u32 s{sT}, s{sT}, s{sWn}")
        a(f"s_mul_i32 s{sT}, s{sT}, {27*128}")
        a(f"s_lshr_b32 s{sT2}, s{sXc}, 2")
        a(f"s_mul_i32 s{sT2}, s{sT2}, {160*1280}")
        a(f"s_add_u32 s{sT}, s{sT}, s{sT2}")
        a(f"v_min_u32 v{vTch+1}, 26, v{vL}")
        a(f"v_lshl_add_u32 v{vTch+1}, v{vTch+1}, 7, s{sT}")
    def astore(sd, aa, bb, lab=None):
        if lab and defer: a(f"s_cbranch_vccnz {L('as%s%d%d' % (lab, aa, bb))}")
        for j in range(2):
            a(f"buffer_store_dwordx4 {vr(PK+8*(2*bb+aa)+4*j,4)}, v{vS[2*aa+j]}, s[{sd}:{sd+3}], 0 offen offset:{512*bb} sc1")
        if lab and defer: a.label(L('as%s%d%d' % (lab, aa, bb)))
    srd(a, sC, sWS, WL.QF, WL.G - WL.QF)
    if defer:
        a(f"s_and_b32 s{sDef}, s{sRb}, {dmask}")
        a(f"s_cmp_lt_u32 s{sCb}, 5")
        a(f"s_cselect_b32 s{sDef}, 0, s{sDef}")
        a(f"s_cmp_lg_u32 s{sDef}, 0")
        a("s_cselect_b64 vcc, -1, 0")
    a(f"v_bfe_u32 v{vT[0]}, v{vL}, 2, 2")
    a(f"v_lshrrev_b32 v{vT[1]}, 5, v{vL}")
    a(f"v_lshl_add_u32 v{vT[1]}, v{vT[1]}, 3, v{vT[0]}")
    a(f"v_lshlrev_b32 v{vT[1]}, 8, v{vT[1]}")
    a(f"s_lshl_b32 s{sT}, s{sWn}, 1")
    a(f"v_xor_b32 v{vT[0]}, s{sT}, v{vT[0]}")
    a(f"v_lshl_add_u32 v{vT[1]}, v{vT[0]}, 6, v{vT[1]}")
    a(f"v_bfe_u32 v{vT[0]}, v{vL}, 4, 1")
    a(f"v_lshl_add_u32 v{vT[1]}, v{vT[0]}, 5, v{vT[1]}")
    a(f"v_add_u32 v{vT[1]}, 0x4000, v{vT[1]}")
    a(f"v_and_b32 v{vT[4]}, 31, v{vL}")
    a(f"v_lshrrev_b32 v{vT[5]}, 5, v{vL}")
    a(f"s_cmp_ge_u32 s{sCb}, 10")
    a(f"s_cbranch_scc1 {L('v')}")
    a(f"v_and_b32 v{vT[0]}, 1, v{vL}")
    a(f"v_lshl_add_u32 v{vT[1]}, v{vT[0]}, 4, v{vT[1]}")
    a(f"v_bfe_u32 v{vT[0]}, v{vL}, 1, 1")
    a(f"v_lshl_add_u32 v{vRW[0]}, v{vT[0]}, 3, v{vT[1]}")
    a(f"v_xor_b32 v{vRW[1]}, 64, v{vRW[0]}")
    a(f"s_cmp_ge_u32 s{sCb}, 5")
    a(f"s_cselect_b32 s{sScale}, 1.0, {hex(QSCALE)}")
    a(f"s_mov_b32 s{sScale+1}, s{sScale}")
    a(f"s_lshl_b32 s{sT}, s{sCb}, 1")
    a(f"s_add_u32 s{sT}, s{sT}, s{sWn}")
    sR5 = sD + 1
    a(f"s_lshl_b32 s{sR5}, s{sT}, 3")
    a(f"s_mul_i32 s{sT2}, s{sR5}, 205")
    a(f"s_lshr_b32 s{sT2}, s{sT2}, 10")
    a(f"s_mul_i32 s{sT2}, s{sT2}, 5")
    a(f"s_sub_u32 s{sR5}, s{sR5}, s{sT2}")
    a(f"s_lshl_b32 s{sT}, s{sT}, 18")
    a(f"s_lshl_b32 s{sT2}, s{sRb}, 1")
    a(f"s_add_u32 s{sT2}, s{sT2}, s{sWm}")
    a(f"s_lshl_b32 s{sT2}, s{sT2}, 10")
    a(f"s_add_u32 s{sT}, s{sT}, s{sT2}")
    a(f"v_lshlrev_b32 v{vS[0]}, 15, v{vT[5]}")
    a(f"v_lshl_add_u32 v{vS[0]}, v{vT[4]}, 4, v{vS[0]}")
    a(f"v_add_u32 v{vS[0]}, s{sT}, v{vS[0]}")
    for e in range(1, 4): a(f"v_add_u32 v{vS[e]}, {e*2*WL.PL}, v{vS[0]}")
    def epi_qk(x, w):
        acc = ACC[x][w]; pk = PK + 8 * (2 * x + w)
        for i in range(0, 16, 2): a(f"v_pk_mul_f32 {vr(acc+i,2)}, {vr(acc+i,2)}, s[{sScale}:{sScale+1}]")
        for i in range(8): a(f"v_cvt_pk_bf16_f32 v{pk+i}, v{acc+2*i}, v{acc+2*i+1}")
        if x == 0: return
        for j in range(2):
            t5 = (2 - 2 * (2 * w + j)) % 5
            a(f"s_cmp_eq_u32 s{sR5}, {t5}")
            a("s_cselect_b32 exec_lo, -1, 0")
            a(f"s_cmp_eq_u32 s{sR5}, {(t5 - 1) % 5}")
            a("s_cselect_b32 exec_hi, -1, 0")
            for i in range(2): a(f"v_swap_b32 v{PK+8*w+4*j+2+i}, v{PK+8*(2+w)+4*j+i}")
        a("s_mov_b64 exec, -1")
        astore(sC, w, 0, "q"); astore(sC, w, 1, "q")
    mainloop('qk', epi_qk)
    a(f"s_branch {L('adone')}")
    a.label(L("v"))
    a(f"v_and_b32 v{vT[0]}, 3, v{vL}")
    a(f"v_lshl_add_u32 v{vRW[0]}, v{vT[0]}, 3, v{vT[1]}")
    a(f"v_xor_b32 v{vRW[1]}, 64, v{vRW[0]}")
    a(f"s_lshl_b32 s{sT}, s{sRb}, 1")
    a(f"s_add_u32 s{sT}, s{sT}, s{sWm}")
    a(f"s_mul_i32 s{sT}, s{sT}, {2*WL.VT}")
    a(f"s_sub_u32 s{sT2}, s{sCb}, 10")
    a(f"s_lshl_b32 s{sT2}, s{sT2}, 1")
    a(f"s_add_u32 s{sT2}, s{sT2}, s{sWn}")
    a(f"s_lshl_b32 s{sT2}, s{sT2}, 10")
    a(f"s_add_u32 s{sT}, s{sT}, s{sT2}")
    a(f"s_add_u32 s{sT}, s{sT}, {WL.VF - WL.QF}")
    a(f"v_mul_u32_u24 v{vS[0]}, {WL.VR}, v{vT[5]}")
    a(f"v_lshl_add_u32 v{vS[0]}, v{vT[4]}, 4, v{vS[0]}")
    a(f"v_add_u32 v{vS[0]}, s{sT}, v{vS[0]}")
    for e in range(1, 4): a(f"v_add_u32 v{vS[e]}, {e*2*WL.VR}, v{vS[0]}")
    def epi_v(x, w):
        acc = ACC[x][w]; pk = PK + 8 * (2 * w + x)
        for i in range(8): a(f"v_cvt_pk_bf16_f32 v{pk+i}, v{acc+2*i}, v{acc+2*i+1}")
        astore(sC, x, w, "v")
    mainloop('v', epi_v)
    a(f"s_branch {L('adone')}")
    a.label(L("gate"))
    a(f"s_mov_b32 s{sAF}, s2")
    a("s_waitcnt lgkmcnt(0)")
    a("s_barrier")
    def spoison():
        srd(a, sC, sWS, WL.OF, 80 * WL.PL)
        a(f"s_sub_u32 s{sT}, s2, 240")
        a(f"s_lshl_b32 s{sT}, s{sT}, 2")
        a(f"s_add_u32 s{sT}, s{sT}, s{sW}")
        a(f"s_mul_i32 s{sT}, s{sT}, 40960")
        a(f"s_add_u32 s{sT2}, s{sT}, 40960")
        a(f"v_lshlrev_b32 v{vT[3]}, 4, v{vL}")
        for i in range(4): a(f"v_mov_b32 v{PK+4+i}, -1")
        a.label(L("spl"))
        for i in range(4): a(f"buffer_store_dwordx4 {vr(PK+4,4)}, v{vT[3]}, s[{sC}:{sC+3}], s{sT} offen offset:{1024*i} sc1")
        a(f"s_add_u32 s{sT}, s{sT}, 4096")
        a(f"s_cmp_lt_u32 s{sT}, s{sT2}")
        a(f"s_cbranch_scc1 {L('spl')}")
    if pois == 5 and pfirst: spoison()
    if wdtouch:
        sel_srd(sB, sWm, 10, 12, 640 * 1280)
        a(f"s_and_b32 s{sT}, s{sJ}, 1")
        a(f"s_lshl_b32 s{sT}, s{sT}, 1")
        a(f"s_add_u32 s{sT}, s{sT}, s{sWn}")
        a(f"s_mul_i32 s{sT}, s{sT}, {400*128}")
        a(f"s_lshr_b32 s{sT2}, s{sXc}, 2")
        a(f"s_mul_i32 s{sT2}, s{sT2}, {160*1280}")
        a(f"s_add_u32 s{sT}, s{sT}, s{sT2}")
        a(f"v_min_u32 v{vT[2]}, 49, v{vL}")
        a(f"v_lshlrev_b32 v{vT[2]}, 7, v{vT[2]}")
        for i in range(8):
            a(f"buffer_load_dword v{PK}, v{vT[2]}, s[{sB}:{sB+3}], s{sT} offen")
            a(f"s_add_u32 s{sT}, s{sT}, {50*128}")
    if pois == 5 and not pfirst: spoison()
    lds_inc(8)
    a.label(L("adone"))
    if pois == 2: poison(sC, XF[0][0])
    if fwait: lds_inc(20)
    st.stamp("ast")
    a(f"s_add_u32 s{sNonce}, s{sNonce}, 1")
    a(f"s_lshl_b32 s{sAF}, s{sAF}, 7")
    a(f"s_add_u32 s{sAF}, s{sAF}, {WL.FA}")

    a.c("=" * 20 + " " + 'ATTENTION (compute waves: 128 queries x 1024 keys)')
    vKm = 10; vKr = 11; vIdx = 12; vM = 13
    vVa = [[14 + 2 * b, 15 + 2 * b] for b in range(4)]; vV0, vV1 = vVa[0]
    vG1 = 22
    Qm = [24 + 4 * q for q in range(4)]; Qr = [40 + 2 * q for q in range(4)]
    Km = [48 + 4 * b for b in range(4)]; Kr = [64 + 2 * b for b in range(4)]
    Vb = [[72 + 8 * b, 76 + 8 * b] for b in range(4)]
    S = [104 + 16 * q for q in range(4)]; O = [168 + 16 * q for q in range(4)]
    K0m = 232; K0r = 236; cO = 238; cSt = 239; cX0 = 240; cX1 = 241; cR = 242; cD0 = 243; cD1 = 244; cF0 = 245; cF1 = 246; cOne = 247; cOr = 248
    vKF = S[0]; vQF = S[0] + 1
    sK = sA; sV = sB; sQ = sC
    sHead = 98; sQb = 99; sKh = 100; sOK = 101; sOV = 14; sPar = sE; sHp = sE + 2; sU0 = sE + 3
    sCc = sHead; sEb8 = sQb; sRet = sE; sOr = 15
    def coords():
        a(f"s_and_b32 s{sT}, s{sJ}, 3")
        a(f"s_lshl_b32 s{sHead}, s{sXc}, 2")
        a(f"s_add_u32 s{sHead}, s{sHead}, s{sT}")
        a(f"s_lshr_b32 s{sQb}, s{sJ}, 2")
    def swap23(dst, src, tmp):
        a(f"v_and_b32 v{dst}, 0x13, v{src}")
        a(f"v_bfe_u32 v{tmp}, v{src}, 2, 1")
        a(f"v_lshl_add_u32 v{dst}, v{tmp}, 3, v{dst}")
        a(f"v_bfe_u32 v{tmp}, v{src}, 3, 1")
        a(f"v_lshl_add_u32 v{dst}, v{tmp}, 2, v{dst}")
    def kv_flag_offsets(kf):
        a(f"s_mul_i32 s{sT}, s{sHead}, 20")
        a(f"v_bfe_u32 v{vT[0]}, v{vL}, 4, 1")
        a(f"v_mul_u32_u24 v{vT[0]}, 19, v{vT[0]}")
        a(f"v_add_u32 v{vT[0]}, s{sT}, v{vT[0]}")
        a(f"v_lshrrev_b32 v{vT[0]}, 7, v{vT[0]}")
        a(f"v_lshrrev_b32 v{vT[1]}, 5, v{vL}")
        a(f"v_mul_u32_u24 v{vT[1]}, 5, v{vT[1]}")
        a(f"v_add3_u32 v{vT[1]}, v{vT[1]}, v{vT[0]}, 5")
        a(f"v_and_b32 v{vT[2]}, 15, v{vL}")
        a(f"v_lshl_add_u32 v{vT[1]}, v{vT[1]}, 4, v{vT[2]}")
        a(f"v_lshlrev_b32 v{kf}, 7, v{vT[1]}")
    def d_addrs(vo, vst, vr_, step0, vws=None, vgt=None):
        a(f"v_and_b32 v{vT[0]}, 15, v{vL}")
        a(f"v_lshrrev_b32 v{vT[1]}, 4, v{vL}")
        swap23(vT[4], vT[0], vT[3])
        a(f"s_and_b32 s{sT}, s{sW}, 3")
        a(f"s_lshl_b32 s{sT}, s{sT}, 4")
        a(f"s_lshl_b32 s{sT2}, s{sCc}, 6")
        a(f"s_add_u32 s{sT}, s{sT}, s{sT2}")
        a(f"v_add_u32 v{vT[2]}, s{sT}, v{vT[0]}")
        a(f"s_and_b32 s{sT}, s{sW}, 1")
        a(f"s_lshl_b32 s{sT}, s{sT}, 10")
        a(f"s_and_b32 s{sT2}, s{sW}, 2")
        a(f"s_lshl_b32 s{sT2}, s{sT2}, 4")
        a(f"s_add_u32 s{sT}, s{sT}, s{sT2}")
        a(f"s_add_u32 s{sT}, s{sT}, s{sCc}")
        a(f"v_lshl_add_u32 v{vT[0]}, v{vT[4]}, 6, s{sT}")
        if vws is not None:
            if wsg:
                a(f"v_mov_b32 v{vws}, v{vT[0]}")
            else:
                a(f"v_lshlrev_b32 v{vws}, 12, v{vT[0]}")
                a(f"v_lshl_add_u32 v{vws}, v{vT[1]}, 4, v{vws}")
            a(f"v_lshlrev_b32 v{vgt}, 3, v{vT[2]}")
        a(f"v_lshlrev_b32 v{vo}, 4, v{vT[2]}")
        a(f"v_lshl_add_u32 v{vo}, v{vT[1]}, 15, v{vo}")
        if orot:
            a(f"s_mul_i32 s{sOr}, s{sEb8}, 5")
            a(f"s_lshr_b32 s{sOr}, s{sOr}, 1")
            a(f"s_add_u32 s{sOr}, s{sOr}, {step0}")
            a(f"s_lshl_b32 s{sOr}, s{sOr}, 17")
        elif step0: a(f"v_add_u32 v{vo}, {4*WL.PL*step0}, v{vo}")
        a(f"v_mul_u32_u24 v{vst}, 1280, v{vT[0]}")
        a(f"v_lshl_add_u32 v{vst}, v{vT[1]}, 3, v{vst}")
        a(f"s_mul_i32 s{sT}, s{sEb8}, 160")
        a(f"v_add_u32 v{vst}, s{sT}, v{vst}")
        a(f"v_lshrrev_b32 v{vT[2]}, 2, v{vL}")
        a(f"v_and_b32 v{vT[1]}, 3, v{vL}")
        a(f"v_mul_u32_u24 v{vr_}, 160, v{vT[2]}")
        a(f"v_lshl_add_u32 v{vr_}, v{vT[1]}, 3, v{vr_}")
        if step0: a(f"v_add_u32 v{vr_}, {5120*step0}, v{vr_}")
    def slot_addr(dst, xor, add):
        a(f"s_and_b32 s{sT}, s{sW}, 3")
        if xor: a(f"s_xor_b32 s{sT}, s{sT}, {xor}")
        a(f"s_mul_i32 s{sT}, s{sT}, 6144")
        a(f"s_add_u32 s{sT}, s{sT}, {LDS_X + add}")
        a(f"v_lshl_add_u32 v{dst}, v{vL}, 4, s{sT}")
    def all_nonce(regs, lab, scc=1):
        for r in regs: a(f"v_xor_b32 v{r}, s{sNonce}, v{r}")
        rest = regs[1:]
        while len(rest) >= 2:
            a(f"v_or3_b32 v{regs[0]}, v{regs[0]}, v{rest[0]}, v{rest[1]}"); rest = rest[2:]
        if rest: a(f"v_or_b32 v{regs[0]}, v{regs[0]}, v{rest[0]}")
        a(f"v_cmp_ne_u32 vcc, 0, v{regs[0]}")
        a("s_nop 1")
        a("s_cmp_eq_u64 vcc, 0")
        a(f"s_cbranch_scc{scc} {L(lab)}")
    def lds_set(off):
        a(f"v_mov_b32 v{vT[0]}, 1")
        a(f"ds_write_b32 v{vCtl}, v{vT[0]} offset:{off}")
    def rd(dst, base, off, pitch=160):
        for t in range(5):
            a(f"ds_read_b64_tr_b16 {vr(dst[t],2)}, v{base} offset:{off + 32*t}")
            a(f"ds_read_b64_tr_b16 {vr(dst[t]+2,2)}, v{base} offset:{off + 32*t + 16*pitch}")
    coords()
    a(f"s_lshr_b32 s{sKh}, s{sW}, 1")
    a(f"s_and_b32 s{sPar}, s{sHead}, 1")
    a(f"s_lshr_b32 s{sHp}, s{sHead}, 1")
    a(f"s_mul_i32 s{sHp}, s{sHp}, {5*WL.PL}")
    a(f"v_and_b32 v{vT[0]}, 31, v{vL}")
    a(f"v_lshrrev_b32 v{vT[1]}, 5, v{vL}")
    swap23(vT[2], vT[0], vT[3])
    a(f"s_mul_i32 s{sT}, s{sPar}, {3*WL.PL}")
    a(f"v_lshlrev_b32 v{vKm}, 15, v{vT[1]}")
    a(f"v_lshl_add_u32 v{vKm}, v{vT[2]}, 4, v{vKm}")
    a(f"v_add_u32 v{vKm}, s{sT}, v{vKm}")
    a(f"s_lshl_b32 s{sT}, s{sPar}, 9")
    a(f"s_add_u32 s{sT}, s{sT}, {2*WL.PL}")
    a(f"v_lshl_add_u32 v{vKr}, v{vT[2]}, 4, s{sT}")
    a(f"s_sub_u32 s{sT}, {80*WL.PL}, s{sHp}")
    a(f"s_mov_b64 exec, s[{sHi}:{sHi+1}]")
    a(f"v_mov_b32 v{vKr}, s{sT}")
    a("s_mov_b64 exec, -1")
    a(f"v_mov_b32 v{vIdx}, 0xdddddddd")
    a(f"s_lshl_b32 s{sT}, s{sPar}, 2")
    a(f"v_add_u32 v{vT[2]}, s{sT}, v{vT[2]}")
    a(f"v_subrev_u32 v{vT[3]}, 20, v{vT[2]}")
    a(f"v_min_u32 v{vT[2]}, v{vT[2]}, v{vT[3]}")
    a(f"s_mul_i32 s{sT}, s{sHead}, 320")
    a(f"v_mul_u32_u24 v{vV0}, {WL.VR}, v{vT[1]}")
    a(f"v_lshl_add_u32 v{vV0}, v{vT[2]}, 4, v{vV0}")
    a(f"v_add_u32 v{vV0}, s{sT}, v{vV0}")
    a("s_mov_b32 exec_lo, 0x100000"); a("s_mov_b32 exec_hi, 0x100000")
    a(f"v_mul_u32_u24 v{vV0}, {WL.VR}, v{vT[1]}")
    a(f"v_add_u32 v{vV0}, 10240, v{vV0}")
    a("s_mov_b32 exec_lo, 0xffe00000"); a("s_mov_b32 exec_hi, 0xffe00000")
    a(f"v_mov_b32 v{vV0}, 0x40000000")
    a("s_mov_b64 exec, -1")
    for b in range(4):
        for j in range(2):
            if b or j: a(f"v_add_u32 v{vVa[b][j]}, {b*WL.VT + j*2*WL.VR}, v{vV0}")
    a(f"s_add_u32 s{sT}, s{sHp}, {WL.KF}")
    srd(a, sK, sWS, f"s{sT}", 81 * WL.PL)
    if so0:
        a(f"s_mul_i32 s{sT}, s{sKh}, {32*WL.VT}")
        a(f"s_add_u32 s{sT}, s{sT}, {WL.VF}")
        srd(a, sV, sWS, f"s{sT}", 32 * WL.VT)
    else:
        srd(a, sV, sWS, WL.VF, 32 * WL.VT)
        a(f"s_lshl_b32 s{sV+2}, s{sV+2}, s{sKh}")
    a(f"s_add_u32 s{sT}, s{sHp}, {WL.QF}")
    srd(a, sQ, sWS, f"s{sT}", 5 * WL.PL)
    a(f"s_lshl_b32 s{sOK}, s{sKh}, 14")
    a(f"s_mul_i32 s{sOV}, s{sKh}, {32*WL.VT}")
    a(f"s_lshl_b32 s{sU0}, s{sQb}, 1")
    a(f"s_and_b32 s{sT}, s{sW}, 1")
    a(f"s_add_u32 s{sU0}, s{sU0}, s{sT}")
    a(f"s_lshl_b32 s{sU0}, s{sU0}, 1")
    a(f"s_add_u32 s{sU0}, s{sU0}, s{sKh}")
    a(f"s_lshl_b32 s{sU0}, s{sU0}, 10")
    for i in range(0, 8, 2): a(f"v_mov_b64 {vr(Qr[0]+i,2)}, 0")
    for i in (0, 2): a(f"v_mov_b64 {vr(Vb[3][1]+i,2)}, 0")
    kv_flag_offsets(vKF)
    a(f"v_and_b32 v{vKF}, {hex(~(6 << 7) & 0xffffffff)}, v{vKF}")
    a(f"s_lshl_b32 s{sT}, s{sQb}, 1")
    a(f"v_and_b32 v{vT[2]}, 1, v{vL}")
    a(f"v_lshl_add_u32 v{vT[0]}, v{vT[0]}, 4, v{vT[2]}")
    a(f"v_add_u32 v{vT[0]}, s{sT}, v{vT[0]}")
    a(f"s_mov_b64 exec, s[{sHi}:{sHi+1}]")
    a(f"v_mov_b32 v{vT[0]}, 256")
    a("s_mov_b64 exec, -1")
    a(f"v_lshlrev_b32 v{vQF}, 7, v{vT[0]}")
    if defer:
        a(f"s_cmp_eq_u32 s{sDef}, 0")
        a(f"s_cbranch_scc1 {L('nd')}")
        if defer == 2: lds_wait("dw", 12, 4, 2)
        srd(a, sD, sWS, WL.QF, WL.G - WL.QF)
        for bb in range(2):
            for aa in range(2): astore(sD, aa, bb)
        a.label(L("nd"))
    a(f"v_mov_b32 v{vT[0]}, 1")
    a("s_waitcnt vmcnt(0)")
    a("s_mov_b64 exec, 1")
    a(f"ds_add_rtn_u32 v{vT[1]}, v{vCtl}, v{vT[0]} offset:4")
    a("s_mov_b64 exec, -1")
    a("s_waitcnt lgkmcnt(0)")
    a(f"v_readfirstlane_b32 s{sT}, v{vT[1]}")
    a("s_nop 1")
    a(f"s_cmp_lg_u32 s{sT}, 3")
    a(f"s_cbranch_scc1 {L('nsig')}")
    put_flag(f"s{sAF}")
    st.stamp("aflag")
    a.label(L("nsig"))
    for q in range(4):
        for i in range(0, 16, 2): a(f"v_mov_b64 {vr(O[q]+i,2)}, 0")
    d_addrs(cO, cSt, cR, NL)
    slot_addr(cX0, 0, 0); slot_addr(cX1, 2, 0)
    srd(a, sD, sWS, WL.OF, 80 * WL.PL)
    a(f"s_lshl_b32 s{sT}, s{sW}, 2")
    a(f"v_add_u32 v{cF0}, s{sT}, v{vCtl}")
    a(f"v_xor_b32 v{cF1}, 8, v{cF0}")
    a(f"v_mov_b32 v{cOne}, 1")
    a(f"v_and_b32 v{cOr}, 0x1f0, v{vKm}")
    a(f"s_and_b32 s{sT}, s{sHead}, 1")
    a(f"s_lshl_b32 s{sT}, s{sT}, 3")
    a(f"s_add_u32 s{sT}, s{sT}, {2*WL.PL}")
    a(f"v_add_u32 v{cOr}, s{sT}, v{cOr}")
    if not poll2:
        a(f"s_cmp_eq_u32 s{sW}, 0")
        a(f"s_cbranch_scc1 {L('poll')}")
        lds_wait("wa", 0, 1, 2)
        a(f"s_branch {L('go')}")
    a.label(L("poll"))
    a(f"s_mov_b32 s{sT2}, {WL.FA}")
    spin_begin("pa")
    a(f"buffer_load_dword v{vT[2]}, v{vKF}, s[{sFl}:{sFl+3}], s{sT2} offen sc1")
    a(f"buffer_load_dword v{vT[3]}, v{vQF}, s[{sFl}:{sFl+3}], s{sT2} offen sc1")
    a("s_waitcnt vmcnt(0)")
    all_nonce([vT[2], vT[3]], "pas", 0)
    def f_():
        a.label(L("pas")); spin_end("pa", psleep); a(f"s_branch {L('pad')}")
    out_of_line(f_)
    a.label(L("pad"))
    lds_set(0)
    a.label(L("go"))
    a("s_setprio 3")
    st.stamp("ardy")
    def ldKr(kb, koff): a(f"buffer_load_dwordx4 {vr(Kr[kb],4)}, v{vKr}, s[{sK}:{sK+3}], {'0' if so0 else 's%d' % sOK} offen offset:{koff}")
    def ldKm(kb, koff): a(f"buffer_load_dwordx4 {vr(Km[kb],4)}, v{vKm}, s[{sK}:{sK+3}], {'0' if so0 else 's%d' % sOK} offen offset:{koff}")
    def ldV(vb, j): a(f"buffer_load_dwordx4 {vr(Vb[vb][j],4)}, v{vVa[vb][j]}, s[{sV}:{sV+3}], {'0' if so0 else 's%d' % sOV} offen")
    def advK():
        if so0:
            a(f"s_add_u32 s{sK}, s{sK}, 2048"); a(f"s_addc_u32 s{sK+1}, s{sK+1}, 0")
        else: a(f"s_add_u32 s{sOK}, s{sOK}, 2048")
    def advV():
        if so0:
            a(f"s_add_u32 s{sV}, s{sV}, {4*WL.VT}"); a(f"s_addc_u32 s{sV+1}, s{sV+1}, 0"); a(f"s_sub_u32 s{sV+2}, s{sV+2}, {4*WL.VT}")
        else: a(f"s_add_u32 s{sOV}, s{sOV}, {4*WL.VT}")
    a(f"buffer_load_dwordx4 {vr(K0m,4)}, v{vKm}, s[{sK}:{sK+3}], 0 offen")
    a(f"s_xor_b32 s{sT2}, s{sU0}, 1024")
    for q in range(4): a(f"buffer_load_dwordx4 {vr(Qm[q],4)}, v{vKm}, s[{sQ}:{sQ+3}], s{sT2 if q < 2 else sU0} offen offset:{512*(q%2)}")
    a(f"s_mov_b64 exec, s[{sLo}:{sLo+1}]")
    for q in (0, 2): a(f"buffer_load_dwordx4 {vr(Qr[q],4)}, v{vKr}, s[{sQ}:{sQ+3}], s{sT2 if q < 2 else sU0} offen")
    a("s_mov_b64 exec, -1")
    a(f"buffer_load_dwordx2 {vr(K0r,2)}, v{vKr}, s[{sK}:{sK+3}], 0 offen")
    if so0:
        a(f"s_add_u32 s{sK}, s{sK}, s{sOK}"); a(f"s_addc_u32 s{sK+1}, s{sK+1}, 0")
    ldKr(0, 0); ldKm(0, 0)
    for kb in range(1, 4):
        ldV(kb - 1, 0); ldV(kb - 1, 1); ldKm(kb, 512 * kb)
    ldKr(2, 1024)
    lds_inc(56)
    a(f"s_add_u32 s{sT}, s{sHp}, {WL.OF}")
    srd(a, sQ, sWS, f"s{sT}", 5 * WL.PL)
    def qka(s_, k, q): a(f"v_mfma_f32_32x32x16_bf16 {vr(s_,16)}, {vr(k,4)}, {vr(Qm[q],4)}, 0")
    def qkb(s_, k, q): a(f"v_mfma_f32_32x32x8_bf16 {vr(s_,16)}, {vr(k,2)}, {vr(Qr[q],2)}, {vr(s_,16)}")
    def exp(q, i): a(f"v_exp_f32 v{S[q]+i}, v{S[q]+i}")
    def pv(o, vb, sreg):
        a(f"v_smfmac_f32_32x32x32_bf16 {vr(o,16)}, {vr(vb,4)}, {vr(sreg,8)}, v{vIdx}")
    a("s_waitcnt vmcnt(12)")
    st.stamp("qld")
    for q in range(4): qka(S[q], K0m, q)
    if si == 0:
        for q in range(4): qkb(S[q], K0r, q)
    a("s_nop 8")
    a(f"s_mov_b64 exec, s[{sHi}:{sHi+1}]")
    for q in range(4):
        a(f"v_max3_f32 v{S[q]}, v{S[q]}, v{S[q]+1}, v{S[q]+2}")
        for i in range(3, 15 if si < 2 else 9, 2):
            a(f"v_max3_f32 v{S[q]}, v{S[q]}, v{S[q]+i}, v{S[q]+i+1}")
        if si < 2: a(f"v_max_f32 v{S[q]}, v{S[q]}, v{S[q]+15}")
        a(f"v_cvt_pk_bf16_f32 v{Qr[q]}, -v{S[q]}, 0")
        if q == 0:
            a("s_mov_b64 exec, -1")
            a("s_waitcnt vmcnt(7)")
            qka(S[0], Km[0], 0)
            a(f"s_mov_b64 exec, s[{sHi}:{sHi+1}]")
        if q == 1:
            a("s_mov_b64 exec, -1")
            qkb(S[0], Kr[0], 0)
            qka(S[1], Km[0], 1)
            a(f"s_mov_b64 exec, s[{sHi}:{sHi+1}]")
    a("s_mov_b64 exec, -1")
    for i in range(8, 16, 2): a(f"v_mov_b64 {vr(S[3]+i,2)}, 0")
    a(f"s_mov_b32 s{sCnt}, 0")
    st.stamp("lbeg")
    def slot(kt, q, xtra=(), part=3):
        k1, q1 = (kt + (q + 1) // 4) % 4, (q + 1) % 4
        k2, q2 = (kt + (q + 2) // 4) % 4, (q + 2) % 4
        kp, qp = (kt - (q == 0)) % 4, (q - 1) % 4
        def mem():
            if noload: return
            if quad == 1:
                if q == 2:
                    ldV((kt - 1) % 4, 0); ldV((kt - 1) % 4, 1); ldKm(kt, 512 * (kt + 4))
                    if kt % 2: ldKr(kt - 1, 512 * (kt + 3))
                elif q == 3 and kt == 0: advV()
                return
            if quad == 2:
                if q == 0: ldV((kt - 1) % 4, 0); ldV((kt - 1) % 4, 1)
                elif q == 2:
                    ldKm(kt, 512 * (kt + 4))
                    if kt % 2: ldKr(kt - 1, 512 * (kt + 3))
                elif q == 3 and kt == 0: advV()
                return
            if q < 2:
                ldV((kt - 1) % 4, q)
                pass
            elif q == 2: ldKm(kt, 512 * (kt + 4))
            elif kt % 2:
                ldKr(kt - 1, 512 * (kt + 3))
            elif kt == 0: advV()
        if part & 1:
            if q == 3 and not wmv: a("s_waitcnt vmcnt(6)")
            qkb(S[q1], Kr[k1], q1)
            for i in range(0, 4): exp(q, i)
            pv(O[qp], Vb[kp][1], S[qp] + 8)
            mem()
            for i in range(4, 8): exp(q, i)
            qka(S[q2], Km[k2], q2)
            for l_ in xtra: a(l_)
            for i in range(8, 12): exp(q, i)
            pv(O[q], Vb[kt][0], S[q])
            if q == 2 and wmv: a("s_waitcnt vmcnt(%d)" % (7 if quad else 6))
            if kt == 3 and q == 3: advK()
        if part & 2:
            for i in range(12, 16): exp(q, i)
    a(f"s_branch {L('in')}")
    a.raw(".p2align 6")
    a.label(L("loop"))
    if wmv: slot(3, 1, part=2)
    slot(3, 2); slot(3, 3)
    a.label(L("in"))
    if wmv:
        for n_ in range(16): slot(n_ // 4, n_ % 4, part=3 if n_ < 15 else 1)
        a(f"s_bitcmp1_b32 9, s{sCnt}")
        a(f"s_cbranch_scc1 {L('hook')}")
        a.label(L("hookr"))
        slot(3, 3, part=2)
        for n_ in range(13): slot(n_ // 4, n_ % 4)
        slot(3, 1, [f"s_add_u32 s{sCnt}, s{sCnt}, 1", f"s_cmp_lg_u32 s{sCnt}, 4"], part=1)
        a(f"s_cbranch_scc1 {L('loop')}")
        slot(3, 1, part=2)
    else:
        for n_ in range(16): slot(n_ // 4, n_ % 4)
        a(f"s_bitcmp1_b32 9, s{sCnt}")
        a(f"s_cbranch_scc1 {L('hook')}")
        a.label(L("hookr"))
        for n_ in range(14): slot(n_ // 4, n_ % 4)
        a(f"s_add_u32 s{sCnt}, s{sCnt}, 1")
        a(f"s_cmp_lg_u32 s{sCnt}, 4")
        a(f"s_cbranch_scc1 {L('loop')}")
    AF = [[48 + 20 * k + 4 * t for t in range(5)] for k in range(4)] + [[O[0] + 4 * t for t in range(5)]]
    EX = S[0]; PO = 128
    cOF = [200 + 4 * i for i in range(20 - NL)]; cAC = [24 + 4 * t for t in range(5)]
    assert cOF[-1] + 4 <= K0m
    qkb(S[3], Kr[3], 3)
    for i in range(0, 4): exp(2, i)
    pv(O[1], Vb[3][1], S[1] + 8)
    for r in range(3): a(f"ds_write_b128 v{cX0}, {vr(O[0]+4*r,4)} offset:{1024*r}")
    for i in range(4, 12): exp(2, i)
    pv(O[2], Vb[3][0], S[2])
    for r in range(3): a(f"ds_write_b128 v{cX0}, {vr(O[1]+4*r,4)} offset:{3072+1024*r}")
    for i in range(12, 16): exp(2, i)
    for i in range(0, 4): exp(3, i)
    pv(O[2], Vb[3][1], S[2] + 8)
    a("s_waitcnt lgkmcnt(0)")
    a(f"ds_write_b32 v{cF0}, v{cOne} offset:32")
    for i in range(4, 12): exp(3, i)
    pv(O[3], Vb[3][0], S[3])
    a(f"ds_read_b32 v{vT[0]}, v{cF1} offset:32")
    a(f"ds_read_b32 v{vT[1]}, v{vCtl} offset:48")
    for i in range(12, 16): exp(3, i)
    spin_begin("wx0", 8 * SPIN)
    a("s_nop 0")
    pv(O[3], Vb[3][1], S[3] + 8)
    st.stamp("lend")
    a(f"s_branch {L('wx1')}") if False else None
    a.label(L("wx"))
    a("s_waitcnt lgkmcnt(0)")
    a(f"v_add_u32 v{vT[0]}, v{vT[0]}, v{vT[1]}")
    a("s_nop 0")
    a(f"v_readfirstlane_b32 s{sT}, v{vT[0]}")
    a("s_nop 1")
    a(f"s_cmp_eq_u32 s{sT}, 5")
    a(f"s_cbranch_scc0 {L('wxs')}")
    def f_():
        a.label(L("wxs"))
        a(f"ds_read_b32 v{vT[0]}, v{cF1} offset:32")
        a(f"ds_read_b32 v{vT[1]}, v{vCtl} offset:48")
        spin_end("wx", 0)
        a("s_waitcnt lgkmcnt(0)")
        a(f"s_branch {L('wxd')}")
    out_of_line(f_)
    a.label(L("wxd"))
    st.stamp("x1")
    for r in range(6): a(f"ds_read_b128 {vr(EX+4*r,4)}, v{cX1} offset:{1024*r}")
    def bcast_l(o):
        a(f"v_mov_b32 v{o+12}, v{o+8}")
        a(f"v_mov_b32 v{o+13}, v{o+8}")
        a("s_nop 1")
        a(f"v_permlane32_swap_b32 v{o+13}, v{o+12}")
        a("s_nop 1")
    for q in range(2):
        o = O[2 + q]
        a(f"s_waitcnt lgkmcnt({3 - 3*q})")
        for i in (8, 10, 0, 2, 4, 6): a(f"v_pk_add_f32 {vr(o+i,2)}, {vr(o+i,2)}, {vr(EX+12*q+i,2)}")
        a(f"v_mov_b32 v{o+12}, v{o+8}")
        a(f"v_mov_b32 v{o+13}, v{o+8}")
        a(f"v_pk_mul_f32 {vr(o+14,2)}, {vr(o,2)}, 0")
        a(f"v_pk_fma_f32 {vr(o+14,2)}, {vr(o+2,2)}, 0, {vr(o+14,2)}")
        a(f"v_permlane32_swap_b32 v{o+13}, v{o+12}")
        for i in range(4, 12, 2): a(f"v_pk_fma_f32 {vr(o+14,2)}, {vr(o+i,2)}, 0, {vr(o+14,2)}")
        a(f"v_add_f32 v{vM}, v{o+14}, v{o+15}")
        a(f"v_add_f32 v{vM}, v{vM}, v{o+12}")
        a(f"v_cmp_nge_f32 vcc, 0x71800000, v{vM}")
        a(f"s_mov_b32 s{sT}, 0x21800000")
        a(f"v_cmp_gt_f32 s[{sT2+1}:{sT2+2}], s{sT}, v{vM}")
        a("s_nop 1")
        a(f"s_or_b64 vcc, vcc, s[{sT2+1}:{sT2+2}]")
        a(f"s_cbranch_scc1 {L('sl%d' % q)}")
        def f_():
            a.label(L("sl%d" % q))
            for i in range(0, 4, 2): a(f"v_mov_b64 {vr(Qm[0]+i,2)}, {vr(Qm[2+q]+i,2)}")
            a(f"v_mov_b64 {vr(Qr[0],2)}, {vr(Qr[2+q],2)}")
            a(f"s_call_b64 s[{sRet}:{sRet+1}], {L('slow')}")
            for i in range(0, 14, 2): a(f"v_mov_b64 {vr(o+i,2)}, {vr(O[0]+i,2)}")
            a(f"s_branch {L('fin%d' % q)}")
        out_of_line(f_)
        a.label(L("fin%d" % q))
        a(f"v_rcp_f32 v{vM}, v{o+12}")
        if q == 0: a("s_waitcnt vmcnt(0)")
        else: a("s_nop 0")
        a(f"v_mul_f32 v{o+14}, v{vM}, v{vG1+q}")
        for i in range(0, 12, 2): a(f"v_pk_mul_f32 {vr(o+i,2)}, {vr(o+i,2)}, {vr(o+14,2)} op_sel_hi:[1,0]")
        po = PO + 8 * q
        for i in range(6): a(f"v_cvt_pk_bf16_f32 v{po+i}, v{o+2*i}, v{o+2*i+1}")
        for i in range(6): a(f"v_min_u32 v{po+i}, -2, v{po+i}")
        a(f"buffer_store_dwordx4 {vr(po,4)}, v{vKm}, s[{sQ}:{sQ+3}], s{sU0} offen offset:{512*q} sc1")
        a(f"s_mov_b64 exec, s[{sLo}:{sLo+1}]")
        a(f"buffer_store_dwordx2 {vr(po+4,2)}, v{cOr}, s[{sQ}:{sQ+3}], s{sU0} offen offset:{512*q} sc1")
        a("s_mov_b64 exec, -1")
    st.stamp("ost")
    if not owait:
        if hbar: a("s_barrier")
        else: lds_inc(52)
    a.c("=" * 20 + " " + 'PHASE D')
    coa = oahead
    def chk(o):
        a(f"v_max3_u32 v{vT[0]}, v{o}, v{o+1}, v{o+2}")
        a(f"v_max_u32 v{vT[0]}, v{vT[0]}, v{o+3}")
        a(f"v_cmp_eq_u32 vcc, -1, v{vT[0]}")
        a("s_nop 1")
        a("s_cmp_eq_u64 vcc, 0")
    def ldO(OF_, vo, s_, first=False):
        if orot:
            a(f"s_add_u32 s{sT}, s{sOr}, {4*WL.PL*s_}")
            a(f"s_sub_u32 s{sT2}, s{sT}, {80*WL.PL}")
            a(f"s_min_u32 s{sT}, s{sT}, s{sT2}")
        else:
            a(f"s_mov_b32 s{sT}, {4*WL.PL*s_}")
        a(f"buffer_load_dwordx4 {vr(OF_[s_],4)}, v{vo}, s[{sD}:{sD+3}], s{sT} offen{'' if (first and oplain) else ' sc1'}")
    def stages(tag, n, OF_, vo, AF_, nres, vr_, AC_, first0):
        oahead = hoa if tag == 'h' else coa
        st.stamp("ob")
        if stamps and "ob" in snames: a("s_waitcnt lgkmcnt(0)")
        for s_ in range(min(oahead, n)): ldO(OF_, vo, s_, True)
        srd(a, sC, 22, 0, 2048 * 1280)
        a(f"s_mov_b32 s59, {SPIN}")
        for s_ in range(n):
            a.label(L(f"{tag}st{s_}"))
            a(f"s_waitcnt vmcnt({min(n - 1 - s_, oahead - 1)})")
            chk(OF_[s_])
            def f_():
                if ool: a.label(L(f"{tag}bad{s_}"))
                if rwin:
                    if rsleep: a(f"s_sleep {rsleep}")
                    if rwin == 2: ldO(OF_, vo, s_)
                    a("s_waitcnt vmcnt(%d)" % (1 if rwin == 2 else 0))
                    if rwin == 1: ldO(OF_, vo, s_)
                    for r_ in range(s_ + 1, min(n, s_ + oahead)):
                        chk(OF_[r_])
                        a(f"s_cbranch_scc1 {L(f'{tag}w{s_}_{r_}')}")
                        ldO(OF_, vo, r_)
                        a.label(L(f"{tag}w{s_}_{r_}"))
                    a("s_waitcnt vmcnt(0)")
                    a("s_sub_u32 s59, s59, 1")
                    a("s_cmp_gt_i32 s59, 0")
                else:
                    a(f"s_call_b64 s[{sRet}:{sRet+1}], {L(tag + 'retry')}")
                a(f"s_cbranch_scc1 {L(f'{tag}st{s_}')}")
                if ool: a(f"s_branch {L(f'{tag}ok{s_}')}")
            if ool:
                a(f"s_cbranch_scc0 {L(f'{tag}bad{s_}')}")
                out_of_line(f_)
            else:
                a(f"s_cbranch_scc1 {L(f'{tag}ok{s_}')}")
                f_()
            a.label(L(f"{tag}ok{s_}"))
            if stamps and ("s%d" % s_) in snames:
                st.stamp("s%d" % s_); a("s_waitcnt lgkmcnt(0)")
            if s_ + oahead < n: ldO(OF_, vo, s_ + oahead, True)
            younger = min(n, s_ + nres) - 1 - s_
            a(f"s_waitcnt lgkmcnt({min(15, 10 * younger)})")
            for t in range(5):
                c = "0" if (first0 and s_ == 0) else vr(AC_[t], 4)
                a(f"v_mfma_f32_16x16x32_bf16 {vr(AC_[t],4)}, {vr(AF_[s_ % len(AF_)][t],4)}, {vr(OF_[s_],4)}, {c}")
            if s_ + nres < n: rd(AF_[(s_ + nres) % len(AF_)], vr_, 5120 * (s_ + nres))
        st.stamp("dmf")
        a("s_nop 7")
    def retry(tag, n, OF_, vo):
        a.label(L(tag + "retry"))
        a("s_waitcnt vmcnt(0)")
        a(f"s_sleep {hrs if (hearly and tag == 'h') else rsleep}")
        for s_ in range(n):
            chk(OF_[s_])
            if ool:
                a(f"s_cbranch_scc0 {L(f'{tag}rl{s_}')}")
                def g_():
                    a.label(L(f"{tag}rl{s_}")); ldO(OF_, vo, s_); a(f"s_branch {L(f'{tag}rt{s_}')}")
                out_of_line(g_)
            else:
                a(f"s_cbranch_scc1 {L(f'{tag}rt{s_}')}")
                ldO(OF_, vo, s_)
            a.label(L(f"{tag}rt{s_}"))
        a("s_waitcnt vmcnt(0)")
        a("s_sub_u32 s59, s59, 1")
        a("s_cmp_gt_i32 s59, 0")
        a(f"s_setpc_b64 s[{sRet}:{sRet+1}]")
    def dfin(keep, send, AC_, AB_, wr, rdd, vst):
        for r, t in enumerate(send): a(f"ds_write_b128 v{wr}, {vr(AC_[t],4)} offset:{1024*r}")
        a("s_waitcnt lgkmcnt(0)")
        a("s_barrier")
        st.stamp("db")
        if stamps and "db" in snames: a("s_waitcnt lgkmcnt(0)")
        for r, t in enumerate(keep): a(f"ds_read_b128 {vr(AB_[t],4)}, v{rdd} offset:{1024*r}")
        for r, t in enumerate(keep):
            a(f"s_waitcnt lgkmcnt({len(keep)-1-r})")
            for i in range(4): a(f"v_add_f32 v{AC_[t]+i}, v{AC_[t]+i}, v{AB_[t]+i}")
            a(f"v_cvt_pk_bf16_f32 v{AC_[t]}, v{AC_[t]}, v{AC_[t]+1}")
            a(f"v_cvt_pk_bf16_f32 v{AC_[t]+1}, v{AC_[t]+2}, v{AC_[t]+3}")
            a(f"buffer_store_dwordx2 {vr(AC_[t],2)}, v{vst}, s[{sC}:{sC+3}], 0 offen offset:{32*t} {osc}")
    for k in range(4): rd(AF[k], cR, 5120 * k)
    for o_ in cOF:
        pass
    a(f"v_add_u32 v{cD1}, 3072, v{cX1}")
    if owait:
        if hearly: lds_inc(52)
        a("s_waitcnt vmcnt(0)")
        if not hearly: a("s_barrier")
        else: a("s_waitcnt lgkmcnt(0)")
    elif odelay: a(f"s_sleep {odelay}")
    stages("c", 20 - NL, cOF, cO, AF, 4, cR, cAC, True)
    dfin([0, 1, 2], [3, 4], cAC, AF[4 if (20 - NL) % 5 != 0 else 0], cX1, cD1, cSt)
    a(f"s_branch {L('dend')}" if (stamps or enc) else "s_endpgm")

    a.label(L("hook"))
    a(f"s_cmp_eq_u32 s{sCnt}, 0")
    a(f"s_cbranch_scc0 {L('hook3')}")
    st.stamp("k0a")
    lds_wait("wb", 24, 1)
    st.stamp("k0b")
    a(f"s_branch {L('hookr')}")
    a.label(L("hook3"))
    st.stamp("k3a")
    lds_wait("wg", 28, 1)
    a(f"s_mov_b32 s{sK+2}, 0")
    srd(a, sD, sWS, WL.GATE, 2048 * 8)
    a(f"v_bfe_u32 v{vT[0]}, v{vKm}, 4, 5")
    a(f"v_lshlrev_b32 v{vT[0]}, 3, v{vT[0]}")
    a(f"s_lshr_b32 s{sT}, s{sU0}, 1")
    for q in range(2): a(f"buffer_load_dword v{vG1+q}, v{vT[0]}, s[{sD}:{sD+3}], s{sT} offen offset:{4+256*q} sc1")
    srd(a, sD, sWS, WL.OF, 80 * WL.PL)
    a(f"s_branch {L('hookr')}")

    a.c("=" * 20 + " " + 'HELPER WAVES (the loaders, during attention)')
    a.label(L("help"))
    hR = 10; hR2 = 11; hO = 12; hSt = 13; hD0 = 14; hD1 = 15; hG = 16; hWo = 17; hGd = 18; hWs = 19
    hAC = [20 + 4 * t for t in range(5)]
    hOF = [40 + 4 * i for i in range(NL)]
    NH = (TOP - (40 + 4 * NL)) // 20
    hAF = [[40 + 4 * NL + 20 * k + 4 * t for t in range(5)] for k in range(NH)]
    WsF = hOF[0:4]; GFl = hOF[4]; hGt = GFl + 12; hKF = GFl + 13
    sWo = sD; sM0 = 3
    a("s_setprio 3")
    coords()
    d_addrs(hO, hSt, hR, 0, hWs, hGt)
    a(f"s_cmp_lt_u32 s{sEb8}, 4")
    a(f"s_cselect_b32 s{sT}, 0, 3")
    a(f"v_xor_b32 v{vT[1]}, s{sT}, v{vT[1]}")
    a(f"v_mul_u32_u24 v{hR2}, 176, v{vT[2]}")
    a(f"v_lshl_add_u32 v{hR2}, v{vT[1]}, 3, v{hR2}")
    a(f"v_add_u32 v{hR2}, {GIMG}, v{hR2}")
    slot_addr(hD0, 2, 0)
    a(f"v_add_u32 v{hD1}, 3072, v{hD0}")
    a(f"v_mul_u32_u24 v{vT[2]}, 187, v{vL}")
    a(f"v_lshrrev_b32 v{vT[2]}, 11, v{vT[2]}")
    a(f"v_mul_u32_u24 v{vT[3]}, 11, v{vT[2]}")
    a(f"v_sub_u32 v{vT[3]}, v{vL}, v{vT[3]}")
    a(f"v_mul_u32_u24 v{hGd}, {WL.GA}, v{vT[2]}")
    a(f"v_lshrrev_b32 v{vT[2]}, 1, v{vT[3]}")
    a(f"v_lshl_add_u32 v{hGd}, v{vT[2]}, 10, v{hGd}")
    a(f"v_and_b32 v{vT[3]}, 1, v{vT[3]}")
    a(f"v_lshl_add_u32 v{hGd}, v{vT[3]}, 4, v{hGd}")
    a(f"s_sub_u32 s{sT}, 7, s{sEb8}")
    a(f"s_sub_u32 s{sT2}, 32, s{sCc}")
    a(f"s_and_b32 s{sT2}, s{sT2}, 31")
    a(f"s_cmp_lt_u32 s{sEb8}, 4")
    a(f"s_cselect_b32 s{sT}, s{sEb8}, s{sT}")
    a(f"s_cselect_b32 s{sT2}, s{sCc}, s{sT2}")
    a(f"s_mul_i32 s{sT}, s{sT}, 5120")
    a(f"s_lshl_b32 s{sT2}, s{sT2}, 5")
    a(f"s_add_u32 s{sT}, s{sT}, s{sT2}")
    a(f"v_add_u32 v{hGd}, s{sT}, v{hGd}")
    a(f"v_lshlrev_b32 v{hWo}, 4, v{vL}")
    if wsg:
        wZ = [hAF[0][0], hAF[1][0]]; wK = hAF[2][0]; wF = wK + 2
        a(f"v_cvt_f32_u32 v{wF}, v{hWs}")
        a(f"v_mul_f32 v{wF}, 0x3a000000, v{wF}")
        a(f"v_cos_f32 v{wK}, v{wF}")
        a(f"v_lshrrev_b32 v{vT[2]}, 4, v{vL}")
        a(f"v_add_f32 v{wK}, v{wK}, v{wK}")
        a(f"v_mov_b32 v{wK+1}, v{wK}")
        def wsf(s_):
            Z = wZ[s_]
            a(f"v_lshl_add_u32 v{Z}, v{vT[2]}, 3, {32*s_}")
            a(f"v_cvt_f32_u32 v{Z}, v{Z}")
            a(f"v_mul_f32 v{Z}, v{Z}, v{wF}")
            trig1(Z, wF, wK)
            trig2(Z, WsF[s_], WsF[2 + s_])
        inter(lambda: wsf(0), lambda: wsf(1))
    a(f"s_call_b64 s[{sVm}:{sVm+1}], {L('p2sub')}")
    lds_wait("hb", 24, 1, 4)
    a(f"s_setprio {hp0}")
    a(f"s_cmp_eq_u32 s{sGF}, 0")
    a(f"s_cbranch_scc1 {L('hg')}")
    a(f"s_cmp_ge_u32 s{sJ}, 20")
    a(f"s_cbranch_scc1 {L('hg1')}")
    g_stores(sC)
    a.label(L("hg1"))
    a("s_waitcnt vmcnt(0)")
    put_flag(f"s{sGF}")
    a.label(L("hg"))
    lds_wait("hr", 8, 8, 4)
    st.stamp("hp2")
    for p_ in range(0 if wsg else 2):
        srd(a, sD, 6 + 2 * p_, 0, 2048 * 4096)
        a(f"buffer_load_dwordx4 {vr(WsF[2*p_],4)}, v{hWs}, s[{sD}:{sD+3}], 0 offen")
        a(f"buffer_load_dwordx4 {vr(WsF[2*p_+1],4)}, v{hWs}, s[{sD}:{sD+3}], 0 offen offset:64")
    if ot:
        srd(a, sC, 22, 0, 2048 * 1280)
        a(f"buffer_load_dword v{hG}, v{hSt}, s[{sC}:{sC+3}], 0 offen sc1")
        a(f"buffer_load_dword v{hG}, v{hSt}, s[{sC}:{sC+3}], 0 offen offset:128 sc1")
    a(f"s_mul_i32 s{sT}, s{sEb8}, 102400")
    a(f"s_add_u32 s{sT}, s{sT}, {WL.WP}")
    srd(a, sWo, sWS, f"s{sT}", 102400)
    a(f"s_and_b32 s{sM0}, s{sW}, 3")
    a(f"s_lshl_b32 s{sM0}, s{sM0}, 10")
    a.label(L("hwo"))
    a(f"s_mov_b32 m0, s{sM0}")
    a(f"s_waitcnt vmcnt({wdep})")
    a(f"buffer_load_dwordx4 v{hWo}, s[{sWo}:{sWo+3}], s{sM0} offen lds")
    if wpace: a(f"s_sleep {wpace // 4}")
    a(f"s_add_u32 s{sM0}, s{sM0}, 4096")
    a(f"s_cmp_lt_u32 s{sM0}, 102400")
    a(f"s_cbranch_scc1 {L('hwo')}")
    st.stamp("hwo")
    if pgp == 1: a("s_setprio 3")
    a(f"s_cmp_lg_u32 s{sW}, 4")
    a(f"s_cbranch_scc1 {L('hpg')}")
    if pgp == 2: a("s_setprio 3")
    a("s_cmp_lg_u32 s2, 0")
    a(f"s_cbranch_scc1 {L('ed')}")
    a(f"v_lshlrev_b32 v{vT[0]}, 9, v{vL}")
    a(f"s_mov_b32 s{sT2}, {WL.FA}")
    spin_begin("pe")
    for i in range(4): a(f"buffer_load_dword v{vT[2]+i}, v{vT[0]}, s[{sFl}:{sFl+3}], s{sT2} offen offset:{128*i} sc1")
    a("s_waitcnt vmcnt(0)")
    all_nonce([vT[2], vT[3], vT[4], vT[5]], "ped")
    spin_end("pe")
    a.label(L("ped"))
    put_flag("0")
    a.label(L("ed"))
    spin_begin("pg")
    a(f"v_mul_u32_u24 v{vT[0]}, 48, v{vL}")
    a(f"buffer_load_dwordx4 {vr(GFl,4)}, v{vT[0]}, s[{sFl}:{sFl+3}], 0 offen offset:{WL.FG} sc1")
    a(f"buffer_load_dwordx4 {vr(GFl+4,4)}, v{vT[0]}, s[{sFl}:{sFl+3}], 0 offen offset:{WL.FG+16} sc1")
    a(f"buffer_load_dwordx2 {vr(GFl+8,2)}, v{vT[0]}, s[{sFl}:{sFl+3}], 0 offen offset:{WL.FG+32} sc1")
    a(f"v_lshlrev_b32 v{vT[0]}, 2, v{vL}")
    a(f"s_mov_b32 s{sT}, {WL.FP + 256}")
    a(f"buffer_load_dword v{GFl+10}, v{vT[0]}, s[{sFl}:{sFl+3}], s{sT} offen sc1")
    a(f"s_mov_b32 s{sT}, {WL.FA + 240*128}")
    a(f"v_and_b32 v{vT[0]}, 15, v{vL}")
    a(f"v_lshlrev_b32 v{vT[0]}, 7, v{vT[0]}")
    a(f"buffer_load_dword v{GFl+11}, v{vT[0]}, s[{sFl}:{sFl+3}], s{sT} offen sc1")
    a("s_waitcnt vmcnt(0)")
    all_nonce([GFl + i for i in range(12)], "pgd")
    spin_end("pg", 16)
    a.label(L("pgd"))
    lds_set(28)
    if pgp == 2: a(f"s_setprio {hp0}")
    a.label(L("hpg"))
    lds_wait("hq", 28, 1, hsl)
    srd(a, sWo, sWS, WL.GATE, 2048 * 8)
    a(f"buffer_load_dword v{hG}, v{hGt}, s[{sWo}:{sWo+3}], 0 offen sc1")
    srd(a, sWo, sWS, WL.G, WL.G_SIZE)
    a(f"s_and_b32 s{sT2}, s{sW}, 3")
    a(f"s_mul_i32 s{sM0}, s{sT2}, {4*176}")
    a(f"s_mul_i32 s{sT2}, s{sT2}, {8*WL.GA}")
    a("s_mov_b32 exec_hi, 0xfff")
    for i in range(8):
        a(f"s_add_u32 m0, s{sM0}, {GIMG + 16*176*i}")
        a(f"s_add_u32 s{sT}, s{sT2}, {(32*(i//2) + 4*(i%2))*WL.GA}")
        a(f"s_waitcnt vmcnt({wdep})")
        a(f"buffer_load_dwordx4 v{hGd}, s[{sWo}:{sWo+3}], s{sT} offen lds")
    a("s_mov_b64 exec, -1")
    a("s_waitcnt vmcnt(0)")
    lds_inc(48)
    lds_wait("hi", 48, 4, hsl)
    st.stamp("him")
    if stamps: a("s_waitcnt lgkmcnt(0)")
    a(f"s_setprio {hp1}")
    def ymf(off):
        for k in range(4): rd(hAF[k], hR2, GSTEP * k + off, 176)
        for k in range(4):
            a(f"s_waitcnt lgkmcnt({min(15, 30 - 10*k)})")
            for t in range(5):
                c = "0" if k == 0 else vr(hAC[t], 4)
                a(f"v_mfma_f32_16x16x32_bf16 {vr(hAC[t],4)}, {vr(hAF[k][t],4)}, {vr(WsF[k],4)}, {c}")
        a("s_nop 7")
    a(f"s_cmp_lt_u32 s{sEb8}, 4")
    a(f"s_cbranch_scc0 {L('ymir')}")
    ymf(0)
    for t in range(5):
        for i in (0, 2): a(f"v_pk_mul_f32 {vr(hAC[t]+i,2)}, {vr(hAC[t]+i,2)}, {vr(hG,2)} op_sel_hi:[1,0]")
    a(f"s_branch {L('ydone')}")
    a.label(L("ymir"))
    for i in range(8): a(f"v_xor_b32 v{WsF[2]+i}, 0x80008000, v{WsF[2]+i}")
    if ym6:
        Y5 = hAF[6][0]
        for k in range(4):
            a(f"ds_read_b64_tr_b16 {vr(hAF[5][k],2)}, v{hR2} offset:{GSTEP*k + 160}")
            a(f"ds_read_b64_tr_b16 {vr(hAF[5][k]+2,2)}, v{hR2} offset:{GSTEP*k + 160 + 16*176}")
        a(f"v_add_u32 v{vT[0]}, 48, v{vL}")
        a(f"v_lshlrev_b32 v{vT[0]}, 2, v{vT[0]}")
        a("s_waitcnt lgkmcnt(0)")
        for k in range(4):
            a(f"v_mfma_f32_16x16x32_bf16 {vr(Y5,4)}, {vr(hAF[5][k],4)}, {vr(WsF[k],4)}, {'0' if k == 0 else vr(Y5,4)}")
        ymf(0)
        a("s_mov_b32 exec_lo, 0"); a("s_mov_b32 exec_hi, 0xffff0000")
        for t in range(5): a(f"v_mov_b32 v{hAC[t]}, v{hAC[t+1] if t < 4 else Y5}")
        a("s_mov_b64 exec, -1")
        for t in range(5): a(f"ds_bpermute_b32 v{hAF[4][t]}, v{vT[0]}, v{hAC[4-t]}")
    else:
        ymf(8)
        for t in range(5): a(f"v_mul_f32 v{hAF[4][t]}, v{hAC[4-t]}, v{hG}")
        ymf(0)
    for t in range(5):
        for i in range(1, 4): a(f"v_mul_f32 v{hAF[4][t]+i}, v{hAC[4-t]+4-i}, v{hG}")
    if ym6:
        a("s_waitcnt lgkmcnt(0)")
        for t in range(5): a(f"v_mul_f32 v{hAF[4][t]}, v{hAF[4][t]}, v{hG}")
    for t in range(5):
        for i in (0, 2): a(f"v_mov_b64 {vr(hAC[t]+i,2)}, {vr(hAF[4][t]+i,2)}")
    a.label(L("ydone"))
    for k in range(NH): rd(hAF[k], hR, 5120 * k)
    for o_ in hOF:
        for i in (0, 2):
            if hz: a(f"v_mov_b64 {vr(o_+i,2)}, 0")
    srd(a, sD, sWS, WL.OF, 80 * WL.PL)
    st.stamp("hrdy")
    if hearly:
        a("s_waitcnt lgkmcnt(0)")
    elif hbar:
        a("s_waitcnt lgkmcnt(0)")
        a("s_barrier")
    else: lds_wait("ho", 52, 4, hsl)
    a("s_setprio %d" % (0 if hearly else 3))
    if ldel and not owait: a(f"s_sleep {ldel}")
    stages("h", NL, hOF, hO, hAF, NH, hR, hAC, False)
    if hearly: lds_wait("ho", 52, 4, 1)
    dfin([3, 4], [0, 1, 2], hAC, hAF[NH - 1], hD1, hD0, hSt)
    a.label(L("dend"))
    st.finish(9)
    a.label(L("end"))
    a("s_endpgm")
    a.label(L("p2sub"))
    lds_wait("hw", 56, 4, 4)
    a(f"s_cmp_lg_u32 s{sW}, 4")
    a(f"s_cbranch_scc1 {L('hp2')}")
    coords()
    kv_flag_offsets(vT[5])
    a(f"v_lshlrev_b32 v{vT[4]}, 2, v{vL}")
    spin_begin("p2")
    a(f"s_mov_b32 s{sT2}, {WL.FA}")
    a(f"buffer_load_dword v{vT[2]}, v{vT[5]}, s[{sFl}:{sFl+3}], s{sT2} offen sc1")
    a(f"s_mov_b32 s{sT2}, {WL.FP}")
    a(f"buffer_load_dword v{vT[3]}, v{vT[4]}, s[{sFl}:{sFl+3}], s{sT2} offen sc1")
    a("s_waitcnt vmcnt(0)")
    all_nonce([vT[2], vT[3]], "p2d")
    spin_end("p2", 6)
    a.label(L("p2d"))
    lds_set(24)
    a.label(L("hp2"))
    a(f"s_setpc_b64 s[{sVm}:{sVm+1}]")
    if not rwin:
        retry("c", 20 - NL, cOF, cO)
        retry("h", NL, hOF, hO)

    a.c("=" * 20 + " " + 'slow path (exact row max): tile Qm[0]/Qr[0] -> O[2]')
    a.label(L("slow"))
    sSK = sT2 + 1; sSV = sT2 + 2
    a("s_waitcnt vmcnt(0) lgkmcnt(0)")
    a(f"s_add_u32 s{sT}, s{sHp}, {WL.KF}")
    srd(a, sK, sWS, f"s{sT}", 81 * WL.PL)
    srd(a, sV, sWS, WL.VF, 64 * WL.VT)
    a(f"s_mov_b64 exec, s[{sHi}:{sHi+1}]")
    a(f"v_mov_b64 {vr(Qr[0],2)}, 0")
    a("s_mov_b64 exec, -1")
    a(f"v_mov_b32 v{vM}, 0xff800000")
    a(f"s_mov_b32 s{sSK}, 0")
    def qk_slow():
        a(f"s_bfe_u32 s{sT}, s{sSK}, 0x10009")
        a(f"s_mul_i32 s{sT}, s{sT}, 504")
        a(f"s_sub_u32 s{sT}, s{sSK}, s{sT}")
        a(f"buffer_load_dwordx2 {vr(Kr[0],2)}, v{vKr}, s[{sK}:{sK+3}], s{sT} offen")
        a(f"buffer_load_dwordx4 {vr(Km[0],4)}, v{vKm}, s[{sK}:{sK+3}], s{sSK} offen")
        a("s_waitcnt vmcnt(0)")
        qka(S[3], Km[0], 0)
        a("s_nop 11")
        qkb(S[3], Kr[0], 0)
        a("s_nop 12")
    a.label(L("s1"))
    qk_slow()
    for i in range(0, 16, 2):
        a(f"v_max3_f32 v{vM}, v{vM}, v{S[3]+i}, v{S[3]+i+1}")
    a(f"s_add_u32 s{sSK}, s{sSK}, 512")
    a(f"s_cmp_lt_u32 s{sSK}, {WL.PL}")
    a(f"s_cbranch_scc1 {L('s1')}")
    a(f"v_mov_b32 v{vT[0]}, v{vM}")
    a("s_nop 1")
    a(f"v_permlane32_swap_b32 v{vT[0]}, v{vM}")
    a("s_nop 1")
    a(f"v_max_f32 v{vM}, v{vM}, v{vT[0]}")
    a(f"v_cvt_pk_bf16_f32 v{S[3]}, 0, -v{vM}")
    a(f"v_sub_f32 v{vT[0]}, 0, v{vM}")
    a(f"v_sub_f32 v{vT[0]}, v{vT[0]}, v{S[3]}")
    a(f"v_cvt_pk_bf16_f32 v{S[3]+1}, 0, v{vT[0]}")
    a(f"v_sub_f32 v{vT[1]}, v{vT[0]}, v{S[3]+1}")
    a(f"s_mov_b64 exec, s[{sHi}:{sHi+1}]")
    a(f"v_cvt_pk_bf16_f32 v{Qr[0]}, v{S[3]}, v{S[3]+1}")
    a(f"v_cvt_pk_bf16_f32 v{Qr[0]+1}, v{vT[1]}, 0")
    a("s_mov_b64 exec, -1")
    for i in range(0, 16, 2): a(f"v_mov_b64 {vr(O[0]+i,2)}, 0")
    a(f"s_mov_b32 s{sSK}, 0")
    a(f"s_mov_b32 s{sSV}, 0")
    a.label(L("s2"))
    a(f"buffer_load_dwordx4 {vr(Vb[0][0],4)}, v{vV0}, s[{sV}:{sV+3}], s{sSV} offen")
    a(f"buffer_load_dwordx4 {vr(Vb[0][1],4)}, v{vV1}, s[{sV}:{sV+3}], s{sSV} offen")
    qk_slow()
    for i in range(16): exp(3, i)
    a("s_nop 1")
    pv(O[0], Vb[0][0], S[3])
    pv(O[0], Vb[0][1], S[3] + 8)
    a(f"s_add_u32 s{sSK}, s{sSK}, 512")
    a(f"s_add_u32 s{sSV}, s{sSV}, {WL.VT}")
    a(f"s_cmp_lt_u32 s{sSK}, {WL.PL}")
    a(f"s_cbranch_scc1 {L('s2')}")
    a("s_nop 12")
    bcast_l(O[0])
    a(f"s_setpc_b64 s[{sRet}:{sRet+1}]")
    a.lines += cold
    a.label(L("cend"))
    return DOC + a.text(), kernel_desc(name, 256, 102), f"; @launch grid=(256,1,1) block=(512,1,1) lds={LDS_SIZE}"

if __name__ == "__main__":
    import sys
    from gen import build
    path = sys.argv[1]
    sn = [x[3:].split(',') for x in sys.argv if x.startswith('sn=')]
    kw = {x.split('=')[0]: eval(x.split('=')[1]) for x in sys.argv[2:] if not x.startswith('sn=')}
    hd = kw.pop('hdbg', False)
    build(path, [gen(stamps=(2 if hd else bool(sn)), snames=sn[0] if sn else (), **kw)])
```
